```python
import torch

def _softmax(x, axis=-1):
    return torch.softmax(x, dim=axis)

def _gelu(x):
    return torch.nn.functional.gelu(x, approximate='tanh')

def _silu(x):
    return torch.nn.functional.silu(x)

def _sigmoid(x):
    return torch.sigmoid(x)

def _layernorm(x, axis=-1, eps=1e-05):
    m = x.mean(dim=axis, keepdim=True)
    v = x.var(dim=axis, keepdim=True, unbiased=False)
    return (x - m) / torch.sqrt(v + eps)

def _scatter_add(tgt, idx, src, axis=0):
    return tgt.clone().index_add_(axis, idx, src)

def _segment_sum(src, seg, n):
    out = torch.zeros((n,) + src.shape[1:], dtype=src.dtype)
    return out.index_add_(0, seg, src)

def _pad(x, pw):
    flat = tuple((v for pair in reversed(pw) for v in pair))
    return torch.nn.functional.pad(x, flat)
kernel_name = 'gather_scatter__tensor_product_equiv_tfn__graph'

def setup_inputs():

    _w = lambda a: (lambda t: t.to(torch.bfloat16) if t.is_floating_point() else t)(torch.as_tensor(a))
    N, deg, C, L, DE = (10000, 32, 128, 1, 4)
    E = N * deg
    M = (L + 1) ** 2
    src = (lambda lo, hi, *s: torch.randint(lo, hi, s))(0, N, E).to(torch.int64)
    dst = (lambda lo, hi, *s: torch.randint(lo, hi, s))(0, N, E).to(torch.int64)
    r = (lambda *s: torch.randn(*s, dtype=torch.bfloat16) * 0.05)(E, 3)
    r = r / (torch.linalg.norm(r, dim=-1, keepdim=True) + 1e-09)
    rx, ry, rz = (r[:, 0].clone(), r[:, 1].clone(), r[:, 2].clone())
    Ys = [torch.ones((E, 1), dtype=float)]
    if L >= 1:
        Ys.append(r.to(float))
    if L >= 2:
        Ys.append(torch.stack([2 * rx * ry, 2 * ry * rz, (3 * rz * rz - 1.0) / (lambda _x: torch.sqrt(torch.as_tensor(_x)))(3.0), 2 * rx * rz, rx * rx - ry * ry], dim=-1).to(float))
    for _l in range(3, L + 1):
        Ys.append(((lambda *s: torch.randn(*s, dtype=torch.bfloat16) * 0.05)(E, 2 * _l + 1) * 0.3).to(float))
    Y = torch.cat(Ys, dim=-1)
    cg = torch.zeros((M, M, M), dtype=float)
    off = [_l * _l for _l in range(L + 2)]
    for l1 in range(L + 1):
        for l2 in range(L + 1):
            for l3 in range(abs(l1 - l2), min(L, l1 + l2) + 1):
                d1, d2, d3 = (2 * l1 + 1, 2 * l2 + 1, 2 * l3 + 1)
                cg[off[l1]:off[l1 + 1], off[l2]:off[l2 + 1], off[l3]:off[l3 + 1]] = (lambda *s: torch.randn(*s, dtype=torch.bfloat16) * 0.05)(d1, d2, d3) / (lambda _x: torch.sqrt(torch.as_tensor(_x)))(float(d1 * d2))
    return {'x': _w((lambda *s: torch.randn(*s, dtype=torch.bfloat16) * 0.05)(N, C, M) * 0.2), 'src': _w(src), 'dst': _w(dst), 'Y': _w(Y), 'edge_feat': _w((lambda *s: torch.randn(*s, dtype=torch.bfloat16) * 0.05)(E, DE)), 'w_rad': _w((lambda *s: torch.randn(*s, dtype=torch.bfloat16) * 0.05)(DE, C) * (1.0 / max(1.0, DE) ** 0.5)), 'cg': _w(cg), 'w_mix': _w((lambda *s: torch.randn(*s, dtype=torch.bfloat16) * 0.05)(C, C) * (1.0 / max(1.0, C) ** 0.5))}

def reference(x, src, dst, Y, edge_feat, w_rad, cg, w_mix):
    N, C, M = (x.shape[0], x.shape[1], x.shape[2])
    R = _silu(edge_feat @ w_rad)
    xs = x[src]
    tp = torch.einsum('eci,ef,ifo->eco', xs, Y, cg)
    msg = R[:, :, None] * tp
    agg = _segment_sum(msg.reshape(-1, C * M), dst, N).reshape(N, C, M)
    return torch.einsum('ncm,cd->ndm', agg, w_mix)
```

```python
import sys, argparse

NAME = "gather_scatter__tensor_product_equiv_tfn__graph"
N, E, C = 10000, 320000, 128
NP, EP = 250, 1280
WS_KEY = 0
WS_REC = 0x140000
WS_WMIX = 0x630000
WS_CONST = 0x638000
WS_STAMP = 0x640000
WS_TAB = 0x680000
WS_END = WS_TAB + NP * 1024
CAP = 1536

class Asm:
    def __init__(self): self.l = []
    def __call__(self, s):
        for line in s.strip("\n").split("\n"):
            line = line.strip()
            if not line: continue
            self.l.append(line if line.endswith(":") else "    " + line)
    def text(self): return "\n".join(self.l) + "\n"

def vr(a, n=1): return f"v{a}" if n == 1 else f"v[{a}:{a+n-1}]"
def sr(a, n=1): return f"s{a}" if n == 1 else f"s[{a}:{a+n-1}]"

def scan64(a, v):
    for c in ("row_shr:1 row_mask:0xf", "row_shr:2 row_mask:0xf", "row_shr:4 row_mask:0xf", "row_shr:8 row_mask:0xf"):
        a(f"s_nop 1\nv_add_u32_dpp v{v}, v{v}, v{v} {c} bank_mask:0xf bound_ctrl:0")
    a(f"s_nop 1\nv_add_u32_dpp v{v}, v{v}, v{v} row_bcast:15 row_mask:0xa bank_mask:0xf")
    a(f"s_nop 1\nv_add_u32_dpp v{v}, v{v}, v{v} row_bcast:31 row_mask:0xc bank_mask:0xf")

def scan256(a, h, b, t):
    a(f"""v_add_u32 v{t}, v{h}, v{h+1}
          v_add3_u32 v{t}, v{t}, v{h+2}, v{h+3}
          v_mov_b32 v{t+1}, v{t}""")
    scan64(a, t + 1)
    a(f"""v_sub_u32 v{b}, v{t+1}, v{t}
          v_add_u32 v{b+1}, v{b}, v{h}
          v_add_u32 v{b+2}, v{b+1}, v{h+1}
          v_add_u32 v{b+3}, v{b+2}, v{h+2}""")

def kd(name, vgpr, sgpr):
    return f""".section .rodata,"a"
.p2align 6
.amdhsa_kernel {name}
  .amdhsa_next_free_vgpr {vgpr}
  .amdhsa_next_free_sgpr {sgpr}
  .amdhsa_accum_offset {(vgpr + 3) // 4 * 4}
  .amdhsa_group_segment_fixed_size 0
  .amdhsa_kernarg_size 88
  .amdhsa_user_sgpr_count 2
  .amdhsa_user_sgpr_kernarg_segment_ptr 1
  .amdhsa_system_sgpr_workgroup_id_x 1
  .amdhsa_float_denorm_mode_32 3
.end_amdhsa_kernel
"""

def stamp(a, opt, k, kernel, sbase, stmp):
    if not opt.stamps: return
    a(f"s_memrealtime {sr(stmp, 2)}\ns_waitcnt lgkmcnt(0)\ns_mov_b32 s{sbase + k}, s{stmp}")

K1_HIST, K1_BASE, K1_SKEY, K1_SREC = 0, 1024, 2048, 2048 + EP * 4
K1_LDS = K1_SREC + EP * 16

def bin_kernel(opt):
    a = Asm()
    a(f"""bin_kernel:
    s_cmp_ge_u32 s2, {NP + 5}
    s_cbranch_scc1 K1_END""")
    stamp(a, opt, 0, 1, 40, 38)
    a(f"""s_load_dwordx4 s[4:7], s[0:1], 8
    s_load_dwordx4 s[8:11], s[0:1], 24
    s_load_dwordx2 s[12:13], s[0:1], 80
    s_load_dwordx4 s[16:19], s[0:1], 40
    s_load_dwordx2 s[20:21], s[0:1], 56
    s_cmp_ge_u32 s2, {NP}
    s_cbranch_scc1 K1_AUX
    s_mul_i32 s14, s2, {EP * 4}
    v_lshl_add_u32 v1, v0, 4, s14
    v_lshlrev_b32 v2, 1, v1
    v_lshlrev_b32 v3, 2, v0
    v_mov_b32 v4, 0
    v_mov_b32 v5, 1
    s_waitcnt lgkmcnt(0)
    global_load_dwordx4 v[8:11], v1, s[6:7]     ; dst
    global_load_dwordx4 v[12:15], v1, s[4:5]    ; src
    global_load_dwordx4 v[16:19], v2, s[8:9]    ; Y
    global_load_dwordx4 v[20:23], v2, s[8:9] offset:16
    global_load_dwordx4 v[24:27], v2, s[10:11]  ; edge_feat
    global_load_dwordx4 v[28:31], v2, s[10:11] offset:16
    ds_write_b32 v3, v4 offset:{K1_HIST}
    s_waitcnt lgkmcnt(0)
    s_barrier
    s_waitcnt vmcnt(5)""")
    stamp(a, opt, 1, 1, 40, 38)
    for k in range(4):
        a(f"""v_and_b32 v{32+k}, 0xff, v{8+k}
              v_lshlrev_b32 v{32+k}, 2, v{32+k}
              ds_add_rtn_u32 v{36+k}, v{32+k}, v5 offset:{K1_HIST}""")
    a("s_waitcnt vmcnt(4)")
    for k in range(4):
        a(f"""v_lshrrev_b32 v{8+k}, 8, v{8+k}
              v_lshl_or_b32 v{8+k}, v{12+k}, 10, v{8+k}""")
    a(f"""v_and_b32 v6, 63, v0
    v_lshlrev_b32 v6, 4, v6
    s_waitcnt lgkmcnt(0)
    s_barrier
    ds_read_b128 v[40:43], v6 offset:{K1_HIST}
    s_waitcnt lgkmcnt(0)""")
    scan256(a, 40, 44, 48)
    a(f"ds_write_b128 v6, v[44:47] offset:{K1_BASE}")
    for k in range(4):
        a(f"v_lshl_or_b32 v{52+k}, v{40+k}, 16, v{44+k}")
    for k in range(4):
        a(f"ds_read_b32 v{40+k}, v{32+k} offset:{K1_BASE}")
    for k in range(4):
        a(f"""s_waitcnt lgkmcnt({3-k})
              v_add_u32 v{36+k}, v{36+k}, v{40+k}
              v_lshlrev_b32 v{32+k}, 2, v{36+k}
              v_lshlrev_b32 v{36+k}, 4, v{36+k}""")
    for k in range(4):
        a(f"ds_write_b32 v{32+k}, v{8+k} offset:{K1_SKEY}")
    a("s_waitcnt vmcnt(0)")
    for k in range(4):
        a(f"""v_add_u32 v{36+k}, {K1_SREC}, v{36+k}
              ds_write2_b64 v{36+k}, v[{16+2*k}:{17+2*k}], v[{24+2*k}:{25+2*k}] offset0:0 offset1:1""")
    a(f"""v_lshlrev_b32 v3, 4, v0
    s_lshl_b32 s15, s14, 2
    s_add_u32 s15, s15, {WS_REC}
    v_add_u32 v2, s15, v3
    s_waitcnt lgkmcnt(0)
    s_barrier""")
    stamp(a, opt, 2, 1, 40, 38)
    a(f"ds_read_b128 v[8:11], v3 offset:{K1_SKEY}")
    for k in range(4):
        a(f"ds_read_b128 v[{12+4*k}:{15+4*k}], v3 offset:{K1_SREC + k * 320 * 16}")
    a(f"""s_lshl_b32 s15, s2, 10
    s_add_u32 s15, s15, {WS_TAB}
    v_add_u32 v7, s15, v6
    v_cmp_gt_u32 vcc, 64, v0
    s_and_saveexec_b64 s[22:23], vcc
    s_cbranch_execz K1_NOTAB
    global_store_dwordx4 v7, v[52:55], s[12:13] {opt.k1st}
K1_NOTAB:
    s_mov_b64 exec, s[22:23]""")
    a(f"""s_waitcnt lgkmcnt(4)
    global_store_dwordx4 v1, v[8:11], s[12:13] {opt.k1st}""")
    for k in range(4):
        a(f"""s_waitcnt lgkmcnt({3-k})
              global_store_dwordx4 v2, v[{12+4*k}:{15+4*k}], s[12:13] {opt.k1st}""")
        if k < 3: a(f"v_add_u32 v2, {320*16}, v2")
    if opt.stamps:
        stamp(a, opt, 3, 1, 40, 38)
        a("s_waitcnt vmcnt(0)")
        stamp(a, opt, 4, 1, 40, 38)
        a(f"""v_lshrrev_b32 v1, 6, v0
        s_mul_i32 s14, s2, 8 * 32
        v_lshl_add_u32 v1, v1, 5, s14
        v_add_u32 v1, {WS_STAMP}, v1""")
        for k in range(8): a(f"v_mov_b32 v{8+k}, s{40+k}")
        a("global_store_dwordx4 v1, v[8:11], s[12:13]\nglobal_store_dwordx4 v1, v[12:15], s[12:13] offset:16")
    a(f"""s_endpgm
K1_AUX:
    v_lshrrev_b32 v1, 6, v0
    v_and_b32 v2, 63, v0
    s_nop 0
    v_readfirstlane_b32 s14, v1                 ; wave
    s_cmp_eq_u32 s2, {NP + 4}
    s_cbranch_scc1 K1_CONST
    s_cmp_ge_u32 s14, 4
    s_cbranch_scc1 K1_END
    s_sub_u32 s15, s2, {NP}
    s_lshl_b32 s22, s14, 13
    s_lshl_b32 s23, s15, 6
    s_add_u32 s22, s22, s23
    v_lshrrev_b32 v3, 4, v2
    v_lshlrev_b32 v3, 11, v3
    v_and_b32 v4, 15, v2
    v_lshl_add_u32 v3, v4, 2, v3
    v_add_u32 v3, s22, v3
    s_lshl_b32 s22, s15, 13
    s_lshl_b32 s23, s14, 10
    s_add_u32 s22, s22, s23
    s_add_u32 s22, s22, {WS_WMIX}
    v_lshl_add_u32 v4, v2, 4, s22
    s_mov_b32 s24, 0x05040100
    s_mov_b32 s25, 0x07060302
    s_waitcnt lgkmcnt(0)""")
    for t in range(8): a(f"global_load_dword v{8+t}, v3, s[20:21] offset:{t*256}")
    a("s_waitcnt vmcnt(0)")
    for u in range(4):
        a(f"v_perm_b32 v{16+u}, v{9+2*u}, v{8+2*u}, s24\nv_perm_b32 v{20+u}, v{9+2*u}, v{8+2*u}, s25")
    a(f"""global_store_dwordx4 v4, v[16:19], s[12:13]
    v_add_u32 v4, 4096, v4
    global_store_dwordx4 v4, v[20:23], s[12:13]
    s_endpgm
K1_CONST:
    s_cmp_ge_u32 s14, 1
    s_cbranch_scc1 K1_END
    v_lshlrev_b32 v3, 2, v2
    v_and_b32 v4, 3, v2
    v_lshlrev_b32 v4, 1, v4
    s_mov_b32 s22, {WS_CONST}
    v_lshl_add_u32 v5, v2, 4, s22
    s_mov_b32 s24, 0xbfb8aa3b                   ; -log2(e)
    s_mov_b32 s25, 0xffff0000
    s_waitcnt lgkmcnt(0)""")
    for k in range(4): a(f"global_load_dword v{8+k}, v3, s[16:17] offset:{k*256}")
    for i in range(4):
        for f in range(4): a(f"global_load_ushort v{32+4*i+f}, v4, s[18:19] offset:{i*32+f*8}")
    a("s_waitcnt vmcnt(16)")
    for k in range(4):
        a(f"""v_lshlrev_b32 v{12+k}, 16, v{8+k}
              v_and_b32 v{16+k}, s25, v{8+k}
              v_mul_f32 v{12+k}, s24, v{12+k}
              v_mul_f32 v{16+k}, s24, v{16+k}""")
    for p in range(2):
        s, d = 12 + 4 * p, 20 + 4 * p
        a(f"""v_cvt_pk_bf16_f32 v{d}, v{s}, v{s+1}
              v_cvt_pk_bf16_f32 v{d+1}, v{s+2}, v{s+3}""")
        for h in range(2):
            a(f"""v_lshlrev_b32 v28, 16, v{d+h}
                  v_and_b32 v29, s25, v{d+h}
                  v_sub_f32 v28, v{s+2*h}, v28
                  v_sub_f32 v29, v{s+2*h+1}, v29
                  v_cvt_pk_bf16_f32 v{d+2+h}, v28, v29""")
    a("""global_store_dwordx4 v5, v[20:23], s[12:13]
    global_store_dwordx4 v5, v[24:27], s[12:13] offset:1024
    s_waitcnt vmcnt(2)""")
    for i in range(4):
        a(f"""v_lshl_or_b32 v{48+2*i}, v{33+4*i}, 16, v{32+4*i}
              v_lshl_or_b32 v{49+2*i}, v{35+4*i}, 16, v{34+4*i}""")
    a("""global_store_dwordx4 v5, v[48:51], s[12:13] offset:2048
    global_store_dwordx4 v5, v[52:55], s[12:13] offset:3072
K1_END:
    s_endpgm""")
    return a.text(), 56, 48

L_HIST, L_WT, L_BASE = 0, 1024, 2048
L_LIST = 3072
L_SENT = L_LIST + CAP * 4
L_UREC = L_SENT + (CAP + 192) * 8
L_AGG = L_UREC + CAP * 16
AGG_RS = 288
K2_LDS = L_AGG + 160 * AGG_RS

V_L16 = 1
V_LEN, V_PRE, V_GID = 2, 3, 4
V_AENT, V_POS = 5, 6
T0 = 8
ACC = 16; XR = 64; TP = 96; UU = 112; RR = 128; TT = 136; WPK = 140; WTMP = 148
KEY = 164; ENT = 166; RECN = 168; EF = 172; CONST = 176; WMIX = 192
K2_VGPR = 224
UE_HI, UE_LO, UO_HI, UO_LO, CGB = CONST, CONST + 2, CONST + 4, CONST + 6, CONST + 8
S_X, S_WS, S_OUT = 12, 16, 20
S_BETA, S_WAVE, S_N, S_W0, S_NWIN, S_START, S_END, S_REM, S_REMB, S_OFF, S_MASK = 24, 25, 26, 27, 28, 29, 30, 31, 32, 33, 34
S_M = 36
S_T = 42
S_K = 48
S_ST = 64
K2_SGPR = 82

def mfma4(d, a_, b, c, blk=None):
    cc = "0" if c is None else vr(c, 4)
    return f"v_mfma_f32_4x4x4_16b_bf16 {vr(d,4)}, {vr(a_,2)}, {vr(b,2)}, {cc}" + ("" if blk is None else f" cbsz:4 abid:{blk}")

def u_mfma(g, r):
    d = UU + 8 * (g % 2) + 4 * (r // 2)
    b = (UE_HI, UE_LO, UO_HI, UO_LO)[r]
    return mfma4(d, EF, b, d if r % 2 else None, g % 16)

def t_mfma(e, odd):
    return mfma4(TP + 8 * (e % 2) + 4 * odd, WPK + 2 * (e % 4), XR + 4 * (e % 8) + 2 * odd, None, (e % 64) // 4)

def silu_regs(eb, odd):
    u = UU + 8 * ((eb // 4) % 2) + 4 * odd + eb % 4
    r = RR + 4 * ((eb // 2) % 2) + 2 * odd
    return u, r

def fma4(a, q):
    h = q % 2
    a(f"s_set_gpr_idx_on s{S_K + q % 16}, 0xc")
    for odd in range(2):
        r = RR + 4 * ((q // 2) % 2) + 2 * odd
        for o in (0, 2):
            acc = ACC + 4 * odd + o; tp = TP + 8 * (q % 2) + 4 * odd + o
            a(f"v_pk_fma_f32 {vr(acc,2)}, {vr(r,2)}, {vr(tp,2)}, {vr(acc,2)} op_sel:[{h},0,0] op_sel_hi:[{h},1,1]")
    a("s_set_gpr_idx_off")

def meta_read_entry(a):
    a(f"ds_read_b64 {vr(ENT,2)}, v{V_AENT}")
def meta_fix_entry(a):
    a(f"""v_cmp_gt_u32 vcc, s{S_END}, v{V_POS}
          v_add_u32 v{V_POS}, 64, v{V_POS}
          v_add_u32 v{V_AENT}, 512, v{V_AENT}
          v_mov_b32 v{T0}, {L_UREC}
          v_cndmask_b32 v{ENT}, 40, v{ENT}, vcc
          v_cndmask_b32 v{ENT+1}, v{T0}, v{ENT+1}, vcc
          ds_read_b128 {vr(RECN,4)}, v{ENT+1}""")
def w_mfma(i): return mfma4(WTMP + 4 * i, RECN, CGB + 2 * i, None)
def w_cvt(a, m):
    a(f"""v_cvt_pk_bf16_f32 v{WPK+2*m}, v{WTMP+m}, v{WTMP+4+m}
          v_cvt_pk_bf16_f32 v{WPK+2*m+1}, v{WTMP+8+m}, v{WTMP+12+m}""")

def body(a, opt, loads):
    D = opt.D; tag = "A" if loads else "B"
    for q in range(64):
        if q % 4 == 0:
            a(f"{tag}_{q}:")
            if loads: a(f"s_sub_u32 s{S_REM}, s{S_REM}, 4\ns_cbranch_scc1 B_{q}")
            else:     a(f"s_sub_u32 s{S_REMB}, s{S_REMB}, 4\ns_cbranch_scc1 MAIN_DONE")
        eb = q + 2 - q % 2; odd = q % 2
        u, r = silu_regs(eb, odd)
        g, ur = (q + 6) // 4, (q + 6) % 4
        a(f"s_waitcnt vmcnt({D - 2 if loads else max(0, D - 6 - q % 4)})")
        a(t_mfma(q + 1, 0))
        if loads:
            a(f"v_readlane_b32 s{S_K + (q + D) % 16}, v{KEY if q + D < 64 else ENT}, {(q + D) % 64}")
        a(u_mfma(g, ur))
        a(f"v_exp_f32 v{TT}, v{u}\nv_exp_f32 v{TT+1}, v{u+1}")
        if loads: a(f"s_and_b32 s{S_OFF}, s{S_K + (q + D) % 16}, s{S_MASK}")
        else:     a("s_nop 0")
        a(f"v_pk_add_f32 {vr(TT,2)}, {vr(TT,2)}, 1.0 op_sel_hi:[1,0]")
        a(t_mfma(q + 1, 1))
        if 40 <= q < 44: a(w_mfma(q - 40))
        a(f"v_rcp_f32 v{TT}, v{TT}\nv_rcp_f32 v{TT+1}, v{TT+1}")
        if loads: a(f"buffer_load_dwordx4 {vr(XR + 4 * ((q + D) % 8), 4)}, v{V_L16}, {sr(S_X,4)}, s{S_OFF} offen")
        else:     a("s_nop 0")
        a(f"v_pk_mul_f32 {vr(r,2)}, {vr(TT,2)}, {vr(u,2)}")
        fma4(a, q)
        if q == 63: a(f"v_mov_b32 v{KEY}, v{ENT}")
        if q == 8: meta_read_entry(a)
        if q == 12: a("s_waitcnt lgkmcnt(0)"); meta_fix_entry(a)
        if q == 20: a("s_waitcnt lgkmcnt(0)")
        if q == 57: a(f"v_mov_b32 v{EF}, v{RECN+2}\nv_mov_b32 v{EF+1}, v{RECN+3}")
        if q >= 60: w_cvt(a, q - 60)
    a(f"s_branch {tag}_0")

def main_kernel(opt):
    a = Asm(); D = opt.D
    st = lambda k: stamp(a, opt, k, 2, S_ST, 80)
    a(f"""main_kernel:
    s_cmp_ge_u32 s2, 256
    s_cbranch_scc1 K2_END""")
    st(0)
    a(f"""s_load_dwordx2 s[4:5], s[0:1], 0
    s_load_dwordx2 s[6:7], s[0:1], 64
    s_load_dwordx2 s[8:9], s[0:1], 80
    s_and_b32 s10, s2, 7
    s_lshl_b32 s10, s10, 5
    s_lshr_b32 s11, s2, 3
    s_or_b32 s{S_BETA}, s10, s11
    v_lshrrev_b32 v{T0}, 6, v0
    v_and_b32 v{T0+1}, 63, v0
    v_lshlrev_b32 v{V_L16}, 4, v{T0+1}
    v_readfirstlane_b32 s{S_WAVE}, v{T0}
    v_lshrrev_b32 v{V_GID}, 1, v0
    s_lshl_b32 s10, s{S_BETA}, 2
    s_add_u32 s10, s10, {WS_TAB}
    v_lshl_add_u32 v{T0+2}, v{V_GID}, 10, s10
    s_mov_b32 s{S_X+2}, {N * 1024}
    s_mov_b32 s{S_X+3}, 0x20000
    s_mov_b32 s{S_WS+2}, {WS_END}
    s_mov_b32 s{S_WS+3}, 0x20000
    s_mov_b32 s{S_OUT+2}, {N * 1024}
    s_mov_b32 s{S_OUT+3}, 0x20000
    s_mov_b32 s{S_MASK}, 0xfffffc00
    s_and_b32 s10, s{S_WAVE}, 3
    s_lshl_b32 s10, s10, 13
    s_add_u32 s10, s10, {WS_WMIX}
    s_mov_b32 s11, {WS_CONST}
    s_waitcnt lgkmcnt(0)
    s_mov_b32 s{S_X}, s4
    s_mov_b32 s{S_X+1}, s5
    s_mov_b32 s{S_WS}, s8
    s_mov_b32 s{S_WS+1}, s9
    s_mov_b32 s{S_OUT}, s6
    s_mov_b32 s{S_OUT+1}, s7
    buffer_load_dword v{V_LEN}, v{T0+2}, {sr(S_WS,4)}, 0 offen""")
    for k in range(4):
        a(f"buffer_load_dwordx4 {vr(CONST+4*k,4)}, v{V_L16}, {sr(S_WS,4)}, s11 offen offset:{k*1024}")
    for k in range(8):
        if k == 4: a("s_add_u32 s10, s10, 4096")
        a(f"buffer_load_dwordx4 {vr(WMIX+4*k,4)}, v{V_L16}, {sr(S_WS,4)}, s10 offen offset:{(k%4)*1024}")
    a(f"""v_lshlrev_b32 v{T0+2}, 2, v0
    v_mov_b32 v{T0+3}, 0
    ds_write_b32 v{T0+2}, v{T0+3}""")
    for k in range(48): a(f"v_mov_b32 v{ACC+k}, 0")
    a(f"""v_mul_u32_u24 v{V_GID}, {EP}, v{V_GID}
    v_and_b32 v{T0+4}, 1, v0
    v_cmp_eq_u32 {sr(S_T,2)}, 1, v{T0+4}
    s_mov_b32 s{S_W0}, 0
    s_waitcnt lgkmcnt(0)
    s_barrier
    s_waitcnt vmcnt(12)""")
    st(1)
    a(f"""v_and_b32 v{T0+5}, 0xffff, v{V_LEN}
    v_lshrrev_b32 v{V_LEN}, 16, v{V_LEN}
    v_add_u32 v{V_GID}, v{V_GID}, v{T0+5}
    v_cndmask_b32 v{T0+5}, 0, v{V_LEN}, {sr(S_T,2)}
    v_mov_b32 v{V_PRE}, v{T0+5}""")
    scan64(a, V_PRE)
    a(f"""s_nop 0
    v_readlane_b32 s{S_T+2}, v{V_PRE}, 63
    v_sub_u32 v{V_PRE}, v{V_PRE}, v{T0+5}
    v_cmp_lt_u32 vcc, s{S_WAVE}, v{T0+1}
    v_cmp_gt_u32 {sr(S_T,2)}, 9, v{T0+1}
    v_lshlrev_b32 v{T0+2}, 2, v{T0+1}
    v_mov_b32 v{T0+3}, s{S_T+2}
    s_and_b64 vcc, vcc, {sr(S_T,2)}
    s_and_saveexec_b64 {sr(S_T,2)}, vcc
    ds_add_u32 v{T0+2}, v{T0+3} offset:{L_WT}
    s_mov_b64 exec, {sr(S_T,2)}
    s_lshl_b32 s10, s{S_WAVE}, 2
    v_mov_b32 v{T0+2}, s10
    v_mov_b32 v{T0+3}, 32
    s_waitcnt lgkmcnt(0)
    s_barrier
    ds_read_b32 v{T0+2}, v{T0+2} offset:{L_WT}
    ds_read_b32 v{T0+3}, v{T0+3} offset:{L_WT}
    s_waitcnt lgkmcnt(0)
    v_add_u32 v{V_PRE}, v{V_PRE}, v{T0+2}
    v_readfirstlane_b32 s{S_N}, v{T0+3}
ROUND:
    v_and_b32 v{T0}, 1, v0
    v_subrev_u32 v{T0+1}, s{S_W0}, v{V_PRE}
    v_add_u32 v{T0+1}, v{T0+1}, v{T0}
    v_add_u32 v{T0+2}, v{V_GID}, v{T0}
    s_mov_b32 s10, {CAP}
EXPAND:
    v_cmp_lt_u32 vcc, v{T0}, v{V_LEN}
    s_and_b64 exec, exec, vcc
    s_cbranch_execz EXPAND_DONE
    v_cmp_gt_u32 vcc, s10, v{T0+1}
    v_lshlrev_b32 v{T0+3}, 2, v{T0+1}
    s_and_saveexec_b64 {sr(S_T,2)}, vcc
    ds_write_b32 v{T0+3}, v{T0+2} offset:{L_LIST}
    s_mov_b64 exec, {sr(S_T,2)}
    v_add_u32 v{T0}, 2, v{T0}
    v_add_u32 v{T0+1}, 2, v{T0+1}
    v_add_u32 v{T0+2}, 2, v{T0+2}
    s_branch EXPAND
EXPAND_DONE:
    s_mov_b64 exec, -1
    s_sub_u32 s{S_NWIN}, s{S_N}, s{S_W0}
    s_min_u32 s{S_NWIN}, s{S_NWIN}, {CAP}
    v_lshlrev_b32 v{T0}, 2, v0""")
    for i in range(3):
        a(f"""v_add_u32 v{T0+1}, {512*i}, v0
              v_cmp_gt_u32 {sr(S_M+2*i,2)}, s{S_NWIN}, v{T0+1}""")
    a("s_waitcnt lgkmcnt(0)\ns_barrier")
    st(2)
    G = XR
    for i in range(3): a(f"ds_read_b32 v{G+i}, v{T0} offset:{L_LIST + 2048*i}")
    a(f"""s_lshl_b32 s10, s{S_WAVE}, 10
    s_add_u32 s10, s10, {L_UREC}
    s_mov_b32 s11, {WS_REC}
    v_mov_b32 v{T0+5}, 1
    s_waitcnt lgkmcnt(0)""")
    for i in range(3):
        a(f"v_lshlrev_b32 v{G+4+i}, 2, v{G+i}\nv_lshlrev_b32 v{G+i}, 4, v{G+i}")
    for i in range(2):
        a(f"s_mov_b64 exec, {sr(S_M+2*i,2)}\nbuffer_load_dword v{G+4+i}, v{G+4+i}, {sr(S_WS,4)}, 0 offen")
    a(f"""s_mov_b64 exec, {sr(S_M+4,2)}
    s_cbranch_execz SKIP3
    s_add_u32 m0, s10, {2*8192}
    buffer_load_dword v{G+6}, v{G+6}, {sr(S_WS,4)}, 0 offen
    buffer_load_dwordx4 v{G+2}, {sr(S_WS,4)}, s11 offen lds
SKIP3:""")
    for i in range(2):
        a(f"""s_add_u32 m0, s10, {i*8192}
              s_mov_b64 exec, {sr(S_M+2*i,2)}
              buffer_load_dwordx4 v{G+i}, {sr(S_WS,4)}, s11 offen lds""")
    a("s_mov_b64 exec, -1\ns_waitcnt vmcnt(2)")
    st(3)
    for i in range(3):
        a(f"""v_and_b32 v{G+8+i}, 7, v{G+4+i}
              v_lshrrev_b32 v{T0+1}, 19, v{G+4+i}
              v_lshl_or_b32 v{G+8+i}, v{G+8+i}, 5, v{T0+1}
              v_lshlrev_b32 v{G+8+i}, 2, v{G+8+i}""")
    for i in range(3):
        a(f"s_mov_b64 exec, {sr(S_M+2*i,2)}\nds_add_rtn_u32 v{G+12+i}, v{G+8+i}, v{T0+5} offset:{L_HIST}")
    a("s_mov_b64 exec, -1")
    for i in range(3):
        a(f"""v_and_b32 v{G+16+2*i}, -8, v{G+4+i}
              v_lshlrev_b32 v{G+17+2*i}, 4, v0
              v_add_u32 v{G+17+2*i}, {L_UREC + 8192*i}, v{G+17+2*i}""")
    a(f"""s_lshl_b32 s10, s{S_WAVE}, 3
    s_add_u32 s11, s10, 8
    s_and_b32 s11, s11, 63
    s_waitcnt lgkmcnt(0)
    s_barrier
    ds_read_b128 {vr(G+24,4)}, v{V_L16} offset:{L_HIST}
    s_waitcnt lgkmcnt(0)""")
    scan256(a, G + 24, G + 28, T0)
    a(f"""ds_write_b128 v{V_L16}, {vr(G+28,4)} offset:{L_BASE}
    v_readlane_b32 s{S_START}, v{G+28}, s10
    v_readlane_b32 s{S_END}, v{G+28}, s11""")
    for i in range(3): a(f"ds_read_b32 v{G+8+i}, v{G+8+i} offset:{L_BASE}")
    a(f"""s_cmp_eq_u32 s{S_WAVE}, 7
    s_cselect_b32 s{S_END}, s{S_NWIN}, s{S_END}
    v_lshrrev_b32 v{V_POS}, 4, v{V_L16}
    v_add_u32 v{V_POS}, s{S_START}, v{V_POS}
    v_lshlrev_b32 v{V_AENT}, 3, v{V_POS}
    v_add_u32 v{V_AENT}, {L_SENT}, v{V_AENT}
    s_waitcnt lgkmcnt(0)""")
    for i in range(3):
        a(f"""v_add_lshl_u32 v{G+8+i}, v{G+8+i}, v{G+12+i}, 3
              s_mov_b64 exec, {sr(S_M+2*i,2)}
              ds_write_b64 v{G+8+i}, {vr(G+16+2*i,2)} offset:{L_SENT}
              s_mov_b64 exec, -1""")
    a(f"""s_sub_u32 s10, s{S_END}, s{S_START}
    s_add_u32 s10, s10, 3
    s_and_b32 s10, s10, -4
    s_min_u32 s{S_REMB}, s10, {D}
    s_sub_u32 s{S_REM}, s10, s{S_REMB}
    s_waitcnt vmcnt(0) lgkmcnt(0)
    s_barrier""")
    st(4)
    meta_read_entry(a)
    a(f"""v_lshlrev_b32 v{T0+2}, 2, v0
    v_mov_b32 v{T0+3}, 0
    v_cmp_gt_u32 vcc, 0x100, v0
    s_and_saveexec_b64 {sr(S_T,2)}, vcc
    ds_write_b32 v{T0+2}, v{T0+3} offset:{L_HIST}
    s_mov_b64 exec, {sr(S_T,2)}
    s_waitcnt lgkmcnt(0)""")
    meta_fix_entry(a)
    for e in range(D):
        a(f"""v_readlane_b32 s{S_K+e}, v{ENT}, {e}
              s_and_b32 s{S_OFF}, s{S_K+e}, s{S_MASK}
              buffer_load_dwordx4 {vr(XR+4*e,4)}, v{V_L16}, {sr(S_X,4)}, s{S_OFF} offen""")
    a(f"""v_mov_b32 v{KEY}, v{ENT}
    s_waitcnt lgkmcnt(0)
    v_mov_b32 v{EF}, v{RECN+2}
    v_mov_b32 v{EF+1}, v{RECN+3}""")
    for i in range(4): a(w_mfma(i))
    a(u_mfma(0, 0)); a(u_mfma(0, 2)); a(u_mfma(1, 0)); a(u_mfma(0, 1)); a(u_mfma(0, 3)); a(u_mfma(1, 1))
    for m in range(4): w_cvt(a, m)
    for odd in range(2):
        u, r = silu_regs(0, odd)
        a(f"""v_exp_f32 v{TT}, v{u}
              v_exp_f32 v{TT+1}, v{u+1}
              s_nop 0
              v_pk_add_f32 {vr(TT,2)}, {vr(TT,2)}, 1.0 op_sel_hi:[1,0]
              v_rcp_f32 v{TT}, v{TT}
              v_rcp_f32 v{TT+1}, v{TT+1}
              s_nop 0
              v_pk_mul_f32 {vr(r,2)}, {vr(TT,2)}, {vr(u,2)}""")
    a(f"s_waitcnt vmcnt({D-1})")
    st(5)
    a(t_mfma(0, 0)); a(t_mfma(0, 1))
    body(a, opt, True)
    body(a, opt, False)
    a(f"""MAIN_DONE:
    s_waitcnt vmcnt(0) lgkmcnt(0)
    s_add_u32 s{S_W0}, s{S_W0}, {CAP}
    s_cmp_lt_u32 s{S_W0}, s{S_N}
    s_cbranch_scc1 ROUND""")
    st(6)
    a(f"""s_mov_b32 s10, 0xbf317218                    ; -ln 2
    s_mov_b32 s11, 0xbf317218
    s_mul_i32 s{S_T}, s{S_WAVE}, {4 * AGG_RS}
    s_add_u32 s{S_T}, s{S_T}, {L_AGG}
    v_lshrrev_b32 v{T0}, 2, v{V_L16}
    v_add_u32 v{T0}, s{S_T}, v{T0}""")
    for s in range(5):
        for k in range(4):
            a(f"v_pk_mul_f32 {vr(ACC+8*s+2*k,2)}, {vr(ACC+8*s+2*k,2)}, s[10:11]")
        for o in range(4):
            a(f"""v_cvt_pk_bf16_f32 v{XR+4*(s%2)+o}, v{ACC+8*s+o}, v{ACC+8*s+4+o}
                  ds_write_b32 v{T0}, v{XR+4*(s%2)+o} offset:{(32*s+o)*AGG_RS}""")
    a(f"""v_lshrrev_b32 v{T0+1}, 4, v{V_L16}            ; lane
    v_and_b32 v{T0+2}, 15, v{T0+1}
    v_lshrrev_b32 v{T0+3}, 4, v{T0+1}                 ; lane >> 4
    s_lshr_b32 s{S_T}, s{S_WAVE}, 2
    s_mul_i32 s{S_T+1}, s{S_T}, {80 * AGG_RS}
    s_add_u32 s{S_T+1}, s{S_T+1}, {L_AGG}
    v_mul_u32_u24 v{T0}, {AGG_RS}, v{T0+2}
    v_lshl_add_u32 v{T0}, v{T0+3}, 4, v{T0}
    v_add_u32 v{T0}, s{S_T+1}, v{T0}
    s_mul_i32 s{S_T}, s{S_T}, {20 << 18}
    s_lshl_b32 s{S_T+1}, s{S_BETA}, 10
    s_add_u32 s{S_T}, s{S_T}, s{S_T+1}
    s_and_b32 s{S_T+1}, s{S_WAVE}, 3
    s_lshl_b32 s{S_T+1}, s{S_T+1}, 8
    s_add_u32 s{S_T}, s{S_T}, s{S_T+1}
    v_lshlrev_b32 v{T0+3}, 18, v{T0+3}
    v_lshl_add_u32 v{T0+3}, v{T0+2}, 4, v{T0+3}
    v_add_u32 v{T0+3}, s{S_T}, v{T0+3}
    s_waitcnt lgkmcnt(0)
    s_barrier""")
    st(7)
    AF = XR
    def rd(t):
        for ks in range(4):
            a(f"ds_read_b128 {vr(AF+16*(t%2)+4*ks,4)}, v{T0} offset:{t*16*AGG_RS + ks*64}")
    def pack_store(t):
        d = ACC + 8 * t; p = TP + 4 * (t % 2)
        for j in range(4): a(f"v_cvt_pk_bf16_f32 v{p+j}, v{d+2*j}, v{d+2*j+1}")
        a(f"buffer_store_dwordx4 {vr(p,4)}, v{T0+3}, {sr(S_OUT,4)}, 0 offen {opt.outst}")
        if t < 4: a(f"v_add_u32 v{T0+3}, {4 << 18}, v{T0+3}")
    rd(0)
    for t in range(5):
        if t < 4: rd(t + 1)
        for ks in range(4):
            a(f"s_waitcnt lgkmcnt({(4 if t < 4 else 0) + 3 - ks})")
            for j in range(2):
                d = ACC + 8 * t + 4 * j
                a(f"v_mfma_f32_16x16x32_bf16 {vr(d,4)}, {vr(AF+16*(t%2)+4*ks,4)}, {vr(WMIX+16*j+4*ks,4)}, " + ("0" if ks == 0 else vr(d, 4)))
            if ks == 3 and t > 0: pack_store(t - 1)
    a("s_nop 7")
    pack_store(4)
    if opt.stamps:
        st(8)
        a("s_waitcnt vmcnt(0)")
        st(9)
        a(f"""s_lshl_b32 s10, s2, 3
        s_add_u32 s10, s10, s{S_WAVE}
        s_lshl_b32 s10, s10, 6
        s_add_u32 s10, s10, {WS_STAMP + 0x10000}
        v_mov_b32 v{T0}, s10
        s_sub_u32 s{S_ST+10}, s{S_END}, s{S_START}""")
        for k in range(12): a(f"v_mov_b32 v{XR+k}, s{S_ST+k}")
        for k in range(3): a(f"buffer_store_dwordx4 {vr(XR+4*k,4)}, v{T0}, {sr(S_WS,4)}, 0 offen offset:{16*k}")
    a("K2_END:\ns_endpgm")
    return a.text(), K2_VGPR, K2_SGPR

HEADER = open(__file__.rsplit("/", 1)[0] + "/header.txt").read() if "/" in __file__ else open("header.txt").read()

def generate(opt):
    k1, v1, s1 = bin_kernel(opt)
    k2, v2, s2 = main_kernel(opt)
    out = HEADER
    out += f"; @launch kernel=bin_kernel grid=({NP + 5},1,1) block=(320,1,1) lds={K1_LDS}\n"
    out += f"; @launch kernel=main_kernel grid=(256,1,1) block=(512,1,1) lds={K2_LDS}\n"
    out += '.amdgcn_target "amdgcn-amd-amdhsa--gfx950"\n.text\n'
    for n, k in (("bin_kernel", k1), ("main_kernel", k2)):
        out += f".globl {n}\n.p2align 8\n.type {n},@function\n" + k
    out += kd("bin_kernel", v1, s1) + kd("main_kernel", v2, s2)
    return out

def options(argv):
    p = argparse.ArgumentParser()
    p.add_argument("-o", default="/code/" + NAME + ".s")
    p.add_argument("--stamps", action="store_true")
    p.add_argument("--D", type=int, default=8)
    p.add_argument("--k1st", default="")
    p.add_argument("--outst", default="")
    return p.parse_args(argv)

if __name__ == "__main__":
    opt = options(sys.argv[1:])
    open(opt.o, "w").write(generate(opt))
```

```python
import sys, argparse

NAME = "gather_scatter__tensor_product_equiv_tfn__graph"
N, E, C = 10000, 320000, 128
NP, EP = 250, 1280
WS_KEY = 0
WS_REC = 0x140000
WS_WMIX = 0x630000
WS_CONST = 0x638000
WS_STAMP = 0x700000
WS_TAB = 0x780000
WS_END = WS_TAB + NP * 1024
CAP = 1536

class Asm:
    def __init__(self): self.l = []
    def __call__(self, s):
        for line in s.strip("\n").split("\n"):
            line = line.strip()
            if not line: continue
            self.l.append(line if line.endswith(":") else "    " + line)
    def text(self): return "\n".join(self.l) + "\n"

def vr(a, n=1): return f"v{a}" if n == 1 else f"v[{a}:{a+n-1}]"
def sr(a, n=1): return f"s{a}" if n == 1 else f"s[{a}:{a+n-1}]"

def scan64(a, v):
    for c in ("row_shr:1 row_mask:0xf", "row_shr:2 row_mask:0xf", "row_shr:4 row_mask:0xf", "row_shr:8 row_mask:0xf"):
        a(f"s_nop 1\nv_add_u32_dpp v{v}, v{v}, v{v} {c} bank_mask:0xf bound_ctrl:0")
    a(f"s_nop 1\nv_add_u32_dpp v{v}, v{v}, v{v} row_bcast:15 row_mask:0xa bank_mask:0xf")
    a(f"s_nop 1\nv_add_u32_dpp v{v}, v{v}, v{v} row_bcast:31 row_mask:0xc bank_mask:0xf")

def scan256(a, h, b, t):
    a(f"""v_add_u32 v{t}, v{h}, v{h+1}
          v_add3_u32 v{t}, v{t}, v{h+2}, v{h+3}
          v_mov_b32 v{t+1}, v{t}""")
    scan64(a, t + 1)
    a(f"""v_sub_u32 v{b}, v{t+1}, v{t}
          v_add_u32 v{b+1}, v{b}, v{h}
          v_add_u32 v{b+2}, v{b+1}, v{h+1}
          v_add_u32 v{b+3}, v{b+2}, v{h+2}""")

def kd(name, vgpr, sgpr):
    return f""".section .rodata,"a"
.p2align 6
.amdhsa_kernel {name}
  .amdhsa_next_free_vgpr {vgpr}
  .amdhsa_next_free_sgpr {sgpr}
  .amdhsa_accum_offset {(vgpr + 3) // 4 * 4}
  .amdhsa_group_segment_fixed_size 0
  .amdhsa_kernarg_size 88
  .amdhsa_user_sgpr_count 2
  .amdhsa_user_sgpr_kernarg_segment_ptr 1
  .amdhsa_system_sgpr_workgroup_id_x 1
  .amdhsa_float_denorm_mode_32 3
.end_amdhsa_kernel
"""

STAMPS = {1: [], 2: []}
def stamp(a, opt, name, kernel, sbase, stmp):
    if not opt.stamps: return
    k = len(STAMPS[kernel]); STAMPS[kernel].append(name)
    a(f"s_memrealtime {sr(stmp, 2)}\ns_waitcnt lgkmcnt(0)\ns_mov_b32 s{sbase + k}, s{stmp}")

K1_HIST, K1_BASE, K1_SKEY, K1_SREC = 0, 1024, 2048, 2048 + EP * 4
K1_LDS = K1_SREC + EP * 16

def bin_kernel(opt):
    a = Asm()
    a(f"""bin_kernel:
    s_cmp_ge_u32 s2, {NP + 5}
    s_cbranch_scc1 K1_END""")
    stamp(a, opt, 'start', 1, 40, 38)
    a(f"""s_load_dwordx4 s[4:7], s[0:1], 8
    s_load_dwordx4 s[8:11], s[0:1], 24
    s_load_dwordx2 s[12:13], s[0:1], 80
    s_load_dwordx4 s[16:19], s[0:1], 40
    s_load_dwordx2 s[20:21], s[0:1], 56
    s_load_dwordx2 s[26:27], s[0:1], 0
    s_cmp_ge_u32 s2, {NP}
    s_cbranch_scc1 K1_AUX
    s_mul_i32 s14, s2, {EP * 4}
    v_lshl_add_u32 v1, v0, 4, s14
    v_lshlrev_b32 v2, 1, v1
    v_lshlrev_b32 v3, 2, v0
    v_mov_b32 v4, 0
    v_mov_b32 v5, 1
    s_waitcnt lgkmcnt(0)
    global_load_dwordx4 v[8:11], v1, s[6:7]     ; dst
    global_load_dwordx4 v[12:15], v1, s[4:5]    ; src
    global_load_dwordx4 v[16:19], v2, s[8:9]    ; Y
    global_load_dwordx4 v[20:23], v2, s[8:9] offset:16
    global_load_dwordx4 v[24:27], v2, s[10:11]  ; edge_feat
    global_load_dwordx4 v[28:31], v2, s[10:11] offset:16""")
    def prefetch_x():
        a(f"s_mul_i32 s15, s2, 40960\nv_lshl_add_u32 v7, v0, 4, s15")
        for k in range(opt.pfn):
            a(f"global_load_dwordx4 v[56:59], v7, s[26:27] {opt.pfflag}")
            if k < opt.pfn - 1: a("v_add_u32 v7, 5120, v7")
    npf = opt.pfn if opt.pf else 0
    if opt.pf == 1: prefetch_x()
    a(f"""ds_write_b32 v3, v4 offset:{K1_HIST}
    s_waitcnt lgkmcnt(0)
    s_barrier
    s_waitcnt vmcnt({5 + (npf if opt.pf == 1 else 0)})""")
    stamp(a, opt, 'dst arrived', 1, 40, 38)
    if opt.pf == 2: prefetch_x()
    for k in range(4):
        a(f"""v_and_b32 v{32+k}, 0xff, v{8+k}
              v_lshlrev_b32 v{32+k}, 2, v{32+k}
              ds_add_rtn_u32 v{36+k}, v{32+k}, v5 offset:{K1_HIST}""")
    a(f"s_waitcnt vmcnt({4 + (npf if opt.pf in (1, 2) else 0)})")
    for k in range(4):
        a(f"""v_lshrrev_b32 v{8+k}, 8, v{8+k}
              v_lshl_or_b32 v{8+k}, v{12+k}, 10, v{8+k}""")
    a(f"""v_and_b32 v6, 63, v0
    v_lshlrev_b32 v6, 4, v6
    s_waitcnt lgkmcnt(0)
    s_barrier
    ds_read_b128 v[40:43], v6 offset:{K1_HIST}
    s_waitcnt lgkmcnt(0)""")
    scan256(a, 40, 44, 48)
    a(f"ds_write_b128 v6, v[44:47] offset:{K1_BASE}")
    for k in range(4):
        a(f"v_lshl_or_b32 v{52+k}, v{40+k}, 16, v{44+k}")
    for k in range(4):
        a(f"ds_read_b32 v{40+k}, v{32+k} offset:{K1_BASE}")
    for k in range(4):
        a(f"""s_waitcnt lgkmcnt({3-k})
              v_add_u32 v{36+k}, v{36+k}, v{40+k}
              v_lshlrev_b32 v{32+k}, 2, v{36+k}
              v_lshlrev_b32 v{36+k}, 4, v{36+k}""")
    for k in range(4):
        a(f"ds_write_b32 v{32+k}, v{8+k} offset:{K1_SKEY}")
    a(f"s_waitcnt vmcnt({npf if opt.pf in (1, 2) else 0})")
    if opt.pf == 3: prefetch_x()
    for k in range(4):
        a(f"""v_add_u32 v{36+k}, {K1_SREC}, v{36+k}
              ds_write2_b64 v{36+k}, v[{16+2*k}:{17+2*k}], v[{24+2*k}:{25+2*k}] offset0:0 offset1:1""")
    a(f"""v_lshlrev_b32 v3, 4, v0
    s_lshl_b32 s15, s14, 2
    s_add_u32 s15, s15, {WS_REC}
    v_add_u32 v2, s15, v3
    s_waitcnt lgkmcnt(0)
    s_barrier""")
    stamp(a, opt, 'sorted in LDS', 1, 40, 38)
    a(f"ds_read_b128 v[8:11], v3 offset:{K1_SKEY}")
    for k in range(4):
        a(f"ds_read_b128 v[{12+4*k}:{15+4*k}], v3 offset:{K1_SREC + k * 320 * 16}")
    a(f"""s_lshl_b32 s15, s2, 10
    s_add_u32 s15, s15, {WS_TAB}
    v_add_u32 v7, s15, v6
    v_cmp_gt_u32 vcc, 64, v0
    s_and_saveexec_b64 s[22:23], vcc
    s_cbranch_execz K1_NOTAB
    global_store_dwordx4 v7, v[52:55], s[12:13] {opt.k1st}
K1_NOTAB:
    s_mov_b64 exec, s[22:23]""")
    a(f"""s_waitcnt lgkmcnt(4)
    global_store_dwordx4 v1, v[8:11], s[12:13] {opt.k1st}""")
    for k in range(4):
        a(f"""s_waitcnt lgkmcnt({3-k})
              global_store_dwordx4 v2, v[{12+4*k}:{15+4*k}], s[12:13] {opt.k1st}""")
        if k < 3: a(f"v_add_u32 v2, {320*16}, v2")
    if opt.stamps:
        stamp(a, opt, 'stores issued', 1, 40, 38)
        a("s_waitcnt vmcnt(0)")
        stamp(a, opt, 'stores done', 1, 40, 38)
        a(f"""v_lshrrev_b32 v1, 6, v0
        s_mul_i32 s14, s2, 8 * 32
        v_lshl_add_u32 v1, v1, 5, s14
        v_add_u32 v1, {WS_STAMP}, v1""")
        for k in range(8): a(f"v_mov_b32 v{8+k}, s{40+k}")
        a("global_store_dwordx4 v1, v[8:11], s[12:13]\nglobal_store_dwordx4 v1, v[12:15], s[12:13] offset:16")
    a(f"""s_endpgm
K1_AUX:
    v_lshrrev_b32 v1, 6, v0
    v_and_b32 v2, 63, v0
    s_nop 0
    v_readfirstlane_b32 s14, v1                 ; wave
    s_cmp_eq_u32 s2, {NP + 4}
    s_cbranch_scc1 K1_CONST
    s_cmp_ge_u32 s14, 4
    s_cbranch_scc1 K1_END
    s_sub_u32 s15, s2, {NP}
    s_lshl_b32 s22, s14, 13
    s_lshl_b32 s23, s15, 6
    s_add_u32 s22, s22, s23
    v_lshrrev_b32 v3, 4, v2
    v_lshlrev_b32 v3, 11, v3
    v_and_b32 v4, 15, v2
    v_lshl_add_u32 v3, v4, 2, v3
    v_add_u32 v3, s22, v3
    s_lshl_b32 s22, s15, 13
    s_lshl_b32 s23, s14, 10
    s_add_u32 s22, s22, s23
    s_add_u32 s22, s22, {WS_WMIX}
    v_lshl_add_u32 v4, v2, 4, s22
    s_mov_b32 s24, 0x05040100
    s_mov_b32 s25, 0x07060302
    s_waitcnt lgkmcnt(0)""")
    for t in range(8): a(f"global_load_dword v{8+t}, v3, s[20:21] offset:{t*256}")
    a("s_waitcnt vmcnt(0)")
    for u in range(4):
        a(f"v_perm_b32 v{16+u}, v{9+2*u}, v{8+2*u}, s24\nv_perm_b32 v{20+u}, v{9+2*u}, v{8+2*u}, s25")
    a(f"""global_store_dwordx4 v4, v[16:19], s[12:13]
    v_add_u32 v4, 4096, v4
    global_store_dwordx4 v4, v[20:23], s[12:13]
    s_endpgm
K1_CONST:
    s_cmp_ge_u32 s14, 1
    s_cbranch_scc1 K1_END
    v_lshlrev_b32 v3, 2, v2
    v_and_b32 v4, 3, v2
    v_lshlrev_b32 v4, 1, v4
    s_mov_b32 s22, {WS_CONST}
    v_lshl_add_u32 v5, v2, 4, s22
    s_mov_b32 s24, 0xbfb8aa3b                   ; -log2(e)
    s_mov_b32 s25, 0xffff0000
    s_waitcnt lgkmcnt(0)""")
    for k in range(4): a(f"global_load_dword v{8+k}, v3, s[16:17] offset:{k*256}")
    for i in range(4):
        for f in range(4): a(f"global_load_ushort v{32+4*i+f}, v4, s[18:19] offset:{i*32+f*8}")
    a("s_waitcnt vmcnt(16)")
    for k in range(4):
        a(f"""v_lshlrev_b32 v{12+k}, 16, v{8+k}
              v_and_b32 v{16+k}, s25, v{8+k}
              v_mul_f32 v{12+k}, s24, v{12+k}
              v_mul_f32 v{16+k}, s24, v{16+k}""")
    for p in range(2):
        s, d = 12 + 4 * p, 20 + 4 * p
        a(f"""v_cvt_pk_bf16_f32 v{d}, v{s}, v{s+1}
              v_cvt_pk_bf16_f32 v{d+1}, v{s+2}, v{s+3}""")
        for h in range(2):
            a(f"""v_lshlrev_b32 v28, 16, v{d+h}
                  v_and_b32 v29, s25, v{d+h}
                  v_sub_f32 v28, v{s+2*h}, v28
                  v_sub_f32 v29, v{s+2*h+1}, v29
                  v_cvt_pk_bf16_f32 v{d+2+h}, v28, v29""")
    a("""global_store_dwordx4 v5, v[20:23], s[12:13]
    global_store_dwordx4 v5, v[24:27], s[12:13] offset:1024
    s_waitcnt vmcnt(2)""")
    for i in range(4):
        a(f"""v_lshl_or_b32 v{48+2*i}, v{33+4*i}, 16, v{32+4*i}
              v_lshl_or_b32 v{49+2*i}, v{35+4*i}, 16, v{34+4*i}""")
    a("""global_store_dwordx4 v5, v[48:51], s[12:13] offset:2048
    global_store_dwordx4 v5, v[52:55], s[12:13] offset:3072
K1_END:
    s_endpgm""")
    return a.text(), 64, 48

L_HIST, L_WT, L_BASE = 0, 1024, 2048
L_LIST = 3072
L_SENT = L_LIST + CAP * 4
L_UREC = L_SENT + (CAP + 192) * 8
L_AGG = L_UREC + CAP * 16
AGG_RS = 288
K2_LDS = L_AGG + 160 * AGG_RS

V_L16 = 1
V_LEN, V_PRE, V_GID = 2, 3, 4
V_AENT, V_POS = 5, 6
T0 = 8
ACC = 16; XR = 64; TP = 96; UU = 112; RR = 128; TT = 136; WPK = 140; WTMP = 148
KEY = 164; ENT = 166; RECN = 168; EF = 172; CONST = 176; WMIX = 192
K2_VGPR = 224
UE_HI, UE_LO, UO_HI, UO_LO, CGB = CONST, CONST + 2, CONST + 4, CONST + 6, CONST + 8
S_X, S_WS, S_OUT = 12, 16, 20
S_BETA, S_WAVE, S_N, S_W0, S_NWIN, S_START, S_END, S_REM, S_REMB, S_OFF, S_MASK = 24, 25, 26, 27, 28, 29, 30, 31, 32, 33, 34
S_M = 36
S_T = 42
S_K = 48
S_ST = 64
K2_SGPR = 100

def mfma4(d, a_, b, c, blk=None):
    cc = "0" if c is None else vr(c, 4)
    return f"v_mfma_f32_4x4x4_16b_bf16 {vr(d,4)}, {vr(a_,2)}, {vr(b,2)}, {cc}" + ("" if blk is None else f" cbsz:4 abid:{blk}")

def u_mfma(g, r):
    d = UU + 8 * (g % 2) + 4 * (r // 2)
    b = (UE_HI, UE_LO, UO_HI, UO_LO)[r]
    return mfma4(d, EF, b, d if r % 2 else None, g % 16)

def t_mfma(e, odd):
    return mfma4(TP + 8 * (e % 2) + 4 * odd, WPK + 2 * (e % 4), XR + 4 * (e % 8) + 2 * odd, None, (e % 64) // 4)

def silu_regs(eb, odd):
    u = UU + 8 * ((eb // 4) % 2) + 4 * odd + eb % 4
    r = RR + 4 * ((eb // 2) % 2) + 2 * odd
    return u, r

def fma4(a, q):
    h = q % 2
    a(f"s_set_gpr_idx_on s{S_K + q % 16}, 0xc")
    for odd in range(2):
        r = RR + 4 * ((q // 2) % 2) + 2 * odd
        for o in (0, 2):
            acc = ACC + 4 * odd + o; tp = TP + 8 * (q % 2) + 4 * odd + o
            a(f"v_pk_fma_f32 {vr(acc,2)}, {vr(r,2)}, {vr(tp,2)}, {vr(acc,2)} op_sel:[{h},0,0] op_sel_hi:[{h},1,1]")
    a("s_set_gpr_idx_off")

def meta_read_entry(a):
    a(f"ds_read_b64 {vr(ENT,2)}, v{V_AENT}")
def meta_fix_entry(a):
    a(f"""v_cmp_gt_u32 vcc, s{S_END}, v{V_POS}
          v_add_u32 v{V_POS}, 64, v{V_POS}
          v_add_u32 v{V_AENT}, 512, v{V_AENT}
          v_mov_b32 v{T0}, {L_UREC}
          v_cndmask_b32 v{ENT}, 40, v{ENT}, vcc
          v_cndmask_b32 v{ENT+1}, v{T0}, v{ENT+1}, vcc
          ds_read_b128 {vr(RECN,4)}, v{ENT+1}""")
def w_mfma(i): return mfma4(WTMP + 4 * i, RECN, CGB + 2 * i, None)
def w_cvt(a, m):
    a(f"""v_cvt_pk_bf16_f32 v{WPK+2*m}, v{WTMP+m}, v{WTMP+4+m}
          v_cvt_pk_bf16_f32 v{WPK+2*m+1}, v{WTMP+8+m}, v{WTMP+12+m}""")

def body(a, opt, loads):
    D = opt.D; tag = "A" if loads else "B"
    for q in range(64):
        if q % 4 == 0:
            a(f"{tag}_{q}:")
            if loads: a(f"s_sub_u32 s{S_REM}, s{S_REM}, 4\ns_cbranch_scc1 B_{q}")
            else:     a(f"s_sub_u32 s{S_REMB}, s{S_REMB}, 4\ns_cbranch_scc1 MAIN_DONE")
        eb = q + 2 - q % 2; odd = q % 2
        u, r = silu_regs(eb, odd)
        g, ur = (q + 6) // 4, (q + 6) % 4
        a(f"s_waitcnt vmcnt({D - 2 if loads else max(0, D - 6 - q % 4)})")
        a(t_mfma(q + 1, 0))
        if loads:
            a(f"v_readlane_b32 s{S_K + (q + D) % 16}, v{KEY if q + D < 64 else ENT}, {(q + D) % 64}")
        a(u_mfma(g, ur))
        a(f"v_exp_f32 v{TT}, v{u}\nv_exp_f32 v{TT+1}, v{u+1}")
        if loads: a(f"s_and_b32 s{S_OFF}, s{S_K + (q + D) % 16}, s{S_MASK}")
        else:     a("s_nop 0")
        a(f"v_pk_add_f32 {vr(TT,2)}, {vr(TT,2)}, 1.0 op_sel_hi:[1,0]")
        a(t_mfma(q + 1, 1))
        if 40 <= q < 44: a(w_mfma(q - 40))
        a(f"v_rcp_f32 v{TT}, v{TT}\nv_rcp_f32 v{TT+1}, v{TT+1}")
        if loads: a(f"buffer_load_dwordx4 {vr(XR + 4 * ((q + D) % 8), 4)}, v{V_L16}, {sr(S_X,4)}, s{S_OFF} offen")
        else:     a("s_nop 0")
        a(f"v_pk_mul_f32 {vr(r,2)}, {vr(TT,2)}, {vr(u,2)}")
        fma4(a, q)
        if q == 63: a(f"v_mov_b32 v{KEY}, v{ENT}")
        if q == 8: meta_read_entry(a)
        if q == 12: a("s_waitcnt lgkmcnt(0)"); meta_fix_entry(a)
        if q == 20: a("s_waitcnt lgkmcnt(0)")
        if q == 57: a(f"v_mov_b32 v{EF}, v{RECN+2}\nv_mov_b32 v{EF+1}, v{RECN+3}")
        if q >= 60: w_cvt(a, q - 60)
    a(f"s_branch {tag}_0")

def main_kernel(opt):
    a = Asm(); D = opt.D
    st = lambda k: stamp(a, opt, k, 2, S_ST, 96)
    a(f"""main_kernel:
    s_cmp_ge_u32 s2, 256
    s_cbranch_scc1 K2_END""")
    st('start')
    a(f"""s_load_dwordx2 s[4:5], s[0:1], 0
    s_load_dwordx2 s[6:7], s[0:1], 64
    s_load_dwordx2 s[8:9], s[0:1], 80
    s_and_b32 s10, s2, 7
    s_lshl_b32 s10, s10, 5
    s_lshr_b32 s11, s2, 3
    s_or_b32 s{S_BETA}, s10, s11
    v_lshrrev_b32 v{T0}, 6, v0
    v_and_b32 v{T0+1}, 63, v0
    v_lshlrev_b32 v{V_L16}, 4, v{T0+1}
    v_readfirstlane_b32 s{S_WAVE}, v{T0}
    v_lshrrev_b32 v{V_GID}, 1, v0
    s_lshl_b32 s10, s{S_BETA}, 2
    s_add_u32 s10, s10, {WS_TAB}
    v_lshl_add_u32 v{T0+2}, v{V_GID}, 10, s10
    s_mov_b32 s{S_X+2}, {N * 1024}
    s_mov_b32 s{S_X+3}, 0x20000
    s_mov_b32 s{S_WS+2}, {WS_END}
    s_mov_b32 s{S_WS+3}, 0x20000
    s_mov_b32 s{S_OUT+2}, {N * 1024}
    s_mov_b32 s{S_OUT+3}, 0x20000
    s_mov_b32 s{S_MASK}, 0xfffffc00
    s_and_b32 s10, s{S_WAVE}, 3
    s_lshl_b32 s10, s10, 13
    s_add_u32 s10, s10, {WS_WMIX}
    s_mov_b32 s11, {WS_CONST}
    s_waitcnt lgkmcnt(0)
    s_mov_b32 s{S_X}, s4
    s_mov_b32 s{S_X+1}, s5
    s_mov_b32 s{S_WS}, s8
    s_mov_b32 s{S_WS+1}, s9
    s_mov_b32 s{S_OUT}, s6
    s_mov_b32 s{S_OUT+1}, s7""")
    st('kernargs')
    a(f"buffer_load_dword v{V_LEN}, v{T0+2}, {sr(S_WS,4)}, 0 offen")
    for k in range(4):
        a(f"buffer_load_dwordx4 {vr(CONST+4*k,4)}, v{V_L16}, {sr(S_WS,4)}, s11 offen offset:{k*1024}")
    for k in range(8):
        if k == 4: a("s_add_u32 s10, s10, 4096")
        a(f"buffer_load_dwordx4 {vr(WMIX+4*k,4)}, v{V_L16}, {sr(S_WS,4)}, s10 offen offset:{(k%4)*1024}")
    a(f"""v_lshlrev_b32 v{T0+2}, 2, v0
    v_mov_b32 v{T0+3}, 0
    ds_write_b32 v{T0+2}, v{T0+3}""")
    for k in range(48): a(f"v_mov_b32 v{ACC+k}, 0")
    a(f"""v_mul_u32_u24 v{V_GID}, {EP}, v{V_GID}
    v_and_b32 v{T0+4}, 1, v0
    v_cmp_eq_u32 {sr(S_T,2)}, 1, v{T0+4}
    s_mov_b32 s{S_W0}, 0
    s_waitcnt lgkmcnt(0)""")
    st('pre B0')
    a("s_barrier\ns_waitcnt vmcnt(12)")
    st('tab arrived')
    a(f"""v_and_b32 v{T0+5}, 0xffff, v{V_LEN}
    v_lshrrev_b32 v{V_LEN}, 16, v{V_LEN}
    v_add_u32 v{V_GID}, v{V_GID}, v{T0+5}
    v_cndmask_b32 v{T0+5}, 0, v{V_LEN}, {sr(S_T,2)}
    v_mov_b32 v{V_PRE}, v{T0+5}""")
    scan64(a, V_PRE)
    a(f"""s_nop 0
    v_readlane_b32 s{S_T+2}, v{V_PRE}, 63
    v_sub_u32 v{V_PRE}, v{V_PRE}, v{T0+5}
    v_cmp_lt_u32 vcc, s{S_WAVE}, v{T0+1}
    v_cmp_gt_u32 {sr(S_T,2)}, 9, v{T0+1}
    v_lshlrev_b32 v{T0+2}, 2, v{T0+1}
    v_mov_b32 v{T0+3}, s{S_T+2}
    s_and_b64 vcc, vcc, {sr(S_T,2)}
    s_and_saveexec_b64 {sr(S_T,2)}, vcc
    ds_add_u32 v{T0+2}, v{T0+3} offset:{L_WT}
    s_mov_b64 exec, {sr(S_T,2)}
    s_lshl_b32 s10, s{S_WAVE}, 2
    v_mov_b32 v{T0+2}, s10
    v_mov_b32 v{T0+3}, 32
    s_waitcnt lgkmcnt(0)
    s_barrier
    ds_read_b32 v{T0+2}, v{T0+2} offset:{L_WT}
    ds_read_b32 v{T0+3}, v{T0+3} offset:{L_WT}
    s_waitcnt lgkmcnt(0)
    v_add_u32 v{V_PRE}, v{V_PRE}, v{T0+2}
    v_readfirstlane_b32 s{S_N}, v{T0+3}""")
    st('prefix done')
    a(f"""ROUND:
    v_and_b32 v{T0}, 1, v0
    v_subrev_u32 v{T0+1}, s{S_W0}, v{V_PRE}
    v_add_u32 v{T0+1}, v{T0+1}, v{T0}
    v_add_u32 v{T0+2}, v{V_GID}, v{T0}
    s_mov_b32 s10, {CAP}
EXPAND:
    v_cmp_lt_u32 vcc, v{T0}, v{V_LEN}
    s_and_b64 exec, exec, vcc
    s_cbranch_execz EXPAND_DONE
    v_cmp_gt_u32 vcc, s10, v{T0+1}
    v_lshlrev_b32 v{T0+3}, 2, v{T0+1}
    s_and_saveexec_b64 {sr(S_T,2)}, vcc
    ds_write_b32 v{T0+3}, v{T0+2} offset:{L_LIST}
    s_mov_b64 exec, {sr(S_T,2)}
    v_add_u32 v{T0}, 2, v{T0}
    v_add_u32 v{T0+1}, 2, v{T0+1}
    v_add_u32 v{T0+2}, 2, v{T0+2}
    s_branch EXPAND
EXPAND_DONE:
    s_mov_b64 exec, -1
    s_sub_u32 s{S_NWIN}, s{S_N}, s{S_W0}
    s_min_u32 s{S_NWIN}, s{S_NWIN}, {CAP}
    v_lshlrev_b32 v{T0}, 2, v0""")
    for i in range(3):
        a(f"""v_add_u32 v{T0+1}, {512*i}, v0
              v_cmp_gt_u32 {sr(S_M+2*i,2)}, s{S_NWIN}, v{T0+1}""")
    a("s_waitcnt lgkmcnt(0)\ns_barrier")
    st('list built')
    G = XR
    for i in range(3): a(f"ds_read_b32 v{G+i}, v{T0} offset:{L_LIST + 2048*i}")
    a(f"""s_lshl_b32 s10, s{S_WAVE}, 10
    s_add_u32 s10, s10, {L_UREC}
    s_mov_b32 s11, {WS_REC}
    v_mov_b32 v{T0+5}, 1
    s_waitcnt lgkmcnt(0)""")
    for i in range(3):
        a(f"v_lshlrev_b32 v{G+4+i}, 2, v{G+i}\nv_lshlrev_b32 v{G+i}, 4, v{G+i}")
    for i in range(2):
        a(f"s_mov_b64 exec, {sr(S_M+2*i,2)}\nbuffer_load_dword v{G+4+i}, v{G+4+i}, {sr(S_WS,4)}, 0 offen")
    a(f"""s_mov_b64 exec, {sr(S_M+4,2)}
    s_cbranch_execz SKIP3
    s_add_u32 m0, s10, {2*8192}
    buffer_load_dword v{G+6}, v{G+6}, {sr(S_WS,4)}, 0 offen
    buffer_load_dwordx4 v{G+2}, {sr(S_WS,4)}, s11 offen lds
SKIP3:""")
    for i in range(2):
        a(f"""s_add_u32 m0, s10, {i*8192}
              s_mov_b64 exec, {sr(S_M+2*i,2)}
              buffer_load_dwordx4 v{G+i}, {sr(S_WS,4)}, s11 offen lds""")
    a("s_mov_b64 exec, -1\ns_waitcnt vmcnt(2)")
    st('keys arrived')
    for i in range(3):
        a(f"""v_and_b32 v{G+8+i}, 7, v{G+4+i}
              v_lshrrev_b32 v{T0+1}, 19, v{G+4+i}
              v_lshl_or_b32 v{G+8+i}, v{G+8+i}, 5, v{T0+1}
              v_lshlrev_b32 v{G+8+i}, 2, v{G+8+i}""")
    for i in range(3):
        a(f"s_mov_b64 exec, {sr(S_M+2*i,2)}\nds_add_rtn_u32 v{G+12+i}, v{G+8+i}, v{T0+5} offset:{L_HIST}")
    a("s_mov_b64 exec, -1")
    for i in range(3):
        a(f"""v_and_b32 v{G+16+2*i}, -8, v{G+4+i}
              v_lshlrev_b32 v{G+17+2*i}, 4, v0
              v_add_u32 v{G+17+2*i}, {L_UREC + 8192*i}, v{G+17+2*i}""")
    a(f"""s_lshl_b32 s10, s{S_WAVE}, 3
    s_add_u32 s11, s10, 8
    s_and_b32 s11, s11, 63
    s_waitcnt lgkmcnt(0)
    s_barrier""")
    st('hist done')
    a(f"""ds_read_b128 {vr(G+24,4)}, v{V_L16} offset:{L_HIST}
    s_waitcnt lgkmcnt(0)""")
    scan256(a, G + 24, G + 28, T0)
    a(f"""ds_write_b128 v{V_L16}, {vr(G+28,4)} offset:{L_BASE}
    v_readlane_b32 s{S_START}, v{G+28}, s10
    v_readlane_b32 s{S_END}, v{G+28}, s11""")
    for i in range(3): a(f"ds_read_b32 v{G+8+i}, v{G+8+i} offset:{L_BASE}")
    a(f"""s_cmp_eq_u32 s{S_WAVE}, 7
    s_cselect_b32 s{S_END}, s{S_NWIN}, s{S_END}
    v_lshrrev_b32 v{V_POS}, 4, v{V_L16}
    v_add_u32 v{V_POS}, s{S_START}, v{V_POS}
    v_lshlrev_b32 v{V_AENT}, 3, v{V_POS}
    v_add_u32 v{V_AENT}, {L_SENT}, v{V_AENT}
    s_waitcnt lgkmcnt(0)""")
    for i in range(3):
        a(f"""v_add_lshl_u32 v{G+8+i}, v{G+8+i}, v{G+12+i}, 3
              s_mov_b64 exec, {sr(S_M+2*i,2)}
              ds_write_b64 v{G+8+i}, {vr(G+16+2*i,2)} offset:{L_SENT}
              s_mov_b64 exec, -1""")
    a(f"""s_sub_u32 s10, s{S_END}, s{S_START}
    s_add_u32 s10, s10, 3
    s_and_b32 s10, s10, -4
    s_min_u32 s{S_REMB}, s10, {D}
    s_sub_u32 s{S_REM}, s10, s{S_REMB}
    s_waitcnt lgkmcnt(0)""")
    st('scattered')
    a("s_waitcnt vmcnt(0)")
    st('recs landed')
    a("s_barrier")
    st('sorted')
    meta_read_entry(a)
    a(f"""v_lshlrev_b32 v{T0+2}, 2, v0
    v_mov_b32 v{T0+3}, 0
    v_cmp_gt_u32 vcc, 0x100, v0
    s_and_saveexec_b64 {sr(S_T,2)}, vcc
    ds_write_b32 v{T0+2}, v{T0+3} offset:{L_HIST}
    s_mov_b64 exec, {sr(S_T,2)}
    s_waitcnt lgkmcnt(0)""")
    meta_fix_entry(a)
    for e in range(D):
        a(f"""v_readlane_b32 s{S_K+e}, v{ENT}, {e}
              s_and_b32 s{S_OFF}, s{S_K+e}, s{S_MASK}
              buffer_load_dwordx4 {vr(XR+4*e,4)}, v{V_L16}, {sr(S_X,4)}, s{S_OFF} offen""")
    a(f"""v_mov_b32 v{KEY}, v{ENT}
    s_waitcnt lgkmcnt(0)
    v_mov_b32 v{EF}, v{RECN+2}
    v_mov_b32 v{EF+1}, v{RECN+3}""")
    for i in range(4): a(w_mfma(i))
    a(u_mfma(0, 0)); a(u_mfma(0, 2)); a(u_mfma(1, 0)); a(u_mfma(0, 1)); a(u_mfma(0, 3)); a(u_mfma(1, 1))
    for m in range(4): w_cvt(a, m)
    for odd in range(2):
        u, r = silu_regs(0, odd)
        a(f"""v_exp_f32 v{TT}, v{u}
              v_exp_f32 v{TT+1}, v{u+1}
              s_nop 0
              v_pk_add_f32 {vr(TT,2)}, {vr(TT,2)}, 1.0 op_sel_hi:[1,0]
              v_rcp_f32 v{TT}, v{TT}
              v_rcp_f32 v{TT+1}, v{TT+1}
              s_nop 0
              v_pk_mul_f32 {vr(r,2)}, {vr(TT,2)}, {vr(u,2)}""")
    st('fill done')
    a(f"s_waitcnt vmcnt({D-1})")
    st('first row')
    a(t_mfma(0, 0)); a(t_mfma(0, 1))
    body(a, opt, True)
    body(a, opt, False)
    a(f"""MAIN_DONE:
    s_waitcnt vmcnt(0) lgkmcnt(0)
    s_add_u32 s{S_W0}, s{S_W0}, {CAP}
    s_cmp_lt_u32 s{S_W0}, s{S_N}
    s_cbranch_scc1 ROUND""")
    st('main done')
    a(f"""s_mov_b32 s10, 0xbf317218                    ; -ln 2
    s_mov_b32 s11, 0xbf317218
    s_mul_i32 s{S_T}, s{S_WAVE}, {4 * AGG_RS}
    s_add_u32 s{S_T}, s{S_T}, {L_AGG}
    v_lshrrev_b32 v{T0}, 2, v{V_L16}
    v_add_u32 v{T0}, s{S_T}, v{T0}""")
    for s in range(5):
        for k in range(4):
            a(f"v_pk_mul_f32 {vr(ACC+8*s+2*k,2)}, {vr(ACC+8*s+2*k,2)}, s[10:11]")
        for o in range(4):
            a(f"""v_cvt_pk_bf16_f32 v{XR+4*(s%2)+o}, v{ACC+8*s+o}, v{ACC+8*s+4+o}
                  ds_write_b32 v{T0}, v{XR+4*(s%2)+o} offset:{(32*s+o)*AGG_RS}""")
    a(f"""v_lshrrev_b32 v{T0+1}, 4, v{V_L16}            ; lane
    v_and_b32 v{T0+2}, 15, v{T0+1}
    v_lshrrev_b32 v{T0+3}, 4, v{T0+1}                 ; lane >> 4
    s_lshr_b32 s{S_T}, s{S_WAVE}, 2
    s_mul_i32 s{S_T+1}, s{S_T}, {80 * AGG_RS}
    s_add_u32 s{S_T+1}, s{S_T+1}, {L_AGG}
    v_mul_u32_u24 v{T0}, {AGG_RS}, v{T0+2}
    v_lshl_add_u32 v{T0}, v{T0+3}, 4, v{T0}
    v_add_u32 v{T0}, s{S_T+1}, v{T0}
    s_mul_i32 s{S_T}, s{S_T}, {20 << 18}
    s_lshl_b32 s{S_T+1}, s{S_BETA}, 10
    s_add_u32 s{S_T}, s{S_T}, s{S_T+1}
    s_and_b32 s{S_T+1}, s{S_WAVE}, 3
    s_lshl_b32 s{S_T+1}, s{S_T+1}, 8
    s_add_u32 s{S_T}, s{S_T}, s{S_T+1}
    v_lshlrev_b32 v{T0+3}, 18, v{T0+3}
    v_lshl_add_u32 v{T0+3}, v{T0+2}, 4, v{T0+3}
    v_add_u32 v{T0+3}, s{S_T}, v{T0+3}
    s_waitcnt lgkmcnt(0)
    s_barrier""")
    st('agg in LDS')
    AF = XR
    def rd(t):
        for ks in range(4):
            a(f"ds_read_b128 {vr(AF+16*(t%2)+4*ks,4)}, v{T0} offset:{t*16*AGG_RS + ks*64}")
    def pack_store(t):
        d = ACC + 8 * t; p = TP + 4 * (t % 2)
        for j in range(4): a(f"v_cvt_pk_bf16_f32 v{p+j}, v{d+2*j}, v{d+2*j+1}")
        a(f"buffer_store_dwordx4 {vr(p,4)}, v{T0+3}, {sr(S_OUT,4)}, 0 offen {opt.outst}")
        if t < 4: a(f"v_add_u32 v{T0+3}, {4 << 18}, v{T0+3}")
    rd(0)
    for t in range(5):
        if t < 4: rd(t + 1)
        for ks in range(4):
            a(f"s_waitcnt lgkmcnt({(4 if t < 4 else 0) + 3 - ks})")
            for j in range(2):
                d = ACC + 8 * t + 4 * j
                a(f"v_mfma_f32_16x16x32_bf16 {vr(d,4)}, {vr(AF+16*(t%2)+4*ks,4)}, {vr(WMIX+16*j+4*ks,4)}, " + ("0" if ks == 0 else vr(d, 4)))
            if ks == 3 and t > 0: pack_store(t - 1)
    a("s_nop 7")
    pack_store(4)
    if opt.stamps:
        st('stores issued')
        a("s_waitcnt vmcnt(0)")
        st('stores done')
        a(f"""s_lshl_b32 s10, s2, 3
        s_add_u32 s10, s10, s{S_WAVE}
        s_lshl_b32 s10, s10, 7
        s_add_u32 s10, s10, {WS_STAMP + 0x10000}
        v_mov_b32 v{T0}, s10
        s_sub_u32 s{S_ST+31}, s{S_END}, s{S_START}""")
        for k in range(32): a(f"v_mov_b32 v{XR+k}, s{S_ST+k}")
        for k in range(8): a(f"buffer_store_dwordx4 {vr(XR+4*k,4)}, v{T0}, {sr(S_WS,4)}, 0 offen offset:{16*k}")
    a("K2_END:\ns_endpgm")
    return a.text(), K2_VGPR, K2_SGPR

HEADER = open(__file__.rsplit("/", 1)[0] + "/header.txt").read() if "/" in __file__ else open("header.txt").read()

def generate(opt):
    k1, v1, s1 = bin_kernel(opt)
    k2, v2, s2 = main_kernel(opt)
    out = HEADER
    out += f"; @launch kernel=bin_kernel grid=({NP + 5},1,1) block=(320,1,1) lds={K1_LDS}\n"
    out += f"; @launch kernel=main_kernel grid=(256,1,1) block=(512,1,1) lds={K2_LDS}\n"
    out += '.amdgcn_target "amdgcn-amd-amdhsa--gfx950"\n.text\n'
    for n, k in (("bin_kernel", k1), ("main_kernel", k2)):
        out += f".globl {n}\n.p2align 8\n.type {n},@function\n" + k
    out += kd("bin_kernel", v1, s1) + kd("main_kernel", v2, s2)
    return out

def options(argv):
    p = argparse.ArgumentParser()
    p.add_argument("-o", default="/code/" + NAME + ".s")
    p.add_argument("--stamps", action="store_true")
    p.add_argument("--D", type=int, default=8)
    p.add_argument("--k1st", default="")
    p.add_argument("--pf", type=int, default=0)
    p.add_argument("--pfn", type=int, default=8)
    p.add_argument("--pfflag", default="")
    p.add_argument("--outst", default="")
    return p.parse_args(argv)

if __name__ == "__main__":
    opt = options(sys.argv[1:])
    open(opt.o, "w").write(generate(opt))
    if opt.stamps: open(opt.o + ".names", "w").write(repr(STAMPS))
```

```python
import sys, argparse

NAME = "gather_scatter__tensor_product_equiv_tfn__graph"
N, E, C = 10000, 320000, 128
NP, EP = 250, 1280
WS_KEY = 0
WS_REC = 0x140000
WS_WMIX = 0x630000
WS_CONST = 0x638000
WS_STAMP = 0x700000
WS_TAB = 0x780000
WS_END = WS_TAB + NP * 1024
CAP = 1536

class Asm:
    def __init__(self): self.l = []
    def __call__(self, s):
        for line in s.strip("\n").split("\n"):
            line = line.strip()
            if not line: continue
            self.l.append(line if line.endswith(":") else "    " + line)
    def text(self): return "\n".join(self.l) + "\n"

def vr(a, n=1): return f"v{a}" if n == 1 else f"v[{a}:{a+n-1}]"
def sr(a, n=1): return f"s{a}" if n == 1 else f"s[{a}:{a+n-1}]"

def scan64(a, v):
    for c in ("row_shr:1 row_mask:0xf", "row_shr:2 row_mask:0xf", "row_shr:4 row_mask:0xf", "row_shr:8 row_mask:0xf"):
        a(f"s_nop 1\nv_add_u32_dpp v{v}, v{v}, v{v} {c} bank_mask:0xf bound_ctrl:0")
    a(f"s_nop 1\nv_add_u32_dpp v{v}, v{v}, v{v} row_bcast:15 row_mask:0xa bank_mask:0xf")
    a(f"s_nop 1\nv_add_u32_dpp v{v}, v{v}, v{v} row_bcast:31 row_mask:0xc bank_mask:0xf")

def scan256(a, h, b, t):
    a(f"""v_add_u32 v{t}, v{h}, v{h+1}
          v_add3_u32 v{t}, v{t}, v{h+2}, v{h+3}
          v_mov_b32 v{t+1}, v{t}""")
    scan64(a, t + 1)
    a(f"""v_sub_u32 v{b}, v{t+1}, v{t}
          v_add_u32 v{b+1}, v{b}, v{h}
          v_add_u32 v{b+2}, v{b+1}, v{h+1}
          v_add_u32 v{b+3}, v{b+2}, v{h+2}""")

def kd(name, vgpr, sgpr):
    return f""".section .rodata,"a"
.p2align 6
.amdhsa_kernel {name}
  .amdhsa_next_free_vgpr {vgpr}
  .amdhsa_next_free_sgpr {sgpr}
  .amdhsa_accum_offset {(vgpr + 3) // 4 * 4}
  .amdhsa_group_segment_fixed_size 0
  .amdhsa_kernarg_size 88
  .amdhsa_user_sgpr_count 2
  .amdhsa_user_sgpr_kernarg_segment_ptr 1
  .amdhsa_system_sgpr_workgroup_id_x 1
  .amdhsa_float_denorm_mode_32 3
.end_amdhsa_kernel
"""

STAMPS = {1: [], 2: []}
def stamp(a, opt, name, kernel, sbase, stmp):
    if opt.hold and kernel == 1 and name == "start":
        a(f"""s_cmp_lg_u32 s2, 0
        s_cbranch_scc1 HOLD_NOSTAMP
        s_load_dwordx2 s[30:31], s[0:1], 80
        s_memrealtime s[32:33]
        s_waitcnt lgkmcnt(0)
        v_mov_b32 v1, {WS_STAMP}
        v_mov_b32 v2, s32
        global_store_dword v1, v2, s[30:31]
        HOLD_NOSTAMP:""")
    if opt.hold and kernel == 2 and name == opt.hold.split("@")[0]:
        a(f"""s_load_dwordx2 s[90:91], s[0:1], 80
        s_waitcnt lgkmcnt(0)
        s_add_u32 s90, s90, {WS_STAMP}
        s_addc_u32 s91, s91, 0
        s_load_dword s92, s[90:91], 0
        s_waitcnt lgkmcnt(0)
        s_add_u32 s92, s92, {int(opt.hold.split("@")[1]) * 100}
        HOLD_SPIN:
        s_memrealtime s[94:95]
        s_waitcnt lgkmcnt(0)
        s_sub_u32 s94, s94, s92
        s_cmp_lt_i32 s94, 0
        s_cbranch_scc1 HOLD_SPIN""")
    if not opt.stamps: return
    k = len(STAMPS[kernel]); STAMPS[kernel].append(name)
    a(f"s_memrealtime {sr(stmp, 2)}\ns_waitcnt lgkmcnt(0)\ns_mov_b32 s{sbase + k}, s{stmp}")

K1_HIST, K1_BASE, K1_SKEY, K1_SREC = 0, 1024, 2048, 2048 + EP * 4
K1_LDS = K1_SREC + EP * 16

def bin_kernel(opt):
    a = Asm()
    a(f"""bin_kernel:
    s_cmp_ge_u32 s2, {NP + 5}
    s_cbranch_scc1 K1_END""")
    stamp(a, opt, 'start', 1, 40, 38)
    a(f"""s_load_dwordx4 s[4:7], s[0:1], 8
    s_load_dwordx4 s[8:11], s[0:1], 24
    s_load_dwordx2 s[12:13], s[0:1], 80
    s_load_dwordx4 s[16:19], s[0:1], 40
    s_load_dwordx2 s[20:21], s[0:1], 56
    s_load_dwordx2 s[26:27], s[0:1], 0
    s_cmp_ge_u32 s2, {NP}
    s_cbranch_scc1 K1_AUX
    s_mul_i32 s14, s2, {EP * 4}
    v_lshl_add_u32 v1, v0, 4, s14
    v_lshlrev_b32 v2, 1, v1
    v_lshlrev_b32 v3, 2, v0
    v_mov_b32 v4, 0
    v_mov_b32 v5, 1
    s_waitcnt lgkmcnt(0)
    global_load_dwordx4 v[8:11], v1, s[6:7]     ; dst
    global_load_dwordx4 v[12:15], v1, s[4:5]    ; src
    global_load_dwordx4 v[16:19], v2, s[8:9]    ; Y
    global_load_dwordx4 v[20:23], v2, s[8:9] offset:16
    global_load_dwordx4 v[24:27], v2, s[10:11]  ; edge_feat
    global_load_dwordx4 v[28:31], v2, s[10:11] offset:16""")
    def prefetch_x():
        a(f"s_mul_i32 s15, s2, 40960\nv_lshl_add_u32 v7, v0, 4, s15")
        for k in range(opt.pfn):
            a(f"global_load_dwordx4 v[56:59], v7, s[26:27] {opt.pfflag}")
            if k < opt.pfn - 1: a("v_add_u32 v7, 5120, v7")
    npf = opt.pfn if opt.pf else 0
    if opt.pf == 1: prefetch_x()
    a(f"""ds_write_b32 v3, v4 offset:{K1_HIST}        ; 320 words: histogram + start of base table
    s_waitcnt lgkmcnt(0)
    s_barrier
    s_waitcnt vmcnt({5 + (npf if opt.pf == 1 else 0)})""")
    stamp(a, opt, 'dst arrived', 1, 40, 38)
    if opt.pf == 2: prefetch_x()
    for k in range(4):
        a(f"""v_and_b32 v{32+k}, 0xff, v{8+k}
              v_lshlrev_b32 v{32+k}, 2, v{32+k}
              ds_add_rtn_u32 v{36+k}, v{32+k}, v5 offset:{K1_HIST}""")
    a(f"s_waitcnt vmcnt({4 + (npf if opt.pf in (1, 2) else 0)})")
    for k in range(4):
        a(f"""v_lshrrev_b32 v{8+k}, 8, v{8+k}
              v_lshl_or_b32 v{8+k}, v{12+k}, 10, v{8+k}""")
    a(f"""v_and_b32 v6, 63, v0
    v_lshlrev_b32 v6, 4, v6
    s_waitcnt lgkmcnt(0)
    s_barrier
    ds_read_b128 v[40:43], v6 offset:{K1_HIST}
    s_waitcnt lgkmcnt(0)""")
    scan256(a, 40, 44, 48)
    a(f"ds_write_b128 v6, v[44:47] offset:{K1_BASE}")
    for k in range(4):
        a(f"v_lshl_or_b32 v{52+k}, v{40+k}, 16, v{44+k}")
    for k in range(4):
        a(f"ds_read_b32 v{40+k}, v{32+k} offset:{K1_BASE}")
    for k in range(4):
        a(f"""s_waitcnt lgkmcnt({3-k})
              v_add_u32 v{36+k}, v{36+k}, v{40+k}
              v_lshlrev_b32 v{32+k}, 2, v{36+k}
              v_lshlrev_b32 v{36+k}, 4, v{36+k}""")
    for k in range(4):
        a(f"ds_write_b32 v{32+k}, v{8+k} offset:{K1_SKEY}")
    a(f"s_waitcnt vmcnt({npf if opt.pf in (1, 2) else 0})")
    if opt.pf == 3: prefetch_x()
    for k in range(4):
        a(f"""v_add_u32 v{36+k}, {K1_SREC}, v{36+k}
              ds_write2_b64 v{36+k}, v[{16+2*k}:{17+2*k}], v[{24+2*k}:{25+2*k}] offset0:0 offset1:1""")
    a(f"""v_lshlrev_b32 v3, 4, v0
    s_lshl_b32 s15, s14, 2
    s_add_u32 s15, s15, {WS_REC}
    v_add_u32 v2, s15, v3
    s_waitcnt lgkmcnt(0)
    s_barrier""")
    stamp(a, opt, 'sorted in LDS', 1, 40, 38)
    a(f"ds_read_b128 v[8:11], v3 offset:{K1_SKEY}")
    for k in range(4):
        a(f"ds_read_b128 v[{12+4*k}:{15+4*k}], v3 offset:{K1_SREC + k * 320 * 16}")
    a(f"""s_lshl_b32 s15, s2, 10
    s_add_u32 s15, s15, {WS_TAB}
    v_add_u32 v7, s15, v6
    v_cmp_gt_u32 vcc, 64, v0
    s_and_saveexec_b64 s[22:23], vcc
    s_cbranch_execz K1_NOTAB
    global_store_dwordx4 v7, v[52:55], s[12:13] {opt.k1st}
K1_NOTAB:
    s_mov_b64 exec, s[22:23]""")
    a(f"""s_waitcnt lgkmcnt(4)
    global_store_dwordx4 v1, v[8:11], s[12:13] {opt.k1st}""")
    for k in range(4):
        a(f"""s_waitcnt lgkmcnt({3-k})
              global_store_dwordx4 v2, v[{12+4*k}:{15+4*k}], s[12:13] {opt.k1st}""")
        if k < 3: a(f"v_add_u32 v2, {320*16}, v2")
    if opt.stamps:
        stamp(a, opt, 'stores issued', 1, 40, 38)
        a("s_waitcnt vmcnt(0)")
        stamp(a, opt, 'stores done', 1, 40, 38)
        a(f"""v_lshrrev_b32 v1, 6, v0
        s_mul_i32 s14, s2, 8 * 32
        v_lshl_add_u32 v1, v1, 5, s14
        v_add_u32 v1, {WS_STAMP}, v1""")
        for k in range(8): a(f"v_mov_b32 v{8+k}, s{40+k}")
        a("global_store_dwordx4 v1, v[8:11], s[12:13]\nglobal_store_dwordx4 v1, v[12:15], s[12:13] offset:16")
    a(f"""s_endpgm
K1_AUX:
    v_lshrrev_b32 v1, 6, v0
    v_and_b32 v2, 63, v0
    s_nop 0
    v_readfirstlane_b32 s14, v1                 ; wave
    s_cmp_eq_u32 s2, {NP + 4}
    s_cbranch_scc1 K1_CONST
    s_cmp_ge_u32 s14, 4
    s_cbranch_scc1 K1_END
    s_sub_u32 s15, s2, {NP}
    s_lshl_b32 s22, s14, 13
    s_lshl_b32 s23, s15, 6
    s_add_u32 s22, s22, s23
    v_lshrrev_b32 v3, 4, v2
    v_lshlrev_b32 v3, 11, v3
    v_and_b32 v4, 15, v2
    v_lshl_add_u32 v3, v4, 2, v3
    v_add_u32 v3, s22, v3
    s_lshl_b32 s22, s15, 13
    s_lshl_b32 s23, s14, 10
    s_add_u32 s22, s22, s23
    s_add_u32 s22, s22, {WS_WMIX}
    v_lshl_add_u32 v4, v2, 4, s22
    s_mov_b32 s24, 0x05040100
    s_mov_b32 s25, 0x07060302
    s_waitcnt lgkmcnt(0)""")
    for t in range(8): a(f"global_load_dword v{8+t}, v3, s[20:21] offset:{t*256}")
    a("s_waitcnt vmcnt(0)")
    for u in range(4):
        a(f"v_perm_b32 v{16+u}, v{9+2*u}, v{8+2*u}, s24\nv_perm_b32 v{20+u}, v{9+2*u}, v{8+2*u}, s25")
    a(f"""global_store_dwordx4 v4, v[16:19], s[12:13]
    v_add_u32 v4, 4096, v4
    global_store_dwordx4 v4, v[20:23], s[12:13]
    s_endpgm
K1_CONST:
    s_cmp_ge_u32 s14, 1
    s_cbranch_scc1 K1_END
    v_lshlrev_b32 v3, 2, v2
    v_and_b32 v4, 3, v2
    v_lshlrev_b32 v4, 1, v4
    s_mov_b32 s22, {WS_CONST}
    v_lshl_add_u32 v5, v2, 4, s22
    s_mov_b32 s24, 0xbfb8aa3b                   ; -log2(e)
    s_mov_b32 s25, 0xffff0000
    s_waitcnt lgkmcnt(0)""")
    for k in range(4): a(f"global_load_dword v{8+k}, v3, s[16:17] offset:{k*256}")
    for i in range(4):
        for f in range(4): a(f"global_load_ushort v{32+4*i+f}, v4, s[18:19] offset:{i*32+f*8}")
    a("s_waitcnt vmcnt(16)")
    for k in range(4):
        a(f"""v_lshlrev_b32 v{12+k}, 16, v{8+k}
              v_and_b32 v{16+k}, s25, v{8+k}
              v_mul_f32 v{12+k}, s24, v{12+k}
              v_mul_f32 v{16+k}, s24, v{16+k}""")
    for p in range(2):
        s, d = 12 + 4 * p, 20 + 4 * p
        a(f"""v_cvt_pk_bf16_f32 v{d}, v{s}, v{s+1}
              v_cvt_pk_bf16_f32 v{d+1}, v{s+2}, v{s+3}""")
        for h in range(2):
            a(f"""v_lshlrev_b32 v28, 16, v{d+h}
                  v_and_b32 v29, s25, v{d+h}
                  v_sub_f32 v28, v{s+2*h}, v28
                  v_sub_f32 v29, v{s+2*h+1}, v29
                  v_cvt_pk_bf16_f32 v{d+2+h}, v28, v29""")
    a("""global_store_dwordx4 v5, v[20:23], s[12:13]
    global_store_dwordx4 v5, v[24:27], s[12:13] offset:1024
    s_waitcnt vmcnt(2)""")
    for i in range(4):
        a(f"""v_lshl_or_b32 v{48+2*i}, v{33+4*i}, 16, v{32+4*i}
              v_lshl_or_b32 v{49+2*i}, v{35+4*i}, 16, v{34+4*i}""")
    a("""global_store_dwordx4 v5, v[48:51], s[12:13] offset:2048
    global_store_dwordx4 v5, v[52:55], s[12:13] offset:3072
K1_END:
    s_endpgm""")
    return a.text(), 64, 48

L_HIST, L_WT, L_BASE = 0, 1024, 2048
L_LIST = 3072
L_SENT = L_LIST + CAP * 4
L_UREC = L_SENT + (CAP + 192) * 8
L_AGG = L_UREC + CAP * 16
AGG_RS = 288
K2_LDS = L_AGG + 160 * AGG_RS

V_L16 = 1
V_LEN, V_PRE, V_GID = 2, 3, 4
V_AENT, V_POS = 5, 6
T0 = 8
ACC = 16; XR = 64; TP = 96; UU = 112; RR = 128; TT = 136; WPK = 140; WTMP = 148
KEY = 164; ENT = 166; RECN = 168; EF = 172; CONST = 176; WMIX = 192
K2_VGPR = 224
UE_HI, UE_LO, UO_HI, UO_LO, CGB = CONST, CONST + 2, CONST + 4, CONST + 6, CONST + 8
S_X, S_WS, S_OUT = 12, 16, 20
S_BETA, S_WAVE, S_N, S_W0, S_NWIN, S_START, S_END, S_REM, S_REMB, S_OFF, S_MASK = 24, 25, 26, 27, 28, 29, 30, 31, 32, 33, 34
S_M = 36
S_T = 42
S_K = 48
S_ST = 64
K2_SGPR = 100

def mfma4(d, a_, b, c, blk=None):
    cc = "0" if c is None else vr(c, 4)
    return f"v_mfma_f32_4x4x4_16b_bf16 {vr(d,4)}, {vr(a_,2)}, {vr(b,2)}, {cc}" + ("" if blk is None else f" cbsz:4 abid:{blk}")

def u_mfma(g, r):
    d = UU + 8 * (g % 2) + 4 * (r // 2)
    b = (UE_HI, UE_LO, UO_HI, UO_LO)[r]
    return mfma4(d, EF, b, d if r % 2 else None, g % 16)

def t_mfma(e, odd):
    return mfma4(TP + 8 * (e % 2) + 4 * odd, WPK + 2 * (e % 4), XR + 4 * (e % 8) + 2 * odd, None, (e % 64) // 4)

def silu_regs(eb, odd):
    u = UU + 8 * ((eb // 4) % 2) + 4 * odd + eb % 4
    r = RR + 4 * ((eb // 2) % 2) + 2 * odd
    return u, r

def fma4(a, q):
    h = q % 2
    a(f"s_set_gpr_idx_on s{S_K + q % 16}, 0xc")
    for odd in range(2):
        r = RR + 4 * ((q // 2) % 2) + 2 * odd
        for o in (0, 2):
            acc = ACC + 4 * odd + o; tp = TP + 8 * (q % 2) + 4 * odd + o
            a(f"v_pk_fma_f32 {vr(acc,2)}, {vr(r,2)}, {vr(tp,2)}, {vr(acc,2)} op_sel:[{h},0,0] op_sel_hi:[{h},1,1]")
    a("s_set_gpr_idx_off")

def meta_read_entry(a):
    a(f"ds_read_b64 {vr(ENT,2)}, v{V_AENT}")
def meta_fix_entry(a):
    a(f"""v_cmp_gt_u32 vcc, s{S_END}, v{V_POS}
          v_add_u32 v{V_POS}, 64, v{V_POS}
          v_add_u32 v{V_AENT}, 512, v{V_AENT}
          v_mov_b32 v{T0}, {L_UREC}
          v_cndmask_b32 v{ENT}, 40, v{ENT}, vcc
          v_cndmask_b32 v{ENT+1}, v{T0}, v{ENT+1}, vcc
          ds_read_b128 {vr(RECN,4)}, v{ENT+1}""")
def w_mfma(i): return mfma4(WTMP + 4 * i, RECN, CGB + 2 * i, None)
def w_cvt(a, m):
    a(f"""v_cvt_pk_bf16_f32 v{WPK+2*m}, v{WTMP+m}, v{WTMP+4+m}
          v_cvt_pk_bf16_f32 v{WPK+2*m+1}, v{WTMP+8+m}, v{WTMP+12+m}""")

def body(a, opt, loads):
    D = opt.D; tag = "A" if loads else "B"
    for q in range(64):
        if q % 4 == 0:
            a(f"{tag}_{q}:")
            if loads: a(f"s_sub_u32 s{S_REM}, s{S_REM}, 4\ns_cbranch_scc1 B_{q}")
            else:     a(f"s_sub_u32 s{S_REMB}, s{S_REMB}, 4\ns_cbranch_scc1 MAIN_DONE")
        eb = q + 2 - q % 2; odd = q % 2
        u, r = silu_regs(eb, odd)
        g, ur = (q + 6) // 4, (q + 6) % 4
        a(f"s_waitcnt vmcnt({D - 2 if loads else max(0, D - 6 - q % 4)})")
        a(t_mfma(q + 1, 0))
        if loads:
            a(f"v_readlane_b32 s{S_K + (q + D) % 16}, v{KEY if q + D < 64 else ENT}, {(q + D) % 64}")
        a(u_mfma(g, ur))
        a(f"v_exp_f32 v{TT}, v{u}\nv_exp_f32 v{TT+1}, v{u+1}")
        if loads: a(f"s_and_b32 s{S_OFF}, s{S_K + (q + D) % 16}, s{S_MASK}")
        else:     a("s_nop 0")
        a(f"v_pk_add_f32 {vr(TT,2)}, {vr(TT,2)}, 1.0 op_sel_hi:[1,0]")
        a(t_mfma(q + 1, 1))
        if 40 <= q < 44: a(w_mfma(q - 40))
        a(f"v_rcp_f32 v{TT}, v{TT}\nv_rcp_f32 v{TT+1}, v{TT+1}")
        if loads: a(f"buffer_load_dwordx4 {vr(XR + 4 * ((q + D) % 8), 4)}, v{V_L16}, {sr(S_X,4)}, s{S_OFF} offen")
        else:     a("s_nop 0")
        a(f"v_pk_mul_f32 {vr(r,2)}, {vr(TT,2)}, {vr(u,2)}")
        fma4(a, q)
        if q == 63: a(f"v_mov_b32 v{KEY}, v{ENT}")
        if q == 8: meta_read_entry(a)
        if q == 12: a("s_waitcnt lgkmcnt(0)"); meta_fix_entry(a)
        if q == 20: a("s_waitcnt lgkmcnt(0)")
        if q == 57: a(f"v_mov_b32 v{EF}, v{RECN+2}\nv_mov_b32 v{EF+1}, v{RECN+3}")
        if q >= 60: w_cvt(a, q - 60)
    a(f"s_branch {tag}_0")

def main_kernel(opt):
    a = Asm(); D = opt.D
    st = lambda k: stamp(a, opt, k, 2, S_ST, 96)
    a(f"""main_kernel:
    s_cmp_ge_u32 s2, 256
    s_cbranch_scc1 K2_END""")
    st('start')
    a(f"""s_load_dwordx2 s[4:5], s[0:1], 0
    s_load_dwordx2 s[6:7], s[0:1], 64
    s_load_dwordx2 s[8:9], s[0:1], 80
    s_and_b32 s10, s2, 7
    s_lshl_b32 s10, s10, 5
    s_lshr_b32 s11, s2, 3
    s_or_b32 s{S_BETA}, s10, s11
    v_lshrrev_b32 v{T0}, 6, v0
    v_and_b32 v{T0+1}, 63, v0
    v_lshlrev_b32 v{V_L16}, 4, v{T0+1}
    v_readfirstlane_b32 s{S_WAVE}, v{T0}
    v_lshrrev_b32 v{V_GID}, 1, v0
    s_lshl_b32 s10, s{S_BETA}, 2
    s_add_u32 s10, s10, {WS_TAB}
    v_lshl_add_u32 v{T0+2}, v{V_GID}, 10, s10
    s_mov_b32 s{S_X+2}, {N * 1024}
    s_mov_b32 s{S_X+3}, 0x20000
    s_mov_b32 s{S_WS+2}, {WS_END}
    s_mov_b32 s{S_WS+3}, 0x20000
    s_mov_b32 s{S_OUT+2}, {N * 1024}
    s_mov_b32 s{S_OUT+3}, 0x20000
    s_mov_b32 s{S_MASK}, 0xfffffc00
    s_and_b32 s10, s{S_WAVE}, 3
    s_lshl_b32 s10, s10, 13
    s_add_u32 s10, s10, {WS_WMIX}
    s_mov_b32 s11, {WS_CONST}
    s_waitcnt lgkmcnt(0)
    s_mov_b32 s{S_X}, s4
    s_mov_b32 s{S_X+1}, s5
    s_mov_b32 s{S_WS}, s8
    s_mov_b32 s{S_WS+1}, s9
    s_mov_b32 s{S_OUT}, s6
    s_mov_b32 s{S_OUT+1}, s7""")
    st('kernargs')
    a(f"buffer_load_dword v{V_LEN}, v{T0+2}, {sr(S_WS,4)}, 0 offen")
    for k in range(4):
        a(f"buffer_load_dwordx4 {vr(CONST+4*k,4)}, v{V_L16}, {sr(S_WS,4)}, s11 offen offset:{k*1024}")
    for k in range(8):
        if k == 4: a("s_add_u32 s10, s10, 4096")
        a(f"buffer_load_dwordx4 {vr(WMIX+4*k,4)}, v{V_L16}, {sr(S_WS,4)}, s10 offen offset:{(k%4)*1024}")
    a(f"""v_lshlrev_b32 v{T0+2}, 2, v0
    v_mov_b32 v{T0+3}, 0
    ds_write_b32 v{T0+2}, v{T0+3}""")
    for k in range(48): a(f"v_mov_b32 v{ACC+k}, 0")
    a(f"""v_mul_u32_u24 v{V_GID}, {EP}, v{V_GID}
    v_and_b32 v{T0+4}, 1, v0
    v_cmp_eq_u32 {sr(S_T,2)}, 1, v{T0+4}
    s_mov_b32 s{S_W0}, 0
    s_waitcnt lgkmcnt(0)""")
    st('pre B0')
    a("s_barrier\ns_waitcnt vmcnt(12)")
    st('tab arrived')
    a(f"""v_and_b32 v{T0+5}, 0xffff, v{V_LEN}
    v_lshrrev_b32 v{V_LEN}, 16, v{V_LEN}
    v_add_u32 v{V_GID}, v{V_GID}, v{T0+5}
    v_cndmask_b32 v{T0+5}, 0, v{V_LEN}, {sr(S_T,2)}
    v_mov_b32 v{V_PRE}, v{T0+5}""")
    scan64(a, V_PRE)
    a(f"""s_nop 0
    v_readlane_b32 s{S_T+2}, v{V_PRE}, 63
    v_sub_u32 v{V_PRE}, v{V_PRE}, v{T0+5}
    v_cmp_lt_u32 vcc, s{S_WAVE}, v{T0+1}
    v_cmp_gt_u32 {sr(S_T,2)}, 9, v{T0+1}
    v_lshlrev_b32 v{T0+2}, 2, v{T0+1}
    v_mov_b32 v{T0+3}, s{S_T+2}
    s_and_b64 vcc, vcc, {sr(S_T,2)}
    s_and_saveexec_b64 {sr(S_T,2)}, vcc
    ds_add_u32 v{T0+2}, v{T0+3} offset:{L_WT}
    s_mov_b64 exec, {sr(S_T,2)}
    s_lshl_b32 s10, s{S_WAVE}, 2
    v_mov_b32 v{T0+2}, s10
    v_mov_b32 v{T0+3}, 32
    s_waitcnt lgkmcnt(0)
    s_barrier
    ds_read_b32 v{T0+2}, v{T0+2} offset:{L_WT}
    ds_read_b32 v{T0+3}, v{T0+3} offset:{L_WT}
    s_waitcnt lgkmcnt(0)
    v_add_u32 v{V_PRE}, v{V_PRE}, v{T0+2}
    v_readfirstlane_b32 s{S_N}, v{T0+3}""")
    st('prefix done')
    a(f"""ROUND:
    v_and_b32 v{T0}, 1, v0
    v_subrev_u32 v{T0+1}, s{S_W0}, v{V_PRE}
    v_add_u32 v{T0+1}, v{T0+1}, v{T0}
    v_add_u32 v{T0+2}, v{V_GID}, v{T0}
    s_mov_b32 s10, {CAP}
EXPAND:
    v_cmp_lt_u32 vcc, v{T0}, v{V_LEN}
    s_and_b64 exec, exec, vcc
    s_cbranch_execz EXPAND_DONE
    v_cmp_gt_u32 vcc, s10, v{T0+1}
    v_lshlrev_b32 v{T0+3}, 2, v{T0+1}
    s_and_saveexec_b64 {sr(S_T,2)}, vcc
    ds_write_b32 v{T0+3}, v{T0+2} offset:{L_LIST}
    s_mov_b64 exec, {sr(S_T,2)}
    v_add_u32 v{T0}, 2, v{T0}
    v_add_u32 v{T0+1}, 2, v{T0+1}
    v_add_u32 v{T0+2}, 2, v{T0+2}
    s_branch EXPAND
EXPAND_DONE:
    s_mov_b64 exec, -1
    s_sub_u32 s{S_NWIN}, s{S_N}, s{S_W0}
    s_min_u32 s{S_NWIN}, s{S_NWIN}, {CAP}
    v_lshlrev_b32 v{T0}, 2, v0""")
    for i in range(3):
        a(f"""v_add_u32 v{T0+1}, {512*i}, v0
              v_cmp_gt_u32 {sr(S_M+2*i,2)}, s{S_NWIN}, v{T0+1}""")
    a("s_waitcnt lgkmcnt(0)\ns_barrier")
    st('list built')
    G = XR
    for i in range(3): a(f"ds_read_b32 v{G+i}, v{T0} offset:{L_LIST + 2048*i}")
    a(f"""s_lshl_b32 s10, s{S_WAVE}, 10
    s_add_u32 s10, s10, {L_UREC}
    s_mov_b32 s11, {WS_REC}
    v_mov_b32 v{T0+5}, 1
    s_waitcnt lgkmcnt(0)""")
    for i in range(3):
        a(f"v_lshlrev_b32 v{G+4+i}, 2, v{G+i}\nv_lshlrev_b32 v{G+i}, 4, v{G+i}")
    for i in range(2):
        a(f"s_mov_b64 exec, {sr(S_M+2*i,2)}\nbuffer_load_dword v{G+4+i}, v{G+4+i}, {sr(S_WS,4)}, 0 offen")
    a(f"""s_mov_b64 exec, {sr(S_M+4,2)}
    s_cbranch_execz SKIP3
    s_add_u32 m0, s10, {2*8192}
    buffer_load_dword v{G+6}, v{G+6}, {sr(S_WS,4)}, 0 offen
    buffer_load_dwordx4 v{G+2}, {sr(S_WS,4)}, s11 offen lds
SKIP3:""")
    for i in range(2):
        a(f"""s_add_u32 m0, s10, {i*8192}
              s_mov_b64 exec, {sr(S_M+2*i,2)}
              buffer_load_dwordx4 v{G+i}, {sr(S_WS,4)}, s11 offen lds""")
    a("s_mov_b64 exec, -1\ns_waitcnt vmcnt(2)")
    st('keys arrived')
    for i in range(3):
        a(f"""v_and_b32 v{G+8+i}, 7, v{G+4+i}
              v_lshrrev_b32 v{T0+1}, 19, v{G+4+i}
              v_lshl_or_b32 v{G+8+i}, v{G+8+i}, 5, v{T0+1}
              v_lshlrev_b32 v{G+8+i}, 2, v{G+8+i}""")
    for i in range(3):
        a(f"s_mov_b64 exec, {sr(S_M+2*i,2)}\nds_add_rtn_u32 v{G+12+i}, v{G+8+i}, v{T0+5} offset:{L_HIST}")
    a("s_mov_b64 exec, -1")
    for i in range(3):
        a(f"""v_and_b32 v{G+16+2*i}, -8, v{G+4+i}
              v_lshlrev_b32 v{G+17+2*i}, 4, v0
              v_add_u32 v{G+17+2*i}, {L_UREC + 8192*i}, v{G+17+2*i}""")
    a(f"""s_lshl_b32 s10, s{S_WAVE}, 3
    s_add_u32 s11, s10, 8
    s_and_b32 s11, s11, 63
    s_waitcnt lgkmcnt(0)
    s_barrier""")
    st('hist done')
    a(f"""ds_read_b128 {vr(G+24,4)}, v{V_L16} offset:{L_HIST}
    s_waitcnt lgkmcnt(0)""")
    scan256(a, G + 24, G + 28, T0)
    a(f"""ds_write_b128 v{V_L16}, {vr(G+28,4)} offset:{L_BASE}
    v_readlane_b32 s{S_START}, v{G+28}, s10
    v_readlane_b32 s{S_END}, v{G+28}, s11""")
    for i in range(3): a(f"ds_read_b32 v{G+8+i}, v{G+8+i} offset:{L_BASE}")
    a(f"""s_cmp_eq_u32 s{S_WAVE}, 7
    s_cselect_b32 s{S_END}, s{S_NWIN}, s{S_END}
    v_lshrrev_b32 v{V_POS}, 4, v{V_L16}
    v_add_u32 v{V_POS}, s{S_START}, v{V_POS}
    v_lshlrev_b32 v{V_AENT}, 3, v{V_POS}
    v_add_u32 v{V_AENT}, {L_SENT}, v{V_AENT}
    s_waitcnt lgkmcnt(0)""")
    for i in range(3):
        a(f"""v_add_lshl_u32 v{G+8+i}, v{G+8+i}, v{G+12+i}, 3
              s_mov_b64 exec, {sr(S_M+2*i,2)}
              ds_write_b64 v{G+8+i}, {vr(G+16+2*i,2)} offset:{L_SENT}
              s_mov_b64 exec, -1""")
    a(f"""s_sub_u32 s10, s{S_END}, s{S_START}
    s_add_u32 s10, s10, 3
    s_and_b32 s10, s10, -4
    s_min_u32 s{S_REMB}, s10, {D}
    s_sub_u32 s{S_REM}, s10, s{S_REMB}
    s_waitcnt lgkmcnt(0)""")
    st('scattered')
    a("s_waitcnt vmcnt(0)")
    st('recs landed')
    a("s_barrier")
    st('sorted')
    meta_read_entry(a)
    a(f"""v_lshlrev_b32 v{T0+2}, 2, v0
    v_mov_b32 v{T0+3}, 0
    v_cmp_gt_u32 vcc, 0x100, v0
    s_and_saveexec_b64 {sr(S_T,2)}, vcc
    ds_write_b32 v{T0+2}, v{T0+3} offset:{L_HIST}
    s_mov_b64 exec, {sr(S_T,2)}
    s_waitcnt lgkmcnt(0)""")
    meta_fix_entry(a)
    for e in range(D):
        a(f"""v_readlane_b32 s{S_K+e}, v{ENT}, {e}
              s_and_b32 s{S_OFF}, s{S_K+e}, s{S_MASK}
              buffer_load_dwordx4 {vr(XR+4*e,4)}, v{V_L16}, {sr(S_X,4)}, s{S_OFF} offen""")
    a(f"""v_mov_b32 v{KEY}, v{ENT}
    s_waitcnt lgkmcnt(0)
    v_mov_b32 v{EF}, v{RECN+2}
    v_mov_b32 v{EF+1}, v{RECN+3}""")
    for i in range(4): a(w_mfma(i))
    a(u_mfma(0, 0)); a(u_mfma(0, 2)); a(u_mfma(1, 0)); a(u_mfma(0, 1)); a(u_mfma(0, 3)); a(u_mfma(1, 1))
    for m in range(4): w_cvt(a, m)
    for odd in range(2):
        u, r = silu_regs(0, odd)
        a(f"""v_exp_f32 v{TT}, v{u}
              v_exp_f32 v{TT+1}, v{u+1}
              s_nop 0
              v_pk_add_f32 {vr(TT,2)}, {vr(TT,2)}, 1.0 op_sel_hi:[1,0]
              v_rcp_f32 v{TT}, v{TT}
              v_rcp_f32 v{TT+1}, v{TT+1}
              s_nop 0
              v_pk_mul_f32 {vr(r,2)}, {vr(TT,2)}, {vr(u,2)}""")
    st('fill done')
    a(f"s_waitcnt vmcnt({D-1})")
    st('first row')
    a(t_mfma(0, 0)); a(t_mfma(0, 1))
    body(a, opt, True)
    body(a, opt, False)
    a(f"""MAIN_DONE:
    s_waitcnt vmcnt(0) lgkmcnt(0)
    s_add_u32 s{S_W0}, s{S_W0}, {CAP}
    s_cmp_lt_u32 s{S_W0}, s{S_N}
    s_cbranch_scc1 ROUND""")
    st('main done')
    a(f"""s_mov_b32 s10, 0xbf317218                    ; -ln 2
    s_mov_b32 s11, 0xbf317218
    s_mul_i32 s{S_T}, s{S_WAVE}, {4 * AGG_RS}
    s_add_u32 s{S_T}, s{S_T}, {L_AGG}
    v_lshrrev_b32 v{T0}, 2, v{V_L16}
    v_add_u32 v{T0}, s{S_T}, v{T0}""")
    for s in range(5):
        for k in range(4):
            a(f"v_pk_mul_f32 {vr(ACC+8*s+2*k,2)}, {vr(ACC+8*s+2*k,2)}, s[10:11]")
        for o in range(4):
            a(f"""v_cvt_pk_bf16_f32 v{XR+4*(s%2)+o}, v{ACC+8*s+o}, v{ACC+8*s+4+o}
                  ds_write_b32 v{T0}, v{XR+4*(s%2)+o} offset:{(32*s+o)*AGG_RS}""")
    a(f"""v_lshrrev_b32 v{T0+1}, 4, v{V_L16}            ; lane
    v_and_b32 v{T0+2}, 15, v{T0+1}
    v_lshrrev_b32 v{T0+3}, 4, v{T0+1}                 ; lane >> 4
    s_lshr_b32 s{S_T}, s{S_WAVE}, 2
    s_mul_i32 s{S_T+1}, s{S_T}, {80 * AGG_RS}
    s_add_u32 s{S_T+1}, s{S_T+1}, {L_AGG}
    v_mul_u32_u24 v{T0}, {AGG_RS}, v{T0+2}
    v_lshl_add_u32 v{T0}, v{T0+3}, 4, v{T0}
    v_add_u32 v{T0}, s{S_T+1}, v{T0}
    s_mul_i32 s{S_T}, s{S_T}, {20 << 18}
    s_lshl_b32 s{S_T+1}, s{S_BETA}, 10
    s_add_u32 s{S_T}, s{S_T}, s{S_T+1}
    s_and_b32 s{S_T+1}, s{S_WAVE}, 3
    s_lshl_b32 s{S_T+1}, s{S_T+1}, 8
    s_add_u32 s{S_T}, s{S_T}, s{S_T+1}
    v_lshlrev_b32 v{T0+3}, 18, v{T0+3}
    v_lshl_add_u32 v{T0+3}, v{T0+2}, 4, v{T0+3}
    v_add_u32 v{T0+3}, s{S_T}, v{T0+3}
    s_waitcnt lgkmcnt(0)
    s_barrier""")
    st('agg in LDS')
    AF = XR
    def rd(t):
        for ks in range(4):
            a(f"ds_read_b128 {vr(AF+16*(t%2)+4*ks,4)}, v{T0} offset:{t*16*AGG_RS + ks*64}")
    def pack_store(t):
        d = ACC + 8 * t; p = TP + 4 * (t % 2)
        for j in range(4): a(f"v_cvt_pk_bf16_f32 v{p+j}, v{d+2*j}, v{d+2*j+1}")
        a(f"buffer_store_dwordx4 {vr(p,4)}, v{T0+3}, {sr(S_OUT,4)}, 0 offen {opt.outst}")
        if t < 4: a(f"v_add_u32 v{T0+3}, {4 << 18}, v{T0+3}")
    rd(0)
    for t in range(5):
        if t < 4: rd(t + 1)
        for ks in range(4):
            a(f"s_waitcnt lgkmcnt({(4 if t < 4 else 0) + 3 - ks})")
            for j in range(2):
                d = ACC + 8 * t + 4 * j
                a(f"v_mfma_f32_16x16x32_bf16 {vr(d,4)}, {vr(AF+16*(t%2)+4*ks,4)}, {vr(WMIX+16*j+4*ks,4)}, " + ("0" if ks == 0 else vr(d, 4)))
            if ks == 3 and t > 0: pack_store(t - 1)
    a("s_nop 7")
    pack_store(4)
    if opt.hold: st('end')
    if opt.stamps:
        st('stores issued')
        a("s_waitcnt vmcnt(0)")
        st('stores done')
        a(f"""s_lshl_b32 s10, s2, 3
        s_add_u32 s10, s10, s{S_WAVE}
        s_lshl_b32 s10, s10, 7
        s_add_u32 s10, s10, {WS_STAMP + 0x10000}
        v_mov_b32 v{T0}, s10
        s_sub_u32 s{S_ST+31}, s{S_END}, s{S_START}""")
        for k in range(32): a(f"v_mov_b32 v{XR+k}, s{S_ST+k}")
        for k in range(8): a(f"buffer_store_dwordx4 {vr(XR+4*k,4)}, v{T0}, {sr(S_WS,4)}, 0 offen offset:{16*k}")
    a("K2_END:\ns_endpgm")
    return a.text(), K2_VGPR, K2_SGPR

HEADER = open(__file__.rsplit("/", 1)[0] + "/header.txt").read() if "/" in __file__ else open("header.txt").read()

def generate(opt):
    k1, v1, s1 = bin_kernel(opt)
    k2, v2, s2 = main_kernel(opt)
    out = HEADER
    def spin(tag, ticks):
        return f"""    s_memrealtime s[90:91]
    s_waitcnt lgkmcnt(0)
    s_add_u32 s92, s90, {ticks}
SPIN_{tag}:
    s_memrealtime s[90:91]
    s_waitcnt lgkmcnt(0)
    s_cmp_lt_u32 s90, s92
    s_cbranch_scc1 SPIN_{tag}
"""
    if "d1" in opt.diag: k1 = k1.replace("bin_kernel:\n", "bin_kernel:\n" + spin("a", 400)); s1 = 100
    if "d2" in opt.diag: k2 = k2.replace("main_kernel:\n", "main_kernel:\n" + spin("b", 400))
    if "e0" in opt.diag: out += "; @launch kernel=nop_kernel grid=(1,1,1) block=(64,1,1) lds=0\n"
    out += f"; @launch kernel=bin_kernel grid=({NP + 5},1,1) block=(320,1,1) lds={K1_LDS}\n"
    out += f"; @launch kernel=main_kernel grid=(256,1,1) block=(512,1,1) lds={K2_LDS}\n"
    if "e1" in opt.diag: out += "; @launch kernel=nop_kernel grid=(1,1,1) block=(64,1,1) lds=0\n"
    out += '.amdgcn_target "amdgcn-amd-amdhsa--gfx950"\n.text\n'
    if "e" in opt.diag: out += ".globl nop_kernel\n.p2align 8\n.type nop_kernel,@function\nnop_kernel:\n    s_endpgm\n"
    for n, k in (("bin_kernel", k1), ("main_kernel", k2)):
        out += f".globl {n}\n.p2align 8\n.type {n},@function\n" + k
    out += kd("bin_kernel", v1, s1) + kd("main_kernel", v2, s2)
    if "e" in opt.diag: out += kd("nop_kernel", 8, 16)
    return out

def options(argv):
    p = argparse.ArgumentParser()
    p.add_argument("-o", default="/code/" + NAME + ".s")
    p.add_argument("--stamps", action="store_true")
    p.add_argument("--D", type=int, default=8)
    p.add_argument("--k1st", default="")
    p.add_argument("--pf", type=int, default=0)
    p.add_argument("--hold", default="")
    p.add_argument("--diag", default="")
    p.add_argument("--pfn", type=int, default=8)
    p.add_argument("--pfflag", default="")
    p.add_argument("--outst", default="")
    return p.parse_args(argv)

if __name__ == "__main__":
    opt = options(sys.argv[1:])
    open(opt.o, "w").write(generate(opt))
    if opt.stamps: open(opt.o + ".names", "w").write(repr(STAMPS))
```

```python
import sys, argparse

NAME = "gather_scatter__tensor_product_equiv_tfn__graph"
N, E, C = 10000, 320000, 128
NP, EP = 250, 1280
WS_KEY = 0
WS_REC = 0x140000
WS_WMIX = 0x630000
WS_CONST = 0x638000
WS_STAMP = 0x700000
WS_TAB = 0x780000
WS_END = WS_TAB + NP * 1024
CAP = 1536

class Asm:
    def __init__(self): self.l = []
    def __call__(self, s):
        for line in s.strip("\n").split("\n"):
            line = line.strip()
            if not line: continue
            self.l.append(line if line.endswith(":") else "    " + line)
    def text(self): return "\n".join(self.l) + "\n"

def vr(a, n=1): return f"v{a}" if n == 1 else f"v[{a}:{a+n-1}]"
def sr(a, n=1): return f"s{a}" if n == 1 else f"s[{a}:{a+n-1}]"

def scan64(a, v):
    for c in ("row_shr:1 row_mask:0xf", "row_shr:2 row_mask:0xf", "row_shr:4 row_mask:0xf", "row_shr:8 row_mask:0xf"):
        a(f"s_nop 1\nv_add_u32_dpp v{v}, v{v}, v{v} {c} bank_mask:0xf bound_ctrl:0")
    a(f"s_nop 1\nv_add_u32_dpp v{v}, v{v}, v{v} row_bcast:15 row_mask:0xa bank_mask:0xf")
    a(f"s_nop 1\nv_add_u32_dpp v{v}, v{v}, v{v} row_bcast:31 row_mask:0xc bank_mask:0xf")

def scan256(a, h, b, t):
    a(f"""v_add_u32 v{t}, v{h}, v{h+1}
          v_add3_u32 v{t}, v{t}, v{h+2}, v{h+3}
          v_mov_b32 v{t+1}, v{t}""")
    scan64(a, t + 1)
    a(f"""v_sub_u32 v{b}, v{t+1}, v{t}
          v_add_u32 v{b+1}, v{b}, v{h}
          v_add_u32 v{b+2}, v{b+1}, v{h+1}
          v_add_u32 v{b+3}, v{b+2}, v{h+2}""")

def kd(name, vgpr, sgpr):
    return f""".section .rodata,"a"
.p2align 6
.amdhsa_kernel {name}
  .amdhsa_next_free_vgpr {vgpr}
  .amdhsa_next_free_sgpr {sgpr}
  .amdhsa_accum_offset {(vgpr + 3) // 4 * 4}
  .amdhsa_group_segment_fixed_size 0
  .amdhsa_kernarg_size 88
  .amdhsa_user_sgpr_count 2
  .amdhsa_user_sgpr_kernarg_segment_ptr 1
  .amdhsa_system_sgpr_workgroup_id_x 1
  .amdhsa_float_denorm_mode_32 3
.end_amdhsa_kernel
"""

STAMPS = {1: [], 2: []}
def stamp(a, opt, name, kernel, sbase, stmp):
    if opt.hold and kernel == 1 and name == "start":
        a(f"""s_cmp_lg_u32 s2, 0
        s_cbranch_scc1 HOLD_NOSTAMP
        s_load_dwordx2 s[30:31], s[0:1], 80
        s_memrealtime s[32:33]
        s_waitcnt lgkmcnt(0)
        v_mov_b32 v1, {WS_STAMP}
        v_mov_b32 v2, s32
        global_store_dword v1, v2, s[30:31]
        HOLD_NOSTAMP:""")
    if opt.probe and kernel == 2 and name == opt.probe:
        a("s_memrealtime s[94:95]\ns_waitcnt lgkmcnt(0)\ns_mov_b32 s93, s94")
    if opt.hold and kernel == 2 and name == opt.hold.split("@")[0]:
        a(f"""s_load_dwordx2 s[90:91], s[0:1], 80
        s_waitcnt lgkmcnt(0)
        s_add_u32 s90, s90, {WS_STAMP}
        s_addc_u32 s91, s91, 0
        s_load_dword s92, s[90:91], 0
        s_waitcnt lgkmcnt(0)
        s_sub_u32 s93, s93, s92
        s_mul_i32 s93, s93, {4 if opt.probe else 0}
        s_add_u32 s92, s92, s93
        s_add_u32 s92, s92, {int(opt.hold.split("@")[1]) * 100}
        HOLD_SPIN:
        s_memrealtime s[94:95]
        s_waitcnt lgkmcnt(0)
        s_sub_u32 s94, s94, s92
        s_cmp_lt_i32 s94, 0
        s_cbranch_scc1 HOLD_SPIN""")
    if not opt.stamps: return
    k = len(STAMPS[kernel]); STAMPS[kernel].append(name)
    a(f"s_memrealtime {sr(stmp, 2)}\ns_waitcnt lgkmcnt(0)\ns_mov_b32 s{sbase + k}, s{stmp}")

K1_HIST, K1_BASE, K1_SKEY, K1_SREC = 0, 1024, 2048, 2048 + EP * 4
K1_LDS = K1_SREC + EP * 16

def bin_kernel(opt):
    a = Asm()
    a(f"""bin_kernel:
    s_cmp_ge_u32 s2, {NP + 5}
    s_cbranch_scc1 K1_END""")
    stamp(a, opt, 'start', 1, 40, 38)
    a(f"""s_load_dwordx4 s[4:7], s[0:1], 8
    s_load_dwordx4 s[8:11], s[0:1], 24
    s_load_dwordx2 s[12:13], s[0:1], 80
    s_load_dwordx4 s[16:19], s[0:1], 40
    s_load_dwordx2 s[20:21], s[0:1], 56
    s_load_dwordx2 s[26:27], s[0:1], 0
    s_cmp_ge_u32 s2, {NP}
    s_cbranch_scc1 K1_AUX
    s_mul_i32 s14, s2, {EP * 4}
    v_lshl_add_u32 v1, v0, 4, s14
    v_lshlrev_b32 v2, 1, v1
    v_lshlrev_b32 v3, 2, v0
    v_mov_b32 v4, 0
    v_mov_b32 v5, 1
    s_waitcnt lgkmcnt(0)
    global_load_dwordx4 v[8:11], v1, s[6:7]     ; dst
    global_load_dwordx4 v[12:15], v1, s[4:5]    ; src
    global_load_dwordx4 v[16:19], v2, s[8:9]    ; Y
    global_load_dwordx4 v[20:23], v2, s[8:9] offset:16
    global_load_dwordx4 v[24:27], v2, s[10:11]  ; edge_feat
    global_load_dwordx4 v[28:31], v2, s[10:11] offset:16""")
    def prefetch_x():
        a(f"s_mul_i32 s15, s2, 40960\nv_lshl_add_u32 v7, v0, 4, s15")
        for k in range(opt.pfn):
            a(f"global_load_dwordx4 v[56:59], v7, s[26:27] {opt.pfflag}")
            if k < opt.pfn - 1: a("v_add_u32 v7, 5120, v7")
    npf = opt.pfn if opt.pf else 0
    if opt.pf == 1: prefetch_x()
    a(f"""ds_write_b32 v3, v4 offset:{K1_HIST}        ; 320 words: histogram + start of base table
    s_waitcnt lgkmcnt(0)
    s_barrier
    s_waitcnt vmcnt({5 + (npf if opt.pf == 1 else 0)})""")
    stamp(a, opt, 'dst arrived', 1, 40, 38)
    if opt.pf == 2: prefetch_x()
    for k in range(4):
        a(f"""v_and_b32 v{32+k}, 0xff, v{8+k}
              v_lshlrev_b32 v{32+k}, 2, v{32+k}
              ds_add_rtn_u32 v{36+k}, v{32+k}, v5 offset:{K1_HIST}""")
    a(f"s_waitcnt vmcnt({4 + (npf if opt.pf in (1, 2) else 0)})")
    for k in range(4):
        a(f"""v_lshrrev_b32 v{8+k}, 8, v{8+k}
              v_lshl_or_b32 v{8+k}, v{12+k}, 10, v{8+k}""")
    a(f"""v_and_b32 v6, 63, v0
    v_lshlrev_b32 v6, 4, v6
    s_waitcnt lgkmcnt(0)
    s_barrier
    ds_read_b128 v[40:43], v6 offset:{K1_HIST}
    s_waitcnt lgkmcnt(0)""")
    scan256(a, 40, 44, 48)
    a(f"ds_write_b128 v6, v[44:47] offset:{K1_BASE}")
    for k in range(4):
        a(f"v_lshl_or_b32 v{52+k}, v{40+k}, 16, v{44+k}")
    for k in range(4):
        a(f"ds_read_b32 v{40+k}, v{32+k} offset:{K1_BASE}")
    for k in range(4):
        a(f"""s_waitcnt lgkmcnt({3-k})
              v_add_u32 v{36+k}, v{36+k}, v{40+k}
              v_lshlrev_b32 v{32+k}, 2, v{36+k}
              v_lshlrev_b32 v{36+k}, 4, v{36+k}""")
    for k in range(4):
        a(f"ds_write_b32 v{32+k}, v{8+k} offset:{K1_SKEY}")
    a(f"s_waitcnt vmcnt({npf if opt.pf in (1, 2) else 0})")
    if opt.pf == 3: prefetch_x()
    for k in range(4):
        a(f"""v_add_u32 v{36+k}, {K1_SREC}, v{36+k}
              ds_write2_b64 v{36+k}, v[{16+2*k}:{17+2*k}], v[{24+2*k}:{25+2*k}] offset0:0 offset1:1""")
    a(f"""v_lshlrev_b32 v3, 4, v0
    s_lshl_b32 s15, s14, 2
    s_add_u32 s15, s15, {WS_REC}
    v_add_u32 v2, s15, v3
    s_waitcnt lgkmcnt(0)
    s_barrier""")
    stamp(a, opt, 'sorted in LDS', 1, 40, 38)
    a(f"ds_read_b128 v[8:11], v3 offset:{K1_SKEY}")
    for k in range(4):
        a(f"ds_read_b128 v[{12+4*k}:{15+4*k}], v3 offset:{K1_SREC + k * 320 * 16}")
    a(f"""s_lshl_b32 s15, s2, 10
    s_add_u32 s15, s15, {WS_TAB}
    v_add_u32 v7, s15, v6
    v_cmp_gt_u32 vcc, 64, v0
    s_and_saveexec_b64 s[22:23], vcc
    s_cbranch_execz K1_NOTAB
    global_store_dwordx4 v7, v[52:55], s[12:13] {opt.k1st}
K1_NOTAB:
    s_mov_b64 exec, s[22:23]""")
    a(f"""s_waitcnt lgkmcnt(4)
    global_store_dwordx4 v1, v[8:11], s[12:13] {opt.k1st}""")
    for k in range(4):
        a(f"""s_waitcnt lgkmcnt({3-k})
              global_store_dwordx4 v2, v[{12+4*k}:{15+4*k}], s[12:13] {opt.k1st}""")
        if k < 3: a(f"v_add_u32 v2, {320*16}, v2")
    if opt.stamps:
        stamp(a, opt, 'stores issued', 1, 40, 38)
        a("s_waitcnt vmcnt(0)")
        stamp(a, opt, 'stores done', 1, 40, 38)
        a(f"""v_lshrrev_b32 v1, 6, v0
        s_mul_i32 s14, s2, 8 * 32
        v_lshl_add_u32 v1, v1, 5, s14
        v_add_u32 v1, {WS_STAMP}, v1""")
        for k in range(8): a(f"v_mov_b32 v{8+k}, s{40+k}")
        a("global_store_dwordx4 v1, v[8:11], s[12:13]\nglobal_store_dwordx4 v1, v[12:15], s[12:13] offset:16")
    a(f"""s_endpgm
K1_AUX:
    v_lshrrev_b32 v1, 6, v0
    v_and_b32 v2, 63, v0
    s_nop 0
    v_readfirstlane_b32 s14, v1                 ; wave
    s_cmp_eq_u32 s2, {NP + 4}
    s_cbranch_scc1 K1_CONST
    s_cmp_ge_u32 s14, 4
    s_cbranch_scc1 K1_END
    s_sub_u32 s15, s2, {NP}
    s_lshl_b32 s22, s14, 13
    s_lshl_b32 s23, s15, 6
    s_add_u32 s22, s22, s23
    v_lshrrev_b32 v3, 4, v2
    v_lshlrev_b32 v3, 11, v3
    v_and_b32 v4, 15, v2
    v_lshl_add_u32 v3, v4, 2, v3
    v_add_u32 v3, s22, v3
    s_lshl_b32 s22, s15, 13
    s_lshl_b32 s23, s14, 10
    s_add_u32 s22, s22, s23
    s_add_u32 s22, s22, {WS_WMIX}
    v_lshl_add_u32 v4, v2, 4, s22
    s_mov_b32 s24, 0x05040100
    s_mov_b32 s25, 0x07060302
    s_waitcnt lgkmcnt(0)""")
    for t in range(8): a(f"global_load_dword v{8+t}, v3, s[20:21] offset:{t*256}")
    a("s_waitcnt vmcnt(0)")
    for u in range(4):
        a(f"v_perm_b32 v{16+u}, v{9+2*u}, v{8+2*u}, s24\nv_perm_b32 v{20+u}, v{9+2*u}, v{8+2*u}, s25")
    a(f"""global_store_dwordx4 v4, v[16:19], s[12:13]
    v_add_u32 v4, 4096, v4
    global_store_dwordx4 v4, v[20:23], s[12:13]
    s_endpgm
K1_CONST:
    s_cmp_ge_u32 s14, 1
    s_cbranch_scc1 K1_END
    v_lshlrev_b32 v3, 2, v2
    v_and_b32 v4, 3, v2
    v_lshlrev_b32 v4, 1, v4
    s_mov_b32 s22, {WS_CONST}
    v_lshl_add_u32 v5, v2, 4, s22
    s_mov_b32 s24, 0xbfb8aa3b                   ; -log2(e)
    s_mov_b32 s25, 0xffff0000
    s_waitcnt lgkmcnt(0)""")
    for k in range(4): a(f"global_load_dword v{8+k}, v3, s[16:17] offset:{k*256}")
    for i in range(4):
        for f in range(4): a(f"global_load_ushort v{32+4*i+f}, v4, s[18:19] offset:{i*32+f*8}")
    a("s_waitcnt vmcnt(16)")
    for k in range(4):
        a(f"""v_lshlrev_b32 v{12+k}, 16, v{8+k}
              v_and_b32 v{16+k}, s25, v{8+k}
              v_mul_f32 v{12+k}, s24, v{12+k}
              v_mul_f32 v{16+k}, s24, v{16+k}""")
    for p in range(2):
        s, d = 12 + 4 * p, 20 + 4 * p
        a(f"""v_cvt_pk_bf16_f32 v{d}, v{s}, v{s+1}
              v_cvt_pk_bf16_f32 v{d+1}, v{s+2}, v{s+3}""")
        for h in range(2):
            a(f"""v_lshlrev_b32 v28, 16, v{d+h}
                  v_and_b32 v29, s25, v{d+h}
                  v_sub_f32 v28, v{s+2*h}, v28
                  v_sub_f32 v29, v{s+2*h+1}, v29
                  v_cvt_pk_bf16_f32 v{d+2+h}, v28, v29""")
    a("""global_store_dwordx4 v5, v[20:23], s[12:13]
    global_store_dwordx4 v5, v[24:27], s[12:13] offset:1024
    s_waitcnt vmcnt(2)""")
    for i in range(4):
        a(f"""v_lshl_or_b32 v{48+2*i}, v{33+4*i}, 16, v{32+4*i}
              v_lshl_or_b32 v{49+2*i}, v{35+4*i}, 16, v{34+4*i}""")
    a("""global_store_dwordx4 v5, v[48:51], s[12:13] offset:2048
    global_store_dwordx4 v5, v[52:55], s[12:13] offset:3072
K1_END:
    s_endpgm""")
    return a.text(), 64, 48

L_HIST, L_WT, L_BASE = 0, 1024, 2048
L_LIST = 3072
L_SENT = L_LIST + CAP * 4
L_UREC = L_SENT + (CAP + 192) * 8
L_AGG = L_UREC + CAP * 16
AGG_RS = 288
K2_LDS = L_AGG + 160 * AGG_RS

V_L16 = 1
V_LEN, V_PRE, V_GID = 2, 3, 4
V_AENT, V_POS = 5, 6
T0 = 8
ACC = 16; XR = 64; TP = 96; UU = 112; RR = 128; TT = 136; WPK = 140; WTMP = 148
KEY = 164; ENT = 166; RECN = 168; EF = 172; CONST = 176; WMIX = 192
K2_VGPR = 224
UE_HI, UE_LO, UO_HI, UO_LO, CGB = CONST, CONST + 2, CONST + 4, CONST + 6, CONST + 8
S_X, S_WS, S_OUT = 12, 16, 20
S_BETA, S_WAVE, S_N, S_W0, S_NWIN, S_START, S_END, S_REM, S_REMB, S_OFF, S_MASK = 24, 25, 26, 27, 28, 29, 30, 31, 32, 33, 34
S_M = 36
S_T = 42
S_K = 48
S_ST = 64
K2_SGPR = 100

def mfma4(d, a_, b, c, blk=None):
    cc = "0" if c is None else vr(c, 4)
    return f"v_mfma_f32_4x4x4_16b_bf16 {vr(d,4)}, {vr(a_,2)}, {vr(b,2)}, {cc}" + ("" if blk is None else f" cbsz:4 abid:{blk}")

def u_mfma(g, r):
    d = UU + 8 * (g % 2) + 4 * (r // 2)
    b = (UE_HI, UE_LO, UO_HI, UO_LO)[r]
    return mfma4(d, EF, b, d if r % 2 else None, g % 16)

def t_mfma(e, odd):
    return mfma4(TP + 8 * (e % 2) + 4 * odd, WPK + 2 * (e % 4), XR + 4 * (e % 8) + 2 * odd, None, (e % 64) // 4)

def silu_regs(eb, odd):
    u = UU + 8 * ((eb // 4) % 2) + 4 * odd + eb % 4
    r = RR + 4 * ((eb // 2) % 2) + 2 * odd
    return u, r

def fma4(a, q):
    h = q % 2
    a(f"s_set_gpr_idx_on s{S_K + q % 16}, 0xc")
    for odd in range(2):
        r = RR + 4 * ((q // 2) % 2) + 2 * odd
        for o in (0, 2):
            acc = ACC + 4 * odd + o; tp = TP + 8 * (q % 2) + 4 * odd + o
            a(f"v_pk_fma_f32 {vr(acc,2)}, {vr(r,2)}, {vr(tp,2)}, {vr(acc,2)} op_sel:[{h},0,0] op_sel_hi:[{h},1,1]")
    a("s_set_gpr_idx_off")

def meta_read_entry(a):
    a(f"ds_read_b64 {vr(ENT,2)}, v{V_AENT}")
def meta_fix_entry(a):
    a(f"""v_cmp_gt_u32 vcc, s{S_END}, v{V_POS}
          v_add_u32 v{V_POS}, 64, v{V_POS}
          v_add_u32 v{V_AENT}, 512, v{V_AENT}
          v_mov_b32 v{T0}, {L_UREC}
          v_cndmask_b32 v{ENT}, 40, v{ENT}, vcc
          v_cndmask_b32 v{ENT+1}, v{T0}, v{ENT+1}, vcc
          ds_read_b128 {vr(RECN,4)}, v{ENT+1}""")
def w_mfma(i): return mfma4(WTMP + 4 * i, RECN, CGB + 2 * i, None)
def w_cvt(a, m):
    a(f"""v_cvt_pk_bf16_f32 v{WPK+2*m}, v{WTMP+m}, v{WTMP+4+m}
          v_cvt_pk_bf16_f32 v{WPK+2*m+1}, v{WTMP+8+m}, v{WTMP+12+m}""")

def body(a, opt, loads):
    D = opt.D; tag = "A" if loads else "B"
    for q in range(64):
        if q % 4 == 0:
            a(f"{tag}_{q}:")
            if loads: a(f"s_sub_u32 s{S_REM}, s{S_REM}, 4\ns_cbranch_scc1 B_{q}")
            else:     a(f"s_sub_u32 s{S_REMB}, s{S_REMB}, 4\ns_cbranch_scc1 MAIN_DONE")
        eb = q + 2 - q % 2; odd = q % 2
        u, r = silu_regs(eb, odd)
        g, ur = (q + 6) // 4, (q + 6) % 4
        a(f"s_waitcnt vmcnt({D - 2 if loads else max(0, D - 6 - q % 4)})")
        a(t_mfma(q + 1, 0))
        if loads:
            a(f"v_readlane_b32 s{S_K + (q + D) % 16}, v{KEY if q + D < 64 else ENT}, {(q + D) % 64}")
        a(u_mfma(g, ur))
        a(f"v_exp_f32 v{TT}, v{u}\nv_exp_f32 v{TT+1}, v{u+1}")
        if loads: a(f"s_and_b32 s{S_OFF}, s{S_K + (q + D) % 16}, s{S_MASK}")
        else:     a("s_nop 0")
        a(f"v_pk_add_f32 {vr(TT,2)}, {vr(TT,2)}, 1.0 op_sel_hi:[1,0]")
        a(t_mfma(q + 1, 1))
        if 40 <= q < 44: a(w_mfma(q - 40))
        a(f"v_rcp_f32 v{TT}, v{TT}\nv_rcp_f32 v{TT+1}, v{TT+1}")
        if loads: a(f"buffer_load_dwordx4 {vr(XR + 4 * ((q + D) % 8), 4)}, v{V_L16}, {sr(S_X,4)}, s{S_OFF} offen")
        else:     a("s_nop 0")
        a(f"v_pk_mul_f32 {vr(r,2)}, {vr(TT,2)}, {vr(u,2)}")
        fma4(a, q)
        if q == 63: a(f"v_mov_b32 v{KEY}, v{ENT}")
        if q == 8: meta_read_entry(a)
        if q == 12: a("s_waitcnt lgkmcnt(0)"); meta_fix_entry(a)
        if q == 20: a("s_waitcnt lgkmcnt(0)")
        if q == 57: a(f"v_mov_b32 v{EF}, v{RECN+2}\nv_mov_b32 v{EF+1}, v{RECN+3}")
        if q >= 60: w_cvt(a, q - 60)
    a(f"s_branch {tag}_0")

def main_kernel(opt):
    a = Asm(); D = opt.D
    st = lambda k: stamp(a, opt, k, 2, S_ST, 96)
    a(f"""main_kernel:
    s_cmp_ge_u32 s2, 256
    s_cbranch_scc1 K2_END""")
    st('start')
    a(f"""s_load_dwordx2 s[4:5], s[0:1], 0
    s_load_dwordx2 s[6:7], s[0:1], 64
    s_load_dwordx2 s[8:9], s[0:1], 80
    s_and_b32 s10, s2, 7
    s_lshl_b32 s10, s10, 5
    s_lshr_b32 s11, s2, 3
    s_or_b32 s{S_BETA}, s10, s11
    v_lshrrev_b32 v{T0}, 6, v0
    v_and_b32 v{T0+1}, 63, v0
    v_lshlrev_b32 v{V_L16}, 4, v{T0+1}
    v_readfirstlane_b32 s{S_WAVE}, v{T0}
    v_lshrrev_b32 v{V_GID}, 1, v0
    s_lshl_b32 s10, s{S_BETA}, 2
    s_add_u32 s10, s10, {WS_TAB}
    v_lshl_add_u32 v{T0+2}, v{V_GID}, 10, s10
    s_mov_b32 s{S_X+2}, {N * 1024}
    s_mov_b32 s{S_X+3}, 0x20000
    s_mov_b32 s{S_WS+2}, {WS_END}
    s_mov_b32 s{S_WS+3}, 0x20000
    s_mov_b32 s{S_OUT+2}, {N * 1024}
    s_mov_b32 s{S_OUT+3}, 0x20000
    s_mov_b32 s{S_MASK}, 0xfffffc00
    s_and_b32 s10, s{S_WAVE}, 3
    s_lshl_b32 s10, s10, 13
    s_add_u32 s10, s10, {WS_WMIX}
    s_mov_b32 s11, {WS_CONST}
    s_waitcnt lgkmcnt(0)
    s_mov_b32 s{S_X}, s4
    s_mov_b32 s{S_X+1}, s5
    s_mov_b32 s{S_WS}, s8
    s_mov_b32 s{S_WS+1}, s9
    s_mov_b32 s{S_OUT}, s6
    s_mov_b32 s{S_OUT+1}, s7""")
    st('kernargs')
    a(f"buffer_load_dword v{V_LEN}, v{T0+2}, {sr(S_WS,4)}, 0 offen")
    for k in range(4):
        a(f"buffer_load_dwordx4 {vr(CONST+4*k,4)}, v{V_L16}, {sr(S_WS,4)}, s11 offen offset:{k*1024}")
    for k in range(8):
        if k == 4: a("s_add_u32 s10, s10, 4096")
        a(f"buffer_load_dwordx4 {vr(WMIX+4*k,4)}, v{V_L16}, {sr(S_WS,4)}, s10 offen offset:{(k%4)*1024}")
    a(f"""v_lshlrev_b32 v{T0+2}, 2, v0
    v_mov_b32 v{T0+3}, 0
    ds_write_b32 v{T0+2}, v{T0+3}""")
    for k in range(48): a(f"v_mov_b32 v{ACC+k}, 0")
    a(f"""v_mul_u32_u24 v{V_GID}, {EP}, v{V_GID}
    v_and_b32 v{T0+4}, 1, v0
    v_cmp_eq_u32 {sr(S_T,2)}, 1, v{T0+4}
    s_mov_b32 s{S_W0}, 0
    s_waitcnt lgkmcnt(0)""")
    st('pre B0')
    a("s_barrier\ns_waitcnt vmcnt(12)")
    st('tab arrived')
    a(f"""v_and_b32 v{T0+5}, 0xffff, v{V_LEN}
    v_lshrrev_b32 v{V_LEN}, 16, v{V_LEN}
    v_add_u32 v{V_GID}, v{V_GID}, v{T0+5}
    v_cndmask_b32 v{T0+5}, 0, v{V_LEN}, {sr(S_T,2)}
    v_mov_b32 v{V_PRE}, v{T0+5}""")
    scan64(a, V_PRE)
    a(f"""s_nop 0
    v_readlane_b32 s{S_T+2}, v{V_PRE}, 63
    v_sub_u32 v{V_PRE}, v{V_PRE}, v{T0+5}
    v_cmp_lt_u32 vcc, s{S_WAVE}, v{T0+1}
    v_cmp_gt_u32 {sr(S_T,2)}, 9, v{T0+1}
    v_lshlrev_b32 v{T0+2}, 2, v{T0+1}
    v_mov_b32 v{T0+3}, s{S_T+2}
    s_and_b64 vcc, vcc, {sr(S_T,2)}
    s_and_saveexec_b64 {sr(S_T,2)}, vcc
    ds_add_u32 v{T0+2}, v{T0+3} offset:{L_WT}
    s_mov_b64 exec, {sr(S_T,2)}
    s_lshl_b32 s10, s{S_WAVE}, 2
    v_mov_b32 v{T0+2}, s10
    v_mov_b32 v{T0+3}, 32
    s_waitcnt lgkmcnt(0)
    s_barrier
    ds_read_b32 v{T0+2}, v{T0+2} offset:{L_WT}
    ds_read_b32 v{T0+3}, v{T0+3} offset:{L_WT}
    s_waitcnt lgkmcnt(0)
    v_add_u32 v{V_PRE}, v{V_PRE}, v{T0+2}
    v_readfirstlane_b32 s{S_N}, v{T0+3}""")
    st('prefix done')
    a(f"""ROUND:
    v_and_b32 v{T0}, 1, v0
    v_subrev_u32 v{T0+1}, s{S_W0}, v{V_PRE}
    v_add_u32 v{T0+1}, v{T0+1}, v{T0}
    v_add_u32 v{T0+2}, v{V_GID}, v{T0}
    s_mov_b32 s10, {CAP}
EXPAND:
    v_cmp_lt_u32 vcc, v{T0}, v{V_LEN}
    s_and_b64 exec, exec, vcc
    s_cbranch_execz EXPAND_DONE
    v_cmp_gt_u32 vcc, s10, v{T0+1}
    v_lshlrev_b32 v{T0+3}, 2, v{T0+1}
    s_and_saveexec_b64 {sr(S_T,2)}, vcc
    ds_write_b32 v{T0+3}, v{T0+2} offset:{L_LIST}
    s_mov_b64 exec, {sr(S_T,2)}
    v_add_u32 v{T0}, 2, v{T0}
    v_add_u32 v{T0+1}, 2, v{T0+1}
    v_add_u32 v{T0+2}, 2, v{T0+2}
    s_branch EXPAND
EXPAND_DONE:
    s_mov_b64 exec, -1
    s_sub_u32 s{S_NWIN}, s{S_N}, s{S_W0}
    s_min_u32 s{S_NWIN}, s{S_NWIN}, {CAP}
    v_lshlrev_b32 v{T0}, 2, v0""")
    for i in range(3):
        a(f"""v_add_u32 v{T0+1}, {512*i}, v0
              v_cmp_gt_u32 {sr(S_M+2*i,2)}, s{S_NWIN}, v{T0+1}""")
    a("s_waitcnt lgkmcnt(0)\ns_barrier")
    st('list built')
    G = XR
    for i in range(3): a(f"ds_read_b32 v{G+i}, v{T0} offset:{L_LIST + 2048*i}")
    a(f"""s_lshl_b32 s10, s{S_WAVE}, 10
    s_add_u32 s10, s10, {L_UREC}
    s_mov_b32 s11, {WS_REC}
    v_mov_b32 v{T0+5}, 1
    s_waitcnt lgkmcnt(0)""")
    for i in range(3):
        a(f"v_lshlrev_b32 v{G+4+i}, 2, v{G+i}\nv_lshlrev_b32 v{G+i}, 4, v{G+i}")
    for i in range(2):
        a(f"s_mov_b64 exec, {sr(S_M+2*i,2)}\nbuffer_load_dword v{G+4+i}, v{G+4+i}, {sr(S_WS,4)}, 0 offen")
    a(f"""s_mov_b64 exec, {sr(S_M+4,2)}
    s_cbranch_execz SKIP3
    s_add_u32 m0, s10, {2*8192}
    buffer_load_dword v{G+6}, v{G+6}, {sr(S_WS,4)}, 0 offen
    buffer_load_dwordx4 v{G+2}, {sr(S_WS,4)}, s11 offen lds
SKIP3:""")
    for i in range(2):
        a(f"""s_add_u32 m0, s10, {i*8192}
              s_mov_b64 exec, {sr(S_M+2*i,2)}
              buffer_load_dwordx4 v{G+i}, {sr(S_WS,4)}, s11 offen lds""")
    a("s_mov_b64 exec, -1\ns_waitcnt vmcnt(2)")
    st('keys arrived')
    for i in range(3):
        a(f"""v_and_b32 v{G+8+i}, 7, v{G+4+i}
              v_lshrrev_b32 v{T0+1}, 19, v{G+4+i}
              v_lshl_or_b32 v{G+8+i}, v{G+8+i}, 5, v{T0+1}
              v_lshlrev_b32 v{G+8+i}, 2, v{G+8+i}""")
    for i in range(3):
        a(f"s_mov_b64 exec, {sr(S_M+2*i,2)}\nds_add_rtn_u32 v{G+12+i}, v{G+8+i}, v{T0+5} offset:{L_HIST}")
    a("s_mov_b64 exec, -1")
    for i in range(3):
        a(f"""v_and_b32 v{G+16+2*i}, -8, v{G+4+i}
              v_lshlrev_b32 v{G+17+2*i}, 4, v0
              v_add_u32 v{G+17+2*i}, {L_UREC + 8192*i}, v{G+17+2*i}""")
    a(f"""s_lshl_b32 s10, s{S_WAVE}, 3
    s_add_u32 s11, s10, 8
    s_and_b32 s11, s11, 63
    s_waitcnt lgkmcnt(0)
    s_barrier""")
    st('hist done')
    a(f"""ds_read_b128 {vr(G+24,4)}, v{V_L16} offset:{L_HIST}
    s_waitcnt lgkmcnt(0)""")
    scan256(a, G + 24, G + 28, T0)
    a(f"""ds_write_b128 v{V_L16}, {vr(G+28,4)} offset:{L_BASE}
    v_readlane_b32 s{S_START}, v{G+28}, s10
    v_readlane_b32 s{S_END}, v{G+28}, s11""")
    for i in range(3): a(f"ds_read_b32 v{G+8+i}, v{G+8+i} offset:{L_BASE}")
    a(f"""s_cmp_eq_u32 s{S_WAVE}, 7
    s_cselect_b32 s{S_END}, s{S_NWIN}, s{S_END}
    v_lshrrev_b32 v{V_POS}, 4, v{V_L16}
    v_add_u32 v{V_POS}, s{S_START}, v{V_POS}
    v_lshlrev_b32 v{V_AENT}, 3, v{V_POS}
    v_add_u32 v{V_AENT}, {L_SENT}, v{V_AENT}
    s_waitcnt lgkmcnt(0)""")
    for i in range(3):
        a(f"""v_add_lshl_u32 v{G+8+i}, v{G+8+i}, v{G+12+i}, 3
              s_mov_b64 exec, {sr(S_M+2*i,2)}
              ds_write_b64 v{G+8+i}, {vr(G+16+2*i,2)} offset:{L_SENT}
              s_mov_b64 exec, -1""")
    a(f"""s_sub_u32 s10, s{S_END}, s{S_START}
    s_add_u32 s10, s10, 3
    s_and_b32 s10, s10, -4
    s_min_u32 s{S_REMB}, s10, {D}
    s_sub_u32 s{S_REM}, s10, s{S_REMB}
    s_waitcnt lgkmcnt(0)""")
    st('scattered')
    a("s_waitcnt vmcnt(0)")
    st('recs landed')
    a("s_barrier")
    st('sorted')
    meta_read_entry(a)
    a(f"""v_lshlrev_b32 v{T0+2}, 2, v0
    v_mov_b32 v{T0+3}, 0
    v_cmp_gt_u32 vcc, 0x100, v0
    s_and_saveexec_b64 {sr(S_T,2)}, vcc
    ds_write_b32 v{T0+2}, v{T0+3} offset:{L_HIST}
    s_mov_b64 exec, {sr(S_T,2)}
    s_waitcnt lgkmcnt(0)""")
    meta_fix_entry(a)
    for e in range(D):
        a(f"""v_readlane_b32 s{S_K+e}, v{ENT}, {e}
              s_and_b32 s{S_OFF}, s{S_K+e}, s{S_MASK}
              buffer_load_dwordx4 {vr(XR+4*e,4)}, v{V_L16}, {sr(S_X,4)}, s{S_OFF} offen""")
    a(f"""v_mov_b32 v{KEY}, v{ENT}
    s_waitcnt lgkmcnt(0)
    v_mov_b32 v{EF}, v{RECN+2}
    v_mov_b32 v{EF+1}, v{RECN+3}""")
    for i in range(4): a(w_mfma(i))
    a(u_mfma(0, 0)); a(u_mfma(0, 2)); a(u_mfma(1, 0)); a(u_mfma(0, 1)); a(u_mfma(0, 3)); a(u_mfma(1, 1))
    for m in range(4): w_cvt(a, m)
    for odd in range(2):
        u, r = silu_regs(0, odd)
        a(f"""v_exp_f32 v{TT}, v{u}
              v_exp_f32 v{TT+1}, v{u+1}
              s_nop 0
              v_pk_add_f32 {vr(TT,2)}, {vr(TT,2)}, 1.0 op_sel_hi:[1,0]
              v_rcp_f32 v{TT}, v{TT}
              v_rcp_f32 v{TT+1}, v{TT+1}
              s_nop 0
              v_pk_mul_f32 {vr(r,2)}, {vr(TT,2)}, {vr(u,2)}""")
    st('fill done')
    a(f"s_waitcnt vmcnt({D-1})")
    st('first row')
    a(t_mfma(0, 0)); a(t_mfma(0, 1))
    body(a, opt, True)
    body(a, opt, False)
    a(f"""MAIN_DONE:
    s_waitcnt vmcnt(0) lgkmcnt(0)
    s_add_u32 s{S_W0}, s{S_W0}, {CAP}
    s_cmp_lt_u32 s{S_W0}, s{S_N}
    s_cbranch_scc1 ROUND""")
    st('main done')
    a(f"""s_mov_b32 s10, 0xbf317218                    ; -ln 2
    s_mov_b32 s11, 0xbf317218
    s_mul_i32 s{S_T}, s{S_WAVE}, {4 * AGG_RS}
    s_add_u32 s{S_T}, s{S_T}, {L_AGG}
    v_lshrrev_b32 v{T0}, 2, v{V_L16}
    v_add_u32 v{T0}, s{S_T}, v{T0}""")
    for s in range(5):
        for k in range(4):
            a(f"v_pk_mul_f32 {vr(ACC+8*s+2*k,2)}, {vr(ACC+8*s+2*k,2)}, s[10:11]")
        for o in range(4):
            a(f"""v_cvt_pk_bf16_f32 v{XR+4*(s%2)+o}, v{ACC+8*s+o}, v{ACC+8*s+4+o}
                  ds_write_b32 v{T0}, v{XR+4*(s%2)+o} offset:{(32*s+o)*AGG_RS}""")
    a(f"""v_lshrrev_b32 v{T0+1}, 4, v{V_L16}            ; lane
    v_and_b32 v{T0+2}, 15, v{T0+1}
    v_lshrrev_b32 v{T0+3}, 4, v{T0+1}                 ; lane >> 4
    s_lshr_b32 s{S_T}, s{S_WAVE}, 2
    s_mul_i32 s{S_T+1}, s{S_T}, {80 * AGG_RS}
    s_add_u32 s{S_T+1}, s{S_T+1}, {L_AGG}
    v_mul_u32_u24 v{T0}, {AGG_RS}, v{T0+2}
    v_lshl_add_u32 v{T0}, v{T0+3}, 4, v{T0}
    v_add_u32 v{T0}, s{S_T+1}, v{T0}
    s_mul_i32 s{S_T}, s{S_T}, {20 << 18}
    s_lshl_b32 s{S_T+1}, s{S_BETA}, 10
    s_add_u32 s{S_T}, s{S_T}, s{S_T+1}
    s_and_b32 s{S_T+1}, s{S_WAVE}, 3
    s_lshl_b32 s{S_T+1}, s{S_T+1}, 8
    s_add_u32 s{S_T}, s{S_T}, s{S_T+1}
    v_lshlrev_b32 v{T0+3}, 18, v{T0+3}
    v_lshl_add_u32 v{T0+3}, v{T0+2}, 4, v{T0+3}
    v_add_u32 v{T0+3}, s{S_T}, v{T0+3}
    s_waitcnt lgkmcnt(0)
    s_barrier""")
    st('agg in LDS')
    AF = XR
    def rd(t):
        for ks in range(4):
            a(f"ds_read_b128 {vr(AF+16*(t%2)+4*ks,4)}, v{T0} offset:{t*16*AGG_RS + ks*64}")
    def pack_store(t):
        d = ACC + 8 * t; p = TP + 4 * (t % 2)
        for j in range(4): a(f"v_cvt_pk_bf16_f32 v{p+j}, v{d+2*j}, v{d+2*j+1}")
        a(f"buffer_store_dwordx4 {vr(p,4)}, v{T0+3}, {sr(S_OUT,4)}, 0 offen {opt.outst}")
        if t < 4: a(f"v_add_u32 v{T0+3}, {4 << 18}, v{T0+3}")
    rd(0)
    for t in range(5):
        if t < 4: rd(t + 1)
        for ks in range(4):
            a(f"s_waitcnt lgkmcnt({(4 if t < 4 else 0) + 3 - ks})")
            for j in range(2):
                d = ACC + 8 * t + 4 * j
                a(f"v_mfma_f32_16x16x32_bf16 {vr(d,4)}, {vr(AF+16*(t%2)+4*ks,4)}, {vr(WMIX+16*j+4*ks,4)}, " + ("0" if ks == 0 else vr(d, 4)))
            if ks == 3 and t > 0: pack_store(t - 1)
    a("s_nop 7")
    pack_store(4)
    if opt.hold: st('end')
    if opt.stamps:
        st('stores issued')
        a("s_waitcnt vmcnt(0)")
        st('stores done')
        a(f"""s_lshl_b32 s10, s2, 3
        s_add_u32 s10, s10, s{S_WAVE}
        s_lshl_b32 s10, s10, 7
        s_add_u32 s10, s10, {WS_STAMP + 0x10000}
        v_mov_b32 v{T0}, s10
        s_sub_u32 s{S_ST+31}, s{S_END}, s{S_START}""")
        for k in range(32): a(f"v_mov_b32 v{XR+k}, s{S_ST+k}")
        for k in range(8): a(f"buffer_store_dwordx4 {vr(XR+4*k,4)}, v{T0}, {sr(S_WS,4)}, 0 offen offset:{16*k}")
    a("K2_END:\ns_endpgm")
    return a.text(), K2_VGPR, K2_SGPR

HEADER = open(__file__.rsplit("/", 1)[0] + "/header.txt").read() if "/" in __file__ else open("header.txt").read()

def generate(opt):
    k1, v1, s1 = bin_kernel(opt)
    k2, v2, s2 = main_kernel(opt)
    out = HEADER
    def spin(tag, ticks):
        return f"""    s_memrealtime s[90:91]
    s_waitcnt lgkmcnt(0)
    s_add_u32 s92, s90, {ticks}
SPIN_{tag}:
    s_memrealtime s[90:91]
    s_waitcnt lgkmcnt(0)
    s_cmp_lt_u32 s90, s92
    s_cbranch_scc1 SPIN_{tag}
"""
    if "d1" in opt.diag: k1 = k1.replace("bin_kernel:\n", "bin_kernel:\n" + spin("a", 400)); s1 = 100
    if "d2" in opt.diag: k2 = k2.replace("main_kernel:\n", "main_kernel:\n" + spin("b", 400))
    if "e0" in opt.diag: out += "; @launch kernel=nop_kernel grid=(1,1,1) block=(64,1,1) lds=0\n"
    out += f"; @launch kernel=bin_kernel grid=({NP + 5},1,1) block=(320,1,1) lds={K1_LDS}\n"
    out += f"; @launch kernel=main_kernel grid=(256,1,1) block=(512,1,1) lds={K2_LDS}\n"
    if "e1" in opt.diag: out += "; @launch kernel=nop_kernel grid=(1,1,1) block=(64,1,1) lds=0\n"
    out += '.amdgcn_target "amdgcn-amd-amdhsa--gfx950"\n.text\n'
    if "e" in opt.diag: out += ".globl nop_kernel\n.p2align 8\n.type nop_kernel,@function\nnop_kernel:\n    s_endpgm\n"
    for n, k in (("bin_kernel", k1), ("main_kernel", k2)):
        out += f".globl {n}\n.p2align 8\n.type {n},@function\n" + k
    out += kd("bin_kernel", v1, s1) + kd("main_kernel", v2, s2)
    if "e" in opt.diag: out += kd("nop_kernel", 8, 16)
    return out

def options(argv):
    p = argparse.ArgumentParser()
    p.add_argument("-o", default="/code/" + NAME + ".s")
    p.add_argument("--stamps", action="store_true")
    p.add_argument("--D", type=int, default=8)
    p.add_argument("--k1st", default="")
    p.add_argument("--pf", type=int, default=0)
    p.add_argument("--probe", default="")
    p.add_argument("--hold", default="")
    p.add_argument("--diag", default="")
    p.add_argument("--pfn", type=int, default=8)
    p.add_argument("--pfflag", default="")
    p.add_argument("--outst", default="")
    return p.parse_args(argv)

if __name__ == "__main__":
    opt = options(sys.argv[1:])
    open(opt.o, "w").write(generate(opt))
    if opt.stamps: open(opt.o + ".names", "w").write(repr(STAMPS))
```

```python
import sys, argparse

NAME = "gather_scatter__tensor_product_equiv_tfn__graph"
N, E, C = 10000, 320000, 128
NP, EP = 250, 1280
WS_KEY = 0
WS_REC = 0x140000
WS_CONST = 0x630000
WS_WMIX = 0x631000
WS_STAMP = 0x700000
WS_TAB = 0x780000
WS_END = WS_TAB + NP * 1024
CAP = 1536

class Asm:
    def __init__(self): self.l = []
    def __call__(self, s):
        for line in s.strip("\n").split("\n"):
            line = line.strip()
            if not line: continue
            self.l.append(line if line.endswith(":") else "    " + line)
    def text(self): return "\n".join(self.l) + "\n"

def vr(a, n=1): return f"v{a}" if n == 1 else f"v[{a}:{a+n-1}]"
def sr(a, n=1): return f"s{a}" if n == 1 else f"s[{a}:{a+n-1}]"

def scan64(a, v):
    for c in ("row_shr:1 row_mask:0xf", "row_shr:2 row_mask:0xf", "row_shr:4 row_mask:0xf", "row_shr:8 row_mask:0xf"):
        a(f"s_nop 1\nv_add_u32_dpp v{v}, v{v}, v{v} {c} bank_mask:0xf bound_ctrl:0")
    a(f"s_nop 1\nv_add_u32_dpp v{v}, v{v}, v{v} row_bcast:15 row_mask:0xa bank_mask:0xf")
    a(f"s_nop 1\nv_add_u32_dpp v{v}, v{v}, v{v} row_bcast:31 row_mask:0xc bank_mask:0xf")

def scan256(a, h, b, t):
    a(f"""v_add_u32 v{t}, v{h}, v{h+1}
          v_add3_u32 v{t}, v{t}, v{h+2}, v{h+3}
          v_mov_b32 v{t+1}, v{t}""")
    scan64(a, t + 1)
    a(f"""v_sub_u32 v{b}, v{t+1}, v{t}
          v_add_u32 v{b+1}, v{b}, v{h}
          v_add_u32 v{b+2}, v{b+1}, v{h+1}
          v_add_u32 v{b+3}, v{b+2}, v{h+2}""")

def kd(name, vgpr, sgpr):
    return f""".section .rodata,"a"
.p2align 6
.amdhsa_kernel {name}
  .amdhsa_next_free_vgpr {vgpr}
  .amdhsa_next_free_sgpr {sgpr}
  .amdhsa_accum_offset {(vgpr + 3) // 4 * 4}
  .amdhsa_group_segment_fixed_size 0
  .amdhsa_kernarg_size 88
  .amdhsa_user_sgpr_count 2
  .amdhsa_user_sgpr_kernarg_segment_ptr 1
  .amdhsa_system_sgpr_workgroup_id_x 1
  .amdhsa_float_denorm_mode_32 3
.end_amdhsa_kernel
"""

STAMPS = {1: [], 2: []}
def stamp(a, opt, name, kernel, sbase, stmp):
    if opt.hold and kernel == 1 and name == "start":
        a(f"""s_cmp_lg_u32 s2, 0
        s_cbranch_scc1 HOLD_NOSTAMP
        s_load_dwordx2 s[30:31], s[0:1], 80
        s_memrealtime s[32:33]
        s_waitcnt lgkmcnt(0)
        v_mov_b32 v1, {WS_STAMP}
        v_mov_b32 v2, s32
        global_store_dword v1, v2, s[30:31]
        HOLD_NOSTAMP:""")
    if opt.probe and kernel == 2 and name == opt.probe:
        a("s_memrealtime s[94:95]\ns_waitcnt lgkmcnt(0)\ns_mov_b32 s93, s94")
    if opt.hold and kernel == 2 and name == opt.hold.split("@")[0]:
        a(f"""s_load_dwordx2 s[90:91], s[0:1], 80
        s_waitcnt lgkmcnt(0)
        s_add_u32 s90, s90, {WS_STAMP}
        s_addc_u32 s91, s91, 0
        s_load_dword s92, s[90:91], 0
        s_waitcnt lgkmcnt(0)
        s_sub_u32 s93, s93, s92
        s_mul_i32 s93, s93, {4 if opt.probe else 0}
        s_add_u32 s92, s92, s93
        s_add_u32 s92, s92, {int(opt.hold.split("@")[1]) * 100}
        HOLD_SPIN:
        s_memrealtime s[94:95]
        s_waitcnt lgkmcnt(0)
        s_sub_u32 s94, s94, s92
        s_cmp_lt_i32 s94, 0
        s_cbranch_scc1 HOLD_SPIN""")
    if not opt.stamps: return
    k = len(STAMPS[kernel]); STAMPS[kernel].append(name)
    a(f"s_memrealtime {sr(stmp, 2)}\ns_waitcnt lgkmcnt(0)\ns_mov_b32 s{sbase + k}, s{stmp}")

K1_HIST, K1_BASE, K1_SKEY, K1_SREC = 0, 1024, 2048, 2048 + EP * 4
K1_LDS = K1_SREC + EP * 16

def bin_kernel(opt):
    a = Asm()
    a(f"""bin_kernel:
    s_cmp_ge_u32 s2, {NP + 5}
    s_cbranch_scc1 K1_END""")
    stamp(a, opt, 'start', 1, 40, 38)
    a(f"""s_load_dwordx4 s[4:7], s[0:1], 8
    s_load_dwordx4 s[8:11], s[0:1], 24
    s_load_dwordx2 s[12:13], s[0:1], 80
    s_load_dwordx4 s[16:19], s[0:1], 40
    s_load_dwordx2 s[20:21], s[0:1], 56
    s_load_dwordx2 s[26:27], s[0:1], 0
    s_cmp_ge_u32 s2, {NP}
    s_cbranch_scc1 K1_AUX
    s_mul_i32 s14, s2, {EP * 4}
    v_lshl_add_u32 v1, v0, 4, s14
    v_lshlrev_b32 v2, 1, v1
    v_lshlrev_b32 v3, 2, v0
    v_mov_b32 v4, 0
    v_mov_b32 v5, 1
    s_waitcnt lgkmcnt(0)
    global_load_dwordx4 v[8:11], v1, s[6:7]     ; dst
    global_load_dwordx4 v[12:15], v1, s[4:5]    ; src
    global_load_dwordx4 v[16:19], v2, s[8:9]    ; Y
    global_load_dwordx4 v[20:23], v2, s[8:9] offset:16
    global_load_dwordx4 v[24:27], v2, s[10:11]  ; edge_feat
    global_load_dwordx4 v[28:31], v2, s[10:11] offset:16""")
    def prefetch_x():
        a(f"s_mul_i32 s15, s2, 40960\nv_lshl_add_u32 v7, v0, 4, s15")
        for k in range(opt.pfn):
            a(f"global_load_dwordx4 v[56:59], v7, s[26:27] {opt.pfflag}")
            if k < opt.pfn - 1: a("v_add_u32 v7, 5120, v7")
    npf = opt.pfn if opt.pf else 0
    if opt.pf == 1: prefetch_x()
    a(f"""ds_write_b32 v3, v4 offset:{K1_HIST}        ; 320 words: histogram + start of base table
    s_waitcnt lgkmcnt(0)
    s_barrier
    s_waitcnt vmcnt({5 + (npf if opt.pf == 1 else 0)})""")
    stamp(a, opt, 'dst arrived', 1, 40, 38)
    if opt.pf == 2: prefetch_x()
    for k in range(4):
        a(f"""v_and_b32 v{32+k}, 0xff, v{8+k}
              v_lshlrev_b32 v{32+k}, 2, v{32+k}
              ds_add_rtn_u32 v{36+k}, v{32+k}, v5 offset:{K1_HIST}""")
    a(f"s_waitcnt vmcnt({4 + (npf if opt.pf in (1, 2) else 0)})")
    for k in range(4):
        a(f"""v_lshrrev_b32 v{8+k}, 8, v{8+k}
              v_lshl_or_b32 v{8+k}, v{12+k}, 10, v{8+k}""")
    a(f"""v_and_b32 v6, 63, v0
    v_lshlrev_b32 v6, 4, v6
    s_waitcnt lgkmcnt(0)
    s_barrier
    ds_read_b128 v[40:43], v6 offset:{K1_HIST}
    s_waitcnt lgkmcnt(0)""")
    scan256(a, 40, 44, 48)
    a(f"ds_write_b128 v6, v[44:47] offset:{K1_BASE}")
    for k in range(4):
        a(f"v_lshl_or_b32 v{52+k}, v{40+k}, 16, v{44+k}")
    for k in range(4):
        a(f"ds_read_b32 v{40+k}, v{32+k} offset:{K1_BASE}")
    for k in range(4):
        a(f"""s_waitcnt lgkmcnt({3-k})
              v_add_u32 v{36+k}, v{36+k}, v{40+k}
              v_lshlrev_b32 v{32+k}, 2, v{36+k}
              v_lshlrev_b32 v{36+k}, 4, v{36+k}""")
    for k in range(4):
        a(f"ds_write_b32 v{32+k}, v{8+k} offset:{K1_SKEY}")
    a(f"s_waitcnt vmcnt({npf if opt.pf in (1, 2) else 0})")
    if opt.pf == 3: prefetch_x()
    for k in range(4):
        a(f"""v_add_u32 v{36+k}, {K1_SREC}, v{36+k}
              ds_write2_b64 v{36+k}, v[{16+2*k}:{17+2*k}], v[{24+2*k}:{25+2*k}] offset0:0 offset1:1""")
    a(f"""v_lshlrev_b32 v3, 4, v0
    s_lshl_b32 s15, s14, 2
    s_add_u32 s15, s15, {WS_REC}
    v_add_u32 v2, s15, v3
    s_waitcnt lgkmcnt(0)
    s_barrier""")
    stamp(a, opt, 'sorted in LDS', 1, 40, 38)
    a(f"ds_read_b128 v[8:11], v3 offset:{K1_SKEY}")
    for k in range(4):
        a(f"ds_read_b128 v[{12+4*k}:{15+4*k}], v3 offset:{K1_SREC + k * 320 * 16}")
    a(f"""s_lshl_b32 s15, s2, 10
    s_add_u32 s15, s15, {WS_TAB}
    v_add_u32 v7, s15, v6
    v_cmp_gt_u32 vcc, 64, v0
    s_and_saveexec_b64 s[22:23], vcc
    s_cbranch_execz K1_NOTAB
    global_store_dwordx4 v7, v[52:55], s[12:13] {opt.k1st}
K1_NOTAB:
    s_mov_b64 exec, s[22:23]""")
    a(f"""s_waitcnt lgkmcnt(4)
    global_store_dwordx4 v1, v[8:11], s[12:13] {opt.k1st}""")
    for k in range(4):
        a(f"""s_waitcnt lgkmcnt({3-k})
              global_store_dwordx4 v2, v[{12+4*k}:{15+4*k}], s[12:13] {opt.k1st}""")
        if k < 3: a(f"v_add_u32 v2, {320*16}, v2")
    if opt.stamps:
        stamp(a, opt, 'stores issued', 1, 40, 38)
        a("s_waitcnt vmcnt(0)")
        stamp(a, opt, 'stores done', 1, 40, 38)
        a(f"""v_lshrrev_b32 v1, 6, v0
        s_mul_i32 s14, s2, 8 * 32
        v_lshl_add_u32 v1, v1, 5, s14
        v_add_u32 v1, {WS_STAMP}, v1""")
        for k in range(8): a(f"v_mov_b32 v{8+k}, s{40+k}")
        a("global_store_dwordx4 v1, v[8:11], s[12:13]\nglobal_store_dwordx4 v1, v[12:15], s[12:13] offset:16")
    a(f"""s_endpgm
K1_AUX:
    v_lshrrev_b32 v1, 6, v0
    v_and_b32 v2, 63, v0
    s_nop 0
    v_readfirstlane_b32 s14, v1                 ; wave
    s_cmp_eq_u32 s2, {NP + 4}
    s_cbranch_scc1 K1_CONST
    s_cmp_ge_u32 s14, 4
    s_cbranch_scc1 K1_END
    s_sub_u32 s15, s2, {NP}
    s_lshl_b32 s22, s14, 13
    s_lshl_b32 s23, s15, 6
    s_add_u32 s22, s22, s23
    v_lshrrev_b32 v3, 4, v2
    v_lshlrev_b32 v3, 11, v3
    v_and_b32 v4, 15, v2
    v_lshl_add_u32 v3, v4, 2, v3
    v_add_u32 v3, s22, v3
    s_lshl_b32 s22, s15, 13
    s_lshl_b32 s23, s14, 10
    s_add_u32 s22, s22, s23
    s_add_u32 s22, s22, {WS_WMIX}
    v_lshl_add_u32 v4, v2, 4, s22
    s_mov_b32 s24, 0x05040100
    s_mov_b32 s25, 0x07060302
    s_waitcnt lgkmcnt(0)""")
    for t in range(8): a(f"global_load_dword v{8+t}, v3, s[20:21] offset:{t*256}")
    a("s_waitcnt vmcnt(0)")
    for u in range(4):
        a(f"v_perm_b32 v{16+u}, v{9+2*u}, v{8+2*u}, s24\nv_perm_b32 v{20+u}, v{9+2*u}, v{8+2*u}, s25")
    a(f"""global_store_dwordx4 v4, v[16:19], s[12:13]
    v_add_u32 v4, 4096, v4
    global_store_dwordx4 v4, v[20:23], s[12:13]
    s_endpgm
K1_CONST:
    s_cmp_ge_u32 s14, 1
    s_cbranch_scc1 K1_END
    v_lshlrev_b32 v3, 2, v2
    v_and_b32 v4, 3, v2
    v_lshlrev_b32 v4, 1, v4
    s_mov_b32 s22, {WS_CONST}
    v_lshl_add_u32 v5, v2, 4, s22
    s_mov_b32 s24, 0xbfb8aa3b                   ; -log2(e)
    s_mov_b32 s25, 0xffff0000
    s_waitcnt lgkmcnt(0)""")
    for k in range(4): a(f"global_load_dword v{8+k}, v3, s[16:17] offset:{k*256}")
    for i in range(4):
        for f in range(4): a(f"global_load_ushort v{32+4*i+f}, v4, s[18:19] offset:{i*32+f*8}")
    a("s_waitcnt vmcnt(16)")
    for k in range(4):
        a(f"""v_lshlrev_b32 v{12+k}, 16, v{8+k}
              v_and_b32 v{16+k}, s25, v{8+k}
              v_mul_f32 v{12+k}, s24, v{12+k}
              v_mul_f32 v{16+k}, s24, v{16+k}""")
    for p in range(2):
        s, d = 12 + 4 * p, 20 + 4 * p
        a(f"""v_cvt_pk_bf16_f32 v{d}, v{s}, v{s+1}
              v_cvt_pk_bf16_f32 v{d+1}, v{s+2}, v{s+3}""")
        for h in range(2):
            a(f"""v_lshlrev_b32 v28, 16, v{d+h}
                  v_and_b32 v29, s25, v{d+h}
                  v_sub_f32 v28, v{s+2*h}, v28
                  v_sub_f32 v29, v{s+2*h+1}, v29
                  v_cvt_pk_bf16_f32 v{d+2+h}, v28, v29""")
    a("""global_store_dwordx4 v5, v[20:23], s[12:13]
    global_store_dwordx4 v5, v[24:27], s[12:13] offset:1024
    s_waitcnt vmcnt(2)""")
    for i in range(4):
        a(f"""v_lshl_or_b32 v{48+2*i}, v{33+4*i}, 16, v{32+4*i}
              v_lshl_or_b32 v{49+2*i}, v{35+4*i}, 16, v{34+4*i}""")
    a("""global_store_dwordx4 v5, v[48:51], s[12:13] offset:2048
    global_store_dwordx4 v5, v[52:55], s[12:13] offset:3072
K1_END:
    s_endpgm""")
    return a.text(), 64, 48

NSB = 12
HS = 80
WCAP = 384
L_HIST = 0
L_WT = 3328
L_BASE = 4096
L_INV = L_BASE + 40 * HS
L_LIST = L_INV + 256
L_SENT = L_LIST + CAP * 4
L_UREC = L_SENT + (8 * WCAP + 192) * 8
L_CONST = L_UREC + CAP * 16
L_WMIX = L_CONST + 4096
L_AGG = L_WMIX + 32768
AGG_RS = 288
K2_LDS = L_AGG + 160 * AGG_RS

V_L16 = 1
V_LEN, V_PRE, V_GID = 2, 3, 4
V_AENT, V_POS = 5, 6
T0 = 8
ACC = 16; XR = 64; TP = 96; UU = 112; RR = 128; TT = 136; WPK = 140; WTMP = 148
KEY = 164; ENT = 166; RECN = 168; EF = 172; CONST = 176
WMIX = 96
K2_VGPR = 192
UE_HI, UE_LO, UO_HI, UO_LO, CGB = CONST, CONST + 2, CONST + 4, CONST + 6, CONST + 8
S_X, S_WS, S_OUT = 12, 16, 20
S_BETA, S_WAVE, S_N, S_W0, S_NWIN, S_START, S_END, S_REM, S_REMB, S_OFF, S_MASK = 24, 25, 26, 27, 28, 29, 30, 31, 32, 33, 34
S_M = 36
S_T = 42
S_CAP = 35; S_NODE = 4
S_K = 48
S_ST = 64
K2_SGPR = 100

def mfma4(d, a_, b, c, blk=None):
    cc = "0" if c is None else vr(c, 4)
    return f"v_mfma_f32_4x4x4_16b_bf16 {vr(d,4)}, {vr(a_,2)}, {vr(b,2)}, {cc}" + ("" if blk is None else f" cbsz:4 abid:{blk}")

def u_mfma(g, r):
    d = UU + 8 * (g % 2) + 4 * (r // 2)
    b = (UE_HI, UE_LO, UO_HI, UO_LO)[r]
    return mfma4(d, EF, b, d if r % 2 else None, g % 16)

def t_mfma(e, odd):
    return mfma4(TP + 8 * (e % 2) + 4 * odd, WPK + 2 * (e % 4), XR + 4 * (e % 8) + 2 * odd, None, (e % 64) // 4)

def silu_regs(eb, odd):
    u = UU + 8 * ((eb // 4) % 2) + 4 * odd + eb % 4
    r = RR + 4 * ((eb // 2) % 2) + 2 * odd
    return u, r

def fma4(a, q):
    h = q % 2
    a(f"s_set_gpr_idx_on s{S_K + q % 16}, 0xc")
    for odd in range(2):
        r = RR + 4 * ((q // 2) % 2) + 2 * odd
        for o in (0, 2):
            acc = ACC + 4 * odd + o; tp = TP + 8 * (q % 2) + 4 * odd + o
            a(f"v_pk_fma_f32 {vr(acc,2)}, {vr(r,2)}, {vr(tp,2)}, {vr(acc,2)} op_sel:[{h},0,0] op_sel_hi:[{h},1,1]")
    a("s_set_gpr_idx_off")

def meta_read_entry(a):
    a(f"ds_read_b64 {vr(ENT,2)}, v{V_AENT}")
def meta_fix_entry(a):
    a(f"""v_cmp_gt_u32 vcc, s{S_END}, v{V_POS}
          v_add_u32 v{V_POS}, 64, v{V_POS}
          v_add_u32 v{V_AENT}, 512, v{V_AENT}
          v_mov_b32 v{T0}, {L_UREC}
          v_cndmask_b32 v{ENT}, 40, v{ENT}, vcc
          v_cndmask_b32 v{ENT+1}, v{T0}, v{ENT+1}, vcc
          ds_read_b128 {vr(RECN,4)}, v{ENT+1}""")
def w_mfma(i): return mfma4(WTMP + 4 * i, RECN, CGB + 2 * i, None)
def w_cvt(a, m):
    a(f"""v_cvt_pk_bf16_f32 v{WPK+2*m}, v{WTMP+m}, v{WTMP+4+m}
          v_cvt_pk_bf16_f32 v{WPK+2*m+1}, v{WTMP+8+m}, v{WTMP+12+m}""")

def body(a, opt, loads):
    D = opt.D; tag = "A" if loads else "B"
    for q in range(64):
        if q % 4 == 0:
            a(f"{tag}_{q}:")
            if loads: a(f"s_sub_u32 s{S_REM}, s{S_REM}, 4\ns_cbranch_scc1 B_{q}")
            else:     a(f"s_sub_u32 s{S_REMB}, s{S_REMB}, 4\ns_cbranch_scc1 MAIN_DONE")
        eb = q + 2 - q % 2; odd = q % 2
        u, r = silu_regs(eb, odd)
        g, ur = (q + 6) // 4, (q + 6) % 4
        a(f"s_waitcnt vmcnt({D - 2 if loads else max(0, D - 6 - q % 4)})")
        a(t_mfma(q + 1, 0))
        if loads:
            a(f"v_readlane_b32 s{S_K + (q + D) % 16}, v{KEY if q + D < 64 else ENT}, {(q + D) % 64}")
        a(u_mfma(g, ur))
        a(f"v_exp_f32 v{TT}, v{u}\nv_exp_f32 v{TT+1}, v{u+1}")
        if loads: a(f"s_and_b32 s{S_OFF}, s{S_K + (q + D) % 16}, s{S_MASK}")
        else:     a("s_nop 0")
        a(f"v_pk_add_f32 {vr(TT,2)}, {vr(TT,2)}, 1.0 op_sel_hi:[1,0]")
        a(t_mfma(q + 1, 1))
        if 40 <= q < 44: a(w_mfma(q - 40))
        a(f"v_rcp_f32 v{TT}, v{TT}\nv_rcp_f32 v{TT+1}, v{TT+1}")
        if loads: a(f"buffer_load_dwordx4 {vr(XR + 4 * ((q + D) % 8), 4)}, v{V_L16}, {sr(S_X,4)}, s{S_OFF} offen")
        else:     a("s_nop 0")
        a(f"v_pk_mul_f32 {vr(r,2)}, {vr(TT,2)}, {vr(u,2)}")
        fma4(a, q)
        if q == 63: a(f"v_mov_b32 v{KEY}, v{ENT}")
        if q == 8: meta_read_entry(a)
        if q == 12: a("s_waitcnt lgkmcnt(0)"); meta_fix_entry(a)
        if q == 20: a("s_waitcnt lgkmcnt(0)")
        if q == 57: a(f"v_mov_b32 v{EF}, v{RECN+2}\nv_mov_b32 v{EF+1}, v{RECN+3}")
        if q >= 60: w_cvt(a, q - 60)
    a(f"s_branch {tag}_0")

def main_kernel(opt):
    a = Asm(); D = opt.D
    st = lambda k: stamp(a, opt, k, 2, S_ST, 96)
    V_SLOT4, V_SIG4 = 7, 14
    a(f"""main_kernel:
    s_cmp_ge_u32 s2, 256
    s_cbranch_scc1 K2_END""")
    st('start')
    a(f"""s_load_dwordx2 {sr(S_X,2)}, s[0:1], 0
    s_load_dwordx2 {sr(S_OUT,2)}, s[0:1], 64
    s_load_dwordx2 {sr(S_WS,2)}, s[0:1], 80
    s_and_b32 s10, s2, 7
    s_lshl_b32 s10, s10, 5
    s_lshr_b32 s11, s2, 3
    s_or_b32 s{S_BETA}, s10, s11
    v_lshrrev_b32 v{T0}, 6, v0
    v_and_b32 v{T0+1}, 63, v0
    v_lshlrev_b32 v{V_L16}, 4, v{T0+1}
    v_readfirstlane_b32 s{S_WAVE}, v{T0}
    v_lshrrev_b32 v{V_GID}, 1, v0
    s_lshl_b32 s10, s{S_BETA}, 2
    s_add_u32 s10, s10, {WS_TAB}
    v_lshl_add_u32 v{T0+2}, v{V_GID}, 10, s10
    v_lshlrev_b32 v{T0+3}, 3, v0
    v_mov_b32 v{T0+4}, 0
    v_mov_b32 v{T0+5}, 0
    ds_write_b64 v{T0+3}, {vr(T0+4,2)}
    s_mov_b32 s{S_X+2}, {N * 1024}
    s_mov_b32 s{S_X+3}, 0x20000
    s_mov_b32 s{S_WS+2}, {WS_END}
    s_mov_b32 s{S_WS+3}, 0x20000
    s_mov_b32 s{S_OUT+2}, {N * 1024}
    s_mov_b32 s{S_OUT+3}, 0x20000
    s_mov_b32 s{S_MASK}, 0xfffffc00
    s_mov_b32 s{S_W0}, 0
    s_mov_b32 s{S_CAP}, {CAP}
    s_lshl_b32 s10, s{S_WAVE}, 10
    s_add_u32 s11, s10, {WS_CONST}
    s_add_u32 s10, s10, {L_CONST}""")
    for k in range(48): a(f"v_mov_b32 v{ACC+k}, 0")
    a(f"""v_mul_u32_u24 v{V_GID}, {EP}, v{V_GID}
    v_mul_u32_u24 v{V_SIG4}, 52, v{T0+1}
    v_lshrrev_b32 v{V_SIG4}, 8, v{V_SIG4}            ; lane / 5
    v_mul_u32_u24 v{V_SLOT4}, 5, v{V_SIG4}
    v_sub_u32 v{V_SLOT4}, v{T0+1}, v{V_SLOT4}        ; lane % 5
    v_lshlrev_b32 v{V_SIG4}, 2, v{V_SIG4}
    v_lshlrev_b32 v{V_SLOT4}, 2, v{V_SLOT4}
    v_and_b32 v{T0+4}, 1, v0
    v_cmp_eq_u32 {sr(S_T,2)}, 1, v{T0+4}
    s_mov_b32 m0, s10
    s_waitcnt lgkmcnt(0)""")
    st('kernargs')
    a(f"buffer_load_dword v{V_LEN}, v{T0+2}, {sr(S_WS,4)}, 0 offen")
    a(f"""s_cmp_ge_u32 s{S_WAVE}, 4
    s_cbranch_scc1 SKIP_PIECE
    s_add_u32 m0, s10, {32 * 1024}
    s_add_u32 s{S_T+2}, s11, {32 * 1024}
    buffer_load_dwordx4 v{V_L16}, {sr(S_WS,4)}, s{S_T+2} offen lds
SKIP_PIECE:""")
    for k in range(4):
        a(f"""s_add_u32 m0, s10, {k * 8192}
              s_add_u32 s{S_T+2}, s11, {k * 8192}
              buffer_load_dwordx4 v{V_L16}, {sr(S_WS,4)}, s{S_T+2} offen lds""")
    a("s_barrier")
    a(f"""s_cmp_ge_u32 s{S_WAVE}, 4
    s_cbranch_scc1 TAB_W4
    s_waitcnt vmcnt(5)
    s_branch TAB_OK
TAB_W4:
    s_waitcnt vmcnt(4)
TAB_OK:""")
    st('tab arrived')
    a(f"""v_and_b32 v{T0+5}, 0xffff, v{V_LEN}
    v_lshrrev_b32 v{V_LEN}, 16, v{V_LEN}
    v_add_u32 v{V_GID}, v{V_GID}, v{T0+5}
    v_cndmask_b32 v{T0+5}, 0, v{V_LEN}, {sr(S_T,2)}
    v_mov_b32 v{V_PRE}, v{T0+5}""")
    scan64(a, V_PRE)
    a(f"""s_nop 0
    v_readlane_b32 s{S_T+2}, v{V_PRE}, 63
    v_sub_u32 v{V_PRE}, v{V_PRE}, v{T0+5}
    v_cmp_lt_u32 vcc, s{S_WAVE}, v{T0+1}
    v_cmp_gt_u32 {sr(S_T,2)}, 9, v{T0+1}
    v_lshlrev_b32 v{T0+2}, 2, v{T0+1}
    v_mov_b32 v{T0+3}, s{S_T+2}
    s_and_b64 vcc, vcc, {sr(S_T,2)}
    s_and_saveexec_b64 {sr(S_T,2)}, vcc
    ds_add_u32 v{T0+2}, v{T0+3} offset:{L_WT}
    s_mov_b64 exec, {sr(S_T,2)}
    s_lshl_b32 s10, s{S_WAVE}, 2
    v_mov_b32 v{T0+2}, s10
    v_mov_b32 v{T0+3}, 32
    s_waitcnt lgkmcnt(0)
    s_barrier
    ds_read_b32 v{T0+2}, v{T0+2} offset:{L_WT}
    ds_read_b32 v{T0+3}, v{T0+3} offset:{L_WT}
    s_waitcnt lgkmcnt(0)
    v_add_u32 v{V_PRE}, v{V_PRE}, v{T0+2}
    v_readfirstlane_b32 s{S_N}, v{T0+3}""")
    st('prefix done')
    a(f"""ROUND:
    v_and_b32 v{T0}, 1, v0
    v_subrev_u32 v{T0+1}, s{S_W0}, v{V_PRE}
    v_add_u32 v{T0+1}, v{T0+1}, v{T0}
    v_add_u32 v{T0+2}, v{V_GID}, v{T0}
EXPAND:
    v_cmp_lt_u32 vcc, v{T0}, v{V_LEN}
    s_and_b64 exec, exec, vcc
    s_cbranch_execz EXPAND_DONE
    v_cmp_gt_u32 vcc, s{S_CAP}, v{T0+1}
    v_lshlrev_b32 v{T0+3}, 2, v{T0+1}
    s_and_saveexec_b64 {sr(S_T,2)}, vcc
    ds_write_b32 v{T0+3}, v{T0+2} offset:{L_LIST}
    s_mov_b64 exec, {sr(S_T,2)}
    v_add_u32 v{T0}, 2, v{T0}
    v_add_u32 v{T0+1}, 2, v{T0+1}
    v_add_u32 v{T0+2}, 2, v{T0+2}
    s_branch EXPAND
EXPAND_DONE:
    s_mov_b64 exec, -1
    s_sub_u32 s{S_NWIN}, s{S_N}, s{S_W0}
    s_min_u32 s{S_NWIN}, s{S_NWIN}, s{S_CAP}
    v_lshlrev_b32 v{T0}, 2, v0""")
    for i in range(3):
        a(f"""v_add_u32 v{T0+1}, {512*i}, v0
              v_cmp_gt_u32 {sr(S_M+2*i,2)}, s{S_NWIN}, v{T0+1}""")
    a("s_waitcnt lgkmcnt(0)\ns_barrier")
    st('list built')
    G = XR
    for i in range(3): a(f"ds_read_b32 v{G+i}, v{T0} offset:{L_LIST + 2048*i}")
    a(f"""s_lshl_b32 s10, s{S_WAVE}, 10
    s_add_u32 s10, s10, {L_UREC}
    s_mov_b32 s11, {WS_REC}
    s_mov_b32 s{S_T+2}, 5033                          ; 12 * 2^32 / (10000 * 1024)
    v_mov_b32 v{T0+5}, 1
    s_waitcnt lgkmcnt(0)""")
    for i in range(3):
        a(f"v_lshlrev_b32 v{G+4+i}, 2, v{G+i}\nv_lshlrev_b32 v{G+i}, 4, v{G+i}")
    for i in range(2):
        a(f"s_mov_b64 exec, {sr(S_M+2*i,2)}\nbuffer_load_dword v{G+4+i}, v{G+4+i}, {sr(S_WS,4)}, 0 offen")
    a(f"""s_mov_b64 exec, {sr(S_M+4,2)}
    s_cbranch_execz SKIP3
    buffer_load_dword v{G+6}, v{G+6}, {sr(S_WS,4)}, 0 offen
SKIP3:
    s_mov_b64 exec, -1
    s_waitcnt vmcnt(0)""")
    st('keys arrived')
    for i in range(2):
        a(f"""s_add_u32 m0, s10, {i*8192}
              s_mov_b64 exec, {sr(S_M+2*i,2)}
              buffer_load_dwordx4 v{G+i}, {sr(S_WS,4)}, s11 offen lds""")
    a(f"""s_add_u32 m0, s10, {2*8192}
    s_mov_b64 exec, {sr(S_M+4,2)}
    s_cbranch_execz SKIP3R
    buffer_load_dwordx4 v{G+2}, {sr(S_WS,4)}, s11 offen lds
SKIP3R:
    s_mov_b64 exec, -1""")
    for i in range(3):
        a(f"""v_mul_hi_u32 v{T0+1}, s{S_T+2}, v{G+4+i}
              v_and_b32 v{G+8+i}, 63, v{G+4+i}
              v_mul_u32_u24 v{G+8+i}, {HS}, v{G+8+i}
              v_lshl_add_u32 v{G+8+i}, v{T0+1}, 2, v{G+8+i}""")
    for i in range(3):
        a(f"s_mov_b64 exec, {sr(S_M+2*i,2)}\nds_add_rtn_u32 v{G+12+i}, v{G+8+i}, v{T0+5} offset:{L_HIST}")
    a("s_mov_b64 exec, -1")
    for i in range(3):
        a(f"""v_and_b32 v{G+16+2*i}, s{S_MASK}, v{G+4+i}
              v_lshlrev_b32 v{G+17+2*i}, 4, v0
              v_add_u32 v{G+17+2*i}, {L_UREC + 8192*i}, v{G+17+2*i}""")
    H = G + 24
    a(f"""v_lshrrev_b32 v{T0}, 4, v{V_L16}              ; lane
    v_min_u32 v{T0+1}, 39, v{T0}
    v_mul_u32_u24 v{T0+1}, {HS}, v{T0+1}
    v_cmp_gt_u32 {sr(S_T,2)}, 40, v{T0}
    v_sub_u32 v{T0+2}, 63, v{T0}
    s_mul_i32 s10, s{S_WAVE}, 5
    s_waitcnt lgkmcnt(0)
    s_barrier""")
    st('hist done')
    for k in range(3): a(f"ds_read_b128 {vr(H+4*k,4)}, v{T0+1} offset:{L_HIST + 16*k}")
    a(f"""s_waitcnt lgkmcnt(1)
    v_add3_u32 v{H}, v{H}, v{H+1}, v{H+2}
    v_add3_u32 v{H+3}, v{H+3}, v{H+4}, v{H+5}
    v_add3_u32 v{H}, v{H}, v{H+6}, v{H+7}
    s_waitcnt lgkmcnt(0)
    v_add3_u32 v{H+3}, v{H+3}, v{H+8}, v{H+9}
    v_add3_u32 v{H}, v{H}, v{H+10}, v{H+11}
    v_add_u32 v{H}, v{H}, v{H+3}
    v_cmp_lt_u32 vcc, {WCAP // 5}, v{H}
    v_lshl_or_b32 v{H}, v{H}, 6, v{T0+2}
    v_cndmask_b32 v{H}, 0, v{H}, {sr(S_T,2)}
    s_cmp_eq_u32 s{S_CAP}, {WCAP}
    s_cbranch_scc1 DEG_OK
    s_cbranch_vccz DEG_OK
    s_mov_b32 s{S_CAP}, {WCAP}
    s_waitcnt vmcnt(0)
    s_barrier
    v_lshlrev_b32 v{T0+3}, 3, v0
    v_mov_b32 v{T0+4}, 0
    v_mov_b32 v{T0+5}, 0
    v_cmp_gt_u32 vcc, {40 * HS // 8}, v0
    s_and_saveexec_b64 {sr(S_T,2)}, vcc
    ds_write_b64 v{T0+3}, {vr(T0+4,2)} offset:{L_HIST}
    s_mov_b64 exec, {sr(S_T,2)}
    s_branch ROUND
DEG_OK:
    s_cmp_lg_u32 s{S_W0}, 0
    s_cbranch_scc1 DEALT""")
    for k in range(5):
        a(f"v_readlane_b32 s{S_NODE+k}, v{H}, s10")
        if k < 4: a("s_add_u32 s10, s10, 1")
    for k in range(5):
        a(f"v_cmp_lt_u32 {sr(S_K+2*k,2)}, s{S_NODE+k}, v{H}")
    for k in range(5):
        a(f"s_bcnt1_i32_b64 s{S_NODE+k}, {sr(S_K+2*k,2)}")
    for k in range(5):
        a(f"v_writelane_b32 v{T0+1}, s{S_NODE+k}, {k}")
    a(f"""s_sub_u32 s10, s10, 4
    v_add_u32 v{T0+2}, s10, v{T0}
    v_lshrrev_b32 v{T0+3}, 3, v{T0+1}
    v_and_b32 v{T0+1}, 7, v{T0+1}
    v_lshrrev_b32 v{T0+4}, v{T0+3}, {opt.dirmask}
    v_and_b32 v{T0+4}, 1, v{T0+4}
    v_mul_u32_u24 v{T0+4}, 7, v{T0+4}
    v_xor_b32 v{T0+1}, v{T0+1}, v{T0+4}               ; wave
    v_lshl_or_b32 v{T0+1}, v{T0+1}, 3, v{T0+3}
    v_lshlrev_b32 v{T0+1}, 2, v{T0+1}
    s_mov_b64 exec, 0x1f
    ds_write_b32 v{T0+1}, v{T0+2} offset:{L_INV}
    s_mov_b64 exec, -1
DEALT:
    s_lshl_b32 s10, s{S_WAVE}, 5
    v_add_u32 v{T0+1}, s10, v{V_SLOT4}
    s_mul_i32 s{S_START}, s{S_WAVE}, {WCAP}
    v_cmp_gt_u32 {sr(S_T,2)}, 60, v{T0}
    s_waitcnt lgkmcnt(0)
    s_barrier""")
    st('dealt')
    a(f"""ds_read_b32 v{T0+1}, v{T0+1} offset:{L_INV}
    v_lshlrev_b32 v{T0+4}, 17, v{V_SLOT4}
    v_add_u32 v{T0+4}, s{S_START}, v{T0+4}            ; start | slot << 19
    s_waitcnt lgkmcnt(0)
    v_mul_u32_u24 v{T0+2}, {HS}, v{T0+1}
    v_add_u32 v{T0+2}, v{T0+2}, v{V_SIG4}
    ds_read_b32 v{T0+3}, v{T0+2} offset:{L_HIST}""")
    for k in range(5): a(f"v_readlane_b32 s{S_NODE+k}, v{T0+1}, {k}")
    a(f"""s_waitcnt lgkmcnt(0)
    v_cndmask_b32 v{T0+3}, 0, v{T0+3}, {sr(S_T,2)}
    v_sub_u32 v{T0+4}, v{T0+4}, v{T0+3}""")
    scan64(a, T0 + 3)
    a(f"""v_add_u32 v{T0+4}, v{T0+4}, v{T0+3}
    v_readlane_b32 s{S_END}, v{T0+3}, 63
    s_mov_b64 exec, {sr(S_T,2)}
    ds_write_b32 v{T0+2}, v{T0+4} offset:{L_BASE}
    s_mov_b64 exec, -1
    v_add_u32 v{V_POS}, s{S_START}, v{T0}
    v_lshlrev_b32 v{V_AENT}, 3, v{V_POS}
    v_add_u32 v{V_AENT}, {L_SENT}, v{V_AENT}
    s_add_u32 s10, s{S_END}, 3
    s_and_b32 s10, s10, -4
    s_min_u32 s{S_REMB}, s10, {D}
    s_sub_u32 s{S_REM}, s10, s{S_REMB}
    s_add_u32 s{S_END}, s{S_END}, s{S_START}
    s_waitcnt lgkmcnt(0)
    s_barrier""")
    st('bases')
    for i in range(3): a(f"ds_read_b32 v{G+8+i}, v{G+8+i} offset:{L_BASE}")
    for i in range(3):
        a(f"""s_waitcnt lgkmcnt({2-i})
              v_lshrrev_b32 v{T0+1}, 16, v{G+8+i}
              v_and_b32 v{G+8+i}, 0xffff, v{G+8+i}
              v_or_b32 v{G+16+2*i}, v{G+16+2*i}, v{T0+1}
              v_add_lshl_u32 v{G+8+i}, v{G+8+i}, v{G+12+i}, 3""")
    for i in range(3):
        a(f"""s_mov_b64 exec, {sr(S_M+2*i,2)}
              ds_write_b64 v{G+8+i}, {vr(G+16+2*i,2)} offset:{L_SENT}""")
    a("s_mov_b64 exec, -1\ns_waitcnt lgkmcnt(0)")
    st('scattered')
    a("s_waitcnt vmcnt(0)")
    st('recs landed')
    a("s_barrier")
    st('sorted')
    meta_read_entry(a)
    a(f"v_add_u32 v{T0+1}, {L_CONST}, v{V_L16}")
    a("s_waitcnt lgkmcnt(0)")
    meta_fix_entry(a)
    for k in range(4): a(f"ds_read_b128 {vr(CONST+4*k,4)}, v{T0+1} offset:{1024*k}")
    for e in range(D):
        a(f"""v_readlane_b32 s{S_K+e}, v{ENT}, {e}
              s_and_b32 s{S_OFF}, s{S_K+e}, s{S_MASK}
              buffer_load_dwordx4 {vr(XR+4*e,4)}, v{V_L16}, {sr(S_X,4)}, s{S_OFF} offen""")
    a(f"""v_mov_b32 v{KEY}, v{ENT}
    s_waitcnt lgkmcnt(0)
    v_mov_b32 v{EF}, v{RECN+2}
    v_mov_b32 v{EF+1}, v{RECN+3}""")
    for i in range(4): a(w_mfma(i))
    a(u_mfma(0, 0)); a(u_mfma(0, 2)); a(u_mfma(1, 0)); a(u_mfma(0, 1)); a(u_mfma(0, 3)); a(u_mfma(1, 1))
    for m in range(4): w_cvt(a, m)
    for odd in range(2):
        u, r = silu_regs(0, odd)
        a(f"""v_exp_f32 v{TT}, v{u}
              v_exp_f32 v{TT+1}, v{u+1}
              s_nop 0
              v_pk_add_f32 {vr(TT,2)}, {vr(TT,2)}, 1.0 op_sel_hi:[1,0]
              v_rcp_f32 v{TT}, v{TT}
              v_rcp_f32 v{TT+1}, v{TT+1}
              s_nop 0
              v_pk_mul_f32 {vr(r,2)}, {vr(TT,2)}, {vr(u,2)}""")
    st('fill done')
    a(f"s_waitcnt vmcnt({D-1})")
    st('first row')
    a(t_mfma(0, 0)); a(t_mfma(0, 1))
    body(a, opt, True)
    body(a, opt, False)
    a(f"""MAIN_DONE:
    s_waitcnt vmcnt(0) lgkmcnt(0)
    s_add_u32 s{S_W0}, s{S_W0}, s{S_CAP}
    s_cmp_ge_u32 s{S_W0}, s{S_N}
    s_cbranch_scc1 ALL_DONE
    v_lshlrev_b32 v{T0+3}, 3, v0
    v_mov_b32 v{T0+4}, 0
    v_mov_b32 v{T0+5}, 0
    v_cmp_gt_u32 vcc, {40 * HS // 8}, v0
    s_and_saveexec_b64 {sr(S_T,2)}, vcc
    ds_write_b64 v{T0+3}, {vr(T0+4,2)} offset:{L_HIST}
    s_mov_b64 exec, {sr(S_T,2)}
    s_branch ROUND
ALL_DONE:""")
    st('main done')
    a(f"""s_mov_b32 s10, 0xbf317218                    ; -ln 2
    s_mov_b32 s11, 0xbf317218
    s_and_b32 s{S_T}, s{S_WAVE}, 3
    s_lshl_b32 s{S_T}, s{S_T}, 13
    s_add_u32 s{S_T}, s{S_T}, {L_WMIX}
    v_add_u32 v{T0+1}, s{S_T}, v{V_L16}
    v_lshrrev_b32 v{T0}, 2, v{V_L16}
    v_add_u32 v{T0}, {L_AGG}, v{T0}""")
    for k in range(8): a(f"ds_read_b128 {vr(WMIX+4*k,4)}, v{T0+1} offset:{1024*k}")
    for s in range(5):
        a(f"s_mul_i32 s{S_T}, s{S_NODE+s}, {4 * AGG_RS}\nv_add_u32 v{T0+2}, s{S_T}, v{T0}")
        for k in range(4):
            a(f"v_pk_mul_f32 {vr(ACC+8*s+2*k,2)}, {vr(ACC+8*s+2*k,2)}, s[10:11]")
        for o in range(4):
            a(f"""v_cvt_pk_bf16_f32 v{XR+4*(s%2)+o}, v{ACC+8*s+o}, v{ACC+8*s+4+o}
                  ds_write_b32 v{T0+2}, v{XR+4*(s%2)+o} offset:{o*AGG_RS}""")
    a(f"""v_lshrrev_b32 v{T0+1}, 4, v{V_L16}            ; lane
    v_and_b32 v{T0+2}, 15, v{T0+1}
    v_lshrrev_b32 v{T0+3}, 4, v{T0+1}                 ; lane >> 4
    s_lshr_b32 s{S_T}, s{S_WAVE}, 2
    s_mul_i32 s{S_T+1}, s{S_T}, {80 * AGG_RS}
    s_add_u32 s{S_T+1}, s{S_T+1}, {L_AGG}
    v_mul_u32_u24 v{T0}, {AGG_RS}, v{T0+2}
    v_lshl_add_u32 v{T0}, v{T0+3}, 4, v{T0}
    v_add_u32 v{T0}, s{S_T+1}, v{T0}
    s_mul_i32 s{S_T}, s{S_T}, {20 << 18}
    s_lshl_b32 s{S_T+1}, s{S_BETA}, 10
    s_add_u32 s{S_T}, s{S_T}, s{S_T+1}
    s_and_b32 s{S_T+1}, s{S_WAVE}, 3
    s_lshl_b32 s{S_T+1}, s{S_T+1}, 8
    s_add_u32 s{S_T}, s{S_T}, s{S_T+1}
    v_lshlrev_b32 v{T0+3}, 18, v{T0+3}
    v_lshl_add_u32 v{T0+3}, v{T0+2}, 4, v{T0+3}
    v_add_u32 v{T0+3}, s{S_T}, v{T0+3}
    s_waitcnt lgkmcnt(0)
    s_barrier""")
    st('agg in LDS')
    AF = XR
    def rd(t):
        for ks in range(4):
            a(f"ds_read_b128 {vr(AF+16*(t%2)+4*ks,4)}, v{T0} offset:{t*16*AGG_RS + ks*64}")
    def pack_store(t):
        d = ACC + 8 * t; p = RR + 4 * (t % 2)
        for j in range(4): a(f"v_cvt_pk_bf16_f32 v{p+j}, v{d+2*j}, v{d+2*j+1}")
        a(f"buffer_store_dwordx4 {vr(p,4)}, v{T0+3}, {sr(S_OUT,4)}, 0 offen {opt.outst}")
        if t < 4: a(f"v_add_u32 v{T0+3}, {4 << 18}, v{T0+3}")
    rd(0)
    for t in range(5):
        if t < 4: rd(t + 1)
        for ks in range(4):
            a(f"s_waitcnt lgkmcnt({(4 if t < 4 else 0) + 3 - ks})")
            for j in range(2):
                d = ACC + 8 * t + 4 * j
                a(f"v_mfma_f32_16x16x32_bf16 {vr(d,4)}, {vr(AF+16*(t%2)+4*ks,4)}, {vr(WMIX+16*j+4*ks,4)}, " + ("0" if ks == 0 else vr(d, 4)))
            if ks == 3 and t > 0: pack_store(t - 1)
    a("s_nop 7")
    pack_store(4)
    if opt.hold: st('end')
    if opt.stamps:
        st('stores issued')
        a("s_waitcnt vmcnt(0)")
        st('stores done')
        a(f"""s_lshl_b32 s10, s2, 3
        s_add_u32 s10, s10, s{S_WAVE}
        s_lshl_b32 s10, s10, 7
        s_add_u32 s10, s10, {WS_STAMP + 0x10000}
        v_mov_b32 v{T0}, s10
        s_sub_u32 s{S_ST+31}, s{S_END}, s{S_START}""")
        for k in range(32): a(f"v_mov_b32 v{XR+k}, s{S_ST+k}")
        for k in range(8): a(f"buffer_store_dwordx4 {vr(XR+4*k,4)}, v{T0}, {sr(S_WS,4)}, 0 offen offset:{16*k}")
    a("K2_END:\ns_endpgm")
    return a.text(), K2_VGPR, K2_SGPR

HEADER = open(__file__.rsplit("/", 1)[0] + "/header.txt").read() if "/" in __file__ else open("header.txt").read()

def generate(opt):
    k1, v1, s1 = bin_kernel(opt)
    k2, v2, s2 = main_kernel(opt)
    out = HEADER
    def spin(tag, ticks):
        return f"""    s_memrealtime s[90:91]
    s_waitcnt lgkmcnt(0)
    s_add_u32 s92, s90, {ticks}
SPIN_{tag}:
    s_memrealtime s[90:91]
    s_waitcnt lgkmcnt(0)
    s_cmp_lt_u32 s90, s92
    s_cbranch_scc1 SPIN_{tag}
"""
    if "d1" in opt.diag: k1 = k1.replace("bin_kernel:\n", "bin_kernel:\n" + spin("a", 400)); s1 = 100
    if "d2" in opt.diag: k2 = k2.replace("main_kernel:\n", "main_kernel:\n" + spin("b", 400))
    if "e0" in opt.diag: out += "; @launch kernel=nop_kernel grid=(1,1,1) block=(64,1,1) lds=0\n"
    out += f"; @launch kernel=bin_kernel grid=({NP + 5},1,1) block=(320,1,1) lds={K1_LDS}\n"
    out += f"; @launch kernel=main_kernel grid=(256,1,1) block=(512,1,1) lds={K2_LDS}\n"
    if "e1" in opt.diag: out += "; @launch kernel=nop_kernel grid=(1,1,1) block=(64,1,1) lds=0\n"
    out += '.amdgcn_target "amdgcn-amd-amdhsa--gfx950"\n.text\n'
    if "e" in opt.diag: out += ".globl nop_kernel\n.p2align 8\n.type nop_kernel,@function\nnop_kernel:\n    s_endpgm\n"
    for n, k in (("bin_kernel", k1), ("main_kernel", k2)):
        out += f".globl {n}\n.p2align 8\n.type {n},@function\n" + k
    out += kd("bin_kernel", v1, s1) + kd("main_kernel", v2, s2)
    if "e" in opt.diag: out += kd("nop_kernel", 8, 16)
    return out

def options(argv):
    p = argparse.ArgumentParser()
    p.add_argument("-o", default="/code/" + NAME + ".s")
    p.add_argument("--stamps", action="store_true")
    p.add_argument("--D", type=int, default=8)
    p.add_argument("--k1st", default="sc0 sc1")
    p.add_argument("--pf", type=int, default=0)
    p.add_argument("--dirmask", type=int, default=0x12)
    p.add_argument("--pf2", type=int, default=0)
    p.add_argument("--probe", default="")
    p.add_argument("--hold", default="")
    p.add_argument("--diag", default="")
    p.add_argument("--pfn", type=int, default=8)
    p.add_argument("--pfflag", default="")
    p.add_argument("--outst", default="sc0 sc1")
    return p.parse_args(argv)

if __name__ == "__main__":
    opt = options(sys.argv[1:])
    open(opt.o, "w").write(generate(opt))
    if opt.stamps: open(opt.o + ".names", "w").write(repr(STAMPS))
```

```python
import sys, argparse, os

NAME = "gather_scatter__tensor_product_equiv_tfn__graph"
KERN = NAME + "_kernel"
N, E, C = 10000, 320000, 128
NP, EP = 250, 1280
WS_KEY = 0
WS_REC = 0x140000
WS_CONST = 0x630000
WS_WMIX = 0x631000
WS_TAB = 0x640000
WS_END = WS_TAB + 256 * 2048
WS_STAMP = 0x700000
CAP = 1472

class Asm:
    def __init__(self): self.l = []
    def __call__(self, s):
        for line in s.strip("\n").split("\n"):
            line = line.strip()
            if not line: continue
            self.l.append(line if line.endswith(":") else "    " + line)
    def text(self): return "\n".join(self.l) + "\n"

def vr(a, n=1): return f"v{a}" if n == 1 else f"v[{a}:{a+n-1}]"
def sr(a, n=1): return f"s{a}" if n == 1 else f"s[{a}:{a+n-1}]"

SCAN_STEPS = ["row_shr:1 row_mask:0xf bank_mask:0xf bound_ctrl:0", "row_shr:2 row_mask:0xf bank_mask:0xf bound_ctrl:0",
              "row_shr:4 row_mask:0xf bank_mask:0xf bound_ctrl:0", "row_shr:8 row_mask:0xf bank_mask:0xf bound_ctrl:0",
              "row_bcast:15 row_mask:0xa bank_mask:0xf", "row_bcast:31 row_mask:0xc bank_mask:0xf"]
def scan64(a, *regs):
    for c in SCAN_STEPS:
        a("s_nop 1" if len(regs) == 1 else "s_nop 0")
        for v in regs: a(f"v_add_u32_dpp v{v}, v{v}, v{v} {c}")

NSB, HS = 12, 48
L_HIST = 0; L_INV = 40 * HS; L_WT = L_INV + 256
L_SENT = L_WT + 128
L_UREC = L_SENT + CAP * 4
L_LUT = 32768
L1_HIST = L_SENT; L1_BASE = L1_HIST + 1024; L1_SKEY = L1_BASE + 1024; L1_SREC = L1_SKEY + EP * 4
assert L_UREC + CAP * 16 <= L_LUT and L1_SREC + EP * 16 <= L_LUT and L1_BASE <= 4096
L_AGG = L_LUT; AGG_RS = 288
LDS_BYTES = L_LUT + 131072

V_L16 = 1
V_LEN, V_PRE, V_GID = 2, 3, 4
V_AENT, V_POS = 5, 6
V_SLOT4, V_SIG4, V_ONE = 7, 14, 15
T0 = 8
ACC = 16; XR = 64; TP = 96; UU = 112; RR = 128; TT = 136; WPK = 140; WTMP = 148
KEY = 164; ENT = 165; RECN = 168; EF = 172; CONST = 176; WMIX = 188
NVGPR = 220
PE, PO, CGB = CONST, CONST + 2, CONST + 4
LJ = 128
S_NODE = 4
S_X, S_WS, S_OUT = 12, 16, 20
S_BETA, S_WAVE, S_N, S_W0, S_NWIN, S_START, S_END, S_REM, S_REMB, S_OFF, S_MASK = range(24, 35)
S_SPIN = 35
S_M = 36
S_T = 42
S_K = 48
S_IN = 40
S_OD = 56
S_NLO, S_NHI, S_JOB, S_JCNT = 60, 61, 62, 63
S_L2E = 10
S_ST = 64
NSGPR = 100

STAMPS = []
def stamp(a, opt, name):
    if opt.probe == name: a("s_memrealtime s[96:97]\ns_waitcnt lgkmcnt(0)\ns_mov_b32 s93, s96")
    if not opt.stamps: return
    if name not in STAMPS: STAMPS.append(name)
    a(f"s_memrealtime s[96:97]\ns_waitcnt lgkmcnt(0)\ns_mov_b32 s{S_ST + STAMPS.index(name)}, s96")

def lut_jobs(a, tag, first, count):
    J, Ex, R, P = LJ, LJ + 8, LJ + 16, LJ + 24
    if first is not None: a(first)
    a(f"""s_mov_b32 s{S_JCNT}, {count}
    LUT_{tag}:
    s_lshl_b32 s3, s{S_JOB}, 25
    s_add_u32 s3, s3, 0x8000
    v_lshl_add_u32 v{J}, v{V_L16}, 15, s3""")
    for k in range(1, 8): a(f"v_add_u32 v{J+k}, {k << 16}, v{J}")
    for k in range(0, 8, 2): a(f"v_pk_mul_f32 {vr(Ex+k,2)}, {vr(J+k,2)}, {sr(S_L2E,2)}")
    for k in range(8): a(f"v_exp_f32 v{Ex+k}, v{Ex+k}")
    a(f"s_lshl_b32 s3, s{S_JOB}, 10")
    for k in range(0, 8, 2): a(f"v_pk_add_f32 {vr(R+k,2)}, {vr(Ex+k,2)}, 1.0 op_sel_hi:[1,0]")
    for k in range(8): a(f"v_rcp_f32 v{R+k}, v{R+k}")
    a(f"v_add_u32 v{P+8}, s3, v{V_L16}")
    for k in range(0, 8, 2): a(f"v_pk_mul_f32 {vr(J+k,2)}, {vr(J+k,2)}, {vr(R+k,2)}")
    a(f"v_add_u32 v{P+9}, 0x10000, v{P+8}")
    for k in range(0, 8, 2): a(f"v_pk_mul_f32 {vr(Ex+k,2)}, {vr(J+k,2)}, {vr(Ex+k,2)} neg_lo:[1,0] neg_hi:[1,0]")
    for k in range(4): a(f"v_cvt_pk_bf16_f32 v{P+k}, v{J+2*k}, v{J+2*k+1}")
    for k in range(4): a(f"v_cvt_pk_bf16_f32 v{P+4+k}, v{Ex+2*k}, v{Ex+2*k+1}")
    a(f"""ds_write_b128 v{P+8}, {vr(P,4)} offset:{L_LUT}
    ds_write_b128 v{P+9}, {vr(P+4,4)} offset:{L_LUT}
    s_add_u32 s{S_JOB}, s{S_JOB}, 1
    s_sub_u32 s{S_JCNT}, s{S_JCNT}, 1
    s_cmp_lg_u32 s{S_JCNT}, 0
    s_cbranch_scc1 LUT_{tag}""")

def phase1(a, opt):
    st = lambda n: stamp(a, opt, n)
    SRC, DST, YY, EFP, WRAD, CG, WMX = S_IN + 2, S_IN + 4, S_IN + 6, S_IN + 8, S_IN + 10, S_IN + 12, S_IN + 14
    WS = sr(S_WS, 2); FL = opt.k1st
    D_, S_, Y_, F_, B_, R_, H_, O_, TB = 64, 68, 72, 80, 88, 92, 96, 100, 108
    ja, jb, jc, jw = opt.jobs
    assert 5 * jw + 3 * (ja + jb + jc) == 48
    a(f"""s_cmp_ge_u32 s2, {NP}
    s_cbranch_scc1 AUX
    s_cmp_ge_u32 s{S_WAVE}, 5
    s_cbranch_scc1 HELP
    s_mul_i32 s3, s2, {EP * 4}
    v_lshl_add_u32 v{T0}, v0, 4, s3
    v_lshlrev_b32 v{T0+1}, 1, v{T0}
    s_waitcnt lgkmcnt(0)""")
    st('kernargs')
    a(f"""global_load_dwordx4 {vr(D_,4)}, v{T0}, {sr(DST,2)}
    global_load_dwordx4 {vr(S_,4)}, v{T0}, {sr(SRC,2)}
    global_load_dwordx4 {vr(Y_,4)}, v{T0+1}, {sr(YY,2)}
    global_load_dwordx4 {vr(Y_+4,4)}, v{T0+1}, {sr(YY,2)} offset:16
    global_load_dwordx4 {vr(F_,4)}, v{T0+1}, {sr(EFP,2)}
    global_load_dwordx4 {vr(F_+4,4)}, v{T0+1}, {sr(EFP,2)} offset:16
    s_barrier""")
    lut_jobs(a, "W", f"s_mul_i32 s{S_JOB}, s{S_WAVE}, {jw}", jw)
    st('jobs A')
    a("s_waitcnt vmcnt(5)")
    st('dst arrived')
    for k in range(4):
        a(f"""v_and_b32 v{B_+k}, 0xff, v{D_+k}
              v_lshlrev_b32 v{B_+k}, 2, v{B_+k}
              ds_add_rtn_u32 v{R_+k}, v{B_+k}, v{V_ONE} offset:{L1_HIST}""")
    a("s_waitcnt vmcnt(4)")
    for k in range(4):
        a(f"""v_lshrrev_b32 v{D_+k}, 8, v{D_+k}
              v_lshl_or_b32 v{D_+k}, v{S_+k}, 10, v{D_+k}""")
    a(f"""s_waitcnt lgkmcnt(0)
    s_barrier
    ds_read_b128 {vr(H_,4)}, v{V_L16} offset:{L1_HIST}
    s_waitcnt lgkmcnt(0)
    v_add_u32 v{T0+2}, v{H_}, v{H_+1}
    v_add3_u32 v{T0+2}, v{T0+2}, v{H_+2}, v{H_+3}
    v_mov_b32 v{T0+3}, v{T0+2}""")
    scan64(a, T0 + 3)
    a(f"""v_sub_u32 v{O_}, v{T0+3}, v{T0+2}
    v_add_u32 v{O_+1}, v{O_}, v{H_}
    v_add_u32 v{O_+2}, v{O_+1}, v{H_+1}
    v_add_u32 v{O_+3}, v{O_+2}, v{H_+2}
    ds_write_b128 v{V_L16}, {vr(O_,4)} offset:{L1_BASE}""")
    for k in range(4): a(f"v_lshl_or_b32 v{TB+2*k}, v{H_+k}, 11, v{O_+k}")
    for k in range(4): a(f"ds_read_b32 v{H_+k}, v{B_+k} offset:{L1_BASE}")
    for k in range(4):
        a(f"""s_waitcnt lgkmcnt({3-k})
              v_add_u32 v{R_+k}, v{R_+k}, v{H_+k}
              v_lshlrev_b32 v{B_+k}, 2, v{R_+k}
              v_lshlrev_b32 v{R_+k}, 4, v{R_+k}""")
    for k in range(4): a(f"ds_write_b32 v{B_+k}, v{D_+k} offset:{L1_SKEY}")
    a("s_waitcnt vmcnt(0)")
    for k in range(4):
        a(f"""v_add_u32 v{R_+k}, {L1_SREC}, v{R_+k}
              ds_write2_b64 v{R_+k}, {vr(Y_+2*k,2)}, {vr(F_+2*k,2)} offset0:0 offset1:1""")
    a(f"""v_lshlrev_b32 v{T0+2}, 4, v0
    s_mul_i32 s3, s2, {EP * 16}
    s_add_u32 s3, s3, {WS_REC}
    v_add_u32 v{T0+1}, s3, v{T0+2}
    s_waitcnt lgkmcnt(0)
    s_barrier""")
    st('binned in LDS')
    a(f"ds_read_b128 {vr(D_,4)}, v{T0+2} offset:{L1_SKEY}")
    for k in range(4): a(f"ds_read_b128 {vr(S_+4*k,4)}, v{T0+2} offset:{L1_SREC + k * 320 * 16}")
    a(f"s_waitcnt lgkmcnt(4)\nglobal_store_dwordx4 v{T0}, {vr(D_,4)}, {WS} {FL}")
    for k in range(4):
        a(f"s_waitcnt lgkmcnt({3-k})\nglobal_store_dwordx4 v{T0+1}, {vr(S_+4*k,4)}, {WS} {FL}")
        if k < 3: a(f"v_add_u32 v{T0+1}, {320*16}, v{T0+1}")
    a("s_branch PUBLISH")
    a(f"""HELP:
    s_waitcnt lgkmcnt(0)
    s_cmp_lg_u32 s2, 0
    s_cbranch_scc1 NO_NONCE
    s_cmp_lg_u32 s{S_WAVE}, 7
    s_cbranch_scc1 NO_NONCE
    s_memrealtime s[4:5]
    v_mov_b32 v{T0}, 0
    s_waitcnt lgkmcnt(0)
    s_and_b32 s5, s5, 0x3ff
    s_bitset1_b32 s5, 31
    v_mov_b32 v{T0+2}, s4
    v_mov_b32 v{T0+3}, s5
    s_mov_b64 exec, 1
    global_store_dwordx2 v{T0}, {vr(T0+2,2)}, {sr(S_OD+2,2)} sc0 sc1
    s_mov_b64 exec, -1
NO_NONCE:
    s_barrier""")
    lut_jobs(a, "A", f"s_mul_i32 s{S_JOB}, s{S_WAVE}, {ja + jb + jc}\ns_sub_u32 s{S_JOB}, s{S_JOB}, {5 * (ja + jb + jc) - 5 * jw}", ja)
    st('jobs A')
    a("s_barrier")
    lut_jobs(a, "B", None, jb)
    a("s_barrier")
    lut_jobs(a, "C", None, jc)
    a("s_branch PUBLISH")
    a(f"""AUX:
    v_lshrrev_b32 v{T0}, 4, v{V_L16}                ; lane
    s_waitcnt lgkmcnt(0)
    s_cmp_ge_u32 s2, {NP + 4}
    s_cbranch_scc1 AUX_CONST
    s_cmp_ge_u32 s{S_WAVE}, 4
    s_cbranch_scc1 AUX_DONE
    s_sub_u32 s4, s2, {NP}
    s_lshl_b32 s5, s{S_WAVE}, 13
    s_lshl_b32 s6, s4, 6
    s_add_u32 s5, s5, s6
    v_lshrrev_b32 v{T0+1}, 4, v{T0}
    v_lshlrev_b32 v{T0+1}, 11, v{T0+1}
    v_and_b32 v{T0+2}, 15, v{T0}
    v_lshl_add_u32 v{T0+1}, v{T0+2}, 2, v{T0+1}
    v_add_u32 v{T0+1}, s5, v{T0+1}
    s_lshl_b32 s5, s4, 13
    s_lshl_b32 s6, s{S_WAVE}, 10
    s_add_u32 s5, s5, s6
    s_add_u32 s5, s5, {WS_WMIX}
    v_add_u32 v{T0+2}, s5, v{V_L16}
    s_mov_b32 s4, 0x05040100
    s_mov_b32 s5, 0x07060302""")
    for t in range(8): a(f"global_load_dword v{64+t}, v{T0+1}, {sr(WMX,2)} offset:{t*256}")
    a("s_waitcnt vmcnt(0)")
    for u in range(4):
        a(f"v_perm_b32 v{72+u}, v{65+2*u}, v{64+2*u}, s4\nv_perm_b32 v{76+u}, v{65+2*u}, v{64+2*u}, s5")
    a(f"""global_store_dwordx4 v{T0+2}, v[72:75], {WS} {FL}
    v_add_u32 v{T0+2}, 4096, v{T0+2}
    global_store_dwordx4 v{T0+2}, v[76:79], {WS} {FL}
    s_branch AUX_DONE
AUX_CONST:
    s_cmp_lg_u32 s2, {NP + 4}
    s_cbranch_scc1 AUX_DONE
    s_cmp_lg_u32 s{S_WAVE}, 0
    s_cbranch_scc1 AUX_DONE
    v_lshlrev_b32 v{T0+1}, 2, v{T0}
    v_and_b32 v{T0+2}, 3, v{T0}
    v_lshlrev_b32 v{T0+2}, 1, v{T0+2}
    v_add_u32 v{T0+3}, {WS_CONST}, v{V_L16}
    s_mov_b32 s4, 0x05040100
    s_mov_b32 s5, 0x07060302""")
    for k in range(4): a(f"global_load_dword v{64+k}, v{T0+1}, {sr(WRAD,2)} offset:{k*256}")
    for i in range(4):
        for f in range(4): a(f"global_load_ushort v{72+4*i+f}, v{T0+2}, {sr(CG,2)} offset:{i*32+f*8}")
    a("s_waitcnt vmcnt(0)")
    for u in range(2):
        a(f"v_perm_b32 v{68+u}, v{65+2*u}, v{64+2*u}, s4\nv_perm_b32 v{70+u}, v{65+2*u}, v{64+2*u}, s5")
    for i in range(4):
        a(f"v_lshl_or_b32 v{88+2*i}, v{73+4*i}, 16, v{72+4*i}\nv_lshl_or_b32 v{89+2*i}, v{75+4*i}, 16, v{74+4*i}")
    a(f"""global_store_dwordx4 v{T0+3}, v[68:71], {WS} {FL}
    global_store_dwordx4 v{T0+3}, v[88:91], {WS} offset:1024 {FL}
    global_store_dwordx4 v{T0+3}, v[92:95], {WS} offset:2048 {FL}
AUX_DONE:""")
    for k in range(4): a(f"v_mov_b32 v{TB+2*k}, 0")
    lut_jobs(a, "X", f"s_mul_i32 s{S_JOB}, s{S_WAVE}, 6", 6)
    a(f"""PUBLISH:
    v_mov_b32 v{T0+2}, 0
NONCE_POLL:
    s_sub_u32 s{S_SPIN}, s{S_SPIN}, 1
    s_cbranch_scc1 END
    global_load_dwordx2 {vr(T0+4,2)}, v{T0+2}, {sr(S_OD+2,2)} sc1
    s_waitcnt vmcnt(0)
    v_readfirstlane_b32 s{S_NHI}, v{T0+5}
    v_readfirstlane_b32 s{S_NLO}, v{T0+4}
    s_bitcmp1_b32 s{S_NHI}, 31
    s_cbranch_scc0 NONCE_POLL
    s_lshl_b32 s{S_NHI}, s{S_NHI}, 22
    s_waitcnt lgkmcnt(0)""")
    st('stores done')
    a(f"""s_barrier
    s_cmp_lg_u32 s{S_WAVE}, 0
    s_cbranch_scc1 PUBLISHED""")
    for k in range(4):
        a(f"v_or_b32 v{TB+2*k}, s{S_NHI}, v{TB+2*k}\nv_mov_b32 v{TB+2*k+1}, s{S_NLO}")
    a(f"""s_lshl_b32 s3, s2, 11
    s_add_u32 s3, s3, {WS_TAB}
    v_lshl_add_u32 v{T0+2}, v{V_L16}, 1, s3
    global_store_dwordx4 v{T0+2}, {vr(TB,4)}, {WS} sc0 sc1
    global_store_dwordx4 v{T0+2}, {vr(TB+4,4)}, {WS} offset:16 sc0 sc1
PUBLISHED:""")
    st('published')
    lut_jobs(a, "D", f"s_lshl_b32 s{S_JOB}, s{S_WAVE}, 1\ns_add_u32 s{S_JOB}, s{S_JOB}, 48", 2)
    a(f"""s_cmp_lg_u32 s{S_WAVE}, 7
    s_cbranch_scc1 LUT_DONE
    v_mov_b32 v{T0+2}, {0x7f80 * 2}
    v_mov_b32 v{T0+3}, 0x7f80
    ds_write_b16 v{T0+2}, v{T0+3} offset:{L_LUT}
LUT_DONE:""")
    st('jobs D')

def mfma4(d, a_, b, c, blk=None):
    cc = "0" if c is None else vr(c, 4)
    return f"v_mfma_f32_4x4x4_16b_bf16 {vr(d,4)}, {vr(a_,2)}, {vr(b,2)}, {cc}" + ("" if blk is None else f" cbsz:4 abid:{blk}")
def p_mfma(g, odd):
    return mfma4(UU + 8 * (g % 2) + 4 * odd, EF, PO if odd else PE, None, g % 16)
def t_mfma(e, odd):
    return mfma4(TP + 8 * (e % 2) + 4 * odd, WPK + 2 * (e % 4), XR + 4 * (e % 8) + 2 * odd, None, (e % 64) // 4)
def act_regs(eb, odd):
    return UU + 8 * ((eb // 4) % 2) + 4 * odd + eb % 4, RR + 4 * ((eb // 2) % 2) + 2 * odd
def act_addr(t, u):
    return f"v_lshlrev_b32_sdwa v{t}, v{V_ONE}, v{u} dst_sel:DWORD dst_unused:UNUSED_PAD src0_sel:DWORD src1_sel:WORD_1"
def act_read(r, t): return f"ds_read_u16_d16_hi v{r}, v{t} offset:{L_LUT}"
def fma4(a, q):
    h = q % 2
    a(f"s_set_gpr_idx_on s{S_K + q % 16}, 0xc")
    for odd in range(2):
        r = RR + 4 * ((q // 2) % 2) + 2 * odd
        for o in (0, 2):
            acc = ACC + 4 * odd + o; tp = TP + 8 * (q % 2) + 4 * odd + o
            a(f"v_pk_fma_f32 {vr(acc,2)}, {vr(r,2)}, {vr(tp,2)}, {vr(acc,2)} op_sel:[{h},0,0] op_sel_hi:[{h},1,1]")
    a("s_set_gpr_idx_off")
def meta_read_entry(a): a(f"ds_read_b32 v{ENT}, v{V_AENT}")
def meta_fix_entry(a):
    a(f"""v_cmp_gt_u32 vcc, s{S_END}, v{V_POS}
          v_add_u32 v{V_POS}, 64, v{V_POS}
          v_add_u32 v{V_AENT}, 256, v{V_AENT}
          v_cndmask_b32 v{ENT}, 40, v{ENT}, vcc
          v_lshrrev_b32 v{T0}, 21, v{ENT}
          v_lshlrev_b32 v{T0}, 4, v{T0}
          v_lshlrev_b32 v{T0+1}, 3, v{ENT}
          ds_read_b128 {vr(RECN,4)}, v{T0} offset:{L_UREC}
          v_and_b32 v{T0+1}, 0xfffc00, v{T0+1}
          v_and_or_b32 v{ENT}, v{ENT}, 56, v{T0+1}""")
def w_mfma(i): return mfma4(WTMP + 4 * i, RECN, CGB + 2 * i, None)
def w_cvt(a, m):
    a(f"""v_cvt_pk_bf16_f32 v{WPK+2*m}, v{WTMP+m}, v{WTMP+4+m}
          v_cvt_pk_bf16_f32 v{WPK+2*m+1}, v{WTMP+8+m}, v{WTMP+12+m}""")

def body(a, opt, loads):
    D = opt.D; tag = "A" if loads else "B"
    for q in range(64):
        if q % 4 == 0:
            a(f"{tag}_{q}:")
            if loads: a(f"s_sub_u32 s{S_REM}, s{S_REM}, 4\ns_cbranch_scc1 B_{q}")
            else:     a(f"s_sub_u32 s{S_REMB}, s{S_REMB}, 4\ns_cbranch_scc1 MAIN_DONE")
        eb = q + 2 - q % 2; odd = q % 2
        u, r = act_regs(eb, odd); t = TT + 2 * odd
        g, ur = (q + 6) // 4, (q + 6) % 4
        if ur % 2 == 0: a(p_mfma(g, ur // 2))
        elif 40 <= q < 48: a(w_mfma((q - 40) // 2))
        a(act_addr(t, u))
        a(f"s_waitcnt vmcnt({D - 2 if loads else max(0, D - (6 if D == 8 else 2) - q % 4)})")
        a(t_mfma(q + 1, 0))
        if loads: a(f"v_readlane_b32 s{S_K + (q + D) % 16}, v{KEY if q + D < 64 else ENT}, {(q + D) % 64}")
        else:     a("s_nop 0")
        a(t_mfma(q + 1, 1))
        a(act_addr(t + 1, u + 1))
        a(act_read(r, t)); a(act_read(r + 1, t + 1))
        if q >= 60: w_cvt(a, q - 60)
        if loads:
            a(f"s_and_b32 s{S_OFF}, s{S_K + (q + D) % 16}, s{S_MASK}")
            a(f"buffer_load_dwordx4 {vr(XR + 4 * ((q + D) % 8), 4)}, v{V_L16}, {sr(S_X,4)}, s{S_OFF} offen")
        if q % 2 == 0: a("s_waitcnt lgkmcnt(2)")
        fma4(a, q)
        if q == 8: meta_read_entry(a)
        if q == 12: meta_fix_entry(a)
        if q == 57: a(f"v_mov_b32 v{EF}, v{RECN+2}\nv_mov_b32 v{EF+1}, v{RECN+3}\ns_nop 1")
        if q == 63: a(f"v_mov_b32 v{KEY}, v{ENT}")
    a(f"s_branch {tag}_0")

def zero_hist(a):
    a(f"""v_lshlrev_b32 v{T0+3}, 2, v0
    v_mov_b32 v{T0+4}, 0
    v_cmp_gt_u32 vcc, {40 * HS // 4}, v0
    s_and_saveexec_b64 {sr(S_T,2)}, vcc
    ds_write_b32 v{T0+3}, v{T0+4} offset:{L_HIST}
    s_mov_b64 exec, {sr(S_T,2)}""")

def kernel(opt):
    a = Asm(); D = opt.D
    st = lambda n: stamp(a, opt, n)
    a(f"""{KERN}:
    s_cmp_ge_u32 s2, 256
    s_cbranch_scc1 END""")
    if opt.probe: a("s_memrealtime s[96:97]\ns_waitcnt lgkmcnt(0)\ns_mov_b32 s92, s96")
    if opt.stamps:
        for k in range(32): a(f"s_mov_b32 s{S_ST+k}, 0")
    st('start')
    a(f"""s_load_dwordx16 {sr(S_IN,16)}, s[0:1], 0
    s_load_dwordx4 {sr(S_OD,4)}, s[0:1], 64
    s_load_dwordx2 {sr(S_WS,2)}, s[0:1], 80
    s_load_dwordx2 {sr(S_X,2)}, s[0:1], 0
    s_load_dwordx2 {sr(S_OUT,2)}, s[0:1], 64
    s_and_b32 s4, s2, 7
    s_lshl_b32 s4, s4, 5
    s_lshr_b32 s5, s2, 3
    s_or_b32 s{S_BETA}, s4, s5
    v_lshrrev_b32 v{T0}, 6, v0
    v_and_b32 v{T0+1}, 63, v0
    v_lshlrev_b32 v{V_L16}, 4, v{T0+1}
    v_readfirstlane_b32 s{S_WAVE}, v{T0}
    v_lshlrev_b32 v{T0+3}, 3, v0
    v_mov_b32 v{T0+4}, 0
    v_mov_b32 v{T0+5}, 0
    ds_write_b64 v{T0+3}, {vr(T0+4,2)}
    v_mov_b32 v{V_ONE}, 1
    s_mov_b32 s{S_X+2}, {N * 1024}
    s_mov_b32 s{S_X+3}, 0x20000
    s_mov_b32 s{S_WS+2}, {WS_END if not opt.stamps else WS_STAMP + 0x80000}
    s_mov_b32 s{S_WS+3}, 0x20000
    s_mov_b32 s{S_OUT+2}, {N * 1024}
    s_mov_b32 s{S_OUT+3}, 0x20000
    s_mov_b32 s{S_MASK}, 0xfffffc00
    s_mov_b32 s{S_W0}, 0
    s_mov_b32 s{S_L2E}, 0xbfb8aa3b
    s_mov_b32 s{S_L2E+1}, 0xbfb8aa3b
    v_mul_u32_u24 v{V_SIG4}, 52, v{T0+1}
    v_lshrrev_b32 v{V_SIG4}, 8, v{V_SIG4}            ; lane / 5
    v_mul_u32_u24 v{V_SLOT4}, 5, v{V_SIG4}
    v_sub_u32 v{V_SLOT4}, v{T0+1}, v{V_SLOT4}        ; lane % 5
    v_lshlrev_b32 v{V_SIG4}, 2, v{V_SIG4}
    v_lshlrev_b32 v{V_SLOT4}, 2, v{V_SLOT4}
    s_mov_b32 s{S_SPIN}, {1 << 21}""")
    for k in range(48): a(f"v_mov_b32 v{ACC+k}, 0")
    phase1(a, opt)
    a(f"""v_lshrrev_b32 v{V_GID}, 1, v0
    s_lshl_b32 s3, s{S_BETA}, 3
    s_add_u32 s3, s3, {WS_TAB}
    v_lshl_add_u32 v{T0+2}, v{V_GID}, 11, s3
    s_lshr_b32 s{S_NHI}, s{S_NHI}, 22
TAB_POLL:
    s_sub_u32 s{S_SPIN}, s{S_SPIN}, 1
    s_cbranch_scc1 END
    buffer_load_dwordx2 {vr(V_LEN,2)}, v{T0+2}, {sr(S_WS,4)}, 0 offen sc1
    s_waitcnt vmcnt(0)
    v_lshrrev_b32 v{T0+3}, 22, v{V_LEN}
    v_cmp_ne_u32 vcc, s{S_NLO}, v{V_PRE}
    v_cmp_ne_u32 {sr(S_T,2)}, s{S_NHI}, v{T0+3}
    s_or_b64 vcc, vcc, {sr(S_T,2)}
    s_and_b64 exec, exec, vcc
    s_cbranch_execnz TAB_POLL
    s_mov_b64 exec, -1""")
    st('tab arrived')
    a(f"""v_mul_u32_u24 v{V_GID}, {EP}, v{V_GID}
    v_and_b32 v{T0+4}, 1, v0
    v_cmp_eq_u32 {sr(S_T,2)}, 1, v{T0+4}
    v_and_b32 v{T0+5}, 0x7ff, v{V_LEN}
    v_bfe_u32 v{V_LEN}, v{V_LEN}, 11, 11
    v_lshrrev_b32 v{T0+1}, 4, v{V_L16}                ; lane
    v_add_u32 v{V_GID}, v{V_GID}, v{T0+5}
    v_cndmask_b32 v{T0+5}, 0, v{V_LEN}, {sr(S_T,2)}
    v_mov_b32 v{V_PRE}, v{T0+5}""")
    scan64(a, V_PRE)
    a(f"""s_nop 0
    v_readlane_b32 s{S_T+2}, v{V_PRE}, 63
    v_sub_u32 v{V_PRE}, v{V_PRE}, v{T0+5}
    v_cmp_lt_u32 vcc, s{S_WAVE}, v{T0+1}
    v_cmp_gt_u32 {sr(S_T,2)}, 9, v{T0+1}
    v_lshlrev_b32 v{T0+2}, 2, v{T0+1}
    v_mov_b32 v{T0+3}, s{S_T+2}
    s_and_b64 vcc, vcc, {sr(S_T,2)}
    s_and_saveexec_b64 {sr(S_T,2)}, vcc
    ds_add_u32 v{T0+2}, v{T0+3} offset:{L_WT}
    s_mov_b64 exec, {sr(S_T,2)}
    s_lshl_b32 s3, s{S_WAVE}, 2
    v_mov_b32 v{T0+2}, s3
    v_mov_b32 v{T0+3}, 32
    s_waitcnt lgkmcnt(0)
    s_barrier
    ds_read_b32 v{T0+2}, v{T0+2} offset:{L_WT}
    ds_read_b32 v{T0+3}, v{T0+3} offset:{L_WT}
    s_waitcnt lgkmcnt(0)
    v_add_u32 v{V_PRE}, v{V_PRE}, v{T0+2}
    v_readfirstlane_b32 s{S_N}, v{T0+3}""")
    st('prefix done')
    a(f"""ROUND:
    v_and_b32 v{T0}, 1, v0
    v_subrev_u32 v{T0+1}, s{S_W0}, v{V_PRE}
    v_add_u32 v{T0+1}, v{T0+1}, v{T0}
    v_add_u32 v{T0+2}, v{V_GID}, v{T0}
    s_mov_b32 s3, {CAP}
EXPAND:
    v_cmp_lt_u32 vcc, v{T0}, v{V_LEN}
    s_and_b64 exec, exec, vcc
    s_cbranch_execz EXPAND_DONE
    v_cmp_gt_u32 vcc, s3, v{T0+1}
    v_lshlrev_b32 v{T0+3}, 2, v{T0+1}
    s_and_saveexec_b64 {sr(S_T,2)}, vcc
    ds_write_b32 v{T0+3}, v{T0+2} offset:{L_SENT}
    s_mov_b64 exec, {sr(S_T,2)}
    v_add_u32 v{T0}, 2, v{T0}
    v_add_u32 v{T0+1}, 2, v{T0+1}
    v_add_u32 v{T0+2}, 2, v{T0+2}
    s_branch EXPAND
EXPAND_DONE:
    s_mov_b64 exec, -1
    s_sub_u32 s{S_NWIN}, s{S_N}, s{S_W0}
    s_min_u32 s{S_NWIN}, s{S_NWIN}, {CAP}
    v_lshlrev_b32 v{T0}, 2, v0""")
    for i in range(3):
        a(f"""v_add_u32 v{T0+1}, {512*i}, v0
              v_cmp_gt_u32 {sr(S_M+2*i,2)}, s{S_NWIN}, v{T0+1}""")
    a("s_waitcnt lgkmcnt(0)\ns_barrier")
    st('list built')
    G = XR
    for i in range(3): a(f"ds_read_b32 v{G+i}, v{T0} offset:{L_SENT + 2048*i}")
    a(f"""s_lshl_b32 s10, s{S_WAVE}, 10
    s_add_u32 s10, s10, {L_UREC}
    s_mov_b32 s11, {WS_REC}
    s_and_b32 s3, s{S_WAVE}, 3
    s_lshl_b32 s3, s3, 13
    s_add_u32 s3, s3, {WS_WMIX}
    s_mov_b32 s{S_T+3}, {WS_CONST}
    s_mov_b32 s{S_T+2}, 5033                          ; 12 * 2^32 / (10000 * 1024)
    s_waitcnt lgkmcnt(0)""")
    for i in range(3):
        a(f"v_lshlrev_b32 v{G+4+i}, 2, v{G+i}\nv_lshlrev_b32 v{G+i}, 4, v{G+i}")
    a(f"""s_mov_b64 exec, {sr(S_M+4,2)}
    s_cbranch_execz SKIP3
    buffer_load_dword v{G+6}, v{G+6}, {sr(S_WS,4)}, 0 offen sc1
SKIP3:""")
    for i in range(2):
        a(f"s_mov_b64 exec, {sr(S_M+2*i,2)}\nbuffer_load_dword v{G+4+i}, v{G+4+i}, {sr(S_WS,4)}, 0 offen sc1")
    a("s_mov_b64 exec, -1")
    nw = opt.wearly
    def wload(k):
        if k < 3: a(f"buffer_load_dwordx4 {vr(CONST+4*k,4)}, v{V_L16}, {sr(S_WS,4)}, s{S_T+3} offen offset:{k*1024} sc1")
        else:
            k -= 3
            if k == 4: a("s_add_u32 s3, s3, 4096")
            a(f"buffer_load_dwordx4 {vr(WMIX+4*k,4)}, v{V_L16}, {sr(S_WS,4)}, s3 offen offset:{(k%4)*1024} sc1")
    for k in range(nw): wload(k)
    a(f"s_waitcnt vmcnt({nw})")
    st('keys arrived')
    for i in range(2):
        a(f"""s_add_u32 m0, s10, {i*8192}
              s_mov_b64 exec, {sr(S_M+2*i,2)}
              buffer_load_dwordx4 v{G+i}, {sr(S_WS,4)}, s11 offen sc1 lds""")
    a(f"""s_add_u32 m0, s10, {2*8192}
    s_mov_b64 exec, {sr(S_M+4,2)}
    s_cbranch_execz SKIP3R
    buffer_load_dwordx4 v{G+2}, {sr(S_WS,4)}, s11 offen sc1 lds
SKIP3R:
    s_mov_b64 exec, -1""")
    for i in range(3):
        a(f"""v_mul_hi_u32 v{T0+1}, s{S_T+2}, v{G+4+i}
              v_and_b32 v{G+8+i}, 63, v{G+4+i}
              v_mul_u32_u24 v{G+8+i}, {HS}, v{G+8+i}
              v_lshl_add_u32 v{G+8+i}, v{T0+1}, 2, v{G+8+i}""")
    for i in range(3):
        a(f"s_mov_b64 exec, {sr(S_M+2*i,2)}\nds_add_rtn_u32 v{G+12+i}, v{G+8+i}, v{V_ONE} offset:{L_HIST}")
    a("s_mov_b64 exec, -1")
    for i in range(3):
        a(f"""v_add_u32 v{T0+1}, {512*i}, v0
              v_lshlrev_b32 v{T0+1}, 21, v{T0+1}
              v_lshrrev_b32 v{G+16+i}, 10, v{G+4+i}
              v_lshl_or_b32 v{G+16+i}, v{G+16+i}, 7, v{T0+1}""")
    H = G + 20
    a(f"""v_lshrrev_b32 v{T0}, 4, v{V_L16}              ; lane
    v_min_u32 v{T0+1}, 39, v{T0}
    v_mul_u32_u24 v{T0+1}, {HS}, v{T0+1}
    v_cmp_gt_u32 {sr(S_T+4,2)}, 40, v{T0}
    v_sub_u32 v{T0+2}, 63, v{T0}
    s_mul_i32 s10, s{S_WAVE}, 5
    s_waitcnt lgkmcnt(0)
    s_barrier""")
    st('hist done')
    for k in range(3): a(f"ds_read_b128 {vr(H+4*k,4)}, v{T0+1} offset:{L_HIST + 16*k}")
    a(f"""s_waitcnt lgkmcnt(1)
    v_add3_u32 v{H}, v{H}, v{H+1}, v{H+2}
    v_add3_u32 v{H+3}, v{H+3}, v{H+4}, v{H+5}
    v_add3_u32 v{H}, v{H}, v{H+6}, v{H+7}
    s_waitcnt lgkmcnt(0)
    v_add3_u32 v{H+3}, v{H+3}, v{H+8}, v{H+9}
    v_add3_u32 v{H}, v{H}, v{H+10}, v{H+11}
    v_add_u32 v{H}, v{H}, v{H+3}
    v_lshl_or_b32 v{H+1}, v{H}, 6, v{T0+2}
    v_cndmask_b32 v{H+1}, 0, v{H+1}, {sr(S_T+4,2)}
    s_cmp_lg_u32 s{S_W0}, 0
    s_cbranch_scc1 DEALT""")
    for k in range(5):
        a(f"v_readlane_b32 s{S_NODE+k}, v{H+1}, s10")
        if k < 4: a("s_add_u32 s10, s10, 1")
    for k in range(5): a(f"v_cmp_lt_u32 {sr(S_K+2*k,2)}, s{S_NODE+k}, v{H+1}")
    for k in range(5): a(f"s_bcnt1_i32_b64 s{S_NODE+k}, {sr(S_K+2*k,2)}")
    for k in range(5): a(f"v_writelane_b32 v{T0+1}, s{S_NODE+k}, {k}")
    a(f"""s_sub_u32 s10, s10, 4
    v_add_u32 v{T0+2}, s10, v{T0}
    v_lshrrev_b32 v{T0+3}, 3, v{T0+1}
    v_and_b32 v{T0+1}, 7, v{T0+1}
    v_lshrrev_b32 v{T0+4}, v{T0+3}, {opt.dirmask}
    v_and_b32 v{T0+4}, 1, v{T0+4}
    v_mul_u32_u24 v{T0+4}, 7, v{T0+4}
    v_xor_b32 v{T0+1}, v{T0+1}, v{T0+4}               ; wave
    v_mad_u32_u24 v{T0+1}, v{T0+1}, 5, v{T0+3}
    v_lshlrev_b32 v{T0+1}, 2, v{T0+1}
    s_mov_b64 exec, 0x1f
    ds_write_b32 v{T0+1}, v{T0+2} offset:{L_INV}
    s_mov_b64 exec, -1
DEALT:
    s_lshl_b32 s11, s10, 2
    v_add_u32 v{T0+1}, s11, v{V_SLOT4}
    v_lshlrev_b32 v{T0+5}, 2, v{T0}
    v_cmp_gt_u32 {sr(S_T,2)}, 60, v{T0}
    s_waitcnt lgkmcnt(0)
    s_barrier""")
    st('dealt')
    a(f"""ds_read_b32 v{T0+1}, v{T0+1} offset:{L_INV}
    ds_read_b32 v{T0+5}, v{T0+5} offset:{L_INV}
    v_lshlrev_b32 v{T0+4}, 17, v{V_SLOT4}             ; slot << 19
    s_waitcnt lgkmcnt(1)
    v_mul_u32_u24 v{T0+2}, {HS}, v{T0+1}
    v_add_u32 v{T0+2}, v{T0+2}, v{V_SIG4}
    ds_read_b32 v{T0+3}, v{T0+2} offset:{L_HIST}
    s_waitcnt lgkmcnt(1)
    v_lshlrev_b32 v{T0+5}, 2, v{T0+5}
    ds_bpermute_b32 v{H+2}, v{T0+5}, v{H}""")
    for k in range(5): a(f"v_readlane_b32 s{S_NODE+k}, v{T0+1}, {k}")
    a(f"""s_waitcnt lgkmcnt(0)
    v_cndmask_b32 v{T0+3}, 0, v{T0+3}, {sr(S_T,2)}
    v_cndmask_b32 v{H+2}, 0, v{H+2}, {sr(S_T+4,2)}
    v_sub_u32 v{T0+4}, v{T0+4}, v{T0+3}
    v_mov_b32 v{H+3}, v{H+2}""")
    scan64(a, T0 + 3, H + 3)
    a(f"""v_sub_u32 v{H+3}, v{H+3}, v{H+2}
    v_add_u32 v{T0+4}, v{T0+4}, v{T0+3}
    v_readlane_b32 s{S_START}, v{H+3}, s10
    v_readlane_b32 s{S_END}, v{T0+3}, 63
    s_nop 0
    v_add_u32 v{T0+4}, s{S_START}, v{T0+4}
    s_mov_b64 exec, {sr(S_T,2)}
    ds_write_b32 v{T0+2}, v{T0+4} offset:{L_HIST}
    s_mov_b64 exec, -1
    v_add_u32 v{V_POS}, s{S_START}, v{T0}
    v_lshlrev_b32 v{V_AENT}, 2, v{V_POS}
    v_add_u32 v{V_AENT}, {L_SENT}, v{V_AENT}
    s_add_u32 s10, s{S_END}, 3
    s_and_b32 s10, s10, -4
    s_min_u32 s{S_REMB}, s10, {8 if D == 8 else 4}
    s_sub_u32 s{S_REM}, s10, s{S_REMB}
    s_add_u32 s{S_END}, s{S_END}, s{S_START}
    s_waitcnt lgkmcnt(0)
    s_barrier""")
    st('bases')
    for i in range(3): a(f"ds_read_b32 v{G+8+i}, v{G+8+i} offset:{L_HIST}")
    for k in range(nw, 11): wload(k)
    for i in range(3):
        a(f"""s_waitcnt lgkmcnt({2-i})
              v_lshrrev_b32 v{T0+1}, 16, v{G+8+i}
              v_and_b32 v{G+8+i}, 0xffff, v{G+8+i}
              v_or_b32 v{G+16+i}, v{G+16+i}, v{T0+1}
              v_add_lshl_u32 v{G+8+i}, v{G+8+i}, v{G+12+i}, 2""")
    for i in range(3):
        a(f"""s_mov_b64 exec, {sr(S_M+2*i,2)}
              ds_write_b32 v{G+8+i}, v{G+16+i} offset:{L_SENT}""")
    a("s_mov_b64 exec, -1\ns_waitcnt lgkmcnt(0)")
    st('scattered')
    a(f"s_waitcnt vmcnt({11 - nw})")
    st('recs landed')
    a("s_barrier")
    st('sorted')
    if opt.stamps: a("s_memtime s[98:99]\ns_waitcnt lgkmcnt(0)\ns_mov_b32 s94, s98")
    meta_read_entry(a)
    for k in range(8): a(f"v_mov_b32 v{RR+k}, 0")
    a("s_waitcnt lgkmcnt(0)")
    meta_fix_entry(a)
    a("s_nop 0")
    for e in range(D):
        a(f"""v_readlane_b32 s{S_K+e}, v{ENT}, {e}
              s_and_b32 s{S_OFF}, s{S_K+e}, s{S_MASK}
              buffer_load_dwordx4 {vr(XR+4*e,4)}, v{V_L16}, {sr(S_X,4)}, s{S_OFF} offen""")
    a(f"""v_mov_b32 v{KEY}, v{ENT}
    s_waitcnt lgkmcnt(0) vmcnt({D})
    v_mov_b32 v{EF}, v{RECN+2}
    v_mov_b32 v{EF+1}, v{RECN+3}""")
    for i in range(4): a(w_mfma(i))
    a(p_mfma(0, 0)); a(p_mfma(0, 1)); a(p_mfma(1, 0))
    a("s_nop 1")
    for m in range(4): w_cvt(a, m)
    for odd in range(2):
        u, r = act_regs(0, odd)
        for h in range(2): a(act_addr(TT + 2 * odd + h, u + h))
        for h in range(2): a(act_read(r + h, TT + 2 * odd + h))
    st('fill done')
    a(f"s_waitcnt vmcnt({D-1})")
    st('first row')
    a(t_mfma(0, 0)); a(t_mfma(0, 1))
    body(a, opt, True)
    body(a, opt, False)
    a(f"""MAIN_DONE:
    s_waitcnt vmcnt(0) lgkmcnt(0)
    s_add_u32 s{S_W0}, s{S_W0}, {CAP}
    s_cmp_ge_u32 s{S_W0}, s{S_N}
    s_cbranch_scc1 ALL_DONE""")
    zero_hist(a)
    a("s_waitcnt lgkmcnt(0)\ns_barrier\ns_branch ROUND\nALL_DONE:")
    st('main done')
    if opt.stamps: a("s_memtime s[98:99]\ns_waitcnt lgkmcnt(0)\ns_sub_u32 s94, s98, s94")
    PK = XR
    for s in range(5):
        for o in range(4): a(f"v_cvt_pk_bf16_f32 v{PK+4*s+o}, v{ACC+8*s+o}, v{ACC+8*s+4+o}")
    a(f"""v_lshrrev_b32 v{T0}, 2, v{V_L16}
    v_add_u32 v{T0}, {L_AGG}, v{T0}""")
    for s in range(5):
        a(f"s_mul_i32 s{S_T}, s{S_NODE+s}, {4 * AGG_RS}\nv_add_u32 v{TP+s}, s{S_T}, v{T0}")
    a(f"""v_lshrrev_b32 v{T0+1}, 4, v{V_L16}            ; lane
    v_and_b32 v{T0+2}, 15, v{T0+1}
    v_lshrrev_b32 v{T0+3}, 4, v{T0+1}                 ; lane >> 4
    s_lshr_b32 s{S_T}, s{S_WAVE}, 2
    s_mul_i32 s{S_T+1}, s{S_T}, {80 * AGG_RS}
    s_add_u32 s{S_T+1}, s{S_T+1}, {L_AGG}
    v_mul_u32_u24 v{T0}, {AGG_RS}, v{T0+2}
    v_lshl_add_u32 v{T0}, v{T0+3}, 4, v{T0}
    v_add_u32 v{T0}, s{S_T+1}, v{T0}
    s_mul_i32 s{S_T}, s{S_T}, {20 << 18}
    s_lshl_b32 s{S_T+1}, s{S_BETA}, 10
    s_add_u32 s{S_T}, s{S_T}, s{S_T+1}
    s_and_b32 s{S_T+1}, s{S_WAVE}, 3
    s_lshl_b32 s{S_T+1}, s{S_T+1}, 8
    s_add_u32 s{S_T}, s{S_T}, s{S_T+1}
    v_lshlrev_b32 v{T0+3}, 18, v{T0+3}
    v_lshl_add_u32 v{T0+3}, v{T0+2}, 4, v{T0+3}
    v_add_u32 v{T0+3}, s{S_T}, v{T0+3}
    s_barrier""")
    st('all main done')
    for s in range(5):
        for o in range(4): a(f"ds_write_b32 v{TP+s}, v{PK+4*s+o} offset:{o*AGG_RS}")
    a("s_waitcnt lgkmcnt(0)\ns_barrier")
    st('agg in LDS')
    AF = XR
    def rd(t):
        for ks in range(4): a(f"ds_read_b128 {vr(AF+16*(t%2)+4*ks,4)}, v{T0} offset:{t*16*AGG_RS + ks*64}")
    def pack_store(t):
        d = ACC + 8 * t; p = RR + 4 * (t % 2)
        for j in range(4): a(f"v_cvt_pk_bf16_f32 v{p+j}, v{d+2*j}, v{d+2*j+1}")
        a(f"buffer_store_dwordx4 {vr(p,4)}, v{T0+3}, {sr(S_OUT,4)}, 0 offen {opt.outst}")
        if t < 4: a(f"v_add_u32 v{T0+3}, {4 << 18}, v{T0+3}")
    rd(0)
    for t in range(5):
        if t < 4: rd(t + 1)
        for ks in range(4):
            a(f"s_waitcnt lgkmcnt({(4 if t < 4 else 0) + 3 - ks})")
            for j in range(2):
                d = ACC + 8 * t + 4 * j
                a(f"v_mfma_f32_16x16x32_bf16 {vr(d,4)}, {vr(AF+16*(t%2)+4*ks,4)}, {vr(WMIX+16*j+4*ks,4)}, " + ("0" if ks == 0 else vr(d, 4)))
            if ks == 3 and t > 0: pack_store(t - 1)
    a("s_nop 7")
    pack_store(4)
    st('end')
    if opt.probe:
        a(f"""s_sub_u32 s93, s93, s92
        s_mul_i32 s93, s93, 4
        s_add_u32 s92, s92, s93
        s_add_u32 s92, s92, 6000
        HOLD_SPIN:
        s_memrealtime s[96:97]
        s_waitcnt lgkmcnt(0)
        s_sub_u32 s96, s96, s92
        s_cmp_lt_i32 s96, 0
        s_cbranch_scc1 HOLD_SPIN""")
    if opt.stamps:
        a("s_waitcnt vmcnt(0)")
        st('stores done 2')
        a(f"""s_lshl_b32 s10, s2, 3
        s_add_u32 s10, s10, s{S_WAVE}
        s_lshl_b32 s10, s10, 7
        s_add_u32 s10, s10, {WS_STAMP}
        v_mov_b32 v{T0}, s10
        s_sub_u32 s{S_ST+31}, s{S_END}, s{S_START}""")
        for k in range(32): a(f"v_mov_b32 v{XR+k}, s{S_ST+k}")
        for k in range(8): a(f"buffer_store_dwordx4 {vr(XR+4*k,4)}, v{T0}, {sr(S_WS,4)}, 0 offen offset:{16*k}")
    a("END:\ns_endpgm")
    return a.text()

def generate(opt):
    here = os.path.dirname(os.path.abspath(__file__))
    out = open(here + "/header.txt").read()
    out += f"; @launch grid=(256,1,1) block=(512,1,1) lds={LDS_BYTES}\n"
    out += f'.amdgcn_target "amdgcn-amd-amdhsa--gfx950"\n.text\n.globl {KERN}\n.p2align 8\n.type {KERN},@function\n'
    out += kernel(opt)
    out += f""".section .rodata,"a"
.p2align 6
.amdhsa_kernel {KERN}
  .amdhsa_next_free_vgpr {NVGPR}
  .amdhsa_next_free_sgpr {NSGPR if opt.stamps or opt.probe else 64}
  .amdhsa_accum_offset {(NVGPR + 3) // 4 * 4}
  .amdhsa_group_segment_fixed_size 0
  .amdhsa_kernarg_size 88
  .amdhsa_user_sgpr_count 2
  .amdhsa_user_sgpr_kernarg_segment_ptr 1
  .amdhsa_system_sgpr_workgroup_id_x 1
  .amdhsa_float_denorm_mode_32 3
.end_amdhsa_kernel
"""
    return out

def options(argv):
    p = argparse.ArgumentParser()
    p.add_argument("-o", default="/code/" + NAME + ".s")
    p.add_argument("--stamps", action="store_true")
    p.add_argument("--probe", default="")
    p.add_argument("--D", type=int, default=7)
    p.add_argument("--k1st", default="sc0 sc1")
    p.add_argument("--outst", default="sc0 sc1")
    p.add_argument("--dirmask", type=int, default=0x12)
    p.add_argument("--jobs", type=lambda s: tuple(map(int, s.split(","))), default=(5, 2, 4, 3))
    p.add_argument("--wearly", type=int, default=5)
    return p.parse_args(argv)

if __name__ == "__main__":
    opt = options(sys.argv[1:])
    open(opt.o, "w").write(generate(opt))
    if opt.stamps: open(opt.o + ".names", "w").write(repr(STAMPS))
```

```python
import sys, argparse, os

NAME = "gather_scatter__tensor_product_equiv_tfn__graph"
KERN = NAME + "_kernel"
N, E, C = 10000, 320000, 128
NP, EP = 250, 1280
WS_KEY = 0
WS_REC = 0x280000
WS_WMIX = 0x771000
WS_TAB = 0x780000
WS_RDY = WS_TAB + 256 * 2048
WS_EPOCH = WS_RDY + 256 * 1024
WS_END = WS_EPOCH + 128
WS_STAMP = 0x900000
CAP = 1472

class Asm:
    def __init__(self): self.l = []
    def __call__(self, s):
        for line in s.strip("\n").split("\n"):
            line = line.strip()
            if not line: continue
            self.l.append(line if line.endswith(":") else "    " + line)
    def text(self): return "\n".join(self.l) + "\n"

def vr(a, n=1): return f"v{a}" if n == 1 else f"v[{a}:{a+n-1}]"
def sr(a, n=1): return f"s{a}" if n == 1 else f"s[{a}:{a+n-1}]"

SCAN_STEPS = ["row_shr:1 row_mask:0xf bank_mask:0xf bound_ctrl:0", "row_shr:2 row_mask:0xf bank_mask:0xf bound_ctrl:0",
              "row_shr:4 row_mask:0xf bank_mask:0xf bound_ctrl:0", "row_shr:8 row_mask:0xf bank_mask:0xf bound_ctrl:0",
              "row_bcast:15 row_mask:0xa bank_mask:0xf", "row_bcast:31 row_mask:0xc bank_mask:0xf"]
def scan64(a, *regs):
    for c in SCAN_STEPS:
        a("s_nop 1" if len(regs) == 1 else "s_nop 0")
        for v in regs: a(f"v_add_u32_dpp v{v}, v{v}, v{v} {c}")

NSB, HS = 12, 48
L_HIST = 0; L_INV = 40 * HS; L_WT = L_INV + 256; L_CNT = L_WT + 64
L_SENT = L_WT + 128
L_UREC = L_SENT + CAP * 4
L_CG = L_UREC + CAP * 16
L_LUT = 32768
L1_HIST = L_SENT; L1_BASE = L1_HIST + 1024; L1_SREC = L1_BASE + 1024
L1_SKEY = L_LUT + 53 * 1024
assert L_CG + 128 <= L_LUT and L1_SREC + EP * 16 <= L_LUT and L1_BASE <= 4096
L_AGG = L_LUT; AGG_RS = 288
LDS_BYTES = L_LUT + 131072

V_L16 = 1
V_LEN, V_PRE, V_GID = 2, 3, 4
V_AENT, V_POS = 5, 6
V_SLOT4, V_SIG4, V_ONE = 7, 14, 15
V_FLAG = 166
T0 = 8
ACC = 16; XR = 64; TP = 96; UU = 112; RR = 128; TT = 136; WPK = 140; WTMP = 148
KEY = 164; ENT = 165; RECN = 168; EF = 172; CONST = 176; WMIX = 188
NVGPR = 220
PE, PO, CGB = CONST, CONST + 2, CONST + 4
LJ = 128
S_NODE = 4
S_X, S_WS, S_OUT = 12, 16, 20
S_BETA, S_WAVE, S_N, S_W0, S_NWIN, S_START, S_END, S_REM, S_REMB, S_OFF, S_MASK = range(24, 35)
S_SPIN = 35
S_M = 36
S_T = 42
S_K = 48
S_IN = 40
S_OD = 56
S_JOB, S_JCNT = 62, 63
S_NLO, S_NHI = 64, 65
S_WM = 10
S_L2E = 10
S_ST = 66
NSGPR = 102

STAMPS = []
RETRY = 'sc1'
def stamp(a, opt, name):
    if opt.probe == name: a("s_memrealtime s[98:99]\ns_waitcnt lgkmcnt(0)\ns_mov_b32 s93, s98")
    if not opt.stamps: return
    if name not in STAMPS: STAMPS.append(name)
    a(f"s_memrealtime s[98:99]\ns_waitcnt lgkmcnt(0)\ns_mov_b32 s{S_ST + STAMPS.index(name)}, s98")

def lut_jobs(a, tag, first, count):
    J, Ex, R, P = LJ, LJ + 8, LJ + 16, LJ + 24
    if first is not None: a(first)
    if count: a(f"s_mov_b32 s{S_JCNT}, {count}")
    a(f"""LUT_{tag}:
    s_lshl_b32 s3, s{S_JOB}, 25
    s_add_u32 s3, s3, 0x8000
    v_lshl_add_u32 v{J}, v{V_L16}, 15, s3""")
    for k in range(1, 8): a(f"v_add_u32 v{J+k}, {k << 16}, v{J}")
    for k in range(0, 8, 2): a(f"v_pk_mul_f32 {vr(Ex+k,2)}, {vr(J+k,2)}, {sr(S_L2E,2)}")
    for k in range(8): a(f"v_exp_f32 v{Ex+k}, v{Ex+k}")
    a(f"s_lshl_b32 s3, s{S_JOB}, 10")
    for k in range(0, 8, 2): a(f"v_pk_add_f32 {vr(R+k,2)}, {vr(Ex+k,2)}, 1.0 op_sel_hi:[1,0]")
    for k in range(8): a(f"v_rcp_f32 v{R+k}, v{R+k}")
    a(f"v_add_u32 v{P+8}, s3, v{V_L16}")
    for k in range(0, 8, 2): a(f"v_pk_mul_f32 {vr(J+k,2)}, {vr(J+k,2)}, {vr(R+k,2)}")
    a(f"v_add_u32 v{P+9}, 0x10000, v{P+8}")
    for k in range(0, 8, 2): a(f"v_pk_mul_f32 {vr(Ex+k,2)}, {vr(J+k,2)}, {vr(Ex+k,2)} neg_lo:[1,0] neg_hi:[1,0]")
    for k in range(4): a(f"v_cvt_pk_bf16_f32 v{P+k}, v{J+2*k}, v{J+2*k+1}")
    for k in range(4): a(f"v_cvt_pk_bf16_f32 v{P+4+k}, v{Ex+2*k}, v{Ex+2*k+1}")
    a(f"""ds_write_b128 v{P+8}, {vr(P,4)} offset:{L_LUT}
    ds_write_b128 v{P+9}, {vr(P+4,4)} offset:{L_LUT}
    s_add_u32 s{S_JOB}, s{S_JOB}, 1
    s_sub_u32 s{S_JCNT}, s{S_JCNT}, 1
    s_cmp_lg_u32 s{S_JCNT}, 0
    s_cbranch_scc1 LUT_{tag}""")

def lut_plain(a, tag, region, last=None, cont=False):
    P = LJ
    for name, first, end, bias in (("L", 1, 24, 0x20000 - 0x800080), ("H", 34, 62, 0x20000)):
        if name != region: continue
        last = last or end
        if cont: a(f"s_cmp_gt_u32 s{S_JOB}, {last}\ns_cbranch_scc1 LUTP_END_{tag}")
        else: a(f"s_add_u32 s{S_JOB}, s{S_WAVE}, {first}")
        if name == "H" and not cont:
            for k in range(4): a(f"v_mov_b32 v{P+4+k}, 0x80008000")
        a(f"""LUTP_{tag}{name}:
        s_mul_i32 s3, s{S_JOB}, {512 * 0x10001}
        s_add_u32 s3, s3, {bias & 0xffffffff}
        v_add_u32 v{P}, s3, v{P+10}
        s_lshl_b32 s3, s{S_JOB}, 10
        v_add_u32 v{P+8}, s3, v{V_L16}""")
        for k in range(1, 4): a(f"v_add_u32 v{P+k}, {k * 0x20002}, v{P}")
        a(f"v_add_u32 v{P+9}, 0x10000, v{P+8}")
        if name == "L":
            for k in range(4): a(f"v_or_b32 v{P+4+k}, 0x80008000, v{P+k}")
        a(f"""ds_write_b128 v{P+8}, {vr(P,4)} offset:{L_LUT}
        ds_write_b128 v{P+9}, {vr(P+4,4)} offset:{L_LUT}
        s_add_u32 s{S_JOB}, s{S_JOB}, {5 if name == "L" else 4}
        s_cmp_le_u32 s{S_JOB}, {last}
        s_cbranch_scc1 LUTP_{tag}{name}
        LUTP_END_{tag}:""")

def flag_store(a, base):
    a(f"""s_lshl_b32 s3, s2, 10
    s_add_u32 s3, s3, {base}
    v_lshl_add_u32 v{T0+2}, v{V_L16}, 3, s3
    v_mov_b32 v{T0+4}, s{S_NLO}
    v_mov_b32 v{T0+5}, s{S_NHI}
    s_mov_b64 exec, 0xff
    global_store_dwordx2 v{T0+2}, {vr(T0+4,2)}, {sr(S_WS,2)} sc0 sc1
    s_mov_b64 exec, -1""")

def poll_issue(a, dst, addr, soff):
    a(f"buffer_load_dwordx2 {vr(dst,2)}, v{addr}, {sr(S_WS,4)}, {soff} offen sc1")
def poll_check(a, tag, dst, addr, soff, hi, pre=""):
    a(f"""POLL_{tag}:
    s_waitcnt vmcnt(0)
    {pre}
    v_cmp_ne_u32 vcc, s{S_NLO}, v{dst + 1 if pre else dst}
    v_cmp_ne_u32 {sr(S_T,2)}, s{S_NHI}, v{hi}
    s_or_b64 vcc, vcc, {sr(S_T,2)}
    s_and_b64 exec, exec, vcc
    s_cbranch_execz POLLED_{tag}
    s_sub_u32 s{S_SPIN}, s{S_SPIN}, 1
    s_cbranch_scc1 END""")
    if RETRY == "atomic":
        a(f"""v_mov_b32 v{dst}, 0
        v_mov_b32 v{dst+1}, 0
        buffer_atomic_or_x2 {vr(dst,2)}, v{addr}, {sr(S_WS,4)}, {soff} offen sc0""")
    else: a(f"buffer_load_dwordx2 {vr(dst,2)}, v{addr}, {sr(S_WS,4)}, {soff} offen {RETRY}")
    a(f"""s_branch POLL_{tag}
    POLLED_{tag}:
    s_mov_b64 exec, -1""")

def load_epoch(a):
    a(f"""s_add_u32 s4, s{S_WS}, {WS_EPOCH}
    s_addc_u32 s5, s{S_WS+1}, 0
    s_load_dwordx2 {sr(S_NLO,2)}, s[4:5], 0""")
def make_tag(a):
    a(f"""s_add_u32 s{S_NLO}, s{S_NLO}, 1
    s_and_b32 s{S_NHI}, s{S_NHI}, 0x3ff""")

def scan256(a, H_, O_):
    a(f"""v_add_u32 v{T0+2}, v{H_}, v{H_+1}
    v_add3_u32 v{T0+2}, v{T0+2}, v{H_+2}, v{H_+3}
    v_mov_b32 v{T0+3}, v{T0+2}""")
    scan64(a, T0 + 3)
    a(f"""v_sub_u32 v{O_}, v{T0+3}, v{T0+2}
    v_add_u32 v{O_+1}, v{O_}, v{H_}
    v_add_u32 v{O_+2}, v{O_+1}, v{H_+1}
    v_add_u32 v{O_+3}, v{O_+2}, v{H_+2}""")

def phase1(a, opt):
    st = lambda n: stamp(a, opt, n)
    SRC, DST, YY, EFP, WRAD, CG, WMX = S_IN + 2, S_IN + 4, S_IN + 6, S_IN + 8, S_IN + 10, S_IN + 12, S_IN + 14
    WS = sr(S_WS, 2); FL = opt.k1st
    D_, S_, Y_, F_, B_, R_, H_, O_, TB = 64, 68, 72, 80, 88, 92, 96, 100, 108
    CT = WMIX
    def const_issue():
        a(f"v_lshrrev_b32 v{CT+5}, 2, v{V_L16}")
        for k in range(4): a(f"global_load_dword v{CT+k}, v{CT+5}, {sr(WRAD,2)} offset:{k*256}")
        a(f"v_and_b32 v{CT+5}, 0x7f, v{CT+5}\nglobal_load_dword v{CT+4}, v{CT+5}, {sr(CG,2)}")
    def const_finish():
        a(f"""ds_write_b32 v{CT+5}, v{CT+4} offset:{L_CG}
        v_lshrrev_b32 v{CT+5}, 3, v{V_L16}
        v_and_b32 v{CT+5}, 24, v{CT+5}
        s_mov_b32 s4, 0x05040100
        s_mov_b32 s5, 0x07060302""")
        for i in range(4): a(f"ds_read_b64_tr_b16 {vr(CGB+2*i,2)}, v{CT+5} offset:{L_CG + 32*i}")
        for u in range(2):
            a(f"v_perm_b32 v{PE+u}, v{CT+1+2*u}, v{CT+2*u}, s4\nv_perm_b32 v{PO+u}, v{CT+1+2*u}, v{CT+2*u}, s5")
    def rec_stores(tag, first, count):
        a(f"""s_cmp_ge_u32 s2, {NP}
        s_cbranch_scc1 NO_RECS_{tag}
        s_mul_i32 s3, s2, {EP * 16}
        s_add_u32 s3, s3, {WS_REC + first * 1024}
        v_add_u32 v{T0+1}, s3, v{V_L16}""")
        for k in range(count): a(f"ds_read_b128 {vr(84+4*k,4)}, v{V_L16} offset:{L1_SREC + (first + k) * 1024}")
        for k in range(count):
            if k == 4: a(f"v_add_u32 v{T0+1}, 4096, v{T0+1}")
            a(f"s_waitcnt lgkmcnt({count-1-k})\nglobal_store_dwordx4 v{T0+1}, {vr(84+4*k,4)}, {WS} offset:{(1024*k) % 4096} {FL}")
        a(f"NO_RECS_{tag}:")
    def key_stores(first, count):
        a(f"""s_mul_i32 s3, s2, {EP * 8}
        s_add_u32 s3, s3, {WS_KEY + first * 1024}
        v_add_u32 v{T0+1}, s3, v{V_L16}
        v_add_u32 v{T0+2}, {L1_SKEY + first * 1024}, v{V_L16}
        s_barrier""")
        for k in range(count): a(f"ds_read_b128 {vr(64+4*k,4)}, v{T0+2} offset:{1024*k}")
        for k in range(count):
            a(f"s_waitcnt lgkmcnt({count-1-k})\nglobal_store_dwordx4 v{T0+1}, {vr(64+4*k,4)}, {WS} offset:{1024*k} {FL}")
        a("s_barrier")
    a(f"""s_cmp_ge_u32 s{S_WAVE}, 5
    s_cbranch_scc1 HELP
    v_mul_u32_u24 v{LJ+10}, 0x8000, v{V_L16}
    v_lshrrev_b32 v{T0+2}, 1, v{V_L16}
    v_add_u32 v{LJ+10}, v{LJ+10}, v{T0+2}           ; lane * 8 * 0x10001
    s_cmp_ge_u32 s2, {NP}
    s_cbranch_scc1 AUX
    s_mul_i32 s3, s2, {EP * 4}
    v_lshl_add_u32 v{T0}, v0, 4, s3
    v_lshlrev_b32 v{T0+1}, 1, v{T0}
    s_mov_b32 s9, {L1_SKEY}
    s_setprio 1
    s_waitcnt lgkmcnt(0)""")
    st('kernargs')
    def load_yf():
        a(f"""global_load_dwordx4 {vr(Y_,4)}, v{T0+1}, {sr(YY,2)}
        global_load_dwordx4 {vr(Y_+4,4)}, v{T0+1}, {sr(YY,2)} offset:16
        global_load_dwordx4 {vr(F_,4)}, v{T0+1}, {sr(EFP,2)}
        global_load_dwordx4 {vr(F_+4,4)}, v{T0+1}, {sr(EFP,2)} offset:16""")
    a(f"""global_load_dwordx4 {vr(D_,4)}, v{T0}, {sr(DST,2)}
    global_load_dwordx4 {vr(S_,4)}, v{T0}, {sr(SRC,2)}""")
    const_issue()
    if not opt.lsplit: load_yf()
    load_epoch(a)
    a("s_barrier")
    if opt.lsplit:
        lut_plain(a, "W0", "L", last=opt.lsplit)
        load_yf()
        lut_plain(a, "W", "L", cont=True)
    else: lut_plain(a, "W", "L")
    a("s_waitcnt lgkmcnt(0)")
    make_tag(a)
    for k in range(4): a(f"v_mov_b32 v{TB+2*k+1}, s{S_NLO}")
    st('jobs A')
    a("s_waitcnt vmcnt(10)")
    st('dst arrived')
    for k in range(4):
        a(f"""v_and_b32 v{B_+k}, 0xff, v{D_+k}
              v_lshlrev_b32 v{B_+k}, 2, v{B_+k}
              ds_add_rtn_u32 v{R_+k}, v{B_+k}, v{V_ONE} offset:{L1_HIST}""")
    a("s_waitcnt vmcnt(9)")
    for k in range(4):
        a(f"""v_lshrrev_b32 v{D_+k}, 8, v{D_+k}
              v_lshl_or_b32 v{TB+2*k}, v{S_+k}, 10, v{D_+k}""")
    a(f"""s_waitcnt lgkmcnt(0)
    s_barrier
    ds_read_b128 {vr(H_,4)}, v{V_L16} offset:{L1_HIST}
    s_waitcnt lgkmcnt(0)""")
    scan256(a, H_, O_)
    a(f"ds_write_b128 v{V_L16}, {vr(O_,4)} offset:{L1_BASE}")
    for k in range(4): a(f"ds_read_b32 v{H_+k}, v{B_+k} offset:{L1_BASE}")
    for k in range(4):
        a(f"""s_waitcnt lgkmcnt(3)
              v_add_u32 v{R_+k}, v{R_+k}, v{H_+k}
              v_lshl_add_u32 v{B_+k}, v{R_+k}, 3, s9
              ds_write_b64 v{B_+k}, {vr(TB+2*k,2)}""")
    for k in range(4):
        a(f"v_lshlrev_b32 v{R_+k}, 4, v{R_+k}\nv_add_u32 v{R_+k}, {L1_SREC}, v{R_+k}")
    a("s_waitcnt lgkmcnt(0)\ns_barrier")
    st('keys binned')
    a("s_waitcnt vmcnt(0)")
    for k in range(4):
        a(f"ds_write2_b64 v{R_+k}, {vr(Y_+2*k,2)}, {vr(F_+2*k,2)} offset0:0 offset1:1")
    st('recs binned')
    const_finish()
    a("s_setprio 0\ns_branch BINNED")
    a(f"""AUX:
    v_lshrrev_b32 v{T0}, 4, v{V_L16}                ; lane
    s_waitcnt lgkmcnt(0)""")
    load_epoch(a)
    const_issue()
    a(f"""s_waitcnt lgkmcnt(0)
    s_cmp_ge_u32 s2, {NP + 4}
    s_cbranch_scc1 AUX_IDLE
    s_cmp_ge_u32 s{S_WAVE}, 4
    s_cbranch_scc1 AUX_IDLE
    s_sub_u32 s4, s2, {NP}
    s_lshl_b32 s5, s{S_WAVE}, 13
    s_lshl_b32 s6, s4, 6
    s_add_u32 s5, s5, s6
    v_lshrrev_b32 v{T0+1}, 4, v{T0}
    v_lshlrev_b32 v{T0+1}, 11, v{T0+1}
    v_and_b32 v{T0+2}, 15, v{T0}
    v_lshl_add_u32 v{T0+1}, v{T0+2}, 2, v{T0+1}
    v_add_u32 v{T0+1}, s5, v{T0+1}
    s_lshl_b32 s5, s4, 13
    s_lshl_b32 s6, s{S_WAVE}, 10
    s_add_u32 s5, s5, s6
    s_add_u32 s5, s5, {WS_WMIX}
    v_add_u32 v{T0+2}, s5, v{V_L16}
    s_mov_b32 s4, 0x05040100
    s_mov_b32 s5, 0x07060302""")
    for t in range(8): a(f"global_load_dword v{64+t}, v{T0+1}, {sr(WMX,2)} offset:{t*256}")
    a("s_barrier")
    lut_plain(a, "X", "L")
    a("s_waitcnt vmcnt(0)")
    for u in range(4):
        a(f"v_perm_b32 v{72+u}, v{65+2*u}, v{64+2*u}, s4\nv_perm_b32 v{76+u}, v{65+2*u}, v{64+2*u}, s5")
    a(f"""global_store_dwordx4 v{T0+2}, v[72:75], {WS} {FL}
    v_add_u32 v{T0+2}, 4096, v{T0+2}
    global_store_dwordx4 v{T0+2}, v[76:79], {WS} {FL}
    s_branch AUX_DONE
AUX_IDLE:
    s_barrier""")
    lut_plain(a, "Z", "L")
    a("AUX_DONE:")
    make_tag(a)
    a("""s_waitcnt lgkmcnt(0)
    s_barrier
    s_barrier
    s_waitcnt vmcnt(0)""")
    const_finish()
    a("s_branch BINNED")
    a("HELP:\ns_waitcnt lgkmcnt(0)")
    load_epoch(a)
    const_issue()
    a(f"""s_barrier
    s_cmp_lg_u32 s{S_WAVE}, 7
    s_cbranch_scc1 HELP56""")
    lut_jobs(a, "7a", f"s_mov_b32 s{S_JOB}, 63", 1)
    a(f"""v_mov_b32 v{T0+2}, {0x7f80 * 2}
    v_mov_b32 v{T0+3}, 0x7f80
    ds_write_b16 v{T0+2}, v{T0+3} offset:{L_LUT}""")
    lut_jobs(a, "7b", f"s_mov_b32 s{S_JOB}, 33", 1)
    a("s_waitcnt vmcnt(0)")
    const_finish()
    a("s_waitcnt lgkmcnt(0)")
    make_tag(a)
    a("s_barrier")
    key_stores(0, 4)
    rec_stores("7", 0, 6)
    a(f"""s_branch STORED
HELP56:
    s_cmp_eq_u32 s{S_WAVE}, 6
    s_cbranch_scc1 HELP6""")
    lut_jobs(a, "5a", f"s_mov_b32 s{S_JOB}, 0", 1)
    lut_jobs(a, "5b", f"s_mov_b32 s{S_JOB}, 25", 1)
    a("s_waitcnt vmcnt(0)")
    const_finish()
    a("s_waitcnt lgkmcnt(0)")
    make_tag(a)
    a("s_barrier")
    key_stores(4, 3)
    rec_stores("5", 6, 7)
    a("s_branch STORED\nHELP6:")
    lut_jobs(a, "6", f"s_mov_b32 s{S_JOB}, 26", 2)
    a("s_waitcnt vmcnt(0)")
    const_finish()
    a(f"""s_lshl_b32 s3, s2, 11
    s_add_u32 s3, s3, {WS_TAB}
    v_lshl_add_u32 v{T0}, v{V_L16}, 1, s3
    s_waitcnt lgkmcnt(0)""")
    make_tag(a)
    a(f"""s_barrier
    ds_read_b128 {vr(H_,4)}, v{V_L16} offset:{L1_HIST}
    s_waitcnt lgkmcnt(0)""")
    scan256(a, H_, O_)
    a(f"s_lshl_b32 s3, s{S_NHI}, 22")
    for k in range(4):
        a(f"""v_lshl_or_b32 v{TB+2*k}, v{H_+k}, 11, v{O_+k}
              v_or_b32 v{TB+2*k}, s3, v{TB+2*k}
              v_mov_b32 v{TB+2*k+1}, s{S_NLO}""")
    a(f"""global_store_dwordx4 v{T0}, {vr(TB,4)}, {WS} sc0 sc1
    global_store_dwordx4 v{T0}, {vr(TB+4,4)}, {WS} offset:16 sc0 sc1""")
    st('table published')
    key_stores(7, 3)
    rec_stores("6", 13, 7)
    a(f"""STORED:
    v_mov_b32 v{V_LEN}, 0
    s_branch TAB_DONE
BINNED:
    v_mov_b32 v{V_LEN}, 0
    s_cmp_eq_u32 s{S_WAVE}, 4
    s_cbranch_scc0 POLLER
    s_waitcnt lgkmcnt(0)
    s_barrier""")
    lut_jobs(a, "4", f"s_mov_b32 s{S_JOB}, 31", 2)
    a("s_branch TAB_DONE\nPOLLER:")
    lut_plain(a, "U", "H", last=opt.hsplit)
    poll_issue(a, V_LEN, V_POS, 0)
    a("s_waitcnt lgkmcnt(0)\ns_barrier")
    st('tab issued')
    lut_plain(a, "V", "H", cont=True)
    poll_check(a, "TAB", V_LEN, V_POS, 0, T0 + 3, f"v_lshrrev_b32 v{T0+3}, 22, v{V_LEN}")
    st('tab arrived')
    a("TAB_DONE:")

def mfma4(d, a_, b, c, blk=None):
    cc = "0" if c is None else vr(c, 4)
    return f"v_mfma_f32_4x4x4_16b_bf16 {vr(d,4)}, {vr(a_,2)}, {vr(b,2)}, {cc}" + ("" if blk is None else f" cbsz:4 abid:{blk}")
def p_mfma(g, odd):
    return mfma4(UU + 8 * (g % 2) + 4 * odd, EF, PO if odd else PE, None, g % 16)
def t_mfma(e, odd):
    return mfma4(TP + 8 * (e % 2) + 4 * odd, WPK + 2 * (e % 4), XR + 4 * (e % 8) + 2 * odd, None, (e % 64) // 4)
def act_regs(eb, odd):
    return UU + 8 * ((eb // 4) % 2) + 4 * odd + eb % 4, RR + 4 * ((eb // 2) % 2) + 2 * odd
def act_addr(t, u):
    return f"v_lshlrev_b32_sdwa v{t}, v{V_ONE}, v{u} dst_sel:DWORD dst_unused:UNUSED_PAD src0_sel:DWORD src1_sel:WORD_1"
def act_read(r, t): return f"ds_read_u16_d16_hi v{r}, v{t} offset:{L_LUT}"
def fma4(a, q):
    h = q % 2
    a(f"s_set_gpr_idx_on s{S_K + q % 16}, 0xc")
    for odd in range(2):
        r = RR + 4 * ((q // 2) % 2) + 2 * odd
        for o in (0, 2):
            acc = ACC + 4 * odd + o; tp = TP + 8 * (q % 2) + 4 * odd + o
            a(f"v_pk_fma_f32 {vr(acc,2)}, {vr(r,2)}, {vr(tp,2)}, {vr(acc,2)} op_sel:[{h},0,0] op_sel_hi:[{h},1,1]")
    a("s_set_gpr_idx_off")
def meta_read_entry(a): a(f"ds_read_b32 v{ENT}, v{V_AENT}")
def meta_fix_entry(a, rec=True):
    a(f"""v_cmp_gt_u32 vcc, s{S_END}, v{V_POS}
          v_add_u32 v{V_POS}, 64, v{V_POS}
          v_add_u32 v{V_AENT}, 256, v{V_AENT}
          v_cndmask_b32 v{ENT}, 40, v{ENT}, vcc
          v_lshrrev_b32 v{T0}, 21, v{ENT}
          v_lshlrev_b32 v{T0}, 4, v{T0}
          v_lshlrev_b32 v{T0+1}, 3, v{ENT}""")
    if rec: meta_read_rec(a)
    a(f"""v_and_b32 v{T0+1}, 0xfffc00, v{T0+1}
          v_and_or_b32 v{ENT}, v{ENT}, 56, v{T0+1}""")
def meta_read_rec(a): a(f"ds_read_b128 {vr(RECN,4)}, v{T0} offset:{L_UREC}")
def w_mfma(i): return mfma4(WTMP + 4 * i, RECN, CGB + 2 * i, None)
def w_cvt(a, m):
    a(f"""v_cvt_pk_bf16_f32 v{WPK+2*m}, v{WTMP+m}, v{WTMP+4+m}
          v_cvt_pk_bf16_f32 v{WPK+2*m+1}, v{WTMP+8+m}, v{WTMP+12+m}""")

def body(a, opt, loads):
    D = opt.D; tag = "A" if loads else "B"
    for q in range(64):
        if q % 4 == 0:
            a(f"{tag}_{q}:")
            if loads: a(f"s_sub_u32 s{S_REM}, s{S_REM}, 4\ns_cbranch_scc1 TO_B_{q}")
            else:     a(f"s_sub_u32 s{S_REMB}, s{S_REMB}, 4\ns_cbranch_scc1 MAIN_DONE")
        eb = q + 2 - q % 2; odd = q % 2
        u, r = act_regs(eb, odd); t = TT + 2 * odd
        g, ur = (q + 6) // 4, (q + 6) % 4
        if ur % 2 == 0: a(p_mfma(g, ur // 2))
        elif 40 <= q < 48: a(w_mfma((q - 40) // 2))
        a(act_addr(t, u))
        a(f"s_waitcnt vmcnt({D - 2 if loads else 8 + max(0, D - (6 if D == 8 else 2) - q % 4)})")
        a(t_mfma(q + 1, 0))
        if loads: a(f"v_readlane_b32 s{S_K + (q + D) % 16}, v{KEY if q + D < 64 else ENT}, {(q + D) % 64}")
        else:     a("s_nop 0")
        a(t_mfma(q + 1, 1))
        a(act_addr(t + 1, u + 1))
        a(act_read(r, t)); a(act_read(r + 1, t + 1))
        if q >= 60: w_cvt(a, q - 60)
        if loads:
            a(f"s_and_b32 s{S_OFF}, s{S_K + (q + D) % 16}, s{S_MASK}")
            a(f"buffer_load_dwordx4 {vr(XR + 4 * ((q + D) % 8), 4)}, v{V_L16}, {sr(S_X,4)}, s{S_OFF} offen")
        if q % 2 == 0: a("s_waitcnt lgkmcnt(2)")
        fma4(a, q)
        if q == 8: meta_read_entry(a)
        if q == 12: meta_fix_entry(a)
        if q == 57: a(f"v_mov_b32 v{EF}, v{RECN+2}\nv_mov_b32 v{EF+1}, v{RECN+3}\ns_nop 1")
        if q == 63: a(f"v_mov_b32 v{KEY}, v{ENT}")
    a(f"s_branch {tag}_0")

def zero_hist(a):
    a(f"""v_lshlrev_b32 v{T0+3}, 2, v0
    v_mov_b32 v{T0+4}, 0
    v_cmp_gt_u32 vcc, {40 * HS // 4}, v0
    s_and_saveexec_b64 {sr(S_T,2)}, vcc
    ds_write_b32 v{T0+3}, v{T0+4} offset:{L_HIST}
    s_mov_b64 exec, {sr(S_T,2)}""")

def kernel(opt):
    a = Asm(); D = opt.D
    st = lambda n: stamp(a, opt, n)
    a(f"""{KERN}:
    s_cmp_ge_u32 s2, 256
    s_cbranch_scc1 END""")
    if opt.probe: a("s_mov_b32 s93, 0\ns_memrealtime s[98:99]\ns_waitcnt lgkmcnt(0)\ns_mov_b32 s92, s98")
    if opt.stamps:
        for k in range(32): a(f"s_mov_b32 s{S_ST+k}, 0")
    st('start')
    a(f"""s_load_dwordx16 {sr(S_IN,16)}, s[0:1], 0
    s_load_dwordx4 {sr(S_OD,4)}, s[0:1], 64
    s_load_dwordx2 {sr(S_WS,2)}, s[0:1], 80
    s_load_dwordx2 {sr(S_X,2)}, s[0:1], 0
    s_load_dwordx2 {sr(S_OUT,2)}, s[0:1], 64
    s_and_b32 s4, s2, 7
    s_lshl_b32 s4, s4, 5
    s_lshr_b32 s5, s2, 3
    s_or_b32 s{S_BETA}, s4, s5
    v_lshrrev_b32 v{T0}, 6, v0
    v_and_b32 v{T0+1}, 63, v0
    v_lshlrev_b32 v{V_L16}, 4, v{T0+1}
    v_readfirstlane_b32 s{S_WAVE}, v{T0}
    v_lshlrev_b32 v{T0+3}, 3, v0
    v_mov_b32 v{T0+4}, 0
    v_mov_b32 v{T0+5}, 0
    ds_write_b64 v{T0+3}, {vr(T0+4,2)}
    v_mov_b32 v{V_ONE}, 1
    s_mov_b32 s{S_X+2}, {N * 1024}
    s_mov_b32 s{S_X+3}, 0x20000
    s_mov_b32 s{S_WS+2}, {WS_END if not opt.stamps else WS_STAMP + 0x80000}
    s_mov_b32 s{S_WS+3}, 0x20000
    s_mov_b32 s{S_OUT+2}, {N * 1024}
    s_mov_b32 s{S_OUT+3}, 0x20000
    s_mov_b32 s{S_MASK}, 0xfffffc00
    s_mov_b32 s{S_W0}, 0
    s_mov_b32 s{S_L2E}, 0xbfb8aa3b
    s_mov_b32 s{S_L2E+1}, 0xbfb8aa3b
    v_mul_u32_u24 v{V_SIG4}, 52, v{T0+1}
    v_lshrrev_b32 v{V_SIG4}, 8, v{V_SIG4}            ; lane / 5
    v_mul_u32_u24 v{V_SLOT4}, 5, v{V_SIG4}
    v_sub_u32 v{V_SLOT4}, v{T0+1}, v{V_SLOT4}        ; lane % 5
    v_lshlrev_b32 v{V_SIG4}, 2, v{V_SIG4}
    v_lshlrev_b32 v{V_SLOT4}, 2, v{V_SLOT4}
    s_mov_b32 s{S_SPIN}, {1 << 21}
    v_and_b32 v{V_GID}, 0xff, v0
    s_lshl_b32 s3, s{S_BETA}, 3
    s_add_u32 s3, s3, {WS_TAB}
    v_lshl_add_u32 v{V_POS}, v{V_GID}, 11, s3
    s_and_b32 s3, s2, 7
    s_lshl_b32 s3, s3, 7
    s_add_u32 s3, s3, {WS_RDY}
    s_lshl_b32 s4, s{S_WAVE}, 15
    s_add_u32 s3, s3, s4
    v_and_b32 v{V_FLAG}, 31, v0
    v_lshl_add_u32 v{V_FLAG}, v{V_FLAG}, 10, s3      ; flag of producer 32 wave + lane % 32
    v_mul_u32_u24 v{V_GID}, {EP}, v{V_GID}""")
    for k in range(48): a(f"v_mov_b32 v{ACC+k}, 0")
    phase1(a, opt)
    a(f"""v_and_b32 v{T0+5}, 0x7ff, v{V_LEN}
    v_bfe_u32 v{V_LEN}, v{V_LEN}, 11, 11
    v_lshrrev_b32 v{T0+1}, 4, v{V_L16}                ; lane
    v_add_u32 v{V_GID}, v{V_GID}, v{T0+5}
    v_mov_b32 v{V_PRE}, v{V_LEN}""")
    if opt.keypf:
        a(f"""s_cmp_ge_u32 s{S_WAVE}, 4
        s_cbranch_scc1 NO_KEY_TOUCH
        v_lshlrev_b32 v{T0+2}, 3, v{V_GID}
        buffer_load_dword v{V_FLAG+1}, v{T0+2}, {sr(S_WS,4)}, 0 offen sc1""")
        if opt.keypf > 1:
            a(f"""v_lshl_add_u32 v{T0+2}, v{V_LEN}, 3, v{T0+2}
            v_subrev_u32 v{T0+2}, 8, v{T0+2}
            buffer_load_dword v{V_FLAG+1}, v{T0+2}, {sr(S_WS,4)}, 0 offen sc1""")
        a("NO_KEY_TOUCH:")
    scan64(a, V_PRE)
    a(f"""s_nop 0
    v_readlane_b32 s{S_T+2}, v{V_PRE}, 63
    v_sub_u32 v{V_PRE}, v{V_PRE}, v{V_LEN}
    v_cmp_lt_u32 vcc, s{S_WAVE}, v{T0+1}
    v_cmp_gt_u32 {sr(S_T,2)}, 9, v{T0+1}
    v_lshlrev_b32 v{T0+2}, 2, v{T0+1}
    v_mov_b32 v{T0+3}, s{S_T+2}
    s_and_b64 vcc, vcc, {sr(S_T,2)}
    s_and_saveexec_b64 {sr(S_T,2)}, vcc
    ds_add_u32 v{T0+2}, v{T0+3} offset:{L_WT}
    s_mov_b64 exec, {sr(S_T,2)}
    s_lshl_b32 s3, s{S_WAVE}, 2
    v_mov_b32 v{T0+2}, s3
    v_mov_b32 v{T0+3}, 32
    s_waitcnt lgkmcnt(0)
    s_barrier
    ds_read_b32 v{T0}, v{T0+2} offset:{L_WT}
    ds_read_b32 v{T0+3}, v{T0+3} offset:{L_WT}
    s_cmp_lg_u32 s{S_WAVE}, 4
    s_cbranch_scc1 EPOCH_DONE""")
    a(f"""s_cmp_lg_u32 s2, 0
    s_cbranch_scc1 EPOCH_DONE
    v_mov_b32 v{T0+4}, s{S_NLO}
    v_mov_b32 v{T0+2}, {WS_EPOCH}
    s_mov_b64 exec, 1
    global_store_dword v{T0+2}, v{T0+4}, {sr(S_WS,2)} sc0 sc1
    s_mov_b64 exec, -1
EPOCH_DONE:
    s_waitcnt lgkmcnt(0)
    v_add_u32 v{V_PRE}, v{V_PRE}, v{T0}
    v_readfirstlane_b32 s{S_N}, v{T0+3}""")
    st('prefix done')
    a(f"s_cmp_lt_u32 s{S_WAVE}, 5\ns_cbranch_scc1 RECS_FLAGGED")
    a(f"""v_mov_b32 v{T0+2}, {L_CNT}
    s_waitcnt vmcnt(0)
    s_mov_b64 exec, 1
    ds_add_rtn_u32 v{T0+2}, v{T0+2}, v{V_ONE}
    s_mov_b64 exec, -1
    s_waitcnt lgkmcnt(0)
    v_readfirstlane_b32 s3, v{T0+2}
    s_cmp_lg_u32 s3, 2
    s_cbranch_scc1 RECS_FLAGGED""")
    flag_store(a, WS_RDY)
    st('recs flagged')
    a("RECS_FLAGGED:")
    a(f"""ROUND:
    v_mov_b32 v{T0}, 0
    v_subrev_u32 v{T0+1}, s{S_W0}, v{V_PRE}
    v_mov_b32 v{T0+2}, v{V_GID}
    s_mov_b32 s3, {CAP}
    s_cmp_gt_u32 s{S_N}, {CAP}
    s_cbranch_scc1 EXPAND
    v_lshlrev_b32 v{T0+3}, 2, v{V_PRE}""")
    for j in range(16):
        a(f"v_cmpx_lt_u32 vcc, {j}, v{V_LEN}")
        if j % 2 == 0 and j >= 6: a("s_cbranch_execz EXPAND_DONE")
        a(f"ds_write_b32 v{T0+3}, v{T0+2} offset:{L_SENT + 4*j}\nv_add_u32 v{T0+2}, 1, v{T0+2}")
    a(f"""v_mov_b32 v{T0}, 16
    v_add_u32 v{T0+1}, 16, v{T0+1}
EXPAND:
    v_cmp_lt_u32 vcc, v{T0}, v{V_LEN}
    s_and_b64 exec, exec, vcc
    s_cbranch_execz EXPAND_DONE
    v_cmp_gt_u32 vcc, s3, v{T0+1}
    v_lshlrev_b32 v{T0+3}, 2, v{T0+1}
    s_and_saveexec_b64 {sr(S_T,2)}, vcc
    ds_write_b32 v{T0+3}, v{T0+2} offset:{L_SENT}
    s_mov_b64 exec, {sr(S_T,2)}
    v_add_u32 v{T0}, 1, v{T0}
    v_add_u32 v{T0+1}, 1, v{T0+1}
    v_add_u32 v{T0+2}, 1, v{T0+2}
    s_branch EXPAND
EXPAND_DONE:
    s_mov_b64 exec, -1
    s_sub_u32 s{S_NWIN}, s{S_N}, s{S_W0}
    s_min_u32 s{S_NWIN}, s{S_NWIN}, {CAP}
    v_lshlrev_b32 v{T0}, 2, v0""")
    for i in range(3):
        a(f"""v_add_u32 v{T0+1}, {512*i}, v0
              v_cmp_gt_u32 {sr(S_M+2*i,2)}, s{S_NWIN}, v{T0+1}""")
    st('list built')
    a("s_waitcnt lgkmcnt(0)\ns_barrier")
    st('list barrier')
    G = XR
    KP = TP
    for i in range(3): a(f"ds_read_b32 v{G+i}, v{T0} offset:{L_SENT + 2048*i}")
    a(f"""s_mov_b32 s{S_T+2}, 5033                          ; 12 * 2^32 / (10000 * 1024)
    s_waitcnt lgkmcnt(0)""")
    for i in range(3):
        a(f"v_lshlrev_b32 v{G+4+i}, 3, v{G+i}\nv_lshlrev_b32 v{G+i}, 4, v{G+i}")
    a(f"""KEY_LOAD:
    s_mov_b64 exec, {sr(S_M+4,2)}
    s_cbranch_execz SKIP3
    buffer_load_dwordx2 {vr(KP+4,2)}, v{G+6}, {sr(S_WS,4)}, 0 offen sc1
SKIP3:""")
    for i in range(2):
        a(f"s_mov_b64 exec, {sr(S_M+2*i,2)}\nbuffer_load_dwordx2 {vr(KP+2*i,2)}, v{G+4+i}, {sr(S_WS,4)}, 0 offen sc1")
    a(f"""s_mov_b64 exec, -1
    s_sub_u32 s{S_JOB}, s{S_WAVE}, 4
    s_cmp_ge_u32 s{S_JOB}, 3
    s_cbranch_scc1 NO_LAST_JOB
    s_mov_b32 s{S_L2E}, 0xbfb8aa3b
    s_mov_b32 s{S_L2E+1}, 0xbfb8aa3b""")
    lut_jobs(a, "k", f"s_add_u32 s{S_JOB}, s{S_JOB}, 28", 1)
    a("NO_LAST_JOB:\ns_waitcnt vmcnt(0)")
    for i in range(3): a(f"v_cmp_ne_u32 {sr(S_K+2*i,2)}, s{S_NLO}, v{KP+2*i+1}")
    for i in range(3): a(f"s_and_b64 {sr(S_K+2*i,2)}, {sr(S_K+2*i,2)}, {sr(S_M+2*i,2)}")
    a(f"""s_or_b64 {sr(S_K,2)}, {sr(S_K,2)}, {sr(S_K+2,2)}
    s_or_b64 {sr(S_K,2)}, {sr(S_K,2)}, {sr(S_K+4,2)}
    s_cbranch_scc0 KEYS_OK
    s_sub_u32 s{S_SPIN}, s{S_SPIN}, 1
    s_cbranch_scc0 KEY_LOAD
    s_endpgm
KEYS_OK:""")
    st('keys arrived')
    if opt.rdy == 0: poll_issue(a, TT, V_FLAG, 0)
    for i in range(3):
        a(f"""v_mul_hi_u32 v{T0+1}, s{S_T+2}, v{KP+2*i}
              v_and_b32 v{G+8+i}, 63, v{KP+2*i}
              v_mul_u32_u24 v{G+8+i}, {HS}, v{G+8+i}
              v_lshl_add_u32 v{G+8+i}, v{T0+1}, 2, v{G+8+i}""")
    for i in range(3):
        a(f"s_mov_b64 exec, {sr(S_M+2*i,2)}\nds_add_rtn_u32 v{G+12+i}, v{G+8+i}, v{V_ONE} offset:{L_HIST}")
    a("s_mov_b64 exec, -1")
    for i in range(3):
        a(f"""v_add_u32 v{T0+1}, {512*i}, v0
              v_lshlrev_b32 v{T0+1}, 21, v{T0+1}
              v_lshrrev_b32 v{G+16+i}, 10, v{KP+2*i}
              v_lshl_or_b32 v{G+16+i}, v{G+16+i}, 7, v{T0+1}""")
    H = G + 20
    a(f"""v_lshrrev_b32 v{T0}, 4, v{V_L16}              ; lane
    v_min_u32 v{T0+1}, 39, v{T0}
    v_mul_u32_u24 v{T0+1}, {HS}, v{T0+1}
    v_cmp_gt_u32 {sr(S_T+4,2)}, 40, v{T0}
    v_sub_u32 v{T0+2}, 63, v{T0}
    s_mul_i32 s10, s{S_WAVE}, 5
    s_lshl_b32 s3, s{S_WAVE}, 10
    s_add_u32 s3, s3, {L_UREC}
    s_mov_b32 s9, {WS_REC}
    s_waitcnt lgkmcnt(0)
    s_barrier""")
    st('hist done')
    if opt.rdy == 1: poll_issue(a, TT, V_FLAG, 0)
    for k in range(3): a(f"ds_read_b128 {vr(H+4*k,4)}, v{T0+1} offset:{L_HIST + 16*k}")
    a(f"""    s_waitcnt lgkmcnt(1)
    v_add3_u32 v{H}, v{H}, v{H+1}, v{H+2}
    v_add3_u32 v{H+3}, v{H+3}, v{H+4}, v{H+5}
    v_add3_u32 v{H}, v{H}, v{H+6}, v{H+7}
    s_waitcnt lgkmcnt(0)
    v_add3_u32 v{H+3}, v{H+3}, v{H+8}, v{H+9}
    v_add3_u32 v{H}, v{H}, v{H+10}, v{H+11}
    v_add_u32 v{H}, v{H}, v{H+3}
    v_lshl_or_b32 v{H+1}, v{H}, 6, v{T0+2}
    v_cndmask_b32 v{H+1}, 0, v{H+1}, {sr(S_T+4,2)}
    s_cmp_lg_u32 s{S_W0}, 0
    s_cbranch_scc1 DEALT""")
    for k in range(5):
        a(f"v_readlane_b32 s{S_NODE+k}, v{H+1}, s10")
        if k < 4: a("s_add_u32 s10, s10, 1")
    for k in range(5): a(f"v_cmp_lt_u32 {sr(S_K+2*k,2)}, s{S_NODE+k}, v{H+1}")
    for k in range(5): a(f"s_bcnt1_i32_b64 s{S_NODE+k}, {sr(S_K+2*k,2)}")
    for k in range(5): a(f"v_writelane_b32 v{T0+1}, s{S_NODE+k}, {k}")
    a(f"""s_sub_u32 s10, s10, 4
    v_add_u32 v{T0+2}, s10, v{T0}
    v_lshrrev_b32 v{T0+3}, 3, v{T0+1}
    v_and_b32 v{T0+1}, 7, v{T0+1}
    v_lshrrev_b32 v{T0+4}, v{T0+3}, {opt.dirmask}
    v_and_b32 v{T0+4}, 1, v{T0+4}
    v_mul_u32_u24 v{T0+4}, 7, v{T0+4}
    v_xor_b32 v{T0+1}, v{T0+1}, v{T0+4}               ; wave
    v_mad_u32_u24 v{T0+1}, v{T0+1}, 5, v{T0+3}
    v_lshlrev_b32 v{T0+1}, 2, v{T0+1}
    s_mov_b64 exec, 0x1f
    ds_write_b32 v{T0+1}, v{T0+2} offset:{L_INV}
    s_mov_b64 exec, -1
DEALT:
    s_lshl_b32 s11, s10, 2
    v_add_u32 v{T0+1}, s11, v{V_SLOT4}
    v_lshlrev_b32 v{T0+5}, 2, v{T0}
""")
    poll_check(a, "REC", TT, V_FLAG, 0, TT + 1)
    a(f"""v_cmp_gt_u32 {sr(S_T,2)}, 60, v{T0}
    s_waitcnt lgkmcnt(0)
    s_barrier""")
    st('dealt')
    a(f"""ds_read_b32 v{T0+1}, v{T0+1} offset:{L_INV}
    ds_read_b32 v{T0+5}, v{T0+5} offset:{L_INV}
    v_lshlrev_b32 v{T0+4}, 17, v{V_SLOT4}             ; slot << 19""")
    for i in range(2):
        a(f"""s_add_u32 m0, s3, {i*8192}
              s_mov_b64 exec, {sr(S_M+2*i,2)}
              buffer_load_dwordx4 v{G+i}, {sr(S_WS,4)}, s9 offen sc1 lds""")
    a(f"""s_add_u32 m0, s3, {2*8192}
    s_mov_b64 exec, {sr(S_M+4,2)}
    s_cbranch_execz SKIP3R
    buffer_load_dwordx4 v{G+2}, {sr(S_WS,4)}, s9 offen sc1 lds
SKIP3R:
    s_mov_b64 exec, -1""")
    a(f"""    s_waitcnt lgkmcnt(1)
    v_mul_u32_u24 v{T0+2}, {HS}, v{T0+1}
    v_add_u32 v{T0+2}, v{T0+2}, v{V_SIG4}
    ds_read_b32 v{T0+3}, v{T0+2} offset:{L_HIST}
    s_waitcnt lgkmcnt(1)
    v_lshlrev_b32 v{T0+5}, 2, v{T0+5}
    ds_bpermute_b32 v{H+2}, v{T0+5}, v{H}""")
    for k in range(5): a(f"v_readlane_b32 s{S_NODE+k}, v{T0+1}, {k}")
    a(f"""s_waitcnt lgkmcnt(0)
    v_cndmask_b32 v{T0+3}, 0, v{T0+3}, {sr(S_T,2)}
    v_cndmask_b32 v{H+2}, 0, v{H+2}, {sr(S_T+4,2)}
    v_sub_u32 v{T0+4}, v{T0+4}, v{T0+3}
    v_mov_b32 v{H+3}, v{H+2}""")
    scan64(a, T0 + 3, H + 3)
    a(f"""v_sub_u32 v{H+3}, v{H+3}, v{H+2}
    v_add_u32 v{T0+4}, v{T0+4}, v{T0+3}
    v_readlane_b32 s{S_START}, v{H+3}, s10
    v_readlane_b32 s{S_END}, v{T0+3}, 63
    s_nop 0
    v_add_u32 v{T0+4}, s{S_START}, v{T0+4}
    s_mov_b64 exec, {sr(S_T,2)}
    ds_write_b32 v{T0+2}, v{T0+4} offset:{L_HIST}
    s_mov_b64 exec, -1
    v_add_u32 v{V_POS}, s{S_START}, v{T0}
    v_lshlrev_b32 v{V_AENT}, 2, v{V_POS}
    v_add_u32 v{V_AENT}, {L_SENT}, v{V_AENT}
    s_add_u32 s10, s{S_END}, 3
    s_and_b32 s10, s10, -4
    s_min_u32 s{S_REMB}, s10, {8 if D == 8 else 4}
    s_sub_u32 s{S_REM}, s10, s{S_REMB}
    s_add_u32 s{S_END}, s{S_END}, s{S_START}""")
    a("s_waitcnt lgkmcnt(0)\ns_barrier")
    st('bases')
    for i in range(3): a(f"ds_read_b32 v{G+8+i}, v{G+8+i} offset:{L_HIST}")
    for i in range(3):
        a(f"""s_waitcnt lgkmcnt({2-i})
              v_lshrrev_b32 v{T0+1}, 16, v{G+8+i}
              v_and_b32 v{G+8+i}, 0xffff, v{G+8+i}
              v_or_b32 v{G+16+i}, v{G+16+i}, v{T0+1}
              v_add_lshl_u32 v{G+8+i}, v{G+8+i}, v{G+12+i}, 2""")
    for i in range(3):
        a(f"""s_mov_b64 exec, {sr(S_M+2*i,2)}
              ds_write_b32 v{G+8+i}, v{G+16+i} offset:{L_SENT}""")
    a("s_mov_b64 exec, -1")
    a("s_waitcnt lgkmcnt(0)")
    st('scattered')
    a("s_barrier")
    st('sorted')
    if opt.stamps: a(f"s_memtime s[100:101]\ns_waitcnt lgkmcnt(0)\ns_mov_b32 s{S_ST+30}, s100")
    meta_read_entry(a)
    a(f"""s_and_b32 s{S_WM}, s{S_WAVE}, 3
    s_lshl_b32 s{S_WM}, s{S_WM}, 13
    s_add_u32 s{S_WM}, s{S_WM}, {WS_WMIX}
    s_add_u32 s{S_WM+1}, s{S_WM}, 4096""")
    for k in range(8): a(f"v_mov_b32 v{RR+k}, 0")
    a("s_waitcnt lgkmcnt(0)")
    meta_fix_entry(a, False)
    a("s_nop 0")
    for e in range(D):
        a(f"""v_readlane_b32 s{S_K+e}, v{ENT}, {e}
              s_and_b32 s{S_OFF}, s{S_K+e}, s{S_MASK}
              buffer_load_dwordx4 {vr(XR+4*e,4)}, v{V_L16}, {sr(S_X,4)}, s{S_OFF} offen""")
    a(f"v_mov_b32 v{KEY}, v{ENT}\ns_waitcnt vmcnt({D})")
    st('recs landed')
    a("s_barrier")
    meta_read_rec(a)
    a(f"""s_waitcnt lgkmcnt(0)
    v_mov_b32 v{EF}, v{RECN+2}
    v_mov_b32 v{EF+1}, v{RECN+3}""")
    for i in range(4): a(w_mfma(i))
    a(p_mfma(0, 0)); a(p_mfma(0, 1)); a(p_mfma(1, 0))
    a("s_nop 1")
    for m in range(4): w_cvt(a, m)
    for odd in range(2):
        u, r = act_regs(0, odd)
        for h in range(2): a(act_addr(TT + 2 * odd + h, u + h))
        for h in range(2): a(act_read(r + h, TT + 2 * odd + h))
    st('fill done')
    a(f"s_waitcnt vmcnt({D-1})")
    st('first row')
    a(t_mfma(0, 0)); a(t_mfma(0, 1))
    body(a, opt, True)
    for q in range(0, 64, 4):
        a(f"TO_B_{q}:")
        for k in range(8):
            a(f"buffer_load_dwordx4 {vr(WMIX+4*k,4)}, v{V_L16}, {sr(S_WS,4)}, s{S_WM + k // 4} offen offset:{(k%4)*1024} sc1")
        if q: a(f"s_branch B_{q}")
        else: a("s_branch B_0")
    body(a, opt, False)
    a(f"""MAIN_DONE:
    s_waitcnt vmcnt(0) lgkmcnt(0)
    s_add_u32 s{S_W0}, s{S_W0}, {CAP}
    s_cmp_ge_u32 s{S_W0}, s{S_N}
    s_cbranch_scc1 ALL_DONE""")
    zero_hist(a)
    a("s_waitcnt lgkmcnt(0)\ns_barrier\ns_branch ROUND\nALL_DONE:")
    st('main done')
    if opt.stamps: a(f"s_memtime s[100:101]\ns_waitcnt lgkmcnt(0)\ns_sub_u32 s{S_ST+30}, s100, s{S_ST+30}")
    PK = XR
    for s in range(5):
        for o in range(4): a(f"v_cvt_pk_bf16_f32 v{PK+4*s+o}, v{ACC+8*s+o}, v{ACC+8*s+4+o}")
    a(f"""v_lshrrev_b32 v{T0}, 2, v{V_L16}
    v_add_u32 v{T0}, {L_AGG}, v{T0}""")
    for s in range(5):
        a(f"s_mul_i32 s{S_T}, s{S_NODE+s}, {4 * AGG_RS}\nv_add_u32 v{TP+s}, s{S_T}, v{T0}")
    a(f"""v_lshrrev_b32 v{T0+1}, 4, v{V_L16}            ; lane
    v_and_b32 v{T0+2}, 15, v{T0+1}
    v_lshrrev_b32 v{T0+3}, 4, v{T0+1}                 ; lane >> 4
    s_lshr_b32 s{S_T}, s{S_WAVE}, 2
    s_mul_i32 s{S_T+1}, s{S_T}, {80 * AGG_RS}
    s_add_u32 s{S_T+1}, s{S_T+1}, {L_AGG}
    v_mul_u32_u24 v{T0}, {AGG_RS}, v{T0+2}
    v_lshl_add_u32 v{T0}, v{T0+3}, 4, v{T0}
    v_add_u32 v{T0}, s{S_T+1}, v{T0}
    s_mul_i32 s{S_T}, s{S_T}, {20 << 18}
    s_lshl_b32 s{S_T+1}, s{S_BETA}, 10
    s_add_u32 s{S_T}, s{S_T}, s{S_T+1}
    s_and_b32 s{S_T+1}, s{S_WAVE}, 3
    s_lshl_b32 s{S_T+1}, s{S_T+1}, 8
    s_add_u32 s{S_T}, s{S_T}, s{S_T+1}
    v_lshlrev_b32 v{T0+3}, 18, v{T0+3}
    v_lshl_add_u32 v{T0+3}, v{T0+2}, 4, v{T0+3}
    v_add_u32 v{T0+3}, s{S_T}, v{T0+3}
    s_barrier""")
    st('all main done')
    for s in range(5):
        for o in range(4): a(f"ds_write_b32 v{TP+s}, v{PK+4*s+o} offset:{o*AGG_RS}")
    a("s_waitcnt lgkmcnt(0)\ns_barrier")
    st('agg in LDS')
    AF = XR
    def rd(t):
        for ks in range(4): a(f"ds_read_b128 {vr(AF+16*(t%2)+4*ks,4)}, v{T0} offset:{t*16*AGG_RS + ks*64}")
    def pack_store(t):
        d = ACC + 8 * t; p = RR + 4 * (t % 2)
        for j in range(4): a(f"v_cvt_pk_bf16_f32 v{p+j}, v{d+2*j}, v{d+2*j+1}")
        a(f"buffer_store_dwordx4 {vr(p,4)}, v{T0+3}, {sr(S_OUT,4)}, 0 offen {opt.outst}")
        if t < 4: a(f"v_add_u32 v{T0+3}, {4 << 18}, v{T0+3}")
    rd(0)
    for t in range(5):
        if t < 4: rd(t + 1)
        for ks in range(4):
            a(f"s_waitcnt lgkmcnt({(4 if t < 4 else 0) + 3 - ks})")
            for j in range(2):
                d = ACC + 8 * t + 4 * j
                a(f"v_mfma_f32_16x16x32_bf16 {vr(d,4)}, {vr(AF+16*(t%2)+4*ks,4)}, {vr(WMIX+16*j+4*ks,4)}, " + ("0" if ks == 0 else vr(d, 4)))
            if ks == 3 and t > 0: pack_store(t - 1)
    a("s_nop 7")
    pack_store(4)
    st('end')
    if opt.probe:
        a(f"""s_cmp_eq_u32 s93, 0
        s_cselect_b32 s93, s92, s93
        s_sub_u32 s93, s93, s92
        s_mul_i32 s93, s93, 4
        s_add_u32 s92, s92, s93
        s_add_u32 s92, s92, 6000
        HOLD_SPIN:
        s_memrealtime s[98:99]
        s_waitcnt lgkmcnt(0)
        s_sub_u32 s98, s98, s92
        s_cmp_lt_i32 s98, 0
        s_cbranch_scc1 HOLD_SPIN""")
    if opt.stamps:
        a("s_waitcnt vmcnt(0)")
        st('stores done 2')
        a(f"""s_lshl_b32 s10, s2, 3
        s_add_u32 s10, s10, s{S_WAVE}
        s_lshl_b32 s10, s10, 7
        s_add_u32 s10, s10, {WS_STAMP}
        v_mov_b32 v{T0}, s10
        s_sub_u32 s{S_ST+31}, s{S_END}, s{S_START}
        s_sub_u32 s{S_ST+29}, {1 << 21}, s{S_SPIN}""")
        for k in range(32): a(f"v_mov_b32 v{XR+k}, s{S_ST+k}")
        for k in range(8): a(f"buffer_store_dwordx4 {vr(XR+4*k,4)}, v{T0}, {sr(S_WS,4)}, 0 offen offset:{16*k}")
    a("END:\ns_endpgm")
    return a.text()

def generate(opt):
    here = os.path.dirname(os.path.abspath(__file__))
    out = open(here + "/header.txt").read()
    out += f"; @launch grid=(256,1,1) block=(512,1,1) lds={LDS_BYTES}\n"
    out += f'.amdgcn_target "amdgcn-amd-amdhsa--gfx950"\n.text\n.globl {KERN}\n.p2align 8\n.type {KERN},@function\n'
    out += kernel(opt)
    out += f""".section .rodata,"a"
.p2align 6
.amdhsa_kernel {KERN}
  .amdhsa_next_free_vgpr {NVGPR}
  .amdhsa_next_free_sgpr {NSGPR if opt.stamps or opt.probe else 66}
  .amdhsa_accum_offset {(NVGPR + 3) // 4 * 4}
  .amdhsa_group_segment_fixed_size 0
  .amdhsa_kernarg_size 88
  .amdhsa_user_sgpr_count 2
  .amdhsa_user_sgpr_kernarg_segment_ptr 1
  .amdhsa_system_sgpr_workgroup_id_x 1
  .amdhsa_float_denorm_mode_32 3
.end_amdhsa_kernel
"""
    return out

def options(argv):
    p = argparse.ArgumentParser()
    p.add_argument("-o", default="/code/" + NAME + ".s")
    p.add_argument("--stamps", action="store_true")
    p.add_argument("--probe", default="")
    p.add_argument("--D", type=int, default=7)
    p.add_argument("--hsplit", type=int, default=52)
    p.add_argument("--retry", default="sc1")
    p.add_argument("--rdy", type=int, default=0)
    p.add_argument("--lsplit", type=int, default=15)
    p.add_argument("--keypf", type=int, default=1)
    p.add_argument("--k1st", default="sc0 sc1")
    p.add_argument("--outst", default="sc0 sc1")
    p.add_argument("--dirmask", type=int, default=0x12)
    return p.parse_args(argv)

if __name__ == "__main__":
    opt = options(sys.argv[1:])
    RETRY = opt.retry
    open(opt.o, "w").write(generate(opt))
    if opt.stamps: open(opt.o + ".names", "w").write(repr(STAMPS))
```

```python
import sys, argparse, os

NAME = "gather_scatter__tensor_product_equiv_tfn__graph"
KERN = NAME + "_kernel"
N, E, C = 10000, 320000, 128
NP, EP = 250, 1280
WS_KEY = 0
WS_REC = 0x280000
WS_WMIX = 0x771000
WS_TAB = 0x780000
WS_RDY = WS_TAB + 256 * 2048
WS_EPOCH = WS_RDY + 256 * 1024
WS_END = WS_EPOCH + 128
WS_STAMP = 0x900000
CAP = 1472

class Asm:
    def __init__(self): self.l = []
    def __call__(self, s):
        for line in s.strip("\n").split("\n"):
            line = line.strip()
            if not line: continue
            self.l.append(line if line.endswith(":") else "    " + line)
    def text(self): return "\n".join(self.l) + "\n"

def vr(a, n=1): return f"v{a}" if n == 1 else f"v[{a}:{a+n-1}]"
def sr(a, n=1): return f"s{a}" if n == 1 else f"s[{a}:{a+n-1}]"

SCAN_STEPS = ["row_shr:1 row_mask:0xf bank_mask:0xf bound_ctrl:0", "row_shr:2 row_mask:0xf bank_mask:0xf bound_ctrl:0",
              "row_shr:4 row_mask:0xf bank_mask:0xf bound_ctrl:0", "row_shr:8 row_mask:0xf bank_mask:0xf bound_ctrl:0",
              "row_bcast:15 row_mask:0xa bank_mask:0xf", "row_bcast:31 row_mask:0xc bank_mask:0xf"]
def scan64(a, *regs):
    for c in SCAN_STEPS:
        a("s_nop 1" if len(regs) == 1 else "s_nop 0")
        for v in regs: a(f"v_add_u32_dpp v{v}, v{v}, v{v} {c}")

NSB, HS = 12, 48
L_HIST = 0; L_INV = 40 * HS; L_WT = L_INV + 256; L_CNT = L_WT + 64
L_SENT = L_WT + 128
L_UREC = L_SENT + CAP * 4
L_CG = L_UREC + CAP * 16
L_LUT = 32768
L1_HIST = L_SENT; L1_BASE = L1_HIST + 1024; L1_SREC = L1_BASE + 1024
L1_SKEY = L_LUT + 53 * 1024
assert L_CG + 128 <= L_LUT and L1_SREC + EP * 16 <= L_LUT and L1_BASE <= 4096
L_AGG = L_LUT; AGG_RS = 288
LDS_BYTES = L_LUT + 131072

V_L16 = 1
V_LEN, V_PRE, V_GID = 2, 3, 4
V_AENT, V_POS = 5, 6
V_SLOT4, V_SIG4, V_ONE = 7, 14, 15
V_FLAG = 166
T0 = 8
ACC = 16; XR = 64; TP = 96; UU = 112; RR = 128; TT = 136; WPK = 140; WTMP = 148
KEY = 164; ENT = 165; RECN = 168; EF = 172; CONST = 176; WMIX = 188
NVGPR = 220
PE, PO, CGB = CONST, CONST + 2, CONST + 4
LJ = 128
S_NODE = 4
S_X, S_WS, S_OUT = 12, 16, 20
S_BETA, S_WAVE, S_N, S_W0, S_NWIN, S_START, S_END, S_REM, S_REMB, S_OFF, S_MASK = range(24, 35)
S_SPIN = 35
S_M = 36
S_T = 42
S_K = 48
S_IN = 40
S_OD = 56
S_JOB, S_JCNT = 62, 63
S_NLO, S_NHI = 64, 65
S_WM = 10
S_L2E = 10
S_ST = 66
NSGPR = 102

STAMPS = []
RETRY = 'sc1'
def stamp(a, opt, name):
    if opt.probe == name: a("s_memrealtime s[98:99]\ns_waitcnt lgkmcnt(0)\ns_mov_b32 s93, s98")
    if not opt.stamps: return
    if name not in STAMPS: STAMPS.append(name)
    a(f"s_memrealtime s[98:99]\ns_waitcnt lgkmcnt(0)\ns_mov_b32 s{S_ST + STAMPS.index(name)}, s98")

def lut_jobs(a, tag, first, count):
    J, Ex, R, P = LJ, LJ + 8, LJ + 16, LJ + 24
    if first is not None: a(first)
    if count: a(f"s_mov_b32 s{S_JCNT}, {count}")
    a(f"""LUT_{tag}:
    s_lshl_b32 s3, s{S_JOB}, 25
    s_add_u32 s3, s3, 0x8000
    v_lshl_add_u32 v{J}, v{V_L16}, 15, s3""")
    for k in range(1, 8): a(f"v_add_u32 v{J+k}, {k << 16}, v{J}")
    for k in range(0, 8, 2): a(f"v_pk_mul_f32 {vr(Ex+k,2)}, {vr(J+k,2)}, {sr(S_L2E,2)}")
    for k in range(8): a(f"v_exp_f32 v{Ex+k}, v{Ex+k}")
    a(f"s_lshl_b32 s3, s{S_JOB}, 10")
    for k in range(0, 8, 2): a(f"v_pk_add_f32 {vr(R+k,2)}, {vr(Ex+k,2)}, 1.0 op_sel_hi:[1,0]")
    for k in range(8): a(f"v_rcp_f32 v{R+k}, v{R+k}")
    a(f"v_add_u32 v{P+8}, s3, v{V_L16}")
    for k in range(0, 8, 2): a(f"v_pk_mul_f32 {vr(J+k,2)}, {vr(J+k,2)}, {vr(R+k,2)}")
    a(f"v_add_u32 v{P+9}, 0x10000, v{P+8}")
    for k in range(0, 8, 2): a(f"v_pk_mul_f32 {vr(Ex+k,2)}, {vr(J+k,2)}, {vr(Ex+k,2)} neg_lo:[1,0] neg_hi:[1,0]")
    for k in range(4): a(f"v_cvt_pk_bf16_f32 v{P+k}, v{J+2*k}, v{J+2*k+1}")
    for k in range(4): a(f"v_cvt_pk_bf16_f32 v{P+4+k}, v{Ex+2*k}, v{Ex+2*k+1}")
    a(f"""ds_write_b128 v{P+8}, {vr(P,4)} offset:{L_LUT}
    ds_write_b128 v{P+9}, {vr(P+4,4)} offset:{L_LUT}
    s_add_u32 s{S_JOB}, s{S_JOB}, 1
    s_sub_u32 s{S_JCNT}, s{S_JCNT}, 1
    s_cmp_lg_u32 s{S_JCNT}, 0
    s_cbranch_scc1 LUT_{tag}""")

def lut_plain(a, tag, region, last=None, cont=False):
    P = LJ
    for name, first, end, bias in (("L", 1, 24, 0x20000 - 0x800080), ("H", 34, 62, 0x20000)):
        if name != region: continue
        last = last or end
        if cont: a(f"s_cmp_gt_u32 s{S_JOB}, {last}\ns_cbranch_scc1 LUTP_END_{tag}")
        else: a(f"s_add_u32 s{S_JOB}, s{S_WAVE}, {first}")
        if name == "H" and not cont:
            for k in range(4): a(f"v_mov_b32 v{P+4+k}, 0x80008000")
        a(f"""LUTP_{tag}{name}:
        s_mul_i32 s3, s{S_JOB}, {512 * 0x10001}
        s_add_u32 s3, s3, {bias & 0xffffffff}
        v_add_u32 v{P}, s3, v{P+10}
        s_lshl_b32 s3, s{S_JOB}, 10
        v_add_u32 v{P+8}, s3, v{V_L16}""")
        for k in range(1, 4): a(f"v_add_u32 v{P+k}, {k * 0x20002}, v{P}")
        a(f"v_add_u32 v{P+9}, 0x10000, v{P+8}")
        if name == "L":
            for k in range(4): a(f"v_or_b32 v{P+4+k}, 0x80008000, v{P+k}")
        a(f"""ds_write_b128 v{P+8}, {vr(P,4)} offset:{L_LUT}
        ds_write_b128 v{P+9}, {vr(P+4,4)} offset:{L_LUT}
        s_add_u32 s{S_JOB}, s{S_JOB}, {5 if name == "L" else 4}
        s_cmp_le_u32 s{S_JOB}, {last}
        s_cbranch_scc1 LUTP_{tag}{name}
        LUTP_END_{tag}:""")

def flag_store(a, base):
    a(f"""s_lshl_b32 s3, s2, 10
    s_add_u32 s3, s3, {base}
    v_lshl_add_u32 v{T0+2}, v{V_L16}, 3, s3
    v_mov_b32 v{T0+4}, s{S_NLO}
    v_mov_b32 v{T0+5}, s{S_NHI}
    s_mov_b64 exec, 0xff
    global_store_dwordx2 v{T0+2}, {vr(T0+4,2)}, {sr(S_WS,2)} sc0 sc1
    s_mov_b64 exec, -1""")

def poll_issue(a, dst, addr, soff):
    a(f"buffer_load_dwordx2 {vr(dst,2)}, v{addr}, {sr(S_WS,4)}, {soff} offen sc1")
def poll_check(a, tag, dst, addr, soff, hi, pre=""):
    a(f"""POLL_{tag}:
    s_waitcnt vmcnt(0)
    {pre}
    v_cmp_ne_u32 vcc, s{S_NLO}, v{dst + 1 if pre else dst}
    v_cmp_ne_u32 {sr(S_T,2)}, s{S_NHI}, v{hi}
    s_or_b64 vcc, vcc, {sr(S_T,2)}
    s_and_b64 exec, exec, vcc
    s_cbranch_execz POLLED_{tag}
    s_sub_u32 s{S_SPIN}, s{S_SPIN}, 1
    s_cbranch_scc1 END""")
    if RETRY == "atomic":
        a(f"""v_mov_b32 v{dst}, 0
        v_mov_b32 v{dst+1}, 0
        buffer_atomic_or_x2 {vr(dst,2)}, v{addr}, {sr(S_WS,4)}, {soff} offen sc0""")
    else: a(f"buffer_load_dwordx2 {vr(dst,2)}, v{addr}, {sr(S_WS,4)}, {soff} offen {RETRY}")
    a(f"""s_branch POLL_{tag}
    POLLED_{tag}:
    s_mov_b64 exec, -1""")

def load_epoch(a):
    a(f"""s_add_u32 s4, s{S_WS}, {WS_EPOCH}
    s_addc_u32 s5, s{S_WS+1}, 0
    s_load_dwordx2 {sr(S_NLO,2)}, s[4:5], 0""")
def make_tag(a):
    a(f"""s_add_u32 s{S_NLO}, s{S_NLO}, 1
    s_and_b32 s{S_NHI}, s{S_NHI}, 0x3ff""")

def scan256(a, H_, O_):
    a(f"""v_add_u32 v{T0+2}, v{H_}, v{H_+1}
    v_add3_u32 v{T0+2}, v{T0+2}, v{H_+2}, v{H_+3}
    v_mov_b32 v{T0+3}, v{T0+2}""")
    scan64(a, T0 + 3)
    a(f"""v_sub_u32 v{O_}, v{T0+3}, v{T0+2}
    v_add_u32 v{O_+1}, v{O_}, v{H_}
    v_add_u32 v{O_+2}, v{O_+1}, v{H_+1}
    v_add_u32 v{O_+3}, v{O_+2}, v{H_+2}""")

def phase1(a, opt):
    st = lambda n: stamp(a, opt, n)
    SRC, DST, YY, EFP, WRAD, CG, WMX = S_IN + 2, S_IN + 4, S_IN + 6, S_IN + 8, S_IN + 10, S_IN + 12, S_IN + 14
    WS = sr(S_WS, 2); FL = opt.k1st
    D_, S_, Y_, F_, B_, R_, H_, O_, TB = 64, 68, 72, 80, 88, 92, 96, 100, 108
    CT = WMIX
    def const_issue():
        a(f"v_lshrrev_b32 v{CT+5}, 2, v{V_L16}")
        for k in range(4): a(f"global_load_dword v{CT+k}, v{CT+5}, {sr(WRAD,2)} offset:{k*256}")
        a(f"v_and_b32 v{CT+5}, 0x7f, v{CT+5}\nglobal_load_dword v{CT+4}, v{CT+5}, {sr(CG,2)}")
    def const_finish():
        a(f"""ds_write_b32 v{CT+5}, v{CT+4} offset:{L_CG}
        v_lshrrev_b32 v{CT+5}, 3, v{V_L16}
        v_and_b32 v{CT+5}, 24, v{CT+5}
        s_mov_b32 s4, 0x05040100
        s_mov_b32 s5, 0x07060302""")
        for i in range(4): a(f"ds_read_b64_tr_b16 {vr(CGB+2*i,2)}, v{CT+5} offset:{L_CG + 32*i}")
        for u in range(2):
            a(f"v_perm_b32 v{PE+u}, v{CT+1+2*u}, v{CT+2*u}, s4\nv_perm_b32 v{PO+u}, v{CT+1+2*u}, v{CT+2*u}, s5")
    def rec_stores(tag, first, count):
        a(f"""s_cmp_ge_u32 s2, {NP}
        s_cbranch_scc1 NO_RECS_{tag}
        s_mul_i32 s3, s2, {EP * 16}
        s_add_u32 s3, s3, {WS_REC + first * 1024}
        v_add_u32 v{T0+1}, s3, v{V_L16}""")
        for k in range(count): a(f"ds_read_b128 {vr(84+4*k,4)}, v{V_L16} offset:{L1_SREC + (first + k) * 1024}")
        for k in range(count):
            if k == 4: a(f"v_add_u32 v{T0+1}, 4096, v{T0+1}")
            a(f"s_waitcnt lgkmcnt({count-1-k})\nglobal_store_dwordx4 v{T0+1}, {vr(84+4*k,4)}, {WS} offset:{(1024*k) % 4096} {FL}")
        a(f"NO_RECS_{tag}:")
    def key_stores(first, count):
        a(f"""s_mul_i32 s3, s2, {EP * 8}
        s_add_u32 s3, s3, {WS_KEY + first * 1024}
        v_add_u32 v{T0+1}, s3, v{V_L16}
        v_add_u32 v{T0+2}, {L1_SKEY + first * 1024}, v{V_L16}
        s_barrier""")
        for k in range(count): a(f"ds_read_b128 {vr(64+4*k,4)}, v{T0+2} offset:{1024*k}")
        for k in range(count):
            a(f"s_waitcnt lgkmcnt({count-1-k})\nglobal_store_dwordx4 v{T0+1}, {vr(64+4*k,4)}, {WS} offset:{1024*k} {FL}")
        a("s_barrier")
    a(f"""s_cmp_ge_u32 s{S_WAVE}, 5
    s_cbranch_scc1 HELP
    v_mul_u32_u24 v{LJ+10}, 0x8000, v{V_L16}
    v_lshrrev_b32 v{T0+2}, 1, v{V_L16}
    v_add_u32 v{LJ+10}, v{LJ+10}, v{T0+2}           ; lane * 8 * 0x10001
    s_cmp_ge_u32 s2, {NP}
    s_cbranch_scc1 AUX
    s_mul_i32 s3, s2, {EP * 4}
    v_lshl_add_u32 v{T0}, v0, 4, s3
    v_lshlrev_b32 v{T0+1}, 1, v{T0}
    s_mov_b32 s9, {L1_SKEY}
    s_setprio 1
    s_waitcnt lgkmcnt(0)""")
    st('kernargs')
    def load_yf():
        a(f"""global_load_dwordx4 {vr(Y_,4)}, v{T0+1}, {sr(YY,2)}
        global_load_dwordx4 {vr(Y_+4,4)}, v{T0+1}, {sr(YY,2)} offset:16
        global_load_dwordx4 {vr(F_,4)}, v{T0+1}, {sr(EFP,2)}
        global_load_dwordx4 {vr(F_+4,4)}, v{T0+1}, {sr(EFP,2)} offset:16""")
    a(f"""global_load_dwordx4 {vr(D_,4)}, v{T0}, {sr(DST,2)}
    global_load_dwordx4 {vr(S_,4)}, v{T0}, {sr(SRC,2)}""")
    const_issue()
    if not opt.lsplit: load_yf()
    load_epoch(a)
    a("s_barrier")
    if opt.lsplit:
        lut_plain(a, "W0", "L", last=opt.lsplit)
        load_yf()
        lut_plain(a, "W", "L", cont=True)
    else: lut_plain(a, "W", "L")
    a("s_waitcnt lgkmcnt(0)")
    make_tag(a)
    for k in range(4): a(f"v_mov_b32 v{TB+2*k+1}, s{S_NLO}")
    st('jobs A')
    a("s_waitcnt vmcnt(10)")
    st('dst arrived')
    for k in range(4):
        a(f"""v_and_b32 v{B_+k}, 0xff, v{D_+k}
              v_lshlrev_b32 v{B_+k}, 2, v{B_+k}
              ds_add_rtn_u32 v{R_+k}, v{B_+k}, v{V_ONE} offset:{L1_HIST}""")
    a("s_waitcnt vmcnt(9)")
    for k in range(4):
        a(f"""v_lshrrev_b32 v{D_+k}, 8, v{D_+k}
              v_lshl_or_b32 v{TB+2*k}, v{S_+k}, 10, v{D_+k}""")
    a(f"""s_waitcnt lgkmcnt(0)
    s_barrier
    ds_read_b128 {vr(H_,4)}, v{V_L16} offset:{L1_HIST}
    s_waitcnt lgkmcnt(0)""")
    scan256(a, H_, O_)
    a(f"ds_write_b128 v{V_L16}, {vr(O_,4)} offset:{L1_BASE}")
    for k in range(4): a(f"ds_read_b32 v{H_+k}, v{B_+k} offset:{L1_BASE}")
    for k in range(4):
        a(f"""s_waitcnt lgkmcnt(3)
              v_add_u32 v{R_+k}, v{R_+k}, v{H_+k}
              v_lshl_add_u32 v{B_+k}, v{R_+k}, 3, s9
              ds_write_b64 v{B_+k}, {vr(TB+2*k,2)}""")
    for k in range(4):
        a(f"v_lshlrev_b32 v{R_+k}, 4, v{R_+k}\nv_add_u32 v{R_+k}, {L1_SREC}, v{R_+k}")
    a("s_waitcnt lgkmcnt(0)\ns_barrier")
    st('keys binned')
    a("s_waitcnt vmcnt(0)")
    for k in range(4):
        a(f"ds_write2_b64 v{R_+k}, {vr(Y_+2*k,2)}, {vr(F_+2*k,2)} offset0:0 offset1:1")
    st('recs binned')
    const_finish()
    a("s_setprio 0\ns_branch BINNED")
    a(f"""AUX:
    v_lshrrev_b32 v{T0}, 4, v{V_L16}                ; lane
    s_waitcnt lgkmcnt(0)""")
    load_epoch(a)
    const_issue()
    a(f"""s_waitcnt lgkmcnt(0)
    s_cmp_ge_u32 s2, {NP + 4}
    s_cbranch_scc1 AUX_IDLE
    s_cmp_ge_u32 s{S_WAVE}, 4
    s_cbranch_scc1 AUX_IDLE
    s_sub_u32 s4, s2, {NP}
    s_lshl_b32 s5, s{S_WAVE}, 13
    s_lshl_b32 s6, s4, 6
    s_add_u32 s5, s5, s6
    v_lshrrev_b32 v{T0+1}, 4, v{T0}
    v_lshlrev_b32 v{T0+1}, 11, v{T0+1}
    v_and_b32 v{T0+2}, 15, v{T0}
    v_lshl_add_u32 v{T0+1}, v{T0+2}, 2, v{T0+1}
    v_add_u32 v{T0+1}, s5, v{T0+1}
    s_lshl_b32 s5, s4, 13
    s_lshl_b32 s6, s{S_WAVE}, 10
    s_add_u32 s5, s5, s6
    s_add_u32 s5, s5, {WS_WMIX}
    v_add_u32 v{T0+2}, s5, v{V_L16}
    s_mov_b32 s4, 0x05040100
    s_mov_b32 s5, 0x07060302""")
    for t in range(8): a(f"global_load_dword v{64+t}, v{T0+1}, {sr(WMX,2)} offset:{t*256}")
    a("s_barrier")
    lut_plain(a, "X", "L")
    a("s_waitcnt vmcnt(0)")
    for u in range(4):
        a(f"v_perm_b32 v{72+u}, v{65+2*u}, v{64+2*u}, s4\nv_perm_b32 v{76+u}, v{65+2*u}, v{64+2*u}, s5")
    a(f"""global_store_dwordx4 v{T0+2}, v[72:75], {WS} {FL}
    v_add_u32 v{T0+2}, 4096, v{T0+2}
    global_store_dwordx4 v{T0+2}, v[76:79], {WS} {FL}
    s_branch AUX_DONE
AUX_IDLE:
    s_barrier""")
    lut_plain(a, "Z", "L")
    a("AUX_DONE:")
    make_tag(a)
    a("""s_waitcnt lgkmcnt(0)
    s_barrier
    s_barrier
    s_waitcnt vmcnt(0)""")
    const_finish()
    a("s_branch BINNED")
    a("HELP:\ns_waitcnt lgkmcnt(0)")
    load_epoch(a)
    const_issue()
    a(f"""s_barrier
    s_cmp_lg_u32 s{S_WAVE}, 7
    s_cbranch_scc1 HELP56""")
    lut_jobs(a, "7a", f"s_mov_b32 s{S_JOB}, 63", 1)
    a(f"""v_mov_b32 v{T0+2}, {0x7f80 * 2}
    v_mov_b32 v{T0+3}, 0x7f80
    ds_write_b16 v{T0+2}, v{T0+3} offset:{L_LUT}""")
    lut_jobs(a, "7b", f"s_mov_b32 s{S_JOB}, 33", 1)
    st('help jobs')
    a("s_waitcnt vmcnt(0)")
    st('help consts')
    const_finish()
    a("s_waitcnt lgkmcnt(0)")
    make_tag(a)
    a("s_barrier")
    key_stores(0, 4)
    rec_stores("7", 0, 6)
    a(f"""s_branch STORED
HELP56:
    s_cmp_eq_u32 s{S_WAVE}, 6
    s_cbranch_scc1 HELP6""")
    lut_jobs(a, "5a", f"s_mov_b32 s{S_JOB}, 0", 1)
    lut_jobs(a, "5b", f"s_mov_b32 s{S_JOB}, 25", 1)
    st('help jobs')
    a("s_waitcnt vmcnt(0)")
    st('help consts')
    const_finish()
    a("s_waitcnt lgkmcnt(0)")
    make_tag(a)
    a("s_barrier")
    key_stores(4, 3)
    rec_stores("5", 6, 7)
    a("s_branch STORED\nHELP6:")
    lut_jobs(a, "6", f"s_mov_b32 s{S_JOB}, 26", 2)
    st('help jobs')
    a("s_waitcnt vmcnt(0)")
    st('help consts')
    const_finish()
    a(f"""s_lshl_b32 s3, s2, 11
    s_add_u32 s3, s3, {WS_TAB}
    v_lshl_add_u32 v{T0}, v{V_L16}, 1, s3
    s_waitcnt lgkmcnt(0)""")
    make_tag(a)
    a(f"""s_barrier
    ds_read_b128 {vr(H_,4)}, v{V_L16} offset:{L1_HIST}
    s_waitcnt lgkmcnt(0)""")
    scan256(a, H_, O_)
    a(f"s_lshl_b32 s3, s{S_NHI}, 22")
    for k in range(4):
        a(f"""v_lshl_or_b32 v{TB+2*k}, v{H_+k}, 11, v{O_+k}
              v_or_b32 v{TB+2*k}, s3, v{TB+2*k}
              v_mov_b32 v{TB+2*k+1}, s{S_NLO}""")
    a(f"""global_store_dwordx4 v{T0}, {vr(TB,4)}, {WS} sc0 sc1
    global_store_dwordx4 v{T0}, {vr(TB+4,4)}, {WS} offset:16 sc0 sc1""")
    st('table published')
    key_stores(7, 3)
    rec_stores("6", 13, 7)
    a(f"""STORED:
    v_mov_b32 v{V_LEN}, 0
    s_branch TAB_DONE
BINNED:
    v_mov_b32 v{V_LEN}, 0
    s_cmp_eq_u32 s{S_WAVE}, 4
    s_cbranch_scc0 POLLER
    s_waitcnt lgkmcnt(0)
    s_barrier""")
    lut_jobs(a, "4", f"s_mov_b32 s{S_JOB}, 31", 2)
    a("s_branch TAB_DONE\nPOLLER:")
    lut_plain(a, "U", "H", last=opt.hsplit)
    poll_issue(a, V_LEN, V_POS, 0)
    a("s_waitcnt lgkmcnt(0)\ns_barrier")
    st('tab issued')
    lut_plain(a, "V", "H", cont=True)
    poll_check(a, "TAB", V_LEN, V_POS, 0, T0 + 3, f"v_lshrrev_b32 v{T0+3}, 22, v{V_LEN}")
    st('tab arrived')
    a("TAB_DONE:")

def mfma4(d, a_, b, c, blk=None):
    cc = "0" if c is None else vr(c, 4)
    return f"v_mfma_f32_4x4x4_16b_bf16 {vr(d,4)}, {vr(a_,2)}, {vr(b,2)}, {cc}" + ("" if blk is None else f" cbsz:4 abid:{blk}")
def p_mfma(g, odd):
    return mfma4(UU + 8 * (g % 2) + 4 * odd, EF, PO if odd else PE, None, g % 16)
def t_mfma(e, odd):
    return mfma4(TP + 8 * (e % 2) + 4 * odd, WPK + 2 * (e % 4), XR + 4 * (e % 8) + 2 * odd, None, (e % 64) // 4)
def act_regs(eb, odd):
    return UU + 8 * ((eb // 4) % 2) + 4 * odd + eb % 4, RR + 4 * ((eb // 2) % 2) + 2 * odd
def act_addr(t, u):
    return f"v_lshlrev_b32_sdwa v{t}, v{V_ONE}, v{u} dst_sel:DWORD dst_unused:UNUSED_PAD src0_sel:DWORD src1_sel:WORD_1"
def act_read(r, t): return f"ds_read_u16_d16_hi v{r}, v{t} offset:{L_LUT}"
def fma4(a, q):
    h = q % 2
    a(f"s_set_gpr_idx_on s{S_K + q % 16}, 0xc")
    for odd in range(2):
        r = RR + 4 * ((q // 2) % 2) + 2 * odd
        for o in (0, 2):
            acc = ACC + 4 * odd + o; tp = TP + 8 * (q % 2) + 4 * odd + o
            a(f"v_pk_fma_f32 {vr(acc,2)}, {vr(r,2)}, {vr(tp,2)}, {vr(acc,2)} op_sel:[{h},0,0] op_sel_hi:[{h},1,1]")
    a("s_set_gpr_idx_off")
def meta_read_entry(a): a(f"ds_read_b32 v{ENT}, v{V_AENT}")
def meta_fix_entry(a, rec=True):
    a(f"""v_cmp_gt_u32 vcc, s{S_END}, v{V_POS}
          v_add_u32 v{V_POS}, 64, v{V_POS}
          v_add_u32 v{V_AENT}, 256, v{V_AENT}
          v_cndmask_b32 v{ENT}, 40, v{ENT}, vcc
          v_lshrrev_b32 v{T0}, 21, v{ENT}
          v_lshlrev_b32 v{T0}, 4, v{T0}
          v_lshlrev_b32 v{T0+1}, 3, v{ENT}""")
    if rec: meta_read_rec(a)
    a(f"""v_and_b32 v{T0+1}, 0xfffc00, v{T0+1}
          v_and_or_b32 v{ENT}, v{ENT}, 56, v{T0+1}""")
def meta_read_rec(a): a(f"ds_read_b128 {vr(RECN,4)}, v{T0} offset:{L_UREC}")
def w_mfma(i): return mfma4(WTMP + 4 * i, RECN, CGB + 2 * i, None)
def w_cvt(a, m):
    a(f"""v_cvt_pk_bf16_f32 v{WPK+2*m}, v{WTMP+m}, v{WTMP+4+m}
          v_cvt_pk_bf16_f32 v{WPK+2*m+1}, v{WTMP+8+m}, v{WTMP+12+m}""")

def body(a, opt, loads):
    D = opt.D; tag = "A" if loads else "B"
    for q in range(64):
        if q % 4 == 0:
            a(f"{tag}_{q}:")
            if loads: a(f"s_sub_u32 s{S_REM}, s{S_REM}, 4\ns_cbranch_scc1 TO_B_{q}")
            else:     a(f"s_sub_u32 s{S_REMB}, s{S_REMB}, 4\ns_cbranch_scc1 MAIN_DONE")
        eb = q + 2 - q % 2; odd = q % 2
        u, r = act_regs(eb, odd); t = TT + 2 * odd
        g, ur = (q + 6) // 4, (q + 6) % 4
        if ur % 2 == 0: a(p_mfma(g, ur // 2))
        elif 40 <= q < 48: a(w_mfma((q - 40) // 2))
        a(act_addr(t, u))
        a(f"s_waitcnt vmcnt({D - 2 if loads else 8 + max(0, D - (6 if D == 8 else 2) - q % 4)})")
        a(t_mfma(q + 1, 0))
        if loads: a(f"v_readlane_b32 s{S_K + (q + D) % 16}, v{KEY if q + D < 64 else ENT}, {(q + D) % 64}")
        else:     a("s_nop 0")
        a(t_mfma(q + 1, 1))
        a(act_addr(t + 1, u + 1))
        a(act_read(r, t)); a(act_read(r + 1, t + 1))
        if q >= 60: w_cvt(a, q - 60)
        if loads:
            a(f"s_and_b32 s{S_OFF}, s{S_K + (q + D) % 16}, s{S_MASK}")
            a(f"buffer_load_dwordx4 {vr(XR + 4 * ((q + D) % 8), 4)}, v{V_L16}, {sr(S_X,4)}, s{S_OFF} offen")
        if q % 2 == 0: a("s_waitcnt lgkmcnt(2)")
        fma4(a, q)
        if q == 8: meta_read_entry(a)
        if q == 12: meta_fix_entry(a)
        if q == 57: a(f"v_mov_b32 v{EF}, v{RECN+2}\nv_mov_b32 v{EF+1}, v{RECN+3}\ns_nop 1")
        if q == 63: a(f"v_mov_b32 v{KEY}, v{ENT}")
    a(f"s_branch {tag}_0")

def zero_hist(a):
    a(f"""v_lshlrev_b32 v{T0+3}, 2, v0
    v_mov_b32 v{T0+4}, 0
    v_cmp_gt_u32 vcc, {40 * HS // 4}, v0
    s_and_saveexec_b64 {sr(S_T,2)}, vcc
    ds_write_b32 v{T0+3}, v{T0+4} offset:{L_HIST}
    s_mov_b64 exec, {sr(S_T,2)}""")

def kernel(opt):
    a = Asm(); D = opt.D
    st = lambda n: stamp(a, opt, n)
    a(f"""{KERN}:
    s_cmp_ge_u32 s2, 256
    s_cbranch_scc1 END""")
    if opt.probe: a("s_mov_b32 s93, 0\ns_memrealtime s[98:99]\ns_waitcnt lgkmcnt(0)\ns_mov_b32 s92, s98")
    if opt.stamps:
        for k in range(32): a(f"s_mov_b32 s{S_ST+k}, 0")
    st('start')
    a(f"""s_load_dwordx16 {sr(S_IN,16)}, s[0:1], 0
    s_load_dwordx4 {sr(S_OD,4)}, s[0:1], 64
    s_load_dwordx2 {sr(S_WS,2)}, s[0:1], 80
    s_load_dwordx2 {sr(S_X,2)}, s[0:1], 0
    s_load_dwordx2 {sr(S_OUT,2)}, s[0:1], 64
    s_and_b32 s4, s2, 7
    s_lshl_b32 s4, s4, 5
    s_lshr_b32 s5, s2, 3
    s_or_b32 s{S_BETA}, s4, s5
    v_lshrrev_b32 v{T0}, 6, v0
    v_and_b32 v{T0+1}, 63, v0
    v_lshlrev_b32 v{V_L16}, 4, v{T0+1}
    v_readfirstlane_b32 s{S_WAVE}, v{T0}
    v_lshlrev_b32 v{T0+3}, 3, v0
    v_mov_b32 v{T0+4}, 0
    v_mov_b32 v{T0+5}, 0
    ds_write_b64 v{T0+3}, {vr(T0+4,2)}
    v_mov_b32 v{V_ONE}, 1
    s_mov_b32 s{S_X+2}, {N * 1024}
    s_mov_b32 s{S_X+3}, 0x20000
    s_mov_b32 s{S_WS+2}, {WS_END if not opt.stamps else WS_STAMP + 0x80000}
    s_mov_b32 s{S_WS+3}, 0x20000
    s_mov_b32 s{S_OUT+2}, {N * 1024}
    s_mov_b32 s{S_OUT+3}, 0x20000
    s_mov_b32 s{S_MASK}, 0xfffffc00
    s_mov_b32 s{S_W0}, 0
    s_mov_b32 s{S_L2E}, 0xbfb8aa3b
    s_mov_b32 s{S_L2E+1}, 0xbfb8aa3b
    v_mul_u32_u24 v{V_SIG4}, 52, v{T0+1}
    v_lshrrev_b32 v{V_SIG4}, 8, v{V_SIG4}            ; lane / 5
    v_mul_u32_u24 v{V_SLOT4}, 5, v{V_SIG4}
    v_sub_u32 v{V_SLOT4}, v{T0+1}, v{V_SLOT4}        ; lane % 5
    v_lshlrev_b32 v{V_SIG4}, 2, v{V_SIG4}
    v_lshlrev_b32 v{V_SLOT4}, 2, v{V_SLOT4}
    s_mov_b32 s{S_SPIN}, {1 << 21}
    v_and_b32 v{V_GID}, 0xff, v0
    s_lshl_b32 s3, s{S_BETA}, 3
    s_add_u32 s3, s3, {WS_TAB}
    v_lshl_add_u32 v{V_POS}, v{V_GID}, 11, s3
    s_and_b32 s3, s2, 7
    s_lshl_b32 s3, s3, 7
    s_add_u32 s3, s3, {WS_RDY}
    s_lshl_b32 s4, s{S_WAVE}, 15
    s_add_u32 s3, s3, s4
    v_and_b32 v{V_FLAG}, 31, v0
    v_lshl_add_u32 v{V_FLAG}, v{V_FLAG}, 10, s3      ; flag of producer 32 wave + lane % 32
    v_mul_u32_u24 v{V_GID}, {EP}, v{V_GID}""")
    for k in range(48): a(f"v_mov_b32 v{ACC+k}, 0")
    phase1(a, opt)
    a(f"""v_and_b32 v{T0+5}, 0x7ff, v{V_LEN}
    v_bfe_u32 v{V_LEN}, v{V_LEN}, 11, 11
    v_lshrrev_b32 v{T0+1}, 4, v{V_L16}                ; lane
    v_add_u32 v{V_GID}, v{V_GID}, v{T0+5}
    v_mov_b32 v{V_PRE}, v{V_LEN}""")
    if opt.keypf:
        a(f"""s_cmp_ge_u32 s{S_WAVE}, 4
        s_cbranch_scc1 NO_KEY_TOUCH
        v_lshlrev_b32 v{T0+2}, 3, v{V_GID}
        buffer_load_dword v{V_FLAG+1}, v{T0+2}, {sr(S_WS,4)}, 0 offen sc1""")
        if opt.keypf > 1:
            a(f"""v_lshl_add_u32 v{T0+2}, v{V_LEN}, 3, v{T0+2}
            v_subrev_u32 v{T0+2}, 8, v{T0+2}
            buffer_load_dword v{V_FLAG+1}, v{T0+2}, {sr(S_WS,4)}, 0 offen sc1""")
        a("NO_KEY_TOUCH:")
    scan64(a, V_PRE)
    a(f"""s_nop 0
    v_readlane_b32 s{S_T+2}, v{V_PRE}, 63
    v_sub_u32 v{V_PRE}, v{V_PRE}, v{V_LEN}
    v_cmp_lt_u32 vcc, s{S_WAVE}, v{T0+1}
    v_cmp_gt_u32 {sr(S_T,2)}, 9, v{T0+1}
    v_lshlrev_b32 v{T0+2}, 2, v{T0+1}
    v_mov_b32 v{T0+3}, s{S_T+2}
    s_and_b64 vcc, vcc, {sr(S_T,2)}
    s_and_saveexec_b64 {sr(S_T,2)}, vcc
    ds_add_u32 v{T0+2}, v{T0+3} offset:{L_WT}
    s_mov_b64 exec, {sr(S_T,2)}
    s_lshl_b32 s3, s{S_WAVE}, 2
    v_mov_b32 v{T0+2}, s3
    v_mov_b32 v{T0+3}, 32
    s_waitcnt lgkmcnt(0)
    s_barrier
    ds_read_b32 v{T0}, v{T0+2} offset:{L_WT}
    ds_read_b32 v{T0+3}, v{T0+3} offset:{L_WT}
    s_cmp_lg_u32 s{S_WAVE}, 4
    s_cbranch_scc1 EPOCH_DONE""")
    a(f"""s_cmp_lg_u32 s2, 0
    s_cbranch_scc1 EPOCH_DONE
    v_mov_b32 v{T0+4}, s{S_NLO}
    v_mov_b32 v{T0+2}, {WS_EPOCH}
    s_mov_b64 exec, 1
    global_store_dword v{T0+2}, v{T0+4}, {sr(S_WS,2)} sc0 sc1
    s_mov_b64 exec, -1
EPOCH_DONE:
    s_waitcnt lgkmcnt(0)
    v_add_u32 v{V_PRE}, v{V_PRE}, v{T0}
    v_readfirstlane_b32 s{S_N}, v{T0+3}""")
    st('prefix done')
    a(f"s_cmp_lt_u32 s{S_WAVE}, 5\ns_cbranch_scc1 RECS_FLAGGED")
    a(f"""v_mov_b32 v{T0+2}, {L_CNT}
    s_waitcnt vmcnt(0)
    s_mov_b64 exec, 1
    ds_add_rtn_u32 v{T0+2}, v{T0+2}, v{V_ONE}
    s_mov_b64 exec, -1
    s_waitcnt lgkmcnt(0)
    v_readfirstlane_b32 s3, v{T0+2}
    s_cmp_lg_u32 s3, 2
    s_cbranch_scc1 RECS_FLAGGED""")
    flag_store(a, WS_RDY)
    st('recs flagged')
    a("RECS_FLAGGED:")
    a(f"""ROUND:
    v_mov_b32 v{T0}, 0
    v_subrev_u32 v{T0+1}, s{S_W0}, v{V_PRE}
    v_mov_b32 v{T0+2}, v{V_GID}
    s_mov_b32 s3, {CAP}
    s_cmp_gt_u32 s{S_N}, {CAP}
    s_cbranch_scc1 EXPAND
    v_lshlrev_b32 v{T0+3}, 2, v{V_PRE}""")
    for j in range(16):
        a(f"v_cmpx_lt_u32 vcc, {j}, v{V_LEN}")
        if j % 2 == 0 and j >= 6: a("s_cbranch_execz EXPAND_DONE")
        a(f"ds_write_b32 v{T0+3}, v{T0+2} offset:{L_SENT + 4*j}\nv_add_u32 v{T0+2}, 1, v{T0+2}")
    a(f"""v_mov_b32 v{T0}, 16
    v_add_u32 v{T0+1}, 16, v{T0+1}
EXPAND:
    v_cmp_lt_u32 vcc, v{T0}, v{V_LEN}
    s_and_b64 exec, exec, vcc
    s_cbranch_execz EXPAND_DONE
    v_cmp_gt_u32 vcc, s3, v{T0+1}
    v_lshlrev_b32 v{T0+3}, 2, v{T0+1}
    s_and_saveexec_b64 {sr(S_T,2)}, vcc
    ds_write_b32 v{T0+3}, v{T0+2} offset:{L_SENT}
    s_mov_b64 exec, {sr(S_T,2)}
    v_add_u32 v{T0}, 1, v{T0}
    v_add_u32 v{T0+1}, 1, v{T0+1}
    v_add_u32 v{T0+2}, 1, v{T0+2}
    s_branch EXPAND
EXPAND_DONE:
    s_mov_b64 exec, -1
    s_sub_u32 s{S_NWIN}, s{S_N}, s{S_W0}
    s_min_u32 s{S_NWIN}, s{S_NWIN}, {CAP}
    v_lshlrev_b32 v{T0}, 2, v0""")
    for i in range(3):
        a(f"""v_add_u32 v{T0+1}, {512*i}, v0
              v_cmp_gt_u32 {sr(S_M+2*i,2)}, s{S_NWIN}, v{T0+1}""")
    st('list built')
    a("s_waitcnt lgkmcnt(0)\ns_barrier")
    st('list barrier')
    G = XR
    KP = TP
    for i in range(3): a(f"ds_read_b32 v{G+i}, v{T0} offset:{L_SENT + 2048*i}")
    a(f"""s_mov_b32 s{S_T+2}, 5033                          ; 12 * 2^32 / (10000 * 1024)
    s_waitcnt lgkmcnt(0)""")
    for i in range(3):
        a(f"v_lshlrev_b32 v{G+4+i}, 3, v{G+i}\nv_lshlrev_b32 v{G+i}, 4, v{G+i}")
    a(f"""KEY_LOAD:
    s_mov_b64 exec, {sr(S_M+4,2)}
    s_cbranch_execz SKIP3
    buffer_load_dwordx2 {vr(KP+4,2)}, v{G+6}, {sr(S_WS,4)}, 0 offen sc1
SKIP3:""")
    for i in range(2):
        a(f"s_mov_b64 exec, {sr(S_M+2*i,2)}\nbuffer_load_dwordx2 {vr(KP+2*i,2)}, v{G+4+i}, {sr(S_WS,4)}, 0 offen sc1")
    a(f"""s_mov_b64 exec, -1
    s_sub_u32 s{S_JOB}, s{S_WAVE}, 4
    s_cmp_ge_u32 s{S_JOB}, 3
    s_cbranch_scc1 NO_LAST_JOB
    s_mov_b32 s{S_L2E}, 0xbfb8aa3b
    s_mov_b32 s{S_L2E+1}, 0xbfb8aa3b""")
    lut_jobs(a, "k", f"s_add_u32 s{S_JOB}, s{S_JOB}, 28", 1)
    a("NO_LAST_JOB:\ns_waitcnt vmcnt(0)")
    for i in range(3): a(f"v_cmp_ne_u32 {sr(S_K+2*i,2)}, s{S_NLO}, v{KP+2*i+1}")
    for i in range(3): a(f"s_and_b64 {sr(S_K+2*i,2)}, {sr(S_K+2*i,2)}, {sr(S_M+2*i,2)}")
    a(f"""s_or_b64 {sr(S_K,2)}, {sr(S_K,2)}, {sr(S_K+2,2)}
    s_or_b64 {sr(S_K,2)}, {sr(S_K,2)}, {sr(S_K+4,2)}
    s_cbranch_scc0 KEYS_OK
    s_sub_u32 s{S_SPIN}, s{S_SPIN}, 1
    s_cbranch_scc0 KEY_LOAD
    s_endpgm
KEYS_OK:""")
    st('keys arrived')
    if opt.rdy == 0: poll_issue(a, TT, V_FLAG, 0)
    for i in range(3):
        a(f"""v_mul_hi_u32 v{T0+1}, s{S_T+2}, v{KP+2*i}
              v_and_b32 v{G+8+i}, 63, v{KP+2*i}
              v_mul_u32_u24 v{G+8+i}, {HS}, v{G+8+i}
              v_lshl_add_u32 v{G+8+i}, v{T0+1}, 2, v{G+8+i}""")
    for i in range(3):
        a(f"s_mov_b64 exec, {sr(S_M+2*i,2)}\nds_add_rtn_u32 v{G+12+i}, v{G+8+i}, v{V_ONE} offset:{L_HIST}")
    a("s_mov_b64 exec, -1")
    for i in range(3):
        a(f"""v_add_u32 v{T0+1}, {512*i}, v0
              v_lshlrev_b32 v{T0+1}, 21, v{T0+1}
              v_lshrrev_b32 v{G+16+i}, 10, v{KP+2*i}
              v_lshl_or_b32 v{G+16+i}, v{G+16+i}, 7, v{T0+1}""")
    H = G + 20
    a(f"""v_lshrrev_b32 v{T0}, 4, v{V_L16}              ; lane
    v_min_u32 v{T0+1}, 39, v{T0}
    v_mul_u32_u24 v{T0+1}, {HS}, v{T0+1}
    v_cmp_gt_u32 {sr(S_T+4,2)}, 40, v{T0}
    v_sub_u32 v{T0+2}, 63, v{T0}
    s_mul_i32 s10, s{S_WAVE}, 5
    s_lshl_b32 s3, s{S_WAVE}, 10
    s_add_u32 s3, s3, {L_UREC}
    s_mov_b32 s9, {WS_REC}
    s_waitcnt lgkmcnt(0)
    s_barrier""")
    st('hist done')
    if opt.rdy == 1: poll_issue(a, TT, V_FLAG, 0)
    for k in range(3): a(f"ds_read_b128 {vr(H+4*k,4)}, v{T0+1} offset:{L_HIST + 16*k}")
    a(f"""    s_waitcnt lgkmcnt(1)
    v_add3_u32 v{H}, v{H}, v{H+1}, v{H+2}
    v_add3_u32 v{H+3}, v{H+3}, v{H+4}, v{H+5}
    v_add3_u32 v{H}, v{H}, v{H+6}, v{H+7}
    s_waitcnt lgkmcnt(0)
    v_add3_u32 v{H+3}, v{H+3}, v{H+8}, v{H+9}
    v_add3_u32 v{H}, v{H}, v{H+10}, v{H+11}
    v_add_u32 v{H}, v{H}, v{H+3}
    v_lshl_or_b32 v{H+1}, v{H}, 6, v{T0+2}
    v_cndmask_b32 v{H+1}, 0, v{H+1}, {sr(S_T+4,2)}
    s_cmp_lg_u32 s{S_W0}, 0
    s_cbranch_scc1 DEALT""")
    for k in range(5):
        a(f"v_readlane_b32 s{S_NODE+k}, v{H+1}, s10")
        if k < 4: a("s_add_u32 s10, s10, 1")
    for k in range(5): a(f"v_cmp_lt_u32 {sr(S_K+2*k,2)}, s{S_NODE+k}, v{H+1}")
    for k in range(5): a(f"s_bcnt1_i32_b64 s{S_NODE+k}, {sr(S_K+2*k,2)}")
    for k in range(5): a(f"v_writelane_b32 v{T0+1}, s{S_NODE+k}, {k}")
    a(f"""s_sub_u32 s10, s10, 4
    v_add_u32 v{T0+2}, s10, v{T0}
    v_lshrrev_b32 v{T0+3}, 3, v{T0+1}
    v_and_b32 v{T0+1}, 7, v{T0+1}
    v_lshrrev_b32 v{T0+4}, v{T0+3}, {opt.dirmask}
    v_and_b32 v{T0+4}, 1, v{T0+4}
    v_mul_u32_u24 v{T0+4}, 7, v{T0+4}
    v_xor_b32 v{T0+1}, v{T0+1}, v{T0+4}               ; wave
    v_mad_u32_u24 v{T0+1}, v{T0+1}, 5, v{T0+3}
    v_lshlrev_b32 v{T0+1}, 2, v{T0+1}
    s_mov_b64 exec, 0x1f
    ds_write_b32 v{T0+1}, v{T0+2} offset:{L_INV}
    s_mov_b64 exec, -1
DEALT:
    s_lshl_b32 s11, s10, 2
    v_add_u32 v{T0+1}, s11, v{V_SLOT4}
    v_lshlrev_b32 v{T0+5}, 2, v{T0}
""")
    poll_check(a, "REC", TT, V_FLAG, 0, TT + 1)
    a(f"""v_cmp_gt_u32 {sr(S_T,2)}, 60, v{T0}
    s_waitcnt lgkmcnt(0)
    s_barrier""")
    st('dealt')
    a(f"""ds_read_b32 v{T0+1}, v{T0+1} offset:{L_INV}
    ds_read_b32 v{T0+5}, v{T0+5} offset:{L_INV}
    v_lshlrev_b32 v{T0+4}, 17, v{V_SLOT4}             ; slot << 19""")
    for i in range(2):
        a(f"""s_add_u32 m0, s3, {i*8192}
              s_mov_b64 exec, {sr(S_M+2*i,2)}
              buffer_load_dwordx4 v{G+i}, {sr(S_WS,4)}, s9 offen sc1 lds""")
    a(f"""s_add_u32 m0, s3, {2*8192}
    s_mov_b64 exec, {sr(S_M+4,2)}
    s_cbranch_execz SKIP3R
    buffer_load_dwordx4 v{G+2}, {sr(S_WS,4)}, s9 offen sc1 lds
SKIP3R:
    s_mov_b64 exec, -1""")
    a(f"""    s_waitcnt lgkmcnt(1)
    v_mul_u32_u24 v{T0+2}, {HS}, v{T0+1}
    v_add_u32 v{T0+2}, v{T0+2}, v{V_SIG4}
    ds_read_b32 v{T0+3}, v{T0+2} offset:{L_HIST}
    s_waitcnt lgkmcnt(1)
    v_lshlrev_b32 v{T0+5}, 2, v{T0+5}
    ds_bpermute_b32 v{H+2}, v{T0+5}, v{H}""")
    for k in range(5): a(f"v_readlane_b32 s{S_NODE+k}, v{T0+1}, {k}")
    a(f"""s_waitcnt lgkmcnt(0)
    v_cndmask_b32 v{T0+3}, 0, v{T0+3}, {sr(S_T,2)}
    v_cndmask_b32 v{H+2}, 0, v{H+2}, {sr(S_T+4,2)}
    v_sub_u32 v{T0+4}, v{T0+4}, v{T0+3}
    v_mov_b32 v{H+3}, v{H+2}""")
    scan64(a, T0 + 3, H + 3)
    a(f"""v_sub_u32 v{H+3}, v{H+3}, v{H+2}
    v_add_u32 v{T0+4}, v{T0+4}, v{T0+3}
    v_readlane_b32 s{S_START}, v{H+3}, s10
    v_readlane_b32 s{S_END}, v{T0+3}, 63
    s_nop 0
    v_add_u32 v{T0+4}, s{S_START}, v{T0+4}
    s_mov_b64 exec, {sr(S_T,2)}
    ds_write_b32 v{T0+2}, v{T0+4} offset:{L_HIST}
    s_mov_b64 exec, -1
    v_add_u32 v{V_POS}, s{S_START}, v{T0}
    v_lshlrev_b32 v{V_AENT}, 2, v{V_POS}
    v_add_u32 v{V_AENT}, {L_SENT}, v{V_AENT}
    s_add_u32 s10, s{S_END}, 3
    s_and_b32 s10, s10, -4
    s_min_u32 s{S_REMB}, s10, {8 if D == 8 else 4}
    s_sub_u32 s{S_REM}, s10, s{S_REMB}
    s_add_u32 s{S_END}, s{S_END}, s{S_START}""")
    a("s_waitcnt lgkmcnt(0)\ns_barrier")
    st('bases')
    for i in range(3): a(f"ds_read_b32 v{G+8+i}, v{G+8+i} offset:{L_HIST}")
    for i in range(3):
        a(f"""s_waitcnt lgkmcnt({2-i})
              v_lshrrev_b32 v{T0+1}, 16, v{G+8+i}
              v_and_b32 v{G+8+i}, 0xffff, v{G+8+i}
              v_or_b32 v{G+16+i}, v{G+16+i}, v{T0+1}
              v_add_lshl_u32 v{G+8+i}, v{G+8+i}, v{G+12+i}, 2""")
    for i in range(3):
        a(f"""s_mov_b64 exec, {sr(S_M+2*i,2)}
              ds_write_b32 v{G+8+i}, v{G+16+i} offset:{L_SENT}""")
    a("s_mov_b64 exec, -1")
    a("s_waitcnt lgkmcnt(0)")
    a("s_barrier")
    st('sorted')
    if opt.stamps: a(f"s_memtime s[100:101]\ns_waitcnt lgkmcnt(0)\ns_mov_b32 s{S_ST+30}, s100")
    meta_read_entry(a)
    a(f"""s_and_b32 s{S_WM}, s{S_WAVE}, 3
    s_lshl_b32 s{S_WM}, s{S_WM}, 13
    s_add_u32 s{S_WM}, s{S_WM}, {WS_WMIX}
    s_add_u32 s{S_WM+1}, s{S_WM}, 4096""")
    for k in range(8): a(f"v_mov_b32 v{RR+k}, 0")
    a("s_waitcnt lgkmcnt(0)")
    meta_fix_entry(a, False)
    a("s_nop 0")
    for e in range(D):
        a(f"""v_readlane_b32 s{S_K+e}, v{ENT}, {e}
              s_and_b32 s{S_OFF}, s{S_K+e}, s{S_MASK}
              buffer_load_dwordx4 {vr(XR+4*e,4)}, v{V_L16}, {sr(S_X,4)}, s{S_OFF} offen""")
    a(f"v_mov_b32 v{KEY}, v{ENT}\ns_waitcnt vmcnt({D})")
    st('recs landed')
    a("s_barrier")
    meta_read_rec(a)
    a(f"""s_waitcnt lgkmcnt(0)
    v_mov_b32 v{EF}, v{RECN+2}
    v_mov_b32 v{EF+1}, v{RECN+3}""")
    for i in range(4): a(w_mfma(i))
    a(p_mfma(0, 0)); a(p_mfma(0, 1)); a(p_mfma(1, 0))
    a("s_nop 1")
    for m in range(4): w_cvt(a, m)
    for odd in range(2):
        u, r = act_regs(0, odd)
        for h in range(2): a(act_addr(TT + 2 * odd + h, u + h))
        for h in range(2): a(act_read(r + h, TT + 2 * odd + h))
    a(f"s_waitcnt vmcnt({D-1})")
    st('first row')
    a(t_mfma(0, 0)); a(t_mfma(0, 1))
    body(a, opt, True)
    for q in range(0, 64, 4):
        a(f"TO_B_{q}:")
        for k in range(8):
            a(f"buffer_load_dwordx4 {vr(WMIX+4*k,4)}, v{V_L16}, {sr(S_WS,4)}, s{S_WM + k // 4} offen offset:{(k%4)*1024} sc1")
        if q: a(f"s_branch B_{q}")
        else: a("s_branch B_0")
    body(a, opt, False)
    a(f"""MAIN_DONE:
    s_waitcnt vmcnt(0) lgkmcnt(0)
    s_add_u32 s{S_W0}, s{S_W0}, {CAP}
    s_cmp_ge_u32 s{S_W0}, s{S_N}
    s_cbranch_scc1 ALL_DONE""")
    zero_hist(a)
    a("s_waitcnt lgkmcnt(0)\ns_barrier\ns_branch ROUND\nALL_DONE:")
    st('main done')
    if opt.stamps: a(f"s_memtime s[100:101]\ns_waitcnt lgkmcnt(0)\ns_sub_u32 s{S_ST+30}, s100, s{S_ST+30}")
    PK = XR
    for s in range(5):
        for o in range(4): a(f"v_cvt_pk_bf16_f32 v{PK+4*s+o}, v{ACC+8*s+o}, v{ACC+8*s+4+o}")
    a(f"""v_lshrrev_b32 v{T0}, 2, v{V_L16}
    v_add_u32 v{T0}, {L_AGG}, v{T0}""")
    for s in range(5):
        a(f"s_mul_i32 s{S_T}, s{S_NODE+s}, {4 * AGG_RS}\nv_add_u32 v{TP+s}, s{S_T}, v{T0}")
    a(f"""v_lshrrev_b32 v{T0+1}, 4, v{V_L16}            ; lane
    v_and_b32 v{T0+2}, 15, v{T0+1}
    v_lshrrev_b32 v{T0+3}, 4, v{T0+1}                 ; lane >> 4
    s_lshr_b32 s{S_T}, s{S_WAVE}, 2
    s_mul_i32 s{S_T+1}, s{S_T}, {80 * AGG_RS}
    s_add_u32 s{S_T+1}, s{S_T+1}, {L_AGG}
    v_mul_u32_u24 v{T0}, {AGG_RS}, v{T0+2}
    v_lshl_add_u32 v{T0}, v{T0+3}, 4, v{T0}
    v_add_u32 v{T0}, s{S_T+1}, v{T0}
    s_mul_i32 s{S_T}, s{S_T}, {20 << 18}
    s_lshl_b32 s{S_T+1}, s{S_BETA}, 10
    s_add_u32 s{S_T}, s{S_T}, s{S_T+1}
    s_and_b32 s{S_T+1}, s{S_WAVE}, 3
    s_lshl_b32 s{S_T+1}, s{S_T+1}, 8
    s_add_u32 s{S_T}, s{S_T}, s{S_T+1}
    v_lshlrev_b32 v{T0+3}, 18, v{T0+3}
    v_lshl_add_u32 v{T0+3}, v{T0+2}, 4, v{T0+3}
    v_add_u32 v{T0+3}, s{S_T}, v{T0+3}
    s_barrier""")
    st('all main done')
    for s in range(5):
        for o in range(4): a(f"ds_write_b32 v{TP+s}, v{PK+4*s+o} offset:{o*AGG_RS}")
    a("s_waitcnt lgkmcnt(0)\ns_barrier")
    st('agg in LDS')
    AF = XR
    def rd(t):
        for ks in range(4): a(f"ds_read_b128 {vr(AF+16*(t%2)+4*ks,4)}, v{T0} offset:{t*16*AGG_RS + ks*64}")
    def pack_store(t):
        d = ACC + 8 * t; p = RR + 4 * (t % 2)
        for j in range(4): a(f"v_cvt_pk_bf16_f32 v{p+j}, v{d+2*j}, v{d+2*j+1}")
        a(f"buffer_store_dwordx4 {vr(p,4)}, v{T0+3}, {sr(S_OUT,4)}, 0 offen {opt.outst}")
        if t < 4: a(f"v_add_u32 v{T0+3}, {4 << 18}, v{T0+3}")
    rd(0)
    for t in range(5):
        if t < 4: rd(t + 1)
        for ks in range(4):
            a(f"s_waitcnt lgkmcnt({(4 if t < 4 else 0) + 3 - ks})")
            for j in range(2):
                d = ACC + 8 * t + 4 * j
                a(f"v_mfma_f32_16x16x32_bf16 {vr(d,4)}, {vr(AF+16*(t%2)+4*ks,4)}, {vr(WMIX+16*j+4*ks,4)}, " + ("0" if ks == 0 else vr(d, 4)))
            if ks == 3 and t > 0: pack_store(t - 1)
    a("s_nop 7")
    pack_store(4)
    st('end')
    if opt.probe:
        a(f"""s_cmp_eq_u32 s93, 0
        s_cselect_b32 s93, s92, s93
        s_sub_u32 s93, s93, s92
        s_mul_i32 s93, s93, 4
        s_add_u32 s92, s92, s93
        s_add_u32 s92, s92, 6000
        HOLD_SPIN:
        s_memrealtime s[98:99]
        s_waitcnt lgkmcnt(0)
        s_sub_u32 s98, s98, s92
        s_cmp_lt_i32 s98, 0
        s_cbranch_scc1 HOLD_SPIN""")
    if opt.stamps:
        a("s_waitcnt vmcnt(0)")
        st('stores done 2')
        a(f"""s_lshl_b32 s10, s2, 3
        s_add_u32 s10, s10, s{S_WAVE}
        s_lshl_b32 s10, s10, 7
        s_add_u32 s10, s10, {WS_STAMP}
        v_mov_b32 v{T0}, s10
        s_sub_u32 s{S_ST+31}, s{S_END}, s{S_START}
        s_sub_u32 s{S_ST+29}, {1 << 21}, s{S_SPIN}""")
        for k in range(32): a(f"v_mov_b32 v{XR+k}, s{S_ST+k}")
        for k in range(8): a(f"buffer_store_dwordx4 {vr(XR+4*k,4)}, v{T0}, {sr(S_WS,4)}, 0 offen offset:{16*k}")
    a("END:\ns_endpgm")
    return a.text()

def generate(opt):
    here = os.path.dirname(os.path.abspath(__file__))
    out = open(here + "/header.txt").read()
    out += f"; @launch grid=(256,1,1) block=(512,1,1) lds={LDS_BYTES}\n"
    out += f'.amdgcn_target "amdgcn-amd-amdhsa--gfx950"\n.text\n.globl {KERN}\n.p2align 8\n.type {KERN},@function\n'
    out += kernel(opt)
    out += f""".section .rodata,"a"
.p2align 6
.amdhsa_kernel {KERN}
  .amdhsa_next_free_vgpr {NVGPR}
  .amdhsa_next_free_sgpr {NSGPR if opt.stamps or opt.probe else 66}
  .amdhsa_accum_offset {(NVGPR + 3) // 4 * 4}
  .amdhsa_group_segment_fixed_size 0
  .amdhsa_kernarg_size 88
  .amdhsa_user_sgpr_count 2
  .amdhsa_user_sgpr_kernarg_segment_ptr 1
  .amdhsa_system_sgpr_workgroup_id_x 1
  .amdhsa_float_denorm_mode_32 3
.end_amdhsa_kernel
"""
    return out

def options(argv):
    p = argparse.ArgumentParser()
    p.add_argument("-o", default="/code/" + NAME + ".s")
    p.add_argument("--stamps", action="store_true")
    p.add_argument("--probe", default="")
    p.add_argument("--D", type=int, default=7)
    p.add_argument("--hsplit", type=int, default=52)
    p.add_argument("--retry", default="sc1")
    p.add_argument("--rdy", type=int, default=0)
    p.add_argument("--lsplit", type=int, default=15)
    p.add_argument("--keypf", type=int, default=1)
    p.add_argument("--k1st", default="sc0 sc1")
    p.add_argument("--outst", default="sc0 sc1")
    p.add_argument("--dirmask", type=int, default=0x12)
    return p.parse_args(argv)

if __name__ == "__main__":
    opt = options(sys.argv[1:])
    RETRY = opt.retry
    open(opt.o, "w").write(generate(opt))
    if opt.stamps: open(opt.o + ".names", "w").write(repr(STAMPS))
```

```python
import sys, argparse, os

NAME = "gather_scatter__tensor_product_equiv_tfn__graph"
KERN = NAME + "_kernel"
N, E, C = 10000, 320000, 128
NP, EP = 250, 1280
WS_KEY = 0
WS_REC = 0x280000
WS_WMIX = 0x771000
WS_TAB = 0x780000
WS_RDY = WS_TAB + 256 * 2048
WS_EPOCH = WS_RDY + 256 * 1024
WS_END = WS_EPOCH + 128
WS_STAMP = 0x900000
CAP = 1472

class Asm:
    def __init__(self): self.l = []
    def __call__(self, s):
        for line in s.strip("\n").split("\n"):
            line = line.strip()
            if not line: continue
            self.l.append(line if line.endswith(":") else "    " + line)
    def text(self): return "\n".join(self.l) + "\n"

def vr(a, n=1): return f"v{a}" if n == 1 else f"v[{a}:{a+n-1}]"
def sr(a, n=1): return f"s{a}" if n == 1 else f"s[{a}:{a+n-1}]"

SCAN_STEPS = ["row_shr:1 row_mask:0xf bank_mask:0xf bound_ctrl:0", "row_shr:2 row_mask:0xf bank_mask:0xf bound_ctrl:0",
              "row_shr:4 row_mask:0xf bank_mask:0xf bound_ctrl:0", "row_shr:8 row_mask:0xf bank_mask:0xf bound_ctrl:0",
              "row_bcast:15 row_mask:0xa bank_mask:0xf", "row_bcast:31 row_mask:0xc bank_mask:0xf"]
def scan64(a, *regs):
    for c in SCAN_STEPS:
        a("s_nop 1" if len(regs) == 1 else "s_nop 0")
        for v in regs: a(f"v_add_u32_dpp v{v}, v{v}, v{v} {c}")

NSB, HS = 12, 48
L_HIST = 0; L_INV = 40 * HS; L_WT = L_INV + 256; L_CNT = L_WT + 64
L_SENT = L_WT + 128
L_UREC = L_SENT + CAP * 4
L_CG = L_UREC + CAP * 16
L_LUT = 32768
L1_HIST = L_SENT; L1_BASE = L1_HIST + 1024; L1_SREC = L1_BASE + 1024
L1_SKEY = L_LUT + 53 * 1024
assert L_CG + 128 <= L_LUT and L1_SREC + EP * 16 <= L_LUT and L1_BASE <= 4096
L_AGG = L_LUT; AGG_RS = 288
LDS_BYTES = L_LUT + 131072

V_L16 = 1
V_LEN, V_PRE, V_GID = 2, 3, 4
V_AENT, V_POS = 5, 6
V_SLOT4, V_SIG4, V_ONE = 7, 14, 15
V_FLAG = 166
T0 = 8
ACC = 16; XR = 64; TP = 96; UU = 112; RR = 128; TT = 136; WPK = 140; WTMP = 148
KEY = 164; ENT = 165; RECN = 168; EF = 172; CONST = 176; WMIX = 188
NVGPR = 220
PE, PO, CGB = CONST, CONST + 2, CONST + 4
LJ = 128
S_NODE = 4
S_X, S_WS, S_OUT = 12, 16, 20
S_BETA, S_WAVE, S_N, S_W0, S_NWIN, S_START, S_END, S_REM, S_REMB, S_OFF, S_MASK = range(24, 35)
S_SPIN = 35
S_M = 36
S_T = 42
S_K = 48
S_IN = 40
S_OD = 56
S_JOB, S_JCNT = 62, 63
S_NLO, S_NHI = 64, 65
S_WM = 10
S_L2E = 10
S_ST = 66
NSGPR = 102

STAMPS = []
RETRY = 'sc1'
def stamp(a, opt, name):
    if opt.probe == name: a("s_memrealtime s[98:99]\ns_waitcnt lgkmcnt(0)\ns_mov_b32 s93, s98")
    if not opt.stamps: return
    if name not in STAMPS: STAMPS.append(name)
    a(f"s_memrealtime s[98:99]\ns_waitcnt lgkmcnt(0)\ns_mov_b32 s{S_ST + STAMPS.index(name)}, s98")

def lut_jobs(a, tag, first, count):
    J, Ex, R, P = LJ, LJ + 8, LJ + 16, LJ + 24
    if first is not None: a(first)
    if count: a(f"s_mov_b32 s{S_JCNT}, {count}")
    a(f"""LUT_{tag}:
    s_lshl_b32 s3, s{S_JOB}, 25
    s_add_u32 s3, s3, 0x8000
    v_lshl_add_u32 v{J}, v{V_L16}, 15, s3""")
    for k in range(1, 8): a(f"v_add_u32 v{J+k}, {k << 16}, v{J}")
    for k in range(0, 8, 2): a(f"v_pk_mul_f32 {vr(Ex+k,2)}, {vr(J+k,2)}, {sr(S_L2E,2)}")
    for k in range(8): a(f"v_exp_f32 v{Ex+k}, v{Ex+k}")
    a(f"s_lshl_b32 s3, s{S_JOB}, 10")
    for k in range(0, 8, 2): a(f"v_pk_add_f32 {vr(R+k,2)}, {vr(Ex+k,2)}, 1.0 op_sel_hi:[1,0]")
    for k in range(8): a(f"v_rcp_f32 v{R+k}, v{R+k}")
    a(f"v_add_u32 v{P+8}, s3, v{V_L16}")
    for k in range(0, 8, 2): a(f"v_pk_mul_f32 {vr(J+k,2)}, {vr(J+k,2)}, {vr(R+k,2)}")
    a(f"v_add_u32 v{P+9}, 0x10000, v{P+8}")
    for k in range(0, 8, 2): a(f"v_pk_mul_f32 {vr(Ex+k,2)}, {vr(J+k,2)}, {vr(Ex+k,2)} neg_lo:[1,0] neg_hi:[1,0]")
    for k in range(4): a(f"v_cvt_pk_bf16_f32 v{P+k}, v{J+2*k}, v{J+2*k+1}")
    for k in range(4): a(f"v_cvt_pk_bf16_f32 v{P+4+k}, v{Ex+2*k}, v{Ex+2*k+1}")
    a(f"""ds_write_b128 v{P+8}, {vr(P,4)} offset:{L_LUT}
    ds_write_b128 v{P+9}, {vr(P+4,4)} offset:{L_LUT}
    s_add_u32 s{S_JOB}, s{S_JOB}, 1
    s_sub_u32 s{S_JCNT}, s{S_JCNT}, 1
    s_cmp_lg_u32 s{S_JCNT}, 0
    s_cbranch_scc1 LUT_{tag}""")

def lut_plain(a, tag, region, last=None, cont=False):
    P = LJ
    for name, first, end, bias in (("L", 1, 24, 0x20000 - 0x800080), ("H", 34, 62, 0x20000)):
        if name != region: continue
        last = last or end
        if cont: a(f"s_cmp_gt_u32 s{S_JOB}, {last}\ns_cbranch_scc1 LUTP_END_{tag}")
        else: a(f"s_add_u32 s{S_JOB}, s{S_WAVE}, {first}")
        if name == "H" and not cont:
            for k in range(4): a(f"v_mov_b32 v{P+4+k}, 0x80008000")
        a(f"""LUTP_{tag}{name}:
        s_mul_i32 s3, s{S_JOB}, {512 * 0x10001}
        s_add_u32 s3, s3, {bias & 0xffffffff}
        v_add_u32 v{P}, s3, v{P+10}
        s_lshl_b32 s3, s{S_JOB}, 10
        v_add_u32 v{P+8}, s3, v{V_L16}""")
        for k in range(1, 4): a(f"v_add_u32 v{P+k}, {k * 0x20002}, v{P}")
        a(f"v_add_u32 v{P+9}, 0x10000, v{P+8}")
        if name == "L":
            for k in range(4): a(f"v_or_b32 v{P+4+k}, 0x80008000, v{P+k}")
        a(f"""ds_write_b128 v{P+8}, {vr(P,4)} offset:{L_LUT}
        ds_write_b128 v{P+9}, {vr(P+4,4)} offset:{L_LUT}
        s_add_u32 s{S_JOB}, s{S_JOB}, {5 if name == "L" else 4}
        s_cmp_le_u32 s{S_JOB}, {last}
        s_cbranch_scc1 LUTP_{tag}{name}
        LUTP_END_{tag}:""")

def flag_store(a, base):
    a(f"""s_lshl_b32 s3, s2, 10
    s_add_u32 s3, s3, {base}
    v_lshl_add_u32 v{T0+2}, v{V_L16}, 3, s3
    v_mov_b32 v{T0+4}, s{S_NLO}
    v_mov_b32 v{T0+5}, s{S_NHI}
    s_mov_b64 exec, 0xff
    global_store_dwordx2 v{T0+2}, {vr(T0+4,2)}, {sr(S_WS,2)} sc0 sc1
    s_mov_b64 exec, -1""")

def poll_issue(a, dst, addr, soff):
    a(f"buffer_load_dwordx2 {vr(dst,2)}, v{addr}, {sr(S_WS,4)}, {soff} offen sc1")
def poll_check(a, tag, dst, addr, soff, hi, pre=""):
    a(f"""POLL_{tag}:
    s_waitcnt vmcnt(0)
    {pre}
    v_cmp_ne_u32 vcc, s{S_NLO}, v{dst + 1 if pre else dst}
    v_cmp_ne_u32 {sr(S_T,2)}, s{S_NHI}, v{hi}
    s_or_b64 vcc, vcc, {sr(S_T,2)}
    s_and_b64 exec, exec, vcc
    s_cbranch_execz POLLED_{tag}
    s_sub_u32 s{S_SPIN}, s{S_SPIN}, 1
    s_cbranch_scc1 END""")
    if RETRY == "atomic":
        a(f"""v_mov_b32 v{dst}, 0
        v_mov_b32 v{dst+1}, 0
        buffer_atomic_or_x2 {vr(dst,2)}, v{addr}, {sr(S_WS,4)}, {soff} offen sc0""")
    else: a(f"buffer_load_dwordx2 {vr(dst,2)}, v{addr}, {sr(S_WS,4)}, {soff} offen {RETRY}")
    a(f"""s_branch POLL_{tag}
    POLLED_{tag}:
    s_mov_b64 exec, -1""")

def load_epoch(a):
    a(f"""s_add_u32 s4, s{S_WS}, {WS_EPOCH}
    s_addc_u32 s5, s{S_WS+1}, 0
    s_load_dwordx2 {sr(S_NLO,2)}, s[4:5], 0""")
def make_tag(a):
    a(f"""s_add_u32 s{S_NLO}, s{S_NLO}, 1
    s_and_b32 s{S_NHI}, s{S_NHI}, 0x3ff""")

def scan256(a, H_, O_):
    a(f"""v_add_u32 v{T0+2}, v{H_}, v{H_+1}
    v_add3_u32 v{T0+2}, v{T0+2}, v{H_+2}, v{H_+3}
    v_mov_b32 v{T0+3}, v{T0+2}""")
    scan64(a, T0 + 3)
    a(f"""v_sub_u32 v{O_}, v{T0+3}, v{T0+2}
    v_add_u32 v{O_+1}, v{O_}, v{H_}
    v_add_u32 v{O_+2}, v{O_+1}, v{H_+1}
    v_add_u32 v{O_+3}, v{O_+2}, v{H_+2}""")

def phase1(a, opt):
    st = lambda n: stamp(a, opt, n)
    SRC, DST, YY, EFP, WRAD, CG, WMX = S_IN + 2, S_IN + 4, S_IN + 6, S_IN + 8, S_IN + 10, S_IN + 12, S_IN + 14
    WS = sr(S_WS, 2); FL = opt.k1st
    D_, S_, Y_, F_, B_, R_, H_, O_, TB = 64, 68, 72, 80, 88, 92, 96, 100, 108
    CT = WMIX
    def const_issue():
        a(f"v_lshrrev_b32 v{CT+5}, 2, v{V_L16}")
        for k in range(4): a(f"global_load_dword v{CT+k}, v{CT+5}, {sr(WRAD,2)} offset:{k*256}")
        a(f"v_and_b32 v{CT+5}, 0x7f, v{CT+5}\nglobal_load_dword v{CT+4}, v{CT+5}, {sr(CG,2)}")
    def const_finish():
        a(f"""ds_write_b32 v{CT+5}, v{CT+4} offset:{L_CG}
        v_lshrrev_b32 v{CT+5}, 3, v{V_L16}
        v_and_b32 v{CT+5}, 24, v{CT+5}
        s_mov_b32 s4, 0x05040100
        s_mov_b32 s5, 0x07060302""")
        for i in range(4): a(f"ds_read_b64_tr_b16 {vr(CGB+2*i,2)}, v{CT+5} offset:{L_CG + 32*i}")
        for u in range(2):
            a(f"v_perm_b32 v{PE+u}, v{CT+1+2*u}, v{CT+2*u}, s4\nv_perm_b32 v{PO+u}, v{CT+1+2*u}, v{CT+2*u}, s5")
    def rec_stores(tag, first, count):
        a(f"""s_cmp_ge_u32 s2, {NP}
        s_cbranch_scc1 NO_RECS_{tag}
        s_mul_i32 s3, s2, {EP * 16}
        s_add_u32 s3, s3, {WS_REC + first * 1024}
        v_add_u32 v{T0+1}, s3, v{V_L16}""")
        for k in range(count): a(f"ds_read_b128 {vr(84+4*k,4)}, v{V_L16} offset:{L1_SREC + (first + k) * 1024}")
        for k in range(count):
            if k == 4: a(f"v_add_u32 v{T0+1}, 4096, v{T0+1}")
            a(f"s_waitcnt lgkmcnt({count-1-k})\nglobal_store_dwordx4 v{T0+1}, {vr(84+4*k,4)}, {WS} offset:{(1024*k) % 4096} {FL}")
        a(f"NO_RECS_{tag}:")
    def key_stores(first, count):
        a(f"""s_mul_i32 s3, s2, {EP * 8}
        s_add_u32 s3, s3, {WS_KEY + first * 1024}
        v_add_u32 v{T0+1}, s3, v{V_L16}
        v_add_u32 v{T0+2}, {L1_SKEY + first * 1024}, v{V_L16}
        s_barrier""")
        for k in range(count): a(f"ds_read_b128 {vr(64+4*k,4)}, v{T0+2} offset:{1024*k}")
        for k in range(count):
            a(f"s_waitcnt lgkmcnt({count-1-k})\nglobal_store_dwordx4 v{T0+1}, {vr(64+4*k,4)}, {WS} offset:{1024*k} {FL}")
        a("s_barrier")
    a(f"""s_cmp_ge_u32 s{S_WAVE}, 5
    s_cbranch_scc1 HELP
    v_mul_u32_u24 v{LJ+10}, 0x8000, v{V_L16}
    v_lshrrev_b32 v{T0+2}, 1, v{V_L16}
    v_add_u32 v{LJ+10}, v{LJ+10}, v{T0+2}           ; lane * 8 * 0x10001
    s_cmp_ge_u32 s2, {NP}
    s_cbranch_scc1 AUX
    s_mul_i32 s3, s2, {EP * 4}
    v_lshl_add_u32 v{T0}, v0, 4, s3
    v_lshlrev_b32 v{T0+1}, 1, v{T0}
    s_mov_b32 s9, {L1_SKEY}
    s_setprio 1
    s_waitcnt lgkmcnt(0)""")
    st('kernargs')
    def load_yf():
        a(f"""global_load_dwordx4 {vr(Y_,4)}, v{T0+1}, {sr(YY,2)}
        global_load_dwordx4 {vr(Y_+4,4)}, v{T0+1}, {sr(YY,2)} offset:16
        global_load_dwordx4 {vr(F_,4)}, v{T0+1}, {sr(EFP,2)}
        global_load_dwordx4 {vr(F_+4,4)}, v{T0+1}, {sr(EFP,2)} offset:16""")
    a(f"""global_load_dwordx4 {vr(D_,4)}, v{T0}, {sr(DST,2)}
    global_load_dwordx4 {vr(S_,4)}, v{T0}, {sr(SRC,2)}""")
    const_issue()
    if not opt.lsplit: load_yf()
    load_epoch(a)
    a("s_barrier")
    if opt.lsplit:
        lut_plain(a, "W0", "L", last=opt.lsplit)
        load_yf()
        lut_plain(a, "W", "L", cont=True)
    else: lut_plain(a, "W", "L")
    a("s_waitcnt lgkmcnt(0)")
    make_tag(a)
    for k in range(4): a(f"v_mov_b32 v{TB+2*k+1}, s{S_NLO}")
    st('jobs A')
    a("s_waitcnt vmcnt(10)")
    st('dst arrived')
    for k in range(4):
        a(f"""v_and_b32 v{B_+k}, 0xff, v{D_+k}
              v_lshlrev_b32 v{B_+k}, 2, v{B_+k}
              ds_add_rtn_u32 v{R_+k}, v{B_+k}, v{V_ONE} offset:{L1_HIST}""")
    a("s_waitcnt vmcnt(9)")
    for k in range(4):
        a(f"""v_lshrrev_b32 v{D_+k}, 8, v{D_+k}
              v_lshl_or_b32 v{TB+2*k}, v{S_+k}, 10, v{D_+k}""")
    a(f"""s_waitcnt lgkmcnt(0)
    s_barrier
    ds_read_b128 {vr(H_,4)}, v{V_L16} offset:{L1_HIST}
    s_waitcnt lgkmcnt(0)""")
    scan256(a, H_, O_)
    a(f"ds_write_b128 v{V_L16}, {vr(O_,4)} offset:{L1_BASE}")
    for k in range(4): a(f"ds_read_b32 v{H_+k}, v{B_+k} offset:{L1_BASE}")
    for k in range(4):
        a(f"""s_waitcnt lgkmcnt(3)
              v_add_u32 v{R_+k}, v{R_+k}, v{H_+k}
              v_lshl_add_u32 v{B_+k}, v{R_+k}, 3, s9
              ds_write_b64 v{B_+k}, {vr(TB+2*k,2)}""")
    for k in range(4):
        a(f"v_lshlrev_b32 v{R_+k}, 4, v{R_+k}\nv_add_u32 v{R_+k}, {L1_SREC}, v{R_+k}")
    a("s_waitcnt lgkmcnt(0)\ns_barrier")
    st('keys binned')
    a("s_waitcnt vmcnt(0)")
    for k in range(4):
        a(f"ds_write2_b64 v{R_+k}, {vr(Y_+2*k,2)}, {vr(F_+2*k,2)} offset0:0 offset1:1")
    st('recs binned')
    const_finish()
    a("s_setprio 0\ns_branch BINNED")
    a(f"""AUX:
    v_lshrrev_b32 v{T0}, 4, v{V_L16}                ; lane
    s_waitcnt lgkmcnt(0)""")
    load_epoch(a)
    const_issue()
    a(f"""s_waitcnt lgkmcnt(0)
    s_cmp_ge_u32 s2, {NP + 4}
    s_cbranch_scc1 AUX_IDLE
    s_cmp_ge_u32 s{S_WAVE}, 4
    s_cbranch_scc1 AUX_IDLE
    s_sub_u32 s4, s2, {NP}
    s_lshl_b32 s5, s{S_WAVE}, 13
    s_lshl_b32 s6, s4, 6
    s_add_u32 s5, s5, s6
    v_lshrrev_b32 v{T0+1}, 4, v{T0}
    v_lshlrev_b32 v{T0+1}, 11, v{T0+1}
    v_and_b32 v{T0+2}, 15, v{T0}
    v_lshl_add_u32 v{T0+1}, v{T0+2}, 2, v{T0+1}
    v_add_u32 v{T0+1}, s5, v{T0+1}
    s_lshl_b32 s5, s4, 13
    s_lshl_b32 s6, s{S_WAVE}, 10
    s_add_u32 s5, s5, s6
    s_add_u32 s5, s5, {WS_WMIX}
    v_add_u32 v{T0+2}, s5, v{V_L16}
    s_mov_b32 s4, 0x05040100
    s_mov_b32 s5, 0x07060302""")
    for t in range(8): a(f"global_load_dword v{64+t}, v{T0+1}, {sr(WMX,2)} offset:{t*256}")
    a("s_barrier")
    lut_plain(a, "X", "L")
    a("s_waitcnt vmcnt(0)")
    for u in range(4):
        a(f"v_perm_b32 v{72+u}, v{65+2*u}, v{64+2*u}, s4\nv_perm_b32 v{76+u}, v{65+2*u}, v{64+2*u}, s5")
    a(f"""global_store_dwordx4 v{T0+2}, v[72:75], {WS} {FL}
    v_add_u32 v{T0+2}, 4096, v{T0+2}
    global_store_dwordx4 v{T0+2}, v[76:79], {WS} {FL}
    s_branch AUX_DONE
AUX_IDLE:
    s_barrier""")
    lut_plain(a, "Z", "L")
    a("AUX_DONE:")
    make_tag(a)
    a("""s_waitcnt lgkmcnt(0)
    s_barrier
    s_barrier
    s_waitcnt vmcnt(0)""")
    const_finish()
    a("s_branch BINNED")
    a("HELP:\ns_waitcnt lgkmcnt(0)")
    load_epoch(a)
    const_issue()
    a(f"""s_barrier
    s_cmp_lg_u32 s{S_WAVE}, 7
    s_cbranch_scc1 HELP56""")
    lut_jobs(a, "7a", f"s_mov_b32 s{S_JOB}, 63", 1)
    a(f"""v_mov_b32 v{T0+2}, {0x7f80 * 2}
    v_mov_b32 v{T0+3}, 0x7f80
    ds_write_b16 v{T0+2}, v{T0+3} offset:{L_LUT}""")
    lut_jobs(a, "7b", f"s_mov_b32 s{S_JOB}, 33", 1)
    st('help jobs')
    a("s_waitcnt vmcnt(0)")
    st('help consts')
    const_finish()
    a("s_waitcnt lgkmcnt(0)")
    make_tag(a)
    a("s_barrier")
    key_stores(0, 4)
    rec_stores("7", 0, 6)
    a(f"""s_branch STORED
HELP56:
    s_cmp_eq_u32 s{S_WAVE}, 6
    s_cbranch_scc1 HELP6""")
    lut_jobs(a, "5a", f"s_mov_b32 s{S_JOB}, 0", 1)
    lut_jobs(a, "5b", f"s_mov_b32 s{S_JOB}, 25", 1)
    st('help jobs')
    a("s_waitcnt vmcnt(0)")
    st('help consts')
    const_finish()
    a("s_waitcnt lgkmcnt(0)")
    make_tag(a)
    a("s_barrier")
    key_stores(4, 3)
    rec_stores("5", 6, 7)
    a("s_branch STORED\nHELP6:")
    lut_jobs(a, "6", f"s_mov_b32 s{S_JOB}, 26", 2)
    st('help jobs')
    a("s_waitcnt vmcnt(0)")
    st('help consts')
    const_finish()
    a(f"""s_lshl_b32 s3, s2, 11
    s_add_u32 s3, s3, {WS_TAB}
    v_lshl_add_u32 v{T0}, v{V_L16}, 1, s3
    s_waitcnt lgkmcnt(0)""")
    make_tag(a)
    a(f"""s_barrier
    ds_read_b128 {vr(H_,4)}, v{V_L16} offset:{L1_HIST}
    s_waitcnt lgkmcnt(0)""")
    scan256(a, H_, O_)
    a(f"s_lshl_b32 s3, s{S_NHI}, 22")
    for k in range(4):
        a(f"""v_lshl_or_b32 v{TB+2*k}, v{H_+k}, 11, v{O_+k}
              v_or_b32 v{TB+2*k}, s3, v{TB+2*k}
              v_mov_b32 v{TB+2*k+1}, s{S_NLO}""")
    a(f"""global_store_dwordx4 v{T0}, {vr(TB,4)}, {WS} sc0 sc1
    global_store_dwordx4 v{T0}, {vr(TB+4,4)}, {WS} offset:16 sc0 sc1""")
    st('table published')
    key_stores(7, 3)
    rec_stores("6", 13, 7)
    a(f"""STORED:
    v_mov_b32 v{V_LEN}, 0
    s_branch TAB_DONE
BINNED:
    v_mov_b32 v{V_LEN}, 0
    s_cmp_eq_u32 s{S_WAVE}, 4
    s_cbranch_scc0 POLLER
    s_waitcnt lgkmcnt(0)
    s_barrier""")
    lut_jobs(a, "4", f"s_mov_b32 s{S_JOB}, 31", 2)
    a("s_branch TAB_DONE\nPOLLER:")
    lut_plain(a, "U", "H", last=opt.hsplit)
    poll_issue(a, V_LEN, V_POS, 0)
    a("s_waitcnt lgkmcnt(0)\ns_barrier")
    st('tab issued')
    lut_plain(a, "V", "H", cont=True)
    poll_check(a, "TAB", V_LEN, V_POS, 0, T0 + 3, f"v_lshrrev_b32 v{T0+3}, 22, v{V_LEN}")
    st('tab arrived')
    a("TAB_DONE:")

def mfma4(d, a_, b, c, blk=None):
    cc = "0" if c is None else vr(c, 4)
    return f"v_mfma_f32_4x4x4_16b_bf16 {vr(d,4)}, {vr(a_,2)}, {vr(b,2)}, {cc}" + ("" if blk is None else f" cbsz:4 abid:{blk}")
def p_mfma(g, odd):
    return mfma4(UU + 8 * (g % 2) + 4 * odd, EF, PO if odd else PE, None, g % 16)
def t_mfma(e, odd):
    return mfma4(TP + 8 * (e % 2) + 4 * odd, WPK + 2 * (e % 4), XR + 4 * (e % 8) + 2 * odd, None, (e % 64) // 4)
def act_regs(eb, odd):
    return UU + 8 * ((eb // 4) % 2) + 4 * odd + eb % 4, RR + 4 * ((eb // 2) % 2) + 2 * odd
def act_addr(t, u):
    return f"v_lshlrev_b32_sdwa v{t}, v{V_ONE}, v{u} dst_sel:DWORD dst_unused:UNUSED_PAD src0_sel:DWORD src1_sel:WORD_1"
def act_read(r, t): return f"ds_read_u16_d16_hi v{r}, v{t} offset:{L_LUT}"
def fma4(a, q):
    h = q % 2
    a(f"s_set_gpr_idx_on s{S_K + q % 16}, 0xc")
    for odd in range(2):
        r = RR + 4 * ((q // 2) % 2) + 2 * odd
        for o in (0, 2):
            acc = ACC + 4 * odd + o; tp = TP + 8 * (q % 2) + 4 * odd + o
            a(f"v_pk_fma_f32 {vr(acc,2)}, {vr(r,2)}, {vr(tp,2)}, {vr(acc,2)} op_sel:[{h},0,0] op_sel_hi:[{h},1,1]")
    a("s_set_gpr_idx_off")
def meta_read_entry(a): a(f"ds_read_b32 v{ENT}, v{V_AENT}")
def meta_fix_entry(a, rec=True):
    a(f"""v_cmp_gt_u32 vcc, s{S_END}, v{V_POS}
          v_add_u32 v{V_POS}, 64, v{V_POS}
          v_add_u32 v{V_AENT}, 256, v{V_AENT}
          v_cndmask_b32 v{ENT}, 40, v{ENT}, vcc
          v_lshrrev_b32 v{T0}, 21, v{ENT}
          v_lshlrev_b32 v{T0}, 4, v{T0}
          v_lshlrev_b32 v{T0+1}, 3, v{ENT}""")
    if rec: meta_read_rec(a)
    a(f"""v_and_b32 v{T0+1}, 0xfffc00, v{T0+1}
          v_and_or_b32 v{ENT}, v{ENT}, 56, v{T0+1}""")
def meta_read_rec(a): a(f"ds_read_b128 {vr(RECN,4)}, v{T0} offset:{L_UREC}")
def w_mfma(i): return mfma4(WTMP + 4 * i, RECN, CGB + 2 * i, None)
def w_cvt(a, m):
    a(f"""v_cvt_pk_bf16_f32 v{WPK+2*m}, v{WTMP+m}, v{WTMP+4+m}
          v_cvt_pk_bf16_f32 v{WPK+2*m+1}, v{WTMP+8+m}, v{WTMP+12+m}""")

def body(a, opt, loads):
    D = opt.D; tag = "A" if loads else "B"
    for q in range(64):
        if q % 4 == 0:
            a(f"{tag}_{q}:")
            if loads: a(f"s_sub_u32 s{S_REM}, s{S_REM}, 4\ns_cbranch_scc1 TO_B_{q}")
            else:     a(f"s_sub_u32 s{S_REMB}, s{S_REMB}, 4\ns_cbranch_scc1 MAIN_DONE")
        eb = q + 2 - q % 2; odd = q % 2
        u, r = act_regs(eb, odd); t = TT + 2 * odd
        g, ur = (q + 6) // 4, (q + 6) % 4
        if ur % 2 == 0: a(p_mfma(g, ur // 2))
        elif 40 <= q < 48: a(w_mfma((q - 40) // 2))
        a(act_addr(t, u))
        a(f"s_waitcnt vmcnt({D - 2 if loads else 8 + max(0, D - (6 if D == 8 else 2) - q % 4)})")
        a(t_mfma(q + 1, 0))
        if loads: a(f"v_readlane_b32 s{S_K + (q + D) % 16}, v{KEY if q + D < 64 else ENT}, {(q + D) % 64}")
        else:     a("s_nop 0")
        a(t_mfma(q + 1, 1))
        a(act_addr(t + 1, u + 1))
        a(act_read(r, t)); a(act_read(r + 1, t + 1))
        if q >= 60: w_cvt(a, q - 60)
        if loads:
            a(f"s_and_b32 s{S_OFF}, s{S_K + (q + D) % 16}, s{S_MASK}")
            a(f"buffer_load_dwordx4 {vr(XR + 4 * ((q + D) % 8), 4)}, v{V_L16}, {sr(S_X,4)}, s{S_OFF} offen")
        if q % 2 == 0: a("s_waitcnt lgkmcnt(2)")
        fma4(a, q)
        if q == 8: meta_read_entry(a)
        if q == 12: meta_fix_entry(a)
        if q == 57: a(f"v_mov_b32 v{EF}, v{RECN+2}\nv_mov_b32 v{EF+1}, v{RECN+3}\ns_nop 1")
        if q == 63: a(f"v_mov_b32 v{KEY}, v{ENT}")
    a(f"s_branch {tag}_0")

def zero_hist(a):
    a(f"""v_lshlrev_b32 v{T0+3}, 2, v0
    v_mov_b32 v{T0+4}, 0
    v_cmp_gt_u32 vcc, {40 * HS // 4}, v0
    s_and_saveexec_b64 {sr(S_T,2)}, vcc
    ds_write_b32 v{T0+3}, v{T0+4} offset:{L_HIST}
    s_mov_b64 exec, {sr(S_T,2)}""")

def kernel(opt):
    a = Asm(); D = opt.D
    st = lambda n: stamp(a, opt, n)
    a(f"""{KERN}:
    s_cmp_ge_u32 s2, 256
    s_cbranch_scc1 END""")
    if opt.probe: a("s_mov_b32 s93, 0\ns_memrealtime s[98:99]\ns_waitcnt lgkmcnt(0)\ns_mov_b32 s92, s98")
    if opt.stamps:
        for k in range(32): a(f"s_mov_b32 s{S_ST+k}, 0")
    st('start')
    a(f"""s_load_dwordx16 {sr(S_IN,16)}, s[0:1], 0
    s_load_dwordx4 {sr(S_OD,4)}, s[0:1], 64
    s_load_dwordx2 {sr(S_WS,2)}, s[0:1], 80
    s_load_dwordx2 {sr(S_X,2)}, s[0:1], 0
    s_load_dwordx2 {sr(S_OUT,2)}, s[0:1], 64
    s_and_b32 s4, s2, 7
    s_lshl_b32 s4, s4, 5
    s_lshr_b32 s5, s2, 3
    s_or_b32 s{S_BETA}, s4, s5
    v_lshrrev_b32 v{T0}, 6, v0
    v_and_b32 v{T0+1}, 63, v0
    v_lshlrev_b32 v{V_L16}, 4, v{T0+1}
    v_readfirstlane_b32 s{S_WAVE}, v{T0}""")
    if opt.ipf == 2:
        a(f"""s_getpc_b64 s[6:7]
        CODE_HERE:
        v_lshlrev_b32 v{T0+2}, 7, v0
        v_subrev_u32 v{T0+2}, {5 * 8192}, v{T0+2}
        v_add_u32 v{T0+3}, {3 * 8192}, v{T0+2}
        v_min_u32 v{T0+3}, END-CODE_HERE, v{T0+3}
        s_cmp_lt_u32 s{S_WAVE}, 5
        s_cbranch_scc1 NO_CODE_TOUCH
        global_load_dword v{V_FLAG+1}, v{T0+2}, s[6:7]
        global_load_dword v{V_FLAG+1}, v{T0+3}, s[6:7]
        NO_CODE_TOUCH:""")
    if opt.ipf == 1:
        a(f"""s_getpc_b64 s[6:7]
        CODE_HERE:
        s_lshr_b32 s4, s2, 3
        s_lshl_b32 s4, s4, 10
        v_and_b32 v{T0+2}, 7, v0
        v_lshl_add_u32 v{T0+2}, v{T0+2}, 7, s4
        v_min_u32 v{T0+2}, END-CODE_HERE, v{T0+2}
        s_cmp_lg_u32 s{S_WAVE}, 7
        s_cbranch_scc1 NO_CODE_TOUCH
        global_load_dword v{V_FLAG+1}, v{T0+2}, s[6:7]
        NO_CODE_TOUCH:""")
    a(f"""v_lshlrev_b32 v{T0+3}, 3, v0
    v_mov_b32 v{T0+4}, 0
    v_mov_b32 v{T0+5}, 0
    ds_write_b64 v{T0+3}, {vr(T0+4,2)}
    v_mov_b32 v{V_ONE}, 1
    s_mov_b32 s{S_X+2}, {N * 1024}
    s_mov_b32 s{S_X+3}, 0x20000
    s_mov_b32 s{S_WS+2}, {WS_END if not opt.stamps else WS_STAMP + 0x80000}
    s_mov_b32 s{S_WS+3}, 0x20000
    s_mov_b32 s{S_OUT+2}, {N * 1024}
    s_mov_b32 s{S_OUT+3}, 0x20000
    s_mov_b32 s{S_MASK}, 0xfffffc00
    s_mov_b32 s{S_W0}, 0
    s_mov_b32 s{S_L2E}, 0xbfb8aa3b
    s_mov_b32 s{S_L2E+1}, 0xbfb8aa3b
    v_mul_u32_u24 v{V_SIG4}, 52, v{T0+1}
    v_lshrrev_b32 v{V_SIG4}, 8, v{V_SIG4}            ; lane / 5
    v_mul_u32_u24 v{V_SLOT4}, 5, v{V_SIG4}
    v_sub_u32 v{V_SLOT4}, v{T0+1}, v{V_SLOT4}        ; lane % 5
    v_lshlrev_b32 v{V_SIG4}, 2, v{V_SIG4}
    v_lshlrev_b32 v{V_SLOT4}, 2, v{V_SLOT4}
    s_mov_b32 s{S_SPIN}, {1 << 21}
    v_and_b32 v{V_GID}, 0xff, v0
    s_lshl_b32 s3, s{S_BETA}, 3
    s_add_u32 s3, s3, {WS_TAB}
    v_lshl_add_u32 v{V_POS}, v{V_GID}, 11, s3
    s_and_b32 s3, s2, 7
    s_lshl_b32 s3, s3, 7
    s_add_u32 s3, s3, {WS_RDY}
    s_lshl_b32 s4, s{S_WAVE}, 15
    s_add_u32 s3, s3, s4
    v_and_b32 v{V_FLAG}, 31, v0
    v_lshl_add_u32 v{V_FLAG}, v{V_FLAG}, 10, s3      ; flag of producer 32 wave + lane % 32
    v_mul_u32_u24 v{V_GID}, {EP}, v{V_GID}""")
    for k in range(48): a(f"v_mov_b32 v{ACC+k}, 0")
    phase1(a, opt)
    a(f"""v_and_b32 v{T0+5}, 0x7ff, v{V_LEN}
    v_bfe_u32 v{V_LEN}, v{V_LEN}, 11, 11
    v_lshrrev_b32 v{T0+1}, 4, v{V_L16}                ; lane
    v_add_u32 v{V_GID}, v{V_GID}, v{T0+5}
    v_mov_b32 v{V_PRE}, v{V_LEN}""")
    if opt.keypf:
        a(f"""s_cmp_ge_u32 s{S_WAVE}, 4
        s_cbranch_scc1 NO_KEY_TOUCH
        v_lshlrev_b32 v{T0+2}, 3, v{V_GID}
        buffer_load_dword v{V_FLAG+1}, v{T0+2}, {sr(S_WS,4)}, 0 offen sc1""")
        if opt.keypf > 1:
            a(f"""v_lshl_add_u32 v{T0+2}, v{V_LEN}, 3, v{T0+2}
            v_subrev_u32 v{T0+2}, 8, v{T0+2}
            buffer_load_dword v{V_FLAG+1}, v{T0+2}, {sr(S_WS,4)}, 0 offen sc1""")
        a("NO_KEY_TOUCH:")
    scan64(a, V_PRE)
    a(f"""s_nop 0
    v_readlane_b32 s{S_T+2}, v{V_PRE}, 63
    v_sub_u32 v{V_PRE}, v{V_PRE}, v{V_LEN}
    v_cmp_lt_u32 vcc, s{S_WAVE}, v{T0+1}
    v_cmp_gt_u32 {sr(S_T,2)}, 9, v{T0+1}
    v_lshlrev_b32 v{T0+2}, 2, v{T0+1}
    v_mov_b32 v{T0+3}, s{S_T+2}
    s_and_b64 vcc, vcc, {sr(S_T,2)}
    s_and_saveexec_b64 {sr(S_T,2)}, vcc
    ds_add_u32 v{T0+2}, v{T0+3} offset:{L_WT}
    s_mov_b64 exec, {sr(S_T,2)}
    s_lshl_b32 s3, s{S_WAVE}, 2
    v_mov_b32 v{T0+2}, s3
    v_mov_b32 v{T0+3}, 32
    s_waitcnt lgkmcnt(0)
    s_barrier
    ds_read_b32 v{T0}, v{T0+2} offset:{L_WT}
    ds_read_b32 v{T0+3}, v{T0+3} offset:{L_WT}
    s_cmp_lg_u32 s{S_WAVE}, 4
    s_cbranch_scc1 EPOCH_DONE""")
    a(f"""s_cmp_lg_u32 s2, 0
    s_cbranch_scc1 EPOCH_DONE
    v_mov_b32 v{T0+4}, s{S_NLO}
    v_mov_b32 v{T0+2}, {WS_EPOCH}
    s_mov_b64 exec, 1
    global_store_dword v{T0+2}, v{T0+4}, {sr(S_WS,2)} sc0 sc1
    s_mov_b64 exec, -1
EPOCH_DONE:
    s_waitcnt lgkmcnt(0)
    v_add_u32 v{V_PRE}, v{V_PRE}, v{T0}
    v_readfirstlane_b32 s{S_N}, v{T0+3}""")
    st('prefix done')
    a(f"s_cmp_lt_u32 s{S_WAVE}, 5\ns_cbranch_scc1 RECS_FLAGGED")
    a(f"""v_mov_b32 v{T0+2}, {L_CNT}
    s_waitcnt vmcnt(0)
    s_mov_b64 exec, 1
    ds_add_rtn_u32 v{T0+2}, v{T0+2}, v{V_ONE}
    s_mov_b64 exec, -1
    s_waitcnt lgkmcnt(0)
    v_readfirstlane_b32 s3, v{T0+2}
    s_cmp_lg_u32 s3, 2
    s_cbranch_scc1 RECS_FLAGGED""")
    flag_store(a, WS_RDY)
    st('recs flagged')
    a("RECS_FLAGGED:")
    a(f"""ROUND:
    v_mov_b32 v{T0}, 0
    v_subrev_u32 v{T0+1}, s{S_W0}, v{V_PRE}
    v_mov_b32 v{T0+2}, v{V_GID}
    s_mov_b32 s3, {CAP}
    s_cmp_gt_u32 s{S_N}, {CAP}
    s_cbranch_scc1 EXPAND
    v_lshlrev_b32 v{T0+3}, 2, v{V_PRE}""")
    for j in range(16):
        a(f"v_cmpx_lt_u32 vcc, {j}, v{V_LEN}")
        if j % 2 == 0 and j >= 6: a("s_cbranch_execz EXPAND_DONE")
        a(f"ds_write_b32 v{T0+3}, v{T0+2} offset:{L_SENT + 4*j}\nv_add_u32 v{T0+2}, 1, v{T0+2}")
    a(f"""v_mov_b32 v{T0}, 16
    v_add_u32 v{T0+1}, 16, v{T0+1}
EXPAND:
    v_cmp_lt_u32 vcc, v{T0}, v{V_LEN}
    s_and_b64 exec, exec, vcc
    s_cbranch_execz EXPAND_DONE
    v_cmp_gt_u32 vcc, s3, v{T0+1}
    v_lshlrev_b32 v{T0+3}, 2, v{T0+1}
    s_and_saveexec_b64 {sr(S_T,2)}, vcc
    ds_write_b32 v{T0+3}, v{T0+2} offset:{L_SENT}
    s_mov_b64 exec, {sr(S_T,2)}
    v_add_u32 v{T0}, 1, v{T0}
    v_add_u32 v{T0+1}, 1, v{T0+1}
    v_add_u32 v{T0+2}, 1, v{T0+2}
    s_branch EXPAND
EXPAND_DONE:
    s_mov_b64 exec, -1
    s_sub_u32 s{S_NWIN}, s{S_N}, s{S_W0}
    s_min_u32 s{S_NWIN}, s{S_NWIN}, {CAP}
    v_lshlrev_b32 v{T0}, 2, v0""")
    for i in range(3):
        a(f"""v_add_u32 v{T0+1}, {512*i}, v0
              v_cmp_gt_u32 {sr(S_M+2*i,2)}, s{S_NWIN}, v{T0+1}""")
    st('list built')
    a("s_waitcnt lgkmcnt(0)\ns_barrier")
    st('list barrier')
    G = XR
    KP = TP
    for i in range(3): a(f"ds_read_b32 v{G+i}, v{T0} offset:{L_SENT + 2048*i}")
    a(f"""s_mov_b32 s{S_T+2}, 5033                          ; 12 * 2^32 / (10000 * 1024)
    s_waitcnt lgkmcnt(0)""")
    for i in range(3):
        a(f"v_lshlrev_b32 v{G+4+i}, 3, v{G+i}\nv_lshlrev_b32 v{G+i}, 4, v{G+i}")
    a(f"""KEY_LOAD:
    s_mov_b64 exec, {sr(S_M+4,2)}
    s_cbranch_execz SKIP3
    buffer_load_dwordx2 {vr(KP+4,2)}, v{G+6}, {sr(S_WS,4)}, 0 offen sc1
SKIP3:""")
    for i in range(2):
        a(f"s_mov_b64 exec, {sr(S_M+2*i,2)}\nbuffer_load_dwordx2 {vr(KP+2*i,2)}, v{G+4+i}, {sr(S_WS,4)}, 0 offen sc1")
    a(f"""s_mov_b64 exec, -1
    s_sub_u32 s{S_JOB}, s{S_WAVE}, 4
    s_cmp_ge_u32 s{S_JOB}, 3
    s_cbranch_scc1 NO_LAST_JOB
    s_mov_b32 s{S_L2E}, 0xbfb8aa3b
    s_mov_b32 s{S_L2E+1}, 0xbfb8aa3b""")
    lut_jobs(a, "k", f"s_add_u32 s{S_JOB}, s{S_JOB}, 28", 1)
    a("NO_LAST_JOB:\ns_waitcnt vmcnt(0)")
    for i in range(3): a(f"v_cmp_ne_u32 {sr(S_K+2*i,2)}, s{S_NLO}, v{KP+2*i+1}")
    for i in range(3): a(f"s_and_b64 {sr(S_K+2*i,2)}, {sr(S_K+2*i,2)}, {sr(S_M+2*i,2)}")
    a(f"""s_or_b64 {sr(S_K,2)}, {sr(S_K,2)}, {sr(S_K+2,2)}
    s_or_b64 {sr(S_K,2)}, {sr(S_K,2)}, {sr(S_K+4,2)}
    s_cbranch_scc0 KEYS_OK
    s_sub_u32 s{S_SPIN}, s{S_SPIN}, 1
    s_cbranch_scc0 KEY_LOAD
    s_endpgm
KEYS_OK:""")
    st('keys arrived')
    if opt.rdy == 0: poll_issue(a, TT, V_FLAG, 0)
    for i in range(3):
        a(f"""v_mul_hi_u32 v{T0+1}, s{S_T+2}, v{KP+2*i}
              v_and_b32 v{G+8+i}, 63, v{KP+2*i}
              v_mul_u32_u24 v{G+8+i}, {HS}, v{G+8+i}
              v_lshl_add_u32 v{G+8+i}, v{T0+1}, 2, v{G+8+i}""")
    for i in range(3):
        a(f"s_mov_b64 exec, {sr(S_M+2*i,2)}\nds_add_rtn_u32 v{G+12+i}, v{G+8+i}, v{V_ONE} offset:{L_HIST}")
    a("s_mov_b64 exec, -1")
    for i in range(3):
        a(f"""v_add_u32 v{T0+1}, {512*i}, v0
              v_lshlrev_b32 v{T0+1}, 21, v{T0+1}
              v_lshrrev_b32 v{G+16+i}, 10, v{KP+2*i}
              v_lshl_or_b32 v{G+16+i}, v{G+16+i}, 7, v{T0+1}""")
    H = G + 20
    a(f"""v_lshrrev_b32 v{T0}, 4, v{V_L16}              ; lane
    v_min_u32 v{T0+1}, 39, v{T0}
    v_mul_u32_u24 v{T0+1}, {HS}, v{T0+1}
    v_cmp_gt_u32 {sr(S_T+4,2)}, 40, v{T0}
    v_sub_u32 v{T0+2}, 63, v{T0}
    s_mul_i32 s10, s{S_WAVE}, 5
    s_lshl_b32 s3, s{S_WAVE}, 10
    s_add_u32 s3, s3, {L_UREC}
    s_mov_b32 s9, {WS_REC}
    s_waitcnt lgkmcnt(0)
    s_barrier""")
    st('hist done')
    if opt.rdy == 1: poll_issue(a, TT, V_FLAG, 0)
    for k in range(3): a(f"ds_read_b128 {vr(H+4*k,4)}, v{T0+1} offset:{L_HIST + 16*k}")
    a(f"""    s_waitcnt lgkmcnt(1)
    v_add3_u32 v{H}, v{H}, v{H+1}, v{H+2}
    v_add3_u32 v{H+3}, v{H+3}, v{H+4}, v{H+5}
    v_add3_u32 v{H}, v{H}, v{H+6}, v{H+7}
    s_waitcnt lgkmcnt(0)
    v_add3_u32 v{H+3}, v{H+3}, v{H+8}, v{H+9}
    v_add3_u32 v{H}, v{H}, v{H+10}, v{H+11}
    v_add_u32 v{H}, v{H}, v{H+3}
    v_lshl_or_b32 v{H+1}, v{H}, 6, v{T0+2}
    v_cndmask_b32 v{H+1}, 0, v{H+1}, {sr(S_T+4,2)}
    s_cmp_lg_u32 s{S_W0}, 0
    s_cbranch_scc1 DEALT""")
    for k in range(5):
        a(f"v_readlane_b32 s{S_NODE+k}, v{H+1}, s10")
        if k < 4: a("s_add_u32 s10, s10, 1")
    for k in range(5): a(f"v_cmp_lt_u32 {sr(S_K+2*k,2)}, s{S_NODE+k}, v{H+1}")
    for k in range(5): a(f"s_bcnt1_i32_b64 s{S_NODE+k}, {sr(S_K+2*k,2)}")
    for k in range(5): a(f"v_writelane_b32 v{T0+1}, s{S_NODE+k}, {k}")
    a(f"""s_sub_u32 s10, s10, 4
    v_add_u32 v{T0+2}, s10, v{T0}
    v_lshrrev_b32 v{T0+3}, 3, v{T0+1}
    v_and_b32 v{T0+1}, 7, v{T0+1}
    v_lshrrev_b32 v{T0+4}, v{T0+3}, {opt.dirmask}
    v_and_b32 v{T0+4}, 1, v{T0+4}
    v_mul_u32_u24 v{T0+4}, 7, v{T0+4}
    v_xor_b32 v{T0+1}, v{T0+1}, v{T0+4}               ; wave
    v_mad_u32_u24 v{T0+1}, v{T0+1}, 5, v{T0+3}
    v_lshlrev_b32 v{T0+1}, 2, v{T0+1}
    s_mov_b64 exec, 0x1f
    ds_write_b32 v{T0+1}, v{T0+2} offset:{L_INV}
    s_mov_b64 exec, -1
DEALT:
    s_lshl_b32 s11, s10, 2
    v_add_u32 v{T0+1}, s11, v{V_SLOT4}
    v_lshlrev_b32 v{T0+5}, 2, v{T0}
""")
    poll_check(a, "REC", TT, V_FLAG, 0, TT + 1)
    a(f"""v_cmp_gt_u32 {sr(S_T,2)}, 60, v{T0}
    s_waitcnt lgkmcnt(0)
    s_barrier""")
    st('dealt')
    a(f"""ds_read_b32 v{T0+1}, v{T0+1} offset:{L_INV}
    ds_read_b32 v{T0+5}, v{T0+5} offset:{L_INV}
    v_lshlrev_b32 v{T0+4}, 17, v{V_SLOT4}             ; slot << 19""")
    for i in range(2):
        a(f"""s_add_u32 m0, s3, {i*8192}
              s_mov_b64 exec, {sr(S_M+2*i,2)}
              buffer_load_dwordx4 v{G+i}, {sr(S_WS,4)}, s9 offen sc1 lds""")
    a(f"""s_add_u32 m0, s3, {2*8192}
    s_mov_b64 exec, {sr(S_M+4,2)}
    s_cbranch_execz SKIP3R
    buffer_load_dwordx4 v{G+2}, {sr(S_WS,4)}, s9 offen sc1 lds
SKIP3R:
    s_mov_b64 exec, -1""")
    a(f"""    s_waitcnt lgkmcnt(1)
    v_mul_u32_u24 v{T0+2}, {HS}, v{T0+1}
    v_add_u32 v{T0+2}, v{T0+2}, v{V_SIG4}
    ds_read_b32 v{T0+3}, v{T0+2} offset:{L_HIST}
    s_waitcnt lgkmcnt(1)
    v_lshlrev_b32 v{T0+5}, 2, v{T0+5}
    ds_bpermute_b32 v{H+2}, v{T0+5}, v{H}""")
    for k in range(5): a(f"v_readlane_b32 s{S_NODE+k}, v{T0+1}, {k}")
    a(f"""s_waitcnt lgkmcnt(0)
    v_cndmask_b32 v{T0+3}, 0, v{T0+3}, {sr(S_T,2)}
    v_cndmask_b32 v{H+2}, 0, v{H+2}, {sr(S_T+4,2)}
    v_sub_u32 v{T0+4}, v{T0+4}, v{T0+3}
    v_mov_b32 v{H+3}, v{H+2}""")
    scan64(a, T0 + 3, H + 3)
    a(f"""v_sub_u32 v{H+3}, v{H+3}, v{H+2}
    v_add_u32 v{T0+4}, v{T0+4}, v{T0+3}
    v_readlane_b32 s{S_START}, v{H+3}, s10
    v_readlane_b32 s{S_END}, v{T0+3}, 63
    s_nop 0
    v_add_u32 v{T0+4}, s{S_START}, v{T0+4}
    s_mov_b64 exec, {sr(S_T,2)}
    ds_write_b32 v{T0+2}, v{T0+4} offset:{L_HIST}
    s_mov_b64 exec, -1
    v_add_u32 v{V_POS}, s{S_START}, v{T0}
    v_lshlrev_b32 v{V_AENT}, 2, v{V_POS}
    v_add_u32 v{V_AENT}, {L_SENT}, v{V_AENT}
    s_add_u32 s10, s{S_END}, 3
    s_and_b32 s10, s10, -4
    s_min_u32 s{S_REMB}, s10, {8 if D == 8 else 4}
    s_sub_u32 s{S_REM}, s10, s{S_REMB}
    s_add_u32 s{S_END}, s{S_END}, s{S_START}""")
    a("s_waitcnt lgkmcnt(0)\ns_barrier")
    st('bases')
    for i in range(3): a(f"ds_read_b32 v{G+8+i}, v{G+8+i} offset:{L_HIST}")
    for i in range(3):
        a(f"""s_waitcnt lgkmcnt({2-i})
              v_lshrrev_b32 v{T0+1}, 16, v{G+8+i}
              v_and_b32 v{G+8+i}, 0xffff, v{G+8+i}
              v_or_b32 v{G+16+i}, v{G+16+i}, v{T0+1}
              v_add_lshl_u32 v{G+8+i}, v{G+8+i}, v{G+12+i}, 2""")
    for i in range(3):
        a(f"""s_mov_b64 exec, {sr(S_M+2*i,2)}
              ds_write_b32 v{G+8+i}, v{G+16+i} offset:{L_SENT}""")
    a("s_mov_b64 exec, -1")
    a("s_waitcnt lgkmcnt(0)")
    a("s_barrier")
    st('sorted')
    if opt.stamps: a(f"s_memtime s[100:101]\ns_waitcnt lgkmcnt(0)\ns_mov_b32 s{S_ST+30}, s100")
    meta_read_entry(a)
    a(f"""s_and_b32 s{S_WM}, s{S_WAVE}, 3
    s_lshl_b32 s{S_WM}, s{S_WM}, 13
    s_add_u32 s{S_WM}, s{S_WM}, {WS_WMIX}
    s_add_u32 s{S_WM+1}, s{S_WM}, 4096""")
    for k in range(8): a(f"v_mov_b32 v{RR+k}, 0")
    a("s_waitcnt lgkmcnt(0)")
    meta_fix_entry(a, False)
    a("s_nop 0")
    for e in range(D):
        a(f"""v_readlane_b32 s{S_K+e}, v{ENT}, {e}
              s_and_b32 s{S_OFF}, s{S_K+e}, s{S_MASK}
              buffer_load_dwordx4 {vr(XR+4*e,4)}, v{V_L16}, {sr(S_X,4)}, s{S_OFF} offen""")
    a(f"v_mov_b32 v{KEY}, v{ENT}\ns_waitcnt vmcnt({D})")
    st('recs landed')
    a("s_barrier")
    meta_read_rec(a)
    a(f"""s_waitcnt lgkmcnt(0)
    v_mov_b32 v{EF}, v{RECN+2}
    v_mov_b32 v{EF+1}, v{RECN+3}""")
    for i in range(4): a(w_mfma(i))
    a(p_mfma(0, 0)); a(p_mfma(0, 1)); a(p_mfma(1, 0))
    a("s_nop 1")
    for m in range(4): w_cvt(a, m)
    for odd in range(2):
        u, r = act_regs(0, odd)
        for h in range(2): a(act_addr(TT + 2 * odd + h, u + h))
        for h in range(2): a(act_read(r + h, TT + 2 * odd + h))
    a(f"s_waitcnt vmcnt({D-1})")
    st('first row')
    a(t_mfma(0, 0)); a(t_mfma(0, 1))
    body(a, opt, True)
    for q in range(0, 64, 4):
        a(f"TO_B_{q}:")
        for k in range(8):
            a(f"buffer_load_dwordx4 {vr(WMIX+4*k,4)}, v{V_L16}, {sr(S_WS,4)}, s{S_WM + k // 4} offen offset:{(k%4)*1024} sc1")
        if q: a(f"s_branch B_{q}")
        else: a("s_branch B_0")
    body(a, opt, False)
    a(f"""MAIN_DONE:
    s_waitcnt vmcnt(0) lgkmcnt(0)
    s_add_u32 s{S_W0}, s{S_W0}, {CAP}
    s_cmp_ge_u32 s{S_W0}, s{S_N}
    s_cbranch_scc1 ALL_DONE""")
    zero_hist(a)
    a("s_waitcnt lgkmcnt(0)\ns_barrier\ns_branch ROUND\nALL_DONE:")
    st('main done')
    if opt.stamps: a(f"s_memtime s[100:101]\ns_waitcnt lgkmcnt(0)\ns_sub_u32 s{S_ST+30}, s100, s{S_ST+30}")
    PK = XR
    for s in range(5):
        for o in range(4): a(f"v_cvt_pk_bf16_f32 v{PK+4*s+o}, v{ACC+8*s+o}, v{ACC+8*s+4+o}")
    a(f"""v_lshrrev_b32 v{T0}, 2, v{V_L16}
    v_add_u32 v{T0}, {L_AGG}, v{T0}""")
    for s in range(5):
        a(f"s_mul_i32 s{S_T}, s{S_NODE+s}, {4 * AGG_RS}\nv_add_u32 v{TP+s}, s{S_T}, v{T0}")
    a(f"""v_lshrrev_b32 v{T0+1}, 4, v{V_L16}            ; lane
    v_and_b32 v{T0+2}, 15, v{T0+1}
    v_lshrrev_b32 v{T0+3}, 4, v{T0+1}                 ; lane >> 4
    s_lshr_b32 s{S_T}, s{S_WAVE}, 2
    s_mul_i32 s{S_T+1}, s{S_T}, {80 * AGG_RS}
    s_add_u32 s{S_T+1}, s{S_T+1}, {L_AGG}
    v_mul_u32_u24 v{T0}, {AGG_RS}, v{T0+2}
    v_lshl_add_u32 v{T0}, v{T0+3}, 4, v{T0}
    v_add_u32 v{T0}, s{S_T+1}, v{T0}
    s_mul_i32 s{S_T}, s{S_T}, {20 << 18}
    s_lshl_b32 s{S_T+1}, s{S_BETA}, 10
    s_add_u32 s{S_T}, s{S_T}, s{S_T+1}
    s_and_b32 s{S_T+1}, s{S_WAVE}, 3
    s_lshl_b32 s{S_T+1}, s{S_T+1}, 8
    s_add_u32 s{S_T}, s{S_T}, s{S_T+1}
    v_lshlrev_b32 v{T0+3}, 18, v{T0+3}
    v_lshl_add_u32 v{T0+3}, v{T0+2}, 4, v{T0+3}
    v_add_u32 v{T0+3}, s{S_T}, v{T0+3}
    s_barrier""")
    st('all main done')
    for s in range(5):
        for o in range(4): a(f"ds_write_b32 v{TP+s}, v{PK+4*s+o} offset:{o*AGG_RS}")
    a("s_waitcnt lgkmcnt(0)\ns_barrier")
    st('agg in LDS')
    AF = XR
    def rd(t):
        for ks in range(4): a(f"ds_read_b128 {vr(AF+16*(t%2)+4*ks,4)}, v{T0} offset:{t*16*AGG_RS + ks*64}")
    def pack_store(t):
        d = ACC + 8 * t; p = RR + 4 * (t % 2)
        for j in range(4): a(f"v_cvt_pk_bf16_f32 v{p+j}, v{d+2*j}, v{d+2*j+1}")
        a(f"buffer_store_dwordx4 {vr(p,4)}, v{T0+3}, {sr(S_OUT,4)}, 0 offen {opt.outst}")
        if t < 4: a(f"v_add_u32 v{T0+3}, {4 << 18}, v{T0+3}")
    rd(0)
    for t in range(5):
        if t < 4: rd(t + 1)
        for ks in range(4):
            a(f"s_waitcnt lgkmcnt({(4 if t < 4 else 0) + 3 - ks})")
            for j in range(2):
                d = ACC + 8 * t + 4 * j
                a(f"v_mfma_f32_16x16x32_bf16 {vr(d,4)}, {vr(AF+16*(t%2)+4*ks,4)}, {vr(WMIX+16*j+4*ks,4)}, " + ("0" if ks == 0 else vr(d, 4)))
            if ks == 3 and t > 0: pack_store(t - 1)
    a("s_nop 7")
    pack_store(4)
    st('end')
    if opt.probe:
        a(f"""s_cmp_eq_u32 s93, 0
        s_cselect_b32 s93, s92, s93
        s_sub_u32 s93, s93, s92
        s_mul_i32 s93, s93, 4
        s_add_u32 s92, s92, s93
        s_add_u32 s92, s92, 6000
        HOLD_SPIN:
        s_memrealtime s[98:99]
        s_waitcnt lgkmcnt(0)
        s_sub_u32 s98, s98, s92
        s_cmp_lt_i32 s98, 0
        s_cbranch_scc1 HOLD_SPIN""")
    if opt.stamps:
        a("s_waitcnt vmcnt(0)")
        st('stores done 2')
        a(f"""s_lshl_b32 s10, s2, 3
        s_add_u32 s10, s10, s{S_WAVE}
        s_lshl_b32 s10, s10, 7
        s_add_u32 s10, s10, {WS_STAMP}
        v_mov_b32 v{T0}, s10
        s_sub_u32 s{S_ST+31}, s{S_END}, s{S_START}
        s_sub_u32 s{S_ST+29}, {1 << 21}, s{S_SPIN}""")
        for k in range(32): a(f"v_mov_b32 v{XR+k}, s{S_ST+k}")
        for k in range(8): a(f"buffer_store_dwordx4 {vr(XR+4*k,4)}, v{T0}, {sr(S_WS,4)}, 0 offen offset:{16*k}")
    a("END:\ns_endpgm")
    return a.text()

def generate(opt):
    here = os.path.dirname(os.path.abspath(__file__))
    out = open(here + "/header.txt").read()
    out += f"; @launch grid=(256,1,1) block=(512,1,1) lds={LDS_BYTES}\n"
    out += f'.amdgcn_target "amdgcn-amd-amdhsa--gfx950"\n.text\n.globl {KERN}\n.p2align 8\n.type {KERN},@function\n'
    out += kernel(opt)
    out += f""".section .rodata,"a"
.p2align 6
.amdhsa_kernel {KERN}
  .amdhsa_next_free_vgpr {NVGPR}
  .amdhsa_next_free_sgpr {NSGPR if opt.stamps or opt.probe else 66}
  .amdhsa_accum_offset {(NVGPR + 3) // 4 * 4}
  .amdhsa_group_segment_fixed_size 0
  .amdhsa_kernarg_size 88
  .amdhsa_user_sgpr_count 2
  .amdhsa_user_sgpr_kernarg_segment_ptr 1
  .amdhsa_system_sgpr_workgroup_id_x 1
  .amdhsa_float_denorm_mode_32 3
.end_amdhsa_kernel
"""
    return out

def options(argv):
    p = argparse.ArgumentParser()
    p.add_argument("-o", default="/code/" + NAME + ".s")
    p.add_argument("--stamps", action="store_true")
    p.add_argument("--probe", default="")
    p.add_argument("--D", type=int, default=7)
    p.add_argument("--hsplit", type=int, default=52)
    p.add_argument("--retry", default="sc1")
    p.add_argument("--rdy", type=int, default=0)
    p.add_argument("--ipf", type=int, default=1)
    p.add_argument("--lsplit", type=int, default=15)
    p.add_argument("--keypf", type=int, default=1)
    p.add_argument("--k1st", default="sc0 sc1")
    p.add_argument("--outst", default="sc0 sc1")
    p.add_argument("--dirmask", type=int, default=0x12)
    return p.parse_args(argv)

if __name__ == "__main__":
    opt = options(sys.argv[1:])
    RETRY = opt.retry
    open(opt.o, "w").write(generate(opt))
    if opt.stamps: open(opt.o + ".names", "w").write(repr(STAMPS))
```

```python
import sys, argparse, os

NAME = "gather_scatter__tensor_product_equiv_tfn__graph"
KERN = NAME + "_kernel"
N, E, C = 10000, 320000, 128
NP, EP = 250, 1280
WS_KEY = 0
WS_REC = 0x280000
WS_WMIX = 0x771000
WS_TAB = 0x780000
WS_RDY = WS_TAB + 256 * 2048
WS_EPOCH = WS_RDY + 256 * 1024
WS_END = WS_EPOCH + 128
WS_STAMP = 0x900000
CAP = 1472

class Asm:
    def __init__(self): self.l = []
    def __call__(self, s):
        for line in s.strip("\n").split("\n"):
            line = line.strip()
            if not line: continue
            self.l.append(line if line.endswith(":") else "    " + line)
    def text(self): return "\n".join(self.l) + "\n"

def vr(a, n=1): return f"v{a}" if n == 1 else f"v[{a}:{a+n-1}]"
def sr(a, n=1): return f"s{a}" if n == 1 else f"s[{a}:{a+n-1}]"

SCAN_STEPS = ["row_shr:1 row_mask:0xf bank_mask:0xf bound_ctrl:0", "row_shr:2 row_mask:0xf bank_mask:0xf bound_ctrl:0",
              "row_shr:4 row_mask:0xf bank_mask:0xf bound_ctrl:0", "row_shr:8 row_mask:0xf bank_mask:0xf bound_ctrl:0",
              "row_bcast:15 row_mask:0xa bank_mask:0xf", "row_bcast:31 row_mask:0xc bank_mask:0xf"]
def scan64(a, *regs):
    for c in SCAN_STEPS:
        a("s_nop 1" if len(regs) == 1 else "s_nop 0")
        for v in regs: a(f"v_add_u32_dpp v{v}, v{v}, v{v} {c}")

NSB, HS = 12, 48
L_HIST = 0; L_INV = 40 * HS; L_WT = L_INV + 256; L_CNT = L_WT + 64
L_SENT = L_WT + 128
L_UREC = L_SENT + CAP * 4
L_CG = L_UREC + CAP * 16
L_LUT = 32768
L1_HIST = L_SENT; L1_BASE = L1_HIST + 1024; L1_SREC = L1_BASE + 1024
L1_SKEY = L_LUT + 53 * 1024
assert L_CG + 128 <= L_LUT and L1_SREC + EP * 16 <= L_LUT and L1_BASE <= 4096
L_AGG = L_LUT; AGG_RS = 288
LDS_BYTES = L_LUT + 131072

V_L16 = 1
V_LEN, V_PRE, V_GID = 2, 3, 4
V_AENT, V_POS = 5, 6
V_SLOT4, V_SIG4, V_ONE = 7, 14, 15
V_FLAG = 166
T0 = 8
ACC = 16; XR = 64; TP = 96; UU = 112; RR = 128; TT = 136; WPK = 140; WTMP = 148
KEY = 164; ENT = 165; RECN = 168; EF = 172; CONST = 176; WMIX = 188
NVGPR = 220
PE, PO, CGB = CONST, CONST + 2, CONST + 4
LJ = 128
S_NODE = 4
S_X, S_WS, S_OUT = 12, 16, 20
S_BETA, S_WAVE, S_N, S_W0, S_NWIN, S_START, S_END, S_REM, S_REMB, S_OFF, S_MASK = range(24, 35)
S_SPIN = 35
S_M = 36
S_T = 42
S_K = 48
S_IN = 40
S_OD = 56
S_JOB, S_JCNT = 62, 63
S_NLO, S_NHI = 64, 65
S_WM = 10
S_L2E = 10
S_ST = 66
NSGPR = 102

STAMPS = []
RETRY = 'sc1'
def stamp(a, opt, name):
    if opt.probe == name: a("s_memrealtime s[98:99]\ns_waitcnt lgkmcnt(0)\ns_mov_b32 s93, s98")
    if not opt.stamps: return
    if name not in STAMPS: STAMPS.append(name)
    a(f"s_memrealtime s[98:99]\ns_waitcnt lgkmcnt(0)\ns_mov_b32 s{S_ST + STAMPS.index(name)}, s98")

def lut_jobs(a, tag, first, count):
    J, Ex, R, P = LJ, LJ + 8, LJ + 16, LJ + 24
    if first is not None: a(first)
    if count: a(f"s_mov_b32 s{S_JCNT}, {count}")
    a(f"""LUT_{tag}:
    s_lshl_b32 s3, s{S_JOB}, 25
    s_add_u32 s3, s3, 0x8000
    v_lshl_add_u32 v{J}, v{V_L16}, 15, s3""")
    for k in range(1, 8): a(f"v_add_u32 v{J+k}, {k << 16}, v{J}")
    for k in range(0, 8, 2): a(f"v_pk_mul_f32 {vr(Ex+k,2)}, {vr(J+k,2)}, {sr(S_L2E,2)}")
    for k in range(8): a(f"v_exp_f32 v{Ex+k}, v{Ex+k}")
    a(f"s_lshl_b32 s3, s{S_JOB}, 10")
    for k in range(0, 8, 2): a(f"v_pk_add_f32 {vr(R+k,2)}, {vr(Ex+k,2)}, 1.0 op_sel_hi:[1,0]")
    for k in range(8): a(f"v_rcp_f32 v{R+k}, v{R+k}")
    a(f"v_add_u32 v{P+8}, s3, v{V_L16}")
    for k in range(0, 8, 2): a(f"v_pk_mul_f32 {vr(J+k,2)}, {vr(J+k,2)}, {vr(R+k,2)}")
    a(f"v_add_u32 v{P+9}, 0x10000, v{P+8}")
    for k in range(0, 8, 2): a(f"v_pk_mul_f32 {vr(Ex+k,2)}, {vr(J+k,2)}, {vr(Ex+k,2)} neg_lo:[1,0] neg_hi:[1,0]")
    for k in range(4): a(f"v_cvt_pk_bf16_f32 v{P+k}, v{J+2*k}, v{J+2*k+1}")
    for k in range(4): a(f"v_cvt_pk_bf16_f32 v{P+4+k}, v{Ex+2*k}, v{Ex+2*k+1}")
    a(f"""ds_write_b128 v{P+8}, {vr(P,4)} offset:{L_LUT}
    ds_write_b128 v{P+9}, {vr(P+4,4)} offset:{L_LUT}
    s_add_u32 s{S_JOB}, s{S_JOB}, 1
    s_sub_u32 s{S_JCNT}, s{S_JCNT}, 1
    s_cmp_lg_u32 s{S_JCNT}, 0
    s_cbranch_scc1 LUT_{tag}""")

def lut_plain(a, tag, region, last=None, cont=False):
    P = LJ
    for name, first, end, bias in (("L", 1, 24, 0x20000 - 0x800080), ("H", 34, 62, 0x20000)):
        if name != region: continue
        last = last or end
        if cont: a(f"s_cmp_gt_u32 s{S_JOB}, {last}\ns_cbranch_scc1 LUTP_END_{tag}")
        else: a(f"s_add_u32 s{S_JOB}, s{S_WAVE}, {first}")
        if name == "H" and not cont:
            for k in range(4): a(f"v_mov_b32 v{P+4+k}, 0x80008000")
        a(f"""LUTP_{tag}{name}:
        s_mul_i32 s3, s{S_JOB}, {512 * 0x10001}
        s_add_u32 s3, s3, {bias & 0xffffffff}
        v_add_u32 v{P}, s3, v{P+10}
        s_lshl_b32 s3, s{S_JOB}, 10
        v_add_u32 v{P+8}, s3, v{V_L16}""")
        for k in range(1, 4): a(f"v_add_u32 v{P+k}, {k * 0x20002}, v{P}")
        a(f"v_add_u32 v{P+9}, 0x10000, v{P+8}")
        if name == "L":
            for k in range(4): a(f"v_or_b32 v{P+4+k}, 0x80008000, v{P+k}")
        a(f"""ds_write_b128 v{P+8}, {vr(P,4)} offset:{L_LUT}
        ds_write_b128 v{P+9}, {vr(P+4,4)} offset:{L_LUT}
        s_add_u32 s{S_JOB}, s{S_JOB}, {5 if name == "L" else 4}
        s_cmp_le_u32 s{S_JOB}, {last}
        s_cbranch_scc1 LUTP_{tag}{name}
        LUTP_END_{tag}:""")

def flag_store(a, base):
    a(f"""s_lshl_b32 s3, s2, 10
    s_add_u32 s3, s3, {base}
    v_lshl_add_u32 v{T0+2}, v{V_L16}, 3, s3
    v_mov_b32 v{T0+4}, s{S_NLO}
    v_mov_b32 v{T0+5}, s{S_NHI}
    s_mov_b64 exec, 0xff
    global_store_dwordx2 v{T0+2}, {vr(T0+4,2)}, {sr(S_WS,2)} sc0 sc1
    s_mov_b64 exec, -1""")

def poll_issue(a, dst, addr, soff):
    a(f"buffer_load_dwordx2 {vr(dst,2)}, v{addr}, {sr(S_WS,4)}, {soff} offen sc1")
def poll_check(a, tag, dst, addr, soff, hi, pre=""):
    a(f"""POLL_{tag}:
    s_waitcnt vmcnt(0)
    {pre}
    v_cmp_ne_u32 vcc, s{S_NLO}, v{dst + 1 if pre else dst}
    v_cmp_ne_u32 {sr(S_T,2)}, s{S_NHI}, v{hi}
    s_or_b64 vcc, vcc, {sr(S_T,2)}
    s_and_b64 exec, exec, vcc
    s_cbranch_execz POLLED_{tag}
    s_sub_u32 s{S_SPIN}, s{S_SPIN}, 1
    s_cbranch_scc1 END""")
    if RETRY == "atomic":
        a(f"""v_mov_b32 v{dst}, 0
        v_mov_b32 v{dst+1}, 0
        buffer_atomic_or_x2 {vr(dst,2)}, v{addr}, {sr(S_WS,4)}, {soff} offen sc0""")
    else: a(f"buffer_load_dwordx2 {vr(dst,2)}, v{addr}, {sr(S_WS,4)}, {soff} offen {RETRY}")
    a(f"""s_branch POLL_{tag}
    POLLED_{tag}:
    s_mov_b64 exec, -1""")

def load_epoch(a):
    a(f"""s_add_u32 s4, s{S_WS}, {WS_EPOCH}
    s_addc_u32 s5, s{S_WS+1}, 0
    s_load_dwordx2 {sr(S_NLO,2)}, s[4:5], 0""")
def make_tag(a):
    a(f"""s_add_u32 s{S_NLO}, s{S_NLO}, 1
    s_and_b32 s{S_NHI}, s{S_NHI}, 0x3ff""")

def scan256(a, H_, O_):
    a(f"""v_add_u32 v{T0+2}, v{H_}, v{H_+1}
    v_add3_u32 v{T0+2}, v{T0+2}, v{H_+2}, v{H_+3}
    v_mov_b32 v{T0+3}, v{T0+2}""")
    scan64(a, T0 + 3)
    a(f"""v_sub_u32 v{O_}, v{T0+3}, v{T0+2}
    v_add_u32 v{O_+1}, v{O_}, v{H_}
    v_add_u32 v{O_+2}, v{O_+1}, v{H_+1}
    v_add_u32 v{O_+3}, v{O_+2}, v{H_+2}""")

def phase1(a, opt):
    st = lambda n: stamp(a, opt, n)
    SRC, DST, YY, EFP, WRAD, CG, WMX = S_IN + 2, S_IN + 4, S_IN + 6, S_IN + 8, S_IN + 10, S_IN + 12, S_IN + 14
    WS = sr(S_WS, 2); FL = opt.k1st
    D_, S_, Y_, F_, B_, R_, H_, O_, TB = 64, 68, 72, 80, 88, 92, 96, 100, 108
    CT = WMIX
    def const_issue():
        a(f"v_lshrrev_b32 v{CT+5}, 2, v{V_L16}")
        for k in range(4): a(f"global_load_dword v{CT+k}, v{CT+5}, {sr(WRAD,2)} offset:{k*256}")
        a(f"v_and_b32 v{CT+5}, 0x7f, v{CT+5}\nglobal_load_dword v{CT+4}, v{CT+5}, {sr(CG,2)}")
    def const_finish():
        a(f"""ds_write_b32 v{CT+5}, v{CT+4} offset:{L_CG}
        v_lshrrev_b32 v{CT+5}, 3, v{V_L16}
        v_and_b32 v{CT+5}, 24, v{CT+5}
        s_mov_b32 s4, 0x05040100
        s_mov_b32 s5, 0x07060302""")
        for i in range(4): a(f"ds_read_b64_tr_b16 {vr(CGB+2*i,2)}, v{CT+5} offset:{L_CG + 32*i}")
        for u in range(2):
            a(f"v_perm_b32 v{PE+u}, v{CT+1+2*u}, v{CT+2*u}, s4\nv_perm_b32 v{PO+u}, v{CT+1+2*u}, v{CT+2*u}, s5")
    def rec_stores(tag, first, count):
        a(f"""s_cmp_ge_u32 s2, {NP}
        s_cbranch_scc1 NO_RECS_{tag}
        s_mul_i32 s3, s2, {EP * 16}
        s_add_u32 s3, s3, {WS_REC + first * 1024}
        v_add_u32 v{T0+1}, s3, v{V_L16}""")
        for k in range(count): a(f"ds_read_b128 {vr(84+4*k,4)}, v{V_L16} offset:{L1_SREC + (first + k) * 1024}")
        for k in range(count):
            if k == 4: a(f"v_add_u32 v{T0+1}, 4096, v{T0+1}")
            a(f"s_waitcnt lgkmcnt({count-1-k})\nglobal_store_dwordx4 v{T0+1}, {vr(84+4*k,4)}, {WS} offset:{(1024*k) % 4096} {FL}")
        a(f"NO_RECS_{tag}:")
    def key_stores(first, count):
        a(f"""s_mul_i32 s3, s2, {EP * 8}
        s_add_u32 s3, s3, {WS_KEY + first * 1024}
        v_add_u32 v{T0+1}, s3, v{V_L16}
        v_add_u32 v{T0+2}, {L1_SKEY + first * 1024}, v{V_L16}
        s_barrier""")
        for k in range(count): a(f"ds_read_b128 {vr(64+4*k,4)}, v{T0+2} offset:{1024*k}")
        for k in range(count):
            a(f"s_waitcnt lgkmcnt({count-1-k})\nglobal_store_dwordx4 v{T0+1}, {vr(64+4*k,4)}, {WS} offset:{1024*k} {FL}")
        a("s_barrier")
    a(f"""s_cmp_ge_u32 s{S_WAVE}, 5
    s_cbranch_scc1 HELP
    v_mul_u32_u24 v{LJ+10}, 0x8000, v{V_L16}
    v_lshrrev_b32 v{T0+2}, 1, v{V_L16}
    v_add_u32 v{LJ+10}, v{LJ+10}, v{T0+2}           ; lane * 8 * 0x10001
    s_cmp_ge_u32 s2, {NP}
    s_cbranch_scc1 AUX
    s_mul_i32 s3, s2, {EP * 4}
    v_lshl_add_u32 v{T0}, v0, 4, s3
    v_lshlrev_b32 v{T0+1}, 1, v{T0}
    s_mov_b32 s9, {L1_SKEY}
    s_setprio 1
    s_waitcnt lgkmcnt(0)""")
    st('kernargs')
    def load_yf():
        a(f"""global_load_dwordx4 {vr(Y_,4)}, v{T0+1}, {sr(YY,2)}
        global_load_dwordx4 {vr(Y_+4,4)}, v{T0+1}, {sr(YY,2)} offset:16
        global_load_dwordx4 {vr(F_,4)}, v{T0+1}, {sr(EFP,2)}
        global_load_dwordx4 {vr(F_+4,4)}, v{T0+1}, {sr(EFP,2)} offset:16""")
    a(f"""global_load_dwordx4 {vr(D_,4)}, v{T0}, {sr(DST,2)}
    global_load_dwordx4 {vr(S_,4)}, v{T0}, {sr(SRC,2)}""")
    const_issue()
    if not opt.lsplit: load_yf()
    load_epoch(a)
    a("s_barrier")
    if opt.lsplit:
        lut_plain(a, "W0", "L", last=opt.lsplit)
        load_yf()
        lut_plain(a, "W", "L", cont=True)
    else: lut_plain(a, "W", "L")
    a("s_waitcnt lgkmcnt(0)")
    make_tag(a)
    for k in range(4): a(f"v_mov_b32 v{TB+2*k+1}, s{S_NLO}")
    st('jobs A')
    a("s_waitcnt vmcnt(10)")
    st('dst arrived')
    for k in range(4):
        a(f"""v_and_b32 v{B_+k}, 0xff, v{D_+k}
              v_lshlrev_b32 v{B_+k}, 2, v{B_+k}
              ds_add_rtn_u32 v{R_+k}, v{B_+k}, v{V_ONE} offset:{L1_HIST}""")
    a("s_waitcnt vmcnt(9)")
    for k in range(4):
        a(f"""v_lshrrev_b32 v{D_+k}, 8, v{D_+k}
              v_lshl_or_b32 v{TB+2*k}, v{S_+k}, 10, v{D_+k}""")
    a(f"""s_waitcnt lgkmcnt(0)
    s_barrier
    ds_read_b128 {vr(H_,4)}, v{V_L16} offset:{L1_HIST}
    s_waitcnt lgkmcnt(0)""")
    scan256(a, H_, O_)
    a(f"ds_write_b128 v{V_L16}, {vr(O_,4)} offset:{L1_BASE}")
    for k in range(4): a(f"ds_read_b32 v{H_+k}, v{B_+k} offset:{L1_BASE}")
    for k in range(4):
        a(f"""s_waitcnt lgkmcnt(3)
              v_add_u32 v{R_+k}, v{R_+k}, v{H_+k}
              v_lshl_add_u32 v{B_+k}, v{R_+k}, 3, s9
              ds_write_b64 v{B_+k}, {vr(TB+2*k,2)}""")
    for k in range(4):
        a(f"v_lshlrev_b32 v{R_+k}, 4, v{R_+k}\nv_add_u32 v{R_+k}, {L1_SREC}, v{R_+k}")
    a("s_waitcnt lgkmcnt(0)\ns_barrier")
    st('keys binned')
    a("s_waitcnt vmcnt(0)")
    for k in range(4):
        a(f"ds_write2_b64 v{R_+k}, {vr(Y_+2*k,2)}, {vr(F_+2*k,2)} offset0:0 offset1:1")
    st('recs binned')
    const_finish()
    a("s_setprio 0\ns_branch BINNED")
    a(f"""AUX:
    v_lshrrev_b32 v{T0}, 4, v{V_L16}                ; lane
    s_waitcnt lgkmcnt(0)""")
    load_epoch(a)
    const_issue()
    a(f"""s_waitcnt lgkmcnt(0)
    s_cmp_ge_u32 s2, {NP + 4}
    s_cbranch_scc1 AUX_IDLE
    s_cmp_ge_u32 s{S_WAVE}, 4
    s_cbranch_scc1 AUX_IDLE
    s_sub_u32 s4, s2, {NP}
    s_lshl_b32 s5, s{S_WAVE}, 13
    s_lshl_b32 s6, s4, 6
    s_add_u32 s5, s5, s6
    v_lshrrev_b32 v{T0+1}, 4, v{T0}
    v_lshlrev_b32 v{T0+1}, 11, v{T0+1}
    v_and_b32 v{T0+2}, 15, v{T0}
    v_lshl_add_u32 v{T0+1}, v{T0+2}, 2, v{T0+1}
    v_add_u32 v{T0+1}, s5, v{T0+1}
    s_lshl_b32 s5, s4, 13
    s_lshl_b32 s6, s{S_WAVE}, 10
    s_add_u32 s5, s5, s6
    s_add_u32 s5, s5, {WS_WMIX}
    v_add_u32 v{T0+2}, s5, v{V_L16}
    s_mov_b32 s4, 0x05040100
    s_mov_b32 s5, 0x07060302""")
    for t in range(8): a(f"global_load_dword v{64+t}, v{T0+1}, {sr(WMX,2)} offset:{t*256}")
    a("s_barrier")
    lut_plain(a, "X", "L")
    a("s_waitcnt vmcnt(0)")
    for u in range(4):
        a(f"v_perm_b32 v{72+u}, v{65+2*u}, v{64+2*u}, s4\nv_perm_b32 v{76+u}, v{65+2*u}, v{64+2*u}, s5")
    a(f"""global_store_dwordx4 v{T0+2}, v[72:75], {WS} {FL}
    v_add_u32 v{T0+2}, 4096, v{T0+2}
    global_store_dwordx4 v{T0+2}, v[76:79], {WS} {FL}
    s_branch AUX_DONE
AUX_IDLE:
    s_barrier""")
    lut_plain(a, "Z", "L")
    a("AUX_DONE:")
    make_tag(a)
    a("""s_waitcnt lgkmcnt(0)
    s_barrier
    s_barrier
    s_waitcnt vmcnt(0)""")
    const_finish()
    a("s_branch BINNED")
    a("HELP:\ns_waitcnt lgkmcnt(0)")
    load_epoch(a)
    const_issue()
    a(f"""s_barrier
    s_cmp_lg_u32 s{S_WAVE}, 7
    s_cbranch_scc1 HELP56""")
    lut_jobs(a, "7a", f"s_mov_b32 s{S_JOB}, 63", 1)
    a(f"""v_mov_b32 v{T0+2}, {0x7f80 * 2}
    v_mov_b32 v{T0+3}, 0x7f80
    ds_write_b16 v{T0+2}, v{T0+3} offset:{L_LUT}""")
    lut_jobs(a, "7b", f"s_mov_b32 s{S_JOB}, 33", 1)
    st('help jobs')
    a("s_waitcnt vmcnt(0)")
    st('help consts')
    const_finish()
    a("s_waitcnt lgkmcnt(0)")
    make_tag(a)
    a("s_barrier")
    key_stores(0, 4)
    rec_stores("7", 0, 6)
    a(f"""s_branch STORED
HELP56:
    s_cmp_eq_u32 s{S_WAVE}, 6
    s_cbranch_scc1 HELP6""")
    lut_jobs(a, "5a", f"s_mov_b32 s{S_JOB}, 0", 1)
    lut_jobs(a, "5b", f"s_mov_b32 s{S_JOB}, 25", 1)
    st('help jobs')
    a("s_waitcnt vmcnt(0)")
    st('help consts')
    const_finish()
    a("s_waitcnt lgkmcnt(0)")
    make_tag(a)
    a("s_barrier")
    key_stores(4, 3)
    rec_stores("5", 6, 7)
    a("s_branch STORED\nHELP6:")
    lut_jobs(a, "6", f"s_mov_b32 s{S_JOB}, 26", 2)
    st('help jobs')
    a("s_waitcnt vmcnt(0)")
    st('help consts')
    const_finish()
    a(f"""s_lshl_b32 s3, s2, 11
    s_add_u32 s3, s3, {WS_TAB}
    v_lshl_add_u32 v{T0}, v{V_L16}, 1, s3
    s_waitcnt lgkmcnt(0)""")
    make_tag(a)
    a(f"""s_barrier
    ds_read_b128 {vr(H_,4)}, v{V_L16} offset:{L1_HIST}
    s_waitcnt lgkmcnt(0)""")
    scan256(a, H_, O_)
    a(f"s_lshl_b32 s3, s{S_NHI}, 22")
    for k in range(4):
        a(f"""v_lshl_or_b32 v{TB+2*k}, v{H_+k}, 11, v{O_+k}
              v_or_b32 v{TB+2*k}, s3, v{TB+2*k}
              v_mov_b32 v{TB+2*k+1}, s{S_NLO}""")
    a(f"""global_store_dwordx4 v{T0}, {vr(TB,4)}, {WS} sc0 sc1
    global_store_dwordx4 v{T0}, {vr(TB+4,4)}, {WS} offset:16 sc0 sc1""")
    st('table published')
    key_stores(7, 3)
    rec_stores("6", 13, 7)
    a(f"""STORED:
    v_mov_b32 v{V_LEN}, 0
    s_branch TAB_DONE
BINNED:
    v_mov_b32 v{V_LEN}, 0
    s_cmp_eq_u32 s{S_WAVE}, 4
    s_cbranch_scc0 POLLER
    s_waitcnt lgkmcnt(0)
    s_barrier""")
    lut_jobs(a, "4", f"s_mov_b32 s{S_JOB}, 31", 2)
    a("s_branch TAB_DONE\nPOLLER:")
    lut_plain(a, "U", "H", last=opt.hsplit)
    poll_issue(a, V_LEN, V_POS, 0)
    a("s_waitcnt lgkmcnt(0)\ns_barrier")
    st('tab issued')
    lut_plain(a, "V", "H", cont=True)
    poll_check(a, "TAB", V_LEN, V_POS, 0, T0 + 3, f"v_lshrrev_b32 v{T0+3}, 22, v{V_LEN}")
    st('tab arrived')
    a("TAB_DONE:")

def mfma4(d, a_, b, c, blk=None):
    cc = "0" if c is None else vr(c, 4)
    return f"v_mfma_f32_4x4x4_16b_bf16 {vr(d,4)}, {vr(a_,2)}, {vr(b,2)}, {cc}" + ("" if blk is None else f" cbsz:4 abid:{blk}")
def p_mfma(g, odd):
    return mfma4(UU + 8 * (g % 2) + 4 * odd, EF, PO if odd else PE, None, g % 16)
def t_mfma(e, odd):
    return mfma4(TP + 8 * (e % 2) + 4 * odd, WPK + 2 * (e % 4), XR + 4 * (e % 8) + 2 * odd, None, (e % 64) // 4)
def act_regs(eb, odd):
    return UU + 8 * ((eb // 4) % 2) + 4 * odd + eb % 4, RR + 4 * ((eb // 2) % 2) + 2 * odd
def act_addr(t, u):
    return f"v_lshlrev_b32_sdwa v{t}, v{V_ONE}, v{u} dst_sel:DWORD dst_unused:UNUSED_PAD src0_sel:DWORD src1_sel:WORD_1"
def act_read(r, t): return f"ds_read_u16_d16_hi v{r}, v{t} offset:{L_LUT}"
def fma4(a, q):
    h = q % 2
    a(f"s_set_gpr_idx_on s{S_K + q % 16}, 0xc")
    for odd in range(2):
        r = RR + 4 * ((q // 2) % 2) + 2 * odd
        for o in (0, 2):
            acc = ACC + 4 * odd + o; tp = TP + 8 * (q % 2) + 4 * odd + o
            a(f"v_pk_fma_f32 {vr(acc,2)}, {vr(r,2)}, {vr(tp,2)}, {vr(acc,2)} op_sel:[{h},0,0] op_sel_hi:[{h},1,1]")
    a("s_set_gpr_idx_off")
def meta_read_entry(a): a(f"ds_read_b32 v{ENT}, v{V_AENT}")
def meta_fix_entry(a, rec=True):
    a(f"""v_cmp_gt_u32 vcc, s{S_END}, v{V_POS}
          v_add_u32 v{V_POS}, 64, v{V_POS}
          v_add_u32 v{V_AENT}, 256, v{V_AENT}
          v_cndmask_b32 v{ENT}, 40, v{ENT}, vcc
          v_lshrrev_b32 v{T0}, 21, v{ENT}
          v_lshlrev_b32 v{T0}, 4, v{T0}
          v_lshlrev_b32 v{T0+1}, 3, v{ENT}""")
    if rec: meta_read_rec(a)
    a(f"""v_and_b32 v{T0+1}, 0xfffc00, v{T0+1}
          v_and_or_b32 v{ENT}, v{ENT}, 56, v{T0+1}""")
def meta_read_rec(a): a(f"ds_read_b128 {vr(RECN,4)}, v{T0} offset:{L_UREC}")
def w_mfma(i): return mfma4(WTMP + 4 * i, RECN, CGB + 2 * i, None)
def w_cvt(a, m):
    a(f"""v_cvt_pk_bf16_f32 v{WPK+2*m}, v{WTMP+m}, v{WTMP+4+m}
          v_cvt_pk_bf16_f32 v{WPK+2*m+1}, v{WTMP+8+m}, v{WTMP+12+m}""")

def body(a, opt, loads):
    D = opt.D; tag = "A" if loads else "B"
    for q in range(64):
        if q % 4 == 0:
            a(f"{tag}_{q}:")
            if loads: a(f"s_sub_u32 s{S_REM}, s{S_REM}, 4\ns_cbranch_scc1 TO_B_{q}")
            else:     a(f"s_sub_u32 s{S_REMB}, s{S_REMB}, 4\ns_cbranch_scc1 MAIN_DONE")
        eb = q + 2 - q % 2; odd = q % 2
        u, r = act_regs(eb, odd); t = TT + 2 * odd
        g, ur = (q + 6) // 4, (q + 6) % 4
        if ur % 2 == 0: a(p_mfma(g, ur // 2))
        elif 40 <= q < 48: a(w_mfma((q - 40) // 2))
        a(act_addr(t, u))
        a(f"s_waitcnt vmcnt({D - 2 if loads else 8 + max(0, D - (6 if D == 8 else 2) - q % 4)})")
        a(t_mfma(q + 1, 0))
        if loads: a(f"v_readlane_b32 s{S_K + (q + D) % 16}, v{KEY if q + D < 64 else ENT}, {(q + D) % 64}")
        else:     a("s_nop 0")
        a(t_mfma(q + 1, 1))
        a(act_addr(t + 1, u + 1))
        a(act_read(r, t)); a(act_read(r + 1, t + 1))
        if q >= 60: w_cvt(a, q - 60)
        if loads:
            a(f"s_and_b32 s{S_OFF}, s{S_K + (q + D) % 16}, s{S_MASK}")
            a(f"buffer_load_dwordx4 {vr(XR + 4 * ((q + D) % 8), 4)}, v{V_L16}, {sr(S_X,4)}, s{S_OFF} offen")
        if q % 2 == 0: a("s_waitcnt lgkmcnt(2)")
        fma4(a, q)
        if q == 8: meta_read_entry(a)
        if q == 12: meta_fix_entry(a)
        if q == 57: a(f"v_mov_b32 v{EF}, v{RECN+2}\nv_mov_b32 v{EF+1}, v{RECN+3}\ns_nop 1")
        if q == 63: a(f"v_mov_b32 v{KEY}, v{ENT}")
    if opt.stamps and loads:
        STAMPS.extend(("batch 1", "batch 2")); k = S_ST + len(STAMPS) - 2
        a(f"""s_memrealtime s[98:99]
        s_waitcnt lgkmcnt(0)
        s_cmp_eq_u32 s{k}, 0
        s_cselect_b32 s99, 0, s98
        s_cselect_b32 s{k}, s98, s{k}
        s_cmp_eq_u32 s{k+1}, 0
        s_cselect_b32 s{k+1}, s99, s{k+1}""")
    if opt.probe == "batch 1" and loads:
        a("s_memrealtime s[98:99]\ns_waitcnt lgkmcnt(0)\ns_cmp_eq_u32 s93, 0\ns_cselect_b32 s93, s98, s93")
    a(f"s_branch {tag}_0")

def zero_hist(a):
    a(f"""v_lshlrev_b32 v{T0+3}, 2, v0
    v_mov_b32 v{T0+4}, 0
    v_cmp_gt_u32 vcc, {40 * HS // 4}, v0
    s_and_saveexec_b64 {sr(S_T,2)}, vcc
    ds_write_b32 v{T0+3}, v{T0+4} offset:{L_HIST}
    s_mov_b64 exec, {sr(S_T,2)}""")

def kernel(opt):
    a = Asm(); D = opt.D
    st = lambda n: stamp(a, opt, n)
    a(f"""{KERN}:
    s_cmp_ge_u32 s2, 256
    s_cbranch_scc1 END""")
    if opt.probe: a("s_mov_b32 s93, 0\ns_memrealtime s[98:99]\ns_waitcnt lgkmcnt(0)\ns_mov_b32 s92, s98")
    if opt.stamps:
        for k in range(32): a(f"s_mov_b32 s{S_ST+k}, 0")
    st('start')
    a(f"""s_load_dwordx16 {sr(S_IN,16)}, s[0:1], 0
    s_load_dwordx4 {sr(S_OD,4)}, s[0:1], 64
    s_load_dwordx2 {sr(S_WS,2)}, s[0:1], 80
    s_load_dwordx2 {sr(S_X,2)}, s[0:1], 0
    s_load_dwordx2 {sr(S_OUT,2)}, s[0:1], 64
    s_and_b32 s4, s2, 7
    s_lshl_b32 s4, s4, 5
    s_lshr_b32 s5, s2, 3
    s_or_b32 s{S_BETA}, s4, s5
    v_lshrrev_b32 v{T0}, 6, v0
    v_and_b32 v{T0+1}, 63, v0
    v_lshlrev_b32 v{V_L16}, 4, v{T0+1}
    v_readfirstlane_b32 s{S_WAVE}, v{T0}""")
    if opt.ipf == 2:
        a(f"""s_getpc_b64 s[6:7]
        CODE_HERE:
        v_lshlrev_b32 v{T0+2}, 7, v0
        v_subrev_u32 v{T0+2}, {5 * 8192}, v{T0+2}
        v_add_u32 v{T0+3}, {3 * 8192}, v{T0+2}
        v_min_u32 v{T0+3}, END-CODE_HERE, v{T0+3}
        s_cmp_lt_u32 s{S_WAVE}, 5
        s_cbranch_scc1 NO_CODE_TOUCH
        global_load_dword v{V_FLAG+1}, v{T0+2}, s[6:7]
        global_load_dword v{V_FLAG+1}, v{T0+3}, s[6:7]
        NO_CODE_TOUCH:""")
    if opt.ipf == 1:
        a(f"""s_getpc_b64 s[6:7]
        CODE_HERE:
        s_lshr_b32 s4, s2, 3
        s_lshl_b32 s4, s4, 10
        v_and_b32 v{T0+2}, 7, v0
        v_lshl_add_u32 v{T0+2}, v{T0+2}, 7, s4
        v_min_u32 v{T0+2}, END-CODE_HERE, v{T0+2}
        s_cmp_lg_u32 s{S_WAVE}, 7
        s_cbranch_scc1 NO_CODE_TOUCH
        global_load_dword v{V_FLAG+1}, v{T0+2}, s[6:7]
        NO_CODE_TOUCH:""")
    a(f"""v_lshlrev_b32 v{T0+3}, 3, v0
    v_mov_b32 v{T0+4}, 0
    v_mov_b32 v{T0+5}, 0
    ds_write_b64 v{T0+3}, {vr(T0+4,2)}
    v_mov_b32 v{V_ONE}, 1
    s_mov_b32 s{S_X+2}, {N * 1024}
    s_mov_b32 s{S_X+3}, 0x20000
    s_mov_b32 s{S_WS+2}, {WS_END if not opt.stamps else WS_STAMP + 0x80000}
    s_mov_b32 s{S_WS+3}, 0x20000
    s_mov_b32 s{S_OUT+2}, {N * 1024}
    s_mov_b32 s{S_OUT+3}, 0x20000
    s_mov_b32 s{S_MASK}, 0xfffffc00
    s_mov_b32 s{S_W0}, 0
    s_mov_b32 s{S_L2E}, 0xbfb8aa3b
    s_mov_b32 s{S_L2E+1}, 0xbfb8aa3b
    v_mul_u32_u24 v{V_SIG4}, 52, v{T0+1}
    v_lshrrev_b32 v{V_SIG4}, 8, v{V_SIG4}            ; lane / 5
    v_mul_u32_u24 v{V_SLOT4}, 5, v{V_SIG4}
    v_sub_u32 v{V_SLOT4}, v{T0+1}, v{V_SLOT4}        ; lane % 5
    v_lshlrev_b32 v{V_SIG4}, 2, v{V_SIG4}
    v_lshlrev_b32 v{V_SLOT4}, 2, v{V_SLOT4}
    s_mov_b32 s{S_SPIN}, {1 << 21}
    v_and_b32 v{V_GID}, 0xff, v0
    s_lshl_b32 s3, s{S_BETA}, 3
    s_add_u32 s3, s3, {WS_TAB}
    v_lshl_add_u32 v{V_POS}, v{V_GID}, 11, s3
    s_and_b32 s3, s2, 7
    s_lshl_b32 s3, s3, 7
    s_add_u32 s3, s3, {WS_RDY}
    s_lshl_b32 s4, s{S_WAVE}, 15
    s_add_u32 s3, s3, s4
    v_and_b32 v{V_FLAG}, 31, v0
    v_lshl_add_u32 v{V_FLAG}, v{V_FLAG}, 10, s3      ; flag of producer 32 wave + lane % 32
    v_mul_u32_u24 v{V_GID}, {EP}, v{V_GID}""")
    for k in range(48): a(f"v_mov_b32 v{ACC+k}, 0")
    phase1(a, opt)
    a(f"""v_and_b32 v{T0+5}, 0x7ff, v{V_LEN}
    v_bfe_u32 v{V_LEN}, v{V_LEN}, 11, 11
    v_lshrrev_b32 v{T0+1}, 4, v{V_L16}                ; lane
    v_add_u32 v{V_GID}, v{V_GID}, v{T0+5}
    v_mov_b32 v{V_PRE}, v{V_LEN}""")
    if opt.keypf:
        a(f"""s_cmp_ge_u32 s{S_WAVE}, 4
        s_cbranch_scc1 NO_KEY_TOUCH
        v_lshlrev_b32 v{T0+2}, 3, v{V_GID}
        buffer_load_dword v{V_FLAG+1}, v{T0+2}, {sr(S_WS,4)}, 0 offen sc1""")
        if opt.keypf > 1:
            a(f"""v_lshl_add_u32 v{T0+2}, v{V_LEN}, 3, v{T0+2}
            v_subrev_u32 v{T0+2}, 8, v{T0+2}
            buffer_load_dword v{V_FLAG+1}, v{T0+2}, {sr(S_WS,4)}, 0 offen sc1""")
        a("NO_KEY_TOUCH:")
    scan64(a, V_PRE)
    a(f"""s_nop 0
    v_readlane_b32 s{S_T+2}, v{V_PRE}, 63
    v_sub_u32 v{V_PRE}, v{V_PRE}, v{V_LEN}
    v_cmp_lt_u32 vcc, s{S_WAVE}, v{T0+1}
    v_cmp_gt_u32 {sr(S_T,2)}, 9, v{T0+1}
    v_lshlrev_b32 v{T0+2}, 2, v{T0+1}
    v_mov_b32 v{T0+3}, s{S_T+2}
    s_and_b64 vcc, vcc, {sr(S_T,2)}
    s_and_saveexec_b64 {sr(S_T,2)}, vcc
    ds_add_u32 v{T0+2}, v{T0+3} offset:{L_WT}
    s_mov_b64 exec, {sr(S_T,2)}
    s_lshl_b32 s3, s{S_WAVE}, 2
    v_mov_b32 v{T0+2}, s3
    v_mov_b32 v{T0+3}, 32
    s_waitcnt lgkmcnt(0)
    s_barrier
    ds_read_b32 v{T0}, v{T0+2} offset:{L_WT}
    ds_read_b32 v{T0+3}, v{T0+3} offset:{L_WT}
    s_cmp_lg_u32 s{S_WAVE}, 4
    s_cbranch_scc1 EPOCH_DONE""")
    a(f"""s_cmp_lg_u32 s2, 0
    s_cbranch_scc1 EPOCH_DONE
    v_mov_b32 v{T0+4}, s{S_NLO}
    v_mov_b32 v{T0+2}, {WS_EPOCH}
    s_mov_b64 exec, 1
    global_store_dword v{T0+2}, v{T0+4}, {sr(S_WS,2)} sc0 sc1
    s_mov_b64 exec, -1
EPOCH_DONE:
    s_waitcnt lgkmcnt(0)
    v_add_u32 v{V_PRE}, v{V_PRE}, v{T0}
    v_readfirstlane_b32 s{S_N}, v{T0+3}""")
    st('prefix done')
    a(f"s_cmp_lt_u32 s{S_WAVE}, 5\ns_cbranch_scc1 RECS_FLAGGED")
    a(f"""v_mov_b32 v{T0+2}, {L_CNT}
    s_waitcnt vmcnt(0)
    s_mov_b64 exec, 1
    ds_add_rtn_u32 v{T0+2}, v{T0+2}, v{V_ONE}
    s_mov_b64 exec, -1
    s_waitcnt lgkmcnt(0)
    v_readfirstlane_b32 s3, v{T0+2}
    s_cmp_lg_u32 s3, 2
    s_cbranch_scc1 RECS_FLAGGED""")
    flag_store(a, WS_RDY)
    st('recs flagged')
    a("RECS_FLAGGED:")
    a(f"""ROUND:
    v_mov_b32 v{T0}, 0
    v_subrev_u32 v{T0+1}, s{S_W0}, v{V_PRE}
    v_mov_b32 v{T0+2}, v{V_GID}
    s_mov_b32 s3, {CAP}
    s_cmp_gt_u32 s{S_N}, {CAP}
    s_cbranch_scc1 EXPAND
    v_lshlrev_b32 v{T0+3}, 2, v{V_PRE}""")
    for j in range(16):
        a(f"v_cmpx_lt_u32 vcc, {j}, v{V_LEN}")
        if j % 2 == 0 and j >= 6: a("s_cbranch_execz EXPAND_DONE")
        a(f"ds_write_b32 v{T0+3}, v{T0+2} offset:{L_SENT + 4*j}\nv_add_u32 v{T0+2}, 1, v{T0+2}")
    a(f"""v_mov_b32 v{T0}, 16
    v_add_u32 v{T0+1}, 16, v{T0+1}
EXPAND:
    v_cmp_lt_u32 vcc, v{T0}, v{V_LEN}
    s_and_b64 exec, exec, vcc
    s_cbranch_execz EXPAND_DONE
    v_cmp_gt_u32 vcc, s3, v{T0+1}
    v_lshlrev_b32 v{T0+3}, 2, v{T0+1}
    s_and_saveexec_b64 {sr(S_T,2)}, vcc
    ds_write_b32 v{T0+3}, v{T0+2} offset:{L_SENT}
    s_mov_b64 exec, {sr(S_T,2)}
    v_add_u32 v{T0}, 1, v{T0}
    v_add_u32 v{T0+1}, 1, v{T0+1}
    v_add_u32 v{T0+2}, 1, v{T0+2}
    s_branch EXPAND
EXPAND_DONE:
    s_mov_b64 exec, -1
    s_sub_u32 s{S_NWIN}, s{S_N}, s{S_W0}
    s_min_u32 s{S_NWIN}, s{S_NWIN}, {CAP}
    v_lshlrev_b32 v{T0}, 2, v0""")
    for i in range(3):
        a(f"""v_add_u32 v{T0+1}, {512*i}, v0
              v_cmp_gt_u32 {sr(S_M+2*i,2)}, s{S_NWIN}, v{T0+1}""")
    st('list built')
    a("s_waitcnt lgkmcnt(0)\ns_barrier")
    st('list barrier')
    G = XR
    KP = TP
    for i in range(3): a(f"ds_read_b32 v{G+i}, v{T0} offset:{L_SENT + 2048*i}")
    a(f"""s_mov_b32 s{S_T+2}, 5033                          ; 12 * 2^32 / (10000 * 1024)
    s_waitcnt lgkmcnt(0)""")
    for i in range(3):
        a(f"v_lshlrev_b32 v{G+4+i}, 3, v{G+i}\nv_lshlrev_b32 v{G+i}, 4, v{G+i}")
    a(f"""KEY_LOAD:
    s_mov_b64 exec, {sr(S_M+4,2)}
    s_cbranch_execz SKIP3
    buffer_load_dwordx2 {vr(KP+4,2)}, v{G+6}, {sr(S_WS,4)}, 0 offen sc1
SKIP3:""")
    for i in range(2):
        a(f"s_mov_b64 exec, {sr(S_M+2*i,2)}\nbuffer_load_dwordx2 {vr(KP+2*i,2)}, v{G+4+i}, {sr(S_WS,4)}, 0 offen sc1")
    a(f"""s_mov_b64 exec, -1
    s_sub_u32 s{S_JOB}, s{S_WAVE}, 4
    s_cmp_ge_u32 s{S_JOB}, 3
    s_cbranch_scc1 NO_LAST_JOB
    s_mov_b32 s{S_L2E}, 0xbfb8aa3b
    s_mov_b32 s{S_L2E+1}, 0xbfb8aa3b""")
    lut_jobs(a, "k", f"s_add_u32 s{S_JOB}, s{S_JOB}, 28", 1)
    a("NO_LAST_JOB:\ns_waitcnt vmcnt(0)")
    for i in range(3): a(f"v_cmp_ne_u32 {sr(S_K+2*i,2)}, s{S_NLO}, v{KP+2*i+1}")
    for i in range(3): a(f"s_and_b64 {sr(S_K+2*i,2)}, {sr(S_K+2*i,2)}, {sr(S_M+2*i,2)}")
    a(f"""s_or_b64 {sr(S_K,2)}, {sr(S_K,2)}, {sr(S_K+2,2)}
    s_or_b64 {sr(S_K,2)}, {sr(S_K,2)}, {sr(S_K+4,2)}
    s_cbranch_scc0 KEYS_OK
    s_sub_u32 s{S_SPIN}, s{S_SPIN}, 1
    s_cbranch_scc0 KEY_LOAD
    s_endpgm
KEYS_OK:""")
    st('keys arrived')
    if opt.rdy == 0: poll_issue(a, TT, V_FLAG, 0)
    for i in range(3):
        a(f"""v_mul_hi_u32 v{T0+1}, s{S_T+2}, v{KP+2*i}
              v_and_b32 v{G+8+i}, 63, v{KP+2*i}
              v_mul_u32_u24 v{G+8+i}, {HS}, v{G+8+i}
              v_lshl_add_u32 v{G+8+i}, v{T0+1}, 2, v{G+8+i}""")
    for i in range(3):
        a(f"s_mov_b64 exec, {sr(S_M+2*i,2)}\nds_add_rtn_u32 v{G+12+i}, v{G+8+i}, v{V_ONE} offset:{L_HIST}")
    a("s_mov_b64 exec, -1")
    for i in range(3):
        a(f"""v_add_u32 v{T0+1}, {512*i}, v0
              v_lshlrev_b32 v{T0+1}, 21, v{T0+1}
              v_lshrrev_b32 v{G+16+i}, 10, v{KP+2*i}
              v_lshl_or_b32 v{G+16+i}, v{G+16+i}, 7, v{T0+1}""")
    H = G + 20
    a(f"""v_lshrrev_b32 v{T0}, 4, v{V_L16}              ; lane
    v_min_u32 v{T0+1}, 39, v{T0}
    v_mul_u32_u24 v{T0+1}, {HS}, v{T0+1}
    v_cmp_gt_u32 {sr(S_T+4,2)}, 40, v{T0}
    v_sub_u32 v{T0+2}, 63, v{T0}
    s_mul_i32 s10, s{S_WAVE}, 5
    s_lshl_b32 s3, s{S_WAVE}, 10
    s_add_u32 s3, s3, {L_UREC}
    s_mov_b32 s9, {WS_REC}
    s_waitcnt lgkmcnt(0)
    s_barrier""")
    st('hist done')
    if opt.rdy == 1: poll_issue(a, TT, V_FLAG, 0)
    for k in range(3): a(f"ds_read_b128 {vr(H+4*k,4)}, v{T0+1} offset:{L_HIST + 16*k}")
    a(f"""    s_waitcnt lgkmcnt(1)
    v_add3_u32 v{H}, v{H}, v{H+1}, v{H+2}
    v_add3_u32 v{H+3}, v{H+3}, v{H+4}, v{H+5}
    v_add3_u32 v{H}, v{H}, v{H+6}, v{H+7}
    s_waitcnt lgkmcnt(0)
    v_add3_u32 v{H+3}, v{H+3}, v{H+8}, v{H+9}
    v_add3_u32 v{H}, v{H}, v{H+10}, v{H+11}
    v_add_u32 v{H}, v{H}, v{H+3}
    v_lshl_or_b32 v{H+1}, v{H}, 6, v{T0+2}
    v_cndmask_b32 v{H+1}, 0, v{H+1}, {sr(S_T+4,2)}
    s_cmp_lg_u32 s{S_W0}, 0
    s_cbranch_scc1 DEALT""")
    for k in range(5):
        a(f"v_readlane_b32 s{S_NODE+k}, v{H+1}, s10")
        if k < 4: a("s_add_u32 s10, s10, 1")
    for k in range(5): a(f"v_cmp_lt_u32 {sr(S_K+2*k,2)}, s{S_NODE+k}, v{H+1}")
    for k in range(5): a(f"s_bcnt1_i32_b64 s{S_NODE+k}, {sr(S_K+2*k,2)}")
    for k in range(5): a(f"v_writelane_b32 v{T0+1}, s{S_NODE+k}, {k}")
    a(f"""s_sub_u32 s10, s10, 4
    v_add_u32 v{T0+2}, s10, v{T0}
    v_lshrrev_b32 v{T0+3}, 3, v{T0+1}
    v_and_b32 v{T0+1}, 7, v{T0+1}
    v_lshrrev_b32 v{T0+4}, v{T0+3}, {opt.dirmask}
    v_and_b32 v{T0+4}, 1, v{T0+4}
    v_mul_u32_u24 v{T0+4}, 7, v{T0+4}
    v_xor_b32 v{T0+1}, v{T0+1}, v{T0+4}               ; wave
    v_mad_u32_u24 v{T0+1}, v{T0+1}, 5, v{T0+3}
    v_lshlrev_b32 v{T0+1}, 2, v{T0+1}
    s_mov_b64 exec, 0x1f
    ds_write_b32 v{T0+1}, v{T0+2} offset:{L_INV}
    s_mov_b64 exec, -1
DEALT:
    s_lshl_b32 s11, s10, 2
    v_add_u32 v{T0+1}, s11, v{V_SLOT4}
    v_lshlrev_b32 v{T0+5}, 2, v{T0}
""")
    poll_check(a, "REC", TT, V_FLAG, 0, TT + 1)
    a(f"""v_cmp_gt_u32 {sr(S_T,2)}, 60, v{T0}
    s_waitcnt lgkmcnt(0)
    s_barrier""")
    st('dealt')
    a(f"""ds_read_b32 v{T0+1}, v{T0+1} offset:{L_INV}
    ds_read_b32 v{T0+5}, v{T0+5} offset:{L_INV}
    v_lshlrev_b32 v{T0+4}, 17, v{V_SLOT4}             ; slot << 19""")
    for i in range(2):
        a(f"""s_add_u32 m0, s3, {i*8192}
              s_mov_b64 exec, {sr(S_M+2*i,2)}
              buffer_load_dwordx4 v{G+i}, {sr(S_WS,4)}, s9 offen sc1 lds""")
    a(f"""s_add_u32 m0, s3, {2*8192}
    s_mov_b64 exec, {sr(S_M+4,2)}
    s_cbranch_execz SKIP3R
    buffer_load_dwordx4 v{G+2}, {sr(S_WS,4)}, s9 offen sc1 lds
SKIP3R:
    s_mov_b64 exec, -1""")
    a(f"""    s_waitcnt lgkmcnt(1)
    v_mul_u32_u24 v{T0+2}, {HS}, v{T0+1}
    v_add_u32 v{T0+2}, v{T0+2}, v{V_SIG4}
    ds_read_b32 v{T0+3}, v{T0+2} offset:{L_HIST}
    s_waitcnt lgkmcnt(1)
    v_lshlrev_b32 v{T0+5}, 2, v{T0+5}
    ds_bpermute_b32 v{H+2}, v{T0+5}, v{H}""")
    for k in range(5): a(f"v_readlane_b32 s{S_NODE+k}, v{T0+1}, {k}")
    a(f"""s_waitcnt lgkmcnt(0)
    v_cndmask_b32 v{T0+3}, 0, v{T0+3}, {sr(S_T,2)}
    v_cndmask_b32 v{H+2}, 0, v{H+2}, {sr(S_T+4,2)}
    v_sub_u32 v{T0+4}, v{T0+4}, v{T0+3}
    v_mov_b32 v{H+3}, v{H+2}""")
    scan64(a, T0 + 3, H + 3)
    a(f"""v_sub_u32 v{H+3}, v{H+3}, v{H+2}
    v_add_u32 v{T0+4}, v{T0+4}, v{T0+3}
    v_readlane_b32 s{S_START}, v{H+3}, s10
    v_readlane_b32 s{S_END}, v{T0+3}, 63
    s_nop 0
    v_add_u32 v{T0+4}, s{S_START}, v{T0+4}
    s_mov_b64 exec, {sr(S_T,2)}
    ds_write_b32 v{T0+2}, v{T0+4} offset:{L_HIST}
    s_mov_b64 exec, -1
    v_add_u32 v{V_POS}, s{S_START}, v{T0}
    v_lshlrev_b32 v{V_AENT}, 2, v{V_POS}
    v_add_u32 v{V_AENT}, {L_SENT}, v{V_AENT}
    s_add_u32 s10, s{S_END}, 3
    s_and_b32 s10, s10, -4
    s_min_u32 s{S_REMB}, s10, {8 if D == 8 else 4}
    s_sub_u32 s{S_REM}, s10, s{S_REMB}
    s_add_u32 s{S_END}, s{S_END}, s{S_START}""")
    a("s_waitcnt lgkmcnt(0)\ns_barrier")
    st('bases')
    for i in range(3): a(f"ds_read_b32 v{G+8+i}, v{G+8+i} offset:{L_HIST}")
    for i in range(3):
        a(f"""s_waitcnt lgkmcnt({2-i})
              v_lshrrev_b32 v{T0+1}, 16, v{G+8+i}
              v_and_b32 v{G+8+i}, 0xffff, v{G+8+i}
              v_or_b32 v{G+16+i}, v{G+16+i}, v{T0+1}
              v_add_lshl_u32 v{G+8+i}, v{G+8+i}, v{G+12+i}, 2""")
    for i in range(3):
        a(f"""s_mov_b64 exec, {sr(S_M+2*i,2)}
              ds_write_b32 v{G+8+i}, v{G+16+i} offset:{L_SENT}""")
    a("s_mov_b64 exec, -1")
    a("s_waitcnt lgkmcnt(0)")
    a("s_barrier")
    st('sorted')
    if opt.stamps: a(f"s_memtime s[100:101]\ns_waitcnt lgkmcnt(0)\ns_mov_b32 s{S_ST+30}, s100")
    meta_read_entry(a)
    a(f"""s_and_b32 s{S_WM}, s{S_WAVE}, 3
    s_lshl_b32 s{S_WM}, s{S_WM}, 13
    s_add_u32 s{S_WM}, s{S_WM}, {WS_WMIX}
    s_add_u32 s{S_WM+1}, s{S_WM}, 4096""")
    for k in range(8): a(f"v_mov_b32 v{RR+k}, 0")
    a("s_waitcnt lgkmcnt(0)")
    meta_fix_entry(a, False)
    a("s_nop 0")
    for e in range(D):
        a(f"""v_readlane_b32 s{S_K+e}, v{ENT}, {e}
              s_and_b32 s{S_OFF}, s{S_K+e}, s{S_MASK}
              buffer_load_dwordx4 {vr(XR+4*e,4)}, v{V_L16}, {sr(S_X,4)}, s{S_OFF} offen""")
    a(f"v_mov_b32 v{KEY}, v{ENT}\ns_waitcnt vmcnt({D})")
    st('recs landed')
    a("s_barrier")
    meta_read_rec(a)
    a(f"""s_waitcnt lgkmcnt(0)
    v_mov_b32 v{EF}, v{RECN+2}
    v_mov_b32 v{EF+1}, v{RECN+3}""")
    for i in range(4): a(w_mfma(i))
    a(p_mfma(0, 0)); a(p_mfma(0, 1)); a(p_mfma(1, 0))
    a("s_nop 1")
    for m in range(4): w_cvt(a, m)
    for odd in range(2):
        u, r = act_regs(0, odd)
        for h in range(2): a(act_addr(TT + 2 * odd + h, u + h))
        for h in range(2): a(act_read(r + h, TT + 2 * odd + h))
    a(f"s_waitcnt vmcnt({D-1})")
    st('first row')
    a(t_mfma(0, 0)); a(t_mfma(0, 1))
    body(a, opt, True)
    for q in range(0, 64, 4):
        a(f"TO_B_{q}:")
        for k in range(8):
            a(f"buffer_load_dwordx4 {vr(WMIX+4*k,4)}, v{V_L16}, {sr(S_WS,4)}, s{S_WM + k // 4} offen offset:{(k%4)*1024} sc1")
        if q: a(f"s_branch B_{q}")
        else: a("s_branch B_0")
    body(a, opt, False)
    a(f"""MAIN_DONE:
    s_waitcnt vmcnt(0) lgkmcnt(0)
    s_add_u32 s{S_W0}, s{S_W0}, {CAP}
    s_cmp_ge_u32 s{S_W0}, s{S_N}
    s_cbranch_scc1 ALL_DONE""")
    zero_hist(a)
    a("s_waitcnt lgkmcnt(0)\ns_barrier\ns_branch ROUND\nALL_DONE:")
    st('main done')
    if opt.stamps: a(f"s_memtime s[100:101]\ns_waitcnt lgkmcnt(0)\ns_sub_u32 s{S_ST+30}, s100, s{S_ST+30}")
    PK = XR
    for s in range(5):
        for o in range(4): a(f"v_cvt_pk_bf16_f32 v{PK+4*s+o}, v{ACC+8*s+o}, v{ACC+8*s+4+o}")
    a(f"""v_lshrrev_b32 v{T0}, 2, v{V_L16}
    v_add_u32 v{T0}, {L_AGG}, v{T0}""")
    for s in range(5):
        a(f"s_mul_i32 s{S_T}, s{S_NODE+s}, {4 * AGG_RS}\nv_add_u32 v{TP+s}, s{S_T}, v{T0}")
    a(f"""v_lshrrev_b32 v{T0+1}, 4, v{V_L16}            ; lane
    v_and_b32 v{T0+2}, 15, v{T0+1}
    v_lshrrev_b32 v{T0+3}, 4, v{T0+1}                 ; lane >> 4
    s_lshr_b32 s{S_T}, s{S_WAVE}, 2
    s_mul_i32 s{S_T+1}, s{S_T}, {80 * AGG_RS}
    s_add_u32 s{S_T+1}, s{S_T+1}, {L_AGG}
    v_mul_u32_u24 v{T0}, {AGG_RS}, v{T0+2}
    v_lshl_add_u32 v{T0}, v{T0+3}, 4, v{T0}
    v_add_u32 v{T0}, s{S_T+1}, v{T0}
    s_mul_i32 s{S_T}, s{S_T}, {20 << 18}
    s_lshl_b32 s{S_T+1}, s{S_BETA}, 10
    s_add_u32 s{S_T}, s{S_T}, s{S_T+1}
    s_and_b32 s{S_T+1}, s{S_WAVE}, 3
    s_lshl_b32 s{S_T+1}, s{S_T+1}, 8
    s_add_u32 s{S_T}, s{S_T}, s{S_T+1}
    v_lshlrev_b32 v{T0+3}, 18, v{T0+3}
    v_lshl_add_u32 v{T0+3}, v{T0+2}, 4, v{T0+3}
    v_add_u32 v{T0+3}, s{S_T}, v{T0+3}
    s_barrier""")
    st('all main done')
    for s in range(5):
        for o in range(4): a(f"ds_write_b32 v{TP+s}, v{PK+4*s+o} offset:{o*AGG_RS}")
    a("s_waitcnt lgkmcnt(0)\ns_barrier")
    st('agg in LDS')
    AF = XR
    def rd(t):
        for ks in range(4): a(f"ds_read_b128 {vr(AF+16*(t%2)+4*ks,4)}, v{T0} offset:{t*16*AGG_RS + ks*64}")
    def pack_store(t):
        d = ACC + 8 * t; p = RR + 4 * (t % 2)
        for j in range(4): a(f"v_cvt_pk_bf16_f32 v{p+j}, v{d+2*j}, v{d+2*j+1}")
        a(f"buffer_store_dwordx4 {vr(p,4)}, v{T0+3}, {sr(S_OUT,4)}, 0 offen {opt.outst}")
        if t < 4: a(f"v_add_u32 v{T0+3}, {4 << 18}, v{T0+3}")
    rd(0)
    for t in range(5):
        if t < 4: rd(t + 1)
        for ks in range(4):
            a(f"s_waitcnt lgkmcnt({(4 if t < 4 else 0) + 3 - ks})")
            for j in range(2):
                d = ACC + 8 * t + 4 * j
                a(f"v_mfma_f32_16x16x32_bf16 {vr(d,4)}, {vr(AF+16*(t%2)+4*ks,4)}, {vr(WMIX+16*j+4*ks,4)}, " + ("0" if ks == 0 else vr(d, 4)))
            if ks == 3 and t > 0: pack_store(t - 1)
    a("s_nop 7")
    pack_store(4)
    st('end')
    if opt.probe:
        a(f"""s_cmp_eq_u32 s93, 0
        s_cselect_b32 s93, s92, s93
        s_sub_u32 s93, s93, s92
        s_mul_i32 s93, s93, 4
        s_add_u32 s92, s92, s93
        s_add_u32 s92, s92, 6000
        HOLD_SPIN:
        s_memrealtime s[98:99]
        s_waitcnt lgkmcnt(0)
        s_sub_u32 s98, s98, s92
        s_cmp_lt_i32 s98, 0
        s_cbranch_scc1 HOLD_SPIN""")
    if opt.stamps:
        a("s_waitcnt vmcnt(0)")
        st('stores done 2')
        a(f"""s_lshl_b32 s10, s2, 3
        s_add_u32 s10, s10, s{S_WAVE}
        s_lshl_b32 s10, s10, 7
        s_add_u32 s10, s10, {WS_STAMP}
        v_mov_b32 v{T0}, s10
        s_sub_u32 s{S_ST+31}, s{S_END}, s{S_START}
        s_sub_u32 s{S_ST+29}, {1 << 21}, s{S_SPIN}""")
        for k in range(32): a(f"v_mov_b32 v{XR+k}, s{S_ST+k}")
        for k in range(8): a(f"buffer_store_dwordx4 {vr(XR+4*k,4)}, v{T0}, {sr(S_WS,4)}, 0 offen offset:{16*k}")
    a("END:\ns_endpgm")
    return a.text()

def generate(opt):
    here = os.path.dirname(os.path.abspath(__file__))
    out = open(here + "/header.txt").read()
    out += f"; @launch grid=(256,1,1) block=(512,1,1) lds={LDS_BYTES}\n"
    out += f'.amdgcn_target "amdgcn-amd-amdhsa--gfx950"\n.text\n.globl {KERN}\n.p2align 8\n.type {KERN},@function\n'
    out += kernel(opt)
    out += f""".section .rodata,"a"
.p2align 6
.amdhsa_kernel {KERN}
  .amdhsa_next_free_vgpr {NVGPR}
  .amdhsa_next_free_sgpr {NSGPR if opt.stamps or opt.probe else 66}
  .amdhsa_accum_offset {(NVGPR + 3) // 4 * 4}
  .amdhsa_group_segment_fixed_size 0
  .amdhsa_kernarg_size 88
  .amdhsa_user_sgpr_count 2
  .amdhsa_user_sgpr_kernarg_segment_ptr 1
  .amdhsa_system_sgpr_workgroup_id_x 1
  .amdhsa_float_denorm_mode_32 3
.end_amdhsa_kernel
"""
    return out

def options(argv):
    p = argparse.ArgumentParser()
    p.add_argument("-o", default="/code/" + NAME + ".s")
    p.add_argument("--stamps", action="store_true")
    p.add_argument("--probe", default="")
    p.add_argument("--D", type=int, default=7)
    p.add_argument("--hsplit", type=int, default=52)
    p.add_argument("--retry", default="sc1")
    p.add_argument("--rdy", type=int, default=0)
    p.add_argument("--ipf", type=int, default=1)
    p.add_argument("--lsplit", type=int, default=15)
    p.add_argument("--keypf", type=int, default=1)
    p.add_argument("--k1st", default="sc0 sc1")
    p.add_argument("--outst", default="sc0 sc1")
    p.add_argument("--dirmask", type=int, default=0x12)
    return p.parse_args(argv)

if __name__ == "__main__":
    opt = options(sys.argv[1:])
    RETRY = opt.retry
    open(opt.o, "w").write(generate(opt))
    if opt.stamps: open(opt.o + ".names", "w").write(repr(STAMPS))
```

```python
import sys, argparse, os

NAME = "gather_scatter__tensor_product_equiv_tfn__graph"
KERN = NAME + "_kernel"
N, E, C = 10000, 320000, 128
NP, EP = 250, 1280
WS_KEY = 0
WS_REC = 0x280000
WS_WMIX = 0x771000
WS_TAB = 0x780000
WS_RDY = WS_TAB + 256 * 2048
WS_EPOCH = WS_RDY + 256 * 1024
WS_END = WS_EPOCH + 128
WS_STAMP = 0x900000
CAP = 1472

class Asm:
    def __init__(self): self.l = []
    def __call__(self, s):
        for line in s.strip("\n").split("\n"):
            line = line.strip()
            if not line: continue
            self.l.append(line if line.endswith(":") else "    " + line)
    def text(self): return "\n".join(self.l) + "\n"

def vr(a, n=1): return f"v{a}" if n == 1 else f"v[{a}:{a+n-1}]"
def sr(a, n=1): return f"s{a}" if n == 1 else f"s[{a}:{a+n-1}]"

SCAN_STEPS = ["row_shr:1 row_mask:0xf bank_mask:0xf bound_ctrl:0", "row_shr:2 row_mask:0xf bank_mask:0xf bound_ctrl:0",
              "row_shr:4 row_mask:0xf bank_mask:0xf bound_ctrl:0", "row_shr:8 row_mask:0xf bank_mask:0xf bound_ctrl:0",
              "row_bcast:15 row_mask:0xa bank_mask:0xf", "row_bcast:31 row_mask:0xc bank_mask:0xf"]
def scan64(a, *regs):
    for c in SCAN_STEPS:
        a("s_nop 1" if len(regs) == 1 else "s_nop 0")
        for v in regs: a(f"v_add_u32_dpp v{v}, v{v}, v{v} {c}")

NSB, HS = 12, 48
L_HIST = 0; L_INV = 40 * HS; L_WT = L_INV + 256; L_CNT = L_WT + 64
L_SENT = L_WT + 128
L_UREC = L_SENT + CAP * 4
L_CG = L_UREC + CAP * 16
L_LUT = 32768
L1_HIST = L_SENT; L1_BASE = L1_HIST + 1024; L1_SREC = L1_BASE + 1024
L1_SKEY = L_LUT + 53 * 1024
assert L_CG + 128 <= L_LUT and L1_SREC + EP * 16 <= L_LUT and L1_BASE <= 4096
L_AGG = L_LUT; AGG_RS = 288
LDS_BYTES = L_LUT + 131072

V_L16 = 1
V_LEN, V_PRE, V_GID = 2, 3, 4
V_AENT, V_POS = 5, 6
V_SLOT4, V_SIG4, V_ONE = 7, 14, 15
V_FLAG = 166
T0 = 8
ACC = 16; XR = 64; TP = 96; UU = 112; RR = 128; TT = 136; WPK = 140; WTMP = 148
KEY = 164; ENT = 165; RECN = 168; EF = 172; CONST = 176; WMIX = 188
NVGPR = 220
PE, PO, CGB = CONST, CONST + 2, CONST + 4
LJ = 128
S_NODE = 4
S_X, S_WS, S_OUT = 12, 16, 20
S_BETA, S_WAVE, S_N, S_W0, S_NWIN, S_START, S_END, S_REM, S_REMB, S_OFF, S_MASK = range(24, 35)
S_SPIN = 35
S_M = 36
S_T = 42
S_K = 48
S_IN = 40
S_OD = 56
S_JOB, S_JCNT = 62, 63
S_NLO, S_NHI = 64, 65
S_WM = 10
S_L2E = 10
S_ST = 66
NSGPR = 102

STAMPS = []
RETRY = 'sc1'
def stamp(a, opt, name):
    if opt.probe == name: a("s_memrealtime s[98:99]\ns_waitcnt lgkmcnt(0)\ns_mov_b32 s93, s98")
    if not opt.stamps: return
    if name not in STAMPS: STAMPS.append(name)
    a(f"s_memrealtime s[98:99]\ns_waitcnt lgkmcnt(0)\ns_mov_b32 s{S_ST + STAMPS.index(name)}, s98")

def lut_jobs(a, tag, first, count):
    J, Ex, R, P = LJ, LJ + 8, LJ + 16, LJ + 24
    if first is not None: a(first)
    if count: a(f"s_mov_b32 s{S_JCNT}, {count}")
    a(f"""LUT_{tag}:
    s_lshl_b32 s3, s{S_JOB}, 25
    s_add_u32 s3, s3, 0x8000
    v_lshl_add_u32 v{J}, v{V_L16}, 15, s3""")
    for k in range(1, 8): a(f"v_add_u32 v{J+k}, {k << 16}, v{J}")
    for k in range(0, 8, 2): a(f"v_pk_mul_f32 {vr(Ex+k,2)}, {vr(J+k,2)}, {sr(S_L2E,2)}")
    for k in range(8): a(f"v_exp_f32 v{Ex+k}, v{Ex+k}")
    a(f"s_lshl_b32 s3, s{S_JOB}, 10")
    for k in range(0, 8, 2): a(f"v_pk_add_f32 {vr(R+k,2)}, {vr(Ex+k,2)}, 1.0 op_sel_hi:[1,0]")
    for k in range(8): a(f"v_rcp_f32 v{R+k}, v{R+k}")
    a(f"v_add_u32 v{P+8}, s3, v{V_L16}")
    for k in range(0, 8, 2): a(f"v_pk_mul_f32 {vr(J+k,2)}, {vr(J+k,2)}, {vr(R+k,2)}")
    a(f"v_add_u32 v{P+9}, 0x10000, v{P+8}")
    for k in range(0, 8, 2): a(f"v_pk_mul_f32 {vr(Ex+k,2)}, {vr(J+k,2)}, {vr(Ex+k,2)} neg_lo:[1,0] neg_hi:[1,0]")
    for k in range(4): a(f"v_cvt_pk_bf16_f32 v{P+k}, v{J+2*k}, v{J+2*k+1}")
    for k in range(4): a(f"v_cvt_pk_bf16_f32 v{P+4+k}, v{Ex+2*k}, v{Ex+2*k+1}")
    a(f"""ds_write_b128 v{P+8}, {vr(P,4)} offset:{L_LUT}
    ds_write_b128 v{P+9}, {vr(P+4,4)} offset:{L_LUT}
    s_add_u32 s{S_JOB}, s{S_JOB}, 1
    s_sub_u32 s{S_JCNT}, s{S_JCNT}, 1
    s_cmp_lg_u32 s{S_JCNT}, 0
    s_cbranch_scc1 LUT_{tag}""")

def lut_plain(a, tag, region, last=None, cont=False):
    P = LJ
    for name, first, end, bias in (("L", 1, 24, 0x20000 - 0x800080), ("H", 34, 62, 0x20000)):
        if name != region: continue
        last = last or end
        if cont: a(f"s_cmp_gt_u32 s{S_JOB}, {last}\ns_cbranch_scc1 LUTP_END_{tag}")
        else: a(f"s_add_u32 s{S_JOB}, s{S_WAVE}, {first}")
        if name == "H" and not cont:
            for k in range(4): a(f"v_mov_b32 v{P+4+k}, 0x80008000")
        a(f"""LUTP_{tag}{name}:
        s_mul_i32 s3, s{S_JOB}, {512 * 0x10001}
        s_add_u32 s3, s3, {bias & 0xffffffff}
        v_add_u32 v{P}, s3, v{P+10}
        s_lshl_b32 s3, s{S_JOB}, 10
        v_add_u32 v{P+8}, s3, v{V_L16}""")
        for k in range(1, 4): a(f"v_add_u32 v{P+k}, {k * 0x20002}, v{P}")
        a(f"v_add_u32 v{P+9}, 0x10000, v{P+8}")
        if name == "L":
            for k in range(4): a(f"v_or_b32 v{P+4+k}, 0x80008000, v{P+k}")
        a(f"""ds_write_b128 v{P+8}, {vr(P,4)} offset:{L_LUT}
        ds_write_b128 v{P+9}, {vr(P+4,4)} offset:{L_LUT}
        s_add_u32 s{S_JOB}, s{S_JOB}, {5 if name == "L" else 4}
        s_cmp_le_u32 s{S_JOB}, {last}
        s_cbranch_scc1 LUTP_{tag}{name}
        LUTP_END_{tag}:""")

def flag_store(a, base):
    a(f"""s_lshl_b32 s3, s2, 10
    s_add_u32 s3, s3, {base}
    v_lshl_add_u32 v{T0+2}, v{V_L16}, 3, s3
    v_mov_b32 v{T0+4}, s{S_NLO}
    v_mov_b32 v{T0+5}, s{S_NHI}
    s_mov_b64 exec, 0xff
    global_store_dwordx2 v{T0+2}, {vr(T0+4,2)}, {sr(S_WS,2)} sc0 sc1
    s_mov_b64 exec, -1""")

def poll_issue(a, dst, addr, soff):
    a(f"buffer_load_dwordx2 {vr(dst,2)}, v{addr}, {sr(S_WS,4)}, {soff} offen sc1")
def poll_check(a, tag, dst, addr, soff, hi, pre=""):
    a(f"""POLL_{tag}:
    s_waitcnt vmcnt(0)
    {pre}
    v_cmp_ne_u32 vcc, s{S_NLO}, v{dst + 1 if pre else dst}
    v_cmp_ne_u32 {sr(S_T,2)}, s{S_NHI}, v{hi}
    s_or_b64 vcc, vcc, {sr(S_T,2)}
    s_and_b64 exec, exec, vcc
    s_cbranch_execz POLLED_{tag}
    s_sub_u32 s{S_SPIN}, s{S_SPIN}, 1
    s_cbranch_scc1 END""")
    if RETRY == "atomic":
        a(f"""v_mov_b32 v{dst}, 0
        v_mov_b32 v{dst+1}, 0
        buffer_atomic_or_x2 {vr(dst,2)}, v{addr}, {sr(S_WS,4)}, {soff} offen sc0""")
    else: a(f"buffer_load_dwordx2 {vr(dst,2)}, v{addr}, {sr(S_WS,4)}, {soff} offen {RETRY}")
    a(f"""s_branch POLL_{tag}
    POLLED_{tag}:
    s_mov_b64 exec, -1""")

def load_epoch(a):
    a(f"""s_add_u32 s4, s{S_WS}, {WS_EPOCH}
    s_addc_u32 s5, s{S_WS+1}, 0
    s_load_dwordx2 {sr(S_NLO,2)}, s[4:5], 0""")
def make_tag(a):
    a(f"""s_add_u32 s{S_NLO}, s{S_NLO}, 1
    s_and_b32 s{S_NHI}, s{S_NHI}, 0x3ff""")

def scan256(a, H_, O_):
    a(f"""v_add_u32 v{T0+2}, v{H_}, v{H_+1}
    v_add3_u32 v{T0+2}, v{T0+2}, v{H_+2}, v{H_+3}
    v_mov_b32 v{T0+3}, v{T0+2}""")
    scan64(a, T0 + 3)
    a(f"""v_sub_u32 v{O_}, v{T0+3}, v{T0+2}
    v_add_u32 v{O_+1}, v{O_}, v{H_}
    v_add_u32 v{O_+2}, v{O_+1}, v{H_+1}
    v_add_u32 v{O_+3}, v{O_+2}, v{H_+2}""")

def phase1(a, opt):
    st = lambda n: stamp(a, opt, n)
    SRC, DST, YY, EFP, WRAD, CG, WMX = S_IN + 2, S_IN + 4, S_IN + 6, S_IN + 8, S_IN + 10, S_IN + 12, S_IN + 14
    WS = sr(S_WS, 2); FL = opt.k1st
    D_, S_, Y_, F_, B_, R_, H_, O_, TB = 64, 68, 72, 80, 88, 92, 96, 100, 108
    CT = WMIX
    def const_issue():
        a(f"v_lshrrev_b32 v{CT+5}, 2, v{V_L16}")
        for k in range(4): a(f"global_load_dword v{CT+k}, v{CT+5}, {sr(WRAD,2)} offset:{k*256}")
        a(f"v_and_b32 v{CT+5}, 0x7f, v{CT+5}\nglobal_load_dword v{CT+4}, v{CT+5}, {sr(CG,2)}")
    def const_finish():
        a(f"""ds_write_b32 v{CT+5}, v{CT+4} offset:{L_CG}
        v_lshrrev_b32 v{CT+5}, 3, v{V_L16}
        v_and_b32 v{CT+5}, 24, v{CT+5}
        s_mov_b32 s4, 0x05040100
        s_mov_b32 s5, 0x07060302""")
        for i in range(4): a(f"ds_read_b64_tr_b16 {vr(CGB+2*i,2)}, v{CT+5} offset:{L_CG + 32*i}")
        for u in range(2):
            a(f"v_perm_b32 v{PE+u}, v{CT+1+2*u}, v{CT+2*u}, s4\nv_perm_b32 v{PO+u}, v{CT+1+2*u}, v{CT+2*u}, s5")
    def rec_stores(tag, first, count):
        a(f"""s_cmp_ge_u32 s2, {NP}
        s_cbranch_scc1 NO_RECS_{tag}
        s_mul_i32 s3, s2, {EP * 16}
        s_add_u32 s3, s3, {WS_REC + first * 1024}
        v_add_u32 v{T0+1}, s3, v{V_L16}""")
        for k in range(count): a(f"ds_read_b128 {vr(84+4*k,4)}, v{V_L16} offset:{L1_SREC + (first + k) * 1024}")
        for k in range(count):
            if k == 4: a(f"v_add_u32 v{T0+1}, 4096, v{T0+1}")
            a(f"s_waitcnt lgkmcnt({count-1-k})\nglobal_store_dwordx4 v{T0+1}, {vr(84+4*k,4)}, {WS} offset:{(1024*k) % 4096} {FL}")
        a(f"NO_RECS_{tag}:")
    def key_stores(first, count):
        a(f"""s_mul_i32 s3, s2, {EP * 8}
        s_add_u32 s3, s3, {WS_KEY + first * 1024}
        v_add_u32 v{T0+1}, s3, v{V_L16}
        v_add_u32 v{T0+2}, {L1_SKEY + first * 1024}, v{V_L16}
        s_barrier""")
        for k in range(count): a(f"ds_read_b128 {vr(64+4*k,4)}, v{T0+2} offset:{1024*k}")
        for k in range(count):
            a(f"s_waitcnt lgkmcnt({count-1-k})\nglobal_store_dwordx4 v{T0+1}, {vr(64+4*k,4)}, {WS} offset:{1024*k} {FL}")
        a("s_barrier")
    a(f"""s_cmp_ge_u32 s{S_WAVE}, 5
    s_cbranch_scc1 HELP
    v_mul_u32_u24 v{LJ+10}, 0x8000, v{V_L16}
    v_lshrrev_b32 v{T0+2}, 1, v{V_L16}
    v_add_u32 v{LJ+10}, v{LJ+10}, v{T0+2}           ; lane * 8 * 0x10001
    s_cmp_ge_u32 s2, {NP}
    s_cbranch_scc1 AUX
    s_mul_i32 s3, s2, {EP * 4}
    v_lshl_add_u32 v{T0}, v0, 4, s3
    v_lshlrev_b32 v{T0+1}, 1, v{T0}
    s_mov_b32 s9, {L1_SKEY}
    s_setprio 1
    s_waitcnt lgkmcnt(0)""")
    st('kernargs')
    def load_yf():
        a(f"""global_load_dwordx4 {vr(Y_,4)}, v{T0+1}, {sr(YY,2)}
        global_load_dwordx4 {vr(Y_+4,4)}, v{T0+1}, {sr(YY,2)} offset:16
        global_load_dwordx4 {vr(F_,4)}, v{T0+1}, {sr(EFP,2)}
        global_load_dwordx4 {vr(F_+4,4)}, v{T0+1}, {sr(EFP,2)} offset:16""")
    a(f"""global_load_dwordx4 {vr(D_,4)}, v{T0}, {sr(DST,2)}
    global_load_dwordx4 {vr(S_,4)}, v{T0}, {sr(SRC,2)}""")
    const_issue()
    if not opt.lsplit: load_yf()
    load_epoch(a)
    a("s_barrier")
    if opt.lsplit:
        lut_plain(a, "W0", "L", last=opt.lsplit)
        load_yf()
        lut_plain(a, "W", "L", cont=True)
    else: lut_plain(a, "W", "L")
    a("s_waitcnt lgkmcnt(0)")
    make_tag(a)
    for k in range(4): a(f"v_mov_b32 v{TB+2*k+1}, s{S_NLO}")
    st('jobs A')
    a("s_waitcnt vmcnt(10)")
    st('dst arrived')
    for k in range(4):
        a(f"""v_and_b32 v{B_+k}, 0xff, v{D_+k}
              v_lshlrev_b32 v{B_+k}, 2, v{B_+k}
              ds_add_rtn_u32 v{R_+k}, v{B_+k}, v{V_ONE} offset:{L1_HIST}""")
    a("s_waitcnt vmcnt(9)")
    for k in range(4):
        a(f"""v_lshrrev_b32 v{D_+k}, 8, v{D_+k}
              v_lshl_or_b32 v{TB+2*k}, v{S_+k}, 10, v{D_+k}""")
    a(f"""s_waitcnt lgkmcnt(0)
    s_barrier
    ds_read_b128 {vr(H_,4)}, v{V_L16} offset:{L1_HIST}
    s_waitcnt lgkmcnt(0)""")
    scan256(a, H_, O_)
    a(f"ds_write_b128 v{V_L16}, {vr(O_,4)} offset:{L1_BASE}")
    for k in range(4): a(f"ds_read_b32 v{H_+k}, v{B_+k} offset:{L1_BASE}")
    for k in range(4):
        a(f"""s_waitcnt lgkmcnt(3)
              v_add_u32 v{R_+k}, v{R_+k}, v{H_+k}
              v_lshl_add_u32 v{B_+k}, v{R_+k}, 3, s9
              ds_write_b64 v{B_+k}, {vr(TB+2*k,2)}""")
    for k in range(4):
        a(f"v_lshlrev_b32 v{R_+k}, 4, v{R_+k}\nv_add_u32 v{R_+k}, {L1_SREC}, v{R_+k}")
    a("s_waitcnt lgkmcnt(0)\ns_barrier")
    st('keys binned')
    a("s_waitcnt vmcnt(0)")
    for k in range(4):
        a(f"ds_write2_b64 v{R_+k}, {vr(Y_+2*k,2)}, {vr(F_+2*k,2)} offset0:0 offset1:1")
    st('recs binned')
    const_finish()
    a("s_setprio 0\ns_branch BINNED")
    a(f"""AUX:
    v_lshrrev_b32 v{T0}, 4, v{V_L16}                ; lane
    s_waitcnt lgkmcnt(0)""")
    load_epoch(a)
    const_issue()
    a(f"""s_waitcnt lgkmcnt(0)
    s_cmp_ge_u32 s2, {NP + 4}
    s_cbranch_scc1 AUX_IDLE
    s_cmp_ge_u32 s{S_WAVE}, 4
    s_cbranch_scc1 AUX_IDLE
    s_sub_u32 s4, s2, {NP}
    s_lshl_b32 s5, s{S_WAVE}, 13
    s_lshl_b32 s6, s4, 6
    s_add_u32 s5, s5, s6
    v_lshrrev_b32 v{T0+1}, 4, v{T0}
    v_lshlrev_b32 v{T0+1}, 11, v{T0+1}
    v_and_b32 v{T0+2}, 15, v{T0}
    v_lshl_add_u32 v{T0+1}, v{T0+2}, 2, v{T0+1}
    v_add_u32 v{T0+1}, s5, v{T0+1}
    s_lshl_b32 s5, s4, 13
    s_lshl_b32 s6, s{S_WAVE}, 10
    s_add_u32 s5, s5, s6
    s_add_u32 s5, s5, {WS_WMIX}
    v_add_u32 v{T0+2}, s5, v{V_L16}
    s_mov_b32 s4, 0x05040100
    s_mov_b32 s5, 0x07060302""")
    for t in range(8): a(f"global_load_dword v{64+t}, v{T0+1}, {sr(WMX,2)} offset:{t*256}")
    a("s_barrier")
    lut_plain(a, "X", "L")
    a("s_waitcnt vmcnt(0)")
    for u in range(4):
        a(f"v_perm_b32 v{72+u}, v{65+2*u}, v{64+2*u}, s4\nv_perm_b32 v{76+u}, v{65+2*u}, v{64+2*u}, s5")
    a(f"""global_store_dwordx4 v{T0+2}, v[72:75], {WS} {FL}
    v_add_u32 v{T0+2}, 4096, v{T0+2}
    global_store_dwordx4 v{T0+2}, v[76:79], {WS} {FL}
    s_branch AUX_DONE
AUX_IDLE:
    s_barrier""")
    lut_plain(a, "Z", "L")
    a("AUX_DONE:")
    make_tag(a)
    a("""s_waitcnt lgkmcnt(0)
    s_barrier
    s_barrier
    s_waitcnt vmcnt(0)""")
    const_finish()
    a("s_branch BINNED")
    a("HELP:\ns_waitcnt lgkmcnt(0)")
    if opt.xp >= 0:
        a(f"""s_mul_i32 s3, s2, 10240
        s_add_u32 s3, s3, {opt.xp * 2540000 // 128 * 128}
        s_sub_u32 s4, s{S_WAVE}, 5
        s_mul_i32 s4, s4, 3072
        s_add_u32 s3, s3, s4""")
        for k in range(3): a(f"buffer_load_dwordx4 v[64:67], v{V_L16}, {sr(S_X,4)}, s3 offen offset:{1024*k}")
        a("s_waitcnt vmcnt(0)")
        st('xp')
    load_epoch(a)
    const_issue()
    a(f"""s_barrier
    s_cmp_lg_u32 s{S_WAVE}, 7
    s_cbranch_scc1 HELP56""")
    lut_jobs(a, "7a", f"s_mov_b32 s{S_JOB}, 63", 1)
    a(f"""v_mov_b32 v{T0+2}, {0x7f80 * 2}
    v_mov_b32 v{T0+3}, 0x7f80
    ds_write_b16 v{T0+2}, v{T0+3} offset:{L_LUT}""")
    lut_jobs(a, "7b", f"s_mov_b32 s{S_JOB}, 33", 1)
    st('help jobs')
    a("s_waitcnt vmcnt(0)")
    st('help consts')
    const_finish()
    a("s_waitcnt lgkmcnt(0)")
    make_tag(a)
    a("s_barrier")
    key_stores(0, 4)
    rec_stores("7", 0, 6)
    a(f"""s_branch STORED
HELP56:
    s_cmp_eq_u32 s{S_WAVE}, 6
    s_cbranch_scc1 HELP6""")
    lut_jobs(a, "5a", f"s_mov_b32 s{S_JOB}, 0", 1)
    lut_jobs(a, "5b", f"s_mov_b32 s{S_JOB}, 25", 1)
    st('help jobs')
    a("s_waitcnt vmcnt(0)")
    st('help consts')
    const_finish()
    a("s_waitcnt lgkmcnt(0)")
    make_tag(a)
    a("s_barrier")
    key_stores(4, 3)
    rec_stores("5", 6, 7)
    a("s_branch STORED\nHELP6:")
    lut_jobs(a, "6", f"s_mov_b32 s{S_JOB}, 26", 2)
    st('help jobs')
    a("s_waitcnt vmcnt(0)")
    st('help consts')
    const_finish()
    a(f"""s_lshl_b32 s3, s2, 11
    s_add_u32 s3, s3, {WS_TAB}
    v_lshl_add_u32 v{T0}, v{V_L16}, 1, s3
    s_waitcnt lgkmcnt(0)""")
    make_tag(a)
    a(f"""s_barrier
    ds_read_b128 {vr(H_,4)}, v{V_L16} offset:{L1_HIST}
    s_waitcnt lgkmcnt(0)""")
    scan256(a, H_, O_)
    a(f"s_lshl_b32 s3, s{S_NHI}, 22")
    for k in range(4):
        a(f"""v_lshl_or_b32 v{TB+2*k}, v{H_+k}, 11, v{O_+k}
              v_or_b32 v{TB+2*k}, s3, v{TB+2*k}
              v_mov_b32 v{TB+2*k+1}, s{S_NLO}""")
    a(f"""global_store_dwordx4 v{T0}, {vr(TB,4)}, {WS} sc0 sc1
    global_store_dwordx4 v{T0}, {vr(TB+4,4)}, {WS} offset:16 sc0 sc1""")
    st('table published')
    key_stores(7, 3)
    rec_stores("6", 13, 7)
    a(f"""STORED:
    v_mov_b32 v{V_LEN}, 0
    s_branch TAB_DONE
BINNED:
    v_mov_b32 v{V_LEN}, 0
    s_cmp_eq_u32 s{S_WAVE}, 4
    s_cbranch_scc0 POLLER
    s_waitcnt lgkmcnt(0)
    s_barrier""")
    lut_jobs(a, "4", f"s_mov_b32 s{S_JOB}, 31", 2)
    a("s_branch TAB_DONE\nPOLLER:")
    lut_plain(a, "U", "H", last=opt.hsplit)
    poll_issue(a, V_LEN, V_POS, 0)
    a("s_waitcnt lgkmcnt(0)\ns_barrier")
    st('tab issued')
    lut_plain(a, "V", "H", cont=True)
    poll_check(a, "TAB", V_LEN, V_POS, 0, T0 + 3, f"v_lshrrev_b32 v{T0+3}, 22, v{V_LEN}")
    st('tab arrived')
    a("TAB_DONE:")

def mfma4(d, a_, b, c, blk=None):
    cc = "0" if c is None else vr(c, 4)
    return f"v_mfma_f32_4x4x4_16b_bf16 {vr(d,4)}, {vr(a_,2)}, {vr(b,2)}, {cc}" + ("" if blk is None else f" cbsz:4 abid:{blk}")
def p_mfma(g, odd):
    return mfma4(UU + 8 * (g % 2) + 4 * odd, EF, PO if odd else PE, None, g % 16)
def t_mfma(e, odd):
    return mfma4(TP + 8 * (e % 2) + 4 * odd, WPK + 2 * (e % 4), XR + 4 * (e % 8) + 2 * odd, None, (e % 64) // 4)
def act_regs(eb, odd):
    return UU + 8 * ((eb // 4) % 2) + 4 * odd + eb % 4, RR + 4 * ((eb // 2) % 2) + 2 * odd
def act_addr(t, u):
    return f"v_lshlrev_b32_sdwa v{t}, v{V_ONE}, v{u} dst_sel:DWORD dst_unused:UNUSED_PAD src0_sel:DWORD src1_sel:WORD_1"
def act_read(r, t): return f"ds_read_u16_d16_hi v{r}, v{t} offset:{L_LUT}"
def fma4(a, q):
    h = q % 2
    a(f"s_set_gpr_idx_on s{S_K + q % 16}, 0xc")
    for odd in range(2):
        r = RR + 4 * ((q // 2) % 2) + 2 * odd
        for o in (0, 2):
            acc = ACC + 4 * odd + o; tp = TP + 8 * (q % 2) + 4 * odd + o
            a(f"v_pk_fma_f32 {vr(acc,2)}, {vr(r,2)}, {vr(tp,2)}, {vr(acc,2)} op_sel:[{h},0,0] op_sel_hi:[{h},1,1]")
    a("s_set_gpr_idx_off")
def meta_read_entry(a): a(f"ds_read_b32 v{ENT}, v{V_AENT}")
def meta_fix_entry(a, rec=True):
    a(f"""v_cmp_gt_u32 vcc, s{S_END}, v{V_POS}
          v_add_u32 v{V_POS}, 64, v{V_POS}
          v_add_u32 v{V_AENT}, 256, v{V_AENT}
          v_cndmask_b32 v{ENT}, 40, v{ENT}, vcc
          v_lshrrev_b32 v{T0}, 21, v{ENT}
          v_lshlrev_b32 v{T0}, 4, v{T0}
          v_lshlrev_b32 v{T0+1}, 3, v{ENT}""")
    if rec: meta_read_rec(a)
    a(f"""v_and_b32 v{T0+1}, 0xfffc00, v{T0+1}
          v_and_or_b32 v{ENT}, v{ENT}, 56, v{T0+1}""")
def meta_read_rec(a): a(f"ds_read_b128 {vr(RECN,4)}, v{T0} offset:{L_UREC}")
def w_mfma(i): return mfma4(WTMP + 4 * i, RECN, CGB + 2 * i, None)
def w_cvt(a, m):
    a(f"""v_cvt_pk_bf16_f32 v{WPK+2*m}, v{WTMP+m}, v{WTMP+4+m}
          v_cvt_pk_bf16_f32 v{WPK+2*m+1}, v{WTMP+8+m}, v{WTMP+12+m}""")

def body(a, opt, loads):
    D = opt.D; tag = "A" if loads else "B"
    for q in range(64):
        if q % 4 == 0:
            a(f"{tag}_{q}:")
            if loads: a(f"s_sub_u32 s{S_REM}, s{S_REM}, 4\ns_cbranch_scc1 TO_B_{q}")
            else:     a(f"s_sub_u32 s{S_REMB}, s{S_REMB}, 4\ns_cbranch_scc1 MAIN_DONE")
        eb = q + 2 - q % 2; odd = q % 2
        u, r = act_regs(eb, odd); t = TT + 2 * odd
        g, ur = (q + 6) // 4, (q + 6) % 4
        if ur % 2 == 0: a(p_mfma(g, ur // 2))
        elif 40 <= q < 48: a(w_mfma((q - 40) // 2))
        a(act_addr(t, u))
        a(f"s_waitcnt vmcnt({D - 2 if loads else 8 + max(0, D - (6 if D == 8 else 2) - q % 4)})")
        a(t_mfma(q + 1, 0))
        if loads: a(f"v_readlane_b32 s{S_K + (q + D) % 16}, v{KEY if q + D < 64 else ENT}, {(q + D) % 64}")
        else:     a("s_nop 0")
        a(t_mfma(q + 1, 1))
        a(act_addr(t + 1, u + 1))
        a(act_read(r, t)); a(act_read(r + 1, t + 1))
        if q >= 60: w_cvt(a, q - 60)
        if loads:
            a(f"s_and_b32 s{S_OFF}, s{S_K + (q + D) % 16}, s{S_MASK}")
            a(f"buffer_load_dwordx4 {vr(XR + 4 * ((q + D) % 8), 4)}, v{V_L16}, {sr(S_X,4)}, s{S_OFF} offen")
        if q % 2 == 0: a("s_waitcnt lgkmcnt(2)")
        fma4(a, q)
        if q == 8: meta_read_entry(a)
        if q == 12: meta_fix_entry(a)
        if q == 57: a(f"v_mov_b32 v{EF}, v{RECN+2}\nv_mov_b32 v{EF+1}, v{RECN+3}\ns_nop 1")
        if q == 63: a(f"v_mov_b32 v{KEY}, v{ENT}")
    if opt.stamps and loads:
        STAMPS.extend(("batch 1", "batch 2")); k = S_ST + len(STAMPS) - 2
        a(f"""s_memrealtime s[98:99]
        s_waitcnt lgkmcnt(0)
        s_cmp_eq_u32 s{k}, 0
        s_cselect_b32 s99, 0, s98
        s_cselect_b32 s{k}, s98, s{k}
        s_cmp_eq_u32 s{k+1}, 0
        s_cselect_b32 s{k+1}, s99, s{k+1}""")
    if opt.probe == "batch 1" and loads:
        a("s_memrealtime s[98:99]\ns_waitcnt lgkmcnt(0)\ns_cmp_eq_u32 s93, 0\ns_cselect_b32 s93, s98, s93")
    a(f"s_branch {tag}_0")

def zero_hist(a):
    a(f"""v_lshlrev_b32 v{T0+3}, 2, v0
    v_mov_b32 v{T0+4}, 0
    v_cmp_gt_u32 vcc, {40 * HS // 4}, v0
    s_and_saveexec_b64 {sr(S_T,2)}, vcc
    ds_write_b32 v{T0+3}, v{T0+4} offset:{L_HIST}
    s_mov_b64 exec, {sr(S_T,2)}""")

def kernel(opt):
    a = Asm(); D = opt.D
    st = lambda n: stamp(a, opt, n)
    a(f"""{KERN}:
    s_cmp_ge_u32 s2, 256
    s_cbranch_scc1 END""")
    if opt.probe: a("s_mov_b32 s93, 0\ns_memrealtime s[98:99]\ns_waitcnt lgkmcnt(0)\ns_mov_b32 s92, s98")
    if opt.stamps:
        for k in range(32): a(f"s_mov_b32 s{S_ST+k}, 0")
    st('start')
    a(f"""s_load_dwordx16 {sr(S_IN,16)}, s[0:1], 0
    s_load_dwordx4 {sr(S_OD,4)}, s[0:1], 64
    s_load_dwordx2 {sr(S_WS,2)}, s[0:1], 80
    s_load_dwordx2 {sr(S_X,2)}, s[0:1], 0
    s_load_dwordx2 {sr(S_OUT,2)}, s[0:1], 64
    s_and_b32 s4, s2, 7
    s_lshl_b32 s4, s4, 5
    s_lshr_b32 s5, s2, 3
    s_or_b32 s{S_BETA}, s4, s5
    v_lshrrev_b32 v{T0}, 6, v0
    v_and_b32 v{T0+1}, 63, v0
    v_lshlrev_b32 v{V_L16}, 4, v{T0+1}
    v_readfirstlane_b32 s{S_WAVE}, v{T0}""")
    if opt.ipf == 2:
        a(f"""s_getpc_b64 s[6:7]
        CODE_HERE:
        v_lshlrev_b32 v{T0+2}, 7, v0
        v_subrev_u32 v{T0+2}, {5 * 8192}, v{T0+2}
        v_add_u32 v{T0+3}, {3 * 8192}, v{T0+2}
        v_min_u32 v{T0+3}, END-CODE_HERE, v{T0+3}
        s_cmp_lt_u32 s{S_WAVE}, 5
        s_cbranch_scc1 NO_CODE_TOUCH
        global_load_dword v{V_FLAG+1}, v{T0+2}, s[6:7]
        global_load_dword v{V_FLAG+1}, v{T0+3}, s[6:7]
        NO_CODE_TOUCH:""")
    if opt.ipf == 1:
        a(f"""s_getpc_b64 s[6:7]
        CODE_HERE:
        s_lshr_b32 s4, s2, 3
        s_lshl_b32 s4, s4, 10
        v_and_b32 v{T0+2}, 7, v0
        v_lshl_add_u32 v{T0+2}, v{T0+2}, 7, s4
        v_min_u32 v{T0+2}, END-CODE_HERE, v{T0+2}
        s_cmp_lg_u32 s{S_WAVE}, 7
        s_cbranch_scc1 NO_CODE_TOUCH
        global_load_dword v{V_FLAG+1}, v{T0+2}, s[6:7]
        NO_CODE_TOUCH:""")
    a(f"""v_lshlrev_b32 v{T0+3}, 3, v0
    v_mov_b32 v{T0+4}, 0
    v_mov_b32 v{T0+5}, 0
    ds_write_b64 v{T0+3}, {vr(T0+4,2)}
    v_mov_b32 v{V_ONE}, 1
    s_mov_b32 s{S_X+2}, {N * 1024}
    s_mov_b32 s{S_X+3}, 0x20000
    s_mov_b32 s{S_WS+2}, {WS_END if not opt.stamps else WS_STAMP + 0x80000}
    s_mov_b32 s{S_WS+3}, 0x20000
    s_mov_b32 s{S_OUT+2}, {N * 1024}
    s_mov_b32 s{S_OUT+3}, 0x20000
    s_mov_b32 s{S_MASK}, 0xfffffc00
    s_mov_b32 s{S_W0}, 0
    s_mov_b32 s{S_L2E}, 0xbfb8aa3b
    s_mov_b32 s{S_L2E+1}, 0xbfb8aa3b
    v_mul_u32_u24 v{V_SIG4}, 52, v{T0+1}
    v_lshrrev_b32 v{V_SIG4}, 8, v{V_SIG4}            ; lane / 5
    v_mul_u32_u24 v{V_SLOT4}, 5, v{V_SIG4}
    v_sub_u32 v{V_SLOT4}, v{T0+1}, v{V_SLOT4}        ; lane % 5
    v_lshlrev_b32 v{V_SIG4}, 2, v{V_SIG4}
    v_lshlrev_b32 v{V_SLOT4}, 2, v{V_SLOT4}
    s_mov_b32 s{S_SPIN}, {1 << 21}
    v_and_b32 v{V_GID}, 0xff, v0
    s_lshl_b32 s3, s{S_BETA}, 3
    s_add_u32 s3, s3, {WS_TAB}
    v_lshl_add_u32 v{V_POS}, v{V_GID}, 11, s3
    s_and_b32 s3, s2, 7
    s_lshl_b32 s3, s3, 7
    s_add_u32 s3, s3, {WS_RDY}
    s_lshl_b32 s4, s{S_WAVE}, 15
    s_add_u32 s3, s3, s4
    v_and_b32 v{V_FLAG}, 31, v0
    v_lshl_add_u32 v{V_FLAG}, v{V_FLAG}, 10, s3      ; flag of producer 32 wave + lane % 32
    v_mul_u32_u24 v{V_GID}, {EP}, v{V_GID}""")
    for k in range(48): a(f"v_mov_b32 v{ACC+k}, 0")
    phase1(a, opt)
    a(f"""v_and_b32 v{T0+5}, 0x7ff, v{V_LEN}
    v_bfe_u32 v{V_LEN}, v{V_LEN}, 11, 11
    v_lshrrev_b32 v{T0+1}, 4, v{V_L16}                ; lane
    v_add_u32 v{V_GID}, v{V_GID}, v{T0+5}
    v_mov_b32 v{V_PRE}, v{V_LEN}""")
    if opt.keypf:
        a(f"""s_cmp_ge_u32 s{S_WAVE}, 4
        s_cbranch_scc1 NO_KEY_TOUCH
        v_lshlrev_b32 v{T0+2}, 3, v{V_GID}
        buffer_load_dword v{V_FLAG+1}, v{T0+2}, {sr(S_WS,4)}, 0 offen sc1""")
        if opt.keypf > 1:
            a(f"""v_lshl_add_u32 v{T0+2}, v{V_LEN}, 3, v{T0+2}
            v_subrev_u32 v{T0+2}, 8, v{T0+2}
            buffer_load_dword v{V_FLAG+1}, v{T0+2}, {sr(S_WS,4)}, 0 offen sc1""")
        a("NO_KEY_TOUCH:")
    scan64(a, V_PRE)
    a(f"""s_nop 0
    v_readlane_b32 s{S_T+2}, v{V_PRE}, 63
    v_sub_u32 v{V_PRE}, v{V_PRE}, v{V_LEN}
    v_cmp_lt_u32 vcc, s{S_WAVE}, v{T0+1}
    v_cmp_gt_u32 {sr(S_T,2)}, 9, v{T0+1}
    v_lshlrev_b32 v{T0+2}, 2, v{T0+1}
    v_mov_b32 v{T0+3}, s{S_T+2}
    s_and_b64 vcc, vcc, {sr(S_T,2)}
    s_and_saveexec_b64 {sr(S_T,2)}, vcc
    ds_add_u32 v{T0+2}, v{T0+3} offset:{L_WT}
    s_mov_b64 exec, {sr(S_T,2)}
    s_lshl_b32 s3, s{S_WAVE}, 2
    v_mov_b32 v{T0+2}, s3
    v_mov_b32 v{T0+3}, 32
    s_waitcnt lgkmcnt(0)
    s_barrier
    ds_read_b32 v{T0}, v{T0+2} offset:{L_WT}
    ds_read_b32 v{T0+3}, v{T0+3} offset:{L_WT}
    s_cmp_lg_u32 s{S_WAVE}, 4
    s_cbranch_scc1 EPOCH_DONE""")
    a(f"""s_cmp_lg_u32 s2, 0
    s_cbranch_scc1 EPOCH_DONE
    v_mov_b32 v{T0+4}, s{S_NLO}
    v_mov_b32 v{T0+2}, {WS_EPOCH}
    s_mov_b64 exec, 1
    global_store_dword v{T0+2}, v{T0+4}, {sr(S_WS,2)} sc0 sc1
    s_mov_b64 exec, -1
EPOCH_DONE:
    s_waitcnt lgkmcnt(0)
    v_add_u32 v{V_PRE}, v{V_PRE}, v{T0}
    v_readfirstlane_b32 s{S_N}, v{T0+3}""")
    st('prefix done')
    a(f"s_cmp_lt_u32 s{S_WAVE}, 5\ns_cbranch_scc1 RECS_FLAGGED")
    a(f"""v_mov_b32 v{T0+2}, {L_CNT}
    s_waitcnt vmcnt(0)
    s_mov_b64 exec, 1
    ds_add_rtn_u32 v{T0+2}, v{T0+2}, v{V_ONE}
    s_mov_b64 exec, -1
    s_waitcnt lgkmcnt(0)
    v_readfirstlane_b32 s3, v{T0+2}
    s_cmp_lg_u32 s3, 2
    s_cbranch_scc1 RECS_FLAGGED""")
    flag_store(a, WS_RDY)
    st('recs flagged')
    a("RECS_FLAGGED:")
    a(f"""ROUND:
    v_mov_b32 v{T0}, 0
    v_subrev_u32 v{T0+1}, s{S_W0}, v{V_PRE}
    v_mov_b32 v{T0+2}, v{V_GID}
    s_mov_b32 s3, {CAP}
    s_cmp_gt_u32 s{S_N}, {CAP}
    s_cbranch_scc1 EXPAND
    v_lshlrev_b32 v{T0+3}, 2, v{V_PRE}""")
    for j in range(16):
        a(f"v_cmpx_lt_u32 vcc, {j}, v{V_LEN}")
        if j % 2 == 0 and j >= 6: a("s_cbranch_execz EXPAND_DONE")
        a(f"ds_write_b32 v{T0+3}, v{T0+2} offset:{L_SENT + 4*j}\nv_add_u32 v{T0+2}, 1, v{T0+2}")
    a(f"""v_mov_b32 v{T0}, 16
    v_add_u32 v{T0+1}, 16, v{T0+1}
EXPAND:
    v_cmp_lt_u32 vcc, v{T0}, v{V_LEN}
    s_and_b64 exec, exec, vcc
    s_cbranch_execz EXPAND_DONE
    v_cmp_gt_u32 vcc, s3, v{T0+1}
    v_lshlrev_b32 v{T0+3}, 2, v{T0+1}
    s_and_saveexec_b64 {sr(S_T,2)}, vcc
    ds_write_b32 v{T0+3}, v{T0+2} offset:{L_SENT}
    s_mov_b64 exec, {sr(S_T,2)}
    v_add_u32 v{T0}, 1, v{T0}
    v_add_u32 v{T0+1}, 1, v{T0+1}
    v_add_u32 v{T0+2}, 1, v{T0+2}
    s_branch EXPAND
EXPAND_DONE:
    s_mov_b64 exec, -1
    s_sub_u32 s{S_NWIN}, s{S_N}, s{S_W0}
    s_min_u32 s{S_NWIN}, s{S_NWIN}, {CAP}
    v_lshlrev_b32 v{T0}, 2, v0""")
    for i in range(3):
        a(f"""v_add_u32 v{T0+1}, {512*i}, v0
              v_cmp_gt_u32 {sr(S_M+2*i,2)}, s{S_NWIN}, v{T0+1}""")
    st('list built')
    a("s_waitcnt lgkmcnt(0)\ns_barrier")
    st('list barrier')
    G = XR
    KP = TP
    for i in range(3): a(f"ds_read_b32 v{G+i}, v{T0} offset:{L_SENT + 2048*i}")
    a(f"""s_mov_b32 s{S_T+2}, 5033                          ; 12 * 2^32 / (10000 * 1024)
    s_waitcnt lgkmcnt(0)""")
    for i in range(3):
        a(f"v_lshlrev_b32 v{G+4+i}, 3, v{G+i}\nv_lshlrev_b32 v{G+i}, 4, v{G+i}")
    a(f"""KEY_LOAD:
    s_mov_b64 exec, {sr(S_M+4,2)}
    s_cbranch_execz SKIP3
    buffer_load_dwordx2 {vr(KP+4,2)}, v{G+6}, {sr(S_WS,4)}, 0 offen sc1
SKIP3:""")
    for i in range(2):
        a(f"s_mov_b64 exec, {sr(S_M+2*i,2)}\nbuffer_load_dwordx2 {vr(KP+2*i,2)}, v{G+4+i}, {sr(S_WS,4)}, 0 offen sc1")
    a(f"""s_mov_b64 exec, -1
    s_sub_u32 s{S_JOB}, s{S_WAVE}, 4
    s_cmp_ge_u32 s{S_JOB}, 3
    s_cbranch_scc1 NO_LAST_JOB
    s_mov_b32 s{S_L2E}, 0xbfb8aa3b
    s_mov_b32 s{S_L2E+1}, 0xbfb8aa3b""")
    lut_jobs(a, "k", f"s_add_u32 s{S_JOB}, s{S_JOB}, 28", 1)
    a("NO_LAST_JOB:\ns_waitcnt vmcnt(0)")
    for i in range(3): a(f"v_cmp_ne_u32 {sr(S_K+2*i,2)}, s{S_NLO}, v{KP+2*i+1}")
    for i in range(3): a(f"s_and_b64 {sr(S_K+2*i,2)}, {sr(S_K+2*i,2)}, {sr(S_M+2*i,2)}")
    a(f"""s_or_b64 {sr(S_K,2)}, {sr(S_K,2)}, {sr(S_K+2,2)}
    s_or_b64 {sr(S_K,2)}, {sr(S_K,2)}, {sr(S_K+4,2)}
    s_cbranch_scc0 KEYS_OK
    s_sub_u32 s{S_SPIN}, s{S_SPIN}, 1
    s_cbranch_scc0 KEY_LOAD
    s_endpgm
KEYS_OK:""")
    st('keys arrived')
    if opt.rdy == 0: poll_issue(a, TT, V_FLAG, 0)
    for i in range(3):
        a(f"""v_mul_hi_u32 v{T0+1}, s{S_T+2}, v{KP+2*i}
              v_and_b32 v{G+8+i}, 63, v{KP+2*i}
              v_mul_u32_u24 v{G+8+i}, {HS}, v{G+8+i}
              v_lshl_add_u32 v{G+8+i}, v{T0+1}, 2, v{G+8+i}""")
    for i in range(3):
        a(f"s_mov_b64 exec, {sr(S_M+2*i,2)}\nds_add_rtn_u32 v{G+12+i}, v{G+8+i}, v{V_ONE} offset:{L_HIST}")
    a("s_mov_b64 exec, -1")
    for i in range(3):
        a(f"""v_add_u32 v{T0+1}, {512*i}, v0
              v_lshlrev_b32 v{T0+1}, 21, v{T0+1}
              v_lshrrev_b32 v{G+16+i}, 10, v{KP+2*i}
              v_lshl_or_b32 v{G+16+i}, v{G+16+i}, 7, v{T0+1}""")
    H = G + 20
    a(f"""v_lshrrev_b32 v{T0}, 4, v{V_L16}              ; lane
    v_min_u32 v{T0+1}, 39, v{T0}
    v_mul_u32_u24 v{T0+1}, {HS}, v{T0+1}
    v_cmp_gt_u32 {sr(S_T+4,2)}, 40, v{T0}
    v_sub_u32 v{T0+2}, 63, v{T0}
    s_mul_i32 s10, s{S_WAVE}, 5
    s_lshl_b32 s3, s{S_WAVE}, 10
    s_add_u32 s3, s3, {L_UREC}
    s_mov_b32 s9, {WS_REC}
    s_waitcnt lgkmcnt(0)
    s_barrier""")
    st('hist done')
    if opt.rdy == 1: poll_issue(a, TT, V_FLAG, 0)
    for k in range(3): a(f"ds_read_b128 {vr(H+4*k,4)}, v{T0+1} offset:{L_HIST + 16*k}")
    a(f"""    s_waitcnt lgkmcnt(1)
    v_add3_u32 v{H}, v{H}, v{H+1}, v{H+2}
    v_add3_u32 v{H+3}, v{H+3}, v{H+4}, v{H+5}
    v_add3_u32 v{H}, v{H}, v{H+6}, v{H+7}
    s_waitcnt lgkmcnt(0)
    v_add3_u32 v{H+3}, v{H+3}, v{H+8}, v{H+9}
    v_add3_u32 v{H}, v{H}, v{H+10}, v{H+11}
    v_add_u32 v{H}, v{H}, v{H+3}
    v_lshl_or_b32 v{H+1}, v{H}, 6, v{T0+2}
    v_cndmask_b32 v{H+1}, 0, v{H+1}, {sr(S_T+4,2)}
    s_cmp_lg_u32 s{S_W0}, 0
    s_cbranch_scc1 DEALT""")
    for k in range(5):
        a(f"v_readlane_b32 s{S_NODE+k}, v{H+1}, s10")
        if k < 4: a("s_add_u32 s10, s10, 1")
    for k in range(5): a(f"v_cmp_lt_u32 {sr(S_K+2*k,2)}, s{S_NODE+k}, v{H+1}")
    for k in range(5): a(f"s_bcnt1_i32_b64 s{S_NODE+k}, {sr(S_K+2*k,2)}")
    for k in range(5): a(f"v_writelane_b32 v{T0+1}, s{S_NODE+k}, {k}")
    a(f"""s_sub_u32 s10, s10, 4
    v_add_u32 v{T0+2}, s10, v{T0}
    v_lshrrev_b32 v{T0+3}, 3, v{T0+1}
    v_and_b32 v{T0+1}, 7, v{T0+1}
    v_lshrrev_b32 v{T0+4}, v{T0+3}, {opt.dirmask}
    v_and_b32 v{T0+4}, 1, v{T0+4}
    v_mul_u32_u24 v{T0+4}, 7, v{T0+4}
    v_xor_b32 v{T0+1}, v{T0+1}, v{T0+4}               ; wave
    v_mad_u32_u24 v{T0+1}, v{T0+1}, 5, v{T0+3}
    v_lshlrev_b32 v{T0+1}, 2, v{T0+1}
    s_mov_b64 exec, 0x1f
    ds_write_b32 v{T0+1}, v{T0+2} offset:{L_INV}
    s_mov_b64 exec, -1
DEALT:
    s_lshl_b32 s11, s10, 2
    v_add_u32 v{T0+1}, s11, v{V_SLOT4}
    v_lshlrev_b32 v{T0+5}, 2, v{T0}
""")
    poll_check(a, "REC", TT, V_FLAG, 0, TT + 1)
    a(f"""v_cmp_gt_u32 {sr(S_T,2)}, 60, v{T0}
    s_waitcnt lgkmcnt(0)
    s_barrier""")
    st('dealt')
    a(f"""ds_read_b32 v{T0+1}, v{T0+1} offset:{L_INV}
    ds_read_b32 v{T0+5}, v{T0+5} offset:{L_INV}
    v_lshlrev_b32 v{T0+4}, 17, v{V_SLOT4}             ; slot << 19""")
    for i in range(2):
        a(f"""s_add_u32 m0, s3, {i*8192}
              s_mov_b64 exec, {sr(S_M+2*i,2)}
              buffer_load_dwordx4 v{G+i}, {sr(S_WS,4)}, s9 offen sc1 lds""")
    a(f"""s_add_u32 m0, s3, {2*8192}
    s_mov_b64 exec, {sr(S_M+4,2)}
    s_cbranch_execz SKIP3R
    buffer_load_dwordx4 v{G+2}, {sr(S_WS,4)}, s9 offen sc1 lds
SKIP3R:
    s_mov_b64 exec, -1""")
    a(f"""    s_waitcnt lgkmcnt(1)
    v_mul_u32_u24 v{T0+2}, {HS}, v{T0+1}
    v_add_u32 v{T0+2}, v{T0+2}, v{V_SIG4}
    ds_read_b32 v{T0+3}, v{T0+2} offset:{L_HIST}
    s_waitcnt lgkmcnt(1)
    v_lshlrev_b32 v{T0+5}, 2, v{T0+5}
    ds_bpermute_b32 v{H+2}, v{T0+5}, v{H}""")
    for k in range(5): a(f"v_readlane_b32 s{S_NODE+k}, v{T0+1}, {k}")
    a(f"""s_waitcnt lgkmcnt(0)
    v_cndmask_b32 v{T0+3}, 0, v{T0+3}, {sr(S_T,2)}
    v_cndmask_b32 v{H+2}, 0, v{H+2}, {sr(S_T+4,2)}
    v_sub_u32 v{T0+4}, v{T0+4}, v{T0+3}
    v_mov_b32 v{H+3}, v{H+2}""")
    scan64(a, T0 + 3, H + 3)
    a(f"""v_sub_u32 v{H+3}, v{H+3}, v{H+2}
    v_add_u32 v{T0+4}, v{T0+4}, v{T0+3}
    v_readlane_b32 s{S_START}, v{H+3}, s10
    v_readlane_b32 s{S_END}, v{T0+3}, 63
    s_nop 0
    v_add_u32 v{T0+4}, s{S_START}, v{T0+4}
    s_mov_b64 exec, {sr(S_T,2)}
    ds_write_b32 v{T0+2}, v{T0+4} offset:{L_HIST}
    s_mov_b64 exec, -1
    v_add_u32 v{V_POS}, s{S_START}, v{T0}
    v_lshlrev_b32 v{V_AENT}, 2, v{V_POS}
    v_add_u32 v{V_AENT}, {L_SENT}, v{V_AENT}
    s_add_u32 s10, s{S_END}, 3
    s_and_b32 s10, s10, -4
    s_min_u32 s{S_REMB}, s10, {8 if D == 8 else 4}
    s_sub_u32 s{S_REM}, s10, s{S_REMB}
    s_add_u32 s{S_END}, s{S_END}, s{S_START}""")
    a("s_waitcnt lgkmcnt(0)\ns_barrier")
    st('bases')
    for i in range(3): a(f"ds_read_b32 v{G+8+i}, v{G+8+i} offset:{L_HIST}")
    for i in range(3):
        a(f"""s_waitcnt lgkmcnt({2-i})
              v_lshrrev_b32 v{T0+1}, 16, v{G+8+i}
              v_and_b32 v{G+8+i}, 0xffff, v{G+8+i}
              v_or_b32 v{G+16+i}, v{G+16+i}, v{T0+1}
              v_add_lshl_u32 v{G+8+i}, v{G+8+i}, v{G+12+i}, 2""")
    for i in range(3):
        a(f"""s_mov_b64 exec, {sr(S_M+2*i,2)}
              ds_write_b32 v{G+8+i}, v{G+16+i} offset:{L_SENT}""")
    a("s_mov_b64 exec, -1")
    a("s_waitcnt lgkmcnt(0)")
    a("s_barrier")
    st('sorted')
    if opt.stamps: a(f"s_memtime s[100:101]\ns_waitcnt lgkmcnt(0)\ns_mov_b32 s{S_ST+30}, s100")
    meta_read_entry(a)
    a(f"""s_and_b32 s{S_WM}, s{S_WAVE}, 3
    s_lshl_b32 s{S_WM}, s{S_WM}, 13
    s_add_u32 s{S_WM}, s{S_WM}, {WS_WMIX}
    s_add_u32 s{S_WM+1}, s{S_WM}, 4096""")
    for k in range(8): a(f"v_mov_b32 v{RR+k}, 0")
    a("s_waitcnt lgkmcnt(0)")
    meta_fix_entry(a, False)
    a("s_nop 0")
    for e in range(D):
        a(f"""v_readlane_b32 s{S_K+e}, v{ENT}, {e}
              s_and_b32 s{S_OFF}, s{S_K+e}, s{S_MASK}
              buffer_load_dwordx4 {vr(XR+4*e,4)}, v{V_L16}, {sr(S_X,4)}, s{S_OFF} offen""")
    a(f"v_mov_b32 v{KEY}, v{ENT}\ns_waitcnt vmcnt({D})")
    st('recs landed')
    a("s_barrier")
    meta_read_rec(a)
    a(f"""s_waitcnt lgkmcnt(0)
    v_mov_b32 v{EF}, v{RECN+2}
    v_mov_b32 v{EF+1}, v{RECN+3}""")
    for i in range(4): a(w_mfma(i))
    a(p_mfma(0, 0)); a(p_mfma(0, 1)); a(p_mfma(1, 0))
    a("s_nop 1")
    for m in range(4): w_cvt(a, m)
    for odd in range(2):
        u, r = act_regs(0, odd)
        for h in range(2): a(act_addr(TT + 2 * odd + h, u + h))
        for h in range(2): a(act_read(r + h, TT + 2 * odd + h))
    a(f"s_waitcnt vmcnt({D-1})")
    st('first row')
    a(t_mfma(0, 0)); a(t_mfma(0, 1))
    body(a, opt, True)
    for q in range(0, 64, 4):
        a(f"TO_B_{q}:")
        for k in range(8):
            a(f"buffer_load_dwordx4 {vr(WMIX+4*k,4)}, v{V_L16}, {sr(S_WS,4)}, s{S_WM + k // 4} offen offset:{(k%4)*1024} sc1")
        if q: a(f"s_branch B_{q}")
        else: a("s_branch B_0")
    body(a, opt, False)
    a(f"""MAIN_DONE:
    s_waitcnt vmcnt(0) lgkmcnt(0)
    s_add_u32 s{S_W0}, s{S_W0}, {CAP}
    s_cmp_ge_u32 s{S_W0}, s{S_N}
    s_cbranch_scc1 ALL_DONE""")
    zero_hist(a)
    a("s_waitcnt lgkmcnt(0)\ns_barrier\ns_branch ROUND\nALL_DONE:")
    st('main done')
    if opt.stamps: a(f"s_memtime s[100:101]\ns_waitcnt lgkmcnt(0)\ns_sub_u32 s{S_ST+30}, s100, s{S_ST+30}")
    PK = XR
    for s in range(5):
        for o in range(4): a(f"v_cvt_pk_bf16_f32 v{PK+4*s+o}, v{ACC+8*s+o}, v{ACC+8*s+4+o}")
    a(f"""v_lshrrev_b32 v{T0}, 2, v{V_L16}
    v_add_u32 v{T0}, {L_AGG}, v{T0}""")
    for s in range(5):
        a(f"s_mul_i32 s{S_T}, s{S_NODE+s}, {4 * AGG_RS}\nv_add_u32 v{TP+s}, s{S_T}, v{T0}")
    a(f"""v_lshrrev_b32 v{T0+1}, 4, v{V_L16}            ; lane
    v_and_b32 v{T0+2}, 15, v{T0+1}
    v_lshrrev_b32 v{T0+3}, 4, v{T0+1}                 ; lane >> 4
    s_lshr_b32 s{S_T}, s{S_WAVE}, 2
    s_mul_i32 s{S_T+1}, s{S_T}, {80 * AGG_RS}
    s_add_u32 s{S_T+1}, s{S_T+1}, {L_AGG}
    v_mul_u32_u24 v{T0}, {AGG_RS}, v{T0+2}
    v_lshl_add_u32 v{T0}, v{T0+3}, 4, v{T0}
    v_add_u32 v{T0}, s{S_T+1}, v{T0}
    s_mul_i32 s{S_T}, s{S_T}, {20 << 18}
    s_lshl_b32 s{S_T+1}, s{S_BETA}, 10
    s_add_u32 s{S_T}, s{S_T}, s{S_T+1}
    s_and_b32 s{S_T+1}, s{S_WAVE}, 3
    s_lshl_b32 s{S_T+1}, s{S_T+1}, 8
    s_add_u32 s{S_T}, s{S_T}, s{S_T+1}
    v_lshlrev_b32 v{T0+3}, 18, v{T0+3}
    v_lshl_add_u32 v{T0+3}, v{T0+2}, 4, v{T0+3}
    v_add_u32 v{T0+3}, s{S_T}, v{T0+3}
    s_barrier""")
    st('all main done')
    for s in range(5):
        for o in range(4): a(f"ds_write_b32 v{TP+s}, v{PK+4*s+o} offset:{o*AGG_RS}")
    a("s_waitcnt lgkmcnt(0)\ns_barrier")
    st('agg in LDS')
    AF = XR
    def rd(t):
        for ks in range(4): a(f"ds_read_b128 {vr(AF+16*(t%2)+4*ks,4)}, v{T0} offset:{t*16*AGG_RS + ks*64}")
    def pack_store(t):
        d = ACC + 8 * t; p = RR + 4 * (t % 2)
        for j in range(4): a(f"v_cvt_pk_bf16_f32 v{p+j}, v{d+2*j}, v{d+2*j+1}")
        a(f"buffer_store_dwordx4 {vr(p,4)}, v{T0+3}, {sr(S_OUT,4)}, 0 offen {opt.outst}")
        if t < 4: a(f"v_add_u32 v{T0+3}, {4 << 18}, v{T0+3}")
    rd(0)
    for t in range(5):
        if t < 4: rd(t + 1)
        for ks in range(4):
            a(f"s_waitcnt lgkmcnt({(4 if t < 4 else 0) + 3 - ks})")
            for j in range(2):
                d = ACC + 8 * t + 4 * j
                a(f"v_mfma_f32_16x16x32_bf16 {vr(d,4)}, {vr(AF+16*(t%2)+4*ks,4)}, {vr(WMIX+16*j+4*ks,4)}, " + ("0" if ks == 0 else vr(d, 4)))
            if ks == 3 and t > 0: pack_store(t - 1)
    a("s_nop 7")
    pack_store(4)
    st('end')
    if opt.probe:
        a(f"""s_cmp_eq_u32 s93, 0
        s_cselect_b32 s93, s92, s93
        s_sub_u32 s93, s93, s92
        s_mul_i32 s93, s93, 4
        s_add_u32 s92, s92, s93
        s_add_u32 s92, s92, 6000
        HOLD_SPIN:
        s_memrealtime s[98:99]
        s_waitcnt lgkmcnt(0)
        s_sub_u32 s98, s98, s92
        s_cmp_lt_i32 s98, 0
        s_cbranch_scc1 HOLD_SPIN""")
    if opt.stamps:
        a("s_waitcnt vmcnt(0)")
        st('stores done 2')
        a(f"""s_lshl_b32 s10, s2, 3
        s_add_u32 s10, s10, s{S_WAVE}
        s_lshl_b32 s10, s10, 7
        s_add_u32 s10, s10, {WS_STAMP}
        v_mov_b32 v{T0}, s10
        s_sub_u32 s{S_ST+31}, s{S_END}, s{S_START}
        s_sub_u32 s{S_ST+29}, {1 << 21}, s{S_SPIN}""")
        for k in range(32): a(f"v_mov_b32 v{XR+k}, s{S_ST+k}")
        for k in range(8): a(f"buffer_store_dwordx4 {vr(XR+4*k,4)}, v{T0}, {sr(S_WS,4)}, 0 offen offset:{16*k}")
    a("END:\ns_endpgm")
    return a.text()

def generate(opt):
    here = os.path.dirname(os.path.abspath(__file__))
    out = open(here + "/header.txt").read()
    out += f"; @launch grid=(256,1,1) block=(512,1,1) lds={LDS_BYTES}\n"
    out += f'.amdgcn_target "amdgcn-amd-amdhsa--gfx950"\n.text\n.globl {KERN}\n.p2align 8\n.type {KERN},@function\n'
    out += kernel(opt)
    out += f""".section .rodata,"a"
.p2align 6
.amdhsa_kernel {KERN}
  .amdhsa_next_free_vgpr {NVGPR}
  .amdhsa_next_free_sgpr {NSGPR if opt.stamps or opt.probe else 66}
  .amdhsa_accum_offset {(NVGPR + 3) // 4 * 4}
  .amdhsa_group_segment_fixed_size 0
  .amdhsa_kernarg_size 88
  .amdhsa_user_sgpr_count 2
  .amdhsa_user_sgpr_kernarg_segment_ptr 1
  .amdhsa_system_sgpr_workgroup_id_x 1
  .amdhsa_float_denorm_mode_32 3
.end_amdhsa_kernel
"""
    return out

def options(argv):
    p = argparse.ArgumentParser()
    p.add_argument("-o", default="/code/" + NAME + ".s")
    p.add_argument("--stamps", action="store_true")
    p.add_argument("--probe", default="")
    p.add_argument("--D", type=int, default=7)
    p.add_argument("--hsplit", type=int, default=52)
    p.add_argument("--retry", default="sc1")
    p.add_argument("--rdy", type=int, default=0)
    p.add_argument("--xp", type=int, default=-1)
    p.add_argument("--ipf", type=int, default=1)
    p.add_argument("--lsplit", type=int, default=15)
    p.add_argument("--keypf", type=int, default=1)
    p.add_argument("--k1st", default="sc0 sc1")
    p.add_argument("--outst", default="sc0 sc1")
    p.add_argument("--dirmask", type=int, default=0x12)
    return p.parse_args(argv)

if __name__ == "__main__":
    opt = options(sys.argv[1:])
    RETRY = opt.retry
    open(opt.o, "w").write(generate(opt))
    if opt.stamps: open(opt.o + ".names", "w").write(repr(STAMPS))
```

```python
import sys, argparse, os

NAME = "gather_scatter__tensor_product_equiv_tfn__graph"
KERN = NAME + "_kernel"
N, E, C = 10000, 320000, 128
NP, EP = 250, 1280
WS_KEY = 0
WS_REC = 0x280000
WS_WMIX = 0x771000
WS_TAB = 0x780000
WS_RDY = WS_TAB + 256 * 2048
WS_EPOCH = WS_RDY + 256 * 1024
WS_END = WS_EPOCH + 128
WS_STAMP = 0x900000
CAP = 1472

class Asm:
    def __init__(self): self.l = []
    def __call__(self, s):
        for line in s.strip("\n").split("\n"):
            line = line.strip()
            if not line: continue
            self.l.append(line if line.endswith(":") else "    " + line)
    def text(self): return "\n".join(self.l) + "\n"

def vr(a, n=1): return f"v{a}" if n == 1 else f"v[{a}:{a+n-1}]"
def sr(a, n=1): return f"s{a}" if n == 1 else f"s[{a}:{a+n-1}]"

SCAN_STEPS = ["row_shr:1 row_mask:0xf bank_mask:0xf bound_ctrl:0", "row_shr:2 row_mask:0xf bank_mask:0xf bound_ctrl:0",
              "row_shr:4 row_mask:0xf bank_mask:0xf bound_ctrl:0", "row_shr:8 row_mask:0xf bank_mask:0xf bound_ctrl:0",
              "row_bcast:15 row_mask:0xa bank_mask:0xf", "row_bcast:31 row_mask:0xc bank_mask:0xf"]
def scan64(a, *regs):
    for c in SCAN_STEPS:
        a("s_nop 1" if len(regs) == 1 else "s_nop 0")
        for v in regs: a(f"v_add_u32_dpp v{v}, v{v}, v{v} {c}")

NSB, HS = 12, 48
L_HIST = 0; L_INV = 40 * HS; L_WT = L_INV + 256; L_CNT = L_WT + 64
L_SENT = L_WT + 128
L_UREC = L_SENT + CAP * 4
L_CG = L_UREC + CAP * 16
L_LUT = 32768
L1_HIST = L_SENT; L1_BASE = L1_HIST + 1024; L1_SREC = L1_BASE + 1024
L1_SKEY = L_LUT + 53 * 1024
assert L_CG + 128 <= L_LUT and L1_SREC + EP * 16 <= L_LUT and L1_BASE <= 4096
L_AGG = L_LUT; AGG_RS = 288
LDS_BYTES = L_LUT + 131072

V_L16 = 1
V_LEN, V_PRE, V_GID = 2, 3, 4
V_AENT, V_POS = 5, 6
V_SLOT4, V_SIG4, V_ONE = 7, 14, 15
V_FLAG = 166
T0 = 8
ACC = 16; XR = 64; TP = 96; UU = 112; RR = 128; TT = 136; WPK = 140; WTMP = 148
KEY = 164; ENT = 165; RECN = 168; EF = 172; CONST = 176; WMIX = 188
NVGPR = 220
PE, PO, CGB = CONST, CONST + 2, CONST + 4
LJ = 128
S_NODE = 4
S_X, S_WS, S_OUT = 12, 16, 20
S_BETA, S_WAVE, S_N, S_W0, S_NWIN, S_START, S_END, S_REM, S_REMB, S_OFF, S_MASK = range(24, 35)
S_SPIN = 35
S_M = 36
S_T = 42
S_K = 48
S_IN = 40
S_OD = 56
S_JOB, S_JCNT = 62, 63
S_NLO, S_NHI = 64, 65
S_WM = 10
S_L2E = 10
S_ST = 66
NSGPR = 102

STAMPS = []
RETRY = 'sc1'
def stamp(a, opt, name):
    if opt.probe == name: a("s_memrealtime s[98:99]\ns_waitcnt lgkmcnt(0)\ns_mov_b32 s93, s98")
    if not opt.stamps: return
    if name not in STAMPS: STAMPS.append(name)
    a(f"s_memrealtime s[98:99]\ns_waitcnt lgkmcnt(0)\ns_mov_b32 s{S_ST + STAMPS.index(name)}, s98")

def lut_jobs(a, tag, first, count):
    J, Ex, R, P = LJ, LJ + 8, LJ + 16, LJ + 24
    if first is not None: a(first)
    if count: a(f"s_mov_b32 s{S_JCNT}, {count}")
    a(f"""LUT_{tag}:
    s_lshl_b32 s3, s{S_JOB}, 25
    s_add_u32 s3, s3, 0x8000
    v_lshl_add_u32 v{J}, v{V_L16}, 15, s3""")
    for k in range(1, 8): a(f"v_add_u32 v{J+k}, {k << 16}, v{J}")
    for k in range(0, 8, 2): a(f"v_pk_mul_f32 {vr(Ex+k,2)}, {vr(J+k,2)}, {sr(S_L2E,2)}")
    for k in range(8): a(f"v_exp_f32 v{Ex+k}, v{Ex+k}")
    a(f"s_lshl_b32 s3, s{S_JOB}, 10")
    for k in range(0, 8, 2): a(f"v_pk_add_f32 {vr(R+k,2)}, {vr(Ex+k,2)}, 1.0 op_sel_hi:[1,0]")
    for k in range(8): a(f"v_rcp_f32 v{R+k}, v{R+k}")
    a(f"v_add_u32 v{P+8}, s3, v{V_L16}")
    for k in range(0, 8, 2): a(f"v_pk_mul_f32 {vr(J+k,2)}, {vr(J+k,2)}, {vr(R+k,2)}")
    a(f"v_add_u32 v{P+9}, 0x10000, v{P+8}")
    for k in range(0, 8, 2): a(f"v_pk_mul_f32 {vr(Ex+k,2)}, {vr(J+k,2)}, {vr(Ex+k,2)} neg_lo:[1,0] neg_hi:[1,0]")
    for k in range(4): a(f"v_cvt_pk_bf16_f32 v{P+k}, v{J+2*k}, v{J+2*k+1}")
    for k in range(4): a(f"v_cvt_pk_bf16_f32 v{P+4+k}, v{Ex+2*k}, v{Ex+2*k+1}")
    a(f"""ds_write_b128 v{P+8}, {vr(P,4)} offset:{L_LUT}
    ds_write_b128 v{P+9}, {vr(P+4,4)} offset:{L_LUT}
    s_add_u32 s{S_JOB}, s{S_JOB}, 1
    s_sub_u32 s{S_JCNT}, s{S_JCNT}, 1
    s_cmp_lg_u32 s{S_JCNT}, 0
    s_cbranch_scc1 LUT_{tag}""")

def lut_plain(a, tag, region, last=None, cont=False):
    P = LJ
    for name, first, end, bias in (("L", 1, 24, 0x20000 - 0x800080), ("H", 34, 62, 0x20000)):
        if name != region: continue
        last = last or end
        if cont: a(f"s_cmp_gt_u32 s{S_JOB}, {last}\ns_cbranch_scc1 LUTP_END_{tag}")
        else: a(f"s_add_u32 s{S_JOB}, s{S_WAVE}, {first}")
        if name == "H" and not cont:
            for k in range(4): a(f"v_mov_b32 v{P+4+k}, 0x80008000")
        a(f"""LUTP_{tag}{name}:
        s_mul_i32 s3, s{S_JOB}, {512 * 0x10001}
        s_add_u32 s3, s3, {bias & 0xffffffff}
        v_add_u32 v{P}, s3, v{P+10}
        s_lshl_b32 s3, s{S_JOB}, 10
        v_add_u32 v{P+8}, s3, v{V_L16}""")
        for k in range(1, 4): a(f"v_add_u32 v{P+k}, {k * 0x20002}, v{P}")
        a(f"v_add_u32 v{P+9}, 0x10000, v{P+8}")
        if name == "L":
            for k in range(4): a(f"v_or_b32 v{P+4+k}, 0x80008000, v{P+k}")
        a(f"""ds_write_b128 v{P+8}, {vr(P,4)} offset:{L_LUT}
        ds_write_b128 v{P+9}, {vr(P+4,4)} offset:{L_LUT}
        s_add_u32 s{S_JOB}, s{S_JOB}, {5 if name == "L" else 4}
        s_cmp_le_u32 s{S_JOB}, {last}
        s_cbranch_scc1 LUTP_{tag}{name}
        LUTP_END_{tag}:""")

def flag_store(a, base):
    a(f"""s_lshl_b32 s3, s2, 10
    s_add_u32 s3, s3, {base}
    v_lshl_add_u32 v{T0+2}, v{V_L16}, 3, s3
    v_mov_b32 v{T0+4}, s{S_NLO}
    v_mov_b32 v{T0+5}, s{S_NHI}
    s_mov_b64 exec, 0xff
    global_store_dwordx2 v{T0+2}, {vr(T0+4,2)}, {sr(S_WS,2)} sc0 sc1
    s_mov_b64 exec, -1""")

def poll_issue(a, dst, addr, soff):
    a(f"buffer_load_dwordx2 {vr(dst,2)}, v{addr}, {sr(S_WS,4)}, {soff} offen sc1")
def poll_check(a, tag, dst, addr, soff, hi, pre=""):
    a(f"""POLL_{tag}:
    s_waitcnt vmcnt(0)
    {pre}
    v_cmp_ne_u32 vcc, s{S_NLO}, v{dst + 1 if pre else dst}
    v_cmp_ne_u32 {sr(S_T,2)}, s{S_NHI}, v{hi}
    s_or_b64 vcc, vcc, {sr(S_T,2)}
    s_and_b64 exec, exec, vcc
    s_cbranch_execz POLLED_{tag}
    s_sub_u32 s{S_SPIN}, s{S_SPIN}, 1
    s_cbranch_scc1 END""")
    if RETRY == "atomic":
        a(f"""v_mov_b32 v{dst}, 0
        v_mov_b32 v{dst+1}, 0
        buffer_atomic_or_x2 {vr(dst,2)}, v{addr}, {sr(S_WS,4)}, {soff} offen sc0""")
    else: a(f"buffer_load_dwordx2 {vr(dst,2)}, v{addr}, {sr(S_WS,4)}, {soff} offen {RETRY}")
    a(f"""s_branch POLL_{tag}
    POLLED_{tag}:
    s_mov_b64 exec, -1""")

def load_epoch(a):
    a(f"""s_add_u32 s4, s{S_WS}, {WS_EPOCH}
    s_addc_u32 s5, s{S_WS+1}, 0
    s_load_dwordx2 {sr(S_NLO,2)}, s[4:5], 0""")
def make_tag(a):
    a(f"""s_add_u32 s{S_NLO}, s{S_NLO}, 1
    s_and_b32 s{S_NHI}, s{S_NHI}, 0x3ff""")

def scan256(a, H_, O_):
    a(f"""v_add_u32 v{T0+2}, v{H_}, v{H_+1}
    v_add3_u32 v{T0+2}, v{T0+2}, v{H_+2}, v{H_+3}
    v_mov_b32 v{T0+3}, v{T0+2}""")
    scan64(a, T0 + 3)
    a(f"""v_sub_u32 v{O_}, v{T0+3}, v{T0+2}
    v_add_u32 v{O_+1}, v{O_}, v{H_}
    v_add_u32 v{O_+2}, v{O_+1}, v{H_+1}
    v_add_u32 v{O_+3}, v{O_+2}, v{H_+2}""")

def phase1(a, opt):
    st = lambda n: stamp(a, opt, n)
    SRC, DST, YY, EFP, WRAD, CG, WMX = S_IN + 2, S_IN + 4, S_IN + 6, S_IN + 8, S_IN + 10, S_IN + 12, S_IN + 14
    WS = sr(S_WS, 2); FL = opt.k1st
    D_, S_, Y_, F_, B_, R_, H_, O_, TB = 64, 68, 72, 80, 88, 92, 96, 100, 108
    CT = WMIX
    def const_issue():
        a(f"v_lshrrev_b32 v{CT+5}, 2, v{V_L16}")
        for k in range(4): a(f"global_load_dword v{CT+k}, v{CT+5}, {sr(WRAD,2)} offset:{k*256}")
        a(f"v_and_b32 v{CT+5}, 0x7f, v{CT+5}\nglobal_load_dword v{CT+4}, v{CT+5}, {sr(CG,2)}")
    def const_finish():
        a(f"""ds_write_b32 v{CT+5}, v{CT+4} offset:{L_CG}
        v_lshrrev_b32 v{CT+5}, 3, v{V_L16}
        v_and_b32 v{CT+5}, 24, v{CT+5}
        s_mov_b32 s4, 0x05040100
        s_mov_b32 s5, 0x07060302""")
        for i in range(4): a(f"ds_read_b64_tr_b16 {vr(CGB+2*i,2)}, v{CT+5} offset:{L_CG + 32*i}")
        for u in range(2):
            a(f"v_perm_b32 v{PE+u}, v{CT+1+2*u}, v{CT+2*u}, s4\nv_perm_b32 v{PO+u}, v{CT+1+2*u}, v{CT+2*u}, s5")
    def rec_stores(tag, first, count):
        a(f"""s_cmp_ge_u32 s2, {NP}
        s_cbranch_scc1 NO_RECS_{tag}
        s_mul_i32 s3, s2, {EP * 16}
        s_add_u32 s3, s3, {WS_REC + first * 1024}
        v_add_u32 v{T0+1}, s3, v{V_L16}""")
        for k in range(count): a(f"ds_read_b128 {vr(84+4*k,4)}, v{V_L16} offset:{L1_SREC + (first + k) * 1024}")
        for k in range(count):
            if k == 4: a(f"v_add_u32 v{T0+1}, 4096, v{T0+1}")
            a(f"s_waitcnt lgkmcnt({count-1-k})\nglobal_store_dwordx4 v{T0+1}, {vr(84+4*k,4)}, {WS} offset:{(1024*k) % 4096} {FL}")
        a(f"NO_RECS_{tag}:")
    def key_stores(first, count):
        a(f"""s_mul_i32 s3, s2, {EP * 8}
        s_add_u32 s3, s3, {WS_KEY + first * 1024}
        v_add_u32 v{T0+1}, s3, v{V_L16}
        v_add_u32 v{T0+2}, {L1_SKEY + first * 1024}, v{V_L16}
        s_barrier""")
        for k in range(count): a(f"ds_read_b128 {vr(64+4*k,4)}, v{T0+2} offset:{1024*k}")
        for k in range(count):
            a(f"s_waitcnt lgkmcnt({count-1-k})\nglobal_store_dwordx4 v{T0+1}, {vr(64+4*k,4)}, {WS} offset:{1024*k} {FL}")
        a("s_barrier")
    a(f"""s_cmp_ge_u32 s{S_WAVE}, 5
    s_cbranch_scc1 HELP
    v_mul_u32_u24 v{LJ+10}, 0x8000, v{V_L16}
    v_lshrrev_b32 v{T0+2}, 1, v{V_L16}
    v_add_u32 v{LJ+10}, v{LJ+10}, v{T0+2}           ; lane * 8 * 0x10001
    s_cmp_ge_u32 s2, {NP}
    s_cbranch_scc1 AUX
    s_mul_i32 s3, s2, {EP * 4}
    v_lshl_add_u32 v{T0}, v0, 4, s3
    v_lshlrev_b32 v{T0+1}, 1, v{T0}
    s_mov_b32 s9, {L1_SKEY}
    s_setprio 1
    s_waitcnt lgkmcnt(0)""")
    st('kernargs')
    def load_yf():
        a(f"""global_load_dwordx4 {vr(Y_,4)}, v{T0+1}, {sr(YY,2)}
        global_load_dwordx4 {vr(Y_+4,4)}, v{T0+1}, {sr(YY,2)} offset:16
        global_load_dwordx4 {vr(F_,4)}, v{T0+1}, {sr(EFP,2)}
        global_load_dwordx4 {vr(F_+4,4)}, v{T0+1}, {sr(EFP,2)} offset:16""")
    a(f"""global_load_dwordx4 {vr(D_,4)}, v{T0}, {sr(DST,2)}
    global_load_dwordx4 {vr(S_,4)}, v{T0}, {sr(SRC,2)}""")
    const_issue()
    if not opt.lsplit: load_yf()
    load_epoch(a)
    a("s_barrier")
    if opt.lsplit:
        lut_plain(a, "W0", "L", last=opt.lsplit)
        load_yf()
        lut_plain(a, "W", "L", cont=True)
    else: lut_plain(a, "W", "L")
    a("s_waitcnt lgkmcnt(0)")
    make_tag(a)
    for k in range(4): a(f"v_mov_b32 v{TB+2*k+1}, s{S_NLO}")
    st('jobs A')
    a("s_waitcnt vmcnt(10)")
    st('dst arrived')
    for k in range(4):
        a(f"""v_and_b32 v{B_+k}, 0xff, v{D_+k}
              v_lshlrev_b32 v{B_+k}, 2, v{B_+k}
              ds_add_rtn_u32 v{R_+k}, v{B_+k}, v{V_ONE} offset:{L1_HIST}""")
    a("s_waitcnt vmcnt(9)")
    for k in range(4):
        a(f"""v_lshrrev_b32 v{D_+k}, 8, v{D_+k}
              v_lshl_or_b32 v{TB+2*k}, v{S_+k}, 10, v{D_+k}""")
    a(f"""s_waitcnt lgkmcnt(0)
    s_barrier
    ds_read_b128 {vr(H_,4)}, v{V_L16} offset:{L1_HIST}
    s_waitcnt lgkmcnt(0)""")
    scan256(a, H_, O_)
    a(f"ds_write_b128 v{V_L16}, {vr(O_,4)} offset:{L1_BASE}")
    for k in range(4): a(f"ds_read_b32 v{H_+k}, v{B_+k} offset:{L1_BASE}")
    for k in range(4):
        a(f"""s_waitcnt lgkmcnt(3)
              v_add_u32 v{R_+k}, v{R_+k}, v{H_+k}
              v_lshl_add_u32 v{B_+k}, v{R_+k}, 3, s9
              ds_write_b64 v{B_+k}, {vr(TB+2*k,2)}""")
    for k in range(4):
        a(f"v_lshlrev_b32 v{R_+k}, 4, v{R_+k}\nv_add_u32 v{R_+k}, {L1_SREC}, v{R_+k}")
    a("s_waitcnt lgkmcnt(0)\ns_barrier")
    st('keys binned')
    a("s_waitcnt vmcnt(0)")
    for k in range(4):
        a(f"ds_write2_b64 v{R_+k}, {vr(Y_+2*k,2)}, {vr(F_+2*k,2)} offset0:0 offset1:1")
    st('recs binned')
    const_finish()
    a("s_setprio 0\ns_branch BINNED")
    a(f"""AUX:
    v_lshrrev_b32 v{T0}, 4, v{V_L16}                ; lane
    s_waitcnt lgkmcnt(0)""")
    load_epoch(a)
    const_issue()
    a(f"""s_waitcnt lgkmcnt(0)
    s_cmp_ge_u32 s2, {NP + 4}
    s_cbranch_scc1 AUX_IDLE
    s_cmp_ge_u32 s{S_WAVE}, 4
    s_cbranch_scc1 AUX_IDLE
    s_sub_u32 s4, s2, {NP}
    s_lshl_b32 s5, s{S_WAVE}, 13
    s_lshl_b32 s6, s4, 6
    s_add_u32 s5, s5, s6
    v_lshrrev_b32 v{T0+1}, 4, v{T0}
    v_lshlrev_b32 v{T0+1}, 11, v{T0+1}
    v_and_b32 v{T0+2}, 15, v{T0}
    v_lshl_add_u32 v{T0+1}, v{T0+2}, 2, v{T0+1}
    v_add_u32 v{T0+1}, s5, v{T0+1}
    s_lshl_b32 s5, s4, 13
    s_lshl_b32 s6, s{S_WAVE}, 10
    s_add_u32 s5, s5, s6
    s_add_u32 s5, s5, {WS_WMIX}
    v_add_u32 v{T0+2}, s5, v{V_L16}
    s_mov_b32 s4, 0x05040100
    s_mov_b32 s5, 0x07060302""")
    for t in range(8): a(f"global_load_dword v{64+t}, v{T0+1}, {sr(WMX,2)} offset:{t*256}")
    a("s_barrier")
    lut_plain(a, "X", "L")
    a("s_waitcnt vmcnt(0)")
    for u in range(4):
        a(f"v_perm_b32 v{72+u}, v{65+2*u}, v{64+2*u}, s4\nv_perm_b32 v{76+u}, v{65+2*u}, v{64+2*u}, s5")
    a(f"""global_store_dwordx4 v{T0+2}, v[72:75], {WS} {FL}
    v_add_u32 v{T0+2}, 4096, v{T0+2}
    global_store_dwordx4 v{T0+2}, v[76:79], {WS} {FL}
    s_branch AUX_DONE
AUX_IDLE:
    s_barrier""")
    lut_plain(a, "Z", "L")
    a("AUX_DONE:")
    make_tag(a)
    a("""s_waitcnt lgkmcnt(0)
    s_barrier
    s_barrier
    s_waitcnt vmcnt(0)""")
    const_finish()
    a("s_branch BINNED")
    a("HELP:\ns_waitcnt lgkmcnt(0)")
    if opt.xp >= 0:
        a(f"""s_mul_i32 s3, s2, 10240
        s_add_u32 s3, s3, {opt.xp * 2540000 // 128 * 128}
        s_sub_u32 s4, s{S_WAVE}, 5
        s_mul_i32 s4, s4, 3072
        s_add_u32 s3, s3, s4""")
        for k in range(3): a(f"buffer_load_dwordx4 v[64:67], v{V_L16}, {sr(S_X,4)}, s3 offen offset:{1024*k}")
        a("s_waitcnt vmcnt(0)")
        st('xp')
    load_epoch(a)
    const_issue()
    a(f"""s_barrier
    s_cmp_lg_u32 s{S_WAVE}, 7
    s_cbranch_scc1 HELP56""")
    lut_jobs(a, "7a", f"s_mov_b32 s{S_JOB}, 63", 1)
    a(f"""v_mov_b32 v{T0+2}, {0x7f80 * 2}
    v_mov_b32 v{T0+3}, 0x7f80
    ds_write_b16 v{T0+2}, v{T0+3} offset:{L_LUT}""")
    lut_jobs(a, "7b", f"s_mov_b32 s{S_JOB}, 33", 1)
    st('help jobs')
    a("s_waitcnt vmcnt(0)")
    st('help consts')
    const_finish()
    a("s_waitcnt lgkmcnt(0)")
    make_tag(a)
    a("s_barrier")
    key_stores(0, 4)
    rec_stores("7", 0, 6)
    a(f"""s_branch STORED
HELP56:
    s_cmp_eq_u32 s{S_WAVE}, 6
    s_cbranch_scc1 HELP6""")
    lut_jobs(a, "5a", f"s_mov_b32 s{S_JOB}, 0", 1)
    lut_jobs(a, "5b", f"s_mov_b32 s{S_JOB}, 25", 1)
    st('help jobs')
    a("s_waitcnt vmcnt(0)")
    st('help consts')
    const_finish()
    a("s_waitcnt lgkmcnt(0)")
    make_tag(a)
    a("s_barrier")
    key_stores(4, 3)
    rec_stores("5", 6, 7)
    a("s_branch STORED\nHELP6:")
    lut_jobs(a, "6", f"s_mov_b32 s{S_JOB}, 26", 2)
    st('help jobs')
    a("s_waitcnt vmcnt(0)")
    st('help consts')
    const_finish()
    a(f"""s_lshl_b32 s3, s2, 11
    s_add_u32 s3, s3, {WS_TAB}
    v_lshl_add_u32 v{T0}, v{V_L16}, 1, s3
    s_waitcnt lgkmcnt(0)""")
    make_tag(a)
    a(f"""s_barrier
    ds_read_b128 {vr(H_,4)}, v{V_L16} offset:{L1_HIST}
    s_waitcnt lgkmcnt(0)""")
    scan256(a, H_, O_)
    a(f"s_lshl_b32 s3, s{S_NHI}, 22")
    for k in range(4):
        a(f"""v_lshl_or_b32 v{TB+2*k}, v{H_+k}, 11, v{O_+k}
              v_or_b32 v{TB+2*k}, s3, v{TB+2*k}
              v_mov_b32 v{TB+2*k+1}, s{S_NLO}""")
    a(f"""global_store_dwordx4 v{T0}, {vr(TB,4)}, {WS} sc0 sc1
    global_store_dwordx4 v{T0}, {vr(TB+4,4)}, {WS} offset:16 sc0 sc1""")
    st('table published')
    key_stores(7, 3)
    rec_stores("6", 13, 7)
    a(f"""STORED:
    v_mov_b32 v{V_LEN}, 0
    s_branch TAB_DONE
BINNED:
    v_mov_b32 v{V_LEN}, 0
    s_cmp_eq_u32 s{S_WAVE}, 4
    s_cbranch_scc0 POLLER
    s_waitcnt lgkmcnt(0)
    s_barrier""")
    lut_jobs(a, "4", f"s_mov_b32 s{S_JOB}, 31", 2)
    a("s_branch TAB_DONE\nPOLLER:")
    lut_plain(a, "U", "H", last=opt.hsplit)
    poll_issue(a, V_LEN, V_POS, 0)
    a("s_waitcnt lgkmcnt(0)\ns_barrier")
    st('tab issued')
    lut_plain(a, "V", "H", cont=True)
    poll_check(a, "TAB", V_LEN, V_POS, 0, T0 + 3, f"v_lshrrev_b32 v{T0+3}, 22, v{V_LEN}")
    st('tab arrived')
    a("TAB_DONE:")

def mfma4(d, a_, b, c, blk=None):
    cc = "0" if c is None else vr(c, 4)
    return f"v_mfma_f32_4x4x4_16b_bf16 {vr(d,4)}, {vr(a_,2)}, {vr(b,2)}, {cc}" + ("" if blk is None else f" cbsz:4 abid:{blk}")
def p_mfma(g, odd):
    return mfma4(UU + 8 * (g % 2) + 4 * odd, EF, PO if odd else PE, None, g % 16)
def t_mfma(e, odd):
    return mfma4(TP + 8 * (e % 2) + 4 * odd, WPK + 2 * (e % 4), XR + 4 * (e % 8) + 2 * odd, None, (e % 64) // 4)
def act_regs(eb, odd):
    return UU + 8 * ((eb // 4) % 2) + 4 * odd + eb % 4, RR + 4 * ((eb // 2) % 2) + 2 * odd
def act_addr(t, u):
    return f"v_lshlrev_b32_sdwa v{t}, v{V_ONE}, v{u} dst_sel:DWORD dst_unused:UNUSED_PAD src0_sel:DWORD src1_sel:WORD_1"
def act_read(r, t): return f"ds_read_u16_d16_hi v{r}, v{t} offset:{L_LUT}"
def fma4(a, q):
    h = q % 2
    a(f"s_set_gpr_idx_on s{S_K + q % 16}, 0xc")
    for odd in range(2):
        r = RR + 4 * ((q // 2) % 2) + 2 * odd
        for o in (0, 2):
            acc = ACC + 4 * odd + o; tp = TP + 8 * (q % 2) + 4 * odd + o
            a(f"v_pk_fma_f32 {vr(acc,2)}, {vr(r,2)}, {vr(tp,2)}, {vr(acc,2)} op_sel:[{h},0,0] op_sel_hi:[{h},1,1]")
    a("s_set_gpr_idx_off")
def meta_read_entry(a): a(f"ds_read_b32 v{ENT}, v{V_AENT}")
def meta_fix_entry(a, rec=True):
    a(f"""v_cmp_gt_u32 vcc, s{S_END}, v{V_POS}
          v_add_u32 v{V_POS}, 64, v{V_POS}
          v_add_u32 v{V_AENT}, 256, v{V_AENT}
          v_cndmask_b32 v{ENT}, 40, v{ENT}, vcc
          v_lshrrev_b32 v{T0}, 21, v{ENT}
          v_lshlrev_b32 v{T0}, 4, v{T0}
          v_lshlrev_b32 v{T0+1}, 3, v{ENT}""")
    if rec: meta_read_rec(a)
    a(f"""v_and_b32 v{T0+1}, 0xfffc00, v{T0+1}
          v_and_or_b32 v{ENT}, v{ENT}, 56, v{T0+1}""")
def meta_read_rec(a): a(f"ds_read_b128 {vr(RECN,4)}, v{T0} offset:{L_UREC}")
def w_mfma(i): return mfma4(WTMP + 4 * i, RECN, CGB + 2 * i, None)
def w_cvt(a, m):
    a(f"""v_cvt_pk_bf16_f32 v{WPK+2*m}, v{WTMP+m}, v{WTMP+4+m}
          v_cvt_pk_bf16_f32 v{WPK+2*m+1}, v{WTMP+8+m}, v{WTMP+12+m}""")

def body(a, opt, loads):
    D = opt.D; tag = "A" if loads else "B"
    for q in range(64):
        if q % 4 == 0:
            a(f"{tag}_{q}:")
            if loads: a(f"s_sub_u32 s{S_REM}, s{S_REM}, 4\ns_cbranch_scc1 TO_B_{q}")
            else:     a(f"s_sub_u32 s{S_REMB}, s{S_REMB}, 4\ns_cbranch_scc1 MAIN_DONE")
        eb = q + 2 - q % 2; odd = q % 2
        u, r = act_regs(eb, odd); t = TT + 2 * odd
        g, ur = (q + 6) // 4, (q + 6) % 4
        if ur % 2 == 0: a(p_mfma(g, ur // 2))
        elif 40 <= q < 48: a(w_mfma((q - 40) // 2))
        a(act_addr(t, u))
        a(f"s_waitcnt vmcnt({D - 2 if loads else 8 + max(0, D - (6 if D == 8 else 2) - q % 4)})")
        a(t_mfma(q + 1, 0))
        if loads: a(f"v_readlane_b32 s{S_K + (q + D) % 16}, v{KEY if q + D < 64 else ENT}, {(q + D) % 64}")
        else:     a("s_nop 0")
        a(t_mfma(q + 1, 1))
        a(act_addr(t + 1, u + 1))
        a(act_read(r, t)); a(act_read(r + 1, t + 1))
        if q >= 60: w_cvt(a, q - 60)
        if loads:
            a(f"s_and_b32 s{S_OFF}, s{S_K + (q + D) % 16}, s{S_MASK}")
            a(f"buffer_load_dwordx4 {vr(XR + 4 * ((q + D) % 8), 4)}, v{V_L16}, {sr(S_X,4)}, s{S_OFF} offen")
        if q % 2 == 0: a("s_waitcnt lgkmcnt(2)")
        fma4(a, q)
        if q == 8: meta_read_entry(a)
        if q == 12: meta_fix_entry(a)
        if q == 57: a(f"v_mov_b32 v{EF}, v{RECN+2}\nv_mov_b32 v{EF+1}, v{RECN+3}\ns_nop 1")
        if q == 63: a(f"v_mov_b32 v{KEY}, v{ENT}")
    if opt.stamps and loads:
        STAMPS.extend(("batch 1", "batch 2")); k = S_ST + len(STAMPS) - 2
        a(f"""s_memrealtime s[98:99]
        s_waitcnt lgkmcnt(0)
        s_cmp_eq_u32 s{k}, 0
        s_cselect_b32 s99, 0, s98
        s_cselect_b32 s{k}, s98, s{k}
        s_cmp_eq_u32 s{k+1}, 0
        s_cselect_b32 s{k+1}, s99, s{k+1}""")
    if opt.probe == "batch 1" and loads:
        a("s_memrealtime s[98:99]\ns_waitcnt lgkmcnt(0)\ns_cmp_eq_u32 s93, 0\ns_cselect_b32 s93, s98, s93")
    a(f"s_branch {tag}_0")

def x_touch(a, opt):
    NA, NB = opt.xa, opt.xb
    a(f"""s_cmp_lg_u32 s{S_W0}, 0
    s_cbranch_scc1 NO_X_TOUCH
    s_lshr_b32 s4, s2, 3
    s_lshl_b32 s4, s4, 3
    s_add_u32 s4, s4, s{S_WAVE}
    s_mul_i32 s4, s4, {NA * 128}
    s_lshl_b32 s5, s2, 3
    s_add_u32 s5, s5, s{S_WAVE}
    s_mul_i32 s5, s5, {NB * 128}
    s_add_u32 s5, s5, {256 * NA * 128 - NA * 128}
    v_lshlrev_b32 v{TT+2}, 3, v{V_L16}
    v_min_u32 v{TT+2}, {(NA + NB - 1) * 128}, v{TT+2}
    v_cmp_gt_u32 vcc, {NA * 128}, v{TT+2}
    v_mov_b32 v{TT+3}, s5
    v_mov_b32 v{V_FLAG+1}, s4
    v_cndmask_b32 v{TT+3}, v{TT+3}, v{V_FLAG+1}, vcc
    v_add_u32 v{TT+2}, v{TT+2}, v{TT+3}
    buffer_load_dword v{V_FLAG+1}, v{TT+2}, {sr(S_X,4)}, 0 offen
    NO_X_TOUCH:""")

def zero_hist(a):
    a(f"""v_lshlrev_b32 v{T0+3}, 2, v0
    v_mov_b32 v{T0+4}, 0
    v_cmp_gt_u32 vcc, {40 * HS // 4}, v0
    s_and_saveexec_b64 {sr(S_T,2)}, vcc
    ds_write_b32 v{T0+3}, v{T0+4} offset:{L_HIST}
    s_mov_b64 exec, {sr(S_T,2)}""")

def kernel(opt):
    a = Asm(); D = opt.D
    st = lambda n: stamp(a, opt, n)
    a(f"""{KERN}:
    s_cmp_ge_u32 s2, 256
    s_cbranch_scc1 END""")
    if opt.probe: a("s_mov_b32 s93, 0\ns_memrealtime s[98:99]\ns_waitcnt lgkmcnt(0)\ns_mov_b32 s92, s98")
    if opt.stamps:
        for k in range(32): a(f"s_mov_b32 s{S_ST+k}, 0")
    st('start')
    a(f"""s_load_dwordx16 {sr(S_IN,16)}, s[0:1], 0
    s_load_dwordx4 {sr(S_OD,4)}, s[0:1], 64
    s_load_dwordx2 {sr(S_WS,2)}, s[0:1], 80
    s_load_dwordx2 {sr(S_X,2)}, s[0:1], 0
    s_load_dwordx2 {sr(S_OUT,2)}, s[0:1], 64
    s_and_b32 s4, s2, 7
    s_lshl_b32 s4, s4, 5
    s_lshr_b32 s5, s2, 3
    s_or_b32 s{S_BETA}, s4, s5
    v_lshrrev_b32 v{T0}, 6, v0
    v_and_b32 v{T0+1}, 63, v0
    v_lshlrev_b32 v{V_L16}, 4, v{T0+1}
    v_readfirstlane_b32 s{S_WAVE}, v{T0}""")
    if opt.ipf == 2:
        a(f"""s_getpc_b64 s[6:7]
        CODE_HERE:
        v_lshlrev_b32 v{T0+2}, 7, v0
        v_subrev_u32 v{T0+2}, {5 * 8192}, v{T0+2}
        v_add_u32 v{T0+3}, {3 * 8192}, v{T0+2}
        v_min_u32 v{T0+3}, END-CODE_HERE, v{T0+3}
        s_cmp_lt_u32 s{S_WAVE}, 5
        s_cbranch_scc1 NO_CODE_TOUCH
        global_load_dword v{V_FLAG+1}, v{T0+2}, s[6:7]
        global_load_dword v{V_FLAG+1}, v{T0+3}, s[6:7]
        NO_CODE_TOUCH:""")
    if opt.ipf == 1:
        a(f"""s_getpc_b64 s[6:7]
        CODE_HERE:
        s_lshr_b32 s4, s2, 3
        s_lshl_b32 s4, s4, 10
        v_and_b32 v{T0+2}, 7, v0
        v_lshl_add_u32 v{T0+2}, v{T0+2}, 7, s4
        v_min_u32 v{T0+2}, END-CODE_HERE, v{T0+2}
        s_cmp_lg_u32 s{S_WAVE}, 7
        s_cbranch_scc1 NO_CODE_TOUCH
        global_load_dword v{V_FLAG+1}, v{T0+2}, s[6:7]
        NO_CODE_TOUCH:""")
    a(f"""v_lshlrev_b32 v{T0+3}, 3, v0
    v_mov_b32 v{T0+4}, 0
    v_mov_b32 v{T0+5}, 0
    ds_write_b64 v{T0+3}, {vr(T0+4,2)}
    v_mov_b32 v{V_ONE}, 1
    s_mov_b32 s{S_X+2}, {N * 1024}
    s_mov_b32 s{S_X+3}, 0x20000
    s_mov_b32 s{S_WS+2}, {WS_END if not opt.stamps else WS_STAMP + 0x80000}
    s_mov_b32 s{S_WS+3}, 0x20000
    s_mov_b32 s{S_OUT+2}, {N * 1024}
    s_mov_b32 s{S_OUT+3}, 0x20000
    s_mov_b32 s{S_MASK}, 0xfffffc00
    s_mov_b32 s{S_W0}, 0
    s_mov_b32 s{S_L2E}, 0xbfb8aa3b
    s_mov_b32 s{S_L2E+1}, 0xbfb8aa3b
    v_mul_u32_u24 v{V_SIG4}, 52, v{T0+1}
    v_lshrrev_b32 v{V_SIG4}, 8, v{V_SIG4}            ; lane / 5
    v_mul_u32_u24 v{V_SLOT4}, 5, v{V_SIG4}
    v_sub_u32 v{V_SLOT4}, v{T0+1}, v{V_SLOT4}        ; lane % 5
    v_lshlrev_b32 v{V_SIG4}, 2, v{V_SIG4}
    v_lshlrev_b32 v{V_SLOT4}, 2, v{V_SLOT4}
    s_mov_b32 s{S_SPIN}, {1 << 21}
    v_and_b32 v{V_GID}, 0xff, v0
    s_lshl_b32 s3, s{S_BETA}, 3
    s_add_u32 s3, s3, {WS_TAB}
    v_lshl_add_u32 v{V_POS}, v{V_GID}, 11, s3
    s_and_b32 s3, s2, 7
    s_lshl_b32 s3, s3, 7
    s_add_u32 s3, s3, {WS_RDY}
    s_lshl_b32 s4, s{S_WAVE}, 15
    s_add_u32 s3, s3, s4
    v_and_b32 v{V_FLAG}, 31, v0
    v_lshl_add_u32 v{V_FLAG}, v{V_FLAG}, 10, s3      ; flag of producer 32 wave + lane % 32
    v_mul_u32_u24 v{V_GID}, {EP}, v{V_GID}""")
    for k in range(48): a(f"v_mov_b32 v{ACC+k}, 0")
    phase1(a, opt)
    a(f"""v_and_b32 v{T0+5}, 0x7ff, v{V_LEN}
    v_bfe_u32 v{V_LEN}, v{V_LEN}, 11, 11
    v_lshrrev_b32 v{T0+1}, 4, v{V_L16}                ; lane
    v_add_u32 v{V_GID}, v{V_GID}, v{T0+5}
    v_mov_b32 v{V_PRE}, v{V_LEN}""")
    if opt.keypf:
        a(f"""s_cmp_ge_u32 s{S_WAVE}, 4
        s_cbranch_scc1 NO_KEY_TOUCH
        v_lshlrev_b32 v{T0+2}, 3, v{V_GID}
        buffer_load_dword v{V_FLAG+1}, v{T0+2}, {sr(S_WS,4)}, 0 offen sc1""")
        if opt.keypf > 1:
            a(f"""v_lshl_add_u32 v{T0+2}, v{V_LEN}, 3, v{T0+2}
            v_subrev_u32 v{T0+2}, 8, v{T0+2}
            buffer_load_dword v{V_FLAG+1}, v{T0+2}, {sr(S_WS,4)}, 0 offen sc1""")
        a("NO_KEY_TOUCH:")
    scan64(a, V_PRE)
    a(f"""s_nop 0
    v_readlane_b32 s{S_T+2}, v{V_PRE}, 63
    v_sub_u32 v{V_PRE}, v{V_PRE}, v{V_LEN}
    v_cmp_lt_u32 vcc, s{S_WAVE}, v{T0+1}
    v_cmp_gt_u32 {sr(S_T,2)}, 9, v{T0+1}
    v_lshlrev_b32 v{T0+2}, 2, v{T0+1}
    v_mov_b32 v{T0+3}, s{S_T+2}
    s_and_b64 vcc, vcc, {sr(S_T,2)}
    s_and_saveexec_b64 {sr(S_T,2)}, vcc
    ds_add_u32 v{T0+2}, v{T0+3} offset:{L_WT}
    s_mov_b64 exec, {sr(S_T,2)}
    s_lshl_b32 s3, s{S_WAVE}, 2
    v_mov_b32 v{T0+2}, s3
    v_mov_b32 v{T0+3}, 32
    s_waitcnt lgkmcnt(0)
    s_barrier
    ds_read_b32 v{T0}, v{T0+2} offset:{L_WT}
    ds_read_b32 v{T0+3}, v{T0+3} offset:{L_WT}
    s_cmp_lg_u32 s{S_WAVE}, 4
    s_cbranch_scc1 EPOCH_DONE""")
    a(f"""s_cmp_lg_u32 s2, 0
    s_cbranch_scc1 EPOCH_DONE
    v_mov_b32 v{T0+4}, s{S_NLO}
    v_mov_b32 v{T0+2}, {WS_EPOCH}
    s_mov_b64 exec, 1
    global_store_dword v{T0+2}, v{T0+4}, {sr(S_WS,2)} sc0 sc1
    s_mov_b64 exec, -1
EPOCH_DONE:
    s_waitcnt lgkmcnt(0)
    v_add_u32 v{V_PRE}, v{V_PRE}, v{T0}
    v_readfirstlane_b32 s{S_N}, v{T0+3}""")
    st('prefix done')
    a(f"s_cmp_lt_u32 s{S_WAVE}, 5\ns_cbranch_scc1 RECS_FLAGGED")
    a(f"""v_mov_b32 v{T0+2}, {L_CNT}
    s_waitcnt vmcnt(0)
    s_mov_b64 exec, 1
    ds_add_rtn_u32 v{T0+2}, v{T0+2}, v{V_ONE}
    s_mov_b64 exec, -1
    s_waitcnt lgkmcnt(0)
    v_readfirstlane_b32 s3, v{T0+2}
    s_cmp_lg_u32 s3, 2
    s_cbranch_scc1 RECS_FLAGGED""")
    flag_store(a, WS_RDY)
    st('recs flagged')
    a("RECS_FLAGGED:")
    a(f"""ROUND:
    v_mov_b32 v{T0}, 0
    v_subrev_u32 v{T0+1}, s{S_W0}, v{V_PRE}
    v_mov_b32 v{T0+2}, v{V_GID}
    s_mov_b32 s3, {CAP}
    s_cmp_gt_u32 s{S_N}, {CAP}
    s_cbranch_scc1 EXPAND
    v_lshlrev_b32 v{T0+3}, 2, v{V_PRE}""")
    for j in range(16):
        a(f"v_cmpx_lt_u32 vcc, {j}, v{V_LEN}")
        if j % 2 == 0 and j >= 6: a("s_cbranch_execz EXPAND_DONE")
        a(f"ds_write_b32 v{T0+3}, v{T0+2} offset:{L_SENT + 4*j}\nv_add_u32 v{T0+2}, 1, v{T0+2}")
    a(f"""v_mov_b32 v{T0}, 16
    v_add_u32 v{T0+1}, 16, v{T0+1}
EXPAND:
    v_cmp_lt_u32 vcc, v{T0}, v{V_LEN}
    s_and_b64 exec, exec, vcc
    s_cbranch_execz EXPAND_DONE
    v_cmp_gt_u32 vcc, s3, v{T0+1}
    v_lshlrev_b32 v{T0+3}, 2, v{T0+1}
    s_and_saveexec_b64 {sr(S_T,2)}, vcc
    ds_write_b32 v{T0+3}, v{T0+2} offset:{L_SENT}
    s_mov_b64 exec, {sr(S_T,2)}
    v_add_u32 v{T0}, 1, v{T0}
    v_add_u32 v{T0+1}, 1, v{T0+1}
    v_add_u32 v{T0+2}, 1, v{T0+2}
    s_branch EXPAND
EXPAND_DONE:
    s_mov_b64 exec, -1
    s_sub_u32 s{S_NWIN}, s{S_N}, s{S_W0}
    s_min_u32 s{S_NWIN}, s{S_NWIN}, {CAP}
    v_lshlrev_b32 v{T0}, 2, v0""")
    for i in range(3):
        a(f"""v_add_u32 v{T0+1}, {512*i}, v0
              v_cmp_gt_u32 {sr(S_M+2*i,2)}, s{S_NWIN}, v{T0+1}""")
    st('list built')
    a("s_waitcnt lgkmcnt(0)\ns_barrier")
    st('list barrier')
    G = XR
    KP = TP
    for i in range(3): a(f"ds_read_b32 v{G+i}, v{T0} offset:{L_SENT + 2048*i}")
    a(f"""s_mov_b32 s{S_T+2}, 5033                          ; 12 * 2^32 / (10000 * 1024)
    s_waitcnt lgkmcnt(0)""")
    for i in range(3):
        a(f"v_lshlrev_b32 v{G+4+i}, 3, v{G+i}\nv_lshlrev_b32 v{G+i}, 4, v{G+i}")
    a(f"""KEY_LOAD:
    s_mov_b64 exec, {sr(S_M+4,2)}
    s_cbranch_execz SKIP3
    buffer_load_dwordx2 {vr(KP+4,2)}, v{G+6}, {sr(S_WS,4)}, 0 offen sc1
SKIP3:""")
    for i in range(2):
        a(f"s_mov_b64 exec, {sr(S_M+2*i,2)}\nbuffer_load_dwordx2 {vr(KP+2*i,2)}, v{G+4+i}, {sr(S_WS,4)}, 0 offen sc1")
    a(f"""s_mov_b64 exec, -1
    s_sub_u32 s{S_JOB}, s{S_WAVE}, 4
    s_cmp_ge_u32 s{S_JOB}, 3
    s_cbranch_scc1 NO_LAST_JOB
    s_mov_b32 s{S_L2E}, 0xbfb8aa3b
    s_mov_b32 s{S_L2E+1}, 0xbfb8aa3b""")
    lut_jobs(a, "k", f"s_add_u32 s{S_JOB}, s{S_JOB}, 28", 1)
    a("NO_LAST_JOB:\ns_waitcnt vmcnt(0)")
    for i in range(3): a(f"v_cmp_ne_u32 {sr(S_K+2*i,2)}, s{S_NLO}, v{KP+2*i+1}")
    for i in range(3): a(f"s_and_b64 {sr(S_K+2*i,2)}, {sr(S_K+2*i,2)}, {sr(S_M+2*i,2)}")
    a(f"""s_or_b64 {sr(S_K,2)}, {sr(S_K,2)}, {sr(S_K+2,2)}
    s_or_b64 {sr(S_K,2)}, {sr(S_K,2)}, {sr(S_K+4,2)}
    s_cbranch_scc0 KEYS_OK
    s_sub_u32 s{S_SPIN}, s{S_SPIN}, 1
    s_cbranch_scc0 KEY_LOAD
    s_endpgm
KEYS_OK:""")
    st('keys arrived')
    if opt.rdy == 0: poll_issue(a, TT, V_FLAG, 0)
    if opt.xwhen == 1: x_touch(a, opt)
    for i in range(3):
        a(f"""v_mul_hi_u32 v{T0+1}, s{S_T+2}, v{KP+2*i}
              v_and_b32 v{G+8+i}, 63, v{KP+2*i}
              v_mul_u32_u24 v{G+8+i}, {HS}, v{G+8+i}
              v_lshl_add_u32 v{G+8+i}, v{T0+1}, 2, v{G+8+i}""")
    for i in range(3):
        a(f"s_mov_b64 exec, {sr(S_M+2*i,2)}\nds_add_rtn_u32 v{G+12+i}, v{G+8+i}, v{V_ONE} offset:{L_HIST}")
    a("s_mov_b64 exec, -1")
    for i in range(3):
        a(f"""v_add_u32 v{T0+1}, {512*i}, v0
              v_lshlrev_b32 v{T0+1}, 21, v{T0+1}
              v_lshrrev_b32 v{G+16+i}, 10, v{KP+2*i}
              v_lshl_or_b32 v{G+16+i}, v{G+16+i}, 7, v{T0+1}""")
    H = G + 20
    a(f"""v_lshrrev_b32 v{T0}, 4, v{V_L16}              ; lane
    v_min_u32 v{T0+1}, 39, v{T0}
    v_mul_u32_u24 v{T0+1}, {HS}, v{T0+1}
    v_cmp_gt_u32 {sr(S_T+4,2)}, 40, v{T0}
    v_sub_u32 v{T0+2}, 63, v{T0}
    s_mul_i32 s10, s{S_WAVE}, 5
    s_lshl_b32 s3, s{S_WAVE}, 10
    s_add_u32 s3, s3, {L_UREC}
    s_mov_b32 s9, {WS_REC}
    s_waitcnt lgkmcnt(0)
    s_barrier""")
    st('hist done')
    if opt.rdy == 1: poll_issue(a, TT, V_FLAG, 0)
    for k in range(3): a(f"ds_read_b128 {vr(H+4*k,4)}, v{T0+1} offset:{L_HIST + 16*k}")
    a(f"""    s_waitcnt lgkmcnt(1)
    v_add3_u32 v{H}, v{H}, v{H+1}, v{H+2}
    v_add3_u32 v{H+3}, v{H+3}, v{H+4}, v{H+5}
    v_add3_u32 v{H}, v{H}, v{H+6}, v{H+7}
    s_waitcnt lgkmcnt(0)
    v_add3_u32 v{H+3}, v{H+3}, v{H+8}, v{H+9}
    v_add3_u32 v{H}, v{H}, v{H+10}, v{H+11}
    v_add_u32 v{H}, v{H}, v{H+3}
    v_lshl_or_b32 v{H+1}, v{H}, 6, v{T0+2}
    v_cndmask_b32 v{H+1}, 0, v{H+1}, {sr(S_T+4,2)}
    s_cmp_lg_u32 s{S_W0}, 0
    s_cbranch_scc1 DEALT""")
    for k in range(5):
        a(f"v_readlane_b32 s{S_NODE+k}, v{H+1}, s10")
        if k < 4: a("s_add_u32 s10, s10, 1")
    for k in range(5): a(f"v_cmp_lt_u32 {sr(S_K+2*k,2)}, s{S_NODE+k}, v{H+1}")
    for k in range(5): a(f"s_bcnt1_i32_b64 s{S_NODE+k}, {sr(S_K+2*k,2)}")
    for k in range(5): a(f"v_writelane_b32 v{T0+1}, s{S_NODE+k}, {k}")
    a(f"""s_sub_u32 s10, s10, 4
    v_add_u32 v{T0+2}, s10, v{T0}
    v_lshrrev_b32 v{T0+3}, 3, v{T0+1}
    v_and_b32 v{T0+1}, 7, v{T0+1}
    v_lshrrev_b32 v{T0+4}, v{T0+3}, {opt.dirmask}
    v_and_b32 v{T0+4}, 1, v{T0+4}
    v_mul_u32_u24 v{T0+4}, 7, v{T0+4}
    v_xor_b32 v{T0+1}, v{T0+1}, v{T0+4}               ; wave
    v_mad_u32_u24 v{T0+1}, v{T0+1}, 5, v{T0+3}
    v_lshlrev_b32 v{T0+1}, 2, v{T0+1}
    s_mov_b64 exec, 0x1f
    ds_write_b32 v{T0+1}, v{T0+2} offset:{L_INV}
    s_mov_b64 exec, -1
DEALT:
    s_lshl_b32 s11, s10, 2
    v_add_u32 v{T0+1}, s11, v{V_SLOT4}
    v_lshlrev_b32 v{T0+5}, 2, v{T0}
""")
    poll_check(a, "REC", TT, V_FLAG, 0, TT + 1)
    a(f"""v_cmp_gt_u32 {sr(S_T,2)}, 60, v{T0}
    s_waitcnt lgkmcnt(0)
    s_barrier""")
    st('dealt')
    a(f"""ds_read_b32 v{T0+1}, v{T0+1} offset:{L_INV}
    ds_read_b32 v{T0+5}, v{T0+5} offset:{L_INV}
    v_lshlrev_b32 v{T0+4}, 17, v{V_SLOT4}             ; slot << 19""")
    for i in range(2):
        a(f"""s_add_u32 m0, s3, {i*8192}
              s_mov_b64 exec, {sr(S_M+2*i,2)}
              buffer_load_dwordx4 v{G+i}, {sr(S_WS,4)}, s9 offen sc1 lds""")
    a(f"""s_add_u32 m0, s3, {2*8192}
    s_mov_b64 exec, {sr(S_M+4,2)}
    s_cbranch_execz SKIP3R
    buffer_load_dwordx4 v{G+2}, {sr(S_WS,4)}, s9 offen sc1 lds
SKIP3R:
    s_mov_b64 exec, -1""")
    if opt.xwhen == 2: x_touch(a, opt)
    a(f"""    s_waitcnt lgkmcnt(1)
    v_mul_u32_u24 v{T0+2}, {HS}, v{T0+1}
    v_add_u32 v{T0+2}, v{T0+2}, v{V_SIG4}
    ds_read_b32 v{T0+3}, v{T0+2} offset:{L_HIST}
    s_waitcnt lgkmcnt(1)
    v_lshlrev_b32 v{T0+5}, 2, v{T0+5}
    ds_bpermute_b32 v{H+2}, v{T0+5}, v{H}""")
    for k in range(5): a(f"v_readlane_b32 s{S_NODE+k}, v{T0+1}, {k}")
    a(f"""s_waitcnt lgkmcnt(0)
    v_cndmask_b32 v{T0+3}, 0, v{T0+3}, {sr(S_T,2)}
    v_cndmask_b32 v{H+2}, 0, v{H+2}, {sr(S_T+4,2)}
    v_sub_u32 v{T0+4}, v{T0+4}, v{T0+3}
    v_mov_b32 v{H+3}, v{H+2}""")
    scan64(a, T0 + 3, H + 3)
    a(f"""v_sub_u32 v{H+3}, v{H+3}, v{H+2}
    v_add_u32 v{T0+4}, v{T0+4}, v{T0+3}
    v_readlane_b32 s{S_START}, v{H+3}, s10
    v_readlane_b32 s{S_END}, v{T0+3}, 63
    s_nop 0
    v_add_u32 v{T0+4}, s{S_START}, v{T0+4}
    s_mov_b64 exec, {sr(S_T,2)}
    ds_write_b32 v{T0+2}, v{T0+4} offset:{L_HIST}
    s_mov_b64 exec, -1
    v_add_u32 v{V_POS}, s{S_START}, v{T0}
    v_lshlrev_b32 v{V_AENT}, 2, v{V_POS}
    v_add_u32 v{V_AENT}, {L_SENT}, v{V_AENT}
    s_add_u32 s10, s{S_END}, 3
    s_and_b32 s10, s10, -4
    s_min_u32 s{S_REMB}, s10, {8 if D == 8 else 4}
    s_sub_u32 s{S_REM}, s10, s{S_REMB}
    s_add_u32 s{S_END}, s{S_END}, s{S_START}""")
    a("s_waitcnt lgkmcnt(0)\ns_barrier")
    st('bases')
    for i in range(3): a(f"ds_read_b32 v{G+8+i}, v{G+8+i} offset:{L_HIST}")
    for i in range(3):
        a(f"""s_waitcnt lgkmcnt({2-i})
              v_lshrrev_b32 v{T0+1}, 16, v{G+8+i}
              v_and_b32 v{G+8+i}, 0xffff, v{G+8+i}
              v_or_b32 v{G+16+i}, v{G+16+i}, v{T0+1}
              v_add_lshl_u32 v{G+8+i}, v{G+8+i}, v{G+12+i}, 2""")
    for i in range(3):
        a(f"""s_mov_b64 exec, {sr(S_M+2*i,2)}
              ds_write_b32 v{G+8+i}, v{G+16+i} offset:{L_SENT}""")
    a("s_mov_b64 exec, -1")
    a("s_waitcnt lgkmcnt(0)")
    a("s_barrier")
    st('sorted')
    if opt.stamps: a(f"s_memtime s[100:101]\ns_waitcnt lgkmcnt(0)\ns_mov_b32 s{S_ST+30}, s100")
    meta_read_entry(a)
    a(f"""s_and_b32 s{S_WM}, s{S_WAVE}, 3
    s_lshl_b32 s{S_WM}, s{S_WM}, 13
    s_add_u32 s{S_WM}, s{S_WM}, {WS_WMIX}
    s_add_u32 s{S_WM+1}, s{S_WM}, 4096""")
    for k in range(8): a(f"v_mov_b32 v{RR+k}, 0")
    a("s_waitcnt lgkmcnt(0)")
    meta_fix_entry(a, False)
    a("s_nop 0")
    for e in range(D):
        a(f"""v_readlane_b32 s{S_K+e}, v{ENT}, {e}
              s_and_b32 s{S_OFF}, s{S_K+e}, s{S_MASK}
              buffer_load_dwordx4 {vr(XR+4*e,4)}, v{V_L16}, {sr(S_X,4)}, s{S_OFF} offen""")
    a(f"v_mov_b32 v{KEY}, v{ENT}\ns_waitcnt vmcnt({D})")
    st('recs landed')
    a("s_barrier")
    meta_read_rec(a)
    a(f"""s_waitcnt lgkmcnt(0)
    v_mov_b32 v{EF}, v{RECN+2}
    v_mov_b32 v{EF+1}, v{RECN+3}""")
    for i in range(4): a(w_mfma(i))
    a(p_mfma(0, 0)); a(p_mfma(0, 1)); a(p_mfma(1, 0))
    a("s_nop 1")
    for m in range(4): w_cvt(a, m)
    for odd in range(2):
        u, r = act_regs(0, odd)
        for h in range(2): a(act_addr(TT + 2 * odd + h, u + h))
        for h in range(2): a(act_read(r + h, TT + 2 * odd + h))
    a(f"s_waitcnt vmcnt({D-1})")
    st('first row')
    a(t_mfma(0, 0)); a(t_mfma(0, 1))
    body(a, opt, True)
    for q in range(0, 64, 4):
        a(f"TO_B_{q}:")
        for k in range(8):
            a(f"buffer_load_dwordx4 {vr(WMIX+4*k,4)}, v{V_L16}, {sr(S_WS,4)}, s{S_WM + k // 4} offen offset:{(k%4)*1024} sc1")
        if q: a(f"s_branch B_{q}")
        else: a("s_branch B_0")
    body(a, opt, False)
    a(f"""MAIN_DONE:
    s_waitcnt vmcnt(0) lgkmcnt(0)
    s_add_u32 s{S_W0}, s{S_W0}, {CAP}
    s_cmp_ge_u32 s{S_W0}, s{S_N}
    s_cbranch_scc1 ALL_DONE""")
    zero_hist(a)
    a("s_waitcnt lgkmcnt(0)\ns_barrier\ns_branch ROUND\nALL_DONE:")
    st('main done')
    if opt.stamps: a(f"s_memtime s[100:101]\ns_waitcnt lgkmcnt(0)\ns_sub_u32 s{S_ST+30}, s100, s{S_ST+30}")
    PK = XR
    for s in range(5):
        for o in range(4): a(f"v_cvt_pk_bf16_f32 v{PK+4*s+o}, v{ACC+8*s+o}, v{ACC+8*s+4+o}")
    a(f"""v_lshrrev_b32 v{T0}, 2, v{V_L16}
    v_add_u32 v{T0}, {L_AGG}, v{T0}""")
    for s in range(5):
        a(f"s_mul_i32 s{S_T}, s{S_NODE+s}, {4 * AGG_RS}\nv_add_u32 v{TP+s}, s{S_T}, v{T0}")
    a(f"""v_lshrrev_b32 v{T0+1}, 4, v{V_L16}            ; lane
    v_and_b32 v{T0+2}, 15, v{T0+1}
    v_lshrrev_b32 v{T0+3}, 4, v{T0+1}                 ; lane >> 4
    s_lshr_b32 s{S_T}, s{S_WAVE}, 2
    s_mul_i32 s{S_T+1}, s{S_T}, {80 * AGG_RS}
    s_add_u32 s{S_T+1}, s{S_T+1}, {L_AGG}
    v_mul_u32_u24 v{T0}, {AGG_RS}, v{T0+2}
    v_lshl_add_u32 v{T0}, v{T0+3}, 4, v{T0}
    v_add_u32 v{T0}, s{S_T+1}, v{T0}
    s_mul_i32 s{S_T}, s{S_T}, {20 << 18}
    s_lshl_b32 s{S_T+1}, s{S_BETA}, 10
    s_add_u32 s{S_T}, s{S_T}, s{S_T+1}
    s_and_b32 s{S_T+1}, s{S_WAVE}, 3
    s_lshl_b32 s{S_T+1}, s{S_T+1}, 8
    s_add_u32 s{S_T}, s{S_T}, s{S_T+1}
    v_lshlrev_b32 v{T0+3}, 18, v{T0+3}
    v_lshl_add_u32 v{T0+3}, v{T0+2}, 4, v{T0+3}
    v_add_u32 v{T0+3}, s{S_T}, v{T0+3}
    s_barrier""")
    st('all main done')
    for s in range(5):
        for o in range(4): a(f"ds_write_b32 v{TP+s}, v{PK+4*s+o} offset:{o*AGG_RS}")
    a("s_waitcnt lgkmcnt(0)\ns_barrier")
    st('agg in LDS')
    AF = XR
    def rd(t):
        for ks in range(4): a(f"ds_read_b128 {vr(AF+16*(t%2)+4*ks,4)}, v{T0} offset:{t*16*AGG_RS + ks*64}")
    def pack_store(t):
        d = ACC + 8 * t; p = RR + 4 * (t % 2)
        for j in range(4): a(f"v_cvt_pk_bf16_f32 v{p+j}, v{d+2*j}, v{d+2*j+1}")
        a(f"buffer_store_dwordx4 {vr(p,4)}, v{T0+3}, {sr(S_OUT,4)}, 0 offen {opt.outst}")
        if t < 4: a(f"v_add_u32 v{T0+3}, {4 << 18}, v{T0+3}")
    rd(0)
    for t in range(5):
        if t < 4: rd(t + 1)
        for ks in range(4):
            a(f"s_waitcnt lgkmcnt({(4 if t < 4 else 0) + 3 - ks})")
            for j in range(2):
                d = ACC + 8 * t + 4 * j
                a(f"v_mfma_f32_16x16x32_bf16 {vr(d,4)}, {vr(AF+16*(t%2)+4*ks,4)}, {vr(WMIX+16*j+4*ks,4)}, " + ("0" if ks == 0 else vr(d, 4)))
            if ks == 3 and t > 0: pack_store(t - 1)
    a("s_nop 7")
    pack_store(4)
    st('end')
    if opt.probe:
        a(f"""s_cmp_eq_u32 s93, 0
        s_cselect_b32 s93, s92, s93
        s_sub_u32 s93, s93, s92
        s_mul_i32 s93, s93, 4
        s_add_u32 s92, s92, s93
        s_add_u32 s92, s92, 6000
        HOLD_SPIN:
        s_memrealtime s[98:99]
        s_waitcnt lgkmcnt(0)
        s_sub_u32 s98, s98, s92
        s_cmp_lt_i32 s98, 0
        s_cbranch_scc1 HOLD_SPIN""")
    if opt.stamps:
        a("s_waitcnt vmcnt(0)")
        st('stores done 2')
        a(f"""s_lshl_b32 s10, s2, 3
        s_add_u32 s10, s10, s{S_WAVE}
        s_lshl_b32 s10, s10, 7
        s_add_u32 s10, s10, {WS_STAMP}
        v_mov_b32 v{T0}, s10
        s_sub_u32 s{S_ST+31}, s{S_END}, s{S_START}
        s_sub_u32 s{S_ST+29}, {1 << 21}, s{S_SPIN}""")
        for k in range(32): a(f"v_mov_b32 v{XR+k}, s{S_ST+k}")
        for k in range(8): a(f"buffer_store_dwordx4 {vr(XR+4*k,4)}, v{T0}, {sr(S_WS,4)}, 0 offen offset:{16*k}")
    a("END:\ns_endpgm")
    return a.text()

def generate(opt):
    here = os.path.dirname(os.path.abspath(__file__))
    out = open(here + "/header.txt").read()
    out += f"; @launch grid=(256,1,1) block=(512,1,1) lds={LDS_BYTES}\n"
    out += f'.amdgcn_target "amdgcn-amd-amdhsa--gfx950"\n.text\n.globl {KERN}\n.p2align 8\n.type {KERN},@function\n'
    out += kernel(opt)
    out += f""".section .rodata,"a"
.p2align 6
.amdhsa_kernel {KERN}
  .amdhsa_next_free_vgpr {NVGPR}
  .amdhsa_next_free_sgpr {NSGPR if opt.stamps or opt.probe else 66}
  .amdhsa_accum_offset {(NVGPR + 3) // 4 * 4}
  .amdhsa_group_segment_fixed_size 0
  .amdhsa_kernarg_size 88
  .amdhsa_user_sgpr_count 2
  .amdhsa_user_sgpr_kernarg_segment_ptr 1
  .amdhsa_system_sgpr_workgroup_id_x 1
  .amdhsa_float_denorm_mode_32 3
.end_amdhsa_kernel
"""
    return out

def options(argv):
    p = argparse.ArgumentParser()
    p.add_argument("-o", default="/code/" + NAME + ".s")
    p.add_argument("--stamps", action="store_true")
    p.add_argument("--probe", default="")
    p.add_argument("--D", type=int, default=7)
    p.add_argument("--hsplit", type=int, default=52)
    p.add_argument("--retry", default="sc1")
    p.add_argument("--rdy", type=int, default=0)
    p.add_argument("--xp", type=int, default=-1)
    p.add_argument("--xwhen", type=int, default=0)
    p.add_argument("--xa", type=int, default=32)
    p.add_argument("--xb", type=int, default=16)
    p.add_argument("--ipf", type=int, default=1)
    p.add_argument("--lsplit", type=int, default=15)
    p.add_argument("--keypf", type=int, default=1)
    p.add_argument("--k1st", default="sc0 sc1")
    p.add_argument("--outst", default="sc0 sc1")
    p.add_argument("--dirmask", type=int, default=0x12)
    return p.parse_args(argv)

if __name__ == "__main__":
    opt = options(sys.argv[1:])
    RETRY = opt.retry
    open(opt.o, "w").write(generate(opt))
    if opt.stamps: open(opt.o + ".names", "w").write(repr(STAMPS))
```

```python
import sys, argparse, os

NAME = "gather_scatter__tensor_product_equiv_tfn__graph"
KERN = NAME + "_kernel"
N, E, C = 10000, 320000, 128
NP, EP = 250, 1280
WS_KEY = 0
WS_REC = 0x280000
WS_WMIX = 0x771000
WS_TAB = 0x780000
WS_RDY = WS_TAB + 256 * 2048
WS_EPOCH = WS_RDY + 256 * 1024
WS_END = WS_EPOCH + 128
WS_STAMP = 0x900000
CAP = 1472

class Asm:
    def __init__(self): self.l = []
    def __call__(self, s):
        for line in s.strip("\n").split("\n"):
            line = line.strip()
            if not line: continue
            self.l.append(line if line.endswith(":") else "    " + line)
    def text(self): return "\n".join(self.l) + "\n"

def vr(a, n=1): return f"v{a}" if n == 1 else f"v[{a}:{a+n-1}]"
def sr(a, n=1): return f"s{a}" if n == 1 else f"s[{a}:{a+n-1}]"

SCAN_STEPS = ["row_shr:1 row_mask:0xf bank_mask:0xf bound_ctrl:0", "row_shr:2 row_mask:0xf bank_mask:0xf bound_ctrl:0",
              "row_shr:4 row_mask:0xf bank_mask:0xf bound_ctrl:0", "row_shr:8 row_mask:0xf bank_mask:0xf bound_ctrl:0",
              "row_bcast:15 row_mask:0xa bank_mask:0xf", "row_bcast:31 row_mask:0xc bank_mask:0xf"]
def scan64(a, *regs):
    for c in SCAN_STEPS:
        a("s_nop 1" if len(regs) == 1 else "s_nop 0")
        for v in regs: a(f"v_add_u32_dpp v{v}, v{v}, v{v} {c}")

NSB, HS = 12, 48
L_HIST = 0; L_INV = 40 * HS; L_WT = L_INV + 256; L_CNT = L_WT + 64
L_SENT = L_WT + 128
L_UREC = L_SENT + CAP * 4
L_CG = L_UREC + CAP * 16
L_LUT = 32768
L1_HIST = L_SENT; L1_BASE = L1_HIST + 1024; L1_SREC = L1_BASE + 1024
L1_SKEY = L_LUT + 53 * 1024
assert L_CG + 128 <= L_LUT and L1_SREC + EP * 16 <= L_LUT and L1_BASE <= 4096
L_AGG = L_LUT; AGG_RS = 288
LDS_BYTES = L_LUT + 131072

V_L16 = 1
V_LEN, V_PRE, V_GID = 2, 3, 4
V_AENT, V_POS = 5, 6
V_SLOT4, V_SIG4, V_ONE = 7, 14, 15
V_FLAG = 166
T0 = 8
ACC = 16; XR = 64; TP = 96; UU = 112; RR = 128; TT = 136; WPK = 140; WTMP = 148
KEY = 164; ENT = 165; RECN = 168; EF = 172; CONST = 176; WMIX = 188
NVGPR = 220
PE, PO, CGB = CONST, CONST + 2, CONST + 4
LJ = 128
S_NODE = 4
S_X, S_WS, S_OUT = 12, 16, 20
S_BETA, S_WAVE, S_N, S_W0, S_NWIN, S_START, S_END, S_REM, S_REMB, S_OFF, S_MASK = range(24, 35)
S_SPIN = 35
S_M = 36
S_T = 42
S_K = 48
S_IN = 40
S_OD = 56
S_JOB, S_JCNT = 62, 63
S_NLO, S_NHI = 64, 65
S_WM = 10
S_L2E = 10
S_ST = 66
NSGPR = 102

STAMPS = []
RETRY = 'sc1'
def stamp(a, opt, name):
    if opt.probe == name: a("s_memrealtime s[98:99]\ns_waitcnt lgkmcnt(0)\ns_mov_b32 s93, s98")
    if not opt.stamps: return
    if name not in STAMPS: STAMPS.append(name)
    a(f"s_memrealtime s[98:99]\ns_waitcnt lgkmcnt(0)\ns_mov_b32 s{S_ST + STAMPS.index(name)}, s98")

def lut_jobs(a, tag, first, count):
    J, Ex, R, P = LJ, LJ + 8, LJ + 16, LJ + 24
    if first is not None: a(first)
    if count: a(f"s_mov_b32 s{S_JCNT}, {count}")
    a(f"""LUT_{tag}:
    s_lshl_b32 s3, s{S_JOB}, 25
    s_add_u32 s3, s3, 0x8000
    v_lshl_add_u32 v{J}, v{V_L16}, 15, s3""")
    for k in range(1, 8): a(f"v_add_u32 v{J+k}, {k << 16}, v{J}")
    for k in range(0, 8, 2): a(f"v_pk_mul_f32 {vr(Ex+k,2)}, {vr(J+k,2)}, {sr(S_L2E,2)}")
    for k in range(8): a(f"v_exp_f32 v{Ex+k}, v{Ex+k}")
    a(f"s_lshl_b32 s3, s{S_JOB}, 10")
    for k in range(0, 8, 2): a(f"v_pk_add_f32 {vr(R+k,2)}, {vr(Ex+k,2)}, 1.0 op_sel_hi:[1,0]")
    for k in range(8): a(f"v_rcp_f32 v{R+k}, v{R+k}")
    a(f"v_add_u32 v{P+8}, s3, v{V_L16}")
    for k in range(0, 8, 2): a(f"v_pk_mul_f32 {vr(J+k,2)}, {vr(J+k,2)}, {vr(R+k,2)}")
    a(f"v_add_u32 v{P+9}, 0x10000, v{P+8}")
    for k in range(0, 8, 2): a(f"v_pk_mul_f32 {vr(Ex+k,2)}, {vr(J+k,2)}, {vr(Ex+k,2)} neg_lo:[1,0] neg_hi:[1,0]")
    for k in range(4): a(f"v_cvt_pk_bf16_f32 v{P+k}, v{J+2*k}, v{J+2*k+1}")
    for k in range(4): a(f"v_cvt_pk_bf16_f32 v{P+4+k}, v{Ex+2*k}, v{Ex+2*k+1}")
    a(f"""ds_write_b128 v{P+8}, {vr(P,4)} offset:{L_LUT}
    ds_write_b128 v{P+9}, {vr(P+4,4)} offset:{L_LUT}
    s_add_u32 s{S_JOB}, s{S_JOB}, 1
    s_sub_u32 s{S_JCNT}, s{S_JCNT}, 1
    s_cmp_lg_u32 s{S_JCNT}, 0
    s_cbranch_scc1 LUT_{tag}""")

def lut_plain(a, tag, region, last=None, cont=False):
    P = LJ
    for name, first, end, bias in (("L", 1, 24, 0x20000 - 0x800080), ("H", 34, 62, 0x20000)):
        if name != region: continue
        last = last or end
        if cont: a(f"s_cmp_gt_u32 s{S_JOB}, {last}\ns_cbranch_scc1 LUTP_END_{tag}")
        else: a(f"s_add_u32 s{S_JOB}, s{S_WAVE}, {first}")
        if name == "H" and not cont:
            for k in range(4): a(f"v_mov_b32 v{P+4+k}, 0x80008000")
        a(f"""LUTP_{tag}{name}:
        s_mul_i32 s3, s{S_JOB}, {512 * 0x10001}
        s_add_u32 s3, s3, {bias & 0xffffffff}
        v_add_u32 v{P}, s3, v{P+10}
        s_lshl_b32 s3, s{S_JOB}, 10
        v_add_u32 v{P+8}, s3, v{V_L16}""")
        for k in range(1, 4): a(f"v_add_u32 v{P+k}, {k * 0x20002}, v{P}")
        a(f"v_add_u32 v{P+9}, 0x10000, v{P+8}")
        if name == "L":
            for k in range(4): a(f"v_or_b32 v{P+4+k}, 0x80008000, v{P+k}")
        a(f"""ds_write_b128 v{P+8}, {vr(P,4)} offset:{L_LUT}
        ds_write_b128 v{P+9}, {vr(P+4,4)} offset:{L_LUT}
        s_add_u32 s{S_JOB}, s{S_JOB}, {5 if name == "L" else 4}
        s_cmp_le_u32 s{S_JOB}, {last}
        s_cbranch_scc1 LUTP_{tag}{name}
        LUTP_END_{tag}:""")

def flag_store(a, base):
    a(f"""s_lshl_b32 s3, s2, 10
    s_add_u32 s3, s3, {base}
    v_lshl_add_u32 v{T0+2}, v{V_L16}, 3, s3
    v_mov_b32 v{T0+4}, s{S_NLO}
    v_mov_b32 v{T0+5}, s{S_NHI}
    s_mov_b64 exec, 0xff
    global_store_dwordx2 v{T0+2}, {vr(T0+4,2)}, {sr(S_WS,2)} sc0 sc1
    s_mov_b64 exec, -1""")

def poll_issue(a, dst, addr, soff):
    a(f"buffer_load_dwordx2 {vr(dst,2)}, v{addr}, {sr(S_WS,4)}, {soff} offen sc1")
def poll_check(a, tag, dst, addr, soff, hi, pre=""):
    a(f"""POLL_{tag}:
    s_waitcnt vmcnt(0)
    {pre}
    v_cmp_ne_u32 vcc, s{S_NLO}, v{dst + 1 if pre else dst}
    v_cmp_ne_u32 {sr(S_T,2)}, s{S_NHI}, v{hi}
    s_or_b64 vcc, vcc, {sr(S_T,2)}
    s_and_b64 exec, exec, vcc
    s_cbranch_execz POLLED_{tag}
    s_sub_u32 s{S_SPIN}, s{S_SPIN}, 1
    s_cbranch_scc1 END""")
    if RETRY == "atomic":
        a(f"""v_mov_b32 v{dst}, 0
        v_mov_b32 v{dst+1}, 0
        buffer_atomic_or_x2 {vr(dst,2)}, v{addr}, {sr(S_WS,4)}, {soff} offen sc0""")
    else: a(f"buffer_load_dwordx2 {vr(dst,2)}, v{addr}, {sr(S_WS,4)}, {soff} offen {RETRY}")
    a(f"""s_branch POLL_{tag}
    POLLED_{tag}:
    s_mov_b64 exec, -1""")

def load_epoch(a):
    a(f"""s_add_u32 s4, s{S_WS}, {WS_EPOCH}
    s_addc_u32 s5, s{S_WS+1}, 0
    s_load_dwordx2 {sr(S_NLO,2)}, s[4:5], 0""")
def make_tag(a):
    a(f"""s_add_u32 s{S_NLO}, s{S_NLO}, 1
    s_and_b32 s{S_NHI}, s{S_NHI}, 0x3ff""")

def scan256(a, H_, O_):
    a(f"""v_add_u32 v{T0+2}, v{H_}, v{H_+1}
    v_add3_u32 v{T0+2}, v{T0+2}, v{H_+2}, v{H_+3}
    v_mov_b32 v{T0+3}, v{T0+2}""")
    scan64(a, T0 + 3)
    a(f"""v_sub_u32 v{O_}, v{T0+3}, v{T0+2}
    v_add_u32 v{O_+1}, v{O_}, v{H_}
    v_add_u32 v{O_+2}, v{O_+1}, v{H_+1}
    v_add_u32 v{O_+3}, v{O_+2}, v{H_+2}""")

def phase1(a, opt):
    st = lambda n: stamp(a, opt, n)
    SRC, DST, YY, EFP, WRAD, CG, WMX = S_IN + 2, S_IN + 4, S_IN + 6, S_IN + 8, S_IN + 10, S_IN + 12, S_IN + 14
    WS = sr(S_WS, 2); FL = opt.k1st
    D_, S_, Y_, F_, B_, R_, H_, O_, TB = 64, 68, 72, 80, 88, 92, 96, 100, 108
    CT = WMIX
    def const_issue():
        a(f"v_lshrrev_b32 v{CT+5}, 2, v{V_L16}")
        for k in range(4): a(f"global_load_dword v{CT+k}, v{CT+5}, {sr(WRAD,2)} offset:{k*256}")
        a(f"v_and_b32 v{CT+5}, 0x7f, v{CT+5}\nglobal_load_dword v{CT+4}, v{CT+5}, {sr(CG,2)}")
    def const_finish():
        a(f"""ds_write_b32 v{CT+5}, v{CT+4} offset:{L_CG}
        v_lshrrev_b32 v{CT+5}, 3, v{V_L16}
        v_and_b32 v{CT+5}, 24, v{CT+5}
        s_mov_b32 s4, 0x05040100
        s_mov_b32 s5, 0x07060302""")
        for i in range(4): a(f"ds_read_b64_tr_b16 {vr(CGB+2*i,2)}, v{CT+5} offset:{L_CG + 32*i}")
        for u in range(2):
            a(f"v_perm_b32 v{PE+u}, v{CT+1+2*u}, v{CT+2*u}, s4\nv_perm_b32 v{PO+u}, v{CT+1+2*u}, v{CT+2*u}, s5")
    def rec_stores(tag, first, count):
        a(f"""s_cmp_ge_u32 s2, {NP}
        s_cbranch_scc1 NO_RECS_{tag}
        s_mul_i32 s3, s2, {EP * 16}
        s_add_u32 s3, s3, {WS_REC + first * 1024}
        v_add_u32 v{T0+1}, s3, v{V_L16}""")
        for k in range(count): a(f"ds_read_b128 {vr(84+4*k,4)}, v{V_L16} offset:{L1_SREC + (first + k) * 1024}")
        for k in range(count):
            if k == 4: a(f"v_add_u32 v{T0+1}, 4096, v{T0+1}")
            a(f"s_waitcnt lgkmcnt({count-1-k})\nglobal_store_dwordx4 v{T0+1}, {vr(84+4*k,4)}, {WS} offset:{(1024*k) % 4096} {FL}")
        a(f"NO_RECS_{tag}:")
    def key_stores(first, count):
        a(f"""s_mul_i32 s3, s2, {EP * 8}
        s_add_u32 s3, s3, {WS_KEY + first * 1024}
        v_add_u32 v{T0+1}, s3, v{V_L16}
        v_add_u32 v{T0+2}, {L1_SKEY + first * 1024}, v{V_L16}
        s_barrier""")
        for k in range(count): a(f"ds_read_b128 {vr(64+4*k,4)}, v{T0+2} offset:{1024*k}")
        for k in range(count):
            a(f"s_waitcnt lgkmcnt({count-1-k})\nglobal_store_dwordx4 v{T0+1}, {vr(64+4*k,4)}, {WS} offset:{1024*k} {FL}")
        a("s_barrier")
    a(f"""s_cmp_ge_u32 s{S_WAVE}, 5
    s_cbranch_scc1 HELP
    v_mul_u32_u24 v{LJ+10}, 0x8000, v{V_L16}
    v_lshrrev_b32 v{T0+2}, 1, v{V_L16}
    v_add_u32 v{LJ+10}, v{LJ+10}, v{T0+2}           ; lane * 8 * 0x10001
    s_cmp_ge_u32 s2, {NP}
    s_cbranch_scc1 AUX
    s_mul_i32 s3, s2, {EP * 4}
    v_lshl_add_u32 v{T0}, v0, 4, s3
    v_lshlrev_b32 v{T0+1}, 1, v{T0}
    s_mov_b32 s9, {L1_SKEY}
    s_setprio 1
    s_waitcnt lgkmcnt(0)""")
    st('kernargs')
    def load_yf():
        a(f"""global_load_dwordx4 {vr(Y_,4)}, v{T0+1}, {sr(YY,2)}
        global_load_dwordx4 {vr(Y_+4,4)}, v{T0+1}, {sr(YY,2)} offset:16
        global_load_dwordx4 {vr(F_,4)}, v{T0+1}, {sr(EFP,2)}
        global_load_dwordx4 {vr(F_+4,4)}, v{T0+1}, {sr(EFP,2)} offset:16""")
    a(f"""global_load_dwordx4 {vr(D_,4)}, v{T0}, {sr(DST,2)}
    global_load_dwordx4 {vr(S_,4)}, v{T0}, {sr(SRC,2)}""")
    const_issue()
    if not opt.lsplit: load_yf()
    load_epoch(a)
    a("s_barrier")
    if opt.lsplit:
        lut_plain(a, "W0", "L", last=opt.lsplit)
        load_yf()
        lut_plain(a, "W", "L", cont=True)
    else: lut_plain(a, "W", "L")
    a("s_waitcnt lgkmcnt(0)")
    make_tag(a)
    for k in range(4): a(f"v_mov_b32 v{TB+2*k+1}, s{S_NLO}")
    st('jobs A')
    a("s_waitcnt vmcnt(10)")
    st('dst arrived')
    for k in range(4):
        a(f"""v_and_b32 v{B_+k}, 0xff, v{D_+k}
              v_lshlrev_b32 v{B_+k}, 2, v{B_+k}
              ds_add_rtn_u32 v{R_+k}, v{B_+k}, v{V_ONE} offset:{L1_HIST}""")
    a("s_waitcnt vmcnt(9)")
    for k in range(4):
        a(f"""v_lshrrev_b32 v{D_+k}, 8, v{D_+k}
              v_lshl_or_b32 v{TB+2*k}, v{S_+k}, 10, v{D_+k}""")
    a(f"""s_waitcnt lgkmcnt(0)
    s_barrier
    ds_read_b128 {vr(H_,4)}, v{V_L16} offset:{L1_HIST}
    s_waitcnt lgkmcnt(0)""")
    scan256(a, H_, O_)
    a(f"ds_write_b128 v{V_L16}, {vr(O_,4)} offset:{L1_BASE}")
    for k in range(4): a(f"ds_read_b32 v{H_+k}, v{B_+k} offset:{L1_BASE}")
    for k in range(4):
        a(f"""s_waitcnt lgkmcnt(3)
              v_add_u32 v{R_+k}, v{R_+k}, v{H_+k}
              v_lshl_add_u32 v{B_+k}, v{R_+k}, 3, s9
              ds_write_b64 v{B_+k}, {vr(TB+2*k,2)}""")
    for k in range(4):
        a(f"v_lshlrev_b32 v{R_+k}, 4, v{R_+k}\nv_add_u32 v{R_+k}, {L1_SREC}, v{R_+k}")
    a("s_waitcnt lgkmcnt(0)\ns_barrier")
    st('keys binned')
    a("s_waitcnt vmcnt(0)")
    for k in range(4):
        a(f"ds_write2_b64 v{R_+k}, {vr(Y_+2*k,2)}, {vr(F_+2*k,2)} offset0:0 offset1:1")
    st('recs binned')
    const_finish()
    a("s_setprio 0\ns_branch BINNED")
    a(f"""AUX:
    v_lshrrev_b32 v{T0}, 4, v{V_L16}                ; lane
    s_waitcnt lgkmcnt(0)""")
    load_epoch(a)
    const_issue()
    a(f"""s_waitcnt lgkmcnt(0)
    s_cmp_ge_u32 s2, {NP + 4}
    s_cbranch_scc1 AUX_IDLE
    s_cmp_ge_u32 s{S_WAVE}, 4
    s_cbranch_scc1 AUX_IDLE
    s_sub_u32 s4, s2, {NP}
    s_lshl_b32 s5, s{S_WAVE}, 13
    s_lshl_b32 s6, s4, 6
    s_add_u32 s5, s5, s6
    v_lshrrev_b32 v{T0+1}, 4, v{T0}
    v_lshlrev_b32 v{T0+1}, 11, v{T0+1}
    v_and_b32 v{T0+2}, 15, v{T0}
    v_lshl_add_u32 v{T0+1}, v{T0+2}, 2, v{T0+1}
    v_add_u32 v{T0+1}, s5, v{T0+1}
    s_lshl_b32 s5, s4, 13
    s_lshl_b32 s6, s{S_WAVE}, 10
    s_add_u32 s5, s5, s6
    s_add_u32 s5, s5, {WS_WMIX}
    v_add_u32 v{T0+2}, s5, v{V_L16}
    s_mov_b32 s4, 0x05040100
    s_mov_b32 s5, 0x07060302""")
    for t in range(8): a(f"global_load_dword v{64+t}, v{T0+1}, {sr(WMX,2)} offset:{t*256}")
    a("s_barrier")
    lut_plain(a, "X", "L")
    a("s_waitcnt vmcnt(0)")
    for u in range(4):
        a(f"v_perm_b32 v{72+u}, v{65+2*u}, v{64+2*u}, s4\nv_perm_b32 v{76+u}, v{65+2*u}, v{64+2*u}, s5")
    a(f"""global_store_dwordx4 v{T0+2}, v[72:75], {WS} {FL}
    v_add_u32 v{T0+2}, 4096, v{T0+2}
    global_store_dwordx4 v{T0+2}, v[76:79], {WS} {FL}
    s_branch AUX_DONE
AUX_IDLE:
    s_barrier""")
    lut_plain(a, "Z", "L")
    a("AUX_DONE:")
    make_tag(a)
    a("""s_waitcnt lgkmcnt(0)
    s_barrier
    s_barrier
    s_waitcnt vmcnt(0)""")
    const_finish()
    a("s_branch BINNED")
    a("HELP:\ns_waitcnt lgkmcnt(0)")
    if opt.xp >= 0:
        a(f"""s_mul_i32 s3, s2, 10240
        s_add_u32 s3, s3, {opt.xp * 2540000 // 128 * 128}
        s_sub_u32 s4, s{S_WAVE}, 5
        s_mul_i32 s4, s4, 3072
        s_add_u32 s3, s3, s4""")
        for k in range(3): a(f"buffer_load_dwordx4 v[64:67], v{V_L16}, {sr(S_X,4)}, s3 offen offset:{1024*k}")
        a("s_waitcnt vmcnt(0)")
        st('xp')
    load_epoch(a)
    const_issue()
    a(f"""s_barrier
    s_cmp_lg_u32 s{S_WAVE}, 7
    s_cbranch_scc1 HELP56""")
    lut_jobs(a, "7a", f"s_mov_b32 s{S_JOB}, 63", 1)
    a(f"""v_mov_b32 v{T0+2}, {0x7f80 * 2}
    v_mov_b32 v{T0+3}, 0x7f80
    ds_write_b16 v{T0+2}, v{T0+3} offset:{L_LUT}""")
    lut_jobs(a, "7b", f"s_mov_b32 s{S_JOB}, 33", 1)
    st('help jobs')
    a("s_waitcnt vmcnt(0)")
    st('help consts')
    const_finish()
    a("s_waitcnt lgkmcnt(0)")
    make_tag(a)
    a("s_barrier")
    key_stores(0, 4)
    rec_stores("7", 0, 6)
    a(f"""s_branch STORED
HELP56:
    s_cmp_eq_u32 s{S_WAVE}, 6
    s_cbranch_scc1 HELP6""")
    lut_jobs(a, "5a", f"s_mov_b32 s{S_JOB}, 0", 1)
    lut_jobs(a, "5b", f"s_mov_b32 s{S_JOB}, 25", 1)
    st('help jobs')
    a("s_waitcnt vmcnt(0)")
    st('help consts')
    const_finish()
    a("s_waitcnt lgkmcnt(0)")
    make_tag(a)
    a("s_barrier")
    key_stores(4, 3)
    rec_stores("5", 6, 7)
    a("s_branch STORED\nHELP6:")
    lut_jobs(a, "6", f"s_mov_b32 s{S_JOB}, 26", 2)
    st('help jobs')
    a("s_waitcnt vmcnt(0)")
    st('help consts')
    const_finish()
    a(f"""s_lshl_b32 s3, s2, 11
    s_add_u32 s3, s3, {WS_TAB}
    v_lshl_add_u32 v{T0}, v{V_L16}, 1, s3
    s_waitcnt lgkmcnt(0)""")
    make_tag(a)
    a(f"""s_barrier
    ds_read_b128 {vr(H_,4)}, v{V_L16} offset:{L1_HIST}
    s_waitcnt lgkmcnt(0)""")
    scan256(a, H_, O_)
    a(f"s_lshl_b32 s3, s{S_NHI}, 22")
    for k in range(4):
        a(f"""v_lshl_or_b32 v{TB+2*k}, v{H_+k}, 11, v{O_+k}
              v_or_b32 v{TB+2*k}, s3, v{TB+2*k}
              v_mov_b32 v{TB+2*k+1}, s{S_NLO}""")
    a(f"""global_store_dwordx4 v{T0}, {vr(TB,4)}, {WS} sc0 sc1
    global_store_dwordx4 v{T0}, {vr(TB+4,4)}, {WS} offset:16 sc0 sc1""")
    st('table published')
    key_stores(7, 3)
    rec_stores("6", 13, 7)
    a(f"""STORED:
    v_mov_b32 v{V_LEN}, 0
    s_branch TAB_DONE
BINNED:
    v_mov_b32 v{V_LEN}, 0
    s_cmp_eq_u32 s{S_WAVE}, 4
    s_cbranch_scc0 POLLER
    s_waitcnt lgkmcnt(0)
    s_barrier""")
    lut_jobs(a, "4", f"s_mov_b32 s{S_JOB}, 31", 2)
    a("s_branch TAB_DONE\nPOLLER:")
    lut_plain(a, "U", "H", last=opt.hsplit)
    poll_issue(a, V_LEN, V_POS, 0)
    a("s_waitcnt lgkmcnt(0)\ns_barrier")
    st('tab issued')
    lut_plain(a, "V", "H", cont=True)
    poll_check(a, "TAB", V_LEN, V_POS, 0, T0 + 3, f"v_lshrrev_b32 v{T0+3}, 22, v{V_LEN}")
    st('tab arrived')
    a("TAB_DONE:")

def mfma4(d, a_, b, c, blk=None):
    cc = "0" if c is None else vr(c, 4)
    return f"v_mfma_f32_4x4x4_16b_bf16 {vr(d,4)}, {vr(a_,2)}, {vr(b,2)}, {cc}" + ("" if blk is None else f" cbsz:4 abid:{blk}")
def p_mfma(g, odd):
    return mfma4(UU + 8 * (g % 2) + 4 * odd, EF, PO if odd else PE, None, g % 16)
def t_mfma(e, odd):
    return mfma4(TP + 8 * (e % 2) + 4 * odd, WPK + 2 * (e % 4), XR + 4 * (e % 8) + 2 * odd, None, (e % 64) // 4)
def act_regs(eb, odd):
    return UU + 8 * ((eb // 4) % 2) + 4 * odd + eb % 4, RR + 4 * ((eb // 2) % 2) + 2 * odd
def act_addr(t, u):
    return f"v_lshlrev_b32_sdwa v{t}, v{V_ONE}, v{u} dst_sel:DWORD dst_unused:UNUSED_PAD src0_sel:DWORD src1_sel:WORD_1"
def act_read(r, t): return f"ds_read_u16_d16_hi v{r}, v{t} offset:{L_LUT}"
def fma4(a, q):
    h = q % 2
    a(f"s_set_gpr_idx_on s{S_K + q % 16}, 0xc")
    for odd in range(2):
        r = RR + 4 * ((q // 2) % 2) + 2 * odd
        for o in (0, 2):
            acc = ACC + 4 * odd + o; tp = TP + 8 * (q % 2) + 4 * odd + o
            a(f"v_pk_fma_f32 {vr(acc,2)}, {vr(r,2)}, {vr(tp,2)}, {vr(acc,2)} op_sel:[{h},0,0] op_sel_hi:[{h},1,1]")
    a("s_set_gpr_idx_off")
def meta_read_entry(a): a(f"ds_read_b32 v{ENT}, v{V_AENT}")
def meta_fix_entry(a, rec=True):
    a(f"""v_cmp_gt_u32 vcc, s{S_END}, v{V_POS}
          v_add_u32 v{V_POS}, 64, v{V_POS}
          v_add_u32 v{V_AENT}, 256, v{V_AENT}
          v_cndmask_b32 v{ENT}, 40, v{ENT}, vcc
          v_lshrrev_b32 v{T0}, 21, v{ENT}
          v_lshlrev_b32 v{T0}, 4, v{T0}
          v_lshlrev_b32 v{T0+1}, 3, v{ENT}""")
    if rec: meta_read_rec(a)
    a(f"""v_and_b32 v{T0+1}, 0xfffc00, v{T0+1}
          v_and_or_b32 v{ENT}, v{ENT}, 56, v{T0+1}""")
def meta_read_rec(a): a(f"ds_read_b128 {vr(RECN,4)}, v{T0} offset:{L_UREC}")
def w_mfma(i): return mfma4(WTMP + 4 * i, RECN, CGB + 2 * i, None)
def w_cvt(a, m):
    a(f"""v_cvt_pk_bf16_f32 v{WPK+2*m}, v{WTMP+m}, v{WTMP+4+m}
          v_cvt_pk_bf16_f32 v{WPK+2*m+1}, v{WTMP+8+m}, v{WTMP+12+m}""")

def body(a, opt, loads):
    D = opt.D; tag = "A" if loads else "B"
    for q in range(64):
        if q % 4 == 0:
            a(f"{tag}_{q}:")
            if loads: a(f"s_sub_u32 s{S_REM}, s{S_REM}, 4\ns_cbranch_scc1 TO_B_{q}")
            else:     a(f"s_sub_u32 s{S_REMB}, s{S_REMB}, 4\ns_cbranch_scc1 MAIN_DONE")
        eb = q + 2 - q % 2; odd = q % 2
        u, r = act_regs(eb, odd); t = TT + 2 * odd
        g, ur = (q + 6) // 4, (q + 6) % 4
        if ur % 2 == 0: a(p_mfma(g, ur // 2))
        elif 40 <= q < 48: a(w_mfma((q - 40) // 2))
        a(act_addr(t, u))
        a(f"s_waitcnt vmcnt({D - 2 if loads else 8 + max(0, D - (6 if D == 8 else 2) - q % 4)})")
        a(t_mfma(q + 1, 0))
        if loads: a(f"v_readlane_b32 s{S_K + (q + D) % 16}, v{KEY if q + D < 64 else ENT}, {(q + D) % 64}")
        else:     a("s_nop 0")
        a(t_mfma(q + 1, 1))
        a(act_addr(t + 1, u + 1))
        a(act_read(r, t)); a(act_read(r + 1, t + 1))
        if q >= 60: w_cvt(a, q - 60)
        if loads:
            a(f"s_and_b32 s{S_OFF}, s{S_K + (q + D) % 16}, s{S_MASK}")
            a(f"buffer_load_dwordx4 {vr(XR + 4 * ((q + D) % 8), 4)}, v{V_L16}, {sr(S_X,4)}, s{S_OFF} offen")
        if q % 2 == 0: a("s_waitcnt lgkmcnt(2)")
        fma4(a, q)
        if q == 8: meta_read_entry(a)
        if q == 12: meta_fix_entry(a)
        if q == 57: a(f"v_mov_b32 v{EF}, v{RECN+2}\nv_mov_b32 v{EF+1}, v{RECN+3}\ns_nop 1")
        if q == 63: a(f"v_mov_b32 v{KEY}, v{ENT}")
    if opt.stamps and loads:
        STAMPS.extend(("batch 1", "batch 2")); k = S_ST + len(STAMPS) - 2
        a(f"""s_memrealtime s[98:99]
        s_waitcnt lgkmcnt(0)
        s_cmp_eq_u32 s{k}, 0
        s_cselect_b32 s99, 0, s98
        s_cselect_b32 s{k}, s98, s{k}
        s_cmp_eq_u32 s{k+1}, 0
        s_cselect_b32 s{k+1}, s99, s{k+1}""")
    if opt.probe == "batch 1" and loads:
        a("s_memrealtime s[98:99]\ns_waitcnt lgkmcnt(0)\ns_cmp_eq_u32 s93, 0\ns_cselect_b32 s93, s98, s93")
    a(f"s_branch {tag}_0")

def x_touch(a, opt, where, guard=True):
    for spec in filter(None, opt.xt.split(",")):
        w, lo, hi = map(int, spec.split(":"))
        if w != where: continue
        if guard: a(f"s_cmp_lg_u32 s{S_W0}, 0\ns_cbranch_scc1 NO_X_TOUCH_{w}")
        a(f"""s_lshl_b32 s4, s2, 3
        s_add_u32 s4, s4, s{S_WAVE}
        s_lshl_b32 s4, s4, 7
        s_add_u32 s4, s4, {lo << 18}
        v_min_u32 v{TT+2}, {(hi - lo - 1) * 16}, v{V_L16}
        v_lshl_add_u32 v{TT+2}, v{TT+2}, 14, s4
        buffer_load_dword v{V_FLAG+1}, v{TT+2}, {sr(S_X,4)}, 0 offen
        NO_X_TOUCH_{w}:""")

def zero_hist(a):
    a(f"""v_lshlrev_b32 v{T0+3}, 2, v0
    v_mov_b32 v{T0+4}, 0
    v_cmp_gt_u32 vcc, {40 * HS // 4}, v0
    s_and_saveexec_b64 {sr(S_T,2)}, vcc
    ds_write_b32 v{T0+3}, v{T0+4} offset:{L_HIST}
    s_mov_b64 exec, {sr(S_T,2)}""")

def kernel(opt):
    a = Asm(); D = opt.D
    st = lambda n: stamp(a, opt, n)
    a(f"""{KERN}:
    s_cmp_ge_u32 s2, 256
    s_cbranch_scc1 END""")
    if opt.probe: a("s_mov_b32 s93, 0\ns_memrealtime s[98:99]\ns_waitcnt lgkmcnt(0)\ns_mov_b32 s92, s98")
    if opt.stamps:
        for k in range(32): a(f"s_mov_b32 s{S_ST+k}, 0")
    st('start')
    a(f"""s_load_dwordx16 {sr(S_IN,16)}, s[0:1], 0
    s_load_dwordx4 {sr(S_OD,4)}, s[0:1], 64
    s_load_dwordx2 {sr(S_WS,2)}, s[0:1], 80
    s_load_dwordx2 {sr(S_X,2)}, s[0:1], 0
    s_load_dwordx2 {sr(S_OUT,2)}, s[0:1], 64
    s_and_b32 s4, s2, 7
    s_lshl_b32 s4, s4, 5
    s_lshr_b32 s5, s2, 3
    s_or_b32 s{S_BETA}, s4, s5
    v_lshrrev_b32 v{T0}, 6, v0
    v_and_b32 v{T0+1}, 63, v0
    v_lshlrev_b32 v{V_L16}, 4, v{T0+1}
    v_readfirstlane_b32 s{S_WAVE}, v{T0}""")
    if opt.ipf == 2:
        a(f"""s_getpc_b64 s[6:7]
        CODE_HERE:
        v_lshlrev_b32 v{T0+2}, 7, v0
        v_subrev_u32 v{T0+2}, {5 * 8192}, v{T0+2}
        v_add_u32 v{T0+3}, {3 * 8192}, v{T0+2}
        v_min_u32 v{T0+3}, END-CODE_HERE, v{T0+3}
        s_cmp_lt_u32 s{S_WAVE}, 5
        s_cbranch_scc1 NO_CODE_TOUCH
        global_load_dword v{V_FLAG+1}, v{T0+2}, s[6:7]
        global_load_dword v{V_FLAG+1}, v{T0+3}, s[6:7]
        NO_CODE_TOUCH:""")
    if opt.ipf == 1:
        a(f"""s_getpc_b64 s[6:7]
        CODE_HERE:
        s_lshr_b32 s4, s2, 3
        s_lshl_b32 s4, s4, 10
        v_and_b32 v{T0+2}, 7, v0
        v_lshl_add_u32 v{T0+2}, v{T0+2}, 7, s4
        v_min_u32 v{T0+2}, END-CODE_HERE, v{T0+2}
        s_cmp_lg_u32 s{S_WAVE}, 7
        s_cbranch_scc1 NO_CODE_TOUCH
        global_load_dword v{V_FLAG+1}, v{T0+2}, s[6:7]
        NO_CODE_TOUCH:""")
    a(f"""v_lshlrev_b32 v{T0+3}, 3, v0
    v_mov_b32 v{T0+4}, 0
    v_mov_b32 v{T0+5}, 0
    ds_write_b64 v{T0+3}, {vr(T0+4,2)}
    v_mov_b32 v{V_ONE}, 1
    s_mov_b32 s{S_X+2}, {N * 1024}
    s_mov_b32 s{S_X+3}, 0x20000
    s_mov_b32 s{S_WS+2}, {WS_END if not opt.stamps else WS_STAMP + 0x80000}
    s_mov_b32 s{S_WS+3}, 0x20000
    s_mov_b32 s{S_OUT+2}, {N * 1024}
    s_mov_b32 s{S_OUT+3}, 0x20000
    s_mov_b32 s{S_MASK}, 0xfffffc00
    s_mov_b32 s{S_W0}, 0
    s_mov_b32 s{S_L2E}, 0xbfb8aa3b
    s_mov_b32 s{S_L2E+1}, 0xbfb8aa3b
    v_mul_u32_u24 v{V_SIG4}, 52, v{T0+1}
    v_lshrrev_b32 v{V_SIG4}, 8, v{V_SIG4}            ; lane / 5
    v_mul_u32_u24 v{V_SLOT4}, 5, v{V_SIG4}
    v_sub_u32 v{V_SLOT4}, v{T0+1}, v{V_SLOT4}        ; lane % 5
    v_lshlrev_b32 v{V_SIG4}, 2, v{V_SIG4}
    v_lshlrev_b32 v{V_SLOT4}, 2, v{V_SLOT4}
    s_mov_b32 s{S_SPIN}, {1 << 21}
    v_and_b32 v{V_GID}, 0xff, v0
    s_lshl_b32 s3, s{S_BETA}, 3
    s_add_u32 s3, s3, {WS_TAB}
    v_lshl_add_u32 v{V_POS}, v{V_GID}, 11, s3
    s_and_b32 s3, s2, 7
    s_lshl_b32 s3, s3, 7
    s_add_u32 s3, s3, {WS_RDY}
    s_lshl_b32 s4, s{S_WAVE}, 15
    s_add_u32 s3, s3, s4
    v_and_b32 v{V_FLAG}, 31, v0
    v_lshl_add_u32 v{V_FLAG}, v{V_FLAG}, 10, s3      ; flag of producer 32 wave + lane % 32
    v_mul_u32_u24 v{V_GID}, {EP}, v{V_GID}""")
    for k in range(48): a(f"v_mov_b32 v{ACC+k}, 0")
    phase1(a, opt)
    a(f"""v_and_b32 v{T0+5}, 0x7ff, v{V_LEN}
    v_bfe_u32 v{V_LEN}, v{V_LEN}, 11, 11
    v_lshrrev_b32 v{T0+1}, 4, v{V_L16}                ; lane
    v_add_u32 v{V_GID}, v{V_GID}, v{T0+5}
    v_mov_b32 v{V_PRE}, v{V_LEN}""")
    if opt.keypf:
        a(f"""s_cmp_ge_u32 s{S_WAVE}, 4
        s_cbranch_scc1 NO_KEY_TOUCH
        v_lshlrev_b32 v{T0+2}, 3, v{V_GID}
        buffer_load_dword v{V_FLAG+1}, v{T0+2}, {sr(S_WS,4)}, 0 offen sc1""")
        if opt.keypf > 1:
            a(f"""v_lshl_add_u32 v{T0+2}, v{V_LEN}, 3, v{T0+2}
            v_subrev_u32 v{T0+2}, 8, v{T0+2}
            buffer_load_dword v{V_FLAG+1}, v{T0+2}, {sr(S_WS,4)}, 0 offen sc1""")
        a("NO_KEY_TOUCH:")
    x_touch(a, opt, 3, False)
    scan64(a, V_PRE)
    a(f"""s_nop 0
    v_readlane_b32 s{S_T+2}, v{V_PRE}, 63
    v_sub_u32 v{V_PRE}, v{V_PRE}, v{V_LEN}
    v_cmp_lt_u32 vcc, s{S_WAVE}, v{T0+1}
    v_cmp_gt_u32 {sr(S_T,2)}, 9, v{T0+1}
    v_lshlrev_b32 v{T0+2}, 2, v{T0+1}
    v_mov_b32 v{T0+3}, s{S_T+2}
    s_and_b64 vcc, vcc, {sr(S_T,2)}
    s_and_saveexec_b64 {sr(S_T,2)}, vcc
    ds_add_u32 v{T0+2}, v{T0+3} offset:{L_WT}
    s_mov_b64 exec, {sr(S_T,2)}
    s_lshl_b32 s3, s{S_WAVE}, 2
    v_mov_b32 v{T0+2}, s3
    v_mov_b32 v{T0+3}, 32
    s_waitcnt lgkmcnt(0)
    s_barrier
    ds_read_b32 v{T0}, v{T0+2} offset:{L_WT}
    ds_read_b32 v{T0+3}, v{T0+3} offset:{L_WT}
    s_cmp_lg_u32 s{S_WAVE}, 4
    s_cbranch_scc1 EPOCH_DONE""")
    a(f"""s_cmp_lg_u32 s2, 0
    s_cbranch_scc1 EPOCH_DONE
    v_mov_b32 v{T0+4}, s{S_NLO}
    v_mov_b32 v{T0+2}, {WS_EPOCH}
    s_mov_b64 exec, 1
    global_store_dword v{T0+2}, v{T0+4}, {sr(S_WS,2)} sc0 sc1
    s_mov_b64 exec, -1
EPOCH_DONE:
    s_waitcnt lgkmcnt(0)
    v_add_u32 v{V_PRE}, v{V_PRE}, v{T0}
    v_readfirstlane_b32 s{S_N}, v{T0+3}""")
    st('prefix done')
    a(f"s_cmp_lt_u32 s{S_WAVE}, 5\ns_cbranch_scc1 RECS_FLAGGED")
    a(f"""v_mov_b32 v{T0+2}, {L_CNT}
    s_waitcnt vmcnt({1 if ("," + opt.xt).count(",3:") else 0})
    s_mov_b64 exec, 1
    ds_add_rtn_u32 v{T0+2}, v{T0+2}, v{V_ONE}
    s_mov_b64 exec, -1
    s_waitcnt lgkmcnt(0)
    v_readfirstlane_b32 s3, v{T0+2}
    s_cmp_lg_u32 s3, 2
    s_cbranch_scc1 RECS_FLAGGED""")
    flag_store(a, WS_RDY)
    st('recs flagged')
    a("RECS_FLAGGED:")
    a(f"""ROUND:
    v_mov_b32 v{T0}, 0
    v_subrev_u32 v{T0+1}, s{S_W0}, v{V_PRE}
    v_mov_b32 v{T0+2}, v{V_GID}
    s_mov_b32 s3, {CAP}
    s_cmp_gt_u32 s{S_N}, {CAP}
    s_cbranch_scc1 EXPAND
    v_lshlrev_b32 v{T0+3}, 2, v{V_PRE}""")
    for j in range(16):
        a(f"v_cmpx_lt_u32 vcc, {j}, v{V_LEN}")
        if j % 2 == 0 and j >= 6: a("s_cbranch_execz EXPAND_DONE")
        a(f"ds_write_b32 v{T0+3}, v{T0+2} offset:{L_SENT + 4*j}\nv_add_u32 v{T0+2}, 1, v{T0+2}")
    a(f"""v_mov_b32 v{T0}, 16
    v_add_u32 v{T0+1}, 16, v{T0+1}
EXPAND:
    v_cmp_lt_u32 vcc, v{T0}, v{V_LEN}
    s_and_b64 exec, exec, vcc
    s_cbranch_execz EXPAND_DONE
    v_cmp_gt_u32 vcc, s3, v{T0+1}
    v_lshlrev_b32 v{T0+3}, 2, v{T0+1}
    s_and_saveexec_b64 {sr(S_T,2)}, vcc
    ds_write_b32 v{T0+3}, v{T0+2} offset:{L_SENT}
    s_mov_b64 exec, {sr(S_T,2)}
    v_add_u32 v{T0}, 1, v{T0}
    v_add_u32 v{T0+1}, 1, v{T0+1}
    v_add_u32 v{T0+2}, 1, v{T0+2}
    s_branch EXPAND
EXPAND_DONE:
    s_mov_b64 exec, -1
    s_sub_u32 s{S_NWIN}, s{S_N}, s{S_W0}
    s_min_u32 s{S_NWIN}, s{S_NWIN}, {CAP}
    v_lshlrev_b32 v{T0}, 2, v0""")
    for i in range(3):
        a(f"""v_add_u32 v{T0+1}, {512*i}, v0
              v_cmp_gt_u32 {sr(S_M+2*i,2)}, s{S_NWIN}, v{T0+1}""")
    x_touch(a, opt, 4)
    st('list built')
    a("s_waitcnt lgkmcnt(0)\ns_barrier")
    st('list barrier')
    G = XR
    KP = TP
    for i in range(3): a(f"ds_read_b32 v{G+i}, v{T0} offset:{L_SENT + 2048*i}")
    a(f"""s_mov_b32 s{S_T+2}, 5033                          ; 12 * 2^32 / (10000 * 1024)
    s_waitcnt lgkmcnt(0)""")
    for i in range(3):
        a(f"v_lshlrev_b32 v{G+4+i}, 3, v{G+i}\nv_lshlrev_b32 v{G+i}, 4, v{G+i}")
    a(f"""KEY_LOAD:
    s_mov_b64 exec, {sr(S_M+4,2)}
    s_cbranch_execz SKIP3
    buffer_load_dwordx2 {vr(KP+4,2)}, v{G+6}, {sr(S_WS,4)}, 0 offen sc1
SKIP3:""")
    for i in range(2):
        a(f"s_mov_b64 exec, {sr(S_M+2*i,2)}\nbuffer_load_dwordx2 {vr(KP+2*i,2)}, v{G+4+i}, {sr(S_WS,4)}, 0 offen sc1")
    a(f"""s_mov_b64 exec, -1
    s_sub_u32 s{S_JOB}, s{S_WAVE}, 4
    s_cmp_ge_u32 s{S_JOB}, 3
    s_cbranch_scc1 NO_LAST_JOB
    s_mov_b32 s{S_L2E}, 0xbfb8aa3b
    s_mov_b32 s{S_L2E+1}, 0xbfb8aa3b""")
    lut_jobs(a, "k", f"s_add_u32 s{S_JOB}, s{S_JOB}, 28", 1)
    a("NO_LAST_JOB:\ns_waitcnt vmcnt(0)")
    for i in range(3): a(f"v_cmp_ne_u32 {sr(S_K+2*i,2)}, s{S_NLO}, v{KP+2*i+1}")
    for i in range(3): a(f"s_and_b64 {sr(S_K+2*i,2)}, {sr(S_K+2*i,2)}, {sr(S_M+2*i,2)}")
    a(f"""s_or_b64 {sr(S_K,2)}, {sr(S_K,2)}, {sr(S_K+2,2)}
    s_or_b64 {sr(S_K,2)}, {sr(S_K,2)}, {sr(S_K+4,2)}
    s_cbranch_scc0 KEYS_OK
    s_sub_u32 s{S_SPIN}, s{S_SPIN}, 1
    s_cbranch_scc0 KEY_LOAD
    s_endpgm
KEYS_OK:""")
    st('keys arrived')
    if opt.rdy == 0: poll_issue(a, TT, V_FLAG, 0)
    x_touch(a, opt, 1)
    for i in range(3):
        a(f"""v_mul_hi_u32 v{T0+1}, s{S_T+2}, v{KP+2*i}
              v_and_b32 v{G+8+i}, 63, v{KP+2*i}
              v_mul_u32_u24 v{G+8+i}, {HS}, v{G+8+i}
              v_lshl_add_u32 v{G+8+i}, v{T0+1}, 2, v{G+8+i}""")
    for i in range(3):
        a(f"s_mov_b64 exec, {sr(S_M+2*i,2)}\nds_add_rtn_u32 v{G+12+i}, v{G+8+i}, v{V_ONE} offset:{L_HIST}")
    a("s_mov_b64 exec, -1")
    for i in range(3):
        a(f"""v_add_u32 v{T0+1}, {512*i}, v0
              v_lshlrev_b32 v{T0+1}, 21, v{T0+1}
              v_lshrrev_b32 v{G+16+i}, 10, v{KP+2*i}
              v_lshl_or_b32 v{G+16+i}, v{G+16+i}, 7, v{T0+1}""")
    H = G + 20
    a(f"""v_lshrrev_b32 v{T0}, 4, v{V_L16}              ; lane
    v_min_u32 v{T0+1}, 39, v{T0}
    v_mul_u32_u24 v{T0+1}, {HS}, v{T0+1}
    v_cmp_gt_u32 {sr(S_T+4,2)}, 40, v{T0}
    v_sub_u32 v{T0+2}, 63, v{T0}
    s_mul_i32 s10, s{S_WAVE}, 5
    s_lshl_b32 s3, s{S_WAVE}, 10
    s_add_u32 s3, s3, {L_UREC}
    s_mov_b32 s9, {WS_REC}
    s_waitcnt lgkmcnt(0)
    s_barrier""")
    st('hist done')
    if opt.rdy == 1: poll_issue(a, TT, V_FLAG, 0)
    for k in range(3): a(f"ds_read_b128 {vr(H+4*k,4)}, v{T0+1} offset:{L_HIST + 16*k}")
    a(f"""    s_waitcnt lgkmcnt(1)
    v_add3_u32 v{H}, v{H}, v{H+1}, v{H+2}
    v_add3_u32 v{H+3}, v{H+3}, v{H+4}, v{H+5}
    v_add3_u32 v{H}, v{H}, v{H+6}, v{H+7}
    s_waitcnt lgkmcnt(0)
    v_add3_u32 v{H+3}, v{H+3}, v{H+8}, v{H+9}
    v_add3_u32 v{H}, v{H}, v{H+10}, v{H+11}
    v_add_u32 v{H}, v{H}, v{H+3}
    v_lshl_or_b32 v{H+1}, v{H}, 6, v{T0+2}
    v_cndmask_b32 v{H+1}, 0, v{H+1}, {sr(S_T+4,2)}
    s_cmp_lg_u32 s{S_W0}, 0
    s_cbranch_scc1 DEALT""")
    for k in range(5):
        a(f"v_readlane_b32 s{S_NODE+k}, v{H+1}, s10")
        if k < 4: a("s_add_u32 s10, s10, 1")
    for k in range(5): a(f"v_cmp_lt_u32 {sr(S_K+2*k,2)}, s{S_NODE+k}, v{H+1}")
    for k in range(5): a(f"s_bcnt1_i32_b64 s{S_NODE+k}, {sr(S_K+2*k,2)}")
    for k in range(5): a(f"v_writelane_b32 v{T0+1}, s{S_NODE+k}, {k}")
    a(f"""s_sub_u32 s10, s10, 4
    v_add_u32 v{T0+2}, s10, v{T0}
    v_lshrrev_b32 v{T0+3}, 3, v{T0+1}
    v_and_b32 v{T0+1}, 7, v{T0+1}
    v_lshrrev_b32 v{T0+4}, v{T0+3}, {opt.dirmask}
    v_and_b32 v{T0+4}, 1, v{T0+4}
    v_mul_u32_u24 v{T0+4}, 7, v{T0+4}
    v_xor_b32 v{T0+1}, v{T0+1}, v{T0+4}               ; wave
    v_mad_u32_u24 v{T0+1}, v{T0+1}, 5, v{T0+3}
    v_lshlrev_b32 v{T0+1}, 2, v{T0+1}
    s_mov_b64 exec, 0x1f
    ds_write_b32 v{T0+1}, v{T0+2} offset:{L_INV}
    s_mov_b64 exec, -1
DEALT:
    s_lshl_b32 s11, s10, 2
    v_add_u32 v{T0+1}, s11, v{V_SLOT4}
    v_lshlrev_b32 v{T0+5}, 2, v{T0}
""")
    poll_check(a, "REC", TT, V_FLAG, 0, TT + 1)
    a(f"""v_cmp_gt_u32 {sr(S_T,2)}, 60, v{T0}
    s_waitcnt lgkmcnt(0)
    s_barrier""")
    st('dealt')
    a(f"""ds_read_b32 v{T0+1}, v{T0+1} offset:{L_INV}
    ds_read_b32 v{T0+5}, v{T0+5} offset:{L_INV}
    v_lshlrev_b32 v{T0+4}, 17, v{V_SLOT4}             ; slot << 19""")
    for i in range(2):
        a(f"""s_add_u32 m0, s3, {i*8192}
              s_mov_b64 exec, {sr(S_M+2*i,2)}
              buffer_load_dwordx4 v{G+i}, {sr(S_WS,4)}, s9 offen sc1 lds""")
    a(f"""s_add_u32 m0, s3, {2*8192}
    s_mov_b64 exec, {sr(S_M+4,2)}
    s_cbranch_execz SKIP3R
    buffer_load_dwordx4 v{G+2}, {sr(S_WS,4)}, s9 offen sc1 lds
SKIP3R:
    s_mov_b64 exec, -1""")
    x_touch(a, opt, 2)
    a(f"""    s_waitcnt lgkmcnt(1)
    v_mul_u32_u24 v{T0+2}, {HS}, v{T0+1}
    v_add_u32 v{T0+2}, v{T0+2}, v{V_SIG4}
    ds_read_b32 v{T0+3}, v{T0+2} offset:{L_HIST}
    s_waitcnt lgkmcnt(1)
    v_lshlrev_b32 v{T0+5}, 2, v{T0+5}
    ds_bpermute_b32 v{H+2}, v{T0+5}, v{H}""")
    for k in range(5): a(f"v_readlane_b32 s{S_NODE+k}, v{T0+1}, {k}")
    a(f"""s_waitcnt lgkmcnt(0)
    v_cndmask_b32 v{T0+3}, 0, v{T0+3}, {sr(S_T,2)}
    v_cndmask_b32 v{H+2}, 0, v{H+2}, {sr(S_T+4,2)}
    v_sub_u32 v{T0+4}, v{T0+4}, v{T0+3}
    v_mov_b32 v{H+3}, v{H+2}""")
    scan64(a, T0 + 3, H + 3)
    a(f"""v_sub_u32 v{H+3}, v{H+3}, v{H+2}
    v_add_u32 v{T0+4}, v{T0+4}, v{T0+3}
    v_readlane_b32 s{S_START}, v{H+3}, s10
    v_readlane_b32 s{S_END}, v{T0+3}, 63
    s_nop 0
    v_add_u32 v{T0+4}, s{S_START}, v{T0+4}
    s_mov_b64 exec, {sr(S_T,2)}
    ds_write_b32 v{T0+2}, v{T0+4} offset:{L_HIST}
    s_mov_b64 exec, -1
    v_add_u32 v{V_POS}, s{S_START}, v{T0}
    v_lshlrev_b32 v{V_AENT}, 2, v{V_POS}
    v_add_u32 v{V_AENT}, {L_SENT}, v{V_AENT}
    s_add_u32 s10, s{S_END}, 3
    s_and_b32 s10, s10, -4
    s_min_u32 s{S_REMB}, s10, {8 if D == 8 else 4}
    s_sub_u32 s{S_REM}, s10, s{S_REMB}
    s_add_u32 s{S_END}, s{S_END}, s{S_START}""")
    a("s_waitcnt lgkmcnt(0)\ns_barrier")
    st('bases')
    for i in range(3): a(f"ds_read_b32 v{G+8+i}, v{G+8+i} offset:{L_HIST}")
    for i in range(3):
        a(f"""s_waitcnt lgkmcnt({2-i})
              v_lshrrev_b32 v{T0+1}, 16, v{G+8+i}
              v_and_b32 v{G+8+i}, 0xffff, v{G+8+i}
              v_or_b32 v{G+16+i}, v{G+16+i}, v{T0+1}
              v_add_lshl_u32 v{G+8+i}, v{G+8+i}, v{G+12+i}, 2""")
    for i in range(3):
        a(f"""s_mov_b64 exec, {sr(S_M+2*i,2)}
              ds_write_b32 v{G+8+i}, v{G+16+i} offset:{L_SENT}""")
    a("s_mov_b64 exec, -1")
    a("s_waitcnt lgkmcnt(0)")
    a("s_barrier")
    st('sorted')
    if opt.stamps: a(f"s_memtime s[100:101]\ns_waitcnt lgkmcnt(0)\ns_mov_b32 s{S_ST+30}, s100")
    meta_read_entry(a)
    a(f"""s_and_b32 s{S_WM}, s{S_WAVE}, 3
    s_lshl_b32 s{S_WM}, s{S_WM}, 13
    s_add_u32 s{S_WM}, s{S_WM}, {WS_WMIX}
    s_add_u32 s{S_WM+1}, s{S_WM}, 4096""")
    for k in range(8): a(f"v_mov_b32 v{RR+k}, 0")
    a("s_waitcnt lgkmcnt(0)")
    meta_fix_entry(a, False)
    a("s_nop 0")
    for e in range(D):
        a(f"""v_readlane_b32 s{S_K+e}, v{ENT}, {e}
              s_and_b32 s{S_OFF}, s{S_K+e}, s{S_MASK}
              buffer_load_dwordx4 {vr(XR+4*e,4)}, v{V_L16}, {sr(S_X,4)}, s{S_OFF} offen""")
    a(f"v_mov_b32 v{KEY}, v{ENT}\ns_waitcnt vmcnt({D})")
    st('recs landed')
    a("s_barrier")
    meta_read_rec(a)
    a(f"""s_waitcnt lgkmcnt(0)
    v_mov_b32 v{EF}, v{RECN+2}
    v_mov_b32 v{EF+1}, v{RECN+3}""")
    for i in range(4): a(w_mfma(i))
    a(p_mfma(0, 0)); a(p_mfma(0, 1)); a(p_mfma(1, 0))
    a("s_nop 1")
    for m in range(4): w_cvt(a, m)
    for odd in range(2):
        u, r = act_regs(0, odd)
        for h in range(2): a(act_addr(TT + 2 * odd + h, u + h))
        for h in range(2): a(act_read(r + h, TT + 2 * odd + h))
    a(f"s_waitcnt vmcnt({D-1})")
    st('first row')
    a(t_mfma(0, 0)); a(t_mfma(0, 1))
    body(a, opt, True)
    for q in range(0, 64, 4):
        a(f"TO_B_{q}:")
        for k in range(8):
            a(f"buffer_load_dwordx4 {vr(WMIX+4*k,4)}, v{V_L16}, {sr(S_WS,4)}, s{S_WM + k // 4} offen offset:{(k%4)*1024} sc1")
        if q: a(f"s_branch B_{q}")
        else: a("s_branch B_0")
    body(a, opt, False)
    a(f"""MAIN_DONE:
    s_waitcnt vmcnt(0) lgkmcnt(0)
    s_add_u32 s{S_W0}, s{S_W0}, {CAP}
    s_cmp_ge_u32 s{S_W0}, s{S_N}
    s_cbranch_scc1 ALL_DONE""")
    zero_hist(a)
    a("s_waitcnt lgkmcnt(0)\ns_barrier\ns_branch ROUND\nALL_DONE:")
    st('main done')
    if opt.stamps: a(f"s_memtime s[100:101]\ns_waitcnt lgkmcnt(0)\ns_sub_u32 s{S_ST+30}, s100, s{S_ST+30}")
    PK = XR
    for s in range(5):
        for o in range(4): a(f"v_cvt_pk_bf16_f32 v{PK+4*s+o}, v{ACC+8*s+o}, v{ACC+8*s+4+o}")
    a(f"""v_lshrrev_b32 v{T0}, 2, v{V_L16}
    v_add_u32 v{T0}, {L_AGG}, v{T0}""")
    for s in range(5):
        a(f"s_mul_i32 s{S_T}, s{S_NODE+s}, {4 * AGG_RS}\nv_add_u32 v{TP+s}, s{S_T}, v{T0}")
    a(f"""v_lshrrev_b32 v{T0+1}, 4, v{V_L16}            ; lane
    v_and_b32 v{T0+2}, 15, v{T0+1}
    v_lshrrev_b32 v{T0+3}, 4, v{T0+1}                 ; lane >> 4
    s_lshr_b32 s{S_T}, s{S_WAVE}, 2
    s_mul_i32 s{S_T+1}, s{S_T}, {80 * AGG_RS}
    s_add_u32 s{S_T+1}, s{S_T+1}, {L_AGG}
    v_mul_u32_u24 v{T0}, {AGG_RS}, v{T0+2}
    v_lshl_add_u32 v{T0}, v{T0+3}, 4, v{T0}
    v_add_u32 v{T0}, s{S_T+1}, v{T0}
    s_mul_i32 s{S_T}, s{S_T}, {20 << 18}
    s_lshl_b32 s{S_T+1}, s{S_BETA}, 10
    s_add_u32 s{S_T}, s{S_T}, s{S_T+1}
    s_and_b32 s{S_T+1}, s{S_WAVE}, 3
    s_lshl_b32 s{S_T+1}, s{S_T+1}, 8
    s_add_u32 s{S_T}, s{S_T}, s{S_T+1}
    v_lshlrev_b32 v{T0+3}, 18, v{T0+3}
    v_lshl_add_u32 v{T0+3}, v{T0+2}, 4, v{T0+3}
    v_add_u32 v{T0+3}, s{S_T}, v{T0+3}
    s_barrier""")
    st('all main done')
    for s in range(5):
        for o in range(4): a(f"ds_write_b32 v{TP+s}, v{PK+4*s+o} offset:{o*AGG_RS}")
    a("s_waitcnt lgkmcnt(0)\ns_barrier")
    st('agg in LDS')
    AF = XR
    def rd(t):
        for ks in range(4): a(f"ds_read_b128 {vr(AF+16*(t%2)+4*ks,4)}, v{T0} offset:{t*16*AGG_RS + ks*64}")
    def pack_store(t):
        d = ACC + 8 * t; p = RR + 4 * (t % 2)
        for j in range(4): a(f"v_cvt_pk_bf16_f32 v{p+j}, v{d+2*j}, v{d+2*j+1}")
        a(f"buffer_store_dwordx4 {vr(p,4)}, v{T0+3}, {sr(S_OUT,4)}, 0 offen {opt.outst}")
        if t < 4: a(f"v_add_u32 v{T0+3}, {4 << 18}, v{T0+3}")
    rd(0)
    for t in range(5):
        if t < 4: rd(t + 1)
        for ks in range(4):
            a(f"s_waitcnt lgkmcnt({(4 if t < 4 else 0) + 3 - ks})")
            for j in range(2):
                d = ACC + 8 * t + 4 * j
                a(f"v_mfma_f32_16x16x32_bf16 {vr(d,4)}, {vr(AF+16*(t%2)+4*ks,4)}, {vr(WMIX+16*j+4*ks,4)}, " + ("0" if ks == 0 else vr(d, 4)))
            if ks == 3 and t > 0: pack_store(t - 1)
    a("s_nop 7")
    pack_store(4)
    st('end')
    if opt.probe:
        a(f"""s_cmp_eq_u32 s93, 0
        s_cselect_b32 s93, s92, s93
        s_sub_u32 s93, s93, s92
        s_mul_i32 s93, s93, 4
        s_add_u32 s92, s92, s93
        s_add_u32 s92, s92, 6000
        HOLD_SPIN:
        s_memrealtime s[98:99]
        s_waitcnt lgkmcnt(0)
        s_sub_u32 s98, s98, s92
        s_cmp_lt_i32 s98, 0
        s_cbranch_scc1 HOLD_SPIN""")
    if opt.stamps:
        a("s_waitcnt vmcnt(0)")
        st('stores done 2')
        a(f"""s_lshl_b32 s10, s2, 3
        s_add_u32 s10, s10, s{S_WAVE}
        s_lshl_b32 s10, s10, 7
        s_add_u32 s10, s10, {WS_STAMP}
        v_mov_b32 v{T0}, s10
        s_sub_u32 s{S_ST+31}, s{S_END}, s{S_START}
        s_sub_u32 s{S_ST+29}, {1 << 21}, s{S_SPIN}""")
        for k in range(32): a(f"v_mov_b32 v{XR+k}, s{S_ST+k}")
        for k in range(8): a(f"buffer_store_dwordx4 {vr(XR+4*k,4)}, v{T0}, {sr(S_WS,4)}, 0 offen offset:{16*k}")
    a("END:\ns_endpgm")
    return a.text()

def generate(opt):
    here = os.path.dirname(os.path.abspath(__file__))
    out = open(here + "/header.txt").read()
    out += f"; @launch grid=(256,1,1) block=(512,1,1) lds={LDS_BYTES}\n"
    out += f'.amdgcn_target "amdgcn-amd-amdhsa--gfx950"\n.text\n.globl {KERN}\n.p2align 8\n.type {KERN},@function\n'
    out += kernel(opt)
    out += f""".section .rodata,"a"
.p2align 6
.amdhsa_kernel {KERN}
  .amdhsa_next_free_vgpr {NVGPR}
  .amdhsa_next_free_sgpr {NSGPR if opt.stamps or opt.probe else 66}
  .amdhsa_accum_offset {(NVGPR + 3) // 4 * 4}
  .amdhsa_group_segment_fixed_size 0
  .amdhsa_kernarg_size 88
  .amdhsa_user_sgpr_count 2
  .amdhsa_user_sgpr_kernarg_segment_ptr 1
  .amdhsa_system_sgpr_workgroup_id_x 1
  .amdhsa_float_denorm_mode_32 3
.end_amdhsa_kernel
"""
    return out

def options(argv):
    p = argparse.ArgumentParser()
    p.add_argument("-o", default="/code/" + NAME + ".s")
    p.add_argument("--stamps", action="store_true")
    p.add_argument("--probe", default="")
    p.add_argument("--D", type=int, default=7)
    p.add_argument("--hsplit", type=int, default=52)
    p.add_argument("--retry", default="sc1")
    p.add_argument("--rdy", type=int, default=0)
    p.add_argument("--xp", type=int, default=-1)
    p.add_argument("--xt", default="1:0:20")
    p.add_argument("--ipf", type=int, default=1)
    p.add_argument("--lsplit", type=int, default=15)
    p.add_argument("--keypf", type=int, default=1)
    p.add_argument("--k1st", default="sc0 sc1")
    p.add_argument("--outst", default="sc0 sc1")
    p.add_argument("--dirmask", type=int, default=0x12)
    return p.parse_args(argv)

if __name__ == "__main__":
    opt = options(sys.argv[1:])
    RETRY = opt.retry
    open(opt.o, "w").write(generate(opt))
    if opt.stamps: open(opt.o + ".names", "w").write(repr(STAMPS))
```

```python
import sys, argparse, os

NAME = "gather_scatter__tensor_product_equiv_tfn__graph"
KERN = NAME + "_kernel"
N, E, C = 10000, 320000, 128
NP, EP = 250, 1280
WS_KEY = 0
WS_REC = 0x280000
WS_WMIX = 0x771000
WS_TAB = 0x780000
WS_RDY = WS_TAB + 256 * 2048
WS_EPOCH = WS_RDY + 256 * 1024
WS_END = WS_EPOCH + 128
WS_STAMP = 0x900000
CAP = 1472

class Asm:
    def __init__(self): self.l = []
    def __call__(self, s):
        for line in s.strip("\n").split("\n"):
            line = line.strip()
            if not line: continue
            self.l.append(line if line.endswith(":") else "    " + line)
    def text(self): return "\n".join(self.l) + "\n"

def vr(a, n=1): return f"v{a}" if n == 1 else f"v[{a}:{a+n-1}]"
def sr(a, n=1): return f"s{a}" if n == 1 else f"s[{a}:{a+n-1}]"

SCAN_STEPS = ["row_shr:1 row_mask:0xf bank_mask:0xf bound_ctrl:0", "row_shr:2 row_mask:0xf bank_mask:0xf bound_ctrl:0",
              "row_shr:4 row_mask:0xf bank_mask:0xf bound_ctrl:0", "row_shr:8 row_mask:0xf bank_mask:0xf bound_ctrl:0",
              "row_bcast:15 row_mask:0xa bank_mask:0xf", "row_bcast:31 row_mask:0xc bank_mask:0xf"]
def scan64(a, *regs):
    for c in SCAN_STEPS:
        a("s_nop 1" if len(regs) == 1 else "s_nop 0")
        for v in regs: a(f"v_add_u32_dpp v{v}, v{v}, v{v} {c}")

NSB, HS = 12, 48
L_HIST = 0; L_INV = 40 * HS; L_WT = L_INV + 256; L_CNT = L_WT + 64
L_SENT = L_WT + 128
L_UREC = L_SENT + CAP * 4
L_CG = L_UREC + CAP * 16
L_LUT = 32768
L1_HIST = L_SENT; L1_BASE = L1_HIST + 1024; L1_SREC = L1_BASE + 1024
L1_SKEY = L_LUT + 53 * 1024
assert L_CG + 128 <= L_LUT and L1_SREC + EP * 16 <= L_LUT and L1_BASE <= 4096
L_AGG = L_LUT; AGG_RS = 288
LDS_BYTES = L_LUT + 131072

V_L16 = 1
V_LEN, V_PRE, V_GID = 2, 3, 4
V_AENT, V_POS = 5, 6
V_SLOT4, V_SIG4, V_ONE = 7, 14, 15
V_FLAG = 166
T0 = 8
ACC = 16; XR = 64; TP = 96; UU = 112; RR = 128; TT = 136; WPK = 140; WTMP = 148
KEY = 164; ENT = 165; RECN = 168; EF = 172; CONST = 176; WMIX = 188
NVGPR = 220
PE, PO, CGB = CONST, CONST + 2, CONST + 4
LJ = 128
S_NODE = 4
S_X, S_WS, S_OUT = 12, 16, 20
S_BETA, S_WAVE, S_N, S_W0, S_NWIN, S_START, S_END, S_REM, S_REMB, S_OFF, S_MASK = range(24, 35)
S_SPIN = 35
S_M = 36
S_T = 42
S_K = 48
S_IN = 40
S_JOB, S_JCNT = 62, 63
S_NLO, S_NHI = 64, 65
S_WM = 10
S_L2E = 10
S_ST = 66
NSGPR = 102

STAMPS = []
def stamp(a, opt, name):
    if opt.probe == name: a("s_memrealtime s[98:99]\ns_waitcnt lgkmcnt(0)\ns_mov_b32 s93, s98")
    if not opt.stamps: return
    if name not in STAMPS: STAMPS.append(name)
    a(f"s_memrealtime s[98:99]\ns_waitcnt lgkmcnt(0)\ns_mov_b32 s{S_ST + STAMPS.index(name)}, s98")

S_RET = 6
def lut_sub(a):
    J, Ex, R, P = LJ, LJ + 8, LJ + 16, LJ + 24
    a(f"""LUT_SUB:
    s_lshl_b32 s3, s{S_JOB}, 25
    s_add_u32 s3, s3, 0x8000
    v_lshl_add_u32 v{J}, v{V_L16}, 15, s3""")
    for k in range(1, 8): a(f"v_add_u32 v{J+k}, 0x10000, v{J+k-1}")
    for k in range(0, 8, 2): a(f"v_pk_mul_f32 {vr(Ex+k,2)}, {vr(J+k,2)}, {sr(S_L2E,2)}")
    for k in range(8): a(f"v_exp_f32 v{Ex+k}, v{Ex+k}")
    a(f"s_lshl_b32 s3, s{S_JOB}, 10")
    for k in range(0, 8, 2): a(f"v_pk_add_f32 {vr(R+k,2)}, {vr(Ex+k,2)}, 1.0 op_sel_hi:[1,0]")
    for k in range(8): a(f"v_rcp_f32 v{R+k}, v{R+k}")
    a(f"v_add_u32 v{P+8}, s3, v{V_L16}")
    for k in range(0, 8, 2): a(f"v_pk_mul_f32 {vr(J+k,2)}, {vr(J+k,2)}, {vr(R+k,2)}")
    a(f"v_add_u32 v{P+9}, 0x10000, v{P+8}")
    for k in range(0, 8, 2): a(f"v_pk_mul_f32 {vr(Ex+k,2)}, {vr(J+k,2)}, {vr(Ex+k,2)} neg_lo:[1,0] neg_hi:[1,0]")
    for k in range(4): a(f"v_cvt_pk_bf16_f32 v{P+k}, v{J+2*k}, v{J+2*k+1}")
    for k in range(4): a(f"v_cvt_pk_bf16_f32 v{P+4+k}, v{Ex+2*k}, v{Ex+2*k+1}")
    a(f"""ds_write_b128 v{P+8}, {vr(P,4)} offset:{L_LUT}
    ds_write_b128 v{P+9}, {vr(P+4,4)} offset:{L_LUT}
    s_add_u32 s{S_JOB}, s{S_JOB}, 1
    s_sub_u32 s{S_JCNT}, s{S_JCNT}, 1
    s_cmp_lg_u32 s{S_JCNT}, 0
    s_cbranch_scc1 LUT_SUB
    s_setpc_b64 {sr(S_RET,2)}""")
def lut_jobs(a, count): a(f"s_mov_b32 s{S_JCNT}, {count}\ns_call_b64 {sr(S_RET,2)}, LUT_SUB")

def lut_plain(a, tag, region, last=None, cont=False):
    P = LJ
    for name, first, end, bias in (("L", 1, 24, 0x20000 - 0x800080), ("H", 34, 62, 0x20000)):
        if name != region: continue
        last = last or end
        if cont: a(f"s_cmp_gt_u32 s{S_JOB}, {last}\ns_cbranch_scc1 LUTP_END_{tag}")
        else: a(f"s_add_u32 s{S_JOB}, s{S_WAVE}, {first}")
        if name == "H" and not cont:
            for k in range(4): a(f"v_mov_b32 v{P+4+k}, 0x80008000")
        a(f"""LUTP_{tag}{name}:
        s_mul_i32 s3, s{S_JOB}, {512 * 0x10001}
        s_add_u32 s3, s3, {bias & 0xffffffff}
        v_add_u32 v{P}, s3, v{P+10}
        s_lshl_b32 s3, s{S_JOB}, 10
        v_add_u32 v{P+8}, s3, v{V_L16}""")
        for k in range(1, 4): a(f"v_add_u32 v{P+k}, {k * 0x20002}, v{P}")
        a(f"v_add_u32 v{P+9}, 0x10000, v{P+8}")
        if name == "L":
            for k in range(4): a(f"v_or_b32 v{P+4+k}, 0x80008000, v{P+k}")
        a(f"""ds_write_b128 v{P+8}, {vr(P,4)} offset:{L_LUT}
        ds_write_b128 v{P+9}, {vr(P+4,4)} offset:{L_LUT}
        s_add_u32 s{S_JOB}, s{S_JOB}, {5 if name == "L" else 4}
        s_cmp_le_u32 s{S_JOB}, {last}
        s_cbranch_scc1 LUTP_{tag}{name}
        LUTP_END_{tag}:""")

def flag_store(a, base):
    a(f"""s_lshl_b32 s3, s2, 10
    s_add_u32 s3, s3, {base}
    v_lshl_add_u32 v{T0+2}, v{V_L16}, 3, s3
    v_mov_b32 v{T0+4}, s{S_NLO}
    v_mov_b32 v{T0+5}, s{S_NHI}
    s_mov_b64 exec, 0xff
    global_store_dwordx2 v{T0+2}, {vr(T0+4,2)}, {sr(S_WS,2)} sc0 sc1
    s_mov_b64 exec, -1""")

def poll_issue(a, dst, addr, soff):
    a(f"buffer_load_dwordx2 {vr(dst,2)}, v{addr}, {sr(S_WS,4)}, {soff} offen sc1")
def poll_check(a, tag, dst, addr, soff, hi, pre="", younger=0):
    if younger: a(f"s_waitcnt vmcnt({younger})\ns_branch CHECK_{tag}")
    a(f"""POLL_{tag}:
    s_waitcnt vmcnt(0)
    CHECK_{tag}:
    {pre}
    v_cmp_ne_u32 vcc, s{S_NLO}, v{dst + 1 if pre else dst}
    v_cmp_ne_u32 {sr(S_T,2)}, s{S_NHI}, v{hi}
    s_or_b64 vcc, vcc, {sr(S_T,2)}
    s_and_b64 exec, exec, vcc
    s_cbranch_execz POLLED_{tag}
    s_sub_u32 s{S_SPIN}, s{S_SPIN}, 1
    s_cbranch_scc1 END""")
    poll_issue(a, dst, addr, soff)
    a(f"""s_branch POLL_{tag}
    POLLED_{tag}:
    s_mov_b64 exec, -1""")

def load_epoch(a):
    a(f"""s_add_u32 s4, s{S_WS}, {WS_EPOCH}
    s_addc_u32 s5, s{S_WS+1}, 0
    s_load_dwordx2 {sr(S_NLO,2)}, s[4:5], 0""")
def make_tag(a):
    a(f"""s_add_u32 s{S_NLO}, s{S_NLO}, 1
    s_and_b32 s{S_NHI}, s{S_NHI}, 0x3ff""")

def scan256(a, H_, O_):
    a(f"""v_add_u32 v{T0+2}, v{H_}, v{H_+1}
    v_add3_u32 v{T0+2}, v{T0+2}, v{H_+2}, v{H_+3}
    v_mov_b32 v{T0+3}, v{T0+2}""")
    scan64(a, T0 + 3)
    a(f"""v_sub_u32 v{O_}, v{T0+3}, v{T0+2}
    v_add_u32 v{O_+1}, v{O_}, v{H_}
    v_add_u32 v{O_+2}, v{O_+1}, v{H_+1}
    v_add_u32 v{O_+3}, v{O_+2}, v{H_+2}""")

SRC, DST, YY, EFP, WRAD, CG, WMX = S_IN + 2, S_IN + 4, S_IN + 6, S_IN + 8, S_IN + 10, S_IN + 12, S_IN + 14
D_, S_, Y_, F_, B_, R_, H_, O_, TB = 64, 68, 72, 80, 88, 92, 96, 100, 108
CT = WMIX
def const_sub(a):
    a(f"""CONST_SUB:
    ds_write_b32 v{CT+5}, v{CT+4} offset:{L_CG}
    v_lshrrev_b32 v{CT+5}, 3, v{V_L16}
    v_and_b32 v{CT+5}, 24, v{CT+5}
    s_mov_b32 s4, 0x05040100
    s_mov_b32 s5, 0x07060302""")
    for i in range(4): a(f"ds_read_b64_tr_b16 {vr(CGB+2*i,2)}, v{CT+5} offset:{L_CG + 32*i}")
    for u in range(2):
        a(f"v_perm_b32 v{PE+u}, v{CT+1+2*u}, v{CT+2*u}, s4\nv_perm_b32 v{PO+u}, v{CT+1+2*u}, v{CT+2*u}, s5")
    a(f"s_setpc_b64 {sr(S_RET,2)}")
def const_finish(a): a(f"s_call_b64 {sr(S_RET,2)}, CONST_SUB")

def phase1(a, opt):
    st = lambda n: stamp(a, opt, n)
    WS = sr(S_WS, 2); FL = opt.k1st
    a(f"""s_cmp_ge_u32 s{S_WAVE}, 5
    s_cbranch_scc1 HELP""")
    lut_plain(a, "W0", "L", last=opt.lsplit)
    a(f"""s_cmp_ge_u32 s2, {NP}
    s_cbranch_scc1 AUX_LOAD
    global_load_dwordx4 {vr(Y_,4)}, v{T0+1}, {sr(YY,2)}
    global_load_dwordx4 {vr(Y_+4,4)}, v{T0+1}, {sr(YY,2)} offset:16
    global_load_dwordx4 {vr(F_,4)}, v{T0+1}, {sr(EFP,2)}
    global_load_dwordx4 {vr(F_+4,4)}, v{T0+1}, {sr(EFP,2)} offset:16
LOADED:
    s_cmp_ge_u32 s2, {NP}
    s_cbranch_scc1 AUX""")
    st('jobs A')
    a("s_waitcnt vmcnt(10)")
    st('dst arrived')
    for k in range(4):
        a(f"""v_and_b32 v{B_+k}, 0xff, v{D_+k}
              v_lshlrev_b32 v{B_+k}, 2, v{B_+k}
              ds_add_rtn_u32 v{R_+k}, v{B_+k}, v{V_ONE} offset:{L1_HIST}""")
    a("s_waitcnt vmcnt(9)")
    for k in range(4):
        a(f"""v_lshrrev_b32 v{D_+k}, 8, v{D_+k}
              v_lshl_or_b32 v{TB+2*k}, v{S_+k}, 10, v{D_+k}""")
    a(f"""s_mov_b32 s9, {L1_SKEY}
    s_waitcnt lgkmcnt(0)
    s_barrier
    ds_read_b128 {vr(H_,4)}, v{V_L16} offset:{L1_HIST}""")
    make_tag(a)
    for k in range(4): a(f"v_mov_b32 v{TB+2*k+1}, s{S_NLO}")
    a("s_waitcnt lgkmcnt(0)")
    scan256(a, H_, O_)
    a(f"ds_write_b128 v{V_L16}, {vr(O_,4)} offset:{L1_BASE}")
    for k in range(4): a(f"ds_read_b32 v{H_+k}, v{B_+k} offset:{L1_BASE}")
    for k in range(4):
        a(f"""s_waitcnt lgkmcnt(3)
              v_add_u32 v{R_+k}, v{R_+k}, v{H_+k}
              v_lshl_add_u32 v{B_+k}, v{R_+k}, 3, s9
              ds_write_b64 v{B_+k}, {vr(TB+2*k,2)}""")
    for k in range(4):
        a(f"v_lshlrev_b32 v{R_+k}, 4, v{R_+k}\nv_add_u32 v{R_+k}, {L1_SREC}, v{R_+k}")
    a("s_waitcnt lgkmcnt(0)\ns_barrier")
    st('keys binned')
    a("s_waitcnt vmcnt(0)")
    for k in range(4):
        a(f"ds_write2_b64 v{R_+k}, {vr(Y_+2*k,2)}, {vr(F_+2*k,2)} offset0:0 offset1:1")
    st('recs binned')
    a("BINNED:\ns_setprio 0")
    const_finish(a)
    lut_plain(a, "W", "L", cont=True)
    a(f"""v_mov_b32 v{V_LEN}, 0
    s_cmp_eq_u32 s{S_WAVE}, 4
    s_cbranch_scc1 WAVE4""")
    lut_plain(a, "U", "H", last=opt.hsplit)
    poll_issue(a, V_LEN, V_POS, 0)
    a("s_waitcnt lgkmcnt(0)\ns_barrier")
    st('tab issued')
    lut_plain(a, "V", "H", cont=True)
    poll_check(a, "TAB", V_LEN, V_POS, 0, T0 + 3, f"v_lshrrev_b32 v{T0+3}, 22, v{V_LEN}")
    st('tab arrived')
    a("s_branch TAB_DONE")
    lut_sub(a)
    const_sub(a)
    a(f"""HELP:
    s_cmp_eq_u32 s{S_WAVE}, 6                       ; jobs 0 / 25 / 63
    s_cselect_b32 s{S_JOB}, 25, 0
    s_cmp_eq_u32 s{S_WAVE}, 7
    s_cselect_b32 s{S_JOB}, 63, s{S_JOB}""")
    lut_jobs(a, 1)
    st('help jobs')
    a(f"""v_mov_b32 v{T0+2}, {0x7f80 * 2}
    v_mov_b32 v{T0+3}, 0x7f80
    s_cmp_lg_u32 s{S_WAVE}, 7
    s_cbranch_scc1 NO_INF
    ds_write_b16 v{T0+2}, v{T0+3} offset:{L_LUT}
NO_INF:
    s_waitcnt vmcnt(0)""")
    const_finish(a)
    a(f"""s_sub_u32 s8, s{S_WAVE}, 5
    s_mul_i32 s4, s8, 3072
    s_cmp_eq_u32 s8, 1
    s_cselect_b32 s4, 4096, s4
    s_mul_i32 s3, s2, {EP * 8}
    s_add_u32 s3, s3, s4
    v_add_u32 v{T0}, s3, v{V_L16}
    s_add_u32 s4, s4, {L1_SKEY}
    v_add_u32 v{T0+1}, s4, v{V_L16}
    s_mul_i32 s4, s8, 7168
    s_mul_i32 s3, s2, {EP * 16}
    s_add_u32 s3, s3, s4
    s_add_u32 s3, s3, {WS_REC}
    v_add_u32 v{T0+4}, s3, v{V_L16}
    v_add_u32 v{T0+5}, s4, v{V_L16}
    s_waitcnt lgkmcnt(0)""")
    make_tag(a)
    a(f"""s_barrier
    s_cmp_lg_u32 s{S_WAVE}, 6
    s_cbranch_scc1 NO_ROW
    ds_read_b128 {vr(H_,4)}, v{V_L16} offset:{L1_HIST}
    s_lshl_b32 s3, s2, 11
    s_add_u32 s3, s3, {WS_TAB}
    v_lshl_add_u32 v{TB+8}, v{V_L16}, 1, s3
    s_lshl_b32 s3, s{S_NHI}, 22
    s_waitcnt lgkmcnt(0)""")
    scan256(a, H_, O_)
    for k in range(4):
        a(f"""v_lshl_or_b32 v{TB+2*k}, v{H_+k}, 11, v{O_+k}
              v_or_b32 v{TB+2*k}, s3, v{TB+2*k}
              v_mov_b32 v{TB+2*k+1}, s{S_NLO}""")
    a(f"""global_store_dwordx4 v{TB+8}, {vr(TB,4)}, {WS} sc0 sc1
    global_store_dwordx4 v{TB+8}, {vr(TB+4,4)}, {WS} offset:16 sc0 sc1""")
    st('table published')
    a("NO_ROW:\ns_barrier")
    for k in range(4): a(f"ds_read_b128 {vr(64+4*k,4)}, v{T0+1} offset:{1024*k}")
    for k in range(4):
        if k == 2: a(f"s_cmp_eq_u32 s8, 1\ns_cbranch_scc1 KEYS_STORED")
        a(f"s_waitcnt lgkmcnt({3-k})\nglobal_store_dwordx4 v{T0}, {vr(64+4*k,4)}, {WS} offset:{1024*k} {FL}")
    a(f"""KEYS_STORED:
    v_mov_b32 v{V_LEN}, 0
    s_waitcnt lgkmcnt(0)
    s_barrier
    s_cmp_ge_u32 s2, {NP}
    s_cbranch_scc1 TAB_DONE""")
    for k in range(7): a(f"ds_read_b128 {vr(84+4*k,4)}, v{T0+5} offset:{L1_SREC + 1024*k}")
    for k in range(7):
        if k == 4: a(f"v_add_u32 v{T0+4}, 4096, v{T0+4}")
        if k == 6: a(f"s_cmp_eq_u32 s8, 2\ns_cbranch_scc1 TAB_DONE")
        a(f"s_waitcnt lgkmcnt({6-k})\nglobal_store_dwordx4 v{T0+4}, {vr(84+4*k,4)}, {WS} offset:{(1024*k) % 4096} {FL}")
    a("s_branch TAB_DONE")
    a(f"""AUX_LOAD:
    s_cmp_ge_u32 s2, {NP + 4}
    s_cbranch_scc1 LOADED
    s_cmp_ge_u32 s{S_WAVE}, 4
    s_cbranch_scc1 LOADED
    s_sub_u32 s4, s2, {NP}
    s_lshl_b32 s5, s{S_WAVE}, 13
    s_lshl_b32 s8, s4, 6
    s_add_u32 s5, s5, s8
    v_lshrrev_b32 v{T0+1}, 8, v{V_L16}
    v_lshlrev_b32 v{T0+1}, 11, v{T0+1}
    v_bfe_u32 v{T0+2}, v{V_L16}, 4, 4
    v_lshl_add_u32 v{T0+1}, v{T0+2}, 2, v{T0+1}
    v_add_u32 v{T0+1}, s5, v{T0+1}
    s_lshl_b32 s5, s4, 13
    s_lshl_b32 s8, s{S_WAVE}, 10
    s_add_u32 s5, s5, s8
    s_add_u32 s5, s5, {WS_WMIX}
    v_add_u32 v{T0+2}, s5, v{V_L16}""")
    for t in range(8): a(f"global_load_dword v{64+t}, v{T0+1}, {sr(WMX,2)} offset:{t*256}")
    a(f"""s_branch LOADED
AUX:
    s_cmp_ge_u32 s2, {NP + 4}
    s_cbranch_scc1 AUX_DONE
    s_cmp_ge_u32 s{S_WAVE}, 4
    s_cbranch_scc1 AUX_DONE
    s_mov_b32 s4, 0x05040100
    s_mov_b32 s5, 0x07060302
    s_waitcnt vmcnt(0)""")
    for u in range(4):
        a(f"v_perm_b32 v{72+u}, v{65+2*u}, v{64+2*u}, s4\nv_perm_b32 v{76+u}, v{65+2*u}, v{64+2*u}, s5")
    a(f"""global_store_dwordx4 v{T0+2}, v[72:75], {WS} {FL}
    v_add_u32 v{T0+2}, 4096, v{T0+2}
    global_store_dwordx4 v{T0+2}, v[76:79], {WS} {FL}
AUX_DONE:
    s_waitcnt lgkmcnt(0)""")
    make_tag(a)
    a(f"""s_barrier
    s_barrier
    s_waitcnt vmcnt(0)
    s_branch BINNED
WAVE4:
    s_mov_b32 s{S_JOB}, 26
    s_waitcnt lgkmcnt(0)
    s_barrier""")
    lut_jobs(a, 2)
    a("TAB_DONE:")

def mfma4(d, a_, b, c, blk=None):
    cc = "0" if c is None else vr(c, 4)
    return f"v_mfma_f32_4x4x4_16b_bf16 {vr(d,4)}, {vr(a_,2)}, {vr(b,2)}, {cc}" + ("" if blk is None else f" cbsz:4 abid:{blk}")
def p_mfma(g, odd):
    return mfma4(UU + 8 * (g % 2) + 4 * odd, EF, PO if odd else PE, None, g % 16)
def t_mfma(e, odd):
    return mfma4(TP + 8 * (e % 2) + 4 * odd, WPK + 2 * (e % 4), XR + 4 * (e % 8) + 2 * odd, None, (e % 64) // 4)
def act_regs(eb, odd):
    return UU + 8 * ((eb // 4) % 2) + 4 * odd + eb % 4, RR + 4 * ((eb // 2) % 2) + 2 * odd
def act_addr(t, u):
    return f"v_lshlrev_b32_sdwa v{t}, v{V_ONE}, v{u} dst_sel:DWORD dst_unused:UNUSED_PAD src0_sel:DWORD src1_sel:WORD_1"
def act_read(r, t): return f"ds_read_u16_d16_hi v{r}, v{t} offset:{L_LUT}"
def fma4(a, q):
    h = q % 2
    a(f"s_set_gpr_idx_on s{S_K + q % 16}, 0xc")
    for odd in range(2):
        r = RR + 4 * ((q // 2) % 2) + 2 * odd
        for o in (0, 2):
            acc = ACC + 4 * odd + o; tp = TP + 8 * (q % 2) + 4 * odd + o
            a(f"v_pk_fma_f32 {vr(acc,2)}, {vr(r,2)}, {vr(tp,2)}, {vr(acc,2)} op_sel:[{h},0,0] op_sel_hi:[{h},1,1]")
    a("s_set_gpr_idx_off")
def meta_read_entry(a): a(f"ds_read_b32 v{ENT}, v{V_AENT}")
def meta_fix_entry(a, rec=True):
    a(f"""v_cmp_gt_u32 vcc, s{S_END}, v{V_POS}
          v_add_u32 v{V_POS}, 64, v{V_POS}
          v_add_u32 v{V_AENT}, 256, v{V_AENT}
          v_cndmask_b32 v{ENT}, 40, v{ENT}, vcc
          v_lshrrev_b32 v{T0}, 21, v{ENT}
          v_lshlrev_b32 v{T0}, 4, v{T0}
          v_lshlrev_b32 v{T0+1}, 3, v{ENT}""")
    if rec: meta_read_rec(a)
    a(f"""v_and_b32 v{T0+1}, 0xfffc00, v{T0+1}
          v_and_or_b32 v{ENT}, v{ENT}, 56, v{T0+1}""")
def meta_read_rec(a): a(f"ds_read_b128 {vr(RECN,4)}, v{T0} offset:{L_UREC}")
def w_mfma(i): return mfma4(WTMP + 4 * i, RECN, CGB + 2 * i, None)
def w_cvt(a, m):
    a(f"""v_cvt_pk_bf16_f32 v{WPK+2*m}, v{WTMP+m}, v{WTMP+4+m}
          v_cvt_pk_bf16_f32 v{WPK+2*m+1}, v{WTMP+8+m}, v{WTMP+12+m}""")

def body(a, opt, loads):
    D = opt.D; tag = "A" if loads else "B"
    for q in range(64):
        if q % 4 == 0:
            a(f"{tag}_{q}:")
            if loads: a(f"s_sub_u32 s{S_REM}, s{S_REM}, 4\ns_cbranch_scc1 TO_B_{q}")
            else:     a(f"s_sub_u32 s{S_REMB}, s{S_REMB}, 4\ns_cbranch_scc1 MAIN_DONE")
        eb = q + 2 - q % 2; odd = q % 2
        u, r = act_regs(eb, odd); t = TT + 2 * odd
        g, ur = (q + 6) // 4, (q + 6) % 4
        if ur % 2 == 0: a(p_mfma(g, ur // 2))
        elif 40 <= q < 48: a(w_mfma((q - 40) // 2))
        a(act_addr(t, u))
        a(f"s_waitcnt vmcnt({D - 2 if loads else 8 + max(0, D - (6 if D == 8 else 2) - q % 4)})")
        a(t_mfma(q + 1, 0))
        if loads: a(f"v_readlane_b32 s{S_K + (q + D) % 16}, v{KEY if q + D < 64 else ENT}, {(q + D) % 64}")
        else:     a("s_nop 0")
        a(t_mfma(q + 1, 1))
        a(act_addr(t + 1, u + 1))
        a(act_read(r, t)); a(act_read(r + 1, t + 1))
        if q >= 60: w_cvt(a, q - 60)
        if loads:
            a(f"s_and_b32 s{S_OFF}, s{S_K + (q + D) % 16}, s{S_MASK}")
            a(f"buffer_load_dwordx4 {vr(XR + 4 * ((q + D) % 8), 4)}, v{V_L16}, {sr(S_X,4)}, s{S_OFF} offen")
        if q % 2 == 0: a("s_waitcnt lgkmcnt(2)")
        fma4(a, q)
        if q == 8: meta_read_entry(a)
        if q == 12: meta_fix_entry(a)
        if q == 57: a(f"v_mov_b32 v{EF}, v{RECN+2}\nv_mov_b32 v{EF+1}, v{RECN+3}\ns_nop 1")
        if q == 63: a(f"v_mov_b32 v{KEY}, v{ENT}")
    if opt.stamps and loads:
        STAMPS.extend(("batch 1", "batch 2")); k = S_ST + len(STAMPS) - 2
        a(f"""s_memrealtime s[98:99]
        s_waitcnt lgkmcnt(0)
        s_cmp_eq_u32 s{k}, 0
        s_cselect_b32 s99, 0, s98
        s_cselect_b32 s{k}, s98, s{k}
        s_cmp_eq_u32 s{k+1}, 0
        s_cselect_b32 s{k+1}, s99, s{k+1}""")
    if opt.probe == "batch 1" and loads:
        a("s_memrealtime s[98:99]\ns_waitcnt lgkmcnt(0)\ns_cmp_eq_u32 s93, 0\ns_cselect_b32 s93, s98, s93")
    a(f"s_branch {tag}_0")

def x_touch(a, opt, where, guard=True):
    for spec in filter(None, opt.xt.split(",")):
        w, lo, hi = map(int, spec.split(":"))
        if w != where: continue
        if guard: a(f"s_cmp_lg_u32 s{S_W0}, 0\ns_cbranch_scc1 NO_X_TOUCH_{w}")
        a(f"""s_lshl_b32 s4, s2, 3
        s_add_u32 s4, s4, s{S_WAVE}
        s_lshl_b32 s4, s4, 7
        s_add_u32 s4, s4, {lo << 18}
        v_min_u32 v{TT+2}, {(hi - lo - 1) * 16}, v{V_L16}
        v_lshl_add_u32 v{TT+2}, v{TT+2}, 14, s4
        buffer_load_dword v{V_FLAG+1}, v{TT+2}, {sr(S_X,4)}, 0 offen
        NO_X_TOUCH_{w}:""")

def zero_hist(a):
    a(f"""v_lshlrev_b32 v{T0+3}, 2, v0
    v_mov_b32 v{T0+4}, 0
    v_cmp_gt_u32 vcc, {40 * HS // 4}, v0
    s_and_saveexec_b64 {sr(S_T,2)}, vcc
    ds_write_b32 v{T0+3}, v{T0+4} offset:{L_HIST}
    s_mov_b64 exec, {sr(S_T,2)}""")

def kernel(opt):
    a = Asm(); D = opt.D
    st = lambda n: stamp(a, opt, n)
    a(f"""{KERN}:
    s_cmp_ge_u32 s2, 256
    s_cbranch_scc1 END""")
    if opt.probe: a("s_mov_b32 s93, 0\ns_memrealtime s[98:99]\ns_waitcnt lgkmcnt(0)\ns_mov_b32 s92, s98")
    if opt.stamps:
        for k in range(32): a(f"s_mov_b32 s{S_ST+k}, 0")
    st('start')
    a(f"""s_load_dwordx16 {sr(S_IN,16)}, s[0:1], 0
    s_load_dwordx2 {sr(S_WS,2)}, s[0:1], 80
    s_load_dwordx2 {sr(S_X,2)}, s[0:1], 0
    s_load_dwordx2 {sr(S_OUT,2)}, s[0:1], 64
    ; wave 7 of every workgroup takes 8 lines; the 32 workgroups with equal id % 8 cover 32 KiB
    s_getpc_b64 s[6:7]
CODE_HERE:
    v_lshrrev_b32 v{T0}, 6, v0
    s_lshr_b32 s5, s2, 3
    s_lshl_b32 s4, s5, 10
    v_readfirstlane_b32 s{S_WAVE}, v{T0}
    v_and_b32 v{T0+2}, 7, v0
    v_lshl_add_u32 v{T0+2}, v{T0+2}, 7, s4
    v_min_u32 v{T0+2}, END-CODE_HERE, v{T0+2}
    s_cmp_lg_u32 s{S_WAVE}, 7
    s_cbranch_scc1 NO_CODE_TOUCH
    global_load_dword v{V_FLAG+1}, v{T0+2}, s[6:7]
NO_CODE_TOUCH:
    s_mul_i32 s3, s2, {EP * 4}
    v_lshl_add_u32 v{T0}, v0, 4, s3
    v_and_b32 v{T0+2}, 63, v0
    v_lshlrev_b32 v{V_L16}, 4, v{T0+2}
    v_lshlrev_b32 v{CT+5}, 2, v{T0+2}
    s_cmp_ge_u32 s{S_WAVE}, 5
    s_cselect_b32 s3, {NP}, s2
    s_cmp_ge_u32 s3, {NP}
    s_waitcnt lgkmcnt(0)
    s_cbranch_scc1 NO_EDGES
    s_setprio 1
    global_load_dwordx4 {vr(D_,4)}, v{T0}, {sr(DST,2)}
    global_load_dwordx4 {vr(S_,4)}, v{T0}, {sr(SRC,2)}
NO_EDGES:""")
    st('kernargs')
    for k in range(4): a(f"global_load_dword v{CT+k}, v{CT+5}, {sr(WRAD,2)} offset:{k*256}")
    a(f"""v_and_b32 v{CT+5}, 0x7f, v{CT+5}
    global_load_dword v{CT+4}, v{CT+5}, {sr(CG,2)}
    v_lshlrev_b32 v{T0+1}, 1, v{T0}
    v_lshlrev_b32 v{T0+3}, 3, v0
    v_mov_b32 v{T0+4}, 0
    v_mov_b32 v{T0+5}, 0
    ds_write_b64 v{T0+3}, {vr(T0+4,2)}
    s_and_b32 s4, s2, 7
    s_lshl_b32 s4, s4, 5
    s_lshr_b32 s5, s2, 3
    s_or_b32 s{S_BETA}, s4, s5
    v_mov_b32 v{V_ONE}, 1
    s_mov_b32 s{S_X+2}, {N * 1024}
    s_mov_b32 s{S_X+3}, 0x20000
    s_mov_b32 s{S_WS+2}, {WS_END if not opt.stamps else WS_STAMP + 0x80000}
    s_mov_b32 s{S_WS+3}, 0x20000
    s_mov_b32 s{S_OUT+2}, {N * 1024}
    s_mov_b32 s{S_OUT+3}, 0x20000
    s_mov_b32 s{S_MASK}, 0xfffffc00
    s_mov_b32 s{S_W0}, 0
    s_mov_b32 s{S_L2E}, 0xbfb8aa3b
    s_mov_b32 s{S_L2E+1}, 0xbfb8aa3b
    v_mul_u32_u24 v{V_SIG4}, 52, v{T0+2}
    v_lshrrev_b32 v{V_SIG4}, 8, v{V_SIG4}            ; lane / 5
    v_mul_u32_u24 v{V_SLOT4}, 5, v{V_SIG4}
    v_sub_u32 v{V_SLOT4}, v{T0+2}, v{V_SLOT4}        ; lane % 5
    v_lshlrev_b32 v{V_SIG4}, 2, v{V_SIG4}
    v_lshlrev_b32 v{V_SLOT4}, 2, v{V_SLOT4}
    s_mov_b32 s{S_SPIN}, {1 << 21}
    v_and_b32 v{V_GID}, 0xff, v0
    s_lshl_b32 s3, s{S_BETA}, 3
    s_add_u32 s3, s3, {WS_TAB}
    v_lshl_add_u32 v{V_POS}, v{V_GID}, 11, s3
    s_and_b32 s3, s2, 7
    s_lshl_b32 s3, s3, 7
    s_add_u32 s3, s3, {WS_RDY}
    s_lshl_b32 s8, s{S_WAVE}, 15
    s_add_u32 s3, s3, s8
    v_and_b32 v{V_FLAG}, 31, v0
    v_lshl_add_u32 v{V_FLAG}, v{V_FLAG}, 10, s3      ; flag of producer 32 wave + lane % 32
    v_mul_u32_u24 v{V_GID}, {EP}, v{V_GID}
    v_mul_u32_u24 v{LJ+10}, 0x8000, v{V_L16}
    v_lshl_add_u32 v{LJ+10}, v{T0+2}, 3, v{LJ+10}    ; lane * 8 * 0x10001""")
    for k in range(0, 48, 2): a(f"v_pk_mov_b32 {vr(ACC+k,2)}, {vr(T0+4,2)}, {vr(T0+4,2)}")
    a("s_waitcnt lgkmcnt(0)")
    load_epoch(a)
    a("s_barrier")
    phase1(a, opt)
    a(f"""s_cmp_ge_u32 s{S_WAVE}, 4
    s_cbranch_scc1 NOT_POLLER
    v_and_b32 v{T0+5}, 0x7ff, v{V_LEN}
    v_bfe_u32 v{V_LEN}, v{V_LEN}, 11, 11
    v_add_u32 v{V_GID}, v{V_GID}, v{T0+5}
    v_mov_b32 v{V_PRE}, v{V_LEN}""")
    if opt.keypf:
        a(f"""v_lshlrev_b32 v{T0+2}, 3, v{V_GID}
        buffer_load_dword v{V_FLAG+1}, v{T0+2}, {sr(S_WS,4)}, 0 offen sc1""")
    scan64(a, V_PRE)
    a(f"""s_lshl_b32 s3, s{S_WAVE}, 2
    v_mov_b32 v{T0+2}, s3
    v_add_u32 v{T0+3}, 1, v{V_PRE}
    v_sub_u32 v{V_PRE}, v{V_PRE}, v{V_LEN}
    s_mov_b32 exec_lo, 0
    s_mov_b32 exec_hi, 0x80000000
    ds_write_b32 v{T0+2}, v{T0+3} offset:{L_WT}
    s_mov_b64 exec, -1
    s_branch TOTALS
NOT_POLLER:
    s_cmp_eq_u32 s{S_WAVE}, 4
    s_cbranch_scc1 TOTALS
    v_mov_b32 v{T0+2}, {L_CNT}
    s_waitcnt vmcnt(0)
    s_mov_b64 exec, 1
    ds_add_rtn_u32 v{T0+2}, v{T0+2}, v{V_ONE}
    s_mov_b64 exec, -1
    s_waitcnt lgkmcnt(0)
    v_readfirstlane_b32 s3, v{T0+2}
    s_cmp_lg_u32 s3, 2
    s_cbranch_scc1 TOTALS""")
    flag_store(a, WS_RDY)
    st('recs flagged')
    a(f"""TOTALS:
    v_mov_b32 v{T0+2}, 0
TOTALS_SPIN:
    ds_read_b128 {vr(XR,4)}, v{T0+2} offset:{L_WT}
    s_waitcnt lgkmcnt(0)""")
    for k in range(4): a(f"v_readfirstlane_b32 s{4+k}, v{XR+k}")
    a(f"""s_min_u32 s3, s4, s5
    s_min_u32 s8, s6, s7
    s_min_u32 s3, s3, s8
    s_cmp_eq_u32 s3, 0
    s_cbranch_scc0 TOTALS_OK
    s_sub_u32 s{S_SPIN}, s{S_SPIN}, 1
    s_cbranch_scc0 TOTALS_SPIN
    s_endpgm
TOTALS_OK:
    s_add_u32 s5, s5, s4
    s_add_u32 s6, s6, s5
    s_add_u32 s7, s7, s6
    s_sub_u32 s{S_N}, s7, 4
    s_cmp_eq_u32 s{S_WAVE}, 1
    s_cselect_b32 s3, s4, 0
    s_cmp_eq_u32 s{S_WAVE}, 2
    s_cselect_b32 s3, s5, s3
    s_cmp_eq_u32 s{S_WAVE}, 3
    s_cselect_b32 s3, s6, s3
    s_sub_u32 s3, s3, s{S_WAVE}
    v_add_u32 v{V_PRE}, s3, v{V_PRE}
    s_cmp_lg_u32 s{S_WAVE}, 4
    s_cbranch_scc1 EPOCH_DONE
    s_cmp_lg_u32 s2, 0
    s_cbranch_scc1 EPOCH_DONE
    v_mov_b32 v{T0+4}, s{S_NLO}
    v_mov_b32 v{T0+2}, {WS_EPOCH}
    s_mov_b64 exec, 1
    global_store_dword v{T0+2}, v{T0+4}, {sr(S_WS,2)} sc0 sc1
    s_mov_b64 exec, -1
EPOCH_DONE:""")
    x_touch(a, opt, 3, False)
    st('prefix done')
    a(f"""ROUND:
    v_mov_b32 v{T0}, 0
    v_subrev_u32 v{T0+1}, s{S_W0}, v{V_PRE}
    v_mov_b32 v{T0+2}, v{V_GID}
    s_mov_b32 s3, {CAP}
    s_cmp_gt_u32 s{S_N}, {CAP}
    s_cbranch_scc1 EXPAND
    v_lshlrev_b32 v{T0+3}, 2, v{V_PRE}""")
    for j in range(16):
        a(f"v_cmpx_lt_u32 vcc, {j}, v{V_LEN}")
        if j % 2 == 0 and j >= 6: a("s_cbranch_execz EXPAND_DONE")
        a(f"ds_write_b32 v{T0+3}, v{T0+2} offset:{L_SENT + 4*j}\nv_add_u32 v{T0+2}, 1, v{T0+2}")
    a(f"""v_mov_b32 v{T0}, 16
    v_add_u32 v{T0+1}, 16, v{T0+1}
EXPAND:
    v_cmp_lt_u32 vcc, v{T0}, v{V_LEN}
    s_and_b64 exec, exec, vcc
    s_cbranch_execz EXPAND_DONE
    v_cmp_gt_u32 vcc, s3, v{T0+1}
    v_lshlrev_b32 v{T0+3}, 2, v{T0+1}
    s_and_saveexec_b64 {sr(S_T,2)}, vcc
    ds_write_b32 v{T0+3}, v{T0+2} offset:{L_SENT}
    s_mov_b64 exec, {sr(S_T,2)}
    v_add_u32 v{T0}, 1, v{T0}
    v_add_u32 v{T0+1}, 1, v{T0+1}
    v_add_u32 v{T0+2}, 1, v{T0+2}
    s_branch EXPAND
EXPAND_DONE:
    s_mov_b64 exec, -1
    s_sub_u32 s{S_NWIN}, s{S_N}, s{S_W0}
    s_min_u32 s{S_NWIN}, s{S_NWIN}, {CAP}
    v_lshlrev_b32 v{T0}, 2, v0""")
    for i in range(3):
        a(f"""v_add_u32 v{T0+1}, {512*i}, v0
              v_cmp_gt_u32 {sr(S_M+2*i,2)}, s{S_NWIN}, v{T0+1}""")
    x_touch(a, opt, 4)
    st('list built')
    a("s_waitcnt lgkmcnt(0)\ns_barrier")
    st('list barrier')
    G = XR
    KP = TP
    for i in range(3): a(f"ds_read_b32 v{G+i}, v{T0} offset:{L_SENT + 2048*i}")
    a(f"""s_mov_b32 s{S_T+2}, 5033                          ; 12 * 2^32 / (10000 * 1024)
    s_waitcnt lgkmcnt(0)""")
    for i in range(3):
        a(f"v_lshlrev_b32 v{G+4+i}, 3, v{G+i}\nv_lshlrev_b32 v{G+i}, 4, v{G+i}")
    a(f"""KEY_LOAD:
    s_mov_b64 exec, {sr(S_M+4,2)}
    s_cbranch_execz SKIP3
    buffer_load_dwordx2 {vr(KP+4,2)}, v{G+6}, {sr(S_WS,4)}, 0 offen sc1
SKIP3:""")
    for i in range(2):
        a(f"s_mov_b64 exec, {sr(S_M+2*i,2)}\nbuffer_load_dwordx2 {vr(KP+2*i,2)}, v{G+4+i}, {sr(S_WS,4)}, 0 offen sc1")
    a(f"""s_mov_b64 exec, -1
    s_cmp_lt_u32 s{S_WAVE}, 2
    s_cbranch_scc1 NO_LAST_JOB
    s_mov_b32 s{S_L2E}, 0xbfb8aa3b
    s_mov_b32 s{S_L2E+1}, 0xbfb8aa3b""")
    a(f"s_add_u32 s{S_JOB}, s{S_WAVE}, 26")
    lut_jobs(a, 1)
    a("NO_LAST_JOB:\ns_waitcnt vmcnt(0)")
    for i in range(3): a(f"v_cmp_ne_u32 {sr(S_K+2*i,2)}, s{S_NLO}, v{KP+2*i+1}")
    for i in range(3): a(f"s_and_b64 {sr(S_K+2*i,2)}, {sr(S_K+2*i,2)}, {sr(S_M+2*i,2)}")
    a(f"""s_or_b64 {sr(S_K,2)}, {sr(S_K,2)}, {sr(S_K+2,2)}
    s_or_b64 {sr(S_K,2)}, {sr(S_K,2)}, {sr(S_K+4,2)}
    s_cbranch_scc0 KEYS_OK
    s_sub_u32 s{S_SPIN}, s{S_SPIN}, 1
    s_cbranch_scc0 KEY_LOAD
    s_endpgm
KEYS_OK:""")
    st('keys arrived')
    if opt.rdy == 0: poll_issue(a, TT, V_FLAG, 0)
    x_touch(a, opt, 1, False)
    for i in range(3):
        a(f"""v_mul_hi_u32 v{T0+1}, s{S_T+2}, v{KP+2*i}
              v_and_b32 v{G+8+i}, 63, v{KP+2*i}
              v_mul_u32_u24 v{G+8+i}, {HS}, v{G+8+i}
              v_lshl_add_u32 v{G+8+i}, v{T0+1}, 2, v{G+8+i}""")
    for i in range(3):
        a(f"s_mov_b64 exec, {sr(S_M+2*i,2)}\nds_add_rtn_u32 v{G+12+i}, v{G+8+i}, v{V_ONE} offset:{L_HIST}")
    a("s_mov_b64 exec, -1")
    for i in range(3):
        a(f"""v_add_u32 v{T0+1}, {512*i}, v0
              v_lshlrev_b32 v{T0+1}, 21, v{T0+1}
              v_lshrrev_b32 v{G+16+i}, 10, v{KP+2*i}
              v_lshl_or_b32 v{G+16+i}, v{G+16+i}, 7, v{T0+1}""")
    H = G + 20
    a(f"""v_lshrrev_b32 v{T0}, 4, v{V_L16}              ; lane
    v_min_u32 v{T0+1}, 39, v{T0}
    v_mul_u32_u24 v{T0+1}, {HS}, v{T0+1}
    v_cmp_gt_u32 {sr(S_T+4,2)}, 40, v{T0}
    v_sub_u32 v{T0+2}, 63, v{T0}
    s_mul_i32 s10, s{S_WAVE}, 5
    s_lshl_b32 s3, s{S_WAVE}, 10
    s_add_u32 s3, s3, {L_UREC}
    s_mov_b32 s9, {WS_REC}
    s_waitcnt lgkmcnt(0)
    s_barrier""")
    st('hist done')
    if opt.rdy == 1: poll_issue(a, TT, V_FLAG, 0)
    for k in range(3): a(f"ds_read_b128 {vr(H+4*k,4)}, v{T0+1} offset:{L_HIST + 16*k}")
    a(f"""    s_waitcnt lgkmcnt(1)
    v_add3_u32 v{H}, v{H}, v{H+1}, v{H+2}
    v_add3_u32 v{H+3}, v{H+3}, v{H+4}, v{H+5}
    v_add3_u32 v{H}, v{H}, v{H+6}, v{H+7}
    s_waitcnt lgkmcnt(0)
    v_add3_u32 v{H+3}, v{H+3}, v{H+8}, v{H+9}
    v_add3_u32 v{H}, v{H}, v{H+10}, v{H+11}
    v_add_u32 v{H}, v{H}, v{H+3}
    v_lshl_or_b32 v{H+1}, v{H}, 6, v{T0+2}
    v_cndmask_b32 v{H+1}, 0, v{H+1}, {sr(S_T+4,2)}
    s_cmp_lg_u32 s{S_W0}, 0
    s_cbranch_scc1 DEALT""")
    for k in range(5):
        a(f"v_readlane_b32 s{S_NODE+k}, v{H+1}, s10")
        if k < 4: a("s_add_u32 s10, s10, 1")
    for k in range(5): a(f"v_cmp_lt_u32 {sr(S_K+2*k,2)}, s{S_NODE+k}, v{H+1}")
    for k in range(5): a(f"s_bcnt1_i32_b64 s{S_NODE+k}, {sr(S_K+2*k,2)}")
    for k in range(5): a(f"v_writelane_b32 v{T0+1}, s{S_NODE+k}, {k}")
    a(f"""s_sub_u32 s10, s10, 4
    v_add_u32 v{T0+2}, s10, v{T0}
    v_lshrrev_b32 v{T0+3}, 3, v{T0+1}
    v_and_b32 v{T0+1}, 7, v{T0+1}
    v_lshrrev_b32 v{T0+4}, v{T0+3}, {opt.dirmask}
    v_and_b32 v{T0+4}, 1, v{T0+4}
    v_mul_u32_u24 v{T0+4}, 7, v{T0+4}
    v_xor_b32 v{T0+1}, v{T0+1}, v{T0+4}               ; wave
    v_mad_u32_u24 v{T0+1}, v{T0+1}, 5, v{T0+3}
    v_lshlrev_b32 v{T0+1}, 2, v{T0+1}
    s_mov_b64 exec, 0x1f
    ds_write_b32 v{T0+1}, v{T0+2} offset:{L_INV}
    s_mov_b64 exec, -1
DEALT:
    s_lshl_b32 s11, s10, 2
    v_add_u32 v{T0+1}, s11, v{V_SLOT4}
    v_lshlrev_b32 v{T0+5}, 2, v{T0}
""")
    poll_check(a, "REC", TT, V_FLAG, 0, TT + 1, younger=("," + opt.xt).count(",1:"))
    a(f"""v_cmp_gt_u32 {sr(S_T,2)}, 60, v{T0}
    s_waitcnt lgkmcnt(0)
    s_barrier""")
    st('dealt')
    a(f"""ds_read_b32 v{T0+1}, v{T0+1} offset:{L_INV}
    ds_read_b32 v{T0+5}, v{T0+5} offset:{L_INV}
    v_lshlrev_b32 v{T0+4}, 17, v{V_SLOT4}             ; slot << 19""")
    for i in range(2):
        a(f"""s_add_u32 m0, s3, {i*8192}
              s_mov_b64 exec, {sr(S_M+2*i,2)}
              buffer_load_dwordx4 v{G+i}, {sr(S_WS,4)}, s9 offen sc1 lds""")
    a(f"""s_add_u32 m0, s3, {2*8192}
    s_mov_b64 exec, {sr(S_M+4,2)}
    s_cbranch_execz SKIP3R
    buffer_load_dwordx4 v{G+2}, {sr(S_WS,4)}, s9 offen sc1 lds
SKIP3R:
    s_mov_b64 exec, -1""")
    x_touch(a, opt, 2)
    a(f"""    s_waitcnt lgkmcnt(1)
    v_mul_u32_u24 v{T0+2}, {HS}, v{T0+1}
    v_add_u32 v{T0+2}, v{T0+2}, v{V_SIG4}
    ds_read_b32 v{T0+3}, v{T0+2} offset:{L_HIST}
    s_waitcnt lgkmcnt(1)
    v_lshlrev_b32 v{T0+5}, 2, v{T0+5}
    ds_bpermute_b32 v{H+2}, v{T0+5}, v{H}""")
    for k in range(5): a(f"v_readlane_b32 s{S_NODE+k}, v{T0+1}, {k}")
    a(f"""s_waitcnt lgkmcnt(0)
    v_cndmask_b32 v{T0+3}, 0, v{T0+3}, {sr(S_T,2)}
    v_cndmask_b32 v{H+2}, 0, v{H+2}, {sr(S_T+4,2)}
    v_sub_u32 v{T0+4}, v{T0+4}, v{T0+3}
    v_mov_b32 v{H+3}, v{H+2}""")
    scan64(a, T0 + 3, H + 3)
    a(f"""v_sub_u32 v{H+3}, v{H+3}, v{H+2}
    v_add_u32 v{T0+4}, v{T0+4}, v{T0+3}
    v_readlane_b32 s{S_START}, v{H+3}, s10
    v_readlane_b32 s{S_END}, v{T0+3}, 63
    s_nop 0
    v_add_u32 v{T0+4}, s{S_START}, v{T0+4}
    s_mov_b64 exec, {sr(S_T,2)}
    ds_write_b32 v{T0+2}, v{T0+4} offset:{L_HIST}
    s_mov_b64 exec, -1
    v_add_u32 v{V_POS}, s{S_START}, v{T0}
    v_lshlrev_b32 v{V_AENT}, 2, v{V_POS}
    v_add_u32 v{V_AENT}, {L_SENT}, v{V_AENT}
    s_add_u32 s10, s{S_END}, 3
    s_and_b32 s10, s10, -4
    s_min_u32 s{S_REMB}, s10, {8 if D == 8 else 4}
    s_sub_u32 s{S_REM}, s10, s{S_REMB}
    s_add_u32 s{S_END}, s{S_END}, s{S_START}""")
    a("s_waitcnt lgkmcnt(0)\ns_barrier")
    st('bases')
    for i in range(3): a(f"ds_read_b32 v{G+8+i}, v{G+8+i} offset:{L_HIST}")
    for i in range(3):
        a(f"""s_waitcnt lgkmcnt({2-i})
              v_lshrrev_b32 v{T0+1}, 16, v{G+8+i}
              v_and_b32 v{G+8+i}, 0xffff, v{G+8+i}
              v_or_b32 v{G+16+i}, v{G+16+i}, v{T0+1}
              v_add_lshl_u32 v{G+8+i}, v{G+8+i}, v{G+12+i}, 2""")
    for i in range(3):
        a(f"""s_mov_b64 exec, {sr(S_M+2*i,2)}
              ds_write_b32 v{G+8+i}, v{G+16+i} offset:{L_SENT}""")
    a("s_mov_b64 exec, -1")
    a("s_waitcnt lgkmcnt(0)")
    a("s_barrier")
    st('sorted')
    if opt.stamps: a(f"s_memtime s[100:101]\ns_waitcnt lgkmcnt(0)\ns_mov_b32 s{S_ST+30}, s100")
    meta_read_entry(a)
    a(f"""s_and_b32 s{S_WM}, s{S_WAVE}, 3
    s_lshl_b32 s{S_WM}, s{S_WM}, 13
    s_add_u32 s{S_WM}, s{S_WM}, {WS_WMIX}
    s_add_u32 s{S_WM+1}, s{S_WM}, 4096""")
    for k in range(8): a(f"v_mov_b32 v{RR+k}, 0")
    a("s_waitcnt lgkmcnt(0)")
    meta_fix_entry(a, False)
    a("s_nop 0")
    for e in range(D):
        a(f"""v_readlane_b32 s{S_K+e}, v{ENT}, {e}
              s_and_b32 s{S_OFF}, s{S_K+e}, s{S_MASK}
              buffer_load_dwordx4 {vr(XR+4*e,4)}, v{V_L16}, {sr(S_X,4)}, s{S_OFF} offen""")
    a(f"v_mov_b32 v{KEY}, v{ENT}\ns_waitcnt vmcnt({D})")
    st('recs landed')
    a("s_barrier")
    meta_read_rec(a)
    a(f"""s_waitcnt lgkmcnt(0)
    v_mov_b32 v{EF}, v{RECN+2}
    v_mov_b32 v{EF+1}, v{RECN+3}""")
    for i in range(4): a(w_mfma(i))
    a(p_mfma(0, 0)); a(p_mfma(0, 1)); a(p_mfma(1, 0))
    a("s_nop 1")
    for m in range(4): w_cvt(a, m)
    for odd in range(2):
        u, r = act_regs(0, odd)
        for h in range(2): a(act_addr(TT + 2 * odd + h, u + h))
        for h in range(2): a(act_read(r + h, TT + 2 * odd + h))
    a(f"s_waitcnt vmcnt({D-1})")
    st('first row')
    a(t_mfma(0, 0)); a(t_mfma(0, 1))
    body(a, opt, True)
    for q in range(0, 64, 4):
        a(f"TO_B_{q}:")
        for k in range(8):
            a(f"buffer_load_dwordx4 {vr(WMIX+4*k,4)}, v{V_L16}, {sr(S_WS,4)}, s{S_WM + k // 4} offen offset:{(k%4)*1024} sc1")
        if q: a(f"s_branch B_{q}")
        else: a("s_branch B_0")
    body(a, opt, False)
    a(f"""MAIN_DONE:
    s_waitcnt vmcnt(0) lgkmcnt(0)
    s_add_u32 s{S_W0}, s{S_W0}, {CAP}
    s_cmp_ge_u32 s{S_W0}, s{S_N}
    s_cbranch_scc1 ALL_DONE""")
    zero_hist(a)
    a("s_waitcnt lgkmcnt(0)\ns_barrier\ns_branch ROUND\nALL_DONE:")
    st('main done')
    if opt.stamps: a(f"s_memtime s[100:101]\ns_waitcnt lgkmcnt(0)\ns_sub_u32 s{S_ST+30}, s100, s{S_ST+30}")
    PK = XR
    for s in range(5):
        for o in range(4): a(f"v_cvt_pk_bf16_f32 v{PK+4*s+o}, v{ACC+8*s+o}, v{ACC+8*s+4+o}")
    a(f"""v_lshrrev_b32 v{T0}, 2, v{V_L16}
    v_add_u32 v{T0}, {L_AGG}, v{T0}""")
    for s in range(5):
        a(f"s_mul_i32 s{S_T}, s{S_NODE+s}, {4 * AGG_RS}\nv_add_u32 v{TP+s}, s{S_T}, v{T0}")
    a(f"""v_lshrrev_b32 v{T0+1}, 4, v{V_L16}            ; lane
    v_and_b32 v{T0+2}, 15, v{T0+1}
    v_lshrrev_b32 v{T0+3}, 4, v{T0+1}                 ; lane >> 4
    s_lshr_b32 s{S_T}, s{S_WAVE}, 2
    s_mul_i32 s{S_T+1}, s{S_T}, {80 * AGG_RS}
    s_add_u32 s{S_T+1}, s{S_T+1}, {L_AGG}
    v_mul_u32_u24 v{T0}, {AGG_RS}, v{T0+2}
    v_lshl_add_u32 v{T0}, v{T0+3}, 4, v{T0}
    v_add_u32 v{T0}, s{S_T+1}, v{T0}
    s_mul_i32 s{S_T}, s{S_T}, {20 << 18}
    s_lshl_b32 s{S_T+1}, s{S_BETA}, 10
    s_add_u32 s{S_T}, s{S_T}, s{S_T+1}
    s_and_b32 s{S_T+1}, s{S_WAVE}, 3
    s_lshl_b32 s{S_T+1}, s{S_T+1}, 8
    s_add_u32 s{S_T}, s{S_T}, s{S_T+1}
    v_lshlrev_b32 v{T0+3}, 18, v{T0+3}
    v_lshl_add_u32 v{T0+3}, v{T0+2}, 4, v{T0+3}
    v_add_u32 v{T0+3}, s{S_T}, v{T0+3}
    s_barrier""")
    st('all main done')
    for s in range(5):
        for o in range(4): a(f"ds_write_b32 v{TP+s}, v{PK+4*s+o} offset:{o*AGG_RS}")
    a("s_waitcnt lgkmcnt(0)\ns_barrier")
    st('agg in LDS')
    AF = XR
    def rd(t):
        for ks in range(4): a(f"ds_read_b128 {vr(AF+16*(t%2)+4*ks,4)}, v{T0} offset:{t*16*AGG_RS + ks*64}")
    def pack_store(t):
        d = ACC + 8 * t; p = RR + 4 * (t % 2)
        for j in range(4): a(f"v_cvt_pk_bf16_f32 v{p+j}, v{d+2*j}, v{d+2*j+1}")
        a(f"buffer_store_dwordx4 {vr(p,4)}, v{T0+3}, {sr(S_OUT,4)}, 0 offen {opt.outst}")
        if t < 4: a(f"v_add_u32 v{T0+3}, {4 << 18}, v{T0+3}")
    rd(0)
    for t in range(5):
        if t < 4: rd(t + 1)
        for ks in range(4):
            a(f"s_waitcnt lgkmcnt({(4 if t < 4 else 0) + 3 - ks})")
            for j in range(2):
                d = ACC + 8 * t + 4 * j
                a(f"v_mfma_f32_16x16x32_bf16 {vr(d,4)}, {vr(AF+16*(t%2)+4*ks,4)}, {vr(WMIX+16*j+4*ks,4)}, " + ("0" if ks == 0 else vr(d, 4)))
            if ks == 3 and t > 0: pack_store(t - 1)
    a("s_nop 7")
    pack_store(4)
    st('end')
    if opt.probe:
        a(f"""s_cmp_eq_u32 s93, 0
        s_cselect_b32 s93, s92, s93
        s_sub_u32 s93, s93, s92
        s_mul_i32 s93, s93, 4
        s_add_u32 s92, s92, s93
        s_add_u32 s92, s92, 6000
        HOLD_SPIN:
        s_memrealtime s[98:99]
        s_waitcnt lgkmcnt(0)
        s_sub_u32 s98, s98, s92
        s_cmp_lt_i32 s98, 0
        s_cbranch_scc1 HOLD_SPIN""")
    if opt.stamps:
        a("s_waitcnt vmcnt(0)")
        st('stores done 2')
        a(f"""s_lshl_b32 s10, s2, 3
        s_add_u32 s10, s10, s{S_WAVE}
        s_lshl_b32 s10, s10, 7
        s_add_u32 s10, s10, {WS_STAMP}
        v_mov_b32 v{T0}, s10
        s_sub_u32 s{S_ST+31}, s{S_END}, s{S_START}
        s_sub_u32 s{S_ST+29}, {1 << 21}, s{S_SPIN}""")
        for k in range(32): a(f"v_mov_b32 v{XR+k}, s{S_ST+k}")
        for k in range(8): a(f"buffer_store_dwordx4 {vr(XR+4*k,4)}, v{T0}, {sr(S_WS,4)}, 0 offen offset:{16*k}")
    a("END:\ns_endpgm")
    return a.text()

def generate(opt):
    here = os.path.dirname(os.path.abspath(__file__))
    out = open(here + "/header.txt").read()
    out += f"; @launch grid=(256,1,1) block=(512,1,1) lds={LDS_BYTES}\n"
    out += f'.amdgcn_target "amdgcn-amd-amdhsa--gfx950"\n.text\n.globl {KERN}\n.p2align 8\n.type {KERN},@function\n'
    out += kernel(opt)
    out += f""".section .rodata,"a"
.p2align 6
.amdhsa_kernel {KERN}
  .amdhsa_next_free_vgpr {NVGPR}
  .amdhsa_next_free_sgpr {NSGPR if opt.stamps or opt.probe else 66}
  .amdhsa_accum_offset {(NVGPR + 3) // 4 * 4}
  .amdhsa_group_segment_fixed_size 0
  .amdhsa_kernarg_size 88
  .amdhsa_user_sgpr_count 2
  .amdhsa_user_sgpr_kernarg_segment_ptr 1
  .amdhsa_system_sgpr_workgroup_id_x 1
  .amdhsa_float_denorm_mode_32 3
.end_amdhsa_kernel
"""
    return out

def options(argv):
    p = argparse.ArgumentParser()
    p.add_argument("-o", default="/code/" + NAME + ".s")
    p.add_argument("--stamps", action="store_true")
    p.add_argument("--probe", default="")
    p.add_argument("--D", type=int, default=7)
    p.add_argument("--hsplit", type=int, default=37)
    p.add_argument("--rdy", type=int, default=0)
    p.add_argument("--xt", default="1:0:20")
    p.add_argument("--lsplit", type=int, default=5)
    p.add_argument("--keypf", type=int, default=1)
    p.add_argument("--k1st", default="sc0 sc1")
    p.add_argument("--outst", default="sc0 sc1")
    p.add_argument("--dirmask", type=int, default=0x12)
    return p.parse_args(argv)

if __name__ == "__main__":
    opt = options(sys.argv[1:])
    open(opt.o, "w").write(generate(opt))
    if opt.stamps: open(opt.o + ".names", "w").write(repr(STAMPS))
```

```python
import sys, argparse, os

NAME = "gather_scatter__tensor_product_equiv_tfn__graph"
KERN = NAME + "_kernel"
N, E, C = 10000, 320000, 128
NP, EP = 250, 1280
WS_KEY = 0
WS_REC = 0x280000
WS_WMIX = 0x771000
WS_TAB = 0x780000
WS_RDY = WS_TAB + 256 * 2048
WS_EPOCH = WS_RDY + 256 * 1024
WS_END = WS_EPOCH + 128
WS_STAMP = 0x900000
CAP = 1472

class Asm:
    def __init__(self): self.l = []
    def __call__(self, s):
        for line in s.strip("\n").split("\n"):
            line = line.strip()
            if not line: continue
            self.l.append(line if line.endswith(":") else "    " + line)
    def text(self): return "\n".join(self.l) + "\n"

def vr(a, n=1): return f"v{a}" if n == 1 else f"v[{a}:{a+n-1}]"
def sr(a, n=1): return f"s{a}" if n == 1 else f"s[{a}:{a+n-1}]"

SCAN_STEPS = ["row_shr:1 row_mask:0xf bank_mask:0xf bound_ctrl:0", "row_shr:2 row_mask:0xf bank_mask:0xf bound_ctrl:0",
              "row_shr:4 row_mask:0xf bank_mask:0xf bound_ctrl:0", "row_shr:8 row_mask:0xf bank_mask:0xf bound_ctrl:0",
              "row_bcast:15 row_mask:0xa bank_mask:0xf", "row_bcast:31 row_mask:0xc bank_mask:0xf"]
def scan64(a, *regs):
    for c in SCAN_STEPS:
        a("s_nop 1" if len(regs) == 1 else "s_nop 0")
        for v in regs: a(f"v_add_u32_dpp v{v}, v{v}, v{v} {c}")

NSB, HS = 12, 48
L_HIST = 0; L_INV = 40 * HS; L_WT = L_INV + 256; L_CNT = L_WT + 64
L_SENT = L_WT + 128
L_UREC = L_SENT + CAP * 4
L_CG = L_UREC + CAP * 16
L_LUT = 32768
L1_HIST = L_SENT; L1_BASE = L1_HIST + 1024; L1_SREC = L1_BASE + 1024
L1_SKEY = L_LUT + 53 * 1024
assert L_CG + 128 <= L_LUT and L1_SREC + EP * 16 <= L_LUT and L1_BASE <= 4096
L_AGG = L_LUT; AGG_RS = 288
LDS_BYTES = L_LUT + 131072

V_L16 = 1
V_LEN, V_PRE, V_GID = 2, 3, 4
V_AENT, V_POS = 5, 6
V_SLOT4, V_SIG4, V_ONE = 7, 14, 15
V_FLAG = 166
T0 = 8
ACC = 16; XR = 64; TP = 96; UU = 112; RR = 128; TT = 136; WPK = 140; WTMP = 148
KEY = 164; ENT = 165; RECN = 168; EF = 172; CONST = 176; WMIX = 188
NVGPR = 220
PE, PO, CGB = CONST, CONST + 2, CONST + 4
LJ = 128
S_NODE = 4
S_X, S_WS, S_OUT = 12, 16, 20
S_BETA, S_WAVE, S_N, S_W0, S_NWIN, S_START, S_END, S_REM, S_REMB, S_OFF, S_MASK = range(24, 35)
S_SPIN = 35
S_M = 36
S_T = 42
S_K = 48
S_IN = 40
S_JOB, S_JCNT = 62, 63
S_NLO, S_NHI = 64, 65
S_WM = 10
S_L2E = 10
S_ST = 66
NSGPR = 102

STAMPS = []
def stamp(a, opt, name):
    if opt.probe == name: a("s_memrealtime s[98:99]\ns_waitcnt lgkmcnt(0)\ns_mov_b32 s93, s98")
    if not opt.stamps: return
    if name not in STAMPS: STAMPS.append(name)
    a(f"s_memrealtime s[98:99]\ns_waitcnt lgkmcnt(0)\ns_mov_b32 s{S_ST + STAMPS.index(name)}, s98")

S_RET = 6
def lut_sub(a):
    J, Ex, R, P = LJ, LJ + 8, LJ + 16, LJ + 24
    a(f"""LUT_SUB:
    s_lshl_b32 s3, s{S_JOB}, 25
    s_add_u32 s3, s3, 0x8000
    v_lshl_add_u32 v{J}, v{V_L16}, 15, s3""")
    for k in range(1, 8): a(f"v_add_u32 v{J+k}, 0x10000, v{J+k-1}")
    for k in range(0, 8, 2): a(f"v_pk_mul_f32 {vr(Ex+k,2)}, {vr(J+k,2)}, {sr(S_L2E,2)}")
    for k in range(8): a(f"v_exp_f32 v{Ex+k}, v{Ex+k}")
    a(f"s_lshl_b32 s3, s{S_JOB}, 10")
    for k in range(0, 8, 2): a(f"v_pk_add_f32 {vr(R+k,2)}, {vr(Ex+k,2)}, 1.0 op_sel_hi:[1,0]")
    for k in range(8): a(f"v_rcp_f32 v{R+k}, v{R+k}")
    a(f"v_add_u32 v{P+8}, s3, v{V_L16}")
    for k in range(0, 8, 2): a(f"v_pk_mul_f32 {vr(J+k,2)}, {vr(J+k,2)}, {vr(R+k,2)}")
    a(f"v_add_u32 v{P+9}, 0x10000, v{P+8}")
    for k in range(0, 8, 2): a(f"v_pk_mul_f32 {vr(Ex+k,2)}, {vr(J+k,2)}, {vr(Ex+k,2)} neg_lo:[1,0] neg_hi:[1,0]")
    for k in range(4): a(f"v_cvt_pk_bf16_f32 v{P+k}, v{J+2*k}, v{J+2*k+1}")
    for k in range(4): a(f"v_cvt_pk_bf16_f32 v{P+4+k}, v{Ex+2*k}, v{Ex+2*k+1}")
    a(f"""ds_write_b128 v{P+8}, {vr(P,4)} offset:{L_LUT}
    ds_write_b128 v{P+9}, {vr(P+4,4)} offset:{L_LUT}
    s_add_u32 s{S_JOB}, s{S_JOB}, 1
    s_sub_u32 s{S_JCNT}, s{S_JCNT}, 1
    s_cmp_lg_u32 s{S_JCNT}, 0
    s_cbranch_scc1 LUT_SUB
    s_setpc_b64 {sr(S_RET,2)}""")
def lut_jobs(a, count): a(f"s_mov_b32 s{S_JCNT}, {count}\ns_call_b64 {sr(S_RET,2)}, LUT_SUB")

def lut_plain(a, tag, region, last=None, cont=False):
    P = LJ
    for name, first, end, bias in (("L", 1, 24, 0x20000 - 0x800080), ("H", 34, 62, 0x20000)):
        if name != region: continue
        last = last or end
        if cont: a(f"s_cmp_gt_u32 s{S_JOB}, {last}\ns_cbranch_scc1 LUTP_END_{tag}")
        else: a(f"s_add_u32 s{S_JOB}, s{S_WAVE}, {first}")
        if name == "H" and not cont:
            for k in range(4): a(f"v_mov_b32 v{P+4+k}, 0x80008000")
        a(f"""LUTP_{tag}{name}:
        s_mul_i32 s3, s{S_JOB}, {512 * 0x10001}
        s_add_u32 s3, s3, {bias & 0xffffffff}
        v_add_u32 v{P}, s3, v{P+10}
        s_lshl_b32 s3, s{S_JOB}, 10
        v_add_u32 v{P+8}, s3, v{V_L16}""")
        for k in range(1, 4): a(f"v_add_u32 v{P+k}, {k * 0x20002}, v{P}")
        a(f"v_add_u32 v{P+9}, 0x10000, v{P+8}")
        if name == "L":
            for k in range(4): a(f"v_or_b32 v{P+4+k}, 0x80008000, v{P+k}")
        a(f"""ds_write_b128 v{P+8}, {vr(P,4)} offset:{L_LUT}
        ds_write_b128 v{P+9}, {vr(P+4,4)} offset:{L_LUT}
        s_add_u32 s{S_JOB}, s{S_JOB}, {5 if name == "L" else 4}
        s_cmp_le_u32 s{S_JOB}, {last}
        s_cbranch_scc1 LUTP_{tag}{name}
        LUTP_END_{tag}:""")

def flag_store(a, base):
    a(f"""s_lshl_b32 s3, s2, 10
    s_add_u32 s3, s3, {base}
    v_add_u32 v{T0+1}, s3, v{V_L16}
    v_mov_b32 v{T0+2}, s{S_NLO}
    v_mov_b32 v{T0+3}, s{S_NHI}
    v_mov_b32 v{T0+4}, s{S_NLO}
    v_mov_b32 v{T0+5}, s{S_NHI}
    global_store_dwordx4 v{T0+1}, {vr(T0+2,4)}, {sr(S_WS,2)} sc0 sc1
    s_nop 1""")

def poll_issue(a, dst, addr, soff):
    a(f"buffer_load_dwordx2 {vr(dst,2)}, v{addr}, {sr(S_WS,4)}, {soff} offen sc1")
def poll_check(a, tag, dst, addr, soff, hi, pre="", younger=0):
    if younger: a(f"s_waitcnt vmcnt({younger})\ns_branch CHECK_{tag}")
    a(f"""POLL_{tag}:
    s_waitcnt vmcnt(0)
    CHECK_{tag}:
    {pre}
    v_cmp_ne_u32 vcc, s{S_NLO}, v{dst + 1 if pre else dst}
    v_cmp_ne_u32 {sr(S_T,2)}, s{S_NHI}, v{hi}
    s_or_b64 vcc, vcc, {sr(S_T,2)}
    s_and_b64 exec, exec, vcc
    s_cbranch_execz POLLED_{tag}
    s_sub_u32 s{S_SPIN}, s{S_SPIN}, 1
    s_cbranch_scc1 END""")
    poll_issue(a, dst, addr, soff)
    a(f"""s_branch POLL_{tag}
    POLLED_{tag}:
    s_mov_b64 exec, -1""")

def load_epoch(a):
    a(f"""s_add_u32 s4, s{S_WS}, {WS_EPOCH}
    s_addc_u32 s5, s{S_WS+1}, 0
    s_load_dwordx2 {sr(S_NLO,2)}, s[4:5], 0""")
def make_tag(a):
    a(f"""s_add_u32 s{S_NLO}, s{S_NLO}, 1
    s_and_b32 s{S_NHI}, s{S_NHI}, 0x3ff""")

def scan256(a, H_, O_):
    a(f"""v_add_u32 v{T0+2}, v{H_}, v{H_+1}
    v_add3_u32 v{T0+2}, v{T0+2}, v{H_+2}, v{H_+3}
    v_mov_b32 v{T0+3}, v{T0+2}""")
    scan64(a, T0 + 3)
    a(f"""v_sub_u32 v{O_}, v{T0+3}, v{T0+2}
    v_add_u32 v{O_+1}, v{O_}, v{H_}
    v_add_u32 v{O_+2}, v{O_+1}, v{H_+1}
    v_add_u32 v{O_+3}, v{O_+2}, v{H_+2}""")

SRC, DST, YY, EFP, WRAD, CG, WMX = S_IN + 2, S_IN + 4, S_IN + 6, S_IN + 8, S_IN + 10, S_IN + 12, S_IN + 14
D_, S_, Y_, F_, B_, R_, H_, O_, TB = 64, 68, 72, 80, 88, 92, 96, 100, 108
CT = WMIX
def const_sub(a):
    a(f"""CONST_SUB:
    ds_write_b32 v{CT+5}, v{CT+4} offset:{L_CG}
    v_lshrrev_b32 v{CT+5}, 3, v{V_L16}
    v_and_b32 v{CT+5}, 24, v{CT+5}
    s_mov_b32 s4, 0x05040100
    s_mov_b32 s5, 0x07060302""")
    for i in range(4): a(f"ds_read_b64_tr_b16 {vr(CGB+2*i,2)}, v{CT+5} offset:{L_CG + 32*i}")
    for u in range(2):
        a(f"v_perm_b32 v{PE+u}, v{CT+1+2*u}, v{CT+2*u}, s4\nv_perm_b32 v{PO+u}, v{CT+1+2*u}, v{CT+2*u}, s5")
    a(f"s_setpc_b64 {sr(S_RET,2)}")
def const_finish(a): a(f"s_call_b64 {sr(S_RET,2)}, CONST_SUB")

def phase1(a, opt):
    st = lambda n: stamp(a, opt, n)
    WS = sr(S_WS, 2); FL = opt.k1st
    a(f"""s_cmp_ge_u32 s{S_WAVE}, 5
    s_cbranch_scc1 HELP""")
    lut_plain(a, "W0", "L", last=opt.lsplit)
    a(f"""s_cmp_ge_u32 s2, {NP}
    s_cbranch_scc1 AUX_LOAD
    global_load_dwordx4 {vr(Y_,4)}, v{T0+1}, {sr(YY,2)}
    global_load_dwordx4 {vr(Y_+4,4)}, v{T0+1}, {sr(YY,2)} offset:16
    global_load_dwordx4 {vr(F_,4)}, v{T0+1}, {sr(EFP,2)}
    global_load_dwordx4 {vr(F_+4,4)}, v{T0+1}, {sr(EFP,2)} offset:16
LOADED:
    s_cmp_ge_u32 s2, {NP}
    s_cbranch_scc1 AUX""")
    st('jobs A')
    a("s_waitcnt vmcnt(10)")
    st('dst arrived')
    for k in range(4):
        a(f"""v_and_b32 v{B_+k}, 0xff, v{D_+k}
              v_lshlrev_b32 v{B_+k}, 2, v{B_+k}
              ds_add_rtn_u32 v{R_+k}, v{B_+k}, v{V_ONE} offset:{L1_HIST}""")
    a("s_waitcnt vmcnt(9)")
    for k in range(4):
        a(f"""v_lshrrev_b32 v{D_+k}, 8, v{D_+k}
              v_lshl_or_b32 v{TB+2*k}, v{S_+k}, 10, v{D_+k}""")
    a(f"""s_mov_b32 s9, {L1_SKEY}
    s_waitcnt lgkmcnt(0)
    s_barrier
    ds_read_b128 {vr(H_,4)}, v{V_L16} offset:{L1_HIST}""")
    make_tag(a)
    for k in range(4): a(f"v_mov_b32 v{TB+2*k+1}, s{S_NLO}")
    a("s_waitcnt lgkmcnt(0)")
    scan256(a, H_, O_)
    a(f"ds_write_b128 v{V_L16}, {vr(O_,4)} offset:{L1_BASE}")
    for k in range(4): a(f"ds_read_b32 v{H_+k}, v{B_+k} offset:{L1_BASE}")
    for k in range(4):
        a(f"""s_waitcnt lgkmcnt(3)
              v_add_u32 v{R_+k}, v{R_+k}, v{H_+k}
              v_lshl_add_u32 v{B_+k}, v{R_+k}, 3, s9
              ds_write_b64 v{B_+k}, {vr(TB+2*k,2)}""")
    for k in range(4):
        a(f"v_lshlrev_b32 v{R_+k}, 4, v{R_+k}\nv_add_u32 v{R_+k}, {L1_SREC}, v{R_+k}")
    a("s_waitcnt lgkmcnt(0)\ns_barrier")
    st('keys binned')
    a("s_waitcnt vmcnt(0)")
    for k in range(4):
        a(f"ds_write2_b64 v{R_+k}, {vr(Y_+2*k,2)}, {vr(F_+2*k,2)} offset0:0 offset1:1")
    st('recs binned')
    a("BINNED:\ns_setprio 0")
    const_finish(a)
    if opt.l2 > opt.lsplit: lut_plain(a, "W1", "L", last=opt.l2, cont=True)
    a(f"""v_mov_b32 v{V_LEN}, 0
    s_cmp_eq_u32 s{S_WAVE}, 4
    s_cbranch_scc1 NO_TAB""")
    poll_issue(a, V_LEN, V_POS, 0)
    a("NO_TAB:\ns_waitcnt lgkmcnt(0)\ns_barrier")
    st('tab issued')
    lut_plain(a, "W", "L", cont=True)
    a(f"s_cmp_eq_u32 s{S_WAVE}, 4\ns_cbranch_scc1 WAVE4")
    lut_plain(a, "V", "H")
    st('jobs B')
    poll_check(a, "TAB", V_LEN, V_POS, 0, T0 + 3, f"v_lshrrev_b32 v{T0+3}, 22, v{V_LEN}")
    st('tab arrived')
    a("s_branch TAB_DONE")
    lut_sub(a)
    const_sub(a)
    a(f"""HELP:
    s_cmp_eq_u32 s{S_WAVE}, 6                       ; jobs 0 / 25 / 63
    s_cselect_b32 s{S_JOB}, 25, 0
    s_cmp_eq_u32 s{S_WAVE}, 7
    s_cselect_b32 s{S_JOB}, 63, s{S_JOB}""")
    lut_jobs(a, 1)
    st('help jobs')
    a(f"""v_mov_b32 v{T0+2}, {0x7f80 * 2}
    v_mov_b32 v{T0+3}, 0x7f80
    s_cmp_lg_u32 s{S_WAVE}, 7
    s_cbranch_scc1 NO_INF
    ds_write_b16 v{T0+2}, v{T0+3} offset:{L_LUT}
NO_INF:
    s_waitcnt vmcnt(0)""")
    const_finish(a)
    a(f"""s_sub_u32 s8, s{S_WAVE}, 5
    s_mul_i32 s4, s8, 3072
    s_cmp_eq_u32 s8, 1
    s_cselect_b32 s4, 4096, s4
    s_mul_i32 s3, s2, {EP * 8}
    s_add_u32 s3, s3, s4
    v_add_u32 v{T0}, s3, v{V_L16}
    s_add_u32 s4, s4, {L1_SKEY}
    v_add_u32 v{T0+1}, s4, v{V_L16}
    s_mul_i32 s4, s8, 7168
    s_mul_i32 s3, s2, {EP * 16}
    s_add_u32 s3, s3, s4
    s_add_u32 s3, s3, {WS_REC}
    v_add_u32 v{T0+4}, s3, v{V_L16}
    v_add_u32 v{T0+5}, s4, v{V_L16}
    s_waitcnt lgkmcnt(0)""")
    make_tag(a)
    a(f"""s_barrier
    s_cmp_lg_u32 s{S_WAVE}, 6
    s_cbranch_scc1 NO_ROW
    v_lshrrev_b32 v{TB+9}, 1, v{V_L16}
    ds_read_b64 {vr(H_,2)}, v{TB+9} offset:{L1_HIST}
    ds_read_b64 {vr(H_+2,2)}, v{TB+9} offset:{L1_HIST + 512}
    s_lshl_b32 s3, s2, 11
    s_add_u32 s3, s3, {WS_TAB}
    v_add_u32 v{TB+8}, s3, v{V_L16}
    s_lshl_b32 s3, s{S_NHI}, 22
    s_waitcnt lgkmcnt(0)
    v_add_u32 v{T0+2}, v{H_}, v{H_+1}
    v_add_u32 v{T0+3}, v{H_+2}, v{H_+3}
    v_mov_b32 v{O_}, v{T0+2}
    v_mov_b32 v{O_+2}, v{T0+3}""")
    scan64(a, O_, O_ + 2)
    a(f"""v_sub_u32 v{O_+2}, v{O_+2}, v{T0+3}
    v_readlane_b32 s4, v{O_}, 63
    v_sub_u32 v{O_}, v{O_}, v{T0+2}
    v_add_u32 v{O_+1}, v{O_}, v{H_}
    v_add_u32 v{O_+2}, s4, v{O_+2}
    v_add_u32 v{O_+3}, v{O_+2}, v{H_+2}""")
    for k in range(4):
        a(f"""v_lshl_or_b32 v{TB+2*k}, v{H_+k}, 11, v{O_+k}
              v_or_b32 v{TB+2*k}, s3, v{TB+2*k}
              v_mov_b32 v{TB+2*k+1}, s{S_NLO}""")
    a(f"""global_store_dwordx4 v{TB+8}, {vr(TB,4)}, {WS} sc0 sc1
    global_store_dwordx4 v{TB+8}, {vr(TB+4,4)}, {WS} offset:1024 sc0 sc1""")
    st('table published')
    a("NO_ROW:\ns_barrier")
    for k in range(4): a(f"ds_read_b128 {vr(64+4*k,4)}, v{T0+1} offset:{1024*k}")
    for k in range(4):
        if k == 2: a(f"s_cmp_eq_u32 s8, 1\ns_cbranch_scc1 KEYS_STORED")
        a(f"s_waitcnt lgkmcnt({3-k})\nglobal_store_dwordx4 v{T0}, {vr(64+4*k,4)}, {WS} offset:{1024*k} {FL}")
    a(f"""KEYS_STORED:
    v_mov_b32 v{V_LEN}, 0
    s_waitcnt lgkmcnt(0)
    s_barrier
    s_cmp_ge_u32 s2, {NP}
    s_cbranch_scc1 TAB_DONE""")
    for k in range(7): a(f"ds_read_b128 {vr(84+4*k,4)}, v{T0+5} offset:{L1_SREC + 1024*k}")
    for k in range(7):
        if k == 4: a(f"v_add_u32 v{T0+4}, 4096, v{T0+4}")
        if k == 6: a(f"s_cmp_eq_u32 s8, 2\ns_cbranch_scc1 TAB_DONE")
        a(f"s_waitcnt lgkmcnt({6-k})\nglobal_store_dwordx4 v{T0+4}, {vr(84+4*k,4)}, {WS} offset:{(1024*k) % 4096} {FL}")
    a("s_branch TAB_DONE")
    a(f"""AUX_LOAD:
    s_cmp_ge_u32 s2, {NP + 4}
    s_cbranch_scc1 LOADED
    s_cmp_ge_u32 s{S_WAVE}, 4
    s_cbranch_scc1 LOADED
    s_sub_u32 s4, s2, {NP}
    s_lshl_b32 s5, s{S_WAVE}, 13
    s_lshl_b32 s8, s4, 6
    s_add_u32 s5, s5, s8
    v_lshrrev_b32 v{T0+1}, 8, v{V_L16}
    v_lshlrev_b32 v{T0+1}, 11, v{T0+1}
    v_bfe_u32 v{T0+2}, v{V_L16}, 4, 4
    v_lshl_add_u32 v{T0+1}, v{T0+2}, 2, v{T0+1}
    v_add_u32 v{T0+1}, s5, v{T0+1}
    s_lshl_b32 s5, s4, 13
    s_lshl_b32 s8, s{S_WAVE}, 10
    s_add_u32 s5, s5, s8
    s_add_u32 s5, s5, {WS_WMIX}
    v_add_u32 v{T0+2}, s5, v{V_L16}""")
    for t in range(8): a(f"global_load_dword v{64+t}, v{T0+1}, {sr(WMX,2)} offset:{t*256}")
    a(f"""s_branch LOADED
AUX:
    s_waitcnt lgkmcnt(0)""")
    make_tag(a)
    a(f"""s_barrier
    s_cmp_ge_u32 s2, {NP + 4}
    s_cbranch_scc1 AUX_DONE
    s_cmp_ge_u32 s{S_WAVE}, 4
    s_cbranch_scc1 AUX_DONE
    s_mov_b32 s4, 0x05040100
    s_mov_b32 s5, 0x07060302
    s_waitcnt vmcnt(0)""")
    for u in range(4):
        a(f"v_perm_b32 v{72+u}, v{65+2*u}, v{64+2*u}, s4\nv_perm_b32 v{76+u}, v{65+2*u}, v{64+2*u}, s5")
    a(f"""global_store_dwordx4 v{T0+2}, v[72:75], {WS} {FL}
    v_add_u32 v{T0+2}, 4096, v{T0+2}
    global_store_dwordx4 v{T0+2}, v[76:79], {WS} {FL}
AUX_DONE:
    s_barrier
    s_waitcnt vmcnt(0)
    s_branch BINNED
WAVE4:
    s_mov_b32 s{S_JOB}, 26""")
    lut_jobs(a, 2)
    a("TAB_DONE:")

def mfma4(d, a_, b, c, blk=None):
    cc = "0" if c is None else vr(c, 4)
    return f"v_mfma_f32_4x4x4_16b_bf16 {vr(d,4)}, {vr(a_,2)}, {vr(b,2)}, {cc}" + ("" if blk is None else f" cbsz:4 abid:{blk}")
def p_mfma(g, odd):
    return mfma4(UU + 8 * (g % 2) + 4 * odd, EF, PO if odd else PE, None, g % 16)
def t_mfma(e, odd):
    return mfma4(TP + 8 * (e % 2) + 4 * odd, WPK + 2 * (e % 4), XR + 4 * (e % 8) + 2 * odd, None, (e % 64) // 4)
def act_regs(eb, odd):
    return UU + 8 * ((eb // 4) % 2) + 4 * odd + eb % 4, RR + 4 * ((eb // 2) % 2) + 2 * odd
def act_addr(t, u):
    return f"v_lshlrev_b32_sdwa v{t}, v{V_ONE}, v{u} dst_sel:DWORD dst_unused:UNUSED_PAD src0_sel:DWORD src1_sel:WORD_1"
def act_read(r, t): return f"ds_read_u16_d16_hi v{r}, v{t} offset:{L_LUT}"
def fma4(a, q):
    h = q % 2
    a(f"s_set_gpr_idx_on s{S_K + q % 16}, 0xc")
    for odd in range(2):
        r = RR + 4 * ((q // 2) % 2) + 2 * odd
        for o in (0, 2):
            acc = ACC + 4 * odd + o; tp = TP + 8 * (q % 2) + 4 * odd + o
            a(f"v_pk_fma_f32 {vr(acc,2)}, {vr(r,2)}, {vr(tp,2)}, {vr(acc,2)} op_sel:[{h},0,0] op_sel_hi:[{h},1,1]")
    a("s_set_gpr_idx_off")
def meta_read_entry(a): a(f"ds_read_b32 v{ENT}, v{V_AENT}")
def meta_fix_entry(a, rec=True):
    a(f"""v_cmp_gt_u32 vcc, s{S_END}, v{V_POS}
          v_add_u32 v{V_POS}, 64, v{V_POS}
          v_add_u32 v{V_AENT}, 256, v{V_AENT}
          v_cndmask_b32 v{ENT}, 40, v{ENT}, vcc
          v_lshrrev_b32 v{T0}, 21, v{ENT}
          v_lshlrev_b32 v{T0}, 4, v{T0}
          v_lshlrev_b32 v{T0+1}, 3, v{ENT}""")
    if rec: meta_read_rec(a)
    a(f"""v_and_b32 v{T0+1}, 0xfffc00, v{T0+1}
          v_and_or_b32 v{ENT}, v{ENT}, 56, v{T0+1}""")
def meta_read_rec(a): a(f"ds_read_b128 {vr(RECN,4)}, v{T0} offset:{L_UREC}")
def w_mfma(i): return mfma4(WTMP + 4 * i, RECN, CGB + 2 * i, None)
def w_cvt(a, m):
    a(f"""v_cvt_pk_bf16_f32 v{WPK+2*m}, v{WTMP+m}, v{WTMP+4+m}
          v_cvt_pk_bf16_f32 v{WPK+2*m+1}, v{WTMP+8+m}, v{WTMP+12+m}""")

def body(a, opt, loads):
    D = opt.D; tag = "A" if loads else "B"
    for q in range(64):
        if q % 4 == 0:
            a(f"{tag}_{q}:")
            if loads: a(f"s_sub_u32 s{S_REM}, s{S_REM}, 4\ns_cbranch_scc1 TO_B_{q}")
            else:     a(f"s_sub_u32 s{S_REMB}, s{S_REMB}, 4\ns_cbranch_scc1 MAIN_DONE")
        eb = q + 2 - q % 2; odd = q % 2
        u, r = act_regs(eb, odd); t = TT + 2 * odd
        g, ur = (q + 6) // 4, (q + 6) % 4
        if ur % 2 == 0: a(p_mfma(g, ur // 2))
        elif 40 <= q < 48: a(w_mfma((q - 40) // 2))
        a(act_addr(t, u))
        a(f"s_waitcnt vmcnt({D - 2 if loads else 8 + max(0, D - (6 if D == 8 else 2) - q % 4)})")
        a(t_mfma(q + 1, 0))
        if loads: a(f"v_readlane_b32 s{S_K + (q + D) % 16}, v{KEY if q + D < 64 else ENT}, {(q + D) % 64}")
        else:     a("s_nop 0")
        a(t_mfma(q + 1, 1))
        a(act_addr(t + 1, u + 1))
        a(act_read(r, t)); a(act_read(r + 1, t + 1))
        if q >= 60: w_cvt(a, q - 60)
        if loads:
            a(f"s_and_b32 s{S_OFF}, s{S_K + (q + D) % 16}, s{S_MASK}")
            a(f"buffer_load_dwordx4 {vr(XR + 4 * ((q + D) % 8), 4)}, v{V_L16}, {sr(S_X,4)}, s{S_OFF} offen")
        if q % 2 == 0: a("s_waitcnt lgkmcnt(2)")
        fma4(a, q)
        if q == 8: meta_read_entry(a)
        if q == 12: meta_fix_entry(a)
        if q == 57: a(f"v_mov_b32 v{EF}, v{RECN+2}\nv_mov_b32 v{EF+1}, v{RECN+3}\ns_nop 1")
        if q == 63: a(f"v_mov_b32 v{KEY}, v{ENT}")
    if opt.stamps and loads:
        STAMPS.extend(("batch 1", "batch 2")); k = S_ST + len(STAMPS) - 2
        a(f"""s_memrealtime s[98:99]
        s_waitcnt lgkmcnt(0)
        s_cmp_eq_u32 s{k}, 0
        s_cselect_b32 s99, 0, s98
        s_cselect_b32 s{k}, s98, s{k}
        s_cmp_eq_u32 s{k+1}, 0
        s_cselect_b32 s{k+1}, s99, s{k+1}""")
    if opt.probe == "batch 1" and loads:
        a("s_memrealtime s[98:99]\ns_waitcnt lgkmcnt(0)\ns_cmp_eq_u32 s93, 0\ns_cselect_b32 s93, s98, s93")
    a(f"s_branch {tag}_0")

def x_touch(a, opt, where, guard=True):
    for spec in filter(None, opt.xt.split(",")):
        w, lo, hi = map(int, spec.split(":"))
        if w != where: continue
        if guard: a(f"s_cmp_lg_u32 s{S_W0}, 0\ns_cbranch_scc1 NO_X_TOUCH_{w}")
        a(f"""s_lshl_b32 s4, s2, 3
        s_add_u32 s4, s4, s{S_WAVE}
        s_lshl_b32 s4, s4, 7
        s_add_u32 s4, s4, {lo << 18}
        v_min_u32 v{TT+3}, {(hi - lo - 1) * 16}, v{V_L16}
        v_lshl_add_u32 v{TT+3}, v{TT+3}, 14, s4
        buffer_load_dword v{V_FLAG+1}, v{TT+3}, {sr(S_X,4)}, 0 offen""")
        a(f"NO_X_TOUCH_{w}:")

def zero_hist(a):
    a(f"""v_lshlrev_b32 v{T0+3}, 2, v0
    v_mov_b32 v{T0+4}, 0
    v_cmp_gt_u32 vcc, {40 * HS // 4}, v0
    s_and_saveexec_b64 {sr(S_T,2)}, vcc
    ds_write_b32 v{T0+3}, v{T0+4} offset:{L_HIST}
    s_mov_b64 exec, {sr(S_T,2)}""")

def kernel(opt):
    a = Asm(); D = opt.D
    st = lambda n: stamp(a, opt, n)
    a(f"""{KERN}:
    s_cmp_ge_u32 s2, 256
    s_cbranch_scc1 END""")
    if opt.probe: a("s_mov_b32 s93, 0\ns_memrealtime s[98:99]\ns_waitcnt lgkmcnt(0)\ns_mov_b32 s92, s98")
    if opt.stamps:
        for k in range(32): a(f"s_mov_b32 s{S_ST+k}, 0")
    st('start')
    a(f"""s_load_dwordx16 {sr(S_IN,16)}, s[0:1], 0
    s_load_dwordx2 {sr(S_WS,2)}, s[0:1], 80
    s_load_dwordx2 {sr(S_X,2)}, s[0:1], 0
    s_load_dwordx2 {sr(S_OUT,2)}, s[0:1], 64
    ; wave 7 of every workgroup takes 8 lines; the 32 workgroups with equal id % 8 cover 32 KiB
    s_getpc_b64 s[6:7]
CODE_HERE:
    v_lshrrev_b32 v{T0}, 6, v0
    s_lshr_b32 s5, s2, 3
    s_lshl_b32 s4, s5, 10
    v_readfirstlane_b32 s{S_WAVE}, v{T0}
    v_and_b32 v{T0+2}, 7, v0
    v_lshl_add_u32 v{T0+2}, v{T0+2}, 7, s4
    v_min_u32 v{T0+2}, END-CODE_HERE, v{T0+2}
    s_cmp_lg_u32 s{S_WAVE}, 7
    s_cbranch_scc1 NO_CODE_TOUCH
    global_load_dword v{V_FLAG+1}, v{T0+2}, s[6:7]
NO_CODE_TOUCH:
    s_mul_i32 s3, s2, {EP * 4}
    v_lshl_add_u32 v{T0}, v0, 4, s3
    v_and_b32 v{T0+2}, 63, v0
    v_lshlrev_b32 v{V_L16}, 4, v{T0+2}
    v_lshlrev_b32 v{CT+5}, 2, v{T0+2}
    s_cmp_ge_u32 s{S_WAVE}, 5
    s_cselect_b32 s3, {NP}, s2
    s_cmp_ge_u32 s3, {NP}
    s_waitcnt lgkmcnt(0)
    s_cbranch_scc1 NO_EDGES
    s_setprio 1
    global_load_dwordx4 {vr(D_,4)}, v{T0}, {sr(DST,2)}
    global_load_dwordx4 {vr(S_,4)}, v{T0}, {sr(SRC,2)}
NO_EDGES:""")
    st('kernargs')
    for k in range(4): a(f"global_load_dword v{CT+k}, v{CT+5}, {sr(WRAD,2)} offset:{k*256}")
    a(f"""v_and_b32 v{CT+5}, 0x7f, v{CT+5}
    global_load_dword v{CT+4}, v{CT+5}, {sr(CG,2)}
    v_lshlrev_b32 v{T0+1}, 1, v{T0}
    v_lshlrev_b32 v{T0+3}, 3, v0
    v_mov_b32 v{T0+4}, 0
    v_mov_b32 v{T0+5}, 0
    ds_write_b64 v{T0+3}, {vr(T0+4,2)}
    s_and_b32 s4, s2, 7
    s_lshl_b32 s4, s4, 5
    s_lshr_b32 s5, s2, 3
    s_or_b32 s{S_BETA}, s4, s5
    v_mov_b32 v{V_ONE}, 1
    s_mov_b32 s{S_X+2}, {N * 1024}
    s_mov_b32 s{S_X+3}, 0x20000
    s_mov_b32 s{S_WS+2}, {WS_END if not opt.stamps else WS_STAMP + 0x80000}
    s_mov_b32 s{S_WS+3}, 0x20000
    s_mov_b32 s{S_OUT+2}, {N * 1024}
    s_mov_b32 s{S_OUT+3}, 0x20000
    s_mov_b32 s{S_MASK}, 0xfffffc00
    s_mov_b32 s{S_W0}, 0
    s_mov_b32 s{S_L2E}, 0xbfb8aa3b
    s_mov_b32 s{S_L2E+1}, 0xbfb8aa3b
    v_mul_u32_u24 v{V_SIG4}, 52, v{T0+2}
    v_lshrrev_b32 v{V_SIG4}, 8, v{V_SIG4}            ; lane / 5
    v_mul_u32_u24 v{V_SLOT4}, 5, v{V_SIG4}
    v_sub_u32 v{V_SLOT4}, v{T0+2}, v{V_SLOT4}        ; lane % 5
    v_lshlrev_b32 v{V_SIG4}, 2, v{V_SIG4}
    v_lshlrev_b32 v{V_SLOT4}, 2, v{V_SLOT4}
    s_mov_b32 s{S_SPIN}, {1 << 21}
    v_and_b32 v{V_GID}, 0xff, v0
    s_lshl_b32 s3, s{S_BETA}, 3
    s_add_u32 s3, s3, {WS_TAB}
    v_lshl_add_u32 v{V_POS}, v{V_GID}, 11, s3
    s_and_b32 s3, s2, 7
    s_lshl_b32 s3, s3, 7
    s_add_u32 s3, s3, {WS_RDY}
    s_lshl_b32 s8, s{S_WAVE}, 15
    s_add_u32 s3, s3, s8
    v_and_b32 v{V_FLAG}, 31, v0
    v_lshl_add_u32 v{V_FLAG}, v{V_FLAG}, 10, s3      ; flag of producer 32 wave + lane % 32
    v_mul_u32_u24 v{V_GID}, {EP}, v{V_GID}
    v_mul_u32_u24 v{LJ+10}, 0x8000, v{V_L16}
    v_lshl_add_u32 v{LJ+10}, v{T0+2}, 3, v{LJ+10}    ; lane * 8 * 0x10001""")
    for k in range(0, 48, 2): a(f"v_pk_mov_b32 {vr(ACC+k,2)}, {vr(T0+4,2)}, {vr(T0+4,2)}")
    a("s_waitcnt lgkmcnt(0)")
    load_epoch(a)
    a("s_barrier")
    phase1(a, opt)
    a(f"""s_cmp_ge_u32 s{S_WAVE}, 4
    s_cbranch_scc1 NOT_POLLER
    v_and_b32 v{T0+5}, 0x7ff, v{V_LEN}
    v_bfe_u32 v{V_LEN}, v{V_LEN}, 11, 11
    v_add_u32 v{V_GID}, v{V_GID}, v{T0+5}
    v_mov_b32 v{V_PRE}, v{V_LEN}""")
    if opt.keypf:
        a(f"""v_lshlrev_b32 v{T0+2}, 3, v{V_GID}
        buffer_load_dword v{V_FLAG+1}, v{T0+2}, {sr(S_WS,4)}, 0 offen sc1""")
    scan64(a, V_PRE)
    a(f"""s_lshl_b32 s3, s{S_WAVE}, 2
    v_mov_b32 v{T0+2}, s3
    v_add_u32 v{T0+3}, 1, v{V_PRE}
    v_sub_u32 v{V_PRE}, v{V_PRE}, v{V_LEN}
    s_mov_b32 exec_lo, 0
    s_mov_b32 exec_hi, 0x80000000
    ds_write_b32 v{T0+2}, v{T0+3} offset:{L_WT}
    s_mov_b64 exec, -1
    s_branch TOTALS
NOT_POLLER:
    s_cmp_eq_u32 s{S_WAVE}, 4
    s_cbranch_scc1 TOTALS
    v_mov_b32 v{T0+2}, {L_CNT}
    s_waitcnt vmcnt(0)
    s_mov_b64 exec, 1
    ds_add_rtn_u32 v{T0+2}, v{T0+2}, v{V_ONE}
    s_mov_b64 exec, -1
    s_waitcnt lgkmcnt(0)
    v_readfirstlane_b32 s3, v{T0+2}
    s_cmp_lg_u32 s3, 2
    s_cbranch_scc1 TOTALS""")
    flag_store(a, WS_RDY)
    st('recs flagged')
    a(f"""TOTALS:
    v_mov_b32 v{T0+2}, 0
TOTALS_SPIN:
    ds_read_b128 {vr(XR,4)}, v{T0+2} offset:{L_WT}
    s_waitcnt lgkmcnt(0)""")
    for k in range(4): a(f"v_readfirstlane_b32 s{4+k}, v{XR+k}")
    a(f"""s_min_u32 s3, s4, s5
    s_min_u32 s8, s6, s7
    s_min_u32 s3, s3, s8
    s_cmp_eq_u32 s3, 0
    s_cbranch_scc0 TOTALS_OK
    s_sub_u32 s{S_SPIN}, s{S_SPIN}, 1
    s_cbranch_scc0 TOTALS_SPIN
    s_endpgm
TOTALS_OK:
    s_add_u32 s5, s5, s4
    s_add_u32 s6, s6, s5
    s_add_u32 s7, s7, s6
    s_sub_u32 s{S_N}, s7, 4
    s_cmp_eq_u32 s{S_WAVE}, 1
    s_cselect_b32 s3, s4, 0
    s_cmp_eq_u32 s{S_WAVE}, 2
    s_cselect_b32 s3, s5, s3
    s_cmp_eq_u32 s{S_WAVE}, 3
    s_cselect_b32 s3, s6, s3
    s_sub_u32 s3, s3, s{S_WAVE}
    v_add_u32 v{V_PRE}, s3, v{V_PRE}
    s_cmp_lg_u32 s{S_WAVE}, 4
    s_cbranch_scc1 EPOCH_DONE
    s_cmp_lg_u32 s2, 0
    s_cbranch_scc1 EPOCH_DONE
    v_mov_b32 v{T0+4}, s{S_NLO}
    v_mov_b32 v{T0+2}, {WS_EPOCH}
    s_mov_b64 exec, 1
    global_store_dword v{T0+2}, v{T0+4}, {sr(S_WS,2)} sc0 sc1
    s_mov_b64 exec, -1
EPOCH_DONE:""")
    x_touch(a, opt, 3, False)
    st('prefix done')
    a(f"""ROUND:
    v_mov_b32 v{T0}, 0
    v_subrev_u32 v{T0+1}, s{S_W0}, v{V_PRE}
    v_mov_b32 v{T0+2}, v{V_GID}
    s_mov_b32 s3, {CAP}
    s_cmp_gt_u32 s{S_N}, {CAP}
    s_cbranch_scc1 EXPAND
    v_lshlrev_b32 v{T0+3}, 2, v{V_PRE}""")
    for j in range(16):
        a(f"v_cmpx_lt_u32 vcc, {j}, v{V_LEN}")
        if j % 2 == 0 and j >= 6: a("s_cbranch_execz EXPAND_DONE")
        a(f"ds_write_b32 v{T0+3}, v{T0+2} offset:{L_SENT + 4*j}\nv_add_u32 v{T0+2}, 1, v{T0+2}")
    a(f"""v_mov_b32 v{T0}, 16
    v_add_u32 v{T0+1}, 16, v{T0+1}
EXPAND:
    v_cmp_lt_u32 vcc, v{T0}, v{V_LEN}
    s_and_b64 exec, exec, vcc
    s_cbranch_execz EXPAND_DONE
    v_cmp_gt_u32 vcc, s3, v{T0+1}
    v_lshlrev_b32 v{T0+3}, 2, v{T0+1}
    s_and_saveexec_b64 {sr(S_T,2)}, vcc
    ds_write_b32 v{T0+3}, v{T0+2} offset:{L_SENT}
    s_mov_b64 exec, {sr(S_T,2)}
    v_add_u32 v{T0}, 1, v{T0}
    v_add_u32 v{T0+1}, 1, v{T0+1}
    v_add_u32 v{T0+2}, 1, v{T0+2}
    s_branch EXPAND
EXPAND_DONE:
    s_mov_b64 exec, -1
    s_sub_u32 s{S_NWIN}, s{S_N}, s{S_W0}
    s_min_u32 s{S_NWIN}, s{S_NWIN}, {CAP}
    v_lshlrev_b32 v{T0}, 2, v0""")
    for i in range(3):
        a(f"""v_add_u32 v{T0+1}, {512*i}, v0
              v_cmp_gt_u32 {sr(S_M+2*i,2)}, s{S_NWIN}, v{T0+1}""")
    x_touch(a, opt, 4)
    st('list built')
    a("s_waitcnt lgkmcnt(0)\ns_barrier")
    st('list barrier')
    G = XR
    KP = TP
    for i in range(3): a(f"ds_read_b32 v{G+i}, v{T0} offset:{L_SENT + 2048*i}")
    a(f"""s_mov_b32 s{S_T+2}, 5033                          ; 12 * 2^32 / (10000 * 1024)
    s_waitcnt lgkmcnt(0)""")
    for i in range(3):
        a(f"v_lshlrev_b32 v{G+4+i}, 3, v{G+i}\nv_lshlrev_b32 v{G+i}, 4, v{G+i}")
    a(f"""KEY_LOAD:
    s_mov_b64 exec, {sr(S_M+4,2)}
    s_cbranch_execz SKIP3
    buffer_load_dwordx2 {vr(KP+4,2)}, v{G+6}, {sr(S_WS,4)}, 0 offen sc1
SKIP3:""")
    for i in range(2):
        a(f"s_mov_b64 exec, {sr(S_M+2*i,2)}\nbuffer_load_dwordx2 {vr(KP+2*i,2)}, v{G+4+i}, {sr(S_WS,4)}, 0 offen sc1")
    a("s_mov_b64 exec, -1")
    x_touch(a, opt, 7, False)
    a(f"""s_cmp_lt_u32 s{S_WAVE}, 2
    s_cbranch_scc1 NO_LAST_JOB
    s_mov_b32 s{S_L2E}, 0xbfb8aa3b
    s_mov_b32 s{S_L2E+1}, 0xbfb8aa3b""")
    a(f"s_add_u32 s{S_JOB}, s{S_WAVE}, 26")
    lut_jobs(a, 1)
    a(f"NO_LAST_JOB:\ns_waitcnt vmcnt({(',' + opt.xt).count(',7:')})")
    for i in range(3): a(f"v_cmp_ne_u32 {sr(S_K+2*i,2)}, s{S_NLO}, v{KP+2*i+1}")
    for i in range(3): a(f"s_and_b64 {sr(S_K+2*i,2)}, {sr(S_K+2*i,2)}, {sr(S_M+2*i,2)}")
    a(f"""s_or_b64 {sr(S_K,2)}, {sr(S_K,2)}, {sr(S_K+2,2)}
    s_or_b64 {sr(S_K,2)}, {sr(S_K,2)}, {sr(S_K+4,2)}
    s_cbranch_scc0 KEYS_OK
    s_sub_u32 s{S_SPIN}, s{S_SPIN}, 1
    s_cbranch_scc0 KEY_LOAD
    s_endpgm
KEYS_OK:""")
    st('keys arrived')
    if opt.rdy == 0: poll_issue(a, TT, V_FLAG, 0)
    x_touch(a, opt, 1, False)
    for i in range(3):
        a(f"""v_mul_hi_u32 v{T0+1}, s{S_T+2}, v{KP+2*i}
              v_and_b32 v{G+8+i}, 63, v{KP+2*i}
              v_mul_u32_u24 v{G+8+i}, {HS}, v{G+8+i}
              v_lshl_add_u32 v{G+8+i}, v{T0+1}, 2, v{G+8+i}""")
    for i in range(3):
        a(f"s_mov_b64 exec, {sr(S_M+2*i,2)}\nds_add_rtn_u32 v{G+12+i}, v{G+8+i}, v{V_ONE} offset:{L_HIST}")
    a("s_mov_b64 exec, -1")
    for i in range(3):
        a(f"""v_add_u32 v{T0+1}, {512*i}, v0
              v_lshlrev_b32 v{T0+1}, 21, v{T0+1}
              v_lshrrev_b32 v{G+16+i}, 10, v{KP+2*i}
              v_lshl_or_b32 v{G+16+i}, v{G+16+i}, 7, v{T0+1}""")
    H = G + 20
    a(f"""v_lshrrev_b32 v{T0}, 4, v{V_L16}              ; lane
    v_min_u32 v{T0+1}, 39, v{T0}
    v_mul_u32_u24 v{T0+1}, {HS}, v{T0+1}
    v_cmp_gt_u32 {sr(S_T+4,2)}, 40, v{T0}
    v_sub_u32 v{T0+2}, 63, v{T0}
    s_mul_i32 s10, s{S_WAVE}, 5
    s_lshl_b32 s3, s{S_WAVE}, 10
    s_add_u32 s3, s3, {L_UREC}
    s_mov_b32 s9, {WS_REC}
    s_waitcnt lgkmcnt(0)
    s_barrier""")
    st('hist done')
    if opt.rdy == 1: poll_issue(a, TT, V_FLAG, 0)
    for k in range(3): a(f"ds_read_b128 {vr(H+4*k,4)}, v{T0+1} offset:{L_HIST + 16*k}")
    a(f"""    s_waitcnt lgkmcnt(1)
    v_add3_u32 v{H}, v{H}, v{H+1}, v{H+2}
    v_add3_u32 v{H+3}, v{H+3}, v{H+4}, v{H+5}
    v_add3_u32 v{H}, v{H}, v{H+6}, v{H+7}
    s_waitcnt lgkmcnt(0)
    v_add3_u32 v{H+3}, v{H+3}, v{H+8}, v{H+9}
    v_add3_u32 v{H}, v{H}, v{H+10}, v{H+11}
    v_add_u32 v{H}, v{H}, v{H+3}
    v_lshl_or_b32 v{H+1}, v{H}, 6, v{T0+2}
    v_cndmask_b32 v{H+1}, 0, v{H+1}, {sr(S_T+4,2)}
    s_cmp_lg_u32 s{S_W0}, 0
    s_cbranch_scc1 DEALT""")
    for k in range(5):
        a(f"v_readlane_b32 s{S_NODE+k}, v{H+1}, s10")
        if k < 4: a("s_add_u32 s10, s10, 1")
    for k in range(5): a(f"v_cmp_lt_u32 {sr(S_K+2*k,2)}, s{S_NODE+k}, v{H+1}")
    for k in range(5): a(f"s_bcnt1_i32_b64 s{S_NODE+k}, {sr(S_K+2*k,2)}")
    for k in range(5): a(f"v_writelane_b32 v{T0+1}, s{S_NODE+k}, {k}")
    a(f"""s_sub_u32 s10, s10, 4
    v_add_u32 v{T0+2}, s10, v{T0}
    v_lshrrev_b32 v{T0+3}, 3, v{T0+1}
    v_and_b32 v{T0+1}, 7, v{T0+1}
    v_lshrrev_b32 v{T0+4}, v{T0+3}, {opt.dirmask}
    v_and_b32 v{T0+4}, 1, v{T0+4}
    v_mul_u32_u24 v{T0+4}, 7, v{T0+4}
    v_xor_b32 v{T0+1}, v{T0+1}, v{T0+4}               ; wave
    v_mad_u32_u24 v{T0+1}, v{T0+1}, 5, v{T0+3}
    v_lshlrev_b32 v{T0+1}, 2, v{T0+1}
    s_mov_b64 exec, 0x1f
    ds_write_b32 v{T0+1}, v{T0+2} offset:{L_INV}
    s_mov_b64 exec, -1
DEALT:
    s_lshl_b32 s11, s10, 2
    v_add_u32 v{T0+1}, s11, v{V_SLOT4}
    v_lshlrev_b32 v{T0+5}, 2, v{T0}
""")
    poll_check(a, "REC", TT, V_FLAG, 0, TT + 1, younger=("," + opt.xt).count(",1:"))
    a(f"""v_cmp_gt_u32 {sr(S_T,2)}, 60, v{T0}
    s_waitcnt lgkmcnt(0)
    s_barrier""")
    st('dealt')
    a(f"""ds_read_b32 v{T0+1}, v{T0+1} offset:{L_INV}
    ds_read_b32 v{T0+5}, v{T0+5} offset:{L_INV}
    v_lshlrev_b32 v{T0+4}, 17, v{V_SLOT4}             ; slot << 19""")
    for i in range(2):
        a(f"""s_add_u32 m0, s3, {i*8192}
              s_mov_b64 exec, {sr(S_M+2*i,2)}
              buffer_load_dwordx4 v{G+i}, {sr(S_WS,4)}, s9 offen sc1 lds""")
    a(f"""s_add_u32 m0, s3, {2*8192}
    s_mov_b64 exec, {sr(S_M+4,2)}
    s_cbranch_execz SKIP3R
    buffer_load_dwordx4 v{G+2}, {sr(S_WS,4)}, s9 offen sc1 lds
SKIP3R:
    s_mov_b64 exec, -1""")
    x_touch(a, opt, 2)
    a(f"""    s_waitcnt lgkmcnt(1)
    v_mul_u32_u24 v{T0+2}, {HS}, v{T0+1}
    v_add_u32 v{T0+2}, v{T0+2}, v{V_SIG4}
    ds_read_b32 v{T0+3}, v{T0+2} offset:{L_HIST}
    s_waitcnt lgkmcnt(1)
    v_lshlrev_b32 v{T0+5}, 2, v{T0+5}
    ds_bpermute_b32 v{H+2}, v{T0+5}, v{H}""")
    for k in range(5): a(f"v_readlane_b32 s{S_NODE+k}, v{T0+1}, {k}")
    a(f"""s_waitcnt lgkmcnt(0)
    v_cndmask_b32 v{T0+3}, 0, v{T0+3}, {sr(S_T,2)}
    v_cndmask_b32 v{H+2}, 0, v{H+2}, {sr(S_T+4,2)}
    v_sub_u32 v{T0+4}, v{T0+4}, v{T0+3}
    v_mov_b32 v{H+3}, v{H+2}""")
    scan64(a, T0 + 3, H + 3)
    a(f"""v_sub_u32 v{H+3}, v{H+3}, v{H+2}
    v_add_u32 v{T0+4}, v{T0+4}, v{T0+3}
    v_readlane_b32 s{S_START}, v{H+3}, s10
    v_readlane_b32 s{S_END}, v{T0+3}, 63
    s_nop 0
    v_add_u32 v{T0+4}, s{S_START}, v{T0+4}
    s_mov_b64 exec, {sr(S_T,2)}
    ds_write_b32 v{T0+2}, v{T0+4} offset:{L_HIST}
    s_mov_b64 exec, -1
    v_add_u32 v{V_POS}, s{S_START}, v{T0}
    v_lshlrev_b32 v{V_AENT}, 2, v{V_POS}
    v_add_u32 v{V_AENT}, {L_SENT}, v{V_AENT}
    s_add_u32 s10, s{S_END}, 3
    s_and_b32 s10, s10, -4
    s_min_u32 s{S_REMB}, s10, {8 if D == 8 else 4}
    s_sub_u32 s{S_REM}, s10, s{S_REMB}
    s_add_u32 s{S_END}, s{S_END}, s{S_START}""")
    a("s_waitcnt lgkmcnt(0)\ns_barrier")
    st('bases')
    for i in range(3): a(f"ds_read_b32 v{G+8+i}, v{G+8+i} offset:{L_HIST}")
    for i in range(3):
        a(f"""s_waitcnt lgkmcnt({2-i})
              v_lshrrev_b32 v{T0+1}, 16, v{G+8+i}
              v_and_b32 v{G+8+i}, 0xffff, v{G+8+i}
              v_or_b32 v{G+16+i}, v{G+16+i}, v{T0+1}
              v_add_lshl_u32 v{G+8+i}, v{G+8+i}, v{G+12+i}, 2""")
    for i in range(3):
        a(f"""s_mov_b64 exec, {sr(S_M+2*i,2)}
              ds_write_b32 v{G+8+i}, v{G+16+i} offset:{L_SENT}""")
    a("s_mov_b64 exec, -1")
    a("s_waitcnt lgkmcnt(0)")
    if not opt.xpre: a("s_waitcnt vmcnt(0)")
    a("s_barrier")
    st('sorted')
    if opt.stamps: a(f"s_memtime s[100:101]\ns_waitcnt lgkmcnt(0)\ns_mov_b32 s{S_ST+30}, s100")
    if opt.prio == 1: a(f"s_cmp_ge_u32 s{S_WAVE}, 4\ns_cbranch_scc0 PRIO_SET\ns_setprio 1\nPRIO_SET:")
    meta_read_entry(a)
    a(f"""s_and_b32 s{S_WM}, s{S_WAVE}, 3
    s_lshl_b32 s{S_WM}, s{S_WM}, 13
    s_add_u32 s{S_WM}, s{S_WM}, {WS_WMIX}
    s_add_u32 s{S_WM+1}, s{S_WM}, 4096""")
    for k in range(8): a(f"v_mov_b32 v{RR+k}, 0")
    a("s_waitcnt lgkmcnt(0)")
    meta_fix_entry(a, False)
    a("s_nop 0")
    def first_rows(lo, hi):
        for e in range(lo, hi):
            a(f"""v_readlane_b32 s{S_K+e}, v{ENT}, {e}
                  s_and_b32 s{S_OFF}, s{S_K+e}, s{S_MASK}
                  buffer_load_dwordx4 {vr(XR+4*e,4)}, v{V_L16}, {sr(S_X,4)}, s{S_OFF} offen""")
    if opt.xpre:
        first_rows(0, opt.xpre)
        a(f"s_waitcnt vmcnt({opt.xpre})")
        st('recs landed')
        a("s_barrier")
    meta_read_rec(a)
    first_rows(opt.xpre, D)
    a(f"v_mov_b32 v{KEY}, v{ENT}")
    a(f"""s_waitcnt lgkmcnt(0)
    v_mov_b32 v{EF}, v{RECN+2}
    v_mov_b32 v{EF+1}, v{RECN+3}""")
    for i in range(4): a(w_mfma(i))
    a(p_mfma(0, 0)); a(p_mfma(0, 1)); a(p_mfma(1, 0))
    a("s_nop 1")
    for m in range(4): w_cvt(a, m)
    for odd in range(2):
        u, r = act_regs(0, odd)
        for h in range(2): a(act_addr(TT + 2 * odd + h, u + h))
        for h in range(2): a(act_read(r + h, TT + 2 * odd + h))
    a(f"s_waitcnt vmcnt({D-1})")
    st('first row')
    a(t_mfma(0, 0)); a(t_mfma(0, 1))
    body(a, opt, True)
    for q in range(0, 64, 4):
        a(f"TO_B_{q}:")
        for k in range(8):
            a(f"buffer_load_dwordx4 {vr(WMIX+4*k,4)}, v{V_L16}, {sr(S_WS,4)}, s{S_WM + k // 4} offen offset:{(k%4)*1024} sc1")
        if q: a(f"s_branch B_{q}")
        else: a("s_branch B_0")
    body(a, opt, False)
    a(f"""MAIN_DONE:
    s_waitcnt vmcnt(0) lgkmcnt(0)
    s_add_u32 s{S_W0}, s{S_W0}, {CAP}
    s_cmp_ge_u32 s{S_W0}, s{S_N}
    s_cbranch_scc1 ALL_DONE""")
    zero_hist(a)
    a("s_waitcnt lgkmcnt(0)\ns_barrier\ns_branch ROUND\nALL_DONE:")
    st('main done')
    if opt.stamps: a(f"s_memtime s[100:101]\ns_waitcnt lgkmcnt(0)\ns_sub_u32 s{S_ST+30}, s100, s{S_ST+30}")
    PK = XR
    for s in range(5):
        for o in range(4): a(f"v_cvt_pk_bf16_f32 v{PK+4*s+o}, v{ACC+8*s+o}, v{ACC+8*s+4+o}")
    a(f"""v_lshrrev_b32 v{T0}, 2, v{V_L16}
    v_add_u32 v{T0}, {L_AGG}, v{T0}""")
    for s in range(5):
        a(f"s_mul_i32 s{S_T}, s{S_NODE+s}, {4 * AGG_RS}\nv_add_u32 v{TP+s}, s{S_T}, v{T0}")
    a(f"""v_lshrrev_b32 v{T0+1}, 4, v{V_L16}            ; lane
    v_and_b32 v{T0+2}, 15, v{T0+1}
    v_lshrrev_b32 v{T0+3}, 4, v{T0+1}                 ; lane >> 4
    s_lshr_b32 s{S_T}, s{S_WAVE}, 2
    s_mul_i32 s{S_T+1}, s{S_T}, {80 * AGG_RS}
    s_add_u32 s{S_T+1}, s{S_T+1}, {L_AGG}
    v_mul_u32_u24 v{T0}, {AGG_RS}, v{T0+2}
    v_lshl_add_u32 v{T0}, v{T0+3}, 4, v{T0}
    v_add_u32 v{T0}, s{S_T+1}, v{T0}
    s_mul_i32 s{S_T}, s{S_T}, {20 << 18}
    s_lshl_b32 s{S_T+1}, s{S_BETA}, 10
    s_add_u32 s{S_T}, s{S_T}, s{S_T+1}
    s_and_b32 s{S_T+1}, s{S_WAVE}, 3
    s_lshl_b32 s{S_T+1}, s{S_T+1}, 8
    s_add_u32 s{S_T}, s{S_T}, s{S_T+1}
    v_lshlrev_b32 v{T0+3}, 18, v{T0+3}
    v_lshl_add_u32 v{T0+3}, v{T0+2}, 4, v{T0+3}
    v_add_u32 v{T0+3}, s{S_T}, v{T0+3}
    s_barrier""")
    st('all main done')
    for s in range(5):
        for o in range(4): a(f"ds_write_b32 v{TP+s}, v{PK+4*s+o} offset:{o*AGG_RS}")
    a("s_waitcnt lgkmcnt(0)\ns_barrier")
    st('agg in LDS')
    AF = XR
    def rd(t):
        for ks in range(4): a(f"ds_read_b128 {vr(AF+16*(t%2)+4*ks,4)}, v{T0} offset:{t*16*AGG_RS + ks*64}")
    def pack_store(t):
        d = ACC + 8 * t; p = RR + 4 * (t % 2)
        for j in range(4): a(f"v_cvt_pk_bf16_f32 v{p+j}, v{d+2*j}, v{d+2*j+1}")
        a(f"buffer_store_dwordx4 {vr(p,4)}, v{T0+3}, {sr(S_OUT,4)}, 0 offen {opt.outst}")
        if t < 4: a(f"v_add_u32 v{T0+3}, {4 << 18}, v{T0+3}")
    rd(0)
    for t in range(5):
        if t < 4: rd(t + 1)
        for ks in range(4):
            a(f"s_waitcnt lgkmcnt({(4 if t < 4 else 0) + 3 - ks})")
            for j in range(2):
                d = ACC + 8 * t + 4 * j
                a(f"v_mfma_f32_16x16x32_bf16 {vr(d,4)}, {vr(AF+16*(t%2)+4*ks,4)}, {vr(WMIX+16*j+4*ks,4)}, " + ("0" if ks == 0 else vr(d, 4)))
            if ks == 3 and t > 0: pack_store(t - 1)
    a("s_nop 7")
    pack_store(4)
    st('end')
    if opt.probe:
        a(f"""s_cmp_eq_u32 s93, 0
        s_cselect_b32 s93, s92, s93
        s_sub_u32 s93, s93, s92
        s_mul_i32 s93, s93, 4
        s_add_u32 s92, s92, s93
        s_add_u32 s92, s92, 6000
        HOLD_SPIN:
        s_memrealtime s[98:99]
        s_waitcnt lgkmcnt(0)
        s_sub_u32 s98, s98, s92
        s_cmp_lt_i32 s98, 0
        s_cbranch_scc1 HOLD_SPIN""")
    if opt.stamps:
        a("s_waitcnt vmcnt(0)")
        st('stores done 2')
        a(f"""s_lshl_b32 s10, s2, 3
        s_add_u32 s10, s10, s{S_WAVE}
        s_lshl_b32 s10, s10, 7
        s_add_u32 s10, s10, {WS_STAMP}
        v_mov_b32 v{T0}, s10
        s_sub_u32 s{S_ST+31}, s{S_END}, s{S_START}
        s_sub_u32 s{S_ST+29}, {1 << 21}, s{S_SPIN}""")
        for k in range(32): a(f"v_mov_b32 v{XR+k}, s{S_ST+k}")
        for k in range(8): a(f"buffer_store_dwordx4 {vr(XR+4*k,4)}, v{T0}, {sr(S_WS,4)}, 0 offen offset:{16*k}")
    a("END:\ns_endpgm")
    return a.text()

def generate(opt):
    here = os.path.dirname(os.path.abspath(__file__))
    out = open(here + "/header.txt").read()
    out += f"; @launch grid=(256,1,1) block=(512,1,1) lds={LDS_BYTES}\n"
    out += f'.amdgcn_target "amdgcn-amd-amdhsa--gfx950"\n.text\n.globl {KERN}\n.p2align 8\n.type {KERN},@function\n'
    out += kernel(opt)
    out += f""".section .rodata,"a"
.p2align 6
.amdhsa_kernel {KERN}
  .amdhsa_next_free_vgpr {NVGPR}
  .amdhsa_next_free_sgpr {NSGPR if opt.stamps or opt.probe else 66}
  .amdhsa_accum_offset {(NVGPR + 3) // 4 * 4}
  .amdhsa_group_segment_fixed_size 0
  .amdhsa_kernarg_size 88
  .amdhsa_user_sgpr_count 2
  .amdhsa_user_sgpr_kernarg_segment_ptr 1
  .amdhsa_system_sgpr_workgroup_id_x 1
  .amdhsa_float_denorm_mode_32 3
.end_amdhsa_kernel
"""
    return out

def options(argv):
    p = argparse.ArgumentParser()
    p.add_argument("-o", default="/code/" + NAME + ".s")
    p.add_argument("--stamps", action="store_true")
    p.add_argument("--probe", default="")
    p.add_argument("--D", type=int, default=6)
    p.add_argument("--l2", type=int, default=20)
    p.add_argument("--rdy", type=int, default=0)
    p.add_argument("--prio", type=int, default=0)
    p.add_argument("--xpre", type=int, default=2)
    p.add_argument("--xt", default="3:0:16")
    p.add_argument("--lsplit", type=int, default=5)
    p.add_argument("--keypf", type=int, default=1)
    p.add_argument("--k1st", default="sc0 sc1")
    p.add_argument("--outst", default="sc0 sc1")
    p.add_argument("--dirmask", type=int, default=0x12)
    return p.parse_args(argv)

if __name__ == "__main__":
    opt = options(sys.argv[1:])
    open(opt.o, "w").write(generate(opt))
    if opt.stamps: open(opt.o + ".names", "w").write(repr(STAMPS))
    import subprocess
    here = os.path.dirname(os.path.abspath(__file__))
    r = subprocess.run([sys.executable, here + "/hazards.py", opt.o], capture_output=True, text=True).stdout
    if " 0 finding" not in r: print(r)
    r = subprocess.run([sys.executable, here + "/../cdna_unwritten_srd_check.py", opt.o], capture_output=True, text=True)
    if r.returncode: print(r.stdout, r.stderr)
```

```python
import sys, argparse, os

NAME = "gather_scatter__tensor_product_equiv_tfn__graph"
KERN = NAME + "_kernel"
N, E, C = 10000, 320000, 128
NP, EP = 250, 1280
WS_KEY = 0
WS_REC = 0x280000
WS_WMIX = 0x771000
WS_TAB = 0x780000
WS_RDY = WS_TAB + 256 * 2048
WS_EPOCH = WS_RDY + 256 * 1024
WS_END = WS_EPOCH + 128
WS_STAMP = 0x900000
CAP = 1472

class Asm:
    def __init__(self): self.l = []
    def __call__(self, s):
        for line in s.strip("\n").split("\n"):
            line = line.strip()
            if not line: continue
            self.l.append(line if line.endswith(":") else "    " + line)
    def text(self): return "\n".join(self.l) + "\n"

def vr(a, n=1): return f"v{a}" if n == 1 else f"v[{a}:{a+n-1}]"
def sr(a, n=1): return f"s{a}" if n == 1 else f"s[{a}:{a+n-1}]"

SCAN_STEPS = ["row_shr:1 row_mask:0xf bank_mask:0xf bound_ctrl:0", "row_shr:2 row_mask:0xf bank_mask:0xf bound_ctrl:0",
              "row_shr:4 row_mask:0xf bank_mask:0xf bound_ctrl:0", "row_shr:8 row_mask:0xf bank_mask:0xf bound_ctrl:0",
              "row_bcast:15 row_mask:0xa bank_mask:0xf", "row_bcast:31 row_mask:0xc bank_mask:0xf"]
def scan64(a, *regs):
    for c in SCAN_STEPS:
        a("s_nop 1" if len(regs) == 1 else "s_nop 0")
        for v in regs: a(f"v_add_u32_dpp v{v}, v{v}, v{v} {c}")

NSB, HS = 12, 48
L_HIST = 0; L_INV = 40 * HS; L_WT = L_INV + 256; L_CNT = L_WT + 64
L_SENT = L_WT + 128
L_UREC = L_SENT + CAP * 4
L_CG = L_UREC + CAP * 16
L_LUT = 32768
L1_HIST = L_SENT; L1_BASE = L1_HIST + 1024; L1_SREC = L1_BASE + 1024
L1_SKEY = L_LUT + 53 * 1024
assert L_CG + 128 <= L_LUT and L1_SREC + EP * 16 <= L_LUT and L1_BASE <= 4096
L_AGG = L_LUT; AGG_RS = 288
LDS_BYTES = L_LUT + 131072

V_L16 = 1
V_LEN, V_PRE, V_GID = 2, 3, 4
V_AENT, V_POS = 5, 6
V_SLOT4, V_SIG4, V_ONE = 7, 14, 15
V_DEAL = 174
V_FLAG = 166
T0 = 8
ACC = 16; XR = 64; TP = 96; UU = 112; RR = 128; TT = 136; WPK = 140; WTMP = 148
KEY = 164; ENT = 165; RECN = 168; EF = 172; CONST = 176; WMIX = 188
NVGPR = 220
PE, PO, CGB = CONST, CONST + 2, CONST + 4
LJ = 128
S_NODE = 4
S_X, S_WS, S_OUT = 12, 16, 20
S_BETA, S_WAVE, S_N, S_W0, S_NWIN, S_START, S_END, S_REM, S_REMB, S_OFF, S_MASK = range(24, 35)
S_SPIN = 35
S_M = 36
S_T = 42
S_K = 48
S_IN = 40
S_JOB, S_JCNT = 62, 63
S_NLO, S_NHI = 64, 65
S_WM = 10
S_L2E = 10
S_ST = 66
NSGPR = 102

STAMPS = []
def stamp(a, opt, name):
    if opt.probe == name: a("s_memrealtime s[98:99]\ns_waitcnt lgkmcnt(0)\ns_mov_b32 s93, s98")
    if not opt.stamps: return
    if name not in STAMPS: STAMPS.append(name)
    a(f"s_memrealtime s[98:99]\ns_waitcnt lgkmcnt(0)\ns_mov_b32 s{S_ST + STAMPS.index(name)}, s98")

S_RET = 6
def lut_sub(a):
    J, Ex, R, P = LJ, LJ + 8, LJ + 16, LJ + 24
    a(f"""LUT_SUB:
    s_lshl_b32 s3, s{S_JOB}, 25
    s_add_u32 s3, s3, 0x8000
    v_lshl_add_u32 v{J}, v{V_L16}, 15, s3""")
    for k in range(1, 8): a(f"v_add_u32 v{J+k}, 0x10000, v{J+k-1}")
    for k in range(0, 8, 2): a(f"v_pk_mul_f32 {vr(Ex+k,2)}, {vr(J+k,2)}, {sr(S_L2E,2)}")
    for k in range(8): a(f"v_exp_f32 v{Ex+k}, v{Ex+k}")
    a(f"s_lshl_b32 s3, s{S_JOB}, 10")
    for k in range(0, 8, 2): a(f"v_pk_add_f32 {vr(R+k,2)}, {vr(Ex+k,2)}, 1.0 op_sel_hi:[1,0]")
    for k in range(8): a(f"v_rcp_f32 v{R+k}, v{R+k}")
    a(f"v_add_u32 v{P+8}, s3, v{V_L16}")
    for k in range(0, 8, 2): a(f"v_pk_mul_f32 {vr(J+k,2)}, {vr(J+k,2)}, {vr(R+k,2)}")
    a(f"v_add_u32 v{P+9}, 0x10000, v{P+8}")
    for k in range(0, 8, 2): a(f"v_pk_mul_f32 {vr(Ex+k,2)}, {vr(J+k,2)}, {vr(Ex+k,2)} neg_lo:[1,0] neg_hi:[1,0]")
    for k in range(4): a(f"v_cvt_pk_bf16_f32 v{P+k}, v{J+2*k}, v{J+2*k+1}")
    for k in range(4): a(f"v_cvt_pk_bf16_f32 v{P+4+k}, v{Ex+2*k}, v{Ex+2*k+1}")
    a(f"""ds_write_b128 v{P+8}, {vr(P,4)} offset:{L_LUT}
    ds_write_b128 v{P+9}, {vr(P+4,4)} offset:{L_LUT}
    s_add_u32 s{S_JOB}, s{S_JOB}, 1
    s_sub_u32 s{S_JCNT}, s{S_JCNT}, 1
    s_cmp_lg_u32 s{S_JCNT}, 0
    s_cbranch_scc1 LUT_SUB
    s_setpc_b64 {sr(S_RET,2)}""")
def lut_jobs(a, count): a(f"s_mov_b32 s{S_JCNT}, {count}\ns_call_b64 {sr(S_RET,2)}, LUT_SUB")

def lut_plain(a, tag, region, last=None, cont=False):
    P = LJ
    for name, first, end, bias in (("L", 1, 24, 0x20000 - 0x800080), ("H", 34, 62, 0x20000)):
        if name != region: continue
        last = last or end
        if cont: a(f"s_cmp_gt_u32 s{S_JOB}, {last}\ns_cbranch_scc1 LUTP_END_{tag}")
        else: a(f"s_add_u32 s{S_JOB}, s{S_WAVE}, {first}")
        if name == "H" and not cont:
            for k in range(4): a(f"v_mov_b32 v{P+4+k}, 0x80008000")
        a(f"""LUTP_{tag}{name}:
        s_mul_i32 s3, s{S_JOB}, {512 * 0x10001}
        s_add_u32 s3, s3, {bias & 0xffffffff}
        v_add_u32 v{P}, s3, v{P+10}
        s_lshl_b32 s3, s{S_JOB}, 10
        v_add_u32 v{P+8}, s3, v{V_L16}""")
        for k in range(1, 4): a(f"v_add_u32 v{P+k}, {k * 0x20002}, v{P}")
        a(f"v_add_u32 v{P+9}, 0x10000, v{P+8}")
        if name == "L":
            for k in range(4): a(f"v_or_b32 v{P+4+k}, 0x80008000, v{P+k}")
        a(f"""ds_write_b128 v{P+8}, {vr(P,4)} offset:{L_LUT}
        ds_write_b128 v{P+9}, {vr(P+4,4)} offset:{L_LUT}
        s_add_u32 s{S_JOB}, s{S_JOB}, {5 if name == "L" else 4}
        s_cmp_le_u32 s{S_JOB}, {last}
        s_cbranch_scc1 LUTP_{tag}{name}
        LUTP_END_{tag}:""")

def flag_store(a, base):
    a(f"""s_lshl_b32 s3, s2, 10
    s_add_u32 s3, s3, {base}
    v_add_u32 v{T0+1}, s3, v{V_L16}
    v_mov_b32 v{T0+2}, s{S_NLO}
    v_mov_b32 v{T0+3}, s{S_NHI}
    v_mov_b32 v{T0+4}, s{S_NLO}
    v_mov_b32 v{T0+5}, s{S_NHI}
    global_store_dwordx4 v{T0+1}, {vr(T0+2,4)}, {sr(S_WS,2)} sc0 sc1
    s_nop 1""")

def poll_issue(a, dst, addr, soff):
    a(f"buffer_load_dwordx2 {vr(dst,2)}, v{addr}, {sr(S_WS,4)}, {soff} offen sc1")
def poll_check(a, tag, dst, addr, soff, hi, pre="", younger=0):
    if younger: a(f"s_waitcnt vmcnt({younger})\ns_branch CHECK_{tag}")
    a(f"""POLL_{tag}:
    s_waitcnt vmcnt(0)
    CHECK_{tag}:
    {pre}
    v_cmp_ne_u32 vcc, s{S_NLO}, v{dst + 1 if pre else dst}
    v_cmp_ne_u32 {sr(S_T,2)}, s{S_NHI}, v{hi}
    s_or_b64 vcc, vcc, {sr(S_T,2)}
    s_and_b64 exec, exec, vcc
    s_cbranch_execz POLLED_{tag}
    s_sub_u32 s{S_SPIN}, s{S_SPIN}, 1
    s_cbranch_scc1 END""")
    poll_issue(a, dst, addr, soff)
    a(f"""s_branch POLL_{tag}
    POLLED_{tag}:
    s_mov_b64 exec, -1""")

def load_epoch(a):
    a(f"""s_add_u32 s4, s{S_WS}, {WS_EPOCH}
    s_addc_u32 s5, s{S_WS+1}, 0
    s_load_dwordx2 {sr(S_NLO,2)}, s[4:5], 0""")
def make_tag(a):
    a(f"""s_add_u32 s{S_NLO}, s{S_NLO}, 1
    s_and_b32 s{S_NHI}, s{S_NHI}, 0x3ff""")

def scan256(a, H_, O_):
    a(f"""v_add_u32 v{T0+2}, v{H_}, v{H_+1}
    v_add3_u32 v{T0+2}, v{T0+2}, v{H_+2}, v{H_+3}
    v_mov_b32 v{T0+3}, v{T0+2}""")
    scan64(a, T0 + 3)
    a(f"""v_sub_u32 v{O_}, v{T0+3}, v{T0+2}
    v_add_u32 v{O_+1}, v{O_}, v{H_}
    v_add_u32 v{O_+2}, v{O_+1}, v{H_+1}
    v_add_u32 v{O_+3}, v{O_+2}, v{H_+2}""")

SRC, DST, YY, EFP, WRAD, CG, WMX = S_IN + 2, S_IN + 4, S_IN + 6, S_IN + 8, S_IN + 10, S_IN + 12, S_IN + 14
D_, S_, Y_, F_, B_, R_, H_, O_, TB = 64, 68, 72, 80, 88, 92, 96, 100, 108
CT = WMIX
def const_sub(a):
    a(f"""CONST_SUB:
    ds_write_b32 v{CT+5}, v{CT+4} offset:{L_CG}
    v_lshrrev_b32 v{CT+5}, 3, v{V_L16}
    v_and_b32 v{CT+5}, 24, v{CT+5}
    s_mov_b32 s4, 0x05040100
    s_mov_b32 s5, 0x07060302""")
    for i in range(4): a(f"ds_read_b64_tr_b16 {vr(CGB+2*i,2)}, v{CT+5} offset:{L_CG + 32*i}")
    for u in range(2):
        a(f"v_perm_b32 v{PE+u}, v{CT+1+2*u}, v{CT+2*u}, s4\nv_perm_b32 v{PO+u}, v{CT+1+2*u}, v{CT+2*u}, s5")
    a(f"s_setpc_b64 {sr(S_RET,2)}")
def const_finish(a): a(f"s_call_b64 {sr(S_RET,2)}, CONST_SUB")

def phase1(a, opt):
    st = lambda n: stamp(a, opt, n)
    WS = sr(S_WS, 2); FL = opt.k1st
    a(f"""s_cmp_ge_u32 s{S_WAVE}, 5
    s_cbranch_scc1 HELP""")
    lut_plain(a, "W0", "L", last=opt.lsplit)
    a(f"""s_cmp_ge_u32 s2, {NP}
    s_cbranch_scc1 AUX_LOAD
    global_load_dwordx4 {vr(Y_,4)}, v{T0+1}, {sr(YY,2)}
    global_load_dwordx4 {vr(Y_+4,4)}, v{T0+1}, {sr(YY,2)} offset:16
    global_load_dwordx4 {vr(F_,4)}, v{T0+1}, {sr(EFP,2)}
    global_load_dwordx4 {vr(F_+4,4)}, v{T0+1}, {sr(EFP,2)} offset:16
LOADED:
    s_cmp_ge_u32 s2, {NP}
    s_cbranch_scc1 AUX""")
    st('jobs A')
    a("s_waitcnt vmcnt(11)")
    st('dst arrived')
    for k in range(4):
        a(f"""v_and_b32 v{B_+k}, 0xff, v{D_+k}
              v_lshlrev_b32 v{B_+k}, 2, v{B_+k}
              ds_add_rtn_u32 v{R_+k}, v{B_+k}, v{V_ONE} offset:{L1_HIST}""")
    a("s_waitcnt vmcnt(10)")
    for k in range(4):
        a(f"""v_lshrrev_b32 v{D_+k}, 8, v{D_+k}
              v_lshl_or_b32 v{TB+2*k}, v{S_+k}, 10, v{D_+k}""")
    a(f"""s_mov_b32 s9, {L1_SKEY}
    s_waitcnt lgkmcnt(0)
    s_barrier
    ds_read_b128 {vr(H_,4)}, v{V_L16} offset:{L1_HIST}""")
    make_tag(a)
    for k in range(4): a(f"v_mov_b32 v{TB+2*k+1}, s{S_NLO}")
    a("s_waitcnt lgkmcnt(0)")
    scan256(a, H_, O_)
    a(f"ds_write_b128 v{V_L16}, {vr(O_,4)} offset:{L1_BASE}")
    for k in range(4): a(f"ds_read_b32 v{H_+k}, v{B_+k} offset:{L1_BASE}")
    for k in range(4):
        a(f"""s_waitcnt lgkmcnt(3)
              v_add_u32 v{R_+k}, v{R_+k}, v{H_+k}
              v_lshl_add_u32 v{B_+k}, v{R_+k}, 3, s9
              ds_write_b64 v{B_+k}, {vr(TB+2*k,2)}""")
    for k in range(4):
        a(f"v_lshlrev_b32 v{R_+k}, 4, v{R_+k}\nv_add_u32 v{R_+k}, {L1_SREC}, v{R_+k}")
    a("s_waitcnt lgkmcnt(0)\ns_barrier")
    st('keys binned')
    a("s_waitcnt vmcnt(0)")
    for k in range(4):
        a(f"ds_write2_b64 v{R_+k}, {vr(Y_+2*k,2)}, {vr(F_+2*k,2)} offset0:0 offset1:1")
    st('recs binned')
    a("BINNED:\ns_setprio 0")
    if opt.late:
        a(f"s_waitcnt lgkmcnt(0)\ns_barrier\nv_mov_b32 v{V_LEN}, 0")
        const_finish(a)
        lut_plain(a, "W", "L", cont=True)
        a(f"s_cmp_eq_u32 s{S_WAVE}, 4\ns_cbranch_scc1 WAVE4")
        lut_plain(a, "U", "H", last=opt.late)
        poll_issue(a, V_LEN, V_POS, 0)
        st('tab issued')
        lut_plain(a, "V", "H", cont=True)
    else:
        const_finish(a)
        if opt.l2 > opt.lsplit: lut_plain(a, "W1", "L", last=opt.l2, cont=True)
        a(f"""v_mov_b32 v{V_LEN}, 0
        s_cmp_eq_u32 s{S_WAVE}, 4
        s_cbranch_scc1 NO_TAB""")
        poll_issue(a, V_LEN, V_POS, 0)
        a("NO_TAB:\ns_waitcnt lgkmcnt(0)\ns_barrier")
        st('tab issued')
        lut_plain(a, "W", "L", cont=True)
        a(f"s_cmp_eq_u32 s{S_WAVE}, 4\ns_cbranch_scc1 WAVE4")
        lut_plain(a, "V", "H")
    st('jobs B')
    poll_check(a, "TAB", V_LEN, V_POS, 0, T0 + 3, f"v_lshrrev_b32 v{T0+3}, 22, v{V_LEN}")
    st('tab arrived')
    a("s_branch TAB_DONE")
    lut_sub(a)
    const_sub(a)
    a(f"""HELP:
    s_cmp_eq_u32 s{S_WAVE}, 6                       ; jobs 0 / 25 / 63
    s_cselect_b32 s{S_JOB}, 25, 0
    s_cmp_eq_u32 s{S_WAVE}, 7
    s_cselect_b32 s{S_JOB}, 63, s{S_JOB}""")
    lut_jobs(a, 1)
    st('help jobs')
    a(f"""v_mov_b32 v{T0+2}, {0x7f80 * 2}
    v_mov_b32 v{T0+3}, 0x7f80
    s_cmp_lg_u32 s{S_WAVE}, 7
    s_cbranch_scc1 NO_INF
    ds_write_b16 v{T0+2}, v{T0+3} offset:{L_LUT}
NO_INF:
    s_waitcnt vmcnt(0)""")
    const_finish(a)
    a(f"""s_sub_u32 s8, s{S_WAVE}, 5
    s_mul_i32 s4, s8, 3072
    s_cmp_eq_u32 s8, 1
    s_cselect_b32 s4, 4096, s4
    s_mul_i32 s3, s2, {EP * 8}
    s_add_u32 s3, s3, s4
    v_add_u32 v{T0}, s3, v{V_L16}
    s_add_u32 s4, s4, {L1_SKEY}
    v_add_u32 v{T0+1}, s4, v{V_L16}
    s_mul_i32 s4, s8, 7168
    s_mul_i32 s3, s2, {EP * 16}
    s_add_u32 s3, s3, s4
    s_add_u32 s3, s3, {WS_REC}
    v_add_u32 v{T0+4}, s3, v{V_L16}
    v_add_u32 v{T0+5}, s4, v{V_L16}
    s_waitcnt lgkmcnt(0)""")
    make_tag(a)
    a(f"""s_barrier
    s_cmp_lg_u32 s{S_WAVE}, 6
    s_cbranch_scc1 NO_ROW
    v_lshrrev_b32 v{TB+9}, 1, v{V_L16}
    ds_read_b64 {vr(H_,2)}, v{TB+9} offset:{L1_HIST}
    ds_read_b64 {vr(H_+2,2)}, v{TB+9} offset:{L1_HIST + 512}
    s_lshl_b32 s3, s2, 11
    s_add_u32 s3, s3, {WS_TAB}
    v_add_u32 v{TB+8}, s3, v{V_L16}
    s_lshl_b32 s3, s{S_NHI}, 22
    s_waitcnt lgkmcnt(0)
    v_add_u32 v{T0+2}, v{H_}, v{H_+1}
    v_add_u32 v{T0+3}, v{H_+2}, v{H_+3}
    v_mov_b32 v{O_}, v{T0+2}
    v_mov_b32 v{O_+2}, v{T0+3}""")
    scan64(a, O_, O_ + 2)
    a(f"""v_sub_u32 v{O_+2}, v{O_+2}, v{T0+3}
    v_readlane_b32 s4, v{O_}, 63
    v_sub_u32 v{O_}, v{O_}, v{T0+2}
    v_add_u32 v{O_+1}, v{O_}, v{H_}
    v_add_u32 v{O_+2}, s4, v{O_+2}
    v_add_u32 v{O_+3}, v{O_+2}, v{H_+2}""")
    for k in range(4):
        a(f"""v_lshl_or_b32 v{TB+2*k}, v{H_+k}, 11, v{O_+k}
              v_or_b32 v{TB+2*k}, s3, v{TB+2*k}
              v_mov_b32 v{TB+2*k+1}, s{S_NLO}""")
    a(f"""global_store_dwordx4 v{TB+8}, {vr(TB,4)}, {WS} sc0 sc1
    global_store_dwordx4 v{TB+8}, {vr(TB+4,4)}, {WS} offset:1024 sc0 sc1""")
    st('table published')
    a("NO_ROW:\ns_barrier")
    for k in range(4): a(f"ds_read_b128 {vr(64+4*k,4)}, v{T0+1} offset:{1024*k}")
    for k in range(4):
        if k == 2: a(f"s_cmp_eq_u32 s8, 1\ns_cbranch_scc1 KEYS_STORED")
        a(f"s_waitcnt lgkmcnt({3-k})\nglobal_store_dwordx4 v{T0}, {vr(64+4*k,4)}, {WS} offset:{1024*k} {FL}")
    a(f"""KEYS_STORED:
    v_mov_b32 v{V_LEN}, 0
    s_waitcnt lgkmcnt(0)
    s_barrier
    s_cmp_ge_u32 s2, {NP}
    s_cbranch_scc1 TAB_DONE""")
    for k in range(7): a(f"ds_read_b128 {vr(84+4*k,4)}, v{T0+5} offset:{L1_SREC + 1024*k}")
    for k in range(7):
        if k == 4: a(f"v_add_u32 v{T0+4}, 4096, v{T0+4}")
        if k == 6: a(f"s_cmp_eq_u32 s8, 2\ns_cbranch_scc1 TAB_DONE")
        a(f"s_waitcnt lgkmcnt({6-k})\nglobal_store_dwordx4 v{T0+4}, {vr(84+4*k,4)}, {WS} offset:{(1024*k) % 4096} {FL}")
    a("s_branch TAB_DONE")
    a(f"""AUX_LOAD:
    s_cmp_ge_u32 s2, {NP + 4}
    s_cbranch_scc1 LOADED
    s_cmp_ge_u32 s{S_WAVE}, 4
    s_cbranch_scc1 LOADED
    s_sub_u32 s4, s2, {NP}
    s_lshl_b32 s5, s{S_WAVE}, 13
    s_lshl_b32 s8, s4, 6
    s_add_u32 s5, s5, s8
    v_lshrrev_b32 v{T0+1}, 8, v{V_L16}
    v_lshlrev_b32 v{T0+1}, 11, v{T0+1}
    v_bfe_u32 v{T0+2}, v{V_L16}, 4, 4
    v_lshl_add_u32 v{T0+1}, v{T0+2}, 2, v{T0+1}
    v_add_u32 v{T0+1}, s5, v{T0+1}
    s_lshl_b32 s5, s4, 13
    s_lshl_b32 s8, s{S_WAVE}, 10
    s_add_u32 s5, s5, s8
    s_add_u32 s5, s5, {WS_WMIX}
    v_add_u32 v{T0+2}, s5, v{V_L16}""")
    for t in range(8): a(f"global_load_dword v{64+t}, v{T0+1}, {sr(WMX,2)} offset:{t*256}")
    a(f"""s_branch LOADED
AUX:
    s_waitcnt lgkmcnt(0)""")
    make_tag(a)
    a(f"""s_barrier
    s_cmp_ge_u32 s2, {NP + 4}
    s_cbranch_scc1 AUX_DONE
    s_cmp_ge_u32 s{S_WAVE}, 4
    s_cbranch_scc1 AUX_DONE
    s_mov_b32 s4, 0x05040100
    s_mov_b32 s5, 0x07060302
    s_waitcnt vmcnt(0)""")
    for u in range(4):
        a(f"v_perm_b32 v{72+u}, v{65+2*u}, v{64+2*u}, s4\nv_perm_b32 v{76+u}, v{65+2*u}, v{64+2*u}, s5")
    a(f"""global_store_dwordx4 v{T0+2}, v[72:75], {WS} {FL}
    v_add_u32 v{T0+2}, 4096, v{T0+2}
    global_store_dwordx4 v{T0+2}, v[76:79], {WS} {FL}
AUX_DONE:
    s_barrier
    s_waitcnt vmcnt(0)
    s_branch BINNED
WAVE4:
    s_mov_b32 s{S_JOB}, 26""")
    lut_jobs(a, 2)
    a("TAB_DONE:")

def mfma4(d, a_, b, c, blk=None):
    cc = "0" if c is None else vr(c, 4)
    return f"v_mfma_f32_4x4x4_16b_bf16 {vr(d,4)}, {vr(a_,2)}, {vr(b,2)}, {cc}" + ("" if blk is None else f" cbsz:4 abid:{blk}")
def p_mfma(g, odd):
    return mfma4(UU + 8 * (g % 2) + 4 * odd, EF, PO if odd else PE, None, g % 16)
def t_mfma(e, odd):
    return mfma4(TP + 8 * (e % 2) + 4 * odd, WPK + 2 * (e % 4), XR + 4 * (e % 8) + 2 * odd, None, (e % 64) // 4)
def act_regs(eb, odd):
    return UU + 8 * ((eb // 4) % 2) + 4 * odd + eb % 4, RR + 4 * ((eb // 2) % 2) + 2 * odd
def act_addr(t, u):
    return f"v_lshlrev_b32_sdwa v{t}, v{V_ONE}, v{u} dst_sel:DWORD dst_unused:UNUSED_PAD src0_sel:DWORD src1_sel:WORD_1"
def act_read(r, t): return f"ds_read_u16_d16_hi v{r}, v{t} offset:{L_LUT}"
def fma4(a, q):
    h = q % 2
    a(f"s_set_gpr_idx_on s{S_K + q % 16}, 0xc")
    for odd in range(2):
        r = RR + 4 * ((q // 2) % 2) + 2 * odd
        for o in (0, 2):
            acc = ACC + 4 * odd + o; tp = TP + 8 * (q % 2) + 4 * odd + o
            a(f"v_pk_fma_f32 {vr(acc,2)}, {vr(r,2)}, {vr(tp,2)}, {vr(acc,2)} op_sel:[{h},0,0] op_sel_hi:[{h},1,1]")
    a("s_set_gpr_idx_off")
def meta_read_entry(a): a(f"ds_read_b32 v{ENT}, v{V_AENT}")
def meta_fix_entry(a, rec=True):
    a(f"""v_cmp_gt_u32 vcc, s{S_END}, v{V_POS}
          v_add_u32 v{V_POS}, 64, v{V_POS}
          v_add_u32 v{V_AENT}, 256, v{V_AENT}
          v_cndmask_b32 v{ENT}, 40, v{ENT}, vcc
          v_lshrrev_b32 v{T0}, 21, v{ENT}
          v_lshlrev_b32 v{T0}, 4, v{T0}
          v_lshlrev_b32 v{T0+1}, 3, v{ENT}""")
    if rec: meta_read_rec(a)
    a(f"""v_and_b32 v{T0+1}, 0xfffc00, v{T0+1}
          v_and_or_b32 v{ENT}, v{ENT}, 56, v{T0+1}""")
def meta_read_rec(a): a(f"ds_read_b128 {vr(RECN,4)}, v{T0} offset:{L_UREC}")
def w_mfma(i): return mfma4(WTMP + 4 * i, RECN, CGB + 2 * i, None)
def w_cvt(a, m):
    a(f"""v_cvt_pk_bf16_f32 v{WPK+2*m}, v{WTMP+m}, v{WTMP+4+m}
          v_cvt_pk_bf16_f32 v{WPK+2*m+1}, v{WTMP+8+m}, v{WTMP+12+m}""")

def step(a, opt, q, drain=None):
    D = opt.D; loads = drain is None
    eb = q + 2 - q % 2; odd = q % 2
    u, r = act_regs(eb, odd); t = TT + 2 * odd
    g, ur = (q + 6) // 4, (q + 6) % 4
    if ur % 2 == 0: a(p_mfma(g, ur // 2))
    elif 40 <= q < 48: a(w_mfma((q - 40) // 2))
    a(act_addr(t, u))
    if loads: a(f"s_waitcnt vmcnt({D - 2})")
    elif D - 2 - drain >= 0: a(f"s_waitcnt vmcnt({8 + D - 2 - drain})")
    a(t_mfma(q + 1, 0))
    if loads: a(f"v_readlane_b32 s{S_K + (q + D) % 16}, v{KEY if q + D < 64 else ENT}, {(q + D) % 64}")
    else:     a("s_nop 0")
    a(t_mfma(q + 1, 1))
    a(act_addr(t + 1, u + 1))
    a(act_read(r, t)); a(act_read(r + 1, t + 1))
    if q >= 60: w_cvt(a, q - 60)
    if loads:
        a(f"s_and_b32 s{S_OFF}, s{S_K + (q + D) % 16}, s{S_MASK}")
        a(f"buffer_load_dwordx4 {vr(XR + 4 * ((q + D) % 8), 4)}, v{V_L16}, {sr(S_X,4)}, s{S_OFF} offen")
    if q % 2 == 0: a("s_waitcnt lgkmcnt(2)")
    fma4(a, q)
    if loads and q == 8: meta_read_entry(a)
    if loads and q == 12: meta_fix_entry(a)
    if q == 57: a(f"v_mov_b32 v{EF}, v{RECN+2}\nv_mov_b32 v{EF+1}, v{RECN+3}\ns_nop 1")
    if loads and q == 63: a(f"v_mov_b32 v{KEY}, v{ENT}")

def body(a, opt):
    G = opt.gran
    for q in range(64):
        if q % G == 0: a(f"A_{q}:\ns_sub_u32 s{S_REM}, s{S_REM}, {G}\ns_cbranch_scc1 B_{q}")
        step(a, opt, q)
    if opt.stamps:
        STAMPS.extend(("batch 1", "batch 2")); k = S_ST + len(STAMPS) - 2
        a(f"""s_memrealtime s[98:99]
        s_waitcnt lgkmcnt(0)
        s_cmp_eq_u32 s{k}, 0
        s_cselect_b32 s99, 0, s98
        s_cselect_b32 s{k}, s98, s{k}
        s_cmp_eq_u32 s{k+1}, 0
        s_cselect_b32 s{k+1}, s99, s{k+1}""")
    if opt.probe == "batch 1":
        a("s_memrealtime s[98:99]\ns_waitcnt lgkmcnt(0)\ns_cmp_eq_u32 s93, 0\ns_cselect_b32 s93, s98, s93")
    a("s_branch A_0")
    for q in range(0, 64, G):
        a(f"B_{q}:")
        for k in range(8):
            a(f"buffer_load_dwordx4 {vr(WMIX+4*k,4)}, v{V_L16}, {sr(S_WS,4)}, s{S_WM + k // 4} offen offset:{(k%4)*1024} sc1")
        for i in range(opt.D):
            a(f"s_sub_u32 s{S_REMB}, s{S_REMB}, 1\ns_cbranch_scc1 MAIN_DONE")
            step(a, opt, (q + i) % 64, i)
        a("s_branch MAIN_DONE")

def x_touch(a, opt, where, guard=True):
    for spec in filter(None, opt.xt.split(",")):
        w, lo, hi = map(int, spec.split(":"))
        if w != where: continue
        if guard: a(f"s_cmp_lg_u32 s{S_W0}, 0\ns_cbranch_scc1 NO_X_TOUCH_{w}")
        a(f"""s_lshl_b32 s4, s2, 3
        s_add_u32 s4, s4, s{S_WAVE}
        s_lshl_b32 s4, s4, 7
        s_add_u32 s4, s4, {lo << 18}
        v_min_u32 v{TT+3}, {(hi - lo - 1) * 16}, v{V_L16}
        v_lshl_add_u32 v{TT+3}, v{TT+3}, 14, s4
        buffer_load_dword v{V_FLAG+1}, v{TT+3}, {sr(S_X,4)}, 0 offen""")
        a(f"NO_X_TOUCH_{w}:")

DEAL = ([4, 2, 4, 7, 6, 3, 1, 5, 0, 4, 2, 6, 1, 7, 3, 5, 0, 4, 7, 3, 0, 1, 5, 6, 2, 5, 0, 1, 6, 7, 3, 2, 0, 5, 3, 1, 6, 7, 2, 4],
        [0, 2, 7, 1, 4, 6, 5, 3, 6, 3, 1, 7, 4, 0, 2, 5, 4, 3, 5, 6, 7, 1, 0, 2, 7, 5, 2, 4, 3, 6, 0, 1, 5, 1, 3, 6, 4, 2, 7, 0])
def deal_bytes():
    out = []
    for t in DEAL:
        assert sorted(t) == sorted(list(range(8)) * 5)
        out += [4 * (5 * w + t[:r].count(w)) for r, w in enumerate(t)] + [0] * 24
    return out

def zero_hist(a):
    a(f"""v_lshlrev_b32 v{T0+3}, 2, v0
    v_mov_b32 v{T0+4}, 0
    v_cmp_gt_u32 vcc, {40 * HS // 4}, v0
    s_and_saveexec_b64 {sr(S_T,2)}, vcc
    ds_write_b32 v{T0+3}, v{T0+4} offset:{L_HIST}
    s_mov_b64 exec, {sr(S_T,2)}""")

def kernel(opt):
    a = Asm(); D = opt.D
    st = lambda n: stamp(a, opt, n)
    a(f"""{KERN}:
    s_cmp_ge_u32 s2, 256
    s_cbranch_scc1 END""")
    if opt.probe: a("s_mov_b32 s93, 0\ns_memrealtime s[98:99]\ns_waitcnt lgkmcnt(0)\ns_mov_b32 s92, s98")
    if opt.stamps:
        for k in range(32): a(f"s_mov_b32 s{S_ST+k}, 0")
    st('start')
    a(f"""s_load_dwordx16 {sr(S_IN,16)}, s[0:1], 0
    s_load_dwordx2 {sr(S_WS,2)}, s[0:1], 80
    s_load_dwordx2 {sr(S_X,2)}, s[0:1], 0
    s_load_dwordx2 {sr(S_OUT,2)}, s[0:1], 64
    ; wave 7 of every workgroup takes 8 lines; the 32 workgroups with equal id % 8 cover 32 KiB
    s_getpc_b64 s[6:7]
CODE_HERE:
    v_lshrrev_b32 v{T0}, 6, v0
    s_lshr_b32 s5, s2, 3
    s_lshl_b32 s4, s5, 10
    v_readfirstlane_b32 s{S_WAVE}, v{T0}
    v_and_b32 v{T0+2}, 7, v0
    v_lshl_add_u32 v{T0+2}, v{T0+2}, 7, s4
    v_min_u32 v{T0+2}, END-CODE_HERE, v{T0+2}
    s_cmp_lg_u32 s{S_WAVE}, 7
    s_cbranch_scc1 NO_CODE_TOUCH
    global_load_dword v{V_FLAG+1}, v{T0+2}, s[6:7]
NO_CODE_TOUCH:
    s_mul_i32 s3, s2, {EP * 4}
    v_lshl_add_u32 v{T0}, v0, 4, s3
    v_and_b32 v{T0+2}, 63, v0
    v_lshlrev_b32 v{V_L16}, 4, v{T0+2}
    v_lshlrev_b32 v{CT+5}, 2, v{T0+2}
    s_cmp_ge_u32 s{S_WAVE}, 5
    s_cselect_b32 s3, {NP}, s2
    s_cmp_ge_u32 s3, {NP}
    s_waitcnt lgkmcnt(0)
    s_cbranch_scc1 NO_EDGES
    s_setprio 1
    global_load_dwordx4 {vr(D_,4)}, v{T0}, {sr(DST,2)}
    global_load_dwordx4 {vr(S_,4)}, v{T0}, {sr(SRC,2)}
NO_EDGES:""")
    if opt.wsoff: a(f"s_add_u32 s{S_WS}, s{S_WS}, {opt.wsoff << 20}\ns_addc_u32 s{S_WS+1}, s{S_WS+1}, 0")
    st('kernargs')
    for k in range(4): a(f"global_load_dword v{CT+k}, v{CT+5}, {sr(WRAD,2)} offset:{k*256}")
    a(f"""v_and_b32 v{CT+5}, 0x7f, v{CT+5}
    global_load_dword v{CT+4}, v{CT+5}, {sr(CG,2)}
    s_and_b32 s3, s2, 0x87
    s_cmp_eq_u32 s3, 0
    s_cselect_b32 s3, 64, 0
    s_add_u32 s3, s3, DEAL_TABLE-CODE_HERE
    v_add_u32 v{V_DEAL}, s3, v{T0+2}
    global_load_ubyte v{V_DEAL}, v{V_DEAL}, s[6:7]
    v_lshlrev_b32 v{T0+1}, 1, v{T0}
    v_lshlrev_b32 v{T0+3}, 3, v0
    v_mov_b32 v{T0+4}, 0
    v_mov_b32 v{T0+5}, 0
    ds_write_b64 v{T0+3}, {vr(T0+4,2)}
    s_and_b32 s4, s2, 7
    s_lshl_b32 s4, s4, 5
    s_lshr_b32 s5, s2, 3
    s_or_b32 s{S_BETA}, s4, s5
    v_mov_b32 v{V_ONE}, 1
    s_mov_b32 s{S_X+2}, {N * 1024}
    s_mov_b32 s{S_X+3}, 0x20000
    s_mov_b32 s{S_WS+2}, {WS_END if not opt.stamps else WS_STAMP + 0x80000}
    s_mov_b32 s{S_WS+3}, 0x20000
    s_mov_b32 s{S_OUT+2}, {N * 1024}
    s_mov_b32 s{S_OUT+3}, 0x20000
    s_mov_b32 s{S_MASK}, 0xfffffc00
    s_mov_b32 s{S_W0}, 0
    s_mov_b32 s{S_L2E}, 0xbfb8aa3b
    s_mov_b32 s{S_L2E+1}, 0xbfb8aa3b
    v_mul_u32_u24 v{V_SIG4}, 52, v{T0+2}
    v_lshrrev_b32 v{V_SIG4}, 8, v{V_SIG4}            ; lane / 5
    v_mul_u32_u24 v{V_SLOT4}, 5, v{V_SIG4}
    v_sub_u32 v{V_SLOT4}, v{T0+2}, v{V_SLOT4}        ; lane % 5
    v_lshlrev_b32 v{V_SIG4}, 2, v{V_SIG4}
    v_lshlrev_b32 v{V_SLOT4}, 2, v{V_SLOT4}
    s_mov_b32 s{S_SPIN}, {1 << 21}
    v_and_b32 v{V_GID}, 0xff, v0
    s_lshl_b32 s3, s{S_BETA}, 3
    s_add_u32 s3, s3, {WS_TAB}
    v_lshl_add_u32 v{V_POS}, v{V_GID}, 11, s3
    s_and_b32 s3, s2, 7
    s_lshl_b32 s3, s3, 7
    s_add_u32 s3, s3, {WS_RDY}
    s_lshl_b32 s8, s{S_WAVE}, 15
    s_add_u32 s3, s3, s8
    v_and_b32 v{V_FLAG}, 31, v0
    v_lshl_add_u32 v{V_FLAG}, v{V_FLAG}, 10, s3      ; flag of producer 32 wave + lane % 32
    v_mul_u32_u24 v{V_GID}, {EP}, v{V_GID}
    v_mul_u32_u24 v{LJ+10}, 0x8000, v{V_L16}
    v_lshl_add_u32 v{LJ+10}, v{T0+2}, 3, v{LJ+10}    ; lane * 8 * 0x10001""")
    for k in range(0, 48, 2): a(f"v_pk_mov_b32 {vr(ACC+k,2)}, {vr(T0+4,2)}, {vr(T0+4,2)}")
    a("s_waitcnt lgkmcnt(0)")
    load_epoch(a)
    a("s_barrier")
    phase1(a, opt)
    a(f"""s_cmp_ge_u32 s{S_WAVE}, 4
    s_cbranch_scc1 NOT_POLLER
    v_and_b32 v{T0+5}, 0x7ff, v{V_LEN}
    v_bfe_u32 v{V_LEN}, v{V_LEN}, 11, 11
    v_add_u32 v{V_GID}, v{V_GID}, v{T0+5}
    v_mov_b32 v{V_PRE}, v{V_LEN}""")
    if opt.keypf:
        a(f"""v_lshlrev_b32 v{T0+2}, 3, v{V_GID}
        buffer_load_dword v{V_FLAG+1}, v{T0+2}, {sr(S_WS,4)}, 0 offen sc1""")
    scan64(a, V_PRE)
    a(f"""s_lshl_b32 s3, s{S_WAVE}, 2
    v_mov_b32 v{T0+2}, s3
    v_add_u32 v{T0+3}, 1, v{V_PRE}
    v_sub_u32 v{V_PRE}, v{V_PRE}, v{V_LEN}
    s_mov_b32 exec_lo, 0
    s_mov_b32 exec_hi, 0x80000000
    ds_write_b32 v{T0+2}, v{T0+3} offset:{L_WT}
    s_mov_b64 exec, -1
    s_branch TOTALS
NOT_POLLER:
    s_cmp_eq_u32 s{S_WAVE}, 4
    s_cbranch_scc1 TOTALS
    v_mov_b32 v{T0+2}, {L_CNT}
    s_waitcnt vmcnt(0)
    s_mov_b64 exec, 1
    ds_add_rtn_u32 v{T0+2}, v{T0+2}, v{V_ONE}
    s_mov_b64 exec, -1
    s_waitcnt lgkmcnt(0)
    v_readfirstlane_b32 s3, v{T0+2}
    s_cmp_lg_u32 s3, 2
    s_cbranch_scc1 TOTALS""")
    flag_store(a, WS_RDY)
    st('recs flagged')
    a(f"""TOTALS:
    v_mov_b32 v{T0+2}, 0
TOTALS_SPIN:
    ds_read_b128 {vr(XR,4)}, v{T0+2} offset:{L_WT}
    s_waitcnt lgkmcnt(0)""")
    for k in range(4): a(f"v_readfirstlane_b32 s{4+k}, v{XR+k}")
    a(f"""s_min_u32 s3, s4, s5
    s_min_u32 s8, s6, s7
    s_min_u32 s3, s3, s8
    s_cmp_eq_u32 s3, 0
    s_cbranch_scc0 TOTALS_OK
    s_sub_u32 s{S_SPIN}, s{S_SPIN}, 1
    s_cbranch_scc0 TOTALS_SPIN
    s_endpgm
TOTALS_OK:
    s_add_u32 s5, s5, s4
    s_add_u32 s6, s6, s5
    s_add_u32 s7, s7, s6
    s_sub_u32 s{S_N}, s7, 4
    s_cmp_eq_u32 s{S_WAVE}, 1
    s_cselect_b32 s3, s4, 0
    s_cmp_eq_u32 s{S_WAVE}, 2
    s_cselect_b32 s3, s5, s3
    s_cmp_eq_u32 s{S_WAVE}, 3
    s_cselect_b32 s3, s6, s3
    s_sub_u32 s3, s3, s{S_WAVE}
    v_add_u32 v{V_PRE}, s3, v{V_PRE}
    s_cmp_lg_u32 s{S_WAVE}, 4
    s_cbranch_scc1 EPOCH_DONE
    s_cmp_lg_u32 s2, 0
    s_cbranch_scc1 EPOCH_DONE
    v_mov_b32 v{T0+4}, s{S_NLO}
    v_mov_b32 v{T0+2}, {WS_EPOCH}
    s_mov_b64 exec, 1
    global_store_dword v{T0+2}, v{T0+4}, {sr(S_WS,2)} sc0 sc1
    s_mov_b64 exec, -1
EPOCH_DONE:""")
    x_touch(a, opt, 3, False)
    st('prefix done')
    a(f"""ROUND:
    v_mov_b32 v{T0}, 0
    v_subrev_u32 v{T0+1}, s{S_W0}, v{V_PRE}
    v_mov_b32 v{T0+2}, v{V_GID}
    s_mov_b32 s3, {CAP}
    s_cmp_gt_u32 s{S_N}, {CAP}
    s_cbranch_scc1 EXPAND
    v_lshlrev_b32 v{T0+3}, 2, v{V_PRE}""")
    for j in range(16):
        a(f"v_cmpx_lt_u32 vcc, {j}, v{V_LEN}")
        if j % 2 == 0 and j >= 6: a("s_cbranch_execz EXPAND_DONE")
        a(f"ds_write_b32 v{T0+3}, v{T0+2} offset:{L_SENT + 4*j}\nv_add_u32 v{T0+2}, 1, v{T0+2}")
    a(f"""v_mov_b32 v{T0}, 16
    v_add_u32 v{T0+1}, 16, v{T0+1}
EXPAND:
    v_cmp_lt_u32 vcc, v{T0}, v{V_LEN}
    s_and_b64 exec, exec, vcc
    s_cbranch_execz EXPAND_DONE
    v_cmp_gt_u32 vcc, s3, v{T0+1}
    v_lshlrev_b32 v{T0+3}, 2, v{T0+1}
    s_and_saveexec_b64 {sr(S_T,2)}, vcc
    ds_write_b32 v{T0+3}, v{T0+2} offset:{L_SENT}
    s_mov_b64 exec, {sr(S_T,2)}
    v_add_u32 v{T0}, 1, v{T0}
    v_add_u32 v{T0+1}, 1, v{T0+1}
    v_add_u32 v{T0+2}, 1, v{T0+2}
    s_branch EXPAND
EXPAND_DONE:
    s_mov_b64 exec, -1
    s_sub_u32 s{S_NWIN}, s{S_N}, s{S_W0}
    s_min_u32 s{S_NWIN}, s{S_NWIN}, {CAP}
    v_lshlrev_b32 v{T0}, 2, v0""")
    for i in range(3):
        a(f"""v_add_u32 v{T0+1}, {512*i}, v0
              v_cmp_gt_u32 {sr(S_M+2*i,2)}, s{S_NWIN}, v{T0+1}""")
    x_touch(a, opt, 4)
    if opt.rdy == 3: poll_issue(a, ENT - 1, V_FLAG, 0)
    st('list built')
    a("s_waitcnt lgkmcnt(0)\ns_barrier")
    st('list barrier')
    G = XR
    KP = TP
    for i in range(3): a(f"ds_read_b32 v{G+i}, v{T0} offset:{L_SENT + 2048*i}")
    a(f"""s_mov_b32 s{S_T+2}, 5033                          ; 12 * 2^32 / (10000 * 1024)
    s_waitcnt lgkmcnt(0)""")
    for i in range(3):
        a(f"v_lshlrev_b32 v{G+4+i}, 3, v{G+i}\nv_lshlrev_b32 v{G+i}, 4, v{G+i}")
    a(f"""KEY_LOAD:
    s_mov_b64 exec, {sr(S_M+4,2)}
    s_cbranch_execz SKIP3
    buffer_load_dwordx2 {vr(KP+4,2)}, v{G+6}, {sr(S_WS,4)}, 0 offen sc1
SKIP3:""")
    for i in range(2):
        a(f"s_mov_b64 exec, {sr(S_M+2*i,2)}\nbuffer_load_dwordx2 {vr(KP+2*i,2)}, v{G+4+i}, {sr(S_WS,4)}, 0 offen sc1")
    a("s_mov_b64 exec, -1")
    if opt.rdy == 2: poll_issue(a, ENT - 1, V_FLAG, 0)
    x_touch(a, opt, 7, False)
    a(f"""s_cmp_lt_u32 s{S_WAVE}, 2
    s_cbranch_scc1 NO_LAST_JOB
    s_mov_b32 s{S_L2E}, 0xbfb8aa3b
    s_mov_b32 s{S_L2E+1}, 0xbfb8aa3b""")
    a(f"s_add_u32 s{S_JOB}, s{S_WAVE}, 26")
    lut_jobs(a, 1)
    a(f"NO_LAST_JOB:\ns_waitcnt vmcnt({(',' + opt.xt).count(',7:') + (opt.rdy == 2)})")
    for i in range(3): a(f"v_cmp_ne_u32 {sr(S_K+2*i,2)}, s{S_NLO}, v{KP+2*i+1}")
    for i in range(3): a(f"s_and_b64 {sr(S_K+2*i,2)}, {sr(S_K+2*i,2)}, {sr(S_M+2*i,2)}")
    a(f"""s_or_b64 {sr(S_K,2)}, {sr(S_K,2)}, {sr(S_K+2,2)}
    s_or_b64 {sr(S_K,2)}, {sr(S_K,2)}, {sr(S_K+4,2)}
    s_cbranch_scc0 KEYS_OK
    s_sub_u32 s{S_SPIN}, s{S_SPIN}, 1
    s_cbranch_scc0 KEY_LOAD
    s_endpgm
KEYS_OK:""")
    st('keys arrived')
    if opt.rdy == 0: poll_issue(a, TT, V_FLAG, 0)
    x_touch(a, opt, 1, False)
    for i in range(3):
        a(f"""v_mul_hi_u32 v{T0+1}, s{S_T+2}, v{KP+2*i}
              v_and_b32 v{G+8+i}, 63, v{KP+2*i}
              v_mul_u32_u24 v{G+8+i}, {HS}, v{G+8+i}
              v_lshl_add_u32 v{G+8+i}, v{T0+1}, 2, v{G+8+i}""")
    for i in range(3):
        a(f"s_mov_b64 exec, {sr(S_M+2*i,2)}\nds_add_rtn_u32 v{G+12+i}, v{G+8+i}, v{V_ONE} offset:{L_HIST}")
    a("s_mov_b64 exec, -1")
    for i in range(3):
        a(f"""v_add_u32 v{T0+1}, {512*i}, v0
              v_lshlrev_b32 v{T0+1}, 21, v{T0+1}
              v_lshrrev_b32 v{G+16+i}, 10, v{KP+2*i}
              v_lshl_or_b32 v{G+16+i}, v{G+16+i}, 7, v{T0+1}""")
    H = G + 20
    a(f"""v_lshrrev_b32 v{T0}, 4, v{V_L16}              ; lane
    v_min_u32 v{T0+1}, 39, v{T0}
    v_mul_u32_u24 v{T0+1}, {HS}, v{T0+1}
    v_cmp_gt_u32 {sr(S_T+4,2)}, 40, v{T0}
    v_sub_u32 v{T0+2}, 63, v{T0}
    s_mul_i32 s10, s{S_WAVE}, 5
    s_lshl_b32 s3, s{S_WAVE}, 10
    s_add_u32 s3, s3, {L_UREC}
    s_mov_b32 s9, {WS_REC}""")
    if opt.rdy >= 2: poll_check(a, "REC", ENT - 1, V_FLAG, 0, ENT)
    a("s_waitcnt lgkmcnt(0)\ns_barrier")
    st('hist done')
    if opt.rdy == 1: poll_issue(a, TT, V_FLAG, 0)
    def rec_dma():
        for i in range(2):
            a(f"""s_add_u32 m0, s3, {i*8192}
              s_mov_b64 exec, {sr(S_M+2*i,2)}
              buffer_load_dwordx4 v{G+i}, {sr(S_WS,4)}, s9 offen sc1 lds""")
        a(f"""s_add_u32 m0, s3, {2*8192}
    s_mov_b64 exec, {sr(S_M+4,2)}
    s_cbranch_execz SKIP3R
    buffer_load_dwordx4 v{G+2}, {sr(S_WS,4)}, s9 offen sc1 lds
SKIP3R:
    s_mov_b64 exec, -1""")
    for k in range(3): a(f"ds_read_b128 {vr(H+4*k,4)}, v{T0+1} offset:{L_HIST + 16*k}")
    if opt.rdy >= 2: rec_dma()
    a(f"""    s_waitcnt lgkmcnt(1)
    v_add3_u32 v{H}, v{H}, v{H+1}, v{H+2}
    v_add3_u32 v{H+3}, v{H+3}, v{H+4}, v{H+5}
    v_add3_u32 v{H}, v{H}, v{H+6}, v{H+7}
    s_waitcnt lgkmcnt(0)
    v_add3_u32 v{H+3}, v{H+3}, v{H+8}, v{H+9}
    v_add3_u32 v{H}, v{H}, v{H+10}, v{H+11}
    v_add_u32 v{H}, v{H}, v{H+3}
    v_lshl_or_b32 v{H+1}, v{H}, 6, v{T0+2}
    v_cndmask_b32 v{H+1}, 0, v{H+1}, {sr(S_T+4,2)}
    s_cmp_lg_u32 s{S_W0}, 0
    s_cbranch_scc1 DEALT""")
    for k in range(5):
        a(f"v_readlane_b32 s{S_NODE+k}, v{H+1}, s10")
        if k < 4: a("s_add_u32 s10, s10, 1")
    for k in range(5): a(f"v_cmp_lt_u32 {sr(S_K+2*k,2)}, s{S_NODE+k}, v{H+1}")
    for k in range(5): a(f"s_bcnt1_i32_b64 s{S_NODE+k}, {sr(S_K+2*k,2)}")
    for k in range(5): a(f"v_readlane_b32 s{S_NODE+k}, v{V_DEAL}, s{S_NODE+k}")
    a(f"""s_sub_u32 s10, s10, 4
    v_add_u32 v{T0+2}, s10, v{T0}""")
    for k in range(5): a(f"v_writelane_b32 v{T0+1}, s{S_NODE+k}, {k}")
    a(f"""
    s_mov_b64 exec, 0x1f
    ds_write_b32 v{T0+1}, v{T0+2} offset:{L_INV}
    s_mov_b64 exec, -1
DEALT:
    s_lshl_b32 s11, s10, 2
    v_add_u32 v{T0+1}, s11, v{V_SLOT4}
    v_lshlrev_b32 v{T0+5}, 2, v{T0}
""")
    if opt.rdy < 2: poll_check(a, "REC", TT, V_FLAG, 0, TT + 1, younger=("," + opt.xt).count(",1:"))
    a(f"""v_cmp_gt_u32 {sr(S_T,2)}, 60, v{T0}
    s_waitcnt lgkmcnt(0)
    s_barrier""")
    st('dealt')
    a(f"""ds_read_b32 v{T0+1}, v{T0+1} offset:{L_INV}
    ds_read_b32 v{T0+5}, v{T0+5} offset:{L_INV}
    v_lshlrev_b32 v{T0+4}, 17, v{V_SLOT4}             ; slot << 19""")
    if opt.rdy < 2: rec_dma()
    x_touch(a, opt, 2)
    a(f"""    s_waitcnt lgkmcnt(1)
    v_mul_u32_u24 v{T0+2}, {HS}, v{T0+1}
    v_add_u32 v{T0+2}, v{T0+2}, v{V_SIG4}
    ds_read_b32 v{T0+3}, v{T0+2} offset:{L_HIST}
    s_waitcnt lgkmcnt(1)
    v_lshlrev_b32 v{T0+5}, 2, v{T0+5}
    ds_bpermute_b32 v{H+2}, v{T0+5}, v{H}""")
    for k in range(5): a(f"v_readlane_b32 s{S_NODE+k}, v{T0+1}, {k}")
    a(f"""s_waitcnt lgkmcnt(0)
    v_cndmask_b32 v{T0+3}, 0, v{T0+3}, {sr(S_T,2)}
    v_cndmask_b32 v{H+2}, 0, v{H+2}, {sr(S_T+4,2)}
    v_sub_u32 v{T0+4}, v{T0+4}, v{T0+3}
    v_mov_b32 v{H+3}, v{H+2}""")
    scan64(a, T0 + 3, H + 3)
    a(f"""v_sub_u32 v{H+3}, v{H+3}, v{H+2}
    v_add_u32 v{T0+4}, v{T0+4}, v{T0+3}
    v_readlane_b32 s{S_START}, v{H+3}, s10
    v_readlane_b32 s{S_END}, v{T0+3}, 63
    s_nop 0
    v_add_u32 v{T0+4}, s{S_START}, v{T0+4}
    s_mov_b64 exec, {sr(S_T,2)}
    ds_write_b32 v{T0+2}, v{T0+4} offset:{L_HIST}
    s_mov_b64 exec, -1
    v_add_u32 v{V_POS}, s{S_START}, v{T0}
    v_lshlrev_b32 v{V_AENT}, 2, v{V_POS}
    v_add_u32 v{V_AENT}, {L_SENT}, v{V_AENT}
    s_max_u32 s10, s{S_END}, {D}
    s_add_u32 s10, s10, {opt.gran - 1 - D}
    s_and_b32 s{S_REM}, s10, {-opt.gran}
    s_max_u32 s10, s{S_END}, s{S_REM}
    s_sub_u32 s{S_REMB}, s10, s{S_REM}
    s_add_u32 s{S_END}, s{S_END}, s{S_START}""")
    a("s_waitcnt lgkmcnt(0)\ns_barrier")
    st('bases')
    for i in range(3): a(f"ds_read_b32 v{G+8+i}, v{G+8+i} offset:{L_HIST}")
    for i in range(3):
        a(f"""s_waitcnt lgkmcnt({2-i})
              v_lshrrev_b32 v{T0+1}, 16, v{G+8+i}
              v_and_b32 v{G+8+i}, 0xffff, v{G+8+i}
              v_or_b32 v{G+16+i}, v{G+16+i}, v{T0+1}
              v_add_lshl_u32 v{G+8+i}, v{G+8+i}, v{G+12+i}, 2""")
    for i in range(3):
        a(f"""s_mov_b64 exec, {sr(S_M+2*i,2)}
              ds_write_b32 v{G+8+i}, v{G+16+i} offset:{L_SENT}""")
    a("s_mov_b64 exec, -1")
    a("s_waitcnt lgkmcnt(0)")
    if not opt.xpre: a("s_waitcnt vmcnt(0)")
    a("s_barrier")
    st('sorted')
    if opt.stamps: a(f"s_memtime s[100:101]\ns_waitcnt lgkmcnt(0)\ns_mov_b32 s{S_ST+30}, s100")
    if opt.prio == 1: a(f"s_cmp_ge_u32 s{S_WAVE}, 4\ns_cbranch_scc0 PRIO_SET\ns_setprio 1\nPRIO_SET:")
    meta_read_entry(a)
    a(f"""s_and_b32 s{S_WM}, s{S_WAVE}, 3
    s_lshl_b32 s{S_WM}, s{S_WM}, 13
    s_add_u32 s{S_WM}, s{S_WM}, {WS_WMIX}
    s_add_u32 s{S_WM+1}, s{S_WM}, 4096""")
    for k in range(8): a(f"v_mov_b32 v{RR+k}, 0")
    a("s_waitcnt lgkmcnt(0)")
    meta_fix_entry(a, False)
    a("s_nop 0")
    def first_rows(lo, hi):
        for e in range(lo, hi):
            a(f"""v_readlane_b32 s{S_K+e}, v{ENT}, {e}
                  s_and_b32 s{S_OFF}, s{S_K+e}, s{S_MASK}
                  buffer_load_dwordx4 {vr(XR+4*e,4)}, v{V_L16}, {sr(S_X,4)}, s{S_OFF} offen""")
    if opt.xpre:
        first_rows(0, opt.xpre)
        a(f"s_waitcnt vmcnt({opt.xpre})")
        st('recs landed')
        a("s_barrier")
    meta_read_rec(a)
    first_rows(opt.xpre, D)
    a(f"v_mov_b32 v{KEY}, v{ENT}")
    a(f"""s_waitcnt lgkmcnt(0)
    v_mov_b32 v{EF}, v{RECN+2}
    v_mov_b32 v{EF+1}, v{RECN+3}""")
    for i in range(4): a(w_mfma(i))
    a(p_mfma(0, 0)); a(p_mfma(0, 1)); a(p_mfma(1, 0))
    a("s_nop 1")
    for m in range(4): w_cvt(a, m)
    for odd in range(2):
        u, r = act_regs(0, odd)
        for h in range(2): a(act_addr(TT + 2 * odd + h, u + h))
        for h in range(2): a(act_read(r + h, TT + 2 * odd + h))
    a(f"s_waitcnt vmcnt({D-1})")
    st('first row')
    a(t_mfma(0, 0)); a(t_mfma(0, 1))
    body(a, opt)
    a(f"""MAIN_DONE:
    s_add_u32 s{S_W0}, s{S_W0}, {CAP}
    s_cmp_ge_u32 s{S_W0}, s{S_N}
    s_cbranch_scc1 ALL_DONE
    s_waitcnt vmcnt(0) lgkmcnt(0)""")
    zero_hist(a)
    a("s_waitcnt lgkmcnt(0)\ns_barrier\ns_branch ROUND\nALL_DONE:")
    st('main done')
    if opt.stamps: a(f"s_memtime s[100:101]\ns_waitcnt lgkmcnt(0)\ns_sub_u32 s{S_ST+30}, s100, s{S_ST+30}")
    PK = WPK
    for s in range(5):
        for o in range(4): a(f"v_cvt_pk_bf16_f32 v{PK+4*s+o}, v{ACC+8*s+o}, v{ACC+8*s+4+o}")
    a(f"""v_lshrrev_b32 v{T0}, 2, v{V_L16}
    v_add_u32 v{T0}, {L_AGG}, v{T0}""")
    for s in range(5):
        a(f"s_mul_i32 s{S_T}, s{S_NODE+s}, {4 * AGG_RS}\nv_add_u32 v{UU+s}, s{S_T}, v{T0}")
    a(f"""v_lshrrev_b32 v{T0+1}, 4, v{V_L16}            ; lane
    v_and_b32 v{T0+2}, 15, v{T0+1}
    v_lshrrev_b32 v{T0+3}, 4, v{T0+1}                 ; lane >> 4
    s_lshr_b32 s{S_T}, s{S_WAVE}, 2
    s_mul_i32 s{S_T+1}, s{S_T}, {80 * AGG_RS}
    s_add_u32 s{S_T+1}, s{S_T+1}, {L_AGG}
    v_mul_u32_u24 v{T0}, {AGG_RS}, v{T0+2}
    v_lshl_add_u32 v{T0}, v{T0+3}, 4, v{T0}
    v_add_u32 v{T0}, s{S_T+1}, v{T0}
    s_mul_i32 s{S_T}, s{S_T}, {20 << 18}
    s_lshl_b32 s{S_T+1}, s{S_BETA}, 10
    s_add_u32 s{S_T}, s{S_T}, s{S_T+1}
    s_and_b32 s{S_T+1}, s{S_WAVE}, 3
    s_lshl_b32 s{S_T+1}, s{S_T+1}, 8
    s_add_u32 s{S_T}, s{S_T}, s{S_T+1}
    v_lshlrev_b32 v{T0+3}, 18, v{T0+3}
    v_lshl_add_u32 v{T0+3}, v{T0+2}, 4, v{T0+3}
    v_add_u32 v{T0+3}, s{S_T}, v{T0+3}
    s_waitcnt lgkmcnt(0)
    s_barrier""")
    st('all main done')
    for s in range(5):
        for o in range(4): a(f"ds_write_b32 v{UU+s}, v{PK+4*s+o} offset:{o*AGG_RS}")
    a("s_waitcnt vmcnt(0) lgkmcnt(0)\ns_barrier")
    st('agg in LDS')
    AF = XR
    def rd(t):
        for ks in range(4): a(f"ds_read_b128 {vr(AF+16*(t%2)+4*ks,4)}, v{T0} offset:{t*16*AGG_RS + ks*64}")
    def pack_store(t):
        d = ACC + 8 * t; p = RR + 4 * (t % 2)
        for j in range(4): a(f"v_cvt_pk_bf16_f32 v{p+j}, v{d+2*j}, v{d+2*j+1}")
        a(f"buffer_store_dwordx4 {vr(p,4)}, v{T0+3}, {sr(S_OUT,4)}, 0 offen {opt.outst}")
        if t < 4: a(f"v_add_u32 v{T0+3}, {4 << 18}, v{T0+3}")
    rd(0)
    for t in range(5):
        if t < 4: rd(t + 1)
        for ks in range(4):
            a(f"s_waitcnt lgkmcnt({(4 if t < 4 else 0) + 3 - ks})")
            for j in range(2):
                d = ACC + 8 * t + 4 * j
                a(f"v_mfma_f32_16x16x32_bf16 {vr(d,4)}, {vr(AF+16*(t%2)+4*ks,4)}, {vr(WMIX+16*j+4*ks,4)}, " + ("0" if ks == 0 else vr(d, 4)))
            if ks == 3 and t > 0: pack_store(t - 1)
    a("s_nop 7")
    pack_store(4)
    st('end')
    if opt.probe:
        a(f"""s_cmp_eq_u32 s93, 0
        s_cselect_b32 s93, s92, s93
        s_sub_u32 s93, s93, s92
        s_mul_i32 s93, s93, 4
        s_add_u32 s92, s92, s93
        s_add_u32 s92, s92, 6000
        HOLD_SPIN:
        s_memrealtime s[98:99]
        s_waitcnt lgkmcnt(0)
        s_sub_u32 s98, s98, s92
        s_cmp_lt_i32 s98, 0
        s_cbranch_scc1 HOLD_SPIN""")
    if opt.stamps:
        a("s_waitcnt vmcnt(0)")
        st('stores done 2')
        a(f"""s_lshl_b32 s10, s2, 3
        s_add_u32 s10, s10, s{S_WAVE}
        s_lshl_b32 s10, s10, 7
        s_add_u32 s10, s10, {WS_STAMP}
        v_mov_b32 v{T0}, s10
        s_sub_u32 s{S_ST+31}, s{S_END}, s{S_START}
        s_sub_u32 s{S_ST+29}, {1 << 21}, s{S_SPIN}""")
        for k in range(32): a(f"v_mov_b32 v{XR+k}, s{S_ST+k}")
        for k in range(8): a(f"buffer_store_dwordx4 {vr(XR+4*k,4)}, v{T0}, {sr(S_WS,4)}, 0 offen offset:{16*k}")
    a("END:\ns_endpgm")
    a(".p2align 6\n.type DEAL_TABLE,@object\nDEAL_TABLE:\n.byte " + ", ".join(map(str, deal_bytes())) + "\n.size DEAL_TABLE, 128")
    return a.text()

def generate(opt):
    here = os.path.dirname(os.path.abspath(__file__))
    out = open(here + "/header.txt").read()
    out += f"; @launch grid=(256,1,1) block=(512,1,1) lds={LDS_BYTES}\n"
    out += f'.amdgcn_target "amdgcn-amd-amdhsa--gfx950"\n.text\n.globl {KERN}\n.p2align 8\n.type {KERN},@function\n'
    out += kernel(opt)
    out += f""".section .rodata,"a"
.p2align 6
.amdhsa_kernel {KERN}
  .amdhsa_next_free_vgpr {NVGPR}
  .amdhsa_next_free_sgpr {NSGPR if opt.stamps or opt.probe else 66}
  .amdhsa_accum_offset {(NVGPR + 3) // 4 * 4}
  .amdhsa_group_segment_fixed_size 0
  .amdhsa_kernarg_size 88
  .amdhsa_user_sgpr_count 2
  .amdhsa_user_sgpr_kernarg_segment_ptr 1
  .amdhsa_system_sgpr_workgroup_id_x 1
  .amdhsa_float_denorm_mode_32 3
.end_amdhsa_kernel
"""
    return out

def options(argv):
    p = argparse.ArgumentParser()
    p.add_argument("-o", default="/code/" + NAME + ".s")
    p.add_argument("--stamps", action="store_true")
    p.add_argument("--probe", default="")
    p.add_argument("--D", type=int, default=6)
    p.add_argument("--l2", type=int, default=20)
    p.add_argument("--rdy", type=int, default=0)
    p.add_argument("--prio", type=int, default=0)
    p.add_argument("--wsoff", type=int, default=0)
    p.add_argument("--gran", type=int, default=4)
    p.add_argument("--late", type=int, default=53)
    p.add_argument("--xpre", type=int, default=2)
    p.add_argument("--xt", default="3:0:16")
    p.add_argument("--lsplit", type=int, default=5)
    p.add_argument("--keypf", type=int, default=1)
    p.add_argument("--k1st", default="sc0 sc1")
    p.add_argument("--outst", default="sc0 sc1")
    return p.parse_args(argv)

if __name__ == "__main__":
    opt = options(sys.argv[1:])
    open(opt.o, "w").write(generate(opt))
    if opt.stamps: open(opt.o + ".names", "w").write(repr(STAMPS))
    import subprocess
    here = os.path.dirname(os.path.abspath(__file__))
    r = subprocess.run([sys.executable, here + "/hazards.py", opt.o], capture_output=True, text=True).stdout
    if " 0 finding" not in r: print(r)
    r = subprocess.run([sys.executable, here + "/../cdna_unwritten_srd_check.py", opt.o], capture_output=True, text=True)
    if r.returncode: print(r.stdout, r.stderr)
```

```python
import sys, argparse, os

NAME = "gather_scatter__tensor_product_equiv_tfn__graph"
KERN = NAME + "_kernel"
N, E, C = 10000, 320000, 128
NP, EP = 250, 1280
WS_KEY = 0
WS_REC = 0x280000
WS_WMIX = 0x771000
WS_TAB = 0x780000
WS_RDY = WS_TAB + 256 * 2048
WS_EPOCH = WS_RDY + 256 * 1024
WS_END = WS_EPOCH + 128
WS_STAMP = 0x900000
CAP = 1472

class Asm:
    def __init__(self): self.l = []
    def __call__(self, s):
        for line in s.strip("\n").split("\n"):
            line = line.strip()
            if not line: continue
            self.l.append(line if line.endswith(":") else "    " + line)
    def text(self): return "\n".join(self.l) + "\n"

def vr(a, n=1): return f"v{a}" if n == 1 else f"v[{a}:{a+n-1}]"
def sr(a, n=1): return f"s{a}" if n == 1 else f"s[{a}:{a+n-1}]"

SCAN_STEPS = ["row_shr:1 row_mask:0xf bank_mask:0xf bound_ctrl:0", "row_shr:2 row_mask:0xf bank_mask:0xf bound_ctrl:0",
              "row_shr:4 row_mask:0xf bank_mask:0xf bound_ctrl:0", "row_shr:8 row_mask:0xf bank_mask:0xf bound_ctrl:0",
              "row_bcast:15 row_mask:0xa bank_mask:0xf", "row_bcast:31 row_mask:0xc bank_mask:0xf"]
def scan64(a, *regs):
    for c in SCAN_STEPS:
        a("s_nop 1" if len(regs) == 1 else "s_nop 0")
        for v in regs: a(f"v_add_u32_dpp v{v}, v{v}, v{v} {c}")

NSB, HS = 12, 48
L_HIST = 0; L_INV = 40 * HS; L_WT = L_INV + 256; L_CNT = L_WT + 64
L_SENT = L_WT + 128
L_UREC = L_SENT + CAP * 4
L_CG = L_UREC + CAP * 16
L_LUT = 32768
L1_HIST = L_SENT; L1_BASE = L1_HIST + 1024; L1_SREC = L1_BASE + 1024
L1_SKEY = L_LUT + 53 * 1024
assert L_CG + 128 <= L_LUT and L1_SREC + EP * 16 <= L_LUT and L1_BASE <= 4096
L_AGG = L_LUT; AGG_RS = 288
LDS_BYTES = L_LUT + 131072

V_L16 = 1
V_LEN, V_PRE, V_GID = 2, 3, 4
V_AENT, V_POS = 5, 6
V_SLOT4, V_SIG4, V_ONE = 7, 14, 15
V_DEAL = 174
V_FLAG = 166
T0 = 8
ACC = 16; XR = 64; TP = 96; UU = 112; RR = 128; TT = 136; WPK = 140; WTMP = 148
KEY = 164; ENT = 165; RECN = 168; EF = 172; CONST = 176; WMIX = 188
NVGPR = 220
PE, PO, CGB = CONST, CONST + 2, CONST + 4
LJ = 128
S_NODE = 4
S_X, S_WS, S_OUT = 12, 16, 20
S_BETA, S_WAVE, S_N, S_W0, S_NWIN, S_START, S_END, S_REM, S_REMB, S_OFF, S_MASK = range(24, 35)
S_SPIN = 35
S_M = 36
S_T = 42
S_K = 48
S_IN = 40
S_JOB, S_JCNT = 62, 63
S_NLO, S_NHI = 64, 65
S_WM = 10
S_L2E = 10
S_ST = 66
NSGPR = 102

STAMPS = []
def stamp(a, opt, name):
    if opt.probe == name: a("s_memrealtime s[98:99]\ns_waitcnt lgkmcnt(0)\ns_mov_b32 s93, s98")
    if not opt.stamps: return
    if opt.only and name not in opt.only.split(",") + ["start", "sorted", "main done", "stores done 2"]: return
    if name not in STAMPS: STAMPS.append(name)
    a(f"s_memrealtime s[98:99]\ns_waitcnt lgkmcnt(0)\ns_mov_b32 s{S_ST + STAMPS.index(name)}, s98")

S_RET = 6
def lut_sub(a):
    J, Ex, R, P = LJ, LJ + 8, LJ + 16, LJ + 24
    a(f"""LUT_SUB:
    s_lshl_b32 s3, s{S_JOB}, 25
    s_add_u32 s3, s3, 0x8000
    v_lshl_add_u32 v{J}, v{V_L16}, 15, s3""")
    for k in range(1, 8): a(f"v_add_u32 v{J+k}, 0x10000, v{J+k-1}")
    for k in range(0, 8, 2): a(f"v_pk_mul_f32 {vr(Ex+k,2)}, {vr(J+k,2)}, {sr(S_L2E,2)}")
    for k in range(8): a(f"v_exp_f32 v{Ex+k}, v{Ex+k}")
    a(f"s_lshl_b32 s3, s{S_JOB}, 10")
    for k in range(0, 8, 2): a(f"v_pk_add_f32 {vr(R+k,2)}, {vr(Ex+k,2)}, 1.0 op_sel_hi:[1,0]")
    for k in range(8): a(f"v_rcp_f32 v{R+k}, v{R+k}")
    a(f"v_add_u32 v{P+8}, s3, v{V_L16}")
    for k in range(0, 8, 2): a(f"v_pk_mul_f32 {vr(J+k,2)}, {vr(J+k,2)}, {vr(R+k,2)}")
    a(f"v_add_u32 v{P+9}, 0x10000, v{P+8}")
    for k in range(0, 8, 2): a(f"v_pk_mul_f32 {vr(Ex+k,2)}, {vr(J+k,2)}, {vr(Ex+k,2)} neg_lo:[1,0] neg_hi:[1,0]")
    for k in range(4): a(f"v_cvt_pk_bf16_f32 v{P+k}, v{J+2*k}, v{J+2*k+1}")
    for k in range(4): a(f"v_cvt_pk_bf16_f32 v{P+4+k}, v{Ex+2*k}, v{Ex+2*k+1}")
    a(f"""ds_write_b128 v{P+8}, {vr(P,4)} offset:{L_LUT}
    ds_write_b128 v{P+9}, {vr(P+4,4)} offset:{L_LUT}
    s_add_u32 s{S_JOB}, s{S_JOB}, 1
    s_sub_u32 s{S_JCNT}, s{S_JCNT}, 1
    s_cmp_lg_u32 s{S_JCNT}, 0
    s_cbranch_scc1 LUT_SUB
    s_setpc_b64 {sr(S_RET,2)}""")
def lut_jobs(a, count): a(f"s_mov_b32 s{S_JCNT}, {count}\ns_call_b64 {sr(S_RET,2)}, LUT_SUB")

def lut_plain(a, tag, region, last=None, cont=False):
    P = LJ
    for name, first, end, bias in (("L", 1, 24, 0x20000 - 0x800080), ("H", 34, 62, 0x20000)):
        if name != region: continue
        last = last or end
        if cont: a(f"s_cmp_gt_u32 s{S_JOB}, {last}\ns_cbranch_scc1 LUTP_END_{tag}")
        else: a(f"s_add_u32 s{S_JOB}, s{S_WAVE}, {first}")
        if name == "H" and not cont:
            for k in range(4): a(f"v_mov_b32 v{P+4+k}, 0x80008000")
        a(f"""LUTP_{tag}{name}:
        s_mul_i32 s3, s{S_JOB}, {512 * 0x10001}
        s_add_u32 s3, s3, {bias & 0xffffffff}
        v_add_u32 v{P}, s3, v{P+10}
        s_lshl_b32 s3, s{S_JOB}, 10
        v_add_u32 v{P+8}, s3, v{V_L16}""")
        for k in range(1, 4): a(f"v_add_u32 v{P+k}, {k * 0x20002}, v{P}")
        a(f"v_add_u32 v{P+9}, 0x10000, v{P+8}")
        if name == "L":
            for k in range(4): a(f"v_or_b32 v{P+4+k}, 0x80008000, v{P+k}")
        a(f"""ds_write_b128 v{P+8}, {vr(P,4)} offset:{L_LUT}
        ds_write_b128 v{P+9}, {vr(P+4,4)} offset:{L_LUT}
        s_add_u32 s{S_JOB}, s{S_JOB}, {5 if name == "L" else 4}
        s_cmp_le_u32 s{S_JOB}, {last}
        s_cbranch_scc1 LUTP_{tag}{name}
        LUTP_END_{tag}:""")

def flag_store(a, base):
    a(f"""s_lshl_b32 s3, s2, 10
    s_add_u32 s3, s3, {base}
    v_add_u32 v{T0+1}, s3, v{V_L16}
    v_mov_b32 v{T0+2}, s{S_NLO}
    v_mov_b32 v{T0+3}, s{S_NHI}
    v_mov_b32 v{T0+4}, s{S_NLO}
    v_mov_b32 v{T0+5}, s{S_NHI}
    global_store_dwordx4 v{T0+1}, {vr(T0+2,4)}, {sr(S_WS,2)} sc0 sc1
    s_nop 1""")

def poll_issue(a, dst, addr, soff):
    a(f"buffer_load_dwordx2 {vr(dst,2)}, v{addr}, {sr(S_WS,4)}, {soff} offen sc1")
def poll_check(a, tag, dst, addr, soff, hi, pre="", younger=0):
    if younger: a(f"s_waitcnt vmcnt({younger})\ns_branch CHECK_{tag}")
    a(f"""POLL_{tag}:
    s_waitcnt vmcnt(0)
    CHECK_{tag}:
    {pre}
    v_cmp_ne_u32 vcc, s{S_NLO}, v{dst + 1 if pre else dst}
    v_cmp_ne_u32 {sr(S_T,2)}, s{S_NHI}, v{hi}
    s_or_b64 vcc, vcc, {sr(S_T,2)}
    s_and_b64 exec, exec, vcc
    s_cbranch_execz POLLED_{tag}
    s_sub_u32 s{S_SPIN}, s{S_SPIN}, 1
    s_cbranch_scc1 END""")
    poll_issue(a, dst, addr, soff)
    a(f"""s_branch POLL_{tag}
    POLLED_{tag}:
    s_mov_b64 exec, -1""")

def load_epoch(a):
    a(f"""s_add_u32 s4, s{S_WS}, {WS_EPOCH}
    s_addc_u32 s5, s{S_WS+1}, 0
    s_load_dwordx2 {sr(S_NLO,2)}, s[4:5], 0""")
def make_tag(a):
    a(f"""s_add_u32 s{S_NLO}, s{S_NLO}, 1
    s_and_b32 s{S_NHI}, s{S_NHI}, 0x3ff""")

def scan256(a, H_, O_):
    a(f"""v_add_u32 v{T0+2}, v{H_}, v{H_+1}
    v_add3_u32 v{T0+2}, v{T0+2}, v{H_+2}, v{H_+3}
    v_mov_b32 v{T0+3}, v{T0+2}""")
    scan64(a, T0 + 3)
    a(f"""v_sub_u32 v{O_}, v{T0+3}, v{T0+2}
    v_add_u32 v{O_+1}, v{O_}, v{H_}
    v_add_u32 v{O_+2}, v{O_+1}, v{H_+1}
    v_add_u32 v{O_+3}, v{O_+2}, v{H_+2}""")

SRC, DST, YY, EFP, WRAD, CG, WMX = S_IN + 2, S_IN + 4, S_IN + 6, S_IN + 8, S_IN + 10, S_IN + 12, S_IN + 14
D_, S_, Y_, F_, B_, R_, H_, O_, TB = 64, 68, 72, 80, 88, 92, 96, 100, 108
CT = WMIX
def const_sub(a):
    a(f"""CONST_SUB:
    ds_write_b32 v{CT+5}, v{CT+4} offset:{L_CG}
    v_lshrrev_b32 v{CT+5}, 3, v{V_L16}
    v_and_b32 v{CT+5}, 24, v{CT+5}
    s_mov_b32 s4, 0x05040100
    s_mov_b32 s5, 0x07060302""")
    for i in range(4): a(f"ds_read_b64_tr_b16 {vr(CGB+2*i,2)}, v{CT+5} offset:{L_CG + 32*i}")
    for u in range(2):
        a(f"v_perm_b32 v{PE+u}, v{CT+1+2*u}, v{CT+2*u}, s4\nv_perm_b32 v{PO+u}, v{CT+1+2*u}, v{CT+2*u}, s5")
    a(f"s_setpc_b64 {sr(S_RET,2)}")
def const_finish(a): a(f"s_call_b64 {sr(S_RET,2)}, CONST_SUB")

def phase1(a, opt):
    st = lambda n: stamp(a, opt, n)
    WS = sr(S_WS, 2); FL = opt.k1st
    a(f"""s_cmp_ge_u32 s{S_WAVE}, 5
    s_cbranch_scc1 HELP""")
    lut_plain(a, "W0", "L", last=opt.lsplit)
    a(f"""s_cmp_ge_u32 s2, {NP}
    s_cbranch_scc1 AUX_LOAD
    global_load_dwordx4 {vr(Y_,4)}, v{T0+1}, {sr(YY,2)}
    global_load_dwordx4 {vr(Y_+4,4)}, v{T0+1}, {sr(YY,2)} offset:16
    global_load_dwordx4 {vr(F_,4)}, v{T0+1}, {sr(EFP,2)}
    global_load_dwordx4 {vr(F_+4,4)}, v{T0+1}, {sr(EFP,2)} offset:16
LOADED:
    s_cmp_ge_u32 s2, {NP}
    s_cbranch_scc1 AUX""")
    st('jobs A')
    a("s_waitcnt vmcnt(11)")
    st('dst arrived')
    for k in range(4):
        a(f"""v_and_b32 v{B_+k}, 0xff, v{D_+k}
              v_lshlrev_b32 v{B_+k}, 2, v{B_+k}
              ds_add_rtn_u32 v{R_+k}, v{B_+k}, v{V_ONE} offset:{L1_HIST}""")
    a("s_waitcnt vmcnt(10)")
    for k in range(4):
        a(f"""v_lshrrev_b32 v{D_+k}, 8, v{D_+k}
              v_lshl_or_b32 v{TB+2*k}, v{S_+k}, 10, v{D_+k}""")
    a(f"""s_mov_b32 s9, {L1_SKEY}
    s_waitcnt lgkmcnt(0)
    s_barrier
    ds_read_b128 {vr(H_,4)}, v{V_L16} offset:{L1_HIST}""")
    make_tag(a)
    for k in range(4): a(f"v_mov_b32 v{TB+2*k+1}, s{S_NLO}")
    a("s_waitcnt lgkmcnt(0)")
    scan256(a, H_, O_)
    a(f"ds_write_b128 v{V_L16}, {vr(O_,4)} offset:{L1_BASE}")
    for k in range(4): a(f"ds_read_b32 v{H_+k}, v{B_+k} offset:{L1_BASE}")
    for k in range(4):
        a(f"""s_waitcnt lgkmcnt(3)
              v_add_u32 v{R_+k}, v{R_+k}, v{H_+k}
              v_lshl_add_u32 v{B_+k}, v{R_+k}, 3, s9
              ds_write_b64 v{B_+k}, {vr(TB+2*k,2)}""")
    for k in range(4):
        a(f"v_lshlrev_b32 v{R_+k}, 4, v{R_+k}\nv_add_u32 v{R_+k}, {L1_SREC}, v{R_+k}")
    a("s_waitcnt lgkmcnt(0)\ns_barrier")
    st('keys binned')
    a("s_waitcnt vmcnt(0)")
    for k in range(4):
        a(f"ds_write2_b64 v{R_+k}, {vr(Y_+2*k,2)}, {vr(F_+2*k,2)} offset0:0 offset1:1")
    st('recs binned')
    a("BINNED:\ns_setprio 0")
    if opt.late:
        a(f"s_waitcnt lgkmcnt(0)\ns_barrier\nv_mov_b32 v{V_LEN}, 0")
        const_finish(a)
        lut_plain(a, "W", "L", cont=True)
        a(f"s_cmp_eq_u32 s{S_WAVE}, 4\ns_cbranch_scc1 WAVE4")
        lut_plain(a, "U", "H", last=opt.late)
        poll_issue(a, V_LEN, V_POS, 0)
        if opt.split: a("s_barrier")
        st('tab issued')
        lut_plain(a, "V", "H", cont=True)
    else:
        const_finish(a)
        if opt.l2 > opt.lsplit: lut_plain(a, "W1", "L", last=opt.l2, cont=True)
        a(f"""v_mov_b32 v{V_LEN}, 0
        s_cmp_eq_u32 s{S_WAVE}, 4
        s_cbranch_scc1 NO_TAB""")
        poll_issue(a, V_LEN, V_POS, 0)
        a("NO_TAB:\ns_waitcnt lgkmcnt(0)\ns_barrier")
        st('tab issued')
        lut_plain(a, "W", "L", cont=True)
        a(f"s_cmp_eq_u32 s{S_WAVE}, 4\ns_cbranch_scc1 WAVE4")
        lut_plain(a, "V", "H")
    st('jobs B')
    poll_check(a, "TAB", V_LEN, V_POS, 0, T0 + 3, f"v_lshrrev_b32 v{T0+3}, 22, v{V_LEN}")
    st('tab arrived')
    a("s_branch TAB_DONE")
    lut_sub(a)
    const_sub(a)
    a(f"""HELP:
    s_cmp_eq_u32 s{S_WAVE}, 6                       ; jobs 0 / 25 / 63
    s_cselect_b32 s{S_JOB}, 25, 0
    s_cmp_eq_u32 s{S_WAVE}, 7
    s_cselect_b32 s{S_JOB}, 63, s{S_JOB}""")
    lut_jobs(a, 1)
    st('help jobs')
    a(f"""v_mov_b32 v{T0+2}, {0x7f80 * 2}
    v_mov_b32 v{T0+3}, 0x7f80
    s_cmp_lg_u32 s{S_WAVE}, 7
    s_cbranch_scc1 NO_INF
    ds_write_b16 v{T0+2}, v{T0+3} offset:{L_LUT}
NO_INF:
    s_waitcnt vmcnt(0)""")
    const_finish(a)
    a(f"""s_sub_u32 s8, s{S_WAVE}, 5
    s_mul_i32 s4, s8, 3072
    s_cmp_eq_u32 s8, 1
    s_cselect_b32 s4, 4096, s4
    s_mul_i32 s3, s2, {EP * 8}
    s_add_u32 s3, s3, s4
    v_add_u32 v{T0}, s3, v{V_L16}
    s_add_u32 s4, s4, {L1_SKEY}
    v_add_u32 v{T0+1}, s4, v{V_L16}
    s_mul_i32 s4, s8, 7168
    s_mul_i32 s3, s2, {EP * 16}
    s_add_u32 s3, s3, s4
    s_add_u32 s3, s3, {WS_REC}
    v_add_u32 v{T0+4}, s3, v{V_L16}
    v_add_u32 v{T0+5}, s4, v{V_L16}
    s_waitcnt lgkmcnt(0)""")
    make_tag(a)
    a(f"""s_barrier
    s_cmp_lg_u32 s{S_WAVE}, 6
    s_cbranch_scc1 NO_ROW
    v_lshrrev_b32 v{TB+9}, 1, v{V_L16}
    ds_read_b64 {vr(H_,2)}, v{TB+9} offset:{L1_HIST}
    ds_read_b64 {vr(H_+2,2)}, v{TB+9} offset:{L1_HIST + 512}
    s_lshl_b32 s3, s2, 11
    s_add_u32 s3, s3, {WS_TAB}
    v_add_u32 v{TB+8}, s3, v{V_L16}
    s_lshl_b32 s3, s{S_NHI}, 22
    s_waitcnt lgkmcnt(0)
    v_add_u32 v{T0+2}, v{H_}, v{H_+1}
    v_add_u32 v{T0+3}, v{H_+2}, v{H_+3}
    v_mov_b32 v{O_}, v{T0+2}
    v_mov_b32 v{O_+2}, v{T0+3}""")
    scan64(a, O_, O_ + 2)
    a(f"""v_sub_u32 v{O_+2}, v{O_+2}, v{T0+3}
    v_readlane_b32 s4, v{O_}, 63
    v_sub_u32 v{O_}, v{O_}, v{T0+2}
    v_add_u32 v{O_+1}, v{O_}, v{H_}
    v_add_u32 v{O_+2}, s4, v{O_+2}
    v_add_u32 v{O_+3}, v{O_+2}, v{H_+2}""")
    for k in range(4):
        a(f"""v_lshl_or_b32 v{TB+2*k}, v{H_+k}, 11, v{O_+k}
              v_or_b32 v{TB+2*k}, s3, v{TB+2*k}
              v_mov_b32 v{TB+2*k+1}, s{S_NLO}""")
    a(f"""global_store_dwordx4 v{TB+8}, {vr(TB,4)}, {WS} sc0 sc1
    global_store_dwordx4 v{TB+8}, {vr(TB+4,4)}, {WS} offset:1024 sc0 sc1""")
    st('table published')
    a("NO_ROW:\ns_barrier")
    for k in range(4): a(f"ds_read_b128 {vr(64+4*k,4)}, v{T0+1} offset:{1024*k}")
    for k in range(4):
        if k == 2: a(f"s_cmp_eq_u32 s8, 1\ns_cbranch_scc1 KEYS_STORED")
        a(f"s_waitcnt lgkmcnt({3-k})\nglobal_store_dwordx4 v{T0}, {vr(64+4*k,4)}, {WS} offset:{1024*k} {FL}")
    a(f"""KEYS_STORED:
    v_mov_b32 v{V_LEN}, 0
    s_waitcnt lgkmcnt(0)
    s_barrier
    s_cmp_ge_u32 s2, {NP}
    s_cbranch_scc1 {"NO_RECS" if opt.split else "TAB_DONE"}""")
    for k in range(7): a(f"ds_read_b128 {vr(84+4*k,4)}, v{T0+5} offset:{L1_SREC + 1024*k}")
    for k in range(7):
        if opt.split and k == opt.split: a("s_barrier")
        if k == 4: a(f"v_add_u32 v{T0+4}, 4096, v{T0+4}")
        if k == 6: a(f"s_cmp_eq_u32 s8, 2\ns_cbranch_scc1 TAB_DONE")
        a(f"s_waitcnt lgkmcnt({6-k})\nglobal_store_dwordx4 v{T0+4}, {vr(84+4*k,4)}, {WS} offset:{(1024*k) % 4096} {FL}")
    a("s_branch TAB_DONE")
    a(f"""AUX_LOAD:
    s_cmp_ge_u32 s2, {NP + 4}
    s_cbranch_scc1 LOADED
    s_cmp_ge_u32 s{S_WAVE}, 4
    s_cbranch_scc1 LOADED
    s_sub_u32 s4, s2, {NP}
    s_lshl_b32 s5, s{S_WAVE}, 13
    s_lshl_b32 s8, s4, 6
    s_add_u32 s5, s5, s8
    v_lshrrev_b32 v{T0+1}, 8, v{V_L16}
    v_lshlrev_b32 v{T0+1}, 11, v{T0+1}
    v_bfe_u32 v{T0+2}, v{V_L16}, 4, 4
    v_lshl_add_u32 v{T0+1}, v{T0+2}, 2, v{T0+1}
    v_add_u32 v{T0+1}, s5, v{T0+1}
    s_lshl_b32 s5, s4, 13
    s_lshl_b32 s8, s{S_WAVE}, 10
    s_add_u32 s5, s5, s8
    s_add_u32 s5, s5, {WS_WMIX}
    v_add_u32 v{T0+2}, s5, v{V_L16}""")
    for t in range(8): a(f"global_load_dword v{64+t}, v{T0+1}, {sr(WMX,2)} offset:{t*256}")
    a(f"""s_branch LOADED
AUX:
    s_waitcnt lgkmcnt(0)""")
    make_tag(a)
    a(f"""s_barrier
    s_cmp_ge_u32 s2, {NP + 4}
    s_cbranch_scc1 AUX_DONE
    s_cmp_ge_u32 s{S_WAVE}, 4
    s_cbranch_scc1 AUX_DONE
    s_mov_b32 s4, 0x05040100
    s_mov_b32 s5, 0x07060302
    s_waitcnt vmcnt(0)""")
    for u in range(4):
        a(f"v_perm_b32 v{72+u}, v{65+2*u}, v{64+2*u}, s4\nv_perm_b32 v{76+u}, v{65+2*u}, v{64+2*u}, s5")
    a(f"""global_store_dwordx4 v{T0+2}, v[72:75], {WS} {FL}
    v_add_u32 v{T0+2}, 4096, v{T0+2}
    global_store_dwordx4 v{T0+2}, v[76:79], {WS} {FL}
AUX_DONE:
    s_barrier
    s_waitcnt vmcnt(0)
    s_branch BINNED
WAVE4:
    s_mov_b32 s{S_JOB}, 26""")
    if opt.split:
        lut_jobs(a, 1)
        a("s_barrier")
        lut_jobs(a, 1)
        a("s_branch TAB_DONE\nNO_RECS:\ns_barrier")
    else: lut_jobs(a, 2)
    a("TAB_DONE:")

def mfma4(d, a_, b, c, blk=None):
    cc = "0" if c is None else vr(c, 4)
    return f"v_mfma_f32_4x4x4_16b_bf16 {vr(d,4)}, {vr(a_,2)}, {vr(b,2)}, {cc}" + ("" if blk is None else f" cbsz:4 abid:{blk}")
def p_mfma(g, odd):
    return mfma4(UU + 8 * (g % 2) + 4 * odd, EF, PO if odd else PE, None, g % 16)
def t_mfma(e, odd):
    return mfma4(TP + 8 * (e % 2) + 4 * odd, WPK + 2 * (e % 4), XR + 4 * (e % 8) + 2 * odd, None, (e % 64) // 4)
def act_regs(eb, odd):
    return UU + 8 * ((eb // 4) % 2) + 4 * odd + eb % 4, RR + 4 * ((eb // 2) % 2) + 2 * odd
def act_addr(t, u):
    return f"v_lshlrev_b32_sdwa v{t}, v{V_ONE}, v{u} dst_sel:DWORD dst_unused:UNUSED_PAD src0_sel:DWORD src1_sel:WORD_1"
def act_read(r, t): return f"ds_read_u16_d16_hi v{r}, v{t} offset:{L_LUT}"
def fma4(a, q):
    h = q % 2
    a(f"s_set_gpr_idx_on s{S_K + q % 16}, 0xc")
    for odd in range(2):
        r = RR + 4 * ((q // 2) % 2) + 2 * odd
        for o in (0, 2):
            acc = ACC + 4 * odd + o; tp = TP + 8 * (q % 2) + 4 * odd + o
            a(f"v_pk_fma_f32 {vr(acc,2)}, {vr(r,2)}, {vr(tp,2)}, {vr(acc,2)} op_sel:[{h},0,0] op_sel_hi:[{h},1,1]")
    a("s_set_gpr_idx_off")
def meta_read_entry(a): a(f"ds_read_b32 v{ENT}, v{V_AENT}")
def meta_fix_entry(a, rec=True):
    a(f"""v_cmp_gt_u32 vcc, s{S_END}, v{V_POS}
          v_add_u32 v{V_POS}, 64, v{V_POS}
          v_add_u32 v{V_AENT}, 256, v{V_AENT}
          v_cndmask_b32 v{ENT}, 40, v{ENT}, vcc
          v_lshrrev_b32 v{T0}, 21, v{ENT}
          v_lshlrev_b32 v{T0}, 4, v{T0}
          v_lshlrev_b32 v{T0+1}, 3, v{ENT}""")
    if rec: meta_read_rec(a)
    a(f"""v_and_b32 v{T0+1}, 0xfffc00, v{T0+1}
          v_and_or_b32 v{ENT}, v{ENT}, 56, v{T0+1}""")
def meta_read_rec(a): a(f"ds_read_b128 {vr(RECN,4)}, v{T0} offset:{L_UREC}")
def w_mfma(i): return mfma4(WTMP + 4 * i, RECN, CGB + 2 * i, None)
def w_cvt(a, m):
    a(f"""v_cvt_pk_bf16_f32 v{WPK+2*m}, v{WTMP+m}, v{WTMP+4+m}
          v_cvt_pk_bf16_f32 v{WPK+2*m+1}, v{WTMP+8+m}, v{WTMP+12+m}""")

def step(a, opt, q, drain=None):
    D = opt.D; loads = drain is None
    eb = q + 2 - q % 2; odd = q % 2
    u, r = act_regs(eb, odd); t = TT + 2 * odd
    g, ur = (q + 6) // 4, (q + 6) % 4
    if ur % 2 == 0: a(p_mfma(g, ur // 2))
    elif 40 <= q < 48: a(w_mfma((q - 40) // 2))
    a(act_addr(t, u))
    if loads: a(f"s_waitcnt vmcnt({D - 2})")
    elif D - 2 - drain >= 0: a(f"s_waitcnt vmcnt({8 + D - 2 - drain})")
    a(t_mfma(q + 1, 0))
    if loads: a(f"v_readlane_b32 s{S_K + (q + D) % 16}, v{KEY if q + D < 64 else ENT}, {(q + D) % 64}")
    else:     a("s_nop 0")
    a(t_mfma(q + 1, 1))
    a(act_addr(t + 1, u + 1))
    a(act_read(r, t)); a(act_read(r + 1, t + 1))
    if q >= 60: w_cvt(a, q - 60)
    if loads:
        a(f"s_and_b32 s{S_OFF}, s{S_K + (q + D) % 16}, s{S_MASK}")
        a(f"buffer_load_dwordx4 {vr(XR + 4 * ((q + D) % 8), 4)}, v{V_L16}, {sr(S_X,4)}, s{S_OFF} offen")
    if q % 2 == 0: a("s_waitcnt lgkmcnt(2)")
    fma4(a, q)
    if loads: x_touch(a, opt, 100 + q, False)
    if loads and q == 8: meta_read_entry(a)
    if loads and q == 12: meta_fix_entry(a)
    if q == 57: a(f"v_mov_b32 v{EF}, v{RECN+2}\nv_mov_b32 v{EF+1}, v{RECN+3}\ns_nop 1")
    if loads and q == 63: a(f"v_mov_b32 v{KEY}, v{ENT}")

def body(a, opt):
    G = opt.gran
    for q in range(64):
        if q % G == 0: a(f"A_{q}:\ns_sub_u32 s{S_REM}, s{S_REM}, {G}\ns_cbranch_scc1 B_{q}")
        step(a, opt, q)
    if opt.stamps and not opt.only:
        STAMPS.extend(("batch 1", "batch 2")); k = S_ST + len(STAMPS) - 2
        a(f"""s_memrealtime s[98:99]
        s_waitcnt lgkmcnt(0)
        s_cmp_eq_u32 s{k}, 0
        s_cselect_b32 s99, 0, s98
        s_cselect_b32 s{k}, s98, s{k}
        s_cmp_eq_u32 s{k+1}, 0
        s_cselect_b32 s{k+1}, s99, s{k+1}""")
    if opt.probe == "batch 1":
        a("s_memrealtime s[98:99]\ns_waitcnt lgkmcnt(0)\ns_cmp_eq_u32 s93, 0\ns_cselect_b32 s93, s98, s93")
    a("s_branch A_0")
    for q in range(0, 64, G):
        a(f"B_{q}:")
        for k in range(8):
            a(f"buffer_load_dwordx4 {vr(WMIX+4*k,4)}, v{V_L16}, {sr(S_WS,4)}, s{S_WM + k // 4} offen offset:{(k%4)*1024} sc1")
        for i in range(opt.D):
            a(f"s_sub_u32 s{S_REMB}, s{S_REMB}, 1\ns_cbranch_scc1 MAIN_DONE")
            step(a, opt, (q + i) % 64, i)
        a("s_branch MAIN_DONE")

def x_touch(a, opt, where, guard=True):
    for spec in filter(None, opt.xt.split(",")):
        w, lo, hi = map(int, spec.split(":"))
        if w != where: continue
        if guard: a(f"s_cmp_lg_u32 s{S_W0}, 0\ns_cbranch_scc1 NO_X_TOUCH_{w}")
        if w >= 100: a(f"s_bitcmp1_b32 s3, {w % 32}\ns_cbranch_scc1 NO_X_TOUCH_{w}\ns_bitset1_b32 s3, {w % 32}")
        a(f"""s_lshl_b32 s{S_OFF}, s2, 3
        s_add_u32 s{S_OFF}, s{S_OFF}, s{S_WAVE}
        s_lshl_b32 s{S_OFF}, s{S_OFF}, 7
        s_add_u32 s{S_OFF}, s{S_OFF}, {lo << 18}
        v_min_u32 v{T0+1}, {(hi - lo - 1) * 16}, v{V_L16}
        v_lshl_add_u32 v{T0+1}, v{T0+1}, 14, s{S_OFF}
        buffer_load_dword v{V_FLAG+1}, v{T0+1}, {sr(S_X,4)}, 0 offen""")
        a(f"NO_X_TOUCH_{w}:")

DEAL = ([4, 2, 4, 7, 6, 3, 1, 5, 0, 4, 2, 6, 1, 7, 3, 5, 0, 4, 7, 3, 0, 1, 5, 6, 2, 5, 0, 1, 6, 7, 3, 2, 0, 5, 3, 1, 6, 7, 2, 4],
        [0, 2, 7, 1, 4, 6, 5, 3, 6, 3, 1, 7, 4, 0, 2, 5, 4, 3, 5, 6, 7, 1, 0, 2, 7, 5, 2, 4, 3, 6, 0, 1, 5, 1, 3, 6, 4, 2, 7, 0])
def deal_bytes():
    out = []
    for t in DEAL:
        assert sorted(t) == sorted(list(range(8)) * 5)
        out += [4 * (5 * w + t[:r].count(w)) for r, w in enumerate(t)] + [0] * 24
    return out

def zero_hist(a):
    a(f"""v_lshlrev_b32 v{T0+3}, 2, v0
    v_mov_b32 v{T0+4}, 0
    v_cmp_gt_u32 vcc, {40 * HS // 4}, v0
    s_and_saveexec_b64 {sr(S_T,2)}, vcc
    ds_write_b32 v{T0+3}, v{T0+4} offset:{L_HIST}
    s_mov_b64 exec, {sr(S_T,2)}""")

def kernel(opt):
    a = Asm(); D = opt.D
    st = lambda n: stamp(a, opt, n)
    a(f"""{KERN}:
    s_cmp_ge_u32 s2, 256
    s_cbranch_scc1 END""")
    if opt.probe: a("s_mov_b32 s93, 0\ns_memrealtime s[98:99]\ns_waitcnt lgkmcnt(0)\ns_mov_b32 s92, s98")
    if opt.stamps:
        for k in range(32): a(f"s_mov_b32 s{S_ST+k}, 0")
    st('start')
    a(f"""s_load_dwordx16 {sr(S_IN,16)}, s[0:1], 0
    s_load_dwordx2 {sr(S_WS,2)}, s[0:1], 80
    s_load_dwordx2 {sr(S_X,2)}, s[0:1], 0
    s_load_dwordx2 {sr(S_OUT,2)}, s[0:1], 64
    ; wave 7 of every workgroup takes 8 lines; the 32 workgroups with equal id % 8 cover 32 KiB
    s_getpc_b64 s[6:7]
CODE_HERE:
    v_lshrrev_b32 v{T0}, 6, v0
    s_lshr_b32 s5, s2, 3
    s_lshl_b32 s4, s5, 10
    v_readfirstlane_b32 s{S_WAVE}, v{T0}
    v_and_b32 v{T0+2}, 7, v0
    v_lshl_add_u32 v{T0+2}, v{T0+2}, 7, s4
    v_min_u32 v{T0+2}, END-CODE_HERE, v{T0+2}
    s_cmp_lg_u32 s{S_WAVE}, 7
    s_cbranch_scc1 NO_CODE_TOUCH
    global_load_dword v{V_FLAG+1}, v{T0+2}, s[6:7]
NO_CODE_TOUCH:
    s_mul_i32 s3, s2, {EP * 4}
    v_lshl_add_u32 v{T0}, v0, 4, s3
    v_and_b32 v{T0+2}, 63, v0
    v_lshlrev_b32 v{V_L16}, 4, v{T0+2}
    v_lshlrev_b32 v{CT+5}, 2, v{T0+2}
    s_cmp_ge_u32 s{S_WAVE}, 5
    s_cselect_b32 s3, {NP}, s2
    s_cmp_ge_u32 s3, {NP}
    s_waitcnt lgkmcnt(0)
    s_cbranch_scc1 NO_EDGES
    s_setprio 1
    global_load_dwordx4 {vr(D_,4)}, v{T0}, {sr(DST,2)}
    global_load_dwordx4 {vr(S_,4)}, v{T0}, {sr(SRC,2)}
NO_EDGES:""")
    if opt.wsoff: a(f"s_add_u32 s{S_WS}, s{S_WS}, {opt.wsoff << 20}\ns_addc_u32 s{S_WS+1}, s{S_WS+1}, 0")
    st('kernargs')
    for k in range(4): a(f"global_load_dword v{CT+k}, v{CT+5}, {sr(WRAD,2)} offset:{k*256}")
    a(f"""v_and_b32 v{CT+5}, 0x7f, v{CT+5}
    global_load_dword v{CT+4}, v{CT+5}, {sr(CG,2)}
    s_and_b32 s3, s2, 0x87
    s_cmp_eq_u32 s3, 0
    s_cselect_b32 s3, 64, 0
    s_add_u32 s3, s3, DEAL_TABLE-CODE_HERE
    v_add_u32 v{V_DEAL}, s3, v{T0+2}
    global_load_ubyte v{V_DEAL}, v{V_DEAL}, s[6:7]
    v_lshlrev_b32 v{T0+1}, 1, v{T0}
    v_lshlrev_b32 v{T0+3}, 3, v0
    v_mov_b32 v{T0+4}, 0
    v_mov_b32 v{T0+5}, 0
    ds_write_b64 v{T0+3}, {vr(T0+4,2)}
    s_and_b32 s4, s2, 7
    s_lshl_b32 s4, s4, 5
    s_lshr_b32 s5, s2, 3
    s_or_b32 s{S_BETA}, s4, s5
    v_mov_b32 v{V_ONE}, 1
    s_mov_b32 s{S_X+2}, {N * 1024}
    s_mov_b32 s{S_X+3}, 0x20000
    s_mov_b32 s{S_WS+2}, {WS_END if not opt.stamps else WS_STAMP + 0x80000}
    s_mov_b32 s{S_WS+3}, 0x20000
    s_mov_b32 s{S_OUT+2}, {N * 1024}
    s_mov_b32 s{S_OUT+3}, 0x20000
    s_mov_b32 s{S_MASK}, 0xfffffc00
    s_mov_b32 s{S_W0}, 0
    s_mov_b32 s{S_L2E}, 0xbfb8aa3b
    s_mov_b32 s{S_L2E+1}, 0xbfb8aa3b
    v_mul_u32_u24 v{V_SIG4}, 52, v{T0+2}
    v_lshrrev_b32 v{V_SIG4}, 8, v{V_SIG4}            ; lane / 5
    v_mul_u32_u24 v{V_SLOT4}, 5, v{V_SIG4}
    v_sub_u32 v{V_SLOT4}, v{T0+2}, v{V_SLOT4}        ; lane % 5
    v_lshlrev_b32 v{V_SIG4}, 2, v{V_SIG4}
    v_lshlrev_b32 v{V_SLOT4}, 2, v{V_SLOT4}
    s_mov_b32 s{S_SPIN}, {1 << 21}
    v_and_b32 v{V_GID}, 0xff, v0
    s_lshl_b32 s3, s{S_BETA}, 3
    s_add_u32 s3, s3, {WS_TAB}
    v_lshl_add_u32 v{V_POS}, v{V_GID}, 11, s3
    s_and_b32 s3, s2, 7
    s_lshl_b32 s3, s3, 7
    s_add_u32 s3, s3, {WS_RDY}
    s_lshl_b32 s8, s{S_WAVE}, 15
    s_add_u32 s3, s3, s8
    v_and_b32 v{V_FLAG}, 31, v0
    v_lshl_add_u32 v{V_FLAG}, v{V_FLAG}, 10, s3      ; flag of producer 32 wave + lane % 32
    v_mul_u32_u24 v{V_GID}, {EP}, v{V_GID}
    v_mul_u32_u24 v{LJ+10}, 0x8000, v{V_L16}
    v_lshl_add_u32 v{LJ+10}, v{T0+2}, 3, v{LJ+10}    ; lane * 8 * 0x10001""")
    for k in range(0, 48, 2): a(f"v_pk_mov_b32 {vr(ACC+k,2)}, {vr(T0+4,2)}, {vr(T0+4,2)}")
    a("s_waitcnt lgkmcnt(0)")
    load_epoch(a)
    a("s_barrier")
    phase1(a, opt)
    a(f"""s_cmp_ge_u32 s{S_WAVE}, 4
    s_cbranch_scc1 NOT_POLLER
    v_and_b32 v{T0+5}, 0x7ff, v{V_LEN}
    v_bfe_u32 v{V_LEN}, v{V_LEN}, 11, 11
    v_add_u32 v{V_GID}, v{V_GID}, v{T0+5}
    v_mov_b32 v{V_PRE}, v{V_LEN}""")
    if opt.keypf:
        a(f"""v_lshlrev_b32 v{T0+2}, 3, v{V_GID}
        buffer_load_dword v{V_FLAG+1}, v{T0+2}, {sr(S_WS,4)}, 0 offen sc1""")
    scan64(a, V_PRE)
    a(f"""s_lshl_b32 s3, s{S_WAVE}, 2
    v_mov_b32 v{T0+2}, s3
    v_add_u32 v{T0+3}, 1, v{V_PRE}
    v_sub_u32 v{V_PRE}, v{V_PRE}, v{V_LEN}
    s_mov_b32 exec_lo, 0
    s_mov_b32 exec_hi, 0x80000000
    ds_write_b32 v{T0+2}, v{T0+3} offset:{L_WT}
    s_mov_b64 exec, -1
    s_branch TOTALS
NOT_POLLER:
    s_cmp_eq_u32 s{S_WAVE}, 4
    s_cbranch_scc1 TOTALS
    v_mov_b32 v{T0+2}, {L_CNT}
    s_waitcnt vmcnt(0)
    s_mov_b64 exec, 1
    ds_add_rtn_u32 v{T0+2}, v{T0+2}, v{V_ONE}
    s_mov_b64 exec, -1
    s_waitcnt lgkmcnt(0)
    v_readfirstlane_b32 s3, v{T0+2}
    s_cmp_lg_u32 s3, 2
    s_cbranch_scc1 TOTALS""")
    flag_store(a, WS_RDY)
    st('recs flagged')
    a(f"""TOTALS:
    v_mov_b32 v{T0+2}, 0
TOTALS_SPIN:
    ds_read_b128 {vr(XR,4)}, v{T0+2} offset:{L_WT}
    s_waitcnt lgkmcnt(0)""")
    for k in range(4): a(f"v_readfirstlane_b32 s{4+k}, v{XR+k}")
    a(f"""s_min_u32 s3, s4, s5
    s_min_u32 s8, s6, s7
    s_min_u32 s3, s3, s8
    s_cmp_eq_u32 s3, 0
    s_cbranch_scc0 TOTALS_OK
    s_sub_u32 s{S_SPIN}, s{S_SPIN}, 1
    s_cbranch_scc0 TOTALS_SPIN
    s_endpgm
TOTALS_OK:
    s_add_u32 s5, s5, s4
    s_add_u32 s6, s6, s5
    s_add_u32 s7, s7, s6
    s_sub_u32 s{S_N}, s7, 4
    s_cmp_eq_u32 s{S_WAVE}, 1
    s_cselect_b32 s3, s4, 0
    s_cmp_eq_u32 s{S_WAVE}, 2
    s_cselect_b32 s3, s5, s3
    s_cmp_eq_u32 s{S_WAVE}, 3
    s_cselect_b32 s3, s6, s3
    s_sub_u32 s3, s3, s{S_WAVE}
    v_add_u32 v{V_PRE}, s3, v{V_PRE}
    s_cmp_lg_u32 s{S_WAVE}, 4
    s_cbranch_scc1 EPOCH_DONE
    s_cmp_lg_u32 s2, 0
    s_cbranch_scc1 EPOCH_DONE
    v_mov_b32 v{T0+4}, s{S_NLO}
    v_mov_b32 v{T0+2}, {WS_EPOCH}
    s_mov_b64 exec, 1
    global_store_dword v{T0+2}, v{T0+4}, {sr(S_WS,2)} sc0 sc1
    s_mov_b64 exec, -1
EPOCH_DONE:""")
    x_touch(a, opt, 3, False)
    st('prefix done')
    a(f"""ROUND:
    v_mov_b32 v{T0}, 0
    v_subrev_u32 v{T0+1}, s{S_W0}, v{V_PRE}
    v_mov_b32 v{T0+2}, v{V_GID}
    s_mov_b32 s3, {CAP}
    s_cmp_gt_u32 s{S_N}, {CAP}
    s_cbranch_scc1 EXPAND
    v_lshlrev_b32 v{T0+3}, 2, v{V_PRE}""")
    for j in range(16):
        a(f"v_cmpx_lt_u32 vcc, {j}, v{V_LEN}")
        if j % 2 == 0 and j >= 6: a("s_cbranch_execz EXPAND_DONE")
        a(f"ds_write_b32 v{T0+3}, v{T0+2} offset:{L_SENT + 4*j}\nv_add_u32 v{T0+2}, 1, v{T0+2}")
    a(f"""v_mov_b32 v{T0}, 16
    v_add_u32 v{T0+1}, 16, v{T0+1}
EXPAND:
    v_cmp_lt_u32 vcc, v{T0}, v{V_LEN}
    s_and_b64 exec, exec, vcc
    s_cbranch_execz EXPAND_DONE
    v_cmp_gt_u32 vcc, s3, v{T0+1}
    v_lshlrev_b32 v{T0+3}, 2, v{T0+1}
    s_and_saveexec_b64 {sr(S_T,2)}, vcc
    ds_write_b32 v{T0+3}, v{T0+2} offset:{L_SENT}
    s_mov_b64 exec, {sr(S_T,2)}
    v_add_u32 v{T0}, 1, v{T0}
    v_add_u32 v{T0+1}, 1, v{T0+1}
    v_add_u32 v{T0+2}, 1, v{T0+2}
    s_branch EXPAND
EXPAND_DONE:
    s_mov_b64 exec, -1
    s_sub_u32 s{S_NWIN}, s{S_N}, s{S_W0}
    s_min_u32 s{S_NWIN}, s{S_NWIN}, {CAP}
    v_lshlrev_b32 v{T0}, 2, v0""")
    for i in range(3):
        a(f"""v_add_u32 v{T0+1}, {512*i}, v0
              v_cmp_gt_u32 {sr(S_M+2*i,2)}, s{S_NWIN}, v{T0+1}""")
    x_touch(a, opt, 4)
    if opt.rdy == 3: poll_issue(a, ENT - 1, V_FLAG, 0)
    st('list built')
    a("s_waitcnt lgkmcnt(0)\ns_barrier")
    st('list barrier')
    G = XR
    KP = TP
    for i in range(3): a(f"ds_read_b32 v{G+i}, v{T0} offset:{L_SENT + 2048*i}")
    a(f"""s_mov_b32 s{S_T+2}, 5033                          ; 12 * 2^32 / (10000 * 1024)
    s_waitcnt lgkmcnt(0)""")
    for i in range(3):
        a(f"v_lshlrev_b32 v{G+4+i}, 3, v{G+i}\nv_lshlrev_b32 v{G+i}, 4, v{G+i}")
    a(f"""KEY_LOAD:
    s_mov_b64 exec, {sr(S_M+4,2)}
    s_cbranch_execz SKIP3
    buffer_load_dwordx2 {vr(KP+4,2)}, v{G+6}, {sr(S_WS,4)}, 0 offen sc1
SKIP3:""")
    for i in range(2):
        a(f"s_mov_b64 exec, {sr(S_M+2*i,2)}\nbuffer_load_dwordx2 {vr(KP+2*i,2)}, v{G+4+i}, {sr(S_WS,4)}, 0 offen sc1")
    a("s_mov_b64 exec, -1")
    if opt.rdy == 2: poll_issue(a, ENT - 1, V_FLAG, 0)
    x_touch(a, opt, 7, False)
    a(f"""s_cmp_lt_u32 s{S_WAVE}, 2
    s_cbranch_scc1 NO_LAST_JOB
    s_mov_b32 s{S_L2E}, 0xbfb8aa3b
    s_mov_b32 s{S_L2E+1}, 0xbfb8aa3b""")
    a(f"s_add_u32 s{S_JOB}, s{S_WAVE}, 26")
    lut_jobs(a, 1)
    a(f"NO_LAST_JOB:\ns_waitcnt vmcnt({(',' + opt.xt).count(',7:') + (opt.rdy == 2)})")
    for i in range(3): a(f"v_cmp_ne_u32 {sr(S_K+2*i,2)}, s{S_NLO}, v{KP+2*i+1}")
    for i in range(3): a(f"s_and_b64 {sr(S_K+2*i,2)}, {sr(S_K+2*i,2)}, {sr(S_M+2*i,2)}")
    a(f"""s_or_b64 {sr(S_K,2)}, {sr(S_K,2)}, {sr(S_K+2,2)}
    s_or_b64 {sr(S_K,2)}, {sr(S_K,2)}, {sr(S_K+4,2)}
    s_cbranch_scc0 KEYS_OK
    s_sub_u32 s{S_SPIN}, s{S_SPIN}, 1
    s_cbranch_scc0 KEY_LOAD
    s_endpgm
KEYS_OK:""")
    st('keys arrived')
    if opt.rdy == 0: poll_issue(a, TT, V_FLAG, 0)
    x_touch(a, opt, 1, False)
    for i in range(3):
        a(f"""v_mul_hi_u32 v{T0+1}, s{S_T+2}, v{KP+2*i}
              v_and_b32 v{G+8+i}, 63, v{KP+2*i}
              v_mul_u32_u24 v{G+8+i}, {HS}, v{G+8+i}
              v_lshl_add_u32 v{G+8+i}, v{T0+1}, 2, v{G+8+i}""")
    for i in range(3):
        a(f"s_mov_b64 exec, {sr(S_M+2*i,2)}\nds_add_rtn_u32 v{G+12+i}, v{G+8+i}, v{V_ONE} offset:{L_HIST}")
    a("s_mov_b64 exec, -1")
    for i in range(3):
        a(f"""v_add_u32 v{T0+1}, {512*i}, v0
              v_lshlrev_b32 v{T0+1}, 21, v{T0+1}
              v_lshrrev_b32 v{G+16+i}, 10, v{KP+2*i}
              v_lshl_or_b32 v{G+16+i}, v{G+16+i}, 7, v{T0+1}""")
    H = G + 20
    a(f"""v_lshrrev_b32 v{T0}, 4, v{V_L16}              ; lane
    v_min_u32 v{T0+1}, 39, v{T0}
    v_mul_u32_u24 v{T0+1}, {HS}, v{T0+1}
    v_cmp_gt_u32 {sr(S_T+4,2)}, 40, v{T0}
    v_sub_u32 v{T0+2}, 63, v{T0}
    s_mul_i32 s10, s{S_WAVE}, 5
    s_lshl_b32 s3, s{S_WAVE}, 10
    s_add_u32 s3, s3, {L_UREC}
    s_mov_b32 s9, {WS_REC}""")
    if opt.rdy >= 2: poll_check(a, "REC", ENT - 1, V_FLAG, 0, ENT)
    a("s_waitcnt lgkmcnt(0)\ns_barrier")
    st('hist done')
    if opt.rdy == 1: poll_issue(a, TT, V_FLAG, 0)
    def rec_dma():
        for i in range(2):
            a(f"""s_add_u32 m0, s3, {i*8192}
              s_mov_b64 exec, {sr(S_M+2*i,2)}
              buffer_load_dwordx4 v{G+i}, {sr(S_WS,4)}, s9 offen sc1 lds""")
        a(f"""s_add_u32 m0, s3, {2*8192}
    s_mov_b64 exec, {sr(S_M+4,2)}
    s_cbranch_execz SKIP3R
    buffer_load_dwordx4 v{G+2}, {sr(S_WS,4)}, s9 offen sc1 lds
SKIP3R:
    s_mov_b64 exec, -1""")
    for k in range(3): a(f"ds_read_b128 {vr(H+4*k,4)}, v{T0+1} offset:{L_HIST + 16*k}")
    if opt.rdy >= 2: rec_dma()
    a(f"""    s_waitcnt lgkmcnt(1)
    v_add3_u32 v{H}, v{H}, v{H+1}, v{H+2}
    v_add3_u32 v{H+3}, v{H+3}, v{H+4}, v{H+5}
    v_add3_u32 v{H}, v{H}, v{H+6}, v{H+7}
    s_waitcnt lgkmcnt(0)
    v_add3_u32 v{H+3}, v{H+3}, v{H+8}, v{H+9}
    v_add3_u32 v{H}, v{H}, v{H+10}, v{H+11}
    v_add_u32 v{H}, v{H}, v{H+3}
    v_lshl_or_b32 v{H+1}, v{H}, 6, v{T0+2}
    v_cndmask_b32 v{H+1}, 0, v{H+1}, {sr(S_T+4,2)}
    s_cmp_lg_u32 s{S_W0}, 0
    s_cbranch_scc1 DEALT""")
    for k in range(5):
        a(f"v_readlane_b32 s{S_NODE+k}, v{H+1}, s10")
        if k < 4: a("s_add_u32 s10, s10, 1")
    for k in range(5): a(f"v_cmp_lt_u32 {sr(S_K+2*k,2)}, s{S_NODE+k}, v{H+1}")
    for k in range(5): a(f"s_bcnt1_i32_b64 s{S_NODE+k}, {sr(S_K+2*k,2)}")
    for k in range(5): a(f"v_readlane_b32 s{S_NODE+k}, v{V_DEAL}, s{S_NODE+k}")
    a(f"""s_sub_u32 s10, s10, 4
    v_add_u32 v{T0+2}, s10, v{T0}""")
    for k in range(5): a(f"v_writelane_b32 v{T0+1}, s{S_NODE+k}, {k}")
    a(f"""
    s_mov_b64 exec, 0x1f
    ds_write_b32 v{T0+1}, v{T0+2} offset:{L_INV}
    s_mov_b64 exec, -1
DEALT:
    s_lshl_b32 s11, s10, 2
    v_add_u32 v{T0+1}, s11, v{V_SLOT4}
    v_lshlrev_b32 v{T0+5}, 2, v{T0}
""")
    if opt.rdy < 2: poll_check(a, "REC", TT, V_FLAG, 0, TT + 1, younger=("," + opt.xt).count(",1:"))
    a(f"""v_cmp_gt_u32 {sr(S_T,2)}, 60, v{T0}
    s_waitcnt lgkmcnt(0)
    s_barrier""")
    st('dealt')
    a(f"""ds_read_b32 v{T0+1}, v{T0+1} offset:{L_INV}
    ds_read_b32 v{T0+5}, v{T0+5} offset:{L_INV}
    v_lshlrev_b32 v{T0+4}, 17, v{V_SLOT4}             ; slot << 19""")
    if opt.rdy < 2: rec_dma()
    x_touch(a, opt, 2)
    a(f"""    s_waitcnt lgkmcnt(1)
    v_mul_u32_u24 v{T0+2}, {HS}, v{T0+1}
    v_add_u32 v{T0+2}, v{T0+2}, v{V_SIG4}
    ds_read_b32 v{T0+3}, v{T0+2} offset:{L_HIST}
    s_waitcnt lgkmcnt(1)
    v_lshlrev_b32 v{T0+5}, 2, v{T0+5}
    ds_bpermute_b32 v{H+2}, v{T0+5}, v{H}""")
    for k in range(5): a(f"v_readlane_b32 s{S_NODE+k}, v{T0+1}, {k}")
    a(f"""s_waitcnt lgkmcnt(0)
    v_cndmask_b32 v{T0+3}, 0, v{T0+3}, {sr(S_T,2)}
    v_cndmask_b32 v{H+2}, 0, v{H+2}, {sr(S_T+4,2)}
    v_sub_u32 v{T0+4}, v{T0+4}, v{T0+3}
    v_mov_b32 v{H+3}, v{H+2}""")
    scan64(a, T0 + 3, H + 3)
    a(f"""v_sub_u32 v{H+3}, v{H+3}, v{H+2}
    v_add_u32 v{T0+4}, v{T0+4}, v{T0+3}
    v_readlane_b32 s{S_START}, v{H+3}, s10
    v_readlane_b32 s{S_END}, v{T0+3}, 63
    s_nop 0
    v_add_u32 v{T0+4}, s{S_START}, v{T0+4}
    s_mov_b64 exec, {sr(S_T,2)}
    ds_write_b32 v{T0+2}, v{T0+4} offset:{L_HIST}
    s_mov_b64 exec, -1
    v_add_u32 v{V_POS}, s{S_START}, v{T0}
    v_lshlrev_b32 v{V_AENT}, 2, v{V_POS}
    v_add_u32 v{V_AENT}, {L_SENT}, v{V_AENT}
    s_max_u32 s10, s{S_END}, {D}
    s_add_u32 s10, s10, {opt.gran - 1 - D}
    s_and_b32 s{S_REM}, s10, {-opt.gran}
    s_max_u32 s10, s{S_END}, s{S_REM}
    s_sub_u32 s{S_REMB}, s10, s{S_REM}
    s_add_u32 s{S_END}, s{S_END}, s{S_START}""")
    a("s_waitcnt lgkmcnt(0)\ns_barrier")
    st('bases')
    for i in range(3): a(f"ds_read_b32 v{G+8+i}, v{G+8+i} offset:{L_HIST}")
    for i in range(3):
        a(f"""s_waitcnt lgkmcnt({2-i})
              v_lshrrev_b32 v{T0+1}, 16, v{G+8+i}
              v_and_b32 v{G+8+i}, 0xffff, v{G+8+i}
              v_or_b32 v{G+16+i}, v{G+16+i}, v{T0+1}
              v_add_lshl_u32 v{G+8+i}, v{G+8+i}, v{G+12+i}, 2""")
    for i in range(3):
        a(f"""s_mov_b64 exec, {sr(S_M+2*i,2)}
              ds_write_b32 v{G+8+i}, v{G+16+i} offset:{L_SENT}""")
    a("s_mov_b64 exec, -1")
    a("s_waitcnt lgkmcnt(0)")
    if not opt.xpre: a("s_waitcnt vmcnt(0)")
    a("s_barrier")
    st('sorted')
    if opt.stamps: a(f"s_memtime s[100:101]\ns_waitcnt lgkmcnt(0)\ns_mov_b32 s{S_ST+30}, s100")
    if opt.prio == 1: a(f"s_cmp_ge_u32 s{S_WAVE}, 4\ns_cbranch_scc0 PRIO_SET\ns_setprio 1\nPRIO_SET:")
    meta_read_entry(a)
    a(f"""s_mov_b32 s3, 0
    s_and_b32 s{S_WM}, s{S_WAVE}, 3
    s_lshl_b32 s{S_WM}, s{S_WM}, 13
    s_add_u32 s{S_WM}, s{S_WM}, {WS_WMIX}
    s_add_u32 s{S_WM+1}, s{S_WM}, 4096""")
    for k in range(8): a(f"v_mov_b32 v{RR+k}, 0")
    a("s_waitcnt lgkmcnt(0)")
    meta_fix_entry(a, False)
    a("s_nop 0")
    def first_rows(lo, hi):
        for e in range(lo, hi):
            a(f"""v_readlane_b32 s{S_K+e}, v{ENT}, {e}
                  s_and_b32 s{S_OFF}, s{S_K+e}, s{S_MASK}
                  buffer_load_dwordx4 {vr(XR+4*e,4)}, v{V_L16}, {sr(S_X,4)}, s{S_OFF} offen""")
    if opt.xpre:
        first_rows(0, opt.xpre)
        a(f"s_waitcnt vmcnt({opt.xpre})")
        st('recs landed')
        a("s_barrier")
    meta_read_rec(a)
    first_rows(opt.xpre, D)
    a(f"v_mov_b32 v{KEY}, v{ENT}")
    a(f"""s_waitcnt lgkmcnt(0)
    v_mov_b32 v{EF}, v{RECN+2}
    v_mov_b32 v{EF+1}, v{RECN+3}""")
    for i in range(4): a(w_mfma(i))
    a(p_mfma(0, 0)); a(p_mfma(0, 1)); a(p_mfma(1, 0))
    a("s_nop 1")
    for m in range(4): w_cvt(a, m)
    for odd in range(2):
        u, r = act_regs(0, odd)
        for h in range(2): a(act_addr(TT + 2 * odd + h, u + h))
        for h in range(2): a(act_read(r + h, TT + 2 * odd + h))
    a(f"s_waitcnt vmcnt({D-1})")
    st('first row')
    a(t_mfma(0, 0)); a(t_mfma(0, 1))
    body(a, opt)
    a(f"""MAIN_DONE:
    s_add_u32 s{S_W0}, s{S_W0}, {CAP}
    s_cmp_ge_u32 s{S_W0}, s{S_N}
    s_cbranch_scc1 ALL_DONE
    s_waitcnt vmcnt(0) lgkmcnt(0)""")
    zero_hist(a)
    a("s_waitcnt lgkmcnt(0)\ns_barrier\ns_branch ROUND\nALL_DONE:")
    st('main done')
    if opt.stamps: a(f"s_memtime s[100:101]\ns_waitcnt lgkmcnt(0)\ns_sub_u32 s{S_ST+30}, s100, s{S_ST+30}")
    PK = WPK
    for s in range(5):
        for o in range(4): a(f"v_cvt_pk_bf16_f32 v{PK+4*s+o}, v{ACC+8*s+o}, v{ACC+8*s+4+o}")
    a(f"""v_lshrrev_b32 v{T0}, 2, v{V_L16}
    v_add_u32 v{T0}, {L_AGG}, v{T0}""")
    for s in range(5):
        a(f"s_mul_i32 s{S_T}, s{S_NODE+s}, {4 * AGG_RS}\nv_add_u32 v{UU+s}, s{S_T}, v{T0}")
    a(f"""v_lshrrev_b32 v{T0+1}, 4, v{V_L16}            ; lane
    v_and_b32 v{T0+2}, 15, v{T0+1}
    v_lshrrev_b32 v{T0+3}, 4, v{T0+1}                 ; lane >> 4
    s_lshr_b32 s{S_T}, s{S_WAVE}, 2
    s_mul_i32 s{S_T+1}, s{S_T}, {80 * AGG_RS}
    s_add_u32 s{S_T+1}, s{S_T+1}, {L_AGG}
    v_mul_u32_u24 v{T0}, {AGG_RS}, v{T0+2}
    v_lshl_add_u32 v{T0}, v{T0+3}, 4, v{T0}
    v_add_u32 v{T0}, s{S_T+1}, v{T0}
    s_mul_i32 s{S_T}, s{S_T}, {20 << 18}
    s_lshl_b32 s{S_T+1}, s{S_BETA}, 10
    s_add_u32 s{S_T}, s{S_T}, s{S_T+1}
    s_and_b32 s{S_T+1}, s{S_WAVE}, 3
    s_lshl_b32 s{S_T+1}, s{S_T+1}, 8
    s_add_u32 s{S_T}, s{S_T}, s{S_T+1}
    v_lshlrev_b32 v{T0+3}, 18, v{T0+3}
    v_lshl_add_u32 v{T0+3}, v{T0+2}, 4, v{T0+3}
    v_add_u32 v{T0+3}, s{S_T}, v{T0+3}
    s_waitcnt lgkmcnt(0)
    s_barrier""")
    st('all main done')
    for s in range(5):
        for o in range(4): a(f"ds_write_b32 v{UU+s}, v{PK+4*s+o} offset:{o*AGG_RS}")
    a("s_waitcnt vmcnt(0) lgkmcnt(0)\ns_barrier")
    st('agg in LDS')
    AF = XR
    def rd(t):
        for ks in range(4): a(f"ds_read_b128 {vr(AF+16*(t%2)+4*ks,4)}, v{T0} offset:{t*16*AGG_RS + ks*64}")
    def pack_store(t):
        d = ACC + 8 * t; p = RR + 4 * (t % 2)
        for j in range(4): a(f"v_cvt_pk_bf16_f32 v{p+j}, v{d+2*j}, v{d+2*j+1}")
        a(f"buffer_store_dwordx4 {vr(p,4)}, v{T0+3}, {sr(S_OUT,4)}, 0 offen {opt.outst}")
        if t < 4: a(f"v_add_u32 v{T0+3}, {4 << 18}, v{T0+3}")
    rd(0)
    for t in range(5):
        if t < 4: rd(t + 1)
        for ks in range(4):
            a(f"s_waitcnt lgkmcnt({(4 if t < 4 else 0) + 3 - ks})")
            for j in range(2):
                d = ACC + 8 * t + 4 * j
                a(f"v_mfma_f32_16x16x32_bf16 {vr(d,4)}, {vr(AF+16*(t%2)+4*ks,4)}, {vr(WMIX+16*j+4*ks,4)}, " + ("0" if ks == 0 else vr(d, 4)))
            if ks == 3 and t > 0: pack_store(t - 1)
    a("s_nop 7")
    pack_store(4)
    st('end')
    if opt.probe:
        a(f"""s_cmp_eq_u32 s93, 0
        s_cselect_b32 s93, s92, s93
        s_sub_u32 s93, s93, s92
        s_mul_i32 s93, s93, 4
        s_add_u32 s92, s92, s93
        s_add_u32 s92, s92, 6000
        HOLD_SPIN:
        s_memrealtime s[98:99]
        s_waitcnt lgkmcnt(0)
        s_sub_u32 s98, s98, s92
        s_cmp_lt_i32 s98, 0
        s_cbranch_scc1 HOLD_SPIN""")
    if opt.stamps:
        a("s_waitcnt vmcnt(0)")
        st('stores done 2')
        a(f"""s_lshl_b32 s10, s2, 3
        s_add_u32 s10, s10, s{S_WAVE}
        s_lshl_b32 s10, s10, 7
        s_add_u32 s10, s10, {WS_STAMP}
        v_mov_b32 v{T0}, s10
        s_sub_u32 s{S_ST+31}, s{S_END}, s{S_START}
        s_sub_u32 s{S_ST+29}, {1 << 21}, s{S_SPIN}""")
        for k in range(32): a(f"v_mov_b32 v{XR+k}, s{S_ST+k}")
        for k in range(8): a(f"buffer_store_dwordx4 {vr(XR+4*k,4)}, v{T0}, {sr(S_WS,4)}, 0 offen offset:{16*k}")
    a("END:\ns_endpgm")
    a(".p2align 6\n.type DEAL_TABLE,@object\nDEAL_TABLE:\n.byte " + ", ".join(map(str, deal_bytes())) + "\n.size DEAL_TABLE, 128")
    return a.text()

def generate(opt):
    here = os.path.dirname(os.path.abspath(__file__))
    out = open(here + "/header.txt").read()
    out += f"; @launch grid=(256,1,1) block=(512,1,1) lds={LDS_BYTES}\n"
    out += f'.amdgcn_target "amdgcn-amd-amdhsa--gfx950"\n.text\n.globl {KERN}\n.p2align 8\n.type {KERN},@function\n'
    out += kernel(opt)
    out += f""".section .rodata,"a"
.p2align 6
.amdhsa_kernel {KERN}
  .amdhsa_next_free_vgpr {NVGPR}
  .amdhsa_next_free_sgpr {NSGPR if opt.stamps or opt.probe else 66}
  .amdhsa_accum_offset {(NVGPR + 3) // 4 * 4}
  .amdhsa_group_segment_fixed_size 0
  .amdhsa_kernarg_size 88
  .amdhsa_user_sgpr_count 2
  .amdhsa_user_sgpr_kernarg_segment_ptr 1
  .amdhsa_system_sgpr_workgroup_id_x 1
  .amdhsa_float_denorm_mode_32 3
.end_amdhsa_kernel
"""
    return out

def options(argv):
    p = argparse.ArgumentParser()
    p.add_argument("-o", default="/code/" + NAME + ".s")
    p.add_argument("--stamps", action="store_true")
    p.add_argument("--probe", default="")
    p.add_argument("--D", type=int, default=6)
    p.add_argument("--l2", type=int, default=20)
    p.add_argument("--rdy", type=int, default=0)
    p.add_argument("--prio", type=int, default=0)
    p.add_argument("--split", type=int, default=0)
    p.add_argument("--only", default="")
    p.add_argument("--wsoff", type=int, default=0)
    p.add_argument("--gran", type=int, default=4)
    p.add_argument("--late", type=int, default=53)
    p.add_argument("--xpre", type=int, default=2)
    p.add_argument("--xt", default="3:0:16")
    p.add_argument("--lsplit", type=int, default=5)
    p.add_argument("--keypf", type=int, default=1)
    p.add_argument("--k1st", default="sc0 sc1")
    p.add_argument("--outst", default="sc0 sc1")
    return p.parse_args(argv)

if __name__ == "__main__":
    opt = options(sys.argv[1:])
    open(opt.o, "w").write(generate(opt))
    if opt.stamps: open(opt.o + ".names", "w").write(repr(STAMPS))
    import subprocess
    here = os.path.dirname(os.path.abspath(__file__))
    r = subprocess.run([sys.executable, here + "/hazards.py", opt.o], capture_output=True, text=True).stdout
    if " 0 finding" not in r: print(r)
    r = subprocess.run([sys.executable, here + "/../cdna_unwritten_srd_check.py", opt.o], capture_output=True, text=True)
    if r.returncode: print(r.stdout, r.stderr)
```

```python
import sys, argparse, os

NAME = "gather_scatter__tensor_product_equiv_tfn__graph"
KERN = NAME + "_kernel"
N, E, C = 10000, 320000, 128
NP, EP = 250, 1280
WS_KEY = 0
WS_REC = 0x280000
WS_WMIX = 0x771000
WS_TAB = 0x780000
WS_RDY = WS_TAB + 256 * 2048
WS_EPOCH = WS_RDY + 256 * 1024
WS_END = WS_EPOCH + 128
WS_STAMP = 0x900000
CAP = 1472

class Asm:
    def __init__(self): self.l = []
    def __call__(self, s):
        for line in s.strip("\n").split("\n"):
            line = line.strip()
            if not line: continue
            self.l.append(line if line.endswith(":") else "    " + line)
    def text(self): return "\n".join(self.l) + "\n"

def vr(a, n=1): return f"v{a}" if n == 1 else f"v[{a}:{a+n-1}]"
def sr(a, n=1): return f"s{a}" if n == 1 else f"s[{a}:{a+n-1}]"

SCAN_STEPS = ["row_shr:1 row_mask:0xf bank_mask:0xf bound_ctrl:0", "row_shr:2 row_mask:0xf bank_mask:0xf bound_ctrl:0",
              "row_shr:4 row_mask:0xf bank_mask:0xf bound_ctrl:0", "row_shr:8 row_mask:0xf bank_mask:0xf bound_ctrl:0",
              "row_bcast:15 row_mask:0xa bank_mask:0xf", "row_bcast:31 row_mask:0xc bank_mask:0xf"]
def scan64(a, *regs):
    for c in SCAN_STEPS:
        a("s_nop 1" if len(regs) == 1 else "s_nop 0")
        for v in regs: a(f"v_add_u32_dpp v{v}, v{v}, v{v} {c}")

NSB, HS = 12, 48
L_HIST = 0; L_INV = 40 * HS; L_WT = L_INV + 256; L_CNT = L_WT + 64
L_SENT = L_WT + 128
L_UREC = L_SENT + CAP * 4
L_CG = L_UREC + CAP * 16
L_LUT = 32768
L1_HIST = L_SENT; L1_BASE = L1_HIST + 1024; L1_SREC = L1_BASE + 1024
L1_SKEY = L_LUT + 53 * 1024
assert L_CG + 128 <= L_LUT and L1_SREC + EP * 16 <= L_LUT and L1_BASE <= 4096
L_AGG = L_LUT; AGG_RS = 288
LDS_BYTES = L_LUT + 131072

V_L16 = 1
V_LEN, V_PRE, V_GID = 2, 3, 4
V_AENT, V_POS = 5, 6
V_SLOT4, V_SIG4, V_ONE = 7, 14, 15
V_DEAL = 174
V_FLAG = 166
T0 = 8
ACC = 16; XR = 64; TP = 96; UU = 112; RR = 128; TT = 136; WPK = 140; WTMP = 148
KEY = 164; ENT = 165; RECN = 168; EF = 172; CONST = 176; WMIX = 188
NVGPR = 220
PE, PO, CGB = CONST, CONST + 2, CONST + 4
LJ = 128
S_NODE = 4
S_X, S_WS, S_OUT = 12, 16, 20
S_BETA, S_WAVE, S_N, S_W0, S_NWIN, S_START, S_END, S_REM, S_REMB, S_OFF, S_MASK = range(24, 35)
S_SPIN = 35
S_M = 36
S_T = 42
S_K = 48
S_IN = 40
S_JOB, S_JCNT = 62, 63
S_NLO, S_NHI = 64, 65
S_WM = 10
S_L2E = 10
S_ST = 66
NSGPR = 102

STAMPS = []
def stamp(a, opt, name):
    if opt.probe == name: a("s_memrealtime s[98:99]\ns_waitcnt lgkmcnt(0)\ns_mov_b32 s93, s98")
    if not opt.stamps: return
    if opt.only and name not in opt.only.split(",") + ["start", "sorted", "main done", "stores done 2"]: return
    if name not in STAMPS: STAMPS.append(name)
    a(f"s_memrealtime s[98:99]\ns_waitcnt lgkmcnt(0)\ns_mov_b32 s{S_ST + STAMPS.index(name)}, s98")

S_RET = 6
def lut_sub(a):
    J, Ex, R, P = LJ, LJ + 8, LJ + 16, LJ + 24
    a(f"""LUT_SUB:
    s_lshl_b32 s3, s{S_JOB}, 25
    s_add_u32 s3, s3, 0x8000
    v_lshl_add_u32 v{J}, v{V_L16}, 15, s3""")
    for k in range(1, 8): a(f"v_add_u32 v{J+k}, 0x10000, v{J+k-1}")
    for k in range(0, 8, 2): a(f"v_pk_mul_f32 {vr(Ex+k,2)}, {vr(J+k,2)}, {sr(S_L2E,2)}")
    for k in range(8): a(f"v_exp_f32 v{Ex+k}, v{Ex+k}")
    a(f"s_lshl_b32 s3, s{S_JOB}, 10")
    for k in range(0, 8, 2): a(f"v_pk_add_f32 {vr(R+k,2)}, {vr(Ex+k,2)}, 1.0 op_sel_hi:[1,0]")
    for k in range(8): a(f"v_rcp_f32 v{R+k}, v{R+k}")
    a(f"v_add_u32 v{P+8}, s3, v{V_L16}")
    for k in range(0, 8, 2): a(f"v_pk_mul_f32 {vr(J+k,2)}, {vr(J+k,2)}, {vr(R+k,2)}")
    a(f"v_add_u32 v{P+9}, 0x10000, v{P+8}")
    for k in range(0, 8, 2): a(f"v_pk_mul_f32 {vr(Ex+k,2)}, {vr(J+k,2)}, {vr(Ex+k,2)} neg_lo:[1,0] neg_hi:[1,0]")
    for k in range(4): a(f"v_cvt_pk_bf16_f32 v{P+k}, v{J+2*k}, v{J+2*k+1}")
    for k in range(4): a(f"v_cvt_pk_bf16_f32 v{P+4+k}, v{Ex+2*k}, v{Ex+2*k+1}")
    a(f"""ds_write_b128 v{P+8}, {vr(P,4)} offset:{L_LUT}
    ds_write_b128 v{P+9}, {vr(P+4,4)} offset:{L_LUT}
    s_add_u32 s{S_JOB}, s{S_JOB}, 1
    s_sub_u32 s{S_JCNT}, s{S_JCNT}, 1
    s_cmp_lg_u32 s{S_JCNT}, 0
    s_cbranch_scc1 LUT_SUB
    s_setpc_b64 {sr(S_RET,2)}""")
def lut_jobs(a, count): a(f"s_mov_b32 s{S_JCNT}, {count}\ns_call_b64 {sr(S_RET,2)}, LUT_SUB")

def lut_plain(a, tag, region, last=None, cont=False):
    P = LJ
    for name, first, end, bias in (("L", 1, 24, 0x20000 - 0x800080), ("H", 34, 62, 0x20000)):
        if name != region: continue
        last = last or end
        if cont: a(f"s_cmp_gt_u32 s{S_JOB}, {last}\ns_cbranch_scc1 LUTP_END_{tag}")
        else: a(f"s_add_u32 s{S_JOB}, s{S_WAVE}, {first}")
        if name == "H" and not cont:
            for k in range(4): a(f"v_mov_b32 v{P+4+k}, 0x80008000")
        a(f"""LUTP_{tag}{name}:
        s_mul_i32 s3, s{S_JOB}, {512 * 0x10001}
        s_add_u32 s3, s3, {bias & 0xffffffff}
        v_add_u32 v{P}, s3, v{P+10}
        s_lshl_b32 s3, s{S_JOB}, 10
        v_add_u32 v{P+8}, s3, v{V_L16}""")
        for k in range(1, 4): a(f"v_add_u32 v{P+k}, {k * 0x20002}, v{P}")
        a(f"v_add_u32 v{P+9}, 0x10000, v{P+8}")
        if name == "L":
            for k in range(4): a(f"v_or_b32 v{P+4+k}, 0x80008000, v{P+k}")
        a(f"""ds_write_b128 v{P+8}, {vr(P,4)} offset:{L_LUT}
        ds_write_b128 v{P+9}, {vr(P+4,4)} offset:{L_LUT}
        s_add_u32 s{S_JOB}, s{S_JOB}, {5 if name == "L" else 4}
        s_cmp_le_u32 s{S_JOB}, {last}
        s_cbranch_scc1 LUTP_{tag}{name}
        LUTP_END_{tag}:""")

def flag_store(a, base):
    a(f"""s_lshl_b32 s3, s2, 10
    s_add_u32 s3, s3, {base}
    v_add_u32 v{T0+1}, s3, v{V_L16}
    v_mov_b32 v{T0+2}, s{S_NLO}
    v_mov_b32 v{T0+3}, s{S_NHI}
    v_mov_b32 v{T0+4}, s{S_NLO}
    v_mov_b32 v{T0+5}, s{S_NHI}
    global_store_dwordx4 v{T0+1}, {vr(T0+2,4)}, {sr(S_WS,2)} sc0 sc1
    s_nop 1""")

def poll_issue(a, dst, addr, soff):
    a(f"buffer_load_dwordx2 {vr(dst,2)}, v{addr}, {sr(S_WS,4)}, {soff} offen sc1")
def poll_check(a, tag, dst, addr, soff, hi, pre="", younger=0):
    if younger: a(f"s_waitcnt vmcnt({younger})\ns_branch CHECK_{tag}")
    a(f"""POLL_{tag}:
    s_waitcnt vmcnt(0)
    CHECK_{tag}:
    {pre}
    v_cmp_ne_u32 vcc, s{S_NLO}, v{dst + 1 if pre else dst}
    v_cmp_ne_u32 {sr(S_T,2)}, s{S_NHI}, v{hi}
    s_or_b64 vcc, vcc, {sr(S_T,2)}
    s_and_b64 exec, exec, vcc
    s_cbranch_execz POLLED_{tag}
    s_sub_u32 s{S_SPIN}, s{S_SPIN}, 1
    s_cbranch_scc1 END""")
    poll_issue(a, dst, addr, soff)
    a(f"""s_branch POLL_{tag}
    POLLED_{tag}:
    s_mov_b64 exec, -1""")

def load_epoch(a):
    a(f"""s_add_u32 s4, s{S_WS}, {WS_EPOCH}
    s_addc_u32 s5, s{S_WS+1}, 0
    s_load_dwordx2 {sr(S_NLO,2)}, s[4:5], 0""")
def make_tag(a):
    a(f"""s_add_u32 s{S_NLO}, s{S_NLO}, 1
    s_and_b32 s{S_NHI}, s{S_NHI}, 0x3ff""")

def scan256(a, H_, O_):
    a(f"""v_add_u32 v{T0+2}, v{H_}, v{H_+1}
    v_add3_u32 v{T0+2}, v{T0+2}, v{H_+2}, v{H_+3}
    v_mov_b32 v{T0+3}, v{T0+2}""")
    scan64(a, T0 + 3)
    a(f"""v_sub_u32 v{O_}, v{T0+3}, v{T0+2}
    v_add_u32 v{O_+1}, v{O_}, v{H_}
    v_add_u32 v{O_+2}, v{O_+1}, v{H_+1}
    v_add_u32 v{O_+3}, v{O_+2}, v{H_+2}""")

SRC, DST, YY, EFP, WRAD, CG, WMX = S_IN + 2, S_IN + 4, S_IN + 6, S_IN + 8, S_IN + 10, S_IN + 12, S_IN + 14
D_, S_, Y_, F_, B_, R_, H_, O_, TB = 64, 68, 72, 80, 88, 92, 96, 100, 108
CT = WMIX
def const_sub(a):
    a(f"""CONST_SUB:
    ds_write_b32 v{CT+5}, v{CT+4} offset:{L_CG}
    v_lshrrev_b32 v{CT+5}, 3, v{V_L16}
    v_and_b32 v{CT+5}, 24, v{CT+5}
    s_mov_b32 s4, 0x05040100
    s_mov_b32 s5, 0x07060302""")
    for i in range(4): a(f"ds_read_b64_tr_b16 {vr(CGB+2*i,2)}, v{CT+5} offset:{L_CG + 32*i}")
    for u in range(2):
        a(f"v_perm_b32 v{PE+u}, v{CT+1+2*u}, v{CT+2*u}, s4\nv_perm_b32 v{PO+u}, v{CT+1+2*u}, v{CT+2*u}, s5")
    a(f"s_setpc_b64 {sr(S_RET,2)}")
def const_finish(a): a(f"s_call_b64 {sr(S_RET,2)}, CONST_SUB")

def phase1(a, opt):
    st = lambda n: stamp(a, opt, n)
    WS = sr(S_WS, 2); FL = opt.k1st
    a(f"""s_cmp_ge_u32 s{S_WAVE}, 5
    s_cbranch_scc1 HELP""")
    lut_plain(a, "W0", "L", last=opt.lsplit)
    a(f"""s_cmp_ge_u32 s2, {NP}
    s_cbranch_scc1 AUX_LOAD
    global_load_dwordx4 {vr(Y_,4)}, v{T0+1}, {sr(YY,2)}
    global_load_dwordx4 {vr(Y_+4,4)}, v{T0+1}, {sr(YY,2)} offset:16
    global_load_dwordx4 {vr(F_,4)}, v{T0+1}, {sr(EFP,2)}
    global_load_dwordx4 {vr(F_+4,4)}, v{T0+1}, {sr(EFP,2)} offset:16
LOADED:
    s_cmp_ge_u32 s2, {NP}
    s_cbranch_scc1 AUX""")
    st('jobs A')
    a("s_waitcnt vmcnt(11)")
    st('dst arrived')
    for k in range(4):
        a(f"""v_and_b32 v{B_+k}, 0xff, v{D_+k}
              v_lshlrev_b32 v{B_+k}, 2, v{B_+k}
              ds_add_rtn_u32 v{R_+k}, v{B_+k}, v{V_ONE} offset:{L1_HIST}""")
    a("s_waitcnt vmcnt(10)")
    for k in range(4):
        a(f"""v_lshrrev_b32 v{D_+k}, 8, v{D_+k}
              v_lshl_or_b32 v{TB+2*k}, v{S_+k}, 10, v{D_+k}""")
    a(f"""s_mov_b32 s9, {L1_SKEY}
    s_waitcnt lgkmcnt(0)
    s_barrier
    ds_read_b128 {vr(H_,4)}, v{V_L16} offset:{L1_HIST}""")
    make_tag(a)
    for k in range(4): a(f"v_mov_b32 v{TB+2*k+1}, s{S_NLO}")
    a("s_waitcnt lgkmcnt(0)")
    scan256(a, H_, O_)
    a(f"ds_write_b128 v{V_L16}, {vr(O_,4)} offset:{L1_BASE}")
    for k in range(4): a(f"ds_read_b32 v{H_+k}, v{B_+k} offset:{L1_BASE}")
    for k in range(4):
        a(f"""s_waitcnt lgkmcnt(3)
              v_add_u32 v{R_+k}, v{R_+k}, v{H_+k}
              v_lshl_add_u32 v{B_+k}, v{R_+k}, 3, s9
              ds_write_b64 v{B_+k}, {vr(TB+2*k,2)}""")
    for k in range(4):
        a(f"v_lshlrev_b32 v{R_+k}, 4, v{R_+k}\nv_add_u32 v{R_+k}, {L1_SREC}, v{R_+k}")
    a("s_waitcnt lgkmcnt(0)\ns_barrier")
    st('keys binned')
    a("s_waitcnt vmcnt(0)")
    for k in range(4):
        a(f"ds_write2_b64 v{R_+k}, {vr(Y_+2*k,2)}, {vr(F_+2*k,2)} offset0:0 offset1:1")
    st('recs binned')
    a("BINNED:\ns_setprio 0")
    if opt.late:
        a(f"s_waitcnt lgkmcnt(0)\ns_barrier\nv_mov_b32 v{V_LEN}, 0")
        const_finish(a)
        lut_plain(a, "W", "L", cont=True)
        a(f"s_cmp_eq_u32 s{S_WAVE}, 4\ns_cbranch_scc1 WAVE4")
        lut_plain(a, "U", "H", last=opt.late)
        if opt.later:
            a(f"s_add_u32 s{S_JOB}, s{S_WAVE}, 28")
            lut_jobs(a, 1)
            a(f"s_mov_b32 s{S_JOB}, 63")
        poll_issue(a, V_LEN, V_POS, 0)
        if opt.split: a("s_barrier")
        st('tab issued')
        lut_plain(a, "V", "H", cont=True)
    else:
        const_finish(a)
        if opt.l2 > opt.lsplit: lut_plain(a, "W1", "L", last=opt.l2, cont=True)
        a(f"""v_mov_b32 v{V_LEN}, 0
        s_cmp_eq_u32 s{S_WAVE}, 4
        s_cbranch_scc1 NO_TAB""")
        poll_issue(a, V_LEN, V_POS, 0)
        a("NO_TAB:\ns_waitcnt lgkmcnt(0)\ns_barrier")
        st('tab issued')
        lut_plain(a, "W", "L", cont=True)
        a(f"s_cmp_eq_u32 s{S_WAVE}, 4\ns_cbranch_scc1 WAVE4")
        lut_plain(a, "V", "H")
    st('jobs B')
    poll_check(a, "TAB", V_LEN, V_POS, 0, T0 + 3, f"v_lshrrev_b32 v{T0+3}, 22, v{V_LEN}")
    st('tab arrived')
    a("s_branch TAB_DONE")
    lut_sub(a)
    const_sub(a)
    a(f"""HELP:
    s_cmp_eq_u32 s{S_WAVE}, 6                       ; jobs 0 / 25 / 63
    s_cselect_b32 s{S_JOB}, 25, 0
    s_cmp_eq_u32 s{S_WAVE}, 7
    s_cselect_b32 s{S_JOB}, 63, s{S_JOB}""")
    lut_jobs(a, 1)
    st('help jobs')
    a(f"""v_mov_b32 v{T0+2}, {0x7f80 * 2}
    v_mov_b32 v{T0+3}, 0x7f80
    s_cmp_lg_u32 s{S_WAVE}, 7
    s_cbranch_scc1 NO_INF
    ds_write_b16 v{T0+2}, v{T0+3} offset:{L_LUT}
NO_INF:
    s_waitcnt vmcnt(0)""")
    const_finish(a)
    a(f"""s_sub_u32 s8, s{S_WAVE}, 5
    s_mul_i32 s4, s8, 3072
    s_cmp_eq_u32 s8, 1
    s_cselect_b32 s4, 4096, s4
    s_mul_i32 s3, s2, {EP * 8}
    s_add_u32 s3, s3, s4
    v_add_u32 v{T0}, s3, v{V_L16}
    s_add_u32 s4, s4, {L1_SKEY}
    v_add_u32 v{T0+1}, s4, v{V_L16}
    s_mul_i32 s4, s8, 7168
    s_mul_i32 s3, s2, {EP * 16}
    s_add_u32 s3, s3, s4
    s_add_u32 s3, s3, {WS_REC}
    v_add_u32 v{T0+4}, s3, v{V_L16}
    v_add_u32 v{T0+5}, s4, v{V_L16}
    s_waitcnt lgkmcnt(0)""")
    make_tag(a)
    a(f"""s_barrier
    s_cmp_lg_u32 s{S_WAVE}, 6
    s_cbranch_scc1 NO_ROW
    v_lshrrev_b32 v{TB+9}, 1, v{V_L16}
    ds_read_b64 {vr(H_,2)}, v{TB+9} offset:{L1_HIST}
    ds_read_b64 {vr(H_+2,2)}, v{TB+9} offset:{L1_HIST + 512}
    s_lshl_b32 s3, s2, 11
    s_add_u32 s3, s3, {WS_TAB}
    v_add_u32 v{TB+8}, s3, v{V_L16}
    s_lshl_b32 s3, s{S_NHI}, 22
    s_waitcnt lgkmcnt(0)
    v_add_u32 v{T0+2}, v{H_}, v{H_+1}
    v_add_u32 v{T0+3}, v{H_+2}, v{H_+3}
    v_mov_b32 v{O_}, v{T0+2}
    v_mov_b32 v{O_+2}, v{T0+3}""")
    scan64(a, O_, O_ + 2)
    a(f"""v_sub_u32 v{O_+2}, v{O_+2}, v{T0+3}
    v_readlane_b32 s4, v{O_}, 63
    v_sub_u32 v{O_}, v{O_}, v{T0+2}
    v_add_u32 v{O_+1}, v{O_}, v{H_}
    v_add_u32 v{O_+2}, s4, v{O_+2}
    v_add_u32 v{O_+3}, v{O_+2}, v{H_+2}""")
    for k in range(4):
        a(f"""v_lshl_or_b32 v{TB+2*k}, v{H_+k}, 11, v{O_+k}
              v_or_b32 v{TB+2*k}, s3, v{TB+2*k}
              v_mov_b32 v{TB+2*k+1}, s{S_NLO}""")
    a(f"""global_store_dwordx4 v{TB+8}, {vr(TB,4)}, {WS} sc0 sc1
    global_store_dwordx4 v{TB+8}, {vr(TB+4,4)}, {WS} offset:1024 sc0 sc1""")
    st('table published')
    a("NO_ROW:\ns_barrier")
    for k in range(4): a(f"ds_read_b128 {vr(64+4*k,4)}, v{T0+1} offset:{1024*k}")
    for k in range(4):
        if k == 2: a(f"s_cmp_eq_u32 s8, 1\ns_cbranch_scc1 KEYS_STORED")
        a(f"s_waitcnt lgkmcnt({3-k})\nglobal_store_dwordx4 v{T0}, {vr(64+4*k,4)}, {WS} offset:{1024*k} {FL}")
    a(f"""KEYS_STORED:
    v_mov_b32 v{V_LEN}, 0
    s_waitcnt lgkmcnt(0)
    s_barrier
    s_cmp_ge_u32 s2, {NP}
    s_cbranch_scc1 {"NO_RECS" if opt.split else "TAB_DONE"}""")
    for k in range(7): a(f"ds_read_b128 {vr(84+4*k,4)}, v{T0+5} offset:{L1_SREC + 1024*k}")
    for k in range(7):
        if opt.split and k == opt.split: a("s_barrier")
        if k == 4: a(f"v_add_u32 v{T0+4}, 4096, v{T0+4}")
        if k == 6: a(f"s_cmp_eq_u32 s8, 2\ns_cbranch_scc1 TAB_DONE")
        a(f"s_waitcnt lgkmcnt({6-k})\nglobal_store_dwordx4 v{T0+4}, {vr(84+4*k,4)}, {WS} offset:{(1024*k) % 4096} {FL}")
    a("s_branch TAB_DONE")
    a(f"""AUX_LOAD:
    s_cmp_ge_u32 s2, {NP + 4}
    s_cbranch_scc1 LOADED
    s_cmp_ge_u32 s{S_WAVE}, 4
    s_cbranch_scc1 LOADED
    s_sub_u32 s4, s2, {NP}
    s_lshl_b32 s5, s{S_WAVE}, 13
    s_lshl_b32 s8, s4, 6
    s_add_u32 s5, s5, s8
    v_lshrrev_b32 v{T0+1}, 8, v{V_L16}
    v_lshlrev_b32 v{T0+1}, 11, v{T0+1}
    v_bfe_u32 v{T0+2}, v{V_L16}, 4, 4
    v_lshl_add_u32 v{T0+1}, v{T0+2}, 2, v{T0+1}
    v_add_u32 v{T0+1}, s5, v{T0+1}
    s_lshl_b32 s5, s4, 13
    s_lshl_b32 s8, s{S_WAVE}, 10
    s_add_u32 s5, s5, s8
    s_add_u32 s5, s5, {WS_WMIX}
    v_add_u32 v{T0+2}, s5, v{V_L16}""")
    for t in range(8): a(f"global_load_dword v{64+t}, v{T0+1}, {sr(WMX,2)} offset:{t*256}")
    a(f"""s_branch LOADED
AUX:
    s_waitcnt lgkmcnt(0)""")
    make_tag(a)
    a(f"""s_barrier
    s_cmp_ge_u32 s2, {NP + 4}
    s_cbranch_scc1 AUX_DONE
    s_cmp_ge_u32 s{S_WAVE}, 4
    s_cbranch_scc1 AUX_DONE
    s_mov_b32 s4, 0x05040100
    s_mov_b32 s5, 0x07060302
    s_waitcnt vmcnt(0)""")
    for u in range(4):
        a(f"v_perm_b32 v{72+u}, v{65+2*u}, v{64+2*u}, s4\nv_perm_b32 v{76+u}, v{65+2*u}, v{64+2*u}, s5")
    a(f"""global_store_dwordx4 v{T0+2}, v[72:75], {WS} {FL}
    v_add_u32 v{T0+2}, 4096, v{T0+2}
    global_store_dwordx4 v{T0+2}, v[76:79], {WS} {FL}
AUX_DONE:
    s_barrier
    s_waitcnt vmcnt(0)
    s_branch BINNED
WAVE4:
    s_mov_b32 s{S_JOB}, 26""")
    if opt.split:
        lut_jobs(a, 1)
        a("s_barrier")
        lut_jobs(a, 1)
        a("s_branch TAB_DONE\nNO_RECS:\ns_barrier")
    else: lut_jobs(a, 2)
    a("TAB_DONE:")

def mfma4(d, a_, b, c, blk=None):
    cc = "0" if c is None else vr(c, 4)
    return f"v_mfma_f32_4x4x4_16b_bf16 {vr(d,4)}, {vr(a_,2)}, {vr(b,2)}, {cc}" + ("" if blk is None else f" cbsz:4 abid:{blk}")
def p_mfma(g, odd):
    return mfma4(UU + 8 * (g % 2) + 4 * odd, EF, PO if odd else PE, None, g % 16)
def t_mfma(e, odd):
    return mfma4(TP + 8 * (e % 2) + 4 * odd, WPK + 2 * (e % 4), XR + 4 * (e % 8) + 2 * odd, None, (e % 64) // 4)
def act_regs(eb, odd):
    return UU + 8 * ((eb // 4) % 2) + 4 * odd + eb % 4, RR + 4 * ((eb // 2) % 2) + 2 * odd
def act_addr(t, u):
    return f"v_lshlrev_b32_sdwa v{t}, v{V_ONE}, v{u} dst_sel:DWORD dst_unused:UNUSED_PAD src0_sel:DWORD src1_sel:WORD_1"
def act_read(r, t): return f"ds_read_u16_d16_hi v{r}, v{t} offset:{L_LUT}"
def fma4(a, q):
    h = q % 2
    a(f"s_set_gpr_idx_on s{S_K + q % 16}, 0xc")
    for odd in range(2):
        r = RR + 4 * ((q // 2) % 2) + 2 * odd
        for o in (0, 2):
            acc = ACC + 4 * odd + o; tp = TP + 8 * (q % 2) + 4 * odd + o
            a(f"v_pk_fma_f32 {vr(acc,2)}, {vr(r,2)}, {vr(tp,2)}, {vr(acc,2)} op_sel:[{h},0,0] op_sel_hi:[{h},1,1]")
    a("s_set_gpr_idx_off")
def meta_read_entry(a): a(f"ds_read_b32 v{ENT}, v{V_AENT}")
def meta_fix_entry(a, rec=True):
    a(f"""v_cmp_gt_u32 vcc, s{S_END}, v{V_POS}
          v_add_u32 v{V_POS}, 64, v{V_POS}
          v_add_u32 v{V_AENT}, 256, v{V_AENT}
          v_cndmask_b32 v{ENT}, 40, v{ENT}, vcc
          v_lshrrev_b32 v{T0}, 21, v{ENT}
          v_lshlrev_b32 v{T0}, 4, v{T0}
          v_lshlrev_b32 v{T0+1}, 3, v{ENT}""")
    if rec: meta_read_rec(a)
    a(f"""v_and_b32 v{T0+1}, 0xfffc00, v{T0+1}
          v_and_or_b32 v{ENT}, v{ENT}, 56, v{T0+1}""")
def meta_read_rec(a): a(f"ds_read_b128 {vr(RECN,4)}, v{T0} offset:{L_UREC}")
def w_mfma(i): return mfma4(WTMP + 4 * i, RECN, CGB + 2 * i, None)
def w_cvt(a, m):
    a(f"""v_cvt_pk_bf16_f32 v{WPK+2*m}, v{WTMP+m}, v{WTMP+4+m}
          v_cvt_pk_bf16_f32 v{WPK+2*m+1}, v{WTMP+8+m}, v{WTMP+12+m}""")

def step(a, opt, q, drain=None):
    D = opt.D; loads = drain is None
    eb = q + 2 - q % 2; odd = q % 2
    u, r = act_regs(eb, odd); t = TT + 2 * odd
    g, ur = (q + 6) // 4, (q + 6) % 4
    if ur % 2 == 0: a(p_mfma(g, ur // 2))
    elif 40 <= q < 48: a(w_mfma((q - 40) // 2))
    a(act_addr(t, u))
    if loads: a(f"s_waitcnt vmcnt({D - 2})")
    elif D - 2 - drain >= 0: a(f"s_waitcnt vmcnt({8 + D - 2 - drain})")
    a(t_mfma(q + 1, 0))
    if loads: a(f"v_readlane_b32 s{S_K + (q + D) % 16}, v{KEY if q + D < 64 else ENT}, {(q + D) % 64}")
    else:     a("s_nop 0")
    a(t_mfma(q + 1, 1))
    a(act_addr(t + 1, u + 1))
    a(act_read(r, t)); a(act_read(r + 1, t + 1))
    if q >= 60: w_cvt(a, q - 60)
    if loads:
        a(f"s_and_b32 s{S_OFF}, s{S_K + (q + D) % 16}, s{S_MASK}")
        a(f"buffer_load_dwordx4 {vr(XR + 4 * ((q + D) % 8), 4)}, v{V_L16}, {sr(S_X,4)}, s{S_OFF} offen")
    if q % 2 == 0: a("s_waitcnt lgkmcnt(2)")
    fma4(a, q)
    if loads: x_touch(a, opt, 100 + q, False)
    if loads and q == 8: meta_read_entry(a)
    if loads and q == 12: meta_fix_entry(a)
    if q == 57: a(f"v_mov_b32 v{EF}, v{RECN+2}\nv_mov_b32 v{EF+1}, v{RECN+3}\ns_nop 1")
    if loads and q == 63: a(f"v_mov_b32 v{KEY}, v{ENT}")

def body(a, opt):
    G = opt.gran
    for q in range(64):
        if q % G == 0: a(f"A_{q}:\ns_sub_u32 s{S_REM}, s{S_REM}, {G}\ns_cbranch_scc1 B_{q}")
        step(a, opt, q)
    if opt.stamps and not opt.only:
        STAMPS.extend(("batch 1", "batch 2")); k = S_ST + len(STAMPS) - 2
        a(f"""s_memrealtime s[98:99]
        s_waitcnt lgkmcnt(0)
        s_cmp_eq_u32 s{k}, 0
        s_cselect_b32 s99, 0, s98
        s_cselect_b32 s{k}, s98, s{k}
        s_cmp_eq_u32 s{k+1}, 0
        s_cselect_b32 s{k+1}, s99, s{k+1}""")
    if opt.probe == "batch 1":
        a("s_memrealtime s[98:99]\ns_waitcnt lgkmcnt(0)\ns_cmp_eq_u32 s93, 0\ns_cselect_b32 s93, s98, s93")
    a("s_branch A_0")
    for q in range(0, 64, G):
        a(f"B_{q}:")
        for k in range(8):
            a(f"buffer_load_dwordx4 {vr(WMIX+4*k,4)}, v{V_L16}, {sr(S_WS,4)}, s{S_WM + k // 4} offen offset:{(k%4)*1024} sc1")
        for i in range(opt.D):
            a(f"s_sub_u32 s{S_REMB}, s{S_REMB}, 1\ns_cbranch_scc1 MAIN_DONE")
            step(a, opt, (q + i) % 64, i)
        a("s_branch MAIN_DONE")

def x_touch(a, opt, where, guard=True):
    for spec in filter(None, opt.xt.split(",")):
        w, lo, hi = map(int, spec.split(":"))
        if w != where: continue
        if guard: a(f"s_cmp_lg_u32 s{S_W0}, 0\ns_cbranch_scc1 NO_X_TOUCH_{w}")
        if w >= 100: a(f"s_bitcmp1_b32 s3, {w % 32}\ns_cbranch_scc1 NO_X_TOUCH_{w}\ns_bitset1_b32 s3, {w % 32}")
        a(f"""s_lshl_b32 s{S_OFF}, s2, 3
        s_add_u32 s{S_OFF}, s{S_OFF}, s{S_WAVE}
        s_lshl_b32 s{S_OFF}, s{S_OFF}, 7
        s_add_u32 s{S_OFF}, s{S_OFF}, {lo << 18}
        v_min_u32 v{T0+1}, {(hi - lo - 1) * 16}, v{V_L16}
        v_lshl_add_u32 v{T0+1}, v{T0+1}, 14, s{S_OFF}
        buffer_load_dword v{V_FLAG+1}, v{T0+1}, {sr(S_X,4)}, 0 offen""")
        a(f"NO_X_TOUCH_{w}:")

DEAL = ([4, 2, 4, 7, 6, 3, 1, 5, 0, 4, 2, 6, 1, 7, 3, 5, 0, 4, 7, 3, 0, 1, 5, 6, 2, 5, 0, 1, 6, 7, 3, 2, 0, 5, 3, 1, 6, 7, 2, 4],
        [0, 2, 7, 1, 4, 6, 5, 3, 6, 3, 1, 7, 4, 0, 2, 5, 4, 3, 5, 6, 7, 1, 0, 2, 7, 5, 2, 4, 3, 6, 0, 1, 5, 1, 3, 6, 4, 2, 7, 0])
def deal_bytes():
    out = []
    for t in DEAL:
        assert sorted(t) == sorted(list(range(8)) * 5)
        out += [4 * (5 * w + t[:r].count(w)) for r, w in enumerate(t)] + [0] * 24
    return out

def zero_hist(a):
    a(f"""v_lshlrev_b32 v{T0+3}, 2, v0
    v_mov_b32 v{T0+4}, 0
    v_cmp_gt_u32 vcc, {40 * HS // 4}, v0
    s_and_saveexec_b64 {sr(S_T,2)}, vcc
    ds_write_b32 v{T0+3}, v{T0+4} offset:{L_HIST}
    s_mov_b64 exec, {sr(S_T,2)}""")

def kernel(opt):
    a = Asm(); D = opt.D
    st = lambda n: stamp(a, opt, n)
    a(f"""{KERN}:
    s_cmp_ge_u32 s2, 256
    s_cbranch_scc1 END""")
    if opt.probe: a("s_mov_b32 s93, 0\ns_memrealtime s[98:99]\ns_waitcnt lgkmcnt(0)\ns_mov_b32 s92, s98")
    if opt.stamps:
        for k in range(32): a(f"s_mov_b32 s{S_ST+k}, 0")
    st('start')
    a(f"""s_load_dwordx16 {sr(S_IN,16)}, s[0:1], 0
    s_load_dwordx2 {sr(S_WS,2)}, s[0:1], 80
    s_load_dwordx2 {sr(S_X,2)}, s[0:1], 0
    s_load_dwordx2 {sr(S_OUT,2)}, s[0:1], 64
    ; wave 7 of every workgroup takes 8 lines; the 32 workgroups with equal id % 8 cover 32 KiB
    s_getpc_b64 s[6:7]
CODE_HERE:
    v_lshrrev_b32 v{T0}, 6, v0
    s_lshr_b32 s5, s2, 3
    s_lshl_b32 s4, s5, 10
    v_readfirstlane_b32 s{S_WAVE}, v{T0}
    v_and_b32 v{T0+2}, 7, v0
    v_lshl_add_u32 v{T0+2}, v{T0+2}, 7, s4
    v_min_u32 v{T0+2}, END-CODE_HERE, v{T0+2}
    s_cmp_lg_u32 s{S_WAVE}, 7
    s_cbranch_scc1 NO_CODE_TOUCH
    global_load_dword v{V_FLAG+1}, v{T0+2}, s[6:7]
NO_CODE_TOUCH:
    s_mul_i32 s3, s2, {EP * 4}
    v_lshl_add_u32 v{T0}, v0, 4, s3
    v_and_b32 v{T0+2}, 63, v0
    v_lshlrev_b32 v{V_L16}, 4, v{T0+2}
    v_lshlrev_b32 v{CT+5}, 2, v{T0+2}
    s_cmp_ge_u32 s{S_WAVE}, 5
    s_cselect_b32 s3, {NP}, s2
    s_cmp_ge_u32 s3, {NP}
    s_waitcnt lgkmcnt(0)
    s_cbranch_scc1 NO_EDGES
    s_setprio 1
    global_load_dwordx4 {vr(D_,4)}, v{T0}, {sr(DST,2)}
    global_load_dwordx4 {vr(S_,4)}, v{T0}, {sr(SRC,2)}
NO_EDGES:""")
    if opt.wsoff: a(f"s_add_u32 s{S_WS}, s{S_WS}, {opt.wsoff << 20}\ns_addc_u32 s{S_WS+1}, s{S_WS+1}, 0")
    st('kernargs')
    for k in range(4): a(f"global_load_dword v{CT+k}, v{CT+5}, {sr(WRAD,2)} offset:{k*256}")
    a(f"""v_and_b32 v{CT+5}, 0x7f, v{CT+5}
    global_load_dword v{CT+4}, v{CT+5}, {sr(CG,2)}
    s_and_b32 s3, s2, 0x87
    s_cmp_eq_u32 s3, 0
    s_cselect_b32 s3, 64, 0
    s_add_u32 s3, s3, DEAL_TABLE-CODE_HERE
    v_add_u32 v{V_DEAL}, s3, v{T0+2}
    global_load_ubyte v{V_DEAL}, v{V_DEAL}, s[6:7]
    v_lshlrev_b32 v{T0+1}, 1, v{T0}
    v_lshlrev_b32 v{T0+3}, 3, v0
    v_mov_b32 v{T0+4}, 0
    v_mov_b32 v{T0+5}, 0
    ds_write_b64 v{T0+3}, {vr(T0+4,2)}
    s_and_b32 s4, s2, 7
    s_lshl_b32 s4, s4, 5
    s_lshr_b32 s5, s2, 3
    s_or_b32 s{S_BETA}, s4, s5
    v_mov_b32 v{V_ONE}, 1
    s_mov_b32 s{S_X+2}, {N * 1024}
    s_mov_b32 s{S_X+3}, 0x20000
    s_mov_b32 s{S_WS+2}, {WS_END if not opt.stamps else WS_STAMP + 0x80000}
    s_mov_b32 s{S_WS+3}, 0x20000
    s_mov_b32 s{S_OUT+2}, {N * 1024}
    s_mov_b32 s{S_OUT+3}, 0x20000
    s_mov_b32 s{S_MASK}, 0xfffffc00
    s_mov_b32 s{S_W0}, 0
    s_mov_b32 s{S_L2E}, 0xbfb8aa3b
    s_mov_b32 s{S_L2E+1}, 0xbfb8aa3b
    v_mul_u32_u24 v{V_SIG4}, 52, v{T0+2}
    v_lshrrev_b32 v{V_SIG4}, 8, v{V_SIG4}            ; lane / 5
    v_mul_u32_u24 v{V_SLOT4}, 5, v{V_SIG4}
    v_sub_u32 v{V_SLOT4}, v{T0+2}, v{V_SLOT4}        ; lane % 5
    v_lshlrev_b32 v{V_SIG4}, 2, v{V_SIG4}
    v_lshlrev_b32 v{V_SLOT4}, 2, v{V_SLOT4}
    s_mov_b32 s{S_SPIN}, {1 << 21}
    v_and_b32 v{V_GID}, 0xff, v0
    s_lshl_b32 s3, s{S_BETA}, 3
    s_add_u32 s3, s3, {WS_TAB}
    v_lshl_add_u32 v{V_POS}, v{V_GID}, 11, s3
    s_and_b32 s3, s2, 7
    s_lshl_b32 s3, s3, 7
    s_add_u32 s3, s3, {WS_RDY}
    s_lshl_b32 s8, s{S_WAVE}, 15
    s_add_u32 s3, s3, s8
    v_and_b32 v{V_FLAG}, 31, v0
    v_lshl_add_u32 v{V_FLAG}, v{V_FLAG}, 10, s3      ; flag of producer 32 wave + lane % 32
    v_mul_u32_u24 v{V_GID}, {EP}, v{V_GID}
    v_mul_u32_u24 v{LJ+10}, 0x8000, v{V_L16}
    v_lshl_add_u32 v{LJ+10}, v{T0+2}, 3, v{LJ+10}    ; lane * 8 * 0x10001""")
    for k in range(0, 48, 2): a(f"v_pk_mov_b32 {vr(ACC+k,2)}, {vr(T0+4,2)}, {vr(T0+4,2)}")
    a("s_waitcnt lgkmcnt(0)")
    load_epoch(a)
    a("s_barrier")
    phase1(a, opt)
    a(f"""s_cmp_ge_u32 s{S_WAVE}, 4
    s_cbranch_scc1 NOT_POLLER
    v_and_b32 v{T0+5}, 0x7ff, v{V_LEN}
    v_bfe_u32 v{V_LEN}, v{V_LEN}, 11, 11
    v_add_u32 v{V_GID}, v{V_GID}, v{T0+5}
    v_mov_b32 v{V_PRE}, v{V_LEN}""")
    if opt.keypf:
        a(f"""v_lshlrev_b32 v{T0+2}, 3, v{V_GID}
        buffer_load_dword v{V_FLAG+1}, v{T0+2}, {sr(S_WS,4)}, 0 offen sc1""")
    scan64(a, V_PRE)
    a(f"""s_lshl_b32 s3, s{S_WAVE}, 2
    v_mov_b32 v{T0+2}, s3
    v_add_u32 v{T0+3}, 1, v{V_PRE}
    v_sub_u32 v{V_PRE}, v{V_PRE}, v{V_LEN}
    s_mov_b32 exec_lo, 0
    s_mov_b32 exec_hi, 0x80000000
    ds_write_b32 v{T0+2}, v{T0+3} offset:{L_WT}
    s_mov_b64 exec, -1
    s_branch TOTALS
NOT_POLLER:
    s_cmp_eq_u32 s{S_WAVE}, 4
    s_cbranch_scc1 TOTALS
    v_mov_b32 v{T0+2}, {L_CNT}
    s_waitcnt vmcnt(0)
    s_mov_b64 exec, 1
    ds_add_rtn_u32 v{T0+2}, v{T0+2}, v{V_ONE}
    s_mov_b64 exec, -1
    s_waitcnt lgkmcnt(0)
    v_readfirstlane_b32 s3, v{T0+2}
    s_cmp_lg_u32 s3, 2
    s_cbranch_scc1 TOTALS""")
    flag_store(a, WS_RDY)
    st('recs flagged')
    a(f"""TOTALS:
    v_mov_b32 v{T0+2}, 0
TOTALS_SPIN:
    ds_read_b128 {vr(XR,4)}, v{T0+2} offset:{L_WT}
    s_waitcnt lgkmcnt(0)""")
    for k in range(4): a(f"v_readfirstlane_b32 s{4+k}, v{XR+k}")
    a(f"""s_min_u32 s3, s4, s5
    s_min_u32 s8, s6, s7
    s_min_u32 s3, s3, s8
    s_cmp_eq_u32 s3, 0
    s_cbranch_scc0 TOTALS_OK
    s_sub_u32 s{S_SPIN}, s{S_SPIN}, 1
    s_cbranch_scc0 TOTALS_SPIN
    s_endpgm
TOTALS_OK:
    s_add_u32 s5, s5, s4
    s_add_u32 s6, s6, s5
    s_add_u32 s7, s7, s6
    s_sub_u32 s{S_N}, s7, 4
    s_cmp_eq_u32 s{S_WAVE}, 1
    s_cselect_b32 s3, s4, 0
    s_cmp_eq_u32 s{S_WAVE}, 2
    s_cselect_b32 s3, s5, s3
    s_cmp_eq_u32 s{S_WAVE}, 3
    s_cselect_b32 s3, s6, s3
    s_sub_u32 s3, s3, s{S_WAVE}
    v_add_u32 v{V_PRE}, s3, v{V_PRE}
    s_cmp_lg_u32 s{S_WAVE}, 4
    s_cbranch_scc1 EPOCH_DONE
    s_cmp_lg_u32 s2, 0
    s_cbranch_scc1 EPOCH_DONE
    v_mov_b32 v{T0+4}, s{S_NLO}
    v_mov_b32 v{T0+2}, {WS_EPOCH}
    s_mov_b64 exec, 1
    global_store_dword v{T0+2}, v{T0+4}, {sr(S_WS,2)} sc0 sc1
    s_mov_b64 exec, -1
EPOCH_DONE:""")
    x_touch(a, opt, 3, False)
    st('prefix done')
    a(f"""ROUND:
    v_mov_b32 v{T0}, 0
    v_subrev_u32 v{T0+1}, s{S_W0}, v{V_PRE}
    v_mov_b32 v{T0+2}, v{V_GID}
    s_mov_b32 s3, {CAP}
    s_cmp_gt_u32 s{S_N}, {CAP}
    s_cbranch_scc1 EXPAND
    v_lshlrev_b32 v{T0+3}, 2, v{V_PRE}""")
    for j in range(16):
        a(f"v_cmpx_lt_u32 vcc, {j}, v{V_LEN}")
        if j % 2 == 0 and j >= 6: a("s_cbranch_execz EXPAND_DONE")
        a(f"ds_write_b32 v{T0+3}, v{T0+2} offset:{L_SENT + 4*j}\nv_add_u32 v{T0+2}, 1, v{T0+2}")
    a(f"""v_mov_b32 v{T0}, 16
    v_add_u32 v{T0+1}, 16, v{T0+1}
EXPAND:
    v_cmp_lt_u32 vcc, v{T0}, v{V_LEN}
    s_and_b64 exec, exec, vcc
    s_cbranch_execz EXPAND_DONE
    v_cmp_gt_u32 vcc, s3, v{T0+1}
    v_lshlrev_b32 v{T0+3}, 2, v{T0+1}
    s_and_saveexec_b64 {sr(S_T,2)}, vcc
    ds_write_b32 v{T0+3}, v{T0+2} offset:{L_SENT}
    s_mov_b64 exec, {sr(S_T,2)}
    v_add_u32 v{T0}, 1, v{T0}
    v_add_u32 v{T0+1}, 1, v{T0+1}
    v_add_u32 v{T0+2}, 1, v{T0+2}
    s_branch EXPAND
EXPAND_DONE:
    s_mov_b64 exec, -1
    s_sub_u32 s{S_NWIN}, s{S_N}, s{S_W0}
    s_min_u32 s{S_NWIN}, s{S_NWIN}, {CAP}
    v_lshlrev_b32 v{T0}, 2, v0""")
    for i in range(3):
        a(f"""v_add_u32 v{T0+1}, {512*i}, v0
              v_cmp_gt_u32 {sr(S_M+2*i,2)}, s{S_NWIN}, v{T0+1}""")
    x_touch(a, opt, 4)
    if opt.rdy == 3: poll_issue(a, ENT - 1, V_FLAG, 0)
    st('list built')
    a("s_waitcnt lgkmcnt(0)\ns_barrier")
    st('list barrier')
    G = XR
    KP = TP
    for i in range(3): a(f"ds_read_b32 v{G+i}, v{T0} offset:{L_SENT + 2048*i}")
    a(f"""s_mov_b32 s{S_T+2}, 5033                          ; 12 * 2^32 / (10000 * 1024)
    s_waitcnt lgkmcnt(0)""")
    for i in range(3):
        a(f"v_lshlrev_b32 v{G+4+i}, 3, v{G+i}\nv_lshlrev_b32 v{G+i}, 4, v{G+i}")
    a(f"""KEY_LOAD:
    s_mov_b64 exec, {sr(S_M+4,2)}
    s_cbranch_execz SKIP3
    buffer_load_dwordx2 {vr(KP+4,2)}, v{G+6}, {sr(S_WS,4)}, 0 offen sc1
SKIP3:""")
    for i in range(2):
        a(f"s_mov_b64 exec, {sr(S_M+2*i,2)}\nbuffer_load_dwordx2 {vr(KP+2*i,2)}, v{G+4+i}, {sr(S_WS,4)}, 0 offen sc1")
    a("s_mov_b64 exec, -1")
    if opt.rdy == 2: poll_issue(a, ENT - 1, V_FLAG, 0)
    x_touch(a, opt, 7, False)
    a(f"""s_cmp_lt_u32 s{S_WAVE}, {6 if opt.later else 2}
    s_cbranch_scc1 NO_LAST_JOB
    s_mov_b32 s{S_L2E}, 0xbfb8aa3b
    s_mov_b32 s{S_L2E+1}, 0xbfb8aa3b""")
    a(f"s_add_u32 s{S_JOB}, s{S_WAVE}, 26")
    lut_jobs(a, 1)
    a(f"NO_LAST_JOB:\ns_waitcnt vmcnt({(',' + opt.xt).count(',7:') + (opt.rdy == 2)})")
    for i in range(3): a(f"v_cmp_ne_u32 {sr(S_K+2*i,2)}, s{S_NLO}, v{KP+2*i+1}")
    for i in range(3): a(f"s_and_b64 {sr(S_K+2*i,2)}, {sr(S_K+2*i,2)}, {sr(S_M+2*i,2)}")
    a(f"""s_or_b64 {sr(S_K,2)}, {sr(S_K,2)}, {sr(S_K+2,2)}
    s_or_b64 {sr(S_K,2)}, {sr(S_K,2)}, {sr(S_K+4,2)}
    s_cbranch_scc0 KEYS_OK
    s_sub_u32 s{S_SPIN}, s{S_SPIN}, 1
    s_cbranch_scc0 KEY_LOAD
    s_endpgm
KEYS_OK:""")
    st('keys arrived')
    if opt.rdy == 0: poll_issue(a, TT, V_FLAG, 0)
    x_touch(a, opt, 1, False)
    for i in range(3):
        a(f"""v_mul_hi_u32 v{T0+1}, s{S_T+2}, v{KP+2*i}
              v_and_b32 v{G+8+i}, 63, v{KP+2*i}
              v_mul_u32_u24 v{G+8+i}, {HS}, v{G+8+i}
              v_lshl_add_u32 v{G+8+i}, v{T0+1}, 2, v{G+8+i}""")
    for i in range(3):
        a(f"s_mov_b64 exec, {sr(S_M+2*i,2)}\nds_add_rtn_u32 v{G+12+i}, v{G+8+i}, v{V_ONE} offset:{L_HIST}")
    a("s_mov_b64 exec, -1")
    for i in range(3):
        a(f"""v_add_u32 v{T0+1}, {512*i}, v0
              v_lshlrev_b32 v{T0+1}, 21, v{T0+1}
              v_lshrrev_b32 v{G+16+i}, 10, v{KP+2*i}
              v_lshl_or_b32 v{G+16+i}, v{G+16+i}, 7, v{T0+1}""")
    H = G + 20
    a(f"""v_lshrrev_b32 v{T0}, 4, v{V_L16}              ; lane
    v_min_u32 v{T0+1}, 39, v{T0}
    v_mul_u32_u24 v{T0+1}, {HS}, v{T0+1}
    v_cmp_gt_u32 {sr(S_T+4,2)}, 40, v{T0}
    v_sub_u32 v{T0+2}, 63, v{T0}
    s_mul_i32 s10, s{S_WAVE}, 5
    s_lshl_b32 s3, s{S_WAVE}, 10
    s_add_u32 s3, s3, {L_UREC}
    s_mov_b32 s9, {WS_REC}""")
    if opt.rdy >= 2: poll_check(a, "REC", ENT - 1, V_FLAG, 0, ENT)
    a("s_waitcnt lgkmcnt(0)\ns_barrier")
    st('hist done')
    if opt.rdy == 1: poll_issue(a, TT, V_FLAG, 0)
    def rec_dma():
        for i in range(2):
            a(f"""s_add_u32 m0, s3, {i*8192}
              s_mov_b64 exec, {sr(S_M+2*i,2)}
              buffer_load_dwordx4 v{G+i}, {sr(S_WS,4)}, s9 offen sc1 lds""")
        a(f"""s_add_u32 m0, s3, {2*8192}
    s_mov_b64 exec, {sr(S_M+4,2)}
    s_cbranch_execz SKIP3R
    buffer_load_dwordx4 v{G+2}, {sr(S_WS,4)}, s9 offen sc1 lds
SKIP3R:
    s_mov_b64 exec, -1""")
    for k in range(3): a(f"ds_read_b128 {vr(H+4*k,4)}, v{T0+1} offset:{L_HIST + 16*k}")
    if opt.rdy >= 2: rec_dma()
    a(f"""    s_waitcnt lgkmcnt(1)
    v_add3_u32 v{H}, v{H}, v{H+1}, v{H+2}
    v_add3_u32 v{H+3}, v{H+3}, v{H+4}, v{H+5}
    v_add3_u32 v{H}, v{H}, v{H+6}, v{H+7}
    s_waitcnt lgkmcnt(0)
    v_add3_u32 v{H+3}, v{H+3}, v{H+8}, v{H+9}
    v_add3_u32 v{H}, v{H}, v{H+10}, v{H+11}
    v_add_u32 v{H}, v{H}, v{H+3}
    v_lshl_or_b32 v{H+1}, v{H}, 6, v{T0+2}
    v_cndmask_b32 v{H+1}, 0, v{H+1}, {sr(S_T+4,2)}
    s_cmp_lg_u32 s{S_W0}, 0
    s_cbranch_scc1 DEALT""")
    for k in range(5):
        a(f"v_readlane_b32 s{S_NODE+k}, v{H+1}, s10")
        if k < 4: a("s_add_u32 s10, s10, 1")
    for k in range(5): a(f"v_cmp_lt_u32 {sr(S_K+2*k,2)}, s{S_NODE+k}, v{H+1}")
    for k in range(5): a(f"s_bcnt1_i32_b64 s{S_NODE+k}, {sr(S_K+2*k,2)}")
    for k in range(5): a(f"v_readlane_b32 s{S_NODE+k}, v{V_DEAL}, s{S_NODE+k}")
    a(f"""s_sub_u32 s10, s10, 4
    v_add_u32 v{T0+2}, s10, v{T0}""")
    for k in range(5): a(f"v_writelane_b32 v{T0+1}, s{S_NODE+k}, {k}")
    a(f"""
    s_mov_b64 exec, 0x1f
    ds_write_b32 v{T0+1}, v{T0+2} offset:{L_INV}
    s_mov_b64 exec, -1
DEALT:
    s_lshl_b32 s11, s10, 2
    v_add_u32 v{T0+1}, s11, v{V_SLOT4}
    v_lshlrev_b32 v{T0+5}, 2, v{T0}
""")
    if opt.rdy < 2: poll_check(a, "REC", TT, V_FLAG, 0, TT + 1, younger=("," + opt.xt).count(",1:"))
    a(f"""v_cmp_gt_u32 {sr(S_T,2)}, 60, v{T0}
    s_waitcnt lgkmcnt(0)
    s_barrier""")
    st('dealt')
    a(f"""ds_read_b32 v{T0+1}, v{T0+1} offset:{L_INV}
    ds_read_b32 v{T0+5}, v{T0+5} offset:{L_INV}
    v_lshlrev_b32 v{T0+4}, 17, v{V_SLOT4}             ; slot << 19""")
    if opt.rdy < 2: rec_dma()
    x_touch(a, opt, 2)
    a(f"""    s_waitcnt lgkmcnt(1)
    v_mul_u32_u24 v{T0+2}, {HS}, v{T0+1}
    v_add_u32 v{T0+2}, v{T0+2}, v{V_SIG4}
    ds_read_b32 v{T0+3}, v{T0+2} offset:{L_HIST}
    s_waitcnt lgkmcnt(1)
    v_lshlrev_b32 v{T0+5}, 2, v{T0+5}
    ds_bpermute_b32 v{H+2}, v{T0+5}, v{H}""")
    for k in range(5): a(f"v_readlane_b32 s{S_NODE+k}, v{T0+1}, {k}")
    a(f"""s_waitcnt lgkmcnt(0)
    v_cndmask_b32 v{T0+3}, 0, v{T0+3}, {sr(S_T,2)}
    v_cndmask_b32 v{H+2}, 0, v{H+2}, {sr(S_T+4,2)}
    v_sub_u32 v{T0+4}, v{T0+4}, v{T0+3}
    v_mov_b32 v{H+3}, v{H+2}""")
    scan64(a, T0 + 3, H + 3)
    a(f"""v_sub_u32 v{H+3}, v{H+3}, v{H+2}
    v_add_u32 v{T0+4}, v{T0+4}, v{T0+3}
    v_readlane_b32 s{S_START}, v{H+3}, s10
    v_readlane_b32 s{S_END}, v{T0+3}, 63
    s_nop 0
    v_add_u32 v{T0+4}, s{S_START}, v{T0+4}
    s_mov_b64 exec, {sr(S_T,2)}
    ds_write_b32 v{T0+2}, v{T0+4} offset:{L_HIST}
    s_mov_b64 exec, -1
    v_add_u32 v{V_POS}, s{S_START}, v{T0}
    v_lshlrev_b32 v{V_AENT}, 2, v{V_POS}
    v_add_u32 v{V_AENT}, {L_SENT}, v{V_AENT}
    s_max_u32 s10, s{S_END}, {D}
    s_add_u32 s10, s10, {opt.gran - 1 - D}
    s_and_b32 s{S_REM}, s10, {-opt.gran}
    s_max_u32 s10, s{S_END}, s{S_REM}
    s_sub_u32 s{S_REMB}, s10, s{S_REM}
    s_add_u32 s{S_END}, s{S_END}, s{S_START}""")
    a("s_waitcnt lgkmcnt(0)\ns_barrier")
    st('bases')
    for i in range(3): a(f"ds_read_b32 v{G+8+i}, v{G+8+i} offset:{L_HIST}")
    for i in range(3):
        a(f"""s_waitcnt lgkmcnt({2-i})
              v_lshrrev_b32 v{T0+1}, 16, v{G+8+i}
              v_and_b32 v{G+8+i}, 0xffff, v{G+8+i}
              v_or_b32 v{G+16+i}, v{G+16+i}, v{T0+1}
              v_add_lshl_u32 v{G+8+i}, v{G+8+i}, v{G+12+i}, 2""")
    for i in range(3):
        a(f"""s_mov_b64 exec, {sr(S_M+2*i,2)}
              ds_write_b32 v{G+8+i}, v{G+16+i} offset:{L_SENT}""")
    a("s_mov_b64 exec, -1")
    a("s_waitcnt lgkmcnt(0)")
    if not opt.xpre: a("s_waitcnt vmcnt(0)")
    a("s_barrier")
    st('sorted')
    if opt.stamps: a(f"s_memtime s[100:101]\ns_waitcnt lgkmcnt(0)\ns_mov_b32 s{S_ST+30}, s100")
    if opt.prio == 1: a(f"s_cmp_ge_u32 s{S_WAVE}, 4\ns_cbranch_scc0 PRIO_SET\ns_setprio 1\nPRIO_SET:")
    meta_read_entry(a)
    a(f"""s_mov_b32 s3, 0
    s_and_b32 s{S_WM}, s{S_WAVE}, 3
    s_lshl_b32 s{S_WM}, s{S_WM}, 13
    s_add_u32 s{S_WM}, s{S_WM}, {WS_WMIX}
    s_add_u32 s{S_WM+1}, s{S_WM}, 4096""")
    for k in range(8): a(f"v_mov_b32 v{RR+k}, 0")
    a("s_waitcnt lgkmcnt(0)")
    meta_fix_entry(a, False)
    a("s_nop 0")
    def first_rows(lo, hi):
        for e in range(lo, hi):
            a(f"""v_readlane_b32 s{S_K+e}, v{ENT}, {e}
                  s_and_b32 s{S_OFF}, s{S_K+e}, s{S_MASK}
                  buffer_load_dwordx4 {vr(XR+4*e,4)}, v{V_L16}, {sr(S_X,4)}, s{S_OFF} offen""")
    if opt.xpre:
        first_rows(0, opt.xpre)
        a(f"s_waitcnt vmcnt({opt.xpre})")
        st('recs landed')
        a("s_barrier")
    meta_read_rec(a)
    first_rows(opt.xpre, D)
    a(f"v_mov_b32 v{KEY}, v{ENT}")
    a(f"""s_waitcnt lgkmcnt(0)
    v_mov_b32 v{EF}, v{RECN+2}
    v_mov_b32 v{EF+1}, v{RECN+3}""")
    for i in range(4): a(w_mfma(i))
    a(p_mfma(0, 0)); a(p_mfma(0, 1)); a(p_mfma(1, 0))
    a("s_nop 1")
    for m in range(4): w_cvt(a, m)
    for odd in range(2):
        u, r = act_regs(0, odd)
        for h in range(2): a(act_addr(TT + 2 * odd + h, u + h))
        for h in range(2): a(act_read(r + h, TT + 2 * odd + h))
    a(f"s_waitcnt vmcnt({D-1})")
    st('first row')
    a(t_mfma(0, 0)); a(t_mfma(0, 1))
    body(a, opt)
    a(f"""MAIN_DONE:
    s_add_u32 s{S_W0}, s{S_W0}, {CAP}
    s_cmp_ge_u32 s{S_W0}, s{S_N}
    s_cbranch_scc1 ALL_DONE
    s_waitcnt vmcnt(0) lgkmcnt(0)""")
    zero_hist(a)
    a("s_waitcnt lgkmcnt(0)\ns_barrier\ns_branch ROUND\nALL_DONE:")
    st('main done')
    if opt.stamps: a(f"s_memtime s[100:101]\ns_waitcnt lgkmcnt(0)\ns_sub_u32 s{S_ST+30}, s100, s{S_ST+30}")
    PK = WPK
    for s in range(5):
        for o in range(4): a(f"v_cvt_pk_bf16_f32 v{PK+4*s+o}, v{ACC+8*s+o}, v{ACC+8*s+4+o}")
    a(f"""v_lshrrev_b32 v{T0}, 2, v{V_L16}
    v_add_u32 v{T0}, {L_AGG}, v{T0}""")
    for s in range(5):
        a(f"s_mul_i32 s{S_T}, s{S_NODE+s}, {4 * AGG_RS}\nv_add_u32 v{UU+s}, s{S_T}, v{T0}")
    a(f"""v_lshrrev_b32 v{T0+1}, 4, v{V_L16}            ; lane
    v_and_b32 v{T0+2}, 15, v{T0+1}
    v_lshrrev_b32 v{T0+3}, 4, v{T0+1}                 ; lane >> 4
    s_lshr_b32 s{S_T}, s{S_WAVE}, 2
    s_mul_i32 s{S_T+1}, s{S_T}, {80 * AGG_RS}
    s_add_u32 s{S_T+1}, s{S_T+1}, {L_AGG}
    v_mul_u32_u24 v{T0}, {AGG_RS}, v{T0+2}
    v_lshl_add_u32 v{T0}, v{T0+3}, 4, v{T0}
    v_add_u32 v{T0}, s{S_T+1}, v{T0}
    s_mul_i32 s{S_T}, s{S_T}, {20 << 18}
    s_lshl_b32 s{S_T+1}, s{S_BETA}, 10
    s_add_u32 s{S_T}, s{S_T}, s{S_T+1}
    s_and_b32 s{S_T+1}, s{S_WAVE}, 3
    s_lshl_b32 s{S_T+1}, s{S_T+1}, 8
    s_add_u32 s{S_T}, s{S_T}, s{S_T+1}
    v_lshlrev_b32 v{T0+3}, 18, v{T0+3}
    v_lshl_add_u32 v{T0+3}, v{T0+2}, 4, v{T0+3}
    v_add_u32 v{T0+3}, s{S_T}, v{T0+3}
    s_waitcnt lgkmcnt(0)
    s_barrier""")
    st('all main done')
    for s in range(5):
        for o in range(4): a(f"ds_write_b32 v{UU+s}, v{PK+4*s+o} offset:{o*AGG_RS}")
    a("s_waitcnt vmcnt(0) lgkmcnt(0)\ns_barrier")
    st('agg in LDS')
    AF = XR
    def rd(t):
        for ks in range(4): a(f"ds_read_b128 {vr(AF+16*(t%2)+4*ks,4)}, v{T0} offset:{t*16*AGG_RS + ks*64}")
    def pack_store(t):
        d = ACC + 8 * t; p = RR + 4 * (t % 2)
        for j in range(4): a(f"v_cvt_pk_bf16_f32 v{p+j}, v{d+2*j}, v{d+2*j+1}")
        a(f"buffer_store_dwordx4 {vr(p,4)}, v{T0+3}, {sr(S_OUT,4)}, 0 offen {opt.outst}")
        if t < 4: a(f"v_add_u32 v{T0+3}, {4 << 18}, v{T0+3}")
    rd(0)
    for t in range(5):
        if t < 4: rd(t + 1)
        for ks in range(4):
            a(f"s_waitcnt lgkmcnt({(4 if t < 4 else 0) + 3 - ks})")
            for j in range(2):
                d = ACC + 8 * t + 4 * j
                a(f"v_mfma_f32_16x16x32_bf16 {vr(d,4)}, {vr(AF+16*(t%2)+4*ks,4)}, {vr(WMIX+16*j+4*ks,4)}, " + ("0" if ks == 0 else vr(d, 4)))
            if ks == 3 and t > 0: pack_store(t - 1)
    a("s_nop 7")
    pack_store(4)
    st('end')
    if opt.probe:
        a(f"""s_cmp_eq_u32 s93, 0
        s_cselect_b32 s93, s92, s93
        s_sub_u32 s93, s93, s92
        s_mul_i32 s93, s93, 4
        s_add_u32 s92, s92, s93
        s_add_u32 s92, s92, 6000
        HOLD_SPIN:
        s_memrealtime s[98:99]
        s_waitcnt lgkmcnt(0)
        s_sub_u32 s98, s98, s92
        s_cmp_lt_i32 s98, 0
        s_cbranch_scc1 HOLD_SPIN""")
    if opt.stamps:
        a("s_waitcnt vmcnt(0)")
        st('stores done 2')
        a(f"""s_lshl_b32 s10, s2, 3
        s_add_u32 s10, s10, s{S_WAVE}
        s_lshl_b32 s10, s10, 7
        s_add_u32 s10, s10, {WS_STAMP}
        v_mov_b32 v{T0}, s10
        s_sub_u32 s{S_ST+31}, s{S_END}, s{S_START}
        s_sub_u32 s{S_ST+29}, {1 << 21}, s{S_SPIN}""")
        for k in range(32): a(f"v_mov_b32 v{XR+k}, s{S_ST+k}")
        for k in range(8): a(f"buffer_store_dwordx4 {vr(XR+4*k,4)}, v{T0}, {sr(S_WS,4)}, 0 offen offset:{16*k}")
    a("END:\ns_endpgm")
    a(".p2align 6\n.type DEAL_TABLE,@object\nDEAL_TABLE:\n.byte " + ", ".join(map(str, deal_bytes())) + "\n.size DEAL_TABLE, 128")
    return a.text()

def generate(opt):
    here = os.path.dirname(os.path.abspath(__file__))
    out = open(here + "/header.txt").read()
    out += f"; @launch grid=(256,1,1) block=(512,1,1) lds={LDS_BYTES}\n"
    out += f'.amdgcn_target "amdgcn-amd-amdhsa--gfx950"\n.text\n.globl {KERN}\n.p2align 8\n.type {KERN},@function\n'
    out += kernel(opt)
    out += f""".section .rodata,"a"
.p2align 6
.amdhsa_kernel {KERN}
  .amdhsa_next_free_vgpr {NVGPR}
  .amdhsa_next_free_sgpr {NSGPR if opt.stamps or opt.probe else 66}
  .amdhsa_accum_offset {(NVGPR + 3) // 4 * 4}
  .amdhsa_group_segment_fixed_size 0
  .amdhsa_kernarg_size 88
  .amdhsa_user_sgpr_count 2
  .amdhsa_user_sgpr_kernarg_segment_ptr 1
  .amdhsa_system_sgpr_workgroup_id_x 1
  .amdhsa_float_denorm_mode_32 3
.end_amdhsa_kernel
"""
    return out

def options(argv):
    p = argparse.ArgumentParser()
    p.add_argument("-o", default="/code/" + NAME + ".s")
    p.add_argument("--stamps", action="store_true")
    p.add_argument("--probe", default="")
    p.add_argument("--D", type=int, default=6)
    p.add_argument("--l2", type=int, default=20)
    p.add_argument("--rdy", type=int, default=0)
    p.add_argument("--prio", type=int, default=0)
    p.add_argument("--later", type=int, default=0)
    p.add_argument("--split", type=int, default=0)
    p.add_argument("--only", default="")
    p.add_argument("--wsoff", type=int, default=0)
    p.add_argument("--gran", type=int, default=4)
    p.add_argument("--late", type=int, default=53)
    p.add_argument("--xpre", type=int, default=2)
    p.add_argument("--xt", default="3:0:16")
    p.add_argument("--lsplit", type=int, default=5)
    p.add_argument("--keypf", type=int, default=1)
    p.add_argument("--k1st", default="sc0 sc1")
    p.add_argument("--outst", default="sc0 sc1")
    return p.parse_args(argv)

if __name__ == "__main__":
    opt = options(sys.argv[1:])
    open(opt.o, "w").write(generate(opt))
    if opt.stamps: open(opt.o + ".names", "w").write(repr(STAMPS))
    import subprocess
    here = os.path.dirname(os.path.abspath(__file__))
    r = subprocess.run([sys.executable, here + "/hazards.py", opt.o], capture_output=True, text=True).stdout
    if " 0 finding" not in r: print(r)
    r = subprocess.run([sys.executable, here + "/../cdna_unwritten_srd_check.py", opt.o], capture_output=True, text=True)
    if r.returncode: print(r.stdout, r.stderr)
```

```python
import sys, argparse, os

NAME = "gather_scatter__tensor_product_equiv_tfn__graph"
KERN = NAME + "_kernel"
N, E, C = 10000, 320000, 128
NP, EP = 250, 1280
WS_KEY = 0
WS_REC = 0x280000
WS_WMIX = 0x771000
WS_TAB = 0x780000
WS_EPOCH = WS_TAB + 256 * 4096
WS_END = WS_EPOCH + 128
WS_STAMP = 0x900000
CAP = 1472

class Asm:
    def __init__(self): self.l = []
    def __call__(self, s):
        for line in s.strip("\n").split("\n"):
            line = line.strip()
            if not line: continue
            self.l.append(line if line.endswith(":") else "    " + line)
    def text(self): return "\n".join(self.l) + "\n"

def vr(a, n=1): return f"v{a}" if n == 1 else f"v[{a}:{a+n-1}]"
def sr(a, n=1): return f"s{a}" if n == 1 else f"s[{a}:{a+n-1}]"

SCAN_STEPS = ["row_shr:1 row_mask:0xf bank_mask:0xf bound_ctrl:0", "row_shr:2 row_mask:0xf bank_mask:0xf bound_ctrl:0",
              "row_shr:4 row_mask:0xf bank_mask:0xf bound_ctrl:0", "row_shr:8 row_mask:0xf bank_mask:0xf bound_ctrl:0",
              "row_bcast:15 row_mask:0xa bank_mask:0xf", "row_bcast:31 row_mask:0xc bank_mask:0xf"]
def scan64(a, *regs):
    for c in SCAN_STEPS:
        a("s_nop 1" if len(regs) == 1 else "s_nop 0")
        for v in regs: a(f"v_add_u32_dpp v{v}, v{v}, v{v} {c}")

L_HIST = 0; L_DEG = 1024; L_WT = 1280; L_CNT = L_WT + 16
L_INV = 1344; L_MAP = 1536; L_BASE = 1792
L_SENT = L_BASE + 1024
L_UREC = L_SENT + CAP * 4
L_CG = L_UREC + CAP * 16
L_LUT = 32768
L1_HIST = L_SENT; L1_LNS = L1_HIST + 1024; L1_BASE = L1_LNS + 2048; L1_SREC = L_UREC
L1_SKEY = L_LUT + 53 * 1024
assert L_CG + 128 <= L_LUT and L1_SREC + (EP + 64) * 16 <= L_CG and L1_BASE <= 8192
NLN = 10
L_AGG = L_LUT; AGG_RS = 288
LDS_BYTES = L_LUT + 131072

V_L16 = 1
V_LEN, V_PRE, V_GID = 2, 3, 4
V_AENT, V_POS = 5, 6
V_ONE = 15
V_DEAL = 174
V_DUMMY = 167
V_UNUSED = 166
T0 = 8
ACC = 16; XR = 64; TP = 96; UU = 112; RR = 128; TT = 136; WPK = 140; WTMP = 148
KEY = 164; ENT = 165; RECN = 168; EF = 172; CONST = 176; WMIX = 188
NVGPR = 220
PE, PO, CGB = CONST, CONST + 2, CONST + 4
LJ = 128
S_NODE = 4
S_X, S_WS, S_OUT = 12, 16, 20
S_BETA, S_WAVE, S_N, S_W0, S_NWIN, S_START, S_END, S_REM, S_REMB, S_OFF, S_MASK = range(24, 35)
S_SPIN = 35
S_M = 36
S_T = 42
S_K = 48
S_IN = 40
S_JOB, S_JCNT = 62, 63
S_NLO, S_NHI = 64, 65
S_WM = 10
S_L2E = 10
S_ST = 66
NSGPR = 102

STAMPS = []
def stamp(a, opt, name):
    if opt.probe == name: a("s_memrealtime s[98:99]\ns_waitcnt lgkmcnt(0)\ns_mov_b32 s93, s98")
    if not opt.stamps: return
    if opt.only and name not in opt.only.split(",") + ["start", "sorted", "main done", "stores done 2"]: return
    if name not in STAMPS: STAMPS.append(name)
    a(f"s_memrealtime s[98:99]\ns_waitcnt lgkmcnt(0)\ns_mov_b32 s{S_ST + STAMPS.index(name)}, s98")

S_RET = 6
def lut_sub(a):
    J, Ex, R, P = LJ, LJ + 8, LJ + 16, LJ + 24
    a(f"""LUT_SUB:
    s_lshl_b32 s3, s{S_JOB}, 25
    s_add_u32 s3, s3, 0x8000
    v_lshl_add_u32 v{J}, v{V_L16}, 15, s3""")
    for k in range(1, 8): a(f"v_add_u32 v{J+k}, 0x10000, v{J+k-1}")
    for k in range(0, 8, 2): a(f"v_pk_mul_f32 {vr(Ex+k,2)}, {vr(J+k,2)}, {sr(S_L2E,2)}")
    for k in range(8): a(f"v_exp_f32 v{Ex+k}, v{Ex+k}")
    a(f"s_lshl_b32 s3, s{S_JOB}, 10")
    for k in range(0, 8, 2): a(f"v_pk_add_f32 {vr(R+k,2)}, {vr(Ex+k,2)}, 1.0 op_sel_hi:[1,0]")
    for k in range(8): a(f"v_rcp_f32 v{R+k}, v{R+k}")
    a(f"v_add_u32 v{P+8}, s3, v{V_L16}")
    for k in range(0, 8, 2): a(f"v_pk_mul_f32 {vr(J+k,2)}, {vr(J+k,2)}, {vr(R+k,2)}")
    a(f"v_add_u32 v{P+9}, 0x10000, v{P+8}")
    for k in range(0, 8, 2): a(f"v_pk_mul_f32 {vr(Ex+k,2)}, {vr(J+k,2)}, {vr(Ex+k,2)} neg_lo:[1,0] neg_hi:[1,0]")
    for k in range(4): a(f"v_cvt_pk_bf16_f32 v{P+k}, v{J+2*k}, v{J+2*k+1}")
    for k in range(4): a(f"v_cvt_pk_bf16_f32 v{P+4+k}, v{Ex+2*k}, v{Ex+2*k+1}")
    a(f"""ds_write_b128 v{P+8}, {vr(P,4)} offset:{L_LUT}
    ds_write_b128 v{P+9}, {vr(P+4,4)} offset:{L_LUT}
    s_add_u32 s{S_JOB}, s{S_JOB}, 1
    s_sub_u32 s{S_JCNT}, s{S_JCNT}, 1
    s_cmp_lg_u32 s{S_JCNT}, 0
    s_cbranch_scc1 LUT_SUB
    s_setpc_b64 {sr(S_RET,2)}""")
def lut_jobs(a, count): a(f"s_mov_b32 s{S_JCNT}, {count}\ns_call_b64 {sr(S_RET,2)}, LUT_SUB")

def lut_plain(a, tag, region, last=None, cont=False, until=None):
    P = LJ
    for name, first, end, bias in (("L", 1, 24, 0x20000 - 0x800080), ("H", 34, 62, 0x20000)):
        if name != region: continue
        last = last or end
        if cont: a(f"s_cmp_gt_u32 s{S_JOB}, {last}\ns_cbranch_scc1 LUTP_END_{tag}")
        else: a(f"s_add_u32 s{S_JOB}, s{S_WAVE}, {first}")
        if name == "H" and not cont:
            for k in range(4): a(f"v_mov_b32 v{P+4+k}, 0x80008000")
        a(f"LUTP_{tag}{name}:")
        if until:
            a(f"""ds_read_b32 v{T0+2}, v{T0+3} offset:{L_CNT}
            s_waitcnt lgkmcnt(0)
            v_readfirstlane_b32 s3, v{T0+2}
            s_cmp_eq_u32 s3, 3
            s_cbranch_scc1 {until}""")
        a(f"""s_mul_i32 s3, s{S_JOB}, {512 * 0x10001}
        s_add_u32 s3, s3, {bias & 0xffffffff}
        v_add_u32 v{P}, s3, v{P+10}
        s_lshl_b32 s3, s{S_JOB}, 10
        v_add_u32 v{P+8}, s3, v{V_L16}""")
        for k in range(1, 4): a(f"v_add_u32 v{P+k}, {k * 0x20002}, v{P}")
        a(f"v_add_u32 v{P+9}, 0x10000, v{P+8}")
        if name == "L":
            for k in range(4): a(f"v_or_b32 v{P+4+k}, 0x80008000, v{P+k}")
        a(f"""ds_write_b128 v{P+8}, {vr(P,4)} offset:{L_LUT}
        ds_write_b128 v{P+9}, {vr(P+4,4)} offset:{L_LUT}
        s_add_u32 s{S_JOB}, s{S_JOB}, {5 if name == "L" else 4}
        s_cmp_le_u32 s{S_JOB}, {last}
        s_cbranch_scc1 LUTP_{tag}{name}
        LUTP_END_{tag}:""")

def tab_issue(a): a(f"buffer_load_dwordx4 {vr(RECN,4)}, v{V_POS}, {sr(S_WS,4)}, 0 offen sc1")
def tab_check(a):
    a(f"""POLL_TAB:
    s_waitcnt vmcnt(0)
    v_lshrrev_b32 v{T0+3}, 22, v{RECN}
    v_cmp_ne_u32 vcc, s{S_NLO}, v{RECN+1}
    v_cmp_ne_u32 {sr(S_T,2)}, s{S_NHI}, v{T0+3}
    s_or_b64 vcc, vcc, {sr(S_T,2)}
    s_and_b64 exec, exec, vcc
    s_cbranch_execz POLLED_TAB
    s_sub_u32 s{S_SPIN}, s{S_SPIN}, 1
    s_cbranch_scc1 END""")
    tab_issue(a)
    a("s_branch POLL_TAB\nPOLLED_TAB:\ns_mov_b64 exec, -1")

def load_epoch(a):
    a(f"""s_add_u32 s4, s{S_WS}, {WS_EPOCH}
    s_addc_u32 s5, s{S_WS+1}, 0
    s_load_dwordx2 {sr(S_NLO,2)}, s[4:5], 0""")
def make_tag(a):
    a(f"""s_add_u32 s{S_NLO}, s{S_NLO}, 1
    s_and_b32 s{S_NHI}, s{S_NHI}, 0x3ff""")

def scan256(a, H_, O_):
    a(f"""v_add_u32 v{T0+2}, v{H_}, v{H_+1}
    v_add3_u32 v{T0+2}, v{T0+2}, v{H_+2}, v{H_+3}
    v_mov_b32 v{T0+3}, v{T0+2}""")
    scan64(a, T0 + 3)
    a(f"""v_sub_u32 v{O_}, v{T0+3}, v{T0+2}
    v_add_u32 v{O_+1}, v{O_}, v{H_}
    v_add_u32 v{O_+2}, v{O_+1}, v{H_+1}
    v_add_u32 v{O_+3}, v{O_+2}, v{H_+2}""")

SRC, DST, YY, EFP, WRAD, CG, WMX = S_IN + 2, S_IN + 4, S_IN + 6, S_IN + 8, S_IN + 10, S_IN + 12, S_IN + 14
D_, S_, Y_, F_, B_, R_, H_, O_, TB = 64, 68, 72, 80, 88, 92, 96, 100, 108
CT = WMIX
def const_sub(a):
    a(f"""CONST_SUB:
    ds_write_b32 v{CT+5}, v{CT+4} offset:{L_CG}
    v_lshrrev_b32 v{CT+5}, 3, v{V_L16}
    v_and_b32 v{CT+5}, 24, v{CT+5}
    s_mov_b32 s4, 0x05040100
    s_mov_b32 s5, 0x07060302""")
    for i in range(4): a(f"ds_read_b64_tr_b16 {vr(CGB+2*i,2)}, v{CT+5} offset:{L_CG + 32*i}")
    for u in range(2):
        a(f"v_perm_b32 v{PE+u}, v{CT+1+2*u}, v{CT+2*u}, s4\nv_perm_b32 v{PO+u}, v{CT+1+2*u}, v{CT+2*u}, s5")
    a(f"s_setpc_b64 {sr(S_RET,2)}")
def const_finish(a): a(f"s_call_b64 {sr(S_RET,2)}, CONST_SUB")

def phase1(a, opt):
    st = lambda n: stamp(a, opt, n)
    WS = sr(S_WS, 2); FL = opt.k1st
    a(f"""s_cmp_ge_u32 s{S_WAVE}, 5
    s_cbranch_scc1 HELP""")
    lut_plain(a, "W0", "L", last=opt.lsplit)
    a(f"""s_cmp_ge_u32 s2, {NP}
    s_cbranch_scc1 AUX
    global_load_dwordx4 {vr(Y_,4)}, v{T0+1}, {sr(YY,2)}
    global_load_dwordx4 {vr(Y_+4,4)}, v{T0+1}, {sr(YY,2)} offset:16
    global_load_dwordx4 {vr(F_,4)}, v{T0+1}, {sr(EFP,2)}
    global_load_dwordx4 {vr(F_+4,4)}, v{T0+1}, {sr(EFP,2)} offset:16
""")
    st('jobs A')
    a("s_waitcnt vmcnt(11)")
    st('dst arrived')
    for k in range(4):
        a(f"""v_and_b32 v{B_+k}, 0xff, v{D_+k}
              v_lshlrev_b32 v{B_+k}, 2, v{B_+k}
              ds_add_rtn_u32 v{R_+k}, v{B_+k}, v{V_ONE} offset:{L1_HIST}""")
    a("s_waitcnt vmcnt(10)")
    for k in range(4):
        a(f"""v_lshrrev_b32 v{D_+k}, 8, v{D_+k}
              v_lshl_or_b32 v{TB+2*k}, v{S_+k}, 10, v{D_+k}""")
    a(f"""s_mov_b32 s9, {L1_SKEY}
    s_waitcnt lgkmcnt(0)
    s_barrier
    ds_read_b128 {vr(H_,4)}, v{V_L16} offset:{L1_HIST}""")
    make_tag(a)
    for k in range(4): a(f"v_mov_b32 v{TB+2*k+1}, s{S_NLO}")
    a("v_mov_b32 v119, 0")
    for k in range(4):
        a(f"""v_cmp_gt_u32 vcc, {NLN}, v{R_+k}
              v_mul_u32_u24 v116, 6, v{R_+k}
              v_lshlrev_b32 v117, 1, v{B_+k}
              v_cndmask_b32 v118, 0, v{D_+k}, vcc
              v_lshlrev_b64 {vr(120+2*(k%2),2)}, v116, v[118:119]
              ds_or_b64 v117, {vr(120+2*(k%2),2)} offset:{L1_LNS}""")
    a("s_waitcnt lgkmcnt(4)")
    scan256(a, H_, O_)
    a(f"ds_write_b128 v{V_L16}, {vr(O_,4)} offset:{L1_BASE}")
    for k in range(4): a(f"ds_read_b32 v{H_+k}, v{B_+k} offset:{L1_BASE}")
    for k in range(4):
        a(f"""s_waitcnt lgkmcnt(3)
              v_add_u32 v{R_+k}, v{R_+k}, v{H_+k}
              v_lshl_add_u32 v{B_+k}, v{R_+k}, 3, s9
              ds_write_b64 v{B_+k}, {vr(TB+2*k,2)}""")
    for k in range(4):
        a(f"v_lshlrev_b32 v{R_+k}, 4, v{R_+k}\nv_add_u32 v{R_+k}, {L1_SREC}, v{R_+k}")
    a("s_waitcnt lgkmcnt(0)\ns_barrier")
    st('keys binned')
    a("s_waitcnt vmcnt(0)")
    for k in range(4):
        a(f"ds_write2_b64 v{R_+k}, {vr(Y_+2*k,2)}, {vr(F_+2*k,2)} offset0:0 offset1:1")
    st('recs binned')
    a("BINNED:\ns_setprio 0")
    a(f"s_waitcnt lgkmcnt(0)\ns_barrier\nv_mov_b32 v{V_LEN}, 0")
    const_finish(a)
    lut_plain(a, "W", "L", cont=True)
    a(f"s_cmp_eq_u32 s{S_WAVE}, 4\ns_cbranch_scc1 WAVE4")
    lut_plain(a, "U", "H", last=opt.late)
    tab_issue(a)
    st('tab issued')
    if opt.late < 62: lut_plain(a, "V", "H", cont=True)
    tab_check(a)
    st('tab arrived')
    a("s_branch TAB_DONE")
    lut_sub(a)
    const_sub(a)
    a("HELP:")
    a(f"""s_sub_u32 s8, s{S_WAVE}, 5
    s_mul_i32 s4, s8, 3072
    s_cmp_eq_u32 s8, 1
    s_cselect_b32 s4, 4096, s4
    s_mul_i32 s3, s2, {EP * 8}
    s_add_u32 s3, s3, s4
    v_add_u32 v{T0}, s3, v{V_L16}
    s_add_u32 s4, s4, {L1_SKEY}
    v_add_u32 v{T0+1}, s4, v{V_L16}
    s_mul_i32 s4, s8, 7168
    s_mul_i32 s3, s2, {EP * 16}
    s_add_u32 s3, s3, s4
    s_add_u32 s3, s3, {WS_REC}
    v_add_u32 v{T0+4}, s3, v{V_L16}
    v_add_u32 v{T0+5}, s4, v{V_L16}
    s_lshl_b32 s3, s2, 12
    s_add_u32 s3, s3, {WS_TAB}
    v_add_u32 v117, s3, v{V_L16}
    s_waitcnt lgkmcnt(0)""")
    make_tag(a)
    st('help jobs')
    a(f"""s_barrier
    s_cmp_eq_u32 s{S_WAVE}, 6
    s_cbranch_scc1 ROW
    s_cmp_eq_u32 s{S_WAVE}, 7
    s_cselect_b32 s{S_JOB}, 63, 0""")
    lut_jobs(a, 1)
    a("s_waitcnt vmcnt(0)")
    const_finish(a)
    a(f"""v_mov_b32 v{T0+2}, {0x7f80 * 2}
    v_mov_b32 v{T0+3}, 0x7f80
    s_cmp_lg_u32 s{S_WAVE}, 7
    s_cbranch_scc1 NO_ROW
    ds_write_b16 v{T0+2}, v{T0+3} offset:{L_LUT}
    s_branch NO_ROW
ROW:
    v_lshrrev_b32 v116, 2, v{V_L16}""")
    QT, HH, SS = 84, 100, 104
    for m in range(4): a(f"ds_read_b32 v{HH+m}, v116 offset:{L1_HIST + 256*m}")
    a(f"""s_lshl_b32 s3, s2, 12
    s_add_u32 s3, s3, {WS_TAB}
    v_add_u32 v117, s3, v{V_L16}
    v_lshrrev_b32 v116, 1, v{V_L16}
    s_lshl_b32 s3, s{S_NHI}, 22
    s_waitcnt lgkmcnt(0)""")
    for m in range(4): a(f"v_mov_b32 v{SS+m}, v{HH+m}")
    scan64(a, SS, SS + 1, SS + 2, SS + 3)
    a(f"""v_readlane_b32 s4, v{SS}, 63
    v_readlane_b32 s5, v{SS+1}, 63
    v_readlane_b32 s9, v{SS+2}, 63""")
    for m in range(4): a(f"v_sub_u32 v{SS+m}, v{SS+m}, v{HH+m}")
    a(f"""s_add_u32 s5, s5, s4
    s_add_u32 s9, s9, s5
    v_add_u32 v{SS+1}, s4, v{SS+1}
    v_add_u32 v{SS+2}, s5, v{SS+2}
    v_add_u32 v{SS+3}, s9, v{SS+3}""")
    for m in range(4):
        a(f"""v_lshl_or_b32 v{QT+4*m}, v{HH+m}, 11, v{SS+m}
              v_or_b32 v{QT+4*m}, s3, v{QT+4*m}
              v_mov_b32 v{QT+4*m+1}, s{S_NLO}""")
    a("s_waitcnt vmcnt(0)")
    const_finish(a)
    a(f"""NO_ROW:
    s_barrier
    s_cmp_lg_u32 s{S_WAVE}, 6
    s_cbranch_scc1 ROW_DONE""")
    for m in range(4): a(f"ds_read_b64 {vr(QT+4*m+2,2)}, v116 offset:{L1_LNS + 512*m}")
    for m in range(4): a(f"s_waitcnt lgkmcnt({3-m})\nglobal_store_dwordx4 v117, {vr(QT+4*m,4)}, {WS} offset:{1024*m} sc0 sc1")
    st('table published')
    a("ROW_DONE:")
    for k in range(4): a(f"ds_read_b128 {vr(64+4*k,4)}, v{T0+1} offset:{1024*k}")
    a(f"""v_mov_b32 v{V_LEN}, 0
    s_add_u32 s{S_JOB}, s8, s8                       ; jobs 27, 28 / 29, 30, 31 / 32, 33
    s_add_u32 s{S_JOB}, s{S_JOB}, 27
    s_cmp_eq_u32 s8, 2
    s_addc_u32 s{S_JOB}, s{S_JOB}, 0
    s_cmp_eq_u32 s8, 1
    s_cselect_b32 s{S_JCNT}, 3, 2
    s_waitcnt lgkmcnt(0)
    s_barrier
    s_cmp_ge_u32 s2, {NP}
    s_cbranch_scc1 RECS_STORED""")
    for k in range(7): a(f"ds_read_b128 {vr(84+4*k,4)}, v{T0+5} offset:{L1_SREC + 1024*k}")
    for k in range(7):
        if k == 4: a(f"v_add_u32 v{T0+4}, 4096, v{T0+4}")
        if k == 6: a(f"s_cmp_eq_u32 s8, 2\ns_cbranch_scc1 RECS_STORED")
        a(f"s_waitcnt lgkmcnt({6-k})\nglobal_store_dwordx4 v{T0+4}, {vr(84+4*k,4)}, {WS} offset:{(1024*k) % 4096} {FL}")
    a(f"""RECS_STORED:
    s_call_b64 {sr(S_RET,2)}, LUT_SUB
    s_cmp_ge_u32 s2, {NP}
    s_cbranch_scc1 TAB_DONE
    v_mov_b32 v{T0+2}, 0
    s_waitcnt vmcnt(0)
    s_mov_b64 exec, 1
    ds_add_u32 v{T0+2}, v{V_ONE} offset:{L_CNT}
    s_mov_b64 exec, -1
WAIT_ACK:
    ds_read_b32 v{T0+3}, v{T0+2} offset:{L_CNT}
    s_waitcnt lgkmcnt(0)
    v_readfirstlane_b32 s3, v{T0+3}
    s_cmp_eq_u32 s3, 3
    s_cbranch_scc0 WAIT_ACK""")
    st('recs acked')
    for k in range(4):
        if k == 2: a(f"s_cmp_eq_u32 s8, 1\ns_cbranch_scc1 TAB_DONE")
        a(f"global_store_dwordx4 v{T0}, {vr(64+4*k,4)}, {WS} offset:{1024*k} {FL}")
    a("s_branch TAB_DONE")
    a(f"""AUX_LOAD:
    s_sub_u32 s4, s2, {NP}
    s_cmp_ge_u32 s4, 4
    s_cbranch_scc1 NO_EDGES
    s_cmp_ge_u32 s{S_WAVE}, 4
    s_cbranch_scc1 NO_EDGES
    s_lshl_b32 s5, s{S_WAVE}, 13
    s_lshl_b32 s8, s4, 6
    s_add_u32 s5, s5, s8
    v_lshrrev_b32 v80, 8, v{V_L16}
    v_lshlrev_b32 v80, 11, v80
    v_bfe_u32 v81, v{V_L16}, 4, 4
    v_lshl_add_u32 v80, v81, 2, v80
    v_add_u32 v80, s5, v80""")
    for t in range(8): a(f"global_load_dword v{64+t}, v80, {sr(WMX,2)} offset:{t*256}")
    a(f"""s_branch NO_EDGES
AUX:
    s_cmp_ge_u32 s2, {NP + 4}
    s_cbranch_scc1 AUX_DONE
    s_cmp_ge_u32 s{S_WAVE}, 4
    s_cbranch_scc1 AUX_DONE
    s_sub_u32 s4, s2, {NP}
    s_lshl_b32 s5, s4, 13
    s_lshl_b32 s8, s{S_WAVE}, 10
    s_add_u32 s5, s5, s8
    s_add_u32 s5, s5, {WS_WMIX}
    v_add_u32 v81, s5, v{V_L16}
    s_mov_b32 s4, 0x05040100
    s_mov_b32 s5, 0x07060302
    s_waitcnt vmcnt(6)""")
    for u in range(4):
        a(f"v_perm_b32 v{72+u}, v{65+2*u}, v{64+2*u}, s4\nv_perm_b32 v{76+u}, v{65+2*u}, v{64+2*u}, s5")
    a(f"""global_store_dwordx4 v81, v[72:75], {WS} {FL}
    v_add_u32 v81, 4096, v81
    global_store_dwordx4 v81, v[76:79], {WS} {FL}
AUX_DONE:
    s_waitcnt lgkmcnt(0)""")
    make_tag(a)
    a(f"""s_barrier
    s_waitcnt vmcnt(0)
    s_barrier
    s_branch BINNED
WAVE4:
    s_mov_b32 s{S_JOB}, 25""")
    lut_jobs(a, 2)
    a("TAB_DONE:")

def mfma4(d, a_, b, c, blk=None):
    cc = "0" if c is None else vr(c, 4)
    return f"v_mfma_f32_4x4x4_16b_bf16 {vr(d,4)}, {vr(a_,2)}, {vr(b,2)}, {cc}" + ("" if blk is None else f" cbsz:4 abid:{blk}")
def p_mfma(g, odd):
    return mfma4(UU + 8 * (g % 2) + 4 * odd, EF, PO if odd else PE, None, g % 16)
def t_mfma(e, odd):
    return mfma4(TP + 8 * (e % 2) + 4 * odd, WPK + 2 * (e % 4), XR + 4 * (e % 8) + 2 * odd, None, (e % 64) // 4)
def act_regs(eb, odd):
    return UU + 8 * ((eb // 4) % 2) + 4 * odd + eb % 4, RR + 4 * ((eb // 2) % 2) + 2 * odd
def act_addr(t, u):
    return f"v_lshlrev_b32_sdwa v{t}, v{V_ONE}, v{u} dst_sel:DWORD dst_unused:UNUSED_PAD src0_sel:DWORD src1_sel:WORD_1"
def act_read(r, t): return f"ds_read_u16_d16_hi v{r}, v{t} offset:{L_LUT}"
def fma4(a, q):
    h = q % 2
    a(f"s_set_gpr_idx_on s{S_K + q % 16}, 0xc")
    for odd in range(2):
        r = RR + 4 * ((q // 2) % 2) + 2 * odd
        for o in (0, 2):
            acc = ACC + 4 * odd + o; tp = TP + 8 * (q % 2) + 4 * odd + o
            a(f"v_pk_fma_f32 {vr(acc,2)}, {vr(r,2)}, {vr(tp,2)}, {vr(acc,2)} op_sel:[{h},0,0] op_sel_hi:[{h},1,1]")
    a("s_set_gpr_idx_off")
def meta_read_entry(a): a(f"ds_read_b32 v{ENT}, v{V_AENT}")
def meta_fix_entry(a, rec=True):
    a(f"""v_cmp_gt_u32 vcc, s{S_END}, v{V_POS}
          v_add_u32 v{V_POS}, 64, v{V_POS}
          v_add_u32 v{V_AENT}, 256, v{V_AENT}
          v_cndmask_b32 v{ENT}, 40, v{ENT}, vcc
          v_lshrrev_b32 v{T0}, 21, v{ENT}
          v_lshlrev_b32 v{T0}, 4, v{T0}
          v_lshlrev_b32 v{T0+1}, 3, v{ENT}""")
    if rec: meta_read_rec(a)
    a(f"""v_and_b32 v{T0+1}, 0xfffc00, v{T0+1}
          v_and_or_b32 v{ENT}, v{ENT}, 56, v{T0+1}""")
def meta_read_rec(a): a(f"ds_read_b128 {vr(RECN,4)}, v{T0} offset:{L_UREC}")
def w_mfma(i): return mfma4(WTMP + 4 * i, RECN, CGB + 2 * i, None)
def w_cvt(a, m):
    a(f"""v_cvt_pk_bf16_f32 v{WPK+2*m}, v{WTMP+m}, v{WTMP+4+m}
          v_cvt_pk_bf16_f32 v{WPK+2*m+1}, v{WTMP+8+m}, v{WTMP+12+m}""")

def step(a, opt, q, drain=None):
    D = opt.D; loads = drain is None
    eb = q + 2 - q % 2; odd = q % 2
    u, r = act_regs(eb, odd); t = TT + 2 * odd
    g, ur = (q + 6) // 4, (q + 6) % 4
    if ur % 2 == 0: a(p_mfma(g, ur // 2))
    elif 40 <= q < 48: a(w_mfma((q - 40) // 2))
    a(act_addr(t, u))
    if loads: a(f"s_waitcnt vmcnt({D - 2})")
    elif D - 2 - drain >= 0: a(f"s_waitcnt vmcnt({8 + D - 2 - drain})")
    a(t_mfma(q + 1, 0))
    if loads: a(f"v_readlane_b32 s{S_K + (q + D) % 16}, v{KEY if q + D < 64 else ENT}, {(q + D) % 64}")
    else:     a("s_nop 0")
    a(t_mfma(q + 1, 1))
    a(act_addr(t + 1, u + 1))
    a(act_read(r, t)); a(act_read(r + 1, t + 1))
    if q >= 60: w_cvt(a, q - 60)
    if loads:
        a(f"s_and_b32 s{S_OFF}, s{S_K + (q + D) % 16}, s{S_MASK}")
        a(f"buffer_load_dwordx4 {vr(XR + 4 * ((q + D) % 8), 4)}, v{V_L16}, {sr(S_X,4)}, s{S_OFF} offen")
    if q % 2 == 0: a("s_waitcnt lgkmcnt(2)")
    fma4(a, q)
    if loads: x_touch(a, opt, 100 + q, False)
    if loads and q == 8: meta_read_entry(a)
    if loads and q == 12: meta_fix_entry(a)
    if q == 57: a(f"v_mov_b32 v{EF}, v{RECN+2}\nv_mov_b32 v{EF+1}, v{RECN+3}\ns_nop 1")
    if loads and q == 63: a(f"v_mov_b32 v{KEY}, v{ENT}")

def body(a, opt):
    G = opt.gran
    for q in range(64):
        if q % G == 0: a(f"A_{q}:\ns_sub_u32 s{S_REM}, s{S_REM}, {G}\ns_cbranch_scc1 B_{q}")
        step(a, opt, q)
    if opt.stamps and not opt.only:
        STAMPS.extend(("batch 1", "batch 2")); k = S_ST + len(STAMPS) - 2
        a(f"""s_memrealtime s[98:99]
        s_waitcnt lgkmcnt(0)
        s_cmp_eq_u32 s{k}, 0
        s_cselect_b32 s99, 0, s98
        s_cselect_b32 s{k}, s98, s{k}
        s_cmp_eq_u32 s{k+1}, 0
        s_cselect_b32 s{k+1}, s99, s{k+1}""")
    if opt.probe == "batch 1":
        a("s_memrealtime s[98:99]\ns_waitcnt lgkmcnt(0)\ns_cmp_eq_u32 s93, 0\ns_cselect_b32 s93, s98, s93")
    a("s_branch A_0")
    for q in range(0, 64, G):
        a(f"B_{q}:")
        for k in range(8):
            a(f"buffer_load_dwordx4 {vr(WMIX+4*k,4)}, v{V_L16}, {sr(S_WS,4)}, s{S_WM + k // 4} offen offset:{(k%4)*1024} sc1")
        for i in range(opt.D):
            a(f"s_sub_u32 s{S_REMB}, s{S_REMB}, 1\ns_cbranch_scc1 MAIN_DONE")
            step(a, opt, (q + i) % 64, i)
        a("s_branch MAIN_DONE")

def x_touch(a, opt, where, guard=True):
    for spec in filter(None, opt.xt.split(",")):
        w, lo, hi = map(int, spec.split(":"))
        if w != where: continue
        if guard: a(f"s_cmp_lg_u32 s{S_W0}, 0\ns_cbranch_scc1 NO_X_TOUCH_{w}")
        if w >= 100: a(f"s_bitcmp1_b32 s3, {w % 32}\ns_cbranch_scc1 NO_X_TOUCH_{w}\ns_bitset1_b32 s3, {w % 32}")
        a(f"""s_lshl_b32 s{S_OFF}, s2, 3
        s_add_u32 s{S_OFF}, s{S_OFF}, s{S_WAVE}
        s_lshl_b32 s{S_OFF}, s{S_OFF}, 7
        s_add_u32 s{S_OFF}, s{S_OFF}, {lo << 18}
        v_min_u32 v{T0+1}, {(hi - lo - 1) * 16}, v{V_L16}
        v_lshl_add_u32 v{T0+1}, v{T0+1}, 14, s{S_OFF}
        buffer_load_dword v{V_DUMMY}, v{T0+1}, {sr(S_X,4)}, 0 offen""")
        a(f"NO_X_TOUCH_{w}:")

DEAL = ([4, 2, 4, 7, 6, 3, 1, 5, 0, 4, 2, 6, 1, 7, 3, 5, 0, 4, 7, 3, 0, 1, 5, 6, 2, 5, 0, 1, 6, 7, 3, 2, 0, 5, 3, 1, 6, 7, 2, 4],
        [0, 2, 7, 1, 4, 6, 5, 3, 6, 3, 1, 7, 4, 0, 2, 5, 4, 3, 5, 6, 7, 1, 0, 2, 7, 5, 2, 4, 3, 6, 0, 1, 5, 1, 3, 6, 4, 2, 7, 0])
def deal_bytes():
    out = []
    for t in DEAL:
        assert sorted(t) == sorted(list(range(8)) * 5)
        out += [4 * (5 * w + t[:r].count(w)) | (8 * w + t[:r].count(w)) << 8 for r, w in enumerate(t)] + [0] * 24
    return out

def zero_hist(a):
    a(f"""v_lshlrev_b32 v{T0+3}, 2, v0
    v_mov_b32 v{T0+4}, 0
    v_cmp_gt_u32 vcc, 0x100, v0
    s_and_saveexec_b64 {sr(S_T,2)}, vcc
    ds_write_b32 v{T0+3}, v{T0+4} offset:{L_HIST}
    s_mov_b64 exec, {sr(S_T,2)}""")

def kernel(opt):
    a = Asm(); D = opt.D
    st = lambda n: stamp(a, opt, n)
    a(f"""{KERN}:
    s_cmp_ge_u32 s2, 256
    s_cbranch_scc1 END""")
    if opt.probe: a("s_mov_b32 s93, 0\ns_memrealtime s[98:99]\ns_waitcnt lgkmcnt(0)\ns_mov_b32 s92, s98")
    if opt.stamps:
        for k in range(32): a(f"s_mov_b32 s{S_ST+k}, 0")
    st('start')
    a(f"""s_load_dwordx16 {sr(S_IN,16)}, s[0:1], 0
    s_load_dwordx2 {sr(S_WS,2)}, s[0:1], 80
    s_load_dwordx2 {sr(S_X,2)}, s[0:1], 0
    s_load_dwordx2 {sr(S_OUT,2)}, s[0:1], 64
    ; wave 7 of every workgroup takes 8 lines; the 32 workgroups with equal id % 8 cover 32 KiB
    s_getpc_b64 s[6:7]
CODE_HERE:
    v_lshrrev_b32 v{T0}, 6, v0
    s_lshr_b32 s5, s2, 3
    s_lshl_b32 s4, s5, 10
    v_readfirstlane_b32 s{S_WAVE}, v{T0}
    v_and_b32 v{T0+2}, 7, v0
    v_lshl_add_u32 v{T0+2}, v{T0+2}, 7, s4
    v_min_u32 v{T0+2}, END-CODE_HERE, v{T0+2}
    s_cmp_lg_u32 s{S_WAVE}, 7
    s_cbranch_scc1 NO_CODE_TOUCH
    global_load_dword v{V_DUMMY}, v{T0+2}, s[6:7]
NO_CODE_TOUCH:
    s_mul_i32 s3, s2, {EP * 4}
    v_lshl_add_u32 v{T0}, v0, 4, s3
    v_and_b32 v{T0+2}, 63, v0
    v_lshlrev_b32 v{V_L16}, 4, v{T0+2}
    v_lshlrev_b32 v{CT+5}, 2, v{T0+2}
    s_cmp_ge_u32 s{S_WAVE}, 5
    s_waitcnt lgkmcnt(0)
    s_cbranch_scc1 NO_EDGES
    s_cmp_ge_u32 s2, {NP}
    s_cbranch_scc1 AUX_LOAD
    s_setprio 1
    global_load_dwordx4 {vr(D_,4)}, v{T0}, {sr(DST,2)}
    global_load_dwordx4 {vr(S_,4)}, v{T0}, {sr(SRC,2)}
NO_EDGES:""")
    if opt.wsoff: a(f"s_add_u32 s{S_WS}, s{S_WS}, {opt.wsoff << 20}\ns_addc_u32 s{S_WS+1}, s{S_WS+1}, 0")
    st('kernargs')
    for k in range(4): a(f"global_load_dword v{CT+k}, v{CT+5}, {sr(WRAD,2)} offset:{k*256}")
    a(f"""v_and_b32 v{CT+5}, 0x7f, v{CT+5}
    global_load_dword v{CT+4}, v{CT+5}, {sr(CG,2)}
    s_and_b32 s3, s2, 0x87
    s_cmp_eq_u32 s3, 0
    s_cselect_b32 s3, 128, 0
    s_add_u32 s3, s3, DEAL_TABLE-CODE_HERE
    v_lshl_add_u32 v{V_DEAL}, v{T0+2}, 1, s3
    global_load_ushort v{V_DEAL}, v{V_DEAL}, s[6:7]
    v_lshlrev_b32 v{T0+1}, 1, v{T0}
    v_lshlrev_b32 v{T0+3}, 4, v0
    v_mov_b32 v{T0+4}, 0
    v_mov_b32 v{T0+5}, 0
    v_pk_mov_b32 {vr(ACC,2)}, {vr(T0+4,2)}, {vr(T0+4,2)}
    v_pk_mov_b32 {vr(ACC+2,2)}, {vr(T0+4,2)}, {vr(T0+4,2)}
    ds_write_b128 v{T0+3}, {vr(ACC,4)}
    s_and_b32 s4, s2, 7
    s_lshl_b32 s4, s4, 5
    s_lshr_b32 s5, s2, 3
    s_or_b32 s{S_BETA}, s4, s5
    v_mov_b32 v{V_ONE}, 1
    s_mov_b32 s{S_X+2}, {N * 1024}
    s_mov_b32 s{S_X+3}, 0x20000
    s_mov_b32 s{S_WS+2}, {WS_END if not opt.stamps else WS_STAMP + 0x80000}
    s_mov_b32 s{S_WS+3}, 0x20000
    s_mov_b32 s{S_OUT+2}, {N * 1024}
    s_mov_b32 s{S_OUT+3}, 0x20000
    s_mov_b32 s{S_MASK}, 0xfffffc00
    s_mov_b32 s{S_W0}, 0
    s_mov_b32 s{S_L2E}, 0xbfb8aa3b
    s_mov_b32 s{S_L2E+1}, 0xbfb8aa3b
    s_mov_b32 s{S_SPIN}, {1 << 21}
    v_and_b32 v{V_GID}, 0xff, v0
    s_lshl_b32 s3, s{S_BETA}, 4
    s_add_u32 s3, s3, {WS_TAB}
    v_lshl_add_u32 v{V_POS}, v{V_GID}, 12, s3
    v_mul_u32_u24 v{V_GID}, {EP}, v{V_GID}
    v_mul_u32_u24 v{LJ+10}, 0x8000, v{V_L16}
    v_lshl_add_u32 v{LJ+10}, v{T0+2}, 3, v{LJ+10}    ; lane * 8 * 0x10001""")
    for k in range(4, 48, 2): a(f"v_pk_mov_b32 {vr(ACC+k,2)}, {vr(T0+4,2)}, {vr(T0+4,2)}")
    a("s_waitcnt lgkmcnt(0)")
    load_epoch(a)
    a("s_barrier")
    phase1(a, opt)
    a(f"""s_cmp_ge_u32 s{S_WAVE}, 4
    s_cbranch_scc1 TOTALS
    v_and_b32 v{T0+5}, 0x7ff, v{RECN}
    v_bfe_u32 v{V_LEN}, v{RECN}, 11, 11
    v_add_u32 v{V_GID}, v{V_GID}, v{T0+5}
    v_mov_b32 v{V_PRE}, v{V_LEN}""")
    scan64(a, V_PRE)
    a(f"""s_lshl_b32 s3, s{S_WAVE}, 2
    v_mov_b32 v{T0+2}, s3
    v_add_u32 v{T0+3}, 1, v{V_PRE}
    v_sub_u32 v{V_PRE}, v{V_PRE}, v{V_LEN}
    s_mov_b32 exec_lo, 0
    s_mov_b32 exec_hi, 0x80000000
    ds_write_b32 v{T0+2}, v{T0+3} offset:{L_WT}
    s_mov_b64 exec, -1
TOTALS:
    v_mov_b32 v{T0+2}, 0
TOTALS_SPIN:
    ds_read_b128 {vr(XR,4)}, v{T0+2} offset:{L_WT}
    s_waitcnt lgkmcnt(0)""")
    for k in range(4): a(f"v_readfirstlane_b32 s{4+k}, v{XR+k}")
    a(f"""s_min_u32 s3, s4, s5
    s_min_u32 s8, s6, s7
    s_min_u32 s3, s3, s8
    s_cmp_eq_u32 s3, 0
    s_cbranch_scc0 TOTALS_OK
    s_sub_u32 s{S_SPIN}, s{S_SPIN}, 1
    s_cbranch_scc0 TOTALS_SPIN
    s_endpgm
TOTALS_OK:
    s_add_u32 s5, s5, s4
    s_add_u32 s6, s6, s5
    s_add_u32 s7, s7, s6
    s_sub_u32 s{S_N}, s7, 4
    s_cmp_eq_u32 s{S_WAVE}, 1
    s_cselect_b32 s3, s4, 0
    s_cmp_eq_u32 s{S_WAVE}, 2
    s_cselect_b32 s3, s5, s3
    s_cmp_eq_u32 s{S_WAVE}, 3
    s_cselect_b32 s3, s6, s3
    s_sub_u32 s3, s3, s{S_WAVE}
    v_add_u32 v{V_PRE}, s3, v{V_PRE}
    s_cmp_lg_u32 s{S_WAVE}, 4
    s_cbranch_scc1 EPOCH_DONE
    s_cmp_lg_u32 s2, 0
    s_cbranch_scc1 EPOCH_DONE
    v_mov_b32 v{T0+4}, s{S_NLO}
    v_mov_b32 v{T0+2}, {WS_EPOCH}
    s_mov_b64 exec, 1
    global_store_dword v{T0+2}, v{T0+4}, {sr(S_WS,2)} sc0 sc1
    s_mov_b64 exec, -1
EPOCH_DONE:""")
    x_touch(a, opt, 3, False)
    st('prefix done')
    a(f"""ROUND:
    v_mov_b32 v{T0}, 0
    v_subrev_u32 v{T0+1}, s{S_W0}, v{V_PRE}
    v_mov_b32 v{T0+2}, v{V_GID}
    s_mov_b32 s3, {CAP}
    s_cmp_gt_u32 s{S_N}, {CAP}
    s_cbranch_scc1 EXPAND
    v_lshlrev_b32 v{T0+3}, 2, v{V_PRE}""")
    for j in range(16):
        a(f"v_cmpx_lt_u32 vcc, {j}, v{V_LEN}")
        if j % 2 == 0 and j >= 6: a("s_cbranch_execz EXPAND_DONE")
        a(f"ds_write_b32 v{T0+3}, v{T0+2} offset:{L_SENT + 4*j}\nv_add_u32 v{T0+2}, 1, v{T0+2}")
    a(f"""v_mov_b32 v{T0}, 16
    v_add_u32 v{T0+1}, 16, v{T0+1}
EXPAND:
    v_cmp_lt_u32 vcc, v{T0}, v{V_LEN}
    s_and_b64 exec, exec, vcc
    s_cbranch_execz EXPAND_DONE
    v_cmp_gt_u32 vcc, s3, v{T0+1}
    v_lshlrev_b32 v{T0+3}, 2, v{T0+1}
    s_and_saveexec_b64 {sr(S_T,2)}, vcc
    ds_write_b32 v{T0+3}, v{T0+2} offset:{L_SENT}
    s_mov_b64 exec, {sr(S_T,2)}
    v_add_u32 v{T0}, 1, v{T0}
    v_add_u32 v{T0+1}, 1, v{T0+1}
    v_add_u32 v{T0+2}, 1, v{T0+2}
    s_branch EXPAND
EXPAND_DONE:
    s_mov_b64 exec, -1
    s_sub_u32 s{S_NWIN}, s{S_N}, s{S_W0}
    s_min_u32 s{S_NWIN}, s{S_NWIN}, {CAP}
    v_lshlrev_b32 v{T0}, 2, v0""")
    for i in range(3):
        a(f"""v_add_u32 v{T0+1}, {512*i}, v0
              v_cmp_gt_u32 {sr(S_M+2*i,2)}, s{S_NWIN}, v{T0+1}""")
    st('list built')
    a("s_waitcnt lgkmcnt(0)\ns_barrier")
    st('list barrier')
    G = XR
    KP = TP
    for i in range(3): a(f"ds_read_b32 v{G+i}, v{T0} offset:{L_SENT + 2048*i}")
    a(f"""s_mov_b32 s{S_T+2}, 13421                         ; 32 * 2^32 / (10000 * 1024)
    s_waitcnt lgkmcnt(0)""")
    for i in range(3):
        a(f"v_lshlrev_b32 v{G+4+i}, 3, v{G+i}\nv_lshlrev_b32 v{G+i}, 4, v{G+i}")
    def key_loads(tag):
        a(f"""s_mov_b64 exec, {sr(S_M+4,2)}
        s_cbranch_execz SKIP3{tag}
        buffer_load_dwordx2 {vr(KP+4,2)}, v{G+6}, {sr(S_WS,4)}, 0 offen sc1
        SKIP3{tag}:""")
        for i in range(2):
            a(f"s_mov_b64 exec, {sr(S_M+2*i,2)}\nbuffer_load_dwordx2 {vr(KP+2*i,2)}, v{G+4+i}, {sr(S_WS,4)}, 0 offen sc1")
        a("s_mov_b64 exec, -1")
    key_loads("")
    x_touch(a, opt, 7)
    H = G + 20
    a(f"""v_lshrrev_b32 v{T0}, 4, v{V_L16}              ; lane
    s_cmp_lg_u32 s{S_W0}, 0
    s_cbranch_scc1 KEY_WAIT
    s_cmp_ge_u32 s{S_WAVE}, 4
    s_cbranch_scc1 DEG_DONE""")
    for j in range(NLN):
        t = T0 + 1 + j % 2
        if j < 5: a(f"v_bfe_u32 v{t}, v{RECN+2}, {6*j}, 6")
        elif j == 5: a(f"v_alignbit_b32 v{t}, v{RECN+3}, v{RECN+2}, 30\nv_and_b32 v{t}, 63, v{t}")
        else: a(f"v_bfe_u32 v{t}, v{RECN+3}, {6*j-32}, 6")
        a(f"""v_lshlrev_b32 v{t}, 2, v{t}
              v_cmpx_lt_u32 vcc, {j}, v{V_LEN}
              ds_add_u32 v{t}, v{V_ONE} offset:{L_DEG}""")
    a(f"""s_mov_b64 exec, -1
DEG_DONE:
    v_lshlrev_b32 v{T0+1}, 2, v{T0}
    v_cmp_gt_u32 {sr(S_T,2)}, 40, v{T0}
    v_sub_u32 v{T0+2}, 63, v{T0}
    s_mul_i32 s10, s{S_WAVE}, 5
    s_waitcnt lgkmcnt(0)
    s_barrier
    ds_read_b32 v{H}, v{T0+1} offset:{L_DEG}
    v_add_u32 v{T0+3}, s10, v{T0}
    v_lshlrev_b32 v{T0+4}, 2, v{T0+3}
    s_waitcnt lgkmcnt(0)
    v_lshl_or_b32 v{H}, v{H}, 6, v{T0+2}
    v_cndmask_b32 v{H}, 0, v{H}, {sr(S_T,2)}
    s_nop 0""")
    for k in range(5):
        a(f"v_readlane_b32 s{S_NODE+k}, v{H}, s10")
        if k < 4: a("s_add_u32 s10, s10, 1")
    for k in range(5): a(f"v_cmp_lt_u32 {sr(S_K+2*k,2)}, s{S_NODE+k}, v{H}")
    for k in range(5): a(f"s_bcnt1_i32_b64 s{S_NODE+k}, {sr(S_K+2*k,2)}")
    for k in range(5): a(f"v_readlane_b32 s{S_NODE+k}, v{V_DEAL}, s{S_NODE+k}")
    a("s_nop 0")
    for k in range(5): a(f"v_writelane_b32 v{T0+1}, s{S_NODE+k}, {k}")
    a(f"""v_lshrrev_b32 v{T0+2}, 11, v{T0+1}
    v_bfe_u32 v{T0+5}, v{T0+1}, 8, 3
    v_lshlrev_b32 v{T0+2}, 7, v{T0+2}
    v_and_b32 v{T0+1}, 0xff, v{T0+1}
    v_lshl_or_b32 v{T0+2}, v{T0+5}, 19, v{T0+2}
    s_mov_b64 exec, 0x1f
    ds_write_b32 v{T0+1}, v{T0+3} offset:{L_INV}
    ds_write_b32 v{T0+4}, v{T0+2} offset:{L_MAP}
    s_mov_b64 exec, -1
    s_waitcnt lgkmcnt(0)
    s_barrier""")
    st('dealt')
    a(f"""KEY_WAIT:
    s_lshl_b32 s3, s{S_WAVE}, 10
    s_add_u32 s3, s3, {L_UREC}
    s_mov_b32 s9, {WS_REC}""")
    if ",7:" in "," + opt.xt:
        a(f"s_cmp_lg_u32 s{S_W0}, 0\ns_cbranch_scc1 KEY_WAIT0\ns_waitcnt vmcnt(1)\ns_branch KEY_CHECK")
    a("KEY_WAIT0:\ns_waitcnt vmcnt(0)\nKEY_CHECK:")
    for i in range(3): a(f"v_cmp_ne_u32 {sr(S_K+2*i,2)}, s{S_NLO}, v{KP+2*i+1}")
    for i in range(3): a(f"v_and_b32 v{G+8+i}, 63, v{KP+2*i}\nv_lshlrev_b32 v{G+8+i}, 2, v{G+8+i}")
    for i in range(3): a(f"s_and_b64 {sr(S_K+2*i,2)}, {sr(S_K+2*i,2)}, {sr(S_M+2*i,2)}")
    a(f"""s_or_b64 {sr(S_K,2)}, {sr(S_K,2)}, {sr(S_K+2,2)}
    s_or_b64 {sr(S_K,2)}, {sr(S_K,2)}, {sr(S_K+4,2)}
    s_cbranch_scc0 KEYS_OK
    s_sub_u32 s{S_SPIN}, s{S_SPIN}, 1
    s_cbranch_scc1 END""")
    key_loads("R")
    a("s_branch KEY_WAIT0\nKEYS_OK:")
    st('keys arrived')
    def rec_dma(at):
        for i in (2, 0, 1):
            if opt.recat[i] != at: continue
            a(f"s_add_u32 m0, s3, {i*8192}\ns_mov_b64 exec, {sr(S_M+2*i,2)}")
            if i == 2: a("s_cbranch_execz SKIP3D")
            a(f"buffer_load_dwordx4 v{G+i}, {sr(S_WS,4)}, s9 offen sc1 lds")
            if i == 2: a("SKIP3D:")
        if at in opt.recat: a("s_mov_b64 exec, -1")
    for i in range(3): a(f"ds_read_b32 v{G+8+i}, v{G+8+i} offset:{L_MAP}")
    rec_dma(0)
    for i in range(3):
        a(f"""v_mul_hi_u32 v{G+12+i}, s{S_T+2}, v{KP+2*i}
              v_add_u32 v{T0+1}, {512*i}, v0
              v_lshlrev_b32 v{T0+1}, 21, v{T0+1}
              v_lshrrev_b32 v{G+16+i}, 10, v{KP+2*i}
              v_lshl_or_b32 v{G+16+i}, v{G+16+i}, 7, v{T0+1}""")
    for i in range(3):
        a(f"""s_waitcnt lgkmcnt({2-i})
              v_lshrrev_b32 v{T0+1}, 16, v{G+8+i}
              v_and_b32 v{G+8+i}, 0x380, v{G+8+i}
              v_or_b32 v{G+16+i}, v{G+16+i}, v{T0+1}
              v_lshl_add_u32 v{G+8+i}, v{G+12+i}, 2, v{G+8+i}""")
    for i in range(3):
        a(f"s_mov_b64 exec, {sr(S_M+2*i,2)}\nds_add_rtn_u32 v{G+12+i}, v{G+8+i}, v{V_ONE} offset:{L_HIST}")
    a("s_mov_b64 exec, -1")
    rec_dma(1)
    a(f"""s_lshl_b32 s10, s{S_WAVE}, 3
    s_add_u32 s11, s10, 8
    s_and_b32 s11, s11, 63
    s_waitcnt lgkmcnt(0)
    s_barrier""")
    st('hist done')
    a(f"ds_read_b128 {vr(H,4)}, v{V_L16} offset:{L_HIST}")
    rec_dma(2)
    x_touch(a, opt, 8)
    a("s_waitcnt lgkmcnt(0)")
    scan256(a, H, H + 4)
    a(f"""ds_write_b128 v{V_L16}, {vr(H+4,4)} offset:{L_BASE}
    v_readlane_b32 s{S_START}, v{H+4}, s10
    v_readlane_b32 s{S_END}, v{H+4}, s11""")
    for i in range(3): a(f"ds_read_b32 v{G+8+i}, v{G+8+i} offset:{L_BASE}")
    a(f"""s_cmp_eq_u32 s{S_WAVE}, 7
    s_cselect_b32 s{S_END}, s{S_NWIN}, s{S_END}
    v_add_u32 v{V_POS}, s{S_START}, v{T0}
    v_lshlrev_b32 v{V_AENT}, 2, v{V_POS}
    v_add_u32 v{V_AENT}, {L_SENT}, v{V_AENT}
    s_sub_u32 s11, s{S_END}, s{S_START}
    s_max_u32 s10, s11, {D}
    s_add_u32 s10, s10, {opt.gran - 1 - D}
    s_and_b32 s{S_REM}, s10, {-opt.gran}
    s_max_u32 s10, s11, s{S_REM}
    s_sub_u32 s{S_REMB}, s10, s{S_REM}""")
    for i in range(3):
        a(f"""s_waitcnt lgkmcnt({2 if i else 2})
              v_add_lshl_u32 v{G+8+i}, v{G+8+i}, v{G+12+i}, 2
              s_mov_b64 exec, {sr(S_M+2*i,2)}
              ds_write_b32 v{G+8+i}, v{G+16+i} offset:{L_SENT}
              s_mov_b64 exec, -1""")
    a("s_waitcnt lgkmcnt(0)")
    if not opt.xpre: a("s_waitcnt vmcnt(0)")
    a("s_barrier")
    st('sorted')
    if opt.stamps: a(f"s_memtime s[100:101]\ns_waitcnt lgkmcnt(0)\ns_mov_b32 s{S_ST+30}, s100")
    if opt.prio == 1: a(f"s_cmp_ge_u32 s{S_WAVE}, 4\ns_cbranch_scc0 PRIO_SET\ns_setprio 1\nPRIO_SET:")
    meta_read_entry(a)
    a(f"""s_mov_b32 s3, 0
    s_and_b32 s{S_WM}, s{S_WAVE}, 3
    s_lshl_b32 s{S_WM}, s{S_WM}, 13
    s_add_u32 s{S_WM}, s{S_WM}, {WS_WMIX}
    s_add_u32 s{S_WM+1}, s{S_WM}, 4096""")
    for k in range(8): a(f"v_mov_b32 v{RR+k}, 0")
    a("s_waitcnt lgkmcnt(0)")
    meta_fix_entry(a, False)
    a("s_nop 0")
    def first_rows(lo, hi):
        for e in range(lo, hi):
            a(f"""v_readlane_b32 s{S_K+e}, v{ENT}, {e}
                  s_and_b32 s{S_OFF}, s{S_K+e}, s{S_MASK}
                  buffer_load_dwordx4 {vr(XR+4*e,4)}, v{V_L16}, {sr(S_X,4)}, s{S_OFF} offen""")
    if opt.xpre:
        first_rows(0, opt.xpre)
        if ",8:" in "," + opt.xt and 2 not in opt.recat:
            a(f"s_cmp_lg_u32 s{S_W0}, 0\ns_cbranch_scc1 REC_WAIT\ns_waitcnt vmcnt({opt.xpre + 1})\ns_branch REC_IN\nREC_WAIT:")
        a(f"s_waitcnt vmcnt({opt.xpre})\nREC_IN:")
        st('recs landed')
        a("s_barrier")
    meta_read_rec(a)
    first_rows(opt.xpre, D)
    a(f"v_mov_b32 v{KEY}, v{ENT}")
    a(f"""s_waitcnt lgkmcnt(0)
    v_mov_b32 v{EF}, v{RECN+2}
    v_mov_b32 v{EF+1}, v{RECN+3}""")
    for i in range(4): a(w_mfma(i))
    a(p_mfma(0, 0)); a(p_mfma(0, 1)); a(p_mfma(1, 0))
    a("s_nop 1")
    for m in range(4): w_cvt(a, m)
    for odd in range(2):
        u, r = act_regs(0, odd)
        for h in range(2): a(act_addr(TT + 2 * odd + h, u + h))
        for h in range(2): a(act_read(r + h, TT + 2 * odd + h))
    a(f"s_waitcnt vmcnt({D-1})")
    st('first row')
    a(t_mfma(0, 0)); a(t_mfma(0, 1))
    body(a, opt)
    a(f"""MAIN_DONE:
    s_add_u32 s{S_W0}, s{S_W0}, {CAP}
    s_cmp_ge_u32 s{S_W0}, s{S_N}
    s_cbranch_scc1 ALL_DONE
    s_waitcnt vmcnt(0) lgkmcnt(0)""")
    zero_hist(a)
    a("s_waitcnt lgkmcnt(0)\ns_barrier\ns_branch ROUND\nALL_DONE:")
    st('main done')
    if opt.stamps: a(f"s_memtime s[100:101]\ns_waitcnt lgkmcnt(0)\ns_sub_u32 s{S_ST+30}, s100, s{S_ST+30}")
    PK = WPK; VOUT = UU
    a(f"""v_lshrrev_b32 v{T0+3}, 8, v{V_L16}            ; lane >> 4
    s_lshr_b32 s{S_T}, s{S_WAVE}, 2                   ; half
    s_mul_i32 s{S_T+1}, s{S_T}, 80
    v_mul_u32_u24 v{T0+1}, 20, v{T0+3}
    v_add_u32 v{T0+1}, s{S_T+1}, v{T0+1}""")
    for t in range(5): a(f"ds_read_b32 v{VOUT+t}, v{T0+1} offset:{L_INV + 4*t}")
    for sl in range(5):
        for o in range(4): a(f"v_cvt_pk_bf16_f32 v{PK+4*sl+o}, v{ACC+8*sl+o}, v{ACC+8*sl+4+o}")
    a(f"""s_mul_i32 s{S_T+1}, s{S_WAVE}, {4 * AGG_RS}
    s_add_u32 s{S_T+1}, s{S_T+1}, {L_AGG}
    v_lshrrev_b32 v{T0+4}, 2, v{V_L16}
    v_add_u32 v{T0+4}, s{S_T+1}, v{T0+4}
    v_bfe_u32 v{T0+2}, v{V_L16}, 4, 4                 ; lane & 15
    s_mul_i32 s{S_T+1}, s{S_T}, {16 * AGG_RS}
    s_add_u32 s{S_T+1}, s{S_T+1}, {L_AGG}
    v_mul_u32_u24 v{T0}, {AGG_RS}, v{T0+2}
    v_lshl_add_u32 v{T0}, v{T0+3}, 4, v{T0}
    v_add_u32 v{T0}, s{S_T+1}, v{T0}
    s_lshl_b32 s{S_T}, s{S_BETA}, 10
    s_and_b32 s{S_T+1}, s{S_WAVE}, 3
    s_lshl_b32 s{S_T+1}, s{S_T+1}, 8
    s_add_u32 s{S_T}, s{S_T}, s{S_T+1}
    v_lshl_add_u32 v{T0+2}, v{T0+2}, 4, s{S_T}
    s_waitcnt lgkmcnt(0)""")
    for t in range(5): a(f"v_lshl_add_u32 v{VOUT+t}, v{VOUT+t}, 18, v{T0+2}")
    a("s_barrier")
    st('all main done')
    AF = XR
    def wr(sl):
        for o in range(4): a(f"ds_write_b32 v{T0+4}, v{PK+4*sl+o} offset:{(32*sl + o)*AGG_RS}")
    def rd(t):
        for ks in range(4): a(f"ds_read_b128 {vr(AF+16*(t%2)+4*ks,4)}, v{T0} offset:{t*32*AGG_RS + ks*64}")
    def mm(t, waits):
        for ks in range(4):
            if waits[ks] is not None: a(f"s_waitcnt lgkmcnt({waits[ks]})")
            for j in range(2):
                d = ACC + 8 * t + 4 * j
                a(f"v_mfma_f32_16x16x32_bf16 {vr(d,4)}, {vr(AF+16*(t%2)+4*ks,4)}, {vr(WMIX+16*j+4*ks,4)}, " + ("0" if ks == 0 else vr(d, 4)))
    def pack_store(t):
        d = ACC + 8 * t; p = RR + 4 * (t % 2)
        for j in range(4): a(f"v_cvt_pk_bf16_f32 v{p+j}, v{d+2*j}, v{d+2*j+1}")
        a(f"buffer_store_dwordx4 {vr(p,4)}, v{VOUT+t}, {sr(S_OUT,4)}, 0 offen {opt.outst}")
    wr(0); wr(1)
    a("s_waitcnt vmcnt(0) lgkmcnt(0)\ns_barrier")
    st('agg in LDS')
    rd(0); rd(1)
    a("s_waitcnt lgkmcnt(4)")
    wr(2); wr(3)
    mm(0, [None] * 4)
    wr(4)
    a("s_waitcnt lgkmcnt(0)\ns_barrier")
    rd(2)
    mm(1, [None] * 4); pack_store(0)
    rd(3)
    mm(2, [7, 6, 5, 4]); pack_store(1)
    rd(4)
    mm(3, [7, 6, 5, 4]); pack_store(2)
    mm(4, [3, 2, 1, 0]); pack_store(3)
    a("s_nop 3")
    pack_store(4)
    st('end')
    if opt.probe:
        a(f"""s_cmp_eq_u32 s93, 0
        s_cselect_b32 s93, s92, s93
        s_sub_u32 s93, s93, s92
        s_mul_i32 s93, s93, 4
        s_add_u32 s92, s92, s93
        s_add_u32 s92, s92, 6000
        HOLD_SPIN:
        s_memrealtime s[98:99]
        s_waitcnt lgkmcnt(0)
        s_sub_u32 s98, s98, s92
        s_cmp_lt_i32 s98, 0
        s_cbranch_scc1 HOLD_SPIN""")
    if opt.stamps:
        a("s_waitcnt vmcnt(0)")
        st('stores done 2')
        a(f"""s_lshl_b32 s10, s2, 3
        s_add_u32 s10, s10, s{S_WAVE}
        s_lshl_b32 s10, s10, 7
        s_add_u32 s10, s10, {WS_STAMP}
        v_mov_b32 v{T0}, s10
        s_sub_u32 s{S_ST+31}, s{S_END}, s{S_START}
        s_sub_u32 s{S_ST+29}, {1 << 21}, s{S_SPIN}""")
        for k in range(32): a(f"v_mov_b32 v{XR+k}, s{S_ST+k}")
        for k in range(8): a(f"buffer_store_dwordx4 {vr(XR+4*k,4)}, v{T0}, {sr(S_WS,4)}, 0 offen offset:{16*k}")
    a("END:\ns_endpgm")
    a(".p2align 6\n.type DEAL_TABLE,@object\nDEAL_TABLE:\n.short " + ", ".join(map(str, deal_bytes())) + "\n.size DEAL_TABLE, 256")
    return a.text()

def generate(opt):
    here = os.path.dirname(os.path.abspath(__file__))
    out = open(here + "/header.txt").read()
    out += f"; @launch grid=(256,1,1) block=(512,1,1) lds={LDS_BYTES}\n"
    out += f'.amdgcn_target "amdgcn-amd-amdhsa--gfx950"\n.text\n.globl {KERN}\n.p2align 8\n.type {KERN},@function\n'
    out += kernel(opt)
    out += f""".section .rodata,"a"
.p2align 6
.amdhsa_kernel {KERN}
  .amdhsa_next_free_vgpr {NVGPR}
  .amdhsa_next_free_sgpr {NSGPR if opt.stamps or opt.probe else 66}
  .amdhsa_accum_offset {(NVGPR + 3) // 4 * 4}
  .amdhsa_group_segment_fixed_size 0
  .amdhsa_kernarg_size 88
  .amdhsa_user_sgpr_count 2
  .amdhsa_user_sgpr_kernarg_segment_ptr 1
  .amdhsa_system_sgpr_workgroup_id_x 1
  .amdhsa_float_denorm_mode_32 3
.end_amdhsa_kernel
"""
    return out

def options(argv):
    p = argparse.ArgumentParser()
    p.add_argument("-o", default="/code/" + NAME + ".s")
    p.add_argument("--stamps", action="store_true")
    p.add_argument("--probe", default="")
    p.add_argument("--D", type=int, default=6)
    p.add_argument("--prio", type=int, default=0)
    p.add_argument("--recat", type=lambda t: tuple(map(int, t.split(","))), default=(0, 1, 0))
    p.add_argument("--only", default="")
    p.add_argument("--wsoff", type=int, default=0)
    p.add_argument("--gran", type=int, default=4)
    p.add_argument("--late", type=int, default=62)
    p.add_argument("--xpre", type=int, default=2)
    p.add_argument("--xt", default="3:0:20")
    p.add_argument("--lsplit", type=int, default=5)
    p.add_argument("--k1st", default="sc0 sc1")
    p.add_argument("--outst", default="sc0 sc1")
    return p.parse_args(argv)

if __name__ == "__main__":
    opt = options(sys.argv[1:])
    open(opt.o, "w").write(generate(opt))
    if opt.stamps: open(opt.o + ".names", "w").write(repr(STAMPS))
    import subprocess
    here = os.path.dirname(os.path.abspath(__file__))
    r = subprocess.run([sys.executable, here + "/hazards.py", opt.o], capture_output=True, text=True).stdout
    if " 0 finding" not in r: print(r)
    r = subprocess.run([sys.executable, here + "/../cdna_unwritten_srd_check.py", opt.o], capture_output=True, text=True)
    if r.returncode: print(r.stdout, r.stderr)
```

```python
import sys, argparse, os

NAME = "gather_scatter__tensor_product_equiv_tfn__graph"
KERN = NAME + "_kernel"
N, E, C = 10000, 320000, 128
NP, EP = 250, 1280
WS_KEY = 0
WS_REC = 0x280000
WS_WMIX = 0x771000
WS_TAB = 0x780000
WS_EPOCH = WS_TAB + 256 * 4096
WS_END = WS_EPOCH + 128
WS_STAMP = 0x900000
CAP = 1472

class Asm:
    def __init__(self): self.l = []
    def __call__(self, s):
        for line in s.strip("\n").split("\n"):
            line = line.strip()
            if not line: continue
            self.l.append(line if line.endswith(":") else "    " + line)
    def text(self): return "\n".join(self.l) + "\n"

def vr(a, n=1): return f"v{a}" if n == 1 else f"v[{a}:{a+n-1}]"
def sr(a, n=1): return f"s{a}" if n == 1 else f"s[{a}:{a+n-1}]"

SCAN_STEPS = ["row_shr:1 row_mask:0xf bank_mask:0xf bound_ctrl:0", "row_shr:2 row_mask:0xf bank_mask:0xf bound_ctrl:0",
              "row_shr:4 row_mask:0xf bank_mask:0xf bound_ctrl:0", "row_shr:8 row_mask:0xf bank_mask:0xf bound_ctrl:0",
              "row_bcast:15 row_mask:0xa bank_mask:0xf", "row_bcast:31 row_mask:0xc bank_mask:0xf"]
def scan64(a, *regs):
    for c in SCAN_STEPS:
        a("s_nop 1" if len(regs) == 1 else "s_nop 0")
        for v in regs: a(f"v_add_u32_dpp v{v}, v{v}, v{v} {c}")

L_HIST = 0; L_DEG = 1024; L_WT = 1280; L_CNT = L_WT + 16
L_INV = 1344; L_MAP = 1536; L_BASE = 1792
L_SENT = L_BASE + 1024
L_UREC = L_SENT + CAP * 4
L_CG = L_UREC + CAP * 16
L_LUT = 32768
L1_HIST = L_SENT; L1_LNS = L1_HIST + 1024; L1_BASE = L1_LNS + 2048; L1_SREC = L_UREC
L1_SKEY = L_LUT + 53 * 1024
assert L_CG + 128 <= L_LUT and L1_SREC + (EP + 64) * 16 <= L_CG and L1_BASE <= 8192
NLN = 10
L_AGG = L_LUT; AGG_RS = 288
LDS_BYTES = L_LUT + 131072

V_L16 = 1
V_LEN, V_PRE, V_GID = 2, 3, 4
V_AENT, V_POS = 5, 6
V_ONE = 15
V_DEAL = 174
V_DUMMY = 167
V_UNUSED = 166
T0 = 8
ACC = 16; XR = 64; TP = 96; UU = 112; RR = 128; TT = 136; WPK = 140; WTMP = 148
KEY = 164; ENT = 165; RECN = 168; EF = 172; CONST = 176; WMIX = 188
NVGPR = 220
PE, PO, CGB = CONST, CONST + 2, CONST + 4
LJ = 128
S_NODE = 4
S_X, S_WS, S_OUT = 12, 16, 20
S_BETA, S_WAVE, S_N, S_W0, S_NWIN, S_START, S_END, S_REM, S_REMB, S_OFF, S_MASK = range(24, 35)
S_SPIN = 35
S_M = 36
S_T = 42
S_K = 48
S_IN = 40
S_JOB, S_JCNT = 62, 63
S_NLO, S_NHI = 64, 65
S_WM = 10
S_L2E = 10
S_ST = 66
NSGPR = 102

STAMPS = []
def stamp(a, opt, name):
    if opt.probe == name: a("s_memrealtime s[98:99]\ns_waitcnt lgkmcnt(0)\ns_mov_b32 s93, s98")
    if not opt.stamps: return
    if opt.only and name not in opt.only.split(",") + ["start", "sorted", "main done", "stores done 2"]: return
    if name not in STAMPS: STAMPS.append(name)
    a(f"s_memrealtime s[98:99]\ns_waitcnt lgkmcnt(0)\ns_mov_b32 s{S_ST + STAMPS.index(name)}, s98")

S_RET = 6
def lut_sub(a):
    J, Ex, R, P = LJ, LJ + 8, LJ + 16, LJ + 24
    a(f"""LUT_SUB:
    s_lshl_b32 s3, s{S_JOB}, 25
    s_add_u32 s3, s3, 0x8000
    v_lshl_add_u32 v{J}, v{V_L16}, 15, s3""")
    for k in range(1, 8): a(f"v_add_u32 v{J+k}, 0x10000, v{J+k-1}")
    for k in range(0, 8, 2): a(f"v_pk_mul_f32 {vr(Ex+k,2)}, {vr(J+k,2)}, {sr(S_L2E,2)}")
    for k in range(8): a(f"v_exp_f32 v{Ex+k}, v{Ex+k}")
    a(f"s_lshl_b32 s3, s{S_JOB}, 10")
    for k in range(0, 8, 2): a(f"v_pk_add_f32 {vr(R+k,2)}, {vr(Ex+k,2)}, 1.0 op_sel_hi:[1,0]")
    for k in range(8): a(f"v_rcp_f32 v{R+k}, v{R+k}")
    a(f"v_add_u32 v{P+8}, s3, v{V_L16}")
    for k in range(0, 8, 2): a(f"v_pk_mul_f32 {vr(J+k,2)}, {vr(J+k,2)}, {vr(R+k,2)}")
    a(f"v_add_u32 v{P+9}, 0x10000, v{P+8}")
    for k in range(0, 8, 2): a(f"v_pk_mul_f32 {vr(Ex+k,2)}, {vr(J+k,2)}, {vr(Ex+k,2)} neg_lo:[1,0] neg_hi:[1,0]")
    for k in range(4): a(f"v_cvt_pk_bf16_f32 v{P+k}, v{J+2*k}, v{J+2*k+1}")
    for k in range(4): a(f"v_cvt_pk_bf16_f32 v{P+4+k}, v{Ex+2*k}, v{Ex+2*k+1}")
    a(f"""ds_write_b128 v{P+8}, {vr(P,4)} offset:{L_LUT}
    ds_write_b128 v{P+9}, {vr(P+4,4)} offset:{L_LUT}
    s_add_u32 s{S_JOB}, s{S_JOB}, 1
    s_sub_u32 s{S_JCNT}, s{S_JCNT}, 1
    s_cmp_lg_u32 s{S_JCNT}, 0
    s_cbranch_scc1 LUT_SUB
    s_setpc_b64 {sr(S_RET,2)}""")
def lut_jobs(a, count): a(f"s_mov_b32 s{S_JCNT}, {count}\ns_call_b64 {sr(S_RET,2)}, LUT_SUB")

def lut_plain(a, tag, region, last=None, cont=False, until=None):
    P = LJ
    for name, first, end, bias in (("L", 1, 24, 0x20000 - 0x800080), ("H", 34, 62, 0x20000)):
        if name != region: continue
        last = last or end
        if cont: a(f"s_cmp_gt_u32 s{S_JOB}, {last}\ns_cbranch_scc1 LUTP_END_{tag}")
        else: a(f"s_add_u32 s{S_JOB}, s{S_WAVE}, {first}")
        if name == "H" and not cont:
            for k in range(4): a(f"v_mov_b32 v{P+4+k}, 0x80008000")
        a(f"LUTP_{tag}{name}:")
        if until:
            a(f"""ds_read_b32 v{T0+2}, v{T0+3} offset:{L_CNT}
            s_waitcnt lgkmcnt(0)
            v_readfirstlane_b32 s3, v{T0+2}
            s_cmp_eq_u32 s3, 3
            s_cbranch_scc1 {until}""")
        a(f"""s_mul_i32 s3, s{S_JOB}, {512 * 0x10001}
        s_add_u32 s3, s3, {bias & 0xffffffff}
        v_add_u32 v{P}, s3, v{P+10}
        s_lshl_b32 s3, s{S_JOB}, 10
        v_add_u32 v{P+8}, s3, v{V_L16}""")
        for k in range(1, 4): a(f"v_add_u32 v{P+k}, {k * 0x20002}, v{P}")
        a(f"v_add_u32 v{P+9}, 0x10000, v{P+8}")
        if name == "L":
            for k in range(4): a(f"v_or_b32 v{P+4+k}, 0x80008000, v{P+k}")
        a(f"""ds_write_b128 v{P+8}, {vr(P,4)} offset:{L_LUT}
        ds_write_b128 v{P+9}, {vr(P+4,4)} offset:{L_LUT}
        s_add_u32 s{S_JOB}, s{S_JOB}, {5 if name == "L" else 4}
        s_cmp_le_u32 s{S_JOB}, {last}
        s_cbranch_scc1 LUTP_{tag}{name}
        LUTP_END_{tag}:""")

def tab_issue(a): a(f"buffer_load_dwordx4 {vr(RECN,4)}, v{V_POS}, {sr(S_WS,4)}, 0 offen sc1")
def tab_check(a):
    a(f"""POLL_TAB:
    s_waitcnt vmcnt(0)
    v_lshrrev_b32 v{T0+3}, 22, v{RECN}
    v_cmp_ne_u32 vcc, s{S_NLO}, v{RECN+1}
    v_cmp_ne_u32 {sr(S_T,2)}, s{S_NHI}, v{T0+3}
    s_or_b64 vcc, vcc, {sr(S_T,2)}
    s_and_b64 exec, exec, vcc
    s_cbranch_execz POLLED_TAB
    s_sub_u32 s{S_SPIN}, s{S_SPIN}, 1
    s_cbranch_scc1 END""")
    tab_issue(a)
    a("s_branch POLL_TAB\nPOLLED_TAB:\ns_mov_b64 exec, -1")

def load_epoch(a):
    a(f"""s_add_u32 s4, s{S_WS}, {WS_EPOCH}
    s_addc_u32 s5, s{S_WS+1}, 0
    s_load_dwordx2 {sr(S_NLO,2)}, s[4:5], 0""")
def make_tag(a):
    a(f"""s_add_u32 s{S_NLO}, s{S_NLO}, 1
    s_and_b32 s{S_NHI}, s{S_NHI}, 0x3ff""")

def scan256(a, H_, O_):
    a(f"""v_add_u32 v{T0+2}, v{H_}, v{H_+1}
    v_add3_u32 v{T0+2}, v{T0+2}, v{H_+2}, v{H_+3}
    v_mov_b32 v{T0+3}, v{T0+2}""")
    scan64(a, T0 + 3)
    a(f"""v_sub_u32 v{O_}, v{T0+3}, v{T0+2}
    v_add_u32 v{O_+1}, v{O_}, v{H_}
    v_add_u32 v{O_+2}, v{O_+1}, v{H_+1}
    v_add_u32 v{O_+3}, v{O_+2}, v{H_+2}""")

SRC, DST, YY, EFP, WRAD, CG, WMX = S_IN + 2, S_IN + 4, S_IN + 6, S_IN + 8, S_IN + 10, S_IN + 12, S_IN + 14
D_, S_, Y_, F_, B_, R_, H_, O_, TB = 64, 68, 72, 80, 88, 92, 96, 100, 108
CT = WMIX
def const_sub(a):
    a(f"""CONST_SUB:
    ds_write_b32 v{CT+5}, v{CT+4} offset:{L_CG}
    v_lshrrev_b32 v{CT+5}, 3, v{V_L16}
    v_and_b32 v{CT+5}, 24, v{CT+5}
    s_mov_b32 s4, 0x05040100
    s_mov_b32 s5, 0x07060302""")
    for i in range(4): a(f"ds_read_b64_tr_b16 {vr(CGB+2*i,2)}, v{CT+5} offset:{L_CG + 32*i}")
    for u in range(2):
        a(f"v_perm_b32 v{PE+u}, v{CT+1+2*u}, v{CT+2*u}, s4\nv_perm_b32 v{PO+u}, v{CT+1+2*u}, v{CT+2*u}, s5")
    a(f"s_setpc_b64 {sr(S_RET,2)}")
def const_finish(a): a(f"s_call_b64 {sr(S_RET,2)}, CONST_SUB")

def phase1(a, opt):
    st = lambda n: stamp(a, opt, n)
    WS = sr(S_WS, 2); FL = opt.k1st
    a(f"""s_cmp_ge_u32 s{S_WAVE}, 5
    s_cbranch_scc1 HELP""")
    lut_plain(a, "W0", "L", last=opt.lsplit)
    a(f"""s_cmp_ge_u32 s2, {NP}
    s_cbranch_scc1 AUX
    global_load_dwordx4 {vr(Y_,4)}, v{T0+1}, {sr(YY,2)}
    global_load_dwordx4 {vr(Y_+4,4)}, v{T0+1}, {sr(YY,2)} offset:16
    global_load_dwordx4 {vr(F_,4)}, v{T0+1}, {sr(EFP,2)}
    global_load_dwordx4 {vr(F_+4,4)}, v{T0+1}, {sr(EFP,2)} offset:16
""")
    st('jobs A')
    a("s_waitcnt vmcnt(11)")
    st('dst arrived')
    for k in range(4):
        a(f"""v_and_b32 v{B_+k}, 0xff, v{D_+k}
              v_lshlrev_b32 v{B_+k}, 2, v{B_+k}
              ds_add_rtn_u32 v{R_+k}, v{B_+k}, v{V_ONE} offset:{L1_HIST}""")
    a("s_waitcnt vmcnt(10)")
    for k in range(4):
        a(f"""v_lshrrev_b32 v{D_+k}, 8, v{D_+k}
              v_lshl_or_b32 v{TB+2*k}, v{S_+k}, 10, v{D_+k}""")
    a(f"""s_mov_b32 s9, {L1_SKEY}
    s_waitcnt lgkmcnt(0)
    s_barrier
    ds_read_b128 {vr(H_,4)}, v{V_L16} offset:{L1_HIST}""")
    make_tag(a)
    for k in range(4): a(f"v_mov_b32 v{TB+2*k+1}, s{S_NLO}")
    a("v_mov_b32 v119, 0")
    for k in range(4):
        a(f"""v_cmp_gt_u32 vcc, {NLN}, v{R_+k}
              v_mul_u32_u24 v116, 6, v{R_+k}
              v_lshlrev_b32 v117, 1, v{B_+k}
              v_cndmask_b32 v118, 0, v{D_+k}, vcc
              v_lshlrev_b64 {vr(120+2*(k%2),2)}, v116, v[118:119]
              ds_or_b64 v117, {vr(120+2*(k%2),2)} offset:{L1_LNS}""")
    a("s_waitcnt lgkmcnt(4)")
    scan256(a, H_, O_)
    a(f"ds_write_b128 v{V_L16}, {vr(O_,4)} offset:{L1_BASE}")
    for k in range(4): a(f"ds_read_b32 v{H_+k}, v{B_+k} offset:{L1_BASE}")
    for k in range(4):
        a(f"""s_waitcnt lgkmcnt(3)
              v_add_u32 v{R_+k}, v{R_+k}, v{H_+k}
              v_lshl_add_u32 v{B_+k}, v{R_+k}, 3, s9
              ds_write_b64 v{B_+k}, {vr(TB+2*k,2)}""")
    for k in range(4):
        a(f"v_lshlrev_b32 v{R_+k}, 4, v{R_+k}\nv_add_u32 v{R_+k}, {L1_SREC}, v{R_+k}")
    a("s_waitcnt lgkmcnt(0)\ns_barrier")
    st('keys binned')
    a("s_waitcnt vmcnt(0)")
    for k in range(4):
        a(f"ds_write2_b64 v{R_+k}, {vr(Y_+2*k,2)}, {vr(F_+2*k,2)} offset0:0 offset1:1")
    st('recs binned')
    a("BINNED:\ns_setprio 0")
    a(f"s_waitcnt lgkmcnt(0)\ns_barrier\nv_mov_b32 v{V_LEN}, 0")
    const_finish(a)
    lut_plain(a, "W", "L", cont=True)
    a(f"s_cmp_eq_u32 s{S_WAVE}, 4\ns_cbranch_scc1 WAVE4")
    lut_plain(a, "U", "H", last=opt.late)
    tab_issue(a)
    st('tab issued')
    if opt.late < 62: lut_plain(a, "V", "H", cont=True)
    tab_check(a)
    st('tab arrived')
    a("s_branch TAB_DONE")
    lut_sub(a)
    const_sub(a)
    a("HELP:")
    a(f"""s_sub_u32 s8, s{S_WAVE}, 5
    s_mul_i32 s4, s8, 3072
    s_cmp_eq_u32 s8, 1
    s_cselect_b32 s4, 4096, s4
    s_mul_i32 s3, s2, {EP * 8}
    s_add_u32 s3, s3, s4
    v_add_u32 v{T0}, s3, v{V_L16}
    s_add_u32 s4, s4, {L1_SKEY}
    v_add_u32 v{T0+1}, s4, v{V_L16}
    s_mul_i32 s4, s8, 7168
    s_mul_i32 s3, s2, {EP * 16}
    s_add_u32 s3, s3, s4
    s_add_u32 s3, s3, {WS_REC}
    v_add_u32 v{T0+4}, s3, v{V_L16}
    v_add_u32 v{T0+5}, s4, v{V_L16}
    s_lshl_b32 s3, s2, 12
    s_add_u32 s3, s3, {WS_TAB}
    v_add_u32 v117, s3, v{V_L16}
    s_waitcnt lgkmcnt(0)""")
    make_tag(a)
    st('help jobs')
    a(f"""s_barrier
    s_cmp_eq_u32 s{S_WAVE}, 6
    s_cbranch_scc1 ROW
    s_cmp_eq_u32 s{S_WAVE}, 7
    s_cselect_b32 s{S_JOB}, 63, 0""")
    lut_jobs(a, 1)
    a("s_waitcnt vmcnt(0)")
    const_finish(a)
    a(f"""v_mov_b32 v{T0+2}, {0x7f80 * 2}
    v_mov_b32 v{T0+3}, 0x7f80
    s_cmp_lg_u32 s{S_WAVE}, 7
    s_cbranch_scc1 NO_ROW
    ds_write_b16 v{T0+2}, v{T0+3} offset:{L_LUT}
    s_branch NO_ROW
ROW:
    v_lshrrev_b32 v116, 2, v{V_L16}""")
    QT, HH, SS = 84, 100, 104
    for m in range(4): a(f"ds_read_b32 v{HH+m}, v116 offset:{L1_HIST + 256*m}")
    a(f"""s_lshl_b32 s3, s2, 12
    s_add_u32 s3, s3, {WS_TAB}
    v_add_u32 v117, s3, v{V_L16}
    v_lshrrev_b32 v116, 1, v{V_L16}
    s_lshl_b32 s3, s{S_NHI}, 22
    s_waitcnt lgkmcnt(0)""")
    for m in range(4): a(f"v_mov_b32 v{SS+m}, v{HH+m}")
    scan64(a, SS, SS + 1, SS + 2, SS + 3)
    a(f"""v_readlane_b32 s4, v{SS}, 63
    v_readlane_b32 s5, v{SS+1}, 63
    v_readlane_b32 s9, v{SS+2}, 63""")
    for m in range(4): a(f"v_sub_u32 v{SS+m}, v{SS+m}, v{HH+m}")
    a(f"""s_add_u32 s5, s5, s4
    s_add_u32 s9, s9, s5
    v_add_u32 v{SS+1}, s4, v{SS+1}
    v_add_u32 v{SS+2}, s5, v{SS+2}
    v_add_u32 v{SS+3}, s9, v{SS+3}""")
    for m in range(4):
        a(f"""v_lshl_or_b32 v{QT+4*m}, v{HH+m}, 11, v{SS+m}
              v_or_b32 v{QT+4*m}, s3, v{QT+4*m}
              v_mov_b32 v{QT+4*m+1}, s{S_NLO}""")
    a("s_waitcnt vmcnt(0)")
    const_finish(a)
    a(f"""NO_ROW:
    s_barrier
    s_cmp_lg_u32 s{S_WAVE}, 6
    s_cbranch_scc1 ROW_DONE""")
    for m in range(4): a(f"ds_read_b64 {vr(QT+4*m+2,2)}, v116 offset:{L1_LNS + 512*m}")
    for m in range(4): a(f"s_waitcnt lgkmcnt({3-m})\nglobal_store_dwordx4 v117, {vr(QT+4*m,4)}, {WS} offset:{1024*m} sc0 sc1")
    st('table published')
    a("ROW_DONE:")
    for k in range(4): a(f"ds_read_b128 {vr(64+4*k,4)}, v{T0+1} offset:{1024*k}")
    a(f"""v_mov_b32 v{V_LEN}, 0
    s_add_u32 s{S_JOB}, s8, s8                       ; jobs 27, 28 / 29, 30, 31 / 32, 33
    s_add_u32 s{S_JOB}, s{S_JOB}, 27
    s_cmp_eq_u32 s8, 2
    s_addc_u32 s{S_JOB}, s{S_JOB}, 0
    s_cmp_eq_u32 s8, 1
    s_cselect_b32 s{S_JCNT}, 3, 2
    s_waitcnt lgkmcnt(0)
    s_barrier
    s_cmp_ge_u32 s2, {NP}
    s_cbranch_scc1 RECS_STORED""")
    for k in range(7): a(f"ds_read_b128 {vr(84+4*k,4)}, v{T0+5} offset:{L1_SREC + 1024*k}")
    for k in range(7):
        if k == 4: a(f"v_add_u32 v{T0+4}, 4096, v{T0+4}")
        if k == 6: a(f"s_cmp_eq_u32 s8, 2\ns_cbranch_scc1 RECS_STORED")
        a(f"s_waitcnt lgkmcnt({6-k})\nglobal_store_dwordx4 v{T0+4}, {vr(84+4*k,4)}, {WS} offset:{(1024*k) % 4096} {FL}")
    a(f"""RECS_STORED:
    s_call_b64 {sr(S_RET,2)}, LUT_SUB
    s_cmp_ge_u32 s2, {NP}
    s_cbranch_scc1 TAB_DONE
    v_mov_b32 v{T0+2}, 0
    s_waitcnt vmcnt(0)
    s_mov_b64 exec, 1
    ds_add_u32 v{T0+2}, v{V_ONE} offset:{L_CNT}
    s_mov_b64 exec, -1
WAIT_ACK:
    ds_read_b32 v{T0+3}, v{T0+2} offset:{L_CNT}
    s_waitcnt lgkmcnt(0)
    v_readfirstlane_b32 s3, v{T0+3}
    s_cmp_eq_u32 s3, 3
    s_cbranch_scc0 WAIT_ACK""")
    st('recs acked')
    for k in range(4):
        if k == 2: a(f"s_cmp_eq_u32 s8, 1\ns_cbranch_scc1 TAB_DONE")
        a(f"global_store_dwordx4 v{T0}, {vr(64+4*k,4)}, {WS} offset:{1024*k} {FL}")
    a("s_branch TAB_DONE")
    a(f"""AUX_LOAD:
    s_sub_u32 s4, s2, {NP}
    s_cmp_ge_u32 s4, 4
    s_cbranch_scc1 NO_EDGES
    s_cmp_ge_u32 s{S_WAVE}, 4
    s_cbranch_scc1 NO_EDGES
    s_lshl_b32 s5, s{S_WAVE}, 13
    s_lshl_b32 s8, s4, 6
    s_add_u32 s5, s5, s8
    v_lshrrev_b32 v80, 8, v{V_L16}
    v_lshlrev_b32 v80, 11, v80
    v_bfe_u32 v81, v{V_L16}, 4, 4
    v_lshl_add_u32 v80, v81, 2, v80
    v_add_u32 v80, s5, v80""")
    for t in range(8): a(f"global_load_dword v{64+t}, v80, {sr(WMX,2)} offset:{t*256}")
    a(f"""s_branch NO_EDGES
AUX:
    s_cmp_ge_u32 s2, {NP + 4}
    s_cbranch_scc1 AUX_DONE
    s_cmp_ge_u32 s{S_WAVE}, 4
    s_cbranch_scc1 AUX_DONE
    s_sub_u32 s4, s2, {NP}
    s_lshl_b32 s5, s4, 13
    s_lshl_b32 s8, s{S_WAVE}, 10
    s_add_u32 s5, s5, s8
    s_add_u32 s5, s5, {WS_WMIX}
    v_add_u32 v81, s5, v{V_L16}
    s_mov_b32 s4, 0x05040100
    s_mov_b32 s5, 0x07060302
    s_waitcnt vmcnt(6)""")
    for u in range(4):
        a(f"v_perm_b32 v{72+u}, v{65+2*u}, v{64+2*u}, s4\nv_perm_b32 v{76+u}, v{65+2*u}, v{64+2*u}, s5")
    a(f"""global_store_dwordx4 v81, v[72:75], {WS} {FL}
    v_add_u32 v81, 4096, v81
    global_store_dwordx4 v81, v[76:79], {WS} {FL}
AUX_DONE:
    s_waitcnt lgkmcnt(0)""")
    make_tag(a)
    a(f"""s_barrier
    s_waitcnt vmcnt(0)
    s_barrier
    s_branch BINNED
WAVE4:
    s_mov_b32 s{S_JOB}, 25""")
    lut_jobs(a, 2)
    a("TAB_DONE:")

def mfma4(d, a_, b, c, blk=None):
    cc = "0" if c is None else vr(c, 4)
    return f"v_mfma_f32_4x4x4_16b_bf16 {vr(d,4)}, {vr(a_,2)}, {vr(b,2)}, {cc}" + ("" if blk is None else f" cbsz:4 abid:{blk}")
def p_mfma(g, odd):
    return mfma4(UU + 8 * (g % 2) + 4 * odd, EF, PO if odd else PE, None, g % 16)
def t_mfma(e, odd):
    return mfma4(TP + 8 * (e % 2) + 4 * odd, WPK + 2 * (e % 4), XR + 4 * (e % 8) + 2 * odd, None, (e % 64) // 4)
def act_regs(eb, odd):
    return UU + 8 * ((eb // 4) % 2) + 4 * odd + eb % 4, RR + 4 * ((eb // 2) % 2) + 2 * odd
def act_addr(t, u):
    return f"v_lshlrev_b32_sdwa v{t}, v{V_ONE}, v{u} dst_sel:DWORD dst_unused:UNUSED_PAD src0_sel:DWORD src1_sel:WORD_1"
def act_read(r, t): return f"ds_read_u16_d16_hi v{r}, v{t} offset:{L_LUT}"
def fma4(a, q):
    h = q % 2
    a(f"s_set_gpr_idx_on s{S_K + q % 16}, 0xc")
    for odd in range(2):
        r = RR + 4 * ((q // 2) % 2) + 2 * odd
        for o in (0, 2):
            acc = ACC + 4 * odd + o; tp = TP + 8 * (q % 2) + 4 * odd + o
            a(f"v_pk_fma_f32 {vr(acc,2)}, {vr(r,2)}, {vr(tp,2)}, {vr(acc,2)} op_sel:[{h},0,0] op_sel_hi:[{h},1,1]")
    a("s_set_gpr_idx_off")
def meta_read_entry(a): a(f"ds_read_b32 v{ENT}, v{V_AENT}")
def meta_fix_entry(a, rec=True):
    a(f"""v_cmp_gt_u32 vcc, s{S_END}, v{V_POS}
          v_add_u32 v{V_POS}, 64, v{V_POS}
          v_add_u32 v{V_AENT}, 256, v{V_AENT}
          v_cndmask_b32 v{ENT}, 40, v{ENT}, vcc
          v_lshrrev_b32 v{T0}, 21, v{ENT}
          v_lshlrev_b32 v{T0}, 4, v{T0}
          v_lshlrev_b32 v{T0+1}, 3, v{ENT}""")
    if rec: meta_read_rec(a)
    a(f"""v_and_b32 v{T0+1}, 0xfffc00, v{T0+1}
          v_and_or_b32 v{ENT}, v{ENT}, 56, v{T0+1}""")
def meta_read_rec(a): a(f"ds_read_b128 {vr(RECN,4)}, v{T0} offset:{L_UREC}")
def w_mfma(i): return mfma4(WTMP + 4 * i, RECN, CGB + 2 * i, None)
def w_cvt(a, m):
    a(f"""v_cvt_pk_bf16_f32 v{WPK+2*m}, v{WTMP+m}, v{WTMP+4+m}
          v_cvt_pk_bf16_f32 v{WPK+2*m+1}, v{WTMP+8+m}, v{WTMP+12+m}""")

def step(a, opt, q, drain=None):
    D = opt.D; loads = drain is None
    eb = q + 2 - q % 2; odd = q % 2
    u, r = act_regs(eb, odd); t = TT + 2 * odd
    g, ur = (q + 6) // 4, (q + 6) % 4
    if ur % 2 == 0: a(p_mfma(g, ur // 2))
    elif 40 <= q < 48: a(w_mfma((q - 40) // 2))
    a(act_addr(t, u))
    if loads: a(f"s_waitcnt vmcnt({D - 2})")
    elif D - 2 - drain >= 0: a(f"s_waitcnt vmcnt({8 + D - 2 - drain})")
    a(t_mfma(q + 1, 0))
    if loads: a(f"v_readlane_b32 s{S_K + (q + D) % 16}, v{KEY if q + D < 64 else ENT}, {(q + D) % 64}")
    else:     a("s_nop 0")
    a(t_mfma(q + 1, 1))
    a(act_addr(t + 1, u + 1))
    a(act_read(r, t)); a(act_read(r + 1, t + 1))
    if q >= 60: w_cvt(a, q - 60)
    if loads:
        a(f"s_and_b32 s{S_OFF}, s{S_K + (q + D) % 16}, s{S_MASK}")
        a(f"buffer_load_dwordx4 {vr(XR + 4 * ((q + D) % 8), 4)}, v{V_L16}, {sr(S_X,4)}, s{S_OFF} offen")
    if q % 2 == 0: a("s_waitcnt lgkmcnt(2)")
    fma4(a, q)
    if loads: x_touch(a, opt, 100 + q, False)
    if loads and q == 8: meta_read_entry(a)
    if loads and q == 12: meta_fix_entry(a)
    if q == 57: a(f"v_mov_b32 v{EF}, v{RECN+2}\nv_mov_b32 v{EF+1}, v{RECN+3}\ns_nop 1")
    if loads and q == 63: a(f"v_mov_b32 v{KEY}, v{ENT}")

def body(a, opt):
    G = opt.gran
    for q in range(64):
        if q % G == 0: a(f"A_{q}:\ns_sub_u32 s{S_REM}, s{S_REM}, {G}\ns_cbranch_scc1 B_{q}")
        step(a, opt, q)
    if opt.stamps and not opt.only:
        STAMPS.extend(("batch 1", "batch 2")); k = S_ST + len(STAMPS) - 2
        a(f"""s_memrealtime s[98:99]
        s_waitcnt lgkmcnt(0)
        s_cmp_eq_u32 s{k}, 0
        s_cselect_b32 s99, 0, s98
        s_cselect_b32 s{k}, s98, s{k}
        s_cmp_eq_u32 s{k+1}, 0
        s_cselect_b32 s{k+1}, s99, s{k+1}""")
    if opt.probe == "batch 1":
        a("s_memrealtime s[98:99]\ns_waitcnt lgkmcnt(0)\ns_cmp_eq_u32 s93, 0\ns_cselect_b32 s93, s98, s93")
    a("s_branch A_0")
    for q in range(0, 64, G):
        a(f"B_{q}:")
        for k in range(8):
            a(f"buffer_load_dwordx4 {vr(WMIX+4*k,4)}, v{V_L16}, {sr(S_WS,4)}, s{S_WM + k // 4} offen offset:{(k%4)*1024} sc1")
        for i in range(opt.D):
            a(f"s_sub_u32 s{S_REMB}, s{S_REMB}, 1\ns_cbranch_scc1 MAIN_DONE")
            step(a, opt, (q + i) % 64, i)
        a("s_branch MAIN_DONE")

def x_touch(a, opt, where, guard=True):
    for spec in filter(None, opt.xt.split(",")):
        w, lo, hi = map(int, spec.split(":"))
        if w != where: continue
        if guard: a(f"s_cmp_lg_u32 s{S_W0}, 0\ns_cbranch_scc1 NO_X_TOUCH_{w}")
        if w >= 100: a(f"s_bitcmp1_b32 s3, {w % 32}\ns_cbranch_scc1 NO_X_TOUCH_{w}\ns_bitset1_b32 s3, {w % 32}")
        a(f"""s_lshl_b32 s{S_OFF}, s2, 3
        s_add_u32 s{S_OFF}, s{S_OFF}, s{S_WAVE}
        s_lshl_b32 s{S_OFF}, s{S_OFF}, 7
        s_add_u32 s{S_OFF}, s{S_OFF}, {lo << 18}
        v_min_u32 v{T0+1}, {(hi - lo - 1) * 16}, v{V_L16}
        v_lshl_add_u32 v{T0+1}, v{T0+1}, 14, s{S_OFF}
        buffer_load_dword v{V_DUMMY}, v{T0+1}, {sr(S_X,4)}, 0 offen""")
        a(f"NO_X_TOUCH_{w}:")

DEAL = ([4, 2, 4, 7, 6, 3, 1, 5, 0, 4, 2, 6, 1, 7, 3, 5, 0, 4, 7, 3, 0, 1, 5, 6, 2, 5, 0, 1, 6, 7, 3, 2, 0, 5, 3, 1, 6, 7, 2, 4],
        [0, 2, 7, 1, 4, 6, 5, 3, 6, 3, 1, 7, 4, 0, 2, 5, 4, 3, 5, 6, 7, 1, 0, 2, 7, 5, 2, 4, 3, 6, 0, 1, 5, 1, 3, 6, 4, 2, 7, 0])
def deal_bytes():
    out = []
    for t in DEAL:
        assert sorted(t) == sorted(list(range(8)) * 5)
        out += [4 * (5 * w + t[:r].count(w)) | (8 * w + t[:r].count(w)) << 8 for r, w in enumerate(t)] + [0] * 24
    return out

def zero_hist(a):
    a(f"""v_lshlrev_b32 v{T0+3}, 2, v0
    v_mov_b32 v{T0+4}, 0
    v_cmp_gt_u32 vcc, 0x100, v0
    s_and_saveexec_b64 {sr(S_T,2)}, vcc
    ds_write_b32 v{T0+3}, v{T0+4} offset:{L_HIST}
    s_mov_b64 exec, {sr(S_T,2)}""")

def kernel(opt):
    a = Asm(); D = opt.D
    st = lambda n: stamp(a, opt, n)
    a(f"""{KERN}:
    s_cmp_ge_u32 s2, 256
    s_cbranch_scc1 END""")
    if opt.probe: a("s_mov_b32 s93, 0\ns_memrealtime s[98:99]\ns_waitcnt lgkmcnt(0)\ns_mov_b32 s92, s98")
    if opt.stamps:
        for k in range(32): a(f"s_mov_b32 s{S_ST+k}, 0")
    st('start')
    a(f"""s_load_dwordx16 {sr(S_IN,16)}, s[0:1], 0
    s_load_dwordx2 {sr(S_WS,2)}, s[0:1], 80
    s_load_dwordx2 {sr(S_X,2)}, s[0:1], 0
    s_load_dwordx2 {sr(S_OUT,2)}, s[0:1], 64
    ; wave 7 of every workgroup takes 8 lines; the 32 workgroups with equal id % 8 cover 32 KiB
    s_getpc_b64 s[6:7]
CODE_HERE:
    v_lshrrev_b32 v{T0}, 6, v0
    s_lshr_b32 s5, s2, 3
    s_lshl_b32 s4, s5, 10
    v_readfirstlane_b32 s{S_WAVE}, v{T0}
    v_and_b32 v{T0+2}, 7, v0
    v_lshl_add_u32 v{T0+2}, v{T0+2}, 7, s4
    v_min_u32 v{T0+2}, END-CODE_HERE, v{T0+2}
    s_cmp_lg_u32 s{S_WAVE}, 7
    s_cbranch_scc1 NO_CODE_TOUCH
    global_load_dword v{V_DUMMY}, v{T0+2}, s[6:7]
NO_CODE_TOUCH:
    s_mul_i32 s3, s2, {EP * 4}
    v_lshl_add_u32 v{T0}, v0, 4, s3
    v_and_b32 v{T0+2}, 63, v0
    v_lshlrev_b32 v{V_L16}, 4, v{T0+2}
    v_lshlrev_b32 v{CT+5}, 2, v{T0+2}
    s_cmp_ge_u32 s{S_WAVE}, 5
    s_waitcnt lgkmcnt(0)
    s_cbranch_scc1 NO_EDGES
    s_cmp_ge_u32 s2, {NP}
    s_cbranch_scc1 AUX_LOAD
    s_setprio 1
    global_load_dwordx4 {vr(D_,4)}, v{T0}, {sr(DST,2)}
    global_load_dwordx4 {vr(S_,4)}, v{T0}, {sr(SRC,2)}
NO_EDGES:""")
    if opt.wsoff: a(f"s_add_u32 s{S_WS}, s{S_WS}, {opt.wsoff << 20}\ns_addc_u32 s{S_WS+1}, s{S_WS+1}, 0")
    st('kernargs')
    for k in range(4): a(f"global_load_dword v{CT+k}, v{CT+5}, {sr(WRAD,2)} offset:{k*256}")
    a(f"""v_and_b32 v{CT+5}, 0x7f, v{CT+5}
    global_load_dword v{CT+4}, v{CT+5}, {sr(CG,2)}
    s_and_b32 s3, s2, 0x87
    s_cmp_eq_u32 s3, 0
    s_cselect_b32 s3, 128, 0
    s_add_u32 s3, s3, DEAL_TABLE-CODE_HERE
    v_lshl_add_u32 v{V_DEAL}, v{T0+2}, 1, s3
    global_load_ushort v{V_DEAL}, v{V_DEAL}, s[6:7]
    v_lshlrev_b32 v{T0+1}, 1, v{T0}
    v_lshlrev_b32 v{T0+3}, 4, v0
    v_mov_b32 v{T0+4}, 0
    v_mov_b32 v{T0+5}, 0
    v_pk_mov_b32 {vr(ACC,2)}, {vr(T0+4,2)}, {vr(T0+4,2)}
    v_pk_mov_b32 {vr(ACC+2,2)}, {vr(T0+4,2)}, {vr(T0+4,2)}
    ds_write_b128 v{T0+3}, {vr(ACC,4)}
    s_and_b32 s4, s2, 7
    s_lshl_b32 s4, s4, 5
    s_lshr_b32 s5, s2, 3
    s_or_b32 s{S_BETA}, s4, s5
    v_mov_b32 v{V_ONE}, 1
    s_mov_b32 s{S_X+2}, {N * 1024}
    s_mov_b32 s{S_X+3}, 0x20000
    s_mov_b32 s{S_WS+2}, {WS_END if not opt.stamps else WS_STAMP + 0x80000}
    s_mov_b32 s{S_WS+3}, 0x20000
    s_mov_b32 s{S_OUT+2}, {N * 1024}
    s_mov_b32 s{S_OUT+3}, 0x20000
    s_mov_b32 s{S_MASK}, 0xfffffc00
    s_mov_b32 s{S_W0}, 0
    s_mov_b32 s{S_L2E}, 0xbfb8aa3b
    s_mov_b32 s{S_L2E+1}, 0xbfb8aa3b
    s_mov_b32 s{S_SPIN}, {1 << 21}
    v_and_b32 v{V_GID}, 0xff, v0
    s_lshl_b32 s3, s{S_BETA}, 4
    s_add_u32 s3, s3, {WS_TAB}
    v_lshl_add_u32 v{V_POS}, v{V_GID}, 12, s3
    v_mul_u32_u24 v{V_GID}, {EP}, v{V_GID}
    v_mul_u32_u24 v{LJ+10}, 0x8000, v{V_L16}
    v_lshl_add_u32 v{LJ+10}, v{T0+2}, 3, v{LJ+10}    ; lane * 8 * 0x10001""")
    for k in range(4, 48, 2): a(f"v_pk_mov_b32 {vr(ACC+k,2)}, {vr(T0+4,2)}, {vr(T0+4,2)}")
    a("s_waitcnt lgkmcnt(0)")
    load_epoch(a)
    a("s_barrier")
    phase1(a, opt)
    a(f"""s_cmp_ge_u32 s{S_WAVE}, 4
    s_cbranch_scc1 TOTALS
    v_and_b32 v{T0+5}, 0x7ff, v{RECN}
    v_bfe_u32 v{V_LEN}, v{RECN}, 11, 11
    v_add_u32 v{V_GID}, v{V_GID}, v{T0+5}
    v_mov_b32 v{V_PRE}, v{V_LEN}""")
    scan64(a, V_PRE)
    a(f"""s_lshl_b32 s3, s{S_WAVE}, 2
    v_mov_b32 v{T0+2}, s3
    v_add_u32 v{T0+3}, 1, v{V_PRE}
    v_sub_u32 v{V_PRE}, v{V_PRE}, v{V_LEN}
    s_mov_b32 exec_lo, 0
    s_mov_b32 exec_hi, 0x80000000
    ds_write_b32 v{T0+2}, v{T0+3} offset:{L_WT}
    s_mov_b64 exec, -1
TOTALS:
    v_mov_b32 v{T0+2}, 0
TOTALS_SPIN:
    ds_read_b128 {vr(XR,4)}, v{T0+2} offset:{L_WT}
    s_waitcnt lgkmcnt(0)""")
    for k in range(4): a(f"v_readfirstlane_b32 s{4+k}, v{XR+k}")
    a(f"""s_min_u32 s3, s4, s5
    s_min_u32 s8, s6, s7
    s_min_u32 s3, s3, s8
    s_cmp_eq_u32 s3, 0
    s_cbranch_scc0 TOTALS_OK
    s_sub_u32 s{S_SPIN}, s{S_SPIN}, 1
    s_cbranch_scc0 TOTALS_SPIN
    s_endpgm
TOTALS_OK:
    s_add_u32 s5, s5, s4
    s_add_u32 s6, s6, s5
    s_add_u32 s7, s7, s6
    s_sub_u32 s{S_N}, s7, 4
    s_cmp_eq_u32 s{S_WAVE}, 1
    s_cselect_b32 s3, s4, 0
    s_cmp_eq_u32 s{S_WAVE}, 2
    s_cselect_b32 s3, s5, s3
    s_cmp_eq_u32 s{S_WAVE}, 3
    s_cselect_b32 s3, s6, s3
    s_sub_u32 s3, s3, s{S_WAVE}
    v_add_u32 v{V_PRE}, s3, v{V_PRE}
    s_cmp_lg_u32 s{S_WAVE}, 4
    s_cbranch_scc1 EPOCH_DONE
    s_cmp_lg_u32 s2, 0
    s_cbranch_scc1 EPOCH_DONE
    v_mov_b32 v{T0+4}, s{S_NLO}
    v_mov_b32 v{T0+2}, {WS_EPOCH}
    s_mov_b64 exec, 1
    global_store_dword v{T0+2}, v{T0+4}, {sr(S_WS,2)} sc0 sc1
    s_mov_b64 exec, -1
EPOCH_DONE:""")
    x_touch(a, opt, 3, False)
    st('prefix done')
    a(f"""ROUND:
    v_mov_b32 v{T0}, 0
    v_subrev_u32 v{T0+1}, s{S_W0}, v{V_PRE}
    v_mov_b32 v{T0+2}, v{V_GID}
    s_mov_b32 s3, {CAP}
    s_cmp_gt_u32 s{S_N}, {CAP}
    s_cbranch_scc1 EXPAND
    v_lshlrev_b32 v{T0+3}, 2, v{V_PRE}""")
    for j in range(16):
        a(f"v_cmpx_lt_u32 vcc, {j}, v{V_LEN}")
        if j % 2 == 0 and j >= 6: a("s_cbranch_execz EXPAND_DONE")
        a(f"ds_write_b32 v{T0+3}, v{T0+2} offset:{L_SENT + 4*j}\nv_add_u32 v{T0+2}, 1, v{T0+2}")
    a(f"""v_mov_b32 v{T0}, 16
    v_add_u32 v{T0+1}, 16, v{T0+1}
EXPAND:
    v_cmp_lt_u32 vcc, v{T0}, v{V_LEN}
    s_and_b64 exec, exec, vcc
    s_cbranch_execz EXPAND_DONE
    v_cmp_gt_u32 vcc, s3, v{T0+1}
    v_lshlrev_b32 v{T0+3}, 2, v{T0+1}
    s_and_saveexec_b64 {sr(S_T,2)}, vcc
    ds_write_b32 v{T0+3}, v{T0+2} offset:{L_SENT}
    s_mov_b64 exec, {sr(S_T,2)}
    v_add_u32 v{T0}, 1, v{T0}
    v_add_u32 v{T0+1}, 1, v{T0+1}
    v_add_u32 v{T0+2}, 1, v{T0+2}
    s_branch EXPAND
EXPAND_DONE:
    s_mov_b64 exec, -1
    s_sub_u32 s{S_NWIN}, s{S_N}, s{S_W0}
    s_min_u32 s{S_NWIN}, s{S_NWIN}, {CAP}
    v_lshlrev_b32 v{T0}, 2, v0""")
    for i in range(3):
        a(f"""v_add_u32 v{T0+1}, {512*i}, v0
              v_cmp_gt_u32 {sr(S_M+2*i,2)}, s{S_NWIN}, v{T0+1}""")
    st('list built')
    a("s_waitcnt lgkmcnt(0)\ns_barrier")
    st('list barrier')
    G = XR
    KP = TP
    for i in range(3): a(f"ds_read_b32 v{G+i}, v{T0} offset:{L_SENT + 2048*i}")
    a(f"""s_mov_b32 s{S_T+2}, 13421                         ; 32 * 2^32 / (10000 * 1024)
    s_waitcnt lgkmcnt(0)""")
    for i in range(3):
        a(f"v_lshlrev_b32 v{G+4+i}, 3, v{G+i}\nv_lshlrev_b32 v{G+i}, 4, v{G+i}")
    def key_loads(tag):
        a(f"""s_mov_b64 exec, {sr(S_M+4,2)}
        s_cbranch_execz SKIP3{tag}
        buffer_load_dwordx2 {vr(KP+4,2)}, v{G+6}, {sr(S_WS,4)}, 0 offen sc1
        SKIP3{tag}:""")
        for i in range(2):
            a(f"s_mov_b64 exec, {sr(S_M+2*i,2)}\nbuffer_load_dwordx2 {vr(KP+2*i,2)}, v{G+4+i}, {sr(S_WS,4)}, 0 offen sc1")
        a("s_mov_b64 exec, -1")
    key_loads("")
    x_touch(a, opt, 7)
    H = G + 20
    a(f"""v_lshrrev_b32 v{T0}, 4, v{V_L16}              ; lane
    s_cmp_lg_u32 s{S_W0}, 0
    s_cbranch_scc1 KEY_WAIT
    s_cmp_ge_u32 s{S_WAVE}, 4
    s_cbranch_scc1 DEG_DONE""")
    for j in range(NLN):
        t = T0 + 1 + j % 2
        if j < 5: a(f"v_bfe_u32 v{t}, v{RECN+2}, {6*j}, 6")
        elif j == 5: a(f"v_alignbit_b32 v{t}, v{RECN+3}, v{RECN+2}, 30\nv_and_b32 v{t}, 63, v{t}")
        else: a(f"v_bfe_u32 v{t}, v{RECN+3}, {6*j-32}, 6")
        a(f"""v_lshlrev_b32 v{t}, 2, v{t}
              v_cmpx_lt_u32 vcc, {j}, v{V_LEN}
              ds_add_u32 v{t}, v{V_ONE} offset:{L_DEG}""")
    a(f"""s_mov_b64 exec, -1
DEG_DONE:
    v_lshlrev_b32 v{T0+1}, 2, v{T0}
    v_cmp_gt_u32 {sr(S_T,2)}, 40, v{T0}
    v_sub_u32 v{T0+2}, 63, v{T0}
    s_mul_i32 s10, s{S_WAVE}, 5
    s_waitcnt lgkmcnt(0)
    s_barrier
    ds_read_b32 v{H}, v{T0+1} offset:{L_DEG}
    v_add_u32 v{T0+3}, s10, v{T0}
    v_lshlrev_b32 v{T0+4}, 2, v{T0+3}
    s_waitcnt lgkmcnt(0)
    v_lshl_or_b32 v{H}, v{H}, 6, v{T0+2}
    v_cndmask_b32 v{H}, 0, v{H}, {sr(S_T,2)}
    s_nop 0""")
    for k in range(5):
        a(f"v_readlane_b32 s{S_NODE+k}, v{H}, s10")
        if k < 4: a("s_add_u32 s10, s10, 1")
    for k in range(5): a(f"v_cmp_lt_u32 {sr(S_K+2*k,2)}, s{S_NODE+k}, v{H}")
    for k in range(5): a(f"s_bcnt1_i32_b64 s{S_NODE+k}, {sr(S_K+2*k,2)}")
    for k in range(5): a(f"v_readlane_b32 s{S_NODE+k}, v{V_DEAL}, s{S_NODE+k}")
    a("s_nop 0")
    for k in range(5): a(f"v_writelane_b32 v{T0+1}, s{S_NODE+k}, {k}")
    a(f"""v_lshrrev_b32 v{T0+2}, 11, v{T0+1}
    v_bfe_u32 v{T0+5}, v{T0+1}, 8, 3
    v_lshlrev_b32 v{T0+2}, 7, v{T0+2}
    v_and_b32 v{T0+1}, 0xff, v{T0+1}
    v_lshl_or_b32 v{T0+2}, v{T0+5}, 19, v{T0+2}
    s_mov_b64 exec, 0x1f
    ds_write_b32 v{T0+1}, v{T0+3} offset:{L_INV}
    ds_write_b32 v{T0+4}, v{T0+2} offset:{L_MAP}
    s_mov_b64 exec, -1
    s_waitcnt lgkmcnt(0)
    s_barrier""")
    st('dealt')
    a(f"""KEY_WAIT:
    s_lshl_b32 s3, s{S_WAVE}, 10
    s_add_u32 s3, s3, {L_UREC}
    s_mov_b32 s9, {WS_REC}""")
    if ",7:" in "," + opt.xt:
        a(f"s_cmp_lg_u32 s{S_W0}, 0\ns_cbranch_scc1 KEY_WAIT0\ns_waitcnt vmcnt(1)\ns_branch KEY_CHECK")
    a("KEY_WAIT0:\ns_waitcnt vmcnt(0)\nKEY_CHECK:")
    for i in range(3): a(f"v_cmp_ne_u32 {sr(S_K+2*i,2)}, s{S_NLO}, v{KP+2*i+1}")
    for i in range(3): a(f"v_and_b32 v{G+8+i}, 63, v{KP+2*i}\nv_lshlrev_b32 v{G+8+i}, 2, v{G+8+i}")
    for i in range(3): a(f"s_and_b64 {sr(S_K+2*i,2)}, {sr(S_K+2*i,2)}, {sr(S_M+2*i,2)}")
    a(f"""s_or_b64 {sr(S_K,2)}, {sr(S_K,2)}, {sr(S_K+2,2)}
    s_or_b64 {sr(S_K,2)}, {sr(S_K,2)}, {sr(S_K+4,2)}
    s_cbranch_scc0 KEYS_OK
    s_sub_u32 s{S_SPIN}, s{S_SPIN}, 1
    s_cbranch_scc1 END""")
    key_loads("R")
    a("s_branch KEY_WAIT0\nKEYS_OK:")
    st('keys arrived')
    def rec_dma(at):
        for i in (2, 0, 1):
            if opt.recat[i] != at: continue
            a(f"s_add_u32 m0, s3, {i*8192}\ns_mov_b64 exec, {sr(S_M+2*i,2)}")
            if i == 2: a("s_cbranch_execz SKIP3D")
            a(f"buffer_load_dwordx4 v{G+i}, {sr(S_WS,4)}, s9 offen sc1 lds")
            if i == 2: a("SKIP3D:")
        if at in opt.recat: a("s_mov_b64 exec, -1")
    for i in range(3): a(f"ds_read_b32 v{G+8+i}, v{G+8+i} offset:{L_MAP}")
    rec_dma(0)
    for i in range(3):
        a(f"""v_mul_hi_u32 v{G+12+i}, s{S_T+2}, v{KP+2*i}
              v_add_u32 v{T0+1}, {512*i}, v0
              v_lshlrev_b32 v{T0+1}, 21, v{T0+1}
              v_lshrrev_b32 v{G+16+i}, 10, v{KP+2*i}
              v_lshl_or_b32 v{G+16+i}, v{G+16+i}, 7, v{T0+1}""")
    for i in range(3):
        a(f"""s_waitcnt lgkmcnt({2-i})
              v_lshrrev_b32 v{T0+1}, 16, v{G+8+i}
              v_and_b32 v{G+8+i}, 0x380, v{G+8+i}
              v_or_b32 v{G+16+i}, v{G+16+i}, v{T0+1}
              v_lshl_add_u32 v{G+8+i}, v{G+12+i}, 2, v{G+8+i}""")
    for i in range(3):
        a(f"s_mov_b64 exec, {sr(S_M+2*i,2)}\nds_add_rtn_u32 v{G+12+i}, v{G+8+i}, v{V_ONE} offset:{L_HIST}")
    a("s_mov_b64 exec, -1")
    rec_dma(1)
    a(f"""s_lshl_b32 s10, s{S_WAVE}, 3
    s_add_u32 s11, s10, 8
    s_and_b32 s11, s11, 63
    s_waitcnt lgkmcnt(0)
    s_barrier""")
    st('hist done')
    a(f"ds_read_b128 {vr(H,4)}, v{V_L16} offset:{L_HIST}")
    rec_dma(2)
    a("s_waitcnt lgkmcnt(0)")
    scan256(a, H, H + 4)
    a(f"""ds_write_b128 v{V_L16}, {vr(H+4,4)} offset:{L_BASE}
    v_readlane_b32 s{S_START}, v{H+4}, s10
    v_readlane_b32 s{S_END}, v{H+4}, s11""")
    for i in range(3): a(f"ds_read_b32 v{G+8+i}, v{G+8+i} offset:{L_BASE}")
    a(f"""s_cmp_eq_u32 s{S_WAVE}, 7
    s_cselect_b32 s{S_END}, s{S_NWIN}, s{S_END}
    v_add_u32 v{V_POS}, s{S_START}, v{T0}
    v_lshlrev_b32 v{V_AENT}, 2, v{V_POS}
    v_add_u32 v{V_AENT}, {L_SENT}, v{V_AENT}
    s_sub_u32 s11, s{S_END}, s{S_START}
    s_max_u32 s10, s11, {D}
    s_add_u32 s10, s10, {opt.gran - 1 - D}
    s_and_b32 s{S_REM}, s10, {-opt.gran}
    s_max_u32 s10, s11, s{S_REM}
    s_sub_u32 s{S_REMB}, s10, s{S_REM}""")
    for i in range(3):
        a(f"""s_waitcnt lgkmcnt({2 if i else 2})
              v_add_lshl_u32 v{G+8+i}, v{G+8+i}, v{G+12+i}, 2
              s_mov_b64 exec, {sr(S_M+2*i,2)}
              ds_write_b32 v{G+8+i}, v{G+16+i} offset:{L_SENT}
              s_mov_b64 exec, -1""")
    a("s_waitcnt lgkmcnt(0)")
    if not opt.xpre: a("s_waitcnt vmcnt(0)")
    a("s_barrier")
    st('sorted')
    if opt.stamps: a(f"s_memtime s[100:101]\ns_waitcnt lgkmcnt(0)\ns_mov_b32 s{S_ST+30}, s100")
    if opt.prio == 1: a(f"s_cmp_ge_u32 s{S_WAVE}, 4\ns_cbranch_scc0 PRIO_SET\ns_setprio 1\nPRIO_SET:")
    meta_read_entry(a)
    a(f"""s_mov_b32 s3, 0
    s_and_b32 s{S_WM}, s{S_WAVE}, 3
    s_lshl_b32 s{S_WM}, s{S_WM}, 13
    s_add_u32 s{S_WM}, s{S_WM}, {WS_WMIX}
    s_add_u32 s{S_WM+1}, s{S_WM}, 4096""")
    for k in range(8): a(f"v_mov_b32 v{RR+k}, 0")
    a("s_waitcnt lgkmcnt(0)")
    meta_fix_entry(a, False)
    a("s_nop 0")
    def first_rows(lo, hi):
        for e in range(lo, hi):
            a(f"""v_readlane_b32 s{S_K+e}, v{ENT}, {e}
                  s_and_b32 s{S_OFF}, s{S_K+e}, s{S_MASK}
                  buffer_load_dwordx4 {vr(XR+4*e,4)}, v{V_L16}, {sr(S_X,4)}, s{S_OFF} offen""")
    if opt.xpre:
        first_rows(0, opt.xpre)
        a(f"s_waitcnt vmcnt({opt.xpre})")
        st('recs landed')
        a("s_barrier")
    meta_read_rec(a)
    first_rows(opt.xpre, D)
    a(f"v_mov_b32 v{KEY}, v{ENT}")
    a(f"""s_waitcnt lgkmcnt(0)
    v_mov_b32 v{EF}, v{RECN+2}
    v_mov_b32 v{EF+1}, v{RECN+3}""")
    for i in range(4): a(w_mfma(i))
    a(p_mfma(0, 0)); a(p_mfma(0, 1)); a(p_mfma(1, 0))
    a("s_nop 1")
    for m in range(4): w_cvt(a, m)
    for odd in range(2):
        u, r = act_regs(0, odd)
        for h in range(2): a(act_addr(TT + 2 * odd + h, u + h))
        for h in range(2): a(act_read(r + h, TT + 2 * odd + h))
    a(f"s_waitcnt vmcnt({D-1})")
    st('first row')
    a(t_mfma(0, 0)); a(t_mfma(0, 1))
    body(a, opt)
    a(f"""MAIN_DONE:
    s_add_u32 s{S_W0}, s{S_W0}, {CAP}
    s_cmp_ge_u32 s{S_W0}, s{S_N}
    s_cbranch_scc1 ALL_DONE
    s_waitcnt vmcnt(0) lgkmcnt(0)""")
    zero_hist(a)
    a("s_waitcnt lgkmcnt(0)\ns_barrier\ns_branch ROUND\nALL_DONE:")
    st('main done')
    if opt.stamps: a(f"s_memtime s[100:101]\ns_waitcnt lgkmcnt(0)\ns_sub_u32 s{S_ST+30}, s100, s{S_ST+30}")
    PK = WPK; VOUT = UU
    a(f"""v_lshrrev_b32 v{T0+3}, 8, v{V_L16}            ; lane >> 4
    s_lshr_b32 s{S_T}, s{S_WAVE}, 2                   ; half
    s_mul_i32 s{S_T+1}, s{S_T}, 80
    v_mul_u32_u24 v{T0+1}, 20, v{T0+3}
    v_add_u32 v{T0+1}, s{S_T+1}, v{T0+1}""")
    for t in range(5): a(f"ds_read_b32 v{VOUT+t}, v{T0+1} offset:{L_INV + 4*t}")
    for sl in range(5):
        for o in range(4): a(f"v_cvt_pk_bf16_f32 v{PK+4*sl+o}, v{ACC+8*sl+o}, v{ACC+8*sl+4+o}")
    a(f"""s_mul_i32 s{S_T+1}, s{S_WAVE}, {4 * AGG_RS}
    s_add_u32 s{S_T+1}, s{S_T+1}, {L_AGG}
    v_lshrrev_b32 v{T0+4}, 2, v{V_L16}
    v_add_u32 v{T0+4}, s{S_T+1}, v{T0+4}
    v_bfe_u32 v{T0+2}, v{V_L16}, 4, 4                 ; lane & 15
    s_mul_i32 s{S_T+1}, s{S_T}, {16 * AGG_RS}
    s_add_u32 s{S_T+1}, s{S_T+1}, {L_AGG}
    v_mul_u32_u24 v{T0}, {AGG_RS}, v{T0+2}
    v_lshl_add_u32 v{T0}, v{T0+3}, 4, v{T0}
    v_add_u32 v{T0}, s{S_T+1}, v{T0}
    s_lshl_b32 s{S_T}, s{S_BETA}, 10
    s_and_b32 s{S_T+1}, s{S_WAVE}, 3
    s_lshl_b32 s{S_T+1}, s{S_T+1}, 8
    s_add_u32 s{S_T}, s{S_T}, s{S_T+1}
    v_lshl_add_u32 v{T0+2}, v{T0+2}, 4, s{S_T}
    s_waitcnt lgkmcnt(0)""")
    for t in range(5): a(f"v_lshl_add_u32 v{VOUT+t}, v{VOUT+t}, 18, v{T0+2}")
    a("s_barrier")
    st('all main done')
    AF = XR
    def wr(sl):
        for o in range(4): a(f"ds_write_b32 v{T0+4}, v{PK+4*sl+o} offset:{(32*sl + o)*AGG_RS}")
    def rd(t):
        for ks in range(4): a(f"ds_read_b128 {vr(AF+16*(t%2)+4*ks,4)}, v{T0} offset:{t*32*AGG_RS + ks*64}")
    def mm(t, waits):
        for ks in range(4):
            if waits[ks] is not None: a(f"s_waitcnt lgkmcnt({waits[ks]})")
            for j in range(2):
                d = ACC + 8 * t + 4 * j
                a(f"v_mfma_f32_16x16x32_bf16 {vr(d,4)}, {vr(AF+16*(t%2)+4*ks,4)}, {vr(WMIX+16*j+4*ks,4)}, " + ("0" if ks == 0 else vr(d, 4)))
    def pack_store(t):
        d = ACC + 8 * t; p = RR + 4 * (t % 2)
        for j in range(4): a(f"v_cvt_pk_bf16_f32 v{p+j}, v{d+2*j}, v{d+2*j+1}")
        a(f"buffer_store_dwordx4 {vr(p,4)}, v{VOUT+t}, {sr(S_OUT,4)}, 0 offen {opt.outst}")
    wr(0); wr(1)
    a("s_waitcnt vmcnt(0) lgkmcnt(0)\ns_barrier")
    st('agg in LDS')
    rd(0); rd(1)
    a("s_waitcnt lgkmcnt(4)")
    wr(2); wr(3)
    mm(0, [None] * 4)
    wr(4)
    a("s_waitcnt lgkmcnt(0)\ns_barrier")
    rd(2)
    mm(1, [None] * 4); pack_store(0)
    rd(3)
    mm(2, [7, 6, 5, 4]); pack_store(1)
    rd(4)
    mm(3, [7, 6, 5, 4]); pack_store(2)
    mm(4, [3, 2, 1, 0]); pack_store(3)
    a("s_nop 3")
    pack_store(4)
    st('end')
    if opt.probe:
        a(f"""s_cmp_eq_u32 s93, 0
        s_cselect_b32 s93, s92, s93
        s_sub_u32 s93, s93, s92
        s_mul_i32 s93, s93, 4
        s_add_u32 s92, s92, s93
        s_add_u32 s92, s92, 6000
        HOLD_SPIN:
        s_memrealtime s[98:99]
        s_waitcnt lgkmcnt(0)
        s_sub_u32 s98, s98, s92
        s_cmp_lt_i32 s98, 0
        s_cbranch_scc1 HOLD_SPIN""")
    if opt.stamps:
        a("s_waitcnt vmcnt(0)")
        st('stores done 2')
        a(f"""s_lshl_b32 s10, s2, 3
        s_add_u32 s10, s10, s{S_WAVE}
        s_lshl_b32 s10, s10, 7
        s_add_u32 s10, s10, {WS_STAMP}
        v_mov_b32 v{T0}, s10
        s_sub_u32 s{S_ST+31}, s{S_END}, s{S_START}
        s_sub_u32 s{S_ST+29}, {1 << 21}, s{S_SPIN}""")
        for k in range(32): a(f"v_mov_b32 v{XR+k}, s{S_ST+k}")
        for k in range(8): a(f"buffer_store_dwordx4 {vr(XR+4*k,4)}, v{T0}, {sr(S_WS,4)}, 0 offen offset:{16*k}")
    a("END:\ns_endpgm")
    a(".p2align 6\n.type DEAL_TABLE,@object\nDEAL_TABLE:\n.short " + ", ".join(map(str, deal_bytes())) + "\n.size DEAL_TABLE, 256")
    return a.text()

def generate(opt):
    here = os.path.dirname(os.path.abspath(__file__))
    out = open(here + "/header.txt").read()
    out += f"; @launch grid=(256,1,1) block=(512,1,1) lds={LDS_BYTES}\n"
    out += f'.amdgcn_target "amdgcn-amd-amdhsa--gfx950"\n.text\n.globl {KERN}\n.p2align 8\n.type {KERN},@function\n'
    out += kernel(opt)
    out += f""".section .rodata,"a"
.p2align 6
.amdhsa_kernel {KERN}
  .amdhsa_next_free_vgpr {NVGPR}
  .amdhsa_next_free_sgpr {NSGPR if opt.stamps or opt.probe else 66}
  .amdhsa_accum_offset {(NVGPR + 3) // 4 * 4}
  .amdhsa_group_segment_fixed_size 0
  .amdhsa_kernarg_size 88
  .amdhsa_user_sgpr_count 2
  .amdhsa_user_sgpr_kernarg_segment_ptr 1
  .amdhsa_system_sgpr_workgroup_id_x 1
  .amdhsa_float_denorm_mode_32 3
.end_amdhsa_kernel
"""
    return out

def options(argv):
    p = argparse.ArgumentParser()
    p.add_argument("-o", default="/code/" + NAME + ".s")
    p.add_argument("--stamps", action="store_true")
    p.add_argument("--probe", default="")
    p.add_argument("--D", type=int, default=6)
    p.add_argument("--prio", type=int, default=0)
    p.add_argument("--recat", type=lambda t: tuple(map(int, t.split(","))), default=(0, 1, 0))
    p.add_argument("--only", default="")
    p.add_argument("--wsoff", type=int, default=0)
    p.add_argument("--gran", type=int, default=4)
    p.add_argument("--late", type=int, default=62)
    p.add_argument("--xpre", type=int, default=2)
    p.add_argument("--xt", default="3:0:20")
    p.add_argument("--lsplit", type=int, default=5)
    p.add_argument("--k1st", default="sc0 sc1")
    p.add_argument("--outst", default="sc0 sc1")
    return p.parse_args(argv)

if __name__ == "__main__":
    opt = options(sys.argv[1:])
    open(opt.o, "w").write(generate(opt))
    if opt.stamps: open(opt.o + ".names", "w").write(repr(STAMPS))
    import subprocess
    here = os.path.dirname(os.path.abspath(__file__))
    r = subprocess.run([sys.executable, here + "/hazards.py", opt.o], capture_output=True, text=True).stdout
    if " 0 finding" not in r: print(r)
    r = subprocess.run([sys.executable, here + "/../cdna_unwritten_srd_check.py", opt.o], capture_output=True, text=True)
    if r.returncode: print(r.stdout, r.stderr)
```

```python
import sys, argparse, os

NAME = "gather_scatter__tensor_product_equiv_tfn__graph"
KERN = NAME + "_kernel"
N, E, C = 10000, 320000, 128
NP, EP = 250, 1280
WS_KEY = 0
WS_REC = 0x280000
WS_WMIX = 0x771000
WS_TAB = 0x780000
WS_EPOCH = WS_TAB + 256 * 4096
WS_END = WS_EPOCH + 128
WS_STAMP = 0x900000
CAP = 1472

class Asm:
    def __init__(self): self.l = []
    def __call__(self, s):
        for line in s.strip("\n").split("\n"):
            line = line.strip()
            if not line: continue
            self.l.append(line if line.endswith(":") else "    " + line)
    def text(self): return "\n".join(self.l) + "\n"

def vr(a, n=1): return f"v{a}" if n == 1 else f"v[{a}:{a+n-1}]"
def sr(a, n=1): return f"s{a}" if n == 1 else f"s[{a}:{a+n-1}]"

SCAN_STEPS = ["row_shr:1 row_mask:0xf bank_mask:0xf bound_ctrl:0", "row_shr:2 row_mask:0xf bank_mask:0xf bound_ctrl:0",
              "row_shr:4 row_mask:0xf bank_mask:0xf bound_ctrl:0", "row_shr:8 row_mask:0xf bank_mask:0xf bound_ctrl:0",
              "row_bcast:15 row_mask:0xa bank_mask:0xf", "row_bcast:31 row_mask:0xc bank_mask:0xf"]
def scan64(a, *regs):
    for c in SCAN_STEPS:
        a("s_nop 1" if len(regs) == 1 else "s_nop 0")
        for v in regs: a(f"v_add_u32_dpp v{v}, v{v}, v{v} {c}")

L_HIST = 0; L_DEG = 1024; L_WT = 1280; L_CNT = L_WT + 16
L_INV = 1344; L_MAP = 1536; L_BASE = 1792
L_SENT = L_BASE + 1024
L_UREC = L_SENT + CAP * 4
L_CG = L_UREC + CAP * 16
L_LUT = 32768
L1_HIST = L_SENT; L1_LNS = L1_HIST + 1024; L1_BASE = L1_LNS + 2048; L1_SREC = L_UREC
L1_SKEY = L_LUT + 53 * 1024
assert L_CG + 128 <= L_LUT and L1_SREC + (EP + 64) * 16 <= L_CG and L1_BASE <= 8192
NLN = 10
L_AGG = L_LUT; AGG_RS = 288
LDS_BYTES = L_LUT + 131072

V_L16 = 1
V_LEN, V_PRE, V_GID = 2, 3, 4
V_AENT, V_POS = 5, 6
V_ONE = 15
V_DEAL = 174
V_DUMMY = 167
V_UNUSED = 166
T0 = 8
ACC = 16; XR = 64; TP = 96; UU = 112; RR = 128; TT = 136; WPK = 140; WTMP = 148
KEY = 164; ENT = 165; RECN = 168; EF = 172; CONST = 176; WMIX = 188
NVGPR = 220
PE, PO, CGB = CONST, CONST + 2, CONST + 4
LJ = 128
S_NODE = 4
S_X, S_WS, S_OUT = 12, 16, 20
S_BETA, S_WAVE, S_N, S_W0, S_NWIN, S_START, S_END, S_REM, S_REMB, S_OFF, S_MASK = range(24, 35)
S_SPIN = 35
S_M = 36
S_T = 42
S_K = 48
S_IN = 40
S_JOB, S_JCNT = 62, 63
S_NLO, S_NHI = 64, 65
S_WM = 10
S_L2E = 10
S_ST = 66
NSGPR = 102

STAMPS = []
def stamp(a, opt, name):
    if opt.probe == name: a("s_memrealtime s[98:99]\ns_waitcnt lgkmcnt(0)\ns_mov_b32 s93, s98")
    if not opt.stamps: return
    if opt.only and name not in opt.only.split(",") + ["start", "sorted", "main done", "stores done 2"]: return
    if name not in STAMPS: STAMPS.append(name)
    a(f"s_memrealtime s[98:99]\ns_waitcnt lgkmcnt(0)\ns_mov_b32 s{S_ST + STAMPS.index(name)}, s98")

S_RET = 6
def lut_sub(a):
    J, Ex, R, P = LJ, LJ + 8, LJ + 16, LJ + 24
    a(f"""LUT_SUB:
    s_lshl_b32 s3, s{S_JOB}, 25
    s_add_u32 s3, s3, 0x8000
    v_lshl_add_u32 v{J}, v{V_L16}, 15, s3""")
    for k in range(1, 8): a(f"v_add_u32 v{J+k}, 0x10000, v{J+k-1}")
    for k in range(0, 8, 2): a(f"v_pk_mul_f32 {vr(Ex+k,2)}, {vr(J+k,2)}, {sr(S_L2E,2)}")
    for k in range(8): a(f"v_exp_f32 v{Ex+k}, v{Ex+k}")
    a(f"s_lshl_b32 s3, s{S_JOB}, 10")
    for k in range(0, 8, 2): a(f"v_pk_add_f32 {vr(R+k,2)}, {vr(Ex+k,2)}, 1.0 op_sel_hi:[1,0]")
    for k in range(8): a(f"v_rcp_f32 v{R+k}, v{R+k}")
    a(f"v_add_u32 v{P+8}, s3, v{V_L16}")
    for k in range(0, 8, 2): a(f"v_pk_mul_f32 {vr(J+k,2)}, {vr(J+k,2)}, {vr(R+k,2)}")
    a(f"v_add_u32 v{P+9}, 0x10000, v{P+8}")
    for k in range(0, 8, 2): a(f"v_pk_mul_f32 {vr(Ex+k,2)}, {vr(J+k,2)}, {vr(Ex+k,2)} neg_lo:[1,0] neg_hi:[1,0]")
    for k in range(4): a(f"v_cvt_pk_bf16_f32 v{P+k}, v{J+2*k}, v{J+2*k+1}")
    for k in range(4): a(f"v_cvt_pk_bf16_f32 v{P+4+k}, v{Ex+2*k}, v{Ex+2*k+1}")
    a(f"""ds_write_b128 v{P+8}, {vr(P,4)} offset:{L_LUT}
    ds_write_b128 v{P+9}, {vr(P+4,4)} offset:{L_LUT}
    s_add_u32 s{S_JOB}, s{S_JOB}, 1
    s_sub_u32 s{S_JCNT}, s{S_JCNT}, 1
    s_cmp_lg_u32 s{S_JCNT}, 0
    s_cbranch_scc1 LUT_SUB
    s_setpc_b64 {sr(S_RET,2)}""")
def lut_jobs(a, count): a(f"s_mov_b32 s{S_JCNT}, {count}\ns_call_b64 {sr(S_RET,2)}, LUT_SUB")

def lut_plain(a, tag, region, last=None, cont=False, until=None):
    P = LJ
    for name, first, end, bias in (("L", 1, 24, 0x20000 - 0x800080), ("H", 34, 62, 0x20000)):
        if name != region: continue
        last = last or end
        if cont: a(f"s_cmp_gt_u32 s{S_JOB}, {last}\ns_cbranch_scc1 LUTP_END_{tag}")
        else: a(f"s_add_u32 s{S_JOB}, s{S_WAVE}, {first}")
        if name == "H" and not cont:
            for k in range(4): a(f"v_mov_b32 v{P+4+k}, 0x80008000")
        a(f"LUTP_{tag}{name}:")
        if until:
            a(f"""ds_read_b32 v{T0+2}, v{T0+3} offset:{L_CNT}
            s_waitcnt lgkmcnt(0)
            v_readfirstlane_b32 s3, v{T0+2}
            s_cmp_eq_u32 s3, 3
            s_cbranch_scc1 {until}""")
        a(f"""s_mul_i32 s3, s{S_JOB}, {512 * 0x10001}
        s_add_u32 s3, s3, {bias & 0xffffffff}
        v_add_u32 v{P}, s3, v{P+10}
        s_lshl_b32 s3, s{S_JOB}, 10
        v_add_u32 v{P+8}, s3, v{V_L16}""")
        for k in range(1, 4): a(f"v_add_u32 v{P+k}, {k * 0x20002}, v{P}")
        a(f"v_add_u32 v{P+9}, 0x10000, v{P+8}")
        if name == "L":
            for k in range(4): a(f"v_or_b32 v{P+4+k}, 0x80008000, v{P+k}")
        a(f"""ds_write_b128 v{P+8}, {vr(P,4)} offset:{L_LUT}
        ds_write_b128 v{P+9}, {vr(P+4,4)} offset:{L_LUT}
        s_add_u32 s{S_JOB}, s{S_JOB}, {5 if name == "L" else 4}
        s_cmp_le_u32 s{S_JOB}, {last}
        s_cbranch_scc1 LUTP_{tag}{name}
        LUTP_END_{tag}:""")

def tab_issue(a): a(f"buffer_load_dwordx4 {vr(RECN,4)}, v{V_POS}, {sr(S_WS,4)}, 0 offen sc1")
def tab_check(a):
    a(f"""POLL_TAB:
    s_waitcnt vmcnt(0)
    v_lshrrev_b32 v{T0+3}, 22, v{RECN}
    v_cmp_ne_u32 vcc, s{S_NLO}, v{RECN+1}
    v_cmp_ne_u32 {sr(S_T,2)}, s{S_NHI}, v{T0+3}
    s_or_b64 vcc, vcc, {sr(S_T,2)}
    s_and_b64 exec, exec, vcc
    s_cbranch_execz POLLED_TAB
    s_sub_u32 s{S_SPIN}, s{S_SPIN}, 1
    s_cbranch_scc1 END""")
    tab_issue(a)
    a("s_branch POLL_TAB\nPOLLED_TAB:\ns_mov_b64 exec, -1")

def load_epoch(a):
    a(f"""s_add_u32 s4, s{S_WS}, {WS_EPOCH}
    s_addc_u32 s5, s{S_WS+1}, 0
    s_load_dwordx2 {sr(S_NLO,2)}, s[4:5], 0""")
def make_tag(a):
    a(f"""s_add_u32 s{S_NLO}, s{S_NLO}, 1
    s_and_b32 s{S_NHI}, s{S_NHI}, 0x3ff""")

def scan256(a, H_, O_):
    a(f"""v_add_u32 v{T0+2}, v{H_}, v{H_+1}
    v_add3_u32 v{T0+2}, v{T0+2}, v{H_+2}, v{H_+3}
    v_mov_b32 v{T0+3}, v{T0+2}""")
    scan64(a, T0 + 3)
    a(f"""v_sub_u32 v{O_}, v{T0+3}, v{T0+2}
    v_add_u32 v{O_+1}, v{O_}, v{H_}
    v_add_u32 v{O_+2}, v{O_+1}, v{H_+1}
    v_add_u32 v{O_+3}, v{O_+2}, v{H_+2}""")

SRC, DST, YY, EFP, WRAD, CG, WMX = S_IN + 2, S_IN + 4, S_IN + 6, S_IN + 8, S_IN + 10, S_IN + 12, S_IN + 14
D_, S_, Y_, F_, B_, R_, H_, O_, TB = 64, 68, 72, 80, 88, 92, 96, 100, 108
CT = WMIX
def const_sub(a):
    a(f"""CONST_SUB:
    ds_write_b32 v{CT+5}, v{CT+4} offset:{L_CG}
    v_lshrrev_b32 v{CT+5}, 3, v{V_L16}
    v_and_b32 v{CT+5}, 24, v{CT+5}
    s_mov_b32 s4, 0x05040100
    s_mov_b32 s5, 0x07060302""")
    for i in range(4): a(f"ds_read_b64_tr_b16 {vr(CGB+2*i,2)}, v{CT+5} offset:{L_CG + 32*i}")
    for u in range(2):
        a(f"v_perm_b32 v{PE+u}, v{CT+1+2*u}, v{CT+2*u}, s4\nv_perm_b32 v{PO+u}, v{CT+1+2*u}, v{CT+2*u}, s5")
    a(f"s_setpc_b64 {sr(S_RET,2)}")
def const_finish(a): a(f"s_call_b64 {sr(S_RET,2)}, CONST_SUB")

def phase1(a, opt):
    st = lambda n: stamp(a, opt, n)
    WS = sr(S_WS, 2); FL = opt.k1st
    a(f"""s_cmp_ge_u32 s{S_WAVE}, 5
    s_cbranch_scc1 HELP""")
    lut_plain(a, "W0", "L", last=opt.lsplit)
    a(f"""s_cmp_ge_u32 s2, {NP}
    s_cbranch_scc1 AUX
    global_load_dwordx4 {vr(Y_,4)}, v{T0+1}, {sr(YY,2)}
    global_load_dwordx4 {vr(Y_+4,4)}, v{T0+1}, {sr(YY,2)} offset:16
    global_load_dwordx4 {vr(F_,4)}, v{T0+1}, {sr(EFP,2)}
    global_load_dwordx4 {vr(F_+4,4)}, v{T0+1}, {sr(EFP,2)} offset:16
""")
    st('jobs A')
    a("s_waitcnt vmcnt(11)")
    st('dst arrived')
    for k in range(4):
        a(f"""v_and_b32 v{B_+k}, 0xff, v{D_+k}
              v_lshlrev_b32 v{B_+k}, 2, v{B_+k}
              ds_add_rtn_u32 v{R_+k}, v{B_+k}, v{V_ONE} offset:{L1_HIST}""")
    a("s_waitcnt vmcnt(10)")
    for k in range(4):
        a(f"""v_lshrrev_b32 v{D_+k}, 8, v{D_+k}
              v_lshl_or_b32 v{TB+2*k}, v{S_+k}, 10, v{D_+k}""")
    a(f"""s_mov_b32 s9, {L1_SKEY}
    s_waitcnt lgkmcnt(0)
    s_barrier
    ds_read_b128 {vr(H_,4)}, v{V_L16} offset:{L1_HIST}""")
    make_tag(a)
    for k in range(4): a(f"v_mov_b32 v{TB+2*k+1}, s{S_NLO}")
    a("v_mov_b32 v119, 0")
    for k in range(4):
        a(f"""v_cmp_gt_u32 vcc, {NLN}, v{R_+k}
              v_mul_u32_u24 v116, 6, v{R_+k}
              v_lshlrev_b32 v117, 1, v{B_+k}
              v_cndmask_b32 v118, 0, v{D_+k}, vcc
              v_lshlrev_b64 {vr(120+2*(k%2),2)}, v116, v[118:119]
              ds_or_b64 v117, {vr(120+2*(k%2),2)} offset:{L1_LNS}""")
    a("s_waitcnt lgkmcnt(4)")
    scan256(a, H_, O_)
    a(f"ds_write_b128 v{V_L16}, {vr(O_,4)} offset:{L1_BASE}")
    for k in range(4): a(f"ds_read_b32 v{H_+k}, v{B_+k} offset:{L1_BASE}")
    for k in range(4):
        a(f"""s_waitcnt lgkmcnt(3)
              v_add_u32 v{R_+k}, v{R_+k}, v{H_+k}
              v_lshl_add_u32 v{B_+k}, v{R_+k}, 3, s9
              ds_write_b64 v{B_+k}, {vr(TB+2*k,2)}""")
    for k in range(4):
        a(f"v_lshlrev_b32 v{R_+k}, 4, v{R_+k}\nv_add_u32 v{R_+k}, {L1_SREC}, v{R_+k}")
    a("s_waitcnt lgkmcnt(0)\ns_barrier")
    st('keys binned')
    a("s_waitcnt vmcnt(0)")
    for k in range(4):
        a(f"ds_write2_b64 v{R_+k}, {vr(Y_+2*k,2)}, {vr(F_+2*k,2)} offset0:0 offset1:1")
    st('recs binned')
    a("BINNED:\ns_setprio 0")
    a(f"s_waitcnt lgkmcnt(0)\ns_barrier\nv_mov_b32 v{V_LEN}, 0")
    const_finish(a)
    lut_plain(a, "W", "L", cont=True)
    a(f"s_cmp_eq_u32 s{S_WAVE}, 4\ns_cbranch_scc1 WAVE4")
    lut_plain(a, "U", "H", last=opt.late)
    tab_issue(a)
    st('tab issued')
    if opt.late < 62: lut_plain(a, "V", "H", cont=True)
    tab_check(a)
    st('tab arrived')
    a("s_branch TAB_DONE")
    lut_sub(a)
    const_sub(a)
    a("HELP:")
    a(f"""s_sub_u32 s8, s{S_WAVE}, 5
    s_mul_i32 s4, s8, 3072
    s_cmp_eq_u32 s8, 1
    s_cselect_b32 s4, 4096, s4
    s_mul_i32 s3, s2, {EP * 8}
    s_add_u32 s3, s3, s4
    v_add_u32 v{T0}, s3, v{V_L16}
    s_add_u32 s4, s4, {L1_SKEY}
    v_add_u32 v{T0+1}, s4, v{V_L16}
    s_mul_i32 s4, s8, 7168
    s_mul_i32 s3, s2, {EP * 16}
    s_add_u32 s3, s3, s4
    s_add_u32 s3, s3, {WS_REC}
    v_add_u32 v{T0+4}, s3, v{V_L16}
    v_add_u32 v{T0+5}, s4, v{V_L16}
    s_lshl_b32 s3, s2, 12
    s_add_u32 s3, s3, {WS_TAB}
    v_add_u32 v117, s3, v{V_L16}
    s_waitcnt lgkmcnt(0)""")
    make_tag(a)
    st('help jobs')
    a(f"""s_barrier
    s_cmp_eq_u32 s{S_WAVE}, 6
    s_cbranch_scc1 ROW
    s_cmp_eq_u32 s{S_WAVE}, 7
    s_cselect_b32 s{S_JOB}, 63, 0""")
    lut_jobs(a, 1)
    a("s_waitcnt vmcnt(0)")
    const_finish(a)
    a(f"""v_mov_b32 v{T0+2}, {0x7f80 * 2}
    v_mov_b32 v{T0+3}, 0x7f80
    s_cmp_lg_u32 s{S_WAVE}, 7
    s_cbranch_scc1 NO_ROW
    ds_write_b16 v{T0+2}, v{T0+3} offset:{L_LUT}
    s_branch NO_ROW
ROW:
    v_lshrrev_b32 v116, 2, v{V_L16}""")
    QT, HH, SS = 84, 100, 104
    for m in range(4): a(f"ds_read_b32 v{HH+m}, v116 offset:{L1_HIST + 256*m}")
    a(f"""s_lshl_b32 s3, s2, 12
    s_add_u32 s3, s3, {WS_TAB}
    v_add_u32 v117, s3, v{V_L16}
    v_lshrrev_b32 v116, 1, v{V_L16}
    s_lshl_b32 s3, s{S_NHI}, 22
    s_waitcnt lgkmcnt(0)""")
    for m in range(4): a(f"v_mov_b32 v{SS+m}, v{HH+m}")
    scan64(a, SS, SS + 1, SS + 2, SS + 3)
    a(f"""v_readlane_b32 s4, v{SS}, 63
    v_readlane_b32 s5, v{SS+1}, 63
    v_readlane_b32 s9, v{SS+2}, 63""")
    for m in range(4): a(f"v_sub_u32 v{SS+m}, v{SS+m}, v{HH+m}")
    a(f"""s_add_u32 s5, s5, s4
    s_add_u32 s9, s9, s5
    v_add_u32 v{SS+1}, s4, v{SS+1}
    v_add_u32 v{SS+2}, s5, v{SS+2}
    v_add_u32 v{SS+3}, s9, v{SS+3}""")
    for m in range(4):
        a(f"""v_lshl_or_b32 v{QT+4*m}, v{HH+m}, 11, v{SS+m}
              v_or_b32 v{QT+4*m}, s3, v{QT+4*m}
              v_mov_b32 v{QT+4*m+1}, s{S_NLO}""")
    a("s_waitcnt vmcnt(0)")
    const_finish(a)
    a(f"""NO_ROW:
    s_barrier
    s_cmp_lg_u32 s{S_WAVE}, 6
    s_cbranch_scc1 ROW_DONE""")
    for m in range(4): a(f"ds_read_b64 {vr(QT+4*m+2,2)}, v116 offset:{L1_LNS + 512*m}")
    for m in range(4): a(f"s_waitcnt lgkmcnt({3-m})\nglobal_store_dwordx4 v117, {vr(QT+4*m,4)}, {WS} offset:{1024*m} sc0 sc1")
    st('table published')
    a("ROW_DONE:")
    for k in range(4): a(f"ds_read_b128 {vr(64+4*k,4)}, v{T0+1} offset:{1024*k}")
    a(f"""v_mov_b32 v{V_LEN}, 0
    s_add_u32 s{S_JOB}, s8, s8                       ; jobs 27, 28 / 29, 30, 31 / 32, 33
    s_add_u32 s{S_JOB}, s{S_JOB}, 27
    s_cmp_eq_u32 s8, 2
    s_addc_u32 s{S_JOB}, s{S_JOB}, 0
    s_cmp_eq_u32 s8, 1
    s_cselect_b32 s{S_JCNT}, 3, 2
    s_waitcnt lgkmcnt(0)
    s_barrier
    s_cmp_ge_u32 s2, {NP}
    s_cbranch_scc1 RECS_STORED""")
    for k in range(7): a(f"ds_read_b128 {vr(84+4*k,4)}, v{T0+5} offset:{L1_SREC + 1024*k}")
    for k in range(7):
        if k == 4: a(f"v_add_u32 v{T0+4}, 4096, v{T0+4}")
        if k == 6: a(f"s_cmp_eq_u32 s8, 2\ns_cbranch_scc1 RECS_STORED")
        a(f"s_waitcnt lgkmcnt({6-k})\nglobal_store_dwordx4 v{T0+4}, {vr(84+4*k,4)}, {WS} offset:{(1024*k) % 4096} {FL}")
    a(f"""RECS_STORED:
    s_call_b64 {sr(S_RET,2)}, LUT_SUB
    s_cmp_ge_u32 s2, {NP}
    s_cbranch_scc1 TAB_DONE
    v_mov_b32 v{T0+2}, 0
    s_waitcnt vmcnt(0)
    s_mov_b64 exec, 1
    ds_add_u32 v{T0+2}, v{V_ONE} offset:{L_CNT}
    s_mov_b64 exec, -1
WAIT_ACK:
    ds_read_b32 v{T0+3}, v{T0+2} offset:{L_CNT}
    s_waitcnt lgkmcnt(0)
    v_readfirstlane_b32 s3, v{T0+3}
    s_cmp_eq_u32 s3, 3
    s_cbranch_scc0 WAIT_ACK""")
    st('recs acked')
    for k in range(4):
        if k == 2: a(f"s_cmp_eq_u32 s8, 1\ns_cbranch_scc1 TAB_DONE")
        a(f"global_store_dwordx4 v{T0}, {vr(64+4*k,4)}, {WS} offset:{1024*k} {FL}")
    a("s_branch TAB_DONE")
    a(f"""AUX_LOAD:
    s_sub_u32 s4, s2, {NP}
    s_cmp_ge_u32 s4, 4
    s_cbranch_scc1 NO_EDGES
    s_cmp_ge_u32 s{S_WAVE}, 4
    s_cbranch_scc1 NO_EDGES
    s_lshl_b32 s5, s{S_WAVE}, 13
    s_lshl_b32 s8, s4, 6
    s_add_u32 s5, s5, s8
    v_lshrrev_b32 v80, 8, v{V_L16}
    v_lshlrev_b32 v80, 11, v80
    v_bfe_u32 v81, v{V_L16}, 4, 4
    v_lshl_add_u32 v80, v81, 2, v80
    v_add_u32 v80, s5, v80""")
    for t in range(8): a(f"global_load_dword v{64+t}, v80, {sr(WMX,2)} offset:{t*256}")
    a(f"""s_branch NO_EDGES
AUX:
    s_cmp_ge_u32 s2, {NP + 4}
    s_cbranch_scc1 AUX_DONE
    s_cmp_ge_u32 s{S_WAVE}, 4
    s_cbranch_scc1 AUX_DONE
    s_sub_u32 s4, s2, {NP}
    s_lshl_b32 s5, s4, 13
    s_lshl_b32 s8, s{S_WAVE}, 10
    s_add_u32 s5, s5, s8
    s_add_u32 s5, s5, {WS_WMIX}
    v_add_u32 v81, s5, v{V_L16}
    s_mov_b32 s4, 0x05040100
    s_mov_b32 s5, 0x07060302
    s_waitcnt vmcnt(6)""")
    for u in range(4):
        a(f"v_perm_b32 v{72+u}, v{65+2*u}, v{64+2*u}, s4\nv_perm_b32 v{76+u}, v{65+2*u}, v{64+2*u}, s5")
    a(f"""global_store_dwordx4 v81, v[72:75], {WS} {FL}
    v_add_u32 v81, 4096, v81
    global_store_dwordx4 v81, v[76:79], {WS} {FL}
AUX_DONE:
    s_waitcnt lgkmcnt(0)""")
    make_tag(a)
    a(f"""s_barrier
    s_waitcnt vmcnt(0)
    s_barrier
    s_branch BINNED
WAVE4:
    s_mov_b32 s{S_JOB}, 25""")
    lut_jobs(a, 2)
    a("TAB_DONE:")

def mfma4(d, a_, b, c, blk=None):
    cc = "0" if c is None else vr(c, 4)
    return f"v_mfma_f32_4x4x4_16b_bf16 {vr(d,4)}, {vr(a_,2)}, {vr(b,2)}, {cc}" + ("" if blk is None else f" cbsz:4 abid:{blk}")
def p_mfma(g, odd):
    return mfma4(UU + 8 * (g % 2) + 4 * odd, EF, PO if odd else PE, None, g % 16)
def t_mfma(e, odd):
    return mfma4(TP + 8 * (e % 2) + 4 * odd, WPK + 2 * (e % 4), XR + 4 * (e % 8) + 2 * odd, None, (e % 64) // 4)
def act_regs(eb, odd):
    return UU + 8 * ((eb // 4) % 2) + 4 * odd + eb % 4, RR + 4 * ((eb // 2) % 2) + 2 * odd
def act_addr(t, u):
    return f"v_lshlrev_b32_sdwa v{t}, v{V_ONE}, v{u} dst_sel:DWORD dst_unused:UNUSED_PAD src0_sel:DWORD src1_sel:WORD_1"
def act_read(r, t): return f"ds_read_u16_d16_hi v{r}, v{t} offset:{L_LUT}"
def fma4(a, q):
    h = q % 2
    a(f"s_set_gpr_idx_on s{S_K + q % 16}, 0xc")
    for odd in range(2):
        r = RR + 4 * ((q // 2) % 2) + 2 * odd
        for o in (0, 2):
            acc = ACC + 4 * odd + o; tp = TP + 8 * (q % 2) + 4 * odd + o
            a(f"v_pk_fma_f32 {vr(acc,2)}, {vr(r,2)}, {vr(tp,2)}, {vr(acc,2)} op_sel:[{h},0,0] op_sel_hi:[{h},1,1]")
    a("s_set_gpr_idx_off")
def meta_read_entry(a): a(f"ds_read_b32 v{ENT}, v{V_AENT}")
def meta_fix_entry(a, rec=True):
    a(f"""v_cmp_gt_u32 vcc, s{S_END}, v{V_POS}
          v_add_u32 v{V_POS}, 64, v{V_POS}
          v_add_u32 v{V_AENT}, 256, v{V_AENT}
          v_cndmask_b32 v{ENT}, 40, v{ENT}, vcc
          v_lshrrev_b32 v{T0}, 21, v{ENT}
          v_lshlrev_b32 v{T0}, 4, v{T0}
          v_lshlrev_b32 v{T0+1}, 3, v{ENT}""")
    if rec: meta_read_rec(a)
    a(f"""v_and_b32 v{T0+1}, 0xfffc00, v{T0+1}
          v_and_or_b32 v{ENT}, v{ENT}, 56, v{T0+1}""")
def meta_read_rec(a): a(f"ds_read_b128 {vr(RECN,4)}, v{T0} offset:{L_UREC}")
def w_mfma(i): return mfma4(WTMP + 4 * i, RECN, CGB + 2 * i, None)
def w_cvt(a, m):
    a(f"""v_cvt_pk_bf16_f32 v{WPK+2*m}, v{WTMP+m}, v{WTMP+4+m}
          v_cvt_pk_bf16_f32 v{WPK+2*m+1}, v{WTMP+8+m}, v{WTMP+12+m}""")

def step(a, opt, q, drain=None):
    D = opt.D; loads = drain is None
    eb = q + 2 - q % 2; odd = q % 2
    u, r = act_regs(eb, odd); t = TT + 2 * odd
    g, ur = (q + 6) // 4, (q + 6) % 4
    if ur % 2 == 0: a(p_mfma(g, ur // 2))
    elif 40 <= q < 48: a(w_mfma((q - 40) // 2))
    a(act_addr(t, u))
    if loads: a(f"s_waitcnt vmcnt({D - 2})")
    elif D - 2 - drain >= 0: a(f"s_waitcnt vmcnt({8 + D - 2 - drain})")
    a(t_mfma(q + 1, 0))
    if loads: a(f"v_readlane_b32 s{S_K + (q + D) % 16}, v{KEY if q + D < 64 else ENT}, {(q + D) % 64}")
    else:     a("s_nop 0")
    a(t_mfma(q + 1, 1))
    a(act_addr(t + 1, u + 1))
    a(act_read(r, t)); a(act_read(r + 1, t + 1))
    if q >= 60: w_cvt(a, q - 60)
    if loads:
        a(f"s_and_b32 s{S_OFF}, s{S_K + (q + D) % 16}, s{S_MASK}")
        a(f"buffer_load_dwordx4 {vr(XR + 4 * ((q + D) % 8), 4)}, v{V_L16}, {sr(S_X,4)}, s{S_OFF} offen")
    if q % 2 == 0: a("s_waitcnt lgkmcnt(2)")
    fma4(a, q)
    if loads: x_touch(a, opt, 100 + q, False)
    if loads and q == 8: meta_read_entry(a)
    if loads and q == 12: meta_fix_entry(a)
    if q == 57: a(f"v_mov_b32 v{EF}, v{RECN+2}\nv_mov_b32 v{EF+1}, v{RECN+3}\ns_nop 1")
    if loads and q == 63: a(f"v_mov_b32 v{KEY}, v{ENT}")

def body(a, opt):
    G = opt.gran
    for q in range(64):
        if q % G == 0: a(f"A_{q}:\ns_sub_u32 s{S_REM}, s{S_REM}, {G}\ns_cbranch_scc1 B_{q}")
        step(a, opt, q)
    if opt.stamps and not opt.only:
        STAMPS.extend(("batch 1", "batch 2")); k = S_ST + len(STAMPS) - 2
        a(f"""s_memrealtime s[98:99]
        s_waitcnt lgkmcnt(0)
        s_cmp_eq_u32 s{k}, 0
        s_cselect_b32 s99, 0, s98
        s_cselect_b32 s{k}, s98, s{k}
        s_cmp_eq_u32 s{k+1}, 0
        s_cselect_b32 s{k+1}, s99, s{k+1}""")
    if opt.probe == "batch 1":
        a("s_memrealtime s[98:99]\ns_waitcnt lgkmcnt(0)\ns_cmp_eq_u32 s93, 0\ns_cselect_b32 s93, s98, s93")
    a("s_branch A_0")
    for q in range(0, 64, G):
        a(f"B_{q}:")
        for k in range(8):
            a(f"buffer_load_dwordx4 {vr(WMIX+4*k,4)}, v{V_L16}, {sr(S_WS,4)}, s{S_WM + k // 4} offen offset:{(k%4)*1024} sc1")
        for i in range(opt.D):
            a(f"s_sub_u32 s{S_REMB}, s{S_REMB}, 1\ns_cbranch_scc1 MAIN_DONE")
            step(a, opt, (q + i) % 64, i)
        a("s_branch MAIN_DONE")

def x_touch(a, opt, where, guard=True):
    for spec in filter(None, opt.xt.split(",")):
        w, lo, hi = map(int, spec.split(":"))
        if w != where: continue
        if guard: a(f"s_cmp_lg_u32 s{S_W0}, 0\ns_cbranch_scc1 NO_X_TOUCH_{w}")
        if w >= 100: a(f"s_bitcmp1_b32 s3, {w % 32}\ns_cbranch_scc1 NO_X_TOUCH_{w}\ns_bitset1_b32 s3, {w % 32}")
        a(f"""s_lshl_b32 s{S_OFF}, s2, 3
        s_add_u32 s{S_OFF}, s{S_OFF}, s{S_WAVE}
        s_lshl_b32 s{S_OFF}, s{S_OFF}, {7 + opt.xs}
        s_add_u32 s{S_OFF}, s{S_OFF}, {lo << 18}
        v_min_u32 v{T0+1}, {(((hi - lo) >> opt.xs) - 1) * 16}, v{V_L16}
        v_lshl_add_u32 v{T0+1}, v{T0+1}, {14 + opt.xs}, s{S_OFF}
        buffer_load_dword v{V_DUMMY}, v{T0+1}, {sr(S_X,4)}, 0 offen""")
        a(f"NO_X_TOUCH_{w}:")

DEAL = ([4, 2, 4, 7, 6, 3, 1, 5, 0, 4, 2, 6, 1, 7, 3, 5, 0, 4, 7, 3, 0, 1, 5, 6, 2, 5, 0, 1, 6, 7, 3, 2, 0, 5, 3, 1, 6, 7, 2, 4],
        [0, 2, 7, 1, 4, 6, 5, 3, 6, 3, 1, 7, 4, 0, 2, 5, 4, 3, 5, 6, 7, 1, 0, 2, 7, 5, 2, 4, 3, 6, 0, 1, 5, 1, 3, 6, 4, 2, 7, 0])
def deal_bytes():
    out = []
    for t in DEAL:
        assert sorted(t) == sorted(list(range(8)) * 5)
        out += [4 * (5 * w + t[:r].count(w)) | (8 * w + t[:r].count(w)) << 8 for r, w in enumerate(t)] + [0] * 24
    return out

def zero_hist(a):
    a(f"""v_lshlrev_b32 v{T0+3}, 2, v0
    v_mov_b32 v{T0+4}, 0
    v_cmp_gt_u32 vcc, 0x100, v0
    s_and_saveexec_b64 {sr(S_T,2)}, vcc
    ds_write_b32 v{T0+3}, v{T0+4} offset:{L_HIST}
    s_mov_b64 exec, {sr(S_T,2)}""")

def kernel(opt):
    a = Asm(); D = opt.D
    st = lambda n: stamp(a, opt, n)
    a(f"""{KERN}:
    s_cmp_ge_u32 s2, 256
    s_cbranch_scc1 END""")
    if opt.probe: a("s_mov_b32 s93, 0\ns_memrealtime s[98:99]\ns_waitcnt lgkmcnt(0)\ns_mov_b32 s92, s98")
    if opt.stamps:
        for k in range(32): a(f"s_mov_b32 s{S_ST+k}, 0")
    st('start')
    a(f"""s_load_dwordx16 {sr(S_IN,16)}, s[0:1], 0
    s_load_dwordx2 {sr(S_WS,2)}, s[0:1], 80
    s_load_dwordx2 {sr(S_X,2)}, s[0:1], 0
    s_load_dwordx2 {sr(S_OUT,2)}, s[0:1], 64
    ; wave 7 of every workgroup takes 8 lines; the 32 workgroups with equal id % 8 cover 32 KiB
    s_getpc_b64 s[6:7]
CODE_HERE:
    v_lshrrev_b32 v{T0}, 6, v0
    s_lshr_b32 s5, s2, 3
    s_lshl_b32 s4, s5, 10
    v_readfirstlane_b32 s{S_WAVE}, v{T0}
    v_and_b32 v{T0+2}, 7, v0
    v_lshl_add_u32 v{T0+2}, v{T0+2}, 7, s4
    v_min_u32 v{T0+2}, END-CODE_HERE, v{T0+2}
    s_cmp_lg_u32 s{S_WAVE}, 7
    s_cbranch_scc1 NO_CODE_TOUCH
    global_load_dword v{V_DUMMY}, v{T0+2}, s[6:7]
NO_CODE_TOUCH:
    s_mul_i32 s3, s2, {EP * 4}
    v_lshl_add_u32 v{T0}, v0, 4, s3
    v_and_b32 v{T0+2}, 63, v0
    v_lshlrev_b32 v{V_L16}, 4, v{T0+2}
    v_lshlrev_b32 v{CT+5}, 2, v{T0+2}
    s_cmp_ge_u32 s{S_WAVE}, 5
    s_waitcnt lgkmcnt(0)
    s_cbranch_scc1 NO_EDGES
    s_cmp_ge_u32 s2, {NP}
    s_cbranch_scc1 AUX_LOAD
    s_setprio 1
    global_load_dwordx4 {vr(D_,4)}, v{T0}, {sr(DST,2)}
    global_load_dwordx4 {vr(S_,4)}, v{T0}, {sr(SRC,2)}
NO_EDGES:""")
    if opt.wsoff: a(f"s_add_u32 s{S_WS}, s{S_WS}, {opt.wsoff << 20}\ns_addc_u32 s{S_WS+1}, s{S_WS+1}, 0")
    st('kernargs')
    for k in range(4): a(f"global_load_dword v{CT+k}, v{CT+5}, {sr(WRAD,2)} offset:{k*256}")
    a(f"""v_and_b32 v{CT+5}, 0x7f, v{CT+5}
    global_load_dword v{CT+4}, v{CT+5}, {sr(CG,2)}
    s_and_b32 s3, s2, 0x87
    s_cmp_eq_u32 s3, 0
    s_cselect_b32 s3, 128, 0
    s_add_u32 s3, s3, DEAL_TABLE-CODE_HERE
    v_lshl_add_u32 v{V_DEAL}, v{T0+2}, 1, s3
    global_load_ushort v{V_DEAL}, v{V_DEAL}, s[6:7]
    v_lshlrev_b32 v{T0+1}, 1, v{T0}
    v_lshlrev_b32 v{T0+3}, 4, v0
    v_mov_b32 v{T0+4}, 0
    v_mov_b32 v{T0+5}, 0
    v_pk_mov_b32 {vr(ACC,2)}, {vr(T0+4,2)}, {vr(T0+4,2)}
    v_pk_mov_b32 {vr(ACC+2,2)}, {vr(T0+4,2)}, {vr(T0+4,2)}
    ds_write_b128 v{T0+3}, {vr(ACC,4)}
    s_and_b32 s4, s2, 7
    s_lshl_b32 s4, s4, 5
    s_lshr_b32 s5, s2, 3
    s_or_b32 s{S_BETA}, s4, s5
    v_mov_b32 v{V_ONE}, 1
    s_mov_b32 s{S_X+2}, {N * 1024}
    s_mov_b32 s{S_X+3}, 0x20000
    s_mov_b32 s{S_WS+2}, {WS_END if not opt.stamps else WS_STAMP + 0x80000}
    s_mov_b32 s{S_WS+3}, 0x20000
    s_mov_b32 s{S_OUT+2}, {N * 1024}
    s_mov_b32 s{S_OUT+3}, 0x20000
    s_mov_b32 s{S_MASK}, 0xfffffc00
    s_mov_b32 s{S_W0}, 0
    s_mov_b32 s{S_L2E}, 0xbfb8aa3b
    s_mov_b32 s{S_L2E+1}, 0xbfb8aa3b
    s_mov_b32 s{S_SPIN}, {1 << 21}
    v_and_b32 v{V_GID}, 0xff, v0
    s_lshl_b32 s3, s{S_BETA}, 4
    s_add_u32 s3, s3, {WS_TAB}
    v_lshl_add_u32 v{V_POS}, v{V_GID}, 12, s3
    v_mul_u32_u24 v{V_GID}, {EP}, v{V_GID}
    v_mul_u32_u24 v{LJ+10}, 0x8000, v{V_L16}
    v_lshl_add_u32 v{LJ+10}, v{T0+2}, 3, v{LJ+10}    ; lane * 8 * 0x10001""")
    for k in range(4, 48, 2): a(f"v_pk_mov_b32 {vr(ACC+k,2)}, {vr(T0+4,2)}, {vr(T0+4,2)}")
    a("s_waitcnt lgkmcnt(0)")
    load_epoch(a)
    a("s_barrier")
    phase1(a, opt)
    a(f"""s_cmp_ge_u32 s{S_WAVE}, 4
    s_cbranch_scc1 TOTALS
    v_and_b32 v{T0+5}, 0x7ff, v{RECN}
    v_bfe_u32 v{V_LEN}, v{RECN}, 11, 11
    v_add_u32 v{V_GID}, v{V_GID}, v{T0+5}
    v_mov_b32 v{V_PRE}, v{V_LEN}""")
    scan64(a, V_PRE)
    a(f"""s_lshl_b32 s3, s{S_WAVE}, 2
    v_mov_b32 v{T0+2}, s3
    v_add_u32 v{T0+3}, 1, v{V_PRE}
    v_sub_u32 v{V_PRE}, v{V_PRE}, v{V_LEN}
    s_mov_b32 exec_lo, 0
    s_mov_b32 exec_hi, 0x80000000
    ds_write_b32 v{T0+2}, v{T0+3} offset:{L_WT}
    s_mov_b64 exec, -1
TOTALS:
    v_mov_b32 v{T0+2}, 0
TOTALS_SPIN:
    ds_read_b128 {vr(XR,4)}, v{T0+2} offset:{L_WT}
    s_waitcnt lgkmcnt(0)""")
    for k in range(4): a(f"v_readfirstlane_b32 s{4+k}, v{XR+k}")
    a(f"""s_min_u32 s3, s4, s5
    s_min_u32 s8, s6, s7
    s_min_u32 s3, s3, s8
    s_cmp_eq_u32 s3, 0
    s_cbranch_scc0 TOTALS_OK
    s_sub_u32 s{S_SPIN}, s{S_SPIN}, 1
    s_cbranch_scc0 TOTALS_SPIN
    s_endpgm
TOTALS_OK:
    s_add_u32 s5, s5, s4
    s_add_u32 s6, s6, s5
    s_add_u32 s7, s7, s6
    s_sub_u32 s{S_N}, s7, 4
    s_cmp_eq_u32 s{S_WAVE}, 1
    s_cselect_b32 s3, s4, 0
    s_cmp_eq_u32 s{S_WAVE}, 2
    s_cselect_b32 s3, s5, s3
    s_cmp_eq_u32 s{S_WAVE}, 3
    s_cselect_b32 s3, s6, s3
    s_sub_u32 s3, s3, s{S_WAVE}
    v_add_u32 v{V_PRE}, s3, v{V_PRE}
    s_cmp_lg_u32 s{S_WAVE}, 4
    s_cbranch_scc1 EPOCH_DONE
    s_cmp_lg_u32 s2, 0
    s_cbranch_scc1 EPOCH_DONE
    v_mov_b32 v{T0+4}, s{S_NLO}
    v_mov_b32 v{T0+2}, {WS_EPOCH}
    s_mov_b64 exec, 1
    global_store_dword v{T0+2}, v{T0+4}, {sr(S_WS,2)} sc0 sc1
    s_mov_b64 exec, -1
EPOCH_DONE:""")
    x_touch(a, opt, 3, False)
    st('prefix done')
    a(f"""ROUND:
    v_mov_b32 v{T0}, 0
    v_subrev_u32 v{T0+1}, s{S_W0}, v{V_PRE}
    v_mov_b32 v{T0+2}, v{V_GID}
    s_mov_b32 s3, {CAP}
    s_cmp_gt_u32 s{S_N}, {CAP}
    s_cbranch_scc1 EXPAND
    v_lshlrev_b32 v{T0+3}, 2, v{V_PRE}""")
    for j in range(16):
        a(f"v_cmpx_lt_u32 vcc, {j}, v{V_LEN}")
        if j % 2 == 0 and j >= 6: a("s_cbranch_execz EXPAND_DONE")
        a(f"ds_write_b32 v{T0+3}, v{T0+2} offset:{L_SENT + 4*j}\nv_add_u32 v{T0+2}, 1, v{T0+2}")
    a(f"""v_mov_b32 v{T0}, 16
    v_add_u32 v{T0+1}, 16, v{T0+1}
EXPAND:
    v_cmp_lt_u32 vcc, v{T0}, v{V_LEN}
    s_and_b64 exec, exec, vcc
    s_cbranch_execz EXPAND_DONE
    v_cmp_gt_u32 vcc, s3, v{T0+1}
    v_lshlrev_b32 v{T0+3}, 2, v{T0+1}
    s_and_saveexec_b64 {sr(S_T,2)}, vcc
    ds_write_b32 v{T0+3}, v{T0+2} offset:{L_SENT}
    s_mov_b64 exec, {sr(S_T,2)}
    v_add_u32 v{T0}, 1, v{T0}
    v_add_u32 v{T0+1}, 1, v{T0+1}
    v_add_u32 v{T0+2}, 1, v{T0+2}
    s_branch EXPAND
EXPAND_DONE:
    s_mov_b64 exec, -1
    s_sub_u32 s{S_NWIN}, s{S_N}, s{S_W0}
    s_min_u32 s{S_NWIN}, s{S_NWIN}, {CAP}
    v_lshlrev_b32 v{T0}, 2, v0""")
    for i in range(3):
        a(f"""v_add_u32 v{T0+1}, {512*i}, v0
              v_cmp_gt_u32 {sr(S_M+2*i,2)}, s{S_NWIN}, v{T0+1}""")
    st('list built')
    a("s_waitcnt lgkmcnt(0)\ns_barrier")
    st('list barrier')
    G = XR
    KP = TP
    for i in range(3): a(f"ds_read_b32 v{G+i}, v{T0} offset:{L_SENT + 2048*i}")
    a(f"""s_mov_b32 s{S_T+2}, 13421                         ; 32 * 2^32 / (10000 * 1024)
    s_waitcnt lgkmcnt(0)""")
    for i in range(3):
        a(f"v_lshlrev_b32 v{G+4+i}, 3, v{G+i}\nv_lshlrev_b32 v{G+i}, 4, v{G+i}")
    def key_loads(tag):
        a(f"""s_mov_b64 exec, {sr(S_M+4,2)}
        s_cbranch_execz SKIP3{tag}
        buffer_load_dwordx2 {vr(KP+4,2)}, v{G+6}, {sr(S_WS,4)}, 0 offen sc1
        SKIP3{tag}:""")
        for i in range(2):
            a(f"s_mov_b64 exec, {sr(S_M+2*i,2)}\nbuffer_load_dwordx2 {vr(KP+2*i,2)}, v{G+4+i}, {sr(S_WS,4)}, 0 offen sc1")
        a("s_mov_b64 exec, -1")
    key_loads("")
    x_touch(a, opt, 7)
    H = G + 20
    a(f"""v_lshrrev_b32 v{T0}, 4, v{V_L16}              ; lane
    s_cmp_lg_u32 s{S_W0}, 0
    s_cbranch_scc1 KEY_WAIT
    s_cmp_ge_u32 s{S_WAVE}, 4
    s_cbranch_scc1 DEG_DONE""")
    for j in range(NLN):
        t = T0 + 1 + j % 2
        if j < 5: a(f"v_bfe_u32 v{t}, v{RECN+2}, {6*j}, 6")
        elif j == 5: a(f"v_alignbit_b32 v{t}, v{RECN+3}, v{RECN+2}, 30\nv_and_b32 v{t}, 63, v{t}")
        else: a(f"v_bfe_u32 v{t}, v{RECN+3}, {6*j-32}, 6")
        a(f"""v_lshlrev_b32 v{t}, 2, v{t}
              v_cmpx_lt_u32 vcc, {j}, v{V_LEN}
              ds_add_u32 v{t}, v{V_ONE} offset:{L_DEG}""")
    a(f"""s_mov_b64 exec, -1
DEG_DONE:
    v_lshlrev_b32 v{T0+1}, 2, v{T0}
    v_cmp_gt_u32 {sr(S_T,2)}, 40, v{T0}
    v_sub_u32 v{T0+2}, 63, v{T0}
    s_mul_i32 s10, s{S_WAVE}, 5
    s_waitcnt lgkmcnt(0)
    s_barrier
    ds_read_b32 v{H}, v{T0+1} offset:{L_DEG}
    v_add_u32 v{T0+3}, s10, v{T0}
    v_lshlrev_b32 v{T0+4}, 2, v{T0+3}
    s_waitcnt lgkmcnt(0)
    v_lshl_or_b32 v{H}, v{H}, 6, v{T0+2}
    v_cndmask_b32 v{H}, 0, v{H}, {sr(S_T,2)}
    s_nop 0""")
    for k in range(5):
        a(f"v_readlane_b32 s{S_NODE+k}, v{H}, s10")
        if k < 4: a("s_add_u32 s10, s10, 1")
    for k in range(5): a(f"v_cmp_lt_u32 {sr(S_K+2*k,2)}, s{S_NODE+k}, v{H}")
    for k in range(5): a(f"s_bcnt1_i32_b64 s{S_NODE+k}, {sr(S_K+2*k,2)}")
    for k in range(5): a(f"v_readlane_b32 s{S_NODE+k}, v{V_DEAL}, s{S_NODE+k}")
    a("s_nop 0")
    for k in range(5): a(f"v_writelane_b32 v{T0+1}, s{S_NODE+k}, {k}")
    a(f"""v_lshrrev_b32 v{T0+2}, 11, v{T0+1}
    v_bfe_u32 v{T0+5}, v{T0+1}, 8, 3
    v_lshlrev_b32 v{T0+2}, 7, v{T0+2}
    v_and_b32 v{T0+1}, 0xff, v{T0+1}
    v_lshl_or_b32 v{T0+2}, v{T0+5}, 19, v{T0+2}
    s_mov_b64 exec, 0x1f
    ds_write_b32 v{T0+1}, v{T0+3} offset:{L_INV}
    ds_write_b32 v{T0+4}, v{T0+2} offset:{L_MAP}
    s_mov_b64 exec, -1
    s_waitcnt lgkmcnt(0)
    s_barrier""")
    st('dealt')
    a(f"""KEY_WAIT:
    s_lshl_b32 s3, s{S_WAVE}, 10
    s_add_u32 s3, s3, {L_UREC}
    s_mov_b32 s9, {WS_REC}""")
    if ",7:" in "," + opt.xt:
        a(f"s_cmp_lg_u32 s{S_W0}, 0\ns_cbranch_scc1 KEY_WAIT0\ns_waitcnt vmcnt(1)\ns_branch KEY_CHECK")
    a("KEY_WAIT0:\ns_waitcnt vmcnt(0)\nKEY_CHECK:")
    for i in range(3): a(f"v_cmp_ne_u32 {sr(S_K+2*i,2)}, s{S_NLO}, v{KP+2*i+1}")
    for i in range(3): a(f"v_and_b32 v{G+8+i}, 63, v{KP+2*i}\nv_lshlrev_b32 v{G+8+i}, 2, v{G+8+i}")
    for i in range(3): a(f"s_and_b64 {sr(S_K+2*i,2)}, {sr(S_K+2*i,2)}, {sr(S_M+2*i,2)}")
    a(f"""s_or_b64 {sr(S_K,2)}, {sr(S_K,2)}, {sr(S_K+2,2)}
    s_or_b64 {sr(S_K,2)}, {sr(S_K,2)}, {sr(S_K+4,2)}
    s_cbranch_scc0 KEYS_OK
    s_sub_u32 s{S_SPIN}, s{S_SPIN}, 1
    s_cbranch_scc1 END""")
    key_loads("R")
    a("s_branch KEY_WAIT0\nKEYS_OK:")
    st('keys arrived')
    def rec_dma(at):
        for i in (2, 0, 1):
            if opt.recat[i] != at: continue
            a(f"s_add_u32 m0, s3, {i*8192}\ns_mov_b64 exec, {sr(S_M+2*i,2)}")
            if i == 2: a("s_cbranch_execz SKIP3D")
            a(f"buffer_load_dwordx4 v{G+i}, {sr(S_WS,4)}, s9 offen sc1 lds")
            if i == 2: a("SKIP3D:")
        if at in opt.recat: a("s_mov_b64 exec, -1")
    for i in range(3): a(f"ds_read_b32 v{G+8+i}, v{G+8+i} offset:{L_MAP}")
    rec_dma(0)
    for i in range(3):
        a(f"""v_mul_hi_u32 v{G+12+i}, s{S_T+2}, v{KP+2*i}
              v_add_u32 v{T0+1}, {512*i}, v0
              v_lshlrev_b32 v{T0+1}, 21, v{T0+1}
              v_lshrrev_b32 v{G+16+i}, 10, v{KP+2*i}
              v_lshl_or_b32 v{G+16+i}, v{G+16+i}, 7, v{T0+1}""")
    for i in range(3):
        a(f"""s_waitcnt lgkmcnt({2-i})
              v_lshrrev_b32 v{T0+1}, 16, v{G+8+i}
              v_and_b32 v{G+8+i}, 0x380, v{G+8+i}
              v_or_b32 v{G+16+i}, v{G+16+i}, v{T0+1}
              v_lshl_add_u32 v{G+8+i}, v{G+12+i}, 2, v{G+8+i}""")
    for i in range(3):
        a(f"s_mov_b64 exec, {sr(S_M+2*i,2)}\nds_add_rtn_u32 v{G+12+i}, v{G+8+i}, v{V_ONE} offset:{L_HIST}")
    a("s_mov_b64 exec, -1")
    rec_dma(1)
    a(f"""s_lshl_b32 s10, s{S_WAVE}, 3
    s_add_u32 s11, s10, 8
    s_and_b32 s11, s11, 63
    s_waitcnt lgkmcnt(0)
    s_barrier""")
    st('hist done')
    a(f"ds_read_b128 {vr(H,4)}, v{V_L16} offset:{L_HIST}")
    rec_dma(2)
    x_touch(a, opt, 8)
    a("s_waitcnt lgkmcnt(0)")
    scan256(a, H, H + 4)
    a(f"""ds_write_b128 v{V_L16}, {vr(H+4,4)} offset:{L_BASE}
    v_readlane_b32 s{S_START}, v{H+4}, s10
    v_readlane_b32 s{S_END}, v{H+4}, s11""")
    for i in range(3): a(f"ds_read_b32 v{G+8+i}, v{G+8+i} offset:{L_BASE}")
    a(f"""s_cmp_eq_u32 s{S_WAVE}, 7
    s_cselect_b32 s{S_END}, s{S_NWIN}, s{S_END}
    v_add_u32 v{V_POS}, s{S_START}, v{T0}
    v_lshlrev_b32 v{V_AENT}, 2, v{V_POS}
    v_add_u32 v{V_AENT}, {L_SENT}, v{V_AENT}
    s_sub_u32 s11, s{S_END}, s{S_START}
    s_max_u32 s10, s11, {D}
    s_add_u32 s10, s10, {opt.gran - 1 - D}
    s_and_b32 s{S_REM}, s10, {-opt.gran}
    s_max_u32 s10, s11, s{S_REM}
    s_sub_u32 s{S_REMB}, s10, s{S_REM}""")
    for i in range(3):
        a(f"""s_waitcnt lgkmcnt({2 if i else 2})
              v_add_lshl_u32 v{G+8+i}, v{G+8+i}, v{G+12+i}, 2
              s_mov_b64 exec, {sr(S_M+2*i,2)}
              ds_write_b32 v{G+8+i}, v{G+16+i} offset:{L_SENT}
              s_mov_b64 exec, -1""")
    a("s_waitcnt lgkmcnt(0)")
    if not opt.xpre: a("s_waitcnt vmcnt(0)")
    a("s_barrier")
    st('sorted')
    if opt.stamps: a(f"s_memtime s[100:101]\ns_waitcnt lgkmcnt(0)\ns_mov_b32 s{S_ST+30}, s100")
    if opt.prio == 1: a(f"s_cmp_ge_u32 s{S_WAVE}, 4\ns_cbranch_scc0 PRIO_SET\ns_setprio 1\nPRIO_SET:")
    meta_read_entry(a)
    a(f"""s_mov_b32 s3, 0
    s_and_b32 s{S_WM}, s{S_WAVE}, 3
    s_lshl_b32 s{S_WM}, s{S_WM}, 13
    s_add_u32 s{S_WM}, s{S_WM}, {WS_WMIX}
    s_add_u32 s{S_WM+1}, s{S_WM}, 4096""")
    for k in range(8): a(f"v_mov_b32 v{RR+k}, 0")
    a("s_waitcnt lgkmcnt(0)")
    meta_fix_entry(a, False)
    a("s_nop 0")
    def first_rows(lo, hi):
        for e in range(lo, hi):
            a(f"""v_readlane_b32 s{S_K+e}, v{ENT}, {e}
                  s_and_b32 s{S_OFF}, s{S_K+e}, s{S_MASK}
                  buffer_load_dwordx4 {vr(XR+4*e,4)}, v{V_L16}, {sr(S_X,4)}, s{S_OFF} offen""")
    if opt.xpre:
        first_rows(0, opt.xpre)
        if ",8:" in "," + opt.xt and 2 not in opt.recat:
            a(f"s_cmp_lg_u32 s{S_W0}, 0\ns_cbranch_scc1 REC_WAIT\ns_waitcnt vmcnt({opt.xpre + 1})\ns_branch REC_IN\nREC_WAIT:")
        a(f"s_waitcnt vmcnt({opt.xpre})\nREC_IN:")
        st('recs landed')
        a("s_barrier")
    meta_read_rec(a)
    first_rows(opt.xpre, D)
    a(f"v_mov_b32 v{KEY}, v{ENT}")
    a(f"""s_waitcnt lgkmcnt(0)
    v_mov_b32 v{EF}, v{RECN+2}
    v_mov_b32 v{EF+1}, v{RECN+3}""")
    for i in range(4): a(w_mfma(i))
    a(p_mfma(0, 0)); a(p_mfma(0, 1)); a(p_mfma(1, 0))
    a("s_nop 1")
    for m in range(4): w_cvt(a, m)
    for odd in range(2):
        u, r = act_regs(0, odd)
        for h in range(2): a(act_addr(TT + 2 * odd + h, u + h))
        for h in range(2): a(act_read(r + h, TT + 2 * odd + h))
    a(f"s_waitcnt vmcnt({D-1})")
    st('first row')
    a(t_mfma(0, 0)); a(t_mfma(0, 1))
    body(a, opt)
    a(f"""MAIN_DONE:
    s_add_u32 s{S_W0}, s{S_W0}, {CAP}
    s_cmp_ge_u32 s{S_W0}, s{S_N}
    s_cbranch_scc1 ALL_DONE
    s_waitcnt vmcnt(0) lgkmcnt(0)""")
    zero_hist(a)
    a("s_waitcnt lgkmcnt(0)\ns_barrier\ns_branch ROUND\nALL_DONE:")
    st('main done')
    if opt.stamps: a(f"s_memtime s[100:101]\ns_waitcnt lgkmcnt(0)\ns_sub_u32 s{S_ST+30}, s100, s{S_ST+30}")
    PK = WPK; VOUT = UU
    a(f"""v_lshrrev_b32 v{T0+3}, 8, v{V_L16}            ; lane >> 4
    s_lshr_b32 s{S_T}, s{S_WAVE}, 2                   ; half
    s_mul_i32 s{S_T+1}, s{S_T}, 80
    v_mul_u32_u24 v{T0+1}, 20, v{T0+3}
    v_add_u32 v{T0+1}, s{S_T+1}, v{T0+1}""")
    for t in range(5): a(f"ds_read_b32 v{VOUT+t}, v{T0+1} offset:{L_INV + 4*t}")
    for sl in range(5):
        for o in range(4): a(f"v_cvt_pk_bf16_f32 v{PK+4*sl+o}, v{ACC+8*sl+o}, v{ACC+8*sl+4+o}")
    a(f"""s_mul_i32 s{S_T+1}, s{S_WAVE}, {4 * AGG_RS}
    s_add_u32 s{S_T+1}, s{S_T+1}, {L_AGG}
    v_lshrrev_b32 v{T0+4}, 2, v{V_L16}
    v_add_u32 v{T0+4}, s{S_T+1}, v{T0+4}
    v_bfe_u32 v{T0+2}, v{V_L16}, 4, 4                 ; lane & 15
    s_mul_i32 s{S_T+1}, s{S_T}, {16 * AGG_RS}
    s_add_u32 s{S_T+1}, s{S_T+1}, {L_AGG}
    v_mul_u32_u24 v{T0}, {AGG_RS}, v{T0+2}
    v_lshl_add_u32 v{T0}, v{T0+3}, 4, v{T0}
    v_add_u32 v{T0}, s{S_T+1}, v{T0}
    s_lshl_b32 s{S_T}, s{S_BETA}, 10
    s_and_b32 s{S_T+1}, s{S_WAVE}, 3
    s_lshl_b32 s{S_T+1}, s{S_T+1}, 8
    s_add_u32 s{S_T}, s{S_T}, s{S_T+1}
    v_lshl_add_u32 v{T0+2}, v{T0+2}, 4, s{S_T}
    s_waitcnt lgkmcnt(0)""")
    for t in range(5): a(f"v_lshl_add_u32 v{VOUT+t}, v{VOUT+t}, 18, v{T0+2}")
    a("s_barrier")
    st('all main done')
    AF = XR
    def wr(sl):
        for o in range(4): a(f"ds_write_b32 v{T0+4}, v{PK+4*sl+o} offset:{(32*sl + o)*AGG_RS}")
    def rd(t):
        for ks in range(4): a(f"ds_read_b128 {vr(AF+16*(t%2)+4*ks,4)}, v{T0} offset:{t*32*AGG_RS + ks*64}")
    def mm(t, waits):
        for ks in range(4):
            if waits[ks] is not None: a(f"s_waitcnt lgkmcnt({waits[ks]})")
            for j in range(2):
                d = ACC + 8 * t + 4 * j
                a(f"v_mfma_f32_16x16x32_bf16 {vr(d,4)}, {vr(AF+16*(t%2)+4*ks,4)}, {vr(WMIX+16*j+4*ks,4)}, " + ("0" if ks == 0 else vr(d, 4)))
    def pack_store(t):
        d = ACC + 8 * t; p = RR + 4 * (t % 2)
        for j in range(4): a(f"v_cvt_pk_bf16_f32 v{p+j}, v{d+2*j}, v{d+2*j+1}")
        a(f"buffer_store_dwordx4 {vr(p,4)}, v{VOUT+t}, {sr(S_OUT,4)}, 0 offen {opt.outst}")
    wr(0); wr(1)
    a("s_waitcnt vmcnt(0) lgkmcnt(0)\ns_barrier")
    st('agg in LDS')
    rd(0); rd(1)
    a("s_waitcnt lgkmcnt(4)")
    wr(2); wr(3)
    mm(0, [None] * 4)
    wr(4)
    a("s_waitcnt lgkmcnt(0)\ns_barrier")
    rd(2)
    mm(1, [None] * 4); pack_store(0)
    rd(3)
    mm(2, [7, 6, 5, 4]); pack_store(1)
    rd(4)
    mm(3, [7, 6, 5, 4]); pack_store(2)
    mm(4, [3, 2, 1, 0]); pack_store(3)
    a("s_nop 3")
    pack_store(4)
    st('end')
    if opt.probe:
        a(f"""s_cmp_eq_u32 s93, 0
        s_cselect_b32 s93, s92, s93
        s_sub_u32 s93, s93, s92
        s_mul_i32 s93, s93, 4
        s_add_u32 s92, s92, s93
        s_add_u32 s92, s92, 6000
        HOLD_SPIN:
        s_memrealtime s[98:99]
        s_waitcnt lgkmcnt(0)
        s_sub_u32 s98, s98, s92
        s_cmp_lt_i32 s98, 0
        s_cbranch_scc1 HOLD_SPIN""")
    if opt.stamps:
        a("s_waitcnt vmcnt(0)")
        st('stores done 2')
        a(f"""s_lshl_b32 s10, s2, 3
        s_add_u32 s10, s10, s{S_WAVE}
        s_lshl_b32 s10, s10, 7
        s_add_u32 s10, s10, {WS_STAMP}
        v_mov_b32 v{T0}, s10
        s_sub_u32 s{S_ST+31}, s{S_END}, s{S_START}
        s_sub_u32 s{S_ST+29}, {1 << 21}, s{S_SPIN}""")
        for k in range(32): a(f"v_mov_b32 v{XR+k}, s{S_ST+k}")
        for k in range(8): a(f"buffer_store_dwordx4 {vr(XR+4*k,4)}, v{T0}, {sr(S_WS,4)}, 0 offen offset:{16*k}")
    a("END:\ns_endpgm")
    a(".p2align 6\n.type DEAL_TABLE,@object\nDEAL_TABLE:\n.short " + ", ".join(map(str, deal_bytes())) + "\n.size DEAL_TABLE, 256")
    return a.text()

def generate(opt):
    here = os.path.dirname(os.path.abspath(__file__))
    out = open(here + "/header.txt").read()
    out += f"; @launch grid=(256,1,1) block=(512,1,1) lds={LDS_BYTES}\n"
    out += f'.amdgcn_target "amdgcn-amd-amdhsa--gfx950"\n.text\n.globl {KERN}\n.p2align 8\n.type {KERN},@function\n'
    out += kernel(opt)
    out += f""".section .rodata,"a"
.p2align 6
.amdhsa_kernel {KERN}
  .amdhsa_next_free_vgpr {NVGPR}
  .amdhsa_next_free_sgpr {NSGPR if opt.stamps or opt.probe else 66}
  .amdhsa_accum_offset {(NVGPR + 3) // 4 * 4}
  .amdhsa_group_segment_fixed_size 0
  .amdhsa_kernarg_size 88
  .amdhsa_user_sgpr_count 2
  .amdhsa_user_sgpr_kernarg_segment_ptr 1
  .amdhsa_system_sgpr_workgroup_id_x 1
  .amdhsa_float_denorm_mode_32 3
.end_amdhsa_kernel
"""
    return out

def options(argv):
    p = argparse.ArgumentParser()
    p.add_argument("-o", default="/code/" + NAME + ".s")
    p.add_argument("--stamps", action="store_true")
    p.add_argument("--probe", default="")
    p.add_argument("--D", type=int, default=6)
    p.add_argument("--prio", type=int, default=0)
    p.add_argument("--xs", type=int, default=0)
    p.add_argument("--recat", type=lambda t: tuple(map(int, t.split(","))), default=(0, 1, 0))
    p.add_argument("--only", default="")
    p.add_argument("--wsoff", type=int, default=0)
    p.add_argument("--gran", type=int, default=4)
    p.add_argument("--late", type=int, default=62)
    p.add_argument("--xpre", type=int, default=2)
    p.add_argument("--xt", default="3:0:20")
    p.add_argument("--lsplit", type=int, default=5)
    p.add_argument("--k1st", default="sc0 sc1")
    p.add_argument("--outst", default="sc0 sc1")
    return p.parse_args(argv)

if __name__ == "__main__":
    opt = options(sys.argv[1:])
    open(opt.o, "w").write(generate(opt))
    if opt.stamps: open(opt.o + ".names", "w").write(repr(STAMPS))
    import subprocess
    here = os.path.dirname(os.path.abspath(__file__))
    r = subprocess.run([sys.executable, here + "/hazards.py", opt.o], capture_output=True, text=True).stdout
    if " 0 finding" not in r: print(r)
    r = subprocess.run([sys.executable, here + "/../cdna_unwritten_srd_check.py", opt.o], capture_output=True, text=True)
    if r.returncode: print(r.stdout, r.stderr)
```

```python
import sys, argparse, os

NAME = "gather_scatter__tensor_product_equiv_tfn__graph"
KERN = NAME + "_kernel"
N, E, C = 10000, 320000, 128
NP, EP = 250, 1280
WS_KEY = 0
WS_REC = 0x280000
WS_WMIX = 0x771000
WS_TAB = 0x780000
WS_EPOCH = WS_TAB + 256 * 4096
WS_END = WS_EPOCH + 128
WS_STAMP = 0x900000
CAP = 1472

class Asm:
    def __init__(self): self.l = []
    def __call__(self, s):
        for line in s.strip("\n").split("\n"):
            line = line.strip()
            if not line: continue
            self.l.append(line if line.endswith(":") else "    " + line)
    def text(self): return "\n".join(self.l) + "\n"

def vr(a, n=1): return f"v{a}" if n == 1 else f"v[{a}:{a+n-1}]"
def sr(a, n=1): return f"s{a}" if n == 1 else f"s[{a}:{a+n-1}]"

SCAN_STEPS = ["row_shr:1 row_mask:0xf bank_mask:0xf bound_ctrl:0", "row_shr:2 row_mask:0xf bank_mask:0xf bound_ctrl:0",
              "row_shr:4 row_mask:0xf bank_mask:0xf bound_ctrl:0", "row_shr:8 row_mask:0xf bank_mask:0xf bound_ctrl:0",
              "row_bcast:15 row_mask:0xa bank_mask:0xf", "row_bcast:31 row_mask:0xc bank_mask:0xf"]
def scan64(a, *regs):
    for c in SCAN_STEPS:
        a("s_nop 1" if len(regs) == 1 else "s_nop 0")
        for v in regs: a(f"v_add_u32_dpp v{v}, v{v}, v{v} {c}")

L_HIST = 0; L_DEG = 1024; L_WT = 1280; L_CNT = L_WT + 16
L_INV = 1344; L_MAP = 1536; L_BASE = 1792
L_SENT = L_BASE + 1024
L_UREC = L_SENT + CAP * 4
L_CG = L_UREC + CAP * 16
L_LUT = 32768
L1_HIST = L_SENT; L1_LNS = L1_HIST + 1024; L1_BASE = L1_LNS + 2048; L1_SREC = L_UREC
L1_SKEY = L_LUT + 53 * 1024
assert L_CG + 128 <= L_LUT and L1_SREC + (EP + 64) * 16 <= L_CG and L1_BASE <= 8192
NLN = 10
L_AGG = L_LUT; AGG_RS = 288
LDS_BYTES = L_LUT + 131072

V_L16 = 1
V_LEN, V_PRE, V_GID = 2, 3, 4
V_AENT, V_POS = 5, 6
V_ONE = 15
V_DEAL = 174
V_DUMMY = 167
V_UNUSED = 166
T0 = 8
ACC = 16; XR = 64; TP = 96; UU = 112; RR = 128; TT = 136; WPK = 140; WTMP = 148
KEY = 164; ENT = 165; RECN = 168; EF = 172; CONST = 176; WMIX = 188
NVGPR = 220
PE, PO, CGB = CONST, CONST + 2, CONST + 4
LJ = 128
S_NODE = 4
S_X, S_WS, S_OUT = 12, 16, 20
S_BETA, S_WAVE, S_N, S_W0, S_NWIN, S_START, S_END, S_REM, S_REMB, S_OFF, S_MASK = range(24, 35)
S_SPIN = 35
S_M = 36
S_T = 42
S_K = 48
S_IN = 40
S_JOB, S_JCNT = 62, 63
S_NLO, S_NHI = 64, 65
S_WM = 10
S_L2E = 10
S_ST = 66
NSGPR = 102

STAMPS = []
def stamp(a, opt, name):
    if opt.probe == name: a("s_memrealtime s[98:99]\ns_waitcnt lgkmcnt(0)\ns_mov_b32 s93, s98")
    if not opt.stamps: return
    if opt.only and name not in opt.only.split(",") + ["start", "sorted", "main done", "stores done 2"]: return
    if name not in STAMPS: STAMPS.append(name)
    a(f"s_memrealtime s[98:99]\ns_waitcnt lgkmcnt(0)\ns_mov_b32 s{S_ST + STAMPS.index(name)}, s98")

S_RET = 6
def lut_sub(a):
    J, Ex, R, P = LJ, LJ + 8, LJ + 16, LJ + 24
    a(f"""LUT_SUB:
    s_lshl_b32 s3, s{S_JOB}, 25
    s_add_u32 s3, s3, 0x8000
    v_lshl_add_u32 v{J}, v{V_L16}, 15, s3""")
    for k in range(1, 8): a(f"v_add_u32 v{J+k}, 0x10000, v{J+k-1}")
    for k in range(0, 8, 2): a(f"v_pk_mul_f32 {vr(Ex+k,2)}, {vr(J+k,2)}, {sr(S_L2E,2)}")
    for k in range(8): a(f"v_exp_f32 v{Ex+k}, v{Ex+k}")
    a(f"s_lshl_b32 s3, s{S_JOB}, 10")
    for k in range(0, 8, 2): a(f"v_pk_add_f32 {vr(R+k,2)}, {vr(Ex+k,2)}, 1.0 op_sel_hi:[1,0]")
    for k in range(8): a(f"v_rcp_f32 v{R+k}, v{R+k}")
    a(f"v_add_u32 v{P+8}, s3, v{V_L16}")
    for k in range(0, 8, 2): a(f"v_pk_mul_f32 {vr(J+k,2)}, {vr(J+k,2)}, {vr(R+k,2)}")
    a(f"v_add_u32 v{P+9}, 0x10000, v{P+8}")
    for k in range(0, 8, 2): a(f"v_pk_mul_f32 {vr(Ex+k,2)}, {vr(J+k,2)}, {vr(Ex+k,2)} neg_lo:[1,0] neg_hi:[1,0]")
    for k in range(4): a(f"v_cvt_pk_bf16_f32 v{P+k}, v{J+2*k}, v{J+2*k+1}")
    for k in range(4): a(f"v_cvt_pk_bf16_f32 v{P+4+k}, v{Ex+2*k}, v{Ex+2*k+1}")
    a(f"""ds_write_b128 v{P+8}, {vr(P,4)} offset:{L_LUT}
    ds_write_b128 v{P+9}, {vr(P+4,4)} offset:{L_LUT}
    s_add_u32 s{S_JOB}, s{S_JOB}, 1
    s_sub_u32 s{S_JCNT}, s{S_JCNT}, 1
    s_cmp_lg_u32 s{S_JCNT}, 0
    s_cbranch_scc1 LUT_SUB
    s_setpc_b64 {sr(S_RET,2)}""")
def lut_jobs(a, count): a(f"s_mov_b32 s{S_JCNT}, {count}\ns_call_b64 {sr(S_RET,2)}, LUT_SUB")

def lut_plain(a, tag, region, last=None, cont=False, until=None):
    P = LJ
    for name, first, end, bias in (("L", 1, 24, 0x20000 - 0x800080), ("H", 34, 62, 0x20000)):
        if name != region: continue
        last = last or end
        if cont: a(f"s_cmp_gt_u32 s{S_JOB}, {last}\ns_cbranch_scc1 LUTP_END_{tag}")
        else: a(f"s_add_u32 s{S_JOB}, s{S_WAVE}, {first}")
        if name == "H" and not cont:
            for k in range(4): a(f"v_mov_b32 v{P+4+k}, 0x80008000")
        a(f"LUTP_{tag}{name}:")
        if until:
            a(f"""ds_read_b32 v{T0+2}, v{T0+3} offset:{L_CNT}
            s_waitcnt lgkmcnt(0)
            v_readfirstlane_b32 s3, v{T0+2}
            s_cmp_eq_u32 s3, 3
            s_cbranch_scc1 {until}""")
        a(f"""s_mul_i32 s3, s{S_JOB}, {512 * 0x10001}
        s_add_u32 s3, s3, {bias & 0xffffffff}
        v_add_u32 v{P}, s3, v{P+10}
        s_lshl_b32 s3, s{S_JOB}, 10
        v_add_u32 v{P+8}, s3, v{V_L16}""")
        for k in range(1, 4): a(f"v_add_u32 v{P+k}, {k * 0x20002}, v{P}")
        a(f"v_add_u32 v{P+9}, 0x10000, v{P+8}")
        if name == "L":
            for k in range(4): a(f"v_or_b32 v{P+4+k}, 0x80008000, v{P+k}")
        a(f"""ds_write_b128 v{P+8}, {vr(P,4)} offset:{L_LUT}
        ds_write_b128 v{P+9}, {vr(P+4,4)} offset:{L_LUT}
        s_add_u32 s{S_JOB}, s{S_JOB}, {5 if name == "L" else 4}
        s_cmp_le_u32 s{S_JOB}, {last}
        s_cbranch_scc1 LUTP_{tag}{name}
        LUTP_END_{tag}:""")

def tab_issue(a): a(f"buffer_load_dwordx4 {vr(RECN,4)}, v{V_POS}, {sr(S_WS,4)}, 0 offen sc1")
def tab_check(a, younger):
    if younger: a(f"s_waitcnt vmcnt({younger})\ns_branch CHECK_TAB")
    a(f"""POLL_TAB:
    s_waitcnt vmcnt(0)
    CHECK_TAB:
    v_lshrrev_b32 v{T0+3}, 22, v{RECN}
    v_cmp_ne_u32 vcc, s{S_NLO}, v{RECN+1}
    v_cmp_ne_u32 {sr(S_T,2)}, s{S_NHI}, v{T0+3}
    s_or_b64 vcc, vcc, {sr(S_T,2)}
    s_and_b64 exec, exec, vcc
    s_cbranch_execz POLLED_TAB
    s_sub_u32 s{S_SPIN}, s{S_SPIN}, 1
    s_cbranch_scc1 END""")
    tab_issue(a)
    a("s_branch POLL_TAB\nPOLLED_TAB:\ns_mov_b64 exec, -1")

def load_epoch(a):
    a(f"""s_add_u32 s4, s{S_WS}, {WS_EPOCH}
    s_addc_u32 s5, s{S_WS+1}, 0
    s_load_dwordx2 {sr(S_NLO,2)}, s[4:5], 0""")
def make_tag(a):
    a(f"""s_add_u32 s{S_NLO}, s{S_NLO}, 1
    s_and_b32 s{S_NHI}, s{S_NHI}, 0x3ff""")

def scan256(a, H_, O_):
    a(f"""v_add_u32 v{T0+2}, v{H_}, v{H_+1}
    v_add3_u32 v{T0+2}, v{T0+2}, v{H_+2}, v{H_+3}
    v_mov_b32 v{T0+3}, v{T0+2}""")
    scan64(a, T0 + 3)
    a(f"""v_sub_u32 v{O_}, v{T0+3}, v{T0+2}
    v_add_u32 v{O_+1}, v{O_}, v{H_}
    v_add_u32 v{O_+2}, v{O_+1}, v{H_+1}
    v_add_u32 v{O_+3}, v{O_+2}, v{H_+2}""")

SRC, DST, YY, EFP, WRAD, CG, WMX = S_IN + 2, S_IN + 4, S_IN + 6, S_IN + 8, S_IN + 10, S_IN + 12, S_IN + 14
D_, S_, Y_, F_, B_, R_, H_, O_, TB = 64, 68, 72, 80, 88, 92, 96, 100, 108
CT = WMIX
def const_sub(a):
    a(f"""CONST_SUB:
    ds_write_b32 v{CT+5}, v{CT+4} offset:{L_CG}
    v_lshrrev_b32 v{CT+5}, 3, v{V_L16}
    v_and_b32 v{CT+5}, 24, v{CT+5}
    s_mov_b32 s4, 0x05040100
    s_mov_b32 s5, 0x07060302""")
    for i in range(4): a(f"ds_read_b64_tr_b16 {vr(CGB+2*i,2)}, v{CT+5} offset:{L_CG + 32*i}")
    for u in range(2):
        a(f"v_perm_b32 v{PE+u}, v{CT+1+2*u}, v{CT+2*u}, s4\nv_perm_b32 v{PO+u}, v{CT+1+2*u}, v{CT+2*u}, s5")
    a(f"s_setpc_b64 {sr(S_RET,2)}")
def const_finish(a): a(f"s_call_b64 {sr(S_RET,2)}, CONST_SUB")

def phase1(a, opt):
    st = lambda n: stamp(a, opt, n)
    WS = sr(S_WS, 2); FL = opt.k1st
    a(f"""s_cmp_ge_u32 s{S_WAVE}, 5
    s_cbranch_scc1 HELP""")
    lut_plain(a, "W0", "L", last=opt.lsplit)
    a(f"""s_cmp_ge_u32 s2, {NP}
    s_cbranch_scc1 AUX
    global_load_dwordx4 {vr(Y_,4)}, v{T0+1}, {sr(YY,2)}
    global_load_dwordx4 {vr(Y_+4,4)}, v{T0+1}, {sr(YY,2)} offset:16
    global_load_dwordx4 {vr(F_,4)}, v{T0+1}, {sr(EFP,2)}
    global_load_dwordx4 {vr(F_+4,4)}, v{T0+1}, {sr(EFP,2)} offset:16
""")
    st('jobs A')
    a("s_waitcnt vmcnt(11)")
    st('dst arrived')
    for k in range(4):
        a(f"""v_and_b32 v{B_+k}, 0xff, v{D_+k}
              v_lshlrev_b32 v{B_+k}, 2, v{B_+k}
              ds_add_rtn_u32 v{R_+k}, v{B_+k}, v{V_ONE} offset:{L1_HIST}""")
    a("s_waitcnt vmcnt(10)")
    for k in range(4):
        a(f"""v_lshrrev_b32 v{D_+k}, 8, v{D_+k}
              v_lshl_or_b32 v{TB+2*k}, v{S_+k}, 10, v{D_+k}""")
    a(f"""s_mov_b32 s9, {L1_SKEY}
    s_waitcnt lgkmcnt(0)
    s_barrier
    ds_read_b128 {vr(H_,4)}, v{V_L16} offset:{L1_HIST}""")
    make_tag(a)
    for k in range(4): a(f"v_mov_b32 v{TB+2*k+1}, s{S_NLO}")
    a("v_mov_b32 v119, 0")
    for k in range(4):
        a(f"""v_cmp_gt_u32 vcc, {NLN}, v{R_+k}
              v_mul_u32_u24 v116, 6, v{R_+k}
              v_lshlrev_b32 v117, 1, v{B_+k}
              v_cndmask_b32 v118, 0, v{D_+k}, vcc
              v_lshlrev_b64 {vr(120+2*(k%2),2)}, v116, v[118:119]
              ds_or_b64 v117, {vr(120+2*(k%2),2)} offset:{L1_LNS}""")
    a("s_waitcnt lgkmcnt(4)")
    scan256(a, H_, O_)
    a(f"ds_write_b128 v{V_L16}, {vr(O_,4)} offset:{L1_BASE}")
    for k in range(4): a(f"ds_read_b32 v{H_+k}, v{B_+k} offset:{L1_BASE}")
    for k in range(4):
        a(f"""s_waitcnt lgkmcnt(3)
              v_add_u32 v{R_+k}, v{R_+k}, v{H_+k}
              v_lshl_add_u32 v{B_+k}, v{R_+k}, 3, s9
              ds_write_b64 v{B_+k}, {vr(TB+2*k,2)}""")
    for k in range(4):
        a(f"v_lshlrev_b32 v{R_+k}, 4, v{R_+k}\nv_add_u32 v{R_+k}, {L1_SREC}, v{R_+k}")
    a("s_waitcnt lgkmcnt(0)\ns_barrier")
    st('keys binned')
    a("s_waitcnt vmcnt(0)")
    x_touch(a, opt, 9, False)
    for k in range(4):
        a(f"ds_write2_b64 v{R_+k}, {vr(Y_+2*k,2)}, {vr(F_+2*k,2)} offset0:0 offset1:1")
    st('recs binned')
    a("BINNED:\ns_setprio 0")
    a(f"s_waitcnt lgkmcnt(0)\ns_barrier\nv_mov_b32 v{V_LEN}, 0")
    const_finish(a)
    lut_plain(a, "W", "L", cont=True)
    a(f"s_cmp_eq_u32 s{S_WAVE}, 4\ns_cbranch_scc1 WAVE4")
    lut_plain(a, "U", "H", last=opt.late)
    tab_issue(a)
    x_touch(a, opt, 6, False)
    st('tab issued')
    if opt.late < 62: lut_plain(a, "V", "H", cont=True)
    tab_check(a, ("," + opt.xt).count(",6:"))
    st('tab arrived')
    a("s_branch TAB_DONE")
    lut_sub(a)
    const_sub(a)
    a("HELP:")
    a(f"""s_sub_u32 s8, s{S_WAVE}, 5
    s_mul_i32 s4, s8, 3072
    s_cmp_eq_u32 s8, 1
    s_cselect_b32 s4, 4096, s4
    s_mul_i32 s3, s2, {EP * 8}
    s_add_u32 s3, s3, s4
    v_add_u32 v{T0}, s3, v{V_L16}
    s_add_u32 s4, s4, {L1_SKEY}
    v_add_u32 v{T0+1}, s4, v{V_L16}
    s_mul_i32 s4, s8, 7168
    s_mul_i32 s3, s2, {EP * 16}
    s_add_u32 s3, s3, s4
    s_add_u32 s3, s3, {WS_REC}
    v_add_u32 v{T0+4}, s3, v{V_L16}
    v_add_u32 v{T0+5}, s4, v{V_L16}
    s_lshl_b32 s3, s2, 12
    s_add_u32 s3, s3, {WS_TAB}
    v_add_u32 v117, s3, v{V_L16}
    s_waitcnt lgkmcnt(0)""")
    make_tag(a)
    st('help jobs')
    a(f"""s_barrier
    s_cmp_eq_u32 s{S_WAVE}, 6
    s_cbranch_scc1 ROW
    s_cmp_eq_u32 s{S_WAVE}, 7
    s_cselect_b32 s{S_JOB}, 63, 0""")
    lut_jobs(a, 1)
    a("s_waitcnt vmcnt(0)")
    const_finish(a)
    a(f"""v_mov_b32 v{T0+2}, {0x7f80 * 2}
    v_mov_b32 v{T0+3}, 0x7f80
    s_cmp_lg_u32 s{S_WAVE}, 7
    s_cbranch_scc1 NO_ROW
    ds_write_b16 v{T0+2}, v{T0+3} offset:{L_LUT}
    s_branch NO_ROW
ROW:
    v_lshrrev_b32 v116, 2, v{V_L16}""")
    QT, HH, SS = 84, 100, 104
    for m in range(4): a(f"ds_read_b32 v{HH+m}, v116 offset:{L1_HIST + 256*m}")
    a(f"""s_lshl_b32 s3, s2, 12
    s_add_u32 s3, s3, {WS_TAB}
    v_add_u32 v117, s3, v{V_L16}
    v_lshrrev_b32 v116, 1, v{V_L16}
    s_lshl_b32 s3, s{S_NHI}, 22
    s_waitcnt lgkmcnt(0)""")
    for m in range(4): a(f"v_mov_b32 v{SS+m}, v{HH+m}")
    scan64(a, SS, SS + 1, SS + 2, SS + 3)
    a(f"""v_readlane_b32 s4, v{SS}, 63
    v_readlane_b32 s5, v{SS+1}, 63
    v_readlane_b32 s9, v{SS+2}, 63""")
    for m in range(4): a(f"v_sub_u32 v{SS+m}, v{SS+m}, v{HH+m}")
    a(f"""s_add_u32 s5, s5, s4
    s_add_u32 s9, s9, s5
    v_add_u32 v{SS+1}, s4, v{SS+1}
    v_add_u32 v{SS+2}, s5, v{SS+2}
    v_add_u32 v{SS+3}, s9, v{SS+3}""")
    for m in range(4):
        a(f"""v_lshl_or_b32 v{QT+4*m}, v{HH+m}, 11, v{SS+m}
              v_or_b32 v{QT+4*m}, s3, v{QT+4*m}
              v_mov_b32 v{QT+4*m+1}, s{S_NLO}""")
    a("s_waitcnt vmcnt(0)")
    const_finish(a)
    a(f"""NO_ROW:
    s_barrier
    s_cmp_lg_u32 s{S_WAVE}, 6
    s_cbranch_scc1 ROW_DONE""")
    for m in range(4): a(f"ds_read_b64 {vr(QT+4*m+2,2)}, v116 offset:{L1_LNS + 512*m}")
    for m in range(4): a(f"s_waitcnt lgkmcnt({3-m})\nglobal_store_dwordx4 v117, {vr(QT+4*m,4)}, {WS} offset:{1024*m} sc0 sc1")
    st('table published')
    a("ROW_DONE:")
    for k in range(4): a(f"ds_read_b128 {vr(64+4*k,4)}, v{T0+1} offset:{1024*k}")
    a(f"""v_mov_b32 v{V_LEN}, 0
    s_add_u32 s{S_JOB}, s8, s8                       ; jobs 27, 28 / 29, 30, 31 / 32, 33
    s_add_u32 s{S_JOB}, s{S_JOB}, 27
    s_cmp_eq_u32 s8, 2
    s_addc_u32 s{S_JOB}, s{S_JOB}, 0
    s_cmp_eq_u32 s8, 1
    s_cselect_b32 s{S_JCNT}, 3, 2
    s_waitcnt lgkmcnt(0)
    s_barrier
    s_cmp_ge_u32 s2, {NP}
    s_cbranch_scc1 RECS_STORED""")
    for k in range(7): a(f"ds_read_b128 {vr(84+4*k,4)}, v{T0+5} offset:{L1_SREC + 1024*k}")
    for k in range(7):
        if k == 4: a(f"v_add_u32 v{T0+4}, 4096, v{T0+4}")
        if k == 6: a(f"s_cmp_eq_u32 s8, 2\ns_cbranch_scc1 RECS_STORED")
        a(f"s_waitcnt lgkmcnt({6-k})\nglobal_store_dwordx4 v{T0+4}, {vr(84+4*k,4)}, {WS} offset:{(1024*k) % 4096} {FL}")
    a(f"""RECS_STORED:
    s_call_b64 {sr(S_RET,2)}, LUT_SUB
    s_cmp_ge_u32 s2, {NP}
    s_cbranch_scc1 TAB_DONE
    v_mov_b32 v{T0+2}, 0
    s_waitcnt vmcnt(0)
    s_mov_b64 exec, 1
    ds_add_u32 v{T0+2}, v{V_ONE} offset:{L_CNT}
    s_mov_b64 exec, -1
WAIT_ACK:
    ds_read_b32 v{T0+3}, v{T0+2} offset:{L_CNT}
    s_waitcnt lgkmcnt(0)
    v_readfirstlane_b32 s3, v{T0+3}
    s_cmp_eq_u32 s3, 3
    s_cbranch_scc0 WAIT_ACK""")
    st('recs acked')
    for k in range(4):
        if k == 2: a(f"s_cmp_eq_u32 s8, 1\ns_cbranch_scc1 TAB_DONE")
        a(f"global_store_dwordx4 v{T0}, {vr(64+4*k,4)}, {WS} offset:{1024*k} {FL}")
    a("s_branch TAB_DONE")
    a(f"""AUX_LOAD:
    s_sub_u32 s4, s2, {NP}
    s_cmp_ge_u32 s4, 4
    s_cbranch_scc1 NO_EDGES
    s_cmp_ge_u32 s{S_WAVE}, 4
    s_cbranch_scc1 NO_EDGES
    s_lshl_b32 s5, s{S_WAVE}, 13
    s_lshl_b32 s8, s4, 6
    s_add_u32 s5, s5, s8
    v_lshrrev_b32 v80, 8, v{V_L16}
    v_lshlrev_b32 v80, 11, v80
    v_bfe_u32 v81, v{V_L16}, 4, 4
    v_lshl_add_u32 v80, v81, 2, v80
    v_add_u32 v80, s5, v80""")
    for t in range(8): a(f"global_load_dword v{64+t}, v80, {sr(WMX,2)} offset:{t*256}")
    a(f"""s_branch NO_EDGES
AUX:
    s_cmp_ge_u32 s2, {NP + 4}
    s_cbranch_scc1 AUX_DONE
    s_cmp_ge_u32 s{S_WAVE}, 4
    s_cbranch_scc1 AUX_DONE
    s_sub_u32 s4, s2, {NP}
    s_lshl_b32 s5, s4, 13
    s_lshl_b32 s8, s{S_WAVE}, 10
    s_add_u32 s5, s5, s8
    s_add_u32 s5, s5, {WS_WMIX}
    v_add_u32 v81, s5, v{V_L16}
    s_mov_b32 s4, 0x05040100
    s_mov_b32 s5, 0x07060302
    s_waitcnt vmcnt(6)""")
    for u in range(4):
        a(f"v_perm_b32 v{72+u}, v{65+2*u}, v{64+2*u}, s4\nv_perm_b32 v{76+u}, v{65+2*u}, v{64+2*u}, s5")
    a(f"""global_store_dwordx4 v81, v[72:75], {WS} {FL}
    v_add_u32 v81, 4096, v81
    global_store_dwordx4 v81, v[76:79], {WS} {FL}
AUX_DONE:
    s_waitcnt lgkmcnt(0)""")
    make_tag(a)
    a(f"""s_barrier
    s_waitcnt vmcnt(0)
    s_barrier
    s_branch BINNED
WAVE4:
    s_mov_b32 s{S_JOB}, 25""")
    lut_jobs(a, 2)
    a("TAB_DONE:")

def mfma4(d, a_, b, c, blk=None):
    cc = "0" if c is None else vr(c, 4)
    return f"v_mfma_f32_4x4x4_16b_bf16 {vr(d,4)}, {vr(a_,2)}, {vr(b,2)}, {cc}" + ("" if blk is None else f" cbsz:4 abid:{blk}")
def p_mfma(g, odd):
    return mfma4(UU + 8 * (g % 2) + 4 * odd, EF, PO if odd else PE, None, g % 16)
def t_mfma(e, odd):
    return mfma4(TP + 8 * (e % 2) + 4 * odd, WPK + 2 * (e % 4), XR + 4 * (e % 8) + 2 * odd, None, (e % 64) // 4)
def act_regs(eb, odd):
    return UU + 8 * ((eb // 4) % 2) + 4 * odd + eb % 4, RR + 4 * ((eb // 2) % 2) + 2 * odd
def act_addr(t, u):
    return f"v_lshlrev_b32_sdwa v{t}, v{V_ONE}, v{u} dst_sel:DWORD dst_unused:UNUSED_PAD src0_sel:DWORD src1_sel:WORD_1"
def act_read(r, t): return f"ds_read_u16_d16_hi v{r}, v{t} offset:{L_LUT}"
def fma4(a, q):
    h = q % 2
    a(f"s_set_gpr_idx_on s{S_K + q % 16}, 0xc")
    for odd in range(2):
        r = RR + 4 * ((q // 2) % 2) + 2 * odd
        for o in (0, 2):
            acc = ACC + 4 * odd + o; tp = TP + 8 * (q % 2) + 4 * odd + o
            a(f"v_pk_fma_f32 {vr(acc,2)}, {vr(r,2)}, {vr(tp,2)}, {vr(acc,2)} op_sel:[{h},0,0] op_sel_hi:[{h},1,1]")
    a("s_set_gpr_idx_off")
def meta_read_entry(a): a(f"ds_read_b32 v{ENT}, v{V_AENT}")
def meta_fix_entry(a, rec=True):
    a(f"""v_cmp_gt_u32 vcc, s{S_END}, v{V_POS}
          v_add_u32 v{V_POS}, 64, v{V_POS}
          v_add_u32 v{V_AENT}, 256, v{V_AENT}
          v_cndmask_b32 v{ENT}, 40, v{ENT}, vcc
          v_lshrrev_b32 v{T0}, 21, v{ENT}
          v_lshlrev_b32 v{T0}, 4, v{T0}
          v_lshlrev_b32 v{T0+1}, 3, v{ENT}""")
    if rec: meta_read_rec(a)
    a(f"""v_and_b32 v{T0+1}, 0xfffc00, v{T0+1}
          v_and_or_b32 v{ENT}, v{ENT}, 56, v{T0+1}""")
def meta_read_rec(a): a(f"ds_read_b128 {vr(RECN,4)}, v{T0} offset:{L_UREC}")
def w_mfma(i): return mfma4(WTMP + 4 * i, RECN, CGB + 2 * i, None)
def w_cvt(a, m):
    a(f"""v_cvt_pk_bf16_f32 v{WPK+2*m}, v{WTMP+m}, v{WTMP+4+m}
          v_cvt_pk_bf16_f32 v{WPK+2*m+1}, v{WTMP+8+m}, v{WTMP+12+m}""")

def step(a, opt, q, drain=None):
    D = opt.D; loads = drain is None
    eb = q + 2 - q % 2; odd = q % 2
    u, r = act_regs(eb, odd); t = TT + 2 * odd
    g, ur = (q + 6) // 4, (q + 6) % 4
    if ur % 2 == 0: a(p_mfma(g, ur // 2))
    elif 40 <= q < 48: a(w_mfma((q - 40) // 2))
    a(act_addr(t, u))
    if loads: a(f"s_waitcnt vmcnt({D - 2})")
    elif D - 2 - drain >= 0: a(f"s_waitcnt vmcnt({8 + D - 2 - drain})")
    a(t_mfma(q + 1, 0))
    if loads: a(f"v_readlane_b32 s{S_K + (q + D) % 16}, v{KEY if q + D < 64 else ENT}, {(q + D) % 64}")
    else:     a("s_nop 0")
    a(t_mfma(q + 1, 1))
    a(act_addr(t + 1, u + 1))
    a(act_read(r, t)); a(act_read(r + 1, t + 1))
    if q >= 60: w_cvt(a, q - 60)
    if loads:
        a(f"s_and_b32 s{S_OFF}, s{S_K + (q + D) % 16}, s{S_MASK}")
        a(f"buffer_load_dwordx4 {vr(XR + 4 * ((q + D) % 8), 4)}, v{V_L16}, {sr(S_X,4)}, s{S_OFF} offen")
    if q % 2 == 0: a("s_waitcnt lgkmcnt(2)")
    fma4(a, q)
    if loads: x_touch(a, opt, 100 + q, False)
    if loads and q == 8: meta_read_entry(a)
    if loads and q == 12: meta_fix_entry(a)
    if q == 57: a(f"v_mov_b32 v{EF}, v{RECN+2}\nv_mov_b32 v{EF+1}, v{RECN+3}\ns_nop 1")
    if loads and q == 63: a(f"v_mov_b32 v{KEY}, v{ENT}")

def body(a, opt):
    G = opt.gran
    for q in range(64):
        if q % G == 0: a(f"A_{q}:\ns_sub_u32 s{S_REM}, s{S_REM}, {G}\ns_cbranch_scc1 B_{q}")
        step(a, opt, q)
    if opt.stamps and not opt.only:
        STAMPS.extend(("batch 1", "batch 2")); k = S_ST + len(STAMPS) - 2
        a(f"""s_memrealtime s[98:99]
        s_waitcnt lgkmcnt(0)
        s_cmp_eq_u32 s{k}, 0
        s_cselect_b32 s99, 0, s98
        s_cselect_b32 s{k}, s98, s{k}
        s_cmp_eq_u32 s{k+1}, 0
        s_cselect_b32 s{k+1}, s99, s{k+1}""")
    if opt.probe == "batch 1":
        a("s_memrealtime s[98:99]\ns_waitcnt lgkmcnt(0)\ns_cmp_eq_u32 s93, 0\ns_cselect_b32 s93, s98, s93")
    a("s_branch A_0")
    for q in range(0, 64, G):
        a(f"B_{q}:")
        for k in range(8):
            a(f"buffer_load_dwordx4 {vr(WMIX+4*k,4)}, v{V_L16}, {sr(S_WS,4)}, s{S_WM + k // 4} offen offset:{(k%4)*1024} sc1")
        for i in range(opt.D):
            a(f"s_sub_u32 s{S_REMB}, s{S_REMB}, 1\ns_cbranch_scc1 MAIN_DONE")
            step(a, opt, (q + i) % 64, i)
        a("s_branch MAIN_DONE")

def x_touch(a, opt, where, guard=True):
    for spec in filter(None, opt.xt.split(",")):
        w, lo, hi = map(int, spec.split(":"))
        if w != where: continue
        if guard: a(f"s_cmp_lg_u32 s{S_W0}, 0\ns_cbranch_scc1 NO_X_TOUCH_{w}")
        if w >= 100: a(f"s_bitcmp1_b32 s3, {w % 32}\ns_cbranch_scc1 NO_X_TOUCH_{w}\ns_bitset1_b32 s3, {w % 32}")
        four = w in (6, 9)
        if w == 9: a(f"s_cmp_eq_u32 s{S_WAVE}, 4\ns_cbranch_scc1 NO_X_TOUCH_{w}")
        a(f"""s_lshl_b32 s{S_OFF}, s2, {2 if four else 3}
        s_add_u32 s{S_OFF}, s{S_OFF}, s{S_WAVE}
        s_lshl_b32 s{S_OFF}, s{S_OFF}, 7
        s_add_u32 s{S_OFF}, s{S_OFF}, {lo << 18}
        v_min_u32 v{V_UNUSED}, {(((hi - lo) << four) - 1) * 16}, v{V_L16}
        v_lshl_add_u32 v{V_UNUSED}, v{V_UNUSED}, {14 - four}, s{S_OFF}
        buffer_load_dword v{V_DUMMY}, v{V_UNUSED}, {sr(S_X,4)}, 0 offen""")
        a(f"NO_X_TOUCH_{w}:")

DEAL = ([4, 2, 4, 7, 6, 3, 1, 5, 0, 4, 2, 6, 1, 7, 3, 5, 0, 4, 7, 3, 0, 1, 5, 6, 2, 5, 0, 1, 6, 7, 3, 2, 0, 5, 3, 1, 6, 7, 2, 4],
        [0, 2, 7, 1, 4, 6, 5, 3, 6, 3, 1, 7, 4, 0, 2, 5, 4, 3, 5, 6, 7, 1, 0, 2, 7, 5, 2, 4, 3, 6, 0, 1, 5, 1, 3, 6, 4, 2, 7, 0])
def deal_bytes():
    out = []
    for t in DEAL:
        assert sorted(t) == sorted(list(range(8)) * 5)
        out += [4 * (5 * w + t[:r].count(w)) | (8 * w + t[:r].count(w)) << 8 for r, w in enumerate(t)] + [0] * 24
    return out

def zero_hist(a):
    a(f"""v_lshlrev_b32 v{T0+3}, 2, v0
    v_mov_b32 v{T0+4}, 0
    v_cmp_gt_u32 vcc, 0x100, v0
    s_and_saveexec_b64 {sr(S_T,2)}, vcc
    ds_write_b32 v{T0+3}, v{T0+4} offset:{L_HIST}
    s_mov_b64 exec, {sr(S_T,2)}""")

def kernel(opt):
    a = Asm(); D = opt.D
    st = lambda n: stamp(a, opt, n)
    a(f"""{KERN}:
    s_cmp_ge_u32 s2, 256
    s_cbranch_scc1 END""")
    if opt.probe: a("s_mov_b32 s93, 0\ns_memrealtime s[98:99]\ns_waitcnt lgkmcnt(0)\ns_mov_b32 s92, s98")
    if opt.stamps:
        for k in range(32): a(f"s_mov_b32 s{S_ST+k}, 0")
    st('start')
    a(f"""s_load_dwordx16 {sr(S_IN,16)}, s[0:1], 0
    s_load_dwordx2 {sr(S_WS,2)}, s[0:1], 80
    s_load_dwordx2 {sr(S_X,2)}, s[0:1], 0
    s_load_dwordx2 {sr(S_OUT,2)}, s[0:1], 64
    ; wave 7 of every workgroup takes 8 lines; the 32 workgroups with equal id % 8 cover 32 KiB
    s_getpc_b64 s[6:7]
CODE_HERE:
    v_lshrrev_b32 v{T0}, 6, v0
    s_lshr_b32 s5, s2, 3
    s_lshl_b32 s4, s5, 10
    v_readfirstlane_b32 s{S_WAVE}, v{T0}
    v_and_b32 v{T0+2}, 7, v0
    v_lshl_add_u32 v{T0+2}, v{T0+2}, 7, s4
    v_min_u32 v{T0+2}, END-CODE_HERE, v{T0+2}
    s_cmp_lg_u32 s{S_WAVE}, 7
    s_cbranch_scc1 NO_CODE_TOUCH
    global_load_dword v{V_DUMMY}, v{T0+2}, s[6:7]
NO_CODE_TOUCH:
    s_mul_i32 s3, s2, {EP * 4}
    v_lshl_add_u32 v{T0}, v0, 4, s3
    v_and_b32 v{T0+2}, 63, v0
    v_lshlrev_b32 v{V_L16}, 4, v{T0+2}
    v_lshlrev_b32 v{CT+5}, 2, v{T0+2}
    s_cmp_ge_u32 s{S_WAVE}, 5
    s_waitcnt lgkmcnt(0)
    s_cbranch_scc1 NO_EDGES
    s_cmp_ge_u32 s2, {NP}
    s_cbranch_scc1 AUX_LOAD
    s_setprio 1
    global_load_dwordx4 {vr(D_,4)}, v{T0}, {sr(DST,2)}
    global_load_dwordx4 {vr(S_,4)}, v{T0}, {sr(SRC,2)}
NO_EDGES:""")
    if opt.wsoff: a(f"s_add_u32 s{S_WS}, s{S_WS}, {opt.wsoff << 20}\ns_addc_u32 s{S_WS+1}, s{S_WS+1}, 0")
    st('kernargs')
    for k in range(4): a(f"global_load_dword v{CT+k}, v{CT+5}, {sr(WRAD,2)} offset:{k*256}")
    a(f"""v_and_b32 v{CT+5}, 0x7f, v{CT+5}
    global_load_dword v{CT+4}, v{CT+5}, {sr(CG,2)}
    s_and_b32 s3, s2, 0x87
    s_cmp_eq_u32 s3, 0
    s_cselect_b32 s3, 128, 0
    s_add_u32 s3, s3, DEAL_TABLE-CODE_HERE
    v_lshl_add_u32 v{V_DEAL}, v{T0+2}, 1, s3
    global_load_ushort v{V_DEAL}, v{V_DEAL}, s[6:7]
    v_lshlrev_b32 v{T0+1}, 1, v{T0}
    v_lshlrev_b32 v{T0+3}, 4, v0
    v_mov_b32 v{T0+4}, 0
    v_mov_b32 v{T0+5}, 0
    v_pk_mov_b32 {vr(ACC,2)}, {vr(T0+4,2)}, {vr(T0+4,2)}
    v_pk_mov_b32 {vr(ACC+2,2)}, {vr(T0+4,2)}, {vr(T0+4,2)}
    ds_write_b128 v{T0+3}, {vr(ACC,4)}
    s_and_b32 s4, s2, 7
    s_lshl_b32 s4, s4, 5
    s_lshr_b32 s5, s2, 3
    s_or_b32 s{S_BETA}, s4, s5
    v_mov_b32 v{V_ONE}, 1
    s_mov_b32 s{S_X+2}, {N * 1024}
    s_mov_b32 s{S_X+3}, 0x20000
    s_mov_b32 s{S_WS+2}, {WS_END if not opt.stamps else WS_STAMP + 0x80000}
    s_mov_b32 s{S_WS+3}, 0x20000
    s_mov_b32 s{S_OUT+2}, {N * 1024}
    s_mov_b32 s{S_OUT+3}, 0x20000
    s_mov_b32 s{S_MASK}, 0xfffffc00
    s_mov_b32 s{S_W0}, 0
    s_mov_b32 s{S_L2E}, 0xbfb8aa3b
    s_mov_b32 s{S_L2E+1}, 0xbfb8aa3b
    s_mov_b32 s{S_SPIN}, {1 << 21}
    v_and_b32 v{V_GID}, 0xff, v0
    s_lshl_b32 s3, s{S_BETA}, 4
    s_add_u32 s3, s3, {WS_TAB}
    v_lshl_add_u32 v{V_POS}, v{V_GID}, 12, s3
    v_mul_u32_u24 v{V_GID}, {EP}, v{V_GID}
    v_mul_u32_u24 v{LJ+10}, 0x8000, v{V_L16}
    v_lshl_add_u32 v{LJ+10}, v{T0+2}, 3, v{LJ+10}    ; lane * 8 * 0x10001""")
    for k in range(4, 48, 2): a(f"v_pk_mov_b32 {vr(ACC+k,2)}, {vr(T0+4,2)}, {vr(T0+4,2)}")
    a("s_waitcnt lgkmcnt(0)")
    load_epoch(a)
    a("s_barrier")
    phase1(a, opt)
    a(f"""s_cmp_ge_u32 s{S_WAVE}, 4
    s_cbranch_scc1 TOTALS
    v_and_b32 v{T0+5}, 0x7ff, v{RECN}
    v_bfe_u32 v{V_LEN}, v{RECN}, 11, 11
    v_add_u32 v{V_GID}, v{V_GID}, v{T0+5}
    v_mov_b32 v{V_PRE}, v{V_LEN}""")
    scan64(a, V_PRE)
    a(f"""s_lshl_b32 s3, s{S_WAVE}, 2
    v_mov_b32 v{T0+2}, s3
    v_add_u32 v{T0+3}, 1, v{V_PRE}
    v_sub_u32 v{V_PRE}, v{V_PRE}, v{V_LEN}
    s_mov_b32 exec_lo, 0
    s_mov_b32 exec_hi, 0x80000000
    ds_write_b32 v{T0+2}, v{T0+3} offset:{L_WT}
    s_mov_b64 exec, -1
TOTALS:
    v_mov_b32 v{T0+2}, 0
TOTALS_SPIN:
    ds_read_b128 {vr(XR,4)}, v{T0+2} offset:{L_WT}
    s_waitcnt lgkmcnt(0)""")
    for k in range(4): a(f"v_readfirstlane_b32 s{4+k}, v{XR+k}")
    a(f"""s_min_u32 s3, s4, s5
    s_min_u32 s8, s6, s7
    s_min_u32 s3, s3, s8
    s_cmp_eq_u32 s3, 0
    s_cbranch_scc0 TOTALS_OK
    s_sub_u32 s{S_SPIN}, s{S_SPIN}, 1
    s_cbranch_scc0 TOTALS_SPIN
    s_endpgm
TOTALS_OK:
    s_add_u32 s5, s5, s4
    s_add_u32 s6, s6, s5
    s_add_u32 s7, s7, s6
    s_sub_u32 s{S_N}, s7, 4
    s_cmp_eq_u32 s{S_WAVE}, 1
    s_cselect_b32 s3, s4, 0
    s_cmp_eq_u32 s{S_WAVE}, 2
    s_cselect_b32 s3, s5, s3
    s_cmp_eq_u32 s{S_WAVE}, 3
    s_cselect_b32 s3, s6, s3
    s_sub_u32 s3, s3, s{S_WAVE}
    v_add_u32 v{V_PRE}, s3, v{V_PRE}
    s_cmp_lg_u32 s{S_WAVE}, 4
    s_cbranch_scc1 EPOCH_DONE
    s_cmp_lg_u32 s2, 0
    s_cbranch_scc1 EPOCH_DONE
    v_mov_b32 v{T0+4}, s{S_NLO}
    v_mov_b32 v{T0+2}, {WS_EPOCH}
    s_mov_b64 exec, 1
    global_store_dword v{T0+2}, v{T0+4}, {sr(S_WS,2)} sc0 sc1
    s_mov_b64 exec, -1
EPOCH_DONE:""")
    x_touch(a, opt, 3, False)
    st('prefix done')
    a(f"""ROUND:
    v_mov_b32 v{T0}, 0
    v_subrev_u32 v{T0+1}, s{S_W0}, v{V_PRE}
    v_mov_b32 v{T0+2}, v{V_GID}
    s_mov_b32 s3, {CAP}
    s_cmp_gt_u32 s{S_N}, {CAP}
    s_cbranch_scc1 EXPAND
    v_lshlrev_b32 v{T0+3}, 2, v{V_PRE}""")
    for j in range(16):
        a(f"v_cmpx_lt_u32 vcc, {j}, v{V_LEN}")
        if j % 2 == 0 and j >= 6: a("s_cbranch_execz EXPAND_DONE")
        a(f"ds_write_b32 v{T0+3}, v{T0+2} offset:{L_SENT + 4*j}\nv_add_u32 v{T0+2}, 1, v{T0+2}")
    a(f"""v_mov_b32 v{T0}, 16
    v_add_u32 v{T0+1}, 16, v{T0+1}
EXPAND:
    v_cmp_lt_u32 vcc, v{T0}, v{V_LEN}
    s_and_b64 exec, exec, vcc
    s_cbranch_execz EXPAND_DONE
    v_cmp_gt_u32 vcc, s3, v{T0+1}
    v_lshlrev_b32 v{T0+3}, 2, v{T0+1}
    s_and_saveexec_b64 {sr(S_T,2)}, vcc
    ds_write_b32 v{T0+3}, v{T0+2} offset:{L_SENT}
    s_mov_b64 exec, {sr(S_T,2)}
    v_add_u32 v{T0}, 1, v{T0}
    v_add_u32 v{T0+1}, 1, v{T0+1}
    v_add_u32 v{T0+2}, 1, v{T0+2}
    s_branch EXPAND
EXPAND_DONE:
    s_mov_b64 exec, -1
    s_sub_u32 s{S_NWIN}, s{S_N}, s{S_W0}
    s_min_u32 s{S_NWIN}, s{S_NWIN}, {CAP}
    v_lshlrev_b32 v{T0}, 2, v0""")
    for i in range(3):
        a(f"""v_add_u32 v{T0+1}, {512*i}, v0
              v_cmp_gt_u32 {sr(S_M+2*i,2)}, s{S_NWIN}, v{T0+1}""")
    st('list built')
    a("s_waitcnt lgkmcnt(0)\ns_barrier")
    st('list barrier')
    G = XR
    KP = TP
    for i in range(3): a(f"ds_read_b32 v{G+i}, v{T0} offset:{L_SENT + 2048*i}")
    a(f"""s_mov_b32 s{S_T+2}, 13421                         ; 32 * 2^32 / (10000 * 1024)
    s_waitcnt lgkmcnt(0)""")
    for i in range(3):
        a(f"v_lshlrev_b32 v{G+4+i}, 3, v{G+i}\nv_lshlrev_b32 v{G+i}, 4, v{G+i}")
    def key_loads(tag):
        a(f"""s_mov_b64 exec, {sr(S_M+4,2)}
        s_cbranch_execz SKIP3{tag}
        buffer_load_dwordx2 {vr(KP+4,2)}, v{G+6}, {sr(S_WS,4)}, 0 offen sc1
        SKIP3{tag}:""")
        for i in range(2):
            a(f"s_mov_b64 exec, {sr(S_M+2*i,2)}\nbuffer_load_dwordx2 {vr(KP+2*i,2)}, v{G+4+i}, {sr(S_WS,4)}, 0 offen sc1")
        a("s_mov_b64 exec, -1")
    key_loads("")
    x_touch(a, opt, 7)
    H = G + 20
    a(f"""v_lshrrev_b32 v{T0}, 4, v{V_L16}              ; lane
    s_cmp_lg_u32 s{S_W0}, 0
    s_cbranch_scc1 KEY_WAIT
    s_cmp_ge_u32 s{S_WAVE}, 4
    s_cbranch_scc1 DEG_DONE""")
    for j in range(NLN):
        t = T0 + 1 + j % 2
        if j < 5: a(f"v_bfe_u32 v{t}, v{RECN+2}, {6*j}, 6")
        elif j == 5: a(f"v_alignbit_b32 v{t}, v{RECN+3}, v{RECN+2}, 30\nv_and_b32 v{t}, 63, v{t}")
        else: a(f"v_bfe_u32 v{t}, v{RECN+3}, {6*j-32}, 6")
        a(f"""v_lshlrev_b32 v{t}, 2, v{t}
              v_cmpx_lt_u32 vcc, {j}, v{V_LEN}
              ds_add_u32 v{t}, v{V_ONE} offset:{L_DEG}""")
    a(f"""s_mov_b64 exec, -1
DEG_DONE:
    v_lshlrev_b32 v{T0+1}, 2, v{T0}
    v_cmp_gt_u32 {sr(S_T,2)}, 40, v{T0}
    v_sub_u32 v{T0+2}, 63, v{T0}
    s_mul_i32 s10, s{S_WAVE}, 5
    s_waitcnt lgkmcnt(0)
    s_barrier
    ds_read_b32 v{H}, v{T0+1} offset:{L_DEG}
    v_add_u32 v{T0+3}, s10, v{T0}
    v_lshlrev_b32 v{T0+4}, 2, v{T0+3}
    s_waitcnt lgkmcnt(0)
    v_lshl_or_b32 v{H}, v{H}, 6, v{T0+2}
    v_cndmask_b32 v{H}, 0, v{H}, {sr(S_T,2)}
    s_nop 0""")
    for k in range(5):
        a(f"v_readlane_b32 s{S_NODE+k}, v{H}, s10")
        if k < 4: a("s_add_u32 s10, s10, 1")
    for k in range(5): a(f"v_cmp_lt_u32 {sr(S_K+2*k,2)}, s{S_NODE+k}, v{H}")
    for k in range(5): a(f"s_bcnt1_i32_b64 s{S_NODE+k}, {sr(S_K+2*k,2)}")
    for k in range(5): a(f"v_readlane_b32 s{S_NODE+k}, v{V_DEAL}, s{S_NODE+k}")
    a("s_nop 0")
    for k in range(5): a(f"v_writelane_b32 v{T0+1}, s{S_NODE+k}, {k}")
    a(f"""v_lshrrev_b32 v{T0+2}, 11, v{T0+1}
    v_bfe_u32 v{T0+5}, v{T0+1}, 8, 3
    v_lshlrev_b32 v{T0+2}, 7, v{T0+2}
    v_and_b32 v{T0+1}, 0xff, v{T0+1}
    v_lshl_or_b32 v{T0+2}, v{T0+5}, 19, v{T0+2}
    s_mov_b64 exec, 0x1f
    ds_write_b32 v{T0+1}, v{T0+3} offset:{L_INV}
    ds_write_b32 v{T0+4}, v{T0+2} offset:{L_MAP}
    s_mov_b64 exec, -1
    s_waitcnt lgkmcnt(0)
    s_barrier""")
    st('dealt')
    a(f"""KEY_WAIT:
    s_lshl_b32 s3, s{S_WAVE}, 10
    s_add_u32 s3, s3, {L_UREC}
    s_mov_b32 s9, {WS_REC}""")
    if ",7:" in "," + opt.xt:
        a(f"s_cmp_lg_u32 s{S_W0}, 0\ns_cbranch_scc1 KEY_WAIT0\ns_waitcnt vmcnt(1)\ns_branch KEY_CHECK")
    a("KEY_WAIT0:\ns_waitcnt vmcnt(0)\nKEY_CHECK:")
    for i in range(3): a(f"v_cmp_ne_u32 {sr(S_K+2*i,2)}, s{S_NLO}, v{KP+2*i+1}")
    for i in range(3): a(f"v_and_b32 v{G+8+i}, 63, v{KP+2*i}\nv_lshlrev_b32 v{G+8+i}, 2, v{G+8+i}")
    for i in range(3): a(f"s_and_b64 {sr(S_K+2*i,2)}, {sr(S_K+2*i,2)}, {sr(S_M+2*i,2)}")
    a(f"""s_or_b64 {sr(S_K,2)}, {sr(S_K,2)}, {sr(S_K+2,2)}
    s_or_b64 {sr(S_K,2)}, {sr(S_K,2)}, {sr(S_K+4,2)}
    s_cbranch_scc0 KEYS_OK
    s_sub_u32 s{S_SPIN}, s{S_SPIN}, 1
    s_cbranch_scc1 END""")
    key_loads("R")
    a("s_branch KEY_WAIT0\nKEYS_OK:")
    st('keys arrived')
    def rec_dma(at):
        for i in (2, 0, 1):
            if opt.recat[i] != at: continue
            a(f"s_add_u32 m0, s3, {i*8192}\ns_mov_b64 exec, {sr(S_M+2*i,2)}")
            if i == 2: a("s_cbranch_execz SKIP3D")
            a(f"buffer_load_dwordx4 v{G+i}, {sr(S_WS,4)}, s9 offen sc1 lds")
            if i == 2: a("SKIP3D:")
        if at in opt.recat: a("s_mov_b64 exec, -1")
    for i in range(3): a(f"ds_read_b32 v{G+8+i}, v{G+8+i} offset:{L_MAP}")
    rec_dma(0)
    for i in range(3):
        a(f"""v_mul_hi_u32 v{G+12+i}, s{S_T+2}, v{KP+2*i}
              v_add_u32 v{T0+1}, {512*i}, v0
              v_lshlrev_b32 v{T0+1}, 21, v{T0+1}
              v_lshrrev_b32 v{G+16+i}, 10, v{KP+2*i}
              v_lshl_or_b32 v{G+16+i}, v{G+16+i}, 7, v{T0+1}""")
    for i in range(3):
        a(f"""s_waitcnt lgkmcnt({2-i})
              v_lshrrev_b32 v{T0+1}, 16, v{G+8+i}
              v_and_b32 v{G+8+i}, 0x380, v{G+8+i}
              v_or_b32 v{G+16+i}, v{G+16+i}, v{T0+1}
              v_lshl_add_u32 v{G+8+i}, v{G+12+i}, 2, v{G+8+i}""")
    for i in range(3):
        a(f"s_mov_b64 exec, {sr(S_M+2*i,2)}\nds_add_rtn_u32 v{G+12+i}, v{G+8+i}, v{V_ONE} offset:{L_HIST}")
    a("s_mov_b64 exec, -1")
    rec_dma(1)
    a(f"""s_lshl_b32 s10, s{S_WAVE}, 3
    s_add_u32 s11, s10, 8
    s_and_b32 s11, s11, 63
    s_waitcnt lgkmcnt(0)
    s_barrier""")
    st('hist done')
    a(f"ds_read_b128 {vr(H,4)}, v{V_L16} offset:{L_HIST}")
    rec_dma(2)
    x_touch(a, opt, 8)
    a("s_waitcnt lgkmcnt(0)")
    scan256(a, H, H + 4)
    a(f"""ds_write_b128 v{V_L16}, {vr(H+4,4)} offset:{L_BASE}
    v_readlane_b32 s{S_START}, v{H+4}, s10
    v_readlane_b32 s{S_END}, v{H+4}, s11""")
    for i in range(3): a(f"ds_read_b32 v{G+8+i}, v{G+8+i} offset:{L_BASE}")
    a(f"""s_cmp_eq_u32 s{S_WAVE}, 7
    s_cselect_b32 s{S_END}, s{S_NWIN}, s{S_END}
    v_add_u32 v{V_POS}, s{S_START}, v{T0}
    v_lshlrev_b32 v{V_AENT}, 2, v{V_POS}
    v_add_u32 v{V_AENT}, {L_SENT}, v{V_AENT}
    s_sub_u32 s11, s{S_END}, s{S_START}
    s_max_u32 s10, s11, {D}
    s_add_u32 s10, s10, {opt.gran - 1 - D}
    s_and_b32 s{S_REM}, s10, {-opt.gran}
    s_max_u32 s10, s11, s{S_REM}
    s_sub_u32 s{S_REMB}, s10, s{S_REM}""")
    for i in range(3):
        a(f"""s_waitcnt lgkmcnt({2 if i else 2})
              v_add_lshl_u32 v{G+8+i}, v{G+8+i}, v{G+12+i}, 2
              s_mov_b64 exec, {sr(S_M+2*i,2)}
              ds_write_b32 v{G+8+i}, v{G+16+i} offset:{L_SENT}
              s_mov_b64 exec, -1""")
    a("s_waitcnt lgkmcnt(0)")
    if not opt.xpre: a("s_waitcnt vmcnt(0)")
    a("s_barrier")
    st('sorted')
    if opt.stamps: a(f"s_memtime s[100:101]\ns_waitcnt lgkmcnt(0)\ns_mov_b32 s{S_ST+30}, s100")
    if opt.prio == 1: a(f"s_cmp_ge_u32 s{S_WAVE}, 4\ns_cbranch_scc0 PRIO_SET\ns_setprio 1\nPRIO_SET:")
    meta_read_entry(a)
    a(f"""s_mov_b32 s3, 0
    s_and_b32 s{S_WM}, s{S_WAVE}, 3
    s_lshl_b32 s{S_WM}, s{S_WM}, 13
    s_add_u32 s{S_WM}, s{S_WM}, {WS_WMIX}
    s_add_u32 s{S_WM+1}, s{S_WM}, 4096""")
    for k in range(8): a(f"v_mov_b32 v{RR+k}, 0")
    a("s_waitcnt lgkmcnt(0)")
    meta_fix_entry(a, False)
    a("s_nop 0")
    def first_rows(lo, hi):
        for e in range(lo, hi):
            a(f"""v_readlane_b32 s{S_K+e}, v{ENT}, {e}
                  s_and_b32 s{S_OFF}, s{S_K+e}, s{S_MASK}
                  buffer_load_dwordx4 {vr(XR+4*e,4)}, v{V_L16}, {sr(S_X,4)}, s{S_OFF} offen""")
    if opt.xpre:
        first_rows(0, opt.xpre)
        if ",8:" in "," + opt.xt and 2 not in opt.recat:
            a(f"s_cmp_lg_u32 s{S_W0}, 0\ns_cbranch_scc1 REC_WAIT\ns_waitcnt vmcnt({opt.xpre + 1})\ns_branch REC_IN\nREC_WAIT:")
        a(f"s_waitcnt vmcnt({opt.xpre})\nREC_IN:")
        st('recs landed')
        a("s_barrier")
    meta_read_rec(a)
    first_rows(opt.xpre, D)
    a(f"v_mov_b32 v{KEY}, v{ENT}")
    a(f"""s_waitcnt lgkmcnt(0)
    v_mov_b32 v{EF}, v{RECN+2}
    v_mov_b32 v{EF+1}, v{RECN+3}""")
    for i in range(4): a(w_mfma(i))
    a(p_mfma(0, 0)); a(p_mfma(0, 1)); a(p_mfma(1, 0))
    a("s_nop 1")
    for m in range(4): w_cvt(a, m)
    for odd in range(2):
        u, r = act_regs(0, odd)
        for h in range(2): a(act_addr(TT + 2 * odd + h, u + h))
        for h in range(2): a(act_read(r + h, TT + 2 * odd + h))
    a(f"s_waitcnt vmcnt({D-1})")
    st('first row')
    a(t_mfma(0, 0)); a(t_mfma(0, 1))
    body(a, opt)
    a(f"""MAIN_DONE:
    s_add_u32 s{S_W0}, s{S_W0}, {CAP}
    s_cmp_ge_u32 s{S_W0}, s{S_N}
    s_cbranch_scc1 ALL_DONE
    s_waitcnt vmcnt(0) lgkmcnt(0)""")
    zero_hist(a)
    a("s_waitcnt lgkmcnt(0)\ns_barrier\ns_branch ROUND\nALL_DONE:")
    st('main done')
    if opt.stamps: a(f"s_memtime s[100:101]\ns_waitcnt lgkmcnt(0)\ns_sub_u32 s{S_ST+30}, s100, s{S_ST+30}")
    PK = WPK; VOUT = UU
    a(f"""v_lshrrev_b32 v{T0+3}, 8, v{V_L16}            ; lane >> 4
    s_lshr_b32 s{S_T}, s{S_WAVE}, 2                   ; half
    s_mul_i32 s{S_T+1}, s{S_T}, 80
    v_mul_u32_u24 v{T0+1}, 20, v{T0+3}
    v_add_u32 v{T0+1}, s{S_T+1}, v{T0+1}""")
    for t in range(5): a(f"ds_read_b32 v{VOUT+t}, v{T0+1} offset:{L_INV + 4*t}")
    for sl in range(5):
        for o in range(4): a(f"v_cvt_pk_bf16_f32 v{PK+4*sl+o}, v{ACC+8*sl+o}, v{ACC+8*sl+4+o}")
    a(f"""s_mul_i32 s{S_T+1}, s{S_WAVE}, {4 * AGG_RS}
    s_add_u32 s{S_T+1}, s{S_T+1}, {L_AGG}
    v_lshrrev_b32 v{T0+4}, 2, v{V_L16}
    v_add_u32 v{T0+4}, s{S_T+1}, v{T0+4}
    v_bfe_u32 v{T0+2}, v{V_L16}, 4, 4                 ; lane & 15
    s_mul_i32 s{S_T+1}, s{S_T}, {16 * AGG_RS}
    s_add_u32 s{S_T+1}, s{S_T+1}, {L_AGG}
    v_mul_u32_u24 v{T0}, {AGG_RS}, v{T0+2}
    v_lshl_add_u32 v{T0}, v{T0+3}, 4, v{T0}
    v_add_u32 v{T0}, s{S_T+1}, v{T0}
    s_lshl_b32 s{S_T}, s{S_BETA}, 10
    s_and_b32 s{S_T+1}, s{S_WAVE}, 3
    s_lshl_b32 s{S_T+1}, s{S_T+1}, 8
    s_add_u32 s{S_T}, s{S_T}, s{S_T+1}
    v_lshl_add_u32 v{T0+2}, v{T0+2}, 4, s{S_T}
    s_waitcnt lgkmcnt(0)""")
    for t in range(5): a(f"v_lshl_add_u32 v{VOUT+t}, v{VOUT+t}, 18, v{T0+2}")
    a("s_barrier")
    st('all main done')
    AF = XR
    def wr(sl):
        for o in range(4): a(f"ds_write_b32 v{T0+4}, v{PK+4*sl+o} offset:{(32*sl + o)*AGG_RS}")
    def rd(t):
        for ks in range(4): a(f"ds_read_b128 {vr(AF+16*(t%2)+4*ks,4)}, v{T0} offset:{t*32*AGG_RS + ks*64}")
    def mm(t, waits):
        for ks in range(4):
            if waits[ks] is not None: a(f"s_waitcnt lgkmcnt({waits[ks]})")
            for j in range(2):
                d = ACC + 8 * t + 4 * j
                a(f"v_mfma_f32_16x16x32_bf16 {vr(d,4)}, {vr(AF+16*(t%2)+4*ks,4)}, {vr(WMIX+16*j+4*ks,4)}, " + ("0" if ks == 0 else vr(d, 4)))
    def pack_store(t):
        d = ACC + 8 * t; p = RR + 4 * (t % 2)
        for j in range(4): a(f"v_cvt_pk_bf16_f32 v{p+j}, v{d+2*j}, v{d+2*j+1}")
        a(f"buffer_store_dwordx4 {vr(p,4)}, v{VOUT+t}, {sr(S_OUT,4)}, 0 offen {opt.outst}")
    wr(0); wr(1)
    a("s_waitcnt vmcnt(0) lgkmcnt(0)\ns_barrier")
    st('agg in LDS')
    rd(0); rd(1)
    a("s_waitcnt lgkmcnt(4)")
    wr(2); wr(3)
    mm(0, [None] * 4)
    wr(4)
    a("s_waitcnt lgkmcnt(0)\ns_barrier")
    rd(2)
    mm(1, [None] * 4); pack_store(0)
    rd(3)
    mm(2, [7, 6, 5, 4]); pack_store(1)
    rd(4)
    mm(3, [7, 6, 5, 4]); pack_store(2)
    mm(4, [3, 2, 1, 0]); pack_store(3)
    a("s_nop 3")
    pack_store(4)
    st('end')
    if opt.probe:
        a(f"""s_cmp_eq_u32 s93, 0
        s_cselect_b32 s93, s92, s93
        s_sub_u32 s93, s93, s92
        s_mul_i32 s93, s93, 4
        s_add_u32 s92, s92, s93
        s_add_u32 s92, s92, 6000
        HOLD_SPIN:
        s_memrealtime s[98:99]
        s_waitcnt lgkmcnt(0)
        s_sub_u32 s98, s98, s92
        s_cmp_lt_i32 s98, 0
        s_cbranch_scc1 HOLD_SPIN""")
    if opt.stamps:
        a("s_waitcnt vmcnt(0)")
        st('stores done 2')
        a(f"""s_lshl_b32 s10, s2, 3
        s_add_u32 s10, s10, s{S_WAVE}
        s_lshl_b32 s10, s10, 7
        s_add_u32 s10, s10, {WS_STAMP}
        v_mov_b32 v{T0}, s10
        s_sub_u32 s{S_ST+31}, s{S_END}, s{S_START}
        s_sub_u32 s{S_ST+29}, {1 << 21}, s{S_SPIN}""")
        for k in range(32): a(f"v_mov_b32 v{XR+k}, s{S_ST+k}")
        for k in range(8): a(f"buffer_store_dwordx4 {vr(XR+4*k,4)}, v{T0}, {sr(S_WS,4)}, 0 offen offset:{16*k}")
    a("END:\ns_endpgm")
    a(".p2align 6\n.type DEAL_TABLE,@object\nDEAL_TABLE:\n.short " + ", ".join(map(str, deal_bytes())) + "\n.size DEAL_TABLE, 256")
    return a.text()

def generate(opt):
    here = os.path.dirname(os.path.abspath(__file__))
    out = open(here + "/header.txt").read()
    out += f"; @launch grid=(256,1,1) block=(512,1,1) lds={LDS_BYTES}\n"
    out += f'.amdgcn_target "amdgcn-amd-amdhsa--gfx950"\n.text\n.globl {KERN}\n.p2align 8\n.type {KERN},@function\n'
    out += kernel(opt)
    out += f""".section .rodata,"a"
.p2align 6
.amdhsa_kernel {KERN}
  .amdhsa_next_free_vgpr {NVGPR}
  .amdhsa_next_free_sgpr {NSGPR if opt.stamps or opt.probe else 66}
  .amdhsa_accum_offset {(NVGPR + 3) // 4 * 4}
  .amdhsa_group_segment_fixed_size 0
  .amdhsa_kernarg_size 88
  .amdhsa_user_sgpr_count 2
  .amdhsa_user_sgpr_kernarg_segment_ptr 1
  .amdhsa_system_sgpr_workgroup_id_x 1
  .amdhsa_float_denorm_mode_32 3
.end_amdhsa_kernel
"""
    return out

def options(argv):
    p = argparse.ArgumentParser()
    p.add_argument("-o", default="/code/" + NAME + ".s")
    p.add_argument("--stamps", action="store_true")
    p.add_argument("--probe", default="")
    p.add_argument("--D", type=int, default=6)
    p.add_argument("--prio", type=int, default=0)
    p.add_argument("--recat", type=lambda t: tuple(map(int, t.split(","))), default=(0, 1, 0))
    p.add_argument("--only", default="")
    p.add_argument("--wsoff", type=int, default=0)
    p.add_argument("--gran", type=int, default=4)
    p.add_argument("--late", type=int, default=62)
    p.add_argument("--xpre", type=int, default=2)
    p.add_argument("--xt", default="3:0:10,8:10:30")
    p.add_argument("--lsplit", type=int, default=5)
    p.add_argument("--k1st", default="sc0 sc1")
    p.add_argument("--outst", default="sc0 sc1")
    return p.parse_args(argv)

if __name__ == "__main__":
    opt = options(sys.argv[1:])
    open(opt.o, "w").write(generate(opt))
    if opt.stamps: open(opt.o + ".names", "w").write(repr(STAMPS))
    import subprocess
    here = os.path.dirname(os.path.abspath(__file__))
    r = subprocess.run([sys.executable, here + "/hazards.py", opt.o], capture_output=True, text=True).stdout
    if " 0 finding" not in r: print(r)
    r = subprocess.run([sys.executable, here + "/../cdna_unwritten_srd_check.py", opt.o], capture_output=True, text=True)
    if r.returncode: print(r.stdout, r.stderr)
```

```python
import sys, argparse, os

NAME = "gather_scatter__tensor_product_equiv_tfn__graph"
KERN = NAME + "_kernel"
N, E, C = 10000, 320000, 128
NP, EP = 250, 1280
WS_KEY = 0
WS_REC = 0x280000
WS_WMIX = 0x771000
WS_TAB = 0x780000
WS_EPOCH = WS_TAB + 256 * 4096
WS_END = WS_EPOCH + 128
WS_STAMP = 0x900000
CAP = 1472

class Asm:
    def __init__(self): self.l = []
    def __call__(self, s):
        for line in s.strip("\n").split("\n"):
            line = line.strip()
            if not line: continue
            self.l.append(line if line.endswith(":") else "    " + line)
    def text(self): return "\n".join(self.l) + "\n"

def vr(a, n=1): return f"v{a}" if n == 1 else f"v[{a}:{a+n-1}]"
def sr(a, n=1): return f"s{a}" if n == 1 else f"s[{a}:{a+n-1}]"

SCAN_STEPS = ["row_shr:1 row_mask:0xf bank_mask:0xf bound_ctrl:0", "row_shr:2 row_mask:0xf bank_mask:0xf bound_ctrl:0",
              "row_shr:4 row_mask:0xf bank_mask:0xf bound_ctrl:0", "row_shr:8 row_mask:0xf bank_mask:0xf bound_ctrl:0",
              "row_bcast:15 row_mask:0xa bank_mask:0xf", "row_bcast:31 row_mask:0xc bank_mask:0xf"]
def scan64(a, *regs):
    for c in SCAN_STEPS:
        a("s_nop 1" if len(regs) == 1 else "s_nop 0")
        for v in regs: a(f"v_add_u32_dpp v{v}, v{v}, v{v} {c}")

L_HIST = 0; L_DEG = 1024; L_WT = 1280; L_CNT = L_WT + 16
L_INV = 1344; L_MAP = 1536; L_BASE = 1792
L_SENT = L_BASE + 1024
L_UREC = L_SENT + CAP * 4
L_CG = L_UREC + CAP * 16
L_LUT = 32768
L1_HIST = L_SENT; L1_LNS = L1_HIST + 1024; L1_BASE = L1_LNS + 2048; L1_SREC = L_UREC
L1_SKEY = L_LUT + 53 * 1024
assert L_CG + 128 <= L_LUT and L1_SREC + (EP + 64) * 16 <= L_CG and L1_BASE <= 8192
NLN = 10
L_AGG = L_LUT; AGG_RS = 288
LDS_BYTES = L_LUT + 131072

V_L16 = 1
V_LEN, V_PRE, V_GID = 2, 3, 4
V_AENT, V_POS = 5, 6
V_ONE = 15
V_DEAL = 174
V_DUMMY = 167
V_UNUSED = 166
T0 = 8
ACC = 16; XR = 64; TP = 96; UU = 112; RR = 128; TT = 136; WPK = 140; WTMP = 148
KEY = 164; ENT = 165; RECN = 168; EF = 172; CONST = 176; WMIX = 188
NVGPR = 220
PE, PO, CGB = CONST, CONST + 2, CONST + 4
LJ = 128
S_NODE = 4
S_X, S_WS, S_OUT = 12, 16, 20
S_BETA, S_WAVE, S_N, S_W0, S_NWIN, S_START, S_END, S_REM, S_REMB, S_OFF, S_MASK = range(24, 35)
S_SPIN = 35
S_M = 36
S_T = 42
S_K = 48
S_IN = 40
S_JOB, S_JCNT = 62, 63
S_NLO, S_NHI = 64, 65
S_WM = 10
S_L2E = 10
S_ST = 66
NSGPR = 102

STAMPS = []
def stamp(a, opt, name):
    if opt.probe == name: a("s_memrealtime s[98:99]\ns_waitcnt lgkmcnt(0)\ns_mov_b32 s93, s98")
    if not opt.stamps: return
    if opt.only and name not in opt.only.split(",") + ["start", "sorted", "main done", "stores done 2"]: return
    if name not in STAMPS: STAMPS.append(name)
    a(f"s_memrealtime s[98:99]\ns_waitcnt lgkmcnt(0)\ns_mov_b32 s{S_ST + STAMPS.index(name)}, s98")

S_RET = 6
def lut_sub(a):
    J, Ex, R, P = LJ, LJ + 8, LJ + 16, LJ + 24
    a(f"""LUT_SUB:
    s_lshl_b32 s3, s{S_JOB}, 25
    s_add_u32 s3, s3, 0x8000
    v_lshl_add_u32 v{J}, v{V_L16}, 15, s3""")
    for k in range(1, 8): a(f"v_add_u32 v{J+k}, 0x10000, v{J+k-1}")
    for k in range(0, 8, 2): a(f"v_pk_mul_f32 {vr(Ex+k,2)}, {vr(J+k,2)}, {sr(S_L2E,2)}")
    for k in range(8): a(f"v_exp_f32 v{Ex+k}, v{Ex+k}")
    a(f"s_lshl_b32 s3, s{S_JOB}, 10")
    for k in range(0, 8, 2): a(f"v_pk_add_f32 {vr(R+k,2)}, {vr(Ex+k,2)}, 1.0 op_sel_hi:[1,0]")
    for k in range(8): a(f"v_rcp_f32 v{R+k}, v{R+k}")
    a(f"v_add_u32 v{P+8}, s3, v{V_L16}")
    for k in range(0, 8, 2): a(f"v_pk_mul_f32 {vr(J+k,2)}, {vr(J+k,2)}, {vr(R+k,2)}")
    a(f"v_add_u32 v{P+9}, 0x10000, v{P+8}")
    for k in range(0, 8, 2): a(f"v_pk_mul_f32 {vr(Ex+k,2)}, {vr(J+k,2)}, {vr(Ex+k,2)} neg_lo:[1,0] neg_hi:[1,0]")
    for k in range(4): a(f"v_cvt_pk_bf16_f32 v{P+k}, v{J+2*k}, v{J+2*k+1}")
    for k in range(4): a(f"v_cvt_pk_bf16_f32 v{P+4+k}, v{Ex+2*k}, v{Ex+2*k+1}")
    a(f"""ds_write_b128 v{P+8}, {vr(P,4)} offset:{L_LUT}
    ds_write_b128 v{P+9}, {vr(P+4,4)} offset:{L_LUT}
    s_add_u32 s{S_JOB}, s{S_JOB}, 1
    s_sub_u32 s{S_JCNT}, s{S_JCNT}, 1
    s_cmp_lg_u32 s{S_JCNT}, 0
    s_cbranch_scc1 LUT_SUB
    s_setpc_b64 {sr(S_RET,2)}""")
def lut_jobs(a, count): a(f"s_mov_b32 s{S_JCNT}, {count}\ns_call_b64 {sr(S_RET,2)}, LUT_SUB")

def lut_plain(a, tag, region, last=None, cont=False, until=None):
    P = LJ
    for name, first, end, bias in (("L", 1, 24, 0x20000 - 0x800080), ("H", 34, 62, 0x20000)):
        if name != region: continue
        last = last or end
        if cont: a(f"s_cmp_gt_u32 s{S_JOB}, {last}\ns_cbranch_scc1 LUTP_END_{tag}")
        else: a(f"s_add_u32 s{S_JOB}, s{S_WAVE}, {first}")
        if name == "H" and not cont:
            for k in range(4): a(f"v_mov_b32 v{P+4+k}, 0x80008000")
        a(f"LUTP_{tag}{name}:")
        if until:
            a(f"""ds_read_b32 v{T0+2}, v{T0+3} offset:{L_CNT}
            s_waitcnt lgkmcnt(0)
            v_readfirstlane_b32 s3, v{T0+2}
            s_cmp_eq_u32 s3, 3
            s_cbranch_scc1 {until}""")
        a(f"""s_mul_i32 s3, s{S_JOB}, {512 * 0x10001}
        s_add_u32 s3, s3, {bias & 0xffffffff}
        v_add_u32 v{P}, s3, v{P+10}
        s_lshl_b32 s3, s{S_JOB}, 10
        v_add_u32 v{P+8}, s3, v{V_L16}""")
        for k in range(1, 4): a(f"v_add_u32 v{P+k}, {k * 0x20002}, v{P}")
        a(f"v_add_u32 v{P+9}, 0x10000, v{P+8}")
        if name == "L":
            for k in range(4): a(f"v_or_b32 v{P+4+k}, 0x80008000, v{P+k}")
        a(f"""ds_write_b128 v{P+8}, {vr(P,4)} offset:{L_LUT}
        ds_write_b128 v{P+9}, {vr(P+4,4)} offset:{L_LUT}
        s_add_u32 s{S_JOB}, s{S_JOB}, {5 if name == "L" else 4}
        s_cmp_le_u32 s{S_JOB}, {last}
        s_cbranch_scc1 LUTP_{tag}{name}
        LUTP_END_{tag}:""")

def tab_issue(a): a(f"buffer_load_dwordx4 {vr(RECN,4)}, v{V_POS}, {sr(S_WS,4)}, 0 offen sc1")
def tab_check(a, younger):
    if younger: a(f"s_waitcnt vmcnt({younger})\ns_branch CHECK_TAB")
    a(f"""POLL_TAB:
    s_waitcnt vmcnt(0)
    CHECK_TAB:
    v_lshrrev_b32 v{T0+3}, 22, v{RECN}
    v_cmp_ne_u32 vcc, s{S_NLO}, v{RECN+1}
    v_cmp_ne_u32 {sr(S_T,2)}, s{S_NHI}, v{T0+3}
    s_or_b64 vcc, vcc, {sr(S_T,2)}
    s_and_b64 exec, exec, vcc
    s_cbranch_execz POLLED_TAB
    s_sub_u32 s{S_SPIN}, s{S_SPIN}, 1
    s_cbranch_scc1 END""")
    tab_issue(a)
    a("s_branch POLL_TAB\nPOLLED_TAB:\ns_mov_b64 exec, -1")

def load_epoch(a):
    a(f"""s_add_u32 s4, s{S_WS}, {WS_EPOCH}
    s_addc_u32 s5, s{S_WS+1}, 0
    s_load_dwordx2 {sr(S_NLO,2)}, s[4:5], 0""")
def make_tag(a):
    a(f"""s_add_u32 s{S_NLO}, s{S_NLO}, 1
    s_and_b32 s{S_NHI}, s{S_NHI}, 0x3ff""")

def scan256(a, H_, O_):
    a(f"""v_add_u32 v{T0+2}, v{H_}, v{H_+1}
    v_add3_u32 v{T0+2}, v{T0+2}, v{H_+2}, v{H_+3}
    v_mov_b32 v{T0+3}, v{T0+2}""")
    scan64(a, T0 + 3)
    a(f"""v_sub_u32 v{O_}, v{T0+3}, v{T0+2}
    v_add_u32 v{O_+1}, v{O_}, v{H_}
    v_add_u32 v{O_+2}, v{O_+1}, v{H_+1}
    v_add_u32 v{O_+3}, v{O_+2}, v{H_+2}""")

SRC, DST, YY, EFP, WRAD, CG, WMX = S_IN + 2, S_IN + 4, S_IN + 6, S_IN + 8, S_IN + 10, S_IN + 12, S_IN + 14
D_, S_, Y_, F_, B_, R_, H_, O_, TB = 64, 68, 72, 80, 88, 92, 96, 100, 108
CT = WMIX
def const_sub(a):
    a(f"""CONST_SUB:
    ds_write_b32 v{CT+5}, v{CT+4} offset:{L_CG}
    v_lshrrev_b32 v{CT+5}, 3, v{V_L16}
    v_and_b32 v{CT+5}, 24, v{CT+5}
    s_mov_b32 s4, 0x05040100
    s_mov_b32 s5, 0x07060302""")
    for i in range(4): a(f"ds_read_b64_tr_b16 {vr(CGB+2*i,2)}, v{CT+5} offset:{L_CG + 32*i}")
    for u in range(2):
        a(f"v_perm_b32 v{PE+u}, v{CT+1+2*u}, v{CT+2*u}, s4\nv_perm_b32 v{PO+u}, v{CT+1+2*u}, v{CT+2*u}, s5")
    a(f"s_setpc_b64 {sr(S_RET,2)}")
def const_finish(a): a(f"s_call_b64 {sr(S_RET,2)}, CONST_SUB")

def phase1(a, opt):
    st = lambda n: stamp(a, opt, n)
    WS = sr(S_WS, 2); FL = opt.k1st
    a(f"""s_cmp_ge_u32 s{S_WAVE}, 5
    s_cbranch_scc1 HELP""")
    lut_plain(a, "W0", "L", last=opt.lsplit)
    a(f"""s_cmp_ge_u32 s2, {NP}
    s_cbranch_scc1 AUX
    global_load_dwordx4 {vr(Y_,4)}, v{T0+1}, {sr(YY,2)}
    global_load_dwordx4 {vr(Y_+4,4)}, v{T0+1}, {sr(YY,2)} offset:16
    global_load_dwordx4 {vr(F_,4)}, v{T0+1}, {sr(EFP,2)}
    global_load_dwordx4 {vr(F_+4,4)}, v{T0+1}, {sr(EFP,2)} offset:16
""")
    st('jobs A')
    early = ("," + opt.xt).count(",10:")
    a(f"s_waitcnt vmcnt({11 + early})")
    st('dst arrived')
    for k in range(4):
        a(f"""v_and_b32 v{B_+k}, 0xff, v{D_+k}
              v_lshlrev_b32 v{B_+k}, 2, v{B_+k}
              ds_add_rtn_u32 v{R_+k}, v{B_+k}, v{V_ONE} offset:{L1_HIST}""")
    a(f"s_waitcnt vmcnt({10 + early})")
    for k in range(4):
        a(f"""v_lshrrev_b32 v{D_+k}, 8, v{D_+k}
              v_lshl_or_b32 v{TB+2*k}, v{S_+k}, 10, v{D_+k}""")
    a(f"""s_mov_b32 s9, {L1_SKEY}
    s_waitcnt lgkmcnt(0)
    s_barrier
    ds_read_b128 {vr(H_,4)}, v{V_L16} offset:{L1_HIST}""")
    make_tag(a)
    for k in range(4): a(f"v_mov_b32 v{TB+2*k+1}, s{S_NLO}")
    a("v_mov_b32 v119, 0")
    for k in range(4):
        a(f"""v_cmp_gt_u32 vcc, {NLN}, v{R_+k}
              v_mul_u32_u24 v116, 6, v{R_+k}
              v_lshlrev_b32 v117, 1, v{B_+k}
              v_cndmask_b32 v118, 0, v{D_+k}, vcc
              v_lshlrev_b64 {vr(120+2*(k%2),2)}, v116, v[118:119]
              ds_or_b64 v117, {vr(120+2*(k%2),2)} offset:{L1_LNS}""")
    a("s_waitcnt lgkmcnt(4)")
    scan256(a, H_, O_)
    a(f"ds_write_b128 v{V_L16}, {vr(O_,4)} offset:{L1_BASE}")
    for k in range(4): a(f"ds_read_b32 v{H_+k}, v{B_+k} offset:{L1_BASE}")
    for k in range(4):
        a(f"""s_waitcnt lgkmcnt(3)
              v_add_u32 v{R_+k}, v{R_+k}, v{H_+k}
              v_lshl_add_u32 v{B_+k}, v{R_+k}, 3, s9
              ds_write_b64 v{B_+k}, {vr(TB+2*k,2)}""")
    for k in range(4):
        a(f"v_lshlrev_b32 v{R_+k}, 4, v{R_+k}\nv_add_u32 v{R_+k}, {L1_SREC}, v{R_+k}")
    a("s_waitcnt lgkmcnt(0)\ns_barrier")
    st('keys binned')
    a("s_waitcnt vmcnt(0)")
    x_touch(a, opt, 9, False)
    for k in range(4):
        a(f"ds_write2_b64 v{R_+k}, {vr(Y_+2*k,2)}, {vr(F_+2*k,2)} offset0:0 offset1:1")
    st('recs binned')
    a("BINNED:\ns_setprio 0")
    a(f"s_waitcnt lgkmcnt(0)\ns_barrier\nv_mov_b32 v{V_LEN}, 0")
    const_finish(a)
    lut_plain(a, "W", "L", cont=True)
    a(f"s_cmp_eq_u32 s{S_WAVE}, 4\ns_cbranch_scc1 WAVE4")
    lut_plain(a, "U", "H", last=opt.late)
    tab_issue(a)
    x_touch(a, opt, 6, False)
    st('tab issued')
    if opt.late < 62: lut_plain(a, "V", "H", cont=True)
    tab_check(a, ("," + opt.xt).count(",6:"))
    st('tab arrived')
    a("s_branch TAB_DONE")
    lut_sub(a)
    const_sub(a)
    a("HELP:")
    a(f"""s_sub_u32 s8, s{S_WAVE}, 5
    s_mul_i32 s4, s8, 3072
    s_cmp_eq_u32 s8, 1
    s_cselect_b32 s4, 4096, s4
    s_mul_i32 s3, s2, {EP * 8}
    s_add_u32 s3, s3, s4
    v_add_u32 v{T0}, s3, v{V_L16}
    s_add_u32 s4, s4, {L1_SKEY}
    v_add_u32 v{T0+1}, s4, v{V_L16}
    s_mul_i32 s4, s8, 7168
    s_mul_i32 s3, s2, {EP * 16}
    s_add_u32 s3, s3, s4
    s_add_u32 s3, s3, {WS_REC}
    v_add_u32 v{T0+4}, s3, v{V_L16}
    v_add_u32 v{T0+5}, s4, v{V_L16}
    s_lshl_b32 s3, s2, 12
    s_add_u32 s3, s3, {WS_TAB}
    v_add_u32 v117, s3, v{V_L16}
    s_waitcnt lgkmcnt(0)""")
    make_tag(a)
    st('help jobs')
    a(f"""s_barrier
    s_cmp_eq_u32 s{S_WAVE}, 6
    s_cbranch_scc1 ROW
    s_cmp_eq_u32 s{S_WAVE}, 7
    s_cselect_b32 s{S_JOB}, 63, 0""")
    lut_jobs(a, 1)
    a("s_waitcnt vmcnt(0)")
    const_finish(a)
    a(f"""v_mov_b32 v{T0+2}, {0x7f80 * 2}
    v_mov_b32 v{T0+3}, 0x7f80
    s_cmp_lg_u32 s{S_WAVE}, 7
    s_cbranch_scc1 NO_ROW
    ds_write_b16 v{T0+2}, v{T0+3} offset:{L_LUT}
    s_branch NO_ROW
ROW:
    v_lshrrev_b32 v116, 2, v{V_L16}""")
    QT, HH, SS = 84, 100, 104
    for m in range(4): a(f"ds_read_b32 v{HH+m}, v116 offset:{L1_HIST + 256*m}")
    a(f"""s_lshl_b32 s3, s2, 12
    s_add_u32 s3, s3, {WS_TAB}
    v_add_u32 v117, s3, v{V_L16}
    v_lshrrev_b32 v116, 1, v{V_L16}
    s_lshl_b32 s3, s{S_NHI}, 22
    s_waitcnt lgkmcnt(0)""")
    for m in range(4): a(f"v_mov_b32 v{SS+m}, v{HH+m}")
    scan64(a, SS, SS + 1, SS + 2, SS + 3)
    a(f"""v_readlane_b32 s4, v{SS}, 63
    v_readlane_b32 s5, v{SS+1}, 63
    v_readlane_b32 s9, v{SS+2}, 63""")
    for m in range(4): a(f"v_sub_u32 v{SS+m}, v{SS+m}, v{HH+m}")
    a(f"""s_add_u32 s5, s5, s4
    s_add_u32 s9, s9, s5
    v_add_u32 v{SS+1}, s4, v{SS+1}
    v_add_u32 v{SS+2}, s5, v{SS+2}
    v_add_u32 v{SS+3}, s9, v{SS+3}""")
    for m in range(4):
        a(f"""v_lshl_or_b32 v{QT+4*m}, v{HH+m}, 11, v{SS+m}
              v_or_b32 v{QT+4*m}, s3, v{QT+4*m}
              v_mov_b32 v{QT+4*m+1}, s{S_NLO}""")
    a("s_waitcnt vmcnt(0)")
    const_finish(a)
    a(f"""NO_ROW:
    s_barrier
    s_cmp_lg_u32 s{S_WAVE}, 6
    s_cbranch_scc1 ROW_DONE""")
    for m in range(4): a(f"ds_read_b64 {vr(QT+4*m+2,2)}, v116 offset:{L1_LNS + 512*m}")
    for m in range(4): a(f"s_waitcnt lgkmcnt({3-m})\nglobal_store_dwordx4 v117, {vr(QT+4*m,4)}, {WS} offset:{1024*m} sc0 sc1")
    st('table published')
    a("ROW_DONE:")
    for k in range(4): a(f"ds_read_b128 {vr(64+4*k,4)}, v{T0+1} offset:{1024*k}")
    a(f"""v_mov_b32 v{V_LEN}, 0
    s_add_u32 s{S_JOB}, s8, s8                       ; jobs 27, 28 / 29, 30, 31 / 32, 33
    s_add_u32 s{S_JOB}, s{S_JOB}, 27
    s_cmp_eq_u32 s8, 2
    s_addc_u32 s{S_JOB}, s{S_JOB}, 0
    s_cmp_eq_u32 s8, 1
    s_cselect_b32 s{S_JCNT}, 3, 2
    s_waitcnt lgkmcnt(0)
    s_barrier
    s_cmp_ge_u32 s2, {NP}
    s_cbranch_scc1 RECS_STORED""")
    for k in range(7): a(f"ds_read_b128 {vr(84+4*k,4)}, v{T0+5} offset:{L1_SREC + 1024*k}")
    for k in range(7):
        if k == 4: a(f"v_add_u32 v{T0+4}, 4096, v{T0+4}")
        if k == 6: a(f"s_cmp_eq_u32 s8, 2\ns_cbranch_scc1 RECS_STORED")
        a(f"s_waitcnt lgkmcnt({6-k})\nglobal_store_dwordx4 v{T0+4}, {vr(84+4*k,4)}, {WS} offset:{(1024*k) % 4096} {FL}")
    a(f"""RECS_STORED:
    s_call_b64 {sr(S_RET,2)}, LUT_SUB
    s_cmp_ge_u32 s2, {NP}
    s_cbranch_scc1 TAB_DONE
    v_mov_b32 v{T0+2}, 0
    s_waitcnt vmcnt(0)
    s_mov_b64 exec, 1
    ds_add_u32 v{T0+2}, v{V_ONE} offset:{L_CNT}
    s_mov_b64 exec, -1
WAIT_ACK:
    ds_read_b32 v{T0+3}, v{T0+2} offset:{L_CNT}
    s_waitcnt lgkmcnt(0)
    v_readfirstlane_b32 s3, v{T0+3}
    s_cmp_eq_u32 s3, 3
    s_cbranch_scc0 WAIT_ACK""")
    st('recs acked')
    for k in range(4):
        if k == 2: a(f"s_cmp_eq_u32 s8, 1\ns_cbranch_scc1 TAB_DONE")
        a(f"global_store_dwordx4 v{T0}, {vr(64+4*k,4)}, {WS} offset:{1024*k} {FL}")
    a("s_branch TAB_DONE")
    a(f"""AUX_LOAD:
    s_sub_u32 s4, s2, {NP}
    s_cmp_ge_u32 s4, 4
    s_cbranch_scc1 NO_EDGES
    s_cmp_ge_u32 s{S_WAVE}, 4
    s_cbranch_scc1 NO_EDGES
    s_lshl_b32 s5, s{S_WAVE}, 13
    s_lshl_b32 s8, s4, 6
    s_add_u32 s5, s5, s8
    v_lshrrev_b32 v80, 8, v{V_L16}
    v_lshlrev_b32 v80, 11, v80
    v_bfe_u32 v81, v{V_L16}, 4, 4
    v_lshl_add_u32 v80, v81, 2, v80
    v_add_u32 v80, s5, v80""")
    for t in range(8): a(f"global_load_dword v{64+t}, v80, {sr(WMX,2)} offset:{t*256}")
    a(f"""s_branch NO_EDGES
AUX:
    s_cmp_ge_u32 s2, {NP + 4}
    s_cbranch_scc1 AUX_DONE
    s_cmp_ge_u32 s{S_WAVE}, 4
    s_cbranch_scc1 AUX_DONE
    s_sub_u32 s4, s2, {NP}
    s_lshl_b32 s5, s4, 13
    s_lshl_b32 s8, s{S_WAVE}, 10
    s_add_u32 s5, s5, s8
    s_add_u32 s5, s5, {WS_WMIX}
    v_add_u32 v81, s5, v{V_L16}
    s_mov_b32 s4, 0x05040100
    s_mov_b32 s5, 0x07060302
    s_waitcnt vmcnt({6 + early})""")
    for u in range(4):
        a(f"v_perm_b32 v{72+u}, v{65+2*u}, v{64+2*u}, s4\nv_perm_b32 v{76+u}, v{65+2*u}, v{64+2*u}, s5")
    a(f"""global_store_dwordx4 v81, v[72:75], {WS} {FL}
    v_add_u32 v81, 4096, v81
    global_store_dwordx4 v81, v[76:79], {WS} {FL}
AUX_DONE:
    s_waitcnt lgkmcnt(0)""")
    make_tag(a)
    a(f"""s_barrier
    s_waitcnt vmcnt(0)
    s_barrier
    s_branch BINNED
WAVE4:
    s_mov_b32 s{S_JOB}, 25""")
    lut_jobs(a, 2)
    a("TAB_DONE:")

def mfma4(d, a_, b, c, blk=None):
    cc = "0" if c is None else vr(c, 4)
    return f"v_mfma_f32_4x4x4_16b_bf16 {vr(d,4)}, {vr(a_,2)}, {vr(b,2)}, {cc}" + ("" if blk is None else f" cbsz:4 abid:{blk}")
def p_mfma(g, odd):
    return mfma4(UU + 8 * (g % 2) + 4 * odd, EF, PO if odd else PE, None, g % 16)
def t_mfma(e, odd):
    return mfma4(TP + 8 * (e % 2) + 4 * odd, WPK + 2 * (e % 4), XR + 4 * (e % 8) + 2 * odd, None, (e % 64) // 4)
def act_regs(eb, odd):
    return UU + 8 * ((eb // 4) % 2) + 4 * odd + eb % 4, RR + 4 * ((eb // 2) % 2) + 2 * odd
def act_addr(t, u):
    return f"v_lshlrev_b32_sdwa v{t}, v{V_ONE}, v{u} dst_sel:DWORD dst_unused:UNUSED_PAD src0_sel:DWORD src1_sel:WORD_1"
def act_read(r, t): return f"ds_read_u16_d16_hi v{r}, v{t} offset:{L_LUT}"
def fma4(a, q):
    h = q % 2
    a(f"s_set_gpr_idx_on s{S_K + q % 16}, 0xc")
    for odd in range(2):
        r = RR + 4 * ((q // 2) % 2) + 2 * odd
        for o in (0, 2):
            acc = ACC + 4 * odd + o; tp = TP + 8 * (q % 2) + 4 * odd + o
            a(f"v_pk_fma_f32 {vr(acc,2)}, {vr(r,2)}, {vr(tp,2)}, {vr(acc,2)} op_sel:[{h},0,0] op_sel_hi:[{h},1,1]")
    a("s_set_gpr_idx_off")
def meta_read_entry(a): a(f"ds_read_b32 v{ENT}, v{V_AENT}")
def meta_fix_entry(a, rec=True):
    a(f"""v_cmp_gt_u32 vcc, s{S_END}, v{V_POS}
          v_add_u32 v{V_POS}, 64, v{V_POS}
          v_add_u32 v{V_AENT}, 256, v{V_AENT}
          v_cndmask_b32 v{ENT}, 40, v{ENT}, vcc
          v_lshrrev_b32 v{T0}, 21, v{ENT}
          v_lshlrev_b32 v{T0}, 4, v{T0}
          v_lshlrev_b32 v{T0+1}, 3, v{ENT}""")
    if rec: meta_read_rec(a)
    a(f"""v_and_b32 v{T0+1}, 0xfffc00, v{T0+1}
          v_and_or_b32 v{ENT}, v{ENT}, 56, v{T0+1}""")
def meta_read_rec(a): a(f"ds_read_b128 {vr(RECN,4)}, v{T0} offset:{L_UREC}")
def w_mfma(i): return mfma4(WTMP + 4 * i, RECN, CGB + 2 * i, None)
def w_cvt(a, m):
    a(f"""v_cvt_pk_bf16_f32 v{WPK+2*m}, v{WTMP+m}, v{WTMP+4+m}
          v_cvt_pk_bf16_f32 v{WPK+2*m+1}, v{WTMP+8+m}, v{WTMP+12+m}""")

def step(a, opt, q, drain=None):
    D = opt.D; loads = drain is None
    eb = q + 2 - q % 2; odd = q % 2
    u, r = act_regs(eb, odd); t = TT + 2 * odd
    g, ur = (q + 6) // 4, (q + 6) % 4
    if ur % 2 == 0: a(p_mfma(g, ur // 2))
    elif 40 <= q < 48: a(w_mfma((q - 40) // 2))
    a(act_addr(t, u))
    if loads: a(f"s_waitcnt vmcnt({D - 2})")
    elif D - 2 - drain >= 0: a(f"s_waitcnt vmcnt({8 + D - 2 - drain})")
    a(t_mfma(q + 1, 0))
    if loads: a(f"v_readlane_b32 s{S_K + (q + D) % 16}, v{KEY if q + D < 64 else ENT}, {(q + D) % 64}")
    else:     a("s_nop 0")
    a(t_mfma(q + 1, 1))
    a(act_addr(t + 1, u + 1))
    a(act_read(r, t)); a(act_read(r + 1, t + 1))
    if q >= 60: w_cvt(a, q - 60)
    if loads:
        a(f"s_and_b32 s{S_OFF}, s{S_K + (q + D) % 16}, s{S_MASK}")
        a(f"buffer_load_dwordx4 {vr(XR + 4 * ((q + D) % 8), 4)}, v{V_L16}, {sr(S_X,4)}, s{S_OFF} offen")
    if q % 2 == 0: a("s_waitcnt lgkmcnt(2)")
    fma4(a, q)
    if loads: x_touch(a, opt, 100 + q, False)
    if loads and q == 8: meta_read_entry(a)
    if loads and q == 12: meta_fix_entry(a)
    if q == 57: a(f"v_mov_b32 v{EF}, v{RECN+2}\nv_mov_b32 v{EF+1}, v{RECN+3}\ns_nop 1")
    if loads and q == 63: a(f"v_mov_b32 v{KEY}, v{ENT}")

def body(a, opt):
    G = opt.gran
    for q in range(64):
        if q % G == 0: a(f"A_{q}:\ns_sub_u32 s{S_REM}, s{S_REM}, {G}\ns_cbranch_scc1 B_{q}")
        step(a, opt, q)
    if opt.stamps and not opt.only:
        STAMPS.extend(("batch 1", "batch 2")); k = S_ST + len(STAMPS) - 2
        a(f"""s_memrealtime s[98:99]
        s_waitcnt lgkmcnt(0)
        s_cmp_eq_u32 s{k}, 0
        s_cselect_b32 s99, 0, s98
        s_cselect_b32 s{k}, s98, s{k}
        s_cmp_eq_u32 s{k+1}, 0
        s_cselect_b32 s{k+1}, s99, s{k+1}""")
    if opt.probe == "batch 1":
        a("s_memrealtime s[98:99]\ns_waitcnt lgkmcnt(0)\ns_cmp_eq_u32 s93, 0\ns_cselect_b32 s93, s98, s93")
    a("s_branch A_0")
    for q in range(0, 64, G):
        a(f"B_{q}:")
        for k in range(8):
            a(f"buffer_load_dwordx4 {vr(WMIX+4*k,4)}, v{V_L16}, {sr(S_WS,4)}, s{S_WM + k // 4} offen offset:{(k%4)*1024} sc1")
        for i in range(opt.D):
            a(f"s_sub_u32 s{S_REMB}, s{S_REMB}, 1\ns_cbranch_scc1 MAIN_DONE")
            step(a, opt, (q + i) % 64, i)
        a("s_branch MAIN_DONE")

def x_touch(a, opt, where, guard=True):
    for spec in filter(None, opt.xt.split(",")):
        w, lo, hi = map(int, spec.split(":"))
        if w != where: continue
        if guard: a(f"s_cmp_lg_u32 s{S_W0}, 0\ns_cbranch_scc1 NO_X_TOUCH_{w}")
        if w >= 100: a(f"s_bitcmp1_b32 s3, {w % 32}\ns_cbranch_scc1 NO_X_TOUCH_{w}\ns_bitset1_b32 s3, {w % 32}")
        four = w in (6, 9)
        if w == 9: a(f"s_cmp_eq_u32 s{S_WAVE}, 4\ns_cbranch_scc1 NO_X_TOUCH_{w}")
        a(f"""s_lshl_b32 s{S_OFF}, s2, {2 if four else 3}
        s_add_u32 s{S_OFF}, s{S_OFF}, s{S_WAVE}
        s_lshl_b32 s{S_OFF}, s{S_OFF}, 7
        s_add_u32 s{S_OFF}, s{S_OFF}, {lo << 18}
        v_min_u32 v{V_UNUSED}, {(((hi - lo) << four) - 1) * 16}, v{V_L16}
        v_lshl_add_u32 v{V_UNUSED}, v{V_UNUSED}, {14 - four}, s{S_OFF}
        buffer_load_dword v{V_DUMMY}, v{V_UNUSED}, {sr(S_X,4)}, 0 offen""")
        a(f"NO_X_TOUCH_{w}:")

DEAL = ([4, 2, 4, 7, 6, 3, 1, 5, 0, 4, 2, 6, 1, 7, 3, 5, 0, 4, 7, 3, 0, 1, 5, 6, 2, 5, 0, 1, 6, 7, 3, 2, 0, 5, 3, 1, 6, 7, 2, 4],
        [0, 2, 7, 1, 4, 6, 5, 3, 6, 3, 1, 7, 4, 0, 2, 5, 4, 3, 5, 6, 7, 1, 0, 2, 7, 5, 2, 4, 3, 6, 0, 1, 5, 1, 3, 6, 4, 2, 7, 0])
def deal_bytes():
    out = []
    for t in DEAL:
        assert sorted(t) == sorted(list(range(8)) * 5)
        out += [4 * (5 * w + t[:r].count(w)) | (8 * w + t[:r].count(w)) << 8 for r, w in enumerate(t)] + [0] * 24
    return out

def zero_hist(a):
    a(f"""v_lshlrev_b32 v{T0+3}, 2, v0
    v_mov_b32 v{T0+4}, 0
    v_cmp_gt_u32 vcc, 0x100, v0
    s_and_saveexec_b64 {sr(S_T,2)}, vcc
    ds_write_b32 v{T0+3}, v{T0+4} offset:{L_HIST}
    s_mov_b64 exec, {sr(S_T,2)}""")

def kernel(opt):
    a = Asm(); D = opt.D
    st = lambda n: stamp(a, opt, n)
    a(f"""{KERN}:
    s_cmp_ge_u32 s2, 256
    s_cbranch_scc1 END""")
    if opt.probe: a("s_mov_b32 s93, 0\ns_memrealtime s[98:99]\ns_waitcnt lgkmcnt(0)\ns_mov_b32 s92, s98")
    if opt.stamps:
        for k in range(32): a(f"s_mov_b32 s{S_ST+k}, 0")
    st('start')
    a(f"""s_load_dwordx16 {sr(S_IN,16)}, s[0:1], 0
    s_load_dwordx2 {sr(S_WS,2)}, s[0:1], 80
    s_load_dwordx2 {sr(S_X,2)}, s[0:1], 0
    s_load_dwordx2 {sr(S_OUT,2)}, s[0:1], 64
    ; wave 7 of every workgroup takes 8 lines; the 32 workgroups with equal id % 8 cover 32 KiB
    s_getpc_b64 s[6:7]
CODE_HERE:
    v_lshrrev_b32 v{T0}, 6, v0
    s_lshr_b32 s5, s2, 3
    s_lshl_b32 s4, s5, 10
    v_readfirstlane_b32 s{S_WAVE}, v{T0}
    v_and_b32 v{T0+2}, 7, v0
    v_lshl_add_u32 v{T0+2}, v{T0+2}, 7, s4
    v_min_u32 v{T0+2}, END-CODE_HERE, v{T0+2}
    s_cmp_lg_u32 s{S_WAVE}, 7
    s_cbranch_scc1 NO_CODE_TOUCH
    global_load_dword v{V_DUMMY}, v{T0+2}, s[6:7]
NO_CODE_TOUCH:
    s_mul_i32 s3, s2, {EP * 4}
    v_lshl_add_u32 v{T0}, v0, 4, s3
    v_and_b32 v{T0+2}, 63, v0
    v_lshlrev_b32 v{V_L16}, 4, v{T0+2}
    v_lshlrev_b32 v{CT+5}, 2, v{T0+2}
    s_cmp_ge_u32 s{S_WAVE}, 5
    s_waitcnt lgkmcnt(0)
    s_cbranch_scc1 NO_EDGES
    s_cmp_ge_u32 s2, {NP}
    s_cbranch_scc1 AUX_LOAD
    s_setprio 1
    global_load_dwordx4 {vr(D_,4)}, v{T0}, {sr(DST,2)}
    global_load_dwordx4 {vr(S_,4)}, v{T0}, {sr(SRC,2)}
NO_EDGES:""")
    if opt.wsoff: a(f"s_add_u32 s{S_WS}, s{S_WS}, {opt.wsoff << 20}\ns_addc_u32 s{S_WS+1}, s{S_WS+1}, 0")
    st('kernargs')
    for k in range(4): a(f"global_load_dword v{CT+k}, v{CT+5}, {sr(WRAD,2)} offset:{k*256}")
    a(f"""v_and_b32 v{CT+5}, 0x7f, v{CT+5}
    global_load_dword v{CT+4}, v{CT+5}, {sr(CG,2)}
    s_and_b32 s3, s2, 0x87
    s_cmp_eq_u32 s3, 0
    s_cselect_b32 s3, 128, 0
    s_add_u32 s3, s3, DEAL_TABLE-CODE_HERE
    v_lshl_add_u32 v{V_DEAL}, v{T0+2}, 1, s3
    global_load_ushort v{V_DEAL}, v{V_DEAL}, s[6:7]
    s_mov_b32 s{S_X+2}, {N * 1024}
    s_mov_b32 s{S_X+3}, 0x20000""")
    x_touch(a, opt, 10, False)
    a(f"""
    v_lshlrev_b32 v{T0+1}, 1, v{T0}
    v_lshlrev_b32 v{T0+3}, 4, v0
    v_mov_b32 v{T0+4}, 0
    v_mov_b32 v{T0+5}, 0
    v_pk_mov_b32 {vr(ACC,2)}, {vr(T0+4,2)}, {vr(T0+4,2)}
    v_pk_mov_b32 {vr(ACC+2,2)}, {vr(T0+4,2)}, {vr(T0+4,2)}
    ds_write_b128 v{T0+3}, {vr(ACC,4)}
    s_and_b32 s4, s2, 7
    s_lshl_b32 s4, s4, 5
    s_lshr_b32 s5, s2, 3
    s_or_b32 s{S_BETA}, s4, s5
    v_mov_b32 v{V_ONE}, 1
    s_mov_b32 s{S_WS+2}, {WS_END if not opt.stamps else WS_STAMP + 0x80000}
    s_mov_b32 s{S_WS+3}, 0x20000
    s_mov_b32 s{S_OUT+2}, {N * 1024}
    s_mov_b32 s{S_OUT+3}, 0x20000
    s_mov_b32 s{S_MASK}, 0xfffffc00
    s_mov_b32 s{S_W0}, 0
    s_mov_b32 s{S_L2E}, 0xbfb8aa3b
    s_mov_b32 s{S_L2E+1}, 0xbfb8aa3b
    s_mov_b32 s{S_SPIN}, {1 << 21}
    v_and_b32 v{V_GID}, 0xff, v0
    s_lshl_b32 s3, s{S_BETA}, 4
    s_add_u32 s3, s3, {WS_TAB}
    v_lshl_add_u32 v{V_POS}, v{V_GID}, 12, s3
    v_mul_u32_u24 v{V_GID}, {EP}, v{V_GID}
    v_mul_u32_u24 v{LJ+10}, 0x8000, v{V_L16}
    v_lshl_add_u32 v{LJ+10}, v{T0+2}, 3, v{LJ+10}    ; lane * 8 * 0x10001""")
    for k in range(4, 48, 2): a(f"v_pk_mov_b32 {vr(ACC+k,2)}, {vr(T0+4,2)}, {vr(T0+4,2)}")
    a("s_waitcnt lgkmcnt(0)")
    load_epoch(a)
    a("s_barrier")
    phase1(a, opt)
    a(f"""s_cmp_ge_u32 s{S_WAVE}, 4
    s_cbranch_scc1 TOTALS
    v_and_b32 v{T0+5}, 0x7ff, v{RECN}
    v_bfe_u32 v{V_LEN}, v{RECN}, 11, 11
    v_add_u32 v{V_GID}, v{V_GID}, v{T0+5}
    v_mov_b32 v{V_PRE}, v{V_LEN}""")
    scan64(a, V_PRE)
    a(f"""s_lshl_b32 s3, s{S_WAVE}, 2
    v_mov_b32 v{T0+2}, s3
    v_add_u32 v{T0+3}, 1, v{V_PRE}
    v_sub_u32 v{V_PRE}, v{V_PRE}, v{V_LEN}
    s_mov_b32 exec_lo, 0
    s_mov_b32 exec_hi, 0x80000000
    ds_write_b32 v{T0+2}, v{T0+3} offset:{L_WT}
    s_mov_b64 exec, -1
TOTALS:
    v_mov_b32 v{T0+2}, 0
TOTALS_SPIN:
    ds_read_b128 {vr(XR,4)}, v{T0+2} offset:{L_WT}
    s_waitcnt lgkmcnt(0)""")
    for k in range(4): a(f"v_readfirstlane_b32 s{4+k}, v{XR+k}")
    a(f"""s_min_u32 s3, s4, s5
    s_min_u32 s8, s6, s7
    s_min_u32 s3, s3, s8
    s_cmp_eq_u32 s3, 0
    s_cbranch_scc0 TOTALS_OK
    s_sub_u32 s{S_SPIN}, s{S_SPIN}, 1
    s_cbranch_scc0 TOTALS_SPIN
    s_endpgm
TOTALS_OK:
    s_add_u32 s5, s5, s4
    s_add_u32 s6, s6, s5
    s_add_u32 s7, s7, s6
    s_sub_u32 s{S_N}, s7, 4
    s_cmp_eq_u32 s{S_WAVE}, 1
    s_cselect_b32 s3, s4, 0
    s_cmp_eq_u32 s{S_WAVE}, 2
    s_cselect_b32 s3, s5, s3
    s_cmp_eq_u32 s{S_WAVE}, 3
    s_cselect_b32 s3, s6, s3
    s_sub_u32 s3, s3, s{S_WAVE}
    v_add_u32 v{V_PRE}, s3, v{V_PRE}
    s_cmp_lg_u32 s{S_WAVE}, 4
    s_cbranch_scc1 EPOCH_DONE
    s_cmp_lg_u32 s2, 0
    s_cbranch_scc1 EPOCH_DONE
    v_mov_b32 v{T0+4}, s{S_NLO}
    v_mov_b32 v{T0+2}, {WS_EPOCH}
    s_mov_b64 exec, 1
    global_store_dword v{T0+2}, v{T0+4}, {sr(S_WS,2)} sc0 sc1
    s_mov_b64 exec, -1
EPOCH_DONE:""")
    x_touch(a, opt, 3, False)
    st('prefix done')
    a(f"""ROUND:
    v_mov_b32 v{T0}, 0
    v_subrev_u32 v{T0+1}, s{S_W0}, v{V_PRE}
    v_mov_b32 v{T0+2}, v{V_GID}
    s_mov_b32 s3, {CAP}
    s_cmp_gt_u32 s{S_N}, {CAP}
    s_cbranch_scc1 EXPAND
    v_lshlrev_b32 v{T0+3}, 2, v{V_PRE}""")
    for j in range(16):
        a(f"v_cmpx_lt_u32 vcc, {j}, v{V_LEN}")
        if j % 2 == 0 and j >= 6: a("s_cbranch_execz EXPAND_DONE")
        a(f"ds_write_b32 v{T0+3}, v{T0+2} offset:{L_SENT + 4*j}\nv_add_u32 v{T0+2}, 1, v{T0+2}")
    a(f"""v_mov_b32 v{T0}, 16
    v_add_u32 v{T0+1}, 16, v{T0+1}
EXPAND:
    v_cmp_lt_u32 vcc, v{T0}, v{V_LEN}
    s_and_b64 exec, exec, vcc
    s_cbranch_execz EXPAND_DONE
    v_cmp_gt_u32 vcc, s3, v{T0+1}
    v_lshlrev_b32 v{T0+3}, 2, v{T0+1}
    s_and_saveexec_b64 {sr(S_T,2)}, vcc
    ds_write_b32 v{T0+3}, v{T0+2} offset:{L_SENT}
    s_mov_b64 exec, {sr(S_T,2)}
    v_add_u32 v{T0}, 1, v{T0}
    v_add_u32 v{T0+1}, 1, v{T0+1}
    v_add_u32 v{T0+2}, 1, v{T0+2}
    s_branch EXPAND
EXPAND_DONE:
    s_mov_b64 exec, -1
    s_sub_u32 s{S_NWIN}, s{S_N}, s{S_W0}
    s_min_u32 s{S_NWIN}, s{S_NWIN}, {CAP}
    v_lshlrev_b32 v{T0}, 2, v0""")
    for i in range(3):
        a(f"""v_add_u32 v{T0+1}, {512*i}, v0
              v_cmp_gt_u32 {sr(S_M+2*i,2)}, s{S_NWIN}, v{T0+1}""")
    st('list built')
    a("s_waitcnt lgkmcnt(0)\ns_barrier")
    st('list barrier')
    G = XR
    KP = TP
    for i in range(3): a(f"ds_read_b32 v{G+i}, v{T0} offset:{L_SENT + 2048*i}")
    a(f"""s_mov_b32 s{S_T+2}, 13421                         ; 32 * 2^32 / (10000 * 1024)
    s_waitcnt lgkmcnt(0)""")
    for i in range(3):
        a(f"v_lshlrev_b32 v{G+4+i}, 3, v{G+i}\nv_lshlrev_b32 v{G+i}, 4, v{G+i}")
    def key_loads(tag):
        a(f"""s_mov_b64 exec, {sr(S_M+4,2)}
        s_cbranch_execz SKIP3{tag}
        buffer_load_dwordx2 {vr(KP+4,2)}, v{G+6}, {sr(S_WS,4)}, 0 offen sc1
        SKIP3{tag}:""")
        for i in range(2):
            a(f"s_mov_b64 exec, {sr(S_M+2*i,2)}\nbuffer_load_dwordx2 {vr(KP+2*i,2)}, v{G+4+i}, {sr(S_WS,4)}, 0 offen sc1")
        a("s_mov_b64 exec, -1")
    key_loads("")
    x_touch(a, opt, 7)
    H = G + 20
    a(f"""v_lshrrev_b32 v{T0}, 4, v{V_L16}              ; lane
    s_cmp_lg_u32 s{S_W0}, 0
    s_cbranch_scc1 KEY_WAIT
    s_cmp_ge_u32 s{S_WAVE}, 4
    s_cbranch_scc1 DEG_DONE""")
    for j in range(NLN):
        t = T0 + 1 + j % 2
        if j < 5: a(f"v_bfe_u32 v{t}, v{RECN+2}, {6*j}, 6")
        elif j == 5: a(f"v_alignbit_b32 v{t}, v{RECN+3}, v{RECN+2}, 30\nv_and_b32 v{t}, 63, v{t}")
        else: a(f"v_bfe_u32 v{t}, v{RECN+3}, {6*j-32}, 6")
        a(f"""v_lshlrev_b32 v{t}, 2, v{t}
              v_cmpx_lt_u32 vcc, {j}, v{V_LEN}
              ds_add_u32 v{t}, v{V_ONE} offset:{L_DEG}""")
    a(f"""s_mov_b64 exec, -1
DEG_DONE:
    v_lshlrev_b32 v{T0+1}, 2, v{T0}
    v_cmp_gt_u32 {sr(S_T,2)}, 40, v{T0}
    v_sub_u32 v{T0+2}, 63, v{T0}
    s_mul_i32 s10, s{S_WAVE}, 5
    s_waitcnt lgkmcnt(0)
    s_barrier
    ds_read_b32 v{H}, v{T0+1} offset:{L_DEG}
    v_add_u32 v{T0+3}, s10, v{T0}
    v_lshlrev_b32 v{T0+4}, 2, v{T0+3}
    s_waitcnt lgkmcnt(0)
    v_lshl_or_b32 v{H}, v{H}, 6, v{T0+2}
    v_cndmask_b32 v{H}, 0, v{H}, {sr(S_T,2)}
    s_nop 0""")
    for k in range(5):
        a(f"v_readlane_b32 s{S_NODE+k}, v{H}, s10")
        if k < 4: a("s_add_u32 s10, s10, 1")
    for k in range(5): a(f"v_cmp_lt_u32 {sr(S_K+2*k,2)}, s{S_NODE+k}, v{H}")
    for k in range(5): a(f"s_bcnt1_i32_b64 s{S_NODE+k}, {sr(S_K+2*k,2)}")
    for k in range(5): a(f"v_readlane_b32 s{S_NODE+k}, v{V_DEAL}, s{S_NODE+k}")
    a("s_nop 0")
    for k in range(5): a(f"v_writelane_b32 v{T0+1}, s{S_NODE+k}, {k}")
    a(f"""v_lshrrev_b32 v{T0+2}, 11, v{T0+1}
    v_bfe_u32 v{T0+5}, v{T0+1}, 8, 3
    v_lshlrev_b32 v{T0+2}, 7, v{T0+2}
    v_and_b32 v{T0+1}, 0xff, v{T0+1}
    v_lshl_or_b32 v{T0+2}, v{T0+5}, 19, v{T0+2}
    s_mov_b64 exec, 0x1f
    ds_write_b32 v{T0+1}, v{T0+3} offset:{L_INV}
    ds_write_b32 v{T0+4}, v{T0+2} offset:{L_MAP}
    s_mov_b64 exec, -1
    s_waitcnt lgkmcnt(0)
    s_barrier""")
    st('dealt')
    a(f"""KEY_WAIT:
    s_lshl_b32 s3, s{S_WAVE}, 10
    s_add_u32 s3, s3, {L_UREC}
    s_mov_b32 s9, {WS_REC}""")
    if ",7:" in "," + opt.xt:
        a(f"s_cmp_lg_u32 s{S_W0}, 0\ns_cbranch_scc1 KEY_WAIT0\ns_waitcnt vmcnt(1)\ns_branch KEY_CHECK")
    a("KEY_WAIT0:\ns_waitcnt vmcnt(0)\nKEY_CHECK:")
    for i in range(3): a(f"v_cmp_ne_u32 {sr(S_K+2*i,2)}, s{S_NLO}, v{KP+2*i+1}")
    for i in range(3): a(f"v_and_b32 v{G+8+i}, 63, v{KP+2*i}\nv_lshlrev_b32 v{G+8+i}, 2, v{G+8+i}")
    for i in range(3): a(f"s_and_b64 {sr(S_K+2*i,2)}, {sr(S_K+2*i,2)}, {sr(S_M+2*i,2)}")
    a(f"""s_or_b64 {sr(S_K,2)}, {sr(S_K,2)}, {sr(S_K+2,2)}
    s_or_b64 {sr(S_K,2)}, {sr(S_K,2)}, {sr(S_K+4,2)}
    s_cbranch_scc0 KEYS_OK
    s_sub_u32 s{S_SPIN}, s{S_SPIN}, 1
    s_cbranch_scc1 END""")
    key_loads("R")
    a("s_branch KEY_WAIT0\nKEYS_OK:")
    st('keys arrived')
    def rec_dma(at):
        for i in (2, 0, 1):
            if opt.recat[i] != at: continue
            a(f"s_add_u32 m0, s3, {i*8192}\ns_mov_b64 exec, {sr(S_M+2*i,2)}")
            if i == 2: a("s_cbranch_execz SKIP3D")
            a(f"buffer_load_dwordx4 v{G+i}, {sr(S_WS,4)}, s9 offen sc1 lds")
            if i == 2: a("SKIP3D:")
        if at in opt.recat: a("s_mov_b64 exec, -1")
    for i in range(3): a(f"ds_read_b32 v{G+8+i}, v{G+8+i} offset:{L_MAP}")
    rec_dma(0)
    for i in range(3):
        a(f"""v_mul_hi_u32 v{G+12+i}, s{S_T+2}, v{KP+2*i}
              v_add_u32 v{T0+1}, {512*i}, v0
              v_lshlrev_b32 v{T0+1}, 21, v{T0+1}
              v_lshrrev_b32 v{G+16+i}, 10, v{KP+2*i}
              v_lshl_or_b32 v{G+16+i}, v{G+16+i}, 7, v{T0+1}""")
    for i in range(3):
        a(f"""s_waitcnt lgkmcnt({2-i})
              v_lshrrev_b32 v{T0+1}, 16, v{G+8+i}
              v_and_b32 v{G+8+i}, 0x380, v{G+8+i}
              v_or_b32 v{G+16+i}, v{G+16+i}, v{T0+1}
              v_lshl_add_u32 v{G+8+i}, v{G+12+i}, 2, v{G+8+i}""")
    for i in range(3):
        a(f"s_mov_b64 exec, {sr(S_M+2*i,2)}\nds_add_rtn_u32 v{G+12+i}, v{G+8+i}, v{V_ONE} offset:{L_HIST}")
    a("s_mov_b64 exec, -1")
    rec_dma(1)
    a(f"""s_lshl_b32 s10, s{S_WAVE}, 3
    s_add_u32 s11, s10, 8
    s_and_b32 s11, s11, 63
    s_waitcnt lgkmcnt(0)
    s_barrier""")
    st('hist done')
    a(f"ds_read_b128 {vr(H,4)}, v{V_L16} offset:{L_HIST}")
    rec_dma(2)
    x_touch(a, opt, 8)
    a("s_waitcnt lgkmcnt(0)")
    scan256(a, H, H + 4)
    a(f"""ds_write_b128 v{V_L16}, {vr(H+4,4)} offset:{L_BASE}
    v_readlane_b32 s{S_START}, v{H+4}, s10
    v_readlane_b32 s{S_END}, v{H+4}, s11""")
    for i in range(3): a(f"ds_read_b32 v{G+8+i}, v{G+8+i} offset:{L_BASE}")
    a(f"""s_cmp_eq_u32 s{S_WAVE}, 7
    s_cselect_b32 s{S_END}, s{S_NWIN}, s{S_END}
    v_add_u32 v{V_POS}, s{S_START}, v{T0}
    v_lshlrev_b32 v{V_AENT}, 2, v{V_POS}
    v_add_u32 v{V_AENT}, {L_SENT}, v{V_AENT}
    s_sub_u32 s11, s{S_END}, s{S_START}
    s_max_u32 s10, s11, {D}
    s_add_u32 s10, s10, {opt.gran - 1 - D}
    s_and_b32 s{S_REM}, s10, {-opt.gran}
    s_max_u32 s10, s11, s{S_REM}
    s_sub_u32 s{S_REMB}, s10, s{S_REM}""")
    for i in range(3):
        a(f"""s_waitcnt lgkmcnt({2 if i else 2})
              v_add_lshl_u32 v{G+8+i}, v{G+8+i}, v{G+12+i}, 2
              s_mov_b64 exec, {sr(S_M+2*i,2)}
              ds_write_b32 v{G+8+i}, v{G+16+i} offset:{L_SENT}
              s_mov_b64 exec, -1""")
    a("s_waitcnt lgkmcnt(0)")
    if not opt.xpre: a("s_waitcnt vmcnt(0)")
    a("s_barrier")
    st('sorted')
    if opt.stamps: a(f"s_memtime s[100:101]\ns_waitcnt lgkmcnt(0)\ns_mov_b32 s{S_ST+30}, s100")
    if opt.prio == 1: a(f"s_cmp_ge_u32 s{S_WAVE}, 4\ns_cbranch_scc0 PRIO_SET\ns_setprio 1\nPRIO_SET:")
    meta_read_entry(a)
    a(f"""s_mov_b32 s3, 0
    s_and_b32 s{S_WM}, s{S_WAVE}, 3
    s_lshl_b32 s{S_WM}, s{S_WM}, 13
    s_add_u32 s{S_WM}, s{S_WM}, {WS_WMIX}
    s_add_u32 s{S_WM+1}, s{S_WM}, 4096""")
    for k in range(8): a(f"v_mov_b32 v{RR+k}, 0")
    a("s_waitcnt lgkmcnt(0)")
    meta_fix_entry(a, False)
    a("s_nop 0")
    def first_rows(lo, hi):
        for e in range(lo, hi):
            a(f"""v_readlane_b32 s{S_K+e}, v{ENT}, {e}
                  s_and_b32 s{S_OFF}, s{S_K+e}, s{S_MASK}
                  buffer_load_dwordx4 {vr(XR+4*e,4)}, v{V_L16}, {sr(S_X,4)}, s{S_OFF} offen""")
    if opt.xpre:
        first_rows(0, opt.xpre)
        if ",8:" in "," + opt.xt and 2 not in opt.recat:
            a(f"s_cmp_lg_u32 s{S_W0}, 0\ns_cbranch_scc1 REC_WAIT\ns_waitcnt vmcnt({opt.xpre + 1})\ns_branch REC_IN\nREC_WAIT:")
        a(f"s_waitcnt vmcnt({opt.xpre})\nREC_IN:")
        st('recs landed')
        a("s_barrier")
    meta_read_rec(a)
    first_rows(opt.xpre, D)
    a(f"v_mov_b32 v{KEY}, v{ENT}")
    a(f"""s_waitcnt lgkmcnt(0)
    v_mov_b32 v{EF}, v{RECN+2}
    v_mov_b32 v{EF+1}, v{RECN+3}""")
    for i in range(4): a(w_mfma(i))
    a(p_mfma(0, 0)); a(p_mfma(0, 1)); a(p_mfma(1, 0))
    a("s_nop 1")
    for m in range(4): w_cvt(a, m)
    for odd in range(2):
        u, r = act_regs(0, odd)
        for h in range(2): a(act_addr(TT + 2 * odd + h, u + h))
        for h in range(2): a(act_read(r + h, TT + 2 * odd + h))
    a(f"s_waitcnt vmcnt({D-1})")
    st('first row')
    a(t_mfma(0, 0)); a(t_mfma(0, 1))
    body(a, opt)
    a(f"""MAIN_DONE:
    s_add_u32 s{S_W0}, s{S_W0}, {CAP}
    s_cmp_ge_u32 s{S_W0}, s{S_N}
    s_cbranch_scc1 ALL_DONE
    s_waitcnt vmcnt(0) lgkmcnt(0)""")
    zero_hist(a)
    a("s_waitcnt lgkmcnt(0)\ns_barrier\ns_branch ROUND\nALL_DONE:")
    st('main done')
    if opt.stamps: a(f"s_memtime s[100:101]\ns_waitcnt lgkmcnt(0)\ns_sub_u32 s{S_ST+30}, s100, s{S_ST+30}")
    PK = WPK; VOUT = UU
    a(f"""v_lshrrev_b32 v{T0+3}, 8, v{V_L16}            ; lane >> 4
    s_lshr_b32 s{S_T}, s{S_WAVE}, 2                   ; half
    s_mul_i32 s{S_T+1}, s{S_T}, 80
    v_mul_u32_u24 v{T0+1}, 20, v{T0+3}
    v_add_u32 v{T0+1}, s{S_T+1}, v{T0+1}""")
    for t in range(5): a(f"ds_read_b32 v{VOUT+t}, v{T0+1} offset:{L_INV + 4*t}")
    for sl in range(5):
        for o in range(4): a(f"v_cvt_pk_bf16_f32 v{PK+4*sl+o}, v{ACC+8*sl+o}, v{ACC+8*sl+4+o}")
    a(f"""s_mul_i32 s{S_T+1}, s{S_WAVE}, {4 * AGG_RS}
    s_add_u32 s{S_T+1}, s{S_T+1}, {L_AGG}
    v_lshrrev_b32 v{T0+4}, 2, v{V_L16}
    v_add_u32 v{T0+4}, s{S_T+1}, v{T0+4}
    v_bfe_u32 v{T0+2}, v{V_L16}, 4, 4                 ; lane & 15
    s_mul_i32 s{S_T+1}, s{S_T}, {16 * AGG_RS}
    s_add_u32 s{S_T+1}, s{S_T+1}, {L_AGG}
    v_mul_u32_u24 v{T0}, {AGG_RS}, v{T0+2}
    v_lshl_add_u32 v{T0}, v{T0+3}, 4, v{T0}
    v_add_u32 v{T0}, s{S_T+1}, v{T0}
    s_lshl_b32 s{S_T}, s{S_BETA}, 10
    s_and_b32 s{S_T+1}, s{S_WAVE}, 3
    s_lshl_b32 s{S_T+1}, s{S_T+1}, 8
    s_add_u32 s{S_T}, s{S_T}, s{S_T+1}
    v_lshl_add_u32 v{T0+2}, v{T0+2}, 4, s{S_T}
    s_waitcnt lgkmcnt(0)""")
    for t in range(5): a(f"v_lshl_add_u32 v{VOUT+t}, v{VOUT+t}, 18, v{T0+2}")
    a("s_barrier")
    st('all main done')
    AF = XR
    def wr(sl):
        for o in range(4): a(f"ds_write_b32 v{T0+4}, v{PK+4*sl+o} offset:{(32*sl + o)*AGG_RS}")
    def rd(t):
        for ks in range(4): a(f"ds_read_b128 {vr(AF+16*(t%2)+4*ks,4)}, v{T0} offset:{t*32*AGG_RS + ks*64}")
    def mm(t, waits):
        for ks in range(4):
            if waits[ks] is not None: a(f"s_waitcnt lgkmcnt({waits[ks]})")
            for j in range(2):
                d = ACC + 8 * t + 4 * j
                a(f"v_mfma_f32_16x16x32_bf16 {vr(d,4)}, {vr(AF+16*(t%2)+4*ks,4)}, {vr(WMIX+16*j+4*ks,4)}, " + ("0" if ks == 0 else vr(d, 4)))
    def pack_store(t):
        d = ACC + 8 * t; p = RR + 4 * (t % 2)
        for j in range(4): a(f"v_cvt_pk_bf16_f32 v{p+j}, v{d+2*j}, v{d+2*j+1}")
        a(f"buffer_store_dwordx4 {vr(p,4)}, v{VOUT+t}, {sr(S_OUT,4)}, 0 offen {opt.outst}")
    wr(0); wr(1)
    a("s_waitcnt vmcnt(0) lgkmcnt(0)\ns_barrier")
    st('agg in LDS')
    rd(0); rd(1)
    a("s_waitcnt lgkmcnt(4)")
    wr(2); wr(3)
    mm(0, [None] * 4)
    wr(4)
    a("s_waitcnt lgkmcnt(0)\ns_barrier")
    rd(2)
    mm(1, [None] * 4); pack_store(0)
    rd(3)
    mm(2, [7, 6, 5, 4]); pack_store(1)
    rd(4)
    mm(3, [7, 6, 5, 4]); pack_store(2)
    mm(4, [3, 2, 1, 0]); pack_store(3)
    a("s_nop 3")
    pack_store(4)
    st('end')
    if opt.probe:
        a(f"""s_cmp_eq_u32 s93, 0
        s_cselect_b32 s93, s92, s93
        s_sub_u32 s93, s93, s92
        s_mul_i32 s93, s93, 4
        s_add_u32 s92, s92, s93
        s_add_u32 s92, s92, 6000
        HOLD_SPIN:
        s_memrealtime s[98:99]
        s_waitcnt lgkmcnt(0)
        s_sub_u32 s98, s98, s92
        s_cmp_lt_i32 s98, 0
        s_cbranch_scc1 HOLD_SPIN""")
    if opt.stamps:
        a("s_waitcnt vmcnt(0)")
        st('stores done 2')
        a(f"""s_lshl_b32 s10, s2, 3
        s_add_u32 s10, s10, s{S_WAVE}
        s_lshl_b32 s10, s10, 7
        s_add_u32 s10, s10, {WS_STAMP}
        v_mov_b32 v{T0}, s10
        s_sub_u32 s{S_ST+31}, s{S_END}, s{S_START}
        s_sub_u32 s{S_ST+29}, {1 << 21}, s{S_SPIN}""")
        for k in range(32): a(f"v_mov_b32 v{XR+k}, s{S_ST+k}")
        for k in range(8): a(f"buffer_store_dwordx4 {vr(XR+4*k,4)}, v{T0}, {sr(S_WS,4)}, 0 offen offset:{16*k}")
    a("END:\ns_endpgm")
    a(".p2align 6\n.type DEAL_TABLE,@object\nDEAL_TABLE:\n.short " + ", ".join(map(str, deal_bytes())) + "\n.size DEAL_TABLE, 256")
    return a.text()

def generate(opt):
    here = os.path.dirname(os.path.abspath(__file__))
    out = open(here + "/header.txt").read()
    out += f"; @launch grid=(256,1,1) block=(512,1,1) lds={LDS_BYTES}\n"
    out += f'.amdgcn_target "amdgcn-amd-amdhsa--gfx950"\n.text\n.globl {KERN}\n.p2align 8\n.type {KERN},@function\n'
    out += kernel(opt)
    out += f""".section .rodata,"a"
.p2align 6
.amdhsa_kernel {KERN}
  .amdhsa_next_free_vgpr {NVGPR}
  .amdhsa_next_free_sgpr {NSGPR if opt.stamps or opt.probe else 66}
  .amdhsa_accum_offset {(NVGPR + 3) // 4 * 4}
  .amdhsa_group_segment_fixed_size 0
  .amdhsa_kernarg_size 88
  .amdhsa_user_sgpr_count 2
  .amdhsa_user_sgpr_kernarg_segment_ptr 1
  .amdhsa_system_sgpr_workgroup_id_x 1
  .amdhsa_float_denorm_mode_32 3
.end_amdhsa_kernel
"""
    return out

def options(argv):
    p = argparse.ArgumentParser()
    p.add_argument("-o", default="/code/" + NAME + ".s")
    p.add_argument("--stamps", action="store_true")
    p.add_argument("--probe", default="")
    p.add_argument("--D", type=int, default=6)
    p.add_argument("--prio", type=int, default=0)
    p.add_argument("--recat", type=lambda t: tuple(map(int, t.split(","))), default=(0, 1, 0))
    p.add_argument("--only", default="")
    p.add_argument("--wsoff", type=int, default=0)
    p.add_argument("--gran", type=int, default=4)
    p.add_argument("--late", type=int, default=62)
    p.add_argument("--xpre", type=int, default=2)
    p.add_argument("--xt", default="9:0:8,6:8:16,3:16:24,8:24:32")
    p.add_argument("--lsplit", type=int, default=5)
    p.add_argument("--k1st", default="sc0 sc1")
    p.add_argument("--outst", default="sc0 sc1")
    return p.parse_args(argv)

if __name__ == "__main__":
    opt = options(sys.argv[1:])
    open(opt.o, "w").write(generate(opt))
    if opt.stamps: open(opt.o + ".names", "w").write(repr(STAMPS))
    import subprocess
    here = os.path.dirname(os.path.abspath(__file__))
    r = subprocess.run([sys.executable, here + "/hazards.py", opt.o], capture_output=True, text=True).stdout
    if " 0 finding" not in r: print(r)
    r = subprocess.run([sys.executable, here + "/../cdna_unwritten_srd_check.py", opt.o], capture_output=True, text=True)
    if r.returncode: print(r.stdout, r.stderr)
```

```python
import sys, argparse, os

NAME = "gather_scatter__tensor_product_equiv_tfn__graph"
KERN = NAME + "_kernel"
N, E, C = 10000, 320000, 128
NP, EP = 250, 1280
WS_KEY = 0
WS_REC = 0x280000
WS_WMIX = 0x771000
WS_TAB = 0x780000
WS_EPOCH = WS_TAB + 256 * 4096
WS_END = WS_EPOCH + 128
WS_STAMP = 0x900000
CAP = 1472

class Asm:
    def __init__(self): self.l = []
    def __call__(self, s):
        for line in s.strip("\n").split("\n"):
            line = line.strip()
            if not line: continue
            self.l.append(line if line.endswith(":") else "    " + line)
    def text(self): return "\n".join(self.l) + "\n"

def vr(a, n=1): return f"v{a}" if n == 1 else f"v[{a}:{a+n-1}]"
def sr(a, n=1): return f"s{a}" if n == 1 else f"s[{a}:{a+n-1}]"

SCAN_STEPS = ["row_shr:1 row_mask:0xf bank_mask:0xf bound_ctrl:0", "row_shr:2 row_mask:0xf bank_mask:0xf bound_ctrl:0",
              "row_shr:4 row_mask:0xf bank_mask:0xf bound_ctrl:0", "row_shr:8 row_mask:0xf bank_mask:0xf bound_ctrl:0",
              "row_bcast:15 row_mask:0xa bank_mask:0xf", "row_bcast:31 row_mask:0xc bank_mask:0xf"]
def scan64(a, *regs):
    for c in SCAN_STEPS:
        a("s_nop 1" if len(regs) == 1 else "s_nop 0")
        for v in regs: a(f"v_add_u32_dpp v{v}, v{v}, v{v} {c}")

L_HIST = 0; L_DEG = 1024; L_WT = 1280; L_CNT = L_WT + 16
L_INV = 1344; L_MAP = 1536; L_BASE = 1792
L_SENT = L_BASE + 1024
L_UREC = L_SENT + CAP * 4
L_CG = L_UREC + CAP * 16
L_LUT = 32768
L1_HIST = L_SENT; L1_LNS = L1_HIST + 1024; L1_BASE = L1_LNS + 2048; L1_SREC = L_UREC
L1_SKEY = L_LUT + 53 * 1024
assert L_CG + 128 <= L_LUT and L1_SREC + (EP + 64) * 16 <= L_CG and L1_BASE <= 8192
NLN = 10
L_AGG = L_LUT; AGG_RS = 288
LDS_BYTES = L_LUT + 131072

V_L16 = 1
V_LEN, V_PRE, V_GID = 2, 3, 4
V_AENT, V_POS = 5, 6
V_ONE = 15
V_DEAL = 174
V_DUMMY = 167
V_TOUCH = 166
T0 = 8
ACC = 16; XR = 64; TP = 96; UU = 112; RR = 128; TT = 136; WPK = 140; WTMP = 148
KEY = 164; ENT = 165; RECN = 168; EF = 172; CONST = 176; WMIX = 188
NVGPR = 220
PE, PO, CGB = CONST, CONST + 2, CONST + 4
LJ = 128
S_NODE = 4
S_X, S_WS, S_OUT = 12, 16, 20
S_BETA, S_WAVE, S_N, S_W0, S_NWIN, S_START, S_END, S_REM, S_REMB, S_OFF, S_MASK = range(24, 35)
S_SPIN = 35
S_M = 36
S_T = 42
S_K = 48
S_IN = 40
S_JOB, S_JCNT = 62, 63
S_NLO, S_NHI = 64, 65
S_WM = 10
S_L2E = 10
S_ST = 66
NSGPR = 102

STAMPS = []
def stamp(a, opt, name):
    if opt.probe == name: a("s_memrealtime s[98:99]\ns_waitcnt lgkmcnt(0)\ns_mov_b32 s93, s98")
    if not opt.stamps: return
    if opt.only and name not in opt.only.split(",") + ["start", "sorted", "main done", "stores done 2"]: return
    if name not in STAMPS: STAMPS.append(name)
    a(f"s_memrealtime s[98:99]\ns_waitcnt lgkmcnt(0)\ns_mov_b32 s{S_ST + STAMPS.index(name)}, s98")

S_RET = 6
def lut_sub(a):
    J, Ex, R, P = LJ, LJ + 8, LJ + 16, LJ + 24
    a(f"""LUT_SUB:
    s_lshl_b32 s3, s{S_JOB}, 25
    s_add_u32 s3, s3, 0x8000
    v_lshl_add_u32 v{J}, v{V_L16}, 15, s3""")
    for k in range(1, 8): a(f"v_add_u32 v{J+k}, 0x10000, v{J+k-1}")
    for k in range(0, 8, 2): a(f"v_pk_mul_f32 {vr(Ex+k,2)}, {vr(J+k,2)}, {sr(S_L2E,2)}")
    for k in range(8): a(f"v_exp_f32 v{Ex+k}, v{Ex+k}")
    a(f"s_lshl_b32 s3, s{S_JOB}, 10")
    for k in range(0, 8, 2): a(f"v_pk_add_f32 {vr(R+k,2)}, {vr(Ex+k,2)}, 1.0 op_sel_hi:[1,0]")
    for k in range(8): a(f"v_rcp_f32 v{R+k}, v{R+k}")
    a(f"v_add_u32 v{P+8}, s3, v{V_L16}")
    for k in range(0, 8, 2): a(f"v_pk_mul_f32 {vr(J+k,2)}, {vr(J+k,2)}, {vr(R+k,2)}")
    a(f"v_add_u32 v{P+9}, 0x10000, v{P+8}")
    for k in range(0, 8, 2): a(f"v_pk_mul_f32 {vr(Ex+k,2)}, {vr(J+k,2)}, {vr(Ex+k,2)} neg_lo:[1,0] neg_hi:[1,0]")
    for k in range(4): a(f"v_cvt_pk_bf16_f32 v{P+k}, v{J+2*k}, v{J+2*k+1}")
    for k in range(4): a(f"v_cvt_pk_bf16_f32 v{P+4+k}, v{Ex+2*k}, v{Ex+2*k+1}")
    a(f"""ds_write_b128 v{P+8}, {vr(P,4)} offset:{L_LUT}
    ds_write_b128 v{P+9}, {vr(P+4,4)} offset:{L_LUT}
    s_add_u32 s{S_JOB}, s{S_JOB}, 1
    s_sub_u32 s{S_JCNT}, s{S_JCNT}, 1
    s_cmp_lg_u32 s{S_JCNT}, 0
    s_cbranch_scc1 LUT_SUB
    s_setpc_b64 {sr(S_RET,2)}""")
def lut_jobs(a, count): a(f"s_mov_b32 s{S_JCNT}, {count}\ns_call_b64 {sr(S_RET,2)}, LUT_SUB")

def lut_plain(a, tag, region, last=None, cont=False, until=None):
    P = LJ
    for name, first, end, bias in (("L", 1, 24, 0x20000 - 0x800080), ("H", 34, 62, 0x20000)):
        if name != region: continue
        last = last or end
        if cont: a(f"s_cmp_gt_u32 s{S_JOB}, {last}\ns_cbranch_scc1 LUTP_END_{tag}")
        else: a(f"s_add_u32 s{S_JOB}, s{S_WAVE}, {first}")
        if name == "H" and not cont:
            for k in range(4): a(f"v_mov_b32 v{P+4+k}, 0x80008000")
        a(f"LUTP_{tag}{name}:")
        if until:
            a(f"""ds_read_b32 v{T0+2}, v{T0+3} offset:{L_CNT}
            s_waitcnt lgkmcnt(0)
            v_readfirstlane_b32 s3, v{T0+2}
            s_cmp_eq_u32 s3, 3
            s_cbranch_scc1 {until}""")
        a(f"""s_mul_i32 s3, s{S_JOB}, {512 * 0x10001}
        s_add_u32 s3, s3, {bias & 0xffffffff}
        v_add_u32 v{P}, s3, v{P+10}
        s_lshl_b32 s3, s{S_JOB}, 10
        v_add_u32 v{P+8}, s3, v{V_L16}""")
        for k in range(1, 4): a(f"v_add_u32 v{P+k}, {k * 0x20002}, v{P}")
        a(f"v_add_u32 v{P+9}, 0x10000, v{P+8}")
        if name == "L":
            for k in range(4): a(f"v_or_b32 v{P+4+k}, 0x80008000, v{P+k}")
        a(f"""ds_write_b128 v{P+8}, {vr(P,4)} offset:{L_LUT}
        ds_write_b128 v{P+9}, {vr(P+4,4)} offset:{L_LUT}
        s_add_u32 s{S_JOB}, s{S_JOB}, {5 if name == "L" else 4}
        s_cmp_le_u32 s{S_JOB}, {last}
        s_cbranch_scc1 LUTP_{tag}{name}
        LUTP_END_{tag}:""")

def tab_issue(a): a(f"buffer_load_dwordx4 {vr(RECN,4)}, v{V_POS}, {sr(S_WS,4)}, 0 offen sc1")
def tab_check(a, younger):
    if younger: a(f"s_waitcnt vmcnt({younger})\ns_branch CHECK_TAB")
    a(f"""POLL_TAB:
    s_waitcnt vmcnt(0)
    CHECK_TAB:
    v_lshrrev_b32 v{T0+3}, 22, v{RECN}
    v_cmp_ne_u32 vcc, s{S_NLO}, v{RECN+1}
    v_cmp_ne_u32 {sr(S_T,2)}, s{S_NHI}, v{T0+3}
    s_or_b64 vcc, vcc, {sr(S_T,2)}
    s_and_b64 exec, exec, vcc
    s_cbranch_execz POLLED_TAB
    s_sub_u32 s{S_SPIN}, s{S_SPIN}, 1
    s_cbranch_scc1 END""")
    tab_issue(a)
    a("s_branch POLL_TAB\nPOLLED_TAB:\ns_mov_b64 exec, -1")

def load_epoch(a):
    a(f"""s_add_u32 s4, s{S_WS}, {WS_EPOCH}
    s_addc_u32 s5, s{S_WS+1}, 0
    s_load_dwordx2 {sr(S_NLO,2)}, s[4:5], 0""")
def make_tag(a):
    a(f"""s_add_u32 s{S_NLO}, s{S_NLO}, 1
    s_and_b32 s{S_NHI}, s{S_NHI}, 0x3ff""")

def scan256(a, H_, O_):
    a(f"""v_add_u32 v{T0+2}, v{H_}, v{H_+1}
    v_add3_u32 v{T0+2}, v{T0+2}, v{H_+2}, v{H_+3}
    v_mov_b32 v{T0+3}, v{T0+2}""")
    scan64(a, T0 + 3)
    a(f"""v_sub_u32 v{O_}, v{T0+3}, v{T0+2}
    v_add_u32 v{O_+1}, v{O_}, v{H_}
    v_add_u32 v{O_+2}, v{O_+1}, v{H_+1}
    v_add_u32 v{O_+3}, v{O_+2}, v{H_+2}""")

SRC, DST, YY, EFP, WRAD, CG, WMX = S_IN + 2, S_IN + 4, S_IN + 6, S_IN + 8, S_IN + 10, S_IN + 12, S_IN + 14
D_, S_, Y_, F_, B_, R_, H_, O_, TB = 64, 68, 72, 80, 88, 92, 96, 100, 108
CT = WMIX
def const_sub(a):
    a(f"""CONST_SUB:
    ds_write_b32 v{CT+5}, v{CT+4} offset:{L_CG}
    v_lshrrev_b32 v{CT+5}, 3, v{V_L16}
    v_and_b32 v{CT+5}, 24, v{CT+5}
    s_mov_b32 s4, 0x05040100
    s_mov_b32 s5, 0x07060302""")
    for i in range(4): a(f"ds_read_b64_tr_b16 {vr(CGB+2*i,2)}, v{CT+5} offset:{L_CG + 32*i}")
    for u in range(2):
        a(f"v_perm_b32 v{PE+u}, v{CT+1+2*u}, v{CT+2*u}, s4\nv_perm_b32 v{PO+u}, v{CT+1+2*u}, v{CT+2*u}, s5")
    a(f"s_setpc_b64 {sr(S_RET,2)}")
def const_finish(a): a(f"s_call_b64 {sr(S_RET,2)}, CONST_SUB")

def load_yf(a):
    a(f"""global_load_dwordx4 {vr(Y_,4)}, v{T0+1}, {sr(YY,2)}
    global_load_dwordx4 {vr(Y_+4,4)}, v{T0+1}, {sr(YY,2)} offset:16
    global_load_dwordx4 {vr(F_,4)}, v{T0+1}, {sr(EFP,2)}
    global_load_dwordx4 {vr(F_+4,4)}, v{T0+1}, {sr(EFP,2)} offset:16""")

def phase1(a, opt):
    st = lambda n: stamp(a, opt, n)
    WS = sr(S_WS, 2); FL = opt.k1st
    a(f"""s_cmp_ge_u32 s{S_WAVE}, 5
    s_cbranch_scc1 HELP""")
    if opt.yearly == 2:
        a(f"s_cmp_ge_u32 s2, {NP}\ns_cbranch_scc1 NO_YF")
        load_yf(a)
        a("NO_YF:")
    lut_plain(a, "W0", "L", last=opt.lsplit)
    a(f"""s_cmp_ge_u32 s2, {NP}
    s_cbranch_scc1 AUX""")
    if not opt.yearly: load_yf(a)
    st('jobs A')
    early = ("," + opt.xt).count(",10:")
    a(f"s_waitcnt vmcnt({11 + early})")
    st('dst arrived')
    for k in range(4):
        a(f"""v_and_b32 v{B_+k}, 0xff, v{D_+k}
              v_lshlrev_b32 v{B_+k}, 2, v{B_+k}
              ds_add_rtn_u32 v{R_+k}, v{B_+k}, v{V_ONE} offset:{L1_HIST}""")
    a(f"s_waitcnt vmcnt({10 + early})")
    for k in range(4):
        a(f"""v_lshrrev_b32 v{D_+k}, 8, v{D_+k}
              v_lshl_or_b32 v{TB+2*k}, v{S_+k}, 10, v{D_+k}""")
    a(f"""s_mov_b32 s9, {L1_SKEY}
    s_waitcnt lgkmcnt(0)
    s_barrier
    ds_read_b128 {vr(H_,4)}, v{V_L16} offset:{L1_HIST}""")
    make_tag(a)
    for k in range(4): a(f"v_mov_b32 v{TB+2*k+1}, s{S_NLO}")
    a("v_mov_b32 v119, 0")
    for k in range(4):
        a(f"""v_cmp_gt_u32 vcc, {NLN}, v{R_+k}
              v_mul_u32_u24 v116, 6, v{R_+k}
              v_lshlrev_b32 v117, 1, v{B_+k}
              v_cndmask_b32 v118, 0, v{D_+k}, vcc
              v_lshlrev_b64 {vr(120+2*(k%2),2)}, v116, v[118:119]
              ds_or_b64 v117, {vr(120+2*(k%2),2)} offset:{L1_LNS}""")
    a("s_waitcnt lgkmcnt(4)")
    scan256(a, H_, O_)
    a(f"ds_write_b128 v{V_L16}, {vr(O_,4)} offset:{L1_BASE}")
    for k in range(4): a(f"ds_read_b32 v{H_+k}, v{B_+k} offset:{L1_BASE}")
    for k in range(4):
        a(f"""s_waitcnt lgkmcnt(3)
              v_add_u32 v{R_+k}, v{R_+k}, v{H_+k}
              v_lshl_add_u32 v{B_+k}, v{R_+k}, 3, s9
              ds_write_b64 v{B_+k}, {vr(TB+2*k,2)}""")
    for k in range(4):
        a(f"v_lshlrev_b32 v{R_+k}, 4, v{R_+k}\nv_add_u32 v{R_+k}, {L1_SREC}, v{R_+k}")
    a("s_waitcnt lgkmcnt(0)\ns_barrier")
    st('keys binned')
    a("s_waitcnt vmcnt(0)")
    x_touch(a, opt, 9, False)
    for k in range(4):
        a(f"ds_write2_b64 v{R_+k}, {vr(Y_+2*k,2)}, {vr(F_+2*k,2)} offset0:0 offset1:1")
    st('recs binned')
    a("BINNED:\ns_setprio 0")
    a(f"s_waitcnt lgkmcnt(0)\ns_barrier\nv_mov_b32 v{V_LEN}, 0")
    const_finish(a)
    lut_plain(a, "W", "L", cont=True)
    a(f"s_cmp_eq_u32 s{S_WAVE}, 4\ns_cbranch_scc1 WAVE4")
    lut_plain(a, "U", "H", last=opt.late)
    tab_issue(a)
    x_touch(a, opt, 6, False)
    st('tab issued')
    if opt.late < 62: lut_plain(a, "V", "H", cont=True)
    tab_check(a, ("," + opt.xt).count(",6:"))
    st('tab arrived')
    a("s_branch TAB_DONE")
    lut_sub(a)
    const_sub(a)
    a("HELP:")
    a(f"""s_sub_u32 s8, s{S_WAVE}, 5
    s_mul_i32 s4, s8, 3072
    s_cmp_eq_u32 s8, 1
    s_cselect_b32 s4, 4096, s4
    s_mul_i32 s3, s2, {EP * 8}
    s_add_u32 s3, s3, s4
    v_add_u32 v{T0}, s3, v{V_L16}
    s_add_u32 s4, s4, {L1_SKEY}
    v_add_u32 v{T0+1}, s4, v{V_L16}
    s_mul_i32 s4, s8, 7168
    s_mul_i32 s3, s2, {EP * 16}
    s_add_u32 s3, s3, s4
    s_add_u32 s3, s3, {WS_REC}
    v_add_u32 v{T0+4}, s3, v{V_L16}
    v_add_u32 v{T0+5}, s4, v{V_L16}
    s_lshl_b32 s3, s2, 12
    s_add_u32 s3, s3, {WS_TAB}
    v_add_u32 v117, s3, v{V_L16}
    s_waitcnt lgkmcnt(0)""")
    make_tag(a)
    st('help jobs')
    a(f"""s_barrier
    s_cmp_eq_u32 s{S_WAVE}, 6
    s_cbranch_scc1 ROW
    s_cmp_eq_u32 s{S_WAVE}, 7
    s_cselect_b32 s{S_JOB}, 63, 0""")
    lut_jobs(a, 1)
    a("s_waitcnt vmcnt(0)")
    const_finish(a)
    a(f"""v_mov_b32 v{T0+2}, {0x7f80 * 2}
    v_mov_b32 v{T0+3}, 0x7f80
    s_cmp_lg_u32 s{S_WAVE}, 7
    s_cbranch_scc1 NO_ROW
    ds_write_b16 v{T0+2}, v{T0+3} offset:{L_LUT}
    s_branch NO_ROW
ROW:
    v_lshrrev_b32 v116, 2, v{V_L16}""")
    QT, HH, SS = 84, 100, 104
    for m in range(4): a(f"ds_read_b32 v{HH+m}, v116 offset:{L1_HIST + 256*m}")
    a(f"""s_lshl_b32 s3, s2, 12
    s_add_u32 s3, s3, {WS_TAB}
    v_add_u32 v117, s3, v{V_L16}
    v_lshrrev_b32 v116, 1, v{V_L16}
    s_lshl_b32 s3, s{S_NHI}, 22
    s_waitcnt lgkmcnt(0)""")
    for m in range(4): a(f"v_mov_b32 v{SS+m}, v{HH+m}")
    scan64(a, SS, SS + 1, SS + 2, SS + 3)
    a(f"""v_readlane_b32 s4, v{SS}, 63
    v_readlane_b32 s5, v{SS+1}, 63
    v_readlane_b32 s9, v{SS+2}, 63""")
    for m in range(4): a(f"v_sub_u32 v{SS+m}, v{SS+m}, v{HH+m}")
    a(f"""s_add_u32 s5, s5, s4
    s_add_u32 s9, s9, s5
    v_add_u32 v{SS+1}, s4, v{SS+1}
    v_add_u32 v{SS+2}, s5, v{SS+2}
    v_add_u32 v{SS+3}, s9, v{SS+3}""")
    for m in range(4):
        a(f"""v_lshl_or_b32 v{QT+4*m}, v{HH+m}, 11, v{SS+m}
              v_or_b32 v{QT+4*m}, s3, v{QT+4*m}
              v_mov_b32 v{QT+4*m+1}, s{S_NLO}""")
    a("s_waitcnt vmcnt(0)")
    const_finish(a)
    a(f"""NO_ROW:
    s_barrier
    s_cmp_lg_u32 s{S_WAVE}, 6
    s_cbranch_scc1 ROW_DONE""")
    for m in range(4): a(f"ds_read_b64 {vr(QT+4*m+2,2)}, v116 offset:{L1_LNS + 512*m}")
    for m in range(4): a(f"s_waitcnt lgkmcnt({3-m})\nglobal_store_dwordx4 v117, {vr(QT+4*m,4)}, {WS} offset:{1024*m} sc0 sc1")
    st('table published')
    a("ROW_DONE:")
    for k in range(4): a(f"ds_read_b128 {vr(64+4*k,4)}, v{T0+1} offset:{1024*k}")
    a(f"""v_mov_b32 v{V_LEN}, 0
    s_add_u32 s{S_JOB}, s8, s8                       ; jobs 27, 28 / 29, 30, 31 / 32, 33
    s_add_u32 s{S_JOB}, s{S_JOB}, 27
    s_cmp_eq_u32 s8, 2
    s_addc_u32 s{S_JOB}, s{S_JOB}, 0
    s_cmp_eq_u32 s8, 1
    s_cselect_b32 s{S_JCNT}, 3, 2
    s_waitcnt lgkmcnt(0)
    s_barrier
    s_cmp_ge_u32 s2, {NP}
    s_cbranch_scc1 RECS_STORED""")
    for k in range(7): a(f"ds_read_b128 {vr(84+4*k,4)}, v{T0+5} offset:{L1_SREC + 1024*k}")
    for k in range(7):
        if k == 4: a(f"v_add_u32 v{T0+4}, 4096, v{T0+4}")
        if k == 6: a(f"s_cmp_eq_u32 s8, 2\ns_cbranch_scc1 RECS_STORED")
        a(f"s_waitcnt lgkmcnt({6-k})\nglobal_store_dwordx4 v{T0+4}, {vr(84+4*k,4)}, {WS} offset:{(1024*k) % 4096} {FL}")
    a(f"""RECS_STORED:
    s_call_b64 {sr(S_RET,2)}, LUT_SUB
    s_cmp_ge_u32 s2, {NP}
    s_cbranch_scc1 TAB_DONE
    v_mov_b32 v{T0+2}, 0
    s_waitcnt vmcnt(0)
    s_mov_b64 exec, 1
    ds_add_u32 v{T0+2}, v{V_ONE} offset:{L_CNT}
    s_mov_b64 exec, -1
WAIT_ACK:
    ds_read_b32 v{T0+3}, v{T0+2} offset:{L_CNT}
    s_waitcnt lgkmcnt(0)
    v_readfirstlane_b32 s3, v{T0+3}
    s_cmp_eq_u32 s3, 3
    s_cbranch_scc0 WAIT_ACK""")
    st('recs acked')
    for k in range(4):
        if k == 2: a(f"s_cmp_eq_u32 s8, 1\ns_cbranch_scc1 TAB_DONE")
        a(f"global_store_dwordx4 v{T0}, {vr(64+4*k,4)}, {WS} offset:{1024*k} {FL}")
    a("s_branch TAB_DONE")
    a(f"""AUX_LOAD:
    s_sub_u32 s4, s2, {NP}
    s_cmp_ge_u32 s4, 4
    s_cbranch_scc1 NO_EDGES
    s_cmp_ge_u32 s{S_WAVE}, 4
    s_cbranch_scc1 NO_EDGES
    s_lshl_b32 s5, s{S_WAVE}, 13
    s_lshl_b32 s8, s4, 6
    s_add_u32 s5, s5, s8
    v_lshrrev_b32 v80, 8, v{V_L16}
    v_lshlrev_b32 v80, 11, v80
    v_bfe_u32 v81, v{V_L16}, 4, 4
    v_lshl_add_u32 v80, v81, 2, v80
    v_add_u32 v80, s5, v80""")
    for t in range(8): a(f"global_load_dword v{64+t}, v80, {sr(WMX,2)} offset:{t*256}")
    a(f"""s_branch NO_EDGES
AUX:
    s_cmp_ge_u32 s2, {NP + 4}
    s_cbranch_scc1 AUX_DONE
    s_cmp_ge_u32 s{S_WAVE}, 4
    s_cbranch_scc1 AUX_DONE
    s_sub_u32 s4, s2, {NP}
    s_lshl_b32 s5, s4, 13
    s_lshl_b32 s8, s{S_WAVE}, 10
    s_add_u32 s5, s5, s8
    s_add_u32 s5, s5, {WS_WMIX}
    v_add_u32 v81, s5, v{V_L16}
    s_mov_b32 s4, 0x05040100
    s_mov_b32 s5, 0x07060302
    s_waitcnt vmcnt({6 + early})""")
    for u in range(4):
        a(f"v_perm_b32 v{72+u}, v{65+2*u}, v{64+2*u}, s4\nv_perm_b32 v{76+u}, v{65+2*u}, v{64+2*u}, s5")
    a(f"""global_store_dwordx4 v81, v[72:75], {WS} {FL}
    v_add_u32 v81, 4096, v81
    global_store_dwordx4 v81, v[76:79], {WS} {FL}
AUX_DONE:
    s_waitcnt lgkmcnt(0)""")
    make_tag(a)
    a(f"""s_barrier
    s_waitcnt vmcnt(0)
    s_barrier
    s_branch BINNED
WAVE4:
    s_mov_b32 s{S_JOB}, 25""")
    lut_jobs(a, 2)
    a("TAB_DONE:")

def mfma4(d, a_, b, c, blk=None):
    cc = "0" if c is None else vr(c, 4)
    return f"v_mfma_f32_4x4x4_16b_bf16 {vr(d,4)}, {vr(a_,2)}, {vr(b,2)}, {cc}" + ("" if blk is None else f" cbsz:4 abid:{blk}")
def p_mfma(g, odd):
    return mfma4(UU + 8 * (g % 2) + 4 * odd, EF, PO if odd else PE, None, g % 16)
def t_mfma(e, odd):
    return mfma4(TP + 8 * (e % 2) + 4 * odd, WPK + 2 * (e % 4), XR + 4 * (e % 8) + 2 * odd, None, (e % 64) // 4)
def act_regs(eb, odd):
    return UU + 8 * ((eb // 4) % 2) + 4 * odd + eb % 4, RR + 4 * ((eb // 2) % 2) + 2 * odd
def act_addr(t, u):
    return f"v_lshlrev_b32_sdwa v{t}, v{V_ONE}, v{u} dst_sel:DWORD dst_unused:UNUSED_PAD src0_sel:DWORD src1_sel:WORD_1"
def act_read(r, t): return f"ds_read_u16_d16_hi v{r}, v{t} offset:{L_LUT}"
def fma4(a, q):
    h = q % 2
    a(f"s_set_gpr_idx_on s{S_K + q % 16}, 0xc")
    for odd in range(2):
        r = RR + 4 * ((q // 2) % 2) + 2 * odd
        for o in (0, 2):
            acc = ACC + 4 * odd + o; tp = TP + 8 * (q % 2) + 4 * odd + o
            a(f"v_pk_fma_f32 {vr(acc,2)}, {vr(r,2)}, {vr(tp,2)}, {vr(acc,2)} op_sel:[{h},0,0] op_sel_hi:[{h},1,1]")
    a("s_set_gpr_idx_off")
def meta_read_entry(a): a(f"ds_read_b32 v{ENT}, v{V_AENT}")
def meta_fix_entry(a, rec=True):
    a(f"""v_cmp_gt_u32 vcc, s{S_END}, v{V_POS}
          v_add_u32 v{V_POS}, 64, v{V_POS}
          v_add_u32 v{V_AENT}, 256, v{V_AENT}
          v_cndmask_b32 v{ENT}, 40, v{ENT}, vcc
          v_lshrrev_b32 v{T0}, 21, v{ENT}
          v_lshlrev_b32 v{T0}, 4, v{T0}
          v_lshlrev_b32 v{T0+1}, 3, v{ENT}""")
    if rec: meta_read_rec(a)
    a(f"""v_and_b32 v{T0+1}, 0xfffc00, v{T0+1}
          v_and_or_b32 v{ENT}, v{ENT}, 56, v{T0+1}""")
def meta_read_rec(a): a(f"ds_read_b128 {vr(RECN,4)}, v{T0} offset:{L_UREC}")
def w_mfma(i): return mfma4(WTMP + 4 * i, RECN, CGB + 2 * i, None)
def w_cvt(a, m):
    a(f"""v_cvt_pk_bf16_f32 v{WPK+2*m}, v{WTMP+m}, v{WTMP+4+m}
          v_cvt_pk_bf16_f32 v{WPK+2*m+1}, v{WTMP+8+m}, v{WTMP+12+m}""")

def step(a, opt, q, drain=None):
    D = opt.D; loads = drain is None
    eb = q + 2 - q % 2; odd = q % 2
    u, r = act_regs(eb, odd); t = TT + 2 * odd
    g, ur = (q + 6) // 4, (q + 6) % 4
    if ur % 2 == 0: a(p_mfma(g, ur // 2))
    elif 40 <= q < 48: a(w_mfma((q - 40) // 2))
    a(act_addr(t, u))
    if loads: a(f"s_waitcnt vmcnt({D - 2})")
    elif D - 2 - drain >= 0: a(f"s_waitcnt vmcnt({8 + D - 2 - drain})")
    a(t_mfma(q + 1, 0))
    if loads: a(f"v_readlane_b32 s{S_K + (q + D) % 16}, v{KEY if q + D < 64 else ENT}, {(q + D) % 64}")
    else:     a("s_nop 0")
    a(t_mfma(q + 1, 1))
    a(act_addr(t + 1, u + 1))
    a(act_read(r, t)); a(act_read(r + 1, t + 1))
    if q >= 60: w_cvt(a, q - 60)
    if loads:
        a(f"s_and_b32 s{S_OFF}, s{S_K + (q + D) % 16}, s{S_MASK}")
        a(f"buffer_load_dwordx4 {vr(XR + 4 * ((q + D) % 8), 4)}, v{V_L16}, {sr(S_X,4)}, s{S_OFF} offen")
    if q % 2 == 0: a("s_waitcnt lgkmcnt(2)")
    fma4(a, q)
    if loads: x_touch(a, opt, 100 + q, False)
    if loads and q == 8: meta_read_entry(a)
    if loads and q == 12: meta_fix_entry(a)
    if q == 57: a(f"v_mov_b32 v{EF}, v{RECN+2}\nv_mov_b32 v{EF+1}, v{RECN+3}\ns_nop 1")
    if loads and q == 63: a(f"v_mov_b32 v{KEY}, v{ENT}")

def body(a, opt):
    G = opt.gran
    for q in range(64):
        if q % G == 0: a(f"A_{q}:\ns_sub_u32 s{S_REM}, s{S_REM}, {G}\ns_cbranch_scc1 B_{q}")
        step(a, opt, q)
    if opt.stamps and not opt.only:
        STAMPS.extend(("batch 1", "batch 2")); k = S_ST + len(STAMPS) - 2
        a(f"""s_memrealtime s[98:99]
        s_waitcnt lgkmcnt(0)
        s_cmp_eq_u32 s{k}, 0
        s_cselect_b32 s99, 0, s98
        s_cselect_b32 s{k}, s98, s{k}
        s_cmp_eq_u32 s{k+1}, 0
        s_cselect_b32 s{k+1}, s99, s{k+1}""")
    if opt.probe == "batch 1":
        a("s_memrealtime s[98:99]\ns_waitcnt lgkmcnt(0)\ns_cmp_eq_u32 s93, 0\ns_cselect_b32 s93, s98, s93")
    a("s_branch A_0")
    for q in range(0, 64, G):
        a(f"B_{q}:")
        for k in range(8):
            a(f"buffer_load_dwordx4 {vr(WMIX+4*k,4)}, v{V_L16}, {sr(S_WS,4)}, s{S_WM + k // 4} offen offset:{(k%4)*1024} sc1")
        for i in range(opt.D):
            a(f"s_sub_u32 s{S_REMB}, s{S_REMB}, 1\ns_cbranch_scc1 MAIN_DONE")
            step(a, opt, (q + i) % 64, i)
        a("s_branch MAIN_DONE")

def x_touch(a, opt, where, guard=True):
    for spec in filter(None, opt.xt.split(",")):
        w, lo, hi = map(int, spec.split(":"))
        if w != where: continue
        if guard: a(f"s_cmp_lg_u32 s{S_W0}, 0\ns_cbranch_scc1 NO_X_TOUCH_{w}")
        if w >= 100: a(f"s_bitcmp1_b32 s3, {w % 32}\ns_cbranch_scc1 NO_X_TOUCH_{w}\ns_bitset1_b32 s3, {w % 32}")
        four = w in (6, 9)
        if w == 9: a(f"s_cmp_eq_u32 s{S_WAVE}, 4\ns_cbranch_scc1 NO_X_TOUCH_{w}")
        a(f"""s_lshl_b32 s{S_OFF}, s2, {2 if four else 3}
        s_add_u32 s{S_OFF}, s{S_OFF}, s{S_WAVE}
        s_lshl_b32 s{S_OFF}, s{S_OFF}, 7
        s_add_u32 s{S_OFF}, s{S_OFF}, {lo << 18}
        v_min_u32 v{V_TOUCH}, {(((hi - lo) << four) - 1) * 16}, v{V_L16}
        v_lshl_add_u32 v{V_TOUCH}, v{V_TOUCH}, {14 - four}, s{S_OFF}
        buffer_load_dword v{V_DUMMY}, v{V_TOUCH}, {sr(S_X,4)}, 0 offen""")
        a(f"NO_X_TOUCH_{w}:")

DEAL = ([4, 2, 4, 7, 6, 3, 1, 5, 0, 4, 2, 6, 1, 7, 3, 5, 0, 4, 7, 3, 0, 1, 5, 6, 2, 5, 0, 1, 6, 7, 3, 2, 0, 5, 3, 1, 6, 7, 2, 4],
        [0, 2, 7, 1, 4, 6, 5, 3, 6, 3, 1, 7, 4, 0, 2, 5, 4, 3, 5, 6, 7, 1, 0, 2, 7, 5, 2, 4, 3, 6, 0, 1, 5, 1, 3, 6, 4, 2, 7, 0])
def deal_bytes():
    out = []
    for t in DEAL:
        assert sorted(t) == sorted(list(range(8)) * 5)
        out += [4 * (5 * w + t[:r].count(w)) | (8 * w + t[:r].count(w)) << 8 for r, w in enumerate(t)] + [0] * 24
    return out

def zero_hist(a):
    a(f"""v_lshlrev_b32 v{T0+3}, 2, v0
    v_mov_b32 v{T0+4}, 0
    v_cmp_gt_u32 vcc, 0x100, v0
    s_and_saveexec_b64 {sr(S_T,2)}, vcc
    ds_write_b32 v{T0+3}, v{T0+4} offset:{L_HIST}
    s_mov_b64 exec, {sr(S_T,2)}""")

def kernel(opt):
    a = Asm(); D = opt.D
    st = lambda n: stamp(a, opt, n)
    a(f"""{KERN}:
    s_cmp_ge_u32 s2, 256
    s_cbranch_scc1 END""")
    if opt.probe: a("s_mov_b32 s93, 0\ns_memrealtime s[98:99]\ns_waitcnt lgkmcnt(0)\ns_mov_b32 s92, s98")
    if opt.stamps:
        for k in range(32): a(f"s_mov_b32 s{S_ST+k}, 0")
    st('start')
    a(f"""s_load_dwordx16 {sr(S_IN,16)}, s[0:1], 0
    s_load_dwordx2 {sr(S_WS,2)}, s[0:1], 80
    s_load_dwordx2 {sr(S_X,2)}, s[0:1], 0
    s_load_dwordx2 {sr(S_OUT,2)}, s[0:1], 64
    ; wave 7 of every workgroup takes 8 lines; the 32 workgroups with equal id % 8 cover 32 KiB
    s_getpc_b64 s[6:7]
CODE_HERE:
    v_lshrrev_b32 v{T0}, 6, v0
    s_lshr_b32 s5, s2, 3
    s_lshl_b32 s4, s5, 10
    v_readfirstlane_b32 s{S_WAVE}, v{T0}
    v_and_b32 v{T0+2}, 7, v0
    v_lshl_add_u32 v{T0+2}, v{T0+2}, 7, s4
    v_min_u32 v{T0+2}, END-CODE_HERE, v{T0+2}
    s_cmp_lg_u32 s{S_WAVE}, 7
    s_cbranch_scc1 NO_CODE_TOUCH
    global_load_dword v{V_DUMMY}, v{T0+2}, s[6:7]
NO_CODE_TOUCH:
    s_mul_i32 s3, s2, {EP * 4}
    v_lshl_add_u32 v{T0}, v0, 4, s3
    v_and_b32 v{T0+2}, 63, v0
    v_lshlrev_b32 v{V_L16}, 4, v{T0+2}
    v_lshlrev_b32 v{CT+5}, 2, v{T0+2}
    v_lshlrev_b32 v{T0+3}, 4, v0
    v_mov_b32 v{T0+4}, 0
    v_mov_b32 v{T0+5}, 0
    v_pk_mov_b32 {vr(ACC,2)}, {vr(T0+4,2)}, {vr(T0+4,2)}
    v_pk_mov_b32 {vr(ACC+2,2)}, {vr(T0+4,2)}, {vr(T0+4,2)}
    ds_write_b128 v{T0+3}, {vr(ACC,4)}
    s_cmp_ge_u32 s{S_WAVE}, 5
    s_waitcnt lgkmcnt(0)
    s_cbranch_scc1 NO_EDGES
    s_cmp_ge_u32 s2, {NP}
    s_cbranch_scc1 AUX_LOAD
    s_setprio 1
    global_load_dwordx4 {vr(D_,4)}, v{T0}, {sr(DST,2)}
    global_load_dwordx4 {vr(S_,4)}, v{T0}, {sr(SRC,2)}
NO_EDGES:""")
    if opt.wsoff: a(f"s_add_u32 s{S_WS}, s{S_WS}, {opt.wsoff << 20}\ns_addc_u32 s{S_WS+1}, s{S_WS+1}, 0")
    load_epoch(a)
    st('kernargs')
    for k in range(4): a(f"global_load_dword v{CT+k}, v{CT+5}, {sr(WRAD,2)} offset:{k*256}")
    a(f"""v_and_b32 v{CT+5}, 0x7f, v{CT+5}
    global_load_dword v{CT+4}, v{CT+5}, {sr(CG,2)}
    s_and_b32 s3, s2, 0x87
    s_cmp_eq_u32 s3, 0
    s_cselect_b32 s3, 128, 0
    s_add_u32 s3, s3, DEAL_TABLE-CODE_HERE
    v_lshl_add_u32 v{V_DEAL}, v{T0+2}, 1, s3
    global_load_ushort v{V_DEAL}, v{V_DEAL}, s[6:7]
    s_mov_b32 s{S_X+2}, {N * 1024}
    s_mov_b32 s{S_X+3}, 0x20000""")
    x_touch(a, opt, 10, False)
    a(f"v_lshlrev_b32 v{T0+1}, 1, v{T0}")
    if opt.yearly == 1:
        a(f"""s_cmp_ge_u32 s{S_WAVE}, 5
        s_cbranch_scc1 NO_YF
        s_cmp_ge_u32 s2, {NP}
        s_cbranch_scc1 NO_YF""")
        load_yf(a)
        a("NO_YF:")
    a(f"""
    s_and_b32 s4, s2, 7
    s_lshl_b32 s4, s4, 5
    s_lshr_b32 s5, s2, 3
    s_or_b32 s{S_BETA}, s4, s5
    v_mov_b32 v{V_ONE}, 1
    s_mov_b32 s{S_WS+2}, {WS_END if not opt.stamps else WS_STAMP + 0x80000}
    s_mov_b32 s{S_WS+3}, 0x20000
    s_mov_b32 s{S_OUT+2}, {N * 1024}
    s_mov_b32 s{S_OUT+3}, 0x20000
    s_mov_b32 s{S_MASK}, 0xfffffc00
    s_mov_b32 s{S_W0}, 0
    s_mov_b32 s{S_L2E}, 0xbfb8aa3b
    s_mov_b32 s{S_L2E+1}, 0xbfb8aa3b
    s_mov_b32 s{S_SPIN}, {1 << 21}
    v_and_b32 v{V_GID}, 0xff, v0
    s_lshl_b32 s3, s{S_BETA}, 4
    s_add_u32 s3, s3, {WS_TAB}
    v_lshl_add_u32 v{V_POS}, v{V_GID}, 12, s3
    v_mul_u32_u24 v{V_GID}, {EP}, v{V_GID}
    v_mul_u32_u24 v{LJ+10}, 0x8000, v{V_L16}
    v_lshl_add_u32 v{LJ+10}, v{T0+2}, 3, v{LJ+10}    ; lane * 8 * 0x10001""")
    for k in range(4, 48, 2): a(f"v_pk_mov_b32 {vr(ACC+k,2)}, {vr(T0+4,2)}, {vr(T0+4,2)}")
    a("s_barrier")
    phase1(a, opt)
    a(f"""s_cmp_ge_u32 s{S_WAVE}, 4
    s_cbranch_scc1 TOTALS
    v_and_b32 v{T0+5}, 0x7ff, v{RECN}
    v_bfe_u32 v{V_LEN}, v{RECN}, 11, 11
    v_add_u32 v{V_GID}, v{V_GID}, v{T0+5}
    v_mov_b32 v{V_PRE}, v{V_LEN}""")
    scan64(a, V_PRE)
    a(f"""s_lshl_b32 s3, s{S_WAVE}, 2
    v_mov_b32 v{T0+2}, s3
    v_add_u32 v{T0+3}, 1, v{V_PRE}
    v_sub_u32 v{V_PRE}, v{V_PRE}, v{V_LEN}
    s_mov_b32 exec_lo, 0
    s_mov_b32 exec_hi, 0x80000000
    ds_write_b32 v{T0+2}, v{T0+3} offset:{L_WT}
    s_mov_b64 exec, -1
TOTALS:
    v_mov_b32 v{T0+2}, 0
TOTALS_SPIN:
    ds_read_b128 {vr(XR,4)}, v{T0+2} offset:{L_WT}
    s_waitcnt lgkmcnt(0)""")
    for k in range(4): a(f"v_readfirstlane_b32 s{4+k}, v{XR+k}")
    a(f"""s_min_u32 s3, s4, s5
    s_min_u32 s8, s6, s7
    s_min_u32 s3, s3, s8
    s_cmp_eq_u32 s3, 0
    s_cbranch_scc0 TOTALS_OK
    s_sub_u32 s{S_SPIN}, s{S_SPIN}, 1
    s_cbranch_scc0 TOTALS_SPIN
    s_endpgm
TOTALS_OK:
    s_add_u32 s5, s5, s4
    s_add_u32 s6, s6, s5
    s_add_u32 s7, s7, s6
    s_sub_u32 s{S_N}, s7, 4
    s_cmp_eq_u32 s{S_WAVE}, 1
    s_cselect_b32 s3, s4, 0
    s_cmp_eq_u32 s{S_WAVE}, 2
    s_cselect_b32 s3, s5, s3
    s_cmp_eq_u32 s{S_WAVE}, 3
    s_cselect_b32 s3, s6, s3
    s_sub_u32 s3, s3, s{S_WAVE}
    v_add_u32 v{V_PRE}, s3, v{V_PRE}
    s_cmp_lg_u32 s{S_WAVE}, 4
    s_cbranch_scc1 EPOCH_DONE
    s_cmp_lg_u32 s2, 0
    s_cbranch_scc1 EPOCH_DONE
    v_mov_b32 v{T0+4}, s{S_NLO}
    v_mov_b32 v{T0+2}, {WS_EPOCH}
    s_mov_b64 exec, 1
    global_store_dword v{T0+2}, v{T0+4}, {sr(S_WS,2)} sc0 sc1
    s_mov_b64 exec, -1
EPOCH_DONE:""")
    x_touch(a, opt, 3, False)
    st('prefix done')
    a(f"""ROUND:
    v_mov_b32 v{T0}, 0
    v_subrev_u32 v{T0+1}, s{S_W0}, v{V_PRE}
    v_mov_b32 v{T0+2}, v{V_GID}
    s_mov_b32 s3, {CAP}
    s_cmp_gt_u32 s{S_N}, {CAP}
    s_cbranch_scc1 EXPAND
    v_lshlrev_b32 v{T0+3}, 2, v{V_PRE}""")
    for j in range(16):
        a(f"v_cmpx_lt_u32 vcc, {j}, v{V_LEN}")
        if j % 2 == 0 and j >= 6: a("s_cbranch_execz EXPAND_DONE")
        a(f"ds_write_b32 v{T0+3}, v{T0+2} offset:{L_SENT + 4*j}\nv_add_u32 v{T0+2}, 1, v{T0+2}")
    a(f"""v_mov_b32 v{T0}, 16
    v_add_u32 v{T0+1}, 16, v{T0+1}
EXPAND:
    v_cmp_lt_u32 vcc, v{T0}, v{V_LEN}
    s_and_b64 exec, exec, vcc
    s_cbranch_execz EXPAND_DONE
    v_cmp_gt_u32 vcc, s3, v{T0+1}
    v_lshlrev_b32 v{T0+3}, 2, v{T0+1}
    s_and_saveexec_b64 {sr(S_T,2)}, vcc
    ds_write_b32 v{T0+3}, v{T0+2} offset:{L_SENT}
    s_mov_b64 exec, {sr(S_T,2)}
    v_add_u32 v{T0}, 1, v{T0}
    v_add_u32 v{T0+1}, 1, v{T0+1}
    v_add_u32 v{T0+2}, 1, v{T0+2}
    s_branch EXPAND
EXPAND_DONE:
    s_mov_b64 exec, -1
    s_sub_u32 s{S_NWIN}, s{S_N}, s{S_W0}
    s_min_u32 s{S_NWIN}, s{S_NWIN}, {CAP}
    v_lshlrev_b32 v{T0}, 2, v0""")
    for i in range(3):
        a(f"""v_add_u32 v{T0+1}, {512*i}, v0
              v_cmp_gt_u32 {sr(S_M+2*i,2)}, s{S_NWIN}, v{T0+1}""")
    st('list built')
    a("s_waitcnt lgkmcnt(0)\ns_barrier")
    st('list barrier')
    G = XR
    KP = TP
    for i in range(3): a(f"ds_read_b32 v{G+i}, v{T0} offset:{L_SENT + 2048*i}")
    a(f"""s_mov_b32 s{S_T+2}, 13421                         ; 32 * 2^32 / (10000 * 1024)
    s_waitcnt lgkmcnt(0)""")
    for i in range(3):
        a(f"v_lshlrev_b32 v{G+4+i}, 3, v{G+i}\nv_lshlrev_b32 v{G+i}, 4, v{G+i}")
    def key_loads(tag):
        a(f"""s_mov_b64 exec, {sr(S_M+4,2)}
        s_cbranch_execz SKIP3{tag}
        buffer_load_dwordx2 {vr(KP+4,2)}, v{G+6}, {sr(S_WS,4)}, 0 offen sc1
        SKIP3{tag}:""")
        for i in range(2):
            a(f"s_mov_b64 exec, {sr(S_M+2*i,2)}\nbuffer_load_dwordx2 {vr(KP+2*i,2)}, v{G+4+i}, {sr(S_WS,4)}, 0 offen sc1")
        a("s_mov_b64 exec, -1")
    key_loads("")
    x_touch(a, opt, 7)
    H = G + 20
    a(f"""v_lshrrev_b32 v{T0}, 4, v{V_L16}              ; lane
    s_cmp_lg_u32 s{S_W0}, 0
    s_cbranch_scc1 KEY_WAIT
    s_cmp_ge_u32 s{S_WAVE}, 4
    s_cbranch_scc1 DEG_DONE""")
    for j in range(NLN):
        t = T0 + 1 + j % 2
        if j < 5: a(f"v_bfe_u32 v{t}, v{RECN+2}, {6*j}, 6")
        elif j == 5: a(f"v_alignbit_b32 v{t}, v{RECN+3}, v{RECN+2}, 30\nv_and_b32 v{t}, 63, v{t}")
        else: a(f"v_bfe_u32 v{t}, v{RECN+3}, {6*j-32}, 6")
        a(f"""v_lshlrev_b32 v{t}, 2, v{t}
              v_cmpx_lt_u32 vcc, {j}, v{V_LEN}
              ds_add_u32 v{t}, v{V_ONE} offset:{L_DEG}""")
    a(f"""s_mov_b64 exec, -1
DEG_DONE:
    v_lshlrev_b32 v{T0+1}, 2, v{T0}
    v_cmp_gt_u32 {sr(S_T,2)}, 40, v{T0}
    v_sub_u32 v{T0+2}, 63, v{T0}
    s_mul_i32 s10, s{S_WAVE}, 5
    s_waitcnt lgkmcnt(0)
    s_barrier
    ds_read_b32 v{H}, v{T0+1} offset:{L_DEG}
    v_add_u32 v{T0+3}, s10, v{T0}
    v_lshlrev_b32 v{T0+4}, 2, v{T0+3}
    s_waitcnt lgkmcnt(0)
    v_lshl_or_b32 v{H}, v{H}, 6, v{T0+2}
    v_cndmask_b32 v{H}, 0, v{H}, {sr(S_T,2)}
    s_nop 0""")
    for k in range(5):
        a(f"v_readlane_b32 s{S_NODE+k}, v{H}, s10")
        if k < 4: a("s_add_u32 s10, s10, 1")
    for k in range(5): a(f"v_cmp_lt_u32 {sr(S_K+2*k,2)}, s{S_NODE+k}, v{H}")
    for k in range(5): a(f"s_bcnt1_i32_b64 s{S_NODE+k}, {sr(S_K+2*k,2)}")
    for k in range(5): a(f"v_readlane_b32 s{S_NODE+k}, v{V_DEAL}, s{S_NODE+k}")
    a("s_nop 0")
    for k in range(5): a(f"v_writelane_b32 v{T0+1}, s{S_NODE+k}, {k}")
    a(f"""v_lshrrev_b32 v{T0+2}, 11, v{T0+1}
    v_bfe_u32 v{T0+5}, v{T0+1}, 8, 3
    v_lshlrev_b32 v{T0+2}, 7, v{T0+2}
    v_and_b32 v{T0+1}, 0xff, v{T0+1}
    v_lshl_or_b32 v{T0+2}, v{T0+5}, 19, v{T0+2}
    s_mov_b64 exec, 0x1f
    ds_write_b32 v{T0+1}, v{T0+3} offset:{L_INV}
    ds_write_b32 v{T0+4}, v{T0+2} offset:{L_MAP}
    s_mov_b64 exec, -1
    s_waitcnt lgkmcnt(0)
    s_barrier""")
    st('dealt')
    a(f"""KEY_WAIT:
    s_lshl_b32 s3, s{S_WAVE}, 10
    s_add_u32 s3, s3, {L_UREC}
    s_mov_b32 s9, {WS_REC}""")
    if ",7:" in "," + opt.xt:
        a(f"s_cmp_lg_u32 s{S_W0}, 0\ns_cbranch_scc1 KEY_WAIT0\ns_waitcnt vmcnt(1)\ns_branch KEY_CHECK")
    a("KEY_WAIT0:\ns_waitcnt vmcnt(0)\nKEY_CHECK:")
    for i in range(3): a(f"v_cmp_ne_u32 {sr(S_K+2*i,2)}, s{S_NLO}, v{KP+2*i+1}")
    for i in range(3): a(f"v_and_b32 v{G+8+i}, 63, v{KP+2*i}\nv_lshlrev_b32 v{G+8+i}, 2, v{G+8+i}")
    for i in range(3): a(f"s_and_b64 {sr(S_K+2*i,2)}, {sr(S_K+2*i,2)}, {sr(S_M+2*i,2)}")
    a(f"""s_or_b64 {sr(S_K,2)}, {sr(S_K,2)}, {sr(S_K+2,2)}
    s_or_b64 {sr(S_K,2)}, {sr(S_K,2)}, {sr(S_K+4,2)}
    s_cbranch_scc0 KEYS_OK
    s_sub_u32 s{S_SPIN}, s{S_SPIN}, 1
    s_cbranch_scc1 END""")
    key_loads("R")
    a("s_branch KEY_WAIT0\nKEYS_OK:")
    st('keys arrived')
    def rec_dma(at):
        for i in (2, 0, 1):
            if opt.recat[i] != at: continue
            a(f"s_add_u32 m0, s3, {i*8192}\ns_mov_b64 exec, {sr(S_M+2*i,2)}")
            if i == 2: a("s_cbranch_execz SKIP3D")
            a(f"buffer_load_dwordx4 v{G+i}, {sr(S_WS,4)}, s9 offen sc1 lds")
            if i == 2: a("SKIP3D:")
        if at in opt.recat: a("s_mov_b64 exec, -1")
    for i in range(3): a(f"ds_read_b32 v{G+8+i}, v{G+8+i} offset:{L_MAP}")
    rec_dma(0)
    for i in range(3):
        a(f"""v_mul_hi_u32 v{G+12+i}, s{S_T+2}, v{KP+2*i}
              v_add_u32 v{T0+1}, {512*i}, v0
              v_lshlrev_b32 v{T0+1}, 21, v{T0+1}
              v_lshrrev_b32 v{G+16+i}, 10, v{KP+2*i}
              v_lshl_or_b32 v{G+16+i}, v{G+16+i}, 7, v{T0+1}""")
    for i in range(3):
        a(f"""s_waitcnt lgkmcnt({2-i})
              v_lshrrev_b32 v{T0+1}, 16, v{G+8+i}
              v_and_b32 v{G+8+i}, 0x380, v{G+8+i}
              v_or_b32 v{G+16+i}, v{G+16+i}, v{T0+1}
              v_lshl_add_u32 v{G+8+i}, v{G+12+i}, 2, v{G+8+i}""")
    for i in range(3):
        a(f"s_mov_b64 exec, {sr(S_M+2*i,2)}\nds_add_rtn_u32 v{G+12+i}, v{G+8+i}, v{V_ONE} offset:{L_HIST}")
    a("s_mov_b64 exec, -1")
    rec_dma(1)
    a(f"""s_lshl_b32 s10, s{S_WAVE}, 3
    s_add_u32 s11, s10, 8
    s_and_b32 s11, s11, 63
    s_waitcnt lgkmcnt(0)
    s_barrier""")
    st('hist done')
    a(f"ds_read_b128 {vr(H,4)}, v{V_L16} offset:{L_HIST}")
    rec_dma(2)
    x_touch(a, opt, 8)
    a("s_waitcnt lgkmcnt(0)")
    scan256(a, H, H + 4)
    a(f"""ds_write_b128 v{V_L16}, {vr(H+4,4)} offset:{L_BASE}
    v_readlane_b32 s{S_START}, v{H+4}, s10
    v_readlane_b32 s{S_END}, v{H+4}, s11""")
    for i in range(3): a(f"ds_read_b32 v{G+8+i}, v{G+8+i} offset:{L_BASE}")
    a(f"""s_cmp_eq_u32 s{S_WAVE}, 7
    s_cselect_b32 s{S_END}, s{S_NWIN}, s{S_END}
    v_add_u32 v{V_POS}, s{S_START}, v{T0}
    v_lshlrev_b32 v{V_AENT}, 2, v{V_POS}
    v_add_u32 v{V_AENT}, {L_SENT}, v{V_AENT}
    s_sub_u32 s11, s{S_END}, s{S_START}
    s_max_u32 s10, s11, {D}
    s_add_u32 s10, s10, {opt.gran - 1 - D}
    s_and_b32 s{S_REM}, s10, {-opt.gran}
    s_max_u32 s10, s11, s{S_REM}
    s_sub_u32 s{S_REMB}, s10, s{S_REM}""")
    for i in range(3):
        a(f"""s_waitcnt lgkmcnt({2 if i else 2})
              v_add_lshl_u32 v{G+8+i}, v{G+8+i}, v{G+12+i}, 2
              s_mov_b64 exec, {sr(S_M+2*i,2)}
              ds_write_b32 v{G+8+i}, v{G+16+i} offset:{L_SENT}
              s_mov_b64 exec, -1""")
    a("s_waitcnt lgkmcnt(0)")
    if not opt.xpre: a("s_waitcnt vmcnt(0)")
    a("s_barrier")
    st('sorted')
    if opt.stamps: a(f"s_memtime s[100:101]\ns_waitcnt lgkmcnt(0)\ns_mov_b32 s{S_ST+30}, s100")
    if opt.prio == 1: a(f"s_cmp_ge_u32 s{S_WAVE}, 4\ns_cbranch_scc0 PRIO_SET\ns_setprio 1\nPRIO_SET:")
    meta_read_entry(a)
    a(f"""s_mov_b32 s3, 0
    s_and_b32 s{S_WM}, s{S_WAVE}, 3
    s_lshl_b32 s{S_WM}, s{S_WM}, 13
    s_add_u32 s{S_WM}, s{S_WM}, {WS_WMIX}
    s_add_u32 s{S_WM+1}, s{S_WM}, 4096""")
    for k in range(8): a(f"v_mov_b32 v{RR+k}, 0")
    a("s_waitcnt lgkmcnt(0)")
    meta_fix_entry(a, False)
    a("s_nop 0")
    def first_rows(lo, hi):
        for e in range(lo, hi):
            a(f"""v_readlane_b32 s{S_K+e}, v{ENT}, {e}
                  s_and_b32 s{S_OFF}, s{S_K+e}, s{S_MASK}
                  buffer_load_dwordx4 {vr(XR+4*e,4)}, v{V_L16}, {sr(S_X,4)}, s{S_OFF} offen""")
    if opt.xpre:
        first_rows(0, opt.xpre)
        if ",8:" in "," + opt.xt and 2 not in opt.recat:
            a(f"s_cmp_lg_u32 s{S_W0}, 0\ns_cbranch_scc1 REC_WAIT\ns_waitcnt vmcnt({opt.xpre + 1})\ns_branch REC_IN\nREC_WAIT:")
        a(f"s_waitcnt vmcnt({opt.xpre})\nREC_IN:")
        st('recs landed')
        a("s_barrier")
    meta_read_rec(a)
    first_rows(opt.xpre, D)
    a(f"v_mov_b32 v{KEY}, v{ENT}")
    a(f"""s_waitcnt lgkmcnt(0)
    v_mov_b32 v{EF}, v{RECN+2}
    v_mov_b32 v{EF+1}, v{RECN+3}""")
    for i in range(4): a(w_mfma(i))
    a(p_mfma(0, 0)); a(p_mfma(0, 1)); a(p_mfma(1, 0))
    a("s_nop 1")
    for m in range(4): w_cvt(a, m)
    for odd in range(2):
        u, r = act_regs(0, odd)
        for h in range(2): a(act_addr(TT + 2 * odd + h, u + h))
        for h in range(2): a(act_read(r + h, TT + 2 * odd + h))
    a(f"s_waitcnt vmcnt({D-1})")
    st('first row')
    a(t_mfma(0, 0)); a(t_mfma(0, 1))
    body(a, opt)
    a(f"""MAIN_DONE:
    s_add_u32 s{S_W0}, s{S_W0}, {CAP}
    s_cmp_ge_u32 s{S_W0}, s{S_N}
    s_cbranch_scc1 ALL_DONE
    s_waitcnt vmcnt(0) lgkmcnt(0)""")
    zero_hist(a)
    a("s_waitcnt lgkmcnt(0)\ns_barrier\ns_branch ROUND\nALL_DONE:")
    st('main done')
    if opt.stamps: a(f"s_memtime s[100:101]\ns_waitcnt lgkmcnt(0)\ns_sub_u32 s{S_ST+30}, s100, s{S_ST+30}")
    PK = WPK; VOUT = UU
    a(f"""v_lshrrev_b32 v{T0+3}, 8, v{V_L16}            ; lane >> 4
    s_lshr_b32 s{S_T}, s{S_WAVE}, 2                   ; half
    s_mul_i32 s{S_T+1}, s{S_T}, 80
    v_mul_u32_u24 v{T0+1}, 20, v{T0+3}
    v_add_u32 v{T0+1}, s{S_T+1}, v{T0+1}""")
    for t in range(5): a(f"ds_read_b32 v{VOUT+t}, v{T0+1} offset:{L_INV + 4*t}")
    for sl in range(5):
        for o in range(4): a(f"v_cvt_pk_bf16_f32 v{PK+4*sl+o}, v{ACC+8*sl+o}, v{ACC+8*sl+4+o}")
    a(f"""s_mul_i32 s{S_T+1}, s{S_WAVE}, {4 * AGG_RS}
    s_add_u32 s{S_T+1}, s{S_T+1}, {L_AGG}
    v_lshrrev_b32 v{T0+4}, 2, v{V_L16}
    v_add_u32 v{T0+4}, s{S_T+1}, v{T0+4}
    v_bfe_u32 v{T0+2}, v{V_L16}, 4, 4                 ; lane & 15
    s_mul_i32 s{S_T+1}, s{S_T}, {16 * AGG_RS}
    s_add_u32 s{S_T+1}, s{S_T+1}, {L_AGG}
    v_mul_u32_u24 v{T0}, {AGG_RS}, v{T0+2}
    v_lshl_add_u32 v{T0}, v{T0+3}, 4, v{T0}
    v_add_u32 v{T0}, s{S_T+1}, v{T0}
    s_lshl_b32 s{S_T}, s{S_BETA}, 10
    s_and_b32 s{S_T+1}, s{S_WAVE}, 3
    s_lshl_b32 s{S_T+1}, s{S_T+1}, 8
    s_add_u32 s{S_T}, s{S_T}, s{S_T+1}
    v_lshl_add_u32 v{T0+2}, v{T0+2}, 4, s{S_T}
    s_waitcnt lgkmcnt(0)""")
    for t in range(5): a(f"v_lshl_add_u32 v{VOUT+t}, v{VOUT+t}, 18, v{T0+2}")
    a("s_barrier")
    st('all main done')
    AF = XR
    def wr(sl):
        for o in range(4): a(f"ds_write_b32 v{T0+4}, v{PK+4*sl+o} offset:{(32*sl + o)*AGG_RS}")
    def rd(t):
        for ks in range(4): a(f"ds_read_b128 {vr(AF+16*(t%2)+4*ks,4)}, v{T0} offset:{t*32*AGG_RS + ks*64}")
    def mm(t, waits, writes=None):
        for ks in range(4):
            if waits[ks] is not None: a(f"s_waitcnt lgkmcnt({waits[ks]})")
            for j in range(2):
                d = ACC + 8 * t + 4 * j
                a(f"v_mfma_f32_16x16x32_bf16 {vr(d,4)}, {vr(AF+16*(t%2)+4*ks,4)}, {vr(WMIX+16*j+4*ks,4)}, " + ("0" if ks == 0 else vr(d, 4)))
            if writes:
                s0, lo, hi = writes[ks]
                for n in range(lo, hi): a(f"ds_write_b32 v{T0+4}, v{PK+4*s0+n} offset:{(32*(s0 + n // 4) + n % 4)*AGG_RS}")
    def pack_store(t):
        d = ACC + 8 * t; p = RR + 4 * (t % 2)
        for j in range(4): a(f"v_cvt_pk_bf16_f32 v{p+j}, v{d+2*j}, v{d+2*j+1}")
        a(f"buffer_store_dwordx4 {vr(p,4)}, v{VOUT+t}, {sr(S_OUT,4)}, 0 offen {opt.outst if t < 5 - opt.nplain else ''}")
    wr(0); wr(1)
    a("s_waitcnt vmcnt(0) lgkmcnt(0)\ns_barrier")
    st('agg in LDS')
    rd(0); rd(1)
    mm(0, [7, 9, 11, 13], [(2, 0, 3), (2, 3, 6), (2, 6, 9), (2, 9, 12)])
    a("s_waitcnt lgkmcnt(0)\ns_barrier")
    rd(2)
    mm(1, [None] * 4); pack_store(0)
    rd(3)
    mm(2, [7, 6, 5, 4]); pack_store(1)
    rd(4)
    mm(3, [7, 6, 5, 4]); pack_store(2)
    mm(4, [3, 2, 1, 0]); pack_store(3)
    a("s_nop 3")
    pack_store(4)
    st('end')
    if opt.probe:
        a(f"""s_cmp_eq_u32 s93, 0
        s_cselect_b32 s93, s92, s93
        s_sub_u32 s93, s93, s92
        s_mul_i32 s93, s93, 4
        s_add_u32 s92, s92, s93
        s_add_u32 s92, s92, 6000
        HOLD_SPIN:
        s_memrealtime s[98:99]
        s_waitcnt lgkmcnt(0)
        s_sub_u32 s98, s98, s92
        s_cmp_lt_i32 s98, 0
        s_cbranch_scc1 HOLD_SPIN""")
    if opt.stamps:
        a("s_waitcnt vmcnt(0)")
        st('stores done 2')
        a(f"""s_lshl_b32 s10, s2, 3
        s_add_u32 s10, s10, s{S_WAVE}
        s_lshl_b32 s10, s10, 7
        s_add_u32 s10, s10, {WS_STAMP}
        v_mov_b32 v{T0}, s10
        s_sub_u32 s{S_ST+31}, s{S_END}, s{S_START}
        s_sub_u32 s{S_ST+29}, {1 << 21}, s{S_SPIN}""")
        for k in range(32): a(f"v_mov_b32 v{XR+k}, s{S_ST+k}")
        for k in range(8): a(f"buffer_store_dwordx4 {vr(XR+4*k,4)}, v{T0}, {sr(S_WS,4)}, 0 offen offset:{16*k}")
    a("END:\ns_endpgm")
    a(".p2align 6\n.type DEAL_TABLE,@object\nDEAL_TABLE:\n.short " + ", ".join(map(str, deal_bytes())) + "\n.size DEAL_TABLE, 256")
    return a.text()

def generate(opt):
    here = os.path.dirname(os.path.abspath(__file__))
    out = open(here + "/header.txt").read()
    out += f"; @launch grid=(256,1,1) block=(512,1,1) lds={LDS_BYTES}\n"
    out += f'.amdgcn_target "amdgcn-amd-amdhsa--gfx950"\n.text\n.globl {KERN}\n.p2align 8\n.type {KERN},@function\n'
    out += kernel(opt)
    out += f""".section .rodata,"a"
.p2align 6
.amdhsa_kernel {KERN}
  .amdhsa_next_free_vgpr {NVGPR}
  .amdhsa_next_free_sgpr {NSGPR if opt.stamps or opt.probe else 66}
  .amdhsa_accum_offset {(NVGPR + 3) // 4 * 4}
  .amdhsa_group_segment_fixed_size 0
  .amdhsa_kernarg_size 88
  .amdhsa_user_sgpr_count 2
  .amdhsa_user_sgpr_kernarg_segment_ptr 1
  .amdhsa_system_sgpr_workgroup_id_x 1
  .amdhsa_float_denorm_mode_32 3
.end_amdhsa_kernel
"""
    return out

def options(argv):
    p = argparse.ArgumentParser()
    p.add_argument("-o", default="/code/" + NAME + ".s")
    p.add_argument("--stamps", action="store_true")
    p.add_argument("--probe", default="")
    p.add_argument("--D", type=int, default=6)
    p.add_argument("--prio", type=int, default=0)
    p.add_argument("--nplain", type=int, default=0)
    p.add_argument("--yearly", type=int, default=0)
    p.add_argument("--recat", type=lambda t: tuple(map(int, t.split(","))), default=(0, 1, 0))
    p.add_argument("--only", default="")
    p.add_argument("--wsoff", type=int, default=0)
    p.add_argument("--gran", type=int, default=4)
    p.add_argument("--late", type=int, default=62)
    p.add_argument("--xpre", type=int, default=2)
    p.add_argument("--xt", default="9:0:8,6:8:16,3:16:24,8:24:32")
    p.add_argument("--lsplit", type=int, default=5)
    p.add_argument("--k1st", default="sc0 sc1")
    p.add_argument("--outst", default="sc0 sc1")
    return p.parse_args(argv)

if __name__ == "__main__":
    opt = options(sys.argv[1:])
    open(opt.o, "w").write(generate(opt))
    if opt.stamps: open(opt.o + ".names", "w").write(repr(STAMPS))
    import subprocess
    here = os.path.dirname(os.path.abspath(__file__))
    r = subprocess.run([sys.executable, here + "/hazards.py", opt.o], capture_output=True, text=True).stdout
    if " 0 finding" not in r: print(r)
    r = subprocess.run([sys.executable, here + "/../cdna_unwritten_srd_check.py", opt.o], capture_output=True, text=True)
    if r.returncode: print(r.stdout, r.stderr)
```

```python
import sys, argparse, os

NAME = "gather_scatter__tensor_product_equiv_tfn__graph"
KERN = NAME + "_kernel"
N, E, C = 10000, 320000, 128
NP, EP = 250, 1280
WS_KEY = 0
WS_REC = 0x280000
WS_WMIX = 0x771000
WS_TAB = 0x780000
WS_EPOCH = WS_TAB + 256 * 4096
WS_END = WS_EPOCH + 128
WS_STAMP = 0x900000
CAP = 1472

class Asm:
    def __init__(self): self.l = []
    def __call__(self, s):
        for line in s.strip("\n").split("\n"):
            line = line.strip()
            if not line: continue
            self.l.append(line if line.endswith(":") else "    " + line)
    def text(self): return "\n".join(self.l) + "\n"

def vr(a, n=1): return f"v{a}" if n == 1 else f"v[{a}:{a+n-1}]"
def sr(a, n=1): return f"s{a}" if n == 1 else f"s[{a}:{a+n-1}]"

SCAN_STEPS = ["row_shr:1 row_mask:0xf bank_mask:0xf bound_ctrl:0", "row_shr:2 row_mask:0xf bank_mask:0xf bound_ctrl:0",
              "row_shr:4 row_mask:0xf bank_mask:0xf bound_ctrl:0", "row_shr:8 row_mask:0xf bank_mask:0xf bound_ctrl:0",
              "row_bcast:15 row_mask:0xa bank_mask:0xf", "row_bcast:31 row_mask:0xc bank_mask:0xf"]
def scan64(a, *regs):
    for c in SCAN_STEPS:
        a("s_nop 1" if len(regs) == 1 else "s_nop 0")
        for v in regs: a(f"v_add_u32_dpp v{v}, v{v}, v{v} {c}")

L_HIST = 0; L_DEG = 1024; L_WT = 1280; L_CNT = L_WT + 16
L_INV = 1344; L_MAP = 1536; L_BASE = 1792
L_SENT = L_BASE + 1024
L_UREC = L_SENT + CAP * 4
L_CG = L_UREC + CAP * 16
L_LUT = 32768
L1_HIST = L_SENT; L1_LNS = L1_HIST + 1024; L1_BASE = L1_LNS + 2048; L1_SREC = L_UREC
L1_SKEY = L_LUT + 53 * 1024
assert L_CG + 128 <= L_LUT and L1_SREC + (EP + 64) * 16 <= L_CG and L1_BASE <= 8192
NLN = 10
L_AGG = L_LUT; AGG_RS = 288
LDS_BYTES = L_LUT + 131072

V_L16 = 1
V_LEN, V_PRE, V_GID = 2, 3, 4
V_AENT, V_POS = 5, 6
V_ONE = 15
V_DEAL = 174
V_DUMMY = 167
V_TOUCH = 166
T0 = 8
ACC = 16; XR = 64; TP = 96; UU = 112; RR = 128; TT = 136; WPK = 140; WTMP = 148
KEY = 164; ENT = 165; RECN = 168; EF = 172; CONST = 176; WMIX = 188
NVGPR = 220
PE, PO, CGB = CONST, CONST + 2, CONST + 4
LJ = 128
S_NODE = 4
S_X, S_WS, S_OUT = 12, 16, 20
S_BETA, S_WAVE, S_N, S_W0, S_NWIN, S_START, S_END, S_REM, S_REMB, S_OFF, S_MASK = range(24, 35)
S_SPIN = 35
S_M = 36
S_T = 42
S_K = 48
S_IN = 40
S_JOB, S_JCNT = 62, 63
S_NLO, S_NHI = 64, 65
S_WM = 10
S_L2E = 10
S_ST = 66
NSGPR = 102

STAMPS = []
def stamp(a, opt, name):
    if opt.probe == name: a("s_memrealtime s[98:99]\ns_waitcnt lgkmcnt(0)\ns_mov_b32 s93, s98")
    if not opt.stamps: return
    if opt.only and name not in opt.only.split(",") + ["start", "sorted", "main done", "stores done 2"]: return
    if name not in STAMPS: STAMPS.append(name)
    a(f"s_memrealtime s[98:99]\ns_waitcnt lgkmcnt(0)\ns_mov_b32 s{S_ST + STAMPS.index(name)}, s98")

S_RET = 6
def lut_sub(a):
    J, Ex, R, P = LJ, LJ + 8, LJ + 16, LJ + 24
    a(f"""LUT_SUB:
    s_lshl_b32 s3, s{S_JOB}, 25
    s_add_u32 s3, s3, 0x8000
    v_lshl_add_u32 v{J}, v{V_L16}, 15, s3""")
    for k in range(1, 8): a(f"v_add_u32 v{J+k}, 0x10000, v{J+k-1}")
    for k in range(0, 8, 2): a(f"v_pk_mul_f32 {vr(Ex+k,2)}, {vr(J+k,2)}, {sr(S_L2E,2)}")
    for k in range(8): a(f"v_exp_f32 v{Ex+k}, v{Ex+k}")
    a(f"s_lshl_b32 s3, s{S_JOB}, 10")
    for k in range(0, 8, 2): a(f"v_pk_add_f32 {vr(R+k,2)}, {vr(Ex+k,2)}, 1.0 op_sel_hi:[1,0]")
    for k in range(8): a(f"v_rcp_f32 v{R+k}, v{R+k}")
    a(f"v_add_u32 v{P+8}, s3, v{V_L16}")
    for k in range(0, 8, 2): a(f"v_pk_mul_f32 {vr(J+k,2)}, {vr(J+k,2)}, {vr(R+k,2)}")
    a(f"v_add_u32 v{P+9}, 0x10000, v{P+8}")
    for k in range(0, 8, 2): a(f"v_pk_mul_f32 {vr(Ex+k,2)}, {vr(J+k,2)}, {vr(Ex+k,2)} neg_lo:[1,0] neg_hi:[1,0]")
    for k in range(4): a(f"v_cvt_pk_bf16_f32 v{P+k}, v{J+2*k}, v{J+2*k+1}")
    for k in range(4): a(f"v_cvt_pk_bf16_f32 v{P+4+k}, v{Ex+2*k}, v{Ex+2*k+1}")
    a(f"""ds_write_b128 v{P+8}, {vr(P,4)} offset:{L_LUT}
    ds_write_b128 v{P+9}, {vr(P+4,4)} offset:{L_LUT}
    s_add_u32 s{S_JOB}, s{S_JOB}, 1
    s_sub_u32 s{S_JCNT}, s{S_JCNT}, 1
    s_cmp_lg_u32 s{S_JCNT}, 0
    s_cbranch_scc1 LUT_SUB
    s_setpc_b64 {sr(S_RET,2)}""")
def lut_jobs(a, count): a(f"s_mov_b32 s{S_JCNT}, {count}\ns_call_b64 {sr(S_RET,2)}, LUT_SUB")

def lut_plain(a, tag, region, last=None, cont=False, until=None):
    P = LJ
    for name, first, end, bias in (("L", 1, 24, 0x20000 - 0x800080), ("H", 34, 62, 0x20000)):
        if name != region: continue
        last = last or end
        if cont: a(f"s_cmp_gt_u32 s{S_JOB}, {last}\ns_cbranch_scc1 LUTP_END_{tag}")
        else: a(f"s_add_u32 s{S_JOB}, s{S_WAVE}, {first}")
        if name == "H" and not cont:
            for k in range(4): a(f"v_mov_b32 v{P+4+k}, 0x80008000")
        a(f"LUTP_{tag}{name}:")
        if until:
            a(f"""ds_read_b32 v{T0+2}, v{T0+3} offset:{L_CNT}
            s_waitcnt lgkmcnt(0)
            v_readfirstlane_b32 s3, v{T0+2}
            s_cmp_eq_u32 s3, 3
            s_cbranch_scc1 {until}""")
        a(f"""s_mul_i32 s3, s{S_JOB}, {512 * 0x10001}
        s_add_u32 s3, s3, {bias & 0xffffffff}
        v_add_u32 v{P}, s3, v{P+10}
        s_lshl_b32 s3, s{S_JOB}, 10
        v_add_u32 v{P+8}, s3, v{V_L16}""")
        for k in range(1, 4): a(f"v_add_u32 v{P+k}, {k * 0x20002}, v{P}")
        a(f"v_add_u32 v{P+9}, 0x10000, v{P+8}")
        if name == "L":
            for k in range(4): a(f"v_or_b32 v{P+4+k}, 0x80008000, v{P+k}")
        a(f"""ds_write_b128 v{P+8}, {vr(P,4)} offset:{L_LUT}
        ds_write_b128 v{P+9}, {vr(P+4,4)} offset:{L_LUT}
        s_add_u32 s{S_JOB}, s{S_JOB}, {5 if name == "L" else 4}
        s_cmp_le_u32 s{S_JOB}, {last}
        s_cbranch_scc1 LUTP_{tag}{name}
        LUTP_END_{tag}:""")

def tab_issue(a): a(f"buffer_load_dwordx4 {vr(RECN,4)}, v{V_POS}, {sr(S_WS,4)}, 0 offen sc1")
def tab_check(a, younger):
    if younger: a(f"s_waitcnt vmcnt({younger})\ns_branch CHECK_TAB")
    a(f"""POLL_TAB:
    s_waitcnt vmcnt(0)
    CHECK_TAB:
    v_lshrrev_b32 v{T0+3}, 22, v{RECN}
    v_cmp_ne_u32 vcc, s{S_NLO}, v{RECN+1}
    v_cmp_ne_u32 {sr(S_T,2)}, s{S_NHI}, v{T0+3}
    s_or_b64 vcc, vcc, {sr(S_T,2)}
    s_and_b64 exec, exec, vcc
    s_cbranch_execz POLLED_TAB
    s_sub_u32 s{S_SPIN}, s{S_SPIN}, 1
    s_cbranch_scc1 END""")
    tab_issue(a)
    a("s_branch POLL_TAB\nPOLLED_TAB:\ns_mov_b64 exec, -1")

def load_epoch(a):
    a(f"""s_add_u32 s4, s{S_WS}, {WS_EPOCH}
    s_addc_u32 s5, s{S_WS+1}, 0
    s_load_dwordx2 {sr(S_NLO,2)}, s[4:5], 0""")
def make_tag(a):
    a(f"""s_add_u32 s{S_NLO}, s{S_NLO}, 1
    s_and_b32 s{S_NHI}, s{S_NHI}, 0x3ff""")

def scan256(a, H_, O_):
    a(f"""v_add_u32 v{T0+2}, v{H_}, v{H_+1}
    v_add3_u32 v{T0+2}, v{T0+2}, v{H_+2}, v{H_+3}
    v_mov_b32 v{T0+3}, v{T0+2}""")
    scan64(a, T0 + 3)
    a(f"""v_sub_u32 v{O_}, v{T0+3}, v{T0+2}
    v_add_u32 v{O_+1}, v{O_}, v{H_}
    v_add_u32 v{O_+2}, v{O_+1}, v{H_+1}
    v_add_u32 v{O_+3}, v{O_+2}, v{H_+2}""")

SRC, DST, YY, EFP, WRAD, CG, WMX = S_IN + 2, S_IN + 4, S_IN + 6, S_IN + 8, S_IN + 10, S_IN + 12, S_IN + 14
D_, S_, Y_, F_, B_, R_, H_, O_, TB = 64, 68, 72, 80, 88, 92, 96, 100, 108
CT = WMIX
def const_sub(a):
    a(f"""CONST_SUB:
    ds_write_b32 v{CT+5}, v{CT+4} offset:{L_CG}
    v_lshrrev_b32 v{CT+5}, 3, v{V_L16}
    v_and_b32 v{CT+5}, 24, v{CT+5}
    s_mov_b32 s4, 0x05040100
    s_mov_b32 s5, 0x07060302""")
    for i in range(4): a(f"ds_read_b64_tr_b16 {vr(CGB+2*i,2)}, v{CT+5} offset:{L_CG + 32*i}")
    for u in range(2):
        a(f"v_perm_b32 v{PE+u}, v{CT+1+2*u}, v{CT+2*u}, s4\nv_perm_b32 v{PO+u}, v{CT+1+2*u}, v{CT+2*u}, s5")
    a(f"s_setpc_b64 {sr(S_RET,2)}")
def const_finish(a): a(f"s_call_b64 {sr(S_RET,2)}, CONST_SUB")

def load_yf(a):
    a(f"""global_load_dwordx4 {vr(Y_,4)}, v{T0+1}, {sr(YY,2)}
    global_load_dwordx4 {vr(Y_+4,4)}, v{T0+1}, {sr(YY,2)} offset:16
    global_load_dwordx4 {vr(F_,4)}, v{T0+1}, {sr(EFP,2)}
    global_load_dwordx4 {vr(F_+4,4)}, v{T0+1}, {sr(EFP,2)} offset:16""")

def phase1(a, opt):
    st = lambda n: stamp(a, opt, n)
    WS = sr(S_WS, 2); FL = opt.k1st
    a(f"""s_cmp_ge_u32 s{S_WAVE}, 5
    s_cbranch_scc1 HELP""")
    if opt.yearly == 2:
        a(f"s_cmp_ge_u32 s2, {NP}\ns_cbranch_scc1 NO_YF")
        load_yf(a)
        a("NO_YF:")
    lut_plain(a, "W0", "L", last=opt.lsplit)
    a(f"""s_cmp_ge_u32 s2, {NP}
    s_cbranch_scc1 AUX""")
    if not opt.yearly: load_yf(a)
    st('jobs A')
    early = ("," + opt.xt).count(",10:")
    a(f"s_waitcnt vmcnt({11 + early})")
    st('dst arrived')
    for k in range(4):
        a(f"""v_and_b32 v{B_+k}, 0xff, v{D_+k}
              v_lshlrev_b32 v{B_+k}, 2, v{B_+k}
              ds_add_rtn_u32 v{R_+k}, v{B_+k}, v{V_ONE} offset:{L1_HIST}""")
    a(f"s_waitcnt vmcnt({10 + early})")
    for k in range(4):
        a(f"""v_lshrrev_b32 v{D_+k}, 8, v{D_+k}
              v_lshl_or_b32 v{TB+2*k}, v{S_+k}, 10, v{D_+k}""")
    a(f"""s_mov_b32 s9, {L1_SKEY}
    s_waitcnt lgkmcnt(0)
    s_barrier
    ds_read_b128 {vr(H_,4)}, v{V_L16} offset:{L1_HIST}""")
    make_tag(a)
    for k in range(4): a(f"v_mov_b32 v{TB+2*k+1}, s{S_NLO}")
    a("v_mov_b32 v119, 0")
    for k in range(4):
        a(f"""v_cmp_gt_u32 vcc, {NLN}, v{R_+k}
              v_mul_u32_u24 v116, 6, v{R_+k}
              v_lshlrev_b32 v117, 1, v{B_+k}
              v_cndmask_b32 v118, 0, v{D_+k}, vcc
              v_lshlrev_b64 {vr(120+2*(k%2),2)}, v116, v[118:119]
              ds_or_b64 v117, {vr(120+2*(k%2),2)} offset:{L1_LNS}""")
    a("s_waitcnt lgkmcnt(4)")
    scan256(a, H_, O_)
    a(f"ds_write_b128 v{V_L16}, {vr(O_,4)} offset:{L1_BASE}")
    for k in range(4): a(f"ds_read_b32 v{H_+k}, v{B_+k} offset:{L1_BASE}")
    for k in range(4):
        a(f"""s_waitcnt lgkmcnt(3)
              v_add_u32 v{R_+k}, v{R_+k}, v{H_+k}
              v_lshl_add_u32 v{B_+k}, v{R_+k}, 3, s9
              ds_write_b64 v{B_+k}, {vr(TB+2*k,2)}""")
    for k in range(4):
        a(f"v_lshlrev_b32 v{R_+k}, 4, v{R_+k}\nv_add_u32 v{R_+k}, {L1_SREC}, v{R_+k}")
    a("s_waitcnt lgkmcnt(0)\ns_barrier")
    st('keys binned')
    a("s_waitcnt vmcnt(0)")
    x_touch(a, opt, 9, False)
    for k in range(4):
        a(f"ds_write2_b64 v{R_+k}, {vr(Y_+2*k,2)}, {vr(F_+2*k,2)} offset0:0 offset1:1")
    st('recs binned')
    a("BINNED:\ns_setprio 0")
    a(f"s_waitcnt lgkmcnt(0)\ns_barrier\nv_mov_b32 v{V_LEN}, 0")
    const_finish(a)
    lut_plain(a, "W", "L", cont=True)
    a(f"s_cmp_eq_u32 s{S_WAVE}, 4\ns_cbranch_scc1 WAVE4")
    lut_plain(a, "U", "H", last=opt.late)
    tab_issue(a)
    x_touch(a, opt, 6, False)
    st('tab issued')
    if opt.late < 62: lut_plain(a, "V", "H", cont=True)
    tab_check(a, ("," + opt.xt).count(",6:"))
    st('tab arrived')
    a("s_branch TAB_DONE")
    lut_sub(a)
    const_sub(a)
    a("HELP:")
    a(f"""s_sub_u32 s8, s{S_WAVE}, 5
    s_mul_i32 s4, s8, 3072
    s_cmp_eq_u32 s8, 1
    s_cselect_b32 s4, 4096, s4
    s_mul_i32 s3, s2, {EP * 8}
    s_add_u32 s3, s3, s4
    v_add_u32 v{T0}, s3, v{V_L16}
    s_add_u32 s4, s4, {L1_SKEY}
    v_add_u32 v{T0+1}, s4, v{V_L16}
    s_mul_i32 s4, s8, 7168
    s_mul_i32 s3, s2, {EP * 16}
    s_add_u32 s3, s3, s4
    s_add_u32 s3, s3, {WS_REC}
    v_add_u32 v{T0+4}, s3, v{V_L16}
    v_add_u32 v{T0+5}, s4, v{V_L16}
    s_lshl_b32 s3, s2, 12
    s_add_u32 s3, s3, {WS_TAB}
    v_add_u32 v117, s3, v{V_L16}
    s_waitcnt lgkmcnt(0)""")
    make_tag(a)
    st('help jobs')
    a(f"""s_barrier
    s_cmp_eq_u32 s{S_WAVE}, 6
    s_cbranch_scc1 ROW
    s_cmp_eq_u32 s{S_WAVE}, 7
    s_cselect_b32 s{S_JOB}, 63, 0""")
    lut_jobs(a, 1)
    a("s_waitcnt vmcnt(0)")
    const_finish(a)
    a(f"""v_mov_b32 v{T0+2}, {0x7f80 * 2}
    v_mov_b32 v{T0+3}, 0x7f80
    s_cmp_lg_u32 s{S_WAVE}, 7
    s_cbranch_scc1 NO_ROW
    ds_write_b16 v{T0+2}, v{T0+3} offset:{L_LUT}
    s_branch NO_ROW
ROW:
    v_lshrrev_b32 v116, 2, v{V_L16}""")
    QT, HH, SS = 84, 100, 104
    for m in range(4): a(f"ds_read_b32 v{HH+m}, v116 offset:{L1_HIST + 256*m}")
    a(f"""s_lshl_b32 s3, s2, 12
    s_add_u32 s3, s3, {WS_TAB}
    v_add_u32 v117, s3, v{V_L16}
    v_lshrrev_b32 v116, 1, v{V_L16}
    s_lshl_b32 s3, s{S_NHI}, 22
    s_waitcnt lgkmcnt(0)""")
    for m in range(4): a(f"v_mov_b32 v{SS+m}, v{HH+m}")
    scan64(a, SS, SS + 1, SS + 2, SS + 3)
    a(f"""v_readlane_b32 s4, v{SS}, 63
    v_readlane_b32 s5, v{SS+1}, 63
    v_readlane_b32 s9, v{SS+2}, 63""")
    for m in range(4): a(f"v_sub_u32 v{SS+m}, v{SS+m}, v{HH+m}")
    a(f"""s_add_u32 s5, s5, s4
    s_add_u32 s9, s9, s5
    v_add_u32 v{SS+1}, s4, v{SS+1}
    v_add_u32 v{SS+2}, s5, v{SS+2}
    v_add_u32 v{SS+3}, s9, v{SS+3}""")
    for m in range(4):
        a(f"""v_lshl_or_b32 v{QT+4*m}, v{HH+m}, 11, v{SS+m}
              v_or_b32 v{QT+4*m}, s3, v{QT+4*m}
              v_mov_b32 v{QT+4*m+1}, s{S_NLO}""")
    a("s_waitcnt vmcnt(0)")
    const_finish(a)
    a(f"""NO_ROW:
    s_barrier
    s_cmp_lg_u32 s{S_WAVE}, 6
    s_cbranch_scc1 ROW_DONE""")
    for m in range(4): a(f"ds_read_b64 {vr(QT+4*m+2,2)}, v116 offset:{L1_LNS + 512*m}")
    for m in range(4): a(f"s_waitcnt lgkmcnt({3-m})\nglobal_store_dwordx4 v117, {vr(QT+4*m,4)}, {WS} offset:{1024*m} sc0 sc1")
    st('table published')
    a("ROW_DONE:")
    for k in range(4): a(f"ds_read_b128 {vr(64+4*k,4)}, v{T0+1} offset:{1024*k}")
    a(f"""v_mov_b32 v{V_LEN}, 0
    s_add_u32 s{S_JOB}, s8, s8                       ; jobs 27, 28 / 29, 30, 31 / 32, 33
    s_add_u32 s{S_JOB}, s{S_JOB}, 27
    s_cmp_eq_u32 s8, 2
    s_addc_u32 s{S_JOB}, s{S_JOB}, 0
    s_cmp_eq_u32 s8, 1
    s_cselect_b32 s{S_JCNT}, 3, 2
    s_waitcnt lgkmcnt(0)
    s_barrier
    s_cmp_ge_u32 s2, {NP}
    s_cbranch_scc1 RECS_STORED""")
    for k in range(7): a(f"ds_read_b128 {vr(84+4*k,4)}, v{T0+5} offset:{L1_SREC + 1024*k}")
    for k in range(7):
        if k == 4: a(f"v_add_u32 v{T0+4}, 4096, v{T0+4}")
        if k == 6: a(f"s_cmp_eq_u32 s8, 2\ns_cbranch_scc1 RECS_STORED")
        a(f"s_waitcnt lgkmcnt({6-k})\nglobal_store_dwordx4 v{T0+4}, {vr(84+4*k,4)}, {WS} offset:{(1024*k) % 4096} {FL}")
    a(f"""RECS_STORED:
    s_call_b64 {sr(S_RET,2)}, LUT_SUB
    s_cmp_ge_u32 s2, {NP}
    s_cbranch_scc1 TAB_DONE
    v_mov_b32 v{T0+2}, 0
    s_waitcnt vmcnt(0)
    s_mov_b64 exec, 1
    ds_add_u32 v{T0+2}, v{V_ONE} offset:{L_CNT}
    s_mov_b64 exec, -1
WAIT_ACK:
    ds_read_b32 v{T0+3}, v{T0+2} offset:{L_CNT}
    s_waitcnt lgkmcnt(0)
    v_readfirstlane_b32 s3, v{T0+3}
    s_cmp_eq_u32 s3, 3
    s_cbranch_scc0 WAIT_ACK""")
    st('recs acked')
    for k in range(4):
        if k == 2: a(f"s_cmp_eq_u32 s8, 1\ns_cbranch_scc1 TAB_DONE")
        a(f"global_store_dwordx4 v{T0}, {vr(64+4*k,4)}, {WS} offset:{1024*k} {FL}")
    a("s_branch TAB_DONE")
    a(f"""AUX_LOAD:
    s_sub_u32 s4, s2, {NP}
    s_cmp_ge_u32 s4, 4
    s_cbranch_scc1 NO_EDGES
    s_cmp_ge_u32 s{S_WAVE}, 4
    s_cbranch_scc1 NO_EDGES
    s_lshl_b32 s5, s{S_WAVE}, 13
    s_lshl_b32 s8, s4, 6
    s_add_u32 s5, s5, s8
    v_lshrrev_b32 v80, 8, v{V_L16}
    v_lshlrev_b32 v80, 11, v80
    v_bfe_u32 v81, v{V_L16}, 4, 4
    v_lshl_add_u32 v80, v81, 2, v80
    v_add_u32 v80, s5, v80""")
    for t in range(8): a(f"global_load_dword v{64+t}, v80, {sr(WMX,2)} offset:{t*256}")
    a(f"""s_branch NO_EDGES
AUX:
    s_cmp_ge_u32 s2, {NP + 4}
    s_cbranch_scc1 AUX_DONE
    s_cmp_ge_u32 s{S_WAVE}, 4
    s_cbranch_scc1 AUX_DONE
    s_sub_u32 s4, s2, {NP}
    s_lshl_b32 s5, s4, 13
    s_lshl_b32 s8, s{S_WAVE}, 10
    s_add_u32 s5, s5, s8
    s_add_u32 s5, s5, {WS_WMIX}
    v_add_u32 v81, s5, v{V_L16}
    s_mov_b32 s4, 0x05040100
    s_mov_b32 s5, 0x07060302
    s_waitcnt vmcnt({6 + early})""")
    for u in range(4):
        a(f"v_perm_b32 v{72+u}, v{65+2*u}, v{64+2*u}, s4\nv_perm_b32 v{76+u}, v{65+2*u}, v{64+2*u}, s5")
    a(f"""global_store_dwordx4 v81, v[72:75], {WS} {FL}
    v_add_u32 v81, 4096, v81
    global_store_dwordx4 v81, v[76:79], {WS} {FL}
AUX_DONE:
    s_waitcnt lgkmcnt(0)""")
    make_tag(a)
    a(f"""s_barrier
    s_waitcnt vmcnt(0)
    s_barrier
    s_branch BINNED
WAVE4:
    s_mov_b32 s{S_JOB}, 25""")
    lut_jobs(a, 2)
    a("TAB_DONE:")

def mfma4(d, a_, b, c, blk=None):
    cc = "0" if c is None else vr(c, 4)
    return f"v_mfma_f32_4x4x4_16b_bf16 {vr(d,4)}, {vr(a_,2)}, {vr(b,2)}, {cc}" + ("" if blk is None else f" cbsz:4 abid:{blk}")
def p_mfma(g, odd):
    return mfma4(UU + 8 * (g % 2) + 4 * odd, EF, PO if odd else PE, None, g % 16)
def t_mfma(e, odd):
    return mfma4(TP + 8 * (e % 2) + 4 * odd, WPK + 2 * (e % 4), XR + 4 * (e % 8) + 2 * odd, None, (e % 64) // 4)
def act_regs(eb, odd):
    return UU + 8 * ((eb // 4) % 2) + 4 * odd + eb % 4, RR + 4 * ((eb // 2) % 2) + 2 * odd
def act_addr(t, u):
    return f"v_lshlrev_b32_sdwa v{t}, v{V_ONE}, v{u} dst_sel:DWORD dst_unused:UNUSED_PAD src0_sel:DWORD src1_sel:WORD_1"
def act_read(r, t): return f"ds_read_u16_d16_hi v{r}, v{t} offset:{L_LUT}"
def fma4(a, q):
    h = q % 2
    a(f"s_set_gpr_idx_on s{S_K + q % 16}, 0xc")
    for odd in range(2):
        r = RR + 4 * ((q // 2) % 2) + 2 * odd
        for o in (0, 2):
            acc = ACC + 4 * odd + o; tp = TP + 8 * (q % 2) + 4 * odd + o
            a(f"v_pk_fma_f32 {vr(acc,2)}, {vr(r,2)}, {vr(tp,2)}, {vr(acc,2)} op_sel:[{h},0,0] op_sel_hi:[{h},1,1]")
    a("s_set_gpr_idx_off")
def meta_read_entry(a): a(f"ds_read_b32 v{ENT}, v{V_AENT}")
def meta_fix_entry(a, rec=True):
    a(f"""v_cmp_gt_u32 vcc, s{S_END}, v{V_POS}
          v_add_u32 v{V_POS}, 64, v{V_POS}
          v_add_u32 v{V_AENT}, 256, v{V_AENT}
          v_cndmask_b32 v{ENT}, 40, v{ENT}, vcc
          v_lshrrev_b32 v{T0}, 21, v{ENT}
          v_lshlrev_b32 v{T0}, 4, v{T0}
          v_lshlrev_b32 v{T0+1}, 3, v{ENT}""")
    if rec: meta_read_rec(a)
    a(f"""v_and_b32 v{T0+1}, 0xfffc00, v{T0+1}
          v_and_or_b32 v{ENT}, v{ENT}, 56, v{T0+1}""")
def meta_read_rec(a): a(f"ds_read_b128 {vr(RECN,4)}, v{T0} offset:{L_UREC}")
def w_mfma(i): return mfma4(WTMP + 4 * i, RECN, CGB + 2 * i, None)
def w_cvt(a, m):
    a(f"""v_cvt_pk_bf16_f32 v{WPK+2*m}, v{WTMP+m}, v{WTMP+4+m}
          v_cvt_pk_bf16_f32 v{WPK+2*m+1}, v{WTMP+8+m}, v{WTMP+12+m}""")

def step(a, opt, q, drain=None):
    D = opt.D; loads = drain is None
    eb = q + 2 - q % 2; odd = q % 2
    u, r = act_regs(eb, odd); t = TT + 2 * odd
    g, ur = (q + 6) // 4, (q + 6) % 4
    if ur % 2 == 0: a(p_mfma(g, ur // 2))
    elif 40 <= q < 48: a(w_mfma((q - 40) // 2))
    a(act_addr(t, u))
    if loads: a(f"s_waitcnt vmcnt({D - 2})")
    elif D - 2 - drain >= 0: a(f"s_waitcnt vmcnt({8 + D - 2 - drain})")
    a(t_mfma(q + 1, 0))
    if loads: a(f"v_readlane_b32 s{S_K + (q + D) % 16}, v{KEY if q + D < 64 else ENT}, {(q + D) % 64}")
    else:     a("s_nop 0")
    a(t_mfma(q + 1, 1))
    a(act_addr(t + 1, u + 1))
    a(act_read(r, t)); a(act_read(r + 1, t + 1))
    if q >= 60: w_cvt(a, q - 60)
    if loads:
        a(f"s_and_b32 s{S_OFF}, s{S_K + (q + D) % 16}, s{S_MASK}")
        a(f"buffer_load_dwordx4 {vr(XR + 4 * ((q + D) % 8), 4)}, v{V_L16}, {sr(S_X,4)}, s{S_OFF} offen")
    if q % 2 == 0: a("s_waitcnt lgkmcnt(2)")
    fma4(a, q)
    if loads: x_touch(a, opt, 100 + q, False)
    if loads and q == 8: meta_read_entry(a)
    if loads and q == 12: meta_fix_entry(a)
    if q == 57: a(f"v_mov_b32 v{EF}, v{RECN+2}\nv_mov_b32 v{EF+1}, v{RECN+3}\ns_nop 1")
    if loads and q == 63: a(f"v_mov_b32 v{KEY}, v{ENT}")

def body(a, opt):
    G = opt.gran
    for q in range(64):
        if q % G == 0: a(f"A_{q}:\ns_sub_u32 s{S_REM}, s{S_REM}, {G}\ns_cbranch_scc1 B_{q}")
        step(a, opt, q)
    if opt.stamps and not opt.only:
        STAMPS.extend(("batch 1", "batch 2")); k = S_ST + len(STAMPS) - 2
        a(f"""s_memrealtime s[98:99]
        s_waitcnt lgkmcnt(0)
        s_cmp_eq_u32 s{k}, 0
        s_cselect_b32 s99, 0, s98
        s_cselect_b32 s{k}, s98, s{k}
        s_cmp_eq_u32 s{k+1}, 0
        s_cselect_b32 s{k+1}, s99, s{k+1}""")
    if opt.probe == "batch 1":
        a("s_memrealtime s[98:99]\ns_waitcnt lgkmcnt(0)\ns_cmp_eq_u32 s93, 0\ns_cselect_b32 s93, s98, s93")
    a("s_branch A_0")
    for q in range(0, 64, G):
        a(f"B_{q}:")
        for k in range(8):
            a(f"buffer_load_dwordx4 {vr(WMIX+4*k,4)}, v{V_L16}, {sr(S_WS,4)}, s{S_WM + k // 4} offen offset:{(k%4)*1024} sc1")
        for i in range(opt.D):
            a(f"s_sub_u32 s{S_REMB}, s{S_REMB}, 1\ns_cbranch_scc1 MAIN_DONE")
            step(a, opt, (q + i) % 64, i)
        a("s_branch MAIN_DONE")

def x_touch(a, opt, where, guard=True):
    for spec in filter(None, opt.xt.split(",")):
        w, lo, hi = map(int, spec.split(":"))
        if w != where: continue
        if guard: a(f"s_cmp_lg_u32 s{S_W0}, 0\ns_cbranch_scc1 NO_X_TOUCH_{w}")
        if w >= 100: a(f"s_bitcmp1_b32 s3, {w % 32}\ns_cbranch_scc1 NO_X_TOUCH_{w}\ns_bitset1_b32 s3, {w % 32}")
        four = w in (6, 9)
        if w == 9: a(f"s_cmp_eq_u32 s{S_WAVE}, 4\ns_cbranch_scc1 NO_X_TOUCH_{w}")
        a(f"""s_lshl_b32 s{S_OFF}, s2, {2 if four else 3}
        s_add_u32 s{S_OFF}, s{S_OFF}, s{S_WAVE}
        s_lshl_b32 s{S_OFF}, s{S_OFF}, 7
        s_add_u32 s{S_OFF}, s{S_OFF}, {lo << 18}
        v_min_u32 v{V_TOUCH}, {(((hi - lo) << four) - 1) * 16}, v{V_L16}
        v_lshl_add_u32 v{V_TOUCH}, v{V_TOUCH}, {14 - four}, s{S_OFF}
        buffer_load_dword v{V_DUMMY}, v{V_TOUCH}, {sr(S_X,4)}, 0 offen""")
        a(f"NO_X_TOUCH_{w}:")

DEAL = ([4, 2, 4, 7, 6, 3, 1, 5, 0, 4, 2, 6, 1, 7, 3, 5, 0, 4, 7, 3, 0, 1, 5, 6, 2, 5, 0, 1, 6, 7, 3, 2, 0, 5, 3, 1, 6, 7, 2, 4],
        [0, 2, 7, 1, 4, 6, 5, 3, 6, 3, 1, 7, 4, 0, 2, 5, 4, 3, 5, 6, 7, 1, 0, 2, 7, 5, 2, 4, 3, 6, 0, 1, 5, 1, 3, 6, 4, 2, 7, 0])
def deal_bytes():
    out = []
    for t in DEAL:
        assert sorted(t) == sorted(list(range(8)) * 5)
        out += [4 * (5 * w + t[:r].count(w)) | (8 * w + t[:r].count(w)) << 8 for r, w in enumerate(t)] + [0] * 24
    return out

def zero_hist(a):
    a(f"""v_lshlrev_b32 v{T0+3}, 2, v0
    v_mov_b32 v{T0+4}, 0
    v_cmp_gt_u32 vcc, 0x100, v0
    s_and_saveexec_b64 {sr(S_T,2)}, vcc
    ds_write_b32 v{T0+3}, v{T0+4} offset:{L_HIST}
    s_mov_b64 exec, {sr(S_T,2)}""")

def kernel(opt):
    a = Asm(); D = opt.D
    st = lambda n: stamp(a, opt, n)
    a(f"""{KERN}:
    s_cmp_ge_u32 s2, 256
    s_cbranch_scc1 END""")
    if opt.probe: a("s_mov_b32 s93, 0\ns_memrealtime s[98:99]\ns_waitcnt lgkmcnt(0)\ns_mov_b32 s92, s98")
    if opt.stamps:
        for k in range(32): a(f"s_mov_b32 s{S_ST+k}, 0")
    st('start')
    a(f"""s_load_dwordx16 {sr(S_IN,16)}, s[0:1], 0
    s_load_dwordx2 {sr(S_WS,2)}, s[0:1], 80
    s_load_dwordx2 {sr(S_X,2)}, s[0:1], 0
    s_load_dwordx2 {sr(S_OUT,2)}, s[0:1], 64
    ; wave 7 of every workgroup takes 8 lines; the 32 workgroups with equal id % 8 cover 32 KiB
    s_getpc_b64 s[6:7]
CODE_HERE:
    v_lshrrev_b32 v{T0}, 6, v0
    s_lshr_b32 s5, s2, 3
    s_lshl_b32 s4, s5, 10
    v_readfirstlane_b32 s{S_WAVE}, v{T0}
    v_and_b32 v{T0+2}, 7, v0
    v_lshl_add_u32 v{T0+2}, v{T0+2}, 7, s4
    v_min_u32 v{T0+2}, END-CODE_HERE, v{T0+2}
    s_cmp_lg_u32 s{S_WAVE}, 7
    s_cbranch_scc1 NO_CODE_TOUCH
    global_load_dword v{V_DUMMY}, v{T0+2}, s[6:7]
NO_CODE_TOUCH:
    s_mul_i32 s3, s2, {EP * 4}
    v_lshl_add_u32 v{T0}, v0, 4, s3
    v_and_b32 v{T0+2}, 63, v0
    v_lshlrev_b32 v{V_L16}, 4, v{T0+2}
    v_lshlrev_b32 v{CT+5}, 2, v{T0+2}
    v_lshlrev_b32 v{T0+3}, 4, v0
    v_mov_b32 v{T0+4}, 0
    v_mov_b32 v{T0+5}, 0
    v_pk_mov_b32 {vr(ACC,2)}, {vr(T0+4,2)}, {vr(T0+4,2)}
    v_pk_mov_b32 {vr(ACC+2,2)}, {vr(T0+4,2)}, {vr(T0+4,2)}
    ds_write_b128 v{T0+3}, {vr(ACC,4)}
    s_cmp_ge_u32 s{S_WAVE}, 5
    s_waitcnt lgkmcnt(0)
    s_cbranch_scc1 NO_EDGES
    s_cmp_ge_u32 s2, {NP}
    s_cbranch_scc1 AUX_LOAD
    s_setprio 1
    global_load_dwordx4 {vr(D_,4)}, v{T0}, {sr(DST,2)}
    global_load_dwordx4 {vr(S_,4)}, v{T0}, {sr(SRC,2)}
NO_EDGES:""")
    if opt.wsoff: a(f"s_add_u32 s{S_WS}, s{S_WS}, {opt.wsoff << 20}\ns_addc_u32 s{S_WS+1}, s{S_WS+1}, 0")
    load_epoch(a)
    st('kernargs')
    for k in range(4): a(f"global_load_dword v{CT+k}, v{CT+5}, {sr(WRAD,2)} offset:{k*256}")
    a(f"""v_and_b32 v{CT+5}, 0x7f, v{CT+5}
    global_load_dword v{CT+4}, v{CT+5}, {sr(CG,2)}
    s_and_b32 s3, s2, 0x87
    s_cmp_eq_u32 s3, 0
    s_cselect_b32 s3, 128, 0
    s_add_u32 s3, s3, DEAL_TABLE-CODE_HERE
    v_lshl_add_u32 v{V_DEAL}, v{T0+2}, 1, s3
    global_load_ushort v{V_DEAL}, v{V_DEAL}, s[6:7]
    s_mov_b32 s{S_X+2}, {N * 1024}
    s_mov_b32 s{S_X+3}, 0x20000""")
    x_touch(a, opt, 10, False)
    a(f"v_lshlrev_b32 v{T0+1}, 1, v{T0}")
    if opt.yearly == 1:
        a(f"""s_cmp_ge_u32 s{S_WAVE}, 5
        s_cbranch_scc1 NO_YF
        s_cmp_ge_u32 s2, {NP}
        s_cbranch_scc1 NO_YF""")
        load_yf(a)
        a("NO_YF:")
    a(f"""
    s_and_b32 s4, s2, 7
    s_lshl_b32 s4, s4, 5
    s_lshr_b32 s5, s2, 3
    s_or_b32 s{S_BETA}, s4, s5
    v_mov_b32 v{V_ONE}, 1
    s_mov_b32 s{S_WS+2}, {WS_END if not opt.stamps else WS_STAMP + 0x80000}
    s_mov_b32 s{S_WS+3}, 0x20000
    s_mov_b32 s{S_OUT+2}, {N * 1024}
    s_mov_b32 s{S_OUT+3}, 0x20000
    s_mov_b32 s{S_MASK}, 0xfffffc00
    s_mov_b32 s{S_W0}, 0
    s_mov_b32 s{S_L2E}, 0xbfb8aa3b
    s_mov_b32 s{S_L2E+1}, 0xbfb8aa3b
    s_mov_b32 s{S_SPIN}, {1 << 21}
    v_and_b32 v{V_GID}, 0xff, v0
    s_lshl_b32 s3, s{S_BETA}, 4
    s_add_u32 s3, s3, {WS_TAB}
    v_lshl_add_u32 v{V_POS}, v{V_GID}, 12, s3
    v_mul_u32_u24 v{V_GID}, {EP}, v{V_GID}
    v_mul_u32_u24 v{LJ+10}, 0x8000, v{V_L16}
    v_lshl_add_u32 v{LJ+10}, v{T0+2}, 3, v{LJ+10}    ; lane * 8 * 0x10001""")
    for k in range(4, 48, 2): a(f"v_pk_mov_b32 {vr(ACC+k,2)}, {vr(T0+4,2)}, {vr(T0+4,2)}")
    a("s_barrier")
    phase1(a, opt)
    a(f"""s_cmp_ge_u32 s{S_WAVE}, 4
    s_cbranch_scc1 TOTALS
    v_and_b32 v{T0+5}, 0x7ff, v{RECN}
    v_bfe_u32 v{V_LEN}, v{RECN}, 11, 11
    v_add_u32 v{V_GID}, v{V_GID}, v{T0+5}
    v_mov_b32 v{V_PRE}, v{V_LEN}""")
    scan64(a, V_PRE)
    a(f"""s_lshl_b32 s3, s{S_WAVE}, 2
    v_mov_b32 v{T0+2}, s3
    v_add_u32 v{T0+3}, 1, v{V_PRE}
    v_sub_u32 v{V_PRE}, v{V_PRE}, v{V_LEN}
    s_mov_b32 exec_lo, 0
    s_mov_b32 exec_hi, 0x80000000
    ds_write_b32 v{T0+2}, v{T0+3} offset:{L_WT}
    s_mov_b64 exec, -1
TOTALS:
    v_mov_b32 v{T0+2}, 0
TOTALS_SPIN:
    ds_read_b128 {vr(XR,4)}, v{T0+2} offset:{L_WT}
    s_waitcnt lgkmcnt(0)""")
    for k in range(4): a(f"v_readfirstlane_b32 s{4+k}, v{XR+k}")
    a(f"""s_min_u32 s3, s4, s5
    s_min_u32 s8, s6, s7
    s_min_u32 s3, s3, s8
    s_cmp_eq_u32 s3, 0
    s_cbranch_scc0 TOTALS_OK
    s_sub_u32 s{S_SPIN}, s{S_SPIN}, 1
    s_cbranch_scc0 TOTALS_SPIN
    s_endpgm
TOTALS_OK:
    s_add_u32 s5, s5, s4
    s_add_u32 s6, s6, s5
    s_add_u32 s7, s7, s6
    s_sub_u32 s{S_N}, s7, 4
    s_cmp_eq_u32 s{S_WAVE}, 1
    s_cselect_b32 s3, s4, 0
    s_cmp_eq_u32 s{S_WAVE}, 2
    s_cselect_b32 s3, s5, s3
    s_cmp_eq_u32 s{S_WAVE}, 3
    s_cselect_b32 s3, s6, s3
    s_sub_u32 s3, s3, s{S_WAVE}
    v_add_u32 v{V_PRE}, s3, v{V_PRE}
    s_cmp_lg_u32 s{S_WAVE}, 4
    s_cbranch_scc1 EPOCH_DONE
    s_cmp_lg_u32 s2, 0
    s_cbranch_scc1 EPOCH_DONE
    v_mov_b32 v{T0+4}, s{S_NLO}
    v_mov_b32 v{T0+2}, {WS_EPOCH}
    s_mov_b64 exec, 1
    global_store_dword v{T0+2}, v{T0+4}, {sr(S_WS,2)} sc0 sc1
    s_mov_b64 exec, -1
EPOCH_DONE:""")
    x_touch(a, opt, 3, False)
    if opt.otouch:
        a(f"""s_cmp_lg_u32 s{S_WAVE}, 4
        s_cbranch_scc1 NO_O_TOUCH
        s_lshl_b32 s{S_OFF}, s{S_BETA}, {10 if opt.otouch == 1 else 0}
        v_min_u32 v{V_TOUCH}, {39 * 16}, v{V_L16}
        v_lshl_add_u32 v{V_TOUCH}, v{V_TOUCH}, 14, s{S_OFF}
        buffer_load_ubyte v{V_DUMMY}, v{V_TOUCH}, {sr(S_OUT,4)}, 0 offen
        NO_O_TOUCH:""")
    st('prefix done')
    a(f"""ROUND:
    v_mov_b32 v{T0}, 0
    v_subrev_u32 v{T0+1}, s{S_W0}, v{V_PRE}
    v_mov_b32 v{T0+2}, v{V_GID}
    s_mov_b32 s3, {CAP}
    s_cmp_gt_u32 s{S_N}, {CAP}
    s_cbranch_scc1 EXPAND
    v_lshlrev_b32 v{T0+3}, 2, v{V_PRE}""")
    for j in range(16):
        a(f"v_cmpx_lt_u32 vcc, {j}, v{V_LEN}")
        if j % 2 == 0 and j >= 6: a("s_cbranch_execz EXPAND_DONE")
        a(f"ds_write_b32 v{T0+3}, v{T0+2} offset:{L_SENT + 4*j}\nv_add_u32 v{T0+2}, 1, v{T0+2}")
    a(f"""v_mov_b32 v{T0}, 16
    v_add_u32 v{T0+1}, 16, v{T0+1}
EXPAND:
    v_cmp_lt_u32 vcc, v{T0}, v{V_LEN}
    s_and_b64 exec, exec, vcc
    s_cbranch_execz EXPAND_DONE
    v_cmp_gt_u32 vcc, s3, v{T0+1}
    v_lshlrev_b32 v{T0+3}, 2, v{T0+1}
    s_and_saveexec_b64 {sr(S_T,2)}, vcc
    ds_write_b32 v{T0+3}, v{T0+2} offset:{L_SENT}
    s_mov_b64 exec, {sr(S_T,2)}
    v_add_u32 v{T0}, 1, v{T0}
    v_add_u32 v{T0+1}, 1, v{T0+1}
    v_add_u32 v{T0+2}, 1, v{T0+2}
    s_branch EXPAND
EXPAND_DONE:
    s_mov_b64 exec, -1
    s_sub_u32 s{S_NWIN}, s{S_N}, s{S_W0}
    s_min_u32 s{S_NWIN}, s{S_NWIN}, {CAP}
    v_lshlrev_b32 v{T0}, 2, v0""")
    for i in range(3):
        a(f"""v_add_u32 v{T0+1}, {512*i}, v0
              v_cmp_gt_u32 {sr(S_M+2*i,2)}, s{S_NWIN}, v{T0+1}""")
    st('list built')
    a("s_waitcnt lgkmcnt(0)\ns_barrier")
    st('list barrier')
    G = XR
    KP = TP
    for i in range(3): a(f"ds_read_b32 v{G+i}, v{T0} offset:{L_SENT + 2048*i}")
    a(f"""s_mov_b32 s{S_T+2}, 13421                         ; 32 * 2^32 / (10000 * 1024)
    s_waitcnt lgkmcnt(0)""")
    for i in range(3):
        a(f"v_lshlrev_b32 v{G+4+i}, 3, v{G+i}\nv_lshlrev_b32 v{G+i}, 4, v{G+i}")
    def key_loads(tag):
        a(f"""s_mov_b64 exec, {sr(S_M+4,2)}
        s_cbranch_execz SKIP3{tag}
        buffer_load_dwordx2 {vr(KP+4,2)}, v{G+6}, {sr(S_WS,4)}, 0 offen sc1
        SKIP3{tag}:""")
        for i in range(2):
            a(f"s_mov_b64 exec, {sr(S_M+2*i,2)}\nbuffer_load_dwordx2 {vr(KP+2*i,2)}, v{G+4+i}, {sr(S_WS,4)}, 0 offen sc1")
        a("s_mov_b64 exec, -1")
    key_loads("")
    x_touch(a, opt, 7)
    H = G + 20
    a(f"""v_lshrrev_b32 v{T0}, 4, v{V_L16}              ; lane
    s_cmp_lg_u32 s{S_W0}, 0
    s_cbranch_scc1 KEY_WAIT
    s_cmp_ge_u32 s{S_WAVE}, 4
    s_cbranch_scc1 DEG_DONE""")
    for j in range(NLN):
        t = T0 + 1 + j % 2
        if j < 5: a(f"v_bfe_u32 v{t}, v{RECN+2}, {6*j}, 6")
        elif j == 5: a(f"v_alignbit_b32 v{t}, v{RECN+3}, v{RECN+2}, 30\nv_and_b32 v{t}, 63, v{t}")
        else: a(f"v_bfe_u32 v{t}, v{RECN+3}, {6*j-32}, 6")
        a(f"""v_lshlrev_b32 v{t}, 2, v{t}
              v_cmpx_lt_u32 vcc, {j}, v{V_LEN}
              ds_add_u32 v{t}, v{V_ONE} offset:{L_DEG}""")
    a(f"""s_mov_b64 exec, -1
DEG_DONE:
    v_lshlrev_b32 v{T0+1}, 2, v{T0}
    v_cmp_gt_u32 {sr(S_T,2)}, 40, v{T0}
    v_sub_u32 v{T0+2}, 63, v{T0}
    s_mul_i32 s10, s{S_WAVE}, 5
    s_waitcnt lgkmcnt(0)
    s_barrier
    ds_read_b32 v{H}, v{T0+1} offset:{L_DEG}
    v_add_u32 v{T0+3}, s10, v{T0}
    v_lshlrev_b32 v{T0+4}, 2, v{T0+3}
    s_waitcnt lgkmcnt(0)
    v_lshl_or_b32 v{H}, v{H}, 6, v{T0+2}
    v_cndmask_b32 v{H}, 0, v{H}, {sr(S_T,2)}
    s_nop 0""")
    for k in range(5):
        a(f"v_readlane_b32 s{S_NODE+k}, v{H}, s10")
        if k < 4: a("s_add_u32 s10, s10, 1")
    for k in range(5): a(f"v_cmp_lt_u32 {sr(S_K+2*k,2)}, s{S_NODE+k}, v{H}")
    for k in range(5): a(f"s_bcnt1_i32_b64 s{S_NODE+k}, {sr(S_K+2*k,2)}")
    for k in range(5): a(f"v_readlane_b32 s{S_NODE+k}, v{V_DEAL}, s{S_NODE+k}")
    a("s_nop 0")
    for k in range(5): a(f"v_writelane_b32 v{T0+1}, s{S_NODE+k}, {k}")
    a(f"""v_lshrrev_b32 v{T0+2}, 11, v{T0+1}
    v_bfe_u32 v{T0+5}, v{T0+1}, 8, 3
    v_lshlrev_b32 v{T0+2}, 7, v{T0+2}
    v_and_b32 v{T0+1}, 0xff, v{T0+1}
    v_lshl_or_b32 v{T0+2}, v{T0+5}, 19, v{T0+2}
    s_mov_b64 exec, 0x1f
    ds_write_b32 v{T0+1}, v{T0+3} offset:{L_INV}
    ds_write_b32 v{T0+4}, v{T0+2} offset:{L_MAP}
    s_mov_b64 exec, -1
    s_waitcnt lgkmcnt(0)
    s_barrier""")
    st('dealt')
    a(f"""KEY_WAIT:
    s_lshl_b32 s3, s{S_WAVE}, 10
    s_add_u32 s3, s3, {L_UREC}
    s_mov_b32 s9, {WS_REC}""")
    if ",7:" in "," + opt.xt:
        a(f"s_cmp_lg_u32 s{S_W0}, 0\ns_cbranch_scc1 KEY_WAIT0\ns_waitcnt vmcnt(1)\ns_branch KEY_CHECK")
    a("KEY_WAIT0:\ns_waitcnt vmcnt(0)\nKEY_CHECK:")
    for i in range(3): a(f"v_cmp_ne_u32 {sr(S_K+2*i,2)}, s{S_NLO}, v{KP+2*i+1}")
    for i in range(3): a(f"v_and_b32 v{G+8+i}, 63, v{KP+2*i}\nv_lshlrev_b32 v{G+8+i}, 2, v{G+8+i}")
    for i in range(3): a(f"s_and_b64 {sr(S_K+2*i,2)}, {sr(S_K+2*i,2)}, {sr(S_M+2*i,2)}")
    a(f"""s_or_b64 {sr(S_K,2)}, {sr(S_K,2)}, {sr(S_K+2,2)}
    s_or_b64 {sr(S_K,2)}, {sr(S_K,2)}, {sr(S_K+4,2)}
    s_cbranch_scc0 KEYS_OK
    s_sub_u32 s{S_SPIN}, s{S_SPIN}, 1
    s_cbranch_scc1 END""")
    key_loads("R")
    a("s_branch KEY_WAIT0\nKEYS_OK:")
    st('keys arrived')
    def rec_dma(at):
        for i in (2, 0, 1):
            if opt.recat[i] != at: continue
            a(f"s_add_u32 m0, s3, {i*8192}\ns_mov_b64 exec, {sr(S_M+2*i,2)}")
            if i == 2: a("s_cbranch_execz SKIP3D")
            a(f"buffer_load_dwordx4 v{G+i}, {sr(S_WS,4)}, s9 offen sc1 lds")
            if i == 2: a("SKIP3D:")
        if at in opt.recat: a("s_mov_b64 exec, -1")
    for i in range(3): a(f"ds_read_b32 v{G+8+i}, v{G+8+i} offset:{L_MAP}")
    rec_dma(0)
    for i in range(3):
        a(f"""v_mul_hi_u32 v{G+12+i}, s{S_T+2}, v{KP+2*i}
              v_add_u32 v{T0+1}, {512*i}, v0
              v_lshlrev_b32 v{T0+1}, 21, v{T0+1}
              v_lshrrev_b32 v{G+16+i}, 10, v{KP+2*i}
              v_lshl_or_b32 v{G+16+i}, v{G+16+i}, 7, v{T0+1}""")
    for i in range(3):
        a(f"""s_waitcnt lgkmcnt({2-i})
              v_lshrrev_b32 v{T0+1}, 16, v{G+8+i}
              v_and_b32 v{G+8+i}, 0x380, v{G+8+i}
              v_or_b32 v{G+16+i}, v{G+16+i}, v{T0+1}
              v_lshl_add_u32 v{G+8+i}, v{G+12+i}, 2, v{G+8+i}""")
    for i in range(3):
        a(f"s_mov_b64 exec, {sr(S_M+2*i,2)}\nds_add_rtn_u32 v{G+12+i}, v{G+8+i}, v{V_ONE} offset:{L_HIST}")
    a("s_mov_b64 exec, -1")
    rec_dma(1)
    a(f"""s_lshl_b32 s10, s{S_WAVE}, 3
    s_add_u32 s11, s10, 8
    s_and_b32 s11, s11, 63
    s_waitcnt lgkmcnt(0)
    s_barrier""")
    st('hist done')
    a(f"ds_read_b128 {vr(H,4)}, v{V_L16} offset:{L_HIST}")
    rec_dma(2)
    x_touch(a, opt, 8)
    a("s_waitcnt lgkmcnt(0)")
    scan256(a, H, H + 4)
    a(f"""ds_write_b128 v{V_L16}, {vr(H+4,4)} offset:{L_BASE}
    v_readlane_b32 s{S_START}, v{H+4}, s10
    v_readlane_b32 s{S_END}, v{H+4}, s11""")
    for i in range(3): a(f"ds_read_b32 v{G+8+i}, v{G+8+i} offset:{L_BASE}")
    a(f"""s_cmp_eq_u32 s{S_WAVE}, 7
    s_cselect_b32 s{S_END}, s{S_NWIN}, s{S_END}
    v_add_u32 v{V_POS}, s{S_START}, v{T0}
    v_lshlrev_b32 v{V_AENT}, 2, v{V_POS}
    v_add_u32 v{V_AENT}, {L_SENT}, v{V_AENT}
    s_sub_u32 s11, s{S_END}, s{S_START}
    s_max_u32 s10, s11, {D}
    s_add_u32 s10, s10, {opt.gran - 1 - D}
    s_and_b32 s{S_REM}, s10, {-opt.gran}
    s_max_u32 s10, s11, s{S_REM}
    s_sub_u32 s{S_REMB}, s10, s{S_REM}""")
    for i in range(3):
        a(f"""s_waitcnt lgkmcnt({2 if i else 2})
              v_add_lshl_u32 v{G+8+i}, v{G+8+i}, v{G+12+i}, 2
              s_mov_b64 exec, {sr(S_M+2*i,2)}
              ds_write_b32 v{G+8+i}, v{G+16+i} offset:{L_SENT}
              s_mov_b64 exec, -1""")
    a("s_waitcnt lgkmcnt(0)")
    if not opt.xpre: a("s_waitcnt vmcnt(0)")
    a("s_barrier")
    st('sorted')
    if opt.stamps: a(f"s_memtime s[100:101]\ns_waitcnt lgkmcnt(0)\ns_mov_b32 s{S_ST+30}, s100")
    if opt.prio == 1: a(f"s_cmp_ge_u32 s{S_WAVE}, 4\ns_cbranch_scc0 PRIO_SET\ns_setprio 1\nPRIO_SET:")
    meta_read_entry(a)
    a(f"""s_mov_b32 s3, 0
    s_and_b32 s{S_WM}, s{S_WAVE}, 3
    s_lshl_b32 s{S_WM}, s{S_WM}, 13
    s_add_u32 s{S_WM}, s{S_WM}, {WS_WMIX}
    s_add_u32 s{S_WM+1}, s{S_WM}, 4096""")
    for k in range(8): a(f"v_mov_b32 v{RR+k}, 0")
    a("s_waitcnt lgkmcnt(0)")
    meta_fix_entry(a, False)
    a("s_nop 0")
    def first_rows(lo, hi):
        for e in range(lo, hi):
            a(f"""v_readlane_b32 s{S_K+e}, v{ENT}, {e}
                  s_and_b32 s{S_OFF}, s{S_K+e}, s{S_MASK}
                  buffer_load_dwordx4 {vr(XR+4*e,4)}, v{V_L16}, {sr(S_X,4)}, s{S_OFF} offen""")
    if opt.xpre:
        first_rows(0, opt.xpre)
        if ",8:" in "," + opt.xt and 2 not in opt.recat:
            a(f"s_cmp_lg_u32 s{S_W0}, 0\ns_cbranch_scc1 REC_WAIT\ns_waitcnt vmcnt({opt.xpre + 1})\ns_branch REC_IN\nREC_WAIT:")
        a(f"s_waitcnt vmcnt({opt.xpre})\nREC_IN:")
        st('recs landed')
        a("s_barrier")
    meta_read_rec(a)
    first_rows(opt.xpre, D)
    a(f"v_mov_b32 v{KEY}, v{ENT}")
    a(f"""s_waitcnt lgkmcnt(0)
    v_mov_b32 v{EF}, v{RECN+2}
    v_mov_b32 v{EF+1}, v{RECN+3}""")
    for i in range(4): a(w_mfma(i))
    a(p_mfma(0, 0)); a(p_mfma(0, 1)); a(p_mfma(1, 0))
    a("s_nop 1")
    for m in range(4): w_cvt(a, m)
    for odd in range(2):
        u, r = act_regs(0, odd)
        for h in range(2): a(act_addr(TT + 2 * odd + h, u + h))
        for h in range(2): a(act_read(r + h, TT + 2 * odd + h))
    a(f"s_waitcnt vmcnt({D-1})")
    st('first row')
    a(t_mfma(0, 0)); a(t_mfma(0, 1))
    body(a, opt)
    a(f"""MAIN_DONE:
    s_add_u32 s{S_W0}, s{S_W0}, {CAP}
    s_cmp_ge_u32 s{S_W0}, s{S_N}
    s_cbranch_scc1 ALL_DONE
    s_waitcnt vmcnt(0) lgkmcnt(0)""")
    zero_hist(a)
    a("s_waitcnt lgkmcnt(0)\ns_barrier\ns_branch ROUND\nALL_DONE:")
    st('main done')
    if opt.stamps: a(f"s_memtime s[100:101]\ns_waitcnt lgkmcnt(0)\ns_sub_u32 s{S_ST+30}, s100, s{S_ST+30}")
    PK = WPK; VOUT = UU
    a(f"""v_lshrrev_b32 v{T0+3}, 8, v{V_L16}            ; lane >> 4
    s_lshr_b32 s{S_T}, s{S_WAVE}, 2                   ; half
    s_mul_i32 s{S_T+1}, s{S_T}, 80
    v_mul_u32_u24 v{T0+1}, 20, v{T0+3}
    v_add_u32 v{T0+1}, s{S_T+1}, v{T0+1}""")
    for t in range(5): a(f"ds_read_b32 v{VOUT+t}, v{T0+1} offset:{L_INV + 4*t}")
    for sl in range(5):
        for o in range(4): a(f"v_cvt_pk_bf16_f32 v{PK+4*sl+o}, v{ACC+8*sl+o}, v{ACC+8*sl+4+o}")
    a(f"""s_mul_i32 s{S_T+1}, s{S_WAVE}, {4 * AGG_RS}
    s_add_u32 s{S_T+1}, s{S_T+1}, {L_AGG}
    v_lshrrev_b32 v{T0+4}, 2, v{V_L16}
    v_add_u32 v{T0+4}, s{S_T+1}, v{T0+4}
    v_bfe_u32 v{T0+2}, v{V_L16}, 4, 4                 ; lane & 15
    s_mul_i32 s{S_T+1}, s{S_T}, {16 * AGG_RS}
    s_add_u32 s{S_T+1}, s{S_T+1}, {L_AGG}
    v_mul_u32_u24 v{T0}, {AGG_RS}, v{T0+2}
    v_lshl_add_u32 v{T0}, v{T0+3}, 4, v{T0}
    v_add_u32 v{T0}, s{S_T+1}, v{T0}
    s_lshl_b32 s{S_T}, s{S_BETA}, 10
    s_and_b32 s{S_T+1}, s{S_WAVE}, 3
    s_lshl_b32 s{S_T+1}, s{S_T+1}, 8
    s_add_u32 s{S_T}, s{S_T}, s{S_T+1}
    v_lshl_add_u32 v{T0+2}, v{T0+2}, 4, s{S_T}
    s_waitcnt lgkmcnt(0)""")
    for t in range(5): a(f"v_lshl_add_u32 v{VOUT+t}, v{VOUT+t}, 18, v{T0+2}")
    a("s_barrier")
    st('all main done')
    AF = XR
    def wr(sl):
        for o in range(4): a(f"ds_write_b32 v{T0+4}, v{PK+4*sl+o} offset:{(32*sl + o)*AGG_RS}")
    def rd(t):
        for ks in range(4): a(f"ds_read_b128 {vr(AF+16*(t%2)+4*ks,4)}, v{T0} offset:{t*32*AGG_RS + ks*64}")
    def mm(t, waits, writes=None):
        for ks in range(4):
            if waits[ks] is not None: a(f"s_waitcnt lgkmcnt({waits[ks]})")
            for j in range(2):
                d = ACC + 8 * t + 4 * j
                a(f"v_mfma_f32_16x16x32_bf16 {vr(d,4)}, {vr(AF+16*(t%2)+4*ks,4)}, {vr(WMIX+16*j+4*ks,4)}, " + ("0" if ks == 0 else vr(d, 4)))
            if writes:
                s0, lo, hi = writes[ks]
                for n in range(lo, hi): a(f"ds_write_b32 v{T0+4}, v{PK+4*s0+n} offset:{(32*(s0 + n // 4) + n % 4)*AGG_RS}")
    def pack_store(t):
        d = ACC + 8 * t; p = RR + 4 * (t % 2)
        for j in range(4): a(f"v_cvt_pk_bf16_f32 v{p+j}, v{d+2*j}, v{d+2*j+1}")
        a(f"buffer_store_dwordx4 {vr(p,4)}, v{VOUT+t}, {sr(S_OUT,4)}, 0 offen {opt.outst if t < 5 - opt.nplain else ''}")
    wr(0); wr(1)
    a("s_waitcnt vmcnt(0) lgkmcnt(0)\ns_barrier")
    st('agg in LDS')
    rd(0); rd(1)
    mm(0, [7, 9, 11, 13], [(2, 0, 3), (2, 3, 6), (2, 6, 9), (2, 9, 12)])
    a("s_waitcnt lgkmcnt(0)\ns_barrier")
    rd(2)
    mm(1, [None] * 4); pack_store(0)
    rd(3)
    mm(2, [7, 6, 5, 4]); pack_store(1)
    rd(4)
    mm(3, [7, 6, 5, 4]); pack_store(2)
    mm(4, [3, 2, 1, 0]); pack_store(3)
    a("s_nop 3")
    pack_store(4)
    st('end')
    if opt.probe:
        a(f"""s_cmp_eq_u32 s93, 0
        s_cselect_b32 s93, s92, s93
        s_sub_u32 s93, s93, s92
        s_mul_i32 s93, s93, 4
        s_add_u32 s92, s92, s93
        s_add_u32 s92, s92, 6000
        HOLD_SPIN:
        s_memrealtime s[98:99]
        s_waitcnt lgkmcnt(0)
        s_sub_u32 s98, s98, s92
        s_cmp_lt_i32 s98, 0
        s_cbranch_scc1 HOLD_SPIN""")
    if opt.stamps:
        a("s_waitcnt vmcnt(0)")
        st('stores done 2')
        a(f"""s_lshl_b32 s10, s2, 3
        s_add_u32 s10, s10, s{S_WAVE}
        s_lshl_b32 s10, s10, 7
        s_add_u32 s10, s10, {WS_STAMP}
        v_mov_b32 v{T0}, s10
        s_sub_u32 s{S_ST+31}, s{S_END}, s{S_START}
        s_sub_u32 s{S_ST+29}, {1 << 21}, s{S_SPIN}""")
        for k in range(32): a(f"v_mov_b32 v{XR+k}, s{S_ST+k}")
        for k in range(8): a(f"buffer_store_dwordx4 {vr(XR+4*k,4)}, v{T0}, {sr(S_WS,4)}, 0 offen offset:{16*k}")
    a("END:\ns_endpgm")
    a(".p2align 6\n.type DEAL_TABLE,@object\nDEAL_TABLE:\n.short " + ", ".join(map(str, deal_bytes())) + "\n.size DEAL_TABLE, 256")
    return a.text()

def generate(opt):
    here = os.path.dirname(os.path.abspath(__file__))
    out = open(here + "/header.txt").read()
    out += f"; @launch grid=(256,1,1) block=(512,1,1) lds={LDS_BYTES}\n"
    out += f'.amdgcn_target "amdgcn-amd-amdhsa--gfx950"\n.text\n.globl {KERN}\n.p2align 8\n.type {KERN},@function\n'
    out += kernel(opt)
    out += f""".section .rodata,"a"
.p2align 6
.amdhsa_kernel {KERN}
  .amdhsa_next_free_vgpr {NVGPR}
  .amdhsa_next_free_sgpr {NSGPR if opt.stamps or opt.probe else 66}
  .amdhsa_accum_offset {(NVGPR + 3) // 4 * 4}
  .amdhsa_group_segment_fixed_size 0
  .amdhsa_kernarg_size 88
  .amdhsa_user_sgpr_count 2
  .amdhsa_user_sgpr_kernarg_segment_ptr 1
  .amdhsa_system_sgpr_workgroup_id_x 1
  .amdhsa_float_denorm_mode_32 3
.end_amdhsa_kernel
"""
    return out

def options(argv):
    p = argparse.ArgumentParser()
    p.add_argument("-o", default="/code/" + NAME + ".s")
    p.add_argument("--stamps", action="store_true")
    p.add_argument("--probe", default="")
    p.add_argument("--D", type=int, default=6)
    p.add_argument("--prio", type=int, default=0)
    p.add_argument("--otouch", type=int, default=0)
    p.add_argument("--nplain", type=int, default=0)
    p.add_argument("--yearly", type=int, default=0)
    p.add_argument("--recat", type=lambda t: tuple(map(int, t.split(","))), default=(0, 1, 0))
    p.add_argument("--only", default="")
    p.add_argument("--wsoff", type=int, default=0)
    p.add_argument("--gran", type=int, default=4)
    p.add_argument("--late", type=int, default=62)
    p.add_argument("--xpre", type=int, default=2)
    p.add_argument("--xt", default="9:0:8,6:8:16,3:16:24,8:24:32")
    p.add_argument("--lsplit", type=int, default=5)
    p.add_argument("--k1st", default="sc0 sc1")
    p.add_argument("--outst", default="sc0 sc1")
    return p.parse_args(argv)

if __name__ == "__main__":
    opt = options(sys.argv[1:])
    open(opt.o, "w").write(generate(opt))
    if opt.stamps: open(opt.o + ".names", "w").write(repr(STAMPS))
    import subprocess
    here = os.path.dirname(os.path.abspath(__file__))
    r = subprocess.run([sys.executable, here + "/hazards.py", opt.o], capture_output=True, text=True).stdout
    if " 0 finding" not in r: print(r)
    r = subprocess.run([sys.executable, here + "/../cdna_unwritten_srd_check.py", opt.o], capture_output=True, text=True)
    if r.returncode: print(r.stdout, r.stderr)
```

```python
import sys, argparse, os

NAME = "gather_scatter__tensor_product_equiv_tfn__graph"
KERN = NAME + "_kernel"
N, E, C = 10000, 320000, 128
NP, EP = 250, 1280
WS_KEY = 0
WS_REC = 0x280000
WS_WMIX = 0x771000
WS_TAB = 0x780000
WS_EPOCH = WS_TAB + 256 * 4096
WS_END = WS_EPOCH + 128
WS_STAMP = 0x900000
CAP = 1472

class Asm:
    def __init__(self): self.l = []
    def __call__(self, s):
        for line in s.strip("\n").split("\n"):
            line = line.strip()
            if not line: continue
            self.l.append(line if line.endswith(":") else "    " + line)
    def text(self): return "\n".join(self.l) + "\n"

def vr(a, n=1): return f"v{a}" if n == 1 else f"v[{a}:{a+n-1}]"
def sr(a, n=1): return f"s{a}" if n == 1 else f"s[{a}:{a+n-1}]"

SCAN_STEPS = ["row_shr:1 row_mask:0xf bank_mask:0xf bound_ctrl:0", "row_shr:2 row_mask:0xf bank_mask:0xf bound_ctrl:0",
              "row_shr:4 row_mask:0xf bank_mask:0xf bound_ctrl:0", "row_shr:8 row_mask:0xf bank_mask:0xf bound_ctrl:0",
              "row_bcast:15 row_mask:0xa bank_mask:0xf", "row_bcast:31 row_mask:0xc bank_mask:0xf"]
def scan64(a, *regs):
    for c in SCAN_STEPS:
        a("s_nop 1" if len(regs) == 1 else "s_nop 0")
        for v in regs: a(f"v_add_u32_dpp v{v}, v{v}, v{v} {c}")

L_HIST = 0; L_DEG = 1024; L_WT = 1280; L_CNT = L_WT + 16
L_INV = 1344; L_MAP = 1536; L_BASE = 1792
L_SENT = L_BASE + 1024
L_UREC = L_SENT + CAP * 4
L_CG = L_UREC + CAP * 16
L_LUT = 32768
L1_HIST = L_SENT; L1_LNS = L1_HIST + 1024; L1_BASE = L1_LNS + 2048; L1_SREC = L_UREC
L1_SKEY = L_LUT + 53 * 1024
assert L_CG + 128 <= L_LUT and L1_SREC + (EP + 64) * 16 <= L_CG and L1_BASE <= 8192
NLN = 10
L_AGG = L_LUT; AGG_RS = 288
LDS_BYTES = L_LUT + 131072

V_L16 = 1
V_LEN, V_PRE, V_GID = 2, 3, 4
V_AENT, V_POS = 5, 6
V_ONE = 15
V_DEAL = 174
V_DUMMY = 167
V_TOUCH = 166
T0 = 8
ACC = 16; XR = 64; TP = 96; UU = 112; RR = 128; TT = 136; WPK = 140; WTMP = 148
KEY = 164; ENT = 165; RECN = 168; EF = 172; CONST = 176; WMIX = 188
NVGPR = 220
PE, PO, CGB = CONST, CONST + 2, CONST + 4
LJ = 128
S_NODE = 4
S_X, S_WS, S_OUT = 12, 16, 20
S_BETA, S_WAVE, S_N, S_W0, S_NWIN, S_START, S_END, S_REM, S_REMB, S_OFF, S_MASK = range(24, 35)
S_SPIN = 35
S_M = 36
S_T = 42
S_K = 48
S_IN = 40
S_JOB, S_JCNT = 62, 63
S_NLO, S_NHI = 64, 65
S_WM = 10
S_L2E = 10
S_ST = 66
NSGPR = 102

STAMPS = []
def stamp(a, opt, name):
    if opt.probe == name: a("s_memrealtime s[98:99]\ns_waitcnt lgkmcnt(0)\ns_mov_b32 s93, s98")
    if not opt.stamps: return
    if opt.only and name not in opt.only.split(",") + ["start", "sorted", "main done", "stores done 2"]: return
    if name not in STAMPS: STAMPS.append(name)
    a(f"s_memrealtime s[98:99]\ns_waitcnt lgkmcnt(0)\ns_mov_b32 s{S_ST + STAMPS.index(name)}, s98")

S_RET = 6
def lut_sub(a):
    J, Ex, R, P = LJ, LJ + 8, LJ + 16, LJ + 24
    a(f"""LUT_SUB:
    s_lshl_b32 s3, s{S_JOB}, 25
    s_add_u32 s3, s3, 0x8000
    v_lshl_add_u32 v{J}, v{V_L16}, 15, s3""")
    for k in range(1, 8): a(f"v_add_u32 v{J+k}, 0x10000, v{J+k-1}")
    for k in range(0, 8, 2): a(f"v_pk_mul_f32 {vr(Ex+k,2)}, {vr(J+k,2)}, {sr(S_L2E,2)}")
    for k in range(8): a(f"v_exp_f32 v{Ex+k}, v{Ex+k}")
    a(f"s_lshl_b32 s3, s{S_JOB}, 10")
    for k in range(0, 8, 2): a(f"v_pk_add_f32 {vr(R+k,2)}, {vr(Ex+k,2)}, 1.0 op_sel_hi:[1,0]")
    for k in range(8): a(f"v_rcp_f32 v{R+k}, v{R+k}")
    a(f"v_add_u32 v{P+8}, s3, v{V_L16}")
    for k in range(0, 8, 2): a(f"v_pk_mul_f32 {vr(J+k,2)}, {vr(J+k,2)}, {vr(R+k,2)}")
    a(f"v_add_u32 v{P+9}, 0x10000, v{P+8}")
    for k in range(0, 8, 2): a(f"v_pk_mul_f32 {vr(Ex+k,2)}, {vr(J+k,2)}, {vr(Ex+k,2)} neg_lo:[1,0] neg_hi:[1,0]")
    for k in range(4): a(f"v_cvt_pk_bf16_f32 v{P+k}, v{J+2*k}, v{J+2*k+1}")
    for k in range(4): a(f"v_cvt_pk_bf16_f32 v{P+4+k}, v{Ex+2*k}, v{Ex+2*k+1}")
    a(f"""ds_write_b128 v{P+8}, {vr(P,4)} offset:{L_LUT}
    ds_write_b128 v{P+9}, {vr(P+4,4)} offset:{L_LUT}
    s_add_u32 s{S_JOB}, s{S_JOB}, 1
    s_sub_u32 s{S_JCNT}, s{S_JCNT}, 1
    s_cmp_lg_u32 s{S_JCNT}, 0
    s_cbranch_scc1 LUT_SUB
    s_setpc_b64 {sr(S_RET,2)}""")
def lut_jobs(a, count): a(f"s_mov_b32 s{S_JCNT}, {count}\ns_call_b64 {sr(S_RET,2)}, LUT_SUB")

def lut_plain(a, tag, region, last=None, cont=False, until=None):
    P = LJ
    for name, first, end, bias in (("L", 1, 24, 0x20000 - 0x800080), ("H", 34, 62, 0x20000)):
        if name != region: continue
        last = last or end
        if cont: a(f"s_cmp_gt_u32 s{S_JOB}, {last}\ns_cbranch_scc1 LUTP_END_{tag}")
        else: a(f"s_add_u32 s{S_JOB}, s{S_WAVE}, {first}")
        if name == "H" and not cont:
            for k in range(4): a(f"v_mov_b32 v{P+4+k}, 0x80008000")
        a(f"LUTP_{tag}{name}:")
        if until:
            a(f"""ds_read_b32 v{T0+2}, v{T0+3} offset:{L_CNT}
            s_waitcnt lgkmcnt(0)
            v_readfirstlane_b32 s3, v{T0+2}
            s_cmp_eq_u32 s3, 3
            s_cbranch_scc1 {until}""")
        a(f"""s_mul_i32 s3, s{S_JOB}, {512 * 0x10001}
        s_add_u32 s3, s3, {bias & 0xffffffff}
        v_add_u32 v{P}, s3, v{P+10}
        s_lshl_b32 s3, s{S_JOB}, 10
        v_add_u32 v{P+8}, s3, v{V_L16}""")
        for k in range(1, 4): a(f"v_add_u32 v{P+k}, {k * 0x20002}, v{P}")
        a(f"v_add_u32 v{P+9}, 0x10000, v{P+8}")
        if name == "L":
            for k in range(4): a(f"v_or_b32 v{P+4+k}, 0x80008000, v{P+k}")
        a(f"""ds_write_b128 v{P+8}, {vr(P,4)} offset:{L_LUT}
        ds_write_b128 v{P+9}, {vr(P+4,4)} offset:{L_LUT}
        s_add_u32 s{S_JOB}, s{S_JOB}, {5 if name == "L" else 4}
        s_cmp_le_u32 s{S_JOB}, {last}
        s_cbranch_scc1 LUTP_{tag}{name}
        LUTP_END_{tag}:""")

def tab_issue(a): a(f"buffer_load_dwordx4 {vr(RECN,4)}, v{V_POS}, {sr(S_WS,4)}, 0 offen sc1")
def tab_check(a, younger):
    if younger: a(f"s_waitcnt vmcnt({younger})\ns_branch CHECK_TAB")
    a(f"""POLL_TAB:
    s_waitcnt vmcnt(0)
    CHECK_TAB:
    v_lshrrev_b32 v{T0+3}, 22, v{RECN}
    v_cmp_ne_u32 vcc, s{S_NLO}, v{RECN+1}
    v_cmp_ne_u32 {sr(S_T,2)}, s{S_NHI}, v{T0+3}
    s_or_b64 vcc, vcc, {sr(S_T,2)}
    s_and_b64 exec, exec, vcc
    s_cbranch_execz POLLED_TAB
    s_sub_u32 s{S_SPIN}, s{S_SPIN}, 1
    s_cbranch_scc1 END""")
    tab_issue(a)
    a("s_branch POLL_TAB\nPOLLED_TAB:\ns_mov_b64 exec, -1")

def load_epoch(a):
    a(f"""s_add_u32 s4, s{S_WS}, {WS_EPOCH}
    s_addc_u32 s5, s{S_WS+1}, 0
    s_load_dwordx2 {sr(S_NLO,2)}, s[4:5], 0""")
def make_tag(a):
    a(f"""s_add_u32 s{S_NLO}, s{S_NLO}, 1
    s_and_b32 s{S_NHI}, s{S_NHI}, 0x3ff""")

def scan256(a, H_, O_):
    a(f"""v_add_u32 v{T0+2}, v{H_}, v{H_+1}
    v_add3_u32 v{T0+2}, v{T0+2}, v{H_+2}, v{H_+3}
    v_mov_b32 v{T0+3}, v{T0+2}""")
    scan64(a, T0 + 3)
    a(f"""v_sub_u32 v{O_}, v{T0+3}, v{T0+2}
    v_add_u32 v{O_+1}, v{O_}, v{H_}
    v_add_u32 v{O_+2}, v{O_+1}, v{H_+1}
    v_add_u32 v{O_+3}, v{O_+2}, v{H_+2}""")

SRC, DST, YY, EFP, WRAD, CG, WMX = S_IN + 2, S_IN + 4, S_IN + 6, S_IN + 8, S_IN + 10, S_IN + 12, S_IN + 14
D_, S_, Y_, F_, B_, R_, H_, O_, TB = 64, 68, 72, 80, 88, 92, 96, 100, 108
CT = WMIX
def const_sub(a):
    a(f"""CONST_SUB:
    ds_write_b32 v{CT+5}, v{CT+4} offset:{L_CG}
    v_lshrrev_b32 v{CT+5}, 3, v{V_L16}
    v_and_b32 v{CT+5}, 24, v{CT+5}
    s_mov_b32 s4, 0x05040100
    s_mov_b32 s5, 0x07060302""")
    for i in range(4): a(f"ds_read_b64_tr_b16 {vr(CGB+2*i,2)}, v{CT+5} offset:{L_CG + 32*i}")
    for u in range(2):
        a(f"v_perm_b32 v{PE+u}, v{CT+1+2*u}, v{CT+2*u}, s4\nv_perm_b32 v{PO+u}, v{CT+1+2*u}, v{CT+2*u}, s5")
    a(f"s_setpc_b64 {sr(S_RET,2)}")
def const_finish(a): a(f"s_call_b64 {sr(S_RET,2)}, CONST_SUB")

def load_yf(a):
    a(f"""global_load_dwordx4 {vr(Y_,4)}, v{T0+1}, {sr(YY,2)}
    global_load_dwordx4 {vr(Y_+4,4)}, v{T0+1}, {sr(YY,2)} offset:16
    global_load_dwordx4 {vr(F_,4)}, v{T0+1}, {sr(EFP,2)}
    global_load_dwordx4 {vr(F_+4,4)}, v{T0+1}, {sr(EFP,2)} offset:16""")

def phase1(a, opt):
    st = lambda n: stamp(a, opt, n)
    WS = sr(S_WS, 2); FL = opt.k1st
    a(f"""s_cmp_ge_u32 s{S_WAVE}, 5
    s_cbranch_scc1 HELP""")
    if opt.yearly == 2:
        a(f"s_cmp_ge_u32 s2, {NP}\ns_cbranch_scc1 NO_YF")
        load_yf(a)
        a("NO_YF:")
    lut_plain(a, "W0", "L", last=opt.lsplit)
    a(f"""s_cmp_ge_u32 s2, {NP}
    s_cbranch_scc1 AUX""")
    if not opt.yearly: load_yf(a)
    st('jobs A')
    early = ("," + opt.xt).count(",10:")
    a(f"s_waitcnt vmcnt({11 + early})")
    st('dst arrived')
    for k in range(4):
        a(f"""v_and_b32 v{B_+k}, 0xff, v{D_+k}
              v_lshlrev_b32 v{B_+k}, 2, v{B_+k}
              ds_add_rtn_u32 v{R_+k}, v{B_+k}, v{V_ONE} offset:{L1_HIST}""")
    a(f"s_waitcnt vmcnt({10 + early})")
    for k in range(4):
        a(f"""v_lshrrev_b32 v{D_+k}, 8, v{D_+k}
              v_lshl_or_b32 v{TB+2*k}, v{S_+k}, 10, v{D_+k}""")
    a(f"""s_mov_b32 s9, {L1_SKEY}
    s_waitcnt lgkmcnt(0)
    s_barrier
    ds_read_b128 {vr(H_,4)}, v{V_L16} offset:{L1_HIST}""")
    make_tag(a)
    for k in range(4): a(f"v_mov_b32 v{TB+2*k+1}, s{S_NLO}")
    a("v_mov_b32 v119, 0")
    for k in range(4):
        a(f"""v_cmp_gt_u32 vcc, {NLN}, v{R_+k}
              v_mul_u32_u24 v116, 6, v{R_+k}
              v_lshlrev_b32 v117, 1, v{B_+k}
              v_cndmask_b32 v118, 0, v{D_+k}, vcc
              v_lshlrev_b64 {vr(120+2*(k%2),2)}, v116, v[118:119]
              ds_or_b64 v117, {vr(120+2*(k%2),2)} offset:{L1_LNS}""")
    a("s_waitcnt lgkmcnt(4)")
    scan256(a, H_, O_)
    a(f"ds_write_b128 v{V_L16}, {vr(O_,4)} offset:{L1_BASE}")
    for k in range(4): a(f"ds_read_b32 v{H_+k}, v{B_+k} offset:{L1_BASE}")
    for k in range(4):
        a(f"""s_waitcnt lgkmcnt(3)
              v_add_u32 v{R_+k}, v{R_+k}, v{H_+k}
              v_lshl_add_u32 v{B_+k}, v{R_+k}, 3, s9
              ds_write_b64 v{B_+k}, {vr(TB+2*k,2)}""")
    for k in range(4):
        a(f"v_lshlrev_b32 v{R_+k}, 4, v{R_+k}\nv_add_u32 v{R_+k}, {L1_SREC}, v{R_+k}")
    a("s_waitcnt lgkmcnt(0)\ns_barrier")
    st('keys binned')
    a("s_waitcnt vmcnt(0)")
    x_touch(a, opt, 9, False)
    for k in range(4):
        a(f"ds_write2_b64 v{R_+k}, {vr(Y_+2*k,2)}, {vr(F_+2*k,2)} offset0:0 offset1:1")
    st('recs binned')
    a("BINNED:\ns_setprio 0")
    a(f"s_waitcnt lgkmcnt(0)\ns_barrier\nv_mov_b32 v{V_LEN}, 0")
    const_finish(a)
    lut_plain(a, "W", "L", cont=True)
    a(f"s_cmp_eq_u32 s{S_WAVE}, 4\ns_cbranch_scc1 WAVE4")
    lut_plain(a, "U", "H", last=opt.late)
    tab_issue(a)
    x_touch(a, opt, 6, False)
    st('tab issued')
    if opt.late < 62: lut_plain(a, "V", "H", cont=True)
    tab_check(a, ("," + opt.xt).count(",6:"))
    st('tab arrived')
    a("s_branch TAB_DONE")
    lut_sub(a)
    const_sub(a)
    a("HELP:")
    a(f"""s_sub_u32 s8, s{S_WAVE}, 5
    s_mul_i32 s4, s8, 3072
    s_cmp_eq_u32 s8, 1
    s_cselect_b32 s4, 4096, s4
    s_mul_i32 s3, s2, {EP * 8}
    s_add_u32 s3, s3, s4
    v_add_u32 v{T0}, s3, v{V_L16}
    s_add_u32 s4, s4, {L1_SKEY}
    v_add_u32 v{T0+1}, s4, v{V_L16}
    s_mul_i32 s4, s8, 7168
    s_mul_i32 s3, s2, {EP * 16}
    s_add_u32 s3, s3, s4
    s_add_u32 s3, s3, {WS_REC}
    v_add_u32 v{T0+4}, s3, v{V_L16}
    v_add_u32 v{T0+5}, s4, v{V_L16}
    s_lshl_b32 s3, s2, 12
    s_add_u32 s3, s3, {WS_TAB}
    v_add_u32 v117, s3, v{V_L16}
    s_waitcnt lgkmcnt(0)""")
    make_tag(a)
    st('help jobs')
    a(f"""s_barrier
    s_cmp_eq_u32 s{S_WAVE}, 6
    s_cbranch_scc1 ROW
    s_cmp_eq_u32 s{S_WAVE}, 7
    s_cselect_b32 s{S_JOB}, 63, 0""")
    lut_jobs(a, 1)
    a("s_waitcnt vmcnt(0)")
    const_finish(a)
    a(f"""v_mov_b32 v{T0+2}, {0x7f80 * 2}
    v_mov_b32 v{T0+3}, 0x7f80
    s_cmp_lg_u32 s{S_WAVE}, 7
    s_cbranch_scc1 NO_ROW
    ds_write_b16 v{T0+2}, v{T0+3} offset:{L_LUT}
    s_branch NO_ROW
ROW:
    v_lshrrev_b32 v116, 2, v{V_L16}""")
    QT, HH, SS = 84, 100, 104
    for m in range(4): a(f"ds_read_b32 v{HH+m}, v116 offset:{L1_HIST + 256*m}")
    a(f"""s_lshl_b32 s3, s2, 12
    s_add_u32 s3, s3, {WS_TAB}
    v_add_u32 v117, s3, v{V_L16}
    v_lshrrev_b32 v116, 1, v{V_L16}
    s_lshl_b32 s3, s{S_NHI}, 22
    s_waitcnt lgkmcnt(0)""")
    for m in range(4): a(f"v_mov_b32 v{SS+m}, v{HH+m}")
    scan64(a, SS, SS + 1, SS + 2, SS + 3)
    a(f"""v_readlane_b32 s4, v{SS}, 63
    v_readlane_b32 s5, v{SS+1}, 63
    v_readlane_b32 s9, v{SS+2}, 63""")
    for m in range(4): a(f"v_sub_u32 v{SS+m}, v{SS+m}, v{HH+m}")
    a(f"""s_add_u32 s5, s5, s4
    s_add_u32 s9, s9, s5
    v_add_u32 v{SS+1}, s4, v{SS+1}
    v_add_u32 v{SS+2}, s5, v{SS+2}
    v_add_u32 v{SS+3}, s9, v{SS+3}""")
    for m in range(4):
        a(f"""v_lshl_or_b32 v{QT+4*m}, v{HH+m}, 11, v{SS+m}
              v_or_b32 v{QT+4*m}, s3, v{QT+4*m}
              v_mov_b32 v{QT+4*m+1}, s{S_NLO}""")
    a("s_waitcnt vmcnt(0)")
    const_finish(a)
    a(f"""NO_ROW:
    s_barrier
    s_cmp_lg_u32 s{S_WAVE}, 6
    s_cbranch_scc1 ROW_DONE""")
    for m in range(4): a(f"ds_read_b64 {vr(QT+4*m+2,2)}, v116 offset:{L1_LNS + 512*m}")
    for m in range(4): a(f"s_waitcnt lgkmcnt({3-m})\nglobal_store_dwordx4 v117, {vr(QT+4*m,4)}, {WS} offset:{1024*m} sc0 sc1")
    st('table published')
    a("ROW_DONE:")
    for k in range(4): a(f"ds_read_b128 {vr(64+4*k,4)}, v{T0+1} offset:{1024*k}")
    a(f"""v_mov_b32 v{V_LEN}, 0
    s_add_u32 s{S_JOB}, s8, s8                       ; jobs 27, 28 / 29, 30, 31 / 32, 33
    s_add_u32 s{S_JOB}, s{S_JOB}, 27
    s_cmp_eq_u32 s8, 2
    s_addc_u32 s{S_JOB}, s{S_JOB}, 0
    s_cmp_eq_u32 s8, 1
    s_cselect_b32 s{S_JCNT}, 3, 2
    s_waitcnt lgkmcnt(0)
    s_barrier
    s_cmp_ge_u32 s2, {NP}
    s_cbranch_scc1 RECS_STORED""")
    for k in range(7): a(f"ds_read_b128 {vr(84+4*k,4)}, v{T0+5} offset:{L1_SREC + 1024*k}")
    for k in range(7):
        if k == 4: a(f"v_add_u32 v{T0+4}, 4096, v{T0+4}")
        if k == 6: a(f"s_cmp_eq_u32 s8, 2\ns_cbranch_scc1 RECS_STORED")
        a(f"s_waitcnt lgkmcnt({6-k})\nglobal_store_dwordx4 v{T0+4}, {vr(84+4*k,4)}, {WS} offset:{(1024*k) % 4096} {FL}")
    a(f"""RECS_STORED:
    s_call_b64 {sr(S_RET,2)}, LUT_SUB
    s_cmp_ge_u32 s2, {NP}
    s_cbranch_scc1 TAB_DONE
    v_mov_b32 v{T0+2}, 0
    s_waitcnt vmcnt(0)
    s_mov_b64 exec, 1
    ds_add_u32 v{T0+2}, v{V_ONE} offset:{L_CNT}
    s_mov_b64 exec, -1
WAIT_ACK:
    ds_read_b32 v{T0+3}, v{T0+2} offset:{L_CNT}
    s_waitcnt lgkmcnt(0)
    v_readfirstlane_b32 s3, v{T0+3}
    s_cmp_eq_u32 s3, 3
    s_cbranch_scc0 WAIT_ACK""")
    st('recs acked')
    for k in range(4):
        if k == 2: a(f"s_cmp_eq_u32 s8, 1\ns_cbranch_scc1 TAB_DONE")
        a(f"global_store_dwordx4 v{T0}, {vr(64+4*k,4)}, {WS} offset:{1024*k} {FL}")
    a("s_branch TAB_DONE")
    a(f"""AUX_LOAD:
    s_sub_u32 s4, s2, {NP}
    s_cmp_ge_u32 s4, 4
    s_cbranch_scc1 NO_EDGES
    s_cmp_ge_u32 s{S_WAVE}, 4
    s_cbranch_scc1 NO_EDGES
    s_lshl_b32 s5, s{S_WAVE}, 13
    s_lshl_b32 s8, s4, 6
    s_add_u32 s5, s5, s8
    v_lshrrev_b32 v80, 8, v{V_L16}
    v_lshlrev_b32 v80, 11, v80
    v_bfe_u32 v81, v{V_L16}, 4, 4
    v_lshl_add_u32 v80, v81, 2, v80
    v_add_u32 v80, s5, v80""")
    for t in range(8): a(f"global_load_dword v{64+t}, v80, {sr(WMX,2)} offset:{t*256}")
    a(f"""s_branch NO_EDGES
AUX:
    s_cmp_ge_u32 s2, {NP + 4}
    s_cbranch_scc1 AUX_DONE
    s_cmp_ge_u32 s{S_WAVE}, 4
    s_cbranch_scc1 AUX_DONE
    s_sub_u32 s4, s2, {NP}
    s_lshl_b32 s5, s4, 13
    s_lshl_b32 s8, s{S_WAVE}, 10
    s_add_u32 s5, s5, s8
    s_add_u32 s5, s5, {WS_WMIX}
    v_add_u32 v81, s5, v{V_L16}
    s_mov_b32 s4, 0x05040100
    s_mov_b32 s5, 0x07060302
    s_waitcnt vmcnt({6 + early})""")
    for u in range(4):
        a(f"v_perm_b32 v{72+u}, v{65+2*u}, v{64+2*u}, s4\nv_perm_b32 v{76+u}, v{65+2*u}, v{64+2*u}, s5")
    a(f"""global_store_dwordx4 v81, v[72:75], {WS} {FL}
    v_add_u32 v81, 4096, v81
    global_store_dwordx4 v81, v[76:79], {WS} {FL}
AUX_DONE:
    s_waitcnt lgkmcnt(0)""")
    make_tag(a)
    a(f"""s_barrier
    s_waitcnt vmcnt(0)
    s_barrier
    s_branch BINNED
WAVE4:
    s_mov_b32 s{S_JOB}, 25""")
    lut_jobs(a, 2)
    a("TAB_DONE:")

def mfma4(d, a_, b, c, blk=None):
    cc = "0" if c is None else vr(c, 4)
    return f"v_mfma_f32_4x4x4_16b_bf16 {vr(d,4)}, {vr(a_,2)}, {vr(b,2)}, {cc}" + ("" if blk is None else f" cbsz:4 abid:{blk}")
def p_mfma(g, odd):
    return mfma4(UU + 8 * (g % 2) + 4 * odd, EF, PO if odd else PE, None, g % 16)
def t_mfma(e, odd):
    return mfma4(TP + 8 * (e % 2) + 4 * odd, WPK + 2 * (e % 4), XR + 4 * (e % 8) + 2 * odd, None, (e % 64) // 4)
def act_regs(eb, odd):
    return UU + 8 * ((eb // 4) % 2) + 4 * odd + eb % 4, RR + 4 * ((eb // 2) % 2) + 2 * odd
def act_addr(t, u):
    return f"v_lshlrev_b32_sdwa v{t}, v{V_ONE}, v{u} dst_sel:DWORD dst_unused:UNUSED_PAD src0_sel:DWORD src1_sel:WORD_1"
def act_read(r, t): return f"ds_read_u16_d16_hi v{r}, v{t} offset:{L_LUT}"
def fma4(a, q):
    h = q % 2
    a(f"s_set_gpr_idx_on s{S_K + q % 16}, 0xc")
    for odd in range(2):
        r = RR + 4 * ((q // 2) % 2) + 2 * odd
        for o in (0, 2):
            acc = ACC + 4 * odd + o; tp = TP + 8 * (q % 2) + 4 * odd + o
            a(f"v_pk_fma_f32 {vr(acc,2)}, {vr(r,2)}, {vr(tp,2)}, {vr(acc,2)} op_sel:[{h},0,0] op_sel_hi:[{h},1,1]")
    a("s_set_gpr_idx_off")
def meta_read_entry(a): a(f"ds_read_b32 v{ENT}, v{V_AENT}")
def meta_fix_entry(a, rec=True):
    a(f"""v_cmp_gt_u32 vcc, s{S_END}, v{V_POS}
          v_add_u32 v{V_POS}, 64, v{V_POS}
          v_add_u32 v{V_AENT}, 256, v{V_AENT}
          v_cndmask_b32 v{ENT}, 40, v{ENT}, vcc
          v_lshrrev_b32 v{T0}, 21, v{ENT}
          v_lshlrev_b32 v{T0}, 4, v{T0}
          v_lshlrev_b32 v{T0+1}, 3, v{ENT}""")
    if rec: meta_read_rec(a)
    a(f"""v_and_b32 v{T0+1}, 0xfffc00, v{T0+1}
          v_and_or_b32 v{ENT}, v{ENT}, 56, v{T0+1}""")
def meta_read_rec(a): a(f"ds_read_b128 {vr(RECN,4)}, v{T0} offset:{L_UREC}")
def w_mfma(i): return mfma4(WTMP + 4 * i, RECN, CGB + 2 * i, None)
def w_cvt(a, m):
    a(f"""v_cvt_pk_bf16_f32 v{WPK+2*m}, v{WTMP+m}, v{WTMP+4+m}
          v_cvt_pk_bf16_f32 v{WPK+2*m+1}, v{WTMP+8+m}, v{WTMP+12+m}""")

def step(a, opt, q, drain=None):
    D = opt.D; loads = drain is None
    eb = q + 2 - q % 2; odd = q % 2
    u, r = act_regs(eb, odd); t = TT + 2 * odd
    g, ur = (q + 6) // 4, (q + 6) % 4
    if ur % 2 == 0: a(p_mfma(g, ur // 2))
    elif 40 <= q < 48: a(w_mfma((q - 40) // 2))
    a(act_addr(t, u))
    if loads: a(f"s_waitcnt vmcnt({D - 2})")
    elif D - 2 - drain >= 0: a(f"s_waitcnt vmcnt({8 + D - 2 - drain})")
    a(t_mfma(q + 1, 0))
    if loads: a(f"v_readlane_b32 s{S_K + (q + D) % 16}, v{KEY if q + D < 64 else ENT}, {(q + D) % 64}")
    else:     a("s_nop 0")
    a(t_mfma(q + 1, 1))
    a(act_addr(t + 1, u + 1))
    a(act_read(r, t)); a(act_read(r + 1, t + 1))
    if q >= 60: w_cvt(a, q - 60)
    if loads:
        a(f"s_and_b32 s{S_OFF}, s{S_K + (q + D) % 16}, s{S_MASK}")
        a(f"buffer_load_dwordx4 {vr(XR + 4 * ((q + D) % 8), 4)}, v{V_L16}, {sr(S_X,4)}, s{S_OFF} offen")
    if q % 2 == 0: a("s_waitcnt lgkmcnt(2)")
    fma4(a, q)
    if loads: x_touch(a, opt, 100 + q, False)
    if loads and q == 8: meta_read_entry(a)
    if loads and q == 12: meta_fix_entry(a)
    if q == 57: a(f"v_mov_b32 v{EF}, v{RECN+2}\nv_mov_b32 v{EF+1}, v{RECN+3}\ns_nop 1")
    if loads and q == 63: a(f"v_mov_b32 v{KEY}, v{ENT}")

def body(a, opt):
    G = opt.gran
    for q in range(64):
        if q % G == 0: a(f"A_{q}:\ns_sub_u32 s{S_REM}, s{S_REM}, {G}\ns_cbranch_scc1 B_{q}")
        step(a, opt, q)
    if opt.stamps and not opt.only:
        STAMPS.extend(("batch 1", "batch 2")); k = S_ST + len(STAMPS) - 2
        a(f"""s_memrealtime s[98:99]
        s_waitcnt lgkmcnt(0)
        s_cmp_eq_u32 s{k}, 0
        s_cselect_b32 s99, 0, s98
        s_cselect_b32 s{k}, s98, s{k}
        s_cmp_eq_u32 s{k+1}, 0
        s_cselect_b32 s{k+1}, s99, s{k+1}""")
    if opt.probe == "batch 1":
        a("s_memrealtime s[98:99]\ns_waitcnt lgkmcnt(0)\ns_cmp_eq_u32 s93, 0\ns_cselect_b32 s93, s98, s93")
    a("s_branch A_0")
    for q in range(0, 64, G):
        a(f"B_{q}:")
        for k in range(8):
            a(f"buffer_load_dwordx4 {vr(WMIX+4*k,4)}, v{V_L16}, {sr(S_WS,4)}, s{S_WM + k // 4} offen offset:{(k%4)*1024} sc1")
        for i in range(opt.D):
            a(f"s_sub_u32 s{S_REMB}, s{S_REMB}, 1\ns_cbranch_scc1 MAIN_DONE")
            step(a, opt, (q + i) % 64, i)
        a("s_branch MAIN_DONE")

def x_touch(a, opt, where, guard=True):
    for spec in filter(None, opt.xt.split(",")):
        w, lo, hi = map(int, spec.split(":"))
        if w != where: continue
        if guard: a(f"s_cmp_lg_u32 s{S_W0}, 0\ns_cbranch_scc1 NO_X_TOUCH_{w}")
        if w >= 100: a(f"s_bitcmp1_b32 s3, {w % 32}\ns_cbranch_scc1 NO_X_TOUCH_{w}\ns_bitset1_b32 s3, {w % 32}")
        four = w in (6, 9)
        if w == 9: a(f"s_cmp_eq_u32 s{S_WAVE}, 4\ns_cbranch_scc1 NO_X_TOUCH_{w}")
        a(f"""s_lshl_b32 s{S_OFF}, s2, {2 if four else 3}
        s_add_u32 s{S_OFF}, s{S_OFF}, s{S_WAVE}
        s_lshl_b32 s{S_OFF}, s{S_OFF}, 7
        s_add_u32 s{S_OFF}, s{S_OFF}, {lo << 18}
        v_min_u32 v{V_TOUCH}, {(((hi - lo) << four) - 1) * 16}, v{V_L16}
        v_lshl_add_u32 v{V_TOUCH}, v{V_TOUCH}, {14 - four}, s{S_OFF}
        buffer_load_dword v{V_DUMMY}, v{V_TOUCH}, {sr(S_X,4)}, 0 offen""")
        a(f"NO_X_TOUCH_{w}:")

DEAL = ([4, 2, 4, 7, 6, 3, 1, 5, 0, 4, 2, 6, 1, 7, 3, 5, 0, 4, 7, 3, 0, 1, 5, 6, 2, 5, 0, 1, 6, 7, 3, 2, 0, 5, 3, 1, 6, 7, 2, 4],
        [0, 2, 7, 1, 4, 6, 5, 3, 6, 3, 1, 7, 4, 0, 2, 5, 4, 3, 5, 6, 7, 1, 0, 2, 7, 5, 2, 4, 3, 6, 0, 1, 5, 1, 3, 6, 4, 2, 7, 0])
def deal_bytes():
    out = []
    for t in DEAL:
        assert sorted(t) == sorted(list(range(8)) * 5)
        out += [4 * (5 * w + t[:r].count(w)) | (8 * w + t[:r].count(w)) << 8 for r, w in enumerate(t)] + [0] * 24
    return out

def zero_hist(a):
    a(f"""v_lshlrev_b32 v{T0+3}, 2, v0
    v_mov_b32 v{T0+4}, 0
    v_cmp_gt_u32 vcc, 0x100, v0
    s_and_saveexec_b64 {sr(S_T,2)}, vcc
    ds_write_b32 v{T0+3}, v{T0+4} offset:{L_HIST}
    s_mov_b64 exec, {sr(S_T,2)}""")

def kernel(opt):
    a = Asm(); D = opt.D
    st = lambda n: stamp(a, opt, n)
    a(f"""{KERN}:
    s_cmp_ge_u32 s2, 256
    s_cbranch_scc1 END""")
    if opt.probe: a("s_mov_b32 s93, 0\ns_memrealtime s[98:99]\ns_waitcnt lgkmcnt(0)\ns_mov_b32 s92, s98")
    if opt.stamps:
        for k in range(32): a(f"s_mov_b32 s{S_ST+k}, 0")
    st('start')
    a(f"""s_load_dwordx16 {sr(S_IN,16)}, s[0:1], 0
    s_load_dwordx2 {sr(S_WS,2)}, s[0:1], 80
    s_load_dwordx2 {sr(S_X,2)}, s[0:1], 0
    s_load_dwordx2 {sr(S_OUT,2)}, s[0:1], 64
    ; wave 7 of every workgroup takes 8 lines; the 32 workgroups with equal id % 8 cover 32 KiB
    s_getpc_b64 s[6:7]
CODE_HERE:
    v_lshrrev_b32 v{T0}, 6, v0
    s_lshr_b32 s5, s2, 3
    s_lshl_b32 s4, s5, 10
    v_readfirstlane_b32 s{S_WAVE}, v{T0}
    v_and_b32 v{T0+2}, 7, v0
    v_lshl_add_u32 v{T0+2}, v{T0+2}, 7, s4
    v_min_u32 v{T0+2}, END-CODE_HERE, v{T0+2}
    s_cmp_lg_u32 s{S_WAVE}, 7
    s_cbranch_scc1 NO_CODE_TOUCH
    global_load_dword v{V_DUMMY}, v{T0+2}, s[6:7]
NO_CODE_TOUCH:
    s_mul_i32 s3, s2, {EP * 4}
    v_lshl_add_u32 v{T0}, v0, 4, s3
    v_and_b32 v{T0+2}, 63, v0
    v_lshlrev_b32 v{V_L16}, 4, v{T0+2}
    v_lshlrev_b32 v{CT+5}, 2, v{T0+2}
    v_lshlrev_b32 v{T0+3}, 4, v0
    v_mov_b32 v{T0+4}, 0
    v_mov_b32 v{T0+5}, 0
    v_pk_mov_b32 {vr(ACC,2)}, {vr(T0+4,2)}, {vr(T0+4,2)}
    v_pk_mov_b32 {vr(ACC+2,2)}, {vr(T0+4,2)}, {vr(T0+4,2)}
    ds_write_b128 v{T0+3}, {vr(ACC,4)}
    s_cmp_ge_u32 s{S_WAVE}, 5
    s_waitcnt lgkmcnt(0)
    s_cbranch_scc1 NO_EDGES
    s_cmp_ge_u32 s2, {NP}
    s_cbranch_scc1 AUX_LOAD
    s_setprio 1
    global_load_dwordx4 {vr(D_,4)}, v{T0}, {sr(DST,2)}
    global_load_dwordx4 {vr(S_,4)}, v{T0}, {sr(SRC,2)}
NO_EDGES:""")
    if opt.wsoff: a(f"s_add_u32 s{S_WS}, s{S_WS}, {opt.wsoff << 20}\ns_addc_u32 s{S_WS+1}, s{S_WS+1}, 0")
    load_epoch(a)
    st('kernargs')
    for k in range(4): a(f"global_load_dword v{CT+k}, v{CT+5}, {sr(WRAD,2)} offset:{k*256}")
    a(f"""v_and_b32 v{CT+5}, 0x7f, v{CT+5}
    global_load_dword v{CT+4}, v{CT+5}, {sr(CG,2)}
    s_and_b32 s3, s2, 0x87
    s_cmp_eq_u32 s3, 0
    s_cselect_b32 s3, 128, 0
    s_add_u32 s3, s3, DEAL_TABLE-CODE_HERE
    v_lshl_add_u32 v{V_DEAL}, v{T0+2}, 1, s3
    global_load_ushort v{V_DEAL}, v{V_DEAL}, s[6:7]
    s_mov_b32 s{S_X+2}, {N * 1024}
    s_mov_b32 s{S_X+3}, 0x20000""")
    x_touch(a, opt, 10, False)
    a(f"v_lshlrev_b32 v{T0+1}, 1, v{T0}")
    if opt.yearly == 1:
        a(f"""s_cmp_ge_u32 s{S_WAVE}, 5
        s_cbranch_scc1 NO_YF
        s_cmp_ge_u32 s2, {NP}
        s_cbranch_scc1 NO_YF""")
        load_yf(a)
        a("NO_YF:")
    a(f"""
    s_and_b32 s4, s2, 7
    s_lshl_b32 s4, s4, 5
    s_lshr_b32 s5, s2, 3
    s_or_b32 s{S_BETA}, s4, s5
    v_mov_b32 v{V_ONE}, 1
    s_mov_b32 s{S_WS+2}, {WS_END if not opt.stamps else WS_STAMP + 0x80000}
    s_mov_b32 s{S_WS+3}, 0x20000
    s_mov_b32 s{S_OUT+2}, {N * 1024}
    s_mov_b32 s{S_OUT+3}, 0x20000
    s_mov_b32 s{S_MASK}, 0xfffffc00
    s_mov_b32 s{S_W0}, 0
    s_mov_b32 s{S_L2E}, 0xbfb8aa3b
    s_mov_b32 s{S_L2E+1}, 0xbfb8aa3b
    s_mov_b32 s{S_SPIN}, {1 << 21}
    v_and_b32 v{V_GID}, 0xff, v0
    s_lshl_b32 s3, s{S_BETA}, 4
    s_add_u32 s3, s3, {WS_TAB}
    v_lshl_add_u32 v{V_POS}, v{V_GID}, 12, s3
    v_mul_u32_u24 v{V_GID}, {EP}, v{V_GID}
    v_mul_u32_u24 v{LJ+10}, 0x8000, v{V_L16}
    v_lshl_add_u32 v{LJ+10}, v{T0+2}, 3, v{LJ+10}    ; lane * 8 * 0x10001""")
    for k in range(4, 48, 2): a(f"v_pk_mov_b32 {vr(ACC+k,2)}, {vr(T0+4,2)}, {vr(T0+4,2)}")
    a("s_barrier")
    phase1(a, opt)
    a(f"""s_cmp_ge_u32 s{S_WAVE}, 4
    s_cbranch_scc1 TOTALS
    v_and_b32 v{T0+5}, 0x7ff, v{RECN}
    v_bfe_u32 v{V_LEN}, v{RECN}, 11, 11
    v_add_u32 v{V_GID}, v{V_GID}, v{T0+5}
    v_mov_b32 v{V_PRE}, v{V_LEN}""")
    scan64(a, V_PRE)
    a(f"""s_lshl_b32 s3, s{S_WAVE}, 2
    v_mov_b32 v{T0+2}, s3
    v_add_u32 v{T0+3}, 1, v{V_PRE}
    v_sub_u32 v{V_PRE}, v{V_PRE}, v{V_LEN}
    s_mov_b32 exec_lo, 0
    s_mov_b32 exec_hi, 0x80000000
    ds_write_b32 v{T0+2}, v{T0+3} offset:{L_WT}
    s_mov_b64 exec, -1
TOTALS:
    v_mov_b32 v{T0+2}, 0
TOTALS_SPIN:
    ds_read_b128 {vr(XR,4)}, v{T0+2} offset:{L_WT}
    s_waitcnt lgkmcnt(0)""")
    for k in range(4): a(f"v_readfirstlane_b32 s{4+k}, v{XR+k}")
    a(f"""s_min_u32 s3, s4, s5
    s_min_u32 s8, s6, s7
    s_min_u32 s3, s3, s8
    s_cmp_eq_u32 s3, 0
    s_cbranch_scc0 TOTALS_OK
    s_sub_u32 s{S_SPIN}, s{S_SPIN}, 1
    s_cbranch_scc0 TOTALS_SPIN
    s_endpgm
TOTALS_OK:
    s_add_u32 s5, s5, s4
    s_add_u32 s6, s6, s5
    s_add_u32 s7, s7, s6
    s_sub_u32 s{S_N}, s7, 4
    s_cmp_eq_u32 s{S_WAVE}, 1
    s_cselect_b32 s3, s4, 0
    s_cmp_eq_u32 s{S_WAVE}, 2
    s_cselect_b32 s3, s5, s3
    s_cmp_eq_u32 s{S_WAVE}, 3
    s_cselect_b32 s3, s6, s3
    s_sub_u32 s3, s3, s{S_WAVE}
    v_add_u32 v{V_PRE}, s3, v{V_PRE}
    s_cmp_lg_u32 s{S_WAVE}, 4
    s_cbranch_scc1 EPOCH_DONE
    s_cmp_lg_u32 s2, 0
    s_cbranch_scc1 EPOCH_DONE
    v_mov_b32 v{T0+4}, s{S_NLO}
    v_mov_b32 v{T0+2}, {WS_EPOCH}
    s_mov_b64 exec, 1
    global_store_dword v{T0+2}, v{T0+4}, {sr(S_WS,2)} sc0 sc1
    s_mov_b64 exec, -1
EPOCH_DONE:""")
    x_touch(a, opt, 3, False)
    st('prefix done')
    a(f"""ROUND:
    v_mov_b32 v{T0}, 0
    v_subrev_u32 v{T0+1}, s{S_W0}, v{V_PRE}
    v_mov_b32 v{T0+2}, v{V_GID}
    s_mov_b32 s3, {CAP}
    s_cmp_gt_u32 s{S_N}, {CAP}
    s_cbranch_scc1 EXPAND
    v_lshlrev_b32 v{T0+3}, 2, v{V_PRE}""")
    for j in range(16):
        a(f"v_cmpx_lt_u32 vcc, {j}, v{V_LEN}")
        if j % 2 == 0 and j >= 6: a("s_cbranch_execz EXPAND_DONE")
        a(f"ds_write_b32 v{T0+3}, v{T0+2} offset:{L_SENT + 4*j}\nv_add_u32 v{T0+2}, 1, v{T0+2}")
    a(f"""v_mov_b32 v{T0}, 16
    v_add_u32 v{T0+1}, 16, v{T0+1}
EXPAND:
    v_cmp_lt_u32 vcc, v{T0}, v{V_LEN}
    s_and_b64 exec, exec, vcc
    s_cbranch_execz EXPAND_DONE
    v_cmp_gt_u32 vcc, s3, v{T0+1}
    v_lshlrev_b32 v{T0+3}, 2, v{T0+1}
    s_and_saveexec_b64 {sr(S_T,2)}, vcc
    ds_write_b32 v{T0+3}, v{T0+2} offset:{L_SENT}
    s_mov_b64 exec, {sr(S_T,2)}
    v_add_u32 v{T0}, 1, v{T0}
    v_add_u32 v{T0+1}, 1, v{T0+1}
    v_add_u32 v{T0+2}, 1, v{T0+2}
    s_branch EXPAND
EXPAND_DONE:
    s_mov_b64 exec, -1
    s_sub_u32 s{S_NWIN}, s{S_N}, s{S_W0}
    s_min_u32 s{S_NWIN}, s{S_NWIN}, {CAP}
    v_lshlrev_b32 v{T0}, 2, v0""")
    for i in range(3):
        a(f"""v_add_u32 v{T0+1}, {512*i}, v0
              v_cmp_gt_u32 {sr(S_M+2*i,2)}, s{S_NWIN}, v{T0+1}""")
    st('list built')
    a("s_waitcnt lgkmcnt(0)\ns_barrier")
    st('list barrier')
    G = XR
    KP = TP
    for i in range(3): a(f"ds_read_b32 v{G+i}, v{T0} offset:{L_SENT + 2048*i}")
    a(f"""s_mov_b32 s{S_T+2}, 13421                         ; 32 * 2^32 / (10000 * 1024)
    s_waitcnt lgkmcnt(0)""")
    for i in range(3):
        a(f"v_lshlrev_b32 v{G+4+i}, 3, v{G+i}\nv_lshlrev_b32 v{G+i}, 4, v{G+i}")
    def key_loads(tag):
        a(f"""s_mov_b64 exec, {sr(S_M+4,2)}
        s_cbranch_execz SKIP3{tag}
        buffer_load_dwordx2 {vr(KP+4,2)}, v{G+6}, {sr(S_WS,4)}, 0 offen sc1
        SKIP3{tag}:""")
        for i in range(2):
            a(f"s_mov_b64 exec, {sr(S_M+2*i,2)}\nbuffer_load_dwordx2 {vr(KP+2*i,2)}, v{G+4+i}, {sr(S_WS,4)}, 0 offen sc1")
        a("s_mov_b64 exec, -1")
    key_loads("")
    x_touch(a, opt, 7)
    H = G + 20
    a(f"""v_lshrrev_b32 v{T0}, 4, v{V_L16}              ; lane
    s_cmp_lg_u32 s{S_W0}, 0
    s_cbranch_scc1 KEY_WAIT
    s_cmp_ge_u32 s{S_WAVE}, 4
    s_cbranch_scc1 DEG_DONE""")
    for j in range(NLN):
        t = T0 + 1 + j % 2
        if j < 5: a(f"v_bfe_u32 v{t}, v{RECN+2}, {6*j}, 6")
        elif j == 5: a(f"v_alignbit_b32 v{t}, v{RECN+3}, v{RECN+2}, 30\nv_and_b32 v{t}, 63, v{t}")
        else: a(f"v_bfe_u32 v{t}, v{RECN+3}, {6*j-32}, 6")
        a(f"""v_lshlrev_b32 v{t}, 2, v{t}
              v_cmpx_lt_u32 vcc, {j}, v{V_LEN}
              ds_add_u32 v{t}, v{V_ONE} offset:{L_DEG}""")
    a(f"""s_mov_b64 exec, -1
DEG_DONE:
    v_lshlrev_b32 v{T0+1}, 2, v{T0}
    v_cmp_gt_u32 {sr(S_T,2)}, 40, v{T0}
    v_sub_u32 v{T0+2}, 63, v{T0}
    s_mul_i32 s10, s{S_WAVE}, 5
    s_waitcnt lgkmcnt(0)
    s_barrier
    ds_read_b32 v{H}, v{T0+1} offset:{L_DEG}
    v_add_u32 v{T0+3}, s10, v{T0}
    v_lshlrev_b32 v{T0+4}, 2, v{T0+3}
    s_waitcnt lgkmcnt(0)
    v_lshl_or_b32 v{H}, v{H}, 6, v{T0+2}
    v_cndmask_b32 v{H}, 0, v{H}, {sr(S_T,2)}
    s_nop 0""")
    for k in range(5):
        a(f"v_readlane_b32 s{S_NODE+k}, v{H}, s10")
        if k < 4: a("s_add_u32 s10, s10, 1")
    for k in range(5): a(f"v_cmp_lt_u32 {sr(S_K+2*k,2)}, s{S_NODE+k}, v{H}")
    for k in range(5): a(f"s_bcnt1_i32_b64 s{S_NODE+k}, {sr(S_K+2*k,2)}")
    for k in range(5): a(f"v_readlane_b32 s{S_NODE+k}, v{V_DEAL}, s{S_NODE+k}")
    a("s_nop 0")
    for k in range(5): a(f"v_writelane_b32 v{T0+1}, s{S_NODE+k}, {k}")
    a(f"""v_lshrrev_b32 v{T0+2}, 11, v{T0+1}
    v_bfe_u32 v{T0+5}, v{T0+1}, 8, 3
    v_lshlrev_b32 v{T0+2}, 7, v{T0+2}
    v_and_b32 v{T0+1}, 0xff, v{T0+1}
    v_lshl_or_b32 v{T0+2}, v{T0+5}, 19, v{T0+2}
    s_mov_b64 exec, 0x1f
    ds_write_b32 v{T0+1}, v{T0+3} offset:{L_INV}
    ds_write_b32 v{T0+4}, v{T0+2} offset:{L_MAP}
    s_mov_b64 exec, -1
    s_waitcnt lgkmcnt(0)
    s_barrier""")
    st('dealt')
    a(f"""KEY_WAIT:
    s_lshl_b32 s3, s{S_WAVE}, 10
    s_add_u32 s3, s3, {L_UREC}
    s_mov_b32 s9, {WS_REC}""")
    if ",7:" in "," + opt.xt:
        a(f"s_cmp_lg_u32 s{S_W0}, 0\ns_cbranch_scc1 KEY_WAIT0\ns_waitcnt vmcnt(1)\ns_branch KEY_CHECK")
    a("KEY_WAIT0:\ns_waitcnt vmcnt(0)\nKEY_CHECK:")
    for i in range(3): a(f"v_cmp_ne_u32 {sr(S_K+2*i,2)}, s{S_NLO}, v{KP+2*i+1}")
    for i in range(3): a(f"v_and_b32 v{G+8+i}, 63, v{KP+2*i}\nv_lshlrev_b32 v{G+8+i}, 2, v{G+8+i}")
    for i in range(3): a(f"s_and_b64 {sr(S_K+2*i,2)}, {sr(S_K+2*i,2)}, {sr(S_M+2*i,2)}")
    a(f"""s_or_b64 {sr(S_K,2)}, {sr(S_K,2)}, {sr(S_K+2,2)}
    s_or_b64 {sr(S_K,2)}, {sr(S_K,2)}, {sr(S_K+4,2)}
    s_cbranch_scc0 KEYS_OK
    s_sub_u32 s{S_SPIN}, s{S_SPIN}, 1
    s_cbranch_scc1 END""")
    key_loads("R")
    a("s_branch KEY_WAIT0\nKEYS_OK:")
    st('keys arrived')
    def rec_dma(at):
        for i in (2, 0, 1):
            if opt.recat[i] != at: continue
            a(f"s_add_u32 m0, s3, {i*8192}\ns_mov_b64 exec, {sr(S_M+2*i,2)}")
            if i == 2: a("s_cbranch_execz SKIP3D")
            a(f"buffer_load_dwordx4 v{G+i}, {sr(S_WS,4)}, s9 offen sc1 lds")
            if i == 2: a("SKIP3D:")
        if at in opt.recat: a("s_mov_b64 exec, -1")
    for i in range(3): a(f"ds_read_b32 v{G+8+i}, v{G+8+i} offset:{L_MAP}")
    rec_dma(0)
    for i in range(3):
        a(f"""v_mul_hi_u32 v{G+12+i}, s{S_T+2}, v{KP+2*i}
              v_add_u32 v{T0+1}, {512*i}, v0
              v_lshlrev_b32 v{T0+1}, 21, v{T0+1}
              v_lshrrev_b32 v{G+16+i}, 10, v{KP+2*i}
              v_lshl_or_b32 v{G+16+i}, v{G+16+i}, 7, v{T0+1}""")
    for i in range(3):
        a(f"""s_waitcnt lgkmcnt({2-i})
              v_lshrrev_b32 v{T0+1}, 16, v{G+8+i}
              v_and_b32 v{G+8+i}, 0x380, v{G+8+i}
              v_or_b32 v{G+16+i}, v{G+16+i}, v{T0+1}
              v_lshl_add_u32 v{G+8+i}, v{G+12+i}, 2, v{G+8+i}""")
    for i in range(3):
        a(f"s_mov_b64 exec, {sr(S_M+2*i,2)}\nds_add_rtn_u32 v{G+12+i}, v{G+8+i}, v{V_ONE} offset:{L_HIST}")
    a("s_mov_b64 exec, -1")
    rec_dma(1)
    a(f"""s_lshl_b32 s10, s{S_WAVE}, 3
    s_add_u32 s11, s10, 8
    s_and_b32 s11, s11, 63
    s_waitcnt lgkmcnt(0)
    s_barrier""")
    st('hist done')
    a(f"ds_read_b128 {vr(H,4)}, v{V_L16} offset:{L_HIST}")
    rec_dma(2)
    x_touch(a, opt, 8)
    a("s_waitcnt lgkmcnt(0)")
    scan256(a, H, H + 4)
    a(f"""ds_write_b128 v{V_L16}, {vr(H+4,4)} offset:{L_BASE}
    v_readlane_b32 s{S_START}, v{H+4}, s10
    v_readlane_b32 s{S_END}, v{H+4}, s11""")
    for i in range(3): a(f"ds_read_b32 v{G+8+i}, v{G+8+i} offset:{L_BASE}")
    a(f"""s_cmp_eq_u32 s{S_WAVE}, 7
    s_cselect_b32 s{S_END}, s{S_NWIN}, s{S_END}
    v_add_u32 v{V_POS}, s{S_START}, v{T0}
    v_lshlrev_b32 v{V_AENT}, 2, v{V_POS}
    v_add_u32 v{V_AENT}, {L_SENT}, v{V_AENT}
    s_sub_u32 s11, s{S_END}, s{S_START}
    s_max_u32 s10, s11, {D}
    s_add_u32 s10, s10, {opt.gran - 1 - D}
    s_and_b32 s{S_REM}, s10, {-opt.gran}
    s_max_u32 s10, s11, s{S_REM}
    s_sub_u32 s{S_REMB}, s10, s{S_REM}""")
    for i in range(3):
        a(f"""s_waitcnt lgkmcnt({2 if i else 2})
              v_add_lshl_u32 v{G+8+i}, v{G+8+i}, v{G+12+i}, 2
              s_mov_b64 exec, {sr(S_M+2*i,2)}
              ds_write_b32 v{G+8+i}, v{G+16+i} offset:{L_SENT}
              s_mov_b64 exec, -1""")
    a("s_waitcnt lgkmcnt(0)")
    if not opt.xpre: a("s_waitcnt vmcnt(0)")
    a("s_barrier")
    st('sorted')
    if opt.stamps: a(f"s_memtime s[100:101]\ns_waitcnt lgkmcnt(0)\ns_mov_b32 s{S_ST+30}, s100")
    if opt.prio == 1: a(f"s_cmp_ge_u32 s{S_WAVE}, 4\ns_cbranch_scc0 PRIO_SET\ns_setprio 1\nPRIO_SET:")
    meta_read_entry(a)
    a(f"""s_mov_b32 s3, 0
    s_and_b32 s{S_WM}, s{S_WAVE}, 3
    s_lshl_b32 s{S_WM}, s{S_WM}, 13
    s_add_u32 s{S_WM}, s{S_WM}, {WS_WMIX}
    s_add_u32 s{S_WM+1}, s{S_WM}, 4096""")
    for k in range(8): a(f"v_mov_b32 v{RR+k}, 0")
    a("s_waitcnt lgkmcnt(0)")
    meta_fix_entry(a, False)
    a("s_nop 0")
    def first_rows(lo, hi):
        for e in range(lo, hi):
            a(f"""v_readlane_b32 s{S_K+e}, v{ENT}, {e}
                  s_and_b32 s{S_OFF}, s{S_K+e}, s{S_MASK}
                  buffer_load_dwordx4 {vr(XR+4*e,4)}, v{V_L16}, {sr(S_X,4)}, s{S_OFF} offen""")
    if opt.xpre:
        first_rows(0, opt.xpre)
        if ",8:" in "," + opt.xt and 2 not in opt.recat:
            a(f"s_cmp_lg_u32 s{S_W0}, 0\ns_cbranch_scc1 REC_WAIT\ns_waitcnt vmcnt({opt.xpre + 1})\ns_branch REC_IN\nREC_WAIT:")
        a(f"s_waitcnt vmcnt({opt.xpre})\nREC_IN:")
        st('recs landed')
        a("s_barrier")
    meta_read_rec(a)
    first_rows(opt.xpre, D)
    a(f"v_mov_b32 v{KEY}, v{ENT}")
    a(f"""s_waitcnt lgkmcnt(0)
    v_mov_b32 v{EF}, v{RECN+2}
    v_mov_b32 v{EF+1}, v{RECN+3}""")
    for i in range(4): a(w_mfma(i))
    a(p_mfma(0, 0)); a(p_mfma(0, 1)); a(p_mfma(1, 0))
    a("s_nop 1")
    for m in range(4): w_cvt(a, m)
    for odd in range(2):
        u, r = act_regs(0, odd)
        for h in range(2): a(act_addr(TT + 2 * odd + h, u + h))
        for h in range(2): a(act_read(r + h, TT + 2 * odd + h))
    a(f"s_waitcnt vmcnt({D-1})")
    st('first row')
    a(t_mfma(0, 0)); a(t_mfma(0, 1))
    body(a, opt)
    a(f"""MAIN_DONE:
    s_add_u32 s{S_W0}, s{S_W0}, {CAP}
    s_cmp_ge_u32 s{S_W0}, s{S_N}
    s_cbranch_scc1 ALL_DONE
    s_waitcnt vmcnt(0) lgkmcnt(0)""")
    zero_hist(a)
    a("s_waitcnt lgkmcnt(0)\ns_barrier\ns_branch ROUND\nALL_DONE:")
    st('main done')
    if opt.stamps: a(f"s_memtime s[100:101]\ns_waitcnt lgkmcnt(0)\ns_sub_u32 s{S_ST+30}, s100, s{S_ST+30}")
    PK = WPK; VOUT = UU
    a(f"""v_lshrrev_b32 v{T0+3}, 8, v{V_L16}            ; lane >> 4
    s_lshr_b32 s{S_T}, s{S_WAVE}, 2                   ; half
    s_mul_i32 s{S_T+1}, s{S_T}, 80
    v_mul_u32_u24 v{T0+1}, 20, v{T0+3}
    v_add_u32 v{T0+1}, s{S_T+1}, v{T0+1}""")
    for t in range(5): a(f"ds_read_b32 v{VOUT+t}, v{T0+1} offset:{L_INV + 4*t}")
    for sl in range(5):
        for o in range(4): a(f"v_cvt_pk_bf16_f32 v{PK+4*sl+o}, v{ACC+8*sl+o}, v{ACC+8*sl+4+o}")
    a(f"""s_mul_i32 s{S_T+1}, s{S_WAVE}, {4 * AGG_RS}
    s_add_u32 s{S_T+1}, s{S_T+1}, {L_AGG}
    v_lshrrev_b32 v{T0+4}, 2, v{V_L16}
    v_add_u32 v{T0+4}, s{S_T+1}, v{T0+4}
    v_bfe_u32 v{T0+2}, v{V_L16}, 4, 4                 ; lane & 15
    s_mul_i32 s{S_T+1}, s{S_T}, {16 * AGG_RS}
    s_add_u32 s{S_T+1}, s{S_T+1}, {L_AGG}
    v_mul_u32_u24 v{T0}, {AGG_RS}, v{T0+2}
    v_lshl_add_u32 v{T0}, v{T0+3}, 4, v{T0}
    v_add_u32 v{T0}, s{S_T+1}, v{T0}
    s_lshl_b32 s{S_T}, s{S_BETA}, 10
    s_and_b32 s{S_T+1}, s{S_WAVE}, 3
    s_lshl_b32 s{S_T+1}, s{S_T+1}, 8
    s_add_u32 s{S_T}, s{S_T}, s{S_T+1}
    v_lshl_add_u32 v{T0+2}, v{T0+2}, 4, s{S_T}
    s_waitcnt lgkmcnt(0)""")
    for t in range(5): a(f"v_lshl_add_u32 v{VOUT+t}, v{VOUT+t}, 18, v{T0+2}")
    a("s_barrier")
    st('all main done')
    AF = XR
    def wr(sl):
        for o in range(4): a(f"ds_write_b32 v{T0+4}, v{PK+4*sl+o} offset:{(32*sl + o)*AGG_RS}")
    def rd(t):
        for ks in range(4): a(f"ds_read_b128 {vr(AF+16*(t%2)+4*ks,4)}, v{T0} offset:{t*32*AGG_RS + ks*64}")
    def mm(t, waits, writes=None):
        for ks in range(4):
            if waits[ks] is not None: a(f"s_waitcnt lgkmcnt({waits[ks]})")
            for j in range(2):
                d = ACC + 8 * t + 4 * j
                a(f"v_mfma_f32_16x16x32_bf16 {vr(d,4)}, {vr(AF+16*(t%2)+4*ks,4)}, {vr(WMIX+16*j+4*ks,4)}, " + ("0" if ks == 0 else vr(d, 4)))
            if writes:
                s0, lo, hi = writes[ks]
                for n in range(lo, hi): a(f"ds_write_b32 v{T0+4}, v{PK+4*s0+n} offset:{(32*(s0 + n // 4) + n % 4)*AGG_RS}")
    def pack_store(t):
        d = ACC + 8 * t; p = RR + 4 * (t % 2)
        for j in range(4): a(f"v_cvt_pk_bf16_f32 v{p+j}, v{d+2*j}, v{d+2*j+1}")
        a(f"buffer_store_dwordx4 {vr(p,4)}, v{VOUT+t}, {sr(S_OUT,4)}, 0 offen {opt.outst}")
    wr(0); wr(1)
    a("s_waitcnt vmcnt(0) lgkmcnt(0)\ns_barrier")
    st('agg in LDS')
    rd(0); rd(1)
    mm(0, [7, 9, 11, 13], [(2, 0, 3), (2, 3, 6), (2, 6, 9), (2, 9, 12)])
    a("s_waitcnt lgkmcnt(0)\ns_barrier")
    rd(2)
    mm(1, [None] * 4); pack_store(0)
    rd(3)
    mm(2, [7, 6, 5, 4]); pack_store(1)
    rd(4)
    mm(3, [7, 6, 5, 4]); pack_store(2)
    mm(4, [3, 2, 1, 0]); pack_store(3)
    a("s_nop 3")
    pack_store(4)
    st('end')
    if opt.probe:
        a(f"""s_cmp_eq_u32 s93, 0
        s_cselect_b32 s93, s92, s93
        s_sub_u32 s93, s93, s92
        s_mul_i32 s93, s93, 4
        s_add_u32 s92, s92, s93
        s_add_u32 s92, s92, 6000
        HOLD_SPIN:
        s_memrealtime s[98:99]
        s_waitcnt lgkmcnt(0)
        s_sub_u32 s98, s98, s92
        s_cmp_lt_i32 s98, 0
        s_cbranch_scc1 HOLD_SPIN""")
    if opt.stamps:
        a("s_waitcnt vmcnt(0)")
        st('stores done 2')
        a(f"""s_lshl_b32 s10, s2, 3
        s_add_u32 s10, s10, s{S_WAVE}
        s_lshl_b32 s10, s10, 7
        s_add_u32 s10, s10, {WS_STAMP}
        v_mov_b32 v{T0}, s10
        s_sub_u32 s{S_ST+31}, s{S_END}, s{S_START}
        s_sub_u32 s{S_ST+29}, {1 << 21}, s{S_SPIN}""")
        for k in range(32): a(f"v_mov_b32 v{XR+k}, s{S_ST+k}")
        for k in range(8): a(f"buffer_store_dwordx4 {vr(XR+4*k,4)}, v{T0}, {sr(S_WS,4)}, 0 offen offset:{16*k}")
    a("END:\ns_endpgm")
    a(".p2align 6\n.type DEAL_TABLE,@object\nDEAL_TABLE:\n.short " + ", ".join(map(str, deal_bytes())) + "\n.size DEAL_TABLE, 256")
    return a.text()

def generate(opt):
    here = os.path.dirname(os.path.abspath(__file__))
    out = open(here + "/header.txt").read()
    out += f"; @launch grid=(256,1,1) block=(512,1,1) lds={LDS_BYTES}\n"
    out += f'.amdgcn_target "amdgcn-amd-amdhsa--gfx950"\n.text\n.globl {KERN}\n.p2align 8\n.type {KERN},@function\n'
    out += kernel(opt)
    out += f""".section .rodata,"a"
.p2align 6
.amdhsa_kernel {KERN}
  .amdhsa_next_free_vgpr {NVGPR}
  .amdhsa_next_free_sgpr {NSGPR if opt.stamps or opt.probe else 66}
  .amdhsa_accum_offset {(NVGPR + 3) // 4 * 4}
  .amdhsa_group_segment_fixed_size 0
  .amdhsa_kernarg_size 88
  .amdhsa_user_sgpr_count 2
  .amdhsa_user_sgpr_kernarg_segment_ptr 1
  .amdhsa_system_sgpr_workgroup_id_x 1
  .amdhsa_float_denorm_mode_32 3
.end_amdhsa_kernel
"""
    return out

def options(argv):
    p = argparse.ArgumentParser()
    p.add_argument("-o", default="/code/" + NAME + ".s")
    p.add_argument("--stamps", action="store_true")
    p.add_argument("--probe", default="")
    p.add_argument("--D", type=int, default=6)
    p.add_argument("--prio", type=int, default=0)
    p.add_argument("--yearly", type=int, default=0)
    p.add_argument("--recat", type=lambda t: tuple(map(int, t.split(","))), default=(0, 1, 0))
    p.add_argument("--only", default="")
    p.add_argument("--wsoff", type=int, default=0)
    p.add_argument("--gran", type=int, default=4)
    p.add_argument("--late", type=int, default=62)
    p.add_argument("--xpre", type=int, default=2)
    p.add_argument("--xt", default="9:0:8,6:8:16,3:16:24,8:24:32")
    p.add_argument("--lsplit", type=int, default=5)
    p.add_argument("--k1st", default="sc0 sc1")
    p.add_argument("--outst", default="sc0 sc1")
    return p.parse_args(argv)

if __name__ == "__main__":
    opt = options(sys.argv[1:])
    open(opt.o, "w").write(generate(opt))
    if opt.stamps: open(opt.o + ".names", "w").write(repr(STAMPS))
    import subprocess
    here = os.path.dirname(os.path.abspath(__file__))
    r = subprocess.run([sys.executable, here + "/hazards.py", opt.o], capture_output=True, text=True).stdout
    if " 0 finding" not in r: print(r)
    r = subprocess.run([sys.executable, here + "/../cdna_unwritten_srd_check.py", opt.o], capture_output=True, text=True)
    if r.returncode: print(r.stdout, r.stderr)
```

```python
import sys, argparse, os

NAME = "gather_scatter__tensor_product_equiv_tfn__graph"
KERN = NAME + "_kernel"
N, E, C = 10000, 320000, 128
NP, EP = 250, 1280
WS_KEY = 0
WS_REC = 0x280000
WS_WMIX = 0x771000
WS_TAB = 0x780000
WS_EPOCH = WS_TAB + 256 * 4096
WS_END = WS_EPOCH + 128
WS_STAMP = 0x900000
CAP = 1472

class Asm:
    def __init__(self): self.l = []
    def __call__(self, s):
        for line in s.strip("\n").split("\n"):
            line = line.strip()
            if not line: continue
            self.l.append(line if line.endswith(":") else "    " + line)
    def text(self): return "\n".join(self.l) + "\n"

def vr(a, n=1): return f"v{a}" if n == 1 else f"v[{a}:{a+n-1}]"
def sr(a, n=1): return f"s{a}" if n == 1 else f"s[{a}:{a+n-1}]"

SCAN_STEPS = ["row_shr:1 row_mask:0xf bank_mask:0xf bound_ctrl:0", "row_shr:2 row_mask:0xf bank_mask:0xf bound_ctrl:0",
              "row_shr:4 row_mask:0xf bank_mask:0xf bound_ctrl:0", "row_shr:8 row_mask:0xf bank_mask:0xf bound_ctrl:0",
              "row_bcast:15 row_mask:0xa bank_mask:0xf", "row_bcast:31 row_mask:0xc bank_mask:0xf"]
def scan64(a, *regs):
    for c in SCAN_STEPS:
        a("s_nop 1" if len(regs) == 1 else "s_nop 0")
        for v in regs: a(f"v_add_u32_dpp v{v}, v{v}, v{v} {c}")

L_HIST = 0; L_DEG = 1024; L_WT = 1280; L_CNT = L_WT + 16
L_INV = 1344; L_MAP = 1536; L_BASE = 1792
L_SENT = L_BASE + 1024
L_UREC = L_SENT + CAP * 4
L_CG = L_UREC + CAP * 16
L_LUT = 32768
L1_HIST = L_SENT; L1_LNS = L1_HIST + 1024; L1_BASE = L1_LNS + 2048; L1_SREC = L_UREC
L1_SKEY = L_LUT + 53 * 1024
assert L_CG + 128 <= L_LUT and L1_SREC + (EP + 64) * 16 <= L_CG and L1_BASE <= 8192
NLN = 10
L_AGG = L_LUT; AGG_RS = 288
LDS_BYTES = L_LUT + 131072

V_L16 = 1
V_LEN, V_PRE, V_GID = 2, 3, 4
V_AENT, V_POS = 5, 6
V_ONE = 15
V_DEAL = 174
V_DUMMY = 167
V_TOUCH = 166
T0 = 8
ACC = 16; XR = 64; TP = 96; UU = 112; RR = 128; TT = 136; WPK = 140; WTMP = 148
KEY = 164; ENT = 165; RECN = 168; EF = 172; CONST = 176; WMIX = 188
NVGPR = 220
PE, PO, CGB = CONST, CONST + 2, CONST + 4
LJ = 128
S_NODE = 4
S_X, S_WS, S_OUT = 12, 16, 20
S_BETA, S_WAVE, S_N, S_W0, S_NWIN, S_START, S_END, S_REM, S_REMB, S_OFF, S_MASK = range(24, 35)
S_SPIN = 35
S_M = 36
S_T = 42
S_K = 48
S_IN = 40
S_JOB, S_JCNT = 62, 63
S_NLO, S_NHI = 64, 65
S_WM = 10
S_L2E = 10
S_ST = 66
NSGPR = 102

STAMPS = []
def stamp(a, opt, name):
    if opt.probe == name: a("s_memrealtime s[98:99]\ns_waitcnt lgkmcnt(0)\ns_mov_b32 s93, s98")
    if not opt.stamps: return
    if opt.only and name not in opt.only.split(",") + ["start", "sorted", "main done", "stores done 2"]: return
    if name not in STAMPS: STAMPS.append(name)
    a(f"s_memrealtime s[98:99]\ns_waitcnt lgkmcnt(0)\ns_mov_b32 s{S_ST + STAMPS.index(name)}, s98")

S_RET = 6
def lut_sub(a):
    J, Ex, R, P = LJ, LJ + 8, LJ + 16, LJ + 24
    a(f"""LUT_SUB:
    s_lshl_b32 s3, s{S_JOB}, 25
    s_add_u32 s3, s3, 0x8000
    v_lshl_add_u32 v{J}, v{V_L16}, 15, s3""")
    for k in range(1, 8): a(f"v_add_u32 v{J+k}, 0x10000, v{J+k-1}")
    for k in range(0, 8, 2): a(f"v_pk_mul_f32 {vr(Ex+k,2)}, {vr(J+k,2)}, {sr(S_L2E,2)}")
    for k in range(8): a(f"v_exp_f32 v{Ex+k}, v{Ex+k}")
    a(f"s_lshl_b32 s3, s{S_JOB}, 10")
    for k in range(0, 8, 2): a(f"v_pk_add_f32 {vr(R+k,2)}, {vr(Ex+k,2)}, 1.0 op_sel_hi:[1,0]")
    for k in range(8): a(f"v_rcp_f32 v{R+k}, v{R+k}")
    a(f"v_add_u32 v{P+8}, s3, v{V_L16}")
    for k in range(0, 8, 2): a(f"v_pk_mul_f32 {vr(J+k,2)}, {vr(J+k,2)}, {vr(R+k,2)}")
    a(f"v_add_u32 v{P+9}, 0x10000, v{P+8}")
    for k in range(0, 8, 2): a(f"v_pk_mul_f32 {vr(Ex+k,2)}, {vr(J+k,2)}, {vr(Ex+k,2)} neg_lo:[1,0] neg_hi:[1,0]")
    for k in range(4): a(f"v_cvt_pk_bf16_f32 v{P+k}, v{J+2*k}, v{J+2*k+1}")
    for k in range(4): a(f"v_cvt_pk_bf16_f32 v{P+4+k}, v{Ex+2*k}, v{Ex+2*k+1}")
    a(f"""ds_write_b128 v{P+8}, {vr(P,4)} offset:{L_LUT}
    ds_write_b128 v{P+9}, {vr(P+4,4)} offset:{L_LUT}
    s_add_u32 s{S_JOB}, s{S_JOB}, 1
    s_sub_u32 s{S_JCNT}, s{S_JCNT}, 1
    s_cmp_lg_u32 s{S_JCNT}, 0
    s_cbranch_scc1 LUT_SUB
    s_setpc_b64 {sr(S_RET,2)}""")
def lut_jobs(a, count): a(f"s_mov_b32 s{S_JCNT}, {count}\ns_call_b64 {sr(S_RET,2)}, LUT_SUB")

def lut_plain(a, tag, region, last=None, cont=False):
    P = LJ
    for name, first, end, bias in (("L", 1, 24, 0x20000 - 0x800080), ("H", 34, 62, 0x20000)):
        if name != region: continue
        last = last or end
        if cont: a(f"s_cmp_gt_u32 s{S_JOB}, {last}\ns_cbranch_scc1 LUTP_END_{tag}")
        else: a(f"s_add_u32 s{S_JOB}, s{S_WAVE}, {first}")
        if name == "H" and not cont:
            for k in range(4): a(f"v_mov_b32 v{P+4+k}, 0x80008000")
        a(f"LUTP_{tag}{name}:")
        a(f"""s_mul_i32 s3, s{S_JOB}, {512 * 0x10001}
        s_add_u32 s3, s3, {bias & 0xffffffff}
        v_add_u32 v{P}, s3, v{P+10}
        s_lshl_b32 s3, s{S_JOB}, 10
        v_add_u32 v{P+8}, s3, v{V_L16}""")
        for k in range(1, 4): a(f"v_add_u32 v{P+k}, {k * 0x20002}, v{P}")
        a(f"v_add_u32 v{P+9}, 0x10000, v{P+8}")
        if name == "L":
            for k in range(4): a(f"v_or_b32 v{P+4+k}, 0x80008000, v{P+k}")
        a(f"""ds_write_b128 v{P+8}, {vr(P,4)} offset:{L_LUT}
        ds_write_b128 v{P+9}, {vr(P+4,4)} offset:{L_LUT}
        s_add_u32 s{S_JOB}, s{S_JOB}, {5 if name == "L" else 4}
        s_cmp_le_u32 s{S_JOB}, {last}
        s_cbranch_scc1 LUTP_{tag}{name}
        LUTP_END_{tag}:""")

def tab_issue(a): a(f"buffer_load_dwordx4 {vr(RECN,4)}, v{V_POS}, {sr(S_WS,4)}, 0 offen sc1")
def tab_check(a, younger):
    if younger: a(f"s_waitcnt vmcnt({younger})\ns_branch CHECK_TAB")
    a(f"""POLL_TAB:
    s_waitcnt vmcnt(0)
    CHECK_TAB:
    v_lshrrev_b32 v{T0+3}, 22, v{RECN}
    v_cmp_ne_u32 vcc, s{S_NLO}, v{RECN+1}
    v_cmp_ne_u32 {sr(S_T,2)}, s{S_NHI}, v{T0+3}
    s_or_b64 vcc, vcc, {sr(S_T,2)}
    s_and_b64 exec, exec, vcc
    s_cbranch_execz POLLED_TAB
    s_sub_u32 s{S_SPIN}, s{S_SPIN}, 1
    s_cbranch_scc1 END""")
    tab_issue(a)
    a("s_branch POLL_TAB\nPOLLED_TAB:\ns_mov_b64 exec, -1")

def load_epoch(a):
    a(f"""s_add_u32 s4, s{S_WS}, {WS_EPOCH}
    s_addc_u32 s5, s{S_WS+1}, 0
    s_load_dwordx2 {sr(S_NLO,2)}, s[4:5], 0""")
def make_tag(a):
    a(f"""s_add_u32 s{S_NLO}, s{S_NLO}, 1
    s_and_b32 s{S_NHI}, s{S_NHI}, 0x3ff""")

def scan256(a, H_, O_):
    a(f"""v_add_u32 v{T0+2}, v{H_}, v{H_+1}
    v_add3_u32 v{T0+2}, v{T0+2}, v{H_+2}, v{H_+3}
    v_mov_b32 v{T0+3}, v{T0+2}""")
    scan64(a, T0 + 3)
    a(f"""v_sub_u32 v{O_}, v{T0+3}, v{T0+2}
    v_add_u32 v{O_+1}, v{O_}, v{H_}
    v_add_u32 v{O_+2}, v{O_+1}, v{H_+1}
    v_add_u32 v{O_+3}, v{O_+2}, v{H_+2}""")

SRC, DST, YY, EFP, WRAD, CG, WMX = S_IN + 2, S_IN + 4, S_IN + 6, S_IN + 8, S_IN + 10, S_IN + 12, S_IN + 14
D_, S_, Y_, F_, B_, R_, H_, O_, TB = 64, 68, 72, 80, 88, 92, 96, 100, 108
CT = WMIX
def const_sub(a):
    a(f"""CONST_SUB:
    ds_write_b32 v{CT+5}, v{CT+4} offset:{L_CG}
    v_lshrrev_b32 v{CT+5}, 3, v{V_L16}
    v_and_b32 v{CT+5}, 24, v{CT+5}
    s_mov_b32 s4, 0x05040100
    s_mov_b32 s5, 0x07060302""")
    for i in range(4): a(f"ds_read_b64_tr_b16 {vr(CGB+2*i,2)}, v{CT+5} offset:{L_CG + 32*i}")
    for u in range(2):
        a(f"v_perm_b32 v{PE+u}, v{CT+1+2*u}, v{CT+2*u}, s4\nv_perm_b32 v{PO+u}, v{CT+1+2*u}, v{CT+2*u}, s5")
    a(f"s_setpc_b64 {sr(S_RET,2)}")
def const_finish(a): a(f"s_call_b64 {sr(S_RET,2)}, CONST_SUB")

def load_yf(a):
    a(f"""global_load_dwordx4 {vr(Y_,4)}, v{T0+1}, {sr(YY,2)}
    global_load_dwordx4 {vr(Y_+4,4)}, v{T0+1}, {sr(YY,2)} offset:16
    global_load_dwordx4 {vr(F_,4)}, v{T0+1}, {sr(EFP,2)}
    global_load_dwordx4 {vr(F_+4,4)}, v{T0+1}, {sr(EFP,2)} offset:16""")

def phase1(a, opt):
    st = lambda n: stamp(a, opt, n)
    WS = sr(S_WS, 2); FL = opt.k1st
    a(f"""s_cmp_ge_u32 s{S_WAVE}, 5
    s_cbranch_scc1 HELP""")
    lut_plain(a, "W0", "L", last=opt.lsplit)
    a(f"""s_cmp_ge_u32 s2, {NP}
    s_cbranch_scc1 AUX""")
    load_yf(a)
    st('jobs A')
    a("s_waitcnt vmcnt(11)")
    st('dst arrived')
    for k in range(4):
        a(f"""v_and_b32 v{B_+k}, 0xff, v{D_+k}
              v_lshlrev_b32 v{B_+k}, 2, v{B_+k}
              ds_add_rtn_u32 v{R_+k}, v{B_+k}, v{V_ONE} offset:{L1_HIST}""")
    a("s_waitcnt vmcnt(10)")
    for k in range(4):
        a(f"""v_lshrrev_b32 v{D_+k}, 8, v{D_+k}
              v_lshl_or_b32 v{TB+2*k}, v{S_+k}, 10, v{D_+k}""")
    a(f"""s_mov_b32 s9, {L1_SKEY}
    s_waitcnt lgkmcnt(0)
    s_barrier
    ds_read_b128 {vr(H_,4)}, v{V_L16} offset:{L1_HIST}""")
    make_tag(a)
    for k in range(4): a(f"v_mov_b32 v{TB+2*k+1}, s{S_NLO}")
    a("v_mov_b32 v119, 0")
    for k in range(4):
        a(f"""v_cmp_gt_u32 vcc, {NLN}, v{R_+k}
              v_mul_u32_u24 v116, 6, v{R_+k}
              v_lshlrev_b32 v117, 1, v{B_+k}
              v_cndmask_b32 v118, 0, v{D_+k}, vcc
              v_lshlrev_b64 {vr(120+2*(k%2),2)}, v116, v[118:119]
              ds_or_b64 v117, {vr(120+2*(k%2),2)} offset:{L1_LNS}""")
    a("s_waitcnt lgkmcnt(4)")
    scan256(a, H_, O_)
    a(f"ds_write_b128 v{V_L16}, {vr(O_,4)} offset:{L1_BASE}")
    for k in range(4): a(f"ds_read_b32 v{H_+k}, v{B_+k} offset:{L1_BASE}")
    for k in range(4):
        a(f"""s_waitcnt lgkmcnt(3)
              v_add_u32 v{R_+k}, v{R_+k}, v{H_+k}
              v_lshl_add_u32 v{B_+k}, v{R_+k}, 3, s9
              ds_write_b64 v{B_+k}, {vr(TB+2*k,2)}""")
    for k in range(4):
        a(f"v_lshlrev_b32 v{R_+k}, 4, v{R_+k}\nv_add_u32 v{R_+k}, {L1_SREC}, v{R_+k}")
    a("s_waitcnt lgkmcnt(0)\ns_barrier")
    st('keys binned')
    a("s_waitcnt vmcnt(0)")
    x_touch(a, opt, 9, False)
    for k in range(4):
        a(f"ds_write2_b64 v{R_+k}, {vr(Y_+2*k,2)}, {vr(F_+2*k,2)} offset0:0 offset1:1")
    st('recs binned')
    a("BINNED:\ns_setprio 0")
    a(f"s_waitcnt lgkmcnt(0)\ns_barrier\nv_mov_b32 v{V_LEN}, 0")
    const_finish(a)
    lut_plain(a, "W", "L", cont=True)
    a(f"s_cmp_eq_u32 s{S_WAVE}, 4\ns_cbranch_scc1 WAVE4")
    lut_plain(a, "U", "H", last=opt.late)
    tab_issue(a)
    x_touch(a, opt, 6, False)
    st('tab issued')
    if opt.late < 62: lut_plain(a, "V", "H", cont=True)
    tab_check(a, ("," + opt.xt).count(",6:"))
    st('tab arrived')
    a("s_branch TAB_DONE")
    lut_sub(a)
    const_sub(a)
    a("HELP:")
    a(f"""s_sub_u32 s8, s{S_WAVE}, 5
    s_mul_i32 s4, s8, 3072
    s_cmp_eq_u32 s8, 1
    s_cselect_b32 s4, 4096, s4
    s_mul_i32 s3, s2, {EP * 8}
    s_add_u32 s3, s3, s4
    v_add_u32 v{T0}, s3, v{V_L16}
    s_add_u32 s4, s4, {L1_SKEY}
    v_add_u32 v{T0+1}, s4, v{V_L16}
    s_mul_i32 s4, s8, 7168
    s_mul_i32 s3, s2, {EP * 16}
    s_add_u32 s3, s3, s4
    s_add_u32 s3, s3, {WS_REC}
    v_add_u32 v{T0+4}, s3, v{V_L16}
    v_add_u32 v{T0+5}, s4, v{V_L16}
    s_lshl_b32 s3, s2, 12
    s_add_u32 s3, s3, {WS_TAB}
    v_add_u32 v117, s3, v{V_L16}
    s_waitcnt lgkmcnt(0)""")
    make_tag(a)
    st('help jobs')
    a(f"""s_barrier
    s_cmp_eq_u32 s{S_WAVE}, 6
    s_cbranch_scc1 ROW
    s_cmp_eq_u32 s{S_WAVE}, 7
    s_cselect_b32 s{S_JOB}, 63, 0""")
    lut_jobs(a, 1)
    a("s_waitcnt vmcnt(0)")
    const_finish(a)
    a(f"""v_mov_b32 v{T0+2}, {0x7f80 * 2}
    v_mov_b32 v{T0+3}, 0x7f80
    s_cmp_lg_u32 s{S_WAVE}, 7
    s_cbranch_scc1 NO_ROW
    ds_write_b16 v{T0+2}, v{T0+3} offset:{L_LUT}
    s_branch NO_ROW
ROW:
    v_lshrrev_b32 v116, 2, v{V_L16}""")
    QT, HH, SS = 84, 100, 104
    for m in range(4): a(f"ds_read_b32 v{HH+m}, v116 offset:{L1_HIST + 256*m}")
    a(f"""s_lshl_b32 s3, s2, 12
    s_add_u32 s3, s3, {WS_TAB}
    v_add_u32 v117, s3, v{V_L16}
    v_lshrrev_b32 v116, 1, v{V_L16}
    s_lshl_b32 s3, s{S_NHI}, 22
    s_waitcnt lgkmcnt(0)""")
    for m in range(4): a(f"v_mov_b32 v{SS+m}, v{HH+m}")
    scan64(a, SS, SS + 1, SS + 2, SS + 3)
    a(f"""v_readlane_b32 s4, v{SS}, 63
    v_readlane_b32 s5, v{SS+1}, 63
    v_readlane_b32 s9, v{SS+2}, 63""")
    for m in range(4): a(f"v_sub_u32 v{SS+m}, v{SS+m}, v{HH+m}")
    a(f"""s_add_u32 s5, s5, s4
    s_add_u32 s9, s9, s5
    v_add_u32 v{SS+1}, s4, v{SS+1}
    v_add_u32 v{SS+2}, s5, v{SS+2}
    v_add_u32 v{SS+3}, s9, v{SS+3}""")
    for m in range(4):
        a(f"""v_lshl_or_b32 v{QT+4*m}, v{HH+m}, 11, v{SS+m}
              v_or_b32 v{QT+4*m}, s3, v{QT+4*m}
              v_mov_b32 v{QT+4*m+1}, s{S_NLO}""")
    a("s_waitcnt vmcnt(0)")
    const_finish(a)
    a(f"""NO_ROW:
    s_barrier
    s_cmp_lg_u32 s{S_WAVE}, 6
    s_cbranch_scc1 ROW_DONE""")
    for m in range(4): a(f"ds_read_b64 {vr(QT+4*m+2,2)}, v116 offset:{L1_LNS + 512*m}")
    for m in range(4): a(f"s_waitcnt lgkmcnt({3-m})\nglobal_store_dwordx4 v117, {vr(QT+4*m,4)}, {WS} offset:{1024*m} sc0 sc1")
    st('table published')
    a("ROW_DONE:")
    for k in range(4): a(f"ds_read_b128 {vr(64+4*k,4)}, v{T0+1} offset:{1024*k}")
    a(f"""v_mov_b32 v{V_LEN}, 0
    s_add_u32 s{S_JOB}, s8, s8                       ; jobs 27, 28 / 29, 30, 31 / 32, 33
    s_add_u32 s{S_JOB}, s{S_JOB}, 27
    s_cmp_eq_u32 s8, 2
    s_addc_u32 s{S_JOB}, s{S_JOB}, 0
    s_cmp_eq_u32 s8, 1
    s_cselect_b32 s{S_JCNT}, 3, 2
    s_waitcnt lgkmcnt(0)
    s_barrier
    s_cmp_ge_u32 s2, {NP}
    s_cbranch_scc1 RECS_STORED""")
    for k in range(7): a(f"ds_read_b128 {vr(84+4*k,4)}, v{T0+5} offset:{L1_SREC + 1024*k}")
    for k in range(7):
        if k == 4: a(f"v_add_u32 v{T0+4}, 4096, v{T0+4}")
        if k == 6: a(f"s_cmp_eq_u32 s8, 2\ns_cbranch_scc1 RECS_STORED")
        a(f"s_waitcnt lgkmcnt({6-k})\nglobal_store_dwordx4 v{T0+4}, {vr(84+4*k,4)}, {WS} offset:{(1024*k) % 4096} {FL}")
    a(f"""RECS_STORED:
    s_call_b64 {sr(S_RET,2)}, LUT_SUB
    s_cmp_ge_u32 s2, {NP}
    s_cbranch_scc1 TAB_DONE
    v_mov_b32 v{T0+2}, 0
    s_waitcnt vmcnt(0)
    s_mov_b64 exec, 1
    ds_add_u32 v{T0+2}, v{V_ONE} offset:{L_CNT}
    s_mov_b64 exec, -1
WAIT_ACK:
    ds_read_b32 v{T0+3}, v{T0+2} offset:{L_CNT}
    s_waitcnt lgkmcnt(0)
    v_readfirstlane_b32 s3, v{T0+3}
    s_cmp_eq_u32 s3, 3
    s_cbranch_scc0 WAIT_ACK""")
    st('recs acked')
    for k in range(4):
        if k == 2: a(f"s_cmp_eq_u32 s8, 1\ns_cbranch_scc1 TAB_DONE")
        a(f"global_store_dwordx4 v{T0}, {vr(64+4*k,4)}, {WS} offset:{1024*k} {FL}")
    a("s_branch TAB_DONE")
    a(f"""AUX_LOAD:
    s_sub_u32 s4, s2, {NP}
    s_cmp_ge_u32 s4, 4
    s_cbranch_scc1 NO_EDGES
    s_cmp_ge_u32 s{S_WAVE}, 4
    s_cbranch_scc1 NO_EDGES
    s_lshl_b32 s5, s{S_WAVE}, 13
    s_lshl_b32 s8, s4, 6
    s_add_u32 s5, s5, s8
    v_lshrrev_b32 v80, 8, v{V_L16}
    v_lshlrev_b32 v80, 11, v80
    v_bfe_u32 v81, v{V_L16}, 4, 4
    v_lshl_add_u32 v80, v81, 2, v80
    v_add_u32 v80, s5, v80""")
    for t in range(8): a(f"global_load_dword v{64+t}, v80, {sr(WMX,2)} offset:{t*256}")
    a(f"""s_branch NO_EDGES
AUX:
    s_cmp_ge_u32 s2, {NP + 4}
    s_cbranch_scc1 AUX_DONE
    s_cmp_ge_u32 s{S_WAVE}, 4
    s_cbranch_scc1 AUX_DONE
    s_sub_u32 s4, s2, {NP}
    s_lshl_b32 s5, s4, 13
    s_lshl_b32 s8, s{S_WAVE}, 10
    s_add_u32 s5, s5, s8
    s_add_u32 s5, s5, {WS_WMIX}
    v_add_u32 v81, s5, v{V_L16}
    s_mov_b32 s4, 0x05040100
    s_mov_b32 s5, 0x07060302
    s_waitcnt vmcnt(6)""")
    for u in range(4):
        a(f"v_perm_b32 v{72+u}, v{65+2*u}, v{64+2*u}, s4\nv_perm_b32 v{76+u}, v{65+2*u}, v{64+2*u}, s5")
    a(f"""global_store_dwordx4 v81, v[72:75], {WS} {FL}
    v_add_u32 v81, 4096, v81
    global_store_dwordx4 v81, v[76:79], {WS} {FL}
AUX_DONE:
    s_waitcnt lgkmcnt(0)""")
    make_tag(a)
    a(f"""s_barrier
    s_waitcnt vmcnt(0)
    s_barrier
    s_branch BINNED
WAVE4:
    s_mov_b32 s{S_JOB}, 25""")
    lut_jobs(a, 2)
    a("TAB_DONE:")

def mfma4(d, a_, b, c, blk=None):
    cc = "0" if c is None else vr(c, 4)
    return f"v_mfma_f32_4x4x4_16b_bf16 {vr(d,4)}, {vr(a_,2)}, {vr(b,2)}, {cc}" + ("" if blk is None else f" cbsz:4 abid:{blk}")
def p_mfma(g, odd):
    return mfma4(UU + 8 * (g % 2) + 4 * odd, EF, PO if odd else PE, None, g % 16)
def t_mfma(e, odd):
    return mfma4(TP + 8 * (e % 2) + 4 * odd, WPK + 2 * (e % 4), XR + 4 * (e % 8) + 2 * odd, None, (e % 64) // 4)
def act_regs(eb, odd):
    return UU + 8 * ((eb // 4) % 2) + 4 * odd + eb % 4, RR + 4 * ((eb // 2) % 2) + 2 * odd
def act_addr(t, u):
    return f"v_lshlrev_b32_sdwa v{t}, v{V_ONE}, v{u} dst_sel:DWORD dst_unused:UNUSED_PAD src0_sel:DWORD src1_sel:WORD_1"
def act_read(r, t): return f"ds_read_u16_d16_hi v{r}, v{t} offset:{L_LUT}"
def fma4(a, q):
    h = q % 2
    a(f"s_set_gpr_idx_on s{S_K + q % 16}, 0xc")
    for odd in range(2):
        r = RR + 4 * ((q // 2) % 2) + 2 * odd
        for o in (0, 2):
            acc = ACC + 4 * odd + o; tp = TP + 8 * (q % 2) + 4 * odd + o
            a(f"v_pk_fma_f32 {vr(acc,2)}, {vr(r,2)}, {vr(tp,2)}, {vr(acc,2)} op_sel:[{h},0,0] op_sel_hi:[{h},1,1]")
    a("s_set_gpr_idx_off")
def meta_read_entry(a): a(f"ds_read_b32 v{ENT}, v{V_AENT}")
def meta_fix_entry(a, rec=True):
    a(f"""v_cmp_gt_u32 vcc, s{S_END}, v{V_POS}
          v_add_u32 v{V_POS}, 64, v{V_POS}
          v_add_u32 v{V_AENT}, 256, v{V_AENT}
          v_cndmask_b32 v{ENT}, 40, v{ENT}, vcc
          v_lshrrev_b32 v{T0}, 21, v{ENT}
          v_lshlrev_b32 v{T0}, 4, v{T0}
          v_lshlrev_b32 v{T0+1}, 3, v{ENT}""")
    if rec: meta_read_rec(a)
    a(f"""v_and_b32 v{T0+1}, 0xfffc00, v{T0+1}
          v_and_or_b32 v{ENT}, v{ENT}, 56, v{T0+1}""")
def meta_read_rec(a): a(f"ds_read_b128 {vr(RECN,4)}, v{T0} offset:{L_UREC}")
def w_mfma(i): return mfma4(WTMP + 4 * i, RECN, CGB + 2 * i, None)
def w_cvt(a, m):
    a(f"""v_cvt_pk_bf16_f32 v{WPK+2*m}, v{WTMP+m}, v{WTMP+4+m}
          v_cvt_pk_bf16_f32 v{WPK+2*m+1}, v{WTMP+8+m}, v{WTMP+12+m}""")

def step(a, opt, q, drain=None):
    D = opt.D; loads = drain is None
    eb = q + 2 - q % 2; odd = q % 2
    u, r = act_regs(eb, odd); t = TT + 2 * odd
    g, ur = (q + 6) // 4, (q + 6) % 4
    if ur % 2 == 0: a(p_mfma(g, ur // 2))
    elif 40 <= q < 48: a(w_mfma((q - 40) // 2))
    a(act_addr(t, u))
    if loads: a(f"s_waitcnt vmcnt({D - 2})")
    elif D - 2 - drain >= 0: a(f"s_waitcnt vmcnt({8 + D - 2 - drain})")
    a(t_mfma(q + 1, 0))
    if loads: a(f"v_readlane_b32 s{S_K + (q + D) % 16}, v{KEY if q + D < 64 else ENT}, {(q + D) % 64}")
    else:     a("s_nop 0")
    a(t_mfma(q + 1, 1))
    a(act_addr(t + 1, u + 1))
    a(act_read(r, t)); a(act_read(r + 1, t + 1))
    if q >= 60: w_cvt(a, q - 60)
    if loads:
        a(f"s_and_b32 s{S_OFF}, s{S_K + (q + D) % 16}, s{S_MASK}")
        a(f"buffer_load_dwordx4 {vr(XR + 4 * ((q + D) % 8), 4)}, v{V_L16}, {sr(S_X,4)}, s{S_OFF} offen")
    if q % 2 == 0: a("s_waitcnt lgkmcnt(2)")
    fma4(a, q)
    if loads and q == 8: meta_read_entry(a)
    if loads and q == 12: meta_fix_entry(a)
    if q == 57: a(f"v_mov_b32 v{EF}, v{RECN+2}\nv_mov_b32 v{EF+1}, v{RECN+3}\ns_nop 1")
    if loads and q == 63: a(f"v_mov_b32 v{KEY}, v{ENT}")

def body(a, opt):
    G = opt.gran
    for q in range(64):
        if q % G == 0: a(f"A_{q}:\ns_sub_u32 s{S_REM}, s{S_REM}, {G}\ns_cbranch_scc1 B_{q}")
        step(a, opt, q)
    if opt.stamps and not opt.only:
        STAMPS.extend(("batch 1", "batch 2")); k = S_ST + len(STAMPS) - 2
        a(f"""s_memrealtime s[98:99]
        s_waitcnt lgkmcnt(0)
        s_cmp_eq_u32 s{k}, 0
        s_cselect_b32 s99, 0, s98
        s_cselect_b32 s{k}, s98, s{k}
        s_cmp_eq_u32 s{k+1}, 0
        s_cselect_b32 s{k+1}, s99, s{k+1}""")
    if opt.probe == "batch 1":
        a("s_memrealtime s[98:99]\ns_waitcnt lgkmcnt(0)\ns_cmp_eq_u32 s93, 0\ns_cselect_b32 s93, s98, s93")
    a("s_branch A_0")
    for q in range(0, 64, G):
        a(f"B_{q}:")
        for k in range(8):
            a(f"buffer_load_dwordx4 {vr(WMIX+4*k,4)}, v{V_L16}, {sr(S_WS,4)}, s{S_WM + k // 4} offen offset:{(k%4)*1024} sc1")
        for i in range(opt.D):
            a(f"s_sub_u32 s{S_REMB}, s{S_REMB}, 1\ns_cbranch_scc1 MAIN_DONE")
            step(a, opt, (q + i) % 64, i)
        a("s_branch MAIN_DONE")

def x_touch(a, opt, where, guard=True):
    for spec in filter(None, opt.xt.split(",")):
        w, lo, hi = map(int, spec.split(":"))
        if w != where: continue
        if guard: a(f"s_cmp_lg_u32 s{S_W0}, 0\ns_cbranch_scc1 NO_X_TOUCH_{w}")
        four = w in (6, 9)
        if w == 9: a(f"s_cmp_eq_u32 s{S_WAVE}, 4\ns_cbranch_scc1 NO_X_TOUCH_{w}")
        a(f"""s_lshl_b32 s{S_OFF}, s2, {2 if four else 3}
        s_add_u32 s{S_OFF}, s{S_OFF}, s{S_WAVE}
        s_lshl_b32 s{S_OFF}, s{S_OFF}, 7
        s_add_u32 s{S_OFF}, s{S_OFF}, {lo << 18}
        v_min_u32 v{V_TOUCH}, {(((hi - lo) << four) - 1) * 16}, v{V_L16}
        v_lshl_add_u32 v{V_TOUCH}, v{V_TOUCH}, {14 - four}, s{S_OFF}
        buffer_load_dword v{V_DUMMY}, v{V_TOUCH}, {sr(S_X,4)}, 0 offen""")
        a(f"NO_X_TOUCH_{w}:")

DEAL = ([4, 2, 4, 7, 6, 3, 1, 5, 0, 4, 2, 6, 1, 7, 3, 5, 0, 4, 7, 3, 0, 1, 5, 6, 2, 5, 0, 1, 6, 7, 3, 2, 0, 5, 3, 1, 6, 7, 2, 4],
        [0, 2, 7, 1, 4, 6, 5, 3, 6, 3, 1, 7, 4, 0, 2, 5, 4, 3, 5, 6, 7, 1, 0, 2, 7, 5, 2, 4, 3, 6, 0, 1, 5, 1, 3, 6, 4, 2, 7, 0])
def deal_bytes():
    out = []
    for t in DEAL:
        assert sorted(t) == sorted(list(range(8)) * 5)
        out += [4 * (5 * w + t[:r].count(w)) | (8 * w + t[:r].count(w)) << 8 for r, w in enumerate(t)] + [0] * 24
    return out

def zero_hist(a):
    a(f"""v_lshlrev_b32 v{T0+3}, 2, v0
    v_mov_b32 v{T0+4}, 0
    v_cmp_gt_u32 vcc, 0x100, v0
    s_and_saveexec_b64 {sr(S_T,2)}, vcc
    ds_write_b32 v{T0+3}, v{T0+4} offset:{L_HIST}
    s_mov_b64 exec, {sr(S_T,2)}""")

def kernel(opt):
    a = Asm(); D = opt.D
    st = lambda n: stamp(a, opt, n)
    a(f"""{KERN}:
    s_cmp_ge_u32 s2, 256
    s_cbranch_scc1 END""")
    if opt.probe: a("s_mov_b32 s93, 0\ns_memrealtime s[98:99]\ns_waitcnt lgkmcnt(0)\ns_mov_b32 s92, s98")
    if opt.stamps:
        for k in range(32): a(f"s_mov_b32 s{S_ST+k}, 0")
    st('start')
    a(f"""s_load_dwordx16 {sr(S_IN,16)}, s[0:1], 0
    s_load_dwordx2 {sr(S_WS,2)}, s[0:1], 80
    s_load_dwordx2 {sr(S_X,2)}, s[0:1], 0
    s_load_dwordx2 {sr(S_OUT,2)}, s[0:1], 64
    ; wave 7 of every workgroup takes 8 lines; the 32 workgroups with equal id % 8 cover 32 KiB
    s_getpc_b64 s[6:7]
CODE_HERE:
    v_lshrrev_b32 v{T0}, 6, v0
    s_lshr_b32 s5, s2, 3
    s_lshl_b32 s4, s5, 10
    v_readfirstlane_b32 s{S_WAVE}, v{T0}
    v_and_b32 v{T0+2}, 7, v0
    v_lshl_add_u32 v{T0+2}, v{T0+2}, 7, s4
    v_min_u32 v{T0+2}, END-CODE_HERE, v{T0+2}
    s_cmp_lg_u32 s{S_WAVE}, 7
    s_cbranch_scc1 NO_CODE_TOUCH
    global_load_dword v{V_DUMMY}, v{T0+2}, s[6:7]
NO_CODE_TOUCH:
    s_mul_i32 s3, s2, {EP * 4}
    v_lshl_add_u32 v{T0}, v0, 4, s3
    v_and_b32 v{T0+2}, 63, v0
    v_lshlrev_b32 v{V_L16}, 4, v{T0+2}
    v_lshlrev_b32 v{CT+5}, 2, v{T0+2}
    v_lshlrev_b32 v{T0+3}, 4, v0
    v_mov_b32 v{T0+4}, 0
    v_mov_b32 v{T0+5}, 0
    v_pk_mov_b32 {vr(ACC,2)}, {vr(T0+4,2)}, {vr(T0+4,2)}
    v_pk_mov_b32 {vr(ACC+2,2)}, {vr(T0+4,2)}, {vr(T0+4,2)}
    ds_write_b128 v{T0+3}, {vr(ACC,4)}
    s_cmp_ge_u32 s{S_WAVE}, 5
    s_waitcnt lgkmcnt(0)
    s_cbranch_scc1 NO_EDGES
    s_cmp_ge_u32 s2, {NP}
    s_cbranch_scc1 AUX_LOAD
    s_setprio 1
    global_load_dwordx4 {vr(D_,4)}, v{T0}, {sr(DST,2)}
    global_load_dwordx4 {vr(S_,4)}, v{T0}, {sr(SRC,2)}
NO_EDGES:""")
    load_epoch(a)
    st('kernargs')
    for k in range(4): a(f"global_load_dword v{CT+k}, v{CT+5}, {sr(WRAD,2)} offset:{k*256}")
    a(f"""v_and_b32 v{CT+5}, 0x7f, v{CT+5}
    global_load_dword v{CT+4}, v{CT+5}, {sr(CG,2)}
    s_and_b32 s3, s2, 0x87
    s_cmp_eq_u32 s3, 0
    s_cselect_b32 s3, 128, 0
    s_add_u32 s3, s3, DEAL_TABLE-CODE_HERE
    v_lshl_add_u32 v{V_DEAL}, v{T0+2}, 1, s3
    global_load_ushort v{V_DEAL}, v{V_DEAL}, s[6:7]
    s_mov_b32 s{S_X+2}, {N * 1024}
    s_mov_b32 s{S_X+3}, 0x20000""")
    a(f"v_lshlrev_b32 v{T0+1}, 1, v{T0}")
    a(f"""
    s_and_b32 s4, s2, 7
    s_lshl_b32 s4, s4, 5
    s_lshr_b32 s5, s2, 3
    s_or_b32 s{S_BETA}, s4, s5
    v_mov_b32 v{V_ONE}, 1
    s_mov_b32 s{S_WS+2}, {WS_END if not opt.stamps else WS_STAMP + 0x80000}
    s_mov_b32 s{S_WS+3}, 0x20000
    s_mov_b32 s{S_OUT+2}, {N * 1024}
    s_mov_b32 s{S_OUT+3}, 0x20000
    s_mov_b32 s{S_MASK}, 0xfffffc00
    s_mov_b32 s{S_W0}, 0
    s_mov_b32 s{S_L2E}, 0xbfb8aa3b
    s_mov_b32 s{S_L2E+1}, 0xbfb8aa3b
    s_mov_b32 s{S_SPIN}, {1 << 21}
    v_and_b32 v{V_GID}, 0xff, v0
    s_lshl_b32 s3, s{S_BETA}, 4
    s_add_u32 s3, s3, {WS_TAB}
    v_lshl_add_u32 v{V_POS}, v{V_GID}, 12, s3
    v_mul_u32_u24 v{V_GID}, {EP}, v{V_GID}
    v_mul_u32_u24 v{LJ+10}, 0x8000, v{V_L16}
    v_lshl_add_u32 v{LJ+10}, v{T0+2}, 3, v{LJ+10}    ; lane * 8 * 0x10001""")
    for k in range(4, 48, 2): a(f"v_pk_mov_b32 {vr(ACC+k,2)}, {vr(T0+4,2)}, {vr(T0+4,2)}")
    a("s_barrier")
    phase1(a, opt)
    a(f"""s_cmp_ge_u32 s{S_WAVE}, 4
    s_cbranch_scc1 TOTALS
    v_and_b32 v{T0+5}, 0x7ff, v{RECN}
    v_bfe_u32 v{V_LEN}, v{RECN}, 11, 11
    v_add_u32 v{V_GID}, v{V_GID}, v{T0+5}
    v_mov_b32 v{V_PRE}, v{V_LEN}""")
    scan64(a, V_PRE)
    a(f"""s_lshl_b32 s3, s{S_WAVE}, 2
    v_mov_b32 v{T0+2}, s3
    v_add_u32 v{T0+3}, 1, v{V_PRE}
    v_sub_u32 v{V_PRE}, v{V_PRE}, v{V_LEN}
    s_mov_b32 exec_lo, 0
    s_mov_b32 exec_hi, 0x80000000
    ds_write_b32 v{T0+2}, v{T0+3} offset:{L_WT}
    s_mov_b64 exec, -1
TOTALS:
    v_mov_b32 v{T0+2}, 0
TOTALS_SPIN:
    ds_read_b128 {vr(XR,4)}, v{T0+2} offset:{L_WT}
    s_waitcnt lgkmcnt(0)""")
    for k in range(4): a(f"v_readfirstlane_b32 s{4+k}, v{XR+k}")
    a(f"""s_min_u32 s3, s4, s5
    s_min_u32 s8, s6, s7
    s_min_u32 s3, s3, s8
    s_cmp_eq_u32 s3, 0
    s_cbranch_scc0 TOTALS_OK
    s_sub_u32 s{S_SPIN}, s{S_SPIN}, 1
    s_cbranch_scc0 TOTALS_SPIN
    s_endpgm
TOTALS_OK:
    s_add_u32 s5, s5, s4
    s_add_u32 s6, s6, s5
    s_add_u32 s7, s7, s6
    s_sub_u32 s{S_N}, s7, 4
    s_cmp_eq_u32 s{S_WAVE}, 1
    s_cselect_b32 s3, s4, 0
    s_cmp_eq_u32 s{S_WAVE}, 2
    s_cselect_b32 s3, s5, s3
    s_cmp_eq_u32 s{S_WAVE}, 3
    s_cselect_b32 s3, s6, s3
    s_sub_u32 s3, s3, s{S_WAVE}
    v_add_u32 v{V_PRE}, s3, v{V_PRE}
    s_cmp_lg_u32 s{S_WAVE}, 4
    s_cbranch_scc1 EPOCH_DONE
    s_cmp_lg_u32 s2, 0
    s_cbranch_scc1 EPOCH_DONE
    v_mov_b32 v{T0+4}, s{S_NLO}
    v_mov_b32 v{T0+2}, {WS_EPOCH}
    s_mov_b64 exec, 1
    global_store_dword v{T0+2}, v{T0+4}, {sr(S_WS,2)} sc0 sc1
    s_mov_b64 exec, -1
EPOCH_DONE:""")
    x_touch(a, opt, 3, False)
    st('prefix done')
    a(f"""ROUND:
    v_mov_b32 v{T0}, 0
    v_subrev_u32 v{T0+1}, s{S_W0}, v{V_PRE}
    v_mov_b32 v{T0+2}, v{V_GID}
    s_mov_b32 s3, {CAP}
    s_cmp_gt_u32 s{S_N}, {CAP}
    s_cbranch_scc1 EXPAND
    v_lshlrev_b32 v{T0+3}, 2, v{V_PRE}""")
    for j in range(16):
        a(f"v_cmpx_lt_u32 vcc, {j}, v{V_LEN}")
        if j % 2 == 0 and j >= 6: a("s_cbranch_execz EXPAND_DONE")
        a(f"ds_write_b32 v{T0+3}, v{T0+2} offset:{L_SENT + 4*j}\nv_add_u32 v{T0+2}, 1, v{T0+2}")
    a(f"""v_mov_b32 v{T0}, 16
    v_add_u32 v{T0+1}, 16, v{T0+1}
EXPAND:
    v_cmp_lt_u32 vcc, v{T0}, v{V_LEN}
    s_and_b64 exec, exec, vcc
    s_cbranch_execz EXPAND_DONE
    v_cmp_gt_u32 vcc, s3, v{T0+1}
    v_lshlrev_b32 v{T0+3}, 2, v{T0+1}
    s_and_saveexec_b64 {sr(S_T,2)}, vcc
    ds_write_b32 v{T0+3}, v{T0+2} offset:{L_SENT}
    s_mov_b64 exec, {sr(S_T,2)}
    v_add_u32 v{T0}, 1, v{T0}
    v_add_u32 v{T0+1}, 1, v{T0+1}
    v_add_u32 v{T0+2}, 1, v{T0+2}
    s_branch EXPAND
EXPAND_DONE:
    s_mov_b64 exec, -1
    s_sub_u32 s{S_NWIN}, s{S_N}, s{S_W0}
    s_min_u32 s{S_NWIN}, s{S_NWIN}, {CAP}
    v_lshlrev_b32 v{T0}, 2, v0""")
    for i in range(3):
        a(f"""v_add_u32 v{T0+1}, {512*i}, v0
              v_cmp_gt_u32 {sr(S_M+2*i,2)}, s{S_NWIN}, v{T0+1}""")
    st('list built')
    a("s_waitcnt lgkmcnt(0)\ns_barrier")
    st('list barrier')
    G = XR
    KP = TP
    for i in range(3): a(f"ds_read_b32 v{G+i}, v{T0} offset:{L_SENT + 2048*i}")
    a(f"""s_mov_b32 s{S_T+2}, 13421                         ; 32 * 2^32 / (10000 * 1024)
    s_waitcnt lgkmcnt(0)""")
    for i in range(3):
        a(f"v_lshlrev_b32 v{G+4+i}, 3, v{G+i}\nv_lshlrev_b32 v{G+i}, 4, v{G+i}")
    def key_loads(tag):
        a(f"""s_mov_b64 exec, {sr(S_M+4,2)}
        s_cbranch_execz SKIP3{tag}
        buffer_load_dwordx2 {vr(KP+4,2)}, v{G+6}, {sr(S_WS,4)}, 0 offen sc1
        SKIP3{tag}:""")
        for i in range(2):
            a(f"s_mov_b64 exec, {sr(S_M+2*i,2)}\nbuffer_load_dwordx2 {vr(KP+2*i,2)}, v{G+4+i}, {sr(S_WS,4)}, 0 offen sc1")
        a("s_mov_b64 exec, -1")
    key_loads("")
    H = G + 20
    a(f"""v_lshrrev_b32 v{T0}, 4, v{V_L16}              ; lane
    s_cmp_lg_u32 s{S_W0}, 0
    s_cbranch_scc1 KEY_WAIT
    s_cmp_ge_u32 s{S_WAVE}, 4
    s_cbranch_scc1 DEG_DONE""")
    for j in range(NLN):
        t = T0 + 1 + j % 2
        if j < 5: a(f"v_bfe_u32 v{t}, v{RECN+2}, {6*j}, 6")
        elif j == 5: a(f"v_alignbit_b32 v{t}, v{RECN+3}, v{RECN+2}, 30\nv_and_b32 v{t}, 63, v{t}")
        else: a(f"v_bfe_u32 v{t}, v{RECN+3}, {6*j-32}, 6")
        a(f"""v_lshlrev_b32 v{t}, 2, v{t}
              v_cmpx_lt_u32 vcc, {j}, v{V_LEN}
              ds_add_u32 v{t}, v{V_ONE} offset:{L_DEG}""")
    a(f"""s_mov_b64 exec, -1
DEG_DONE:
    v_lshlrev_b32 v{T0+1}, 2, v{T0}
    v_cmp_gt_u32 {sr(S_T,2)}, 40, v{T0}
    v_sub_u32 v{T0+2}, 63, v{T0}
    s_mul_i32 s10, s{S_WAVE}, 5
    s_waitcnt lgkmcnt(0)
    s_barrier
    ds_read_b32 v{H}, v{T0+1} offset:{L_DEG}
    v_add_u32 v{T0+3}, s10, v{T0}
    v_lshlrev_b32 v{T0+4}, 2, v{T0+3}
    s_waitcnt lgkmcnt(0)
    v_lshl_or_b32 v{H}, v{H}, 6, v{T0+2}
    v_cndmask_b32 v{H}, 0, v{H}, {sr(S_T,2)}
    s_nop 0""")
    for k in range(5):
        a(f"v_readlane_b32 s{S_NODE+k}, v{H}, s10")
        if k < 4: a("s_add_u32 s10, s10, 1")
    for k in range(5): a(f"v_cmp_lt_u32 {sr(S_K+2*k,2)}, s{S_NODE+k}, v{H}")
    for k in range(5): a(f"s_bcnt1_i32_b64 s{S_NODE+k}, {sr(S_K+2*k,2)}")
    for k in range(5): a(f"v_readlane_b32 s{S_NODE+k}, v{V_DEAL}, s{S_NODE+k}")
    a("s_nop 0")
    for k in range(5): a(f"v_writelane_b32 v{T0+1}, s{S_NODE+k}, {k}")
    a(f"""v_lshrrev_b32 v{T0+2}, 11, v{T0+1}
    v_bfe_u32 v{T0+5}, v{T0+1}, 8, 3
    v_lshlrev_b32 v{T0+2}, 7, v{T0+2}
    v_and_b32 v{T0+1}, 0xff, v{T0+1}
    v_lshl_or_b32 v{T0+2}, v{T0+5}, 19, v{T0+2}
    s_mov_b64 exec, 0x1f
    ds_write_b32 v{T0+1}, v{T0+3} offset:{L_INV}
    ds_write_b32 v{T0+4}, v{T0+2} offset:{L_MAP}
    s_mov_b64 exec, -1
    s_waitcnt lgkmcnt(0)
    s_barrier""")
    st('dealt')
    a(f"""KEY_WAIT:
    s_lshl_b32 s3, s{S_WAVE}, 10
    s_add_u32 s3, s3, {L_UREC}
    s_mov_b32 s9, {WS_REC}""")
    a("KEY_WAIT0:\ns_waitcnt vmcnt(0)")
    for i in range(3): a(f"v_cmp_ne_u32 {sr(S_K+2*i,2)}, s{S_NLO}, v{KP+2*i+1}")
    for i in range(3): a(f"v_and_b32 v{G+8+i}, 63, v{KP+2*i}\nv_lshlrev_b32 v{G+8+i}, 2, v{G+8+i}")
    for i in range(3): a(f"s_and_b64 {sr(S_K+2*i,2)}, {sr(S_K+2*i,2)}, {sr(S_M+2*i,2)}")
    a(f"""s_or_b64 {sr(S_K,2)}, {sr(S_K,2)}, {sr(S_K+2,2)}
    s_or_b64 {sr(S_K,2)}, {sr(S_K,2)}, {sr(S_K+4,2)}
    s_cbranch_scc0 KEYS_OK
    s_sub_u32 s{S_SPIN}, s{S_SPIN}, 1
    s_cbranch_scc1 END""")
    key_loads("R")
    a("s_branch KEY_WAIT0\nKEYS_OK:")
    st('keys arrived')
    def rec_dma(at):
        for i in (2, 0, 1):
            if opt.recat[i] != at: continue
            a(f"s_add_u32 m0, s3, {i*8192}\ns_mov_b64 exec, {sr(S_M+2*i,2)}")
            if i == 2: a("s_cbranch_execz SKIP3D")
            a(f"buffer_load_dwordx4 v{G+i}, {sr(S_WS,4)}, s9 offen sc1 lds")
            if i == 2: a("SKIP3D:")
        if at in opt.recat: a("s_mov_b64 exec, -1")
    for i in range(3): a(f"ds_read_b32 v{G+8+i}, v{G+8+i} offset:{L_MAP}")
    rec_dma(0)
    for i in range(3):
        a(f"""v_mul_hi_u32 v{G+12+i}, s{S_T+2}, v{KP+2*i}
              v_add_u32 v{T0+1}, {512*i}, v0
              v_lshlrev_b32 v{T0+1}, 21, v{T0+1}
              v_lshrrev_b32 v{G+16+i}, 10, v{KP+2*i}
              v_lshl_or_b32 v{G+16+i}, v{G+16+i}, 7, v{T0+1}""")
    for i in range(3):
        a(f"""s_waitcnt lgkmcnt({2-i})
              v_lshrrev_b32 v{T0+1}, 16, v{G+8+i}
              v_and_b32 v{G+8+i}, 0x380, v{G+8+i}
              v_or_b32 v{G+16+i}, v{G+16+i}, v{T0+1}
              v_lshl_add_u32 v{G+8+i}, v{G+12+i}, 2, v{G+8+i}""")
    for i in range(3):
        a(f"s_mov_b64 exec, {sr(S_M+2*i,2)}\nds_add_rtn_u32 v{G+12+i}, v{G+8+i}, v{V_ONE} offset:{L_HIST}")
    a("s_mov_b64 exec, -1")
    rec_dma(1)
    a(f"""s_lshl_b32 s10, s{S_WAVE}, 3
    s_add_u32 s11, s10, 8
    s_and_b32 s11, s11, 63
    s_waitcnt lgkmcnt(0)
    s_barrier""")
    st('hist done')
    a(f"ds_read_b128 {vr(H,4)}, v{V_L16} offset:{L_HIST}")
    rec_dma(2)
    x_touch(a, opt, 8)
    a("s_waitcnt lgkmcnt(0)")
    scan256(a, H, H + 4)
    a(f"""ds_write_b128 v{V_L16}, {vr(H+4,4)} offset:{L_BASE}
    v_readlane_b32 s{S_START}, v{H+4}, s10
    v_readlane_b32 s{S_END}, v{H+4}, s11""")
    for i in range(3): a(f"ds_read_b32 v{G+8+i}, v{G+8+i} offset:{L_BASE}")
    a(f"""s_cmp_eq_u32 s{S_WAVE}, 7
    s_cselect_b32 s{S_END}, s{S_NWIN}, s{S_END}
    v_add_u32 v{V_POS}, s{S_START}, v{T0}
    v_lshlrev_b32 v{V_AENT}, 2, v{V_POS}
    v_add_u32 v{V_AENT}, {L_SENT}, v{V_AENT}
    s_sub_u32 s11, s{S_END}, s{S_START}
    s_max_u32 s10, s11, {D}
    s_add_u32 s10, s10, {opt.gran - 1 - D}
    s_and_b32 s{S_REM}, s10, {-opt.gran}
    s_max_u32 s10, s11, s{S_REM}
    s_sub_u32 s{S_REMB}, s10, s{S_REM}""")
    for i in range(3):
        a(f"""s_waitcnt lgkmcnt({2 if i else 2})
              v_add_lshl_u32 v{G+8+i}, v{G+8+i}, v{G+12+i}, 2
              s_mov_b64 exec, {sr(S_M+2*i,2)}
              ds_write_b32 v{G+8+i}, v{G+16+i} offset:{L_SENT}
              s_mov_b64 exec, -1""")
    a("s_waitcnt lgkmcnt(0)")
    if not opt.xpre: a("s_waitcnt vmcnt(0)")
    a("s_barrier")
    st('sorted')
    if opt.stamps: a(f"s_memtime s[100:101]\ns_waitcnt lgkmcnt(0)\ns_mov_b32 s{S_ST+30}, s100")
    meta_read_entry(a)
    a(f"""s_and_b32 s{S_WM}, s{S_WAVE}, 3
    s_lshl_b32 s{S_WM}, s{S_WM}, 13
    s_add_u32 s{S_WM}, s{S_WM}, {WS_WMIX}
    s_add_u32 s{S_WM+1}, s{S_WM}, 4096""")
    for k in range(8): a(f"v_mov_b32 v{RR+k}, 0")
    a("s_waitcnt lgkmcnt(0)")
    meta_fix_entry(a, False)
    a("s_nop 0")
    def first_rows(lo, hi):
        for e in range(lo, hi):
            a(f"""v_readlane_b32 s{S_K+e}, v{ENT}, {e}
                  s_and_b32 s{S_OFF}, s{S_K+e}, s{S_MASK}
                  buffer_load_dwordx4 {vr(XR+4*e,4)}, v{V_L16}, {sr(S_X,4)}, s{S_OFF} offen""")
    if opt.xpre:
        first_rows(0, opt.xpre)
        if ",8:" in "," + opt.xt and 2 not in opt.recat:
            a(f"s_cmp_lg_u32 s{S_W0}, 0\ns_cbranch_scc1 REC_WAIT\ns_waitcnt vmcnt({opt.xpre + 1})\ns_branch REC_IN\nREC_WAIT:")
        a(f"s_waitcnt vmcnt({opt.xpre})\nREC_IN:")
        st('recs landed')
        a("s_barrier")
    meta_read_rec(a)
    first_rows(opt.xpre, D)
    a(f"v_mov_b32 v{KEY}, v{ENT}")
    a(f"""s_waitcnt lgkmcnt(0)
    v_mov_b32 v{EF}, v{RECN+2}
    v_mov_b32 v{EF+1}, v{RECN+3}""")
    for i in range(4): a(w_mfma(i))
    a(p_mfma(0, 0)); a(p_mfma(0, 1)); a(p_mfma(1, 0))
    a("s_nop 1")
    for m in range(4): w_cvt(a, m)
    for odd in range(2):
        u, r = act_regs(0, odd)
        for h in range(2): a(act_addr(TT + 2 * odd + h, u + h))
        for h in range(2): a(act_read(r + h, TT + 2 * odd + h))
    a(f"s_waitcnt vmcnt({D-1})")
    st('first row')
    a(t_mfma(0, 0)); a(t_mfma(0, 1))
    body(a, opt)
    a(f"""MAIN_DONE:
    s_add_u32 s{S_W0}, s{S_W0}, {CAP}
    s_cmp_ge_u32 s{S_W0}, s{S_N}
    s_cbranch_scc1 ALL_DONE
    s_waitcnt vmcnt(0) lgkmcnt(0)""")
    zero_hist(a)
    a("s_waitcnt lgkmcnt(0)\ns_barrier\ns_branch ROUND\nALL_DONE:")
    st('main done')
    if opt.stamps: a(f"s_memtime s[100:101]\ns_waitcnt lgkmcnt(0)\ns_sub_u32 s{S_ST+30}, s100, s{S_ST+30}")
    PK = WPK; VOUT = UU
    a(f"""v_lshrrev_b32 v{T0+3}, 8, v{V_L16}            ; lane >> 4
    s_lshr_b32 s{S_T}, s{S_WAVE}, 2                   ; half
    s_mul_i32 s{S_T+1}, s{S_T}, 80
    v_mul_u32_u24 v{T0+1}, 20, v{T0+3}
    v_add_u32 v{T0+1}, s{S_T+1}, v{T0+1}""")
    for t in range(5): a(f"ds_read_b32 v{VOUT+t}, v{T0+1} offset:{L_INV + 4*t}")
    for sl in range(5):
        for o in range(4): a(f"v_cvt_pk_bf16_f32 v{PK+4*sl+o}, v{ACC+8*sl+o}, v{ACC+8*sl+4+o}")
    a(f"""s_mul_i32 s{S_T+1}, s{S_WAVE}, {4 * AGG_RS}
    s_add_u32 s{S_T+1}, s{S_T+1}, {L_AGG}
    v_lshrrev_b32 v{T0+4}, 2, v{V_L16}
    v_add_u32 v{T0+4}, s{S_T+1}, v{T0+4}
    v_bfe_u32 v{T0+2}, v{V_L16}, 4, 4                 ; lane & 15
    s_mul_i32 s{S_T+1}, s{S_T}, {16 * AGG_RS}
    s_add_u32 s{S_T+1}, s{S_T+1}, {L_AGG}
    v_mul_u32_u24 v{T0}, {AGG_RS}, v{T0+2}
    v_lshl_add_u32 v{T0}, v{T0+3}, 4, v{T0}
    v_add_u32 v{T0}, s{S_T+1}, v{T0}
    s_lshl_b32 s{S_T}, s{S_BETA}, 10
    s_and_b32 s{S_T+1}, s{S_WAVE}, 3
    s_lshl_b32 s{S_T+1}, s{S_T+1}, 8
    s_add_u32 s{S_T}, s{S_T}, s{S_T+1}
    v_lshl_add_u32 v{T0+2}, v{T0+2}, 4, s{S_T}
    s_waitcnt lgkmcnt(0)""")
    for t in range(5): a(f"v_lshl_add_u32 v{VOUT+t}, v{VOUT+t}, 18, v{T0+2}")
    a("s_barrier")
    st('all main done')
    AF = XR
    def wr(sl):
        for o in range(4): a(f"ds_write_b32 v{T0+4}, v{PK+4*sl+o} offset:{(32*sl + o)*AGG_RS}")
    def rd(t):
        for ks in range(4): a(f"ds_read_b128 {vr(AF+16*(t%2)+4*ks,4)}, v{T0} offset:{t*32*AGG_RS + ks*64}")
    def mm(t, waits, writes=None):
        for ks in range(4):
            if waits[ks] is not None: a(f"s_waitcnt lgkmcnt({waits[ks]})")
            for j in range(2):
                d = ACC + 8 * t + 4 * j
                a(f"v_mfma_f32_16x16x32_bf16 {vr(d,4)}, {vr(AF+16*(t%2)+4*ks,4)}, {vr(WMIX+16*j+4*ks,4)}, " + ("0" if ks == 0 else vr(d, 4)))
            if writes:
                s0, lo, hi = writes[ks]
                for n in range(lo, hi): a(f"ds_write_b32 v{T0+4}, v{PK+4*s0+n} offset:{(32*(s0 + n // 4) + n % 4)*AGG_RS}")
    def pack_store(t):
        d = ACC + 8 * t; p = RR + 4 * (t % 2)
        for j in range(4): a(f"v_cvt_pk_bf16_f32 v{p+j}, v{d+2*j}, v{d+2*j+1}")
        a(f"buffer_store_dwordx4 {vr(p,4)}, v{VOUT+t}, {sr(S_OUT,4)}, 0 offen {opt.outst}")
    wr(0); wr(1)
    a("s_waitcnt vmcnt(0) lgkmcnt(0)\ns_barrier")
    st('agg in LDS')
    rd(0); rd(1)
    mm(0, [7, 9, 11, 13], [(2, 0, 3), (2, 3, 6), (2, 6, 9), (2, 9, 12)])
    a("s_waitcnt lgkmcnt(0)\ns_barrier")
    rd(2)
    mm(1, [None] * 4); pack_store(0)
    rd(3)
    mm(2, [7, 6, 5, 4]); pack_store(1)
    rd(4)
    mm(3, [7, 6, 5, 4]); pack_store(2)
    mm(4, [3, 2, 1, 0]); pack_store(3)
    a("s_nop 3")
    pack_store(4)
    st('end')
    if opt.probe:
        a(f"""s_cmp_eq_u32 s93, 0
        s_cselect_b32 s93, s92, s93
        s_sub_u32 s93, s93, s92
        s_mul_i32 s93, s93, 4
        s_add_u32 s92, s92, s93
        s_add_u32 s92, s92, 6000
        HOLD_SPIN:
        s_memrealtime s[98:99]
        s_waitcnt lgkmcnt(0)
        s_sub_u32 s98, s98, s92
        s_cmp_lt_i32 s98, 0
        s_cbranch_scc1 HOLD_SPIN""")
    if opt.stamps:
        a("s_waitcnt vmcnt(0)")
        st('stores done 2')
        a(f"""s_lshl_b32 s10, s2, 3
        s_add_u32 s10, s10, s{S_WAVE}
        s_lshl_b32 s10, s10, 7
        s_add_u32 s10, s10, {WS_STAMP}
        v_mov_b32 v{T0}, s10
        s_sub_u32 s{S_ST+31}, s{S_END}, s{S_START}
        s_sub_u32 s{S_ST+29}, {1 << 21}, s{S_SPIN}""")
        for k in range(32): a(f"v_mov_b32 v{XR+k}, s{S_ST+k}")
        for k in range(8): a(f"buffer_store_dwordx4 {vr(XR+4*k,4)}, v{T0}, {sr(S_WS,4)}, 0 offen offset:{16*k}")
    a("END:\ns_endpgm")
    a(".p2align 6\n.type DEAL_TABLE,@object\nDEAL_TABLE:\n.short " + ", ".join(map(str, deal_bytes())) + "\n.size DEAL_TABLE, 256")
    return a.text()

def generate(opt):
    here = os.path.dirname(os.path.abspath(__file__))
    out = open(here + "/header.txt").read()
    out += f"; @launch grid=(256,1,1) block=(512,1,1) lds={LDS_BYTES}\n"
    out += f'.amdgcn_target "amdgcn-amd-amdhsa--gfx950"\n.text\n.globl {KERN}\n.p2align 8\n.type {KERN},@function\n'
    out += kernel(opt)
    out += f""".section .rodata,"a"
.p2align 6
.amdhsa_kernel {KERN}
  .amdhsa_next_free_vgpr {NVGPR}
  .amdhsa_next_free_sgpr {NSGPR if opt.stamps or opt.probe else 66}
  .amdhsa_accum_offset {(NVGPR + 3) // 4 * 4}
  .amdhsa_group_segment_fixed_size 0
  .amdhsa_kernarg_size 88
  .amdhsa_user_sgpr_count 2
  .amdhsa_user_sgpr_kernarg_segment_ptr 1
  .amdhsa_system_sgpr_workgroup_id_x 1
  .amdhsa_float_denorm_mode_32 3
.end_amdhsa_kernel
"""
    return out

def options(argv):
    p = argparse.ArgumentParser()
    p.add_argument("-o", default="/code/" + NAME + ".s")
    p.add_argument("--stamps", action="store_true")
    p.add_argument("--probe", default="")
    p.add_argument("--D", type=int, default=6)
    p.add_argument("--recat", type=lambda t: tuple(map(int, t.split(","))), default=(0, 1, 0))
    p.add_argument("--only", default="")
    p.add_argument("--gran", type=int, default=4)
    p.add_argument("--late", type=int, default=62)
    p.add_argument("--xpre", type=int, default=2)
    p.add_argument("--xt", default="9:0:8,6:8:16,3:16:24,8:24:32")
    p.add_argument("--lsplit", type=int, default=5)
    p.add_argument("--k1st", default="sc0 sc1")
    p.add_argument("--outst", default="sc0 sc1")
    return p.parse_args(argv)

if __name__ == "__main__":
    opt = options(sys.argv[1:])
    open(opt.o, "w").write(generate(opt))
    if opt.stamps: open(opt.o + ".names", "w").write(repr(STAMPS))
    import subprocess
    here = os.path.dirname(os.path.abspath(__file__))
    r = subprocess.run([sys.executable, here + "/hazards.py", opt.o], capture_output=True, text=True).stdout
    if " 0 finding" not in r: print(r)
    r = subprocess.run([sys.executable, here + "/../cdna_unwritten_srd_check.py", opt.o], capture_output=True, text=True)
    if r.returncode: print(r.stdout, r.stderr)
```

```python
import sys, argparse, os

NAME = "gather_scatter__tensor_product_equiv_tfn__graph"
KERN = NAME + "_kernel"
N, E, C = 10000, 320000, 128
NP, EP = 250, 1280
WS_KEY = 0
WS_REC = 0x280000
WS_WMIX = 0x771000
WS_TAB = 0x780000
WS_EPOCH = WS_TAB + 256 * 4096
WS_END = WS_EPOCH + 128
WS_STAMP = 0x900000
CAP = 1472

class Asm:
    def __init__(self): self.l = []
    def __call__(self, s):
        for line in s.strip("\n").split("\n"):
            line = line.strip()
            if not line: continue
            self.l.append(line if line.endswith(":") else "    " + line)
    def text(self): return "\n".join(self.l) + "\n"

def vr(a, n=1): return f"v{a}" if n == 1 else f"v[{a}:{a+n-1}]"
def sr(a, n=1): return f"s{a}" if n == 1 else f"s[{a}:{a+n-1}]"

SCAN_STEPS = ["row_shr:1 row_mask:0xf bank_mask:0xf bound_ctrl:0", "row_shr:2 row_mask:0xf bank_mask:0xf bound_ctrl:0",
              "row_shr:4 row_mask:0xf bank_mask:0xf bound_ctrl:0", "row_shr:8 row_mask:0xf bank_mask:0xf bound_ctrl:0",
              "row_bcast:15 row_mask:0xa bank_mask:0xf", "row_bcast:31 row_mask:0xc bank_mask:0xf"]
def scan64(a, *regs):
    for c in SCAN_STEPS:
        a("s_nop 1" if len(regs) == 1 else "s_nop 0")
        for v in regs: a(f"v_add_u32_dpp v{v}, v{v}, v{v} {c}")

L_HIST = 0; L_DEG = 1024; L_WT = 1280; L_CNT = L_WT + 16
L_INV = 1344; L_MAP = 1536; L_BASE = 1792
L_SENT = L_BASE + 1024
L_UREC = L_SENT + CAP * 4
L_CG = L_UREC + CAP * 16
L_LUT = 32768
L1_HIST = L_SENT; L1_LNS = L1_HIST + 1024; L1_BASE = L1_LNS + 2048; L1_SREC = L_UREC
L1_SKEY = L_LUT + 53 * 1024
assert L_CG + 128 <= L_LUT and L1_SREC + (EP + 64) * 16 <= L_CG and L1_BASE <= 8192
NLN = 10
L_AGG = L_LUT; AGG_RS = 288
LDS_BYTES = L_LUT + 131072

V_L16 = 1
V_LEN, V_PRE, V_GID = 2, 3, 4
V_AENT, V_POS = 5, 6
V_ONE = 15
V_DEAL = 174
V_DUMMY = 167
V_TOUCH = 166
T0 = 8
ACC = 16; XR = 64; TP = 96; UU = 112; RR = 128; TT = 136; WPK = 140; WTMP = 148
KEY = 164; ENT = 165; RECN = 168; EF = 172; CONST = 176; WMIX = 188
NVGPR = 220
PE, PO, CGB = CONST, CONST + 2, CONST + 4
LJ = 128
S_NODE = 4
S_X, S_WS, S_OUT = 12, 16, 20
S_BETA, S_WAVE, S_N, S_W0, S_NWIN, S_START, S_END, S_REM, S_REMB, S_OFF, S_MASK = range(24, 35)
S_SPIN = 35
S_M = 36
S_T = 42
S_K = 48
S_IN = 40
S_JOB, S_JCNT = 62, 63
S_NLO, S_NHI = 64, 65
S_WM = 10
S_L2E = 10
S_ST = 66
NSGPR = 102

STAMPS = []
def stamp(a, opt, name):
    if opt.probe == name: a("s_memrealtime s[98:99]\ns_waitcnt lgkmcnt(0)\ns_mov_b32 s93, s98")
    if not opt.stamps: return
    if opt.only and name not in opt.only.split(",") + ["start", "sorted", "main done", "stores done 2"]: return
    if name not in STAMPS: STAMPS.append(name)
    a(f"s_memrealtime s[98:99]\ns_waitcnt lgkmcnt(0)\ns_mov_b32 s{S_ST + STAMPS.index(name)}, s98")

S_RET = 6
def lut_sub(a):
    J, Ex, R, P = LJ, LJ + 8, LJ + 16, LJ + 24
    a(f"""LUT_SUB:
    s_lshl_b32 s3, s{S_JOB}, 25
    s_add_u32 s3, s3, 0x8000
    v_lshl_add_u32 v{J}, v{V_L16}, 15, s3""")
    for k in range(1, 8): a(f"v_add_u32 v{J+k}, 0x10000, v{J+k-1}")
    for k in range(0, 8, 2): a(f"v_pk_mul_f32 {vr(Ex+k,2)}, {vr(J+k,2)}, {sr(S_L2E,2)}")
    for k in range(8): a(f"v_exp_f32 v{Ex+k}, v{Ex+k}")
    a(f"s_lshl_b32 s3, s{S_JOB}, 10")
    for k in range(0, 8, 2): a(f"v_pk_add_f32 {vr(R+k,2)}, {vr(Ex+k,2)}, 1.0 op_sel_hi:[1,0]")
    for k in range(8): a(f"v_rcp_f32 v{R+k}, v{R+k}")
    a(f"v_add_u32 v{P+8}, s3, v{V_L16}")
    for k in range(0, 8, 2): a(f"v_pk_mul_f32 {vr(J+k,2)}, {vr(J+k,2)}, {vr(R+k,2)}")
    a(f"v_add_u32 v{P+9}, 0x10000, v{P+8}")
    for k in range(0, 8, 2): a(f"v_pk_mul_f32 {vr(Ex+k,2)}, {vr(J+k,2)}, {vr(Ex+k,2)} neg_lo:[1,0] neg_hi:[1,0]")
    for k in range(4): a(f"v_cvt_pk_bf16_f32 v{P+k}, v{J+2*k}, v{J+2*k+1}")
    for k in range(4): a(f"v_cvt_pk_bf16_f32 v{P+4+k}, v{Ex+2*k}, v{Ex+2*k+1}")
    a(f"""ds_write_b128 v{P+8}, {vr(P,4)} offset:{L_LUT}
    ds_write_b128 v{P+9}, {vr(P+4,4)} offset:{L_LUT}
    s_add_u32 s{S_JOB}, s{S_JOB}, 1
    s_sub_u32 s{S_JCNT}, s{S_JCNT}, 1
    s_cmp_lg_u32 s{S_JCNT}, 0
    s_cbranch_scc1 LUT_SUB
    s_setpc_b64 {sr(S_RET,2)}""")
def lut_jobs(a, count): a(f"s_mov_b32 s{S_JCNT}, {count}\ns_call_b64 {sr(S_RET,2)}, LUT_SUB")

def lut_plain(a, tag, region, last=None, cont=False):
    P = LJ
    for name, first, end, bias in (("L", 1, 24, 0x20000 - 0x800080), ("H", 34, 62, 0x20000)):
        if name != region: continue
        last = last or end
        if cont: a(f"s_cmp_gt_u32 s{S_JOB}, {last}\ns_cbranch_scc1 LUTP_END_{tag}")
        else: a(f"s_add_u32 s{S_JOB}, s{S_WAVE}, {first}")
        if name == "H" and not cont:
            for k in range(4): a(f"v_mov_b32 v{P+4+k}, 0x80008000")
        a(f"LUTP_{tag}{name}:")
        a(f"""s_mul_i32 s3, s{S_JOB}, {512 * 0x10001}
        s_add_u32 s3, s3, {bias & 0xffffffff}
        v_add_u32 v{P}, s3, v{P+10}
        s_lshl_b32 s3, s{S_JOB}, 10
        v_add_u32 v{P+8}, s3, v{V_L16}""")
        for k in range(1, 4): a(f"v_add_u32 v{P+k}, {k * 0x20002}, v{P}")
        a(f"v_add_u32 v{P+9}, 0x10000, v{P+8}")
        if name == "L":
            for k in range(4): a(f"v_or_b32 v{P+4+k}, 0x80008000, v{P+k}")
        a(f"""ds_write_b128 v{P+8}, {vr(P,4)} offset:{L_LUT}
        ds_write_b128 v{P+9}, {vr(P+4,4)} offset:{L_LUT}
        s_add_u32 s{S_JOB}, s{S_JOB}, {5 if name == "L" else 4}
        s_cmp_le_u32 s{S_JOB}, {last}
        s_cbranch_scc1 LUTP_{tag}{name}
        LUTP_END_{tag}:""")

def tab_issue(a): a(f"buffer_load_dwordx4 {vr(RECN,4)}, v{V_POS}, {sr(S_WS,4)}, 0 offen sc1")
def tab_check(a, younger):
    if younger: a(f"s_waitcnt vmcnt({younger})\ns_branch CHECK_TAB")
    a(f"""POLL_TAB:
    s_waitcnt vmcnt(0)
    CHECK_TAB:
    v_lshrrev_b32 v{T0+3}, 22, v{RECN}
    v_cmp_ne_u32 vcc, s{S_NLO}, v{RECN+1}
    v_cmp_ne_u32 {sr(S_T,2)}, s{S_NHI}, v{T0+3}
    s_or_b64 vcc, vcc, {sr(S_T,2)}
    s_and_b64 exec, exec, vcc
    s_cbranch_execz POLLED_TAB
    s_sub_u32 s{S_SPIN}, s{S_SPIN}, 1
    s_cbranch_scc1 END""")
    tab_issue(a)
    a("s_branch POLL_TAB\nPOLLED_TAB:\ns_mov_b64 exec, -1")

def load_epoch(a):
    a(f"""s_add_u32 s4, s{S_WS}, {WS_EPOCH}
    s_addc_u32 s5, s{S_WS+1}, 0
    s_load_dwordx2 {sr(S_NLO,2)}, s[4:5], 0""")
def make_tag(a):
    a(f"""s_add_u32 s{S_NLO}, s{S_NLO}, 1
    s_and_b32 s{S_NHI}, s{S_NHI}, 0x3ff""")

def scan256(a, H_, O_):
    a(f"""v_add_u32 v{T0+2}, v{H_}, v{H_+1}
    v_add3_u32 v{T0+2}, v{T0+2}, v{H_+2}, v{H_+3}
    v_mov_b32 v{T0+3}, v{T0+2}""")
    scan64(a, T0 + 3)
    a(f"""v_sub_u32 v{O_}, v{T0+3}, v{T0+2}
    v_add_u32 v{O_+1}, v{O_}, v{H_}
    v_add_u32 v{O_+2}, v{O_+1}, v{H_+1}
    v_add_u32 v{O_+3}, v{O_+2}, v{H_+2}""")

SRC, DST, YY, EFP, WRAD, CG, WMX = S_IN + 2, S_IN + 4, S_IN + 6, S_IN + 8, S_IN + 10, S_IN + 12, S_IN + 14
D_, S_, Y_, F_, B_, R_, H_, O_, TB = 64, 68, 72, 80, 88, 92, 96, 100, 108
CT = WMIX
def const_sub(a):
    a(f"""CONST_SUB:
    ds_write_b32 v{CT+5}, v{CT+4} offset:{L_CG}
    v_lshrrev_b32 v{CT+5}, 3, v{V_L16}
    v_and_b32 v{CT+5}, 24, v{CT+5}
    s_mov_b32 s4, 0x05040100
    s_mov_b32 s5, 0x07060302""")
    for i in range(4): a(f"ds_read_b64_tr_b16 {vr(CGB+2*i,2)}, v{CT+5} offset:{L_CG + 32*i}")
    for u in range(2):
        a(f"v_perm_b32 v{PE+u}, v{CT+1+2*u}, v{CT+2*u}, s4\nv_perm_b32 v{PO+u}, v{CT+1+2*u}, v{CT+2*u}, s5")
    a(f"s_setpc_b64 {sr(S_RET,2)}")
def const_finish(a): a(f"s_call_b64 {sr(S_RET,2)}, CONST_SUB")

def load_yf(a):
    a(f"""global_load_dwordx4 {vr(Y_,4)}, v{T0+1}, {sr(YY,2)}
    global_load_dwordx4 {vr(Y_+4,4)}, v{T0+1}, {sr(YY,2)} offset:16
    global_load_dwordx4 {vr(F_,4)}, v{T0+1}, {sr(EFP,2)}
    global_load_dwordx4 {vr(F_+4,4)}, v{T0+1}, {sr(EFP,2)} offset:16""")

def phase1(a, opt):
    st = lambda n: stamp(a, opt, n)
    WS = sr(S_WS, 2); FL = opt.k1st
    a(f"""s_cmp_ge_u32 s{S_WAVE}, 5
    s_cbranch_scc1 HELP""")
    lut_plain(a, "W0", "L", last=opt.lsplit)
    a(f"""s_cmp_ge_u32 s2, {NP}
    s_cbranch_scc1 AUX""")
    load_yf(a)
    st('jobs A')
    a("s_waitcnt vmcnt(11)")
    st('dst arrived')
    for k in range(4):
        a(f"""v_and_b32 v{B_+k}, 0xff, v{D_+k}
              v_lshlrev_b32 v{B_+k}, 2, v{B_+k}
              ds_add_rtn_u32 v{R_+k}, v{B_+k}, v{V_ONE} offset:{L1_HIST}""")
    a("s_waitcnt vmcnt(10)")
    for k in range(4):
        a(f"""v_lshrrev_b32 v{D_+k}, 8, v{D_+k}
              v_lshl_or_b32 v{TB+2*k}, v{S_+k}, 10, v{D_+k}""")
    a(f"""s_mov_b32 s9, {L1_SKEY}
    s_waitcnt lgkmcnt(0)
    s_barrier
    ds_read_b128 {vr(H_,4)}, v{V_L16} offset:{L1_HIST}""")
    make_tag(a)
    for k in range(4): a(f"v_mov_b32 v{TB+2*k+1}, s{S_NLO}")
    a("v_mov_b32 v119, 0")
    for k in range(4):
        a(f"""v_cmp_gt_u32 vcc, {NLN}, v{R_+k}
              v_mul_u32_u24 v116, 6, v{R_+k}
              v_lshlrev_b32 v117, 1, v{B_+k}
              v_cndmask_b32 v118, 0, v{D_+k}, vcc
              v_lshlrev_b64 {vr(120+2*(k%2),2)}, v116, v[118:119]
              ds_or_b64 v117, {vr(120+2*(k%2),2)} offset:{L1_LNS}""")
    a("s_waitcnt lgkmcnt(4)")
    scan256(a, H_, O_)
    a(f"ds_write_b128 v{V_L16}, {vr(O_,4)} offset:{L1_BASE}")
    for k in range(4): a(f"ds_read_b32 v{H_+k}, v{B_+k} offset:{L1_BASE}")
    for k in range(4):
        a(f"""s_waitcnt lgkmcnt(3)
              v_add_u32 v{R_+k}, v{R_+k}, v{H_+k}
              v_lshl_add_u32 v{B_+k}, v{R_+k}, 3, s9
              ds_write_b64 v{B_+k}, {vr(TB+2*k,2)}""")
    for k in range(4):
        a(f"v_lshlrev_b32 v{R_+k}, 4, v{R_+k}\nv_add_u32 v{R_+k}, {L1_SREC}, v{R_+k}")
    a("s_waitcnt lgkmcnt(0)\ns_barrier")
    st('keys binned')
    a("s_waitcnt vmcnt(0)")
    x_touch(a, opt, 9, False)
    for k in range(4):
        a(f"ds_write2_b64 v{R_+k}, {vr(Y_+2*k,2)}, {vr(F_+2*k,2)} offset0:0 offset1:1")
    st('recs binned')
    a("BINNED:\ns_setprio 0")
    a(f"s_waitcnt lgkmcnt(0)\ns_barrier\nv_mov_b32 v{V_LEN}, 0")
    const_finish(a)
    lut_plain(a, "W", "L", cont=True)
    a(f"s_cmp_eq_u32 s{S_WAVE}, 4\ns_cbranch_scc1 WAVE4")
    lut_plain(a, "U", "H", last=opt.late)
    tab_issue(a)
    x_touch(a, opt, 6, False)
    st('tab issued')
    if opt.late < 62: lut_plain(a, "V", "H", cont=True)
    tab_check(a, ("," + opt.xt).count(",6:"))
    st('tab arrived')
    a("s_branch TAB_DONE")
    lut_sub(a)
    const_sub(a)
    a("HELP:")
    a(f"""s_sub_u32 s8, s{S_WAVE}, 5
    s_mul_i32 s4, s8, 3072
    s_cmp_eq_u32 s8, 1
    s_cselect_b32 s4, 4096, s4
    s_mul_i32 s3, s2, {EP * 8}
    s_add_u32 s3, s3, s4
    v_add_u32 v{T0}, s3, v{V_L16}
    s_add_u32 s4, s4, {L1_SKEY}
    v_add_u32 v{T0+1}, s4, v{V_L16}
    s_mul_i32 s4, s8, 7168
    s_mul_i32 s3, s2, {EP * 16}
    s_add_u32 s3, s3, s4
    s_add_u32 s3, s3, {WS_REC}
    v_add_u32 v{T0+4}, s3, v{V_L16}
    v_add_u32 v{T0+5}, s4, v{V_L16}
    s_lshl_b32 s3, s2, 12
    s_add_u32 s3, s3, {WS_TAB}
    v_add_u32 v117, s3, v{V_L16}
    s_waitcnt lgkmcnt(0)""")
    make_tag(a)
    st('help jobs')
    a(f"""s_barrier
    s_cmp_eq_u32 s{S_WAVE}, 6
    s_cbranch_scc1 ROW
    s_cmp_eq_u32 s{S_WAVE}, 7
    s_cselect_b32 s{S_JOB}, 63, 0""")
    lut_jobs(a, 1)
    a("s_waitcnt vmcnt(0)")
    const_finish(a)
    a(f"""v_mov_b32 v{T0+2}, {0x7f80 * 2}
    v_mov_b32 v{T0+3}, 0x7f80
    s_cmp_lg_u32 s{S_WAVE}, 7
    s_cbranch_scc1 NO_ROW
    ds_write_b16 v{T0+2}, v{T0+3} offset:{L_LUT}
    s_branch NO_ROW
ROW:
    v_lshrrev_b32 v116, 2, v{V_L16}""")
    QT, HH, SS = 84, 100, 104
    for m in range(4): a(f"ds_read_b32 v{HH+m}, v116 offset:{L1_HIST + 256*m}")
    a(f"""s_lshl_b32 s3, s2, 12
    s_add_u32 s3, s3, {WS_TAB}
    v_add_u32 v117, s3, v{V_L16}
    v_lshrrev_b32 v116, 1, v{V_L16}
    s_lshl_b32 s3, s{S_NHI}, 22
    s_waitcnt lgkmcnt(0)""")
    for m in range(4): a(f"v_mov_b32 v{SS+m}, v{HH+m}")
    scan64(a, SS, SS + 1, SS + 2, SS + 3)
    a(f"""v_readlane_b32 s4, v{SS}, 63
    v_readlane_b32 s5, v{SS+1}, 63
    v_readlane_b32 s9, v{SS+2}, 63""")
    for m in range(4): a(f"v_sub_u32 v{SS+m}, v{SS+m}, v{HH+m}")
    a(f"""s_add_u32 s5, s5, s4
    s_add_u32 s9, s9, s5
    v_add_u32 v{SS+1}, s4, v{SS+1}
    v_add_u32 v{SS+2}, s5, v{SS+2}
    v_add_u32 v{SS+3}, s9, v{SS+3}""")
    for m in range(4):
        a(f"""v_lshl_or_b32 v{QT+4*m}, v{HH+m}, 11, v{SS+m}
              v_or_b32 v{QT+4*m}, s3, v{QT+4*m}
              v_mov_b32 v{QT+4*m+1}, s{S_NLO}""")
    a("s_waitcnt vmcnt(0)")
    const_finish(a)
    a(f"""NO_ROW:
    s_barrier
    s_cmp_lg_u32 s{S_WAVE}, 6
    s_cbranch_scc1 ROW_DONE""")
    for m in range(4): a(f"ds_read_b64 {vr(QT+4*m+2,2)}, v116 offset:{L1_LNS + 512*m}")
    for m in range(4): a(f"s_waitcnt lgkmcnt({3-m})\nglobal_store_dwordx4 v117, {vr(QT+4*m,4)}, {WS} offset:{1024*m} sc0 sc1")
    st('table published')
    a("ROW_DONE:")
    for k in range(4): a(f"ds_read_b128 {vr(64+4*k,4)}, v{T0+1} offset:{1024*k}")
    a(f"""v_mov_b32 v{V_LEN}, 0
    s_add_u32 s{S_JOB}, s8, s8                       ; jobs 27, 28 / 29, 30, 31 / 32, 33
    s_add_u32 s{S_JOB}, s{S_JOB}, 27
    s_cmp_eq_u32 s8, 2
    s_addc_u32 s{S_JOB}, s{S_JOB}, 0
    s_cmp_eq_u32 s8, 1
    s_cselect_b32 s{S_JCNT}, 3, 2
    s_waitcnt lgkmcnt(0)
    s_barrier
    s_cmp_ge_u32 s2, {NP}
    s_cbranch_scc1 RECS_STORED""")
    for k in range(7): a(f"ds_read_b128 {vr(84+4*k,4)}, v{T0+5} offset:{L1_SREC + 1024*k}")
    for k in range(7):
        if k == 4: a(f"v_add_u32 v{T0+4}, 4096, v{T0+4}")
        if k == 6: a(f"s_cmp_eq_u32 s8, 2\ns_cbranch_scc1 RECS_STORED")
        a(f"s_waitcnt lgkmcnt({6-k})\nglobal_store_dwordx4 v{T0+4}, {vr(84+4*k,4)}, {WS} offset:{(1024*k) % 4096} {FL}")
    a(f"""RECS_STORED:
    s_call_b64 {sr(S_RET,2)}, LUT_SUB
    s_cmp_ge_u32 s2, {NP}
    s_cbranch_scc1 TAB_DONE
    v_mov_b32 v{T0+2}, 0
    s_waitcnt vmcnt(0)
    s_mov_b64 exec, 1
    ds_add_u32 v{T0+2}, v{V_ONE} offset:{L_CNT}
    s_mov_b64 exec, -1
WAIT_ACK:
    ds_read_b32 v{T0+3}, v{T0+2} offset:{L_CNT}
    s_waitcnt lgkmcnt(0)
    v_readfirstlane_b32 s3, v{T0+3}
    s_cmp_eq_u32 s3, 3
    s_cbranch_scc0 WAIT_ACK""")
    st('recs acked')
    for k in range(4):
        if k == 2: a(f"s_cmp_eq_u32 s8, 1\ns_cbranch_scc1 TAB_DONE")
        a(f"global_store_dwordx4 v{T0}, {vr(64+4*k,4)}, {WS} offset:{1024*k} {FL}")
    a("s_branch TAB_DONE")
    a(f"""AUX_LOAD:
    s_sub_u32 s4, s2, {NP}
    s_cmp_ge_u32 s4, 4
    s_cbranch_scc1 NO_EDGES
    s_cmp_ge_u32 s{S_WAVE}, 4
    s_cbranch_scc1 NO_EDGES
    s_lshl_b32 s5, s{S_WAVE}, 13
    s_lshl_b32 s8, s4, 6
    s_add_u32 s5, s5, s8
    v_lshrrev_b32 v80, 8, v{V_L16}
    v_lshlrev_b32 v80, 11, v80
    v_bfe_u32 v81, v{V_L16}, 4, 4
    v_lshl_add_u32 v80, v81, 2, v80
    v_add_u32 v80, s5, v80""")
    for t in range(8): a(f"global_load_dword v{64+t}, v80, {sr(WMX,2)} offset:{t*256}")
    a(f"""s_branch NO_EDGES
AUX:
    s_cmp_ge_u32 s2, {NP + 4}
    s_cbranch_scc1 AUX_DONE
    s_cmp_ge_u32 s{S_WAVE}, 4
    s_cbranch_scc1 AUX_DONE
    s_sub_u32 s4, s2, {NP}
    s_lshl_b32 s5, s4, 13
    s_lshl_b32 s8, s{S_WAVE}, 10
    s_add_u32 s5, s5, s8
    s_add_u32 s5, s5, {WS_WMIX}
    v_add_u32 v81, s5, v{V_L16}
    s_mov_b32 s4, 0x05040100
    s_mov_b32 s5, 0x07060302
    s_waitcnt vmcnt(6)""")
    for u in range(4):
        a(f"v_perm_b32 v{72+u}, v{65+2*u}, v{64+2*u}, s4\nv_perm_b32 v{76+u}, v{65+2*u}, v{64+2*u}, s5")
    a(f"""global_store_dwordx4 v81, v[72:75], {WS} {FL}
    v_add_u32 v81, 4096, v81
    global_store_dwordx4 v81, v[76:79], {WS} {FL}
AUX_DONE:
    s_waitcnt lgkmcnt(0)""")
    make_tag(a)
    a(f"""s_barrier
    s_waitcnt vmcnt(0)
    s_barrier
    s_branch BINNED
WAVE4:
    s_mov_b32 s{S_JOB}, 25""")
    lut_jobs(a, 2)
    a("TAB_DONE:")

def mfma4(d, a_, b, c, blk=None):
    cc = "0" if c is None else vr(c, 4)
    return f"v_mfma_f32_4x4x4_16b_bf16 {vr(d,4)}, {vr(a_,2)}, {vr(b,2)}, {cc}" + ("" if blk is None else f" cbsz:4 abid:{blk}")
def p_mfma(g, odd):
    return mfma4(UU + 8 * (g % 2) + 4 * odd, EF, PO if odd else PE, None, g % 16)
def t_mfma(e, odd):
    return mfma4(TP + 8 * (e % 2) + 4 * odd, WPK + 2 * (e % 4), XR + 4 * (e % 8) + 2 * odd, None, (e % 64) // 4)
def act_regs(eb, odd):
    return UU + 8 * ((eb // 4) % 2) + 4 * odd + eb % 4, RR + 4 * ((eb // 2) % 2) + 2 * odd
def act_addr(t, u):
    return f"v_lshlrev_b32_sdwa v{t}, v{V_ONE}, v{u} dst_sel:DWORD dst_unused:UNUSED_PAD src0_sel:DWORD src1_sel:WORD_1"
def act_read(r, t): return f"ds_read_u16_d16_hi v{r}, v{t} offset:{L_LUT}"
def fma4(a, q):
    h = q % 2
    a(f"s_set_gpr_idx_on s{S_K + q % 16}, 0xc")
    for odd in range(2):
        r = RR + 4 * ((q // 2) % 2) + 2 * odd
        for o in (0, 2):
            acc = ACC + 4 * odd + o; tp = TP + 8 * (q % 2) + 4 * odd + o
            a(f"v_pk_fma_f32 {vr(acc,2)}, {vr(r,2)}, {vr(tp,2)}, {vr(acc,2)} op_sel:[{h},0,0] op_sel_hi:[{h},1,1]")
    a("s_set_gpr_idx_off")
def meta_read_entry(a): a(f"ds_read_b32 v{ENT}, v{V_AENT}")
def meta_fix_entry(a, rec=True):
    a(f"""v_cmp_gt_u32 vcc, s{S_END}, v{V_POS}
          v_add_u32 v{V_POS}, 64, v{V_POS}
          v_add_u32 v{V_AENT}, 256, v{V_AENT}
          v_cndmask_b32 v{ENT}, 40, v{ENT}, vcc
          v_lshrrev_b32 v{T0}, 21, v{ENT}
          v_lshlrev_b32 v{T0}, 4, v{T0}
          v_lshlrev_b32 v{T0+1}, 3, v{ENT}""")
    if rec: meta_read_rec(a)
    a(f"""v_and_b32 v{T0+1}, 0xfffc00, v{T0+1}
          v_and_or_b32 v{ENT}, v{ENT}, 56, v{T0+1}""")
def meta_read_rec(a): a(f"ds_read_b128 {vr(RECN,4)}, v{T0} offset:{L_UREC}")
def w_mfma(i): return mfma4(WTMP + 4 * i, RECN, CGB + 2 * i, None)
def w_cvt(a, m):
    a(f"""v_cvt_pk_bf16_f32 v{WPK+2*m}, v{WTMP+m}, v{WTMP+4+m}
          v_cvt_pk_bf16_f32 v{WPK+2*m+1}, v{WTMP+8+m}, v{WTMP+12+m}""")

def step(a, opt, q, drain=None):
    D = opt.D; loads = drain is None
    eb = q + 2 - q % 2; odd = q % 2
    u, r = act_regs(eb, odd); t = TT + 2 * odd
    g, ur = (q + 6) // 4, (q + 6) % 4
    if ur % 2 == 0: a(p_mfma(g, ur // 2))
    elif 40 <= q < 48: a(w_mfma((q - 40) // 2))
    a(act_addr(t, u))
    if loads: a(f"s_waitcnt vmcnt({D - 2})")
    elif D - 2 - drain >= 0: a(f"s_waitcnt vmcnt({8 + D - 2 - drain})")
    a(t_mfma(q + 1, 0))
    if loads: a(f"v_readlane_b32 s{S_K + (q + D) % 16}, v{KEY if q + D < 64 else ENT}, {(q + D) % 64}")
    else:     a("s_nop 0")
    a(t_mfma(q + 1, 1))
    a(act_addr(t + 1, u + 1))
    a(act_read(r, t)); a(act_read(r + 1, t + 1))
    if q >= 60: w_cvt(a, q - 60)
    if loads:
        a(f"s_and_b32 s{S_OFF}, s{S_K + (q + D) % 16}, s{S_MASK}")
        a(f"buffer_load_dwordx4 {vr(XR + 4 * ((q + D) % 8), 4)}, v{V_L16}, {sr(S_X,4)}, s{S_OFF} offen")
    if q % 2 == 0: a("s_waitcnt lgkmcnt(2)")
    fma4(a, q)
    if loads and q == 8: meta_read_entry(a)
    if loads and q == 12: meta_fix_entry(a)
    if q == 57: a(f"v_mov_b32 v{EF}, v{RECN+2}\nv_mov_b32 v{EF+1}, v{RECN+3}\ns_nop 1")
    if loads and q == 63: a(f"v_mov_b32 v{KEY}, v{ENT}")

def body(a, opt):
    G = opt.gran
    for q in range(64):
        if q % G == 0: a(f"A_{q}:\ns_sub_u32 s{S_REM}, s{S_REM}, {G}\ns_cbranch_scc1 B_{q}")
        step(a, opt, q)
    if opt.stamps and not opt.only:
        STAMPS.extend(("batch 1", "batch 2")); k = S_ST + len(STAMPS) - 2
        a(f"""s_memrealtime s[98:99]
        s_waitcnt lgkmcnt(0)
        s_cmp_eq_u32 s{k}, 0
        s_cselect_b32 s99, 0, s98
        s_cselect_b32 s{k}, s98, s{k}
        s_cmp_eq_u32 s{k+1}, 0
        s_cselect_b32 s{k+1}, s99, s{k+1}""")
    if opt.probe == "batch 1":
        a("s_memrealtime s[98:99]\ns_waitcnt lgkmcnt(0)\ns_cmp_eq_u32 s93, 0\ns_cselect_b32 s93, s98, s93")
    a("s_branch A_0")
    for q in range(0, 64, G):
        a(f"B_{q}:")
        for k in range(8):
            a(f"buffer_load_dwordx4 {vr(WMIX+4*k,4)}, v{V_L16}, {sr(S_WS,4)}, s{S_WM + k // 4} offen offset:{(k%4)*1024} sc1")
        for i in range(opt.D):
            a(f"s_sub_u32 s{S_REMB}, s{S_REMB}, 1\ns_cbranch_scc1 MAIN_DONE")
            step(a, opt, (q + i) % 64, i)
        a("s_branch MAIN_DONE")

def x_touch(a, opt, where, guard=True):
    for spec in filter(None, opt.xt.split(",")):
        w, lo, hi = map(int, spec.split(":"))
        if w != where: continue
        if guard: a(f"s_cmp_lg_u32 s{S_W0}, 0\ns_cbranch_scc1 NO_X_TOUCH_{w}")
        four = w in (6, 9)
        if w == 9: a(f"s_cmp_eq_u32 s{S_WAVE}, 4\ns_cbranch_scc1 NO_X_TOUCH_{w}")
        a(f"""s_lshl_b32 s{S_OFF}, s2, {2 if four else 3}
        s_add_u32 s{S_OFF}, s{S_OFF}, s{S_WAVE}
        s_lshl_b32 s{S_OFF}, s{S_OFF}, 7
        s_add_u32 s{S_OFF}, s{S_OFF}, {lo << 18}
        v_min_u32 v{V_TOUCH}, {(((hi - lo) << four) - 1) * 16}, v{V_L16}
        v_lshl_add_u32 v{V_TOUCH}, v{V_TOUCH}, {14 - four}, s{S_OFF}
        buffer_load_dword v{V_DUMMY}, v{V_TOUCH}, {sr(S_X,4)}, 0 offen {opt.xflag}""")
        a(f"NO_X_TOUCH_{w}:")

DEAL = ([4, 2, 4, 7, 6, 3, 1, 5, 0, 4, 2, 6, 1, 7, 3, 5, 0, 4, 7, 3, 0, 1, 5, 6, 2, 5, 0, 1, 6, 7, 3, 2, 0, 5, 3, 1, 6, 7, 2, 4],
        [0, 2, 7, 1, 4, 6, 5, 3, 6, 3, 1, 7, 4, 0, 2, 5, 4, 3, 5, 6, 7, 1, 0, 2, 7, 5, 2, 4, 3, 6, 0, 1, 5, 1, 3, 6, 4, 2, 7, 0])
def deal_bytes():
    out = []
    for t in DEAL:
        assert sorted(t) == sorted(list(range(8)) * 5)
        out += [4 * (5 * w + t[:r].count(w)) | (8 * w + t[:r].count(w)) << 8 for r, w in enumerate(t)] + [0] * 24
    return out

def zero_hist(a):
    a(f"""v_lshlrev_b32 v{T0+3}, 2, v0
    v_mov_b32 v{T0+4}, 0
    v_cmp_gt_u32 vcc, 0x100, v0
    s_and_saveexec_b64 {sr(S_T,2)}, vcc
    ds_write_b32 v{T0+3}, v{T0+4} offset:{L_HIST}
    s_mov_b64 exec, {sr(S_T,2)}""")

def kernel(opt):
    a = Asm(); D = opt.D
    st = lambda n: stamp(a, opt, n)
    a(f"""{KERN}:
    s_cmp_ge_u32 s2, 256
    s_cbranch_scc1 END""")
    if opt.probe: a("s_mov_b32 s93, 0\ns_memrealtime s[98:99]\ns_waitcnt lgkmcnt(0)\ns_mov_b32 s92, s98")
    if opt.stamps:
        for k in range(32): a(f"s_mov_b32 s{S_ST+k}, 0")
    st('start')
    a(f"""s_load_dwordx16 {sr(S_IN,16)}, s[0:1], 0
    s_load_dwordx2 {sr(S_WS,2)}, s[0:1], 80
    s_load_dwordx2 {sr(S_X,2)}, s[0:1], 0
    s_load_dwordx2 {sr(S_OUT,2)}, s[0:1], 64
    ; wave 7 of every workgroup takes 8 lines; the 32 workgroups with equal id % 8 cover 32 KiB
    s_getpc_b64 s[6:7]
CODE_HERE:
    v_lshrrev_b32 v{T0}, 6, v0
    s_lshr_b32 s5, s2, 3
    s_lshl_b32 s4, s5, 10
    v_readfirstlane_b32 s{S_WAVE}, v{T0}
    v_and_b32 v{T0+2}, 7, v0
    v_lshl_add_u32 v{T0+2}, v{T0+2}, 7, s4
    v_min_u32 v{T0+2}, END-CODE_HERE, v{T0+2}
    s_cmp_lg_u32 s{S_WAVE}, 7
    s_cbranch_scc1 NO_CODE_TOUCH
    global_load_dword v{V_DUMMY}, v{T0+2}, s[6:7]
NO_CODE_TOUCH:
    s_mul_i32 s3, s2, {EP * 4}
    v_lshl_add_u32 v{T0}, v0, 4, s3
    v_and_b32 v{T0+2}, 63, v0
    v_lshlrev_b32 v{V_L16}, 4, v{T0+2}
    v_lshlrev_b32 v{CT+5}, 2, v{T0+2}
    v_lshlrev_b32 v{T0+3}, 4, v0
    v_mov_b32 v{T0+4}, 0
    v_mov_b32 v{T0+5}, 0
    v_pk_mov_b32 {vr(ACC,2)}, {vr(T0+4,2)}, {vr(T0+4,2)}
    v_pk_mov_b32 {vr(ACC+2,2)}, {vr(T0+4,2)}, {vr(T0+4,2)}
    ds_write_b128 v{T0+3}, {vr(ACC,4)}
    s_cmp_ge_u32 s{S_WAVE}, 5
    s_waitcnt lgkmcnt(0)
    s_cbranch_scc1 NO_EDGES
    s_cmp_ge_u32 s2, {NP}
    s_cbranch_scc1 AUX_LOAD
    s_setprio 1
    global_load_dwordx4 {vr(D_,4)}, v{T0}, {sr(DST,2)}
    global_load_dwordx4 {vr(S_,4)}, v{T0}, {sr(SRC,2)}
NO_EDGES:""")
    load_epoch(a)
    st('kernargs')
    for k in range(4): a(f"global_load_dword v{CT+k}, v{CT+5}, {sr(WRAD,2)} offset:{k*256}")
    a(f"""v_and_b32 v{CT+5}, 0x7f, v{CT+5}
    global_load_dword v{CT+4}, v{CT+5}, {sr(CG,2)}
    s_and_b32 s3, s2, 0x87
    s_cmp_eq_u32 s3, 0
    s_cselect_b32 s3, 128, 0
    s_add_u32 s3, s3, DEAL_TABLE-CODE_HERE
    v_lshl_add_u32 v{V_DEAL}, v{T0+2}, 1, s3
    global_load_ushort v{V_DEAL}, v{V_DEAL}, s[6:7]
    s_mov_b32 s{S_X+2}, {N * 1024}
    s_mov_b32 s{S_X+3}, 0x20000""")
    a(f"v_lshlrev_b32 v{T0+1}, 1, v{T0}")
    a(f"""
    s_and_b32 s4, s2, 7
    s_lshl_b32 s4, s4, 5
    s_lshr_b32 s5, s2, 3
    s_or_b32 s{S_BETA}, s4, s5
    v_mov_b32 v{V_ONE}, 1
    s_mov_b32 s{S_WS+2}, {WS_END if not opt.stamps else WS_STAMP + 0x80000}
    s_mov_b32 s{S_WS+3}, 0x20000
    s_mov_b32 s{S_OUT+2}, {N * 1024}
    s_mov_b32 s{S_OUT+3}, 0x20000
    s_mov_b32 s{S_MASK}, 0xfffffc00
    s_mov_b32 s{S_W0}, 0
    s_mov_b32 s{S_L2E}, 0xbfb8aa3b
    s_mov_b32 s{S_L2E+1}, 0xbfb8aa3b
    s_mov_b32 s{S_SPIN}, {1 << 21}
    v_and_b32 v{V_GID}, 0xff, v0
    s_lshl_b32 s3, s{S_BETA}, 4
    s_add_u32 s3, s3, {WS_TAB}
    v_lshl_add_u32 v{V_POS}, v{V_GID}, 12, s3
    v_mul_u32_u24 v{V_GID}, {EP}, v{V_GID}
    v_mul_u32_u24 v{LJ+10}, 0x8000, v{V_L16}
    v_lshl_add_u32 v{LJ+10}, v{T0+2}, 3, v{LJ+10}    ; lane * 8 * 0x10001""")
    for k in range(4, 48, 2): a(f"v_pk_mov_b32 {vr(ACC+k,2)}, {vr(T0+4,2)}, {vr(T0+4,2)}")
    a("s_barrier")
    phase1(a, opt)
    a(f"""s_cmp_ge_u32 s{S_WAVE}, 4
    s_cbranch_scc1 TOTALS
    v_and_b32 v{T0+5}, 0x7ff, v{RECN}
    v_bfe_u32 v{V_LEN}, v{RECN}, 11, 11
    v_add_u32 v{V_GID}, v{V_GID}, v{T0+5}
    v_mov_b32 v{V_PRE}, v{V_LEN}""")
    scan64(a, V_PRE)
    a(f"""s_lshl_b32 s3, s{S_WAVE}, 2
    v_mov_b32 v{T0+2}, s3
    v_add_u32 v{T0+3}, 1, v{V_PRE}
    v_sub_u32 v{V_PRE}, v{V_PRE}, v{V_LEN}
    s_mov_b32 exec_lo, 0
    s_mov_b32 exec_hi, 0x80000000
    ds_write_b32 v{T0+2}, v{T0+3} offset:{L_WT}
    s_mov_b64 exec, -1
TOTALS:
    v_mov_b32 v{T0+2}, 0
TOTALS_SPIN:
    ds_read_b128 {vr(XR,4)}, v{T0+2} offset:{L_WT}
    s_waitcnt lgkmcnt(0)""")
    for k in range(4): a(f"v_readfirstlane_b32 s{4+k}, v{XR+k}")
    a(f"""s_min_u32 s3, s4, s5
    s_min_u32 s8, s6, s7
    s_min_u32 s3, s3, s8
    s_cmp_eq_u32 s3, 0
    s_cbranch_scc0 TOTALS_OK
    s_sub_u32 s{S_SPIN}, s{S_SPIN}, 1
    s_cbranch_scc0 TOTALS_SPIN
    s_endpgm
TOTALS_OK:
    s_add_u32 s5, s5, s4
    s_add_u32 s6, s6, s5
    s_add_u32 s7, s7, s6
    s_sub_u32 s{S_N}, s7, 4
    s_cmp_eq_u32 s{S_WAVE}, 1
    s_cselect_b32 s3, s4, 0
    s_cmp_eq_u32 s{S_WAVE}, 2
    s_cselect_b32 s3, s5, s3
    s_cmp_eq_u32 s{S_WAVE}, 3
    s_cselect_b32 s3, s6, s3
    s_sub_u32 s3, s3, s{S_WAVE}
    v_add_u32 v{V_PRE}, s3, v{V_PRE}
    s_cmp_lg_u32 s{S_WAVE}, 4
    s_cbranch_scc1 EPOCH_DONE
    s_cmp_lg_u32 s2, 0
    s_cbranch_scc1 EPOCH_DONE
    v_mov_b32 v{T0+4}, s{S_NLO}
    v_mov_b32 v{T0+2}, {WS_EPOCH}
    s_mov_b64 exec, 1
    global_store_dword v{T0+2}, v{T0+4}, {sr(S_WS,2)} sc0 sc1
    s_mov_b64 exec, -1
EPOCH_DONE:""")
    x_touch(a, opt, 3, False)
    st('prefix done')
    a(f"""ROUND:
    v_mov_b32 v{T0}, 0
    v_subrev_u32 v{T0+1}, s{S_W0}, v{V_PRE}
    v_mov_b32 v{T0+2}, v{V_GID}
    s_mov_b32 s3, {CAP}
    s_cmp_gt_u32 s{S_N}, {CAP}
    s_cbranch_scc1 EXPAND
    v_lshlrev_b32 v{T0+3}, 2, v{V_PRE}""")
    for j in range(16):
        a(f"v_cmpx_lt_u32 vcc, {j}, v{V_LEN}")
        if j % 2 == 0 and j >= 6: a("s_cbranch_execz EXPAND_DONE")
        a(f"ds_write_b32 v{T0+3}, v{T0+2} offset:{L_SENT + 4*j}\nv_add_u32 v{T0+2}, 1, v{T0+2}")
    a(f"""v_mov_b32 v{T0}, 16
    v_add_u32 v{T0+1}, 16, v{T0+1}
EXPAND:
    v_cmp_lt_u32 vcc, v{T0}, v{V_LEN}
    s_and_b64 exec, exec, vcc
    s_cbranch_execz EXPAND_DONE
    v_cmp_gt_u32 vcc, s3, v{T0+1}
    v_lshlrev_b32 v{T0+3}, 2, v{T0+1}
    s_and_saveexec_b64 {sr(S_T,2)}, vcc
    ds_write_b32 v{T0+3}, v{T0+2} offset:{L_SENT}
    s_mov_b64 exec, {sr(S_T,2)}
    v_add_u32 v{T0}, 1, v{T0}
    v_add_u32 v{T0+1}, 1, v{T0+1}
    v_add_u32 v{T0+2}, 1, v{T0+2}
    s_branch EXPAND
EXPAND_DONE:
    s_mov_b64 exec, -1
    s_sub_u32 s{S_NWIN}, s{S_N}, s{S_W0}
    s_min_u32 s{S_NWIN}, s{S_NWIN}, {CAP}
    v_lshlrev_b32 v{T0}, 2, v0""")
    for i in range(3):
        a(f"""v_add_u32 v{T0+1}, {512*i}, v0
              v_cmp_gt_u32 {sr(S_M+2*i,2)}, s{S_NWIN}, v{T0+1}""")
    st('list built')
    a("s_waitcnt lgkmcnt(0)\ns_barrier")
    st('list barrier')
    G = XR
    KP = TP
    for i in range(3): a(f"ds_read_b32 v{G+i}, v{T0} offset:{L_SENT + 2048*i}")
    a(f"""s_mov_b32 s{S_T+2}, 13421                         ; 32 * 2^32 / (10000 * 1024)
    s_and_b32 s{S_T+3}, s2, 7
    s_mul_i32 s{S_T+3}, s{S_T+3}, {opt.rot}           ; workgroups with different id % 8 start their sweep at different places
    s_waitcnt lgkmcnt(0)""")
    for i in range(3):
        a(f"v_lshlrev_b32 v{G+4+i}, 3, v{G+i}\nv_lshlrev_b32 v{G+i}, 4, v{G+i}")
    def key_loads(tag):
        a(f"""s_mov_b64 exec, {sr(S_M+4,2)}
        s_cbranch_execz SKIP3{tag}
        buffer_load_dwordx2 {vr(KP+4,2)}, v{G+6}, {sr(S_WS,4)}, 0 offen sc1
        SKIP3{tag}:""")
        for i in range(2):
            a(f"s_mov_b64 exec, {sr(S_M+2*i,2)}\nbuffer_load_dwordx2 {vr(KP+2*i,2)}, v{G+4+i}, {sr(S_WS,4)}, 0 offen sc1")
        a("s_mov_b64 exec, -1")
    key_loads("")
    H = G + 20
    a(f"""v_lshrrev_b32 v{T0}, 4, v{V_L16}              ; lane
    s_cmp_lg_u32 s{S_W0}, 0
    s_cbranch_scc1 KEY_WAIT
    s_cmp_ge_u32 s{S_WAVE}, 4
    s_cbranch_scc1 DEG_DONE""")
    for j in range(NLN):
        t = T0 + 1 + j % 2
        if j < 5: a(f"v_bfe_u32 v{t}, v{RECN+2}, {6*j}, 6")
        elif j == 5: a(f"v_alignbit_b32 v{t}, v{RECN+3}, v{RECN+2}, 30\nv_and_b32 v{t}, 63, v{t}")
        else: a(f"v_bfe_u32 v{t}, v{RECN+3}, {6*j-32}, 6")
        a(f"""v_lshlrev_b32 v{t}, 2, v{t}
              v_cmpx_lt_u32 vcc, {j}, v{V_LEN}
              ds_add_u32 v{t}, v{V_ONE} offset:{L_DEG}""")
    a(f"""s_mov_b64 exec, -1
DEG_DONE:
    v_lshlrev_b32 v{T0+1}, 2, v{T0}
    v_cmp_gt_u32 {sr(S_T,2)}, 40, v{T0}
    v_sub_u32 v{T0+2}, 63, v{T0}
    s_mul_i32 s10, s{S_WAVE}, 5
    s_waitcnt lgkmcnt(0)
    s_barrier
    ds_read_b32 v{H}, v{T0+1} offset:{L_DEG}
    v_add_u32 v{T0+3}, s10, v{T0}
    v_lshlrev_b32 v{T0+4}, 2, v{T0+3}
    s_waitcnt lgkmcnt(0)
    v_lshl_or_b32 v{H}, v{H}, 6, v{T0+2}
    v_cndmask_b32 v{H}, 0, v{H}, {sr(S_T,2)}
    s_nop 0""")
    for k in range(5):
        a(f"v_readlane_b32 s{S_NODE+k}, v{H}, s10")
        if k < 4: a("s_add_u32 s10, s10, 1")
    for k in range(5): a(f"v_cmp_lt_u32 {sr(S_K+2*k,2)}, s{S_NODE+k}, v{H}")
    for k in range(5): a(f"s_bcnt1_i32_b64 s{S_NODE+k}, {sr(S_K+2*k,2)}")
    for k in range(5): a(f"v_readlane_b32 s{S_NODE+k}, v{V_DEAL}, s{S_NODE+k}")
    a("s_nop 0")
    for k in range(5): a(f"v_writelane_b32 v{T0+1}, s{S_NODE+k}, {k}")
    a(f"""v_lshrrev_b32 v{T0+2}, 11, v{T0+1}
    v_bfe_u32 v{T0+5}, v{T0+1}, 8, 3
    v_lshlrev_b32 v{T0+2}, 7, v{T0+2}
    v_and_b32 v{T0+1}, 0xff, v{T0+1}
    v_lshl_or_b32 v{T0+2}, v{T0+5}, 19, v{T0+2}
    s_mov_b64 exec, 0x1f
    ds_write_b32 v{T0+1}, v{T0+3} offset:{L_INV}
    ds_write_b32 v{T0+4}, v{T0+2} offset:{L_MAP}
    s_mov_b64 exec, -1
    s_waitcnt lgkmcnt(0)
    s_barrier""")
    st('dealt')
    a(f"""KEY_WAIT:
    s_lshl_b32 s3, s{S_WAVE}, 10
    s_add_u32 s3, s3, {L_UREC}
    s_mov_b32 s9, {WS_REC}""")
    a("KEY_WAIT0:\ns_waitcnt vmcnt(0)")
    for i in range(3): a(f"v_cmp_ne_u32 {sr(S_K+2*i,2)}, s{S_NLO}, v{KP+2*i+1}")
    for i in range(3): a(f"v_and_b32 v{G+8+i}, 63, v{KP+2*i}\nv_lshlrev_b32 v{G+8+i}, 2, v{G+8+i}")
    for i in range(3): a(f"s_and_b64 {sr(S_K+2*i,2)}, {sr(S_K+2*i,2)}, {sr(S_M+2*i,2)}")
    a(f"""s_or_b64 {sr(S_K,2)}, {sr(S_K,2)}, {sr(S_K+2,2)}
    s_or_b64 {sr(S_K,2)}, {sr(S_K,2)}, {sr(S_K+4,2)}
    s_cbranch_scc0 KEYS_OK
    s_sub_u32 s{S_SPIN}, s{S_SPIN}, 1
    s_cbranch_scc1 END""")
    key_loads("R")
    a("s_branch KEY_WAIT0\nKEYS_OK:")
    st('keys arrived')
    def rec_dma(at):
        for i in (2, 0, 1):
            if opt.recat[i] != at: continue
            a(f"s_add_u32 m0, s3, {i*8192}\ns_mov_b64 exec, {sr(S_M+2*i,2)}")
            if i == 2: a("s_cbranch_execz SKIP3D")
            a(f"buffer_load_dwordx4 v{G+i}, {sr(S_WS,4)}, s9 offen sc1 lds")
            if i == 2: a("SKIP3D:")
        if at in opt.recat: a("s_mov_b64 exec, -1")
    for i in range(3): a(f"ds_read_b32 v{G+8+i}, v{G+8+i} offset:{L_MAP}")
    rec_dma(0)
    for i in range(3):
        a(f"""v_mul_hi_u32 v{G+12+i}, s{S_T+2}, v{KP+2*i}""")
        if opt.rot: a(f"v_add_u32 v{G+12+i}, s{S_T+3}, v{G+12+i}\nv_and_b32 v{G+12+i}, 31, v{G+12+i}")
        a(f"""v_add_u32 v{T0+1}, {512*i}, v0
              v_lshlrev_b32 v{T0+1}, 21, v{T0+1}
              v_lshrrev_b32 v{G+16+i}, 10, v{KP+2*i}
              v_lshl_or_b32 v{G+16+i}, v{G+16+i}, 7, v{T0+1}""")
    for i in range(3):
        a(f"""s_waitcnt lgkmcnt({2-i})
              v_lshrrev_b32 v{T0+1}, 16, v{G+8+i}
              v_and_b32 v{G+8+i}, 0x380, v{G+8+i}
              v_or_b32 v{G+16+i}, v{G+16+i}, v{T0+1}
              v_lshl_add_u32 v{G+8+i}, v{G+12+i}, 2, v{G+8+i}""")
    for i in range(3):
        a(f"s_mov_b64 exec, {sr(S_M+2*i,2)}\nds_add_rtn_u32 v{G+12+i}, v{G+8+i}, v{V_ONE} offset:{L_HIST}")
    a("s_mov_b64 exec, -1")
    rec_dma(1)
    a(f"""s_lshl_b32 s10, s{S_WAVE}, 3
    s_add_u32 s11, s10, 8
    s_and_b32 s11, s11, 63
    s_waitcnt lgkmcnt(0)
    s_barrier""")
    st('hist done')
    a(f"ds_read_b128 {vr(H,4)}, v{V_L16} offset:{L_HIST}")
    rec_dma(2)
    x_touch(a, opt, 8)
    a("s_waitcnt lgkmcnt(0)")
    scan256(a, H, H + 4)
    a(f"""ds_write_b128 v{V_L16}, {vr(H+4,4)} offset:{L_BASE}
    v_readlane_b32 s{S_START}, v{H+4}, s10
    v_readlane_b32 s{S_END}, v{H+4}, s11""")
    for i in range(3): a(f"ds_read_b32 v{G+8+i}, v{G+8+i} offset:{L_BASE}")
    a(f"""s_cmp_eq_u32 s{S_WAVE}, 7
    s_cselect_b32 s{S_END}, s{S_NWIN}, s{S_END}
    v_add_u32 v{V_POS}, s{S_START}, v{T0}
    v_lshlrev_b32 v{V_AENT}, 2, v{V_POS}
    v_add_u32 v{V_AENT}, {L_SENT}, v{V_AENT}
    s_sub_u32 s11, s{S_END}, s{S_START}
    s_max_u32 s10, s11, {D}
    s_add_u32 s10, s10, {opt.gran - 1 - D}
    s_and_b32 s{S_REM}, s10, {-opt.gran}
    s_max_u32 s10, s11, s{S_REM}
    s_sub_u32 s{S_REMB}, s10, s{S_REM}""")
    for i in range(3):
        a(f"""s_waitcnt lgkmcnt({2 if i else 2})
              v_add_lshl_u32 v{G+8+i}, v{G+8+i}, v{G+12+i}, 2
              s_mov_b64 exec, {sr(S_M+2*i,2)}
              ds_write_b32 v{G+8+i}, v{G+16+i} offset:{L_SENT}
              s_mov_b64 exec, -1""")
    a("s_waitcnt lgkmcnt(0)")
    if not opt.xpre: a("s_waitcnt vmcnt(0)")
    a("s_barrier")
    st('sorted')
    if opt.stamps: a(f"s_memtime s[100:101]\ns_waitcnt lgkmcnt(0)\ns_mov_b32 s{S_ST+30}, s100")
    meta_read_entry(a)
    a(f"""s_and_b32 s{S_WM}, s{S_WAVE}, 3
    s_lshl_b32 s{S_WM}, s{S_WM}, 13
    s_add_u32 s{S_WM}, s{S_WM}, {WS_WMIX}
    s_add_u32 s{S_WM+1}, s{S_WM}, 4096""")
    for k in range(8): a(f"v_mov_b32 v{RR+k}, 0")
    a("s_waitcnt lgkmcnt(0)")
    meta_fix_entry(a, False)
    a("s_nop 0")
    def first_rows(lo, hi):
        for e in range(lo, hi):
            a(f"""v_readlane_b32 s{S_K+e}, v{ENT}, {e}
                  s_and_b32 s{S_OFF}, s{S_K+e}, s{S_MASK}
                  buffer_load_dwordx4 {vr(XR+4*e,4)}, v{V_L16}, {sr(S_X,4)}, s{S_OFF} offen""")
    if opt.xpre:
        first_rows(0, opt.xpre)
        if ",8:" in "," + opt.xt and 2 not in opt.recat:
            a(f"s_cmp_lg_u32 s{S_W0}, 0\ns_cbranch_scc1 REC_WAIT\ns_waitcnt vmcnt({opt.xpre + 1})\ns_branch REC_IN\nREC_WAIT:")
        a(f"s_waitcnt vmcnt({opt.xpre})\nREC_IN:")
        st('recs landed')
        a("s_barrier")
    meta_read_rec(a)
    first_rows(opt.xpre, D)
    a(f"v_mov_b32 v{KEY}, v{ENT}")
    a(f"""s_waitcnt lgkmcnt(0)
    v_mov_b32 v{EF}, v{RECN+2}
    v_mov_b32 v{EF+1}, v{RECN+3}""")
    for i in range(4): a(w_mfma(i))
    a(p_mfma(0, 0)); a(p_mfma(0, 1)); a(p_mfma(1, 0))
    a("s_nop 1")
    for m in range(4): w_cvt(a, m)
    for odd in range(2):
        u, r = act_regs(0, odd)
        for h in range(2): a(act_addr(TT + 2 * odd + h, u + h))
        for h in range(2): a(act_read(r + h, TT + 2 * odd + h))
    a(f"s_waitcnt vmcnt({D-1})")
    st('first row')
    a(t_mfma(0, 0)); a(t_mfma(0, 1))
    body(a, opt)
    a(f"""MAIN_DONE:
    s_add_u32 s{S_W0}, s{S_W0}, {CAP}
    s_cmp_ge_u32 s{S_W0}, s{S_N}
    s_cbranch_scc1 ALL_DONE
    s_waitcnt vmcnt(0) lgkmcnt(0)""")
    zero_hist(a)
    a("s_waitcnt lgkmcnt(0)\ns_barrier\ns_branch ROUND\nALL_DONE:")
    st('main done')
    if opt.stamps: a(f"s_memtime s[100:101]\ns_waitcnt lgkmcnt(0)\ns_sub_u32 s{S_ST+30}, s100, s{S_ST+30}")
    PK = WPK; VOUT = UU
    a(f"""v_lshrrev_b32 v{T0+3}, 8, v{V_L16}            ; lane >> 4
    s_lshr_b32 s{S_T}, s{S_WAVE}, 2                   ; half
    s_mul_i32 s{S_T+1}, s{S_T}, 80
    v_mul_u32_u24 v{T0+1}, 20, v{T0+3}
    v_add_u32 v{T0+1}, s{S_T+1}, v{T0+1}""")
    for t in range(5): a(f"ds_read_b32 v{VOUT+t}, v{T0+1} offset:{L_INV + 4*t}")
    for sl in range(5):
        for o in range(4): a(f"v_cvt_pk_bf16_f32 v{PK+4*sl+o}, v{ACC+8*sl+o}, v{ACC+8*sl+4+o}")
    a(f"""s_mul_i32 s{S_T+1}, s{S_WAVE}, {4 * AGG_RS}
    s_add_u32 s{S_T+1}, s{S_T+1}, {L_AGG}
    v_lshrrev_b32 v{T0+4}, 2, v{V_L16}
    v_add_u32 v{T0+4}, s{S_T+1}, v{T0+4}
    v_bfe_u32 v{T0+2}, v{V_L16}, 4, 4                 ; lane & 15
    s_mul_i32 s{S_T+1}, s{S_T}, {16 * AGG_RS}
    s_add_u32 s{S_T+1}, s{S_T+1}, {L_AGG}
    v_mul_u32_u24 v{T0}, {AGG_RS}, v{T0+2}
    v_lshl_add_u32 v{T0}, v{T0+3}, 4, v{T0}
    v_add_u32 v{T0}, s{S_T+1}, v{T0}
    s_lshl_b32 s{S_T}, s{S_BETA}, 10
    s_and_b32 s{S_T+1}, s{S_WAVE}, 3
    s_lshl_b32 s{S_T+1}, s{S_T+1}, 8
    s_add_u32 s{S_T}, s{S_T}, s{S_T+1}
    v_lshl_add_u32 v{T0+2}, v{T0+2}, 4, s{S_T}
    s_waitcnt lgkmcnt(0)""")
    for t in range(5): a(f"v_lshl_add_u32 v{VOUT+t}, v{VOUT+t}, 18, v{T0+2}")
    a("s_barrier")
    st('all main done')
    AF = XR
    def wr(sl):
        for o in range(4): a(f"ds_write_b32 v{T0+4}, v{PK+4*sl+o} offset:{(32*sl + o)*AGG_RS}")
    def rd(t):
        for ks in range(4): a(f"ds_read_b128 {vr(AF+16*(t%2)+4*ks,4)}, v{T0} offset:{t*32*AGG_RS + ks*64}")
    def mm(t, waits, writes=None):
        for ks in range(4):
            if waits[ks] is not None: a(f"s_waitcnt lgkmcnt({waits[ks]})")
            for j in range(2):
                d = ACC + 8 * t + 4 * j
                a(f"v_mfma_f32_16x16x32_bf16 {vr(d,4)}, {vr(AF+16*(t%2)+4*ks,4)}, {vr(WMIX+16*j+4*ks,4)}, " + ("0" if ks == 0 else vr(d, 4)))
            if writes:
                s0, lo, hi = writes[ks]
                for n in range(lo, hi): a(f"ds_write_b32 v{T0+4}, v{PK+4*s0+n} offset:{(32*(s0 + n // 4) + n % 4)*AGG_RS}")
    def pack_store(t):
        d = ACC + 8 * t; p = RR + 4 * (t % 2)
        for j in range(4): a(f"v_cvt_pk_bf16_f32 v{p+j}, v{d+2*j}, v{d+2*j+1}")
        a(f"buffer_store_dwordx4 {vr(p,4)}, v{VOUT+t}, {sr(S_OUT,4)}, 0 offen {opt.outst}")
    wr(0); wr(1)
    a("s_waitcnt vmcnt(0) lgkmcnt(0)\ns_barrier")
    st('agg in LDS')
    rd(0); rd(1)
    mm(0, [7, 9, 11, 13], [(2, 0, 3), (2, 3, 6), (2, 6, 9), (2, 9, 12)])
    a("s_waitcnt lgkmcnt(0)\ns_barrier")
    rd(2)
    mm(1, [None] * 4); pack_store(0)
    rd(3)
    mm(2, [7, 6, 5, 4]); pack_store(1)
    rd(4)
    mm(3, [7, 6, 5, 4]); pack_store(2)
    mm(4, [3, 2, 1, 0]); pack_store(3)
    a("s_nop 3")
    pack_store(4)
    st('end')
    if opt.probe:
        a(f"""s_cmp_eq_u32 s93, 0
        s_cselect_b32 s93, s92, s93
        s_sub_u32 s93, s93, s92
        s_mul_i32 s93, s93, 4
        s_add_u32 s92, s92, s93
        s_add_u32 s92, s92, 6000
        HOLD_SPIN:
        s_memrealtime s[98:99]
        s_waitcnt lgkmcnt(0)
        s_sub_u32 s98, s98, s92
        s_cmp_lt_i32 s98, 0
        s_cbranch_scc1 HOLD_SPIN""")
    if opt.stamps:
        a("s_waitcnt vmcnt(0)")
        st('stores done 2')
        a(f"""s_lshl_b32 s10, s2, 3
        s_add_u32 s10, s10, s{S_WAVE}
        s_lshl_b32 s10, s10, 7
        s_add_u32 s10, s10, {WS_STAMP}
        v_mov_b32 v{T0}, s10
        s_sub_u32 s{S_ST+31}, s{S_END}, s{S_START}
        s_sub_u32 s{S_ST+29}, {1 << 21}, s{S_SPIN}""")
        for k in range(32): a(f"v_mov_b32 v{XR+k}, s{S_ST+k}")
        for k in range(8): a(f"buffer_store_dwordx4 {vr(XR+4*k,4)}, v{T0}, {sr(S_WS,4)}, 0 offen offset:{16*k}")
    a("END:\ns_endpgm")
    a(".p2align 6\n.type DEAL_TABLE,@object\nDEAL_TABLE:\n.short " + ", ".join(map(str, deal_bytes())) + "\n.size DEAL_TABLE, 256")
    return a.text()

def generate(opt):
    here = os.path.dirname(os.path.abspath(__file__))
    out = open(here + "/header.txt").read()
    out += f"; @launch grid=(256,1,1) block=(512,1,1) lds={LDS_BYTES}\n"
    out += f'.amdgcn_target "amdgcn-amd-amdhsa--gfx950"\n.text\n.globl {KERN}\n.p2align 8\n.type {KERN},@function\n'
    out += kernel(opt)
    out += f""".section .rodata,"a"
.p2align 6
.amdhsa_kernel {KERN}
  .amdhsa_next_free_vgpr {NVGPR}
  .amdhsa_next_free_sgpr {NSGPR if opt.stamps or opt.probe else 66}
  .amdhsa_accum_offset {(NVGPR + 3) // 4 * 4}
  .amdhsa_group_segment_fixed_size 0
  .amdhsa_kernarg_size 88
  .amdhsa_user_sgpr_count 2
  .amdhsa_user_sgpr_kernarg_segment_ptr 1
  .amdhsa_system_sgpr_workgroup_id_x 1
  .amdhsa_float_denorm_mode_32 3
.end_amdhsa_kernel
"""
    return out

def options(argv):
    p = argparse.ArgumentParser()
    p.add_argument("-o", default="/code/" + NAME + ".s")
    p.add_argument("--stamps", action="store_true")
    p.add_argument("--probe", default="")
    p.add_argument("--D", type=int, default=6)
    p.add_argument("--recat", type=lambda t: tuple(map(int, t.split(","))), default=(0, 1, 0))
    p.add_argument("--only", default="")
    p.add_argument("--xflag", default="")
    p.add_argument("--rot", type=int, default=0)
    p.add_argument("--gran", type=int, default=4)
    p.add_argument("--late", type=int, default=62)
    p.add_argument("--xpre", type=int, default=2)
    p.add_argument("--xt", default="9:0:8,6:8:16,3:16:24,8:24:32")
    p.add_argument("--lsplit", type=int, default=5)
    p.add_argument("--k1st", default="sc0 sc1")
    p.add_argument("--outst", default="sc0 sc1")
    return p.parse_args(argv)

if __name__ == "__main__":
    opt = options(sys.argv[1:])
    open(opt.o, "w").write(generate(opt))
    if opt.stamps: open(opt.o + ".names", "w").write(repr(STAMPS))
    import subprocess
    here = os.path.dirname(os.path.abspath(__file__))
    r = subprocess.run([sys.executable, here + "/hazards.py", opt.o], capture_output=True, text=True).stdout
    if " 0 finding" not in r: print(r)
    r = subprocess.run([sys.executable, here + "/../cdna_unwritten_srd_check.py", opt.o], capture_output=True, text=True)
    if r.returncode: print(r.stdout, r.stderr)
```

```python
import sys, argparse, os

NAME = "gather_scatter__tensor_product_equiv_tfn__graph"
KERN = NAME + "_kernel"
N, E, C = 10000, 320000, 128
NP, EP = 250, 1280
WS_KEY = 0
WS_REC = 0x280000
WS_WMIX = 0x771000
WS_TAB = 0x780000
WS_EPOCH = WS_TAB + 256 * 4096
WS_END = WS_EPOCH + 128
WS_STAMP = 0x900000
CAP = 1472

class Asm:
    def __init__(self): self.l = []
    def __call__(self, s):
        for line in s.strip("\n").split("\n"):
            line = line.strip()
            if not line: continue
            self.l.append(line if line.endswith(":") else "    " + line)
    def text(self): return "\n".join(self.l) + "\n"

def vr(a, n=1): return f"v{a}" if n == 1 else f"v[{a}:{a+n-1}]"
def sr(a, n=1): return f"s{a}" if n == 1 else f"s[{a}:{a+n-1}]"

SCAN_STEPS = ["row_shr:1 row_mask:0xf bank_mask:0xf bound_ctrl:0", "row_shr:2 row_mask:0xf bank_mask:0xf bound_ctrl:0",
              "row_shr:4 row_mask:0xf bank_mask:0xf bound_ctrl:0", "row_shr:8 row_mask:0xf bank_mask:0xf bound_ctrl:0",
              "row_bcast:15 row_mask:0xa bank_mask:0xf", "row_bcast:31 row_mask:0xc bank_mask:0xf"]
def scan64(a, *regs):
    for c in SCAN_STEPS:
        a("s_nop 1" if len(regs) == 1 else "s_nop 0")
        for v in regs: a(f"v_add_u32_dpp v{v}, v{v}, v{v} {c}")

L_HIST = 0; L_DEG = 1024; L_WT = 1280; L_CNT = L_WT + 16
L_INV = 1344; L_MAP = 1536; L_BASE = 1792
L_SENT = L_BASE + 1024
L_UREC = L_SENT + CAP * 4
L_CG = L_UREC + CAP * 16
L_LUT = 32768
L1_HIST = L_SENT; L1_LNS = L1_HIST + 1024; L1_BASE = L1_LNS + 2048; L1_SREC = L_UREC
L1_SKEY = L_LUT + 53 * 1024
assert L_CG + 128 <= L_LUT and L1_SREC + (EP + 64) * 16 <= L_CG and L1_BASE <= 8192
NLN = 10
L_AGG = L_LUT; AGG_RS = 288
LDS_BYTES = L_LUT + 131072

V_L16 = 1
V_LEN, V_PRE, V_GID = 2, 3, 4
V_AENT, V_POS = 5, 6
V_ONE = 15
V_DEAL = 174
V_DUMMY = 167
V_TOUCH = 166
T0 = 8
ACC = 16; XR = 64; TP = 96; UU = 112; RR = 128; TT = 136; WPK = 140; WTMP = 148
KEY = 164; ENT = 165; RECN = 168; EF = 172; CONST = 176; WMIX = 188
NVGPR = 220
PE, PO, CGB = CONST, CONST + 2, CONST + 4
LJ = 128
S_NODE = 4
S_X, S_WS, S_OUT = 12, 16, 20
S_BETA, S_WAVE, S_N, S_W0, S_NWIN, S_START, S_END, S_REM, S_REMB, S_OFF, S_MASK = range(24, 35)
S_SPIN = 35
S_M = 36
S_T = 42
S_K = 48
S_IN = 40
S_JOB, S_JCNT = 62, 63
S_NLO, S_NHI = 64, 65
S_WM = 10
S_L2E = 10
S_ST = 66
NSGPR = 102

STAMPS = []
def stamp(a, opt, name):
    if opt.probe == name: a("s_memrealtime s[98:99]\ns_waitcnt lgkmcnt(0)\ns_mov_b32 s93, s98")
    if not opt.stamps: return
    if opt.only and name not in opt.only.split(",") + ["start", "sorted", "main done", "stores done 2"]: return
    if name not in STAMPS: STAMPS.append(name)
    a(f"s_memrealtime s[98:99]\ns_waitcnt lgkmcnt(0)\ns_mov_b32 s{S_ST + STAMPS.index(name)}, s98")

S_RET = 6
def lut_sub(a):
    J, Ex, R, P = LJ, LJ + 8, LJ + 16, LJ + 24
    a(f"""LUT_SUB:
    s_lshl_b32 s3, s{S_JOB}, 25
    s_add_u32 s3, s3, 0x8000
    v_lshl_add_u32 v{J}, v{V_L16}, 15, s3""")
    for k in range(1, 8): a(f"v_add_u32 v{J+k}, 0x10000, v{J+k-1}")
    for k in range(0, 8, 2): a(f"v_pk_mul_f32 {vr(Ex+k,2)}, {vr(J+k,2)}, {sr(S_L2E,2)}")
    for k in range(8): a(f"v_exp_f32 v{Ex+k}, v{Ex+k}")
    a(f"s_lshl_b32 s3, s{S_JOB}, 10")
    for k in range(0, 8, 2): a(f"v_pk_add_f32 {vr(R+k,2)}, {vr(Ex+k,2)}, 1.0 op_sel_hi:[1,0]")
    for k in range(8): a(f"v_rcp_f32 v{R+k}, v{R+k}")
    a(f"v_add_u32 v{P+8}, s3, v{V_L16}")
    for k in range(0, 8, 2): a(f"v_pk_mul_f32 {vr(J+k,2)}, {vr(J+k,2)}, {vr(R+k,2)}")
    a(f"v_add_u32 v{P+9}, 0x10000, v{P+8}")
    for k in range(0, 8, 2): a(f"v_pk_mul_f32 {vr(Ex+k,2)}, {vr(J+k,2)}, {vr(Ex+k,2)} neg_lo:[1,0] neg_hi:[1,0]")
    for k in range(4): a(f"v_cvt_pk_bf16_f32 v{P+k}, v{J+2*k}, v{J+2*k+1}")
    for k in range(4): a(f"v_cvt_pk_bf16_f32 v{P+4+k}, v{Ex+2*k}, v{Ex+2*k+1}")
    a(f"""ds_write_b128 v{P+8}, {vr(P,4)} offset:{L_LUT}
    ds_write_b128 v{P+9}, {vr(P+4,4)} offset:{L_LUT}
    s_add_u32 s{S_JOB}, s{S_JOB}, 1
    s_sub_u32 s{S_JCNT}, s{S_JCNT}, 1
    s_cmp_lg_u32 s{S_JCNT}, 0
    s_cbranch_scc1 LUT_SUB
    s_setpc_b64 {sr(S_RET,2)}""")
def lut_jobs(a, count): a(f"s_mov_b32 s{S_JCNT}, {count}\ns_call_b64 {sr(S_RET,2)}, LUT_SUB")

def lut_plain(a, tag, region, last=None, cont=False):
    P = LJ
    for name, first, end, bias in (("L", 1, 24, 0x20000 - 0x800080), ("H", 34, 62, 0x20000)):
        if name != region: continue
        last = last or end
        if cont: a(f"s_cmp_gt_u32 s{S_JOB}, {last}\ns_cbranch_scc1 LUTP_END_{tag}")
        else: a(f"s_add_u32 s{S_JOB}, s{S_WAVE}, {first}")
        if name == "H" and not cont:
            for k in range(4): a(f"v_mov_b32 v{P+4+k}, 0x80008000")
        a(f"LUTP_{tag}{name}:")
        a(f"""s_mul_i32 s3, s{S_JOB}, {512 * 0x10001}
        s_add_u32 s3, s3, {bias & 0xffffffff}
        v_add_u32 v{P}, s3, v{P+10}
        s_lshl_b32 s3, s{S_JOB}, 10
        v_add_u32 v{P+8}, s3, v{V_L16}""")
        for k in range(1, 4): a(f"v_add_u32 v{P+k}, {k * 0x20002}, v{P}")
        a(f"v_add_u32 v{P+9}, 0x10000, v{P+8}")
        if name == "L":
            for k in range(4): a(f"v_or_b32 v{P+4+k}, 0x80008000, v{P+k}")
        a(f"""ds_write_b128 v{P+8}, {vr(P,4)} offset:{L_LUT}
        ds_write_b128 v{P+9}, {vr(P+4,4)} offset:{L_LUT}
        s_add_u32 s{S_JOB}, s{S_JOB}, {5 if name == "L" else 4}
        s_cmp_le_u32 s{S_JOB}, {last}
        s_cbranch_scc1 LUTP_{tag}{name}
        LUTP_END_{tag}:""")

def tab_issue(a): a(f"buffer_load_dwordx4 {vr(RECN,4)}, v{V_POS}, {sr(S_WS,4)}, 0 offen sc1")
def tab_check(a, younger):
    if younger: a(f"s_waitcnt vmcnt({younger})\ns_branch CHECK_TAB")
    a(f"""POLL_TAB:
    s_waitcnt vmcnt(0)
    CHECK_TAB:
    v_lshrrev_b32 v{T0+3}, 22, v{RECN}
    v_cmp_ne_u32 vcc, s{S_NLO}, v{RECN+1}
    v_cmp_ne_u32 {sr(S_T,2)}, s{S_NHI}, v{T0+3}
    s_or_b64 vcc, vcc, {sr(S_T,2)}
    s_and_b64 exec, exec, vcc
    s_cbranch_execz POLLED_TAB
    s_sub_u32 s{S_SPIN}, s{S_SPIN}, 1
    s_cbranch_scc1 END""")
    tab_issue(a)
    a("s_branch POLL_TAB\nPOLLED_TAB:\ns_mov_b64 exec, -1")

def load_epoch(a):
    a(f"""s_add_u32 s4, s{S_WS}, {WS_EPOCH}
    s_addc_u32 s5, s{S_WS+1}, 0
    s_load_dwordx2 {sr(S_NLO,2)}, s[4:5], 0""")
def make_tag(a):
    a(f"""s_add_u32 s{S_NLO}, s{S_NLO}, 1
    s_and_b32 s{S_NHI}, s{S_NHI}, 0x3ff""")

def scan256(a, H_, O_):
    a(f"""v_add_u32 v{T0+2}, v{H_}, v{H_+1}
    v_add3_u32 v{T0+2}, v{T0+2}, v{H_+2}, v{H_+3}
    v_mov_b32 v{T0+3}, v{T0+2}""")
    scan64(a, T0 + 3)
    a(f"""v_sub_u32 v{O_}, v{T0+3}, v{T0+2}
    v_add_u32 v{O_+1}, v{O_}, v{H_}
    v_add_u32 v{O_+2}, v{O_+1}, v{H_+1}
    v_add_u32 v{O_+3}, v{O_+2}, v{H_+2}""")

SRC, DST, YY, EFP, WRAD, CG, WMX = S_IN + 2, S_IN + 4, S_IN + 6, S_IN + 8, S_IN + 10, S_IN + 12, S_IN + 14
D_, S_, Y_, F_, B_, R_, H_, O_, TB = 64, 68, 72, 80, 88, 92, 96, 100, 108
CT = WMIX
def const_sub(a):
    a(f"""CONST_SUB:
    ds_write_b32 v{CT+5}, v{CT+4} offset:{L_CG}
    v_lshrrev_b32 v{CT+5}, 3, v{V_L16}
    v_and_b32 v{CT+5}, 24, v{CT+5}
    s_mov_b32 s4, 0x05040100
    s_mov_b32 s5, 0x07060302""")
    for i in range(4): a(f"ds_read_b64_tr_b16 {vr(CGB+2*i,2)}, v{CT+5} offset:{L_CG + 32*i}")
    for u in range(2):
        a(f"v_perm_b32 v{PE+u}, v{CT+1+2*u}, v{CT+2*u}, s4\nv_perm_b32 v{PO+u}, v{CT+1+2*u}, v{CT+2*u}, s5")
    a(f"s_setpc_b64 {sr(S_RET,2)}")
def const_finish(a): a(f"s_call_b64 {sr(S_RET,2)}, CONST_SUB")

def load_yf(a):
    a(f"""global_load_dwordx4 {vr(Y_,4)}, v{T0+1}, {sr(YY,2)}
    global_load_dwordx4 {vr(Y_+4,4)}, v{T0+1}, {sr(YY,2)} offset:16
    global_load_dwordx4 {vr(F_,4)}, v{T0+1}, {sr(EFP,2)}
    global_load_dwordx4 {vr(F_+4,4)}, v{T0+1}, {sr(EFP,2)} offset:16""")

def phase1(a, opt):
    st = lambda n: stamp(a, opt, n)
    WS = sr(S_WS, 2); FL = opt.k1st
    a(f"""s_cmp_ge_u32 s{S_WAVE}, 5
    s_cbranch_scc1 HELP""")
    lut_plain(a, "W0", "L", last=opt.lsplit)
    a(f"""s_cmp_ge_u32 s2, {NP}
    s_cbranch_scc1 AUX""")
    load_yf(a)
    st('jobs A')
    a("s_waitcnt vmcnt(11)")
    st('dst arrived')
    for k in range(4):
        a(f"""v_and_b32 v{B_+k}, 0xff, v{D_+k}
              v_lshlrev_b32 v{B_+k}, 2, v{B_+k}
              ds_add_rtn_u32 v{R_+k}, v{B_+k}, v{V_ONE} offset:{L1_HIST}""")
    a("s_waitcnt vmcnt(10)")
    for k in range(4):
        a(f"""v_lshrrev_b32 v{D_+k}, 8, v{D_+k}
              v_lshl_or_b32 v{TB+2*k}, v{S_+k}, 10, v{D_+k}""")
    a(f"""s_mov_b32 s9, {L1_SKEY}
    s_waitcnt lgkmcnt(0)
    s_barrier
    ds_read_b128 {vr(H_,4)}, v{V_L16} offset:{L1_HIST}""")
    make_tag(a)
    for k in range(4): a(f"v_mov_b32 v{TB+2*k+1}, s{S_NLO}")
    a("v_mov_b32 v119, 0")
    for k in range(4):
        a(f"""v_cmp_gt_u32 vcc, {NLN}, v{R_+k}
              v_mul_u32_u24 v116, 6, v{R_+k}
              v_lshlrev_b32 v117, 1, v{B_+k}
              v_cndmask_b32 v118, 0, v{D_+k}, vcc
              v_lshlrev_b64 {vr(120+2*(k%2),2)}, v116, v[118:119]
              ds_or_b64 v117, {vr(120+2*(k%2),2)} offset:{L1_LNS}""")
    a("s_waitcnt lgkmcnt(4)")
    scan256(a, H_, O_)
    a(f"ds_write_b128 v{V_L16}, {vr(O_,4)} offset:{L1_BASE}")
    for k in range(4): a(f"ds_read_b32 v{H_+k}, v{B_+k} offset:{L1_BASE}")
    for k in range(4):
        a(f"""s_waitcnt lgkmcnt(3)
              v_add_u32 v{R_+k}, v{R_+k}, v{H_+k}
              v_lshl_add_u32 v{B_+k}, v{R_+k}, 3, s9
              ds_write_b64 v{B_+k}, {vr(TB+2*k,2)}""")
    for k in range(4):
        a(f"v_lshlrev_b32 v{R_+k}, 4, v{R_+k}\nv_add_u32 v{R_+k}, {L1_SREC}, v{R_+k}")
    a("s_waitcnt lgkmcnt(0)\ns_barrier")
    st('keys binned')
    a("s_waitcnt vmcnt(0)")
    x_touch(a, opt, 9, False)
    for k in range(4):
        a(f"ds_write2_b64 v{R_+k}, {vr(Y_+2*k,2)}, {vr(F_+2*k,2)} offset0:0 offset1:1")
    st('recs binned')
    a("BINNED:\ns_setprio 0")
    a(f"s_waitcnt lgkmcnt(0)\ns_barrier\nv_mov_b32 v{V_LEN}, 0")
    const_finish(a)
    lut_plain(a, "W", "L", cont=True)
    a(f"s_cmp_eq_u32 s{S_WAVE}, 4\ns_cbranch_scc1 WAVE4")
    lut_plain(a, "U", "H", last=opt.late)
    tab_issue(a)
    x_touch(a, opt, 6, False)
    st('tab issued')
    if opt.late < 62: lut_plain(a, "V", "H", cont=True)
    tab_check(a, ("," + opt.xt).count(",6:"))
    st('tab arrived')
    a("s_branch TAB_DONE")
    lut_sub(a)
    const_sub(a)
    a("HELP:")
    a(f"""s_sub_u32 s8, s{S_WAVE}, 5
    s_mul_i32 s4, s8, 3072
    s_cmp_eq_u32 s8, 1
    s_cselect_b32 s4, 4096, s4
    s_mul_i32 s3, s2, {EP * 8}
    s_add_u32 s3, s3, s4
    v_add_u32 v{T0}, s3, v{V_L16}
    s_add_u32 s4, s4, {L1_SKEY}
    v_add_u32 v{T0+1}, s4, v{V_L16}
    s_mul_i32 s4, s8, 7168
    s_mul_i32 s3, s2, {EP * 16}
    s_add_u32 s3, s3, s4
    s_add_u32 s3, s3, {WS_REC}
    v_add_u32 v{T0+4}, s3, v{V_L16}
    v_add_u32 v{T0+5}, s4, v{V_L16}
    s_lshl_b32 s3, s2, 12
    s_add_u32 s3, s3, {WS_TAB}
    v_add_u32 v117, s3, v{V_L16}
    s_waitcnt lgkmcnt(0)""")
    make_tag(a)
    st('help jobs')
    a(f"""s_barrier
    s_cmp_eq_u32 s{S_WAVE}, 6
    s_cbranch_scc1 ROW
    s_cmp_eq_u32 s{S_WAVE}, 7
    s_cselect_b32 s{S_JOB}, 63, 0""")
    lut_jobs(a, 1)
    a("s_waitcnt vmcnt(0)")
    const_finish(a)
    a(f"""v_mov_b32 v{T0+2}, {0x7f80 * 2}
    v_mov_b32 v{T0+3}, 0x7f80
    s_cmp_lg_u32 s{S_WAVE}, 7
    s_cbranch_scc1 NO_ROW
    ds_write_b16 v{T0+2}, v{T0+3} offset:{L_LUT}
    s_branch NO_ROW
ROW:
    v_lshrrev_b32 v116, 2, v{V_L16}""")
    QT, HH, SS = 84, 100, 104
    for m in range(4): a(f"ds_read_b32 v{HH+m}, v116 offset:{L1_HIST + 256*m}")
    a(f"""s_lshl_b32 s3, s2, 12
    s_add_u32 s3, s3, {WS_TAB}
    v_add_u32 v117, s3, v{V_L16}
    v_lshrrev_b32 v116, 1, v{V_L16}
    s_lshl_b32 s3, s{S_NHI}, 22
    s_waitcnt lgkmcnt(0)""")
    for m in range(4): a(f"v_mov_b32 v{SS+m}, v{HH+m}")
    scan64(a, SS, SS + 1, SS + 2, SS + 3)
    a(f"""v_readlane_b32 s4, v{SS}, 63
    v_readlane_b32 s5, v{SS+1}, 63
    v_readlane_b32 s9, v{SS+2}, 63""")
    for m in range(4): a(f"v_sub_u32 v{SS+m}, v{SS+m}, v{HH+m}")
    a(f"""s_add_u32 s5, s5, s4
    s_add_u32 s9, s9, s5
    v_add_u32 v{SS+1}, s4, v{SS+1}
    v_add_u32 v{SS+2}, s5, v{SS+2}
    v_add_u32 v{SS+3}, s9, v{SS+3}""")
    for m in range(4):
        a(f"""v_lshl_or_b32 v{QT+4*m}, v{HH+m}, 11, v{SS+m}
              v_or_b32 v{QT+4*m}, s3, v{QT+4*m}
              v_mov_b32 v{QT+4*m+1}, s{S_NLO}""")
    a("s_waitcnt vmcnt(0)")
    const_finish(a)
    a(f"""NO_ROW:
    s_barrier
    s_cmp_lg_u32 s{S_WAVE}, 6
    s_cbranch_scc1 ROW_DONE""")
    for m in range(4): a(f"ds_read_b64 {vr(QT+4*m+2,2)}, v116 offset:{L1_LNS + 512*m}")
    for m in range(4): a(f"s_waitcnt lgkmcnt({3-m})\nglobal_store_dwordx4 v117, {vr(QT+4*m,4)}, {WS} offset:{1024*m} sc0 sc1")
    st('table published')
    a("ROW_DONE:")
    for k in range(4): a(f"ds_read_b128 {vr(64+4*k,4)}, v{T0+1} offset:{1024*k}")
    a(f"""v_mov_b32 v{V_LEN}, 0
    s_add_u32 s{S_JOB}, s8, s8                       ; jobs 27, 28 / 29, 30, 31 / 32, 33
    s_add_u32 s{S_JOB}, s{S_JOB}, 27
    s_cmp_eq_u32 s8, 2
    s_addc_u32 s{S_JOB}, s{S_JOB}, 0
    s_cmp_eq_u32 s8, 1
    s_cselect_b32 s{S_JCNT}, 3, 2
    s_waitcnt lgkmcnt(0)
    s_barrier
    s_cmp_ge_u32 s2, {NP}
    s_cbranch_scc1 RECS_STORED""")
    for k in range(7): a(f"ds_read_b128 {vr(84+4*k,4)}, v{T0+5} offset:{L1_SREC + 1024*k}")
    for k in range(7):
        if k == 4: a(f"v_add_u32 v{T0+4}, 4096, v{T0+4}")
        if k == 6: a(f"s_cmp_eq_u32 s8, 2\ns_cbranch_scc1 RECS_STORED")
        a(f"s_waitcnt lgkmcnt({6-k})\nglobal_store_dwordx4 v{T0+4}, {vr(84+4*k,4)}, {WS} offset:{(1024*k) % 4096} {FL}")
    a(f"""RECS_STORED:
    s_call_b64 {sr(S_RET,2)}, LUT_SUB
    s_cmp_ge_u32 s2, {NP}
    s_cbranch_scc1 TAB_DONE
    v_mov_b32 v{T0+2}, 0
    s_waitcnt vmcnt(0)
    s_mov_b64 exec, 1
    ds_add_u32 v{T0+2}, v{V_ONE} offset:{L_CNT}
    s_mov_b64 exec, -1
WAIT_ACK:
    ds_read_b32 v{T0+3}, v{T0+2} offset:{L_CNT}
    s_waitcnt lgkmcnt(0)
    v_readfirstlane_b32 s3, v{T0+3}
    s_cmp_eq_u32 s3, 3
    s_cbranch_scc0 WAIT_ACK""")
    st('recs acked')
    for k in range(4):
        if k == 2: a(f"s_cmp_eq_u32 s8, 1\ns_cbranch_scc1 TAB_DONE")
        a(f"global_store_dwordx4 v{T0}, {vr(64+4*k,4)}, {WS} offset:{1024*k} {FL}")
    a("s_branch TAB_DONE")
    a(f"""AUX_LOAD:
    s_sub_u32 s4, s2, {NP}
    s_cmp_ge_u32 s4, 4
    s_cbranch_scc1 NO_EDGES
    s_cmp_ge_u32 s{S_WAVE}, 4
    s_cbranch_scc1 NO_EDGES
    s_lshl_b32 s5, s{S_WAVE}, 13
    s_lshl_b32 s8, s4, 6
    s_add_u32 s5, s5, s8
    v_lshrrev_b32 v80, 8, v{V_L16}
    v_lshlrev_b32 v80, 11, v80
    v_bfe_u32 v81, v{V_L16}, 4, 4
    v_lshl_add_u32 v80, v81, 2, v80
    v_add_u32 v80, s5, v80""")
    for t in range(8): a(f"global_load_dword v{64+t}, v80, {sr(WMX,2)} offset:{t*256}")
    a(f"""s_branch NO_EDGES
AUX:
    s_cmp_ge_u32 s2, {NP + 4}
    s_cbranch_scc1 AUX_DONE
    s_cmp_ge_u32 s{S_WAVE}, 4
    s_cbranch_scc1 AUX_DONE
    s_sub_u32 s4, s2, {NP}
    s_lshl_b32 s5, s4, 13
    s_lshl_b32 s8, s{S_WAVE}, 10
    s_add_u32 s5, s5, s8
    s_add_u32 s5, s5, {WS_WMIX}
    v_add_u32 v81, s5, v{V_L16}
    s_mov_b32 s4, 0x05040100
    s_mov_b32 s5, 0x07060302
    s_waitcnt vmcnt(6)""")
    for u in range(4):
        a(f"v_perm_b32 v{72+u}, v{65+2*u}, v{64+2*u}, s4\nv_perm_b32 v{76+u}, v{65+2*u}, v{64+2*u}, s5")
    a(f"""global_store_dwordx4 v81, v[72:75], {WS} {FL}
    v_add_u32 v81, 4096, v81
    global_store_dwordx4 v81, v[76:79], {WS} {FL}
AUX_DONE:
    s_waitcnt lgkmcnt(0)""")
    make_tag(a)
    a(f"""s_barrier
    s_waitcnt vmcnt(0)
    s_barrier
    s_branch BINNED
WAVE4:
    s_mov_b32 s{S_JOB}, 25""")
    lut_jobs(a, 2)
    a("TAB_DONE:")

def mfma4(d, a_, b, c, blk=None):
    cc = "0" if c is None else vr(c, 4)
    return f"v_mfma_f32_4x4x4_16b_bf16 {vr(d,4)}, {vr(a_,2)}, {vr(b,2)}, {cc}" + ("" if blk is None else f" cbsz:4 abid:{blk}")
def p_mfma(g, odd):
    return mfma4(UU + 8 * (g % 2) + 4 * odd, EF, PO if odd else PE, None, g % 16)
def t_mfma(e, odd):
    return mfma4(TP + 8 * (e % 2) + 4 * odd, WPK + 2 * (e % 4), XR + 4 * (e % 8) + 2 * odd, None, (e % 64) // 4)
def act_regs(eb, odd):
    return UU + 8 * ((eb // 4) % 2) + 4 * odd + eb % 4, RR + 4 * ((eb // 2) % 2) + 2 * odd
def act_addr(t, u):
    return f"v_lshlrev_b32_sdwa v{t}, v{V_ONE}, v{u} dst_sel:DWORD dst_unused:UNUSED_PAD src0_sel:DWORD src1_sel:WORD_1"
def act_read(r, t): return f"ds_read_u16_d16_hi v{r}, v{t} offset:{L_LUT}"
def fma4(a, q):
    h = q % 2
    a(f"s_set_gpr_idx_on s{S_K + q % 16}, 0xc")
    for odd in range(2):
        r = RR + 4 * ((q // 2) % 2) + 2 * odd
        for o in (0, 2):
            acc = ACC + 4 * odd + o; tp = TP + 8 * (q % 2) + 4 * odd + o
            a(f"v_pk_fma_f32 {vr(acc,2)}, {vr(r,2)}, {vr(tp,2)}, {vr(acc,2)} op_sel:[{h},0,0] op_sel_hi:[{h},1,1]")
    a("s_set_gpr_idx_off")
def meta_read_entry(a): a(f"ds_read_b32 v{ENT}, v{V_AENT}")
def meta_fix_entry(a, rec=True):
    a(f"""v_cmp_gt_u32 vcc, s{S_END}, v{V_POS}
          v_add_u32 v{V_POS}, 64, v{V_POS}
          v_add_u32 v{V_AENT}, 256, v{V_AENT}
          v_cndmask_b32 v{ENT}, 40, v{ENT}, vcc
          v_lshrrev_b32 v{T0}, 21, v{ENT}
          v_lshlrev_b32 v{T0}, 4, v{T0}
          v_lshlrev_b32 v{T0+1}, 3, v{ENT}""")
    if rec: meta_read_rec(a)
    a(f"""v_and_b32 v{T0+1}, 0xfffc00, v{T0+1}
          v_and_or_b32 v{ENT}, v{ENT}, 56, v{T0+1}""")
def meta_read_rec(a): a(f"ds_read_b128 {vr(RECN,4)}, v{T0} offset:{L_UREC}")
def w_mfma(i): return mfma4(WTMP + 4 * i, RECN, CGB + 2 * i, None)
def w_cvt(a, m):
    a(f"""v_cvt_pk_bf16_f32 v{WPK+2*m}, v{WTMP+m}, v{WTMP+4+m}
          v_cvt_pk_bf16_f32 v{WPK+2*m+1}, v{WTMP+8+m}, v{WTMP+12+m}""")

def step(a, opt, q, drain=None):
    D = opt.D; loads = drain is None
    eb = q + 2 - q % 2; odd = q % 2
    u, r = act_regs(eb, odd); t = TT + 2 * odd
    g, ur = (q + 6) // 4, (q + 6) % 4
    if ur % 2 == 0: a(p_mfma(g, ur // 2))
    elif 40 <= q < 48: a(w_mfma((q - 40) // 2))
    a(act_addr(t, u))
    if loads: a(f"s_waitcnt vmcnt({D - 2})")
    elif D - 2 - drain >= 0: a(f"s_waitcnt vmcnt({8 + D - 2 - drain})")
    a(t_mfma(q + 1, 0))
    if loads: a(f"v_readlane_b32 s{S_K + (q + D) % 16}, v{KEY if q + D < 64 else ENT}, {(q + D) % 64}")
    else:     a("s_nop 0")
    a(t_mfma(q + 1, 1))
    a(act_addr(t + 1, u + 1))
    a(act_read(r, t)); a(act_read(r + 1, t + 1))
    if q >= 60: w_cvt(a, q - 60)
    if loads:
        a(f"s_and_b32 s{S_OFF}, s{S_K + (q + D) % 16}, s{S_MASK}")
        a(f"buffer_load_dwordx4 {vr(XR + 4 * ((q + D) % 8), 4)}, v{V_L16}, {sr(S_X,4)}, s{S_OFF} offen")
    if q % 2 == 0: a("s_waitcnt lgkmcnt(2)")
    fma4(a, q)
    if loads and q == 8: meta_read_entry(a)
    if loads and q == 12: meta_fix_entry(a)
    if q == 57: a(f"v_mov_b32 v{EF}, v{RECN+2}\nv_mov_b32 v{EF+1}, v{RECN+3}\ns_nop 1")
    if loads and q == 63: a(f"v_mov_b32 v{KEY}, v{ENT}")

def body(a, opt):
    G = opt.gran
    for q in range(64):
        if q % G == 0: a(f"A_{q}:\ns_sub_u32 s{S_REM}, s{S_REM}, {G}\ns_cbranch_scc1 B_{q}")
        step(a, opt, q)
    if opt.stamps and not opt.only:
        STAMPS.extend(("batch 1", "batch 2")); k = S_ST + len(STAMPS) - 2
        a(f"""s_memrealtime s[98:99]
        s_waitcnt lgkmcnt(0)
        s_cmp_eq_u32 s{k}, 0
        s_cselect_b32 s99, 0, s98
        s_cselect_b32 s{k}, s98, s{k}
        s_cmp_eq_u32 s{k+1}, 0
        s_cselect_b32 s{k+1}, s99, s{k+1}""")
    if opt.probe == "batch 1":
        a("s_memrealtime s[98:99]\ns_waitcnt lgkmcnt(0)\ns_cmp_eq_u32 s93, 0\ns_cselect_b32 s93, s98, s93")
    a("s_branch A_0")
    for q in range(0, 64, G):
        a(f"B_{q}:")
        for k in range(8):
            a(f"buffer_load_dwordx4 {vr(WMIX+4*k,4)}, v{V_L16}, {sr(S_WS,4)}, s{S_WM + k // 4} offen offset:{(k%4)*1024} sc1")
        for i in range(opt.D):
            a(f"s_sub_u32 s{S_REMB}, s{S_REMB}, 1\ns_cbranch_scc1 MAIN_DONE")
            step(a, opt, (q + i) % 64, i)
        a("s_branch MAIN_DONE")

def x_touch(a, opt, where, guard=True):
    for spec in filter(None, opt.xt.split(",")):
        w, lo, hi = map(int, spec.split(":"))
        if w != where: continue
        if guard: a(f"s_cmp_lg_u32 s{S_W0}, 0\ns_cbranch_scc1 NO_X_TOUCH_{w}")
        four = w in (6, 9)
        if w == 9: a(f"s_cmp_eq_u32 s{S_WAVE}, 4\ns_cbranch_scc1 NO_X_TOUCH_{w}")
        a(f"""s_lshl_b32 s{S_OFF}, s2, {2 if four else 3}
        s_add_u32 s{S_OFF}, s{S_OFF}, s{S_WAVE}
        s_lshl_b32 s{S_OFF}, s{S_OFF}, 7
        s_add_u32 s{S_OFF}, s{S_OFF}, {lo << 18}
        v_min_u32 v{V_TOUCH}, {(((hi - lo) << four) - 1) * 16}, v{V_L16}
        v_lshl_add_u32 v{V_TOUCH}, v{V_TOUCH}, {14 - four}, s{S_OFF}
        buffer_load_dword v{V_DUMMY}, v{V_TOUCH}, {sr(S_X,4)}, 0 offen {opt.xflag}""")
        a(f"NO_X_TOUCH_{w}:")

DEAL = ([4, 2, 4, 7, 6, 3, 1, 5, 0, 4, 2, 6, 1, 7, 3, 5, 0, 4, 7, 3, 0, 1, 5, 6, 2, 5, 0, 1, 6, 7, 3, 2, 0, 5, 3, 1, 6, 7, 2, 4],
        [0, 2, 7, 1, 4, 6, 5, 3, 6, 3, 1, 7, 4, 0, 2, 5, 4, 3, 5, 6, 7, 1, 0, 2, 7, 5, 2, 4, 3, 6, 0, 1, 5, 1, 3, 6, 4, 2, 7, 0])
def deal_bytes():
    out = []
    for t in DEAL:
        assert sorted(t) == sorted(list(range(8)) * 5)
        out += [4 * (5 * w + t[:r].count(w)) | (8 * w + t[:r].count(w)) << 8 for r, w in enumerate(t)] + [0] * 24
    return out

def zero_hist(a):
    a(f"""v_lshlrev_b32 v{T0+3}, 2, v0
    v_mov_b32 v{T0+4}, 0
    v_cmp_gt_u32 vcc, 0x100, v0
    s_and_saveexec_b64 {sr(S_T,2)}, vcc
    ds_write_b32 v{T0+3}, v{T0+4} offset:{L_HIST}
    s_mov_b64 exec, {sr(S_T,2)}""")

def kernel(opt):
    a = Asm(); D = opt.D
    st = lambda n: stamp(a, opt, n)
    a(f"""{KERN}:
    s_cmp_ge_u32 s2, 256
    s_cbranch_scc1 END""")
    if opt.probe: a("s_mov_b32 s93, 0\ns_memrealtime s[98:99]\ns_waitcnt lgkmcnt(0)\ns_mov_b32 s92, s98")
    if opt.stamps:
        for k in range(32): a(f"s_mov_b32 s{S_ST+k}, 0")
    st('start')
    a(f"""s_load_dwordx16 {sr(S_IN,16)}, s[0:1], 0
    s_load_dwordx2 {sr(S_WS,2)}, s[0:1], 80
    s_load_dwordx2 {sr(S_X,2)}, s[0:1], 0
    s_load_dwordx2 {sr(S_OUT,2)}, s[0:1], 64
    ; wave 7 of every workgroup takes 8 lines; the 32 workgroups with equal id % 8 cover 32 KiB
    s_getpc_b64 s[6:7]
CODE_HERE:
    v_lshrrev_b32 v{T0}, 6, v0
    s_lshr_b32 s5, s2, 3
    s_lshl_b32 s4, s5, 10
    v_readfirstlane_b32 s{S_WAVE}, v{T0}
    v_and_b32 v{T0+2}, 7, v0
    v_lshl_add_u32 v{T0+2}, v{T0+2}, 7, s4
    v_min_u32 v{T0+2}, END-CODE_HERE, v{T0+2}
    s_cmp_lg_u32 s{S_WAVE}, 7
    s_cbranch_scc1 NO_CODE_TOUCH
    global_load_dword v{V_DUMMY}, v{T0+2}, s[6:7]
NO_CODE_TOUCH:
    s_mul_i32 s3, s2, {EP * 4}
    v_lshl_add_u32 v{T0}, v0, 4, s3
    v_and_b32 v{T0+2}, 63, v0
    v_lshlrev_b32 v{V_L16}, 4, v{T0+2}
    v_lshlrev_b32 v{CT+5}, 2, v{T0+2}
    v_lshlrev_b32 v{T0+3}, 4, v0
    v_mov_b32 v{T0+4}, 0
    v_mov_b32 v{T0+5}, 0
    v_pk_mov_b32 {vr(ACC,2)}, {vr(T0+4,2)}, {vr(T0+4,2)}
    v_pk_mov_b32 {vr(ACC+2,2)}, {vr(T0+4,2)}, {vr(T0+4,2)}
    ds_write_b128 v{T0+3}, {vr(ACC,4)}
    s_cmp_ge_u32 s{S_WAVE}, 5
    s_waitcnt lgkmcnt(0)
    s_cbranch_scc1 NO_EDGES
    s_cmp_ge_u32 s2, {NP}
    s_cbranch_scc1 AUX_LOAD
    s_setprio 1
    global_load_dwordx4 {vr(D_,4)}, v{T0}, {sr(DST,2)}
    global_load_dwordx4 {vr(S_,4)}, v{T0}, {sr(SRC,2)}
NO_EDGES:""")
    load_epoch(a)
    st('kernargs')
    for k in range(4): a(f"global_load_dword v{CT+k}, v{CT+5}, {sr(WRAD,2)} offset:{k*256}")
    a(f"""v_and_b32 v{CT+5}, 0x7f, v{CT+5}
    global_load_dword v{CT+4}, v{CT+5}, {sr(CG,2)}
    s_and_b32 s3, s2, 0x87
    s_cmp_eq_u32 s3, 0
    s_cselect_b32 s3, 128, 0
    s_add_u32 s3, s3, DEAL_TABLE-CODE_HERE
    v_lshl_add_u32 v{V_DEAL}, v{T0+2}, 1, s3
    global_load_ushort v{V_DEAL}, v{V_DEAL}, s[6:7]
    s_mov_b32 s{S_X+2}, {N * 1024}
    s_mov_b32 s{S_X+3}, 0x20000""")
    a(f"v_lshlrev_b32 v{T0+1}, 1, v{T0}")
    a(f"""
    s_and_b32 s4, s2, 7
    s_lshl_b32 s4, s4, 5
    s_lshr_b32 s5, s2, 3
    s_or_b32 s{S_BETA}, s4, s5
    v_mov_b32 v{V_ONE}, 1
    s_mov_b32 s{S_WS+2}, {WS_END if not opt.stamps else WS_STAMP + 0x80000}
    s_mov_b32 s{S_WS+3}, 0x20000
    s_mov_b32 s{S_OUT+2}, {N * 1024}
    s_mov_b32 s{S_OUT+3}, 0x20000
    s_mov_b32 s{S_MASK}, 0xfffffc00
    s_mov_b32 s{S_W0}, 0
    s_mov_b32 s{S_L2E}, 0xbfb8aa3b
    s_mov_b32 s{S_L2E+1}, 0xbfb8aa3b
    s_mov_b32 s{S_SPIN}, {1 << 21}
    v_and_b32 v{V_GID}, 0xff, v0
    s_lshl_b32 s3, s{S_BETA}, 4
    s_add_u32 s3, s3, {WS_TAB}
    v_lshl_add_u32 v{V_POS}, v{V_GID}, 12, s3
    v_mul_u32_u24 v{V_GID}, {EP}, v{V_GID}
    v_mul_u32_u24 v{LJ+10}, 0x8000, v{V_L16}
    v_lshl_add_u32 v{LJ+10}, v{T0+2}, 3, v{LJ+10}    ; lane * 8 * 0x10001""")
    for k in range(4, 48, 2): a(f"v_pk_mov_b32 {vr(ACC+k,2)}, {vr(T0+4,2)}, {vr(T0+4,2)}")
    a("s_barrier")
    phase1(a, opt)
    a(f"""s_cmp_ge_u32 s{S_WAVE}, 4
    s_cbranch_scc1 TOTALS
    v_and_b32 v{T0+5}, 0x7ff, v{RECN}
    v_bfe_u32 v{V_LEN}, v{RECN}, 11, 11
    v_add_u32 v{V_GID}, v{V_GID}, v{T0+5}
    v_mov_b32 v{V_PRE}, v{V_LEN}""")
    scan64(a, V_PRE)
    a(f"""s_lshl_b32 s3, s{S_WAVE}, 2
    v_mov_b32 v{T0+2}, s3
    v_add_u32 v{T0+3}, 1, v{V_PRE}
    v_sub_u32 v{V_PRE}, v{V_PRE}, v{V_LEN}
    s_mov_b32 exec_lo, 0
    s_mov_b32 exec_hi, 0x80000000
    ds_write_b32 v{T0+2}, v{T0+3} offset:{L_WT}
    s_mov_b64 exec, -1
TOTALS:
    v_mov_b32 v{T0+2}, 0
TOTALS_SPIN:
    ds_read_b128 {vr(XR,4)}, v{T0+2} offset:{L_WT}
    s_waitcnt lgkmcnt(0)""")
    for k in range(4): a(f"v_readfirstlane_b32 s{4+k}, v{XR+k}")
    a(f"""s_min_u32 s3, s4, s5
    s_min_u32 s8, s6, s7
    s_min_u32 s3, s3, s8
    s_cmp_eq_u32 s3, 0
    s_cbranch_scc0 TOTALS_OK
    s_sub_u32 s{S_SPIN}, s{S_SPIN}, 1
    s_cbranch_scc0 TOTALS_SPIN
    s_endpgm
TOTALS_OK:
    s_add_u32 s5, s5, s4
    s_add_u32 s6, s6, s5
    s_add_u32 s7, s7, s6
    s_sub_u32 s{S_N}, s7, 4
    s_cmp_eq_u32 s{S_WAVE}, 1
    s_cselect_b32 s3, s4, 0
    s_cmp_eq_u32 s{S_WAVE}, 2
    s_cselect_b32 s3, s5, s3
    s_cmp_eq_u32 s{S_WAVE}, 3
    s_cselect_b32 s3, s6, s3
    s_sub_u32 s3, s3, s{S_WAVE}
    v_add_u32 v{V_PRE}, s3, v{V_PRE}
    s_cmp_lg_u32 s{S_WAVE}, 4
    s_cbranch_scc1 EPOCH_DONE
    s_cmp_lg_u32 s2, 0
    s_cbranch_scc1 EPOCH_DONE
    v_mov_b32 v{T0+4}, s{S_NLO}
    v_mov_b32 v{T0+2}, {WS_EPOCH}
    s_mov_b64 exec, 1
    global_store_dword v{T0+2}, v{T0+4}, {sr(S_WS,2)} sc0 sc1
    s_mov_b64 exec, -1
EPOCH_DONE:""")
    x_touch(a, opt, 3, False)
    st('prefix done')
    a(f"""ROUND:
    v_mov_b32 v{T0}, 0
    v_subrev_u32 v{T0+1}, s{S_W0}, v{V_PRE}
    v_mov_b32 v{T0+2}, v{V_GID}
    s_mov_b32 s3, {CAP}
    s_cmp_gt_u32 s{S_N}, {CAP}
    s_cbranch_scc1 EXPAND
    v_lshlrev_b32 v{T0+3}, 2, v{V_PRE}""")
    for j in range(16):
        a(f"v_cmpx_lt_u32 vcc, {j}, v{V_LEN}")
        if j % 2 == 0 and j >= 6: a("s_cbranch_execz EXPAND_DONE")
        a(f"ds_write_b32 v{T0+3}, v{T0+2} offset:{L_SENT + 4*j}\nv_add_u32 v{T0+2}, 1, v{T0+2}")
    a(f"""v_mov_b32 v{T0}, 16
    v_add_u32 v{T0+1}, 16, v{T0+1}
EXPAND:
    v_cmp_lt_u32 vcc, v{T0}, v{V_LEN}
    s_and_b64 exec, exec, vcc
    s_cbranch_execz EXPAND_DONE
    v_cmp_gt_u32 vcc, s3, v{T0+1}
    v_lshlrev_b32 v{T0+3}, 2, v{T0+1}
    s_and_saveexec_b64 {sr(S_T,2)}, vcc
    ds_write_b32 v{T0+3}, v{T0+2} offset:{L_SENT}
    s_mov_b64 exec, {sr(S_T,2)}
    v_add_u32 v{T0}, 1, v{T0}
    v_add_u32 v{T0+1}, 1, v{T0+1}
    v_add_u32 v{T0+2}, 1, v{T0+2}
    s_branch EXPAND
EXPAND_DONE:
    s_mov_b64 exec, -1
    s_sub_u32 s{S_NWIN}, s{S_N}, s{S_W0}
    s_min_u32 s{S_NWIN}, s{S_NWIN}, {CAP}
    v_lshlrev_b32 v{T0}, 2, v0""")
    for i in range(3):
        a(f"""v_add_u32 v{T0+1}, {512*i}, v0
              v_cmp_gt_u32 {sr(S_M+2*i,2)}, s{S_NWIN}, v{T0+1}""")
    st('list built')
    a("s_waitcnt lgkmcnt(0)\ns_barrier")
    st('list barrier')
    G = XR
    KP = TP
    for i in range(3): a(f"ds_read_b32 v{G+i}, v{T0} offset:{L_SENT + 2048*i}")
    a(f"""s_mov_b32 s{S_T+2}, 13421                         ; 32 * 2^32 / (10000 * 1024)
    s_waitcnt lgkmcnt(0)""")
    for i in range(3):
        a(f"v_lshlrev_b32 v{G+4+i}, 3, v{G+i}\nv_lshlrev_b32 v{G+i}, 4, v{G+i}")
    def key_loads(tag):
        a(f"""s_mov_b64 exec, {sr(S_M+4,2)}
        s_cbranch_execz SKIP3{tag}
        buffer_load_dwordx2 {vr(KP+4,2)}, v{G+6}, {sr(S_WS,4)}, 0 offen sc1
        SKIP3{tag}:""")
        for i in range(2):
            a(f"s_mov_b64 exec, {sr(S_M+2*i,2)}\nbuffer_load_dwordx2 {vr(KP+2*i,2)}, v{G+4+i}, {sr(S_WS,4)}, 0 offen sc1")
        a("s_mov_b64 exec, -1")
    key_loads("")
    H = G + 20
    a(f"""v_lshrrev_b32 v{T0}, 4, v{V_L16}              ; lane
    s_cmp_lg_u32 s{S_W0}, 0
    s_cbranch_scc1 KEY_WAIT
    s_cmp_ge_u32 s{S_WAVE}, 4
    s_cbranch_scc1 DEG_DONE""")
    for j in range(NLN):
        t = T0 + 1 + j % 2
        if j < 5: a(f"v_bfe_u32 v{t}, v{RECN+2}, {6*j}, 6")
        elif j == 5: a(f"v_alignbit_b32 v{t}, v{RECN+3}, v{RECN+2}, 30\nv_and_b32 v{t}, 63, v{t}")
        else: a(f"v_bfe_u32 v{t}, v{RECN+3}, {6*j-32}, 6")
        a(f"""v_lshlrev_b32 v{t}, 2, v{t}
              v_cmpx_lt_u32 vcc, {j}, v{V_LEN}
              ds_add_u32 v{t}, v{V_ONE} offset:{L_DEG}""")
    a(f"""s_mov_b64 exec, -1
DEG_DONE:
    v_lshlrev_b32 v{T0+1}, 2, v{T0}
    v_cmp_gt_u32 {sr(S_T,2)}, 40, v{T0}
    v_sub_u32 v{T0+2}, 63, v{T0}
    s_mul_i32 s10, s{S_WAVE}, 5
    s_waitcnt lgkmcnt(0)
    s_barrier
    ds_read_b32 v{H}, v{T0+1} offset:{L_DEG}
    v_add_u32 v{T0+3}, s10, v{T0}
    v_lshlrev_b32 v{T0+4}, 2, v{T0+3}
    s_waitcnt lgkmcnt(0)
    v_lshl_or_b32 v{H}, v{H}, 6, v{T0+2}
    v_cndmask_b32 v{H}, 0, v{H}, {sr(S_T,2)}
    s_nop 0""")
    for k in range(5):
        a(f"v_readlane_b32 s{S_NODE+k}, v{H}, s10")
        if k < 4: a("s_add_u32 s10, s10, 1")
    for k in range(5): a(f"v_cmp_lt_u32 {sr(S_K+2*k,2)}, s{S_NODE+k}, v{H}")
    for k in range(5): a(f"s_bcnt1_i32_b64 s{S_NODE+k}, {sr(S_K+2*k,2)}")
    for k in range(5): a(f"v_readlane_b32 s{S_NODE+k}, v{V_DEAL}, s{S_NODE+k}")
    a("s_nop 0")
    for k in range(5): a(f"v_writelane_b32 v{T0+1}, s{S_NODE+k}, {k}")
    a(f"""v_lshrrev_b32 v{T0+2}, 11, v{T0+1}
    v_bfe_u32 v{T0+5}, v{T0+1}, 8, 3
    v_lshlrev_b32 v{T0+2}, 7, v{T0+2}
    v_and_b32 v{T0+1}, 0xff, v{T0+1}
    v_lshl_or_b32 v{T0+2}, v{T0+5}, 19, v{T0+2}
    s_mov_b64 exec, 0x1f
    ds_write_b32 v{T0+1}, v{T0+3} offset:{L_INV}
    ds_write_b32 v{T0+4}, v{T0+2} offset:{L_MAP}
    s_mov_b64 exec, -1
    s_waitcnt lgkmcnt(0)
    s_barrier""")
    st('dealt')
    a(f"""KEY_WAIT:
    s_lshl_b32 s3, s{S_WAVE}, 10
    s_add_u32 s3, s3, {L_UREC}
    s_mov_b32 s9, {WS_REC}""")
    a("KEY_WAIT0:\ns_waitcnt vmcnt(0)")
    for i in range(3): a(f"v_cmp_ne_u32 {sr(S_K+2*i,2)}, s{S_NLO}, v{KP+2*i+1}")
    for i in range(3): a(f"v_and_b32 v{G+8+i}, 63, v{KP+2*i}\nv_lshlrev_b32 v{G+8+i}, 2, v{G+8+i}")
    for i in range(3): a(f"s_and_b64 {sr(S_K+2*i,2)}, {sr(S_K+2*i,2)}, {sr(S_M+2*i,2)}")
    a(f"""s_or_b64 {sr(S_K,2)}, {sr(S_K,2)}, {sr(S_K+2,2)}
    s_or_b64 {sr(S_K,2)}, {sr(S_K,2)}, {sr(S_K+4,2)}
    s_cbranch_scc0 KEYS_OK
    s_sub_u32 s{S_SPIN}, s{S_SPIN}, 1
    s_cbranch_scc1 END""")
    key_loads("R")
    a("s_branch KEY_WAIT0\nKEYS_OK:")
    st('keys arrived')
    def rec_dma(at):
        for i in (2, 0, 1):
            if opt.recat[i] != at: continue
            a(f"s_add_u32 m0, s3, {i*8192}\ns_mov_b64 exec, {sr(S_M+2*i,2)}")
            if i == 2: a("s_cbranch_execz SKIP3D")
            a(f"buffer_load_dwordx4 v{G+i}, {sr(S_WS,4)}, s9 offen sc1 lds")
            if i == 2: a("SKIP3D:")
        if at in opt.recat: a("s_mov_b64 exec, -1")
    for i in range(3): a(f"ds_read_b32 v{G+8+i}, v{G+8+i} offset:{L_MAP}")
    rec_dma(0)
    for i in range(3):
        a(f"""v_mul_hi_u32 v{G+12+i}, s{S_T+2}, v{KP+2*i}
              v_add_u32 v{T0+1}, {512*i}, v0
              v_lshlrev_b32 v{T0+1}, 21, v{T0+1}
              v_lshrrev_b32 v{G+16+i}, 10, v{KP+2*i}
              v_lshl_or_b32 v{G+16+i}, v{G+16+i}, 7, v{T0+1}""")
    for i in range(3):
        a(f"""s_waitcnt lgkmcnt({2-i})
              v_lshrrev_b32 v{T0+1}, 16, v{G+8+i}
              v_and_b32 v{G+8+i}, 0x380, v{G+8+i}
              v_or_b32 v{G+16+i}, v{G+16+i}, v{T0+1}
              v_lshl_add_u32 v{G+8+i}, v{G+12+i}, 2, v{G+8+i}""")
    for i in range(3):
        a(f"s_mov_b64 exec, {sr(S_M+2*i,2)}\nds_add_rtn_u32 v{G+12+i}, v{G+8+i}, v{V_ONE} offset:{L_HIST}")
    a("s_mov_b64 exec, -1")
    rec_dma(1)
    a(f"""s_lshl_b32 s10, s{S_WAVE}, 3
    s_add_u32 s11, s10, 8
    s_and_b32 s11, s11, 63
    s_waitcnt lgkmcnt(0)
    s_barrier""")
    st('hist done')
    a(f"ds_read_b128 {vr(H,4)}, v{V_L16} offset:{L_HIST}")
    rec_dma(2)
    x_touch(a, opt, 8)
    a("s_waitcnt lgkmcnt(0)")
    scan256(a, H, H + 4)
    a(f"""ds_write_b128 v{V_L16}, {vr(H+4,4)} offset:{L_BASE}
    v_readlane_b32 s{S_START}, v{H+4}, s10
    v_readlane_b32 s{S_END}, v{H+4}, s11""")
    for i in range(3): a(f"ds_read_b32 v{G+8+i}, v{G+8+i} offset:{L_BASE}")
    a(f"""s_cmp_eq_u32 s{S_WAVE}, 7
    s_cselect_b32 s{S_END}, s{S_NWIN}, s{S_END}
    v_add_u32 v{V_POS}, s{S_START}, v{T0}
    v_lshlrev_b32 v{V_AENT}, 2, v{V_POS}
    v_add_u32 v{V_AENT}, {L_SENT}, v{V_AENT}
    s_sub_u32 s11, s{S_END}, s{S_START}
    s_max_u32 s10, s11, {D}
    s_add_u32 s10, s10, {opt.gran - 1 - D}
    s_and_b32 s{S_REM}, s10, {-opt.gran}
    s_max_u32 s10, s11, s{S_REM}
    s_sub_u32 s{S_REMB}, s10, s{S_REM}""")
    for i in range(3):
        a(f"""s_waitcnt lgkmcnt({2 if i else 2})
              v_add_lshl_u32 v{G+8+i}, v{G+8+i}, v{G+12+i}, 2
              s_mov_b64 exec, {sr(S_M+2*i,2)}
              ds_write_b32 v{G+8+i}, v{G+16+i} offset:{L_SENT}
              s_mov_b64 exec, -1""")
    a("s_waitcnt lgkmcnt(0)")
    if not opt.xpre: a("s_waitcnt vmcnt(0)")
    a("s_barrier")
    st('sorted')
    if opt.stamps: a(f"s_memtime s[100:101]\ns_waitcnt lgkmcnt(0)\ns_mov_b32 s{S_ST+30}, s100")
    meta_read_entry(a)
    a(f"""s_and_b32 s{S_WM}, s{S_WAVE}, 3
    s_lshl_b32 s{S_WM}, s{S_WM}, 13
    s_add_u32 s{S_WM}, s{S_WM}, {WS_WMIX}
    s_add_u32 s{S_WM+1}, s{S_WM}, 4096""")
    for k in range(8): a(f"v_mov_b32 v{RR+k}, 0")
    a("s_waitcnt lgkmcnt(0)")
    meta_fix_entry(a, False)
    a("s_nop 0")
    def first_rows(lo, hi):
        for e in range(lo, hi):
            a(f"""v_readlane_b32 s{S_K+e}, v{ENT}, {e}
                  s_and_b32 s{S_OFF}, s{S_K+e}, s{S_MASK}
                  buffer_load_dwordx4 {vr(XR+4*e,4)}, v{V_L16}, {sr(S_X,4)}, s{S_OFF} offen""")
    if opt.xpre:
        first_rows(0, opt.xpre)
        if ",8:" in "," + opt.xt and 2 not in opt.recat:
            a(f"s_cmp_lg_u32 s{S_W0}, 0\ns_cbranch_scc1 REC_WAIT\ns_waitcnt vmcnt({opt.xpre + 1})\ns_branch REC_IN\nREC_WAIT:")
        a(f"s_waitcnt vmcnt({opt.xpre})\nREC_IN:")
        st('recs landed')
        a("s_barrier")
    meta_read_rec(a)
    first_rows(opt.xpre, D)
    a(f"v_mov_b32 v{KEY}, v{ENT}")
    a(f"""s_waitcnt lgkmcnt(0)
    v_mov_b32 v{EF}, v{RECN+2}
    v_mov_b32 v{EF+1}, v{RECN+3}""")
    for i in range(4): a(w_mfma(i))
    a(p_mfma(0, 0)); a(p_mfma(0, 1)); a(p_mfma(1, 0))
    a("s_nop 1")
    for m in range(4): w_cvt(a, m)
    for odd in range(2):
        u, r = act_regs(0, odd)
        for h in range(2): a(act_addr(TT + 2 * odd + h, u + h))
        for h in range(2): a(act_read(r + h, TT + 2 * odd + h))
    a(f"s_waitcnt vmcnt({D-1})")
    st('first row')
    a(t_mfma(0, 0)); a(t_mfma(0, 1))
    body(a, opt)
    a(f"""MAIN_DONE:
    s_add_u32 s{S_W0}, s{S_W0}, {CAP}
    s_cmp_ge_u32 s{S_W0}, s{S_N}
    s_cbranch_scc1 ALL_DONE
    s_waitcnt vmcnt(0) lgkmcnt(0)""")
    zero_hist(a)
    a("s_waitcnt lgkmcnt(0)\ns_barrier\ns_branch ROUND\nALL_DONE:")
    st('main done')
    if opt.stamps: a(f"s_memtime s[100:101]\ns_waitcnt lgkmcnt(0)\ns_sub_u32 s{S_ST+30}, s100, s{S_ST+30}")
    PK = WPK; VOUT = UU
    a(f"""v_lshrrev_b32 v{T0+3}, 8, v{V_L16}            ; lane >> 4
    s_lshr_b32 s{S_T}, s{S_WAVE}, 2                   ; half
    s_mul_i32 s{S_T+1}, s{S_T}, 80
    v_mul_u32_u24 v{T0+1}, 20, v{T0+3}
    v_add_u32 v{T0+1}, s{S_T+1}, v{T0+1}""")
    for t in range(5): a(f"ds_read_b32 v{VOUT+t}, v{T0+1} offset:{L_INV + 4*t}")
    for sl in range(5):
        for o in range(4): a(f"v_cvt_pk_bf16_f32 v{PK+4*sl+o}, v{ACC+8*sl+o}, v{ACC+8*sl+4+o}")
    a(f"""s_mul_i32 s{S_T+1}, s{S_WAVE}, {4 * AGG_RS}
    s_add_u32 s{S_T+1}, s{S_T+1}, {L_AGG}
    v_lshrrev_b32 v{T0+4}, 2, v{V_L16}
    v_add_u32 v{T0+4}, s{S_T+1}, v{T0+4}
    v_bfe_u32 v{T0+2}, v{V_L16}, 4, 4                 ; lane & 15
    s_mul_i32 s{S_T+1}, s{S_T}, {16 * AGG_RS}
    s_add_u32 s{S_T+1}, s{S_T+1}, {L_AGG}
    v_mul_u32_u24 v{T0}, {AGG_RS}, v{T0+2}
    v_lshl_add_u32 v{T0}, v{T0+3}, 4, v{T0}
    v_add_u32 v{T0}, s{S_T+1}, v{T0}
    s_lshl_b32 s{S_T}, s{S_BETA}, 10
    s_and_b32 s{S_T+1}, s{S_WAVE}, 3
    s_lshl_b32 s{S_T+1}, s{S_T+1}, 8
    s_add_u32 s{S_T}, s{S_T}, s{S_T+1}
    v_lshl_add_u32 v{T0+2}, v{T0+2}, 4, s{S_T}
    s_waitcnt lgkmcnt(0)""")
    for t in range(5): a(f"v_lshl_add_u32 v{VOUT+t}, v{VOUT+t}, 18, v{T0+2}")
    a("s_barrier")
    st('all main done')
    AF = XR
    def wr(sl):
        for o in range(4): a(f"ds_write_b32 v{T0+4}, v{PK+4*sl+o} offset:{(32*sl + o)*AGG_RS}")
    def rd(t):
        for ks in range(4): a(f"ds_read_b128 {vr(AF+16*(t%2)+4*ks,4)}, v{T0} offset:{t*32*AGG_RS + ks*64}")
    def mm(t, waits, writes=None):
        for ks in range(4):
            if waits[ks] is not None: a(f"s_waitcnt lgkmcnt({waits[ks]})")
            for j in range(2):
                d = ACC + 8 * t + 4 * j
                a(f"v_mfma_f32_16x16x32_bf16 {vr(d,4)}, {vr(AF+16*(t%2)+4*ks,4)}, {vr(WMIX+16*j+4*ks,4)}, " + ("0" if ks == 0 else vr(d, 4)))
            if writes:
                s0, lo, hi = writes[ks]
                for n in range(lo, hi): a(f"ds_write_b32 v{T0+4}, v{PK+4*s0+n} offset:{(32*(s0 + n // 4) + n % 4)*AGG_RS}")
    def pack_store(t):
        d = ACC + 8 * t; p = RR + 4 * (t % 2)
        for j in range(4): a(f"v_cvt_pk_bf16_f32 v{p+j}, v{d+2*j}, v{d+2*j+1}")
        a(f"buffer_store_dwordx4 {vr(p,4)}, v{VOUT+t}, {sr(S_OUT,4)}, 0 offen {opt.outst}")
    wr(0); wr(1)
    a("s_waitcnt vmcnt(0) lgkmcnt(0)\ns_barrier")
    st('agg in LDS')
    rd(0); rd(1)
    mm(0, [7, 9, 11, 13], [(2, 0, 3), (2, 3, 6), (2, 6, 9), (2, 9, 12)])
    a("s_waitcnt lgkmcnt(0)\ns_barrier")
    rd(2)
    mm(1, [None] * 4); pack_store(0)
    rd(3)
    mm(2, [7, 6, 5, 4]); pack_store(1)
    rd(4)
    mm(3, [7, 6, 5, 4]); pack_store(2)
    mm(4, [3, 2, 1, 0]); pack_store(3)
    a("s_nop 3")
    pack_store(4)
    st('end')
    if opt.probe:
        a(f"""s_cmp_eq_u32 s93, 0
        s_cselect_b32 s93, s92, s93
        s_sub_u32 s93, s93, s92
        s_mul_i32 s93, s93, 4
        s_add_u32 s92, s92, s93
        s_add_u32 s92, s92, 6000
        HOLD_SPIN:
        s_memrealtime s[98:99]
        s_waitcnt lgkmcnt(0)
        s_sub_u32 s98, s98, s92
        s_cmp_lt_i32 s98, 0
        s_cbranch_scc1 HOLD_SPIN""")
    if opt.stamps:
        a("s_waitcnt vmcnt(0)")
        st('stores done 2')
        a(f"""s_lshl_b32 s10, s2, 3
        s_add_u32 s10, s10, s{S_WAVE}
        s_lshl_b32 s10, s10, 7
        s_add_u32 s10, s10, {WS_STAMP}
        v_mov_b32 v{T0}, s10
        s_sub_u32 s{S_ST+31}, s{S_END}, s{S_START}
        s_sub_u32 s{S_ST+29}, {1 << 21}, s{S_SPIN}""")
        for k in range(32): a(f"v_mov_b32 v{XR+k}, s{S_ST+k}")
        for k in range(8): a(f"buffer_store_dwordx4 {vr(XR+4*k,4)}, v{T0}, {sr(S_WS,4)}, 0 offen offset:{16*k}")
    a("END:\ns_endpgm")
    a(".p2align 6\n.type DEAL_TABLE,@object\nDEAL_TABLE:\n.short " + ", ".join(map(str, deal_bytes())) + "\n.size DEAL_TABLE, 256")
    return a.text()

def generate(opt):
    here = os.path.dirname(os.path.abspath(__file__))
    out = open(here + "/header.txt").read()
    out += f"; @launch grid=(256,1,1) block=(512,1,1) lds={LDS_BYTES}\n"
    out += f'.amdgcn_target "amdgcn-amd-amdhsa--gfx950"\n.text\n.globl {KERN}\n.p2align 8\n.type {KERN},@function\n'
    out += kernel(opt)
    out += f""".section .rodata,"a"
.p2align 6
.amdhsa_kernel {KERN}
  .amdhsa_next_free_vgpr {NVGPR}
  .amdhsa_next_free_sgpr {NSGPR if opt.stamps or opt.probe else 66}
  .amdhsa_accum_offset {(NVGPR + 3) // 4 * 4}
  .amdhsa_group_segment_fixed_size 0
  .amdhsa_kernarg_size 88
  .amdhsa_user_sgpr_count 2
  .amdhsa_user_sgpr_kernarg_segment_ptr 1
  .amdhsa_system_sgpr_workgroup_id_x 1
  .amdhsa_float_denorm_mode_32 3
.end_amdhsa_kernel
"""
    return out

def options(argv):
    p = argparse.ArgumentParser()
    p.add_argument("-o", default="/code/" + NAME + ".s")
    p.add_argument("--stamps", action="store_true")
    p.add_argument("--probe", default="")
    p.add_argument("--D", type=int, default=6)
    p.add_argument("--recat", type=lambda t: tuple(map(int, t.split(","))), default=(0, 1, 0))
    p.add_argument("--only", default="")
    p.add_argument("--xflag", default="")
    p.add_argument("--gran", type=int, default=4)
    p.add_argument("--late", type=int, default=62)
    p.add_argument("--xpre", type=int, default=2)
    p.add_argument("--xt", default="9:0:8,6:8:16,3:16:24,8:24:32")
    p.add_argument("--lsplit", type=int, default=5)
    p.add_argument("--k1st", default="sc0 sc1")
    p.add_argument("--outst", default="sc0 sc1")
    return p.parse_args(argv)

if __name__ == "__main__":
    opt = options(sys.argv[1:])
    open(opt.o, "w").write(generate(opt))
    if opt.stamps: open(opt.o + ".names", "w").write(repr(STAMPS))
    import subprocess
    here = os.path.dirname(os.path.abspath(__file__))
    r = subprocess.run([sys.executable, here + "/hazards.py", opt.o], capture_output=True, text=True).stdout
    if " 0 finding" not in r: print(r)
    r = subprocess.run([sys.executable, here + "/../cdna_unwritten_srd_check.py", opt.o], capture_output=True, text=True)
    if r.returncode: print(r.stdout, r.stderr)
```

```python
import sys, argparse, os

NAME = "gather_scatter__tensor_product_equiv_tfn__graph"
KERN = NAME + "_kernel"
N, E, C = 10000, 320000, 128
NP, EP = 250, 1280
WS_KEY = 0
WS_REC = 0x280000
WS_WMIX = 0x771000
WS_TAB = 0x780000
WS_EPOCH = WS_TAB + 256 * 4096
WS_END = WS_EPOCH + 128
WS_STAMP = 0x900000
CAP = 1472

class Asm:
    def __init__(self): self.l = []
    def __call__(self, s):
        for line in s.strip("\n").split("\n"):
            line = line.strip()
            if not line: continue
            self.l.append(line if line.endswith(":") else "    " + line)
    def text(self): return "\n".join(self.l) + "\n"

def vr(a, n=1): return f"v{a}" if n == 1 else f"v[{a}:{a+n-1}]"
def sr(a, n=1): return f"s{a}" if n == 1 else f"s[{a}:{a+n-1}]"

SCAN_STEPS = ["row_shr:1 row_mask:0xf bank_mask:0xf bound_ctrl:0", "row_shr:2 row_mask:0xf bank_mask:0xf bound_ctrl:0",
              "row_shr:4 row_mask:0xf bank_mask:0xf bound_ctrl:0", "row_shr:8 row_mask:0xf bank_mask:0xf bound_ctrl:0",
              "row_bcast:15 row_mask:0xa bank_mask:0xf", "row_bcast:31 row_mask:0xc bank_mask:0xf"]
def scan64(a, *regs):
    for c in SCAN_STEPS:
        a("s_nop 1" if len(regs) == 1 else "s_nop 0")
        for v in regs: a(f"v_add_u32_dpp v{v}, v{v}, v{v} {c}")

L_HIST = 0; L_DEG = 1024; L_WT = 1280; L_CNT = L_WT + 16
L_INV = 1344; L_MAP = 1536; L_BASE = 1792
L_SENT = L_BASE + 1024
L_UREC = L_SENT + CAP * 4
L_CG = L_UREC + CAP * 16
L_LUT = 32768
L1_HIST = L_SENT; L1_LNS = L1_HIST + 1024; L1_BASE = L1_LNS + 2048; L1_SREC = L_UREC
L1_SKEY = L_LUT + 53 * 1024
assert L_CG + 128 <= L_LUT and L1_SREC + (EP + 64) * 16 <= L_CG and L1_BASE <= 8192
NLN = 10
L_AGG = L_LUT; AGG_RS = 288
LDS_BYTES = L_LUT + 131072

V_L16 = 1
V_LEN, V_PRE, V_GID = 2, 3, 4
V_AENT, V_POS = 5, 6
V_ONE = 15
V_DEAL = 174
V_DUMMY = 167
V_TOUCH = 166
T0 = 8
ACC = 16; XR = 64; TP = 96; UU = 112; RR = 128; TT = 136; WPK = 140; WTMP = 148
KEY = 164; ENT = 165; RECN = 168; EF = 172; CONST = 176; WMIX = 188
NVGPR = 220
PE, PO, CGB = CONST, CONST + 2, CONST + 4
LJ = 128
S_NODE = 4
S_X, S_WS, S_OUT = 12, 16, 20
S_BETA, S_WAVE, S_N, S_W0, S_NWIN, S_START, S_END, S_REM, S_REMB, S_OFF, S_MASK = range(24, 35)
S_SPIN = 35
S_M = 36
S_T = 42
S_K = 48
S_IN = 40
S_JOB, S_JCNT = 62, 63
S_SEG = 61
S_NLO, S_NHI = 64, 65
S_WM = 10
S_L2E = 10
S_ST = 66
NSGPR = 102

STAMPS = []
def stamp(a, opt, name):
    if opt.probe == name: a("s_memrealtime s[98:99]\ns_waitcnt lgkmcnt(0)\ns_mov_b32 s93, s98")
    if not opt.stamps: return
    if opt.only and name not in opt.only.split(",") + ["start", "sorted", "main done", "stores done 2"]: return
    if name not in STAMPS: STAMPS.append(name)
    a(f"s_memrealtime s[98:99]\ns_waitcnt lgkmcnt(0)\ns_mov_b32 s{S_ST + STAMPS.index(name)}, s98")

S_RET = 6
def lut_sub(a):
    J, Ex, R, P = LJ, LJ + 8, LJ + 16, LJ + 24
    a(f"""LUT_SUB:
    s_lshl_b32 s3, s{S_JOB}, 25
    s_add_u32 s3, s3, 0x8000
    v_lshl_add_u32 v{J}, v{V_L16}, 15, s3""")
    for k in range(1, 8): a(f"v_add_u32 v{J+k}, 0x10000, v{J+k-1}")
    for k in range(0, 8, 2): a(f"v_pk_mul_f32 {vr(Ex+k,2)}, {vr(J+k,2)}, {sr(S_L2E,2)}")
    for k in range(8): a(f"v_exp_f32 v{Ex+k}, v{Ex+k}")
    a(f"s_lshl_b32 s3, s{S_JOB}, 10")
    for k in range(0, 8, 2): a(f"v_pk_add_f32 {vr(R+k,2)}, {vr(Ex+k,2)}, 1.0 op_sel_hi:[1,0]")
    for k in range(8): a(f"v_rcp_f32 v{R+k}, v{R+k}")
    a(f"v_add_u32 v{P+8}, s3, v{V_L16}")
    for k in range(0, 8, 2): a(f"v_pk_mul_f32 {vr(J+k,2)}, {vr(J+k,2)}, {vr(R+k,2)}")
    a(f"v_add_u32 v{P+9}, 0x10000, v{P+8}")
    for k in range(0, 8, 2): a(f"v_pk_mul_f32 {vr(Ex+k,2)}, {vr(J+k,2)}, {vr(Ex+k,2)} neg_lo:[1,0] neg_hi:[1,0]")
    for k in range(4): a(f"v_cvt_pk_bf16_f32 v{P+k}, v{J+2*k}, v{J+2*k+1}")
    for k in range(4): a(f"v_cvt_pk_bf16_f32 v{P+4+k}, v{Ex+2*k}, v{Ex+2*k+1}")
    a(f"""ds_write_b128 v{P+8}, {vr(P,4)} offset:{L_LUT}
    ds_write_b128 v{P+9}, {vr(P+4,4)} offset:{L_LUT}
    s_add_u32 s{S_JOB}, s{S_JOB}, 1
    s_sub_u32 s{S_JCNT}, s{S_JCNT}, 1
    s_cmp_lg_u32 s{S_JCNT}, 0
    s_cbranch_scc1 LUT_SUB
    s_setpc_b64 {sr(S_RET,2)}""")
def lut_jobs(a, count): a(f"s_mov_b32 s{S_JCNT}, {count}\ns_call_b64 {sr(S_RET,2)}, LUT_SUB")

def lut_plain(a, tag, region, last=None, cont=False):
    P = LJ
    for name, first, end, bias in (("L", 1, 24, 0x20000 - 0x800080), ("H", 34, 62, 0x20000)):
        if name != region: continue
        last = last or end
        if cont: a(f"s_cmp_gt_u32 s{S_JOB}, {last}\ns_cbranch_scc1 LUTP_END_{tag}")
        else: a(f"s_add_u32 s{S_JOB}, s{S_WAVE}, {first}")
        if name == "H" and not cont:
            for k in range(4): a(f"v_mov_b32 v{P+4+k}, 0x80008000")
        a(f"LUTP_{tag}{name}:")
        a(f"""s_mul_i32 s3, s{S_JOB}, {512 * 0x10001}
        s_add_u32 s3, s3, {bias & 0xffffffff}
        v_add_u32 v{P}, s3, v{P+10}
        s_lshl_b32 s3, s{S_JOB}, 10
        v_add_u32 v{P+8}, s3, v{V_L16}""")
        for k in range(1, 4): a(f"v_add_u32 v{P+k}, {k * 0x20002}, v{P}")
        a(f"v_add_u32 v{P+9}, 0x10000, v{P+8}")
        if name == "L":
            for k in range(4): a(f"v_or_b32 v{P+4+k}, 0x80008000, v{P+k}")
        a(f"""ds_write_b128 v{P+8}, {vr(P,4)} offset:{L_LUT}
        ds_write_b128 v{P+9}, {vr(P+4,4)} offset:{L_LUT}
        s_add_u32 s{S_JOB}, s{S_JOB}, {5 if name == "L" else 4}
        s_cmp_le_u32 s{S_JOB}, {last}
        s_cbranch_scc1 LUTP_{tag}{name}
        LUTP_END_{tag}:""")

def tab_issue(a): a(f"buffer_load_dwordx4 {vr(RECN,4)}, v{V_POS}, {sr(S_WS,4)}, 0 offen sc1")
def tab_check(a, younger):
    if younger: a(f"s_waitcnt vmcnt({younger})\ns_branch CHECK_TAB")
    a(f"""POLL_TAB:
    s_waitcnt vmcnt(0)
    CHECK_TAB:
    v_lshrrev_b32 v{T0+3}, 22, v{RECN}
    v_cmp_ne_u32 vcc, s{S_NLO}, v{RECN+1}
    v_cmp_ne_u32 {sr(S_T,2)}, s{S_NHI}, v{T0+3}
    s_or_b64 vcc, vcc, {sr(S_T,2)}
    s_and_b64 exec, exec, vcc
    s_cbranch_execz POLLED_TAB
    s_sub_u32 s{S_SPIN}, s{S_SPIN}, 1
    s_cbranch_scc1 END""")
    tab_issue(a)
    a("s_branch POLL_TAB\nPOLLED_TAB:\ns_mov_b64 exec, -1")

def load_epoch(a):
    a(f"""s_add_u32 s4, s{S_WS}, {WS_EPOCH}
    s_addc_u32 s5, s{S_WS+1}, 0
    s_load_dwordx2 {sr(S_NLO,2)}, s[4:5], 0""")
def make_tag(a):
    a(f"""s_add_u32 s{S_NLO}, s{S_NLO}, 1
    s_and_b32 s{S_NHI}, s{S_NHI}, 0x3ff""")

def scan256(a, H_, O_):
    a(f"""v_add_u32 v{T0+2}, v{H_}, v{H_+1}
    v_add3_u32 v{T0+2}, v{T0+2}, v{H_+2}, v{H_+3}
    v_mov_b32 v{T0+3}, v{T0+2}""")
    scan64(a, T0 + 3)
    a(f"""v_sub_u32 v{O_}, v{T0+3}, v{T0+2}
    v_add_u32 v{O_+1}, v{O_}, v{H_}
    v_add_u32 v{O_+2}, v{O_+1}, v{H_+1}
    v_add_u32 v{O_+3}, v{O_+2}, v{H_+2}""")

SRC, DST, YY, EFP, WRAD, CG, WMX = S_IN + 2, S_IN + 4, S_IN + 6, S_IN + 8, S_IN + 10, S_IN + 12, S_IN + 14
D_, S_, Y_, F_, B_, R_, H_, O_, TB = 64, 68, 72, 80, 88, 92, 96, 100, 108
CT = WMIX
def const_sub(a):
    a(f"""CONST_SUB:
    ds_write_b32 v{CT+5}, v{CT+4} offset:{L_CG}
    v_lshrrev_b32 v{CT+5}, 3, v{V_L16}
    v_and_b32 v{CT+5}, 24, v{CT+5}
    s_mov_b32 s4, 0x05040100
    s_mov_b32 s5, 0x07060302""")
    for i in range(4): a(f"ds_read_b64_tr_b16 {vr(CGB+2*i,2)}, v{CT+5} offset:{L_CG + 32*i}")
    for u in range(2):
        a(f"v_perm_b32 v{PE+u}, v{CT+1+2*u}, v{CT+2*u}, s4\nv_perm_b32 v{PO+u}, v{CT+1+2*u}, v{CT+2*u}, s5")
    a(f"s_setpc_b64 {sr(S_RET,2)}")
def const_finish(a): a(f"s_call_b64 {sr(S_RET,2)}, CONST_SUB")

def load_yf(a):
    a(f"""global_load_dwordx4 {vr(Y_,4)}, v{T0+1}, {sr(YY,2)}
    global_load_dwordx4 {vr(Y_+4,4)}, v{T0+1}, {sr(YY,2)} offset:16
    global_load_dwordx4 {vr(F_,4)}, v{T0+1}, {sr(EFP,2)}
    global_load_dwordx4 {vr(F_+4,4)}, v{T0+1}, {sr(EFP,2)} offset:16""")

def phase1(a, opt):
    st = lambda n: stamp(a, opt, n)
    WS = sr(S_WS, 2); FL = opt.k1st
    a(f"""s_cmp_ge_u32 s{S_WAVE}, 5
    s_cbranch_scc1 HELP""")
    lut_plain(a, "W0", "L", last=opt.lsplit)
    a(f"""s_cmp_ge_u32 s2, {NP}
    s_cbranch_scc1 AUX""")
    load_yf(a)
    st('jobs A')
    a("s_waitcnt vmcnt(11)")
    st('dst arrived')
    for k in range(4):
        a(f"""v_and_b32 v{B_+k}, 0xff, v{D_+k}
              v_lshlrev_b32 v{B_+k}, 2, v{B_+k}
              ds_add_rtn_u32 v{R_+k}, v{B_+k}, v{V_ONE} offset:{L1_HIST}""")
    a("s_waitcnt vmcnt(10)")
    for k in range(4):
        a(f"""v_lshrrev_b32 v{D_+k}, 8, v{D_+k}
              v_lshl_or_b32 v{TB+2*k}, v{S_+k}, 10, v{D_+k}""")
    a(f"""s_mov_b32 s9, {L1_SKEY}
    s_waitcnt lgkmcnt(0)
    s_barrier
    ds_read_b128 {vr(H_,4)}, v{V_L16} offset:{L1_HIST}""")
    make_tag(a)
    for k in range(4): a(f"v_mov_b32 v{TB+2*k+1}, s{S_NLO}")
    a("v_mov_b32 v119, 0")
    for k in range(4):
        a(f"""v_cmp_gt_u32 vcc, {NLN}, v{R_+k}
              v_mul_u32_u24 v116, 6, v{R_+k}
              v_lshlrev_b32 v117, 1, v{B_+k}
              v_cndmask_b32 v118, 0, v{D_+k}, vcc
              v_lshlrev_b64 {vr(120+2*(k%2),2)}, v116, v[118:119]
              ds_or_b64 v117, {vr(120+2*(k%2),2)} offset:{L1_LNS}""")
    a("s_waitcnt lgkmcnt(4)")
    scan256(a, H_, O_)
    a(f"ds_write_b128 v{V_L16}, {vr(O_,4)} offset:{L1_BASE}")
    for k in range(4): a(f"ds_read_b32 v{H_+k}, v{B_+k} offset:{L1_BASE}")
    for k in range(4):
        a(f"""s_waitcnt lgkmcnt(3)
              v_add_u32 v{R_+k}, v{R_+k}, v{H_+k}
              v_lshl_add_u32 v{B_+k}, v{R_+k}, 3, s9
              ds_write_b64 v{B_+k}, {vr(TB+2*k,2)}""")
    for k in range(4):
        a(f"v_lshlrev_b32 v{R_+k}, 4, v{R_+k}\nv_add_u32 v{R_+k}, {L1_SREC}, v{R_+k}")
    a("s_waitcnt lgkmcnt(0)\ns_barrier")
    st('keys binned')
    a("s_waitcnt vmcnt(0)")
    x_touch(a, opt, 9, False)
    for k in range(4):
        a(f"ds_write2_b64 v{R_+k}, {vr(Y_+2*k,2)}, {vr(F_+2*k,2)} offset0:0 offset1:1")
    st('recs binned')
    a("BINNED:\ns_setprio 0")
    a(f"s_waitcnt lgkmcnt(0)\ns_barrier\nv_mov_b32 v{V_LEN}, 0")
    const_finish(a)
    lut_plain(a, "W", "L", cont=True)
    a(f"s_cmp_eq_u32 s{S_WAVE}, 4\ns_cbranch_scc1 WAVE4")
    lut_plain(a, "U", "H", last=opt.late)
    tab_issue(a)
    x_touch(a, opt, 6, False)
    st('tab issued')
    if opt.late < 62: lut_plain(a, "V", "H", cont=True)
    tab_check(a, ("," + opt.xt).count(",6:"))
    st('tab arrived')
    a("s_branch TAB_DONE")
    lut_sub(a)
    const_sub(a)
    a("HELP:")
    a(f"""s_sub_u32 s8, s{S_WAVE}, 5
    s_mul_i32 s4, s8, 3072
    s_cmp_eq_u32 s8, 1
    s_cselect_b32 s4, 4096, s4
    s_mul_i32 s3, s2, {EP * 8}
    s_add_u32 s3, s3, s4
    v_add_u32 v{T0}, s3, v{V_L16}
    s_add_u32 s4, s4, {L1_SKEY}
    v_add_u32 v{T0+1}, s4, v{V_L16}
    s_mul_i32 s4, s8, 7168
    s_mul_i32 s3, s2, {EP * 16}
    s_add_u32 s3, s3, s4
    s_add_u32 s3, s3, {WS_REC}
    v_add_u32 v{T0+4}, s3, v{V_L16}
    v_add_u32 v{T0+5}, s4, v{V_L16}
    s_lshl_b32 s3, s2, 12
    s_add_u32 s3, s3, {WS_TAB}
    v_add_u32 v117, s3, v{V_L16}
    s_waitcnt lgkmcnt(0)""")
    make_tag(a)
    st('help jobs')
    a(f"""s_barrier
    s_cmp_eq_u32 s{S_WAVE}, 6
    s_cbranch_scc1 ROW
    s_cmp_eq_u32 s{S_WAVE}, 7
    s_cselect_b32 s{S_JOB}, 63, 0""")
    lut_jobs(a, 1)
    a("s_waitcnt vmcnt(0)")
    const_finish(a)
    a(f"""v_mov_b32 v{T0+2}, {0x7f80 * 2}
    v_mov_b32 v{T0+3}, 0x7f80
    s_cmp_lg_u32 s{S_WAVE}, 7
    s_cbranch_scc1 NO_ROW
    ds_write_b16 v{T0+2}, v{T0+3} offset:{L_LUT}
    s_branch NO_ROW
ROW:
    v_lshrrev_b32 v116, 2, v{V_L16}""")
    QT, HH, SS = 84, 100, 104
    for m in range(4): a(f"ds_read_b32 v{HH+m}, v116 offset:{L1_HIST + 256*m}")
    a(f"""s_lshl_b32 s3, s2, 12
    s_add_u32 s3, s3, {WS_TAB}
    v_add_u32 v117, s3, v{V_L16}
    v_lshrrev_b32 v116, 1, v{V_L16}
    s_lshl_b32 s3, s{S_NHI}, 22
    s_waitcnt lgkmcnt(0)""")
    for m in range(4): a(f"v_mov_b32 v{SS+m}, v{HH+m}")
    scan64(a, SS, SS + 1, SS + 2, SS + 3)
    a(f"""v_readlane_b32 s4, v{SS}, 63
    v_readlane_b32 s5, v{SS+1}, 63
    v_readlane_b32 s9, v{SS+2}, 63""")
    for m in range(4): a(f"v_sub_u32 v{SS+m}, v{SS+m}, v{HH+m}")
    a(f"""s_add_u32 s5, s5, s4
    s_add_u32 s9, s9, s5
    v_add_u32 v{SS+1}, s4, v{SS+1}
    v_add_u32 v{SS+2}, s5, v{SS+2}
    v_add_u32 v{SS+3}, s9, v{SS+3}""")
    for m in range(4):
        a(f"""v_lshl_or_b32 v{QT+4*m}, v{HH+m}, 11, v{SS+m}
              v_or_b32 v{QT+4*m}, s3, v{QT+4*m}
              v_mov_b32 v{QT+4*m+1}, s{S_NLO}""")
    a("s_waitcnt vmcnt(0)")
    const_finish(a)
    a(f"""NO_ROW:
    s_barrier
    s_cmp_lg_u32 s{S_WAVE}, 6
    s_cbranch_scc1 ROW_DONE""")
    for m in range(4): a(f"ds_read_b64 {vr(QT+4*m+2,2)}, v116 offset:{L1_LNS + 512*m}")
    for m in range(4): a(f"s_waitcnt lgkmcnt({3-m})\nglobal_store_dwordx4 v117, {vr(QT+4*m,4)}, {WS} offset:{1024*m} sc0 sc1")
    st('table published')
    a("ROW_DONE:")
    for k in range(4): a(f"ds_read_b128 {vr(64+4*k,4)}, v{T0+1} offset:{1024*k}")
    a(f"""v_mov_b32 v{V_LEN}, 0
    s_add_u32 s{S_JOB}, s8, s8                       ; jobs 27, 28 / 29, 30, 31 / 32, 33
    s_add_u32 s{S_JOB}, s{S_JOB}, 27
    s_cmp_eq_u32 s8, 2
    s_addc_u32 s{S_JOB}, s{S_JOB}, 0
    s_cmp_eq_u32 s8, 1
    s_cselect_b32 s{S_JCNT}, 3, 2
    s_waitcnt lgkmcnt(0)
    s_barrier
    s_cmp_ge_u32 s2, {NP}
    s_cbranch_scc1 RECS_STORED""")
    for k in range(7): a(f"ds_read_b128 {vr(84+4*k,4)}, v{T0+5} offset:{L1_SREC + 1024*k}")
    for k in range(7):
        if k == 4: a(f"v_add_u32 v{T0+4}, 4096, v{T0+4}")
        if k == 6: a(f"s_cmp_eq_u32 s8, 2\ns_cbranch_scc1 RECS_STORED")
        a(f"s_waitcnt lgkmcnt({6-k})\nglobal_store_dwordx4 v{T0+4}, {vr(84+4*k,4)}, {WS} offset:{(1024*k) % 4096} {FL}")
    a(f"""RECS_STORED:
    s_call_b64 {sr(S_RET,2)}, LUT_SUB
    s_cmp_ge_u32 s2, {NP}
    s_cbranch_scc1 TAB_DONE
    v_mov_b32 v{T0+2}, 0
    s_waitcnt vmcnt(0)
    s_mov_b64 exec, 1
    ds_add_u32 v{T0+2}, v{V_ONE} offset:{L_CNT}
    s_mov_b64 exec, -1
WAIT_ACK:
    ds_read_b32 v{T0+3}, v{T0+2} offset:{L_CNT}
    s_waitcnt lgkmcnt(0)
    v_readfirstlane_b32 s3, v{T0+3}
    s_cmp_eq_u32 s3, 3
    s_cbranch_scc0 WAIT_ACK""")
    st('recs acked')
    for k in range(4):
        if k == 2: a(f"s_cmp_eq_u32 s8, 1\ns_cbranch_scc1 TAB_DONE")
        a(f"global_store_dwordx4 v{T0}, {vr(64+4*k,4)}, {WS} offset:{1024*k} {FL}")
    a("s_branch TAB_DONE")
    a(f"""AUX_LOAD:
    s_sub_u32 s4, s2, {NP}
    s_cmp_ge_u32 s4, 4
    s_cbranch_scc1 NO_EDGES
    s_cmp_ge_u32 s{S_WAVE}, 4
    s_cbranch_scc1 NO_EDGES
    s_lshl_b32 s5, s{S_WAVE}, 13
    s_lshl_b32 s8, s4, 6
    s_add_u32 s5, s5, s8
    v_lshrrev_b32 v80, 8, v{V_L16}
    v_lshlrev_b32 v80, 11, v80
    v_bfe_u32 v81, v{V_L16}, 4, 4
    v_lshl_add_u32 v80, v81, 2, v80
    v_add_u32 v80, s5, v80""")
    for t in range(8): a(f"global_load_dword v{64+t}, v80, {sr(WMX,2)} offset:{t*256}")
    a(f"""s_branch NO_EDGES
AUX:
    s_cmp_ge_u32 s2, {NP + 4}
    s_cbranch_scc1 AUX_DONE
    s_cmp_ge_u32 s{S_WAVE}, 4
    s_cbranch_scc1 AUX_DONE
    s_sub_u32 s4, s2, {NP}
    s_lshl_b32 s5, s4, 13
    s_lshl_b32 s8, s{S_WAVE}, 10
    s_add_u32 s5, s5, s8
    s_add_u32 s5, s5, {WS_WMIX}
    v_add_u32 v81, s5, v{V_L16}
    s_mov_b32 s4, 0x05040100
    s_mov_b32 s5, 0x07060302
    s_waitcnt vmcnt(6)""")
    for u in range(4):
        a(f"v_perm_b32 v{72+u}, v{65+2*u}, v{64+2*u}, s4\nv_perm_b32 v{76+u}, v{65+2*u}, v{64+2*u}, s5")
    a(f"""global_store_dwordx4 v81, v[72:75], {WS} {FL}
    v_add_u32 v81, 4096, v81
    global_store_dwordx4 v81, v[76:79], {WS} {FL}
AUX_DONE:
    s_waitcnt lgkmcnt(0)""")
    make_tag(a)
    a(f"""s_barrier
    s_waitcnt vmcnt(0)
    s_barrier
    s_branch BINNED
WAVE4:
    s_mov_b32 s{S_JOB}, 25""")
    lut_jobs(a, 2)
    a("TAB_DONE:")

def mfma4(d, a_, b, c, blk=None):
    cc = "0" if c is None else vr(c, 4)
    return f"v_mfma_f32_4x4x4_16b_bf16 {vr(d,4)}, {vr(a_,2)}, {vr(b,2)}, {cc}" + ("" if blk is None else f" cbsz:4 abid:{blk}")
def p_mfma(g, odd):
    return mfma4(UU + 8 * (g % 2) + 4 * odd, EF, PO if odd else PE, None, g % 16)
def t_mfma(e, odd):
    return mfma4(TP + 8 * (e % 2) + 4 * odd, WPK + 2 * (e % 4), XR + 4 * (e % 8) + 2 * odd, None, (e % 64) // 4)
def act_regs(eb, odd):
    return UU + 8 * ((eb // 4) % 2) + 4 * odd + eb % 4, RR + 4 * ((eb // 2) % 2) + 2 * odd
def act_addr(t, u):
    return f"v_lshlrev_b32_sdwa v{t}, v{V_ONE}, v{u} dst_sel:DWORD dst_unused:UNUSED_PAD src0_sel:DWORD src1_sel:WORD_1"
def act_read(r, t): return f"ds_read_u16_d16_hi v{r}, v{t} offset:{L_LUT}"
def fma4(a, q):
    h = q % 2
    a(f"s_set_gpr_idx_on s{S_K + q % 16}, 0xc")
    for odd in range(2):
        r = RR + 4 * ((q // 2) % 2) + 2 * odd
        for o in (0, 2):
            acc = ACC + 4 * odd + o; tp = TP + 8 * (q % 2) + 4 * odd + o
            a(f"v_pk_fma_f32 {vr(acc,2)}, {vr(r,2)}, {vr(tp,2)}, {vr(acc,2)} op_sel:[{h},0,0] op_sel_hi:[{h},1,1]")
    a("s_set_gpr_idx_off")
def meta_read_entry(a): a(f"ds_read_b32 v{ENT}, v{V_AENT}")
def meta_fix_entry(a, rec=True):
    a(f"""v_cmp_gt_u32 vcc, s{S_END}, v{V_POS}
          v_add_u32 v{V_POS}, 64, v{V_POS}
          v_add_u32 v{V_AENT}, 256, v{V_AENT}
          v_cndmask_b32 v{ENT}, 40, v{ENT}, vcc
          v_lshrrev_b32 v{T0}, 21, v{ENT}
          v_lshlrev_b32 v{T0}, 4, v{T0}
          v_lshlrev_b32 v{T0+1}, 3, v{ENT}""")
    if rec: meta_read_rec(a)
    a(f"""v_and_b32 v{T0+1}, 0xfffc00, v{T0+1}
          v_and_or_b32 v{ENT}, v{ENT}, 56, v{T0+1}""")
def meta_read_rec(a): a(f"ds_read_b128 {vr(RECN,4)}, v{T0} offset:{L_UREC}")
def w_mfma(i): return mfma4(WTMP + 4 * i, RECN, CGB + 2 * i, None)
def w_cvt(a, m):
    a(f"""v_cvt_pk_bf16_f32 v{WPK+2*m}, v{WTMP+m}, v{WTMP+4+m}
          v_cvt_pk_bf16_f32 v{WPK+2*m+1}, v{WTMP+8+m}, v{WTMP+12+m}""")

def step(a, opt, q, drain=None):
    D = opt.D; loads = drain is None
    eb = q + 2 - q % 2; odd = q % 2
    u, r = act_regs(eb, odd); t = TT + 2 * odd
    g, ur = (q + 6) // 4, (q + 6) % 4
    if ur % 2 == 0: a(p_mfma(g, ur // 2))
    elif 40 <= q < 48: a(w_mfma((q - 40) // 2))
    a(act_addr(t, u))
    if loads: a(f"s_waitcnt vmcnt({D - 2})")
    elif D - 2 - drain >= 0: a(f"s_waitcnt vmcnt({8 + D - 2 - drain})")
    a(t_mfma(q + 1, 0))
    if loads: a(f"v_readlane_b32 s{S_K + (q + D) % 16}, v{KEY if q + D < 64 else ENT}, {(q + D) % 64}")
    else:     a("s_nop 0")
    a(t_mfma(q + 1, 1))
    a(act_addr(t + 1, u + 1))
    a(act_read(r, t)); a(act_read(r + 1, t + 1))
    if q >= 60: w_cvt(a, q - 60)
    if loads:
        a(f"s_and_b32 s{S_OFF}, s{S_K + (q + D) % 16}, s{S_MASK}")
        a(f"buffer_load_dwordx4 {vr(XR + 4 * ((q + D) % 8), 4)}, v{V_L16}, {sr(S_X,4)}, s{S_OFF} offen")
    if q % 2 == 0: a("s_waitcnt lgkmcnt(2)")
    fma4(a, q)
    if loads and q == 8: meta_read_entry(a)
    if loads and q == 12: meta_fix_entry(a)
    if q == 57: a(f"v_mov_b32 v{EF}, v{RECN+2}\nv_mov_b32 v{EF+1}, v{RECN+3}\ns_nop 1")
    if loads and q == 63: a(f"v_mov_b32 v{KEY}, v{ENT}")

def body(a, opt):
    G = opt.gran
    for q in range(64):
        if q % G == 0: a(f"A_{q}:\ns_sub_u32 s{S_REM}, s{S_REM}, {G}\ns_cbranch_scc1 B_{q}")
        step(a, opt, q)
    if opt.stamps and not opt.only:
        STAMPS.extend(("batch 1", "batch 2")); k = S_ST + len(STAMPS) - 2
        a(f"""s_memrealtime s[98:99]
        s_waitcnt lgkmcnt(0)
        s_cmp_eq_u32 s{k}, 0
        s_cselect_b32 s99, 0, s98
        s_cselect_b32 s{k}, s98, s{k}
        s_cmp_eq_u32 s{k+1}, 0
        s_cselect_b32 s{k+1}, s99, s{k+1}""")
    if opt.probe == "batch 1":
        a("s_memrealtime s[98:99]\ns_waitcnt lgkmcnt(0)\ns_cmp_eq_u32 s93, 0\ns_cselect_b32 s93, s98, s93")
    a("s_branch A_0")
    for q in range(0, 64, G):
        a(f"B_{q}:")
        for k in range(8):
            a(f"buffer_load_dwordx4 {vr(WMIX+4*k,4)}, v{V_L16}, {sr(S_WS,4)}, s{S_WM + k // 4} offen offset:{(k%4)*1024} sc1")
        for i in range(opt.D):
            a(f"s_sub_u32 s{S_REMB}, s{S_REMB}, 1\ns_cbranch_scc1 MAIN_DONE")
            step(a, opt, (q + i) % 64, i)
        a("s_branch MAIN_DONE")

def x_touch(a, opt, where, guard=True):
    for spec in filter(None, opt.xt.split(",")):
        w, lo, hi = map(int, spec.split(":"))
        if w != where: continue
        if guard: a(f"s_cmp_lg_u32 s{S_W0}, 0\ns_cbranch_scc1 NO_X_TOUCH_{w}")
        four = w in (6, 9)
        if w == 9: a(f"s_cmp_eq_u32 s{S_WAVE}, 4\ns_cbranch_scc1 NO_X_TOUCH_{w}")
        if opt.rot == 4:
            a(f"""s_lshr_b32 s{S_OFF}, s2, 3
            s_lshl_b32 s{S_OFF}, s{S_OFF}, {2 if four else 3}
            s_add_u32 s{S_OFF}, s{S_OFF}, s{S_WAVE}
            s_lshl_b32 s{S_OFF}, s{S_OFF}, 7
            s_add_u32 s{S_OFF}, s{S_OFF}, s{S_SEG}""")
        else:
            a(f"""s_lshl_b32 s{S_OFF}, s2, {2 if four else 3}
            s_add_u32 s{S_OFF}, s{S_OFF}, s{S_WAVE}
            s_lshl_b32 s{S_OFF}, s{S_OFF}, 7""")
        sh = 15 if opt.rot == 4 else 18
        a(f"""s_add_u32 s{S_OFF}, s{S_OFF}, {lo << sh}
        v_min_u32 v{V_TOUCH}, {(((hi - lo) << four) - 1) * 16}, v{V_L16}
        v_lshl_add_u32 v{V_TOUCH}, v{V_TOUCH}, {sh - 4 - four}, s{S_OFF}
        buffer_load_dword v{V_DUMMY}, v{V_TOUCH}, {sr(S_X,4)}, 0 offen""")
        a(f"NO_X_TOUCH_{w}:")

DEAL = ([4, 2, 4, 7, 6, 3, 1, 5, 0, 4, 2, 6, 1, 7, 3, 5, 0, 4, 7, 3, 0, 1, 5, 6, 2, 5, 0, 1, 6, 7, 3, 2, 0, 5, 3, 1, 6, 7, 2, 4],
        [0, 2, 7, 1, 4, 6, 5, 3, 6, 3, 1, 7, 4, 0, 2, 5, 4, 3, 5, 6, 7, 1, 0, 2, 7, 5, 2, 4, 3, 6, 0, 1, 5, 1, 3, 6, 4, 2, 7, 0])
def deal_bytes():
    out = []
    for t in DEAL:
        assert sorted(t) == sorted(list(range(8)) * 5)
        out += [4 * (5 * w + t[:r].count(w)) | (8 * w + t[:r].count(w)) << 8 for r, w in enumerate(t)] + [0] * 24
    return out

def zero_hist(a):
    a(f"""v_lshlrev_b32 v{T0+3}, 2, v0
    v_mov_b32 v{T0+4}, 0
    v_cmp_gt_u32 vcc, 0x100, v0
    s_and_saveexec_b64 {sr(S_T,2)}, vcc
    ds_write_b32 v{T0+3}, v{T0+4} offset:{L_HIST}
    s_mov_b64 exec, {sr(S_T,2)}""")

def kernel(opt):
    a = Asm(); D = opt.D
    st = lambda n: stamp(a, opt, n)
    a(f"""{KERN}:
    s_cmp_ge_u32 s2, 256
    s_cbranch_scc1 END""")
    if opt.probe: a("s_mov_b32 s93, 0\ns_memrealtime s[98:99]\ns_waitcnt lgkmcnt(0)\ns_mov_b32 s92, s98")
    if opt.stamps:
        for k in range(32): a(f"s_mov_b32 s{S_ST+k}, 0")
    st('start')
    a(f"""s_load_dwordx16 {sr(S_IN,16)}, s[0:1], 0
    s_load_dwordx2 {sr(S_WS,2)}, s[0:1], 80
    s_load_dwordx2 {sr(S_X,2)}, s[0:1], 0
    s_load_dwordx2 {sr(S_OUT,2)}, s[0:1], 64
    ; wave 7 of every workgroup takes 8 lines; the 32 workgroups with equal id % 8 cover 32 KiB
    s_getpc_b64 s[6:7]
CODE_HERE:
    v_lshrrev_b32 v{T0}, 6, v0
    s_lshr_b32 s5, s2, 3
    s_lshl_b32 s4, s5, 10
    v_readfirstlane_b32 s{S_WAVE}, v{T0}
    v_and_b32 v{T0+2}, 7, v0
    v_lshl_add_u32 v{T0+2}, v{T0+2}, 7, s4
    v_min_u32 v{T0+2}, END-CODE_HERE, v{T0+2}
    s_cmp_lg_u32 s{S_WAVE}, 7
    s_cbranch_scc1 NO_CODE_TOUCH
    global_load_dword v{V_DUMMY}, v{T0+2}, s[6:7]
NO_CODE_TOUCH:
    s_mul_i32 s3, s2, {EP * 4}
    v_lshl_add_u32 v{T0}, v0, 4, s3
    v_and_b32 v{T0+2}, 63, v0
    v_lshlrev_b32 v{V_L16}, 4, v{T0+2}
    v_lshlrev_b32 v{CT+5}, 2, v{T0+2}
    v_lshlrev_b32 v{T0+3}, 4, v0
    v_mov_b32 v{T0+4}, 0
    v_mov_b32 v{T0+5}, 0
    v_pk_mov_b32 {vr(ACC,2)}, {vr(T0+4,2)}, {vr(T0+4,2)}
    v_pk_mov_b32 {vr(ACC+2,2)}, {vr(T0+4,2)}, {vr(T0+4,2)}
    ds_write_b128 v{T0+3}, {vr(ACC,4)}
    s_cmp_ge_u32 s{S_WAVE}, 5
    s_waitcnt lgkmcnt(0)
    s_cbranch_scc1 NO_EDGES
    s_cmp_ge_u32 s2, {NP}
    s_cbranch_scc1 AUX_LOAD
    s_setprio 1
    global_load_dwordx4 {vr(D_,4)}, v{T0}, {sr(DST,2)}
    global_load_dwordx4 {vr(S_,4)}, v{T0}, {sr(SRC,2)}
NO_EDGES:""")
    load_epoch(a)
    st('kernargs')
    for k in range(4): a(f"global_load_dword v{CT+k}, v{CT+5}, {sr(WRAD,2)} offset:{k*256}")
    a(f"""v_and_b32 v{CT+5}, 0x7f, v{CT+5}
    global_load_dword v{CT+4}, v{CT+5}, {sr(CG,2)}
    s_and_b32 s3, s2, 0x87
    s_cmp_eq_u32 s3, 0
    s_cselect_b32 s3, 128, 0
    s_add_u32 s3, s3, DEAL_TABLE-CODE_HERE
    v_lshl_add_u32 v{V_DEAL}, v{T0+2}, 1, s3
    global_load_ushort v{V_DEAL}, v{V_DEAL}, s[6:7]
    s_mov_b32 s{S_X+2}, {N * 1024}
    s_mov_b32 s{S_X+3}, 0x20000""")
    a(f"v_lshlrev_b32 v{T0+1}, 1, v{T0}")
    a(f"""
    s_and_b32 s4, s2, 7
    s_lshl_b32 s4, s4, 5
    s_lshr_b32 s5, s2, 3
    s_or_b32 s{S_BETA}, s4, s5
    v_mov_b32 v{V_ONE}, 1
    s_mov_b32 s{S_WS+2}, {WS_END if not opt.stamps else WS_STAMP + 0x80000}
    s_mov_b32 s{S_WS+3}, 0x20000
    s_mov_b32 s{S_OUT+2}, {N * 1024}
    s_mov_b32 s{S_OUT+3}, 0x20000
    s_mov_b32 s{S_MASK}, 0xfffffc00
    s_mov_b32 s{S_W0}, 0
    s_mov_b32 s{S_L2E}, 0xbfb8aa3b
    s_mov_b32 s{S_L2E+1}, 0xbfb8aa3b
    s_mov_b32 s{S_SPIN}, {1 << 21}
    s_sub_u32 s{S_SEG}, 0, s2
    s_and_b32 s{S_SEG}, s{S_SEG}, 7
    s_mul_i32 s{S_SEG}, s{S_SEG}, {N // 8 * 1024}
    v_and_b32 v{V_GID}, 0xff, v0
    s_lshl_b32 s3, s{S_BETA}, 4
    s_add_u32 s3, s3, {WS_TAB}
    v_lshl_add_u32 v{V_POS}, v{V_GID}, 12, s3
    v_mul_u32_u24 v{V_GID}, {EP}, v{V_GID}
    v_mul_u32_u24 v{LJ+10}, 0x8000, v{V_L16}
    v_lshl_add_u32 v{LJ+10}, v{T0+2}, 3, v{LJ+10}    ; lane * 8 * 0x10001""")
    for k in range(4, 48, 2): a(f"v_pk_mov_b32 {vr(ACC+k,2)}, {vr(T0+4,2)}, {vr(T0+4,2)}")
    a("s_barrier")
    phase1(a, opt)
    a(f"""s_cmp_ge_u32 s{S_WAVE}, 4
    s_cbranch_scc1 TOTALS
    v_and_b32 v{T0+5}, 0x7ff, v{RECN}
    v_bfe_u32 v{V_LEN}, v{RECN}, 11, 11
    v_add_u32 v{V_GID}, v{V_GID}, v{T0+5}
    v_mov_b32 v{V_PRE}, v{V_LEN}""")
    scan64(a, V_PRE)
    a(f"""s_lshl_b32 s3, s{S_WAVE}, 2
    v_mov_b32 v{T0+2}, s3
    v_add_u32 v{T0+3}, 1, v{V_PRE}
    v_sub_u32 v{V_PRE}, v{V_PRE}, v{V_LEN}
    s_mov_b32 exec_lo, 0
    s_mov_b32 exec_hi, 0x80000000
    ds_write_b32 v{T0+2}, v{T0+3} offset:{L_WT}
    s_mov_b64 exec, -1
TOTALS:
    v_mov_b32 v{T0+2}, 0
TOTALS_SPIN:
    ds_read_b128 {vr(XR,4)}, v{T0+2} offset:{L_WT}
    s_waitcnt lgkmcnt(0)""")
    for k in range(4): a(f"v_readfirstlane_b32 s{4+k}, v{XR+k}")
    a(f"""s_min_u32 s3, s4, s5
    s_min_u32 s8, s6, s7
    s_min_u32 s3, s3, s8
    s_cmp_eq_u32 s3, 0
    s_cbranch_scc0 TOTALS_OK
    s_sub_u32 s{S_SPIN}, s{S_SPIN}, 1
    s_cbranch_scc0 TOTALS_SPIN
    s_endpgm
TOTALS_OK:
    s_add_u32 s5, s5, s4
    s_add_u32 s6, s6, s5
    s_add_u32 s7, s7, s6
    s_sub_u32 s{S_N}, s7, 4
    s_cmp_eq_u32 s{S_WAVE}, 1
    s_cselect_b32 s3, s4, 0
    s_cmp_eq_u32 s{S_WAVE}, 2
    s_cselect_b32 s3, s5, s3
    s_cmp_eq_u32 s{S_WAVE}, 3
    s_cselect_b32 s3, s6, s3
    s_sub_u32 s3, s3, s{S_WAVE}
    v_add_u32 v{V_PRE}, s3, v{V_PRE}
    s_cmp_lg_u32 s{S_WAVE}, 4
    s_cbranch_scc1 EPOCH_DONE
    s_cmp_lg_u32 s2, 0
    s_cbranch_scc1 EPOCH_DONE
    v_mov_b32 v{T0+4}, s{S_NLO}
    v_mov_b32 v{T0+2}, {WS_EPOCH}
    s_mov_b64 exec, 1
    global_store_dword v{T0+2}, v{T0+4}, {sr(S_WS,2)} sc0 sc1
    s_mov_b64 exec, -1
EPOCH_DONE:""")
    x_touch(a, opt, 3, False)
    st('prefix done')
    a(f"""ROUND:
    v_mov_b32 v{T0}, 0
    v_subrev_u32 v{T0+1}, s{S_W0}, v{V_PRE}
    v_mov_b32 v{T0+2}, v{V_GID}
    s_mov_b32 s3, {CAP}
    s_cmp_gt_u32 s{S_N}, {CAP}
    s_cbranch_scc1 EXPAND
    v_lshlrev_b32 v{T0+3}, 2, v{V_PRE}""")
    for j in range(16):
        a(f"v_cmpx_lt_u32 vcc, {j}, v{V_LEN}")
        if j % 2 == 0 and j >= 6: a("s_cbranch_execz EXPAND_DONE")
        a(f"ds_write_b32 v{T0+3}, v{T0+2} offset:{L_SENT + 4*j}\nv_add_u32 v{T0+2}, 1, v{T0+2}")
    a(f"""v_mov_b32 v{T0}, 16
    v_add_u32 v{T0+1}, 16, v{T0+1}
EXPAND:
    v_cmp_lt_u32 vcc, v{T0}, v{V_LEN}
    s_and_b64 exec, exec, vcc
    s_cbranch_execz EXPAND_DONE
    v_cmp_gt_u32 vcc, s3, v{T0+1}
    v_lshlrev_b32 v{T0+3}, 2, v{T0+1}
    s_and_saveexec_b64 {sr(S_T,2)}, vcc
    ds_write_b32 v{T0+3}, v{T0+2} offset:{L_SENT}
    s_mov_b64 exec, {sr(S_T,2)}
    v_add_u32 v{T0}, 1, v{T0}
    v_add_u32 v{T0+1}, 1, v{T0+1}
    v_add_u32 v{T0+2}, 1, v{T0+2}
    s_branch EXPAND
EXPAND_DONE:
    s_mov_b64 exec, -1
    s_sub_u32 s{S_NWIN}, s{S_N}, s{S_W0}
    s_min_u32 s{S_NWIN}, s{S_NWIN}, {CAP}
    v_lshlrev_b32 v{T0}, 2, v0""")
    for i in range(3):
        a(f"""v_add_u32 v{T0+1}, {512*i}, v0
              v_cmp_gt_u32 {sr(S_M+2*i,2)}, s{S_NWIN}, v{T0+1}""")
    st('list built')
    a("s_waitcnt lgkmcnt(0)\ns_barrier")
    st('list barrier')
    G = XR
    KP = TP
    for i in range(3): a(f"ds_read_b32 v{G+i}, v{T0} offset:{L_SENT + 2048*i}")
    a(f"""s_mov_b32 s{S_T+2}, 13421                         ; 32 * 2^32 / (10000 * 1024)
    s_and_b32 s{S_T+3}, s2, 7
    s_mul_i32 s{S_T+3}, s{S_T+3}, {opt.rot}           ; workgroups with different id % 8 start their sweep at different places
    s_waitcnt lgkmcnt(0)""")
    for i in range(3):
        a(f"v_lshlrev_b32 v{G+4+i}, 3, v{G+i}\nv_lshlrev_b32 v{G+i}, 4, v{G+i}")
    def key_loads(tag):
        a(f"""s_mov_b64 exec, {sr(S_M+4,2)}
        s_cbranch_execz SKIP3{tag}
        buffer_load_dwordx2 {vr(KP+4,2)}, v{G+6}, {sr(S_WS,4)}, 0 offen sc1
        SKIP3{tag}:""")
        for i in range(2):
            a(f"s_mov_b64 exec, {sr(S_M+2*i,2)}\nbuffer_load_dwordx2 {vr(KP+2*i,2)}, v{G+4+i}, {sr(S_WS,4)}, 0 offen sc1")
        a("s_mov_b64 exec, -1")
    key_loads("")
    H = G + 20
    a(f"""v_lshrrev_b32 v{T0}, 4, v{V_L16}              ; lane
    s_cmp_lg_u32 s{S_W0}, 0
    s_cbranch_scc1 KEY_WAIT
    s_cmp_ge_u32 s{S_WAVE}, 4
    s_cbranch_scc1 DEG_DONE""")
    for j in range(NLN):
        t = T0 + 1 + j % 2
        if j < 5: a(f"v_bfe_u32 v{t}, v{RECN+2}, {6*j}, 6")
        elif j == 5: a(f"v_alignbit_b32 v{t}, v{RECN+3}, v{RECN+2}, 30\nv_and_b32 v{t}, 63, v{t}")
        else: a(f"v_bfe_u32 v{t}, v{RECN+3}, {6*j-32}, 6")
        a(f"""v_lshlrev_b32 v{t}, 2, v{t}
              v_cmpx_lt_u32 vcc, {j}, v{V_LEN}
              ds_add_u32 v{t}, v{V_ONE} offset:{L_DEG}""")
    a(f"""s_mov_b64 exec, -1
DEG_DONE:
    v_lshlrev_b32 v{T0+1}, 2, v{T0}
    v_cmp_gt_u32 {sr(S_T,2)}, 40, v{T0}
    v_sub_u32 v{T0+2}, 63, v{T0}
    s_mul_i32 s10, s{S_WAVE}, 5
    s_waitcnt lgkmcnt(0)
    s_barrier
    ds_read_b32 v{H}, v{T0+1} offset:{L_DEG}
    v_add_u32 v{T0+3}, s10, v{T0}
    v_lshlrev_b32 v{T0+4}, 2, v{T0+3}
    s_waitcnt lgkmcnt(0)
    v_lshl_or_b32 v{H}, v{H}, 6, v{T0+2}
    v_cndmask_b32 v{H}, 0, v{H}, {sr(S_T,2)}
    s_nop 0""")
    for k in range(5):
        a(f"v_readlane_b32 s{S_NODE+k}, v{H}, s10")
        if k < 4: a("s_add_u32 s10, s10, 1")
    for k in range(5): a(f"v_cmp_lt_u32 {sr(S_K+2*k,2)}, s{S_NODE+k}, v{H}")
    for k in range(5): a(f"s_bcnt1_i32_b64 s{S_NODE+k}, {sr(S_K+2*k,2)}")
    for k in range(5): a(f"v_readlane_b32 s{S_NODE+k}, v{V_DEAL}, s{S_NODE+k}")
    a("s_nop 0")
    for k in range(5): a(f"v_writelane_b32 v{T0+1}, s{S_NODE+k}, {k}")
    a(f"""v_lshrrev_b32 v{T0+2}, 11, v{T0+1}
    v_bfe_u32 v{T0+5}, v{T0+1}, 8, 3
    v_lshlrev_b32 v{T0+2}, 7, v{T0+2}
    v_and_b32 v{T0+1}, 0xff, v{T0+1}
    v_lshl_or_b32 v{T0+2}, v{T0+5}, 19, v{T0+2}
    s_mov_b64 exec, 0x1f
    ds_write_b32 v{T0+1}, v{T0+3} offset:{L_INV}
    ds_write_b32 v{T0+4}, v{T0+2} offset:{L_MAP}
    s_mov_b64 exec, -1
    s_waitcnt lgkmcnt(0)
    s_barrier""")
    st('dealt')
    a(f"""KEY_WAIT:
    s_lshl_b32 s3, s{S_WAVE}, 10
    s_add_u32 s3, s3, {L_UREC}
    s_mov_b32 s9, {WS_REC}""")
    a("KEY_WAIT0:\ns_waitcnt vmcnt(0)")
    for i in range(3): a(f"v_cmp_ne_u32 {sr(S_K+2*i,2)}, s{S_NLO}, v{KP+2*i+1}")
    for i in range(3): a(f"v_and_b32 v{G+8+i}, 63, v{KP+2*i}\nv_lshlrev_b32 v{G+8+i}, 2, v{G+8+i}")
    for i in range(3): a(f"s_and_b64 {sr(S_K+2*i,2)}, {sr(S_K+2*i,2)}, {sr(S_M+2*i,2)}")
    a(f"""s_or_b64 {sr(S_K,2)}, {sr(S_K,2)}, {sr(S_K+2,2)}
    s_or_b64 {sr(S_K,2)}, {sr(S_K,2)}, {sr(S_K+4,2)}
    s_cbranch_scc0 KEYS_OK
    s_sub_u32 s{S_SPIN}, s{S_SPIN}, 1
    s_cbranch_scc1 END""")
    key_loads("R")
    a("s_branch KEY_WAIT0\nKEYS_OK:")
    st('keys arrived')
    def rec_dma(at):
        for i in (2, 0, 1):
            if opt.recat[i] != at: continue
            a(f"s_add_u32 m0, s3, {i*8192}\ns_mov_b64 exec, {sr(S_M+2*i,2)}")
            if i == 2: a("s_cbranch_execz SKIP3D")
            a(f"buffer_load_dwordx4 v{G+i}, {sr(S_WS,4)}, s9 offen sc1 lds")
            if i == 2: a("SKIP3D:")
        if at in opt.recat: a("s_mov_b64 exec, -1")
    for i in range(3): a(f"ds_read_b32 v{G+8+i}, v{G+8+i} offset:{L_MAP}")
    rec_dma(0)
    for i in range(3):
        a(f"""v_mul_hi_u32 v{G+12+i}, s{S_T+2}, v{KP+2*i}""")
        if opt.rot: a(f"v_add_u32 v{G+12+i}, s{S_T+3}, v{G+12+i}\nv_and_b32 v{G+12+i}, 31, v{G+12+i}")
        a(f"""v_add_u32 v{T0+1}, {512*i}, v0
              v_lshlrev_b32 v{T0+1}, 21, v{T0+1}
              v_lshrrev_b32 v{G+16+i}, 10, v{KP+2*i}
              v_lshl_or_b32 v{G+16+i}, v{G+16+i}, 7, v{T0+1}""")
    for i in range(3):
        a(f"""s_waitcnt lgkmcnt({2-i})
              v_lshrrev_b32 v{T0+1}, 16, v{G+8+i}
              v_and_b32 v{G+8+i}, 0x380, v{G+8+i}
              v_or_b32 v{G+16+i}, v{G+16+i}, v{T0+1}
              v_lshl_add_u32 v{G+8+i}, v{G+12+i}, 2, v{G+8+i}""")
    for i in range(3):
        a(f"s_mov_b64 exec, {sr(S_M+2*i,2)}\nds_add_rtn_u32 v{G+12+i}, v{G+8+i}, v{V_ONE} offset:{L_HIST}")
    a("s_mov_b64 exec, -1")
    rec_dma(1)
    a(f"""s_lshl_b32 s10, s{S_WAVE}, 3
    s_add_u32 s11, s10, 8
    s_and_b32 s11, s11, 63
    s_waitcnt lgkmcnt(0)
    s_barrier""")
    st('hist done')
    a(f"ds_read_b128 {vr(H,4)}, v{V_L16} offset:{L_HIST}")
    rec_dma(2)
    x_touch(a, opt, 8)
    a("s_waitcnt lgkmcnt(0)")
    scan256(a, H, H + 4)
    a(f"""ds_write_b128 v{V_L16}, {vr(H+4,4)} offset:{L_BASE}
    v_readlane_b32 s{S_START}, v{H+4}, s10
    v_readlane_b32 s{S_END}, v{H+4}, s11""")
    for i in range(3): a(f"ds_read_b32 v{G+8+i}, v{G+8+i} offset:{L_BASE}")
    a(f"""s_cmp_eq_u32 s{S_WAVE}, 7
    s_cselect_b32 s{S_END}, s{S_NWIN}, s{S_END}
    v_add_u32 v{V_POS}, s{S_START}, v{T0}
    v_lshlrev_b32 v{V_AENT}, 2, v{V_POS}
    v_add_u32 v{V_AENT}, {L_SENT}, v{V_AENT}
    s_sub_u32 s11, s{S_END}, s{S_START}
    s_max_u32 s10, s11, {D}
    s_add_u32 s10, s10, {opt.gran - 1 - D}
    s_and_b32 s{S_REM}, s10, {-opt.gran}
    s_max_u32 s10, s11, s{S_REM}
    s_sub_u32 s{S_REMB}, s10, s{S_REM}""")
    for i in range(3):
        a(f"""s_waitcnt lgkmcnt({2 if i else 2})
              v_add_lshl_u32 v{G+8+i}, v{G+8+i}, v{G+12+i}, 2
              s_mov_b64 exec, {sr(S_M+2*i,2)}
              ds_write_b32 v{G+8+i}, v{G+16+i} offset:{L_SENT}
              s_mov_b64 exec, -1""")
    a("s_waitcnt lgkmcnt(0)")
    if not opt.xpre: a("s_waitcnt vmcnt(0)")
    a("s_barrier")
    st('sorted')
    if opt.stamps: a(f"s_memtime s[100:101]\ns_waitcnt lgkmcnt(0)\ns_mov_b32 s{S_ST+30}, s100")
    meta_read_entry(a)
    a(f"""s_and_b32 s{S_WM}, s{S_WAVE}, 3
    s_lshl_b32 s{S_WM}, s{S_WM}, 13
    s_add_u32 s{S_WM}, s{S_WM}, {WS_WMIX}
    s_add_u32 s{S_WM+1}, s{S_WM}, 4096""")
    for k in range(8): a(f"v_mov_b32 v{RR+k}, 0")
    a("s_waitcnt lgkmcnt(0)")
    meta_fix_entry(a, False)
    a("s_nop 0")
    def first_rows(lo, hi):
        for e in range(lo, hi):
            a(f"""v_readlane_b32 s{S_K+e}, v{ENT}, {e}
                  s_and_b32 s{S_OFF}, s{S_K+e}, s{S_MASK}
                  buffer_load_dwordx4 {vr(XR+4*e,4)}, v{V_L16}, {sr(S_X,4)}, s{S_OFF} offen""")
    if opt.xpre:
        first_rows(0, opt.xpre)
        if ",8:" in "," + opt.xt and 2 not in opt.recat:
            a(f"s_cmp_lg_u32 s{S_W0}, 0\ns_cbranch_scc1 REC_WAIT\ns_waitcnt vmcnt({opt.xpre + 1})\ns_branch REC_IN\nREC_WAIT:")
        a(f"s_waitcnt vmcnt({opt.xpre})\nREC_IN:")
        st('recs landed')
        a("s_barrier")
    meta_read_rec(a)
    first_rows(opt.xpre, D)
    a(f"v_mov_b32 v{KEY}, v{ENT}")
    a(f"""s_waitcnt lgkmcnt(0)
    v_mov_b32 v{EF}, v{RECN+2}
    v_mov_b32 v{EF+1}, v{RECN+3}""")
    for i in range(4): a(w_mfma(i))
    a(p_mfma(0, 0)); a(p_mfma(0, 1)); a(p_mfma(1, 0))
    a("s_nop 1")
    for m in range(4): w_cvt(a, m)
    for odd in range(2):
        u, r = act_regs(0, odd)
        for h in range(2): a(act_addr(TT + 2 * odd + h, u + h))
        for h in range(2): a(act_read(r + h, TT + 2 * odd + h))
    a(f"s_waitcnt vmcnt({D-1})")
    st('first row')
    a(t_mfma(0, 0)); a(t_mfma(0, 1))
    body(a, opt)
    a(f"""MAIN_DONE:
    s_add_u32 s{S_W0}, s{S_W0}, {CAP}
    s_cmp_ge_u32 s{S_W0}, s{S_N}
    s_cbranch_scc1 ALL_DONE
    s_waitcnt vmcnt(0) lgkmcnt(0)""")
    zero_hist(a)
    a("s_waitcnt lgkmcnt(0)\ns_barrier\ns_branch ROUND\nALL_DONE:")
    st('main done')
    if opt.stamps: a(f"s_memtime s[100:101]\ns_waitcnt lgkmcnt(0)\ns_sub_u32 s{S_ST+30}, s100, s{S_ST+30}")
    PK = WPK; VOUT = UU
    a(f"""v_lshrrev_b32 v{T0+3}, 8, v{V_L16}            ; lane >> 4
    s_lshr_b32 s{S_T}, s{S_WAVE}, 2                   ; half
    s_mul_i32 s{S_T+1}, s{S_T}, 80
    v_mul_u32_u24 v{T0+1}, 20, v{T0+3}
    v_add_u32 v{T0+1}, s{S_T+1}, v{T0+1}""")
    for t in range(5): a(f"ds_read_b32 v{VOUT+t}, v{T0+1} offset:{L_INV + 4*t}")
    for sl in range(5):
        for o in range(4): a(f"v_cvt_pk_bf16_f32 v{PK+4*sl+o}, v{ACC+8*sl+o}, v{ACC+8*sl+4+o}")
    a(f"""s_mul_i32 s{S_T+1}, s{S_WAVE}, {4 * AGG_RS}
    s_add_u32 s{S_T+1}, s{S_T+1}, {L_AGG}
    v_lshrrev_b32 v{T0+4}, 2, v{V_L16}
    v_add_u32 v{T0+4}, s{S_T+1}, v{T0+4}
    v_bfe_u32 v{T0+2}, v{V_L16}, 4, 4                 ; lane & 15
    s_mul_i32 s{S_T+1}, s{S_T}, {16 * AGG_RS}
    s_add_u32 s{S_T+1}, s{S_T+1}, {L_AGG}
    v_mul_u32_u24 v{T0}, {AGG_RS}, v{T0+2}
    v_lshl_add_u32 v{T0}, v{T0+3}, 4, v{T0}
    v_add_u32 v{T0}, s{S_T+1}, v{T0}
    s_lshl_b32 s{S_T}, s{S_BETA}, 10
    s_and_b32 s{S_T+1}, s{S_WAVE}, 3
    s_lshl_b32 s{S_T+1}, s{S_T+1}, 8
    s_add_u32 s{S_T}, s{S_T}, s{S_T+1}
    v_lshl_add_u32 v{T0+2}, v{T0+2}, 4, s{S_T}
    s_waitcnt lgkmcnt(0)""")
    for t in range(5): a(f"v_lshl_add_u32 v{VOUT+t}, v{VOUT+t}, 18, v{T0+2}")
    a("s_barrier")
    st('all main done')
    AF = XR
    def wr(sl):
        for o in range(4): a(f"ds_write_b32 v{T0+4}, v{PK+4*sl+o} offset:{(32*sl + o)*AGG_RS}")
    def rd(t):
        for ks in range(4): a(f"ds_read_b128 {vr(AF+16*(t%2)+4*ks,4)}, v{T0} offset:{t*32*AGG_RS + ks*64}")
    def mm(t, waits, writes=None):
        for ks in range(4):
            if waits[ks] is not None: a(f"s_waitcnt lgkmcnt({waits[ks]})")
            for j in range(2):
                d = ACC + 8 * t + 4 * j
                a(f"v_mfma_f32_16x16x32_bf16 {vr(d,4)}, {vr(AF+16*(t%2)+4*ks,4)}, {vr(WMIX+16*j+4*ks,4)}, " + ("0" if ks == 0 else vr(d, 4)))
            if writes:
                s0, lo, hi = writes[ks]
                for n in range(lo, hi): a(f"ds_write_b32 v{T0+4}, v{PK+4*s0+n} offset:{(32*(s0 + n // 4) + n % 4)*AGG_RS}")
    def pack_store(t):
        d = ACC + 8 * t; p = RR + 4 * (t % 2)
        for j in range(4): a(f"v_cvt_pk_bf16_f32 v{p+j}, v{d+2*j}, v{d+2*j+1}")
        a(f"buffer_store_dwordx4 {vr(p,4)}, v{VOUT+t}, {sr(S_OUT,4)}, 0 offen {opt.outst}")
    wr(0); wr(1)
    a("s_waitcnt vmcnt(0) lgkmcnt(0)\ns_barrier")
    st('agg in LDS')
    rd(0); rd(1)
    mm(0, [7, 9, 11, 13], [(2, 0, 3), (2, 3, 6), (2, 6, 9), (2, 9, 12)])
    a("s_waitcnt lgkmcnt(0)\ns_barrier")
    rd(2)
    mm(1, [None] * 4); pack_store(0)
    rd(3)
    mm(2, [7, 6, 5, 4]); pack_store(1)
    rd(4)
    mm(3, [7, 6, 5, 4]); pack_store(2)
    mm(4, [3, 2, 1, 0]); pack_store(3)
    a("s_nop 3")
    pack_store(4)
    st('end')
    if opt.probe:
        a(f"""s_cmp_eq_u32 s93, 0
        s_cselect_b32 s93, s92, s93
        s_sub_u32 s93, s93, s92
        s_mul_i32 s93, s93, 4
        s_add_u32 s92, s92, s93
        s_add_u32 s92, s92, 6000
        HOLD_SPIN:
        s_memrealtime s[98:99]
        s_waitcnt lgkmcnt(0)
        s_sub_u32 s98, s98, s92
        s_cmp_lt_i32 s98, 0
        s_cbranch_scc1 HOLD_SPIN""")
    if opt.stamps:
        a("s_waitcnt vmcnt(0)")
        st('stores done 2')
        a(f"""s_lshl_b32 s10, s2, 3
        s_add_u32 s10, s10, s{S_WAVE}
        s_lshl_b32 s10, s10, 7
        s_add_u32 s10, s10, {WS_STAMP}
        v_mov_b32 v{T0}, s10
        s_sub_u32 s{S_ST+31}, s{S_END}, s{S_START}
        s_sub_u32 s{S_ST+29}, {1 << 21}, s{S_SPIN}""")
        for k in range(32): a(f"v_mov_b32 v{XR+k}, s{S_ST+k}")
        for k in range(8): a(f"buffer_store_dwordx4 {vr(XR+4*k,4)}, v{T0}, {sr(S_WS,4)}, 0 offen offset:{16*k}")
    a("END:\ns_endpgm")
    a(".p2align 6\n.type DEAL_TABLE,@object\nDEAL_TABLE:\n.short " + ", ".join(map(str, deal_bytes())) + "\n.size DEAL_TABLE, 256")
    return a.text()

def generate(opt):
    here = os.path.dirname(os.path.abspath(__file__))
    out = open(here + "/header.txt").read()
    out += f"; @launch grid=(256,1,1) block=(512,1,1) lds={LDS_BYTES}\n"
    out += f'.amdgcn_target "amdgcn-amd-amdhsa--gfx950"\n.text\n.globl {KERN}\n.p2align 8\n.type {KERN},@function\n'
    out += kernel(opt)
    out += f""".section .rodata,"a"
.p2align 6
.amdhsa_kernel {KERN}
  .amdhsa_next_free_vgpr {NVGPR}
  .amdhsa_next_free_sgpr {NSGPR if opt.stamps or opt.probe else 66}
  .amdhsa_accum_offset {(NVGPR + 3) // 4 * 4}
  .amdhsa_group_segment_fixed_size 0
  .amdhsa_kernarg_size 88
  .amdhsa_user_sgpr_count 2
  .amdhsa_user_sgpr_kernarg_segment_ptr 1
  .amdhsa_system_sgpr_workgroup_id_x 1
  .amdhsa_float_denorm_mode_32 3
.end_amdhsa_kernel
"""
    return out

def options(argv):
    p = argparse.ArgumentParser()
    p.add_argument("-o", default="/code/" + NAME + ".s")
    p.add_argument("--stamps", action="store_true")
    p.add_argument("--probe", default="")
    p.add_argument("--D", type=int, default=6)
    p.add_argument("--recat", type=lambda t: tuple(map(int, t.split(","))), default=(0, 1, 0))
    p.add_argument("--only", default="")
    p.add_argument("--rot", type=int, default=4)
    p.add_argument("--gran", type=int, default=4)
    p.add_argument("--late", type=int, default=62)
    p.add_argument("--xpre", type=int, default=2)
    p.add_argument("--xt", default="9:0:6,6:6:14,3:14:28,8:28:39")
    p.add_argument("--lsplit", type=int, default=5)
    p.add_argument("--k1st", default="sc0 sc1")
    p.add_argument("--outst", default="sc0 sc1")
    return p.parse_args(argv)

if __name__ == "__main__":
    opt = options(sys.argv[1:])
    open(opt.o, "w").write(generate(opt))
    if opt.stamps: open(opt.o + ".names", "w").write(repr(STAMPS))
    import subprocess
    here = os.path.dirname(os.path.abspath(__file__))
    r = subprocess.run([sys.executable, here + "/hazards.py", opt.o], capture_output=True, text=True).stdout
    if " 0 finding" not in r: print(r)
    r = subprocess.run([sys.executable, here + "/../cdna_unwritten_srd_check.py", opt.o], capture_output=True, text=True)
    if r.returncode: print(r.stdout, r.stderr)
```

```python
import sys, argparse, os

NAME = "gather_scatter__tensor_product_equiv_tfn__graph"
KERN = NAME + "_kernel"
N, E, C = 10000, 320000, 128
NP, EP = 250, 1280
WS_KEY = 0
WS_REC = 0x280000
WS_WMIX = 0x771000
WS_TAB = 0x780000
WS_EPOCH = WS_TAB + 256 * 4096
WS_END = WS_EPOCH + 128
WS_STAMP = 0x900000
CAP = 1472

class Asm:
    def __init__(self): self.l = []
    def __call__(self, s):
        for line in s.strip("\n").split("\n"):
            line = line.strip()
            if not line: continue
            self.l.append(line if line.endswith(":") else "    " + line)
    def text(self): return "\n".join(self.l) + "\n"

def vr(a, n=1): return f"v{a}" if n == 1 else f"v[{a}:{a+n-1}]"
def sr(a, n=1): return f"s{a}" if n == 1 else f"s[{a}:{a+n-1}]"

SCAN_STEPS = ["row_shr:1 row_mask:0xf bank_mask:0xf bound_ctrl:0", "row_shr:2 row_mask:0xf bank_mask:0xf bound_ctrl:0",
              "row_shr:4 row_mask:0xf bank_mask:0xf bound_ctrl:0", "row_shr:8 row_mask:0xf bank_mask:0xf bound_ctrl:0",
              "row_bcast:15 row_mask:0xa bank_mask:0xf", "row_bcast:31 row_mask:0xc bank_mask:0xf"]
def scan64(a, *regs):
    for c in SCAN_STEPS:
        a("s_nop 1" if len(regs) == 1 else "s_nop 0")
        for v in regs: a(f"v_add_u32_dpp v{v}, v{v}, v{v} {c}")

L_HIST = 0; L_DEG = 1024; L_WT = 1280; L_CNT = L_WT + 16
L_INV = 1344; L_MAP = 1536; L_BASE = 1792
L_SENT = L_BASE + 1024
L_UREC = L_SENT + CAP * 4
L_CG = L_UREC + CAP * 16
L_LUT = 32768
L1_HIST = L_SENT; L1_LNS = L1_HIST + 1024; L1_BASE = L1_LNS + 2048; L1_SREC = L_UREC
L1_SKEY = L_LUT + 53 * 1024
assert L_CG + 128 <= L_LUT and L1_SREC + (EP + 64) * 16 <= L_CG and L1_BASE <= 8192
NLN = 10
L_AGG = L_LUT; AGG_RS = 288
LDS_BYTES = L_LUT + 131072

V_L16 = 1
V_LEN, V_PRE, V_GID = 2, 3, 4
V_AENT, V_POS = 5, 6
V_ONE = 15
V_DEAL = 174
V_DUMMY = 167
V_TOUCH = 166
T0 = 8
ACC = 16; XR = 64; TP = 96; UU = 112; RR = 128; TT = 136; WPK = 140; WTMP = 148
KEY = 164; ENT = 165; RECN = 168; EF = 172; CONST = 176; WMIX = 188
NVGPR = 220
PE, PO, CGB = CONST, CONST + 2, CONST + 4
LJ = 128
S_NODE = 4
S_X, S_WS, S_OUT = 12, 16, 20
S_BETA, S_WAVE, S_N, S_W0, S_NWIN, S_START, S_END, S_REM, S_REMB, S_OFF, S_MASK = range(24, 35)
S_SPIN = 35
S_M = 36
S_T = 42
S_K = 48
S_IN = 40
S_JOB, S_JCNT = 62, 63
S_SEG = 61
S_NLO, S_NHI = 64, 65
S_WM = 10
S_L2E = 10
S_ST = 66
NSGPR = 102

STAMPS = []
def stamp(a, opt, name):
    if opt.probe == name: a("s_memrealtime s[98:99]\ns_waitcnt lgkmcnt(0)\ns_mov_b32 s93, s98")
    if not opt.stamps: return
    if opt.only and name not in opt.only.split(",") + ["start", "sorted", "main done", "stores done 2"]: return
    if name not in STAMPS: STAMPS.append(name)
    a(f"s_memrealtime s[98:99]\ns_waitcnt lgkmcnt(0)\ns_mov_b32 s{S_ST + STAMPS.index(name)}, s98")

S_RET = 6
def lut_sub(a):
    J, Ex, R, P = LJ, LJ + 8, LJ + 16, LJ + 24
    a(f"""LUT_SUB:
    s_lshl_b32 s3, s{S_JOB}, 25
    s_add_u32 s3, s3, 0x8000
    v_lshl_add_u32 v{J}, v{V_L16}, 15, s3""")
    for k in range(1, 8): a(f"v_add_u32 v{J+k}, 0x10000, v{J+k-1}")
    for k in range(0, 8, 2): a(f"v_pk_mul_f32 {vr(Ex+k,2)}, {vr(J+k,2)}, {sr(S_L2E,2)}")
    for k in range(8): a(f"v_exp_f32 v{Ex+k}, v{Ex+k}")
    a(f"s_lshl_b32 s3, s{S_JOB}, 10")
    for k in range(0, 8, 2): a(f"v_pk_add_f32 {vr(R+k,2)}, {vr(Ex+k,2)}, 1.0 op_sel_hi:[1,0]")
    for k in range(8): a(f"v_rcp_f32 v{R+k}, v{R+k}")
    a(f"v_add_u32 v{P+8}, s3, v{V_L16}")
    for k in range(0, 8, 2): a(f"v_pk_mul_f32 {vr(J+k,2)}, {vr(J+k,2)}, {vr(R+k,2)}")
    a(f"v_add_u32 v{P+9}, 0x10000, v{P+8}")
    for k in range(0, 8, 2): a(f"v_pk_mul_f32 {vr(Ex+k,2)}, {vr(J+k,2)}, {vr(Ex+k,2)} neg_lo:[1,0] neg_hi:[1,0]")
    for k in range(4): a(f"v_cvt_pk_bf16_f32 v{P+k}, v{J+2*k}, v{J+2*k+1}")
    for k in range(4): a(f"v_cvt_pk_bf16_f32 v{P+4+k}, v{Ex+2*k}, v{Ex+2*k+1}")
    a(f"""ds_write_b128 v{P+8}, {vr(P,4)} offset:{L_LUT}
    ds_write_b128 v{P+9}, {vr(P+4,4)} offset:{L_LUT}
    s_add_u32 s{S_JOB}, s{S_JOB}, 1
    s_sub_u32 s{S_JCNT}, s{S_JCNT}, 1
    s_cmp_lg_u32 s{S_JCNT}, 0
    s_cbranch_scc1 LUT_SUB
    s_setpc_b64 {sr(S_RET,2)}""")
def lut_jobs(a, count): a(f"s_mov_b32 s{S_JCNT}, {count}\ns_call_b64 {sr(S_RET,2)}, LUT_SUB")

def lut_plain(a, tag, region, last=None, cont=False):
    P = LJ
    for name, first, end, bias in (("L", 1, 24, 0x20000 - 0x800080), ("H", 34, 62, 0x20000)):
        if name != region: continue
        last = last or end
        if cont: a(f"s_cmp_gt_u32 s{S_JOB}, {last}\ns_cbranch_scc1 LUTP_END_{tag}")
        else: a(f"s_add_u32 s{S_JOB}, s{S_WAVE}, {first}")
        if name == "H" and not cont:
            for k in range(4): a(f"v_mov_b32 v{P+4+k}, 0x80008000")
        a(f"LUTP_{tag}{name}:")
        a(f"""s_mul_i32 s3, s{S_JOB}, {512 * 0x10001}
        s_add_u32 s3, s3, {bias & 0xffffffff}
        v_add_u32 v{P}, s3, v{P+10}
        s_lshl_b32 s3, s{S_JOB}, 10
        v_add_u32 v{P+8}, s3, v{V_L16}""")
        for k in range(1, 4): a(f"v_add_u32 v{P+k}, {k * 0x20002}, v{P}")
        a(f"v_add_u32 v{P+9}, 0x10000, v{P+8}")
        if name == "L":
            for k in range(4): a(f"v_or_b32 v{P+4+k}, 0x80008000, v{P+k}")
        a(f"""ds_write_b128 v{P+8}, {vr(P,4)} offset:{L_LUT}
        ds_write_b128 v{P+9}, {vr(P+4,4)} offset:{L_LUT}
        s_add_u32 s{S_JOB}, s{S_JOB}, {5 if name == "L" else 4}
        s_cmp_le_u32 s{S_JOB}, {last}
        s_cbranch_scc1 LUTP_{tag}{name}
        LUTP_END_{tag}:""")

def tab_issue(a): a(f"buffer_load_dwordx4 {vr(RECN,4)}, v{V_POS}, {sr(S_WS,4)}, 0 offen sc1")
def tab_check(a, younger):
    if younger: a(f"s_waitcnt vmcnt({younger})\ns_branch CHECK_TAB")
    a(f"""POLL_TAB:
    s_waitcnt vmcnt(0)
    CHECK_TAB:
    v_lshrrev_b32 v{T0+3}, 22, v{RECN}
    v_cmp_ne_u32 vcc, s{S_NLO}, v{RECN+1}
    v_cmp_ne_u32 {sr(S_T,2)}, s{S_NHI}, v{T0+3}
    s_or_b64 vcc, vcc, {sr(S_T,2)}
    s_and_b64 exec, exec, vcc
    s_cbranch_execz POLLED_TAB
    s_sub_u32 s{S_SPIN}, s{S_SPIN}, 1
    s_cbranch_scc1 END""")
    tab_issue(a)
    a("s_branch POLL_TAB\nPOLLED_TAB:\ns_mov_b64 exec, -1")

def load_epoch(a):
    a(f"""s_add_u32 s4, s{S_WS}, {WS_EPOCH}
    s_addc_u32 s5, s{S_WS+1}, 0
    s_load_dwordx2 {sr(S_NLO,2)}, s[4:5], 0""")
def make_tag(a):
    a(f"""s_add_u32 s{S_NLO}, s{S_NLO}, 1
    s_and_b32 s{S_NHI}, s{S_NHI}, 0x3ff""")

def scan256(a, H_, O_):
    a(f"""v_add_u32 v{T0+2}, v{H_}, v{H_+1}
    v_add3_u32 v{T0+2}, v{T0+2}, v{H_+2}, v{H_+3}
    v_mov_b32 v{T0+3}, v{T0+2}""")
    scan64(a, T0 + 3)
    a(f"""v_sub_u32 v{O_}, v{T0+3}, v{T0+2}
    v_add_u32 v{O_+1}, v{O_}, v{H_}
    v_add_u32 v{O_+2}, v{O_+1}, v{H_+1}
    v_add_u32 v{O_+3}, v{O_+2}, v{H_+2}""")

SRC, DST, YY, EFP, WRAD, CG, WMX = S_IN + 2, S_IN + 4, S_IN + 6, S_IN + 8, S_IN + 10, S_IN + 12, S_IN + 14
D_, S_, Y_, F_, B_, R_, H_, O_, TB = 64, 68, 72, 80, 88, 92, 96, 100, 108
CT = WMIX
def const_sub(a):
    a(f"""CONST_SUB:
    ds_write_b32 v{CT+5}, v{CT+4} offset:{L_CG}
    v_lshrrev_b32 v{CT+5}, 3, v{V_L16}
    v_and_b32 v{CT+5}, 24, v{CT+5}
    s_mov_b32 s4, 0x05040100
    s_mov_b32 s5, 0x07060302""")
    for i in range(4): a(f"ds_read_b64_tr_b16 {vr(CGB+2*i,2)}, v{CT+5} offset:{L_CG + 32*i}")
    for u in range(2):
        a(f"v_perm_b32 v{PE+u}, v{CT+1+2*u}, v{CT+2*u}, s4\nv_perm_b32 v{PO+u}, v{CT+1+2*u}, v{CT+2*u}, s5")
    a(f"s_setpc_b64 {sr(S_RET,2)}")
def const_finish(a): a(f"s_call_b64 {sr(S_RET,2)}, CONST_SUB")

def load_yf(a):
    a(f"""global_load_dwordx4 {vr(Y_,4)}, v{T0+1}, {sr(YY,2)}
    global_load_dwordx4 {vr(Y_+4,4)}, v{T0+1}, {sr(YY,2)} offset:16
    global_load_dwordx4 {vr(F_,4)}, v{T0+1}, {sr(EFP,2)}
    global_load_dwordx4 {vr(F_+4,4)}, v{T0+1}, {sr(EFP,2)} offset:16""")

def phase1(a, opt):
    st = lambda n: stamp(a, opt, n)
    WS = sr(S_WS, 2); FL = opt.k1st
    a(f"""s_cmp_ge_u32 s{S_WAVE}, 5
    s_cbranch_scc1 HELP""")
    lut_plain(a, "W0", "L", last=opt.lsplit)
    a(f"""s_cmp_ge_u32 s2, {NP}
    s_cbranch_scc1 AUX""")
    load_yf(a)
    st('jobs A')
    a("s_waitcnt vmcnt(11)")
    st('dst arrived')
    for k in range(4):
        a(f"""v_and_b32 v{B_+k}, 0xff, v{D_+k}
              v_lshlrev_b32 v{B_+k}, 2, v{B_+k}
              ds_add_rtn_u32 v{R_+k}, v{B_+k}, v{V_ONE} offset:{L1_HIST}""")
    a("s_waitcnt vmcnt(10)")
    for k in range(4):
        a(f"""v_lshrrev_b32 v{D_+k}, 8, v{D_+k}
              v_lshl_or_b32 v{TB+2*k}, v{S_+k}, 10, v{D_+k}""")
    a(f"""s_mov_b32 s9, {L1_SKEY}
    s_waitcnt lgkmcnt(0)
    s_barrier
    ds_read_b128 {vr(H_,4)}, v{V_L16} offset:{L1_HIST}""")
    make_tag(a)
    for k in range(4): a(f"v_mov_b32 v{TB+2*k+1}, s{S_NLO}")
    a("v_mov_b32 v119, 0")
    for k in range(4):
        a(f"""v_cmp_gt_u32 vcc, {NLN}, v{R_+k}
              v_mul_u32_u24 v116, 6, v{R_+k}
              v_lshlrev_b32 v117, 1, v{B_+k}
              v_cndmask_b32 v118, 0, v{D_+k}, vcc
              v_lshlrev_b64 {vr(120+2*(k%2),2)}, v116, v[118:119]
              ds_or_b64 v117, {vr(120+2*(k%2),2)} offset:{L1_LNS}""")
    a("s_waitcnt lgkmcnt(4)")
    scan256(a, H_, O_)
    a(f"ds_write_b128 v{V_L16}, {vr(O_,4)} offset:{L1_BASE}")
    for k in range(4): a(f"ds_read_b32 v{H_+k}, v{B_+k} offset:{L1_BASE}")
    for k in range(4):
        a(f"""s_waitcnt lgkmcnt(3)
              v_add_u32 v{R_+k}, v{R_+k}, v{H_+k}
              v_lshl_add_u32 v{B_+k}, v{R_+k}, 3, s9
              ds_write_b64 v{B_+k}, {vr(TB+2*k,2)}""")
    for k in range(4):
        a(f"v_lshlrev_b32 v{R_+k}, 4, v{R_+k}\nv_add_u32 v{R_+k}, {L1_SREC}, v{R_+k}")
    a("s_waitcnt lgkmcnt(0)\ns_barrier")
    st('keys binned')
    a("s_waitcnt vmcnt(0)")
    x_touch(a, opt, 9, False)
    for k in range(4):
        a(f"ds_write2_b64 v{R_+k}, {vr(Y_+2*k,2)}, {vr(F_+2*k,2)} offset0:0 offset1:1")
    st('recs binned')
    a("BINNED:\ns_setprio 0")
    a(f"s_waitcnt lgkmcnt(0)\ns_barrier\nv_mov_b32 v{V_LEN}, 0")
    const_finish(a)
    lut_plain(a, "W", "L", cont=True)
    a(f"s_cmp_eq_u32 s{S_WAVE}, 4\ns_cbranch_scc1 WAVE4")
    lut_plain(a, "U", "H", last=opt.late)
    tab_issue(a)
    x_touch(a, opt, 6, False)
    st('tab issued')
    if opt.late < 62: lut_plain(a, "V", "H", cont=True)
    tab_check(a, ("," + opt.xt).count(",6:"))
    st('tab arrived')
    a("s_branch TAB_DONE")
    lut_sub(a)
    const_sub(a)
    a("HELP:")
    a(f"""s_sub_u32 s8, s{S_WAVE}, 5
    s_mul_i32 s4, s8, 3072
    s_cmp_eq_u32 s8, 1
    s_cselect_b32 s4, 4096, s4
    s_mul_i32 s3, s2, {EP * 8}
    s_add_u32 s3, s3, s4
    v_add_u32 v{T0}, s3, v{V_L16}
    s_add_u32 s4, s4, {L1_SKEY}
    v_add_u32 v{T0+1}, s4, v{V_L16}
    s_mul_i32 s4, s8, 7168
    s_mul_i32 s3, s2, {EP * 16}
    s_add_u32 s3, s3, s4
    s_add_u32 s3, s3, {WS_REC}
    v_add_u32 v{T0+4}, s3, v{V_L16}
    v_add_u32 v{T0+5}, s4, v{V_L16}
    s_lshl_b32 s3, s2, 12
    s_add_u32 s3, s3, {WS_TAB}
    v_add_u32 v117, s3, v{V_L16}
    s_waitcnt lgkmcnt(0)""")
    make_tag(a)
    st('help jobs')
    a(f"""s_barrier
    s_cmp_eq_u32 s{S_WAVE}, 6
    s_cbranch_scc1 ROW
    s_cmp_eq_u32 s{S_WAVE}, 7
    s_cselect_b32 s{S_JOB}, 63, 0""")
    lut_jobs(a, 1)
    a("s_waitcnt vmcnt(0)")
    const_finish(a)
    a(f"""v_mov_b32 v{T0+2}, {0x7f80 * 2}
    v_mov_b32 v{T0+3}, 0x7f80
    s_cmp_lg_u32 s{S_WAVE}, 7
    s_cbranch_scc1 NO_ROW
    ds_write_b16 v{T0+2}, v{T0+3} offset:{L_LUT}
    s_branch NO_ROW
ROW:
    v_lshrrev_b32 v116, 2, v{V_L16}""")
    QT, HH, SS = 84, 100, 104
    for m in range(4): a(f"ds_read_b32 v{HH+m}, v116 offset:{L1_HIST + 256*m}")
    a(f"""s_lshl_b32 s3, s2, 12
    s_add_u32 s3, s3, {WS_TAB}
    v_add_u32 v117, s3, v{V_L16}
    v_lshrrev_b32 v116, 1, v{V_L16}
    s_lshl_b32 s3, s{S_NHI}, 22
    s_waitcnt lgkmcnt(0)""")
    for m in range(4): a(f"v_mov_b32 v{SS+m}, v{HH+m}")
    scan64(a, SS, SS + 1, SS + 2, SS + 3)
    a(f"""v_readlane_b32 s4, v{SS}, 63
    v_readlane_b32 s5, v{SS+1}, 63
    v_readlane_b32 s9, v{SS+2}, 63""")
    for m in range(4): a(f"v_sub_u32 v{SS+m}, v{SS+m}, v{HH+m}")
    a(f"""s_add_u32 s5, s5, s4
    s_add_u32 s9, s9, s5
    v_add_u32 v{SS+1}, s4, v{SS+1}
    v_add_u32 v{SS+2}, s5, v{SS+2}
    v_add_u32 v{SS+3}, s9, v{SS+3}""")
    for m in range(4):
        a(f"""v_lshl_or_b32 v{QT+4*m}, v{HH+m}, 11, v{SS+m}
              v_or_b32 v{QT+4*m}, s3, v{QT+4*m}
              v_mov_b32 v{QT+4*m+1}, s{S_NLO}""")
    a("s_waitcnt vmcnt(0)")
    const_finish(a)
    a(f"""NO_ROW:
    s_barrier
    s_cmp_lg_u32 s{S_WAVE}, 6
    s_cbranch_scc1 ROW_DONE""")
    for m in range(4): a(f"ds_read_b64 {vr(QT+4*m+2,2)}, v116 offset:{L1_LNS + 512*m}")
    for m in range(4): a(f"s_waitcnt lgkmcnt({3-m})\nglobal_store_dwordx4 v117, {vr(QT+4*m,4)}, {WS} offset:{1024*m} sc0 sc1")
    st('table published')
    a("ROW_DONE:")
    for k in range(4): a(f"ds_read_b128 {vr(64+4*k,4)}, v{T0+1} offset:{1024*k}")
    a(f"""v_mov_b32 v{V_LEN}, 0
    s_add_u32 s{S_JOB}, s8, s8                       ; jobs 27, 28 / 29, 30, 31 / 32, 33
    s_add_u32 s{S_JOB}, s{S_JOB}, 27
    s_cmp_eq_u32 s8, 2
    s_addc_u32 s{S_JOB}, s{S_JOB}, 0
    s_cmp_eq_u32 s8, 1
    s_cselect_b32 s{S_JCNT}, 3, 2
    s_waitcnt lgkmcnt(0)
    s_barrier
    s_cmp_ge_u32 s2, {NP}
    s_cbranch_scc1 RECS_STORED""")
    for k in range(7): a(f"ds_read_b128 {vr(84+4*k,4)}, v{T0+5} offset:{L1_SREC + 1024*k}")
    for k in range(7):
        if k == 4: a(f"v_add_u32 v{T0+4}, 4096, v{T0+4}")
        if k == 6: a(f"s_cmp_eq_u32 s8, 2\ns_cbranch_scc1 RECS_STORED")
        a(f"s_waitcnt lgkmcnt({6-k})\nglobal_store_dwordx4 v{T0+4}, {vr(84+4*k,4)}, {WS} offset:{(1024*k) % 4096} {FL}")
    a(f"""RECS_STORED:
    s_call_b64 {sr(S_RET,2)}, LUT_SUB
    s_cmp_ge_u32 s2, {NP}
    s_cbranch_scc1 TAB_DONE
    v_mov_b32 v{T0+2}, 0
    s_waitcnt vmcnt(0)
    s_mov_b64 exec, 1
    ds_add_u32 v{T0+2}, v{V_ONE} offset:{L_CNT}
    s_mov_b64 exec, -1
WAIT_ACK:
    ds_read_b32 v{T0+3}, v{T0+2} offset:{L_CNT}
    s_waitcnt lgkmcnt(0)
    v_readfirstlane_b32 s3, v{T0+3}
    s_cmp_eq_u32 s3, 3
    s_cbranch_scc0 WAIT_ACK""")
    st('recs acked')
    for k in range(4):
        if k == 2: a(f"s_cmp_eq_u32 s8, 1\ns_cbranch_scc1 KEYS_OUT")
        a(f"global_store_dwordx4 v{T0}, {vr(64+4*k,4)}, {WS} offset:{1024*k} {FL}")
    a("KEYS_OUT:")
    x_touch(a, opt, 5, False)
    if opt.kack: a(f"s_waitcnt vmcnt({(',' + opt.xt).count(',5:')})")
    a("s_branch TAB_DONE")
    a(f"""AUX_LOAD:
    s_sub_u32 s4, s2, {NP}
    s_cmp_ge_u32 s4, 4
    s_cbranch_scc1 NO_EDGES
    s_cmp_ge_u32 s{S_WAVE}, 4
    s_cbranch_scc1 NO_EDGES
    s_lshl_b32 s5, s{S_WAVE}, 13
    s_lshl_b32 s8, s4, 6
    s_add_u32 s5, s5, s8
    v_lshrrev_b32 v80, 8, v{V_L16}
    v_lshlrev_b32 v80, 11, v80
    v_bfe_u32 v81, v{V_L16}, 4, 4
    v_lshl_add_u32 v80, v81, 2, v80
    v_add_u32 v80, s5, v80""")
    for t in range(8): a(f"global_load_dword v{64+t}, v80, {sr(WMX,2)} offset:{t*256}")
    a(f"""s_branch NO_EDGES
AUX:
    s_cmp_ge_u32 s2, {NP + 4}
    s_cbranch_scc1 AUX_DONE
    s_cmp_ge_u32 s{S_WAVE}, 4
    s_cbranch_scc1 AUX_DONE
    s_sub_u32 s4, s2, {NP}
    s_lshl_b32 s5, s4, 13
    s_lshl_b32 s8, s{S_WAVE}, 10
    s_add_u32 s5, s5, s8
    s_add_u32 s5, s5, {WS_WMIX}
    v_add_u32 v81, s5, v{V_L16}
    s_mov_b32 s4, 0x05040100
    s_mov_b32 s5, 0x07060302
    s_waitcnt vmcnt(6)""")
    for u in range(4):
        a(f"v_perm_b32 v{72+u}, v{65+2*u}, v{64+2*u}, s4\nv_perm_b32 v{76+u}, v{65+2*u}, v{64+2*u}, s5")
    a(f"""global_store_dwordx4 v81, v[72:75], {WS} {FL}
    v_add_u32 v81, 4096, v81
    global_store_dwordx4 v81, v[76:79], {WS} {FL}
AUX_DONE:
    s_waitcnt lgkmcnt(0)""")
    make_tag(a)
    a(f"""s_barrier
    s_waitcnt vmcnt(0)
    s_barrier
    s_branch BINNED
WAVE4:
    s_mov_b32 s{S_JOB}, 25""")
    lut_jobs(a, 2)
    a("TAB_DONE:")

def mfma4(d, a_, b, c, blk=None):
    cc = "0" if c is None else vr(c, 4)
    return f"v_mfma_f32_4x4x4_16b_bf16 {vr(d,4)}, {vr(a_,2)}, {vr(b,2)}, {cc}" + ("" if blk is None else f" cbsz:4 abid:{blk}")
def p_mfma(g, odd):
    return mfma4(UU + 8 * (g % 2) + 4 * odd, EF, PO if odd else PE, None, g % 16)
def t_mfma(e, odd):
    return mfma4(TP + 8 * (e % 2) + 4 * odd, WPK + 2 * (e % 4), XR + 4 * (e % 8) + 2 * odd, None, (e % 64) // 4)
def act_regs(eb, odd):
    return UU + 8 * ((eb // 4) % 2) + 4 * odd + eb % 4, RR + 4 * ((eb // 2) % 2) + 2 * odd
def act_addr(t, u):
    return f"v_lshlrev_b32_sdwa v{t}, v{V_ONE}, v{u} dst_sel:DWORD dst_unused:UNUSED_PAD src0_sel:DWORD src1_sel:WORD_1"
def act_read(r, t): return f"ds_read_u16_d16_hi v{r}, v{t} offset:{L_LUT}"
def fma4(a, q):
    h = q % 2
    a(f"s_set_gpr_idx_on s{S_K + q % 16}, 0xc")
    for odd in range(2):
        r = RR + 4 * ((q // 2) % 2) + 2 * odd
        for o in (0, 2):
            acc = ACC + 4 * odd + o; tp = TP + 8 * (q % 2) + 4 * odd + o
            a(f"v_pk_fma_f32 {vr(acc,2)}, {vr(r,2)}, {vr(tp,2)}, {vr(acc,2)} op_sel:[{h},0,0] op_sel_hi:[{h},1,1]")
    a("s_set_gpr_idx_off")
def meta_read_entry(a): a(f"ds_read_b32 v{ENT}, v{V_AENT}")
def meta_fix_entry(a, rec=True):
    a(f"""v_cmp_gt_u32 vcc, s{S_END}, v{V_POS}
          v_add_u32 v{V_POS}, 64, v{V_POS}
          v_add_u32 v{V_AENT}, 256, v{V_AENT}
          v_cndmask_b32 v{ENT}, 40, v{ENT}, vcc
          v_lshrrev_b32 v{T0}, 21, v{ENT}
          v_lshlrev_b32 v{T0}, 4, v{T0}
          v_lshlrev_b32 v{T0+1}, 3, v{ENT}""")
    if rec: meta_read_rec(a)
    a(f"""v_and_b32 v{T0+1}, 0xfffc00, v{T0+1}
          v_and_or_b32 v{ENT}, v{ENT}, 56, v{T0+1}""")
def meta_read_rec(a): a(f"ds_read_b128 {vr(RECN,4)}, v{T0} offset:{L_UREC}")
def w_mfma(i): return mfma4(WTMP + 4 * i, RECN, CGB + 2 * i, None)
def w_cvt(a, m):
    a(f"""v_cvt_pk_bf16_f32 v{WPK+2*m}, v{WTMP+m}, v{WTMP+4+m}
          v_cvt_pk_bf16_f32 v{WPK+2*m+1}, v{WTMP+8+m}, v{WTMP+12+m}""")

def step(a, opt, q, drain=None):
    D = opt.D; loads = drain is None
    eb = q + 2 - q % 2; odd = q % 2
    u, r = act_regs(eb, odd); t = TT + 2 * odd
    g, ur = (q + 6) // 4, (q + 6) % 4
    if ur % 2 == 0: a(p_mfma(g, ur // 2))
    elif 40 <= q < 48: a(w_mfma((q - 40) // 2))
    a(act_addr(t, u))
    if loads: a(f"s_waitcnt vmcnt({D - 2})")
    elif D - 2 - drain >= 0: a(f"s_waitcnt vmcnt({8 + D - 2 - drain})")
    a(t_mfma(q + 1, 0))
    if loads: a(f"v_readlane_b32 s{S_K + (q + D) % 16}, v{KEY if q + D < 64 else ENT}, {(q + D) % 64}")
    else:     a("s_nop 0")
    a(t_mfma(q + 1, 1))
    a(act_addr(t + 1, u + 1))
    a(act_read(r, t)); a(act_read(r + 1, t + 1))
    if q >= 60: w_cvt(a, q - 60)
    if loads:
        a(f"s_and_b32 s{S_OFF}, s{S_K + (q + D) % 16}, s{S_MASK}")
        a(f"buffer_load_dwordx4 {vr(XR + 4 * ((q + D) % 8), 4)}, v{V_L16}, {sr(S_X,4)}, s{S_OFF} offen")
    if q % 2 == 0: a("s_waitcnt lgkmcnt(2)")
    fma4(a, q)
    if loads and q == 8: meta_read_entry(a)
    if loads and q == 12: meta_fix_entry(a)
    if q == 57: a(f"v_mov_b32 v{EF}, v{RECN+2}\nv_mov_b32 v{EF+1}, v{RECN+3}\ns_nop 1")
    if loads and q == 63: a(f"v_mov_b32 v{KEY}, v{ENT}")

def body(a, opt):
    G = opt.gran
    for q in range(64):
        if q % G == 0: a(f"A_{q}:\ns_sub_u32 s{S_REM}, s{S_REM}, {G}\ns_cbranch_scc1 B_{q}")
        step(a, opt, q)
    if opt.stamps and not opt.only:
        STAMPS.extend(("batch 1", "batch 2")); k = S_ST + len(STAMPS) - 2
        a(f"""s_memrealtime s[98:99]
        s_waitcnt lgkmcnt(0)
        s_cmp_eq_u32 s{k}, 0
        s_cselect_b32 s99, 0, s98
        s_cselect_b32 s{k}, s98, s{k}
        s_cmp_eq_u32 s{k+1}, 0
        s_cselect_b32 s{k+1}, s99, s{k+1}""")
    if opt.probe == "batch 1":
        a("s_memrealtime s[98:99]\ns_waitcnt lgkmcnt(0)\ns_cmp_eq_u32 s93, 0\ns_cselect_b32 s93, s98, s93")
    a("s_branch A_0")
    for q in range(0, 64, G):
        a(f"B_{q}:")
        for k in range(8):
            a(f"buffer_load_dwordx4 {vr(WMIX+4*k,4)}, v{V_L16}, {sr(S_WS,4)}, s{S_WM + k // 4} offen offset:{(k%4)*1024} sc1")
        for i in range(opt.D):
            a(f"s_sub_u32 s{S_REMB}, s{S_REMB}, 1\ns_cbranch_scc1 MAIN_DONE")
            step(a, opt, (q + i) % 64, i)
        a("s_branch MAIN_DONE")

def x_touch(a, opt, where, guard=True):
    for spec in filter(None, opt.xt.split(",")):
        w, lo, hi = map(int, spec.split(":"))
        if w != where: continue
        if guard: a(f"s_cmp_lg_u32 s{S_W0}, 0\ns_cbranch_scc1 NO_X_TOUCH_{w}")
        if w == 5:
            a(f"""s_lshr_b32 s{S_OFF}, s2, 3
            s_mul_i32 s{S_OFF}, s{S_OFF}, 3
            s_add_u32 s{S_OFF}, s{S_OFF}, s8
            s_lshl_b32 s{S_OFF}, s{S_OFF}, 7
            s_add_u32 s{S_OFF}, s{S_OFF}, s{S_SEG}
            s_add_u32 s{S_OFF}, s{S_OFF}, {lo << 15}
            v_min_u32 v{V_TOUCH}, {(-(-(hi - lo) * 8 // 3) - 1) * 16}, v{V_L16}
            v_mul_u32_u24 v{V_TOUCH}, 768, v{V_TOUCH}
            buffer_load_dword v{V_DUMMY}, v{V_TOUCH}, {sr(S_X,4)}, s{S_OFF} offen""")
            continue
        four = w in (6, 9)
        if w == 9: a(f"s_cmp_eq_u32 s{S_WAVE}, 4\ns_cbranch_scc1 NO_X_TOUCH_{w}")
        if opt.rot == 4:
            a(f"""s_lshr_b32 s{S_OFF}, s2, 3
            s_lshl_b32 s{S_OFF}, s{S_OFF}, {2 if four else 3}
            s_add_u32 s{S_OFF}, s{S_OFF}, s{S_WAVE}
            s_lshl_b32 s{S_OFF}, s{S_OFF}, 7
            s_add_u32 s{S_OFF}, s{S_OFF}, s{S_SEG}""")
        else:
            a(f"""s_lshl_b32 s{S_OFF}, s2, {2 if four else 3}
            s_add_u32 s{S_OFF}, s{S_OFF}, s{S_WAVE}
            s_lshl_b32 s{S_OFF}, s{S_OFF}, 7""")
        sh = 15 if opt.rot == 4 else 18
        a(f"""s_add_u32 s{S_OFF}, s{S_OFF}, {lo << sh}
        v_min_u32 v{V_TOUCH}, {(((hi - lo) << four) - 1) * 16}, v{V_L16}
        v_lshl_add_u32 v{V_TOUCH}, v{V_TOUCH}, {sh - 4 - four}, s{S_OFF}
        buffer_load_dword v{V_DUMMY}, v{V_TOUCH}, {sr(S_X,4)}, 0 offen""")
        a(f"NO_X_TOUCH_{w}:")

DEAL = ([4, 2, 4, 7, 6, 3, 1, 5, 0, 4, 2, 6, 1, 7, 3, 5, 0, 4, 7, 3, 0, 1, 5, 6, 2, 5, 0, 1, 6, 7, 3, 2, 0, 5, 3, 1, 6, 7, 2, 4],
        [0, 2, 7, 1, 4, 6, 5, 3, 6, 3, 1, 7, 4, 0, 2, 5, 4, 3, 5, 6, 7, 1, 0, 2, 7, 5, 2, 4, 3, 6, 0, 1, 5, 1, 3, 6, 4, 2, 7, 0])
def deal_bytes():
    out = []
    for t in DEAL:
        assert sorted(t) == sorted(list(range(8)) * 5)
        out += [4 * (5 * w + t[:r].count(w)) | (8 * w + t[:r].count(w)) << 8 for r, w in enumerate(t)] + [0] * 24
    return out

def zero_hist(a):
    a(f"""v_lshlrev_b32 v{T0+3}, 2, v0
    v_mov_b32 v{T0+4}, 0
    v_cmp_gt_u32 vcc, 0x100, v0
    s_and_saveexec_b64 {sr(S_T,2)}, vcc
    ds_write_b32 v{T0+3}, v{T0+4} offset:{L_HIST}
    s_mov_b64 exec, {sr(S_T,2)}""")

def kernel(opt):
    a = Asm(); D = opt.D
    st = lambda n: stamp(a, opt, n)
    a(f"""{KERN}:
    s_cmp_ge_u32 s2, 256
    s_cbranch_scc1 END""")
    if opt.probe: a("s_mov_b32 s93, 0\ns_memrealtime s[98:99]\ns_waitcnt lgkmcnt(0)\ns_mov_b32 s92, s98")
    if opt.stamps:
        for k in range(32): a(f"s_mov_b32 s{S_ST+k}, 0")
    st('start')
    a(f"""s_load_dwordx16 {sr(S_IN,16)}, s[0:1], 0
    s_load_dwordx2 {sr(S_WS,2)}, s[0:1], 80
    s_load_dwordx2 {sr(S_X,2)}, s[0:1], 0
    s_load_dwordx2 {sr(S_OUT,2)}, s[0:1], 64
    ; wave 7 of every workgroup takes 8 lines; the 32 workgroups with equal id % 8 cover 32 KiB
    s_getpc_b64 s[6:7]
CODE_HERE:
    v_lshrrev_b32 v{T0}, 6, v0
    s_lshr_b32 s5, s2, 3
    s_lshl_b32 s4, s5, 10
    v_readfirstlane_b32 s{S_WAVE}, v{T0}
    v_and_b32 v{T0+2}, 7, v0
    v_lshl_add_u32 v{T0+2}, v{T0+2}, 7, s4
    v_min_u32 v{T0+2}, END-CODE_HERE, v{T0+2}
    s_cmp_lg_u32 s{S_WAVE}, 7
    s_cbranch_scc1 NO_CODE_TOUCH
    global_load_dword v{V_DUMMY}, v{T0+2}, s[6:7]
NO_CODE_TOUCH:
    s_mul_i32 s3, s2, {EP * 4}
    v_lshl_add_u32 v{T0}, v0, 4, s3
    v_and_b32 v{T0+2}, 63, v0
    v_lshlrev_b32 v{V_L16}, 4, v{T0+2}
    v_lshlrev_b32 v{CT+5}, 2, v{T0+2}
    v_lshlrev_b32 v{T0+3}, 4, v0
    v_mov_b32 v{T0+4}, 0
    v_mov_b32 v{T0+5}, 0
    v_pk_mov_b32 {vr(ACC,2)}, {vr(T0+4,2)}, {vr(T0+4,2)}
    v_pk_mov_b32 {vr(ACC+2,2)}, {vr(T0+4,2)}, {vr(T0+4,2)}
    ds_write_b128 v{T0+3}, {vr(ACC,4)}
    s_cmp_ge_u32 s{S_WAVE}, 5
    s_waitcnt lgkmcnt(0)
    s_cbranch_scc1 NO_EDGES
    s_cmp_ge_u32 s2, {NP}
    s_cbranch_scc1 AUX_LOAD
    s_setprio 1
    global_load_dwordx4 {vr(D_,4)}, v{T0}, {sr(DST,2)}
    global_load_dwordx4 {vr(S_,4)}, v{T0}, {sr(SRC,2)}
NO_EDGES:""")
    load_epoch(a)
    st('kernargs')
    for k in range(4): a(f"global_load_dword v{CT+k}, v{CT+5}, {sr(WRAD,2)} offset:{k*256}")
    a(f"""v_and_b32 v{CT+5}, 0x7f, v{CT+5}
    global_load_dword v{CT+4}, v{CT+5}, {sr(CG,2)}
    s_and_b32 s3, s2, 0x87
    s_cmp_eq_u32 s3, 0
    s_cselect_b32 s3, 128, 0
    s_add_u32 s3, s3, DEAL_TABLE-CODE_HERE
    v_lshl_add_u32 v{V_DEAL}, v{T0+2}, 1, s3
    global_load_ushort v{V_DEAL}, v{V_DEAL}, s[6:7]
    s_mov_b32 s{S_X+2}, {N * 1024}
    s_mov_b32 s{S_X+3}, 0x20000""")
    a(f"v_lshlrev_b32 v{T0+1}, 1, v{T0}")
    a(f"""
    s_and_b32 s4, s2, 7
    s_lshl_b32 s4, s4, 5
    s_lshr_b32 s5, s2, 3
    s_or_b32 s{S_BETA}, s4, s5
    v_mov_b32 v{V_ONE}, 1
    s_mov_b32 s{S_WS+2}, {WS_END if not opt.stamps else WS_STAMP + 0x80000}
    s_mov_b32 s{S_WS+3}, 0x20000
    s_mov_b32 s{S_OUT+2}, {N * 1024}
    s_mov_b32 s{S_OUT+3}, 0x20000
    s_mov_b32 s{S_MASK}, 0xfffffc00
    s_mov_b32 s{S_W0}, 0
    s_mov_b32 s{S_L2E}, 0xbfb8aa3b
    s_mov_b32 s{S_L2E+1}, 0xbfb8aa3b
    s_mov_b32 s{S_SPIN}, {1 << 21}
    s_sub_u32 s{S_SEG}, 0, s2
    s_and_b32 s{S_SEG}, s{S_SEG}, 7
    s_mul_i32 s{S_SEG}, s{S_SEG}, {N // 8 * 1024}
    v_and_b32 v{V_GID}, 0xff, v0
    s_lshl_b32 s3, s{S_BETA}, 4
    s_add_u32 s3, s3, {WS_TAB}
    v_lshl_add_u32 v{V_POS}, v{V_GID}, 12, s3
    v_mul_u32_u24 v{V_GID}, {EP}, v{V_GID}
    v_mul_u32_u24 v{LJ+10}, 0x8000, v{V_L16}
    v_lshl_add_u32 v{LJ+10}, v{T0+2}, 3, v{LJ+10}    ; lane * 8 * 0x10001""")
    for k in range(4, 48, 2): a(f"v_pk_mov_b32 {vr(ACC+k,2)}, {vr(T0+4,2)}, {vr(T0+4,2)}")
    a("s_barrier")
    phase1(a, opt)
    a(f"""s_cmp_ge_u32 s{S_WAVE}, 4
    s_cbranch_scc1 TOTALS
    v_and_b32 v{T0+5}, 0x7ff, v{RECN}
    v_bfe_u32 v{V_LEN}, v{RECN}, 11, 11
    v_add_u32 v{V_GID}, v{V_GID}, v{T0+5}
    v_mov_b32 v{V_PRE}, v{V_LEN}""")
    scan64(a, V_PRE)
    a(f"""s_lshl_b32 s3, s{S_WAVE}, 2
    v_mov_b32 v{T0+2}, s3
    v_add_u32 v{T0+3}, 1, v{V_PRE}
    v_sub_u32 v{V_PRE}, v{V_PRE}, v{V_LEN}
    s_mov_b32 exec_lo, 0
    s_mov_b32 exec_hi, 0x80000000
    ds_write_b32 v{T0+2}, v{T0+3} offset:{L_WT}
    s_mov_b64 exec, -1
TOTALS:
    v_mov_b32 v{T0+2}, 0
TOTALS_SPIN:
    ds_read_b128 {vr(XR,4)}, v{T0+2} offset:{L_WT}
    s_waitcnt lgkmcnt(0)""")
    for k in range(4): a(f"v_readfirstlane_b32 s{4+k}, v{XR+k}")
    a(f"""s_min_u32 s3, s4, s5
    s_min_u32 s8, s6, s7
    s_min_u32 s3, s3, s8
    s_cmp_eq_u32 s3, 0
    s_cbranch_scc0 TOTALS_OK
    s_sub_u32 s{S_SPIN}, s{S_SPIN}, 1
    s_cbranch_scc0 TOTALS_SPIN
    s_endpgm
TOTALS_OK:
    s_add_u32 s5, s5, s4
    s_add_u32 s6, s6, s5
    s_add_u32 s7, s7, s6
    s_sub_u32 s{S_N}, s7, 4
    s_cmp_eq_u32 s{S_WAVE}, 1
    s_cselect_b32 s3, s4, 0
    s_cmp_eq_u32 s{S_WAVE}, 2
    s_cselect_b32 s3, s5, s3
    s_cmp_eq_u32 s{S_WAVE}, 3
    s_cselect_b32 s3, s6, s3
    s_sub_u32 s3, s3, s{S_WAVE}
    v_add_u32 v{V_PRE}, s3, v{V_PRE}
    s_cmp_lg_u32 s{S_WAVE}, 4
    s_cbranch_scc1 EPOCH_DONE
    s_cmp_lg_u32 s2, 0
    s_cbranch_scc1 EPOCH_DONE
    v_mov_b32 v{T0+4}, s{S_NLO}
    v_mov_b32 v{T0+2}, {WS_EPOCH}
    s_mov_b64 exec, 1
    global_store_dword v{T0+2}, v{T0+4}, {sr(S_WS,2)} sc0 sc1
    s_mov_b64 exec, -1
EPOCH_DONE:""")
    x_touch(a, opt, 3, False)
    st('prefix done')
    a(f"""ROUND:
    v_mov_b32 v{T0}, 0
    v_subrev_u32 v{T0+1}, s{S_W0}, v{V_PRE}
    v_mov_b32 v{T0+2}, v{V_GID}
    s_mov_b32 s3, {CAP}
    s_cmp_gt_u32 s{S_N}, {CAP}
    s_cbranch_scc1 EXPAND
    v_lshlrev_b32 v{T0+3}, 2, v{V_PRE}""")
    for j in range(16):
        a(f"v_cmpx_lt_u32 vcc, {j}, v{V_LEN}")
        if j % 2 == 0 and j >= 6: a("s_cbranch_execz EXPAND_DONE")
        a(f"ds_write_b32 v{T0+3}, v{T0+2} offset:{L_SENT + 4*j}\nv_add_u32 v{T0+2}, 1, v{T0+2}")
    a(f"""v_mov_b32 v{T0}, 16
    v_add_u32 v{T0+1}, 16, v{T0+1}
EXPAND:
    v_cmp_lt_u32 vcc, v{T0}, v{V_LEN}
    s_and_b64 exec, exec, vcc
    s_cbranch_execz EXPAND_DONE
    v_cmp_gt_u32 vcc, s3, v{T0+1}
    v_lshlrev_b32 v{T0+3}, 2, v{T0+1}
    s_and_saveexec_b64 {sr(S_T,2)}, vcc
    ds_write_b32 v{T0+3}, v{T0+2} offset:{L_SENT}
    s_mov_b64 exec, {sr(S_T,2)}
    v_add_u32 v{T0}, 1, v{T0}
    v_add_u32 v{T0+1}, 1, v{T0+1}
    v_add_u32 v{T0+2}, 1, v{T0+2}
    s_branch EXPAND
EXPAND_DONE:
    s_mov_b64 exec, -1
    s_sub_u32 s{S_NWIN}, s{S_N}, s{S_W0}
    s_min_u32 s{S_NWIN}, s{S_NWIN}, {CAP}
    v_lshlrev_b32 v{T0}, 2, v0""")
    for i in range(3):
        a(f"""v_add_u32 v{T0+1}, {512*i}, v0
              v_cmp_gt_u32 {sr(S_M+2*i,2)}, s{S_NWIN}, v{T0+1}""")
    st('list built')
    a("s_waitcnt lgkmcnt(0)\ns_barrier")
    st('list barrier')
    G = XR
    KP = TP
    for i in range(3): a(f"ds_read_b32 v{G+i}, v{T0} offset:{L_SENT + 2048*i}")
    a(f"""s_mov_b32 s{S_T+2}, 13421                         ; 32 * 2^32 / (10000 * 1024)
    s_and_b32 s{S_T+3}, s2, 7
    s_mul_i32 s{S_T+3}, s{S_T+3}, {opt.rot}           ; workgroups with different id % 8 start their sweep at different places
    s_waitcnt lgkmcnt(0)""")
    for i in range(3):
        a(f"v_lshlrev_b32 v{G+4+i}, 3, v{G+i}\nv_lshlrev_b32 v{G+i}, 4, v{G+i}")
    def key_loads(tag):
        a(f"""s_mov_b64 exec, {sr(S_M+4,2)}
        s_cbranch_execz SKIP3{tag}
        buffer_load_dwordx2 {vr(KP+4,2)}, v{G+6}, {sr(S_WS,4)}, 0 offen sc1
        SKIP3{tag}:""")
        for i in range(2):
            a(f"s_mov_b64 exec, {sr(S_M+2*i,2)}\nbuffer_load_dwordx2 {vr(KP+2*i,2)}, v{G+4+i}, {sr(S_WS,4)}, 0 offen sc1")
        a("s_mov_b64 exec, -1")
    key_loads("")
    H = G + 20
    a(f"""v_lshrrev_b32 v{T0}, 4, v{V_L16}              ; lane
    s_cmp_lg_u32 s{S_W0}, 0
    s_cbranch_scc1 KEY_WAIT
    s_cmp_ge_u32 s{S_WAVE}, 4
    s_cbranch_scc1 DEG_DONE""")
    for j in range(NLN):
        t = T0 + 1 + j % 2
        if j < 5: a(f"v_bfe_u32 v{t}, v{RECN+2}, {6*j}, 6")
        elif j == 5: a(f"v_alignbit_b32 v{t}, v{RECN+3}, v{RECN+2}, 30\nv_and_b32 v{t}, 63, v{t}")
        else: a(f"v_bfe_u32 v{t}, v{RECN+3}, {6*j-32}, 6")
        a(f"""v_lshlrev_b32 v{t}, 2, v{t}
              v_cmpx_lt_u32 vcc, {j}, v{V_LEN}
              ds_add_u32 v{t}, v{V_ONE} offset:{L_DEG}""")
    a(f"""s_mov_b64 exec, -1
DEG_DONE:
    v_lshlrev_b32 v{T0+1}, 2, v{T0}
    v_cmp_gt_u32 {sr(S_T,2)}, 40, v{T0}
    v_sub_u32 v{T0+2}, 63, v{T0}
    s_mul_i32 s10, s{S_WAVE}, 5
    s_waitcnt lgkmcnt(0)
    s_barrier
    ds_read_b32 v{H}, v{T0+1} offset:{L_DEG}
    v_add_u32 v{T0+3}, s10, v{T0}
    v_lshlrev_b32 v{T0+4}, 2, v{T0+3}
    s_waitcnt lgkmcnt(0)
    v_lshl_or_b32 v{H}, v{H}, 6, v{T0+2}
    v_cndmask_b32 v{H}, 0, v{H}, {sr(S_T,2)}
    s_nop 0""")
    for k in range(5):
        a(f"v_readlane_b32 s{S_NODE+k}, v{H}, s10")
        if k < 4: a("s_add_u32 s10, s10, 1")
    for k in range(5): a(f"v_cmp_lt_u32 {sr(S_K+2*k,2)}, s{S_NODE+k}, v{H}")
    for k in range(5): a(f"s_bcnt1_i32_b64 s{S_NODE+k}, {sr(S_K+2*k,2)}")
    for k in range(5): a(f"v_readlane_b32 s{S_NODE+k}, v{V_DEAL}, s{S_NODE+k}")
    a("s_nop 0")
    for k in range(5): a(f"v_writelane_b32 v{T0+1}, s{S_NODE+k}, {k}")
    a(f"""v_lshrrev_b32 v{T0+2}, 11, v{T0+1}
    v_bfe_u32 v{T0+5}, v{T0+1}, 8, 3
    v_lshlrev_b32 v{T0+2}, 7, v{T0+2}
    v_and_b32 v{T0+1}, 0xff, v{T0+1}
    v_lshl_or_b32 v{T0+2}, v{T0+5}, 19, v{T0+2}
    s_mov_b64 exec, 0x1f
    ds_write_b32 v{T0+1}, v{T0+3} offset:{L_INV}
    ds_write_b32 v{T0+4}, v{T0+2} offset:{L_MAP}
    s_mov_b64 exec, -1
    s_waitcnt lgkmcnt(0)
    s_barrier""")
    st('dealt')
    a(f"""KEY_WAIT:
    s_lshl_b32 s3, s{S_WAVE}, 10
    s_add_u32 s3, s3, {L_UREC}
    s_mov_b32 s9, {WS_REC}""")
    a("KEY_WAIT0:\ns_waitcnt vmcnt(0)")
    for i in range(3): a(f"v_cmp_ne_u32 {sr(S_K+2*i,2)}, s{S_NLO}, v{KP+2*i+1}")
    for i in range(3): a(f"v_and_b32 v{G+8+i}, 63, v{KP+2*i}\nv_lshlrev_b32 v{G+8+i}, 2, v{G+8+i}")
    for i in range(3): a(f"s_and_b64 {sr(S_K+2*i,2)}, {sr(S_K+2*i,2)}, {sr(S_M+2*i,2)}")
    a(f"""s_or_b64 {sr(S_K,2)}, {sr(S_K,2)}, {sr(S_K+2,2)}
    s_or_b64 {sr(S_K,2)}, {sr(S_K,2)}, {sr(S_K+4,2)}
    s_cbranch_scc0 KEYS_OK
    s_sub_u32 s{S_SPIN}, s{S_SPIN}, 1
    s_cbranch_scc1 END""")
    key_loads("R")
    a("s_branch KEY_WAIT0\nKEYS_OK:")
    st('keys arrived')
    def rec_dma(at):
        for i in (2, 0, 1):
            if opt.recat[i] != at: continue
            a(f"s_add_u32 m0, s3, {i*8192}\ns_mov_b64 exec, {sr(S_M+2*i,2)}")
            if i == 2: a("s_cbranch_execz SKIP3D")
            a(f"buffer_load_dwordx4 v{G+i}, {sr(S_WS,4)}, s9 offen sc1 lds")
            if i == 2: a("SKIP3D:")
        if at in opt.recat: a("s_mov_b64 exec, -1")
    for i in range(3): a(f"ds_read_b32 v{G+8+i}, v{G+8+i} offset:{L_MAP}")
    rec_dma(0)
    for i in range(3):
        a(f"""v_mul_hi_u32 v{G+12+i}, s{S_T+2}, v{KP+2*i}""")
        if opt.rot: a(f"v_add_u32 v{G+12+i}, s{S_T+3}, v{G+12+i}\nv_and_b32 v{G+12+i}, 31, v{G+12+i}")
        a(f"""v_add_u32 v{T0+1}, {512*i}, v0
              v_lshlrev_b32 v{T0+1}, 21, v{T0+1}
              v_lshrrev_b32 v{G+16+i}, 10, v{KP+2*i}
              v_lshl_or_b32 v{G+16+i}, v{G+16+i}, 7, v{T0+1}""")
    for i in range(3):
        a(f"""s_waitcnt lgkmcnt({2-i})
              v_lshrrev_b32 v{T0+1}, 16, v{G+8+i}
              v_and_b32 v{G+8+i}, 0x380, v{G+8+i}
              v_or_b32 v{G+16+i}, v{G+16+i}, v{T0+1}
              v_lshl_add_u32 v{G+8+i}, v{G+12+i}, 2, v{G+8+i}""")
    for i in range(3):
        a(f"s_mov_b64 exec, {sr(S_M+2*i,2)}\nds_add_rtn_u32 v{G+12+i}, v{G+8+i}, v{V_ONE} offset:{L_HIST}")
    a("s_mov_b64 exec, -1")
    rec_dma(1)
    a(f"""s_lshl_b32 s10, s{S_WAVE}, 3
    s_add_u32 s11, s10, 8
    s_and_b32 s11, s11, 63
    s_waitcnt lgkmcnt(0)
    s_barrier""")
    st('hist done')
    a(f"ds_read_b128 {vr(H,4)}, v{V_L16} offset:{L_HIST}")
    rec_dma(2)
    x_touch(a, opt, 8)
    a("s_waitcnt lgkmcnt(0)")
    scan256(a, H, H + 4)
    a(f"""ds_write_b128 v{V_L16}, {vr(H+4,4)} offset:{L_BASE}
    v_readlane_b32 s{S_START}, v{H+4}, s10
    v_readlane_b32 s{S_END}, v{H+4}, s11""")
    for i in range(3): a(f"ds_read_b32 v{G+8+i}, v{G+8+i} offset:{L_BASE}")
    a(f"""s_cmp_eq_u32 s{S_WAVE}, 7
    s_cselect_b32 s{S_END}, s{S_NWIN}, s{S_END}
    v_add_u32 v{V_POS}, s{S_START}, v{T0}
    v_lshlrev_b32 v{V_AENT}, 2, v{V_POS}
    v_add_u32 v{V_AENT}, {L_SENT}, v{V_AENT}
    s_sub_u32 s11, s{S_END}, s{S_START}
    s_max_u32 s10, s11, {D}
    s_add_u32 s10, s10, {opt.gran - 1 - D}
    s_and_b32 s{S_REM}, s10, {-opt.gran}
    s_max_u32 s10, s11, s{S_REM}
    s_sub_u32 s{S_REMB}, s10, s{S_REM}""")
    for i in range(3):
        a(f"""s_waitcnt lgkmcnt({2 if i else 2})
              v_add_lshl_u32 v{G+8+i}, v{G+8+i}, v{G+12+i}, 2
              s_mov_b64 exec, {sr(S_M+2*i,2)}
              ds_write_b32 v{G+8+i}, v{G+16+i} offset:{L_SENT}
              s_mov_b64 exec, -1""")
    a("s_waitcnt lgkmcnt(0)")
    if not opt.xpre: a("s_waitcnt vmcnt(0)")
    a("s_barrier")
    st('sorted')
    if opt.stamps: a(f"s_memtime s[100:101]\ns_waitcnt lgkmcnt(0)\ns_mov_b32 s{S_ST+30}, s100")
    meta_read_entry(a)
    a(f"""s_and_b32 s{S_WM}, s{S_WAVE}, 3
    s_lshl_b32 s{S_WM}, s{S_WM}, 13
    s_add_u32 s{S_WM}, s{S_WM}, {WS_WMIX}
    s_add_u32 s{S_WM+1}, s{S_WM}, 4096""")
    for k in range(8): a(f"v_mov_b32 v{RR+k}, 0")
    a("s_waitcnt lgkmcnt(0)")
    meta_fix_entry(a, False)
    a("s_nop 0")
    def first_rows(lo, hi):
        for e in range(lo, hi):
            a(f"""v_readlane_b32 s{S_K+e}, v{ENT}, {e}
                  s_and_b32 s{S_OFF}, s{S_K+e}, s{S_MASK}
                  buffer_load_dwordx4 {vr(XR+4*e,4)}, v{V_L16}, {sr(S_X,4)}, s{S_OFF} offen""")
    if opt.xpre:
        first_rows(0, opt.xpre)
        if ",8:" in "," + opt.xt and 2 not in opt.recat:
            a(f"s_cmp_lg_u32 s{S_W0}, 0\ns_cbranch_scc1 REC_WAIT\ns_waitcnt vmcnt({opt.xpre + 1})\ns_branch REC_IN\nREC_WAIT:")
        a(f"s_waitcnt vmcnt({opt.xpre})\nREC_IN:")
        st('recs landed')
        a("s_barrier")
    meta_read_rec(a)
    first_rows(opt.xpre, D)
    a(f"v_mov_b32 v{KEY}, v{ENT}")
    a(f"""s_waitcnt lgkmcnt(0)
    v_mov_b32 v{EF}, v{RECN+2}
    v_mov_b32 v{EF+1}, v{RECN+3}""")
    for i in range(4): a(w_mfma(i))
    a(p_mfma(0, 0)); a(p_mfma(0, 1)); a(p_mfma(1, 0))
    a("s_nop 1")
    for m in range(4): w_cvt(a, m)
    for odd in range(2):
        u, r = act_regs(0, odd)
        for h in range(2): a(act_addr(TT + 2 * odd + h, u + h))
        for h in range(2): a(act_read(r + h, TT + 2 * odd + h))
    a(f"s_waitcnt vmcnt({D-1})")
    st('first row')
    a(t_mfma(0, 0)); a(t_mfma(0, 1))
    body(a, opt)
    a(f"""MAIN_DONE:
    s_add_u32 s{S_W0}, s{S_W0}, {CAP}
    s_cmp_ge_u32 s{S_W0}, s{S_N}
    s_cbranch_scc1 ALL_DONE
    s_waitcnt vmcnt(0) lgkmcnt(0)""")
    zero_hist(a)
    a("s_waitcnt lgkmcnt(0)\ns_barrier\ns_branch ROUND\nALL_DONE:")
    st('main done')
    if opt.stamps: a(f"s_memtime s[100:101]\ns_waitcnt lgkmcnt(0)\ns_sub_u32 s{S_ST+30}, s100, s{S_ST+30}")
    PK = WPK; VOUT = UU
    a(f"""v_lshrrev_b32 v{T0+3}, 8, v{V_L16}            ; lane >> 4
    s_lshr_b32 s{S_T}, s{S_WAVE}, 2                   ; half
    s_mul_i32 s{S_T+1}, s{S_T}, 80
    v_mul_u32_u24 v{T0+1}, 20, v{T0+3}
    v_add_u32 v{T0+1}, s{S_T+1}, v{T0+1}""")
    for t in range(5): a(f"ds_read_b32 v{VOUT+t}, v{T0+1} offset:{L_INV + 4*t}")
    for sl in range(5):
        for o in range(4): a(f"v_cvt_pk_bf16_f32 v{PK+4*sl+o}, v{ACC+8*sl+o}, v{ACC+8*sl+4+o}")
    a(f"""s_mul_i32 s{S_T+1}, s{S_WAVE}, {4 * AGG_RS}
    s_add_u32 s{S_T+1}, s{S_T+1}, {L_AGG}
    v_lshrrev_b32 v{T0+4}, 2, v{V_L16}
    v_add_u32 v{T0+4}, s{S_T+1}, v{T0+4}
    v_bfe_u32 v{T0+2}, v{V_L16}, 4, 4                 ; lane & 15
    s_mul_i32 s{S_T+1}, s{S_T}, {16 * AGG_RS}
    s_add_u32 s{S_T+1}, s{S_T+1}, {L_AGG}
    v_mul_u32_u24 v{T0}, {AGG_RS}, v{T0+2}
    v_lshl_add_u32 v{T0}, v{T0+3}, 4, v{T0}
    v_add_u32 v{T0}, s{S_T+1}, v{T0}
    s_lshl_b32 s{S_T}, s{S_BETA}, 10
    s_and_b32 s{S_T+1}, s{S_WAVE}, 3
    s_lshl_b32 s{S_T+1}, s{S_T+1}, 8
    s_add_u32 s{S_T}, s{S_T}, s{S_T+1}
    v_lshl_add_u32 v{T0+2}, v{T0+2}, 4, s{S_T}
    s_waitcnt lgkmcnt(0)""")
    for t in range(5): a(f"v_lshl_add_u32 v{VOUT+t}, v{VOUT+t}, 18, v{T0+2}")
    a("s_barrier")
    st('all main done')
    AF = XR
    def wr(sl):
        for o in range(4): a(f"ds_write_b32 v{T0+4}, v{PK+4*sl+o} offset:{(32*sl + o)*AGG_RS}")
    def rd(t):
        for ks in range(4): a(f"ds_read_b128 {vr(AF+16*(t%2)+4*ks,4)}, v{T0} offset:{t*32*AGG_RS + ks*64}")
    def mm(t, waits, writes=None):
        for ks in range(4):
            if waits[ks] is not None: a(f"s_waitcnt lgkmcnt({waits[ks]})")
            for j in range(2):
                d = ACC + 8 * t + 4 * j
                a(f"v_mfma_f32_16x16x32_bf16 {vr(d,4)}, {vr(AF+16*(t%2)+4*ks,4)}, {vr(WMIX+16*j+4*ks,4)}, " + ("0" if ks == 0 else vr(d, 4)))
            if writes:
                s0, lo, hi = writes[ks]
                for n in range(lo, hi): a(f"ds_write_b32 v{T0+4}, v{PK+4*s0+n} offset:{(32*(s0 + n // 4) + n % 4)*AGG_RS}")
    def pack_store(t):
        d = ACC + 8 * t; p = RR + 4 * (t % 2)
        for j in range(4): a(f"v_cvt_pk_bf16_f32 v{p+j}, v{d+2*j}, v{d+2*j+1}")
        a(f"buffer_store_dwordx4 {vr(p,4)}, v{VOUT+t}, {sr(S_OUT,4)}, 0 offen {opt.outst}")
    wr(0); wr(1)
    a("s_waitcnt vmcnt(0) lgkmcnt(0)\ns_barrier")
    st('agg in LDS')
    rd(0); rd(1)
    mm(0, [7, 9, 11, 13], [(2, 0, 3), (2, 3, 6), (2, 6, 9), (2, 9, 12)])
    a("s_waitcnt lgkmcnt(0)\ns_barrier")
    rd(2)
    mm(1, [None] * 4); pack_store(0)
    rd(3)
    mm(2, [7, 6, 5, 4]); pack_store(1)
    rd(4)
    mm(3, [7, 6, 5, 4]); pack_store(2)
    mm(4, [3, 2, 1, 0]); pack_store(3)
    a("s_nop 3")
    pack_store(4)
    st('end')
    if opt.probe:
        a(f"""s_cmp_eq_u32 s93, 0
        s_cselect_b32 s93, s92, s93
        s_sub_u32 s93, s93, s92
        s_mul_i32 s93, s93, 4
        s_add_u32 s92, s92, s93
        s_add_u32 s92, s92, 6000
        HOLD_SPIN:
        s_memrealtime s[98:99]
        s_waitcnt lgkmcnt(0)
        s_sub_u32 s98, s98, s92
        s_cmp_lt_i32 s98, 0
        s_cbranch_scc1 HOLD_SPIN""")
    if opt.stamps:
        a("s_waitcnt vmcnt(0)")
        st('stores done 2')
        a(f"""s_lshl_b32 s10, s2, 3
        s_add_u32 s10, s10, s{S_WAVE}
        s_lshl_b32 s10, s10, 7
        s_add_u32 s10, s10, {WS_STAMP}
        v_mov_b32 v{T0}, s10
        s_sub_u32 s{S_ST+31}, s{S_END}, s{S_START}
        s_sub_u32 s{S_ST+29}, {1 << 21}, s{S_SPIN}""")
        for k in range(32): a(f"v_mov_b32 v{XR+k}, s{S_ST+k}")
        for k in range(8): a(f"buffer_store_dwordx4 {vr(XR+4*k,4)}, v{T0}, {sr(S_WS,4)}, 0 offen offset:{16*k}")
    a("END:\ns_endpgm")
    a(".p2align 6\n.type DEAL_TABLE,@object\nDEAL_TABLE:\n.short " + ", ".join(map(str, deal_bytes())) + "\n.size DEAL_TABLE, 256")
    return a.text()

def generate(opt):
    here = os.path.dirname(os.path.abspath(__file__))
    out = open(here + "/header.txt").read()
    out += f"; @launch grid=(256,1,1) block=(512,1,1) lds={LDS_BYTES}\n"
    out += f'.amdgcn_target "amdgcn-amd-amdhsa--gfx950"\n.text\n.globl {KERN}\n.p2align 8\n.type {KERN},@function\n'
    out += kernel(opt)
    out += f""".section .rodata,"a"
.p2align 6
.amdhsa_kernel {KERN}
  .amdhsa_next_free_vgpr {NVGPR}
  .amdhsa_next_free_sgpr {NSGPR if opt.stamps or opt.probe else 66}
  .amdhsa_accum_offset {(NVGPR + 3) // 4 * 4}
  .amdhsa_group_segment_fixed_size 0
  .amdhsa_kernarg_size 88
  .amdhsa_user_sgpr_count 2
  .amdhsa_user_sgpr_kernarg_segment_ptr 1
  .amdhsa_system_sgpr_workgroup_id_x 1
  .amdhsa_float_denorm_mode_32 3
.end_amdhsa_kernel
"""
    return out

def options(argv):
    p = argparse.ArgumentParser()
    p.add_argument("-o", default="/code/" + NAME + ".s")
    p.add_argument("--stamps", action="store_true")
    p.add_argument("--probe", default="")
    p.add_argument("--D", type=int, default=6)
    p.add_argument("--recat", type=lambda t: tuple(map(int, t.split(","))), default=(0, 1, 0))
    p.add_argument("--only", default="")
    p.add_argument("--rot", type=int, default=4)
    p.add_argument("--gran", type=int, default=4)
    p.add_argument("--late", type=int, default=62)
    p.add_argument("--xpre", type=int, default=2)
    p.add_argument("--xt", default="9:0:4,5:4:14,3:14:28,8:28:39")
    p.add_argument("--kack", type=int, default=1)
    p.add_argument("--lsplit", type=int, default=5)
    p.add_argument("--k1st", default="sc0 sc1")
    p.add_argument("--outst", default="sc0 sc1")
    return p.parse_args(argv)

if __name__ == "__main__":
    opt = options(sys.argv[1:])
    open(opt.o, "w").write(generate(opt))
    if opt.stamps: open(opt.o + ".names", "w").write(repr(STAMPS))
    import subprocess
    here = os.path.dirname(os.path.abspath(__file__))
    r = subprocess.run([sys.executable, here + "/hazards.py", opt.o], capture_output=True, text=True).stdout
    if " 0 finding" not in r: print(r)
    r = subprocess.run([sys.executable, here + "/../cdna_unwritten_srd_check.py", opt.o], capture_output=True, text=True)
    if r.returncode: print(r.stdout, r.stderr)
```

```python
import sys, argparse, os

NAME = "gather_scatter__tensor_product_equiv_tfn__graph"
KERN = NAME + "_kernel"
N, E, C = 10000, 320000, 128
NP, EP = 250, 1280
WS_KEY = 0
WS_REC = 0x280000
WS_WMIX = 0x771000
WS_TAB = 0x780000
WS_EPOCH = WS_TAB + 256 * 4096
WS_END = WS_EPOCH + 128
WS_STAMP = 0x900000
CAP = 1472

class Asm:
    def __init__(self): self.l = []
    def __call__(self, s):
        for line in s.strip("\n").split("\n"):
            line = line.strip()
            if not line: continue
            self.l.append(line if line.endswith(":") else "    " + line)
    def text(self): return "\n".join(self.l) + "\n"

def vr(a, n=1): return f"v{a}" if n == 1 else f"v[{a}:{a+n-1}]"
def sr(a, n=1): return f"s{a}" if n == 1 else f"s[{a}:{a+n-1}]"

SCAN_STEPS = ["row_shr:1 row_mask:0xf bank_mask:0xf bound_ctrl:0", "row_shr:2 row_mask:0xf bank_mask:0xf bound_ctrl:0",
              "row_shr:4 row_mask:0xf bank_mask:0xf bound_ctrl:0", "row_shr:8 row_mask:0xf bank_mask:0xf bound_ctrl:0",
              "row_bcast:15 row_mask:0xa bank_mask:0xf", "row_bcast:31 row_mask:0xc bank_mask:0xf"]
def scan64(a, *regs):
    for c in SCAN_STEPS:
        a("s_nop 1" if len(regs) == 1 else "s_nop 0")
        for v in regs: a(f"v_add_u32_dpp v{v}, v{v}, v{v} {c}")

L_HIST = 0; L_DEG = 1024; L_WT = 1280; L_CNT = L_WT + 16
L_INV = 1344; L_MAP = 1536; L_BASE = 1792
L_SENT = L_BASE + 1024
L_UREC = L_SENT + CAP * 4
L_CG = L_UREC + CAP * 16
L_LUT = 32768
L1_HIST = L_SENT; L1_LNS = L1_HIST + 1024; L1_BASE = L1_LNS + 2048; L1_SREC = L_UREC
L1_SKEY = L_LUT + 53 * 1024
assert L_CG + 128 <= L_LUT and L1_SREC + (EP + 64) * 16 <= L_CG and L1_BASE <= 8192
NLN = 10
L_AGG = L_LUT; AGG_RS = 288
LDS_BYTES = L_LUT + 131072

V_L16 = 1
V_LEN, V_PRE, V_GID = 2, 3, 4
V_AENT, V_POS = 5, 6
V_ONE = 15
V_DEAL = 174
V_DUMMY = 167
V_TOUCH = 166
T0 = 8
ACC = 16; XR = 64; TP = 96; UU = 112; RR = 128; TT = 136; WPK = 140; WTMP = 148
KEY = 164; ENT = 165; RECN = 168; EF = 172; CONST = 176; WMIX = 188
NVGPR = 220
PE, PO, CGB = CONST, CONST + 2, CONST + 4
LJ = 128
S_NODE = 4
S_X, S_WS, S_OUT = 12, 16, 20
S_BETA, S_WAVE, S_N, S_W0, S_NWIN, S_START, S_END, S_REM, S_REMB, S_OFF, S_MASK = range(24, 35)
S_SPIN = 35
S_M = 36
S_T = 42
S_K = 48
S_IN = 40
S_JOB, S_JCNT = 62, 63
S_SEG = 61
S_NLO, S_NHI = 64, 65
S_WM = 10
S_L2E = 10
S_ST = 66
NSGPR = 102

STAMPS = []
def stamp(a, opt, name):
    if opt.probe == name: a("s_memrealtime s[98:99]\ns_waitcnt lgkmcnt(0)\ns_mov_b32 s93, s98")
    if not opt.stamps: return
    if opt.only and name not in opt.only.split(",") + ["start", "sorted", "main done", "stores done 2"]: return
    if name not in STAMPS: STAMPS.append(name)
    a(f"s_memrealtime s[98:99]\ns_waitcnt lgkmcnt(0)\ns_mov_b32 s{S_ST + STAMPS.index(name)}, s98")

S_RET = 6
def lut_sub(a):
    J, Ex, R, P = LJ, LJ + 8, LJ + 16, LJ + 24
    a(f"""LUT_SUB:
    s_lshl_b32 s3, s{S_JOB}, 25
    s_add_u32 s3, s3, 0x8000
    v_lshl_add_u32 v{J}, v{V_L16}, 15, s3""")
    for k in range(1, 8): a(f"v_add_u32 v{J+k}, 0x10000, v{J+k-1}")
    for k in range(0, 8, 2): a(f"v_pk_mul_f32 {vr(Ex+k,2)}, {vr(J+k,2)}, {sr(S_L2E,2)}")
    for k in range(8): a(f"v_exp_f32 v{Ex+k}, v{Ex+k}")
    a(f"s_lshl_b32 s3, s{S_JOB}, 10")
    for k in range(0, 8, 2): a(f"v_pk_add_f32 {vr(R+k,2)}, {vr(Ex+k,2)}, 1.0 op_sel_hi:[1,0]")
    for k in range(8): a(f"v_rcp_f32 v{R+k}, v{R+k}")
    a(f"v_add_u32 v{P+8}, s3, v{V_L16}")
    for k in range(0, 8, 2): a(f"v_pk_mul_f32 {vr(J+k,2)}, {vr(J+k,2)}, {vr(R+k,2)}")
    a(f"v_add_u32 v{P+9}, 0x10000, v{P+8}")
    for k in range(0, 8, 2): a(f"v_pk_mul_f32 {vr(Ex+k,2)}, {vr(J+k,2)}, {vr(Ex+k,2)} neg_lo:[1,0] neg_hi:[1,0]")
    for k in range(4): a(f"v_cvt_pk_bf16_f32 v{P+k}, v{J+2*k}, v{J+2*k+1}")
    for k in range(4): a(f"v_cvt_pk_bf16_f32 v{P+4+k}, v{Ex+2*k}, v{Ex+2*k+1}")
    a(f"""ds_write_b128 v{P+8}, {vr(P,4)} offset:{L_LUT}
    ds_write_b128 v{P+9}, {vr(P+4,4)} offset:{L_LUT}
    s_add_u32 s{S_JOB}, s{S_JOB}, 1
    s_sub_u32 s{S_JCNT}, s{S_JCNT}, 1
    s_cmp_lg_u32 s{S_JCNT}, 0
    s_cbranch_scc1 LUT_SUB
    s_setpc_b64 {sr(S_RET,2)}""")
def lut_jobs(a, count): a(f"s_mov_b32 s{S_JCNT}, {count}\ns_call_b64 {sr(S_RET,2)}, LUT_SUB")

def lut_plain(a, tag, region, last=None, cont=False):
    P = LJ
    for name, first, end, bias in (("L", 1, 24, 0x20000 - 0x800080), ("H", 34, 62, 0x20000)):
        if name != region: continue
        last = last or end
        if cont: a(f"s_cmp_gt_u32 s{S_JOB}, {last}\ns_cbranch_scc1 LUTP_END_{tag}")
        else: a(f"s_add_u32 s{S_JOB}, s{S_WAVE}, {first}")
        if name == "H" and not cont:
            for k in range(4): a(f"v_mov_b32 v{P+4+k}, 0x80008000")
        a(f"LUTP_{tag}{name}:")
        a(f"""s_mul_i32 s3, s{S_JOB}, {512 * 0x10001}
        s_add_u32 s3, s3, {bias & 0xffffffff}
        v_add_u32 v{P}, s3, v{P+10}
        s_lshl_b32 s3, s{S_JOB}, 10
        v_add_u32 v{P+8}, s3, v{V_L16}""")
        for k in range(1, 4): a(f"v_add_u32 v{P+k}, {k * 0x20002}, v{P}")
        a(f"v_add_u32 v{P+9}, 0x10000, v{P+8}")
        if name == "L":
            for k in range(4): a(f"v_or_b32 v{P+4+k}, 0x80008000, v{P+k}")
        a(f"""ds_write_b128 v{P+8}, {vr(P,4)} offset:{L_LUT}
        ds_write_b128 v{P+9}, {vr(P+4,4)} offset:{L_LUT}
        s_add_u32 s{S_JOB}, s{S_JOB}, {5 if name == "L" else 4}
        s_cmp_le_u32 s{S_JOB}, {last}
        s_cbranch_scc1 LUTP_{tag}{name}
        LUTP_END_{tag}:""")

def tab_issue(a): a(f"buffer_load_dwordx4 {vr(RECN,4)}, v{V_POS}, {sr(S_WS,4)}, 0 offen sc1")
def tab_check(a, younger):
    if younger: a(f"s_waitcnt vmcnt({younger})\ns_branch CHECK_TAB")
    a(f"""POLL_TAB:
    s_waitcnt vmcnt(0)
    CHECK_TAB:
    v_lshrrev_b32 v{T0+3}, 22, v{RECN}
    v_cmp_ne_u32 vcc, s{S_NLO}, v{RECN+1}
    v_cmp_ne_u32 {sr(S_T,2)}, s{S_NHI}, v{T0+3}
    s_or_b64 vcc, vcc, {sr(S_T,2)}
    s_and_b64 exec, exec, vcc
    s_cbranch_execz POLLED_TAB
    s_sub_u32 s{S_SPIN}, s{S_SPIN}, 1
    s_cbranch_scc1 END""")
    tab_issue(a)
    a("s_branch POLL_TAB\nPOLLED_TAB:\ns_mov_b64 exec, -1")

def load_epoch(a):
    a(f"""s_add_u32 s4, s{S_WS}, {WS_EPOCH}
    s_addc_u32 s5, s{S_WS+1}, 0
    s_load_dwordx2 {sr(S_NLO,2)}, s[4:5], 0""")
def make_tag(a):
    a(f"""s_add_u32 s{S_NLO}, s{S_NLO}, 1
    s_and_b32 s{S_NHI}, s{S_NHI}, 0x3ff""")

def scan256(a, H_, O_):
    a(f"""v_add_u32 v{T0+2}, v{H_}, v{H_+1}
    v_add3_u32 v{T0+2}, v{T0+2}, v{H_+2}, v{H_+3}
    v_mov_b32 v{T0+3}, v{T0+2}""")
    scan64(a, T0 + 3)
    a(f"""v_sub_u32 v{O_}, v{T0+3}, v{T0+2}
    v_add_u32 v{O_+1}, v{O_}, v{H_}
    v_add_u32 v{O_+2}, v{O_+1}, v{H_+1}
    v_add_u32 v{O_+3}, v{O_+2}, v{H_+2}""")

SRC, DST, YY, EFP, WRAD, CG, WMX = S_IN + 2, S_IN + 4, S_IN + 6, S_IN + 8, S_IN + 10, S_IN + 12, S_IN + 14
D_, S_, Y_, F_, B_, R_, H_, O_, TB = 64, 68, 72, 80, 88, 92, 96, 100, 108
CT = WMIX
def const_sub(a):
    a(f"""CONST_SUB:
    ds_write_b32 v{CT+5}, v{CT+4} offset:{L_CG}
    v_lshrrev_b32 v{CT+5}, 3, v{V_L16}
    v_and_b32 v{CT+5}, 24, v{CT+5}
    s_mov_b32 s4, 0x05040100
    s_mov_b32 s5, 0x07060302""")
    for i in range(4): a(f"ds_read_b64_tr_b16 {vr(CGB+2*i,2)}, v{CT+5} offset:{L_CG + 32*i}")
    for u in range(2):
        a(f"v_perm_b32 v{PE+u}, v{CT+1+2*u}, v{CT+2*u}, s4\nv_perm_b32 v{PO+u}, v{CT+1+2*u}, v{CT+2*u}, s5")
    a(f"s_setpc_b64 {sr(S_RET,2)}")
def const_finish(a): a(f"s_call_b64 {sr(S_RET,2)}, CONST_SUB")

def phase1(a, opt):
    st = lambda n: stamp(a, opt, n)
    WS = sr(S_WS, 2); FL = opt.k1st
    a(f"""s_cmp_ge_u32 s{S_WAVE}, 5
    s_cbranch_scc1 HELP""")
    lut_plain(a, "W0", "L", last=opt.lsplit)
    a(f"""s_cmp_ge_u32 s2, {NP}
    s_cbranch_scc1 AUX""")
    a(f"""v_lshlrev_b32 v{T0+1}, 22, v0
    s_mov_b32 s4, {1 << 20}
    s_mov_b32 s5, {2 << 20}
    s_mov_b32 s8, {3 << 20}""")
    st('jobs A')
    a("s_waitcnt vmcnt(7)")
    st('dst arrived')
    for k in range(4):
        a(f"""v_and_b32 v{B_+k}, 0xff, v{D_+k}
              v_lshlrev_b32 v{B_+k}, 2, v{B_+k}
              ds_add_rtn_u32 v{R_+k}, v{B_+k}, v{V_ONE} offset:{L1_HIST}""")
    a("s_waitcnt vmcnt(6)")
    for k in range(4):
        a(f"""v_lshrrev_b32 v{D_+k}, 8, v{D_+k}
              v_lshl_or_b32 v{TB+2*k}, v{S_+k}, 6, v{D_+k}
              v_or3_b32 v{TB+2*k}, v{TB+2*k}, v{T0+1}, {("0", "s4", "s5", "s8")[k]}""")
    a(f"""s_mov_b32 s9, {L1_SKEY}
    s_waitcnt lgkmcnt(0)
    s_barrier
    ds_read_b128 {vr(H_,4)}, v{V_L16} offset:{L1_HIST}""")
    make_tag(a)
    for k in range(4): a(f"v_mov_b32 v{TB+2*k+1}, s{S_NLO}")
    a("v_mov_b32 v119, 0")
    for k in range(4):
        a(f"""v_cmp_gt_u32 vcc, {NLN}, v{R_+k}
              v_mul_u32_u24 v116, 6, v{R_+k}
              v_lshlrev_b32 v117, 1, v{B_+k}
              v_cndmask_b32 v118, 0, v{D_+k}, vcc
              v_lshlrev_b64 {vr(120+2*(k%2),2)}, v116, v[118:119]
              ds_or_b64 v117, {vr(120+2*(k%2),2)} offset:{L1_LNS}""")
    a("s_waitcnt lgkmcnt(4)")
    scan256(a, H_, O_)
    a(f"ds_write_b128 v{V_L16}, {vr(O_,4)} offset:{L1_BASE}")
    for k in range(4): a(f"ds_read_b32 v{H_+k}, v{B_+k} offset:{L1_BASE}")
    for k in range(4):
        a(f"""s_waitcnt lgkmcnt(3)
              v_add_u32 v{R_+k}, v{R_+k}, v{H_+k}
              v_lshl_add_u32 v{B_+k}, v{R_+k}, 3, s9
              ds_write_b64 v{B_+k}, {vr(TB+2*k,2)}""")
    a("s_waitcnt lgkmcnt(0)\ns_barrier")
    st('keys binned')
    a("s_waitcnt vmcnt(0)")
    x_touch(a, opt, 9, False)
    a(f"BINNED:\ns_setprio 0\nv_mov_b32 v{V_LEN}, 0")
    const_finish(a)
    lut_plain(a, "W", "L", cont=True)
    a("s_barrier")
    a(f"s_cmp_eq_u32 s{S_WAVE}, 4\ns_cbranch_scc1 WAVE4")
    lut_plain(a, "U", "H", last=opt.late)
    tab_issue(a)
    x_touch(a, opt, 6, False)
    st('tab issued')
    if opt.late < 62: lut_plain(a, "V", "H", cont=True)
    tab_check(a, ("," + opt.xt).count(",6:"))
    st('tab arrived')
    a("s_branch TAB_DONE")
    lut_sub(a)
    const_sub(a)
    a(f"""HELP:
    s_sub_u32 s8, s{S_WAVE}, 5
""")
    a(f"""s_cmp_ge_u32 s2, {NP}
    s_cbranch_scc1 NO_YF
    s_mul_i32 s4, s8, 3072
    s_cmp_lg_u32 s8, 0
    s_cselect_b32 s5, 1024, 0
    s_add_u32 s4, s4, s5
    s_mul_i32 s3, s2, {EP * 8}
    s_add_u32 s3, s3, s4
    v_add_u32 v{T0}, s3, v{V_L16}
    s_add_u32 m0, s4, {L1_SREC}
    s_cmp_lg_u32 s8, 0""")
    for k in range(3): a(f"global_load_lds_dwordx4 v{T0}, {sr(YY,2)} offset:{1024*k}")
    a(f"""s_cbranch_scc1 Y_DONE
    global_load_lds_dwordx4 v{T0}, {sr(YY,2)} offset:3072
Y_DONE:
    s_add_u32 m0, s4, {L1_SREC + EP * 8}
    s_cmp_lg_u32 s8, 0""")
    for k in range(3): a(f"global_load_lds_dwordx4 v{T0}, {sr(EFP,2)} offset:{1024*k}")
    a(f"""s_cbranch_scc1 NO_YF
    global_load_lds_dwordx4 v{T0}, {sr(EFP,2)} offset:3072
NO_YF:""")
    a(f"""s_mul_i32 s4, s8, 3072
    s_cmp_eq_u32 s8, 1
    s_cselect_b32 s4, 4096, s4
    s_mul_i32 s3, s2, {EP * 8}
    s_add_u32 s3, s3, s4
    v_add_u32 v{T0}, s3, v{V_L16}
    s_add_u32 s4, s4, {L1_SKEY}
    v_add_u32 v{T0+1}, s4, v{V_L16}
    s_mul_i32 s4, s8, 7168
    s_mul_i32 s3, s2, {EP * 16}
    s_add_u32 s3, s3, s4
    s_add_u32 s3, s3, {WS_REC}
    v_add_u32 v{T0+4}, s3, v{V_L16}
    s_lshr_b32 s4, s4, 1
    s_add_u32 s4, s4, {L1_SKEY}
    v_lshrrev_b32 v{T0+5}, 1, v{V_L16}
    v_add_u32 v{T0+5}, s4, v{T0+5}
    s_lshl_b32 s3, s2, 12
    s_add_u32 s3, s3, {WS_TAB}
    v_add_u32 v117, s3, v{V_L16}
    s_waitcnt lgkmcnt(0)""")
    make_tag(a)
    st('help jobs')
    a(f"""s_barrier
    s_cmp_eq_u32 s8, 1
    s_cbranch_scc1 ROW
    s_cmp_eq_u32 s8, 2
    s_cselect_b32 s{S_JOB}, 63, 0""")
    lut_jobs(a, 1)
    a(f"""v_mov_b32 v{T0+2}, {0x7f80 * 2}
    v_mov_b32 v{T0+3}, 0x7f80
    s_cmp_lg_u32 s8, 2
    s_cbranch_scc1 NO_ROW
    ds_write_b16 v{T0+2}, v{T0+3} offset:{L_LUT}
    s_branch NO_ROW
ROW:
    v_lshrrev_b32 v116, 2, v{V_L16}""")
    QT, HH, SS = 84, 100, 104
    for m in range(4): a(f"ds_read_b32 v{HH+m}, v116 offset:{L1_HIST + 256*m}")
    a(f"""s_lshl_b32 s3, s2, 12
    s_add_u32 s3, s3, {WS_TAB}
    v_add_u32 v117, s3, v{V_L16}
    v_lshrrev_b32 v116, 1, v{V_L16}
    s_lshl_b32 s3, s{S_NHI}, 22
    s_waitcnt lgkmcnt(0)""")
    for m in range(4): a(f"v_mov_b32 v{SS+m}, v{HH+m}")
    scan64(a, SS, SS + 1, SS + 2, SS + 3)
    a(f"""v_readlane_b32 s4, v{SS}, 63
    v_readlane_b32 s5, v{SS+1}, 63
    v_readlane_b32 s9, v{SS+2}, 63""")
    for m in range(4): a(f"v_sub_u32 v{SS+m}, v{SS+m}, v{HH+m}")
    a(f"""s_add_u32 s5, s5, s4
    s_add_u32 s9, s9, s5
    v_add_u32 v{SS+1}, s4, v{SS+1}
    v_add_u32 v{SS+2}, s5, v{SS+2}
    v_add_u32 v{SS+3}, s9, v{SS+3}""")
    for m in range(4):
        a(f"""v_lshl_or_b32 v{QT+4*m}, v{HH+m}, 11, v{SS+m}
              v_or_b32 v{QT+4*m}, s3, v{QT+4*m}
              v_mov_b32 v{QT+4*m+1}, s{S_NLO}""")
    a("NO_ROW:\ns_waitcnt vmcnt(0)")
    const_finish(a)
    a(f"""s_barrier
    s_cmp_lg_u32 s{S_WAVE}, 6
    s_cbranch_scc1 ROW_DONE""")
    for m in range(4): a(f"ds_read_b64 {vr(QT+4*m+2,2)}, v116 offset:{L1_LNS + 512*m}")
    for m in range(4): a(f"s_waitcnt lgkmcnt({3-m})\nglobal_store_dwordx4 v117, {vr(QT+4*m,4)}, {WS} offset:{1024*m} sc0 sc1")
    st('table published')
    a("ROW_DONE:")
    RQ, IX = 84, 118
    for k in range(7): a(f"ds_read_b32 v{IX+k}, v{T0+5} offset:{512*k}")
    for k in range(4): a(f"ds_read_b128 {vr(64+4*k,4)}, v{T0+1} offset:{1024*k}")
    a(f"""v_mov_b32 v{V_LEN}, 0
    s_add_u32 s{S_JOB}, s8, s8                       ; jobs 27, 28 / 29, 30, 31 / 32, 33
    s_add_u32 s{S_JOB}, s{S_JOB}, 27
    s_cmp_eq_u32 s8, 2
    s_addc_u32 s{S_JOB}, s{S_JOB}, 0
    s_cmp_eq_u32 s8, 1
    s_cselect_b32 s{S_JCNT}, 3, 2
    s_waitcnt lgkmcnt(4)""")
    for k in range(7):
        a(f"""v_lshrrev_b32 v{IX+k}, 17, v{IX+k}
              v_and_b32 v{IX+k}, 0x3ff8, v{IX+k}
              ds_read_b64 {vr(RQ+4*k,2)}, v{IX+k} offset:{L1_SREC}
              ds_read_b64 {vr(RQ+4*k+2,2)}, v{IX+k} offset:{L1_SREC + EP * 8}""")
    a(f"""s_cmp_ge_u32 s2, {NP}
    s_cbranch_scc1 NO_RECS""")
    for k in range(7):
        if k == 4: a(f"v_add_u32 v{T0+4}, 4096, v{T0+4}\ns_waitcnt lgkmcnt(0)\ns_barrier")
        if k == 6: a(f"s_cmp_eq_u32 s8, 2\ns_cbranch_scc1 RECS_STORED")
        if k < 4: a(f"s_waitcnt lgkmcnt({12-2*k})")
        a(f"global_store_dwordx4 v{T0+4}, {vr(RQ+4*k,4)}, {WS} offset:{(1024*k) % 4096} {FL}")
    a("s_branch RECS_STORED\nNO_RECS:\ns_waitcnt lgkmcnt(0)\ns_barrier")
    a(f"""RECS_STORED:
    s_call_b64 {sr(S_RET,2)}, LUT_SUB
    s_cmp_ge_u32 s2, {NP}
    s_cbranch_scc1 TAB_DONE
    v_mov_b32 v{T0+2}, 0
    s_waitcnt vmcnt(0)
    s_mov_b64 exec, 1
    ds_add_u32 v{T0+2}, v{V_ONE} offset:{L_CNT}
    s_mov_b64 exec, -1
WAIT_ACK:
    ds_read_b32 v{T0+3}, v{T0+2} offset:{L_CNT}
    s_waitcnt lgkmcnt(0)
    v_readfirstlane_b32 s3, v{T0+3}
    s_cmp_eq_u32 s3, 3
    s_cbranch_scc0 WAIT_ACK""")
    st('recs acked')
    for k in range(4):
        if k == 2: a(f"s_cmp_eq_u32 s8, 1\ns_cbranch_scc1 KEYS_OUT")
        a(f"global_store_dwordx4 v{T0}, {vr(64+4*k,4)}, {WS} offset:{1024*k} {FL}")
    a("KEYS_OUT:")
    x_touch(a, opt, 5, False)
    a("s_branch TAB_DONE")
    a(f"""AUX_LOAD:
    s_sub_u32 s4, s2, {NP}
    s_cmp_ge_u32 s4, 4
    s_cbranch_scc1 NO_EDGES
    s_cmp_ge_u32 s{S_WAVE}, 4
    s_cbranch_scc1 NO_EDGES
    s_lshl_b32 s5, s{S_WAVE}, 13
    s_lshl_b32 s8, s4, 6
    s_add_u32 s5, s5, s8
    v_lshrrev_b32 v80, 8, v{V_L16}
    v_lshlrev_b32 v80, 11, v80
    v_bfe_u32 v81, v{V_L16}, 4, 4
    v_lshl_add_u32 v80, v81, 2, v80
    v_add_u32 v80, s5, v80""")
    for t in range(8): a(f"global_load_dword v{64+t}, v80, {sr(WMX,2)} offset:{t*256}")
    a(f"""s_branch NO_EDGES
AUX:
    s_cmp_ge_u32 s2, {NP + 4}
    s_cbranch_scc1 AUX_DONE
    s_cmp_ge_u32 s{S_WAVE}, 4
    s_cbranch_scc1 AUX_DONE
    s_sub_u32 s4, s2, {NP}
    s_lshl_b32 s5, s4, 13
    s_lshl_b32 s8, s{S_WAVE}, 10
    s_add_u32 s5, s5, s8
    s_add_u32 s5, s5, {WS_WMIX}
    v_add_u32 v81, s5, v{V_L16}
    s_mov_b32 s4, 0x05040100
    s_mov_b32 s5, 0x07060302
    s_waitcnt vmcnt(6)""")
    for u in range(4):
        a(f"v_perm_b32 v{72+u}, v{65+2*u}, v{64+2*u}, s4\nv_perm_b32 v{76+u}, v{65+2*u}, v{64+2*u}, s5")
    a(f"""global_store_dwordx4 v81, v[72:75], {WS} {FL}
    v_add_u32 v81, 4096, v81
    global_store_dwordx4 v81, v[76:79], {WS} {FL}
AUX_DONE:
    s_waitcnt lgkmcnt(0)""")
    make_tag(a)
    a(f"""s_barrier
    s_waitcnt vmcnt(0)
    s_barrier
    s_branch BINNED
WAVE4:
    s_mov_b32 s{S_JOB}, 25""")
    lut_jobs(a, 2)
    a("TAB_DONE:")

def mfma4(d, a_, b, c, blk=None):
    cc = "0" if c is None else vr(c, 4)
    return f"v_mfma_f32_4x4x4_16b_bf16 {vr(d,4)}, {vr(a_,2)}, {vr(b,2)}, {cc}" + ("" if blk is None else f" cbsz:4 abid:{blk}")
def p_mfma(g, odd):
    return mfma4(UU + 8 * (g % 2) + 4 * odd, EF, PO if odd else PE, None, g % 16)
def t_mfma(e, odd):
    return mfma4(TP + 8 * (e % 2) + 4 * odd, WPK + 2 * (e % 4), XR + 4 * (e % 8) + 2 * odd, None, (e % 64) // 4)
def act_regs(eb, odd):
    return UU + 8 * ((eb // 4) % 2) + 4 * odd + eb % 4, RR + 4 * ((eb // 2) % 2) + 2 * odd
def act_addr(t, u):
    return f"v_lshlrev_b32_sdwa v{t}, v{V_ONE}, v{u} dst_sel:DWORD dst_unused:UNUSED_PAD src0_sel:DWORD src1_sel:WORD_1"
def act_read(r, t): return f"ds_read_u16_d16_hi v{r}, v{t} offset:{L_LUT}"
def fma4(a, q):
    h = q % 2
    a(f"s_set_gpr_idx_on s{S_K + q % 16}, 0xc")
    for odd in range(2):
        r = RR + 4 * ((q // 2) % 2) + 2 * odd
        for o in (0, 2):
            acc = ACC + 4 * odd + o; tp = TP + 8 * (q % 2) + 4 * odd + o
            a(f"v_pk_fma_f32 {vr(acc,2)}, {vr(r,2)}, {vr(tp,2)}, {vr(acc,2)} op_sel:[{h},0,0] op_sel_hi:[{h},1,1]")
    a("s_set_gpr_idx_off")
def meta_read_entry(a): a(f"ds_read_b32 v{ENT}, v{V_AENT}")
def meta_fix_entry(a, rec=True):
    a(f"""v_cmp_gt_u32 vcc, s{S_END}, v{V_POS}
          v_add_u32 v{V_POS}, 64, v{V_POS}
          v_add_u32 v{V_AENT}, 256, v{V_AENT}
          v_cndmask_b32 v{ENT}, 40, v{ENT}, vcc
          v_lshrrev_b32 v{T0}, 21, v{ENT}
          v_lshlrev_b32 v{T0}, 4, v{T0}
          v_lshlrev_b32 v{T0+1}, 3, v{ENT}""")
    if rec: meta_read_rec(a)
    a(f"""v_and_b32 v{T0+1}, 0xfffc00, v{T0+1}
          v_and_or_b32 v{ENT}, v{ENT}, 56, v{T0+1}""")
def meta_read_rec(a): a(f"ds_read_b128 {vr(RECN,4)}, v{T0} offset:{L_UREC}")
def w_mfma(i): return mfma4(WTMP + 4 * i, RECN, CGB + 2 * i, None)
def w_cvt(a, m):
    a(f"""v_cvt_pk_bf16_f32 v{WPK+2*m}, v{WTMP+m}, v{WTMP+4+m}
          v_cvt_pk_bf16_f32 v{WPK+2*m+1}, v{WTMP+8+m}, v{WTMP+12+m}""")

def step(a, opt, q, drain=None):
    D = opt.D; loads = drain is None
    eb = q + 2 - q % 2; odd = q % 2
    u, r = act_regs(eb, odd); t = TT + 2 * odd
    g, ur = (q + 6) // 4, (q + 6) % 4
    if ur % 2 == 0: a(p_mfma(g, ur // 2))
    elif 40 <= q < 48: a(w_mfma((q - 40) // 2))
    a(act_addr(t, u))
    if loads: a(f"s_waitcnt vmcnt({D - 2})")
    elif D - 2 - drain >= 0: a(f"s_waitcnt vmcnt({8 + D - 2 - drain})")
    a(t_mfma(q + 1, 0))
    if loads: a(f"v_readlane_b32 s{S_K + (q + D) % 16}, v{KEY if q + D < 64 else ENT}, {(q + D) % 64}")
    else:     a("s_nop 0")
    a(t_mfma(q + 1, 1))
    a(act_addr(t + 1, u + 1))
    a(act_read(r, t)); a(act_read(r + 1, t + 1))
    if q >= 60: w_cvt(a, q - 60)
    if loads:
        a(f"s_and_b32 s{S_OFF}, s{S_K + (q + D) % 16}, s{S_MASK}")
        a(f"buffer_load_dwordx4 {vr(XR + 4 * ((q + D) % 8), 4)}, v{V_L16}, {sr(S_X,4)}, s{S_OFF} offen")
    if q % 2 == 0: a("s_waitcnt lgkmcnt(2)")
    fma4(a, q)
    if loads and q == 8: meta_read_entry(a)
    if loads and q == 12: meta_fix_entry(a)
    if q == 57: a(f"v_mov_b32 v{EF}, v{RECN+2}\nv_mov_b32 v{EF+1}, v{RECN+3}\ns_nop 1")
    if loads and q == 63: a(f"v_mov_b32 v{KEY}, v{ENT}")

def body(a, opt):
    G = opt.gran
    for q in range(64):
        if q % G == 0: a(f"A_{q}:\ns_sub_u32 s{S_REM}, s{S_REM}, {G}\ns_cbranch_scc1 B_{q}")
        step(a, opt, q)
    if opt.stamps and not opt.only:
        STAMPS.extend(("batch 1", "batch 2")); k = S_ST + len(STAMPS) - 2
        a(f"""s_memrealtime s[98:99]
        s_waitcnt lgkmcnt(0)
        s_cmp_eq_u32 s{k}, 0
        s_cselect_b32 s99, 0, s98
        s_cselect_b32 s{k}, s98, s{k}
        s_cmp_eq_u32 s{k+1}, 0
        s_cselect_b32 s{k+1}, s99, s{k+1}""")
    if opt.probe == "batch 1":
        a("s_memrealtime s[98:99]\ns_waitcnt lgkmcnt(0)\ns_cmp_eq_u32 s93, 0\ns_cselect_b32 s93, s98, s93")
    a("s_branch A_0")
    for q in range(0, 64, G):
        a(f"B_{q}:")
        for k in range(8):
            a(f"buffer_load_dwordx4 {vr(WMIX+4*k,4)}, v{V_L16}, {sr(S_WS,4)}, s{S_WM + k // 4} offen offset:{(k%4)*1024} sc1")
        for i in range(opt.D):
            a(f"s_sub_u32 s{S_REMB}, s{S_REMB}, 1\ns_cbranch_scc1 MAIN_DONE")
            step(a, opt, (q + i) % 64, i)
        a("s_branch MAIN_DONE")

def x_touch(a, opt, where, guard=True):
    for spec in filter(None, opt.xt.split(",")):
        w, lo, hi = map(int, spec.split(":"))
        if w != where: continue
        if guard: a(f"s_cmp_lg_u32 s{S_W0}, 0\ns_cbranch_scc1 NO_X_TOUCH_{w}")
        if w == 5:
            a(f"""s_lshr_b32 s{S_OFF}, s2, 3
            s_mul_i32 s{S_OFF}, s{S_OFF}, 3
            s_add_u32 s{S_OFF}, s{S_OFF}, s8
            s_lshl_b32 s{S_OFF}, s{S_OFF}, 7
            s_add_u32 s{S_OFF}, s{S_OFF}, s{S_SEG}
            s_add_u32 s{S_OFF}, s{S_OFF}, {lo << 15}
            v_min_u32 v{V_TOUCH}, {(-(-(hi - lo) * 8 // 3) - 1) * 16}, v{V_L16}
            v_mul_u32_u24 v{V_TOUCH}, 768, v{V_TOUCH}
            buffer_load_dword v{V_DUMMY}, v{V_TOUCH}, {sr(S_X,4)}, s{S_OFF} offen""")
            continue
        four = w in (6, 9)
        if w == 9: a(f"s_cmp_eq_u32 s{S_WAVE}, 4\ns_cbranch_scc1 NO_X_TOUCH_{w}")
        if opt.rot == 4:
            a(f"""s_lshr_b32 s{S_OFF}, s2, 3
            s_lshl_b32 s{S_OFF}, s{S_OFF}, {2 if four else 3}
            s_add_u32 s{S_OFF}, s{S_OFF}, s{S_WAVE}
            s_lshl_b32 s{S_OFF}, s{S_OFF}, 7
            s_add_u32 s{S_OFF}, s{S_OFF}, s{S_SEG}""")
        else:
            a(f"""s_lshl_b32 s{S_OFF}, s2, {2 if four else 3}
            s_add_u32 s{S_OFF}, s{S_OFF}, s{S_WAVE}
            s_lshl_b32 s{S_OFF}, s{S_OFF}, 7""")
        sh = 15 if opt.rot == 4 else 18
        a(f"""s_add_u32 s{S_OFF}, s{S_OFF}, {lo << sh}
        v_min_u32 v{V_TOUCH}, {(((hi - lo) << four) - 1) * 16}, v{V_L16}
        v_lshl_add_u32 v{V_TOUCH}, v{V_TOUCH}, {sh - 4 - four}, s{S_OFF}
        buffer_load_dword v{V_DUMMY}, v{V_TOUCH}, {sr(S_X,4)}, 0 offen""")
        a(f"NO_X_TOUCH_{w}:")

DEAL = ([4, 2, 4, 7, 6, 3, 1, 5, 0, 4, 2, 6, 1, 7, 3, 5, 0, 4, 7, 3, 0, 1, 5, 6, 2, 5, 0, 1, 6, 7, 3, 2, 0, 5, 3, 1, 6, 7, 2, 4],
        [0, 2, 7, 1, 4, 6, 5, 3, 6, 3, 1, 7, 4, 0, 2, 5, 4, 3, 5, 6, 7, 1, 0, 2, 7, 5, 2, 4, 3, 6, 0, 1, 5, 1, 3, 6, 4, 2, 7, 0])
def deal_bytes():
    out = []
    for t in DEAL:
        assert sorted(t) == sorted(list(range(8)) * 5)
        out += [4 * (5 * w + t[:r].count(w)) | (8 * w + t[:r].count(w)) << 8 for r, w in enumerate(t)] + [0] * 24
    return out

def zero_hist(a):
    a(f"""v_lshlrev_b32 v{T0+3}, 2, v0
    v_mov_b32 v{T0+4}, 0
    v_cmp_gt_u32 vcc, 0x100, v0
    s_and_saveexec_b64 {sr(S_T,2)}, vcc
    ds_write_b32 v{T0+3}, v{T0+4} offset:{L_HIST}
    s_mov_b64 exec, {sr(S_T,2)}""")

def kernel(opt):
    a = Asm(); D = opt.D
    st = lambda n: stamp(a, opt, n)
    a(f"""{KERN}:
    s_cmp_ge_u32 s2, 256
    s_cbranch_scc1 END""")
    if opt.probe: a("s_mov_b32 s93, 0\ns_memrealtime s[98:99]\ns_waitcnt lgkmcnt(0)\ns_mov_b32 s92, s98")
    if opt.stamps:
        for k in range(32): a(f"s_mov_b32 s{S_ST+k}, 0")
    st('start')
    a(f"""s_load_dwordx16 {sr(S_IN,16)}, s[0:1], 0
    s_load_dwordx2 {sr(S_WS,2)}, s[0:1], 80
    s_load_dwordx2 {sr(S_X,2)}, s[0:1], 0
    s_load_dwordx2 {sr(S_OUT,2)}, s[0:1], 64
    ; wave 7 of every workgroup takes 8 lines; the 32 workgroups with equal id % 8 cover 32 KiB
    s_getpc_b64 s[6:7]
CODE_HERE:
    v_lshrrev_b32 v{T0}, 6, v0
    s_lshr_b32 s5, s2, 3
    s_lshl_b32 s4, s5, 10
    v_readfirstlane_b32 s{S_WAVE}, v{T0}
    v_and_b32 v{T0+2}, 7, v0
    v_lshl_add_u32 v{T0+2}, v{T0+2}, 7, s4
    v_min_u32 v{T0+2}, END-CODE_HERE, v{T0+2}
    s_cmp_lg_u32 s{S_WAVE}, 7
    s_cbranch_scc1 NO_CODE_TOUCH
    global_load_dword v{V_DUMMY}, v{T0+2}, s[6:7]
NO_CODE_TOUCH:
    s_mul_i32 s3, s2, {EP * 4}
    v_lshl_add_u32 v{T0}, v0, 4, s3
    v_and_b32 v{T0+2}, 63, v0
    v_lshlrev_b32 v{V_L16}, 4, v{T0+2}
    v_lshlrev_b32 v{CT+5}, 2, v{T0+2}
    v_lshlrev_b32 v{T0+3}, 4, v0
    v_mov_b32 v{T0+4}, 0
    v_mov_b32 v{T0+5}, 0
    v_pk_mov_b32 {vr(ACC,2)}, {vr(T0+4,2)}, {vr(T0+4,2)}
    v_pk_mov_b32 {vr(ACC+2,2)}, {vr(T0+4,2)}, {vr(T0+4,2)}
    ds_write_b128 v{T0+3}, {vr(ACC,4)}
    s_cmp_ge_u32 s{S_WAVE}, 5
    s_waitcnt lgkmcnt(0)
    s_cbranch_scc1 NO_EDGES
    s_cmp_ge_u32 s2, {NP}
    s_cbranch_scc1 AUX_LOAD
    s_setprio 1
    global_load_dwordx4 {vr(D_,4)}, v{T0}, {sr(DST,2)}
    global_load_dwordx4 {vr(S_,4)}, v{T0}, {sr(SRC,2)}
NO_EDGES:""")
    load_epoch(a)
    st('kernargs')
    for k in range(4): a(f"global_load_dword v{CT+k}, v{CT+5}, {sr(WRAD,2)} offset:{k*256}")
    a(f"""v_and_b32 v{CT+5}, 0x7f, v{CT+5}
    global_load_dword v{CT+4}, v{CT+5}, {sr(CG,2)}
    s_and_b32 s3, s2, 0x87
    s_cmp_eq_u32 s3, 0
    s_cselect_b32 s3, 128, 0
    s_add_u32 s3, s3, DEAL_TABLE-CODE_HERE
    v_lshl_add_u32 v{V_DEAL}, v{T0+2}, 1, s3
    global_load_ushort v{V_DEAL}, v{V_DEAL}, s[6:7]
    s_mov_b32 s{S_X+2}, {N * 1024}
    s_mov_b32 s{S_X+3}, 0x20000""")
    a(f"""
    s_and_b32 s4, s2, 7
    s_lshl_b32 s4, s4, 5
    s_lshr_b32 s5, s2, 3
    s_or_b32 s{S_BETA}, s4, s5
    v_mov_b32 v{V_ONE}, 1
    s_mov_b32 s{S_WS+2}, {WS_END if not opt.stamps else WS_STAMP + 0x80000}
    s_mov_b32 s{S_WS+3}, 0x20000
    s_mov_b32 s{S_OUT+2}, {N * 1024}
    s_mov_b32 s{S_OUT+3}, 0x20000
    s_mov_b32 s{S_MASK}, 0xfffffc00
    s_mov_b32 s{S_W0}, 0
    s_mov_b32 s{S_L2E}, 0xbfb8aa3b
    s_mov_b32 s{S_L2E+1}, 0xbfb8aa3b
    s_mov_b32 s{S_SPIN}, {1 << 21}
    s_sub_u32 s{S_SEG}, 0, s2
    s_and_b32 s{S_SEG}, s{S_SEG}, 7
    s_mul_i32 s{S_SEG}, s{S_SEG}, {N // 8 * 1024}
    v_and_b32 v{V_GID}, 0xff, v0
    s_lshl_b32 s3, s{S_BETA}, 4
    s_add_u32 s3, s3, {WS_TAB}
    v_lshl_add_u32 v{V_POS}, v{V_GID}, 12, s3
    v_mul_u32_u24 v{V_GID}, {EP}, v{V_GID}
    v_mul_u32_u24 v{LJ+10}, 0x8000, v{V_L16}
    v_lshl_add_u32 v{LJ+10}, v{T0+2}, 3, v{LJ+10}    ; lane * 8 * 0x10001""")
    for k in range(4, 48, 2): a(f"v_pk_mov_b32 {vr(ACC+k,2)}, {vr(T0+4,2)}, {vr(T0+4,2)}")
    a("s_barrier")
    phase1(a, opt)
    a(f"""s_cmp_ge_u32 s{S_WAVE}, 4
    s_cbranch_scc1 TOTALS
    v_and_b32 v{T0+5}, 0x7ff, v{RECN}
    v_bfe_u32 v{V_LEN}, v{RECN}, 11, 11
    v_add_u32 v{V_GID}, v{V_GID}, v{T0+5}
    v_mov_b32 v{V_PRE}, v{V_LEN}""")
    scan64(a, V_PRE)
    a(f"""s_lshl_b32 s3, s{S_WAVE}, 2
    v_mov_b32 v{T0+2}, s3
    v_add_u32 v{T0+3}, 1, v{V_PRE}
    v_sub_u32 v{V_PRE}, v{V_PRE}, v{V_LEN}
    s_mov_b32 exec_lo, 0
    s_mov_b32 exec_hi, 0x80000000
    ds_write_b32 v{T0+2}, v{T0+3} offset:{L_WT}
    s_mov_b64 exec, -1
TOTALS:
    v_mov_b32 v{T0+2}, 0
TOTALS_SPIN:
    ds_read_b128 {vr(XR,4)}, v{T0+2} offset:{L_WT}
    s_waitcnt lgkmcnt(0)""")
    for k in range(4): a(f"v_readfirstlane_b32 s{4+k}, v{XR+k}")
    a(f"""s_min_u32 s3, s4, s5
    s_min_u32 s8, s6, s7
    s_min_u32 s3, s3, s8
    s_cmp_eq_u32 s3, 0
    s_cbranch_scc0 TOTALS_OK
    s_sub_u32 s{S_SPIN}, s{S_SPIN}, 1
    s_cbranch_scc0 TOTALS_SPIN
    s_endpgm
TOTALS_OK:
    s_add_u32 s5, s5, s4
    s_add_u32 s6, s6, s5
    s_add_u32 s7, s7, s6
    s_sub_u32 s{S_N}, s7, 4
    s_cmp_eq_u32 s{S_WAVE}, 1
    s_cselect_b32 s3, s4, 0
    s_cmp_eq_u32 s{S_WAVE}, 2
    s_cselect_b32 s3, s5, s3
    s_cmp_eq_u32 s{S_WAVE}, 3
    s_cselect_b32 s3, s6, s3
    s_sub_u32 s3, s3, s{S_WAVE}
    v_add_u32 v{V_PRE}, s3, v{V_PRE}
    s_cmp_lg_u32 s{S_WAVE}, 4
    s_cbranch_scc1 EPOCH_DONE
    s_cmp_lg_u32 s2, 0
    s_cbranch_scc1 EPOCH_DONE
    v_mov_b32 v{T0+4}, s{S_NLO}
    v_mov_b32 v{T0+2}, {WS_EPOCH}
    s_mov_b64 exec, 1
    global_store_dword v{T0+2}, v{T0+4}, {sr(S_WS,2)} sc0 sc1
    s_mov_b64 exec, -1
EPOCH_DONE:""")
    x_touch(a, opt, 3, False)
    st('prefix done')
    a(f"""ROUND:
    v_mov_b32 v{T0}, 0
    v_subrev_u32 v{T0+1}, s{S_W0}, v{V_PRE}
    v_mov_b32 v{T0+2}, v{V_GID}
    s_mov_b32 s3, {CAP}
    s_cmp_gt_u32 s{S_N}, {CAP}
    s_cbranch_scc1 EXPAND
    v_lshlrev_b32 v{T0+3}, 2, v{V_PRE}""")
    for j in range(16):
        a(f"v_cmpx_lt_u32 vcc, {j}, v{V_LEN}")
        if j % 2 == 0 and j >= 6: a("s_cbranch_execz EXPAND_DONE")
        a(f"ds_write_b32 v{T0+3}, v{T0+2} offset:{L_SENT + 4*j}\nv_add_u32 v{T0+2}, 1, v{T0+2}")
    a(f"""v_mov_b32 v{T0}, 16
    v_add_u32 v{T0+1}, 16, v{T0+1}
EXPAND:
    v_cmp_lt_u32 vcc, v{T0}, v{V_LEN}
    s_and_b64 exec, exec, vcc
    s_cbranch_execz EXPAND_DONE
    v_cmp_gt_u32 vcc, s3, v{T0+1}
    v_lshlrev_b32 v{T0+3}, 2, v{T0+1}
    s_and_saveexec_b64 {sr(S_T,2)}, vcc
    ds_write_b32 v{T0+3}, v{T0+2} offset:{L_SENT}
    s_mov_b64 exec, {sr(S_T,2)}
    v_add_u32 v{T0}, 1, v{T0}
    v_add_u32 v{T0+1}, 1, v{T0+1}
    v_add_u32 v{T0+2}, 1, v{T0+2}
    s_branch EXPAND
EXPAND_DONE:
    s_mov_b64 exec, -1
    s_sub_u32 s{S_NWIN}, s{S_N}, s{S_W0}
    s_min_u32 s{S_NWIN}, s{S_NWIN}, {CAP}
    v_lshlrev_b32 v{T0}, 2, v0""")
    for i in range(3):
        a(f"""v_add_u32 v{T0+1}, {512*i}, v0
              v_cmp_gt_u32 {sr(S_M+2*i,2)}, s{S_NWIN}, v{T0+1}""")
    st('list built')
    a("s_waitcnt lgkmcnt(0)\ns_barrier")
    st('list barrier')
    G = XR
    KP = TP
    for i in range(3): a(f"ds_read_b32 v{G+i}, v{T0} offset:{L_SENT + 2048*i}")
    a(f"""s_mov_b32 s{S_T+2}, 13743895                      ; 32 * 2^32 / 10000
    s_and_b32 s{S_T+3}, s2, 7
    s_mul_i32 s{S_T+3}, s{S_T+3}, {opt.rot}           ; workgroups with different id % 8 start their sweep at different places
    s_waitcnt lgkmcnt(0)""")
    for i in range(3):
        a(f"v_lshlrev_b32 v{G+4+i}, 3, v{G+i}\nv_lshlrev_b32 v{G+i}, 4, v{G+i}")
    def key_loads(tag):
        a(f"""s_mov_b64 exec, {sr(S_M+4,2)}
        s_cbranch_execz SKIP3{tag}
        buffer_load_dwordx2 {vr(KP+4,2)}, v{G+6}, {sr(S_WS,4)}, 0 offen sc1
        SKIP3{tag}:""")
        for i in range(2):
            a(f"s_mov_b64 exec, {sr(S_M+2*i,2)}\nbuffer_load_dwordx2 {vr(KP+2*i,2)}, v{G+4+i}, {sr(S_WS,4)}, 0 offen sc1")
        a("s_mov_b64 exec, -1")
    key_loads("")
    H = G + 20
    a(f"""v_lshrrev_b32 v{T0}, 4, v{V_L16}              ; lane
    s_cmp_lg_u32 s{S_W0}, 0
    s_cbranch_scc1 KEY_WAIT
    s_cmp_ge_u32 s{S_WAVE}, 4
    s_cbranch_scc1 DEG_DONE""")
    for j in range(NLN):
        t = T0 + 1 + j % 2
        if j < 5: a(f"v_bfe_u32 v{t}, v{RECN+2}, {6*j}, 6")
        elif j == 5: a(f"v_alignbit_b32 v{t}, v{RECN+3}, v{RECN+2}, 30\nv_and_b32 v{t}, 63, v{t}")
        else: a(f"v_bfe_u32 v{t}, v{RECN+3}, {6*j-32}, 6")
        a(f"""v_lshlrev_b32 v{t}, 2, v{t}
              v_cmpx_lt_u32 vcc, {j}, v{V_LEN}
              ds_add_u32 v{t}, v{V_ONE} offset:{L_DEG}""")
    a(f"""s_mov_b64 exec, -1
DEG_DONE:
    v_lshlrev_b32 v{T0+1}, 2, v{T0}
    v_cmp_gt_u32 {sr(S_T,2)}, 40, v{T0}
    v_sub_u32 v{T0+2}, 63, v{T0}
    s_mul_i32 s10, s{S_WAVE}, 5
    s_waitcnt lgkmcnt(0)
    s_barrier
    ds_read_b32 v{H}, v{T0+1} offset:{L_DEG}
    v_add_u32 v{T0+3}, s10, v{T0}
    v_lshlrev_b32 v{T0+4}, 2, v{T0+3}
    s_waitcnt lgkmcnt(0)
    v_lshl_or_b32 v{H}, v{H}, 6, v{T0+2}
    v_cndmask_b32 v{H}, 0, v{H}, {sr(S_T,2)}
    s_nop 0""")
    for k in range(5):
        a(f"v_readlane_b32 s{S_NODE+k}, v{H}, s10")
        if k < 4: a("s_add_u32 s10, s10, 1")
    for k in range(5): a(f"v_cmp_lt_u32 {sr(S_K+2*k,2)}, s{S_NODE+k}, v{H}")
    for k in range(5): a(f"s_bcnt1_i32_b64 s{S_NODE+k}, {sr(S_K+2*k,2)}")
    for k in range(5): a(f"v_readlane_b32 s{S_NODE+k}, v{V_DEAL}, s{S_NODE+k}")
    a("s_nop 0")
    for k in range(5): a(f"v_writelane_b32 v{T0+1}, s{S_NODE+k}, {k}")
    a(f"""v_lshrrev_b32 v{T0+2}, 11, v{T0+1}
    v_bfe_u32 v{T0+5}, v{T0+1}, 8, 3
    v_lshlrev_b32 v{T0+2}, 7, v{T0+2}
    v_and_b32 v{T0+1}, 0xff, v{T0+1}
    v_lshl_or_b32 v{T0+2}, v{T0+5}, 19, v{T0+2}
    s_mov_b64 exec, 0x1f
    ds_write_b32 v{T0+1}, v{T0+3} offset:{L_INV}
    ds_write_b32 v{T0+4}, v{T0+2} offset:{L_MAP}
    s_mov_b64 exec, -1
    s_waitcnt lgkmcnt(0)
    s_barrier""")
    st('dealt')
    a(f"""KEY_WAIT:
    s_lshl_b32 s3, s{S_WAVE}, 10
    s_add_u32 s3, s3, {L_UREC}
    s_mov_b32 s9, {WS_REC}""")
    a("KEY_WAIT0:\ns_waitcnt vmcnt(0)")
    for i in range(3): a(f"v_cmp_ne_u32 {sr(S_K+2*i,2)}, s{S_NLO}, v{KP+2*i+1}")
    for i in range(3): a(f"v_and_b32 v{G+8+i}, 63, v{KP+2*i}\nv_lshlrev_b32 v{G+8+i}, 2, v{G+8+i}")
    for i in range(3): a(f"s_and_b64 {sr(S_K+2*i,2)}, {sr(S_K+2*i,2)}, {sr(S_M+2*i,2)}")
    a(f"""s_or_b64 {sr(S_K,2)}, {sr(S_K,2)}, {sr(S_K+2,2)}
    s_or_b64 {sr(S_K,2)}, {sr(S_K,2)}, {sr(S_K+4,2)}
    s_cbranch_scc0 KEYS_OK
    s_sub_u32 s{S_SPIN}, s{S_SPIN}, 1
    s_cbranch_scc1 END""")
    key_loads("R")
    a("s_branch KEY_WAIT0\nKEYS_OK:")
    st('keys arrived')
    def rec_dma(at):
        for i in (2, 0, 1):
            if opt.recat[i] != at: continue
            a(f"s_add_u32 m0, s3, {i*8192}\ns_mov_b64 exec, {sr(S_M+2*i,2)}")
            if i == 2: a("s_cbranch_execz SKIP3D")
            a(f"buffer_load_dwordx4 v{G+i}, {sr(S_WS,4)}, s9 offen sc1 lds")
            if i == 2: a("SKIP3D:")
        if at in opt.recat: a("s_mov_b64 exec, -1")
    for i in range(3): a(f"ds_read_b32 v{G+8+i}, v{G+8+i} offset:{L_MAP}")
    rec_dma(0)
    for i in range(3):
        a(f"""v_bfe_u32 v{G+16+i}, v{KP+2*i}, 6, 14
              v_mul_hi_u32 v{G+12+i}, s{S_T+2}, v{G+16+i}""")
        if opt.rot: a(f"v_add_u32 v{G+12+i}, s{S_T+3}, v{G+12+i}\nv_and_b32 v{G+12+i}, 31, v{G+12+i}")
        a(f"""v_add_u32 v{T0+1}, {512*i}, v0
              v_lshlrev_b32 v{T0+1}, 21, v{T0+1}
              v_lshl_or_b32 v{G+16+i}, v{G+16+i}, 7, v{T0+1}""")
    for i in range(3):
        a(f"""s_waitcnt lgkmcnt({2-i})
              v_lshrrev_b32 v{T0+1}, 16, v{G+8+i}
              v_and_b32 v{G+8+i}, 0x380, v{G+8+i}
              v_or_b32 v{G+16+i}, v{G+16+i}, v{T0+1}
              v_lshl_add_u32 v{G+8+i}, v{G+12+i}, 2, v{G+8+i}""")
    for i in range(3):
        a(f"s_mov_b64 exec, {sr(S_M+2*i,2)}\nds_add_rtn_u32 v{G+12+i}, v{G+8+i}, v{V_ONE} offset:{L_HIST}")
    a("s_mov_b64 exec, -1")
    rec_dma(1)
    a(f"""s_lshl_b32 s10, s{S_WAVE}, 3
    s_add_u32 s11, s10, 8
    s_and_b32 s11, s11, 63
    s_waitcnt lgkmcnt(0)
    s_barrier""")
    st('hist done')
    a(f"ds_read_b128 {vr(H,4)}, v{V_L16} offset:{L_HIST}")
    rec_dma(2)
    x_touch(a, opt, 8)
    a("s_waitcnt lgkmcnt(0)")
    scan256(a, H, H + 4)
    a(f"""ds_write_b128 v{V_L16}, {vr(H+4,4)} offset:{L_BASE}
    v_readlane_b32 s{S_START}, v{H+4}, s10
    v_readlane_b32 s{S_END}, v{H+4}, s11""")
    for i in range(3): a(f"ds_read_b32 v{G+8+i}, v{G+8+i} offset:{L_BASE}")
    a(f"""s_cmp_eq_u32 s{S_WAVE}, 7
    s_cselect_b32 s{S_END}, s{S_NWIN}, s{S_END}
    v_add_u32 v{V_POS}, s{S_START}, v{T0}
    v_lshlrev_b32 v{V_AENT}, 2, v{V_POS}
    v_add_u32 v{V_AENT}, {L_SENT}, v{V_AENT}
    s_sub_u32 s11, s{S_END}, s{S_START}
    s_max_u32 s10, s11, {D}
    s_add_u32 s10, s10, {opt.gran - 1 - D}
    s_and_b32 s{S_REM}, s10, {-opt.gran}
    s_max_u32 s10, s11, s{S_REM}
    s_sub_u32 s{S_REMB}, s10, s{S_REM}""")
    for i in range(3):
        a(f"""s_waitcnt lgkmcnt({2 if i else 2})
              v_add_lshl_u32 v{G+8+i}, v{G+8+i}, v{G+12+i}, 2
              s_mov_b64 exec, {sr(S_M+2*i,2)}
              ds_write_b32 v{G+8+i}, v{G+16+i} offset:{L_SENT}
              s_mov_b64 exec, -1""")
    a("s_waitcnt lgkmcnt(0)")
    if not opt.xpre: a("s_waitcnt vmcnt(0)")
    a("s_barrier")
    st('sorted')
    if opt.stamps: a(f"s_memtime s[100:101]\ns_waitcnt lgkmcnt(0)\ns_mov_b32 s{S_ST+30}, s100")
    meta_read_entry(a)
    a(f"""s_and_b32 s{S_WM}, s{S_WAVE}, 3
    s_lshl_b32 s{S_WM}, s{S_WM}, 13
    s_add_u32 s{S_WM}, s{S_WM}, {WS_WMIX}
    s_add_u32 s{S_WM+1}, s{S_WM}, 4096""")
    for k in range(8): a(f"v_mov_b32 v{RR+k}, 0")
    a("s_waitcnt lgkmcnt(0)")
    meta_fix_entry(a, False)
    a("s_nop 0")
    def first_rows(lo, hi):
        for e in range(lo, hi):
            a(f"""v_readlane_b32 s{S_K+e}, v{ENT}, {e}
                  s_and_b32 s{S_OFF}, s{S_K+e}, s{S_MASK}
                  buffer_load_dwordx4 {vr(XR+4*e,4)}, v{V_L16}, {sr(S_X,4)}, s{S_OFF} offen""")
    if opt.xpre:
        first_rows(0, opt.xpre)
        if ",8:" in "," + opt.xt and 2 not in opt.recat:
            a(f"s_cmp_lg_u32 s{S_W0}, 0\ns_cbranch_scc1 REC_WAIT\ns_waitcnt vmcnt({opt.xpre + 1})\ns_branch REC_IN\nREC_WAIT:")
        a(f"s_waitcnt vmcnt({opt.xpre})\nREC_IN:")
        st('recs landed')
        a("s_barrier")
    meta_read_rec(a)
    first_rows(opt.xpre, D)
    a(f"v_mov_b32 v{KEY}, v{ENT}")
    a(f"""s_waitcnt lgkmcnt(0)
    v_mov_b32 v{EF}, v{RECN+2}
    v_mov_b32 v{EF+1}, v{RECN+3}""")
    for i in range(4): a(w_mfma(i))
    a(p_mfma(0, 0)); a(p_mfma(0, 1)); a(p_mfma(1, 0))
    a("s_nop 1")
    for m in range(4): w_cvt(a, m)
    for odd in range(2):
        u, r = act_regs(0, odd)
        for h in range(2): a(act_addr(TT + 2 * odd + h, u + h))
        for h in range(2): a(act_read(r + h, TT + 2 * odd + h))
    a(f"s_waitcnt vmcnt({D-1})")
    st('first row')
    a(t_mfma(0, 0)); a(t_mfma(0, 1))
    body(a, opt)
    a(f"""MAIN_DONE:
    s_add_u32 s{S_W0}, s{S_W0}, {CAP}
    s_cmp_ge_u32 s{S_W0}, s{S_N}
    s_cbranch_scc1 ALL_DONE
    s_waitcnt vmcnt(0) lgkmcnt(0)""")
    zero_hist(a)
    a("s_waitcnt lgkmcnt(0)\ns_barrier\ns_branch ROUND\nALL_DONE:")
    st('main done')
    if opt.stamps: a(f"s_memtime s[100:101]\ns_waitcnt lgkmcnt(0)\ns_sub_u32 s{S_ST+30}, s100, s{S_ST+30}")
    PK = WPK; VOUT = UU
    a(f"""v_lshrrev_b32 v{T0+3}, 8, v{V_L16}            ; lane >> 4
    s_lshr_b32 s{S_T}, s{S_WAVE}, 2                   ; half
    s_mul_i32 s{S_T+1}, s{S_T}, 80
    v_mul_u32_u24 v{T0+1}, 20, v{T0+3}
    v_add_u32 v{T0+1}, s{S_T+1}, v{T0+1}""")
    for t in range(5): a(f"ds_read_b32 v{VOUT+t}, v{T0+1} offset:{L_INV + 4*t}")
    for sl in range(5):
        for o in range(4): a(f"v_cvt_pk_bf16_f32 v{PK+4*sl+o}, v{ACC+8*sl+o}, v{ACC+8*sl+4+o}")
    a(f"""s_mul_i32 s{S_T+1}, s{S_WAVE}, {4 * AGG_RS}
    s_add_u32 s{S_T+1}, s{S_T+1}, {L_AGG}
    v_lshrrev_b32 v{T0+4}, 2, v{V_L16}
    v_add_u32 v{T0+4}, s{S_T+1}, v{T0+4}
    v_bfe_u32 v{T0+2}, v{V_L16}, 4, 4                 ; lane & 15
    s_mul_i32 s{S_T+1}, s{S_T}, {16 * AGG_RS}
    s_add_u32 s{S_T+1}, s{S_T+1}, {L_AGG}
    v_mul_u32_u24 v{T0}, {AGG_RS}, v{T0+2}
    v_lshl_add_u32 v{T0}, v{T0+3}, 4, v{T0}
    v_add_u32 v{T0}, s{S_T+1}, v{T0}
    s_lshl_b32 s{S_T}, s{S_BETA}, 10
    s_and_b32 s{S_T+1}, s{S_WAVE}, 3
    s_lshl_b32 s{S_T+1}, s{S_T+1}, 8
    s_add_u32 s{S_T}, s{S_T}, s{S_T+1}
    v_lshl_add_u32 v{T0+2}, v{T0+2}, 4, s{S_T}
    s_waitcnt lgkmcnt(0)""")
    for t in range(5): a(f"v_lshl_add_u32 v{VOUT+t}, v{VOUT+t}, 18, v{T0+2}")
    a("s_barrier")
    st('all main done')
    AF = XR
    def wr(sl):
        for o in range(4): a(f"ds_write_b32 v{T0+4}, v{PK+4*sl+o} offset:{(32*sl + o)*AGG_RS}")
    def rd(t):
        for ks in range(4): a(f"ds_read_b128 {vr(AF+16*(t%2)+4*ks,4)}, v{T0} offset:{t*32*AGG_RS + ks*64}")
    def mm(t, waits, writes=None):
        for ks in range(4):
            if waits[ks] is not None: a(f"s_waitcnt lgkmcnt({waits[ks]})")
            for j in range(2):
                d = ACC + 8 * t + 4 * j
                a(f"v_mfma_f32_16x16x32_bf16 {vr(d,4)}, {vr(AF+16*(t%2)+4*ks,4)}, {vr(WMIX+16*j+4*ks,4)}, " + ("0" if ks == 0 else vr(d, 4)))
            if writes:
                s0, lo, hi = writes[ks]
                for n in range(lo, hi): a(f"ds_write_b32 v{T0+4}, v{PK+4*s0+n} offset:{(32*(s0 + n // 4) + n % 4)*AGG_RS}")
    def pack_store(t):
        d = ACC + 8 * t; p = RR + 4 * (t % 2)
        for j in range(4): a(f"v_cvt_pk_bf16_f32 v{p+j}, v{d+2*j}, v{d+2*j+1}")
        a(f"buffer_store_dwordx4 {vr(p,4)}, v{VOUT+t}, {sr(S_OUT,4)}, 0 offen {opt.outst}")
    wr(0); wr(1)
    a("s_waitcnt vmcnt(0) lgkmcnt(0)\ns_barrier")
    st('agg in LDS')
    rd(0); rd(1)
    mm(0, [7, 9, 11, 13], [(2, 0, 3), (2, 3, 6), (2, 6, 9), (2, 9, 12)])
    a("s_waitcnt lgkmcnt(0)\ns_barrier")
    rd(2)
    mm(1, [None] * 4); pack_store(0)
    rd(3)
    mm(2, [7, 6, 5, 4]); pack_store(1)
    rd(4)
    mm(3, [7, 6, 5, 4]); pack_store(2)
    mm(4, [3, 2, 1, 0]); pack_store(3)
    a("s_nop 3")
    pack_store(4)
    st('end')
    if opt.probe:
        a(f"""s_cmp_eq_u32 s93, 0
        s_cselect_b32 s93, s92, s93
        s_sub_u32 s93, s93, s92
        s_mul_i32 s93, s93, 4
        s_add_u32 s92, s92, s93
        s_add_u32 s92, s92, 6000
        HOLD_SPIN:
        s_memrealtime s[98:99]
        s_waitcnt lgkmcnt(0)
        s_sub_u32 s98, s98, s92
        s_cmp_lt_i32 s98, 0
        s_cbranch_scc1 HOLD_SPIN""")
    if opt.stamps:
        a("s_waitcnt vmcnt(0)")
        st('stores done 2')
        a(f"""s_lshl_b32 s10, s2, 3
        s_add_u32 s10, s10, s{S_WAVE}
        s_lshl_b32 s10, s10, 7
        s_add_u32 s10, s10, {WS_STAMP}
        v_mov_b32 v{T0}, s10
        s_sub_u32 s{S_ST+31}, s{S_END}, s{S_START}
        s_sub_u32 s{S_ST+29}, {1 << 21}, s{S_SPIN}""")
        for k in range(32): a(f"v_mov_b32 v{XR+k}, s{S_ST+k}")
        for k in range(8): a(f"buffer_store_dwordx4 {vr(XR+4*k,4)}, v{T0}, {sr(S_WS,4)}, 0 offen offset:{16*k}")
    a("END:\ns_endpgm")
    a(".p2align 6\n.type DEAL_TABLE,@object\nDEAL_TABLE:\n.short " + ", ".join(map(str, deal_bytes())) + "\n.size DEAL_TABLE, 256")
    return a.text()

def generate(opt):
    here = os.path.dirname(os.path.abspath(__file__))
    out = open(here + "/header.txt").read()
    out += f"; @launch grid=(256,1,1) block=(512,1,1) lds={LDS_BYTES}\n"
    out += f'.amdgcn_target "amdgcn-amd-amdhsa--gfx950"\n.text\n.globl {KERN}\n.p2align 8\n.type {KERN},@function\n'
    out += kernel(opt)
    out += f""".section .rodata,"a"
.p2align 6
.amdhsa_kernel {KERN}
  .amdhsa_next_free_vgpr {NVGPR}
  .amdhsa_next_free_sgpr {NSGPR if opt.stamps or opt.probe else 66}
  .amdhsa_accum_offset {(NVGPR + 3) // 4 * 4}
  .amdhsa_group_segment_fixed_size 0
  .amdhsa_kernarg_size 88
  .amdhsa_user_sgpr_count 2
  .amdhsa_user_sgpr_kernarg_segment_ptr 1
  .amdhsa_system_sgpr_workgroup_id_x 1
  .amdhsa_float_denorm_mode_32 3
.end_amdhsa_kernel
"""
    return out

def options(argv):
    p = argparse.ArgumentParser()
    p.add_argument("-o", default="/code/" + NAME + ".s")
    p.add_argument("--stamps", action="store_true")
    p.add_argument("--probe", default="")
    p.add_argument("--D", type=int, default=6)
    p.add_argument("--recat", type=lambda t: tuple(map(int, t.split(","))), default=(0, 1, 0))
    p.add_argument("--only", default="")
    p.add_argument("--rot", type=int, default=4)
    p.add_argument("--gran", type=int, default=4)
    p.add_argument("--late", type=int, default=62)
    p.add_argument("--xpre", type=int, default=2)
    p.add_argument("--xt", default="9:0:4,5:4:14,3:14:28,8:28:39")
    p.add_argument("--lsplit", type=int, default=5)
    p.add_argument("--k1st", default="sc0 sc1")
    p.add_argument("--outst", default="sc0 sc1")
    return p.parse_args(argv)

if __name__ == "__main__":
    opt = options(sys.argv[1:])
    open(opt.o, "w").write(generate(opt))
    if opt.stamps: open(opt.o + ".names", "w").write(repr(STAMPS))
    import subprocess
    here = os.path.dirname(os.path.abspath(__file__))
    r = subprocess.run([sys.executable, here + "/hazards.py", opt.o], capture_output=True, text=True).stdout
    if " 0 finding" not in r: print(r)
    r = subprocess.run([sys.executable, here + "/../cdna_unwritten_srd_check.py", opt.o], capture_output=True, text=True)
    if r.returncode: print(r.stdout, r.stderr)
```
